```python
import torch

def _softmax(x, axis=-1):
    return torch.softmax(x, dim=axis)
def _gelu(x):
    return torch.nn.functional.gelu(x, approximate="tanh")
def _silu(x):
    return torch.nn.functional.silu(x)
def _sigmoid(x):
    return torch.sigmoid(x)
def _layernorm(x, axis=-1, eps=1e-5):
    m = x.mean(dim=axis, keepdim=True)
    v = x.var(dim=axis, keepdim=True, unbiased=False)
    return (x - m) / torch.sqrt(v + eps)
def _scatter_add(tgt, idx, src, axis=0):
    return tgt.clone().index_add_(axis, idx, src)
def _segment_sum(src, seg, n):
    out = torch.zeros((n,) + src.shape[1:], dtype=src.dtype)
    return out.index_add_(0, seg, src)
def _pad(x, pw):
    flat = tuple(v for pair in reversed(pw) for v in pair)
    return torch.nn.functional.pad(x, flat)

kernel_name = 'standalone__seq2seq_rnn_t_joint__speech'

def setup_inputs():

    _w = (lambda a: (lambda t: t.to(torch.bfloat16) if t.is_floating_point() else t)(torch.as_tensor(a)))
    B, T, D, K = 2, 16000, 256, 31
    U = 8
    sc = (1.0 / (K * D)) ** 0.5
    sd = (1.0 / D) ** 0.5
    return {
        "x": _w((lambda *s: torch.randn(*s, dtype=torch.bfloat16) * 0.2)(B, T, D) * 0.5),
        "w1": _w((lambda *s: torch.randn(*s, dtype=torch.bfloat16) * 3.2)(K, D, D) * sc),
        "w2": _w((lambda *s: torch.randn(*s, dtype=torch.bfloat16) * 3.2)(K, D, D) * sc),
        "g": _w((lambda *s: torch.randn(*s, dtype=torch.bfloat16) * 3.2)(B, U, D) * 0.5),
        "w_f": _w((lambda *s: torch.randn(*s, dtype=torch.bfloat16) * 3.2)(D, D) * sd),
        "w_g": _w((lambda *s: torch.randn(*s, dtype=torch.bfloat16) * 3.2)(D, D) * sd),
        "w_o": _w((lambda *s: torch.randn(*s, dtype=torch.bfloat16) * 3.2)(D, D) * sd),
    }

def reference(x, w1, w2, g, w_f, w_g, w_o):
    B, T, D = x.shape
    K = w1.shape[0]
    pad = K // 2
    xp = _pad(x, ((0,0),(pad,pad),(0,0)))
    h = torch.zeros_like(x)
    for i in range(K):
        h = h + torch.einsum("btc,cd->btd", xp[:, i:i+T, :], w1[i])
    h = _gelu(h)[:, ::2, :]
    T1 = h.shape[1]
    hp = _pad(h, ((0,0),(pad,pad),(0,0)))
    f = torch.zeros_like(h)
    for i in range(K):
        f = f + torch.einsum("btc,cd->btd", hp[:, i:i+T1, :], w2[i])
    f = _gelu(f)[:, ::2, :]
    fe = torch.einsum("btd,de->bte", f, w_f)
    ge = torch.einsum("bud,de->bue", g, w_g)
    j = torch.tanh(fe[:, :, None, :] + ge[:, None, :, :])
    return torch.einsum("btud,dv->btuv", j, w_o)
```

```python
import os
from asmlib import Asm, vr, sr, f32hex

EXP = os.environ.get("EXP", "").split(",")
WS_FP = 0x1A00000
WS_FPS = 0x800000
WS_WF = 0x2A00000
WS_WO = 0x2A20000
WS_GE = 0x2A40000
WS_STAMP = 0x3000000
C2 = 2.0 * 1.4426950408889634


def add64(a, d, lo, off):
    a.e(f"s_add_u32 s{d}, s{lo}, {off}")
    a.e(f"s_addc_u32 s{d+1}, s{lo+1}, 0")


def prep_small(a, name):
    a.label(f"L_{name}_small")
    a.e("s_load_dwordx4 s[4:7], s[0:1], 24")
    a.e("s_load_dwordx4 s[36:39], s[0:1], 40")
    a.e("s_load_dwordx2 s[30:31], s[0:1], 72")
    a.e("v_readfirstlane_b32 s20, v0")
    a.e("s_lshr_b32 s20, s20, 6")
    a.e("s_lshr_b32 s21, s2, 2")
    a.e("s_and_b32 s22, s2, 3")
    a.e("v_and_b32 v1, 63, v0")
    a.e("v_lshrrev_b32 v2, 5, v1")
    a.e("v_and_b32 v3, 31, v1")
    a.e("v_lshlrev_b32 v5, 12, v2")
    a.e("v_lshl_add_u32 v5, v3, 2, v5")
    a.e("s_lshl_b32 s23, s20, 15")
    a.e("s_lshl_b32 s24, s22, 7")
    a.e("s_add_u32 s23, s23, s24")
    a.e("s_mov_b32 s32, 0x05040100")
    a.e("s_mov_b32 s33, 0x07060302")
    a.e("s_waitcnt lgkmcnt(0)")
    a.e("s_cmp_eq_u32 s21, 1")
    a.e("s_cselect_b32 s8, s38, s6")
    a.e("s_cselect_b32 s9, s39, s7")
    a.e("s_cmp_eq_u32 s21, 2")
    a.e("s_cselect_b32 s8, s36, s8")
    a.e("s_cselect_b32 s9, s37, s9")
    a.e("s_mov_b32 s10, 131072")
    a.e("s_mov_b32 s11, 0x00020000")
    R, O = 16, 48
    for k in range(4):
        for e in range(8):
            a.e(f"buffer_load_dword v{R+k*8+e}, v5, s[8:11], s23 offen offset:{e*512}")
        if k < 3:
            a.e("s_add_u32 s23, s23, 8192")
    a.e("s_mov_b32 s16, s4")
    a.e("s_mov_b32 s17, s5")
    a.e("s_mov_b32 s18, 8192")
    a.e("s_mov_b32 s19, 0x00020000")
    a.e("v_lshlrev_b32 v6, 9, v3")
    a.e("v_lshl_add_u32 v6, v2, 4, v6")
    a.e("s_lshl_b32 s24, s20, 7")
    for k in range(4):
        a.e(f"buffer_load_dwordx4 {vr(80+4*k)}, v6, s[16:19], s24 offen offset:{k*32}")
    a.e("s_lshl_b32 s24, s21, 17")
    a.e(f"s_add_u32 s24, s24, {WS_WF}")
    add64(a, 12, 30, "s24")
    a.e("s_mov_b32 s14, 131072")
    a.e("s_mov_b32 s15, 0x00020000")
    a.e("s_waitcnt vmcnt(0)")
    for k in range(4):
        for jn in range(2):
            for e2 in range(4):
                a.e(f"v_perm_b32 v{O+(k*2+jn)*4+e2}, v{R+k*8+2*e2+1}, v{R+k*8+2*e2}, s{32+jn}")
    a.e("s_cmp_eq_u32 s21, 2")
    a.e(f"s_cbranch_scc1 L_{name}_ge")
    a.e("v_lshlrev_b32 v4, 4, v1")
    a.e("s_lshl_b32 s24, s22, 15")
    a.e("s_lshl_b32 s25, s20, 13")
    a.e("s_add_u32 s24, s24, s25")
    a.e("s_add_u32 s25, s24, 4096")
    for i in range(8):
        a.e(f"buffer_store_dwordx4 {vr(O+4*i)}, v4, s[12:15], s{24+(i>>2)} offen offset:{(i&3)*1024}")
    a.e("s_endpgm")
    a.label(f"L_{name}_ge")
    ACC = 96
    for k in range(4):
        for jn in range(2):
            c = "0" if k == 0 else vr(ACC + 16 * jn, 16)
            a.e(f"v_mfma_f32_32x32x16_bf16 {vr(ACC+16*jn,16)}, {vr(O+(k*2+jn)*4)}, {vr(80+4*k)}, {c}")
    a.e("v_lshlrev_b32 v4, 4, v1")
    a.e("s_lshl_b32 s24, s20, 13")
    a.e("v_add_u32 v7, s24, v4")
    a.e("s_nop 15")
    for i in range(8):
        a.e(f"ds_write_b128 v7, {vr(ACC+4*i)} offset:{i*1024}")
    a.e("s_waitcnt lgkmcnt(0)")
    a.e("s_barrier")
    a.e("s_lshl_b32 s24, s20, 10")
    a.e("v_add_u32 v7, s24, v4")
    for src in range(4):
        for jn in range(2):
            a.e(f"ds_read_b128 {vr(16+(src*2+jn)*4)}, v7 offset:{src*8192 + jn*4096}")
    a.e("s_mov_b32 s14, 16384")
    a.e("v_lshlrev_b32 v8, 10, v3")
    a.e("v_lshl_add_u32 v8, v2, 5, v8")
    a.e("s_lshl_b32 s24, s22, 8")
    a.e("s_lshl_b32 s25, s20, 6")
    a.e("s_add_u32 s24, s24, s25")
    a.e("s_mov_b32 s34, 0xffff0000")
    a.e(f"s_mov_b32 s35, {f32hex(C2)}")
    a.e("s_waitcnt lgkmcnt(0)")
    for r in range(8):
        for src in range(1, 4):
            a.e(f"v_add_f32 v{16+r}, v{16+r}, v{16+src*8+r}")
    for i in range(4):
        a.e(f"v_cvt_pk_bf16_f32 v{48+i}, v{16+i}, v{20+i}")
    for i in range(4):
        a.e(f"v_lshlrev_b32 v{56+2*i}, 16, v{48+i}")
        a.e(f"v_and_b32 v{57+2*i}, s34, v{48+i}")
    for r in range(8):
        a.e(f"v_mul_f32 v{56+r}, s35, v{56+r}")
    a.e(f"buffer_store_dwordx4 {vr(56)}, v8, s[12:15], s24 offen")
    a.e(f"buffer_store_dwordx4 {vr(60)}, v8, s[12:15], s24 offen offset:16")
    a.e("s_endpgm")


def joint_kernel(name):
    a = Asm()
    NWG = 250
    STAMP = "stamp" in EXP
    FP = 528
    F_B, GE_B, J_B = 0, 17408, 25600
    LDS = J_B + 2 * 16384
    sF, sW, sO, sG = 8, 12, 16, 40
    sWv, sW4 = 20, 21
    sSt = 60
    vL = 255

    def stamp(i, fence=True):
        if STAMP:
            a.e(f"s_memtime s[{sSt+2*i}:{sSt+2*i+1}]")
            if fence:
                a.e("s_waitcnt lgkmcnt(0)")
                a.lg = []

    def rstamp(i):
        if STAMP:
            a.e(f"s_memrealtime s[{sSt+2*i}:{sSt+2*i+1}]")
            a.e("s_waitcnt lgkmcnt(0)")
            a.lg = []

    a.label(name)
    a.e(f"s_cmp_ge_u32 s2, {NWG}")
    a.e(f"s_cbranch_scc1 L_{name}_done")
    if STAMP:
        for i in range(28):
            a.e(f"s_mov_b32 s{sSt+i}, 0")
        a.e(f"s_memrealtime s[{sSt+20}:{sSt+21}]")
    stamp(0, False)
    a.e("s_load_dwordx2 s[28:29], s[0:1], 56")
    a.e("s_load_dwordx2 s[30:31], s[0:1], 72")
    a.e(f"v_readfirstlane_b32 s{sWv}, v0")
    a.e(f"s_lshr_b32 s{sWv}, s{sWv}, 6")
    a.e(f"s_and_b32 s{sW4}, s{sWv}, 3")
    a.e(f"v_and_b32 v{vL}, 63, v0")
    a.e(f"v_lshlrev_b32 v254, 4, v{vL}")
    a.e("s_cmp_ge_u32 s2, 125")
    a.e("s_cselect_b32 s34, 8192, 0")
    a.e("s_lshl_b32 s35, s2, 15")
    a.e(f"s_add_u32 s35, s35, {WS_FP}")
    a.e(f"s_lshl_b32 s36, s{sWv}, 12")
    a.e(f"s_add_u32 s37, s36, {WS_FPS}")
    a.e("s_waitcnt lgkmcnt(0)")
    add64(a, sF, 30, "s35")
    a.e(f"s_mov_b32 s{sF+2}, {WS_FPS + 32768}")
    a.e(f"s_mov_b32 s{sF+3}, 0x00020000")
    X = 192
    for r in range(4):
        a.vmem(f"buffer_load_dwordx4 {vr(X+4*r)}, v254, {sr(sF)}, s36 offen offset:{r*1024}", ("F", r))
        a.vmem(f"buffer_load_dwordx4 {vr(X+16+4*r)}, v254, {sr(sF)}, s37 offen offset:{r*1024}", ("F", r))
    a.e(f"s_add_u32 s34, s34, {WS_GE}")
    add64(a, sG, 30, "s34")
    a.e(f"s_mov_b32 s{sG+2}, 8192")
    a.e(f"s_mov_b32 s{sG+3}, 0x00020000")
    a.e(f"s_lshl_b32 s38, s{sWv}, 10")
    a.vmem(f"buffer_load_dwordx4 {vr(X+32)}, v254, {sr(sG)}, s38 offen", "G")
    a.e(f"s_cmp_ge_u32 s{sWv}, 4")
    a.e(f"s_mov_b32 s35, {WS_WO}")
    a.e(f"s_cselect_b32 s35, {WS_WF}, s35")
    a.e(f"s_lshl_b32 s36, s{sW4}, 15")
    a.e("s_add_u32 s35, s35, s36")
    add64(a, sW, 30, "s35")
    a.e(f"s_mov_b32 s{sW+2}, 32768")
    a.e(f"s_mov_b32 s{sW+3}, 0x00020000")
    a.e("s_lshl_b32 s35, s2, 17")
    add64(a, sO, 28, "s35")
    a.e(f"s_mov_b32 s{sO+2}, 131072")
    a.e(f"s_mov_b32 s{sO+3}, 0x00020000")
    W = 0

    def wloads():
        for i in range(32):
            if i % 4 == 0:
                a.e(f"s_mov_b32 s36, {i*1024}")
            a.vmem(f"buffer_load_dwordx4 {vr(W+4*i)}, v254, {sr(sW)}, s36 offen offset:{(i%4)*1024}", ("W", i // 2))

    k0 = -2.0 * 1.4426950408889634 * 0.7978845608028654

    def fstage():
        a.e(f"s_mov_b32 s44, {f32hex(k0 * 0.044715)}")
        a.e(f"v_mov_b32 v253, {f32hex(k0)}")
        a.e(f"s_mul_i32 s36, s{sWv}, {4*FP}")
        a.e(f"v_lshl_add_u32 v252, v{vL}, 3, s36")
        a.e(f"v_add_u32 v251, s38, v254")
        T = 232
        for r in range(4):
            a.wait(vm=(("F", r),))
            ys = [X + 4 * r + i for i in range(4)]
            ts = [T + i for i in range(4)]
            for i in range(4):
                a.e(f"v_add_f32 v{ys[i]}, v{ys[i]}, v{ys[i]+16}")
            for y, t in zip(ys, ts):
                a.e(f"v_mul_f32 v{t}, v{y}, v{y}")
            for y, t in zip(ys, ts):
                a.e(f"v_fma_f32 v{t}, v{t}, s44, v253")
            for y, t in zip(ys, ts):
                a.e(f"v_mul_f32 v{t}, v{t}, v{y}")
            for y, t in zip(ys, ts):
                a.e(f"v_exp_f32 v{t}, v{t}")
            for y, t in zip(ys, ts):
                a.e(f"v_add_f32 v{t}, 1.0, v{t}")
            for y, t in zip(ys, ts):
                a.e(f"v_rcp_f32 v{t}, v{t}")
            for y, t in zip(ys, ts):
                a.e(f"v_mul_f32 v{y}, v{y}, v{t}")
            o = 236 + 2 * r
            a.e(f"v_cvt_pk_bf16_f32 v{o}, v{ys[0]}, v{ys[1]}")
            a.e(f"v_cvt_pk_bf16_f32 v{o+1}, v{ys[2]}, v{ys[3]}")
            a.lds(f"ds_write_b64 v252, {vr(o,2)} offset:{F_B + r*FP}", "W")
        a.wait(vm=("G",))
        a.lds(f"ds_write_b128 v251, {vr(X+32)} offset:{GE_B}", "W")
        a.wait(lg_all=True)
        a.e("s_barrier")

    a.e(f"s_cmp_ge_u32 s{sWv}, 4")
    a.e(f"s_cbranch_scc1 L_{name}_T")
    vm0 = list(a.vm)

    fstage()
    wloads()
    ACC = (128, 160)
    JR = 192
    PKR = 224
    vO = 250
    a.e(f"v_lshrrev_b32 v{vO}, 5, v{vL}")
    a.e(f"v_lshlrev_b32 v{vO}, 14, v{vO}")
    a.e(f"v_and_b32 v249, 31, v{vL}")
    a.e(f"v_lshl_add_u32 v{vO}, v249, 2, v{vO}")
    a.e(f"s_lshl_b32 s36, s{sW4}, 7")
    a.e(f"v_add_u32 v{vO}, s36, v{vO}")
    for r in range(16):
        a.e(f"s_mov_b32 s{44+r}, {(8*(r>>2) + (r&3)) * 4096}")

    def out_ops(u):
        ops = []
        ac = ACC[u & 1]
        for r in range(16):
            ops.append(f"v_cvt_pk_bf16_f32 v{PKR+r}, v{ac+r}, v{ac+16+r}")
            ops.append(("st", f"buffer_store_dword v{PKR+r}, v{vO}, {sr(sO)}, s{44+r} offen offset:{u*512}"))
        return ops

    PD = 6
    for u in range(8):
        a.e("s_barrier")
        if u == 0:
            stamp(7)
            rstamp(12)
        jb = J_B + (u & 1) * 16384
        side = out_ops(u - 1) if u else []
        for ks in range(PD):
            a.lds(f"ds_read_b128 {vr(JR+4*(ks%8))}, v254 offset:{jb + ks*1024}", ("J", u, ks))
        for ks in range(16):
            a.wait(lg=(("J", u, ks),), vm=(("W", ks),))
            for jn in range(2):
                ac = ACC[u & 1] + 16 * jn
                c = "0" if ks == 0 else vr(ac, 16)
                a.e(f"v_mfma_f32_32x32x16_bf16 {vr(ac,16)}, {vr(JR+4*(ks%8))}, {vr(W+(ks*2+jn)*4)}, {c}")
                if jn == 0 and ks + PD < 16:
                    a.lds(f"ds_read_b128 {vr(JR+4*((ks+PD)%8))}, v254 offset:{jb + (ks+PD)*1024}", ("J", u, ks + PD))
                if ks >= 2 and side:
                    for _ in range(2 if ks < 4 else 1):
                        if side:
                            op = side.pop(0)
                            if isinstance(op, tuple):
                                if len(a.vm) > 40:
                                    a.e("s_waitcnt vmcnt(24)")
                                    a.vm = a.vm[-24:]
                                a.vmem(op[1], "S")
                            else:
                                a.e(op)
        assert not side
    stamp(8, False)
    rstamp(13)
    a.e("s_nop 15")
    for op in out_ops(7):
        a.e(op[1] if isinstance(op, tuple) else op)
    a.e(f"s_branch L_{name}_fin")

    a.label(f"L_{name}_T")
    a.vm, a.lg = list(vm0), []
    wloads()
    stamp(2)
    fstage()
    stamp(3)
    FE = 128
    FR = 160
    GEC = 192
    PK = 224
    vF, vG, vJ = 250, 249, 248
    a.e(f"v_and_b32 v{vF}, 31, v{vL}")
    a.e(f"v_mul_u32_u24 v{vF}, {FP}, v{vF}")
    a.e(f"v_lshrrev_b32 v{vG}, 5, v{vL}")
    a.e(f"v_lshl_add_u32 v{vF}, v{vG}, 4, v{vF}")
    for ks in range(8):
        a.lds(f"ds_read_b128 {vr(FR+4*ks)}, v{vF} offset:{F_B + ks*32}", ("A", ks))
    a.e(f"v_lshlrev_b32 v{vG}, 5, v{vG}")
    a.e(f"s_lshl_b32 s36, s{sW4}, 8")
    a.e(f"v_add_u32 v{vG}, s36, v{vG}")
    a.e(f"s_lshl_b32 s36, s{sW4}, 12")
    a.e(f"v_add_u32 v{vJ}, s36, v254")
    for ks in range(16):
        a.wait(lg=(("A", ks),), vm=(("W", ks),))
        for jn in range(2):
            c = "0" if ks == 0 else vr(FE + 16 * jn, 16)
            a.e(f"v_mfma_f32_32x32x16_bf16 {vr(FE+16*jn,16)}, {vr(W+(ks*2+jn)*4)}, {vr(FR+4*(ks%8))}, {c}")
        if ks + 8 < 16:
            a.lds(f"ds_read_b128 {vr(FR+4*(ks%8))}, v{vF} offset:{F_B + (ks+8)*32}", ("A", ks + 8))

    def geread(u):
        for k4 in range(4):
            for h in range(2):
                a.lds(f"ds_read_b128 {vr(GEC+8*k4+4*h)}, v{vG} offset:{GE_B + u*1024 + k4*64 + h*16}", ("G", k4))

    geread(0)
    a.e("s_mov_b32 s44, 0xffff0000")
    a.e(f"s_mov_b32 s45, {f32hex(C2)}")
    a.e("s_nop 7")
    stamp(4)
    FS = 0
    for r in range(16):
        a.e(f"v_cvt_pk_bf16_f32 v{PK+r}, v{FE+r}, v{FE+16+r}")
    for r in range(16):
        a.e(f"v_lshlrev_b32 v{FS+2*r}, 16, v{PK+r}")
        a.e(f"v_and_b32 v{FS+2*r+1}, s44, v{PK+r}")
    for r in range(32):
        a.e(f"v_mul_f32 v{FS+r}, s45, v{FS+r}")
    stamp(5)
    G2 = 32
    for u in range(8):
        gb = GEC
        for k4 in range(4):
            a.wait(lg=(("G", k4),))
            xs = [G2 + 8 * k4 + i for i in range(8)]
            for i, x in enumerate(xs):
                a.e(f"v_add_f32 v{x}, v{gb+8*k4+i}, v{FS+8*k4+i}")
            if k4 == 3 and u < 7:
                geread(u + 1)
            for x in xs:
                a.e(f"v_exp_f32 v{x}, v{x}")
            for x in xs:
                a.e(f"v_add_f32 v{x}, 1.0, v{x}")
            for x in xs:
                a.e(f"v_rcp_f32 v{x}, v{x}")
            for x in xs:
                a.e(f"v_fma_f32 v{x}, v{x}, -2.0, 1.0")
            for i in range(4):
                a.e(f"v_cvt_pk_bf16_f32 v{PK+4*k4+i}, v{xs[2*i]}, v{xs[2*i+1]}")
            a.lds(f"ds_write_b128 v{vJ}, {vr(PK+4*k4)} offset:{J_B + (u&1)*16384 + k4*1024}", "W")
        a.wait(lg_all=True)
        a.e("s_barrier")
        if u == 0:
            stamp(7)
            rstamp(12)
    stamp(8)
    rstamp(13)
    a.label(f"L_{name}_fin")
    if STAMP:
        a.e("s_waitcnt vmcnt(0)")
        stamp(9, False)
        a.e(f"s_memrealtime s[{sSt+22}:{sSt+23}]")
        a.e(f"s_cmp_lg_u32 s{sWv}, {os.environ.get('SWJ', '0')}")
        a.e(f"s_cbranch_scc1 L_{name}_done")
        a.e("s_lshl_b32 s36, s2, 7")
        a.e(f"s_add_u32 s36, s36, {WS_STAMP + 2*0x10000}")
        add64(a, 40, 30, "s36")
        a.e("s_mov_b32 s42, 128")
        a.e("s_mov_b32 s43, 0x00020000")
        a.e("s_waitcnt lgkmcnt(0)")
        a.e("v_mov_b32 v8, 0")
        for i in range(28):
            a.e(f"v_mov_b32 v0, s{sSt+i}")
            a.e(f"buffer_store_dword v0, v8, s[40:43], 0 offen offset:{4*i}")
    a.label(f"L_{name}_done")
    a.e("s_endpgm")
    return a.L, LDS, 256


def joint_kernels(ks):
    return ks + [("joint_kernel", 250, 512) + joint_kernel("joint_kernel")]
```

```python
import os
import sys

from asmlib import Asm, vr, sr, kd, f32hex, align8
from gen2_joint import prep_small

EXP = os.environ.get("EXP", "").split(",")

WS_W1P = 0x0000000
WS_W2P = 0x0900000
WS_H = 0x1200000
WS_FP = 0x1A00000
WS_FPS = 0x800000
WS_WF = 0x2A00000
WS_WO = 0x2A20000
WS_GE = 0x2A40000
WS_STAMP = 0x3000000

CHUNKB = 73728
S8B = 131072
SPB = 147456
M1OFF = 1540
OOB = 0x7f000000


def srd(a, d, lo, hi, nrec):
    a.e(f"s_mov_b32 s{d}, s{lo}") if d != lo else None
    a.e(f"s_mov_b32 s{d+1}, s{hi}") if d + 1 != hi else None
    a.e(f"s_mov_b32 s{d+2}, {nrec}")
    a.e(f"s_mov_b32 s{d+3}, 0x00020000")


def add64(a, d, lo, off):
    a.e(f"s_add_u32 s{d}, s{lo}, {off}")
    a.e(f"s_addc_u32 s{d+1}, s{lo+1}, 0")


def prep_kernel(name):
    a = Asm()
    NWG = 268
    a.label(name)
    a.e(f"s_cmp_ge_u32 s2, {NWG}")
    a.e(f"s_cbranch_scc1 L_{name}_done")
    a.e("s_cmp_lt_u32 s2, 12")
    a.e(f"s_cbranch_scc1 L_{name}_small")
    a.e("s_sub_u32 s2, s2, 12")
    a.e("s_load_dwordx4 s[4:7], s[0:1], 8")
    a.e("s_load_dwordx2 s[30:31], s[0:1], 72")
    a.e("v_readfirstlane_b32 s20, v0")
    a.e("s_lshr_b32 s20, s20, 6")
    a.e("s_lshr_b32 s21, s2, 7")
    a.e("s_bfe_u32 s22, s2, 0x20005")
    a.e("s_bfe_u32 s23, s2, 0x40001")
    a.e("s_and_b32 s24, s2, 1")
    a.e("s_lshl_b32 s24, s24, 2")
    a.e("s_add_u32 s24, s24, s20")
    a.e("s_waitcnt lgkmcnt(0)")
    a.e("s_cmp_eq_u32 s21, 0")
    a.e("s_cselect_b32 s8, s4, s6")
    a.e("s_cselect_b32 s9, s5, s7")
    a.e(f"s_mov_b32 s10, {31*131072}")
    a.e("s_mov_b32 s11, 0x00020000")
    a.e(f"s_mul_i32 s25, s21, {WS_W2P - WS_W1P}")
    add64(a, 12, 30, "s25")
    a.e(f"s_mov_b32 s14, {8*16*CHUNKB}")
    a.e("s_mov_b32 s15, 0x00020000")
    a.e("v_and_b32 v1, 63, v0")
    a.e("v_lshrrev_b32 v2, 4, v1")
    a.e("v_lshlrev_b32 v2, 10, v2")
    a.e("v_and_b32 v3, 15, v1")
    a.e("v_lshl_add_u32 v2, v3, 2, v2")
    a.e("s_lshl_b32 s26, s22, 3")
    a.e("s_lshr_b32 s27, s23, 3")
    a.e("s_add_u32 s26, s26, s27")
    a.e("s_lshl_b32 s26, s26, 17")
    a.e("s_and_b32 s27, s23, 7")
    a.e("s_lshl_b32 s27, s27, 14")
    a.e("s_add_u32 s26, s26, s27")
    a.e("s_lshl_b32 s27, s24, 6")
    a.e("s_add_u32 s26, s26, s27")
    R = 16
    for j in range(4):
        a.e(f"v_add_u32 v{5+j}, {j*4096}, v2")
    for p in range(4):
        for e in range(8):
            a.vmem(f"buffer_load_dword v{R+p*8+e}, v{5+(e>>1)}, s[8:11], s26 offen offset:{(e&1)*512}", ("L", p, e))
        if p < 3:
            a.e(f"s_add_u32 s26, s26, {2*131072}")
    a.e("v_lshlrev_b32 v4, 4, v1")
    a.e("s_lshl_b32 s27, s24, 4")
    a.e("s_add_u32 s27, s27, s23")
    a.e(f"s_mul_i32 s27, s27, {CHUNKB}")
    a.e("s_lshl_b32 s28, s22, 11")
    a.e("s_add_u32 s27, s27, s28")
    a.e("s_mov_b32 s32, 0x05040100")
    a.e("s_mov_b32 s33, 0x07060302")
    a.e("s_mov_b32 s34, 0xffff0000")
    OUT = 48
    T = 120

    def out(seq, c, e2):
        return OUT + (seq * 2 + c) * 4 + e2

    def store(seq):
        a.e(f"s_add_u32 s28, s27, {seq*8192}")
        for c in range(2):
            a.vmem(f"buffer_store_dwordx4 {vr(out(seq, c, 0))}, v4, s[12:15], s28 offen offset:{c*1024}", "S")

    for p in range(4):
        a.wait(vm=(("L", p, 7),))
        for c in range(2):
            for e2 in range(4):
                a.e(f"v_perm_b32 v{out(3-p, c, e2)}, v{R+p*8+2*e2+1}, v{R+p*8+2*e2}, s{32+c}")
        store(3 - p)
    for c in range(2):
        for e2 in range(4):
            for e in range(2):
                for p in range(4):
                    src = R + p * 8 + 2 * e2 + e
                    if c == 0:
                        a.e(f"v_lshlrev_b32 v{T+p}, 16, v{src}")
                    else:
                        a.e(f"v_and_b32 v{T+p}, s34, v{src}")
                S = T + 4 + e * 5
                a.e(f"v_add_f32 v{S}, v{T+3}, v{T+2}")
                a.e(f"v_add_f32 v{S+1}, v{T+1}, v{T+0}")
                a.e(f"v_add_f32 v{S+2}, v{T+3}, v{T+1}")
                a.e(f"v_add_f32 v{S+3}, v{T+2}, v{T+0}")
                a.e(f"v_add_f32 v{S+4}, v{S}, v{S+1}")
            for i in range(5):
                a.e(f"v_cvt_pk_bf16_f32 v{out(4+i, c, e2)}, v{T+4+i}, v{T+9+i}")
    for seq in range(4, 9):
        store(seq)
    a.label(f"L_{name}_done")
    a.e("s_endpgm")
    prep_small(a, name)
    return a.L, 32768, 136


def conv_kernel(name, cfg):
    TIN, TOUT = cfg["tin"], cfg["tout"]
    N = cfg["nchunk"]
    KSPLIT = cfg["ksplit"]
    NWG = 256
    PD = int(os.environ.get("PD", "6"))
    STAMP = "stamp" in EXP
    sX, sW, sO = 8, 12, 16
    sWv, sT0, sCnt, sBo, sXo, sMask = 20, 21, 22, 23, 24, 25
    sM = 26
    sK, sCb, sH = 28, 29, 32
    sSt = 60

    a = Asm()
    a.label(name)
    a.e(f"s_cmp_ge_u32 s2, {NWG}")
    a.e(f"s_cbranch_scc1 L_{name}_done")
    def stamp(i, fence=True):
        if STAMP:
            a.e(f"s_memtime s[{sSt+2*i}:{sSt+2*i+1}]")
            if fence:
                a.e("s_waitcnt lgkmcnt(0)")
                a.lg = []
    def rstamp(i):
        if STAMP:
            a.e(f"s_memrealtime s[{sSt+2*i}:{sSt+2*i+1}]")
            a.e("s_waitcnt lgkmcnt(0)")
            a.lg = []
    if STAMP:
        for i in range(28):
            a.e(f"s_mov_b32 s{sSt+i}, 0")
        a.e(f"s_memrealtime s[{sSt+20}:{sSt+21}]")
    stamp(0, False)
    a.e(f"s_load_dwordx2 s[4:5], s[0:1], {cfg['in_arg']}")
    a.e("s_load_dwordx2 s[30:31], s[0:1], 72")
    a.e(f"v_readfirstlane_b32 s{sWv}, v0")
    a.e(f"s_lshr_b32 s{sWv}, s{sWv}, 6")
    XL = int(os.environ.get("XL", "2"))
    a.e(f"s_and_b32 s36, s2, {(8 >> XL) - 1}")
    a.e(f"s_lshl_b32 s36, s36, {XL}")
    a.e(f"s_bfe_u32 s37, s2, {(XL << 16) | 3}")
    a.e(f"s_or_b32 s{sCb}, s36, s37")
    a.e(f"s_bfe_u32 s36, s2, {(XL << 16) | (3 - XL)}")
    a.e(f"s_lshl_b32 s36, s36, {5 - XL}")
    a.e(f"s_lshr_b32 s37, s2, {3 + XL}")
    a.e("s_or_b32 s36, s36, s37")
    if KSPLIT:
        a.e("s_lshr_b32 s33, s36, 4")
        a.e("s_and_b32 s34, s36, 7")
        a.e("s_bfe_u32 s35, s36, 0x10003")
    else:
        a.e("s_mov_b32 s33, 0")
        a.e("s_and_b32 s34, s36, 15")
        a.e("s_lshr_b32 s35, s36, 4")
    a.e(f"s_mul_i32 s{sT0}, s34, 500")
    vL, vE, vW8 = 255, 244, 249
    a.e(f"s_and_b32 s{sH}, s{sWv}, 3")
    a.e(f"v_and_b32 v{vL}, 63, v0")
    a.e(f"v_and_b32 v3, 15, v{vL}")
    a.e(f"v_lshrrev_b32 v4, 4, v{vL}")
    a.e("v_lshlrev_b32 v1, 11, v4")
    a.e("v_lshl_add_u32 v1, v3, 4, v1")
    a.e(f"v_lshrrev_b32 v5, 2, v{vL}")
    a.e(f"v_and_b32 v6, 3, v{vL}")
    a.e("v_lshlrev_b32 v7, 15, v5")
    a.e("v_lshl_add_u32 v7, v6, 4, v7")
    a.e(f"s_mov_b32 s{sMask}, 0xffff0000")
    a.e(f"s_lshl_b32 s{sM}, s{sH}, 9")
    a.e(f"s_add_u32 s{sM+1}, s{sM}, {65536 - M1OFF}")
    a.e(f"s_mov_b32 m0, s{sM}")
    a.e(f"s_add_u32 s36, s{sM}, {S8B}")
    a.e(f"v_lshl_add_u32 v{vW8}, v{vL}, 2, s36")
    a.e("s_waitcnt lgkmcnt(0)")
    stamp(1)
    a.e(f"s_mul_i32 s36, s35, {TIN*512}")
    if cfg["in_off"]:
        a.e(f"s_add_u32 s36, s36, {cfg['in_off']}")
    add64(a, sX, 4, "s36")
    a.e(f"s_mov_b32 s{sX+2}, {TIN*512}")
    a.e(f"s_mov_b32 s{sX+3}, 0x00020000")
    a.e(f"s_lshl_b32 s36, s{sCb}, 4")
    a.e("s_lshl_b32 s37, s33, 3")
    a.e("s_add_u32 s36, s36, s37")
    a.e(f"s_mul_i32 s36, s36, {CHUNKB}")
    a.e(f"s_add_u32 s36, s36, {cfg['w_off']}")
    add64(a, sW, 30, "s36")
    a.e(f"s_mov_b32 s{sW+2}, {N*CHUNKB}")
    a.e(f"s_mov_b32 s{sW+3}, 0x00020000")
    OB = 1024 if KSPLIT else 512
    a.e(f"s_mul_i32 s36, s35, {TOUT*OB}")
    a.e(f"s_add_u32 s36, s36, {cfg['out_off']}")
    if KSPLIT:
        a.e(f"s_mul_i32 s37, s33, {WS_FPS}")
        a.e("s_add_u32 s36, s36, s37")
    add64(a, sO, 30, "s36")
    a.e(f"s_mov_b32 s{sO+2}, {TOUT*OB}")
    a.e(f"s_mov_b32 s{sO+3}, 0x00020000")
    a.e(f"s_lshl_b32 s36, s{sT0}, 10")
    a.e("s_lshl_b32 s37, s33, 9")
    a.e("s_add_u32 s36, s36, s37")
    a.e("s_sub_u32 s36, s36, 7680")
    a.e(f"s_lshl_b32 s37, s{sH}, 13")
    a.e("s_add_u32 s37, s37, s36")
    a.e("v_add_u32 v7, s37, v7")
    a.e(f"s_cmp_ge_u32 s{sWv}, 4")
    a.e(f"s_cbranch_scc1 L_{name}_helper")

    def lds_throttle(need=1):
        if len(a.lg) + need > 15:
            a.e("s_waitcnt lgkmcnt(8)")
            a.lg = a.lg[-8:]

    def wr(reg, seq, d, task, buf):
        def f():
            if "nowr" in EXP:
                return
            lds_throttle()
            if seq < 8:
                off = (M1OFF if buf else 0) + seq * 8192 + d * 2048 + task * 256
                a.lds(f"ds_write_addtid_b32 v{reg} offset:{off}", "W")
            else:
                a.lds(f"ds_write_b32 v{vW8}, v{reg} offset:{buf*8192 + d*2048 + task*256}", "W")
        return f

    def produce_ops(u, task, buf, tmp):
        ops = []
        for d in range(4):
            lo = [tmp + p for p in range(4)]
            hi = [tmp + 4 + p for p in range(4)]
            sl = [tmp + 8 + i for i in range(4)]
            sh = [tmp + 12 + i for i in range(4)]
            o = [tmp + 16 + (d & 1) * 5 + i for i in range(5)]
            for p in range(4):
                ops.append(f"v_lshlrev_b32 v{lo[p]}, 16, v{u[p]+d}")
                ops.append(f"v_and_b32 v{hi[p]}, s{sMask}, v{u[p]+d}")
                ops.append(wr(u[p] + d, p, d, task, buf))
            prs = ((0, 1), (2, 3), (0, 2), (1, 3))
            for i, (x, y) in enumerate(prs):
                ops.append(f"v_add_f32 v{sl[i]}, v{lo[x]}, v{lo[y]}")
                ops.append(f"v_add_f32 v{sh[i]}, v{hi[x]}, v{hi[y]}")
                if i > 0:
                    ops.append(wr(o[i - 1], 3 + i, d, task, buf))
                ops.append(f"v_cvt_pk_bf16_f32 v{o[i]}, v{sl[i]}, v{sh[i]}")
            ops.append(f"v_add_f32 v{lo[0]}, v{sl[0]}, v{sl[1]}")
            ops.append(f"v_add_f32 v{hi[0]}, v{sh[0]}, v{sh[1]}")
            ops.append(wr(o[3], 7, d, task, buf))
            ops.append(f"v_cvt_pk_bf16_f32 v{o[4]}, v{lo[0]}, v{hi[0]}")
            ops.append(wr(o[4], 8, d, task, buf))
        if "notr" in EXP:
            ops = [x for x in ops if not isinstance(x, str)]
        return ops

    def emit(op):
        if isinstance(op, str):
            a.e(op)
        else:
            op()

    ACC = 0
    BR = 128
    AR = 192
    vA = (236, 237)
    vB = (240, 241, 242, 243)
    vA8 = (245, 246)
    vD = (247, 248)

    def acc(s, c, f):
        return ACC + ((s * 2 + c) * 8 + f) * 4

    def breg(s, q, c):
        return BR + ((s * 4 + q) * 2 + c) * 4

    for p in range(4):
        a.e(f"v_add_u32 v{16+p}, {4096 + p*1024}, v7")
        a.vmem(f"buffer_load_dwordx4 {vr(192+4*p)}, v{16+p}, {sr(sX)}, 0 offen", "X0")
    a.e(f"s_add_u32 s37, s36, {128*4096}")
    a.e(f"v_lshl_add_u32 v8, v{vL}, 4, s37")
    a.e(f"s_cmp_eq_u32 s{sWv}, 1")
    a.e("s_cselect_b32 s38, 2048, 0")
    a.e(f"s_lshl_b32 s39, s{sWv}, 10")
    a.e("s_sub_u32 s39, s39, 1024")
    a.e(f"s_cmp_lt_u32 s{sWv}, 2")
    a.e(f"s_cselect_b32 s39, {OOB}, s39")
    a.vmem(f"buffer_load_dwordx4 {vr(208)}, v8, {sr(sX)}, s38 offen", "SP")
    a.vmem(f"buffer_load_dwordx4 {vr(212)}, v8, {sr(sX)}, s39 offen", "SP")
    a.e(f"s_lshl_b32 s37, s{sWv}, 14")
    a.e(f"v_lshl_add_u32 v{vB[0]}, v{vL}, 4, s37")
    for i in range(1, 4):
        a.e(f"v_add_u32 v{vB[i]}, {4096*i}, v{vB[0]}")
    a.e(f"s_mov_b32 s{sBo}, 0")
    a.e(f"v_add_u32 v{vA[0]}, s37, v1")
    a.e(f"v_add_u32 v{vA[1]}, 65536, v{vA[0]}")
    a.e(f"s_lshl_b32 s37, s{sWv}, 15")
    a.e(f"v_lshl_add_u32 v{vE}, v{vL}, 4, s37")
    a.e(f"s_lshl_b32 s37, s{sWv}, 10")
    a.e(f"s_add_u32 s37, s37, {SPB}")
    a.e("v_lshl_add_u32 v22, v4, 8, s37")
    a.e("v_lshlrev_b32 v23, 8, v4")
    a.e(f"v_add_u32 v23, {SPB + 4096}, v23")
    a.e(f"v_add_u32 v24, 16, v{vA[0]}")
    a.e(f"v_add_u32 v28, {8192 + 16}, v{vA[0]}")
    a.e("v_cmp_eq_u32 vcc, 15, v3")
    a.e("v_mov_b32 v25, 0x10000")
    a.e("v_mov_b32 v26, 0xffff0000")
    a.e("v_mov_b32 v27, 16")
    a.e(f"v_cndmask_b32 v{vA8[0]}, v24, v22, vcc")
    a.e(f"v_cndmask_b32 v{vA8[1]}, v28, v23, vcc")
    a.e(f"v_cndmask_b32 v{vD[0]}, v25, v27, vcc")
    a.e(f"v_cndmask_b32 v{vD[1]}, v26, v27, vcc")
    a.e(f"v_lshl_add_u32 v238, v{vL}, 2, s37")
    a.e(f"v_lshlrev_b32 v239, 2, v{vL}")
    a.e(f"v_add_u32 v239, {SPB + 4096}, v239")

    def bload(k, s, q):
        if "nob" in EXP and k > 0:
            return
        for c in range(2):
            a.vmem(f"buffer_load_dwordx4 {vr(breg(s, q, c))}, v{vB[s*2+(q>>1)]}, {sr(sW)}, s{sBo} offen "
                   f"offset:{(q&1)*2048 + c*1024}", ("B", k, s, q))

    def aread(k, s, g):
        if g == 8:
            base, off = vA8[s], 0
        else:
            base, off = vA[k & 1], s * 8192 + (g & 7) * 256 + (16 if g > 8 else 0)
        a.lds(f"ds_read_b128 {vr(AR+4*g)}, v{base} offset:{off}", ("A", k, s, g))
        if g == 8:
            a.e(f"v_add_u32 v{vA8[s]}, v{vD[k & 1]}, v{vA8[s]}")

    for i in range(64):
        a.e(f"v_mov_b32 v{ACC+i}, 0")
    for q in range(4):
        bload(0, 0, q)
    for i in range(64, 128):
        a.e(f"v_mov_b32 v{ACC+i}, 0")
    a.wait(vm=("X0",))
    for op in produce_ops([192 + 4 * p for p in range(4)], 1, 0, 160):
        emit(op)
    a.wait(vm=("SP",), lg_all=True)
    for d in range(4):
        a.e(f"v_lshlrev_b32 v216, 16, v{208+d}")
        a.e(f"v_and_b32 v217, s{sMask}, v{208+d}")
        a.e(f"v_lshlrev_b32 v218, 16, v{212+d}")
        a.e(f"v_and_b32 v219, s{sMask}, v{212+d}")
        a.e("v_add_f32 v216, v216, v218")
        a.e("v_add_f32 v217, v217, v219")
        a.e(f"v_cvt_pk_bf16_f32 v{220+d}, v216, v217")
        a.e(f"ds_write_b32 v238, v{220+d} offset:{d*256}")
    a.e(f"s_cmp_lg_u32 s{sWv}, 2")
    a.e(f"s_cbranch_scc1 L_{name}_nsp")
    for d in range(4):
        a.e(f"ds_write_b32 v239, v{212+d} offset:{d*256}")
    a.label(f"L_{name}_nsp")
    a.e("s_waitcnt lgkmcnt(0)")
    a.lg = []
    a.e("s_barrier")
    stamp(7)
    rstamp(12)
    for g in range(10):
        aread(0, 0, g)
    for q in range(4):
        bload(0, 1, q)
    a.e(f"s_mov_b32 s{sBo}, {CHUNKB}")
    a.e(f"s_mov_b32 s{sCnt}, {N//2}")
    a.e(f"s_setprio {os.environ.get('PM', '0')}")
    BARP = int(os.environ.get("BARP", "20"))

    def main_period(k):
        for s in range(2):
            for q in range(4):
                for f in range(8):
                    pos = 8 * q + f
                    g = f + q
                    if s == 1 and pos == BARP:
                        a.wait(lg_all=True)
                        a.e("s_barrier")
                    a.wait(lg=(("A", k, s, g),), vm=(("B", k, s, q),))
                    for c in range(2):
                        if "nomfma" not in EXP:
                            a.e(f"v_mfma_f32_16x16x32_bf16 {vr(acc(s,c,f))}, {vr(breg(s,q,c))}, {vr(AR+4*g)}, {vr(acc(s,c,f))}")
                        if c == 0:
                            if pos == 0:
                                aread(k, s, 10)
                            elif pos >= 22:
                                aread(k + s, 1 - s, pos - 22)
                bload(k + 1, s, q)
        a.e(f"s_add_u32 s{sBo}, s{sBo}, {CHUNKB}")

    st = []
    for it in range(3):
        st.append(len(a.L))
        main_period(2 * it)
        main_period(2 * it + 1)
    st.append(len(a.L))
    bodies = [a.L[st[i]:st[i + 1]] for i in range(3)]
    if "nob" not in EXP:
        assert bodies[0] == bodies[1] == bodies[2], "main loop not steady"
    del a.L[st[0]:]
    if "nob" in EXP:
        a.e("s_waitcnt vmcnt(0)")
    a.c("ALIGN ON")
    a.label(f"L_{name}_mloop")
    a.L.extend(bodies[1])
    a.e(f"s_sub_u32 s{sCnt}, s{sCnt}, 1")
    a.e(f"s_cmp_lg_u32 s{sCnt}, 0")
    a.e(f"s_cbranch_scc1 L_{name}_mloop")
    a.c("ALIGN OFF")
    stamp(8, False)
    rstamp(13)
    a.e("s_setprio 0")
    a.e("s_nop 7")
    a.e("s_waitcnt vmcnt(0) lgkmcnt(0)")
    a.vm, a.lg = [], []
    for i in range(32):
        a.e(f"ds_write_b128 v{vE}, {vr(ACC+4*i)} offset:{i*1024}")
    a.e(f"s_branch L_{name}_epi")

    a.label(f"L_{name}_helper")
    a.vm, a.lg = [], []
    PB = (0, 64)
    HACC = 128
    HB = 160
    A8 = 168
    TMP = 204
    vX = 232
    vP0, vP1 = 240, 241
    vHB = 245
    SPSEQ = (0, 1, 2, 4, 6)

    def praw(b, half, task, p):
        return PB[b] + half * 32 + task * 16 + p * 4

    def xload(pair, task, p, halves=(0, 1)):
        for half in halves:
            a.vmem(f"buffer_load_dwordx4 {vr(praw(pair & 1, half, task, p))}, v{vX+task*4+p}, {sr(sX)}, "
                   f"s{sXo} offen offset:{half*64}", ("X", pair, task))
        a.e(f"v_add_u32 v{vX+task*4+p}, 128, v{vX+task*4+p}")

    def hbload(k):
        for q in range(2):
            a.vmem(f"buffer_load_dwordx4 {vr(HB+4*q)}, v{vHB}, {sr(sW)}, s{sBo} offen offset:{q*2048}", ("B", k))

    for t in range(2):
        for p in range(4):
            a.e(f"v_add_u32 v{vX+t*4+p}, {t*4096 + p*1024}, v7")
    a.e(f"s_lshr_b32 s37, s{sH}, 1")
    a.e("s_lshl_b32 s38, s37, 9")
    a.e(f"s_add_u32 s38, s38, {S8B}")
    a.e(f"v_add_u32 v{vP0}, s38, v1")
    a.e("s_cmp_eq_u32 s37, 0")
    a.e(f"s_cselect_b32 s38, {S8B + 1536}, {S8B + 16}") if False else None
    a.e(f"s_mov_b32 s38, {S8B + 16}")
    a.e(f"s_cselect_b32 s38, {S8B + 1536}, s38")
    a.e(f"v_add_u32 v{vP1}, s38, v1")
    a.e(f"s_mov_b32 s{sXo}, 0")
    stamp(2)
    for p in range(4):
        xload(0, 0, p)
    for p in range(4):
        xload(0, 1, p, (1,))
    a.e("s_lshl_b32 s38, s37, 12")
    a.e(f"s_and_b32 s39, s{sH}, 1")
    a.e("s_lshl_b32 s40, s39, 10")
    a.e("s_add_u32 s38, s38, s40")
    a.e(f"s_add_u32 s38, s38, {8*8192}")
    a.e(f"v_lshl_add_u32 v{vHB}, v{vL}, 4, s38")
    a.e("s_add_u32 s38, s37, 8")
    a.e("s_lshl_b32 s38, s38, 14")
    a.e("s_lshl_b32 s40, s39, 13")
    a.e("s_add_u32 s38, s38, s40")
    a.e(f"v_lshl_add_u32 v{vE}, v{vL}, 4, s38")
    for i in range(32):
        a.e(f"v_mov_b32 v{HACC+i}, 0")

    def pr_ops(chunk, task):
        u = [praw((chunk >> 1) & 1, chunk & 1, task, p) for p in range(4)]
        return produce_ops(u, task, chunk & 1, TMP)

    stamp(3)
    a.wait(vm=(("X", 0, 0),))
    stamp(4)
    for op in pr_ops(0, 0):
        emit(op)
    stamp(5)
    for p in range(4):
        xload(1, 0, p)
    for p in range(2):
        xload(1, 1, p)
    a.e(f"s_mov_b32 s{sBo}, 0")
    hbload(0)
    a.e(f"s_mov_b32 s{sBo}, {CHUNKB}")
    a.e(f"s_mov_b32 s{sK}, 0")
    a.e(f"s_mov_b32 s{sCnt}, {N//4}")
    a.wait(vm=(("X", 0, 1),), lg_all=True)
    stamp(6)
    a.e("s_barrier")
    stamp(7)
    rstamp(12)
    PH = os.environ.get('PH', '1')
    PHM = os.environ.get('PHM', PH)
    a.e(f"s_setprio {PH}")
    XP = [float(x) for x in os.environ.get("XP", "0.15,0.35,0.6,0.8").split(",")]
    MP = [float(x) for x in os.environ.get("MP", "0.2,0.9").split(",")]

    def helper_period(k, pos):
        c = k + 1
        b = k & 1

        def a8read(g):
            base, off = (vP0, g * 256) if g < 6 else (vP1, (g - 6) * 256) if g < 8 else (vP0, 16)
            lds_throttle()
            a.lds(f"ds_read_b128 {vr(A8+4*g)}, v{base} offset:{b*8192 + off}", ("A8", g))

        def xgo(kk, p):
            pair, task = (kk >> 1) + 2, kk & 1
            def f():
                if "nox" in EXP:
                    return
                if p & 1 == 0:
                    a.e(f"s_cmp_lt_i32 s{sK}, {N - 4 + (k - kk)}")
                    a.e(f"s_cselect_b32 s{sXo}, 0, {OOB}")
                xload(pair, task, p)
            return f

        def hm(g):
            def f():
                a.wait(lg=(("A8", g),), vm=(("B", k),))
                if PHM != PH:
                    a.e(f"s_setprio {PHM}")
                for q in range(2):
                    ff = g - q
                    if 0 <= ff <= 7 and "nomfma" not in EXP:
                        a.e(f"v_mfma_f32_16x16x32_bf16 {vr(HACC+4*ff)}, {vr(HB+4*q)}, {vr(A8+4*g)}, {vr(HACC+4*ff)}")
                if PHM != PH:
                    a.e(f"s_setprio {PH}")
                if g == 8:
                    hbload(k + 1)
            return f

        if "hst" in EXP and pos == 2:
            stamp(2)
        a.e(f"s_mov_b32 m0, s{sM + (c & 1)}")
        for g in range(9):
            a8read(g)
        V0, V1 = pr_ops(c, 0), pr_ops(c, 1)
        V = V0 + V1
        n = len(V)
        ev = {}

        def at(i, f):
            ev.setdefault(min(int(i), n), []).append(f)
        at(0, lambda: a.wait(vm=(("X", c >> 1, 0),)))
        at(len(V0), lambda: a.wait(vm=(("X", c >> 1, 1),)))
        at(XP[0] * n, xgo(k - 1, 2))
        at(XP[1] * n, xgo(k - 1, 3))
        at(XP[2] * n, xgo(k, 0))
        at(XP[3] * n, xgo(k, 1))
        for g in range(9):
            at((MP[0] + (MP[1] - MP[0]) * g / 8) * n, hm(g))
        for i in range(n + 1):
            for f in ev.get(i, []):
                f()
            if i < n:
                emit(V[i])
        a.e(f"s_add_u32 s{sBo}, s{sBo}, {CHUNKB}")
        a.e(f"s_add_u32 s{sK}, s{sK}, 1")
        if "hst" in EXP and pos == 2:
            stamp(5)
        a.e("s_waitcnt lgkmcnt(0)")
        a.lg = []
        a.e("s_barrier")
        if "hst" in EXP and pos == 2:
            stamp(6)

    st = []
    for it in range(3):
        st.append(len(a.L))
        for pos in range(4):
            helper_period(4 * it + pos, pos)
    st.append(len(a.L))
    bodies = [a.L[st[i]:st[i + 1]] for i in range(3)]
    if "nox" not in EXP:
        assert bodies[1] == bodies[2], "helper loop not steady"
        assert bodies[0] == bodies[1], "helper loop entry not steady"
    del a.L[st[0]:]
    if "real" in EXP:
        a.L.extend(bodies[1])
        a.e(f"s_sub_u32 s{sCnt}, s{sCnt}, 1")
        strip = os.environ.get("STRIP", "wr,tr").split(",")
        def keep(l):
            t = l.strip()
            if "wr" in strip and t.startswith("ds_write"):
                return False
            if "tr" in strip and t.split()[0] in ("v_lshlrev_b32", "v_and_b32", "v_add_f32", "v_cvt_pk_bf16_f32"):
                return False
            if "x" in strip and t.startswith("buffer_load") and sr(sX) in t:
                return False
            return True
        bodies[1] = [l for l in bodies[1] if keep(l)]
    a.label(f"L_{name}_hloop")
    a.L.extend(bodies[1])
    a.e(f"s_sub_u32 s{sCnt}, s{sCnt}, 1")
    a.e(f"s_cmp_lg_u32 s{sCnt}, 0")
    a.e(f"s_cbranch_scc1 L_{name}_hloop")
    stamp(8)
    rstamp(13)
    a.e("s_setprio 0")
    a.e("s_nop 7")
    a.e("s_waitcnt vmcnt(0)")
    a.vm, a.lg = [], []
    for i in range(8):
        a.e(f"ds_write_b128 v{vE}, {vr(HACC+4*i)} offset:{i*1024}")

    a.label(f"L_{name}_epi")
    R0, R1 = (236, 237, 238), (239, 240)
    vO = 241
    a.e(f"s_lshl_b32 s36, s{sWv}, 10")
    a.e(f"v_lshl_add_u32 v{R0[0]}, v{vL}, 4, s36")
    a.e(f"v_add_u32 v{R0[1]}, 65536, v{R0[0]}")
    a.e(f"v_add_u32 v{R0[2]}, 131072, v{R0[0]}")
    a.e(f"s_add_u32 s36, s36, 1024")
    a.e(f"s_cmp_eq_u32 s{sWv}, 7")
    a.e("s_cselect_b32 s36, 16, s36")
    a.e(f"v_lshl_add_u32 v{R1[0]}, v{vL}, 4, s36")
    a.e(f"v_add_u32 v{R1[1]}, 65536, v{R1[0]}")
    a.e(f"v_and_b32 v242, 15, v{vL}")
    a.e(f"v_lshlrev_b32 v242, 3, v242")
    a.e(f"v_add_u32 v242, s{sWv}, v242")
    a.e(f"v_lshl_add_u32 v243, v242, 2, s{sT0}")
    a.e(f"v_lshlrev_b32 v243, {10 if KSPLIT else 9}, v243")
    a.e(f"v_lshrrev_b32 v245, 4, v{vL}")
    a.e(f"v_lshl_add_u32 v243, v245, {5 if KSPLIT else 4}, v243")
    a.e(f"s_lshl_b32 s36, s{sCb}, {7 if KSPLIT else 6}")
    a.e("v_add_u32 v243, s36, v243")
    a.e(f"v_mov_b32 v245, {OOB}")
    a.e("v_cmp_gt_u32 vcc, 125, v242")
    a.e("s_waitcnt lgkmcnt(0)")
    a.e("s_barrier")
    a.e(f"v_cndmask_b32 v{vO}, v245, v243, vcc")
    P = [0, 60]
    Y = 120

    def eread(c):
        for s in range(10):
            a.e(f"ds_read_b128 {vr(P[c]+4*s)}, v{R0[s//4]} offset:{(s%4)*16384 + c*8192}")
        for i, s in enumerate(SPSEQ):
            a.e(f"ds_read_b128 {vr(P[c]+40+4*i)}, v{R1[s//4]} offset:{(s%4)*16384 + c*8192}")

    def combine(c):
        for r in range(4):
            L0, L2, H0, H2, P01, P23, M0, M2, Pa, Pb = (P[c] + 4 * s + r for s in range(10))
            L0n, L2n, H0n, P01n, M0n = (P[c] + 40 + 4 * i + r for i in range(5))
            y = [Y + ph * 8 + 2 * r + c for ph in range(4)]
            a.e(f"v_add_f32 v{Pa}, v{Pa}, v{Pb}")
            a.e(f"v_sub_f32 v{P23}, v{P23}, v{H0}")
            a.e(f"v_sub_f32 v{P01}, v{P01}, v{L0}")
            a.e(f"v_sub_f32 v{Pa}, v{Pa}, v{M0}")
            a.e(f"v_sub_f32 v{P23}, v{P23}, v{H2}")
            a.e(f"v_sub_f32 v{P01}, v{P01}, v{L2}")
            a.e(f"v_sub_f32 v{Pa}, v{Pa}, v{M2}")
            a.e(f"v_sub_f32 v{M2}, v{M2}, v{L2}")
            a.e(f"v_sub_f32 v{P01n}, v{P01n}, v{L0n}")
            a.e(f"v_sub_f32 v{M0n}, v{M0n}, v{L0n}")
            a.e(f"v_sub_f32 v{Pa}, v{Pa}, v{P01}")
            a.e(f"v_sub_f32 v{M2}, v{M2}, v{H2}")
            a.e(f"v_sub_f32 v{P01n}, v{P01n}, v{L2n}")
            a.e(f"v_sub_f32 v{M0n}, v{M0n}, v{H0n}")
            a.e(f"v_sub_f32 v{y[0]}, v{Pa}, v{P23}")
            a.e(f"v_add_f32 v{M2}, v{M2}, v{H0}")
            a.e(f"v_add_f32 v{y[2]}, v{P23}, v{P01n}")
            a.e(f"v_add_f32 v{M0n}, v{M0n}, v{L2n}")
            a.e(f"v_add_f32 v{y[1]}, v{M2}, v{L0n}")
            a.e(f"v_add_f32 v{y[3]}, v{H2}, v{M0n}")

    eread(0)
    a.e("s_waitcnt lgkmcnt(0)")
    eread(1)
    combine(0)
    a.e("s_waitcnt lgkmcnt(0)")
    combine(1)
    if KSPLIT:
        for ph in range(4):
            for hf in range(2):
                a.e(f"buffer_store_dwordx4 {vr(Y+ph*8+hf*4)}, v{vO}, {sr(sO)}, 0 offen offset:{ph*1024 + hf*16}")
    else:
        k0 = -2.0 * 1.4426950408889634 * 0.7978845608028654
        a.e(f"s_mov_b32 s40, {f32hex(k0 * 0.044715)}")
        a.e(f"v_mov_b32 v160, {f32hex(k0)}")
        T = 0
        for ph in range(4):
            ys = [Y + ph * 8 + i for i in range(8)]
            ts = [T + (ph & 1) * 8 + i for i in range(8)]
            for y, t in zip(ys, ts):
                a.e(f"v_mul_f32 v{t}, v{y}, v{y}")
            for y, t in zip(ys, ts):
                a.e(f"v_fma_f32 v{t}, v{t}, s40, v160")
            for y, t in zip(ys, ts):
                a.e(f"v_mul_f32 v{t}, v{t}, v{y}")
            for y, t in zip(ys, ts):
                a.e(f"v_exp_f32 v{t}, v{t}")
            for y, t in zip(ys, ts):
                a.e(f"v_add_f32 v{t}, 1.0, v{t}")
            for y, t in zip(ys, ts):
                a.e(f"v_rcp_f32 v{t}, v{t}")
            for y, t in zip(ys, ts):
                a.e(f"v_mul_f32 v{y}, v{y}, v{t}")
            o = 16 + ph * 4
            for r in range(4):
                a.e(f"v_cvt_pk_bf16_f32 v{o+r}, v{ys[2*r]}, v{ys[2*r+1]}")
            a.e(f"buffer_store_dwordx4 {vr(o)}, v{vO}, {sr(sO)}, 0 offen offset:{ph*512}")
    if STAMP:
        a.e("s_waitcnt vmcnt(0)")
        stamp(9, False)
        a.e(f"s_memrealtime s[{sSt+22}:{sSt+23}]")
        a.e(f"s_cmp_lg_u32 s{sWv}, {os.environ.get('SW', '0')}")
        a.e(f"s_cbranch_scc1 L_{name}_done")
        a.e("s_lshl_b32 s36, s2, 7")
        a.e(f"s_add_u32 s36, s36, {WS_STAMP + cfg['stamp']*0x10000}")
        add64(a, 40, 30, "s36")
        a.e("s_mov_b32 s42, 128")
        a.e("s_mov_b32 s43, 0x00020000")
        a.e("s_waitcnt lgkmcnt(0)")
        a.e("v_mov_b32 v8, 0")
        for i in range(28):
            a.e(f"v_mov_b32 v0, s{sSt+i}")
            a.e(f"buffer_store_dword v0, v8, s[40:43], 0 offen offset:{4*i}")
    a.label(f"L_{name}_done")
    a.e("s_endpgm")
    return a.L, 163840, 256


CONV1 = dict(tin=16000, tout=8000, nchunk=16, ksplit=False, in_arg=0, in_off=0, w_off=WS_W1P, out_off=WS_H, stamp=0)
CONV2 = dict(tin=8000, tout=4000, nchunk=8, ksplit=True, in_arg=72, in_off=WS_H, w_off=WS_W2P, out_off=WS_FP, stamp=1)

HEADER = """; Kernarg layout for this problem (80 bytes, ptrs only, base s[0:1]):
"""


def main():
    ks = [("prep_kernel", 268, 256) + prep_kernel("prep_kernel"),
          ("conv1_kernel", 256, 512) + conv_kernel("conv1_kernel", CONV1),
          ("conv2_kernel", 256, 512) + conv_kernel("conv2_kernel", CONV2)]
    try:
        from gen2_joint import joint_kernels
        ks = joint_kernels(ks)
    except ImportError:
        pass
    out = HEADER
    for nm, grid, block, code, lds, vg in ks:
        out += f"; @launch kernel={nm} grid=({grid},1,1) block=({block},1,1) lds={lds}\n"
    out += '.amdgcn_target "amdgcn-amd-amdhsa--gfx950"\n.text\n'
    for nm, grid, block, code, lds, vg in ks:
        if "noalign" not in EXP:
            code = align8(code)
        out += f".globl {nm}\n.p2align 8\n.type {nm},@function\n" + "\n".join(code) + "\n"
    out += '.section .rodata,"a"\n'
    for nm, grid, block, code, lds, vg in ks:
        out += ".p2align 6\n" + kd(nm, vg)
    path = sys.argv[1] if len(sys.argv) > 1 else "standalone__seq2seq_rnn_t_joint__speech.s"
    open(path, "w").write(out)


if __name__ == "__main__":
    main()
```

```python
import os
from asmlib import Asm, vr, sr, f32hex

EXP = os.environ.get("EXP", "").split(",")
WS_FP = 0x1A00000
WS_FPS = 0x800000
WS_WF = 0x2A00000
WS_WO = 0x2A20000
WS_GE = 0x2A40000
WS_STAMP = 0x3000000
C2 = 2.0 * 1.4426950408889634


def add64(a, d, lo, off):
    a.e(f"s_add_u32 s{d}, s{lo}, {off}")
    a.e(f"s_addc_u32 s{d+1}, s{lo+1}, 0")


def prep_small(a, name):
    a.label(f"L_{name}_small")
    a.e("s_load_dwordx4 s[4:7], s[0:1], 24")
    a.e("s_load_dwordx4 s[36:39], s[0:1], 40")
    a.e("s_load_dwordx2 s[30:31], s[0:1], 72")
    a.e("v_readfirstlane_b32 s20, v0")
    a.e("s_lshr_b32 s20, s20, 6")
    a.e("s_lshr_b32 s21, s2, 2")
    a.e("s_and_b32 s22, s2, 3")
    a.e("v_and_b32 v1, 63, v0")
    a.e("v_lshrrev_b32 v2, 5, v1")
    a.e("v_and_b32 v3, 31, v1")
    a.e("v_lshlrev_b32 v5, 12, v2")
    a.e("v_lshl_add_u32 v5, v3, 2, v5")
    a.e("s_lshl_b32 s23, s20, 15")
    a.e("s_lshl_b32 s24, s22, 7")
    a.e("s_add_u32 s23, s23, s24")
    a.e("s_mov_b32 s32, 0x05040100")
    a.e("s_mov_b32 s33, 0x07060302")
    a.e("s_waitcnt lgkmcnt(0)")
    a.e("s_cmp_eq_u32 s21, 1")
    a.e("s_cselect_b32 s8, s38, s6")
    a.e("s_cselect_b32 s9, s39, s7")
    a.e("s_cmp_eq_u32 s21, 2")
    a.e("s_cselect_b32 s8, s36, s8")
    a.e("s_cselect_b32 s9, s37, s9")
    a.e("s_mov_b32 s10, 131072")
    a.e("s_mov_b32 s11, 0x00020000")
    R, O = 16, 48
    for k in range(4):
        for e in range(8):
            a.e(f"buffer_load_dword v{R+k*8+e}, v5, s[8:11], s23 offen offset:{e*512}")
        if k < 3:
            a.e("s_add_u32 s23, s23, 8192")
    a.e("s_mov_b32 s16, s4")
    a.e("s_mov_b32 s17, s5")
    a.e("s_mov_b32 s18, 8192")
    a.e("s_mov_b32 s19, 0x00020000")
    a.e("v_lshlrev_b32 v6, 9, v3")
    a.e("v_lshl_add_u32 v6, v2, 4, v6")
    a.e("s_lshl_b32 s24, s20, 7")
    for k in range(4):
        a.e(f"buffer_load_dwordx4 {vr(80+4*k)}, v6, s[16:19], s24 offen offset:{k*32}")
    a.e("s_lshl_b32 s24, s21, 17")
    a.e(f"s_add_u32 s24, s24, {WS_WF}")
    add64(a, 12, 30, "s24")
    a.e("s_mov_b32 s14, 131072")
    a.e("s_mov_b32 s15, 0x00020000")
    a.e("s_waitcnt vmcnt(0)")
    for k in range(4):
        for jn in range(2):
            for e2 in range(4):
                a.e(f"v_perm_b32 v{O+(k*2+jn)*4+e2}, v{R+k*8+2*e2+1}, v{R+k*8+2*e2}, s{32+jn}")
    a.e("s_cmp_eq_u32 s21, 2")
    a.e(f"s_cbranch_scc1 L_{name}_ge")
    a.e("v_lshlrev_b32 v4, 4, v1")
    a.e("s_lshl_b32 s24, s22, 15")
    a.e("s_lshl_b32 s25, s20, 13")
    a.e("s_add_u32 s24, s24, s25")
    a.e("s_add_u32 s25, s24, 4096")
    for i in range(8):
        a.e(f"buffer_store_dwordx4 {vr(O+4*i)}, v4, s[12:15], s{24+(i>>2)} offen offset:{(i&3)*1024}")
    a.e("s_endpgm")
    a.label(f"L_{name}_ge")
    ACC = 96
    for k in range(4):
        for jn in range(2):
            c = "0" if k == 0 else vr(ACC + 16 * jn, 16)
            a.e(f"v_mfma_f32_32x32x16_bf16 {vr(ACC+16*jn,16)}, {vr(O+(k*2+jn)*4)}, {vr(80+4*k)}, {c}")
    a.e("v_lshlrev_b32 v4, 4, v1")
    a.e("s_lshl_b32 s24, s20, 13")
    a.e("v_add_u32 v7, s24, v4")
    a.e("s_nop 15")
    for i in range(8):
        a.e(f"ds_write_b128 v7, {vr(ACC+4*i)} offset:{i*1024}")
    a.e("s_waitcnt lgkmcnt(0)")
    a.e("s_barrier")
    a.e("s_lshl_b32 s24, s20, 10")
    a.e("v_add_u32 v7, s24, v4")
    for src in range(4):
        for jn in range(2):
            a.e(f"ds_read_b128 {vr(16+(src*2+jn)*4)}, v7 offset:{src*8192 + jn*4096}")
    a.e("s_mov_b32 s14, 16384")
    a.e("v_lshlrev_b32 v8, 10, v3")
    a.e("v_lshl_add_u32 v8, v2, 5, v8")
    a.e("s_lshl_b32 s24, s22, 8")
    a.e("s_lshl_b32 s25, s20, 6")
    a.e("s_add_u32 s24, s24, s25")
    a.e("s_mov_b32 s34, 0xffff0000")
    a.e(f"s_mov_b32 s35, {f32hex(C2)}")
    a.e("s_waitcnt lgkmcnt(0)")
    for r in range(8):
        for src in range(1, 4):
            a.e(f"v_add_f32 v{16+r}, v{16+r}, v{16+src*8+r}")
    for i in range(4):
        a.e(f"v_cvt_pk_bf16_f32 v{48+i}, v{16+i}, v{20+i}")
    for i in range(4):
        a.e(f"v_lshlrev_b32 v{56+2*i}, 16, v{48+i}")
        a.e(f"v_and_b32 v{57+2*i}, s34, v{48+i}")
    for r in range(8):
        a.e(f"v_mul_f32 v{56+r}, s35, v{56+r}")
    a.e(f"buffer_store_dwordx4 {vr(56)}, v8, s[12:15], s24 offen")
    a.e(f"buffer_store_dwordx4 {vr(60)}, v8, s[12:15], s24 offen offset:16")
    a.e("s_endpgm")


def joint_kernel(name):
    a = Asm()
    NWG = 250
    STAMP = "stamp" in EXP
    FP = 528
    F_B, GE_B, J_B = 0, 17408, 25600
    LDS = J_B + 2 * 16384
    sF, sW, sO, sG = 8, 12, 16, 40
    sWv, sW4 = 20, 21
    sSt = 60
    vL = 255

    def stamp(i, fence=True):
        if STAMP:
            a.e(f"s_memtime s[{sSt+2*i}:{sSt+2*i+1}]")
            if fence:
                a.e("s_waitcnt lgkmcnt(0)")
                a.lg = []

    def rstamp(i):
        if STAMP:
            a.e(f"s_memrealtime s[{sSt+2*i}:{sSt+2*i+1}]")
            a.e("s_waitcnt lgkmcnt(0)")
            a.lg = []

    a.label(name)
    a.e(f"s_cmp_ge_u32 s2, {NWG}")
    a.e(f"s_cbranch_scc1 L_{name}_done")
    if STAMP:
        for i in range(28):
            a.e(f"s_mov_b32 s{sSt+i}, 0")
        a.e(f"s_memrealtime s[{sSt+20}:{sSt+21}]")
    stamp(0, False)
    a.e("s_load_dwordx2 s[28:29], s[0:1], 56")
    a.e("s_load_dwordx2 s[30:31], s[0:1], 72")
    a.e(f"v_readfirstlane_b32 s{sWv}, v0")
    a.e(f"s_lshr_b32 s{sWv}, s{sWv}, 6")
    a.e(f"s_and_b32 s{sW4}, s{sWv}, 3")
    a.e(f"v_and_b32 v{vL}, 63, v0")
    a.e(f"v_lshlrev_b32 v254, 4, v{vL}")
    a.e("s_cmp_ge_u32 s2, 125")
    a.e("s_cselect_b32 s34, 8192, 0")
    a.e("s_lshl_b32 s35, s2, 15")
    a.e(f"s_add_u32 s35, s35, {WS_FP}")
    a.e(f"s_lshl_b32 s36, s{sWv}, 12")
    a.e(f"s_add_u32 s37, s36, {WS_FPS}")
    a.e("s_waitcnt lgkmcnt(0)")
    add64(a, sF, 30, "s35")
    a.e(f"s_mov_b32 s{sF+2}, {WS_FPS + 32768}")
    a.e(f"s_mov_b32 s{sF+3}, 0x00020000")
    X = 192
    for r in range(4):
        a.vmem(f"buffer_load_dwordx4 {vr(X+4*r)}, v254, {sr(sF)}, s36 offen offset:{r*1024}", ("F", r))
        a.vmem(f"buffer_load_dwordx4 {vr(X+16+4*r)}, v254, {sr(sF)}, s37 offen offset:{r*1024}", ("F", r))
    a.e(f"s_add_u32 s34, s34, {WS_GE}")
    add64(a, sG, 30, "s34")
    a.e(f"s_mov_b32 s{sG+2}, 8192")
    a.e(f"s_mov_b32 s{sG+3}, 0x00020000")
    a.e(f"s_lshl_b32 s38, s{sWv}, 10")
    a.vmem(f"buffer_load_dwordx4 {vr(X+32)}, v254, {sr(sG)}, s38 offen", "G")
    a.e(f"s_cmp_ge_u32 s{sWv}, 4")
    a.e(f"s_mov_b32 s35, {WS_WO}")
    a.e(f"s_cselect_b32 s35, {WS_WF}, s35")
    a.e(f"s_lshl_b32 s36, s{sW4}, 15")
    a.e("s_add_u32 s35, s35, s36")
    add64(a, sW, 30, "s35")
    a.e(f"s_mov_b32 s{sW+2}, 32768")
    a.e(f"s_mov_b32 s{sW+3}, 0x00020000")
    a.e("s_lshl_b32 s35, s2, 17")
    add64(a, sO, 28, "s35")
    a.e(f"s_mov_b32 s{sO+2}, 131072")
    a.e(f"s_mov_b32 s{sO+3}, 0x00020000")
    W = 0

    def wloads():
        for i in range(32):
            if i % 4 == 0:
                a.e(f"s_mov_b32 s36, {i*1024}")
            a.vmem(f"buffer_load_dwordx4 {vr(W+4*i)}, v254, {sr(sW)}, s36 offen offset:{(i%4)*1024}", ("W", i // 2))

    k0 = -2.0 * 1.4426950408889634 * 0.7978845608028654

    def fstage():
        a.e(f"s_mov_b32 s44, {f32hex(k0 * 0.044715)}")
        a.e(f"v_mov_b32 v253, {f32hex(k0)}")
        a.e(f"s_mul_i32 s36, s{sWv}, {4*FP}")
        a.e(f"v_lshl_add_u32 v252, v{vL}, 3, s36")
        a.e(f"v_add_u32 v251, s38, v254")
        T = 232
        for r in range(4):
            a.wait(vm=(("F", r),))
            ys = [X + 4 * r + i for i in range(4)]
            ts = [T + i for i in range(4)]
            for i in range(4):
                a.e(f"v_add_f32 v{ys[i]}, v{ys[i]}, v{ys[i]+16}")
            for y, t in zip(ys, ts):
                a.e(f"v_mul_f32 v{t}, v{y}, v{y}")
            for y, t in zip(ys, ts):
                a.e(f"v_fma_f32 v{t}, v{t}, s44, v253")
            for y, t in zip(ys, ts):
                a.e(f"v_mul_f32 v{t}, v{t}, v{y}")
            for y, t in zip(ys, ts):
                a.e(f"v_exp_f32 v{t}, v{t}")
            for y, t in zip(ys, ts):
                a.e(f"v_add_f32 v{t}, 1.0, v{t}")
            for y, t in zip(ys, ts):
                a.e(f"v_rcp_f32 v{t}, v{t}")
            for y, t in zip(ys, ts):
                a.e(f"v_mul_f32 v{y}, v{y}, v{t}")
            o = 236 + 2 * r
            a.e(f"v_cvt_pk_bf16_f32 v{o}, v{ys[0]}, v{ys[1]}")
            a.e(f"v_cvt_pk_bf16_f32 v{o+1}, v{ys[2]}, v{ys[3]}")
            a.lds(f"ds_write_b64 v252, {vr(o,2)} offset:{F_B + r*FP}", "W")
        a.wait(vm=("G",))
        a.lds(f"ds_write_b128 v251, {vr(X+32)} offset:{GE_B}", "W")
        a.wait(lg_all=True)
        a.e("s_barrier")

    a.e(f"s_cmp_ge_u32 s{sWv}, 4")
    a.e(f"s_cbranch_scc1 L_{name}_T")
    vm0 = list(a.vm)

    fstage()
    wloads()
    ACC = (128, 160)
    JR = 192
    PKR = 224
    vO = 250
    a.e(f"v_lshrrev_b32 v{vO}, 5, v{vL}")
    a.e(f"v_lshlrev_b32 v{vO}, 14, v{vO}")
    a.e(f"v_and_b32 v249, 31, v{vL}")
    a.e(f"v_lshl_add_u32 v{vO}, v249, 2, v{vO}")
    a.e(f"s_lshl_b32 s36, s{sW4}, 7")
    a.e(f"v_add_u32 v{vO}, s36, v{vO}")
    for r in range(16):
        a.e(f"s_mov_b32 s{44+r}, {(8*(r>>2) + (r&3)) * 4096}")

    def out_ops(u):
        ops = []
        ac = ACC[u & 1]
        for r in range(16):
            ops.append(f"v_cvt_pk_bf16_f32 v{PKR+r}, v{ac+r}, v{ac+16+r}")
            ops.append(("st", f"buffer_store_dword v{PKR+r}, v{vO}, {sr(sO)}, s{44+r} offen offset:{u*512} nt"))
        return ops

    PD = 6
    for u in range(8):
        a.e("s_barrier")
        if u == 0:
            stamp(7)
            rstamp(12)
        jb = J_B + (u & 1) * 16384
        side = out_ops(u - 1) if u else []
        for ks in range(PD):
            a.lds(f"ds_read_b128 {vr(JR+4*(ks%8))}, v254 offset:{jb + ks*1024}", ("J", u, ks))
        for ks in range(16):
            a.wait(lg=(("J", u, ks),), vm=(("W", ks),))
            for jn in range(2):
                ac = ACC[u & 1] + 16 * jn
                c = "0" if ks == 0 else vr(ac, 16)
                a.e(f"v_mfma_f32_32x32x16_bf16 {vr(ac,16)}, {vr(JR+4*(ks%8))}, {vr(W+(ks*2+jn)*4)}, {c}")
                if jn == 0 and ks + PD < 16:
                    a.lds(f"ds_read_b128 {vr(JR+4*((ks+PD)%8))}, v254 offset:{jb + (ks+PD)*1024}", ("J", u, ks + PD))
                if ks >= 2 and side:
                    for _ in range(2 if ks < 4 else 1):
                        if side:
                            op = side.pop(0)
                            if isinstance(op, tuple):
                                if len(a.vm) > 40:
                                    a.e("s_waitcnt vmcnt(24)")
                                    a.vm = a.vm[-24:]
                                a.vmem(op[1], "S")
                            else:
                                a.e(op)
        assert not side
    stamp(8, False)
    rstamp(13)
    a.e("s_nop 15")
    for op in out_ops(7):
        a.e(op[1] if isinstance(op, tuple) else op)
    a.e(f"s_branch L_{name}_fin")

    a.label(f"L_{name}_T")
    a.vm, a.lg = list(vm0), []
    wloads()
    stamp(2)
    fstage()
    stamp(3)
    FE = 128
    FR = 160
    GEC = 192
    PK = 224
    vF, vG, vJ = 250, 249, 248
    a.e(f"v_and_b32 v{vF}, 31, v{vL}")
    a.e(f"v_mul_u32_u24 v{vF}, {FP}, v{vF}")
    a.e(f"v_lshrrev_b32 v{vG}, 5, v{vL}")
    a.e(f"v_lshl_add_u32 v{vF}, v{vG}, 4, v{vF}")
    for ks in range(8):
        a.lds(f"ds_read_b128 {vr(FR+4*ks)}, v{vF} offset:{F_B + ks*32}", ("A", ks))
    a.e(f"v_lshlrev_b32 v{vG}, 5, v{vG}")
    a.e(f"s_lshl_b32 s36, s{sW4}, 8")
    a.e(f"v_add_u32 v{vG}, s36, v{vG}")
    a.e(f"s_lshl_b32 s36, s{sW4}, 12")
    a.e(f"v_add_u32 v{vJ}, s36, v254")
    for ks in range(16):
        a.wait(lg=(("A", ks),), vm=(("W", ks),))
        for jn in range(2):
            c = "0" if ks == 0 else vr(FE + 16 * jn, 16)
            a.e(f"v_mfma_f32_32x32x16_bf16 {vr(FE+16*jn,16)}, {vr(W+(ks*2+jn)*4)}, {vr(FR+4*(ks%8))}, {c}")
        if ks + 8 < 16:
            a.lds(f"ds_read_b128 {vr(FR+4*(ks%8))}, v{vF} offset:{F_B + (ks+8)*32}", ("A", ks + 8))

    def geread(u):
        for k4 in range(4):
            for h in range(2):
                a.lds(f"ds_read_b128 {vr(GEC+8*k4+4*h)}, v{vG} offset:{GE_B + u*1024 + k4*64 + h*16}", ("G", k4))

    geread(0)
    a.e("s_mov_b32 s44, 0xffff0000")
    a.e(f"s_mov_b32 s45, {f32hex(C2)}")
    a.e("s_nop 7")
    stamp(4)
    FS = 0
    for r in range(16):
        a.e(f"v_cvt_pk_bf16_f32 v{PK+r}, v{FE+r}, v{FE+16+r}")
    for r in range(16):
        a.e(f"v_lshlrev_b32 v{FS+2*r}, 16, v{PK+r}")
        a.e(f"v_and_b32 v{FS+2*r+1}, s44, v{PK+r}")
    for r in range(32):
        a.e(f"v_mul_f32 v{FS+r}, s45, v{FS+r}")
    stamp(5)
    G2 = 32
    for u in range(8):
        gb = GEC
        for k4 in range(4):
            a.wait(lg=(("G", k4),))
            xs = [G2 + 8 * k4 + i for i in range(8)]
            for i, x in enumerate(xs):
                a.e(f"v_add_f32 v{x}, v{gb+8*k4+i}, v{FS+8*k4+i}")
            if k4 == 3 and u < 7:
                geread(u + 1)
            for x in xs:
                a.e(f"v_exp_f32 v{x}, v{x}")
            for x in xs:
                a.e(f"v_add_f32 v{x}, 1.0, v{x}")
            for x in xs:
                a.e(f"v_rcp_f32 v{x}, v{x}")
            for x in xs:
                a.e(f"v_fma_f32 v{x}, v{x}, -2.0, 1.0")
            for i in range(4):
                a.e(f"v_cvt_pk_bf16_f32 v{PK+4*k4+i}, v{xs[2*i]}, v{xs[2*i+1]}")
            a.lds(f"ds_write_b128 v{vJ}, {vr(PK+4*k4)} offset:{J_B + (u&1)*16384 + k4*1024}", "W")
        a.wait(lg_all=True)
        a.e("s_barrier")
        if u == 0:
            stamp(7)
            rstamp(12)
    stamp(8)
    rstamp(13)
    a.label(f"L_{name}_fin")
    if STAMP:
        a.e("s_waitcnt vmcnt(0)")
        stamp(9, False)
        a.e(f"s_memrealtime s[{sSt+22}:{sSt+23}]")
        a.e(f"s_cmp_lg_u32 s{sWv}, {os.environ.get('SWJ', '0')}")
        a.e(f"s_cbranch_scc1 L_{name}_done")
        a.e("s_lshl_b32 s36, s2, 7")
        a.e(f"s_add_u32 s36, s36, {WS_STAMP + 2*0x10000}")
        add64(a, 40, 30, "s36")
        a.e("s_mov_b32 s42, 128")
        a.e("s_mov_b32 s43, 0x00020000")
        a.e("s_waitcnt lgkmcnt(0)")
        a.e("v_mov_b32 v8, 0")
        for i in range(28):
            a.e(f"v_mov_b32 v0, s{sSt+i}")
            a.e(f"buffer_store_dword v0, v8, s[40:43], 0 offen offset:{4*i}")
    if "dbgout" in EXP:
        a.e("s_cmp_lg_u32 s2, 5")
        a.e(f"s_cbranch_scc1 L_{name}_done")
        a.e("s_load_dwordx2 s[36:37], s[0:1], 64")
        a.e("s_waitcnt vmcnt(0) lgkmcnt(0)")
        a.e("s_sub_u32 s44, s36, 0")
        a.e("s_subb_u32 s45, s37, 0")
        a.e("s_mov_b32 s46, 256")
        a.e("s_mov_b32 s47, 0x00020000")
        add64(a, 40, 30, WS_STAMP + 5 * 128)
        a.e("s_mov_b32 s42, 0x40000")
        a.e("s_mov_b32 s43, 0x00020000")
        a.e(f"v_lshrrev_b32 v1, 2, v{vL}")
        a.e("v_add_u32 v1, 3, v1")
        a.e("v_and_b32 v1, 3, v1")
        a.e("v_lshlrev_b32 v1, 16, v1")
        a.e(f"v_and_b32 v2, 3, v{vL}")
        a.e("v_lshlrev_b32 v2, 3, v2")
        a.e("v_mov_b32 v3, 0x58686050")
        a.e("v_lshrrev_b32 v3, v2, v3")
        a.e("v_and_b32 v3, 0xff, v3")
        a.e("v_add_u32 v1, v1, v3")
        a.e("buffer_load_dword v4, v1, s[40:43], 0 offen sc1")
        a.e(f"v_lshlrev_b32 v5, 2, v{vL}")
        a.e("s_waitcnt vmcnt(0)")
        a.e("buffer_store_dword v4, v5, s[44:47], 0 offen")
    a.label(f"L_{name}_done")
    a.e("s_endpgm")
    return a.L, LDS, 256


def joint_kernels(ks):
    return ks + [("joint_kernel", 250, 512) + joint_kernel("joint_kernel")]
```

```python
import os
import sys

from asmlib import Asm, vr, sr, kd, f32hex, align8
from gen2_joint import prep_small, joint_kernels

EXP = os.environ.get("EXP", "").split(",")

WS_W1P = 0x0000000
WS_W2P = 0x0900000
WS_H = 0x1200000
WS_FP = 0x1A00000
WS_FPS = 0x800000
WS_STAMP = 0x3000000

CHUNKB = 7 * 8192
FB = 1088
BB = 8 * FB
SEQB = 2 * BB
SPB = 7 * SEQB
OOB = 0x7f000000
NTW, NTH, NTF = (" nt" if c == "1" else "" for c in os.environ.get("NT", "001"))


def add64(a, d, lo, off):
    a.e(f"s_add_u32 s{d}, s{lo}, {off}")
    a.e(f"s_addc_u32 s{d+1}, s{lo+1}, 0")


def eval_ops(c, t):
    e1, o1, e2, o2 = t
    ops = [f"v_add_f32 v{e1}, v{c[0]}, v{c[2]}",
           f"v_add_f32 v{o1}, v{c[1]}, v{c[3]}",
           f"v_fma_f32 v{e2}, v{c[2]}, 4.0, v{c[0]}",
           f"v_fma_f32 v{o2}, v{c[3]}, 4.0, v{c[1]}",
           f"v_add_f32 v{c[1]}, v{e1}, v{o1}",
           f"v_sub_f32 v{c[2]}, v{e1}, v{o1}",
           f"v_fma_f32 v{c[3]}, v{o2}, 2.0, v{e2}",
           f"v_fma_f32 v{e2}, v{o2}, -2.0, v{e2}",
           f"v_fmamk_f32 v{e1}, v{c[0]}, {f32hex(15.0)}, v{e2}",
           f"v_fmamk_f32 v{e1}, v{o1}, {f32hex(10.0)}, v{e1}"]
    return ops, [c[1], c[2], c[3], e2, e1]


def prep_kernel(name):
    a = Asm()
    NWG = 268
    a.label(name)
    a.e(f"s_cmp_ge_u32 s2, {NWG}")
    a.e(f"s_cbranch_scc1 L_{name}_done")
    a.e("s_cmp_lt_u32 s2, 12")
    a.e(f"s_cbranch_scc1 L_{name}_small")
    a.e("s_sub_u32 s2, s2, 12")
    if "stamp" in EXP:
        a.e("s_memrealtime s[60:61]")
    a.e("s_load_dwordx4 s[4:7], s[0:1], 8")
    a.e("s_load_dwordx2 s[30:31], s[0:1], 72")
    a.e("v_readfirstlane_b32 s20, v0")
    a.e("s_lshr_b32 s20, s20, 6")
    a.e("s_lshr_b32 s21, s2, 7")
    a.e("s_bfe_u32 s22, s2, 0x20005")
    a.e("s_bfe_u32 s23, s2, 0x40001")
    a.e("s_and_b32 s24, s2, 1")
    a.e("s_lshl_b32 s24, s24, 2")
    a.e("s_add_u32 s24, s24, s20")
    a.e("v_and_b32 v1, 63, v0")
    a.e("v_lshrrev_b32 v2, 4, v1")
    a.e("v_lshlrev_b32 v2, 12, v2")
    a.e("v_and_b32 v3, 15, v1")
    a.e("v_lshl_add_u32 v2, v3, 2, v2")
    a.e("s_lshl_b32 s26, s22, 3")
    a.e("s_lshr_b32 s27, s23, 3")
    a.e("s_add_u32 s26, s26, s27")
    a.e("s_lshl_b32 s26, s26, 17")
    a.e("s_and_b32 s27, s23, 7")
    a.e("s_lshl_b32 s27, s27, 14")
    a.e("s_add_u32 s26, s26, s27")
    a.e("s_lshl_b32 s27, s24, 6")
    a.e("s_add_u32 s26, s26, s27")
    a.e("s_waitcnt lgkmcnt(0)")
    a.e("s_cmp_eq_u32 s21, 0")
    a.e("s_cselect_b32 s8, s4, s6")
    a.e("s_cselect_b32 s9, s5, s7")
    a.e(f"s_mov_b32 s10, {31*131072}")
    a.e("s_mov_b32 s11, 0x00020000")
    R = 16
    for p in range(4):
        for e in range(8):
            a.vmem(f"buffer_load_dword v{R+p*8+e}, v2, s[8:11], s26 offen offset:{e*512}", ("L", p, e))
        if p < 3:
            a.e(f"s_add_u32 s26, s26, {2*131072}")
    a.e(f"s_mul_i32 s25, s21, {WS_W2P - WS_W1P}")
    add64(a, 12, 30, "s25")
    a.e(f"s_mov_b32 s14, {8*16*CHUNKB}")
    a.e("s_mov_b32 s15, 0x00020000")
    a.e("v_lshlrev_b32 v4, 4, v1")
    a.e("s_lshl_b32 s27, s24, 4")
    a.e("s_add_u32 s27, s27, s23")
    a.e(f"s_mul_i32 s27, s27, {CHUNKB}")
    a.e("s_lshl_b32 s28, s22, 11")
    a.e("s_add_u32 s27, s27, s28")
    a.e("s_mov_b32 s32, 0x05040100")
    a.e("s_mov_b32 s33, 0x07060302")
    a.e("s_mov_b32 s34, 0xffff0000")
    a.e(f"s_mov_b32 s35, {f32hex(1.0/24)}")
    a.e(f"s_mov_b32 s36, {f32hex(1.0/72)}")
    OUT = 48
    T = 104

    def out(seq, c, e2):
        return OUT + (seq * 2 + c) * 4 + e2

    def store(seq, c):
        a.e(f"s_add_u32 s28, s27, {seq*8192}")
        a.vmem(f"buffer_store_dwordx4 {vr(out(seq, c, 0))}, v4, s[12:15], s28 offen offset:{c*1024}{NTW}", "S")

    for p, seq in ((0, 6), (3, 0)):
        a.wait(vm=(("L", p, 7),))
        for c in range(2):
            for e2 in range(4):
                a.e(f"v_perm_b32 v{out(seq, c, e2)}, v{R+p*8+2*e2+1}, v{R+p*8+2*e2}, s{32+c}")
            store(seq, c)
    scale = ("0.5", "0.5", "s35", "s35", "s36")
    for c in range(2):
        for e2 in range(4):
            res = []
            for e in range(2):
                cf = [T + e * 8 + i for i in range(4)]
                for i in range(4):
                    src = R + (3 - i) * 8 + 2 * e2 + e
                    if c == 0:
                        a.e(f"v_lshlrev_b32 v{cf[i]}, 16, v{src}")
                    else:
                        a.e(f"v_and_b32 v{cf[i]}, s34, v{src}")
                ops, rr = eval_ops(cf, [T + e * 8 + 4 + i for i in range(4)])
                for op in ops:
                    a.e(op)
                for r, sc in zip(rr, scale):
                    a.e(f"v_mul_f32 v{r}, {sc}, v{r}")
                res.append(rr)
            for i in range(5):
                a.e(f"v_cvt_pk_bf16_f32 v{out(1+i, c, e2)}, v{res[0][i]}, v{res[1][i]}")
        for seq in range(1, 6):
            store(seq, c)
    if "stamp" in EXP:
        a.e("s_waitcnt vmcnt(0)")
        a.e("s_memrealtime s[62:63]")
        a.e("s_lshl_b32 s36, s2, 7")
        a.e(f"s_add_u32 s36, s36, {WS_STAMP + 3*0x10000}")
        add64(a, 40, 30, "s36")
        a.e("s_mov_b32 s42, 128")
        a.e("s_mov_b32 s43, 0x00020000")
        a.e("s_waitcnt lgkmcnt(0)")
        a.e("v_mov_b32 v8, 0")
        a.e("v_mov_b32 v0, 1")
        a.e("buffer_store_dword v0, v8, s[40:43], 0 offen")
        for i in range(4):
            a.e(f"v_mov_b32 v0, s{60+i}")
            a.e(f"buffer_store_dword v0, v8, s[40:43], 0 offen offset:{80+4*i}")
    a.label(f"L_{name}_done")
    a.e("s_endpgm")
    prep_small(a, name)
    return a.L, 32768, 128


def conv_kernel(name, cfg):
    TIN, TOUT = cfg["tin"], cfg["tout"]
    N = cfg["nchunk"]
    KSPLIT = cfg["ksplit"]
    NWG = 256
    STAMP = "stamp" in EXP
    sX, sW, sO = 8, 12, 16
    sWv, sT0, sCnt, sBo, sXo, sMask = 20, 21, 22, 23, 24, 25
    sBo2 = 26
    sK, sCb, sH = 28, 29, 32
    sSt = 60
    vL = 127
    vU, vS_, vI, vKG = 8, 9, 10, 11

    a = Asm()
    a.label(name)
    a.e(f"s_cmp_ge_u32 s2, {NWG}")
    a.e(f"s_cbranch_scc1 L_{name}_done")

    def stamp(i, fence=True):
        if STAMP:
            a.e(f"s_memtime s[{sSt+2*i}:{sSt+2*i+1}]")
            if fence:
                a.e("s_waitcnt lgkmcnt(0)")
                a.lg = []

    def rstamp(i):
        if STAMP:
            a.e(f"s_memrealtime s[{sSt+2*i}:{sSt+2*i+1}]")
            a.e("s_waitcnt lgkmcnt(0)")
            a.lg = []
    if STAMP:
        for i in range(28):
            a.e(f"s_mov_b32 s{sSt+i}, 0")
        a.e(f"s_memrealtime s[{sSt+20}:{sSt+21}]")
    stamp(0, False)
    a.e(f"s_load_dwordx2 s[4:5], s[0:1], {cfg['in_arg']}")
    a.e("s_load_dwordx2 s[30:31], s[0:1], 72")
    a.e(f"v_readfirstlane_b32 s{sWv}, v0")
    a.e(f"s_lshr_b32 s{sWv}, s{sWv}, 6")
    XL = int(os.environ.get("XL", "2"))
    a.e(f"s_and_b32 s36, s2, {(8 >> XL) - 1}")
    a.e(f"s_lshl_b32 s36, s36, {XL}")
    a.e(f"s_bfe_u32 s37, s2, {(XL << 16) | 3}")
    a.e(f"s_or_b32 s{sCb}, s36, s37")
    a.e(f"s_bfe_u32 s36, s2, {(XL << 16) | (3 - XL)}")
    a.e(f"s_lshl_b32 s36, s36, {5 - XL}")
    a.e(f"s_lshr_b32 s37, s2, {3 + XL}")
    a.e("s_or_b32 s36, s36, s37")
    if KSPLIT:
        a.e("s_lshr_b32 s33, s36, 4")
        a.e("s_and_b32 s34, s36, 7")
        a.e("s_bfe_u32 s35, s36, 0x10003")
    else:
        a.e("s_mov_b32 s33, 0")
        a.e("s_and_b32 s34, s36, 15")
        a.e("s_lshr_b32 s35, s36, 4")
    a.e(f"s_mul_i32 s{sT0}, s34, 500")
    a.e(f"s_and_b32 s{sH}, s{sWv}, 3")
    a.e(f"v_and_b32 v{vL}, 63, v0")
    a.e(f"v_lshrrev_b32 v5, 2, v{vL}")
    a.e(f"v_and_b32 v6, 3, v{vL}")
    a.e("v_lshlrev_b32 v7, 15, v5")
    a.e("v_lshl_add_u32 v7, v6, 4, v7")
    a.e(f"s_lshl_b32 s41, s{sT0}, 10")
    a.e("s_lshl_b32 s37, s33, 9")
    a.e("s_add_u32 s41, s41, s37")
    a.e("s_sub_u32 s41, s41, 7680")
    a.e(f"s_and_b32 s42, s{sWv}, 7")
    a.e("s_lshl_b32 s37, s42, 12")
    a.e("s_add_u32 s37, s37, s41")
    a.e("v_add_u32 v7, s37, v7")
    a.e(f"s_mul_i32 s36, s35, {TIN*512}")
    if cfg["in_off"]:
        a.e(f"s_add_u32 s36, s36, {cfg['in_off']}")
    a.e(f"s_mov_b32 s{sX+2}, {TIN*512}")
    a.e(f"s_mov_b32 s{sX+3}, 0x00020000")
    a.e(f"s_mov_b32 s{sMask}, 0xffff0000")
    a.e("s_waitcnt lgkmcnt(0)")
    stamp(1)
    add64(a, sX, 4, "s36")
    OB = 1024 if KSPLIT else 512

    def wsrd():
        a.e(f"s_lshl_b32 s36, s{sCb}, 4")
        a.e("s_lshl_b32 s37, s33, 3")
        a.e("s_add_u32 s36, s36, s37")
        a.e(f"s_mul_i32 s36, s36, {CHUNKB}")
        a.e(f"s_add_u32 s36, s36, {cfg['w_off']}")
        add64(a, sW, 30, "s36")
        a.e(f"s_mov_b32 s{sW+2}, {N*CHUNKB}")
        a.e(f"s_mov_b32 s{sW+3}, 0x00020000")

    def lds_throttle(need=1):
        if len(a.lg) + need > 15:
            a.e("s_waitcnt lgkmcnt(8)")
            a.lg = a.lg[-8:]

    def mf(acc, b, av):
        if "nomfma" not in EXP:
            a.e(f"v_mfma_f32_16x16x32_bf16 {vr(acc)}, {vr(b)}, {vr(av)}, {vr(acc)}")

    def steady(gen, per, strict=True):
        st = []
        for it in range(3):
            st.append(len(a.L))
            for pos in range(per):
                gen(per * it + pos, pos)
        st.append(len(a.L))
        bodies = [a.L[st[i]:st[i + 1]] for i in range(3)]
        if strict:
            assert bodies[1] == bodies[2], "loop not steady"
            assert bodies[0] == bodies[1], "loop entry not steady"
        del a.L[st[0]:]
        return bodies[1]

    a.e(f"s_cmp_ge_u32 s{sWv}, 8")
    a.e(f"s_cbranch_scc1 L_{name}_helper")

    ACC = 0
    vF, vA8, vD, vB = (120, 121), 122, (123, 124), 125
    vP = (116, 117, 118)
    vBZ = 119
    S, T, O = 96, 108, 64
    a.e(f"s_add_u32 s37, s41, {128*4096}")
    a.e(f"v_lshl_add_u32 v126, v{vL}, 4, s37")
    for p in range(3):
        a.vmem(f"buffer_load_dwordx4 {vr(S+4*p)}, v126, {sr(sX)}, 0 offen offset:{p*1024}", "SP")
    wsrd()
    a.e(f"s_mul_i32 s36, s35, {TOUT*OB}")
    a.e(f"s_add_u32 s36, s36, {cfg['out_off']}")
    if KSPLIT:
        a.e(f"s_mul_i32 s37, s33, {WS_FPS}")
        a.e("s_add_u32 s36, s36, s37")
    add64(a, sO, 30, "s36")
    a.e(f"s_mov_b32 s{sO+2}, {TOUT*OB}")
    a.e(f"s_mov_b32 s{sO+3}, 0x00020000")
    a.e(f"v_and_b32 v{vI}, 15, v{vL}")
    a.e(f"v_lshrrev_b32 v{vKG}, 4, v{vL}")
    t = 16
    for d, sh in ((vU, 0), (vS_, 1)):
        a.e(f"v_add_u32 v{d}, {sh}, v{vI}")
        a.e(f"v_and_b32 v{t}, 4, v{d}")
        a.e(f"v_lshrrev_b32 v{t}, 1, v{t}")
        a.e(f"v_xor_b32 v{t}, v{vKG}, v{t}")
        a.e(f"v_lshlrev_b32 v{t}, 4, v{t}")
        a.e(f"v_lshl_add_u32 v{d}, v{d}, 6, v{t}")
    a.e(f"s_lshr_b32 s38, s{sH}, 1")
    a.e(f"s_and_b32 s39, s{sH}, 1")
    a.e("s_add_u32 s40, s38, 4")
    a.e("s_lshl_b32 s43, s39, 10")
    a.e(f"s_cmp_lt_u32 s{sWv}, 4")
    a.e(f"s_cselect_b32 s40, s{sWv}, s40")
    a.e("s_cselect_b32 s36, 0, s43")
    a.e("s_lshl_b32 s37, s40, 13")
    a.e("s_add_u32 s37, s37, s36")
    a.e(f"v_lshl_add_u32 v{vB}, v{vL}, 4, s37")
    a.e(f"s_mul_i32 s37, s40, {SEQB}")
    a.e(f"v_add_u32 v{vF[0]}, s37, v{vU}")
    a.e(f"v_add_u32 v{vF[1]}, s37, v{vS_}")
    a.e(f"s_lshl_b32 s37, s{sWv}, 10")
    a.e(f"s_add_u32 s37, s37, {SPB}")
    a.e(f"v_lshl_add_u32 v{t}, v{vKG}, 4, s37")
    a.e(f"v_cmp_eq_u32 vcc, 15, v{vI}")
    a.e(f"v_mov_b32 v{t+1}, {BB}")
    a.e(f"v_mov_b32 v{t+2}, {-BB & 0xffffffff}")
    a.e(f"v_mov_b32 v{t+3}, 64")
    a.e(f"v_cndmask_b32 v{vA8}, v{vF[1]}, v{t}, vcc")
    a.e(f"v_cndmask_b32 v{vD[0]}, v{t+1}, v{t+3}, vcc")
    a.e(f"v_cndmask_b32 v{vD[1]}, v{t+2}, v{t+3}, vcc")
    a.e(f"v_lshl_add_u32 v126, v{vL}, 4, s37")
    tabs = {44: (1.0, 1.0, 1.0, 1.0, 1.0, 16.0), 45: (0.0, 1.0, -1.0, 2.0, -2.0, 8.0),
            46: (0.0, 1.0, 1.0, 4.0, 4.0, 4.0)}
    for sg, tab in tabs.items():
        a.e(f"s_mov_b32 s{sg}, {f32hex(tab[0])}")
    for q in range(1, 6):
        a.e(f"s_cmp_eq_u32 s40, {q}")
        for sg, tab in tabs.items():
            if tab[q] != tab[0]:
                a.e(f"s_cselect_b32 s{sg}, {f32hex(tab[q])}, s{sg}")

    def special_rows():
        a.wait(vm=("SP",))
        for d in range(4):
            for p in range(3):
                a.e(f"v_lshlrev_b32 v{T+p}, 16, v{S+4*p+d}")
                a.e(f"v_and_b32 v{T+3+p}, s{sMask}, v{S+4*p+d}")
            for h in range(2):
                a.e(f"v_mul_f32 v{T+6+h}, s44, v{T+3*h}")
            for h in range(2):
                a.e(f"v_fmac_f32 v{T+6+h}, s45, v{T+3*h+1}")
            for h in range(2):
                a.e(f"v_fmac_f32 v{T+6+h}, s46, v{T+3*h+2}")
            a.e(f"v_cvt_pk_bf16_f32 v{S+d}, v{T+6}, v{T+7}")
        a.e(f"ds_write_b128 v126, {vr(S)}")

    def own_read(k, g, reg, tag):
        if g == 8:
            base, off = vA8, 0
        else:
            base, off = vF[g >> 3], (k & 1) * BB + (g & 7) * FB
        a.lds(f"ds_read_b128 {vr(reg)}, v{base} offset:{off}", tag)
        if g == 8:
            a.e(f"v_add_u32 v{vA8}, v{vD[k & 1]}, v{vA8}")

    EA = 96

    def ex_addr(sbase):
        a.e(f"v_and_b32 v{EA}, 15, v{vL}")
        a.e(f"v_and_b32 v{EA+1}, 7, v{vL}")
        a.e(f"v_lshlrev_b32 v{EA+1}, 4, v{EA+1}")
        a.e(f"v_lshl_add_u32 v{EA}, v{EA}, 7, v{EA+1}")
        a.e(f"v_lshrrev_b32 v{EA+1}, 4, v{vL}")
        a.e(f"v_lshl_add_u32 v{EA}, v{EA+1}, 11, v{EA}")
        a.e(f"v_add_u32 v{EA}, s{sbase}, v{EA}")
        for f in range(1, 8):
            a.e(f"v_xor_b32 v{EA+f}, {f << 4}, v{EA}")

    def mwave(role):
        if role == 1:
            BR, AR, NR = 64, 96, 6
            steps = [("X", g) for g in range(11)]
        else:
            BR, AR, NR = 64, 88, 7
            steps = []
            for g in range(11):
                steps.append(("Y", g))
                if 1 <= g <= 9:
                    steps.append(("Z", g - 1))
        NS = len(steps)

        def bload(k, kind, q):
            if "nob" in EXP and k > 0:
                return
            so = sBo2 if q >> 1 else sBo
            if kind == "X":
                for c in range(2):
                    a.vmem(f"buffer_load_dwordx4 {vr(BR+(q*2+c)*4)}, v{vB}, {sr(sW)}, s{so} offen "
                           f"offset:{(q&1)*2048 + c*1024}", ("B", k, kind, q))
            elif kind == "Y":
                a.vmem(f"buffer_load_dwordx4 {vr(BR+q*4)}, v{vB}, {sr(sW)}, s{so} offen offset:{(q&1)*2048}",
                       ("B", k, kind, q))
            else:
                a.vmem(f"buffer_load_dwordx4 {vr(BR+16+q*4)}, v{vBZ}, {sr(sW)}, s{sBo} offen offset:{q*2048}",
                       ("B", k, kind, q))

        def rd(k, n):
            if steps[n] is None:
                return
            kind, g = steps[n]
            reg = AR + 4 * (n % NR)
            if kind == "Z":
                base, off = (vP[0], g * FB) if g < 6 else (vP[1], (g - 6) * FB) if g < 8 else (vP[2], 0)
                a.lds(f"ds_read_b128 {vr(reg)}, v{base} offset:{(k & 1)*BB + off}", ("A", k, n))
            else:
                own_read(k, g, reg, ("A", k, n))

        for i in range(64):
            a.e(f"v_mov_b32 v{ACC+i}, 0")
        a.e(f"s_mov_b32 s{sBo}, 0")
        a.e(f"s_mov_b32 s{sBo2}, 4096")
        for st in steps:
            if st and st[1] >= 7:
                bload(0, st[0], st[1] - 7)
        a.e(f"s_mov_b32 s{sBo}, {CHUNKB}")
        a.e(f"s_mov_b32 s{sBo2}, {CHUNKB + 4096}")
        special_rows()
        if role == 2:
            a.e(f"v_and_b32 v126, 15, v{vL}")
            a.e("v_lshlrev_b32 v126, 2, v126")
            a.e(f"v_add_u32 v126, {6*SEQB + 1024}, v126")
            a.e(f"ds_write_b32 v126, v{ACC}")
            a.e(f"ds_write_b32 v126, v{ACC} offset:{BB}")
        a.e("s_waitcnt lgkmcnt(0)")
        a.e("s_barrier")
        stamp(7)
        rstamp(12)
        a.e(f"s_mov_b32 s{sCnt}, {N//2}")
        a.e(f"s_setprio {os.environ.get(f'PM{role}', '0')}")

        def period(k, _):
            if "mst" in EXP and _ == 0:
                stamp(2)
            for n in range(NR):
                rd(k, n)
            for n, st in enumerate(steps):
                if st:
                    kind, g = st
                    nt = 2 if kind == "Z" else 4
                    qs = [q for q in range(nt) if 0 <= g - q <= 7]
                    a.wait(lg=(("A", k, n),), vm=tuple(("B", k, kind, q) for q in qs))
                    reg = AR + 4 * (n % NR)
                    for q in qs:
                        f = g - q
                        if kind == "X":
                            mf(ACC + f * 4, BR + q * 8, reg)
                            mf(ACC + 32 + f * 4, BR + q * 8 + 4, reg)
                        elif kind == "Y":
                            mf(ACC + f * 4, BR + q * 4, reg)
                        else:
                            mf(ACC + 32 + f * 4, BR + 16 + q * 4, reg)
                    if g >= 7:
                        bload(k + 1, kind, g - 7)
                if n + NR < NS:
                    rd(k, n + NR)
            a.e(f"s_add_u32 s{sBo}, s{sBo}, {CHUNKB}")
            a.e(f"s_add_u32 s{sBo2}, s{sBo2}, {CHUNKB}")
            assert not a.lg
            if "mst" in EXP and _ == 0:
                stamp(5)
            a.e("s_barrier")
            if "mst" in EXP and _ == 0:
                stamp(6)

        body = steady(period, 2, "nob" not in EXP)
        if "nob" in EXP:
            a.e("s_waitcnt vmcnt(0)")
        a.c("ALIGN ON")
        a.label(f"L_{name}_mloop{role}")
        a.L.extend(body)
        a.e(f"s_sub_u32 s{sCnt}, s{sCnt}, 1")
        a.e(f"s_cmp_lg_u32 s{sCnt}, 0")
        a.e(f"s_cbranch_scc1 L_{name}_mloop{role}")
        a.c("ALIGN OFF")
        stamp(8, False)
        rstamp(13)
        a.e("s_setprio 0")
        a.e("s_waitcnt vmcnt(0) lgkmcnt(0)")
        a.vm, a.lg = [], []
        if role == 1:
            a.e(f"s_lshl_b32 s36, s{sWv}, 14")
            second = 8192
        else:
            a.e("s_lshl_b32 s36, s40, 14")
            a.e("s_lshl_b32 s37, s39, 13")
            a.e("s_add_u32 s36, s36, s37")
            second = 32768
        ex_addr(36)
        for f in range(8):
            for c in range(2):
                a.e(f"ds_write_b128 v{EA+f}, {vr(ACC+c*32+f*4)} offset:{c*second}")

    a.e(f"s_cmp_ge_u32 s{sWv}, 4")
    a.e(f"s_cbranch_scc1 L_{name}_m2")
    vm0 = list(a.vm)
    mwave(1)
    a.e(f"s_branch L_{name}_epi")
    a.label(f"L_{name}_m2")
    a.vm, a.lg = list(vm0), []
    a.e(f"s_mul_i32 s37, s38, {2*FB}")
    a.e(f"s_add_u32 s37, s37, {6*SEQB}")
    a.e(f"v_add_u32 v{vP[0]}, s37, v{vU}")
    a.e(f"v_add_u32 v{vP[2]}, s37, v{vS_}")
    a.e(f"v_add_u32 v{vP[1]}, {6*SEQB + 6*FB}, v{vU}")
    a.e("s_cmp_eq_u32 s38, 0")
    a.e(f"s_cbranch_scc1 L_{name}_hh0")
    a.e(f"v_add_u32 v{vP[1]}, {6*SEQB}, v{vS_}")
    a.label(f"L_{name}_hh0")
    a.e("s_lshl_b32 s37, s38, 12")
    a.e("s_add_u32 s37, s37, s43")
    a.e(f"s_add_u32 s37, s37, {6*8192}")
    a.e(f"v_lshl_add_u32 v{vBZ}, v{vL}, 4, s37")
    mwave(2)
    a.e(f"s_branch L_{name}_epi")

    a.label(f"L_{name}_helper")
    a.vm, a.lg = [], []
    PB = (0, 32)
    XO = 64
    TMP = 76
    vX = 92
    vW = (96, 97)

    def praw(b, half, p):
        return PB[b] + half * 16 + p * 4

    def xload(pair, p):
        for half in range(2):
            a.vmem(f"buffer_load_dwordx4 {vr(praw(pair & 1, half, p))}, v{vX+p}, {sr(sX)}, "
                   f"s{sXo} offen offset:{half*64}", ("X", pair))
        a.e(f"v_add_u32 v{vX+p}, 128, v{vX+p}")

    def uregs(chunk):
        return [praw((chunk >> 1) & 1, chunk & 1, p) for p in range(4)]

    def wr(chunk, i):
        if "nowr" in EXP:
            return
        u = uregs(chunk)
        reg, seq = [(XO, 3), (XO + 4, 4), (XO + 8, 5), (u[0], 0), (u[1], 1), (u[2], 2), (u[3], 6)][i]
        lds_throttle()
        a.lds(f"ds_write_b128 v{vW[seq >> 2]}, {vr(reg)} offset:{(seq & 3)*SEQB + (chunk & 1)*BB}", "W")

    def tr_ops(chunk):
        u = uregs(chunk)
        o = [u[1], u[2], XO, XO + 4, XO + 8]
        ops = []
        for d in range(4):
            lo = [TMP + p for p in range(4)]
            hi = [TMP + 8 + p for p in range(4)]
            for p in range(4):
                ops.append(f"v_lshlrev_b32 v{lo[p]}, 16, v{u[p]+d}")
                ops.append(f"v_and_b32 v{hi[p]}, s{sMask}, v{u[p]+d}")
            o1, r1 = eval_ops(lo, [TMP + 4 + i for i in range(4)])
            o2, r2 = eval_ops(hi, [TMP + 12 + i for i in range(4)])
            for x, y in zip(o1, o2):
                ops += [x, y]
            for i in range(5):
                ops.append(f"v_cvt_pk_bf16_f32 v{o[i]+d}, v{r1[i]}, v{r2[i]}")
        if "notr" in EXP:
            ops = ["s_nop 0"] * 8
        return ops

    for p in range(4):
        a.e(f"v_add_u32 v{vX+p}, {p*1024}, v7")
    a.e(f"v_and_b32 v{TMP}, 4, v5")
    a.e(f"v_lshrrev_b32 v{TMP}, 1, v{TMP}")
    a.e(f"v_xor_b32 v{TMP}, v6, v{TMP}")
    a.e(f"v_lshlrev_b32 v{TMP}, 4, v{TMP}")
    a.e(f"v_lshl_add_u32 v{TMP}, v5, 6, v{TMP}")
    a.e(f"s_mov_b32 s{sXo}, 0")
    stamp(2)
    for p in range(4):
        xload(0, p)
    a.e(f"s_mul_i32 s36, s42, {FB}")
    a.e(f"v_add_u32 v{vW[0]}, s36, v{TMP}")
    a.e(f"v_add_u32 v{vW[1]}, {4*SEQB}, v{vW[0]}")
    PF = os.environ.get("PF", "")
    PFS = int(os.environ.get("PFS", "128"))
    sPX, sPW = 44, 45
    wsrd()
    a.e(f"s_bfe_u32 s36, s2, {(XL << 16) | 3}")
    a.e("s_lshl_b32 s36, s36, 3")
    a.e("s_add_u32 s36, s36, s42")
    a.e("s_lshl_b32 s36, s36, 14")
    a.e(f"s_add_u32 s{sPX}, s36, s41")
    a.e(f"s_add_u32 s{sPX}, s{sPX}, 256")
    a.e(f"s_lshr_b32 s36, s2, {3 + XL}")
    a.e("s_lshl_b32 s36, s36, 3")
    a.e("s_add_u32 s36, s36, s42")
    a.e(f"s_mul_i32 s{sPW}, s36, 896")
    a.e(f"s_add_u32 s{sPW}, s{sPW}, {CHUNKB}")

    def prefetch(par):
        if "x" in PF:
            a.e(f"s_max_i32 s46, s{sPX}, 0")
            a.e(f"s_min_i32 s46, s46, {TIN*512 - 8192}")
            for i in range(8):
                a.e(f"s_buffer_load_dword s48, {sr(sX)}, s46 offset:{i*1024}")
            a.e(f"s_add_u32 s{sPX}, s{sPX}, {(128 - 8192) & 0xffffffff if par else 8192}")
        if "w" in PF:
            a.e(f"s_min_u32 s47, s{sPW}, {N*CHUNKB - 896}")
            for i in range(7):
                a.e(f"s_buffer_load_dword s48, {sr(sW)}, s47 offset:{i*128}")
            a.e(f"s_add_u32 s{sPW}, s{sPW}, {CHUNKB}")

    prefetch(0)
    stamp(3)
    a.wait(vm=(("X", 0),))
    stamp(4)
    a.e("s_waitcnt lgkmcnt(0)")
    prefetch(1)
    a.e(f"s_mov_b32 s{sK}, 0")
    a.e(f"s_mov_b32 s{sCnt}, {N//4}")
    if "trace" in EXP:
        a.e("s_lshl_b32 s36, s2, 7")
        a.e(f"s_add_u32 s36, s36, {WS_STAMP + 0x80000 + cfg['stamp']*0x10000}")
        add64(a, 96, 30, "s36")
        a.e(f"s_cmp_eq_u32 s{sWv}, 15")
        a.e("s_cselect_b32 s98, 128, 0")
        a.e("s_mov_b32 s99, 0x00020000")
        a.e("v_mov_b32 v102, 0")
    a.e(f"s_cmp_ge_u32 s{sWv}, 12")
    a.e(f"s_cbranch_scc1 L_{name}_h2")

    def hwave(role):
        a.vm, a.lg = [], []
        for p in range(2 if role == 1 else 4):
            xload(1, p)
        for op in tr_ops(0):
            a.e(op)
        a.e("s_waitcnt lgkmcnt(0)")
        for i in range(7):
            wr(0, i)
        stamp(5)
        a.wait(lg_all=True)
        stamp(6)
        a.e("s_barrier")
        stamp(7)
        rstamp(12)
        a.e(f"s_setprio {os.environ.get(f'PH{role}', '1' if role == 1 else '0')}")
        if role == 2:
            for op in tr_ops(1):
                a.e(op)
        if "trace" in EXP:
            a.vmem("buffer_store_dwordx2 v[100:101], v102, s[96:99], 0 offen", "T")
        XP = [float(x) for x in os.environ.get(f"XP{role}", "0.3,0.7,0.1,0.5" if role == 1 else "0.3,0.7,0.02,0.15").split(",")]

        def period(k, pos):
            pair = (k + 3) >> 1 if role == 1 else (k >> 1) + 2
            first = (k & 1) if role == 1 else not (k & 1)
            if pos == 4 - role:
                a.e(f"s_cmp_eq_u32 s{sCnt}, 1")
                a.e(f"s_cbranch_scc1 L_{name}_hlast{role}")
            if "hst" in EXP and pos == 1:
                stamp(2)
            a.e(f"s_cmp_lt_u32 s{sK}, {N - 2 - role}")
            a.e(f"s_cselect_b32 s{sXo}, 0, {OOB}")
            if role == 2:
                for i in range(7):
                    wr(k + 1, i)
                a.wait(lg_all=True)
            prefetch(k & 1)
            V = tr_ops(k + role)
            n = len(V)
            ev = {}

            def at(i, f):
                ev.setdefault(max(0, min(int(i), n)), []).append(f)
            at(0, lambda: a.wait(vm=(("X", (k + role) >> 1),)))
            if "nox" not in EXP:
                for p in ((0, 1) if first else (2, 3)):
                    at(XP[p] * n, lambda p=p: xload(pair, p))
            for i in range(n + 1):
                for f in ev.get(i, []):
                    f()
                if i < n:
                    a.e(V[i])
            if role == 1:
                a.e("s_waitcnt lgkmcnt(0)")
                for i in range(7):
                    wr(k + 1, i)
            a.e(f"s_add_u32 s{sK}, s{sK}, 1")
            if "hst" in EXP and pos == 1:
                stamp(5)
            if "trace" in EXP:
                a.e("s_memtime s[90:91]")
                a.e("s_memrealtime s[92:93]")
            a.e("s_waitcnt lgkmcnt(0)")
            a.lg = []
            if "trace" in EXP:
                a.e("v_mov_b32 v100, s90")
                a.e("v_mov_b32 v101, s92")
                a.e(f"s_lshl_b32 s94, s{sK}, 3")
                a.vmem("buffer_store_dwordx2 v[100:101], v102, s[96:99], s94 offen", "T")
            a.e("s_barrier")
            if "hst" in EXP and pos == 1:
                stamp(6)

        body = steady(period, 4, "nox" not in EXP)
        a.label(f"L_{name}_hloop{role}")
        a.L.extend(body)
        a.e(f"s_sub_u32 s{sCnt}, s{sCnt}, 1")
        a.e(f"s_branch L_{name}_hloop{role}")
        a.label(f"L_{name}_hlast{role}")
        a.vm, a.lg = [], []
        if role == 2:
            for i in range(7):
                wr(3, i)
            a.e("s_waitcnt lgkmcnt(0)")
            a.lg = []
            a.e("s_barrier")
        stamp(8)
        rstamp(13)
        a.e(f"s_branch L_{name}_end")

    hwave(1)
    a.label(f"L_{name}_h2")
    hwave(2)

    a.label(f"L_{name}_epi")
    R0 = (120, 121)
    vO, vBW = 122, 123
    BND = 131072
    t0, t1, t2, t3 = 108, 109, 110, 111
    a.e(f"v_and_b32 v{t0}, 15, v{vL}")
    a.e(f"v_lshrrev_b32 v{t1}, 4, v{vL}")
    a.e(f"v_lshrrev_b32 v{t2}, 3, v{t0}")
    a.e(f"s_lshl_b32 s36, s{sWv}, 1")
    a.e(f"v_add_u32 v{t2}, s36, v{t2}")
    a.e(f"v_xor_b32 v{t3}, v{t2}, v{t0}")
    a.e(f"v_and_b32 v{t3}, 7, v{t3}")
    a.e(f"v_lshlrev_b32 v{t3}, 4, v{t3}")
    a.e(f"v_lshl_add_u32 v{t3}, v{t2}, 7, v{t3}")
    a.e(f"v_lshl_add_u32 v{R0[0]}, v{t1}, 11, v{t3}")
    a.e(f"v_add_u32 v{R0[1]}, 65536, v{R0[0]}")
    a.e(f"s_lshl_b32 s36, s{sWv}, 9")
    a.e(f"s_add_u32 s36, s36, {BND}")
    a.e(f"v_lshl_add_u32 v{vBW}, v{t1}, 7, s36")
    a.e(f"s_lshl_b32 s36, s{sWv}, 4")
    a.e(f"v_add_u32 v{t0}, s36, v{t0}")
    a.e(f"v_lshl_add_u32 v{t2}, v{t0}, 2, s{sT0}")
    a.e(f"v_lshlrev_b32 v{t2}, {10 if KSPLIT else 9}, v{t2}")
    a.e(f"v_lshl_add_u32 v{t2}, v{t1}, {5 if KSPLIT else 4}, v{t2}")
    a.e(f"s_lshl_b32 s36, s{sCb}, {7 if KSPLIT else 6}")
    a.e(f"v_add_u32 v{t2}, s36, v{t2}")
    a.e(f"v_mov_b32 v{t3}, {OOB}")
    a.e(f"v_cmp_gt_u32 vcc, 125, v{t0}")
    consts = [-1.0 / 3, 0.25, -5.0, -32.0 / 9, -8.0 / 9, -2.0 / 9, -1.0 / 18, 17.0 / 9, -2.0 / 3, 0.4, -1.0 / 15, -0.2]
    for i, cv in enumerate(consts):
        a.e(f"s_mov_b32 s{44+i}, {f32hex(cv)}")
    a.e("s_waitcnt lgkmcnt(0)")
    a.e("s_barrier")
    a.e(f"v_cndmask_b32 v{vO}, v{t3}, v{t2}, vcc")

    def P(c, s, r=0):
        return c * 32 + s * 4 + r
    Y = 64
    TB = 96
    ELS = (0, 1, 2)
    for c in range(2):
        for s in range(8):
            if c == 1 and s == 7:
                a.e("s_waitcnt lgkmcnt(7)")
            a.e(f"ds_read_b128 {vr(P(c, s))}, v{R0[s//4]} offset:{(s%4)*16384 + c*8192}")

    def interp(c):
        seq = []
        for r in range(4):
            E0, A, B, C, D, Q, E6, E6b = (P(c, s, r) for s in range(8))
            y = [Y + ph * 8 + 2 * r + c for ph in range(4)]
            S1, G = E6, C
            seq.append([
                f"v_add_f32 v{y[3]}, v{E6}, v{E6b}",
                f"v_add_f32 v{S1}, v{A}, v{B}",
                f"v_sub_f32 v{A}, v{A}, v{B}",
                f"v_add_f32 v{y[1]}, v{C}, v{D}",
                f"v_sub_f32 v{G}, v{C}, v{D}",
                f"v_fmac_f32 v{y[1]}, s44, v{S1}",
                f"v_fmac_f32 v{Q}, s47, v{E0}",
                f"v_fmac_f32 v{y[1]}, s45, v{E0}",
                f"v_sub_f32 v{S1}, v{S1}, v{E0}",
                f"v_fmac_f32 v{y[1]}, s46, v{y[3]}",
                f"v_sub_f32 v{S1}, v{S1}, v{y[3]}",
                f"v_fmac_f32 v{Q}, s50, v{y[3]}",
                f"v_sub_f32 v{B}, v{S1}, v{y[1]}",
                f"v_fmac_f32 v{Q}, s49, v{y[1]}",
                f"v_mul_f32 v{y[2]}, s53, v{G}",
                f"v_fmac_f32 v{Q}, s48, v{B}",
                f"v_fmac_f32 v{y[2]}, s54, v{A}",
                f"v_fma_f32 v{y[0]}, v{A}, s51, -v{Q}",
                f"v_fmac_f32 v{y[0]}, s52, v{G}",
                f"v_fmac_f32 v{y[2]}, s55, v{y[0]}",
                f"v_sub_f32 v{A}, v{A}, v{y[0]}",
                f"v_sub_f32 v{A}, v{A}, v{y[2]}",
            ])
        for ops in zip(*seq):
            for op in ops:
                a.e(op)

    a.e("s_waitcnt lgkmcnt(8)")
    interp(0)
    a.e("s_waitcnt lgkmcnt(0)")
    interp(1)
    a.e("s_mov_b32 s36, 0x00010001")
    a.e("s_mov_b32 s37, 0x00010001")
    a.e("s_mov_b64 exec, s[36:37]")
    for k in range(3):
        for c in range(2):
            a.e(f"ds_write_b128 v{vBW}, {vr(P(c, ELS[k]))} offset:{(k*2+c)*16}")
    a.e("s_mov_b64 exec, -1")

    k0 = -2.0 * 1.4426950408889634 * 0.7978845608028654

    def finish(ph):
        ys = [Y + ph * 8 + i for i in range(8)]
        if KSPLIT:
            for hf in range(2):
                a.e(f"buffer_store_dwordx4 {vr(ys[4*hf])}, v{vO}, {sr(sO)}, 0 offen offset:{ph*1024 + hf*16}{NTF}")
            return
        ts = [16 + (ph & 1) * 8 + i for i in range(8)]
        for y, t in zip(ys, ts):
            a.e(f"v_mul_f32 v{t}, v{y}, v{y}")
        for y, t in zip(ys, ts):
            a.e(f"v_fma_f32 v{t}, v{t}, s40, v124")
        for y, t in zip(ys, ts):
            a.e(f"v_mul_f32 v{t}, v{t}, v{y}")
        for y, t in zip(ys, ts):
            a.e(f"v_exp_f32 v{t}, v{t}")
        for y, t in zip(ys, ts):
            a.e(f"v_add_f32 v{t}, 1.0, v{t}")
        for y, t in zip(ys, ts):
            a.e(f"v_rcp_f32 v{t}, v{t}")
        for y, t in zip(ys, ts):
            a.e(f"v_mul_f32 v{y}, v{y}, v{t}")
        o = 48 + ph * 4
        for r in range(4):
            a.e(f"v_cvt_pk_bf16_f32 v{o+r}, v{ys[2*r]}, v{ys[2*r+1]}")
        a.e(f"buffer_store_dwordx4 {vr(o)}, v{vO}, {sr(sO)}, 0 offen offset:{ph*512}{NTH}")

    a.e(f"s_mov_b32 s40, {f32hex(k0 * 0.044715)}")
    a.e(f"v_mov_b32 v124, {f32hex(k0)}")
    a.e("s_waitcnt lgkmcnt(0)")
    a.e("s_barrier")
    for i in range(6):
        a.e(f"ds_read_b128 {vr(TB+4*i)}, v{vBW} offset:{512 + i*16}")
    finish(0)
    a.e("s_waitcnt lgkmcnt(0)")
    for ph in range(1, 4):
        for c in range(2):
            for r in range(4):
                i = (ph - 1) * 8 + c * 4 + r
                a.e(f"v_mov_b32_dpp v{TB+i}, v{P(c, ELS[ph-1], r)} row_shl:1 row_mask:0xf bank_mask:0xf")
        for c in range(2):
            for r in range(4):
                i = (ph - 1) * 8 + c * 4 + r
                y = Y + ph * 8 + 2 * r + c
                a.e(f"v_add_f32 v{y}, v{y}, v{TB+i}")
        finish(ph)
    a.label(f"L_{name}_end")
    if STAMP:
        a.e("s_waitcnt vmcnt(0)")
        stamp(9, False)
        a.e(f"s_memrealtime s[{sSt+22}:{sSt+23}]")
        a.e(f"s_cmp_lg_u32 s{sWv}, {os.environ.get('SW', '0')}")
        a.e(f"s_cbranch_scc1 L_{name}_done")
        a.e("s_lshl_b32 s36, s2, 7")
        a.e(f"s_add_u32 s36, s36, {WS_STAMP + cfg['stamp']*0x10000}")
        add64(a, 40, 30, "s36")
        a.e("s_mov_b32 s42, 128")
        a.e("s_mov_b32 s43, 0x00020000")
        a.e("s_waitcnt lgkmcnt(0)")
        a.e("v_mov_b32 v8, 0")
        for i in range(28):
            a.e(f"v_mov_b32 v0, s{sSt+i}")
            a.e(f"buffer_store_dword v0, v8, s[40:43], 0 offen offset:{4*i}")
    a.label(f"L_{name}_done")
    a.e("s_endpgm")
    return a.L, BND + 9 * 512, 128


CONV1 = dict(tin=16000, tout=8000, nchunk=16, ksplit=False, in_arg=0, in_off=0, w_off=WS_W1P, out_off=WS_H, stamp=0)
CONV2 = dict(tin=8000, tout=4000, nchunk=8, ksplit=True, in_arg=72, in_off=WS_H, w_off=WS_W2P, out_off=WS_FP, stamp=1)

HEADER = """; Kernarg layout for this problem (80 bytes, ptrs only, base s[0:1]):
"""


def main():
    ks = [("prep_kernel", 268, 256) + prep_kernel("prep_kernel"),
          ("conv1_kernel", 256, 1024) + conv_kernel("conv1_kernel", CONV1),
          ("conv2_kernel", 256, 1024) + conv_kernel("conv2_kernel", CONV2)]
    ks = joint_kernels(ks)
    out = HEADER
    for nm, grid, block, code, lds, vg in ks:
        out += f"; @launch kernel={nm} grid=({grid},1,1) block=({block},1,1) lds={lds}\n"
    out += '.amdgcn_target "amdgcn-amd-amdhsa--gfx950"\n.text\n'
    for nm, grid, block, code, lds, vg in ks:
        if "noalign" not in EXP:
            code = align8(code)
        out += f".globl {nm}\n.p2align 8\n.type {nm},@function\n" + "\n".join(code) + "\n"
    out += '.section .rodata,"a"\n'
    for nm, grid, block, code, lds, vg in ks:
        out += ".p2align 6\n" + kd(nm, vg)
    path = sys.argv[1] if len(sys.argv) > 1 else "standalone__seq2seq_rnn_t_joint__speech.s"
    open(path, "w").write(out)


if __name__ == "__main__":
    main()
```

```python
import os
from asmlib import Asm, vr, sr, f32hex

EXP = os.environ.get("EXP", "").split(",")
WS_FP = 0x1A00000
WS_FPS = 0x800000
WS_WF = 0x2A00000
WS_WO = 0x2A20000
WS_GE = 0x2A40000
WS_STAMP = 0x3000000
C2 = 2.0 * 1.4426950408889634
RANGE = 120.0


def add64(a, d, lo, off):
    a.e(f"s_add_u32 s{d}, s{lo}, {off}")
    a.e(f"s_addc_u32 s{d+1}, s{lo+1}, 0")


def code_warm(a, name, v, sh):
    a.e("s_getpc_b64 s[62:63]")
    a.label(f"L_{name}_pc")
    a.e(f"v_lshlrev_b32 v{v}, {7 - sh}, v0")
    a.e(f"v_min_u32 v{v}, L_{name}_done-L_{name}_pc, v{v}")
    a.e(f"v_mov_b32 v{v+1}, s63")
    a.e(f"v_add_co_u32 v{v}, vcc, s62, v{v}")
    a.e(f"v_addc_co_u32 v{v+1}, vcc, 0, v{v+1}, vcc")
    a.e(f"global_load_dword v{v+2}, v[{v}:{v+1}], off")


def prep_small(a, name):
    a.label(f"L_{name}_small")
    a.e("s_load_dwordx4 s[4:7], s[0:1], 24")
    a.e("s_load_dwordx4 s[36:39], s[0:1], 40")
    a.e("s_load_dwordx2 s[30:31], s[0:1], 72")
    a.e("v_readfirstlane_b32 s20, v0")
    a.e("s_lshr_b32 s20, s20, 6")
    a.e("s_lshr_b32 s21, s2, 2")
    a.e("s_and_b32 s22, s2, 3")
    a.e("v_and_b32 v1, 63, v0")
    a.e("v_lshrrev_b32 v2, 5, v1")
    a.e("v_and_b32 v3, 31, v1")
    a.e("v_lshlrev_b32 v5, 12, v2")
    a.e("v_lshl_add_u32 v5, v3, 2, v5")
    a.e("s_lshl_b32 s23, s20, 15")
    a.e("s_lshl_b32 s24, s22, 7")
    a.e("s_add_u32 s23, s23, s24")
    a.e("s_mov_b32 s32, 0x05040100")
    a.e("s_mov_b32 s33, 0x07060302")
    a.e("s_waitcnt lgkmcnt(0)")
    a.e("s_cmp_eq_u32 s21, 1")
    a.e("s_cselect_b32 s8, s38, s6")
    a.e("s_cselect_b32 s9, s39, s7")
    a.e("s_cmp_eq_u32 s21, 2")
    a.e("s_cselect_b32 s8, s36, s8")
    a.e("s_cselect_b32 s9, s37, s9")
    a.e("s_mov_b32 s10, 131072")
    a.e("s_mov_b32 s11, 0x00020000")
    R, O = 16, 48
    for k in range(4):
        for e in range(8):
            a.e(f"buffer_load_dword v{R+k*8+e}, v5, s[8:11], s23 offen offset:{e*512}")
        if k < 3:
            a.e("s_add_u32 s23, s23, 8192")
    a.e("s_mov_b32 s16, s4")
    a.e("s_mov_b32 s17, s5")
    a.e("s_mov_b32 s18, 8192")
    a.e("s_mov_b32 s19, 0x00020000")
    a.e("v_lshlrev_b32 v6, 9, v3")
    a.e("v_lshl_add_u32 v6, v2, 4, v6")
    a.e("s_lshl_b32 s24, s20, 7")
    for k in range(4):
        a.e(f"buffer_load_dwordx4 {vr(80+4*k)}, v6, s[16:19], s24 offen offset:{k*32}")
    a.e("s_lshl_b32 s24, s21, 17")
    a.e(f"s_add_u32 s24, s24, {WS_WF}")
    add64(a, 12, 30, "s24")
    a.e("s_mov_b32 s14, 131072")
    a.e("s_mov_b32 s15, 0x00020000")
    a.e("s_waitcnt vmcnt(0)")
    for k in range(4):
        for jn in range(2):
            for e2 in range(4):
                a.e(f"v_perm_b32 v{O+(k*2+jn)*4+e2}, v{R+k*8+2*e2+1}, v{R+k*8+2*e2}, s{32+jn}")
    a.e("s_cmp_eq_u32 s21, 2")
    a.e(f"s_cbranch_scc1 L_{name}_ge")
    a.e("v_lshlrev_b32 v4, 4, v1")
    a.e("s_lshl_b32 s24, s22, 15")
    a.e("s_lshl_b32 s25, s20, 13")
    a.e("s_add_u32 s24, s24, s25")
    a.e("s_add_u32 s25, s24, 4096")
    for i in range(8):
        a.e(f"buffer_store_dwordx4 {vr(O+4*i)}, v4, s[12:15], s{24+(i>>2)} offen offset:{(i&3)*1024}")
    a.e("s_endpgm")
    a.label(f"L_{name}_ge")
    ACC = 96
    for k in range(4):
        for jn in range(2):
            c = "0" if k == 0 else vr(ACC + 16 * jn, 16)
            a.e(f"v_mfma_f32_32x32x16_bf16 {vr(ACC+16*jn,16)}, {vr(O+(k*2+jn)*4)}, {vr(80+4*k)}, {c}")
    a.e("v_lshlrev_b32 v4, 4, v1")
    a.e("s_lshl_b32 s24, s20, 13")
    a.e("v_add_u32 v7, s24, v4")
    a.e("s_nop 15")
    for i in range(8):
        a.e(f"ds_write_b128 v7, {vr(ACC+4*i)} offset:{i*1024}")
    a.e("s_waitcnt lgkmcnt(0)")
    a.e("s_barrier")
    a.e("s_lshl_b32 s24, s20, 10")
    a.e("v_add_u32 v7, s24, v4")
    for src in range(4):
        for jn in range(2):
            a.e(f"ds_read_b128 {vr(16+(src*2+jn)*4)}, v7 offset:{src*8192 + jn*4096}")
    a.e("s_mov_b32 s14, 16384")
    a.e("v_lshlrev_b32 v8, 10, v3")
    a.e("v_lshl_add_u32 v8, v2, 5, v8")
    a.e("s_lshl_b32 s24, s22, 8")
    a.e("s_lshl_b32 s25, s20, 6")
    a.e("s_add_u32 s24, s24, s25")
    a.e("s_mov_b32 s34, 0xffff0000")
    a.e(f"s_mov_b32 s35, {f32hex(C2)}")
    a.e("s_waitcnt lgkmcnt(0)")
    for r in range(8):
        for src in range(1, 4):
            a.e(f"v_add_f32 v{16+r}, v{16+r}, v{16+src*8+r}")
    for i in range(4):
        a.e(f"v_cvt_pk_bf16_f32 v{48+i}, v{16+i}, v{20+i}")
    for i in range(4):
        a.e(f"v_lshlrev_b32 v{56+2*i}, 16, v{48+i}")
        a.e(f"v_and_b32 v{57+2*i}, s34, v{48+i}")
    for r in range(8):
        a.e(f"v_mul_f32 v{56+r}, s35, v{56+r}")
    a.e(f"buffer_store_dwordx4 {vr(56)}, v8, s[12:15], s24 offen")
    a.e(f"buffer_store_dwordx4 {vr(60)}, v8, s[12:15], s24 offen offset:16")
    for r in range(8):
        a.e(f"v_exp_f32 v{64+r}, v{56+r}")
    a.e("v_max3_f32 v72, |v56|, |v57|, |v58|")
    a.e("v_max3_f32 v72, |v59|, |v60|, v72")
    a.e("v_max3_f32 v72, |v61|, |v62|, v72")
    a.e("v_max_f32 v72, |v63|, v72")
    add64(a, 12, 12, 16384)
    a.e(f"v_cmp_lt_f32 vcc, {f32hex(RANGE)}, v72")
    a.e(f"buffer_store_dwordx4 {vr(64)}, v8, s[12:15], s24 offen")
    a.e(f"buffer_store_dwordx4 {vr(68)}, v8, s[12:15], s24 offen offset:16")
    add64(a, 12, 12, 16384)
    a.e("s_or_b32 s26, vcc_lo, vcc_hi")
    a.e("s_lshr_b32 s24, s24, 4")
    a.e("v_mov_b32 v73, s26")
    a.e("v_mov_b32 v74, 0")
    a.e("buffer_store_dword v73, v74, s[12:15], s24 offen")
    a.e("s_endpgm")


def joint_kernel(name):
    a = Asm()
    NWG = 250
    STAMP = "stamp" in EXP
    FP = 528
    F_B, GE_B, J_B = 49152, 32768, 0
    LDS = F_B + 32 * FP
    sF, sW, sO, sG = 8, 12, 16, 40
    sWv, sW4, sCnt = 20, 21, 22
    sSt = 64
    vL = 255
    NTO = os.environ.get("NTO", " nt")

    def stamp(i, fence=True):
        if STAMP:
            a.e(f"s_memtime s[{sSt+2*i}:{sSt+2*i+1}]")
            if fence:
                a.e("s_waitcnt lgkmcnt(0)")
                a.lg = []

    def rstamp(i):
        if STAMP:
            a.e(f"s_memrealtime s[{sSt+2*i}:{sSt+2*i+1}]")
            a.e("s_waitcnt lgkmcnt(0)")
            a.lg = []

    a.label(name)
    a.e(f"s_cmp_ge_u32 s2, {NWG}")
    a.e(f"s_cbranch_scc1 L_{name}_done")
    if STAMP:
        for i in range(28):
            a.e(f"s_mov_b32 s{sSt+i}, 0")
        a.e(f"s_memrealtime s[{sSt+20}:{sSt+21}]")
    stamp(0, False)
    a.e("s_load_dwordx2 s[28:29], s[0:1], 56")
    a.e("s_load_dwordx2 s[30:31], s[0:1], 72")
    a.e(f"v_readfirstlane_b32 s{sWv}, v0")
    a.e(f"s_lshr_b32 s{sWv}, s{sWv}, 6")
    a.e(f"s_and_b32 s{sW4}, s{sWv}, 3")
    a.e(f"v_and_b32 v{vL}, 63, v0")
    a.e(f"v_lshlrev_b32 v254, 4, v{vL}")
    if "cw" in EXP:
        code_warm(a, name, 244, 2)
    a.e(f"s_cmp_ge_u32 s{sWv}, 4")
    a.e(f"s_mov_b32 s33, {WS_WO}")
    a.e(f"s_cselect_b32 s33, {WS_WF}, s33")
    a.e(f"s_lshl_b32 s36, s{sW4}, 15")
    a.e("s_add_u32 s33, s33, s36")
    a.e(f"s_mov_b32 s{sW+2}, 32768")
    a.e(f"s_mov_b32 s{sW+3}, 0x00020000")
    a.e("s_lshl_b32 s35, s2, 14")
    a.e(f"s_add_u32 s35, s35, {WS_FP}")
    a.e(f"s_mov_b32 s{sF+2}, {WS_FPS + 16384}")
    a.e(f"s_mov_b32 s{sF+3}, 0x00020000")
    a.e("s_waitcnt lgkmcnt(0)")
    add64(a, sW, 30, "s33")
    W = 0

    def wload(ks):
        if ks % 2 == 0:
            a.e(f"s_mov_b32 s36, {ks*2048}")
        for jn in range(2):
            i = ks * 2 + jn
            a.vmem(f"buffer_load_dwordx4 {vr(W+4*i)}, v254, {sr(sW)}, s36 offen offset:{(i%4)*1024}", ("W", ks))

    a.e(f"s_cmp_ge_u32 s{sWv}, 4")
    a.e(f"s_cbranch_scc1 L_{name}_T")

    add64(a, sF, 30, "s35")
    X = 128
    a.e(f"s_lshl_b32 s36, s{sWv}, 12")
    a.e(f"s_add_u32 s37, s36, {WS_FPS}")
    for r2 in range(4):
        a.vmem(f"buffer_load_dwordx4 {vr(X+4*r2)}, v254, {sr(sF)}, s36 offen offset:{r2*1024}", ("F", r2))
        a.vmem(f"buffer_load_dwordx4 {vr(X+16+4*r2)}, v254, {sr(sF)}, s37 offen offset:{r2*1024}", ("F", r2))
    a.e("s_cmp_ge_u32 s2, 125")
    a.e("s_cselect_b32 s34, 8192, 0")
    a.e(f"s_add_u32 s34, s34, {WS_GE}")
    add64(a, sG, 30, "s34")
    a.e(f"s_mov_b32 s{sG+2}, {16384 + 8192}")
    a.e(f"s_mov_b32 s{sG+3}, 0x00020000")
    a.e(f"s_lshl_b32 s38, s{sWv}, 11")
    a.e("s_add_u32 s39, s38, 16384")
    for i in range(4):
        a.vmem(f"buffer_load_dwordx4 {vr(X+64+4*i)}, v254, {sr(sG)}, s{38+(i>>1)} offen offset:{(i&1)*1024}", "G")
    stamp(1)
    a.e("s_barrier")
    stamp(5)
    a.e("s_lshl_b32 s35, s2, 17")
    add64(a, sO, 28, "s35")
    a.e(f"s_mov_b32 s{sO+2}, 131072")
    a.e(f"s_mov_b32 s{sO+3}, 0x00020000")
    k0 = -2.0 * 1.4426950408889634 * 0.7978845608028654
    a.e(f"s_mov_b32 s44, {f32hex(k0 * 0.044715)}")
    a.e(f"v_mov_b32 v253, {f32hex(k0)}")
    a.e(f"s_mul_i32 s36, s{sWv}, {8*FP}")
    a.e(f"v_lshrrev_b32 v252, 5, v{vL}")
    a.e("v_lshlrev_b32 v252, 4, v252")
    a.e("v_add3_u32 v252, v252, v254, s36")
    a.e("s_mov_b32 s45, 0xffff0000")
    a.e(f"v_add_u32 v251, s38, v254")
    T = 232
    a.wait(vm=(("F", 3),))
    stamp(6)
    a.e(f"s_mov_b32 s{sCnt}, 4")
    a.label(f"L_{name}_floop")
    ys = [X + 40 + i for i in range(8)]
    ts = [T + i for i in range(8)]
    for i in range(4):
        a.e(f"v_lshlrev_b32 v{ys[2*i]}, 16, v{X+i}")
        a.e(f"v_and_b32 v{ys[2*i+1]}, s45, v{X+i}")
        a.e(f"v_lshlrev_b32 v{ts[2*i]}, 16, v{X+16+i}")
        a.e(f"v_and_b32 v{ts[2*i+1]}, s45, v{X+16+i}")
    for y, t in zip(ys, ts):
        a.e(f"v_add_f32 v{y}, v{y}, v{t}")
    for y, t in zip(ys, ts):
        a.e(f"v_mul_f32 v{t}, v{y}, v{y}")
    for y, t in zip(ys, ts):
        a.e(f"v_fma_f32 v{t}, v{t}, s44, v253")
    for y, t in zip(ys, ts):
        a.e(f"v_mul_f32 v{t}, v{t}, v{y}")
    for y, t in zip(ys, ts):
        a.e(f"v_exp_f32 v{t}, v{t}")
    for y, t in zip(ys, ts):
        a.e(f"v_add_f32 v{t}, 1.0, v{t}")
    for y, t in zip(ys, ts):
        a.e(f"v_rcp_f32 v{t}, v{t}")
    for i in range(0, 12, 2):
        for b in (X, X + 16):
            a.e(f"v_pk_mov_b32 {vr(b+i,2)}, {vr(b+4+i,2)}, {vr(b+4+i,2)} op_sel:[0,1]")
    for y, t in zip(ys, ts):
        a.e(f"v_mul_f32 v{y}, v{y}, v{t}")
    for i in range(4):
        a.e(f"v_cvt_pk_bf16_f32 v{240+i}, v{ys[2*i]}, v{ys[2*i+1]}")
    a.e(f"ds_write_b128 v252, {vr(240)} offset:{F_B}")
    a.e(f"v_add_u32 v252, {2*FP}, v252")
    a.e(f"s_sub_u32 s{sCnt}, s{sCnt}, 1")
    a.e(f"s_cmp_lg_u32 s{sCnt}, 0")
    a.e(f"s_cbranch_scc1 L_{name}_floop")
    a.wait(vm=("G",))
    for i in range(4):
        a.lds(f"ds_write_b128 v251, {vr(X+64+4*i)} offset:{GE_B + (i>>1)*8192 + (i&1)*1024}", "W")
    a.wait(lg_all=True)
    stamp(2)
    a.e("s_barrier")
    if os.environ.get("NPRE", "16") != "16":
        a.e("s_barrier")
    stamp(3)
    for ks in range(16):
        wload(ks)
    ACC = (128, 160)
    JR = 192
    PKR = 224
    vO = 250
    a.e(f"v_lshrrev_b32 v{vO}, 5, v{vL}")
    a.e(f"v_lshlrev_b32 v{vO}, 14, v{vO}")
    a.e(f"v_and_b32 v249, 31, v{vL}")
    a.e(f"v_lshl_add_u32 v{vO}, v249, 2, v{vO}")
    a.e(f"s_lshl_b32 s36, s{sW4}, 7")
    a.e(f"v_add_u32 v{vO}, s36, v{vO}")
    for r in range(16):
        a.e(f"s_mov_b32 s{44+r}, {(8*(r>>2) + (r&3)) * 4096}")

    def out_ops(par):
        ops = []
        ac = ACC[par]
        for r in range(16):
            ops.append(f"v_cvt_pk_bf16_f32 v{PKR+r}, v{ac+r}, v{ac+16+r}")
            ops.append(f"buffer_store_dword v{PKR+r}, v{vO}, {sr(sO)}, s{44+r} offen{NTO}")
        ops.append(f"v_add_u32 v{vO}, 512, v{vO}")
        return ops

    PD = int(os.environ.get('JPD', '4'))

    def jread(par, ks):
        a.lds(f"ds_read_b128 {vr(JR+4*(ks%8))}, v254 offset:{J_B + par*16384 + ks*1024}", ("J", par, ks))

    def ustep(par, side):
        for ks in range(16):
            if ks + PD == 16:
                a.wait(lg_all=True)
                a.e("s_barrier")
            a.wait(lg=(("J", par, ks),), vm=(("W", ks),))
            for jn in range(2):
                ac = ACC[par] + 16 * jn
                c = "0" if ks == 0 else vr(ac, 16)
                a.e(f"v_mfma_f32_32x32x16_bf16 {vr(ac,16)}, {vr(JR+4*(ks%8))}, {vr(W+(ks*2+jn)*4)}, {c}")
                if jn == 0:
                    if ks + PD < 16:
                        jread(par, ks + PD)
                    else:
                        jread(1 - par, ks + PD - 16)
                if ks >= 4:
                    for _ in range(2 if ks < 9 else 1):
                        if side:
                            a.e(side.pop(0))
        assert not side

    stamp(4)
    a.e("s_barrier")
    for ks in range(PD):
        jread(0, ks)
    ustep(0, [])
    lg0 = list(a.lg)
    stamp(7)
    rstamp(12)
    a.lg = list(lg0)
    a.e(f"s_mov_b32 s{sCnt}, 4")
    a.c("ALIGN ON")
    a.label(f"L_{name}_oloop")
    ustep(1, out_ops(0))
    a.e(f"s_sub_u32 s{sCnt}, s{sCnt}, 1")
    a.e(f"s_cmp_eq_u32 s{sCnt}, 0")
    a.e(f"s_cbranch_scc1 L_{name}_oend")
    ustep(0, out_ops(1))
    assert a.lg == lg0
    a.e("s_waitcnt vmcnt(24)")
    a.e(f"s_branch L_{name}_oloop")
    a.c("ALIGN OFF")
    a.label(f"L_{name}_oend")
    stamp(8, False)
    rstamp(13)
    a.e("s_nop 15")
    for op in out_ops(1):
        a.e(op)
    a.e(f"s_branch L_{name}_fin")

    a.label(f"L_{name}_T")
    a.vm, a.lg = [], []
    a.e("s_setprio 3")
    if "wwarm" in EXP:
        add64(a, sG, 30, WS_WF)
        a.e(f"s_mov_b32 s{sG+2}, 262144")
        a.e(f"s_mov_b32 s{sG+3}, 0x00020000")
        a.e("s_lshr_b32 s36, s2, 3")
        a.e("s_lshl_b32 s36, s36, 13")
        a.e(f"s_lshl_b32 s37, s{sW4}, 11")
        a.e("s_add_u32 s36, s36, s37")
        a.e(f"v_lshlrev_b32 v247, 5, v{vL}")
        a.vmem(f"buffer_load_dword v246, v247, {sr(sG)}, s36 offen", "P")
    add64(a, 36, 30, WS_GE + 32768)
    a.e("s_load_dwordx16 s[44:59], s[36:37], 0")
    FE = 128
    FR = 160
    GEC = 192
    PK = 224
    vF, vG, vJ = 250, 249, 248
    a.e(f"v_and_b32 v{vF}, 31, v{vL}")
    a.e(f"v_mul_u32_u24 v{vF}, {FP}, v{vF}")
    a.e(f"v_lshrrev_b32 v{vG}, 5, v{vL}")
    a.e(f"v_lshl_add_u32 v{vF}, v{vG}, 4, v{vF}")
    a.e(f"v_lshlrev_b32 v{vG}, 5, v{vG}")
    a.e(f"s_lshl_b32 s36, s{sW4}, 8")
    a.e(f"v_add_u32 v{vG}, s36, v{vG}")
    a.e(f"s_lshl_b32 s36, s{sW4}, 12")
    a.e(f"v_add_u32 v{vJ}, s36, v254")
    NPRE = int(os.environ.get("NPRE", "16"))
    a.e("s_barrier")
    if "tst" in EXP:
        stamp(1)
    for ks in range(NPRE):
        wload(ks)
        if "tst" in EXP and ks in (3, 7):
            stamp(6 + (ks >> 2))
    a.e("s_waitcnt lgkmcnt(0)")
    a.e(f"s_setprio {os.environ.get('PT', '0')}")
    for i in range(1, 16):
        a.e(f"s_or_b32 s44, s44, s{44+i}")
    stamp(2)
    a.e("s_barrier")
    stamp(3)
    for ks in range(8):
        a.lds(f"ds_read_b128 {vr(FR+4*ks)}, v{vF} offset:{F_B + ks*32}", ("A", ks))
    nxt = NPRE
    for ks in range(16):
        for _ in range(2):
            if nxt < 16:
                wload(nxt)
                nxt += 1
                if nxt == 16:
                    a.e("s_barrier")
        a.wait(lg=(("A", ks),), vm=(("W", ks),))
        for jn in range(2):
            c = "0" if ks == 0 else vr(FE + 16 * jn, 16)
            a.e(f"v_mfma_f32_32x32x16_bf16 {vr(FE+16*jn,16)}, {vr(W+(ks*2+jn)*4)}, {vr(FR+4*(ks%8))}, {c}")
        if ks + 8 < 16:
            a.lds(f"ds_read_b128 {vr(FR+4*(ks%8))}, v{vF} offset:{F_B + (ks+8)*32}", ("A", ks + 8))
    a.e("s_mov_b32 s46, 0xffff0000")
    a.e(f"s_mov_b32 s45, {f32hex(C2)}")
    a.e("s_nop 10")
    stamp(4)
    FS = 0
    for r in range(16):
        a.e(f"v_cvt_pk_bf16_f32 v{PK+r}, v{FE+r}, v{FE+16+r}")
    for r in range(16):
        a.e(f"v_lshlrev_b32 v{FS+2*r}, 16, v{PK+r}")
        a.e(f"v_and_b32 v{FS+2*r+1}, s46, v{PK+r}")
    for r in range(32):
        a.e(f"v_mul_f32 v{FS+r}, s45, v{FS+r}")
    a.e(f"v_max_f32 v64, |v{FS}|, |v{FS+1}|")
    for r in range(1, 16):
        a.e(f"v_max3_f32 v64, |v{FS+2*r}|, |v{FS+2*r+1}|, v64")
    a.e(f"v_cmp_lt_f32 vcc, {f32hex(RANGE)}, v64")
    a.e(f"s_mov_b32 s{sCnt}, 4")
    a.e("s_or_b32 s44, s44, vcc_lo")
    a.e("s_or_b32 s44, s44, vcc_hi")
    a.e("s_cmp_lg_u32 s44, 0")
    if "slow" in EXP:
        a.e(f"s_branch L_{name}_tslow")
    a.e(f"s_cbranch_scc1 L_{name}_tslow")
    G2 = 32

    def geread(fast):
        for k4 in range(4):
            for h in range(2):
                a.lds(f"ds_read_b128 {vr(GEC+8*k4+4*h)}, v{vG} offset:{GE_B + fast*8192 + k4*64 + h*16}", ("G", k4))
        a.e(f"v_add_u32 v{vG}, 1024, v{vG}")

    def tstep(fast, par):
        for k4 in range(4):
            a.wait(lg=(("G", k4),))
            xs = [G2 + 8 * k4 + i for i in range(8)]
            for i, x in enumerate(xs):
                if fast:
                    a.e(f"v_fma_f32 v{x}, v{GEC+8*k4+i}, v{FS+8*k4+i}, 1.0")
                else:
                    a.e(f"v_add_f32 v{x}, v{GEC+8*k4+i}, v{FS+8*k4+i}")
            if k4 == 3:
                geread(fast)
            if not fast:
                for x in xs:
                    a.e(f"v_exp_f32 v{x}, v{x}")
                for x in xs:
                    a.e(f"v_add_f32 v{x}, 1.0, v{x}")
            for x in xs:
                a.e(f"v_rcp_f32 v{x}, v{x}")
            for x in xs:
                a.e(f"v_fma_f32 v{x}, v{x}, -2.0, 1.0")
            for i in range(4):
                a.e(f"v_cvt_pk_bf16_f32 v{PK+4*k4+i}, v{xs[2*i]}, v{xs[2*i+1]}")
            a.lds(f"ds_write_b128 v{vJ}, {vr(PK+4*k4)} offset:{J_B + par*16384 + k4*1024}", "W")
        a.wait(lg_all=True)
        a.e("s_barrier")

    for fast in (1, 0):
        if not fast:
            a.label(f"L_{name}_tslow")
        a.lg = []
        geread(fast)
        if fast:
            for r in range(32):
                a.e(f"v_exp_f32 v{FS+r}, v{FS+r}")
        a.wait(lg_all=True)
        stamp(5)
        a.label(f"L_{name}_tloop{fast}")
        tstep(fast, 0)
        tstep(fast, 1)
        a.e(f"s_sub_u32 s{sCnt}, s{sCnt}, 1")
        a.e(f"s_cmp_lg_u32 s{sCnt}, 0")
        a.e(f"s_cbranch_scc1 L_{name}_tloop{fast}")
        stamp(8)
        if fast:
            a.e(f"s_branch L_{name}_fin")
    a.label(f"L_{name}_fin")
    if STAMP:
        a.e("s_waitcnt vmcnt(0)")
        stamp(9, False)
        a.e(f"s_memrealtime s[{sSt+22}:{sSt+23}]")
        a.e(f"s_cmp_lg_u32 s{sWv}, {os.environ.get('SWJ', '0')}")
        a.e(f"s_cbranch_scc1 L_{name}_done")
        a.e("s_lshl_b32 s36, s2, 7")
        a.e(f"s_add_u32 s36, s36, {WS_STAMP + 2*0x10000}")
        add64(a, 40, 30, "s36")
        a.e("s_mov_b32 s42, 128")
        a.e("s_mov_b32 s43, 0x00020000")
        a.e("s_waitcnt lgkmcnt(0)")
        a.e("v_mov_b32 v8, 0")
        for i in range(28):
            a.e(f"v_mov_b32 v0, s{sSt+i}")
            a.e(f"buffer_store_dword v0, v8, s[40:43], 0 offen offset:{4*i}")
    a.label(f"L_{name}_done")
    a.e("s_endpgm")
    return a.L, LDS, 256


def joint_kernels(ks):
    return ks + [("joint_kernel", 250, 512) + joint_kernel("joint_kernel")]
```

```python
import os
import sys

from asmlib import Asm, vr, sr, kd, f32hex, align8
from gen5_joint import prep_small, joint_kernels

EXP = os.environ.get("EXP", "").split(",")

WS_W1P = 0x0000000
WS_W2P = 0x0900000
WS_H = 0x1200000
WS_FP = 0x1A00000
WS_FPS = 0x800000
WS_WF = 0x2A00000
WS_STAMP = 0x3000000

CHUNKB = 7 * 8192
FB = 1024
BB = 8 * FB
SEQB = 2 * BB
FB6 = 1088
BB6 = 8 * FB6
SPB = 6 * SEQB + 2 * BB6
TOPB = SPB + 6144
OOB = 0x7f000000
NTW, NTH, NTF = ({"0": "", "1": " nt", "2": " sc1", "3": " sc0 sc1"}[c] for c in os.environ.get("NT", "222"))


def add64(a, d, lo, off):
    a.e(f"s_add_u32 s{d}, s{lo}, {off}")
    a.e(f"s_addc_u32 s{d+1}, s{lo+1}, 0")


def eval_ops(c, t):
    e1, o1, e2, o2 = t
    ops = [f"v_add_f32 v{e1}, v{c[0]}, v{c[2]}",
           f"v_add_f32 v{o1}, v{c[1]}, v{c[3]}",
           f"v_fma_f32 v{e2}, v{c[2]}, 4.0, v{c[0]}",
           f"v_fma_f32 v{o2}, v{c[3]}, 4.0, v{c[1]}",
           f"v_add_f32 v{c[1]}, v{e1}, v{o1}",
           f"v_sub_f32 v{c[2]}, v{e1}, v{o1}",
           f"v_fma_f32 v{c[3]}, v{o2}, 2.0, v{e2}",
           f"v_fma_f32 v{e2}, v{o2}, -2.0, v{e2}",
           f"v_fmamk_f32 v{e1}, v{c[0]}, {f32hex(15.0)}, v{e2}",
           f"v_fmamk_f32 v{e1}, v{o1}, {f32hex(10.0)}, v{e1}"]
    return ops, [c[1], c[2], c[3], e2, e1]


def wprep(a, karg, wsoff, ws_loaded, barrier=False, extra=None):
    a.vm, a.lg = [], []
    a.e(f"s_load_dwordx2 s[8:9], s[0:1], {karg}")
    if not ws_loaded:
        a.e("s_load_dwordx2 s[30:31], s[0:1], 72")
    a.e("s_lshr_b32 s22, s20, 8")
    a.e("s_bfe_u32 s23, s20, 0x40004")
    a.e("s_bfe_u32 s24, s20, 0x30001")
    a.e("s_and_b32 s21, s20, 1")
    a.e("v_lshrrev_b32 v2, 4, v1")
    a.e("v_lshlrev_b32 v2, 12, v2")
    a.e("v_and_b32 v3, 15, v1")
    a.e("v_lshl_add_u32 v2, v3, 2, v2")
    a.e("s_lshl_b32 s26, s22, 3")
    a.e("s_lshr_b32 s27, s23, 3")
    a.e("s_add_u32 s26, s26, s27")
    a.e("s_lshl_b32 s26, s26, 17")
    a.e("s_and_b32 s27, s23, 7")
    a.e("s_lshl_b32 s27, s27, 14")
    a.e("s_add_u32 s26, s26, s27")
    a.e("s_lshl_b32 s27, s24, 6")
    a.e("s_add_u32 s26, s26, s27")
    a.e(f"s_mov_b32 s10, {31*131072}")
    a.e("s_mov_b32 s11, 0x00020000")
    for p in range(1, 4):
        a.e(f"s_add_u32 s{36+p}, s26, {2*131072*p}")
    a.e("s_waitcnt lgkmcnt(0)")
    R = 16
    for e2 in range(4):
        for p in range(4):
            for e in (2 * e2, 2 * e2 + 1):
                a.vmem(f"buffer_load_dword v{R+p*8+e}, v2, s[8:11], s{36+p if p else 26} offen offset:{e*512}", ("L", e2))
    add64(a, 12, 30, wsoff)
    a.e(f"s_mov_b32 s14, {8*16*CHUNKB}")
    a.e("s_mov_b32 s15, 0x00020000")
    a.e("v_lshlrev_b32 v4, 4, v1")
    a.e("s_lshl_b32 s27, s24, 4")
    a.e("s_add_u32 s27, s27, s23")
    a.e(f"s_mul_i32 s27, s27, {CHUNKB}")
    a.e("s_lshl_b32 s28, s22, 11")
    a.e("s_add_u32 s27, s27, s28")
    a.e("s_lshl_b32 s28, s21, 10")
    a.e("s_add_u32 s27, s27, s28")
    a.e("s_cmp_eq_u32 s21, 0")
    a.e("s_mov_b32 s32, 0x07060302")
    a.e("s_cselect_b32 s32, 0x05040100, s32")
    a.e("s_mov_b32 s33, 0x03020c0c")
    a.e("s_cselect_b32 s33, 0x01000c0c, s33")
    a.e(f"s_mov_b32 s35, {f32hex(1.0/24)}")
    a.e(f"s_mov_b32 s36, {f32hex(1.0/72)}")
    if barrier:
        a.e("s_barrier")
    OUT = 48
    T = 76
    scale = ("0.5", "0.5", "s35", "s35", "s36")
    for e2 in range(4):
        a.wait(vm=(("L", e2),))
        if extra and e2 == int(os.environ.get("XT", "3")):
            extra()
            a.vm += ["T", "T"]
        for p, seq in ((0, 6), (3, 0)):
            a.e(f"v_perm_b32 v{OUT+seq*4+e2}, v{R+p*8+2*e2+1}, v{R+p*8+2*e2}, s32")
        res, lists = [], []
        for e in range(2):
            cf = [T + e * 8 + i for i in range(4)]
            ops = [f"v_perm_b32 v{cf[i]}, v{cf[i]}, v{R + (3 - i) * 8 + 2 * e2 + e}, s33" for i in range(4)]
            o, rr = eval_ops(cf, [T + e * 8 + 4 + i for i in range(4)])
            ops += o + [f"v_mul_f32 v{r}, {sc}, v{r}" for r, sc in zip(rr, scale)]
            res.append(rr)
            lists.append(ops)
        for x, y in zip(*lists):
            a.e(x)
            a.e(y)
        for i in range(5):
            a.e(f"v_cvt_pk_bf16_f32 v{OUT+(1+i)*4+e2}, v{res[0][i]}, v{res[1][i]}")
    for seq in (6, 0, 1, 2, 3, 4, 5):
        a.e(f"s_add_u32 s28, s27, {seq*8192}")
        a.e(f"buffer_store_dwordx4 {vr(OUT+seq*4)}, v4, s[12:15], s28 offen{NTW}")


def prep_kernel(name):
    a = Asm()
    NWG = 268
    a.label(name)
    a.e(f"s_cmp_ge_u32 s2, {NWG}")
    a.e(f"s_cbranch_scc1 L_{name}_done")
    a.e("s_cmp_lt_u32 s2, 12")
    a.e(f"s_cbranch_scc1 L_{name}_small")
    a.e("s_sub_u32 s2, s2, 12")
    if "stamp" in EXP:
        a.e("s_memrealtime s[60:61]")
    a.e("v_readfirstlane_b32 s20, v0")
    a.e("s_lshr_b32 s20, s20, 6")
    a.e("s_lshl_b32 s21, s2, 2")
    a.e("s_add_u32 s20, s20, s21")
    a.e("v_and_b32 v1, 63, v0")
    touch = None
    if "xt" in EXP:
        a.e("s_load_dwordx2 s[44:45], s[0:1], 0")
        a.e("s_lshl_b32 s43, s20, 14")
        a.e("v_lshlrev_b32 v5, 7, v1")
        a.e("v_add_u32 v6, 8192, v5")
        a.e(f"s_mov_b32 s46, {2*16000*512}")
        a.e("s_mov_b32 s47, 0x00020000")

        def touch():
            a.e("buffer_load_dword v7, v5, s[44:47], s43 offen")
            a.e("buffer_load_dword v8, v6, s[44:47], s43 offen")
    wprep(a, 8, WS_W1P, False, extra=touch)
    if "stamp" in EXP:
        a.e("s_waitcnt vmcnt(0)")
        a.e("s_memrealtime s[62:63]")
        a.e("s_lshl_b32 s36, s2, 7")
        a.e(f"s_add_u32 s36, s36, {WS_STAMP + 3*0x10000}")
        add64(a, 40, 30, "s36")
        a.e("s_mov_b32 s42, 128")
        a.e("s_mov_b32 s43, 0x00020000")
        a.e("s_waitcnt lgkmcnt(0)")
        a.e("v_mov_b32 v8, 0")
        a.e("v_mov_b32 v0, 1")
        a.e("buffer_store_dword v0, v8, s[40:43], 0 offen")
        for i in range(4):
            a.e(f"v_mov_b32 v0, s{60+i}")
            a.e(f"buffer_store_dword v0, v8, s[40:43], 0 offen offset:{80+4*i}")
    a.label(f"L_{name}_done")
    a.e("s_endpgm")
    prep_small(a, name)
    return a.L, 32768, 128


def conv_kernel(name, cfg):
    TIN, TOUT = cfg["tin"], cfg["tout"]
    N = cfg["nchunk"]
    KSPLIT = cfg["ksplit"]
    NWG = 256
    STAMP = "stamp" in EXP
    sX, sW, sO = 8, 12, 16
    sWv, sT0, sCnt, sBo, sXo, sMask = 20, 21, 22, 23, 24, 25
    sBo2 = 26
    sK, sCb, sH = 28, 29, 32
    sSt = 60
    vL = 127
    vU, vS_, vI, vKG = 8, 9, 10, 11

    a = Asm()
    a.label(name)
    a.e(f"s_cmp_ge_u32 s2, {NWG}")
    a.e(f"s_cbranch_scc1 L_{name}_done")

    def stamp(i, fence=True):
        if STAMP:
            a.e(f"s_memtime s[{sSt+2*i}:{sSt+2*i+1}]")
            if fence:
                a.e("s_waitcnt lgkmcnt(0)")
                a.lg = []

    def rstamp(i):
        if STAMP:
            a.e(f"s_memrealtime s[{sSt+2*i}:{sSt+2*i+1}]")
            a.e("s_waitcnt lgkmcnt(0)")
            a.lg = []
    if STAMP:
        for i in range(28):
            a.e(f"s_mov_b32 s{sSt+i}, 0")
        a.e(f"s_memrealtime s[{sSt+20}:{sSt+21}]")
    stamp(0, False)
    a.e(f"s_load_dwordx2 s[4:5], s[0:1], {cfg['in_arg']}")
    a.e("s_load_dwordx2 s[30:31], s[0:1], 72")
    a.e(f"v_readfirstlane_b32 s{sWv}, v0")
    a.e(f"s_lshr_b32 s{sWv}, s{sWv}, 6")
    XL = int(os.environ.get("XL", "2"))
    a.e(f"s_and_b32 s36, s2, {(8 >> XL) - 1}")
    a.e(f"s_lshl_b32 s36, s36, {XL}")
    a.e(f"s_bfe_u32 s37, s2, {(XL << 16) | 3}")
    a.e(f"s_or_b32 s{sCb}, s36, s37")
    a.e(f"s_bfe_u32 s36, s2, {(XL << 16) | (3 - XL)}")
    a.e(f"s_lshl_b32 s36, s36, {5 - XL}")
    a.e(f"s_lshr_b32 s37, s2, {3 + XL}")
    a.e("s_or_b32 s36, s36, s37")
    if KSPLIT:
        a.e("s_lshr_b32 s33, s36, 4")
        a.e("s_and_b32 s34, s36, 7")
        a.e("s_bfe_u32 s35, s36, 0x10003")
    else:
        a.e("s_mov_b32 s33, 0")
        a.e("s_and_b32 s34, s36, 15")
        a.e("s_lshr_b32 s35, s36, 4")
    a.e(f"s_mul_i32 s{sT0}, s34, 500")
    a.e(f"s_and_b32 s{sH}, s{sWv}, 3")
    a.e(f"v_and_b32 v{vL}, 63, v0")
    a.e(f"v_lshrrev_b32 v5, 2, v{vL}")
    a.e(f"v_and_b32 v6, 3, v{vL}")
    a.e("v_lshlrev_b32 v7, 15, v5")
    a.e("v_lshl_add_u32 v7, v6, 4, v7")
    a.e(f"s_lshl_b32 s41, s{sT0}, 10")
    a.e("s_lshl_b32 s37, s33, 9")
    a.e("s_add_u32 s41, s41, s37")
    a.e("s_sub_u32 s41, s41, 7680")
    a.e(f"s_and_b32 s42, s{sWv}, 7")
    a.e("s_lshl_b32 s37, s42, 12")
    a.e("s_add_u32 s37, s37, s41")
    a.e("v_add_u32 v7, s37, v7")
    a.e(f"s_mul_i32 s36, s35, {TIN*512}")
    if cfg["in_off"]:
        a.e(f"s_add_u32 s36, s36, {cfg['in_off']}")
    a.e(f"s_mov_b32 s{sX+2}, {TIN*512}")
    a.e(f"s_mov_b32 s{sX+3}, 0x00020000")
    a.e(f"s_mov_b32 s{sMask}, 0xffff0000")
    a.e("s_waitcnt lgkmcnt(0)")
    stamp(1)
    add64(a, sX, 4, "s36")
    OB = 512

    def wsrd():
        a.e(f"s_lshl_b32 s36, s{sCb}, 4")
        a.e("s_lshl_b32 s37, s33, 3")
        a.e("s_add_u32 s36, s36, s37")
        a.e(f"s_mul_i32 s36, s36, {CHUNKB}")
        a.e(f"s_add_u32 s36, s36, {cfg['w_off']}")
        add64(a, sW, 30, "s36")
        a.e(f"s_mov_b32 s{sW+2}, {N*CHUNKB}")
        a.e(f"s_mov_b32 s{sW+3}, 0x00020000")

    def lds_throttle(need=1):
        if len(a.lg) + need > 15:
            a.e("s_waitcnt lgkmcnt(8)")
            a.lg = a.lg[-8:]

    def mf(acc, b, av):
        if "nomfma" not in EXP:
            a.e(f"v_mfma_f32_16x16x32_bf16 {vr(acc)}, {vr(b)}, {vr(av)}, {vr(acc)}")

    def steady(gen, per, strict=True):
        st = []
        for it in range(3):
            st.append(len(a.L))
            for pos in range(per):
                gen(per * it + pos, pos)
        st.append(len(a.L))
        bodies = [a.L[st[i]:st[i + 1]] for i in range(3)]
        if strict:
            assert bodies[1] == bodies[2], "loop not steady"
            assert bodies[0] == bodies[1], "loop entry not steady"
        del a.L[st[0]:]
        return bodies[1]

    a.e(f"s_cmp_ge_u32 s{sWv}, 8")
    a.e(f"s_cbranch_scc1 L_{name}_helper")

    ACC = 0
    vF, vA8, vD, vB = (120, 121), 122, (123, 124), 125
    vP = (116, 117, 118)
    vBZ = 119
    S, T, O = 96, 108, 64
    a.e(f"s_add_u32 s37, s41, {128*4096}")
    a.e(f"v_lshl_add_u32 v{T}, v{vL}, 4, s37")
    if "nob0" in EXP:
        for p in range(3):
            a.vmem(f"buffer_load_dwordx4 {vr(S+4*p)}, v{T}, {sr(sX)}, 0 offen offset:{p*1024}", "SP")
    wsrd()
    a.e(f"s_mul_i32 s36, s35, {TOUT*OB}")
    a.e(f"s_add_u32 s36, s36, {cfg['out_off']}")
    if KSPLIT:
        a.e(f"s_mul_i32 s37, s33, {WS_FPS}")
        a.e("s_add_u32 s36, s36, s37")
    add64(a, sO, 30, "s36")
    a.e(f"s_mov_b32 s{sO+2}, {TOUT*OB}")
    a.e(f"s_mov_b32 s{sO+3}, 0x00020000")
    a.e(f"v_and_b32 v{vI}, 15, v{vL}")
    a.e(f"v_lshrrev_b32 v{vKG}, 4, v{vL}")
    t = 16
    for d, sh in ((vU, 0), (vS_, 1)):
        a.e(f"v_add_u32 v{d}, {sh}, v{vI}")
        a.e(f"v_and_b32 v{t}, 4, v{d}")
        a.e(f"v_lshrrev_b32 v{t}, 1, v{t}")
        a.e(f"v_xor_b32 v{t}, v{vKG}, v{t}")
        a.e(f"v_lshlrev_b32 v{t}, 4, v{t}")
        a.e(f"v_lshl_add_u32 v{d}, v{d}, 6, v{t}")
    a.e(f"s_lshr_b32 s38, s{sH}, 1")
    a.e(f"s_and_b32 s39, s{sH}, 1")
    a.e("s_add_u32 s40, s38, 4")
    a.e("s_lshl_b32 s43, s39, 10")
    a.e(f"s_cmp_lt_u32 s{sWv}, 4")
    a.e(f"s_cselect_b32 s40, s{sWv}, s40")
    a.e("s_cselect_b32 s36, 0, s43")
    a.e("s_lshl_b32 s37, s40, 13")
    a.e("s_add_u32 s37, s37, s36")
    a.e(f"v_lshl_add_u32 v{vB}, v{vL}, 4, s37")
    a.e(f"s_mul_i32 s37, s40, {SEQB}")
    a.e(f"v_add_u32 v{vF[0]}, s37, v{vU}")
    a.e(f"v_add_u32 v{vF[1]}, s37, v{vS_}")
    a.e("s_lshl_b32 s37, s40, 10")
    a.e(f"s_add_u32 s37, s37, {SPB}")
    a.e(f"v_lshl_add_u32 v{t}, v{vKG}, 4, s37")
    a.e(f"v_cmp_eq_u32 vcc, 15, v{vI}")
    a.e(f"v_mov_b32 v{t+1}, {BB}")
    a.e(f"v_mov_b32 v{t+2}, {-BB & 0xffffffff}")
    a.e(f"v_mov_b32 v{t+3}, 64")
    a.e(f"v_cndmask_b32 v{vA8}, v{vF[1]}, v{t}, vcc")
    a.e(f"v_cndmask_b32 v{vD[0]}, v{t+1}, v{t+3}, vcc")
    a.e(f"v_cndmask_b32 v{vD[1]}, v{t+2}, v{t+3}, vcc")
    a.e(f"v_lshl_add_u32 v126, v{vL}, 4, s37")
    tabs = {44: (1.0, 1.0, 1.0, 1.0, 1.0, 16.0), 45: (0.0, 1.0, -1.0, 2.0, -2.0, 8.0),
            46: (0.0, 1.0, 1.0, 4.0, 4.0, 4.0)}
    for sg, tab in tabs.items():
        a.e(f"s_mov_b32 s{sg}, {f32hex(tab[0])}")
    for q in range(1, 6):
        a.e(f"s_cmp_eq_u32 s40, {q}")
        for sg, tab in tabs.items():
            if tab[q] != tab[0]:
                a.e(f"s_cselect_b32 s{sg}, {f32hex(tab[q])}, s{sg}")

    def special_rows():
        a.wait(vm=("SP",))
        for d in range(4):
            for p in range(3):
                a.e(f"v_lshlrev_b32 v{T+p}, 16, v{S+4*p+d}")
                a.e(f"v_and_b32 v{T+3+p}, s{sMask}, v{S+4*p+d}")
            for h in range(2):
                a.e(f"v_mul_f32 v{T+6+h}, s44, v{T+3*h}")
            for h in range(2):
                a.e(f"v_fmac_f32 v{T+6+h}, s45, v{T+3*h+1}")
            for h in range(2):
                a.e(f"v_fmac_f32 v{T+6+h}, s46, v{T+3*h+2}")
            a.e(f"v_cvt_pk_bf16_f32 v{S+d}, v{T+6}, v{T+7}")
        a.e(f"ds_write_b128 v126, {vr(S)}")

    def own_read(k, g, reg, tag, last=False):
        if g == 8:
            base, off = vA8, 0
        else:
            base, off = vF[g >> 3], (k & 1) * BB + (g & 7) * FB
        a.lds(f"ds_read_b128 {vr(reg)}, v{base} offset:{off}", tag)
        if g == 8 and not last:
            a.e(f"v_add_u32 v{vA8}, v{vD[k & 1]}, v{vA8}")

    UNIT = [(s * SEQB, s * SEQB + BB) for s in range(4)] + [(4 * SEQB, TOPB), (5 * SEQB, TOPB + 8192),
            (6 * SEQB, TOPB + 16384), (TOPB + 24576, TOPB + 32768)]
    EA = 96

    def ex_addr(sbase):
        a.e(f"v_and_b32 v{EA}, 15, v{vL}")
        a.e(f"v_and_b32 v{EA+1}, 7, v{vL}")
        a.e(f"v_lshlrev_b32 v{EA+1}, 4, v{EA+1}")
        a.e(f"v_lshl_add_u32 v{EA}, v{EA}, 7, v{EA+1}")
        a.e(f"v_lshrrev_b32 v{EA+1}, 4, v{vL}")
        a.e(f"v_lshl_add_u32 v{EA}, v{EA+1}, 11, v{EA}")
        a.e(f"v_add_u32 v{EA}, s{sbase}, v{EA}")
        for f in range(1, 8):
            a.e(f"v_xor_b32 v{EA+f}, {f << 4}, v{EA}")

    def mwave(role):
        if role == 1:
            BR, AR, NR = 64, 96, 6
            steps = [("X", g) for g in range(11)]
        else:
            BR, AR, NR = 64, 88, 7
            steps = []
            for g in range(11):
                steps.append(("Y", g))
                if 1 <= g <= 9:
                    steps.append(("Z", g - 1))
        NS = len(steps)

        def bload(k, kind, q):
            if "nob" in EXP and k > 0:
                return
            so = sBo2 if q >> 1 else sBo
            if kind == "X":
                for c in range(2):
                    a.vmem(f"buffer_load_dwordx4 {vr(BR+(q*2+c)*4)}, v{vB}, {sr(sW)}, s{so} offen "
                           f"offset:{(q&1)*2048 + c*1024}", ("B", k, kind, q))
            elif kind == "Y":
                a.vmem(f"buffer_load_dwordx4 {vr(BR+q*4)}, v{vB}, {sr(sW)}, s{so} offen offset:{(q&1)*2048}",
                       ("B", k, kind, q))
            else:
                a.vmem(f"buffer_load_dwordx4 {vr(BR+16+q*4)}, v{vBZ}, {sr(sW)}, s{sBo} offen offset:{q*2048}",
                       ("B", k, kind, q))

        def rd(k, n, last=False):
            kind, g = steps[n]
            reg = AR + 4 * (n % NR)
            if kind == "Z":
                base, off = (vP[0], g * FB6) if g < 6 else (vP[1], (g - 6) * FB6) if g < 8 else (vP[2], 0)
                a.lds(f"ds_read_b128 {vr(reg)}, v{base} offset:{(k & 1)*BB6 + off}", ("A", k, n))
            else:
                own_read(k, g, reg, ("A", k, n), last)

        for i in range(64):
            a.e(f"v_mov_b32 v{ACC+i}, 0")
        if "nob0" not in EXP:
            a.e("s_barrier")
            for p in range(3):
                a.vmem(f"buffer_load_dwordx4 {vr(S+4*p)}, v{T}, {sr(sX)}, 0 offen offset:{p*1024}", "SP")
        a.e(f"s_mov_b32 s{sBo}, 0")
        a.e(f"s_mov_b32 s{sBo2}, 4096")
        for st in steps:
            if st and st[1] >= 7:
                bload(0, st[0], st[1] - 7)
        a.e(f"s_mov_b32 s{sBo}, {CHUNKB}")
        a.e(f"s_mov_b32 s{sBo2}, {CHUNKB + 4096}")
        special_rows()
        if role == 2:
            a.e(f"v_and_b32 v126, 15, v{vL}")
            a.e("v_lshlrev_b32 v126, 2, v126")
            a.e(f"v_add_u32 v126, {6*SEQB + 1024}, v126")
            a.e(f"ds_write_b32 v126, v{ACC}")
            a.e(f"ds_write_b32 v126, v{ACC} offset:{BB6}")
        a.e("s_waitcnt lgkmcnt(0)")
        a.e("s_barrier")
        stamp(7)
        rstamp(12)
        a.e(f"s_mov_b32 s{sCnt}, {N//2}")
        a.e(f"s_setprio {os.environ.get(f'PM{role}', '2')}")

        CO = int(os.environ.get(f"CO{role}", "0" if role == 1 else "5"))
        assert CO < NR
        vE = (vD[0], vD[1])

        def period(k, _, last=False):
            if "mst" in EXP and _ == 0:
                stamp(2)
            for n in range(NR):
                rd(k, n, last)
            pend = []

            def flush(n, cnt):
                while pend and pend[0][0] <= n and cnt > 0:
                    _, h, f = pend.pop(0)
                    t = vE[(h + f) & 1]
                    a.e(f"v_xor_b32 v{t}, {f << 4}, v{vX0[h]}")
                    lds_throttle()
                    a.lds(f"ds_write_b128 v{t}, {vr(ACC + h*32 + f*4)}", "E")
                    cnt -= 1

            for n, st in enumerate(steps):
                if CO and n == NS - CO and not last:
                    a.wait(lg_all=True)
                    a.e("s_barrier")
                kind, g = st
                nt = 2 if kind == "Z" else 4
                qs = [q for q in range(nt) if 0 <= g - q <= 7]
                a.wait(lg=(("A", k, n),), vm=tuple(("B", k, kind, q) for q in qs))
                reg = AR + 4 * (n % NR)
                for q in qs:
                    f = g - q
                    if kind == "X":
                        mf(ACC + f * 4, BR + q * 8, reg)
                        mf(ACC + 32 + f * 4, BR + q * 8 + 4, reg)
                    elif kind == "Y":
                        mf(ACC + f * 4, BR + q * 4, reg)
                    else:
                        mf(ACC + 32 + f * 4, BR + 16 + q * 4, reg)
                if g >= 7 and not last:
                    bload(k + 1, kind, g - 7)
                if n + NR < NS:
                    rd(k, n + NR, last)
                if last:
                    flush(n, 2)
                    f = g - (nt - 1)
                    if f >= 0:
                        if kind == "X":
                            pend.append((n + 1, 0, f))
                            pend.append((max(n + 1, NS - NR + 1), 1, f))
                            pend.sort()
                        else:
                            pend.append((n + 3, 0 if kind == "Y" else 1, f))
                    if kind == "X" and n == NS - NR:
                        a.wait(lg=(("A", k, NS - 1),))
            if last:
                a.e("s_nop 7")
                flush(1000, 1000)
                return
            a.e(f"s_add_u32 s{sBo}, s{sBo}, {CHUNKB}")
            a.e(f"s_add_u32 s{sBo2}, s{sBo2}, {CHUNKB}")
            assert not a.lg
            if "mst" in EXP and _ == 0:
                stamp(5)
            if not CO:
                a.e("s_barrier")
            if "mst" in EXP and _ == 0:
                stamp(6)

        def period2(k, pos):
            if pos == 1:
                a.e(f"s_sub_u32 s{sCnt}, s{sCnt}, 1")
                a.e(f"s_cmp_eq_u32 s{sCnt}, 0")
                a.e(f"s_cbranch_scc1 L_{name}_mlast{role}")
                state[0] = (list(a.vm), k)
            period(k, pos)

        state = [None]
        body = steady(period2, 2, "nob" not in EXP)
        if "nob" in EXP:
            a.e("s_waitcnt vmcnt(0)")
        a.label(f"L_{name}_mloop{role}")
        a.L.extend(body)
        a.e(f"s_branch L_{name}_mloop{role}")
        a.label(f"L_{name}_mlast{role}")
        a.vm, a.lg = state[0][0], []
        vX0 = (vB, 126)
        a.e(f"v_and_b32 v{vX0[0]}, 15, v{vL}")
        a.e(f"v_and_b32 v{vX0[1]}, 7, v{vL}")
        a.e(f"v_lshlrev_b32 v{vX0[1]}, 4, v{vX0[1]}")
        a.e(f"v_lshl_add_u32 v{vX0[0]}, v{vX0[0]}, 7, v{vX0[1]}")
        a.e(f"v_lshrrev_b32 v{vX0[1]}, 4, v{vL}")
        a.e(f"v_lshl_add_u32 v{vX0[0]}, v{vX0[1]}, 11, v{vX0[0]}")
        if role == 1:
            a.e(f"s_lshl_b32 s36, s{sWv}, 14")
            a.e("s_add_u32 s37, s36, 8192")
        else:
            for sg, tab in ((36, [UNIT[4 + (h >> 1)][h & 1] for h in range(4)]),
                            (37, [UNIT[6 + (h >> 1)][h & 1] for h in range(4)])):
                a.e(f"s_mov_b32 s{sg}, {tab[0]}")
                for h in range(1, 4):
                    a.e(f"s_cmp_eq_u32 s{sH}, {h}")
                    a.e(f"s_cselect_b32 s{sg}, {tab[h]}, s{sg}")
        a.e(f"v_add_u32 v{vX0[1]}, s37, v{vX0[0]}")
        a.e(f"v_add_u32 v{vX0[0]}, s36, v{vX0[0]}")
        period(state[0][1], 1, True)
        stamp(8, False)
        rstamp(13)
        a.e("s_setprio 0")
        a.vm, a.lg = [], []

    a.e(f"s_cmp_ge_u32 s{sWv}, 4")
    a.e(f"s_cbranch_scc1 L_{name}_m2")
    vm0 = list(a.vm)
    mwave(1)
    a.e(f"s_branch L_{name}_epi")
    a.label(f"L_{name}_m2")
    a.vm, a.lg = list(vm0), []
    a.e(f"s_mul_i32 s37, s38, {2*FB6}")
    a.e(f"s_add_u32 s37, s37, {6*SEQB}")
    a.e(f"v_add_u32 v{vP[0]}, s37, v{vU}")
    a.e(f"v_add_u32 v{vP[2]}, s37, v{vS_}")
    a.e(f"v_add_u32 v{vP[1]}, {6*SEQB + 6*FB6}, v{vU}")
    a.e("s_cmp_eq_u32 s38, 0")
    a.e(f"s_cbranch_scc1 L_{name}_hh0")
    a.e(f"v_add_u32 v{vP[1]}, {6*SEQB}, v{vS_}")
    a.label(f"L_{name}_hh0")
    a.e("s_lshl_b32 s37, s38, 12")
    a.e("s_add_u32 s37, s37, s43")
    a.e(f"s_add_u32 s37, s37, {6*8192}")
    a.e(f"v_lshl_add_u32 v{vBZ}, v{vL}, 4, s37")
    mwave(2)
    a.e(f"s_branch L_{name}_epi")

    a.label(f"L_{name}_helper")
    a.vm, a.lg = [], []
    a.e("s_setprio 3")
    PB = (0, 32)
    XO = 64
    TMP = 76
    vX = 92
    vW = (96, 97, 98)

    def praw(b, half, p):
        return PB[b] + half * 16 + p * 4

    def xload(pair, p):
        for half in range(2):
            a.vmem(f"buffer_load_dwordx4 {vr(praw(pair & 1, half, p))}, v{vX+p}, {sr(sX)}, "
                   f"s{sXo} offen offset:{half*64}", ("X", pair))
        a.e(f"v_add_u32 v{vX+p}, 128, v{vX+p}")

    def uregs(chunk):
        return [praw((chunk >> 1) & 1, chunk & 1, p) for p in range(4)]

    def wr(chunk, i):
        if "nowr" in EXP:
            return
        u = uregs(chunk)
        reg, seq = [(XO, 3), (XO + 4, 4), (XO + 8, 5), (u[0], 0), (u[1], 1), (u[2], 2), (u[3], 6)][i]
        lds_throttle()
        if seq == 6:
            a.lds(f"ds_write_b128 v{vW[2]}, {vr(reg)} offset:{(chunk & 1)*BB6}", "W")
        else:
            a.lds(f"ds_write_b128 v{vW[seq >> 2]}, {vr(reg)} offset:{(seq & 3)*SEQB + (chunk & 1)*BB}", "W")

    def tr_ops(chunk):
        u = uregs(chunk)
        o = [u[1], u[2], XO, XO + 4, XO + 8]
        ops = []
        for d in range(4):
            lo = [TMP + p for p in range(4)]
            hi = [TMP + 8 + p for p in range(4)]
            for p in range(4):
                ops.append(f"v_lshlrev_b32 v{lo[p]}, 16, v{u[p]+d}")
                ops.append(f"v_and_b32 v{hi[p]}, s{sMask}, v{u[p]+d}")
            o1, r1 = eval_ops(lo, [TMP + 4 + i for i in range(4)])
            o2, r2 = eval_ops(hi, [TMP + 12 + i for i in range(4)])
            for x, y in zip(o1, o2):
                ops += [x, y]
            for i in range(5):
                ops.append(f"v_cvt_pk_bf16_f32 v{o[i]+d}, v{r1[i]}, v{r2[i]}")
        if "notr" in EXP:
            ops = ["s_nop 0"] * 8
        return ops

    for p in range(4):
        a.e(f"v_add_u32 v{vX+p}, {p*1024}, v7")
    a.e(f"v_and_b32 v{TMP}, 4, v5")
    a.e(f"v_lshrrev_b32 v{TMP}, 1, v{TMP}")
    a.e(f"v_xor_b32 v{TMP}, v6, v{TMP}")
    a.e(f"v_lshlrev_b32 v{TMP}, 4, v{TMP}")
    a.e(f"v_lshl_add_u32 v{TMP}, v5, 6, v{TMP}")
    a.e(f"s_mov_b32 s{sXo}, 0")
    stamp(2)
    for p in range(4):
        xload(0, p)
    if "nob0" not in EXP:
        a.e("s_barrier")
    a.e(f"s_mul_i32 s36, s42, {FB}")
    a.e(f"v_add_u32 v{vW[0]}, s36, v{TMP}")
    a.e(f"v_add_u32 v{vW[1]}, {4*SEQB}, v{vW[0]}")
    a.e(f"s_mul_i32 s36, s42, {FB6}")
    a.e(f"s_add_u32 s36, s36, {6*SEQB}")
    a.e(f"v_add_u32 v{vW[2]}, s36, v{TMP}")
    PF = os.environ.get("PF", "")
    PFS = int(os.environ.get("PFS", "128"))
    sPX, sPW = 44, 45
    wsrd()
    a.e(f"s_bfe_u32 s36, s2, {(XL << 16) | 3}")
    a.e("s_lshl_b32 s36, s36, 3")
    a.e("s_add_u32 s36, s36, s42")
    a.e("s_lshl_b32 s36, s36, 14")
    a.e(f"s_add_u32 s{sPX}, s36, s41")
    a.e(f"s_add_u32 s{sPX}, s{sPX}, 256")
    a.e(f"s_lshr_b32 s36, s2, {3 + XL}")
    a.e("s_lshl_b32 s36, s36, 3")
    a.e("s_add_u32 s36, s36, s42")
    a.e(f"s_mul_i32 s{sPW}, s36, 896")
    a.e(f"s_add_u32 s{sPW}, s{sPW}, {CHUNKB}")

    def prefetch(par):
        if "x" in PF:
            a.e(f"s_max_i32 s46, s{sPX}, 0")
            a.e(f"s_min_i32 s46, s46, {TIN*512 - 8192}")
            for i in range(8):
                a.e(f"s_buffer_load_dword s48, {sr(sX)}, s46 offset:{i*1024}")
            a.e(f"s_add_u32 s{sPX}, s{sPX}, {(128 - 8192) & 0xffffffff if par else 8192}")
        if "w" in PF:
            a.e(f"s_min_u32 s47, s{sPW}, {N*CHUNKB - 896}")
            for i in range(7):
                a.e(f"s_buffer_load_dword s48, {sr(sW)}, s47 offset:{i*128}")
            a.e(f"s_add_u32 s{sPW}, s{sPW}, {CHUNKB}")

    prefetch(0)
    stamp(3)
    a.wait(vm=(("X", 0),))
    stamp(4)
    a.e("s_waitcnt lgkmcnt(0)")
    prefetch(1)
    a.e(f"s_mov_b32 s{sK}, 0")
    a.e(f"s_mov_b32 s{sCnt}, {N//4}")
    if "trace" in EXP:
        a.e("s_lshl_b32 s36, s2, 7")
        a.e(f"s_add_u32 s36, s36, {WS_STAMP + 0x80000 + cfg['stamp']*0x10000}")
        add64(a, 96, 30, "s36")
        a.e(f"s_cmp_eq_u32 s{sWv}, 15")
        a.e("s_cselect_b32 s98, 128, 0")
        a.e("s_mov_b32 s99, 0x00020000")
        a.e("v_mov_b32 v102, 0")
    a.e(f"s_cmp_ge_u32 s{sWv}, 12")
    a.e(f"s_cbranch_scc1 L_{name}_h2")

    def hwave(role):
        a.vm, a.lg = [], []
        a.e("s_waitcnt lgkmcnt(0)")
        wr(0, 3)
        wr(0, 6)
        for op in tr_ops(0):
            a.e(op)
        for i in (4, 5, 0, 1, 2):
            wr(0, i)
        for p in range(2 if role == 1 else 4):
            xload(1, p)
        stamp(5)
        a.wait(lg_all=True)
        stamp(6)
        a.e("s_barrier")
        stamp(7)
        rstamp(12)
        a.e(f"s_setprio {os.environ.get(f'PH{role}', '1' if role == 1 else '0')}")
        if role == 2:
            for op in tr_ops(1):
                a.e(op)
        if "trace" in EXP:
            a.vmem("buffer_store_dwordx2 v[100:101], v102, s[96:99], 0 offen", "T")
        XP = [float(x) for x in os.environ.get(f"XP{role}", "0.3,0.7,0.1,0.5" if role == 1 else "0.3,0.7,0.02,0.15").split(",")]

        def period(k, pos):
            pair = (k + 3) >> 1 if role == 1 else (k >> 1) + 2
            first = (k & 1) if role == 1 else not (k & 1)
            if pos == 4 - role:
                a.e(f"s_cmp_eq_u32 s{sCnt}, 1")
                a.e(f"s_cbranch_scc1 L_{name}_hlast{role}")
            if "hst" in EXP and pos == 1:
                stamp(2)
            a.e(f"s_cmp_lt_u32 s{sK}, {N - 2 - role}")
            a.e(f"s_cselect_b32 s{sXo}, 0, {OOB}")
            if role == 2:
                for i in range(7):
                    wr(k + 1, i)
                a.wait(lg_all=True)
            prefetch(k & 1)
            V = tr_ops(k + role)
            n = len(V)
            ev = {}

            def at(i, f):
                ev.setdefault(max(0, min(int(i), n)), []).append(f)
            at(0, lambda: a.wait(vm=(("X", (k + role) >> 1),)))
            if "nox" not in EXP:
                for p in ((0, 1) if first else (2, 3)):
                    at(XP[p] * n, lambda p=p: xload(pair, p))
            for i in range(n + 1):
                for f in ev.get(i, []):
                    f()
                if i < n:
                    a.e(V[i])
            if role == 1:
                a.e("s_waitcnt lgkmcnt(0)")
                for i in range(7):
                    wr(k + 1, i)
            a.e(f"s_add_u32 s{sK}, s{sK}, 1")
            if "hst" in EXP and pos == 1:
                stamp(5)
            if "trace" in EXP:
                a.e("s_memtime s[90:91]")
                a.e("s_memrealtime s[92:93]")
            a.e("s_waitcnt lgkmcnt(0)")
            a.lg = []
            if "trace" in EXP:
                a.e("v_mov_b32 v100, s90")
                a.e("v_mov_b32 v101, s92")
                a.e(f"s_lshl_b32 s94, s{sK}, 3")
                a.vmem("buffer_store_dwordx2 v[100:101], v102, s[96:99], s94 offen", "T")
            a.e("s_barrier")
            if "hst" in EXP and pos == 1:
                stamp(6)

        body = steady(period, 4, "nox" not in EXP)
        a.label(f"L_{name}_hloop{role}")
        a.L.extend(body)
        a.e(f"s_sub_u32 s{sCnt}, s{sCnt}, 1")
        a.e(f"s_branch L_{name}_hloop{role}")
        a.label(f"L_{name}_hlast{role}")
        a.vm, a.lg = [], []
        if role == 2:
            for i in range(7):
                wr(3, i)
            a.e("s_waitcnt vmcnt(0) lgkmcnt(0)")
            a.lg = []
            if KSPLIT:
                a.e("s_barrier")
            else:
                a.e(f"s_mov_b32 s58, s{sWv}")
                a.e(f"s_lshl_b32 s20, s2, 2")
                a.e(f"s_add_u32 s20, s20, s{sH}")
                a.e(f"v_mov_b32 v1, v{vL}")
                wprep(a, 16, WS_W2P, True, barrier=True)
                a.e(f"s_mov_b32 s{sWv}, s58")
        stamp(8)
        rstamp(13)
        if role == 1 and KSPLIT and "tailwarm" in EXP:
            add64(a, sW, 30, WS_WF)
            a.e(f"s_mov_b32 s{sW+2}, 262144")
            a.e("s_lshr_b32 s36, s2, 3")
            a.e("s_lshl_b32 s36, s36, 13")
            a.e(f"s_lshl_b32 s37, s{sH}, 11")
            a.e("s_add_u32 s36, s36, s37")
            a.e(f"v_lshlrev_b32 v1, 5, v{vL}")
            a.e(f"buffer_load_dword v2, v1, {sr(sW)}, s36 offen")
        a.e(f"s_branch L_{name}_end")

    hwave(1)
    a.label(f"L_{name}_h2")
    hwave(2)

    a.label(f"L_{name}_epi")
    R0 = (120, 121, 125)
    vO, vBW = 122, 123
    BND = SPB
    t0, t1, t2, t3 = 108, 109, 110, 111
    a.e(f"v_and_b32 v{t0}, 15, v{vL}")
    a.e(f"v_lshrrev_b32 v{t1}, 4, v{vL}")
    a.e(f"v_lshrrev_b32 v{t2}, 3, v{t0}")
    a.e(f"s_lshl_b32 s36, s{sWv}, 1")
    a.e(f"v_add_u32 v{t2}, s36, v{t2}")
    a.e(f"v_xor_b32 v{t3}, v{t2}, v{t0}")
    a.e(f"v_and_b32 v{t3}, 7, v{t3}")
    a.e(f"v_lshlrev_b32 v{t3}, 4, v{t3}")
    a.e(f"v_lshl_add_u32 v{t3}, v{t2}, 7, v{t3}")
    a.e(f"v_lshl_add_u32 v{R0[0]}, v{t1}, 11, v{t3}")
    a.e(f"v_add_u32 v{R0[1]}, 65536, v{R0[0]}")
    a.e(f"v_add_u32 v{R0[2]}, 131072, v{R0[0]}")
    a.e(f"s_lshl_b32 s36, s{sWv}, 9")
    a.e(f"s_add_u32 s36, s36, {BND}")
    a.e(f"v_lshl_add_u32 v{vBW}, v{t1}, 7, s36")
    a.e(f"s_lshl_b32 s36, s{sWv}, 4")
    a.e(f"v_add_u32 v{t0}, s36, v{t0}")
    a.e(f"v_lshl_add_u32 v{t2}, v{t0}, 2, s{sT0}")
    a.e(f"v_lshlrev_b32 v{t2}, 9, v{t2}")
    a.e(f"v_lshl_add_u32 v{t2}, v{t1}, 4, v{t2}")
    a.e(f"s_lshl_b32 s36, s{sCb}, 6")
    a.e(f"v_add_u32 v{t2}, s36, v{t2}")
    a.e(f"v_mov_b32 v{t3}, {OOB}")
    a.e(f"v_cmp_gt_u32 vcc, 125, v{t0}")
    k0 = -2.0 * 1.4426950408889634 * 0.7978845608028654
    consts = [-1.0 / 3, 0.25, -5.0, -32.0 / 9, -8.0 / 9, -2.0 / 9, -1.0 / 18, 17.0 / 9, -2.0 / 3, 0.4, -1.0 / 15, -0.2,
              k0 * 0.044715, 1.0]
    KS = [4, 6, 8, 10, 12, 14, 22, 24, 26, 32, 34, 38, 40, 42]
    for sg, cv in zip(KS, consts):
        a.e(f"s_mov_b32 s{sg}, {f32hex(cv)}")
        a.e(f"s_mov_b32 s{sg+1}, s{sg}")
    K = [sr(x, 2) for x in KS]
    a.e("s_waitcnt lgkmcnt(0)")
    a.e("s_barrier")
    if "est" in EXP:
        stamp(2)
    a.e(f"v_cndmask_b32 v{vO}, v{t3}, v{t2}, vcc")

    def P(c, s, r=0):
        return c * 32 + s * 4 + r
    Y = 64
    TB = 96
    ELS = (0, 1, 2)
    for c in range(2):
        for s_ in range(8):
            if c == 1 and s_ == 7:
                a.e("s_waitcnt lgkmcnt(7)")
            u = UNIT[s_][c]
            a.e(f"ds_read_b128 {vr(P(c, s_))}, v{R0[u >> 16]} offset:{u & 0xffff}")

    def p2(x):
        return vr(x, 2)

    def padd(d, x, y):
        return f"v_pk_add_f32 {p2(d)}, {p2(x)}, {p2(y)}"

    def psub(d, x, y):
        return f"v_pk_add_f32 {p2(d)}, {p2(x)}, {p2(y)} neg_lo:[0,1] neg_hi:[0,1]"

    def pfma(d, x, k, y, neg=False):
        return f"v_pk_fma_f32 {p2(d)}, {p2(x)}, {k}, {p2(y)}" + (" neg_lo:[0,0,1] neg_hi:[0,0,1]" if neg else "")

    def interp(c):
        seq = []
        for r in (0, 2):
            E0, A, B, C, D, Q, E6, E6b = (P(c, x, r) for x in range(8))
            y = [Y + ph * 8 + c * 4 + r for ph in range(4)]
            S1, G = E6, C
            seq.append([
                padd(y[3], E6, E6b),
                padd(S1, A, B),
                psub(A, A, B),
                padd(y[1], C, D),
                psub(G, C, D),
                pfma(y[1], S1, K[0], y[1]),
                pfma(Q, E0, K[3], Q),
                pfma(y[1], E0, K[1], y[1]),
                psub(S1, S1, E0),
                pfma(y[1], y[3], K[2], y[1]),
                psub(S1, S1, y[3]),
                pfma(Q, y[3], K[6], Q),
                psub(B, S1, y[1]),
                pfma(Q, y[1], K[5], Q),
                f"v_pk_mul_f32 {p2(y[2])}, {p2(G)}, {K[9]}",
                pfma(Q, B, K[4], Q),
                pfma(y[2], A, K[10], y[2]),
                pfma(y[0], A, K[7], Q, True),
                pfma(y[0], G, K[8], y[0]),
                pfma(y[2], y[0], K[11], y[2]),
                psub(A, A, y[0]),
                psub(A, A, y[2]),
            ])
        for ops in zip(*seq):
            for op in ops:
                a.e(op)

    a.e("s_waitcnt lgkmcnt(8)")
    interp(0)
    a.e("s_waitcnt lgkmcnt(0)")
    interp(1)
    if "est" in EXP:
        stamp(3)
    a.e("s_mov_b32 s36, 0x00010001")
    a.e("s_mov_b32 s37, 0x00010001")
    a.e("s_mov_b64 exec, s[36:37]")
    for k in range(3):
        for c in range(2):
            a.e(f"ds_write_b128 v{vBW}, {vr(P(c, ELS[k]))} offset:{(k*2+c)*16}")
    a.e("s_mov_b64 exec, -1")

    def finish(ph):
        ys = [Y + ph * 8 + i for i in range(8)]
        if not KSPLIT:
            ts = [16 + (ph & 1) * 8 + i for i in range(8)]
            ev = list(zip(ys[::2], ts[::2]))
            for y, t in ev:
                a.e(f"v_pk_mul_f32 {p2(t)}, {p2(y)}, {p2(y)}")
            for y, t in ev:
                a.e(pfma(t, t, K[12], 44))
            for y, t in ev:
                a.e(f"v_pk_mul_f32 {p2(t)}, {p2(t)}, {p2(y)}")
            for t in ts:
                a.e(f"v_exp_f32 v{t}, v{t}")
            for y, t in ev:
                a.e(f"v_pk_add_f32 {p2(t)}, {p2(t)}, {K[13]}")
            for t in ts:
                a.e(f"v_rcp_f32 v{t}, v{t}")
            for y, t in ev:
                a.e(f"v_pk_mul_f32 {p2(y)}, {p2(y)}, {p2(t)}")
        o = 48 + ph * 4
        for r in range(4):
            a.e(f"v_cvt_pk_bf16_f32 v{o+r}, v{ys[r]}, v{ys[4+r]}")
        a.e(f"buffer_store_dwordx4 {vr(o)}, v{vO}, {sr(sO)}, 0 offen offset:{ph*512}{NTF if KSPLIT else NTH}")

    a.e(f"v_mov_b32 v44, {f32hex(k0)}")
    a.e("v_mov_b32 v45, v44")
    finish(0)
    a.e("s_waitcnt lgkmcnt(0)")
    a.e("s_barrier")
    if "est" in EXP:
        stamp(4)
    for i in range(6):
        a.e(f"ds_read_b128 {vr(TB+4*i)}, v{vBW} offset:{512 + i*16}")
    for ph in range(1, 4):
        a.e(f"s_waitcnt lgkmcnt({6 - 2*ph})")
        for c in range(2):
            for r in range(4):
                i = (ph - 1) * 8 + c * 4 + r
                a.e(f"v_mov_b32_dpp v{TB+i}, v{P(c, ELS[ph-1], r)} row_shl:1 row_mask:0xf bank_mask:0xf")
        for i in range(0, 8, 2):
            a.e(padd(Y + ph * 8 + i, Y + ph * 8 + i, TB + (ph - 1) * 8 + i))
        finish(ph)
    if "est" in EXP:
        stamp(5)
    a.label(f"L_{name}_end")
    if STAMP:
        a.e("s_waitcnt vmcnt(0)")
        stamp(9, False)
        a.e(f"s_memrealtime s[{sSt+22}:{sSt+23}]")
        a.e(f"s_cmp_lg_u32 s{sWv}, {os.environ.get('SW', '0')}")
        a.e(f"s_cbranch_scc1 L_{name}_done")
        a.e("s_lshl_b32 s36, s2, 7")
        a.e(f"s_add_u32 s36, s36, {WS_STAMP + cfg['stamp']*0x10000}")
        add64(a, 40, 30, "s36")
        a.e("s_mov_b32 s42, 128")
        a.e("s_mov_b32 s43, 0x00020000")
        a.e("s_waitcnt lgkmcnt(0)")
        a.e("v_mov_b32 v8, 0")
        for i in range(28):
            a.e(f"v_mov_b32 v0, s{sSt+i}")
            a.e(f"buffer_store_dword v0, v8, s[40:43], 0 offen offset:{4*i}")
    a.label(f"L_{name}_done")
    a.e("s_endpgm")
    return a.L, TOPB + 40960, 128


CONV1 = dict(tin=16000, tout=8000, nchunk=16, ksplit=False, in_arg=0, in_off=0, w_off=WS_W1P, out_off=WS_H, stamp=0)
CONV2 = dict(tin=8000, tout=4000, nchunk=8, ksplit=True, in_arg=72, in_off=WS_H, w_off=WS_W2P, out_off=WS_FP, stamp=1)

HEADER = """; Kernarg layout for this problem (80 bytes, ptrs only, base s[0:1]):
"""


def main():
    ks = [("prep_kernel", 268, 256) + prep_kernel("prep_kernel"),
          ("conv1_kernel", 256, 1024) + conv_kernel("conv1_kernel", CONV1),
          ("conv2_kernel", 256, 1024) + conv_kernel("conv2_kernel", CONV2)]
    ks = joint_kernels(ks)
    out = HEADER
    for nm, grid, block, code, lds, vg in ks:
        out += f"; @launch kernel={nm} grid=({grid},1,1) block=({block},1,1) lds={lds}\n"
    out += '.amdgcn_target "amdgcn-amd-amdhsa--gfx950"\n.text\n'
    for nm, grid, block, code, lds, vg in ks:
        if "noalign" not in EXP:
            code = align8(code)
        out += f".globl {nm}\n.p2align 8\n.type {nm},@function\n" + "\n".join(code) + "\n"
    out += '.section .rodata,"a"\n'
    for nm, grid, block, code, lds, vg in ks:
        out += ".p2align 6\n" + kd(nm, vg)
    path = sys.argv[1] if len(sys.argv) > 1 else "standalone__seq2seq_rnn_t_joint__speech.s"
    open(path, "w").write(out)


if __name__ == "__main__":
    main()
```

```python
import os
import sys

from asmlib import Asm, vr, sr, kd, f32hex, align8
from gen5_joint import prep_small, joint_kernels

EXP = os.environ.get("EXP", "").split(",")

WS_W1P = 0x0000000
WS_W2P = 0x0900000
WS_H = 0x1200000
WS_FP = 0x1A00000
WS_FPS = 0x800000
WS_WF = 0x2A00000
WS_STAMP = 0x3000000

CHUNKB = 7 * 8192
FB = 1024
BB = 8 * FB
SEQB = 2 * BB
FB6 = 1088
BB6 = 8 * FB6
SPB = 6 * SEQB + 2 * BB6
TOPB = SPB + 6144
OOB = 0x7f000000
NTW, NTH, NTF = ({"0": "", "1": " nt", "2": " sc1", "3": " sc0 sc1"}[c] for c in os.environ.get("NT", "222"))


def add64(a, d, lo, off):
    a.e(f"s_add_u32 s{d}, s{lo}, {off}")
    a.e(f"s_addc_u32 s{d+1}, s{lo+1}, 0")


def eval_ops(c, t):
    e1, o1, e2, o2 = t
    ops = [f"v_add_f32 v{e1}, v{c[0]}, v{c[2]}",
           f"v_add_f32 v{o1}, v{c[1]}, v{c[3]}",
           f"v_fma_f32 v{e2}, v{c[2]}, 4.0, v{c[0]}",
           f"v_fma_f32 v{o2}, v{c[3]}, 4.0, v{c[1]}",
           f"v_add_f32 v{c[1]}, v{e1}, v{o1}",
           f"v_sub_f32 v{c[2]}, v{e1}, v{o1}",
           f"v_fma_f32 v{c[3]}, v{o2}, 2.0, v{e2}",
           f"v_fma_f32 v{e2}, v{o2}, -2.0, v{e2}",
           f"v_fmamk_f32 v{e1}, v{c[0]}, {f32hex(15.0)}, v{e2}",
           f"v_fmamk_f32 v{e1}, v{o1}, {f32hex(10.0)}, v{e1}"]
    return ops, [c[1], c[2], c[3], e2, e1]


def wprep(a, karg, wsoff, ws_loaded, barrier=False, extra=None):
    a.vm, a.lg = [], []
    a.e(f"s_load_dwordx2 s[8:9], s[0:1], {karg}")
    if not ws_loaded:
        a.e("s_load_dwordx2 s[30:31], s[0:1], 72")
    a.e("s_lshr_b32 s22, s20, 8")
    a.e("s_bfe_u32 s23, s20, 0x40004")
    a.e("s_bfe_u32 s24, s20, 0x30001")
    a.e("s_and_b32 s21, s20, 1")
    a.e("v_lshrrev_b32 v2, 4, v1")
    a.e("v_lshlrev_b32 v2, 12, v2")
    a.e("v_and_b32 v3, 15, v1")
    a.e("v_lshl_add_u32 v2, v3, 2, v2")
    a.e("s_lshl_b32 s26, s22, 3")
    a.e("s_lshr_b32 s27, s23, 3")
    a.e("s_add_u32 s26, s26, s27")
    a.e("s_lshl_b32 s26, s26, 17")
    a.e("s_and_b32 s27, s23, 7")
    a.e("s_lshl_b32 s27, s27, 14")
    a.e("s_add_u32 s26, s26, s27")
    a.e("s_lshl_b32 s27, s24, 6")
    a.e("s_add_u32 s26, s26, s27")
    a.e(f"s_mov_b32 s10, {31*131072}")
    a.e("s_mov_b32 s11, 0x00020000")
    for p in range(1, 4):
        a.e(f"s_add_u32 s{36+p}, s26, {2*131072*p}")
    a.e("s_waitcnt lgkmcnt(0)")
    R = 16
    for e2 in range(4):
        for p in range(4):
            for e in (2 * e2, 2 * e2 + 1):
                a.vmem(f"buffer_load_dword v{R+p*8+e}, v2, s[8:11], s{36+p if p else 26} offen offset:{e*512}", ("L", e2))
    add64(a, 12, 30, wsoff)
    a.e(f"s_mov_b32 s14, {8*16*CHUNKB}")
    a.e("s_mov_b32 s15, 0x00020000")
    a.e("v_lshlrev_b32 v4, 4, v1")
    a.e("s_lshl_b32 s27, s24, 4")
    a.e("s_add_u32 s27, s27, s23")
    a.e(f"s_mul_i32 s27, s27, {CHUNKB}")
    a.e("s_lshl_b32 s28, s22, 11")
    a.e("s_add_u32 s27, s27, s28")
    a.e("s_lshl_b32 s28, s21, 10")
    a.e("s_add_u32 s27, s27, s28")
    a.e("s_cmp_eq_u32 s21, 0")
    a.e("s_mov_b32 s32, 0x07060302")
    a.e("s_cselect_b32 s32, 0x05040100, s32")
    a.e("s_mov_b32 s33, 0x03020c0c")
    a.e("s_cselect_b32 s33, 0x01000c0c, s33")
    a.e(f"s_mov_b32 s35, {f32hex(1.0/24)}")
    a.e(f"s_mov_b32 s36, {f32hex(1.0/72)}")
    if barrier:
        a.e("s_barrier")
    OUT = 48
    T = 76
    scale = ("0.5", "0.5", "s35", "s35", "s36")
    for e2 in range(4):
        a.wait(vm=(("L", e2),))
        if extra and e2 == int(os.environ.get("XT", "3")):
            extra()
            a.vm += ["T", "T"]
        for p, seq in ((0, 6), (3, 0)):
            a.e(f"v_perm_b32 v{OUT+seq*4+e2}, v{R+p*8+2*e2+1}, v{R+p*8+2*e2}, s32")
        res, lists = [], []
        for e in range(2):
            cf = [T + e * 8 + i for i in range(4)]
            ops = [f"v_perm_b32 v{cf[i]}, v{cf[i]}, v{R + (3 - i) * 8 + 2 * e2 + e}, s33" for i in range(4)]
            o, rr = eval_ops(cf, [T + e * 8 + 4 + i for i in range(4)])
            ops += o + [f"v_mul_f32 v{r}, {sc}, v{r}" for r, sc in zip(rr, scale)]
            res.append(rr)
            lists.append(ops)
        for x, y in zip(*lists):
            a.e(x)
            a.e(y)
        for i in range(5):
            a.e(f"v_cvt_pk_bf16_f32 v{OUT+(1+i)*4+e2}, v{res[0][i]}, v{res[1][i]}")
    for seq in (6, 0, 1, 2, 3, 4, 5):
        a.e(f"s_add_u32 s28, s27, {seq*8192}")
        a.e(f"buffer_store_dwordx4 {vr(OUT+seq*4)}, v4, s[12:15], s28 offen{NTW}")


def prep_kernel(name):
    a = Asm()
    NWG = 268
    a.label(name)
    a.e(f"s_cmp_ge_u32 s2, {NWG}")
    a.e(f"s_cbranch_scc1 L_{name}_done")
    if "cwall" in EXP:
        a.e("s_getpc_b64 s[62:63]")
        a.label(f"L_{name}_pc")
        a.e("s_and_b32 s3, s2, 8")
        a.e("s_lshl_b32 s3, s3, 12")
        a.e("v_lshlrev_b32 v120, 7, v0")
        a.e("v_add_u32 v120, s3, v120")
        a.e(f"v_min_u32 v120, 0xc000, v120")
        a.e("v_mov_b32 v121, s63")
        a.e("v_add_co_u32 v120, vcc, s62, v120")
        a.e("v_addc_co_u32 v121, vcc, 0, v121, vcc")
        a.e("global_load_dword v122, v[120:121], off")
    a.e("s_cmp_lt_u32 s2, 12")
    a.e(f"s_cbranch_scc1 L_{name}_small")
    a.e("s_sub_u32 s2, s2, 12")
    if "stamp" in EXP:
        a.e("s_memrealtime s[60:61]")
    a.e("v_readfirstlane_b32 s20, v0")
    a.e("s_lshr_b32 s20, s20, 6")
    a.e("s_lshl_b32 s21, s2, 2")
    a.e("s_add_u32 s20, s20, s21")
    a.e("v_and_b32 v1, 63, v0")
    touch = None
    if "xt" in EXP:
        a.e("s_load_dwordx2 s[44:45], s[0:1], 0")
        a.e("s_lshl_b32 s43, s20, 14")
        a.e("v_lshlrev_b32 v5, 7, v1")
        a.e("v_add_u32 v6, 8192, v5")
        a.e(f"s_mov_b32 s46, {2*16000*512}")
        a.e("s_mov_b32 s47, 0x00020000")

        def touch():
            a.e("buffer_load_dword v7, v5, s[44:47], s43 offen")
            a.e("buffer_load_dword v8, v6, s[44:47], s43 offen")
    wprep(a, 8, WS_W1P, False, extra=touch)
    if "stamp" in EXP:
        a.e("s_waitcnt vmcnt(0)")
        a.e("s_memrealtime s[62:63]")
        a.e("s_lshl_b32 s36, s2, 7")
        a.e(f"s_add_u32 s36, s36, {WS_STAMP + 3*0x10000}")
        add64(a, 40, 30, "s36")
        a.e("s_mov_b32 s42, 128")
        a.e("s_mov_b32 s43, 0x00020000")
        a.e("s_waitcnt lgkmcnt(0)")
        a.e("v_mov_b32 v8, 0")
        a.e("v_mov_b32 v0, 1")
        a.e("buffer_store_dword v0, v8, s[40:43], 0 offen")
        for i in range(4):
            a.e(f"v_mov_b32 v0, s{60+i}")
            a.e(f"buffer_store_dword v0, v8, s[40:43], 0 offen offset:{80+4*i}")
    a.label(f"L_{name}_done")
    a.e("s_endpgm")
    prep_small(a, name)
    return a.L, 32768, 128


def conv_kernel(name, cfg):
    TIN, TOUT = cfg["tin"], cfg["tout"]
    N = cfg["nchunk"]
    KSPLIT = cfg["ksplit"]
    NWG = 256
    STAMP = "stamp" in EXP
    sX, sW, sO = 8, 12, 16
    sWv, sT0, sCnt, sBo, sXo, sMask = 20, 21, 22, 23, 24, 25
    sBo2 = 26
    sK, sCb, sH = 28, 29, 32
    sSt = 60
    vL = 127
    vU, vS_, vI, vKG = 8, 9, 10, 11

    a = Asm()
    a.label(name)
    a.e(f"s_cmp_ge_u32 s2, {NWG}")
    a.e(f"s_cbranch_scc1 L_{name}_done")

    def stamp(i, fence=True):
        if STAMP:
            a.e(f"s_memtime s[{sSt+2*i}:{sSt+2*i+1}]")
            if fence:
                a.e("s_waitcnt lgkmcnt(0)")
                a.lg = []

    def rstamp(i):
        if STAMP:
            a.e(f"s_memrealtime s[{sSt+2*i}:{sSt+2*i+1}]")
            a.e("s_waitcnt lgkmcnt(0)")
            a.lg = []
    if STAMP:
        for i in range(28):
            a.e(f"s_mov_b32 s{sSt+i}, 0")
        a.e(f"s_memrealtime s[{sSt+20}:{sSt+21}]")
    stamp(0, False)
    a.e(f"s_load_dwordx2 s[4:5], s[0:1], {cfg['in_arg']}")
    a.e("s_load_dwordx2 s[30:31], s[0:1], 72")
    a.e(f"v_readfirstlane_b32 s{sWv}, v0")
    a.e(f"s_lshr_b32 s{sWv}, s{sWv}, 6")
    XL = int(os.environ.get("XL", "2"))
    a.e(f"s_and_b32 s36, s2, {(8 >> XL) - 1}")
    a.e(f"s_lshl_b32 s36, s36, {XL}")
    a.e(f"s_bfe_u32 s37, s2, {(XL << 16) | 3}")
    a.e(f"s_or_b32 s{sCb}, s36, s37")
    a.e(f"s_bfe_u32 s36, s2, {(XL << 16) | (3 - XL)}")
    a.e(f"s_lshl_b32 s36, s36, {5 - XL}")
    a.e(f"s_lshr_b32 s37, s2, {3 + XL}")
    a.e("s_or_b32 s36, s36, s37")
    if KSPLIT:
        a.e("s_lshr_b32 s33, s36, 4")
        a.e("s_and_b32 s34, s36, 7")
        a.e("s_bfe_u32 s35, s36, 0x10003")
    else:
        a.e("s_mov_b32 s33, 0")
        a.e("s_and_b32 s34, s36, 15")
        a.e("s_lshr_b32 s35, s36, 4")
    a.e(f"s_mul_i32 s{sT0}, s34, 500")
    a.e(f"s_and_b32 s{sH}, s{sWv}, 3")
    a.e(f"v_and_b32 v{vL}, 63, v0")
    a.e(f"v_lshrrev_b32 v5, 2, v{vL}")
    a.e(f"v_and_b32 v6, 3, v{vL}")
    a.e("v_lshlrev_b32 v7, 15, v5")
    a.e("v_lshl_add_u32 v7, v6, 4, v7")
    a.e(f"s_lshl_b32 s41, s{sT0}, 10")
    a.e("s_lshl_b32 s37, s33, 9")
    a.e("s_add_u32 s41, s41, s37")
    a.e("s_sub_u32 s41, s41, 7680")
    a.e(f"s_and_b32 s42, s{sWv}, 7")
    a.e("s_lshl_b32 s37, s42, 12")
    a.e("s_add_u32 s37, s37, s41")
    a.e("v_add_u32 v7, s37, v7")
    a.e(f"s_mul_i32 s36, s35, {TIN*512}")
    if cfg["in_off"]:
        a.e(f"s_add_u32 s36, s36, {cfg['in_off']}")
    a.e(f"s_mov_b32 s{sX+2}, {TIN*512}")
    a.e(f"s_mov_b32 s{sX+3}, 0x00020000")
    a.e(f"s_mov_b32 s{sMask}, 0xffff0000")
    a.e("s_waitcnt lgkmcnt(0)")
    stamp(1)
    add64(a, sX, 4, "s36")
    OB = 512

    def wsrd():
        a.e(f"s_lshl_b32 s36, s{sCb}, 4")
        a.e("s_lshl_b32 s37, s33, 3")
        a.e("s_add_u32 s36, s36, s37")
        a.e(f"s_mul_i32 s36, s36, {CHUNKB}")
        a.e(f"s_add_u32 s36, s36, {cfg['w_off']}")
        add64(a, sW, 30, "s36")
        a.e(f"s_mov_b32 s{sW+2}, {N*CHUNKB}")
        a.e(f"s_mov_b32 s{sW+3}, 0x00020000")

    def lds_throttle(need=1):
        if len(a.lg) + need > 15:
            a.e("s_waitcnt lgkmcnt(8)")
            a.lg = a.lg[-8:]

    def mf(acc, b, av):
        if "nomfma" not in EXP:
            a.e(f"v_mfma_f32_16x16x32_bf16 {vr(acc)}, {vr(b)}, {vr(av)}, {vr(acc)}")

    def steady(gen, per, strict=True):
        st = []
        for it in range(3):
            st.append(len(a.L))
            for pos in range(per):
                gen(per * it + pos, pos)
        st.append(len(a.L))
        bodies = [a.L[st[i]:st[i + 1]] for i in range(3)]
        if strict:
            assert bodies[1] == bodies[2], "loop not steady"
            assert bodies[0] == bodies[1], "loop entry not steady"
        del a.L[st[0]:]
        return bodies[1]

    a.e(f"s_cmp_ge_u32 s{sWv}, 8")
    a.e(f"s_cbranch_scc1 L_{name}_helper")

    ACC = 0
    vF, vA8, vD, vB = (120, 121), 122, (123, 124), 125
    vP = (116, 117, 118)
    vBZ = 119
    S, T, O = 96, 108, 64
    a.e(f"s_add_u32 s37, s41, {128*4096}")
    a.e(f"v_lshl_add_u32 v{T}, v{vL}, 4, s37")
    if "nob0" in EXP:
        for p in range(3):
            a.vmem(f"buffer_load_dwordx4 {vr(S+4*p)}, v{T}, {sr(sX)}, 0 offen offset:{p*1024}", "SP")
    wsrd()
    a.e(f"s_mul_i32 s36, s35, {TOUT*OB}")
    a.e(f"s_add_u32 s36, s36, {cfg['out_off']}")
    if KSPLIT:
        a.e(f"s_mul_i32 s37, s33, {WS_FPS}")
        a.e("s_add_u32 s36, s36, s37")
    add64(a, sO, 30, "s36")
    a.e(f"s_mov_b32 s{sO+2}, {TOUT*OB}")
    a.e(f"s_mov_b32 s{sO+3}, 0x00020000")
    a.e(f"v_and_b32 v{vI}, 15, v{vL}")
    a.e(f"v_lshrrev_b32 v{vKG}, 4, v{vL}")
    t = 16
    for d, sh in ((vU, 0), (vS_, 1)):
        a.e(f"v_add_u32 v{d}, {sh}, v{vI}")
        a.e(f"v_and_b32 v{t}, 4, v{d}")
        a.e(f"v_lshrrev_b32 v{t}, 1, v{t}")
        a.e(f"v_xor_b32 v{t}, v{vKG}, v{t}")
        a.e(f"v_lshlrev_b32 v{t}, 4, v{t}")
        a.e(f"v_lshl_add_u32 v{d}, v{d}, 6, v{t}")
    a.e(f"s_lshr_b32 s38, s{sH}, 1")
    a.e(f"s_and_b32 s39, s{sH}, 1")
    a.e("s_add_u32 s40, s38, 4")
    a.e("s_lshl_b32 s43, s39, 10")
    a.e(f"s_cmp_lt_u32 s{sWv}, 4")
    a.e(f"s_cselect_b32 s40, s{sWv}, s40")
    a.e("s_cselect_b32 s36, 0, s43")
    a.e("s_lshl_b32 s37, s40, 13")
    a.e("s_add_u32 s37, s37, s36")
    a.e(f"v_lshl_add_u32 v{vB}, v{vL}, 4, s37")
    a.e(f"s_mul_i32 s37, s40, {SEQB}")
    a.e(f"v_add_u32 v{vF[0]}, s37, v{vU}")
    a.e(f"v_add_u32 v{vF[1]}, s37, v{vS_}")
    a.e("s_lshl_b32 s37, s40, 10")
    a.e(f"s_add_u32 s37, s37, {SPB}")
    a.e(f"v_lshl_add_u32 v{t}, v{vKG}, 4, s37")
    a.e(f"v_cmp_eq_u32 vcc, 15, v{vI}")
    a.e(f"v_mov_b32 v{t+1}, {BB}")
    a.e(f"v_mov_b32 v{t+2}, {-BB & 0xffffffff}")
    a.e(f"v_mov_b32 v{t+3}, 64")
    a.e(f"v_cndmask_b32 v{vA8}, v{vF[1]}, v{t}, vcc")
    a.e(f"v_cndmask_b32 v{vD[0]}, v{t+1}, v{t+3}, vcc")
    a.e(f"v_cndmask_b32 v{vD[1]}, v{t+2}, v{t+3}, vcc")
    a.e(f"v_lshl_add_u32 v126, v{vL}, 4, s37")
    tabs = {44: (1.0, 1.0, 1.0, 1.0, 1.0, 16.0), 45: (0.0, 1.0, -1.0, 2.0, -2.0, 8.0),
            46: (0.0, 1.0, 1.0, 4.0, 4.0, 4.0)}
    for sg, tab in tabs.items():
        a.e(f"s_mov_b32 s{sg}, {f32hex(tab[0])}")
    for q in range(1, 6):
        a.e(f"s_cmp_eq_u32 s40, {q}")
        for sg, tab in tabs.items():
            if tab[q] != tab[0]:
                a.e(f"s_cselect_b32 s{sg}, {f32hex(tab[q])}, s{sg}")

    def special_rows():
        a.wait(vm=("SP",))
        for d in range(4):
            for p in range(3):
                a.e(f"v_lshlrev_b32 v{T+p}, 16, v{S+4*p+d}")
                a.e(f"v_and_b32 v{T+3+p}, s{sMask}, v{S+4*p+d}")
            for h in range(2):
                a.e(f"v_mul_f32 v{T+6+h}, s44, v{T+3*h}")
            for h in range(2):
                a.e(f"v_fmac_f32 v{T+6+h}, s45, v{T+3*h+1}")
            for h in range(2):
                a.e(f"v_fmac_f32 v{T+6+h}, s46, v{T+3*h+2}")
            a.e(f"v_cvt_pk_bf16_f32 v{S+d}, v{T+6}, v{T+7}")
        a.e(f"ds_write_b128 v126, {vr(S)}")

    def own_read(k, g, reg, tag, last=False):
        if g == 8:
            base, off = vA8, 0
        else:
            base, off = vF[g >> 3], (k & 1) * BB + (g & 7) * FB
        a.lds(f"ds_read_b128 {vr(reg)}, v{base} offset:{off}", tag)
        if g == 8 and not last:
            a.e(f"v_add_u32 v{vA8}, v{vD[k & 1]}, v{vA8}")

    UNIT = [(s * SEQB, s * SEQB + BB) for s in range(4)] + [(4 * SEQB, TOPB), (5 * SEQB, TOPB + 8192),
            (6 * SEQB, TOPB + 16384), (TOPB + 24576, TOPB + 32768)]
    EA = 96

    def ex_addr(sbase):
        a.e(f"v_and_b32 v{EA}, 15, v{vL}")
        a.e(f"v_and_b32 v{EA+1}, 7, v{vL}")
        a.e(f"v_lshlrev_b32 v{EA+1}, 4, v{EA+1}")
        a.e(f"v_lshl_add_u32 v{EA}, v{EA}, 7, v{EA+1}")
        a.e(f"v_lshrrev_b32 v{EA+1}, 4, v{vL}")
        a.e(f"v_lshl_add_u32 v{EA}, v{EA+1}, 11, v{EA}")
        a.e(f"v_add_u32 v{EA}, s{sbase}, v{EA}")
        for f in range(1, 8):
            a.e(f"v_xor_b32 v{EA+f}, {f << 4}, v{EA}")

    def mwave(role):
        if role == 1:
            BR, AR, NR = 64, 96, 6
            steps = [("X", g) for g in range(11)]
        else:
            BR, AR, NR = 64, 88, 7
            steps = []
            for g in range(11):
                steps.append(("Y", g))
                if 1 <= g <= 9:
                    steps.append(("Z", g - 1))
        NS = len(steps)

        def bload(k, kind, q):
            if "nob" in EXP and k > 0:
                return
            so = sBo2 if q >> 1 else sBo
            if kind == "X":
                for c in range(2):
                    a.vmem(f"buffer_load_dwordx4 {vr(BR+(q*2+c)*4)}, v{vB}, {sr(sW)}, s{so} offen "
                           f"offset:{(q&1)*2048 + c*1024}", ("B", k, kind, q))
            elif kind == "Y":
                a.vmem(f"buffer_load_dwordx4 {vr(BR+q*4)}, v{vB}, {sr(sW)}, s{so} offen offset:{(q&1)*2048}",
                       ("B", k, kind, q))
            else:
                a.vmem(f"buffer_load_dwordx4 {vr(BR+16+q*4)}, v{vBZ}, {sr(sW)}, s{sBo} offen offset:{q*2048}",
                       ("B", k, kind, q))

        def rd(k, n, last=False):
            kind, g = steps[n]
            reg = AR + 4 * (n % NR)
            if kind == "Z":
                base, off = (vP[0], g * FB6) if g < 6 else (vP[1], (g - 6) * FB6) if g < 8 else (vP[2], 0)
                a.lds(f"ds_read_b128 {vr(reg)}, v{base} offset:{(k & 1)*BB6 + off}", ("A", k, n))
            else:
                own_read(k, g, reg, ("A", k, n), last)

        for i in range(64):
            a.e(f"v_mov_b32 v{ACC+i}, 0")
        if "nob0" not in EXP:
            a.e("s_barrier")
            for p in range(3):
                a.vmem(f"buffer_load_dwordx4 {vr(S+4*p)}, v{T}, {sr(sX)}, 0 offen offset:{p*1024}", "SP")
        a.e(f"s_mov_b32 s{sBo}, 0")
        a.e(f"s_mov_b32 s{sBo2}, 4096")
        for st in steps:
            if st and st[1] >= 7:
                bload(0, st[0], st[1] - 7)
        a.e(f"s_mov_b32 s{sBo}, {CHUNKB}")
        a.e(f"s_mov_b32 s{sBo2}, {CHUNKB + 4096}")
        special_rows()
        if role == 2:
            a.e(f"v_and_b32 v126, 15, v{vL}")
            a.e("v_lshlrev_b32 v126, 2, v126")
            a.e(f"v_add_u32 v126, {6*SEQB + 1024}, v126")
            a.e(f"ds_write_b32 v126, v{ACC}")
            a.e(f"ds_write_b32 v126, v{ACC} offset:{BB6}")
        a.e("s_waitcnt lgkmcnt(0)")
        a.e("s_barrier")
        stamp(7)
        rstamp(12)
        a.e(f"s_mov_b32 s{sCnt}, {N//2}")
        a.e(f"s_setprio {os.environ.get(f'PM{role}', '2')}")

        CO = int(os.environ.get(f"CO{role}", "0" if role == 1 else "5"))
        assert CO < NR
        vE = (vD[0], vD[1])

        def period(k, _, last=False):
            if "mst" in EXP and _ == 0:
                stamp(2)
            for n in range(NR):
                rd(k, n, last)
            pend = []

            def flush(n, cnt):
                while pend and pend[0][0] <= n and cnt > 0:
                    _, h, f = pend.pop(0)
                    t = vE[(h + f) & 1]
                    a.e(f"v_xor_b32 v{t}, {f << 4}, v{vX0[h]}")
                    lds_throttle()
                    a.lds(f"ds_write_b128 v{t}, {vr(ACC + h*32 + f*4)}", "E")
                    cnt -= 1

            for n, st in enumerate(steps):
                if CO and n == NS - CO and not last:
                    a.wait(lg_all=True)
                    a.e("s_barrier")
                kind, g = st
                nt = 2 if kind == "Z" else 4
                qs = [q for q in range(nt) if 0 <= g - q <= 7]
                a.wait(lg=(("A", k, n),), vm=tuple(("B", k, kind, q) for q in qs))
                reg = AR + 4 * (n % NR)
                for q in qs:
                    f = g - q
                    if kind == "X":
                        mf(ACC + f * 4, BR + q * 8, reg)
                        mf(ACC + 32 + f * 4, BR + q * 8 + 4, reg)
                    elif kind == "Y":
                        mf(ACC + f * 4, BR + q * 4, reg)
                    else:
                        mf(ACC + 32 + f * 4, BR + 16 + q * 4, reg)
                if g >= 7 and not last:
                    bload(k + 1, kind, g - 7)
                if n + NR < NS:
                    rd(k, n + NR, last)
                if last:
                    flush(n, 2)
                    f = g - (nt - 1)
                    if f >= 0:
                        if kind == "X":
                            pend.append((n + 1, 0, f))
                            pend.append((max(n + 1, NS - NR + 1), 1, f))
                            pend.sort()
                        else:
                            pend.append((n + 3, 0 if kind == "Y" else 1, f))
                    if kind == "X" and n == NS - NR:
                        a.wait(lg=(("A", k, NS - 1),))
            if last:
                a.e("s_nop 7")
                flush(1000, 1000)
                return
            a.e(f"s_add_u32 s{sBo}, s{sBo}, {CHUNKB}")
            a.e(f"s_add_u32 s{sBo2}, s{sBo2}, {CHUNKB}")
            assert not a.lg
            if "mst" in EXP and _ == 0:
                stamp(5)
            if not CO:
                a.e("s_barrier")
            if "mst" in EXP and _ == 0:
                stamp(6)

        def period2(k, pos):
            if pos == 1:
                a.e(f"s_sub_u32 s{sCnt}, s{sCnt}, 1")
                a.e(f"s_cmp_eq_u32 s{sCnt}, 0")
                a.e(f"s_cbranch_scc1 L_{name}_mlast{role}")
                state[0] = (list(a.vm), k)
            period(k, pos)

        state = [None]
        body = steady(period2, 2, "nob" not in EXP)
        if "nob" in EXP:
            a.e("s_waitcnt vmcnt(0)")
        a.label(f"L_{name}_mloop{role}")
        a.L.extend(body)
        a.e(f"s_branch L_{name}_mloop{role}")
        a.label(f"L_{name}_mlast{role}")
        a.vm, a.lg = state[0][0], []
        vX0 = (vB, 126)
        a.e(f"v_and_b32 v{vX0[0]}, 15, v{vL}")
        a.e(f"v_and_b32 v{vX0[1]}, 7, v{vL}")
        a.e(f"v_lshlrev_b32 v{vX0[1]}, 4, v{vX0[1]}")
        a.e(f"v_lshl_add_u32 v{vX0[0]}, v{vX0[0]}, 7, v{vX0[1]}")
        a.e(f"v_lshrrev_b32 v{vX0[1]}, 4, v{vL}")
        a.e(f"v_lshl_add_u32 v{vX0[0]}, v{vX0[1]}, 11, v{vX0[0]}")
        if role == 1:
            a.e(f"s_lshl_b32 s36, s{sWv}, 14")
            a.e("s_add_u32 s37, s36, 8192")
        else:
            for sg, tab in ((36, [UNIT[4 + (h >> 1)][h & 1] for h in range(4)]),
                            (37, [UNIT[6 + (h >> 1)][h & 1] for h in range(4)])):
                a.e(f"s_mov_b32 s{sg}, {tab[0]}")
                for h in range(1, 4):
                    a.e(f"s_cmp_eq_u32 s{sH}, {h}")
                    a.e(f"s_cselect_b32 s{sg}, {tab[h]}, s{sg}")
        a.e(f"v_add_u32 v{vX0[1]}, s37, v{vX0[0]}")
        a.e(f"v_add_u32 v{vX0[0]}, s36, v{vX0[0]}")
        period(state[0][1], 1, True)
        stamp(8, False)
        rstamp(13)
        a.e("s_setprio 0")
        a.vm, a.lg = [], []

    a.e(f"s_cmp_ge_u32 s{sWv}, 4")
    a.e(f"s_cbranch_scc1 L_{name}_m2")
    vm0 = list(a.vm)
    mwave(1)
    a.e(f"s_branch L_{name}_epi")
    a.label(f"L_{name}_m2")
    a.vm, a.lg = list(vm0), []
    a.e(f"s_mul_i32 s37, s38, {2*FB6}")
    a.e(f"s_add_u32 s37, s37, {6*SEQB}")
    a.e(f"v_add_u32 v{vP[0]}, s37, v{vU}")
    a.e(f"v_add_u32 v{vP[2]}, s37, v{vS_}")
    a.e(f"v_add_u32 v{vP[1]}, {6*SEQB + 6*FB6}, v{vU}")
    a.e("s_cmp_eq_u32 s38, 0")
    a.e(f"s_cbranch_scc1 L_{name}_hh0")
    a.e(f"v_add_u32 v{vP[1]}, {6*SEQB}, v{vS_}")
    a.label(f"L_{name}_hh0")
    a.e("s_lshl_b32 s37, s38, 12")
    a.e("s_add_u32 s37, s37, s43")
    a.e(f"s_add_u32 s37, s37, {6*8192}")
    a.e(f"v_lshl_add_u32 v{vBZ}, v{vL}, 4, s37")
    mwave(2)
    a.e(f"s_branch L_{name}_epi")

    a.label(f"L_{name}_helper")
    a.vm, a.lg = [], []
    a.e("s_setprio 3")
    PB = (0, 32)
    XO = 64
    TMP = 76
    vX = 92
    vW = (96, 97, 98)

    def praw(b, half, p):
        return PB[b] + half * 16 + p * 4

    def xload(pair, p):
        for half in range(2):
            a.vmem(f"buffer_load_dwordx4 {vr(praw(pair & 1, half, p))}, v{vX+p}, {sr(sX)}, "
                   f"s{sXo} offen offset:{half*64}", ("X", pair))
        a.e(f"v_add_u32 v{vX+p}, 128, v{vX+p}")

    def uregs(chunk):
        return [praw((chunk >> 1) & 1, chunk & 1, p) for p in range(4)]

    def wr(chunk, i):
        if "nowr" in EXP:
            return
        u = uregs(chunk)
        reg, seq = [(XO, 3), (XO + 4, 4), (XO + 8, 5), (u[0], 0), (u[1], 1), (u[2], 2), (u[3], 6)][i]
        lds_throttle()
        if seq == 6:
            a.lds(f"ds_write_b128 v{vW[2]}, {vr(reg)} offset:{(chunk & 1)*BB6}", "W")
        else:
            a.lds(f"ds_write_b128 v{vW[seq >> 2]}, {vr(reg)} offset:{(seq & 3)*SEQB + (chunk & 1)*BB}", "W")

    def tr_ops(chunk):
        u = uregs(chunk)
        o = [u[1], u[2], XO, XO + 4, XO + 8]
        ops = []
        for d in range(4):
            lo = [TMP + p for p in range(4)]
            hi = [TMP + 8 + p for p in range(4)]
            for p in range(4):
                ops.append(f"v_lshlrev_b32 v{lo[p]}, 16, v{u[p]+d}")
                ops.append(f"v_and_b32 v{hi[p]}, s{sMask}, v{u[p]+d}")
            o1, r1 = eval_ops(lo, [TMP + 4 + i for i in range(4)])
            o2, r2 = eval_ops(hi, [TMP + 12 + i for i in range(4)])
            for x, y in zip(o1, o2):
                ops += [x, y]
            for i in range(5):
                ops.append(f"v_cvt_pk_bf16_f32 v{o[i]+d}, v{r1[i]}, v{r2[i]}")
        if "notr" in EXP:
            ops = ["s_nop 0"] * 8
        return ops

    for p in range(4):
        a.e(f"v_add_u32 v{vX+p}, {p*1024}, v7")
    a.e(f"v_and_b32 v{TMP}, 4, v5")
    a.e(f"v_lshrrev_b32 v{TMP}, 1, v{TMP}")
    a.e(f"v_xor_b32 v{TMP}, v6, v{TMP}")
    a.e(f"v_lshlrev_b32 v{TMP}, 4, v{TMP}")
    a.e(f"v_lshl_add_u32 v{TMP}, v5, 6, v{TMP}")
    a.e(f"s_mov_b32 s{sXo}, 0")
    stamp(2)
    for p in range(4):
        xload(0, p)
    if "nob0" not in EXP:
        a.e("s_barrier")
    a.e(f"s_mul_i32 s36, s42, {FB}")
    a.e(f"v_add_u32 v{vW[0]}, s36, v{TMP}")
    a.e(f"v_add_u32 v{vW[1]}, {4*SEQB}, v{vW[0]}")
    a.e(f"s_mul_i32 s36, s42, {FB6}")
    a.e(f"s_add_u32 s36, s36, {6*SEQB}")
    a.e(f"v_add_u32 v{vW[2]}, s36, v{TMP}")
    PF = os.environ.get("PF", "")
    PFS = int(os.environ.get("PFS", "128"))
    sPX, sPW = 44, 45
    wsrd()
    a.e(f"s_bfe_u32 s36, s2, {(XL << 16) | 3}")
    a.e("s_lshl_b32 s36, s36, 3")
    a.e("s_add_u32 s36, s36, s42")
    a.e("s_lshl_b32 s36, s36, 14")
    a.e(f"s_add_u32 s{sPX}, s36, s41")
    a.e(f"s_add_u32 s{sPX}, s{sPX}, 256")
    a.e(f"s_lshr_b32 s36, s2, {3 + XL}")
    a.e("s_lshl_b32 s36, s36, 3")
    a.e("s_add_u32 s36, s36, s42")
    a.e(f"s_mul_i32 s{sPW}, s36, 896")
    a.e(f"s_add_u32 s{sPW}, s{sPW}, {CHUNKB}")

    def prefetch(par):
        if "x" in PF:
            a.e(f"s_max_i32 s46, s{sPX}, 0")
            a.e(f"s_min_i32 s46, s46, {TIN*512 - 8192}")
            for i in range(8):
                a.e(f"s_buffer_load_dword s48, {sr(sX)}, s46 offset:{i*1024}")
            a.e(f"s_add_u32 s{sPX}, s{sPX}, {(128 - 8192) & 0xffffffff if par else 8192}")
        if "w" in PF:
            a.e(f"s_min_u32 s47, s{sPW}, {N*CHUNKB - 896}")
            for i in range(7):
                a.e(f"s_buffer_load_dword s48, {sr(sW)}, s47 offset:{i*128}")
            a.e(f"s_add_u32 s{sPW}, s{sPW}, {CHUNKB}")

    prefetch(0)
    stamp(3)
    a.wait(vm=(("X", 0),))
    stamp(4)
    a.e("s_waitcnt lgkmcnt(0)")
    prefetch(1)
    a.e(f"s_mov_b32 s{sK}, 0")
    a.e(f"s_mov_b32 s{sCnt}, {N//4}")
    if "trace" in EXP:
        a.e("s_lshl_b32 s36, s2, 7")
        a.e(f"s_add_u32 s36, s36, {WS_STAMP + 0x80000 + cfg['stamp']*0x10000}")
        add64(a, 96, 30, "s36")
        a.e(f"s_cmp_eq_u32 s{sWv}, 15")
        a.e("s_cselect_b32 s98, 128, 0")
        a.e("s_mov_b32 s99, 0x00020000")
        a.e("v_mov_b32 v102, 0")
    a.e(f"s_cmp_ge_u32 s{sWv}, 12")
    a.e(f"s_cbranch_scc1 L_{name}_h2")

    def hwave(role):
        a.vm, a.lg = [], []
        a.e("s_waitcnt lgkmcnt(0)")
        wr(0, 3)
        wr(0, 6)
        for op in tr_ops(0):
            a.e(op)
        for i in (4, 5, 0, 1, 2):
            wr(0, i)
        for p in range(2 if role == 1 else 4):
            xload(1, p)
        stamp(5)
        a.wait(lg_all=True)
        stamp(6)
        a.e("s_barrier")
        stamp(7)
        rstamp(12)
        a.e(f"s_setprio {os.environ.get(f'PH{role}', '1' if role == 1 else '0')}")
        if role == 2:
            for op in tr_ops(1):
                a.e(op)
        if "trace" in EXP:
            a.vmem("buffer_store_dwordx2 v[100:101], v102, s[96:99], 0 offen", "T")
        XP = [float(x) for x in os.environ.get(f"XP{role}", "0.3,0.7,0.1,0.5" if role == 1 else "0.3,0.7,0.02,0.15").split(",")]

        def period(k, pos):
            pair = (k + 3) >> 1 if role == 1 else (k >> 1) + 2
            first = (k & 1) if role == 1 else not (k & 1)
            if pos == 4 - role:
                a.e(f"s_cmp_eq_u32 s{sCnt}, 1")
                a.e(f"s_cbranch_scc1 L_{name}_hlast{role}")
            if "hst" in EXP and pos == 1:
                stamp(2)
            a.e(f"s_cmp_lt_u32 s{sK}, {N - 2 - role}")
            a.e(f"s_cselect_b32 s{sXo}, 0, {OOB}")
            if role == 2:
                for i in range(7):
                    wr(k + 1, i)
                a.wait(lg_all=True)
            prefetch(k & 1)
            V = tr_ops(k + role)
            n = len(V)
            ev = {}

            def at(i, f):
                ev.setdefault(max(0, min(int(i), n)), []).append(f)
            at(0, lambda: a.wait(vm=(("X", (k + role) >> 1),)))
            if "nox" not in EXP:
                for p in ((0, 1) if first else (2, 3)):
                    at(XP[p] * n, lambda p=p: xload(pair, p))
            for i in range(n + 1):
                for f in ev.get(i, []):
                    f()
                if i < n:
                    a.e(V[i])
            if role == 1:
                a.e("s_waitcnt lgkmcnt(0)")
                for i in range(7):
                    wr(k + 1, i)
            a.e(f"s_add_u32 s{sK}, s{sK}, 1")
            if "hst" in EXP and pos == 1:
                stamp(5)
            if "trace" in EXP:
                a.e("s_memtime s[90:91]")
                a.e("s_memrealtime s[92:93]")
            a.e("s_waitcnt lgkmcnt(0)")
            a.lg = []
            if "trace" in EXP:
                a.e("v_mov_b32 v100, s90")
                a.e("v_mov_b32 v101, s92")
                a.e(f"s_lshl_b32 s94, s{sK}, 3")
                a.vmem("buffer_store_dwordx2 v[100:101], v102, s[96:99], s94 offen", "T")
            a.e("s_barrier")
            if "hst" in EXP and pos == 1:
                stamp(6)

        body = steady(period, 4, "nox" not in EXP)
        a.label(f"L_{name}_hloop{role}")
        a.L.extend(body)
        a.e(f"s_sub_u32 s{sCnt}, s{sCnt}, 1")
        a.e(f"s_branch L_{name}_hloop{role}")
        a.label(f"L_{name}_hlast{role}")
        a.vm, a.lg = [], []
        if role == 2:
            for i in range(7):
                wr(3, i)
            a.e("s_waitcnt vmcnt(0) lgkmcnt(0)")
            a.lg = []
            if KSPLIT:
                a.e("s_barrier")
            else:
                a.e(f"s_mov_b32 s58, s{sWv}")
                a.e(f"s_lshl_b32 s20, s2, 2")
                a.e(f"s_add_u32 s20, s20, s{sH}")
                a.e(f"v_mov_b32 v1, v{vL}")
                wprep(a, 16, WS_W2P, True, barrier=True)
                a.e(f"s_mov_b32 s{sWv}, s58")
        stamp(8)
        rstamp(13)
        if role == 1 and KSPLIT and "tailwarm" in EXP:
            add64(a, sW, 30, WS_WF)
            a.e(f"s_mov_b32 s{sW+2}, 262144")
            a.e("s_lshr_b32 s36, s2, 3")
            a.e("s_lshl_b32 s36, s36, 13")
            a.e(f"s_lshl_b32 s37, s{sH}, 11")
            a.e("s_add_u32 s36, s36, s37")
            a.e(f"v_lshlrev_b32 v1, 5, v{vL}")
            a.e(f"buffer_load_dword v2, v1, {sr(sW)}, s36 offen")
        a.e(f"s_branch L_{name}_end")

    hwave(1)
    a.label(f"L_{name}_h2")
    hwave(2)

    a.label(f"L_{name}_epi")
    R0 = (120, 121, 125)
    vO, vBW = 122, 123
    BND = SPB
    t0, t1, t2, t3 = 108, 109, 110, 111
    a.e(f"v_and_b32 v{t0}, 15, v{vL}")
    a.e(f"v_lshrrev_b32 v{t1}, 4, v{vL}")
    a.e(f"v_lshrrev_b32 v{t2}, 3, v{t0}")
    a.e(f"s_lshl_b32 s36, s{sWv}, 1")
    a.e(f"v_add_u32 v{t2}, s36, v{t2}")
    a.e(f"v_xor_b32 v{t3}, v{t2}, v{t0}")
    a.e(f"v_and_b32 v{t3}, 7, v{t3}")
    a.e(f"v_lshlrev_b32 v{t3}, 4, v{t3}")
    a.e(f"v_lshl_add_u32 v{t3}, v{t2}, 7, v{t3}")
    a.e(f"v_lshl_add_u32 v{R0[0]}, v{t1}, 11, v{t3}")
    a.e(f"v_add_u32 v{R0[1]}, 65536, v{R0[0]}")
    a.e(f"v_add_u32 v{R0[2]}, 131072, v{R0[0]}")
    a.e(f"s_lshl_b32 s36, s{sWv}, 9")
    a.e(f"s_add_u32 s36, s36, {BND}")
    a.e(f"v_lshl_add_u32 v{vBW}, v{t1}, 7, s36")
    a.e(f"s_lshl_b32 s36, s{sWv}, 4")
    a.e(f"v_add_u32 v{t0}, s36, v{t0}")
    a.e(f"v_lshl_add_u32 v{t2}, v{t0}, 2, s{sT0}")
    a.e(f"v_lshlrev_b32 v{t2}, 9, v{t2}")
    a.e(f"v_lshl_add_u32 v{t2}, v{t1}, 4, v{t2}")
    a.e(f"s_lshl_b32 s36, s{sCb}, 6")
    a.e(f"v_add_u32 v{t2}, s36, v{t2}")
    a.e(f"v_mov_b32 v{t3}, {OOB}")
    a.e(f"v_cmp_gt_u32 vcc, 125, v{t0}")
    k0 = -2.0 * 1.4426950408889634 * 0.7978845608028654
    consts = [-1.0 / 3, 0.25, -5.0, -32.0 / 9, -8.0 / 9, -2.0 / 9, -1.0 / 18, 17.0 / 9, -2.0 / 3, 0.4, -1.0 / 15, -0.2,
              k0 * 0.044715, 1.0]
    KS = [4, 6, 8, 10, 12, 14, 22, 24, 26, 32, 34, 38, 40, 42]
    for sg, cv in zip(KS, consts):
        a.e(f"s_mov_b32 s{sg}, {f32hex(cv)}")
        a.e(f"s_mov_b32 s{sg+1}, s{sg}")
    K = [sr(x, 2) for x in KS]
    a.e("s_waitcnt lgkmcnt(0)")
    a.e("s_barrier")
    if "est" in EXP:
        stamp(2)
    a.e(f"v_cndmask_b32 v{vO}, v{t3}, v{t2}, vcc")

    def P(c, s, r=0):
        return c * 32 + s * 4 + r
    Y = 64
    TB = 96
    ELS = (0, 1, 2)
    for c in range(2):
        for s_ in range(8):
            if c == 1 and s_ == 7:
                a.e("s_waitcnt lgkmcnt(7)")
            u = UNIT[s_][c]
            a.e(f"ds_read_b128 {vr(P(c, s_))}, v{R0[u >> 16]} offset:{u & 0xffff}")

    def p2(x):
        return vr(x, 2)

    def padd(d, x, y):
        return f"v_pk_add_f32 {p2(d)}, {p2(x)}, {p2(y)}"

    def psub(d, x, y):
        return f"v_pk_add_f32 {p2(d)}, {p2(x)}, {p2(y)} neg_lo:[0,1] neg_hi:[0,1]"

    def pfma(d, x, k, y, neg=False):
        return f"v_pk_fma_f32 {p2(d)}, {p2(x)}, {k}, {p2(y)}" + (" neg_lo:[0,0,1] neg_hi:[0,0,1]" if neg else "")

    def interp(c):
        seq = []
        for r in (0, 2):
            E0, A, B, C, D, Q, E6, E6b = (P(c, x, r) for x in range(8))
            y = [Y + ph * 8 + c * 4 + r for ph in range(4)]
            S1, G = E6, C
            seq.append([
                padd(y[3], E6, E6b),
                padd(S1, A, B),
                psub(A, A, B),
                padd(y[1], C, D),
                psub(G, C, D),
                pfma(y[1], S1, K[0], y[1]),
                pfma(Q, E0, K[3], Q),
                pfma(y[1], E0, K[1], y[1]),
                psub(S1, S1, E0),
                pfma(y[1], y[3], K[2], y[1]),
                psub(S1, S1, y[3]),
                pfma(Q, y[3], K[6], Q),
                psub(B, S1, y[1]),
                pfma(Q, y[1], K[5], Q),
                f"v_pk_mul_f32 {p2(y[2])}, {p2(G)}, {K[9]}",
                pfma(Q, B, K[4], Q),
                pfma(y[2], A, K[10], y[2]),
                pfma(y[0], A, K[7], Q, True),
                pfma(y[0], G, K[8], y[0]),
                pfma(y[2], y[0], K[11], y[2]),
                psub(A, A, y[0]),
                psub(A, A, y[2]),
            ])
        for ops in zip(*seq):
            for op in ops:
                a.e(op)

    a.e("s_waitcnt lgkmcnt(8)")
    interp(0)
    a.e("s_waitcnt lgkmcnt(0)")
    interp(1)
    if "est" in EXP:
        stamp(3)
    a.e("s_mov_b32 s36, 0x00010001")
    a.e("s_mov_b32 s37, 0x00010001")
    a.e("s_mov_b64 exec, s[36:37]")
    for k in range(3):
        for c in range(2):
            a.e(f"ds_write_b128 v{vBW}, {vr(P(c, ELS[k]))} offset:{(k*2+c)*16}")
    a.e("s_mov_b64 exec, -1")

    def finish(ph):
        ys = [Y + ph * 8 + i for i in range(8)]
        if not KSPLIT:
            ts = [16 + (ph & 1) * 8 + i for i in range(8)]
            ev = list(zip(ys[::2], ts[::2]))
            for y, t in ev:
                a.e(f"v_pk_mul_f32 {p2(t)}, {p2(y)}, {p2(y)}")
            for y, t in ev:
                a.e(pfma(t, t, K[12], 44))
            for y, t in ev:
                a.e(f"v_pk_mul_f32 {p2(t)}, {p2(t)}, {p2(y)}")
            for t in ts:
                a.e(f"v_exp_f32 v{t}, v{t}")
            for y, t in ev:
                a.e(f"v_pk_add_f32 {p2(t)}, {p2(t)}, {K[13]}")
            for t in ts:
                a.e(f"v_rcp_f32 v{t}, v{t}")
            for y, t in ev:
                a.e(f"v_pk_mul_f32 {p2(y)}, {p2(y)}, {p2(t)}")
        o = 48 + ph * 4
        for r in range(4):
            a.e(f"v_cvt_pk_bf16_f32 v{o+r}, v{ys[r]}, v{ys[4+r]}")
        a.e(f"buffer_store_dwordx4 {vr(o)}, v{vO}, {sr(sO)}, 0 offen offset:{ph*512}{NTF if KSPLIT else NTH}")

    a.e(f"v_mov_b32 v44, {f32hex(k0)}")
    a.e("v_mov_b32 v45, v44")
    finish(0)
    a.e("s_waitcnt lgkmcnt(0)")
    a.e("s_barrier")
    if "est" in EXP:
        stamp(4)
    for i in range(6):
        a.e(f"ds_read_b128 {vr(TB+4*i)}, v{vBW} offset:{512 + i*16}")
    for ph in range(1, 4):
        a.e(f"s_waitcnt lgkmcnt({6 - 2*ph})")
        for c in range(2):
            for r in range(4):
                i = (ph - 1) * 8 + c * 4 + r
                a.e(f"v_mov_b32_dpp v{TB+i}, v{P(c, ELS[ph-1], r)} row_shl:1 row_mask:0xf bank_mask:0xf")
        for i in range(0, 8, 2):
            a.e(padd(Y + ph * 8 + i, Y + ph * 8 + i, TB + (ph - 1) * 8 + i))
        finish(ph)
    if "est" in EXP:
        stamp(5)
    a.label(f"L_{name}_end")
    if STAMP:
        a.e("s_waitcnt vmcnt(0)")
        stamp(9, False)
        a.e(f"s_memrealtime s[{sSt+22}:{sSt+23}]")
        a.e(f"s_cmp_lg_u32 s{sWv}, {os.environ.get('SW', '0')}")
        a.e(f"s_cbranch_scc1 L_{name}_done")
        a.e("s_lshl_b32 s36, s2, 7")
        a.e(f"s_add_u32 s36, s36, {WS_STAMP + cfg['stamp']*0x10000}")
        add64(a, 40, 30, "s36")
        a.e("s_mov_b32 s42, 128")
        a.e("s_mov_b32 s43, 0x00020000")
        a.e("s_waitcnt lgkmcnt(0)")
        a.e("v_mov_b32 v8, 0")
        for i in range(28):
            a.e(f"v_mov_b32 v0, s{sSt+i}")
            a.e(f"buffer_store_dword v0, v8, s[40:43], 0 offen offset:{4*i}")
    a.label(f"L_{name}_done")
    a.e("s_endpgm")
    return a.L, TOPB + 40960, 128


CONV1 = dict(tin=16000, tout=8000, nchunk=16, ksplit=False, in_arg=0, in_off=0, w_off=WS_W1P, out_off=WS_H, stamp=0)
CONV2 = dict(tin=8000, tout=4000, nchunk=8, ksplit=True, in_arg=72, in_off=WS_H, w_off=WS_W2P, out_off=WS_FP, stamp=1)

HEADER = """; Kernarg layout for this problem (80 bytes, ptrs only, base s[0:1]):
"""


def main():
    ks = [("prep_kernel", 268, 256) + prep_kernel("prep_kernel"),
          ("conv1_kernel", 256, 1024) + conv_kernel("conv1_kernel", CONV1),
          ("conv2_kernel", 256, 1024) + conv_kernel("conv2_kernel", CONV2)]
    ks = joint_kernels(ks)
    out = HEADER
    for nm, grid, block, code, lds, vg in ks:
        out += f"; @launch kernel={nm} grid=({grid},1,1) block=({block},1,1) lds={lds}\n"
    out += '.amdgcn_target "amdgcn-amd-amdhsa--gfx950"\n.text\n'
    for nm, grid, block, code, lds, vg in ks:
        if "noalign" not in EXP:
            code = align8(code)
        out += f".globl {nm}\n.p2align 8\n.type {nm},@function\n" + "\n".join(code) + "\n"
    out += '.section .rodata,"a"\n'
    for nm, grid, block, code, lds, vg in ks:
        out += ".p2align 6\n" + kd(nm, vg)
    path = sys.argv[1] if len(sys.argv) > 1 else "standalone__seq2seq_rnn_t_joint__speech.s"
    open(path, "w").write(out)


if __name__ == "__main__":
    main()
```

```python
import os
from asmlib import Asm, vr, sr, f32hex

EXP = os.environ.get("EXP", "").split(",")
WS_FP = 0x1A00000
WS_FPS = 0x800000
WS_WF = 0x2A00000
WS_WO = 0x2A20000
WS_GE = 0x2A40000
WS_STAMP = 0x3000000
C2 = 2.0 * 1.4426950408889634
RANGE = 120.0


def add64(a, d, lo, off):
    a.e(f"s_add_u32 s{d}, s{lo}, {off}")
    a.e(f"s_addc_u32 s{d+1}, s{lo+1}, 0")


def code_warm(a, name, v, sh):
    a.e("s_getpc_b64 s[62:63]")
    a.label(f"L_{name}_pc")
    a.e(f"v_lshlrev_b32 v{v}, {7 - sh}, v0")
    a.e(f"v_min_u32 v{v}, L_{name}_done-L_{name}_pc, v{v}")
    a.e(f"v_mov_b32 v{v+1}, s63")
    a.e(f"v_add_co_u32 v{v}, vcc, s62, v{v}")
    a.e(f"v_addc_co_u32 v{v+1}, vcc, 0, v{v+1}, vcc")
    a.e(f"global_load_dword v{v+2}, v[{v}:{v+1}], off")


def prep_small(a, name):
    a.label(f"L_{name}_small")
    a.e("s_load_dwordx4 s[4:7], s[0:1], 24")
    a.e("s_load_dwordx4 s[36:39], s[0:1], 40")
    a.e("s_load_dwordx2 s[30:31], s[0:1], 72")
    a.e("v_readfirstlane_b32 s20, v0")
    a.e("s_lshr_b32 s20, s20, 6")
    a.e("s_lshr_b32 s21, s2, 2")
    a.e("s_and_b32 s22, s2, 3")
    a.e("v_and_b32 v1, 63, v0")
    a.e("v_lshrrev_b32 v2, 5, v1")
    a.e("v_and_b32 v3, 31, v1")
    a.e("v_lshlrev_b32 v5, 12, v2")
    a.e("v_lshl_add_u32 v5, v3, 2, v5")
    a.e("s_lshl_b32 s23, s20, 15")
    a.e("s_lshl_b32 s24, s22, 7")
    a.e("s_add_u32 s23, s23, s24")
    a.e("s_mov_b32 s32, 0x05040100")
    a.e("s_mov_b32 s33, 0x07060302")
    a.e("s_waitcnt lgkmcnt(0)")
    a.e("s_cmp_eq_u32 s21, 1")
    a.e("s_cselect_b32 s8, s38, s6")
    a.e("s_cselect_b32 s9, s39, s7")
    a.e("s_cmp_eq_u32 s21, 2")
    a.e("s_cselect_b32 s8, s36, s8")
    a.e("s_cselect_b32 s9, s37, s9")
    a.e("s_mov_b32 s10, 131072")
    a.e("s_mov_b32 s11, 0x00020000")
    R, O = 16, 48
    for k in range(4):
        for e in range(8):
            a.e(f"buffer_load_dword v{R+k*8+e}, v5, s[8:11], s23 offen offset:{e*512}")
        if k < 3:
            a.e("s_add_u32 s23, s23, 8192")
    a.e("s_mov_b32 s16, s4")
    a.e("s_mov_b32 s17, s5")
    a.e("s_mov_b32 s18, 8192")
    a.e("s_mov_b32 s19, 0x00020000")
    a.e("v_lshlrev_b32 v6, 9, v3")
    a.e("v_lshl_add_u32 v6, v2, 4, v6")
    a.e("s_lshl_b32 s24, s20, 7")
    for k in range(4):
        a.e(f"buffer_load_dwordx4 {vr(80+4*k)}, v6, s[16:19], s24 offen offset:{k*32}")
    a.e("s_lshl_b32 s24, s21, 17")
    a.e(f"s_add_u32 s24, s24, {WS_WF}")
    add64(a, 12, 30, "s24")
    a.e("s_mov_b32 s14, 131072")
    a.e("s_mov_b32 s15, 0x00020000")
    a.e("s_waitcnt vmcnt(0)")
    for k in range(4):
        for jn in range(2):
            for e2 in range(4):
                a.e(f"v_perm_b32 v{O+(k*2+jn)*4+e2}, v{R+k*8+2*e2+1}, v{R+k*8+2*e2}, s{32+jn}")
    a.e("s_cmp_eq_u32 s21, 2")
    a.e(f"s_cbranch_scc1 L_{name}_ge")
    a.e("v_lshlrev_b32 v4, 4, v1")
    a.e("s_lshl_b32 s24, s22, 15")
    a.e("s_lshl_b32 s25, s20, 13")
    a.e("s_add_u32 s24, s24, s25")
    a.e("s_add_u32 s25, s24, 4096")
    for i in range(8):
        a.e(f"buffer_store_dwordx4 {vr(O+4*i)}, v4, s[12:15], s{24+(i>>2)} offen offset:{(i&3)*1024}")
    a.e("s_endpgm")
    a.label(f"L_{name}_ge")
    ACC = 96
    for k in range(4):
        for jn in range(2):
            c = "0" if k == 0 else vr(ACC + 16 * jn, 16)
            a.e(f"v_mfma_f32_32x32x16_bf16 {vr(ACC+16*jn,16)}, {vr(O+(k*2+jn)*4)}, {vr(80+4*k)}, {c}")
    a.e("v_lshlrev_b32 v4, 4, v1")
    a.e("s_lshl_b32 s24, s20, 13")
    a.e("v_add_u32 v7, s24, v4")
    a.e("s_nop 15")
    for i in range(8):
        a.e(f"ds_write_b128 v7, {vr(ACC+4*i)} offset:{i*1024}")
    a.e("s_waitcnt lgkmcnt(0)")
    a.e("s_barrier")
    a.e("s_lshl_b32 s24, s20, 10")
    a.e("v_add_u32 v7, s24, v4")
    for src in range(4):
        for jn in range(2):
            a.e(f"ds_read_b128 {vr(16+(src*2+jn)*4)}, v7 offset:{src*8192 + jn*4096}")
    a.e("s_mov_b32 s14, 16384")
    a.e("v_lshlrev_b32 v8, 10, v3")
    a.e("v_lshl_add_u32 v8, v2, 5, v8")
    a.e("s_lshl_b32 s24, s22, 8")
    a.e("s_lshl_b32 s25, s20, 6")
    a.e("s_add_u32 s24, s24, s25")
    a.e("s_mov_b32 s34, 0xffff0000")
    a.e(f"s_mov_b32 s35, {f32hex(C2)}")
    a.e("s_waitcnt lgkmcnt(0)")
    for r in range(8):
        for src in range(1, 4):
            a.e(f"v_add_f32 v{16+r}, v{16+r}, v{16+src*8+r}")
    for i in range(4):
        a.e(f"v_cvt_pk_bf16_f32 v{48+i}, v{16+i}, v{20+i}")
    for i in range(4):
        a.e(f"v_lshlrev_b32 v{56+2*i}, 16, v{48+i}")
        a.e(f"v_and_b32 v{57+2*i}, s34, v{48+i}")
    for r in range(8):
        a.e(f"v_mul_f32 v{56+r}, s35, v{56+r}")
    a.e(f"buffer_store_dwordx4 {vr(56)}, v8, s[12:15], s24 offen")
    a.e(f"buffer_store_dwordx4 {vr(60)}, v8, s[12:15], s24 offen offset:16")
    for r in range(8):
        a.e(f"v_exp_f32 v{64+r}, v{56+r}")
    a.e("v_max3_f32 v72, |v56|, |v57|, |v58|")
    a.e("v_max3_f32 v72, |v59|, |v60|, v72")
    a.e("v_max3_f32 v72, |v61|, |v62|, v72")
    a.e("v_max_f32 v72, |v63|, v72")
    add64(a, 12, 12, 16384)
    a.e(f"v_cmp_lt_f32 vcc, {f32hex(RANGE)}, v72")
    a.e(f"buffer_store_dwordx4 {vr(64)}, v8, s[12:15], s24 offen")
    a.e(f"buffer_store_dwordx4 {vr(68)}, v8, s[12:15], s24 offen offset:16")
    add64(a, 12, 12, 16384)
    a.e("s_or_b32 s26, vcc_lo, vcc_hi")
    a.e("s_lshr_b32 s24, s24, 4")
    a.e("v_mov_b32 v73, s26")
    a.e("v_mov_b32 v74, 0")
    a.e("buffer_store_dword v73, v74, s[12:15], s24 offen")
    a.e("s_endpgm")


def joint_kernel(name):
    a = Asm()
    NWG = 250
    STAMP = "stamp" in EXP
    FP = 528
    F_B, GE_B, J_B = 49152, 32768, 0
    LDS = F_B + 32 * FP
    sF, sW, sO, sG = 8, 12, 16, 40
    sWv, sW4, sCnt = 20, 21, 22
    sSt = 64
    vL = 255
    NTO = os.environ.get("NTO", " nt")

    def stamp(i, fence=True):
        if STAMP:
            a.e(f"s_memtime s[{sSt+2*i}:{sSt+2*i+1}]")
            if fence:
                a.e("s_waitcnt lgkmcnt(0)")
                a.lg = []

    def rstamp(i):
        if STAMP:
            a.e(f"s_memrealtime s[{sSt+2*i}:{sSt+2*i+1}]")
            a.e("s_waitcnt lgkmcnt(0)")
            a.lg = []

    a.label(name)
    a.e(f"s_cmp_ge_u32 s2, {NWG}")
    a.e(f"s_cbranch_scc1 L_{name}_done")
    if STAMP:
        for i in range(28):
            a.e(f"s_mov_b32 s{sSt+i}, 0")
        a.e(f"s_memrealtime s[{sSt+20}:{sSt+21}]")
    stamp(0, False)
    a.e("s_load_dwordx2 s[28:29], s[0:1], 56")
    a.e("s_load_dwordx2 s[30:31], s[0:1], 72")
    a.e(f"v_readfirstlane_b32 s{sWv}, v0")
    a.e(f"s_lshr_b32 s{sWv}, s{sWv}, 6")
    a.e(f"s_and_b32 s{sW4}, s{sWv}, 3")
    a.e(f"v_and_b32 v{vL}, 63, v0")
    a.e(f"v_lshlrev_b32 v254, 4, v{vL}")
    if "cw" in EXP:
        code_warm(a, name, 244, 2)
    a.e(f"s_cmp_ge_u32 s{sWv}, 4")
    a.e(f"s_mov_b32 s33, {WS_WO}")
    a.e(f"s_cselect_b32 s33, {WS_WF}, s33")
    a.e(f"s_lshl_b32 s36, s{sW4}, 15")
    a.e("s_add_u32 s33, s33, s36")
    a.e(f"s_mov_b32 s{sW+2}, 32768")
    a.e(f"s_mov_b32 s{sW+3}, 0x00020000")
    a.e("s_lshl_b32 s35, s2, 14")
    a.e(f"s_add_u32 s35, s35, {WS_FP}")
    a.e(f"s_mov_b32 s{sF+2}, {WS_FPS + 16384}")
    a.e(f"s_mov_b32 s{sF+3}, 0x00020000")
    a.e("s_waitcnt lgkmcnt(0)")
    add64(a, sW, 30, "s33")
    W = 0

    def wload(ks):
        if ks % 2 == 0:
            a.e(f"s_mov_b32 s36, {ks*2048}")
        for jn in range(2):
            i = ks * 2 + jn
            a.vmem(f"buffer_load_dwordx4 {vr(W+4*i)}, v254, {sr(sW)}, s36 offen offset:{(i%4)*1024}", ("W", ks))

    a.e(f"s_cmp_ge_u32 s{sWv}, 4")
    a.e(f"s_cbranch_scc1 L_{name}_T")

    add64(a, sF, 30, "s35")
    X = 128
    a.e(f"s_lshl_b32 s36, s{sWv}, 12")
    a.e(f"s_add_u32 s37, s36, {WS_FPS}")
    for r2 in range(4):
        a.vmem(f"buffer_load_dwordx4 {vr(X+4*r2)}, v254, {sr(sF)}, s36 offen offset:{r2*1024}", ("F", r2))
        a.vmem(f"buffer_load_dwordx4 {vr(X+16+4*r2)}, v254, {sr(sF)}, s37 offen offset:{r2*1024}", ("F", r2))
    a.e("s_cmp_ge_u32 s2, 125")
    a.e("s_cselect_b32 s34, 8192, 0")
    a.e(f"s_add_u32 s34, s34, {WS_GE}")
    add64(a, sG, 30, "s34")
    a.e(f"s_mov_b32 s{sG+2}, {16384 + 8192}")
    a.e(f"s_mov_b32 s{sG+3}, 0x00020000")
    a.e(f"s_lshl_b32 s38, s{sWv}, 11")
    a.e("s_add_u32 s39, s38, 16384")
    for i in range(4):
        a.vmem(f"buffer_load_dwordx4 {vr(X+64+4*i)}, v254, {sr(sG)}, s{38+(i>>1)} offen offset:{(i&1)*1024}", "G")
    stamp(1)
    if "nojb0" not in EXP:
        a.e("s_barrier")
    stamp(5)
    a.e("s_lshl_b32 s35, s2, 17")
    add64(a, sO, 28, "s35")
    a.e(f"s_mov_b32 s{sO+2}, 131072")
    a.e(f"s_mov_b32 s{sO+3}, 0x00020000")
    k0 = -2.0 * 1.4426950408889634 * 0.7978845608028654
    a.e(f"s_mov_b32 s44, {f32hex(k0 * 0.044715)}")
    a.e(f"v_mov_b32 v253, {f32hex(k0)}")
    a.e(f"s_mul_i32 s36, s{sWv}, {8*FP}")
    a.e(f"v_lshrrev_b32 v252, 5, v{vL}")
    a.e("v_lshlrev_b32 v252, 4, v252")
    a.e("v_add3_u32 v252, v252, v254, s36")
    a.e("s_mov_b32 s45, 0xffff0000")
    a.e(f"v_add_u32 v251, s38, v254")
    T = 232
    a.e("s_mov_b32 s46, s44")
    a.e("s_mov_b32 s47, s44")
    a.e("s_mov_b32 s48, 1.0")
    a.e("s_mov_b32 s49, 1.0")
    a.e("v_mov_b32 v248, v253")
    a.e("v_mov_b32 v249, v253")
    stamp(6)
    a.e(f"s_mov_b32 s{sCnt}, 2")
    a.label(f"L_{name}_floop")
    p2 = lambda x: vr(x, 2)
    for r2 in range(2):
        a.e(f"s_waitcnt vmcnt({10 - 2*r2})")
        ys = [X + 40 + i for i in range(8)]
        ts = [T + i for i in range(8)]
        ev = list(zip(ys[::2], ts[::2]))
        for i in range(4):
            a.e(f"v_lshlrev_b32 v{ys[2*i]}, 16, v{X+4*r2+i}")
            a.e(f"v_and_b32 v{ys[2*i+1]}, s45, v{X+4*r2+i}")
            a.e(f"v_lshlrev_b32 v{ts[2*i]}, 16, v{X+16+4*r2+i}")
            a.e(f"v_and_b32 v{ts[2*i+1]}, s45, v{X+16+4*r2+i}")
        for y, t in ev:
            a.e(f"v_pk_add_f32 {p2(y)}, {p2(y)}, {p2(t)}")
        for y, t in ev:
            a.e(f"v_pk_mul_f32 {p2(t)}, {p2(y)}, {p2(y)}")
        for y, t in ev:
            a.e(f"v_pk_fma_f32 {p2(t)}, {p2(t)}, s[46:47], v[248:249]")
        for y, t in ev:
            a.e(f"v_pk_mul_f32 {p2(t)}, {p2(t)}, {p2(y)}")
        for t in ts:
            a.e(f"v_exp_f32 v{t}, v{t}")
        for y, t in ev:
            a.e(f"v_pk_add_f32 {p2(t)}, {p2(t)}, s[48:49]")
        for t in ts:
            a.e(f"v_rcp_f32 v{t}, v{t}")
        for y, t in ev:
            a.e(f"v_pk_mul_f32 {p2(y)}, {p2(y)}, {p2(t)}")
        for i in range(4):
            a.e(f"v_cvt_pk_bf16_f32 v{240+4*r2+i}, v{ys[2*i]}, v{ys[2*i+1]}")
        a.e(f"ds_write_b128 v252, {vr(240+4*r2)} offset:{F_B + 2*r2*FP}")
    a.e("s_waitcnt vmcnt(4)")
    for i in range(0, 8, 2):
        for b in (X, X + 16):
            a.e(f"v_pk_mov_b32 {vr(b+i,2)}, {vr(b+8+i,2)}, {vr(b+8+i,2)} op_sel:[0,1]")
    a.e(f"v_add_u32 v252, {4*FP}, v252")
    a.e(f"s_sub_u32 s{sCnt}, s{sCnt}, 1")
    a.e(f"s_cmp_lg_u32 s{sCnt}, 0")
    a.e(f"s_cbranch_scc1 L_{name}_floop")
    a.wait(vm=("G",))
    for i in range(4):
        a.lds(f"ds_write_b128 v251, {vr(X+64+4*i)} offset:{GE_B + (i>>1)*8192 + (i&1)*1024}", "W")
    a.wait(lg_all=True)
    stamp(2)
    a.e("s_barrier")
    if os.environ.get("NPRE", "16") != "16":
        a.e("s_barrier")
    stamp(3)
    for ks in range(16):
        wload(ks)
    ACC = (128, 160)
    JR = 192
    PKR = 224
    vO = 250
    a.e(f"v_lshrrev_b32 v{vO}, 5, v{vL}")
    a.e(f"v_lshlrev_b32 v{vO}, 14, v{vO}")
    a.e(f"v_and_b32 v249, 31, v{vL}")
    a.e(f"v_lshl_add_u32 v{vO}, v249, 2, v{vO}")
    a.e(f"s_lshl_b32 s36, s{sW4}, 7")
    a.e(f"v_add_u32 v{vO}, s36, v{vO}")
    for r in range(16):
        a.e(f"s_mov_b32 s{44+r}, {(8*(r>>2) + (r&3)) * 4096}")

    def out_ops(par):
        ops = []
        ac = ACC[par]
        for r in range(16):
            ops.append(f"v_cvt_pk_bf16_f32 v{PKR+r}, v{ac+r}, v{ac+16+r}")
            ops.append(f"buffer_store_dword v{PKR+r}, v{vO}, {sr(sO)}, s{44+r} offen{NTO}")
        ops.append(f"v_add_u32 v{vO}, 512, v{vO}")
        return ops

    PD = int(os.environ.get('JPD', '4'))

    def jread(par, ks):
        a.lds(f"ds_read_b128 {vr(JR+4*(ks%8))}, v254 offset:{J_B + par*16384 + ks*1024}", ("J", par, ks))

    def ustep(par, side):
        for ks in range(16):
            if ks + PD == 16:
                a.wait(lg_all=True)
                a.e("s_barrier")
            a.wait(lg=(("J", par, ks),), vm=(("W", ks),))
            for jn in range(2):
                ac = ACC[par] + 16 * jn
                c = "0" if ks == 0 else vr(ac, 16)
                a.e(f"v_mfma_f32_32x32x16_bf16 {vr(ac,16)}, {vr(JR+4*(ks%8))}, {vr(W+(ks*2+jn)*4)}, {c}")
                if jn == 0:
                    if ks + PD < 16:
                        jread(par, ks + PD)
                    else:
                        jread(1 - par, ks + PD - 16)
                if ks >= 4:
                    for _ in range(2 if ks < 9 else 1):
                        if side:
                            a.e(side.pop(0))
        assert not side

    stamp(4)
    a.e("s_barrier")
    for ks in range(PD):
        jread(0, ks)
    ustep(0, [])
    lg0 = list(a.lg)
    stamp(7)
    rstamp(12)
    a.lg = list(lg0)
    a.e(f"s_mov_b32 s{sCnt}, 4")
    a.c("ALIGN ON")
    a.label(f"L_{name}_oloop")
    ustep(1, out_ops(0))
    a.e(f"s_sub_u32 s{sCnt}, s{sCnt}, 1")
    a.e(f"s_cmp_eq_u32 s{sCnt}, 0")
    a.e(f"s_cbranch_scc1 L_{name}_oend")
    ustep(0, out_ops(1))
    assert a.lg == lg0
    a.e("s_waitcnt vmcnt(24)")
    a.e(f"s_branch L_{name}_oloop")
    a.c("ALIGN OFF")
    a.label(f"L_{name}_oend")
    stamp(8, False)
    rstamp(13)
    a.e("s_nop 15")
    for op in out_ops(1):
        a.e(op)
    a.e(f"s_branch L_{name}_fin")

    a.label(f"L_{name}_T")
    a.vm, a.lg = [], []
    a.e("s_setprio 3")
    if "wwarm" in EXP:
        add64(a, sG, 30, WS_WF)
        a.e(f"s_mov_b32 s{sG+2}, 262144")
        a.e(f"s_mov_b32 s{sG+3}, 0x00020000")
        a.e("s_lshr_b32 s36, s2, 3")
        a.e("s_lshl_b32 s36, s36, 13")
        a.e(f"s_lshl_b32 s37, s{sW4}, 11")
        a.e("s_add_u32 s36, s36, s37")
        a.e(f"v_lshlrev_b32 v247, 5, v{vL}")
        a.vmem(f"buffer_load_dword v246, v247, {sr(sG)}, s36 offen", "P")
    add64(a, 36, 30, WS_GE + 32768)
    a.e("s_load_dwordx16 s[44:59], s[36:37], 0")
    FE = 128
    FR = 160
    GEC = 192
    PK = 224
    vF, vG, vJ = 250, 249, 248
    a.e(f"v_and_b32 v{vF}, 31, v{vL}")
    a.e(f"v_mul_u32_u24 v{vF}, {FP}, v{vF}")
    a.e(f"v_lshrrev_b32 v{vG}, 5, v{vL}")
    a.e(f"v_lshl_add_u32 v{vF}, v{vG}, 4, v{vF}")
    a.e(f"v_lshlrev_b32 v{vG}, 5, v{vG}")
    a.e(f"s_lshl_b32 s36, s{sW4}, 8")
    a.e(f"v_add_u32 v{vG}, s36, v{vG}")
    a.e(f"s_lshl_b32 s36, s{sW4}, 12")
    a.e(f"v_add_u32 v{vJ}, s36, v254")
    NPRE = int(os.environ.get("NPRE", "16"))
    JB = int(os.environ.get("JB", "0"))
    if JB == 0 and "nojb0" not in EXP:
        a.e("s_barrier")
    if "tst" in EXP:
        stamp(1)
    for ks in range(NPRE):
        wload(ks)
        if ks + 1 == JB:
            a.e("s_barrier")
        if "tst" in EXP and ks in (3, 7):
            stamp(6 + (ks >> 2))
    a.e("s_waitcnt lgkmcnt(0)")
    a.e(f"s_setprio {os.environ.get('PT', '0')}")
    for i in range(1, 16):
        a.e(f"s_or_b32 s44, s44, s{44+i}")
    stamp(2)
    a.e("s_barrier")
    stamp(3)
    for ks in range(8):
        a.lds(f"ds_read_b128 {vr(FR+4*ks)}, v{vF} offset:{F_B + ks*32}", ("A", ks))
    nxt = NPRE
    for ks in range(16):
        for _ in range(2):
            if nxt < 16:
                wload(nxt)
                nxt += 1
                if nxt == 16:
                    a.e("s_barrier")
        a.wait(lg=(("A", ks),), vm=(("W", ks),))
        for jn in range(2):
            c = "0" if ks == 0 else vr(FE + 16 * jn, 16)
            a.e(f"v_mfma_f32_32x32x16_bf16 {vr(FE+16*jn,16)}, {vr(W+(ks*2+jn)*4)}, {vr(FR+4*(ks%8))}, {c}")
        if ks + 8 < 16:
            a.lds(f"ds_read_b128 {vr(FR+4*(ks%8))}, v{vF} offset:{F_B + (ks+8)*32}", ("A", ks + 8))
    a.e("s_mov_b32 s46, 0xffff0000")
    a.e(f"s_mov_b32 s45, {f32hex(C2)}")
    a.e("s_nop 10")
    stamp(4)
    FS = 0
    for r in range(16):
        a.e(f"v_cvt_pk_bf16_f32 v{PK+r}, v{FE+r}, v{FE+16+r}")
    for r in range(16):
        a.e(f"v_lshlrev_b32 v{FS+2*r}, 16, v{PK+r}")
        a.e(f"v_and_b32 v{FS+2*r+1}, s46, v{PK+r}")
    a.e("s_mov_b32 s48, s45")
    a.e("s_mov_b32 s49, s45")
    for r in range(0, 32, 2):
        a.e(f"v_pk_mul_f32 {vr(FS+r,2)}, {vr(FS+r,2)}, s[48:49]")
    a.e(f"v_max_f32 v64, |v{FS}|, |v{FS+1}|")
    for r in range(1, 16):
        a.e(f"v_max3_f32 v64, |v{FS+2*r}|, |v{FS+2*r+1}|, v64")
    a.e(f"v_cmp_lt_f32 vcc, {f32hex(RANGE)}, v64")
    a.e(f"s_mov_b32 s{sCnt}, 4")
    a.e("s_or_b32 s44, s44, vcc_lo")
    a.e("s_or_b32 s44, s44, vcc_hi")
    a.e("s_cmp_lg_u32 s44, 0")
    if "slow" in EXP:
        a.e(f"s_branch L_{name}_tslow")
    a.e(f"s_cbranch_scc1 L_{name}_tslow")
    G2 = 32

    def geread(fast):
        for k4 in range(4):
            for h in range(2):
                a.lds(f"ds_read_b128 {vr(GEC+8*k4+4*h)}, v{vG} offset:{GE_B + fast*8192 + k4*64 + h*16}", ("G", k4))
        a.e(f"v_add_u32 v{vG}, 1024, v{vG}")

    def tstep(fast, par):
        for k4 in range(4):
            a.wait(lg=(("G", k4),))
            xs = [G2 + 8 * k4 + i for i in range(8)]
            for i, x in enumerate(xs):
                if fast:
                    a.e(f"v_fma_f32 v{x}, v{GEC+8*k4+i}, v{FS+8*k4+i}, 1.0")
                else:
                    a.e(f"v_add_f32 v{x}, v{GEC+8*k4+i}, v{FS+8*k4+i}")
            if k4 == 3:
                geread(fast)
            if not fast:
                for x in xs:
                    a.e(f"v_exp_f32 v{x}, v{x}")
                for x in xs:
                    a.e(f"v_add_f32 v{x}, 1.0, v{x}")
            for x in xs:
                a.e(f"v_rcp_f32 v{x}, v{x}")
            for x in xs:
                a.e(f"v_fma_f32 v{x}, v{x}, -2.0, 1.0")
            for i in range(4):
                a.e(f"v_cvt_pk_bf16_f32 v{PK+4*k4+i}, v{xs[2*i]}, v{xs[2*i+1]}")
            a.lds(f"ds_write_b128 v{vJ}, {vr(PK+4*k4)} offset:{J_B + par*16384 + k4*1024}", "W")
        a.wait(lg_all=True)
        a.e("s_barrier")

    for fast in (1, 0):
        if not fast:
            a.label(f"L_{name}_tslow")
        a.lg = []
        geread(fast)
        if fast:
            for r in range(32):
                a.e(f"v_exp_f32 v{FS+r}, v{FS+r}")
        a.wait(lg_all=True)
        stamp(5)
        a.label(f"L_{name}_tloop{fast}")
        tstep(fast, 0)
        tstep(fast, 1)
        a.e(f"s_sub_u32 s{sCnt}, s{sCnt}, 1")
        a.e(f"s_cmp_lg_u32 s{sCnt}, 0")
        a.e(f"s_cbranch_scc1 L_{name}_tloop{fast}")
        stamp(8)
        if fast:
            a.e(f"s_branch L_{name}_fin")
    a.label(f"L_{name}_fin")
    if STAMP:
        a.e("s_waitcnt vmcnt(0)")
        stamp(9, False)
        a.e(f"s_memrealtime s[{sSt+22}:{sSt+23}]")
        a.e(f"s_cmp_lg_u32 s{sWv}, {os.environ.get('SWJ', '0')}")
        a.e(f"s_cbranch_scc1 L_{name}_done")
        a.e("s_lshl_b32 s36, s2, 7")
        a.e(f"s_add_u32 s36, s36, {WS_STAMP + 2*0x10000}")
        add64(a, 40, 30, "s36")
        a.e("s_mov_b32 s42, 128")
        a.e("s_mov_b32 s43, 0x00020000")
        a.e("s_waitcnt lgkmcnt(0)")
        a.e("v_mov_b32 v8, 0")
        for i in range(28):
            a.e(f"v_mov_b32 v0, s{sSt+i}")
            a.e(f"buffer_store_dword v0, v8, s[40:43], 0 offen offset:{4*i}")
    a.label(f"L_{name}_done")
    a.e("s_endpgm")
    return a.L, LDS, 256


def joint_kernels(ks):
    return ks + [("joint_kernel", 250, 512) + joint_kernel("joint_kernel")]
```

```python
import os
import sys

from asmlib import Asm, vr, sr, kd, f32hex, align8
from gen5_joint import prep_small, joint_kernels

EXP = os.environ.get("EXP", "").split(",")

WS_W1P = 0x0000000
WS_W2P = 0x0900000
WS_H = 0x1200000
WS_FP = 0x1A00000
WS_FPS = 0x800000
WS_WF = 0x2A00000
WS_STAMP = 0x3000000

CHUNKB = 7 * 8192
FB = 1024
BB = 8 * FB
SEQB = 2 * BB
FB6 = 1088
BB6 = 8 * FB6
SPB = 6 * SEQB + 2 * BB6
TOPB = SPB + 6144
OOB = 0x7f000000
NTW, NTH, NTF = ({"0": "", "1": " nt", "2": " sc1", "3": " sc0 sc1"}[c] for c in os.environ.get("NT", "222"))


def add64(a, d, lo, off):
    a.e(f"s_add_u32 s{d}, s{lo}, {off}")
    a.e(f"s_addc_u32 s{d+1}, s{lo+1}, 0")


def eval_ops(c, t):
    e1, o1, e2, o2 = t
    ops = [f"v_add_f32 v{e1}, v{c[0]}, v{c[2]}",
           f"v_add_f32 v{o1}, v{c[1]}, v{c[3]}",
           f"v_fma_f32 v{e2}, v{c[2]}, 4.0, v{c[0]}",
           f"v_fma_f32 v{o2}, v{c[3]}, 4.0, v{c[1]}",
           f"v_add_f32 v{c[1]}, v{e1}, v{o1}",
           f"v_sub_f32 v{c[2]}, v{e1}, v{o1}",
           f"v_fma_f32 v{c[3]}, v{o2}, 2.0, v{e2}",
           f"v_fma_f32 v{e2}, v{o2}, -2.0, v{e2}",
           f"v_fmamk_f32 v{e1}, v{c[0]}, {f32hex(15.0)}, v{e2}",
           f"v_fmamk_f32 v{e1}, v{o1}, {f32hex(10.0)}, v{e1}"]
    return ops, [c[1], c[2], c[3], e2, e1]


def wprep(a, karg, wsoff, ws_loaded, barrier=False, extra=None):
    a.vm, a.lg = [], []
    a.e(f"s_load_dwordx2 s[8:9], s[0:1], {karg}")
    if not ws_loaded:
        a.e("s_load_dwordx2 s[30:31], s[0:1], 72")
    a.e("s_lshr_b32 s22, s20, 8")
    a.e("s_bfe_u32 s23, s20, 0x40004")
    a.e("s_bfe_u32 s24, s20, 0x30001")
    a.e("s_and_b32 s21, s20, 1")
    a.e("v_lshrrev_b32 v2, 4, v1")
    a.e("v_lshlrev_b32 v2, 12, v2")
    a.e("v_and_b32 v3, 15, v1")
    a.e("v_lshl_add_u32 v2, v3, 2, v2")
    a.e("s_lshl_b32 s26, s22, 3")
    a.e("s_lshr_b32 s27, s23, 3")
    a.e("s_add_u32 s26, s26, s27")
    a.e("s_lshl_b32 s26, s26, 17")
    a.e("s_and_b32 s27, s23, 7")
    a.e("s_lshl_b32 s27, s27, 14")
    a.e("s_add_u32 s26, s26, s27")
    a.e("s_lshl_b32 s27, s24, 6")
    a.e("s_add_u32 s26, s26, s27")
    a.e(f"s_mov_b32 s10, {31*131072}")
    a.e("s_mov_b32 s11, 0x00020000")
    for p in range(1, 4):
        a.e(f"s_add_u32 s{36+p}, s26, {2*131072*p}")
    a.e("s_waitcnt lgkmcnt(0)")
    R = 16
    for e2 in range(4):
        for p in range(4):
            for e in (2 * e2, 2 * e2 + 1):
                a.vmem(f"buffer_load_dword v{R+p*8+e}, v2, s[8:11], s{36+p if p else 26} offen offset:{e*512}", ("L", e2))
    add64(a, 12, 30, wsoff)
    a.e(f"s_mov_b32 s14, {8*16*CHUNKB}")
    a.e("s_mov_b32 s15, 0x00020000")
    a.e("v_lshlrev_b32 v4, 4, v1")
    a.e("s_lshl_b32 s27, s24, 4")
    a.e("s_add_u32 s27, s27, s23")
    a.e(f"s_mul_i32 s27, s27, {CHUNKB}")
    a.e("s_lshl_b32 s28, s22, 11")
    a.e("s_add_u32 s27, s27, s28")
    a.e("s_lshl_b32 s28, s21, 10")
    a.e("s_add_u32 s27, s27, s28")
    a.e("s_cmp_eq_u32 s21, 0")
    a.e("s_mov_b32 s32, 0x07060302")
    a.e("s_cselect_b32 s32, 0x05040100, s32")
    a.e("s_mov_b32 s33, 0x03020c0c")
    a.e("s_cselect_b32 s33, 0x01000c0c, s33")
    a.e(f"s_mov_b32 s35, {f32hex(1.0/24)}")
    a.e(f"s_mov_b32 s36, {f32hex(1.0/72)}")
    if barrier:
        barrier()
    OUT = 48
    T = 76
    scale = ("0.5", "0.5", "s35", "s35", "s36")
    for e2 in range(4):
        a.wait(vm=(("L", e2),))
        if extra and e2 == int(os.environ.get("XT", "3")):
            a.vm += ["T"] * (extra() or 2)
        for p, seq in ((0, 6), (3, 0)):
            a.e(f"v_perm_b32 v{OUT+seq*4+e2}, v{R+p*8+2*e2+1}, v{R+p*8+2*e2}, s32")
        res, lists = [], []
        for e in range(2):
            cf = [T + e * 8 + i for i in range(4)]
            ops = [f"v_perm_b32 v{cf[i]}, v{cf[i]}, v{R + (3 - i) * 8 + 2 * e2 + e}, s33" for i in range(4)]
            o, rr = eval_ops(cf, [T + e * 8 + 4 + i for i in range(4)])
            ops += o + [f"v_mul_f32 v{r}, {sc}, v{r}" for r, sc in zip(rr, scale)]
            res.append(rr)
            lists.append(ops)
        for x, y in zip(*lists):
            a.e(x)
            a.e(y)
        for i in range(5):
            a.e(f"v_cvt_pk_bf16_f32 v{OUT+(1+i)*4+e2}, v{res[0][i]}, v{res[1][i]}")
    for seq in (6, 0, 1, 2, 3, 4, 5):
        a.e(f"s_add_u32 s28, s27, {seq*8192}")
        a.e(f"buffer_store_dwordx4 {vr(OUT+seq*4)}, v4, s[12:15], s28 offen{NTW}")


def prep_kernel(name):
    a = Asm()
    NWG = 268
    a.label(name)
    a.e(f"s_cmp_ge_u32 s2, {NWG}")
    a.e(f"s_cbranch_scc1 L_{name}_done")
    if "nocw" not in EXP:
        a.e("s_getpc_b64 s[62:63]")
        a.label(f"L_{name}_pc")
        a.e("s_and_b32 s3, s2, 8")
        a.e("s_lshl_b32 s3, s3, 12")
        a.e("v_lshlrev_b32 v120, 7, v0")
        a.e("v_add_u32 v120, s3, v120")
        a.e(f"v_min_u32 v120, 0x7fc0de00, v120")
        a.e("v_mov_b32 v121, s63")
        a.e("v_add_co_u32 v120, vcc, s62, v120")
        a.e("v_addc_co_u32 v121, vcc, 0, v121, vcc")
        a.e("global_load_dword v122, v[120:121], off")
    a.e("s_cmp_lt_u32 s2, 12")
    a.e(f"s_cbranch_scc1 L_{name}_small")
    a.e("s_sub_u32 s2, s2, 12")
    if "stamp" in EXP:
        a.e("s_memrealtime s[60:61]")
    a.e("v_readfirstlane_b32 s20, v0")
    a.e("s_lshr_b32 s20, s20, 6")
    a.e("s_lshl_b32 s21, s2, 2")
    a.e("s_add_u32 s20, s20, s21")
    a.e("v_and_b32 v1, 63, v0")
    touch = None
    if "tlb" in EXP or "w2t" in EXP:
        a.e("s_load_dwordx2 s[44:45], s[0:1], 0")
        a.e("s_load_dwordx2 s[48:49], s[0:1], 16")
        a.e("s_load_dwordx2 s[52:53], s[0:1], 56")
        a.e("s_load_dwordx2 s[56:57], s[0:1], 72")
        a.e("v_lshlrev_b32 v5, 20, v1")
        a.e("v_lshlrev_b32 v6, 6, v1")
        a.e("s_lshl_b32 s43, s20, 12")
        for b, n in ((44, 2*16000*512), (48, 31*131072), (52, 64000*512), (56, 0x2B00000)):
            a.e(f"s_mov_b32 s{b+2}, {n}")
            a.e(f"s_mov_b32 s{b+3}, 0x00020000")

        def touch():
            n = 0
            if "tlb" in EXP:
                for b in (44, 48, 52, 56):
                    a.e(f"buffer_load_dword v7, v5, s[{b}:{b+3}], 0 offen")
                    n += 1
            if "w2t" in EXP:
                a.e("buffer_load_dword v8, v6, s[48:51], s43 offen")
                n += 1
            return n
    if "xt" in EXP:
        a.e("s_load_dwordx2 s[44:45], s[0:1], 0")
        a.e("s_lshl_b32 s43, s20, 14")
        a.e("v_lshlrev_b32 v5, 7, v1")
        a.e("v_add_u32 v6, 8192, v5")
        a.e(f"s_mov_b32 s46, {2*16000*512}")
        a.e("s_mov_b32 s47, 0x00020000")

        def touch():
            a.e("buffer_load_dword v7, v5, s[44:47], s43 offen")
            a.e("buffer_load_dword v8, v6, s[44:47], s43 offen")
    wprep(a, 8, WS_W1P, False, extra=touch)
    if "stamp" in EXP:
        a.e("s_waitcnt vmcnt(0)")
        a.e("s_memrealtime s[62:63]")
        a.e("s_lshl_b32 s36, s2, 7")
        a.e(f"s_add_u32 s36, s36, {WS_STAMP + 3*0x10000}")
        add64(a, 40, 30, "s36")
        a.e("s_mov_b32 s42, 128")
        a.e("s_mov_b32 s43, 0x00020000")
        a.e("s_waitcnt lgkmcnt(0)")
        a.e("v_mov_b32 v8, 0")
        a.e("v_mov_b32 v0, 1")
        a.e("buffer_store_dword v0, v8, s[40:43], 0 offen")
        for i in range(4):
            a.e(f"v_mov_b32 v0, s{60+i}")
            a.e(f"buffer_store_dword v0, v8, s[40:43], 0 offen offset:{80+4*i}")
    a.label(f"L_{name}_done")
    a.e("s_endpgm")
    prep_small(a, name)
    return a.L, 32768, 128


def conv_kernel(name, cfg):
    TIN, TOUT = cfg["tin"], cfg["tout"]
    N = cfg["nchunk"]
    KSPLIT = cfg["ksplit"]
    NWG = 256
    STAMP = "stamp" in EXP
    sX, sW, sO = 8, 12, 16
    sWv, sT0, sCnt, sBo, sXo, sMask = 20, 21, 22, 23, 24, 25
    sBo2 = 26
    sK, sCb, sH = 28, 29, 32
    sSt = 60
    vL = 127
    vU, vS_, vI, vKG = 8, 9, 10, 11

    a = Asm()
    a.label(name)
    a.e(f"s_cmp_ge_u32 s2, {NWG}")
    a.e(f"s_cbranch_scc1 L_{name}_done")

    def stamp(i, fence=True):
        if STAMP:
            a.e(f"s_memtime s[{sSt+2*i}:{sSt+2*i+1}]")
            if fence:
                a.e("s_waitcnt lgkmcnt(0)")
                a.lg = []

    def rstamp(i):
        if STAMP:
            a.e(f"s_memrealtime s[{sSt+2*i}:{sSt+2*i+1}]")
            a.e("s_waitcnt lgkmcnt(0)")
            a.lg = []
    if STAMP:
        for i in range(28):
            a.e(f"s_mov_b32 s{sSt+i}, 0")
        a.e(f"s_memrealtime s[{sSt+20}:{sSt+21}]")
    stamp(0, False)
    a.e(f"s_load_dwordx2 s[4:5], s[0:1], {cfg['in_arg']}")
    a.e("s_load_dwordx2 s[30:31], s[0:1], 72")
    a.e(f"v_readfirstlane_b32 s{sWv}, v0")
    a.e(f"s_lshr_b32 s{sWv}, s{sWv}, 6")
    XL = int(os.environ.get("XL", "3"))
    a.e(f"s_and_b32 s36, s2, {(8 >> XL) - 1}")
    a.e(f"s_lshl_b32 s36, s36, {XL}")
    a.e(f"s_bfe_u32 s37, s2, {(XL << 16) | 3}")
    a.e(f"s_or_b32 s{sCb}, s36, s37")
    a.e(f"s_bfe_u32 s36, s2, {(XL << 16) | (3 - XL)}")
    a.e(f"s_lshl_b32 s36, s36, {5 - XL}")
    a.e(f"s_lshr_b32 s37, s2, {3 + XL}")
    a.e("s_or_b32 s36, s36, s37")
    if KSPLIT:
        a.e("s_lshr_b32 s33, s36, 4")
        a.e("s_and_b32 s34, s36, 7")
        a.e("s_bfe_u32 s35, s36, 0x10003")
    else:
        a.e("s_mov_b32 s33, 0")
        a.e("s_and_b32 s34, s36, 15")
        a.e("s_lshr_b32 s35, s36, 4")
    a.e(f"s_mul_i32 s{sT0}, s34, 500")
    a.e(f"s_and_b32 s{sH}, s{sWv}, 3")
    a.e(f"v_and_b32 v{vL}, 63, v0")
    a.e(f"v_lshrrev_b32 v5, 2, v{vL}")
    a.e(f"v_and_b32 v6, 3, v{vL}")
    a.e("v_lshlrev_b32 v7, 15, v5")
    a.e("v_lshl_add_u32 v7, v6, 4, v7")
    a.e(f"s_lshl_b32 s41, s{sT0}, 10")
    a.e("s_lshl_b32 s37, s33, 9")
    a.e("s_add_u32 s41, s41, s37")
    a.e("s_sub_u32 s41, s41, 7680")
    a.e(f"s_and_b32 s42, s{sWv}, 7")
    a.e("s_lshl_b32 s37, s42, 12")
    a.e("s_add_u32 s37, s37, s41")
    a.e("v_add_u32 v7, s37, v7")
    a.e(f"s_mul_i32 s36, s35, {TIN*512}")
    if cfg["in_off"]:
        a.e(f"s_add_u32 s36, s36, {cfg['in_off']}")
    a.e(f"s_mov_b32 s{sX+2}, {TIN*512}")
    a.e(f"s_mov_b32 s{sX+3}, 0x00020000")
    a.e(f"s_mov_b32 s{sMask}, 0xffff0000")
    a.e("s_waitcnt lgkmcnt(0)")
    stamp(1)
    add64(a, sX, 4, "s36")
    OB = 512

    def wsrd():
        a.e(f"s_lshl_b32 s36, s{sCb}, 4")
        a.e("s_lshl_b32 s37, s33, 3")
        a.e("s_add_u32 s36, s36, s37")
        a.e(f"s_mul_i32 s36, s36, {CHUNKB}")
        a.e(f"s_add_u32 s36, s36, {cfg['w_off']}")
        add64(a, sW, 30, "s36")
        a.e(f"s_mov_b32 s{sW+2}, {N*CHUNKB}")
        a.e(f"s_mov_b32 s{sW+3}, 0x00020000")

    def lds_throttle(need=1):
        if len(a.lg) + need > 15:
            a.e("s_waitcnt lgkmcnt(8)")
            a.lg = a.lg[-8:]

    def mf(acc, b, av):
        if "nomfma" not in EXP:
            a.e(f"v_mfma_f32_16x16x32_bf16 {vr(acc)}, {vr(b)}, {vr(av)}, {vr(acc)}")

    def steady(gen, per, strict=True):
        st = []
        for it in range(3):
            st.append(len(a.L))
            for pos in range(per):
                gen(per * it + pos, pos)
        st.append(len(a.L))
        bodies = [a.L[st[i]:st[i + 1]] for i in range(3)]
        if strict:
            assert bodies[1] == bodies[2], "loop not steady"
            assert bodies[0] == bodies[1], "loop entry not steady"
        del a.L[st[0]:]
        return bodies[1]

    a.e(f"s_cmp_ge_u32 s{sWv}, 8")
    a.e(f"s_cbranch_scc1 L_{name}_helper")

    ACC = 0
    vF, vA8, vD, vB = (120, 121), 122, (123, 124), 125
    vP = (116, 117, 118)
    vBZ = 119
    S, T, O = 96, 108, 64
    a.e(f"s_add_u32 s37, s41, {128*4096}")
    a.e(f"v_lshl_add_u32 v{T}, v{vL}, 4, s37")
    if "nob0" in EXP:
        for p in range(3):
            a.vmem(f"buffer_load_dwordx4 {vr(S+4*p)}, v{T}, {sr(sX)}, 0 offen offset:{p*1024}", "SP")
    wsrd()
    a.e(f"s_mul_i32 s36, s35, {TOUT*OB}")
    a.e(f"s_add_u32 s36, s36, {cfg['out_off']}")
    if KSPLIT:
        a.e(f"s_mul_i32 s37, s33, {WS_FPS}")
        a.e("s_add_u32 s36, s36, s37")
    add64(a, sO, 30, "s36")
    a.e(f"s_mov_b32 s{sO+2}, {TOUT*OB}")
    a.e(f"s_mov_b32 s{sO+3}, 0x00020000")
    a.e(f"v_and_b32 v{vI}, 15, v{vL}")
    a.e(f"v_lshrrev_b32 v{vKG}, 4, v{vL}")
    t = 16
    for d, sh in ((vU, 0), (vS_, 1)):
        a.e(f"v_add_u32 v{d}, {sh}, v{vI}")
        a.e(f"v_and_b32 v{t}, 4, v{d}")
        a.e(f"v_lshrrev_b32 v{t}, 1, v{t}")
        a.e(f"v_xor_b32 v{t}, v{vKG}, v{t}")
        a.e(f"v_lshlrev_b32 v{t}, 4, v{t}")
        a.e(f"v_lshl_add_u32 v{d}, v{d}, 6, v{t}")
    a.e(f"s_lshr_b32 s38, s{sH}, 1")
    a.e(f"s_and_b32 s39, s{sH}, 1")
    a.e("s_add_u32 s40, s38, 4")
    a.e("s_lshl_b32 s43, s39, 10")
    a.e(f"s_cmp_lt_u32 s{sWv}, 4")
    a.e(f"s_cselect_b32 s40, s{sWv}, s40")
    a.e("s_cselect_b32 s36, 0, s43")
    a.e("s_lshl_b32 s37, s40, 13")
    a.e("s_add_u32 s37, s37, s36")
    a.e(f"v_lshl_add_u32 v{vB}, v{vL}, 4, s37")
    a.e(f"s_mul_i32 s37, s40, {SEQB}")
    a.e(f"v_add_u32 v{vF[0]}, s37, v{vU}")
    a.e(f"v_add_u32 v{vF[1]}, s37, v{vS_}")
    a.e("s_lshl_b32 s37, s40, 10")
    a.e(f"s_add_u32 s37, s37, {SPB}")
    a.e(f"v_lshl_add_u32 v{t}, v{vKG}, 4, s37")
    a.e(f"v_cmp_eq_u32 vcc, 15, v{vI}")
    a.e(f"v_mov_b32 v{t+1}, {BB}")
    a.e(f"v_mov_b32 v{t+2}, {-BB & 0xffffffff}")
    a.e(f"v_mov_b32 v{t+3}, 64")
    a.e(f"v_cndmask_b32 v{vA8}, v{vF[1]}, v{t}, vcc")
    a.e(f"v_cndmask_b32 v{vD[0]}, v{t+1}, v{t+3}, vcc")
    a.e(f"v_cndmask_b32 v{vD[1]}, v{t+2}, v{t+3}, vcc")
    a.e(f"v_lshl_add_u32 v126, v{vL}, 4, s37")
    tabs = {44: (1.0, 1.0, 1.0, 1.0, 1.0, 16.0), 45: (0.0, 1.0, -1.0, 2.0, -2.0, 8.0),
            46: (0.0, 1.0, 1.0, 4.0, 4.0, 4.0)}
    for sg, tab in tabs.items():
        a.e(f"s_mov_b32 s{sg}, {f32hex(tab[0])}")
    for q in range(1, 6):
        a.e(f"s_cmp_eq_u32 s40, {q}")
        for sg, tab in tabs.items():
            if tab[q] != tab[0]:
                a.e(f"s_cselect_b32 s{sg}, {f32hex(tab[q])}, s{sg}")

    def special_rows():
        a.wait(vm=("SP",))
        for d in range(4):
            for p in range(3):
                a.e(f"v_lshlrev_b32 v{T+p}, 16, v{S+4*p+d}")
                a.e(f"v_and_b32 v{T+3+p}, s{sMask}, v{S+4*p+d}")
            for h in range(2):
                a.e(f"v_mul_f32 v{T+6+h}, s44, v{T+3*h}")
            for h in range(2):
                a.e(f"v_fmac_f32 v{T+6+h}, s45, v{T+3*h+1}")
            for h in range(2):
                a.e(f"v_fmac_f32 v{T+6+h}, s46, v{T+3*h+2}")
            a.e(f"v_cvt_pk_bf16_f32 v{S+d}, v{T+6}, v{T+7}")
        a.e(f"ds_write_b128 v126, {vr(S)}")

    def own_read(k, g, reg, tag, last=False):
        if g == 8:
            base, off = vA8, 0
        else:
            base, off = vF[g >> 3], (k & 1) * BB + (g & 7) * FB
        a.lds(f"ds_read_b128 {vr(reg)}, v{base} offset:{off}", tag)
        if g == 8 and not last:
            a.e(f"v_add_u32 v{vA8}, v{vD[k & 1]}, v{vA8}")

    UNIT = [(s * SEQB, s * SEQB + BB) for s in range(4)] + [(4 * SEQB, TOPB), (5 * SEQB, TOPB + 8192),
            (6 * SEQB, TOPB + 16384), (TOPB + 24576, TOPB + 32768)]
    EA = 96

    def ex_addr(sbase):
        a.e(f"v_and_b32 v{EA}, 15, v{vL}")
        a.e(f"v_and_b32 v{EA+1}, 7, v{vL}")
        a.e(f"v_lshlrev_b32 v{EA+1}, 4, v{EA+1}")
        a.e(f"v_lshl_add_u32 v{EA}, v{EA}, 7, v{EA+1}")
        a.e(f"v_lshrrev_b32 v{EA+1}, 4, v{vL}")
        a.e(f"v_lshl_add_u32 v{EA}, v{EA+1}, 11, v{EA}")
        a.e(f"v_add_u32 v{EA}, s{sbase}, v{EA}")
        for f in range(1, 8):
            a.e(f"v_xor_b32 v{EA+f}, {f << 4}, v{EA}")

    def mwave(role):
        if role == 1:
            BR, AR, NR = 64, 96, 6
            steps = [("X", g) for g in range(11)]
        else:
            BR, AR, NR = 64, 88, 7
            steps = []
            for g in range(11):
                steps.append(("Y", g))
                if 1 <= g <= 9:
                    steps.append(("Z", g - 1))
        NS = len(steps)

        def bload(k, kind, q):
            if "nob" in EXP and k > 0:
                return
            so = sBo2 if q >> 1 else sBo
            if kind == "X":
                for c in range(2):
                    a.vmem(f"buffer_load_dwordx4 {vr(BR+(q*2+c)*4)}, v{vB}, {sr(sW)}, s{so} offen "
                           f"offset:{(q&1)*2048 + c*1024}", ("B", k, kind, q))
            elif kind == "Y":
                a.vmem(f"buffer_load_dwordx4 {vr(BR+q*4)}, v{vB}, {sr(sW)}, s{so} offen offset:{(q&1)*2048}",
                       ("B", k, kind, q))
            else:
                a.vmem(f"buffer_load_dwordx4 {vr(BR+16+q*4)}, v{vBZ}, {sr(sW)}, s{sBo} offen offset:{q*2048}",
                       ("B", k, kind, q))

        def rd(k, n, last=False):
            kind, g = steps[n]
            reg = AR + 4 * (n % NR)
            if kind == "Z":
                base, off = (vP[0], g * FB6) if g < 6 else (vP[1], (g - 6) * FB6) if g < 8 else (vP[2], 0)
                a.lds(f"ds_read_b128 {vr(reg)}, v{base} offset:{(k & 1)*BB6 + off}", ("A", k, n))
            else:
                own_read(k, g, reg, ("A", k, n), last)

        for i in range(64):
            a.e(f"v_mov_b32 v{ACC+i}, 0")
        if "nob0" not in EXP:
            a.e("s_barrier")
            for p in range(3):
                a.vmem(f"buffer_load_dwordx4 {vr(S+4*p)}, v{T}, {sr(sX)}, 0 offen offset:{p*1024}", "SP")
        a.e(f"s_mov_b32 s{sBo}, 0")
        a.e(f"s_mov_b32 s{sBo2}, 4096")
        for st in steps:
            if st and st[1] >= 7:
                bload(0, st[0], st[1] - 7)
        a.e(f"s_mov_b32 s{sBo}, {CHUNKB}")
        a.e(f"s_mov_b32 s{sBo2}, {CHUNKB + 4096}")
        special_rows()
        if role == 2:
            a.e(f"v_and_b32 v126, 15, v{vL}")
            a.e("v_lshlrev_b32 v126, 2, v126")
            a.e(f"v_add_u32 v126, {6*SEQB + 1024}, v126")
            a.e(f"ds_write_b32 v126, v{ACC}")
            a.e(f"ds_write_b32 v126, v{ACC} offset:{BB6}")
        a.e("s_waitcnt lgkmcnt(0)")
        a.e("s_barrier")
        stamp(7)
        rstamp(12)
        a.e(f"s_mov_b32 s{sCnt}, {N//2}")
        a.e(f"s_setprio {os.environ.get(f'PM{role}', '2')}")

        CO = int(os.environ.get(f"CO{role}", "0" if role == 1 else "5"))
        assert CO < NR
        FM = int("fmaj" in EXP)
        vE = (vD[0], vD[1])

        def period(k, _, last=False):
            if "mst" in EXP and _ == 0:
                stamp(2)
            if "bst" in EXP and _ == 1 and not last:
                a.e("s_memtime s[90:91]")
                a.e("s_waitcnt vmcnt(0) lgkmcnt(0)")
                a.e("s_memtime s[92:93]")
                a.e("s_waitcnt lgkmcnt(0)")
                a.e("s_sub_u32 s92, s92, s90")
                a.e(f"s_add_u32 s{sSt+4}, s{sSt+4}, s92")
                a.e(f"s_max_u32 s{sSt+6}, s{sSt+6}, s92")
                a.vm = []
            for n in range(NR):
                rd(k, n, last)
            pend = []

            def flush(n, cnt):
                while pend and pend[0][0] <= n and cnt > 0:
                    _, h, f = pend.pop(0)
                    t = vE[(h + f) & 1]
                    a.e(f"v_xor_b32 v{t}, {f << 4}, v{vX0[h]}")
                    lds_throttle()
                    a.lds(f"ds_write_b128 v{t}, {vr(ACC + h*32 + f*4)}", "E")
                    cnt -= 1

            for n, st in enumerate(steps):
                if CO and n == NS - CO and not last:
                    a.wait(lg_all=True)
                    if "mst" in EXP and _ == 0:
                        stamp(3)
                    a.e("s_barrier")
                    if "mst" in EXP and _ == 0:
                        stamp(4)
                kind, g = st
                nt = 2 if kind == "Z" else 4
                qs = [q for q in range(nt) if 0 <= g - q <= 7]
                if FM and kind == "X":
                    if g >= 3:
                        f = g - 3
                        for c in range(2):
                            for q in range(4):
                                a.wait(lg=(("A", k, f + q),), vm=(("B", k, kind, q),))
                                mf(ACC + 32 * c + f * 4, BR + q * 8 + 4 * c, AR + 4 * ((f + q) % NR))
                        if f + NR < NS:
                            rd(k, f + NR, last)
                        if g == 10 and not last:
                            for q in range(4):
                                bload(k + 1, kind, q)
                    qs = []
                else:
                    a.wait(lg=(("A", k, n),), vm=tuple(("B", k, kind, q) for q in qs))
                reg = AR + 4 * (n % NR)
                for q in qs:
                    f = g - q
                    if kind == "X":
                        mf(ACC + f * 4, BR + q * 8, reg)
                        mf(ACC + 32 + f * 4, BR + q * 8 + 4, reg)
                    elif kind == "Y":
                        mf(ACC + f * 4, BR + q * 4, reg)
                    else:
                        mf(ACC + 32 + f * 4, BR + 16 + q * 4, reg)
                if g >= 7 and not last and not (FM and kind == "X"):
                    bload(k + 1, kind, g - 7)
                if n + NR < NS and not (FM and kind == "X"):
                    rd(k, n + NR, last)
                if last:
                    flush(n, 2)
                    f = g - (nt - 1)
                    if f >= 0:
                        if kind == "X":
                            pend.append((n + 1, 0, f))
                            pend.append((max(n + 1, NS - NR + 1 + 3 * FM), 1, f))
                            pend.sort()
                        else:
                            pend.append((n + 3, 0 if kind == "Y" else 1, f))
                    if kind == "X" and n == NS - NR + 3 * FM:
                        a.wait(lg=(("A", k, NS - 1),))
            if last:
                a.e("s_nop 7")
                flush(1000, 1000)
                return
            a.e(f"s_add_u32 s{sBo}, s{sBo}, {CHUNKB}")
            a.e(f"s_add_u32 s{sBo2}, s{sBo2}, {CHUNKB}")
            assert not a.lg
            if "mst" in EXP and _ == 0:
                stamp(5)
            if not CO:
                a.e("s_barrier")
            if "mst" in EXP and _ == 0:
                stamp(6)

        def period2(k, pos):
            if pos == 1:
                a.e(f"s_sub_u32 s{sCnt}, s{sCnt}, 1")
                a.e(f"s_cmp_eq_u32 s{sCnt}, 0")
                a.e(f"s_cbranch_scc1 L_{name}_mlast{role}")
                state[0] = (list(a.vm), k)
            period(k, pos)

        state = [None]
        body = steady(period2, 2, "nob" not in EXP)
        if "nob" in EXP:
            a.e("s_waitcnt vmcnt(0)")
        a.label(f"L_{name}_mloop{role}")
        a.L.extend(body)
        a.e(f"s_branch L_{name}_mloop{role}")
        a.label(f"L_{name}_mlast{role}")
        a.vm, a.lg = state[0][0], []
        vX0 = (vB, 126)
        a.e(f"v_and_b32 v{vX0[0]}, 15, v{vL}")
        a.e(f"v_and_b32 v{vX0[1]}, 7, v{vL}")
        a.e(f"v_lshlrev_b32 v{vX0[1]}, 4, v{vX0[1]}")
        a.e(f"v_lshl_add_u32 v{vX0[0]}, v{vX0[0]}, 7, v{vX0[1]}")
        a.e(f"v_lshrrev_b32 v{vX0[1]}, 4, v{vL}")
        a.e(f"v_lshl_add_u32 v{vX0[0]}, v{vX0[1]}, 11, v{vX0[0]}")
        if role == 1:
            a.e(f"s_lshl_b32 s36, s{sWv}, 14")
            a.e("s_add_u32 s37, s36, 8192")
        else:
            for sg, tab in ((36, [UNIT[4 + (h >> 1)][h & 1] for h in range(4)]),
                            (37, [UNIT[6 + (h >> 1)][h & 1] for h in range(4)])):
                a.e(f"s_mov_b32 s{sg}, {tab[0]}")
                for h in range(1, 4):
                    a.e(f"s_cmp_eq_u32 s{sH}, {h}")
                    a.e(f"s_cselect_b32 s{sg}, {tab[h]}, s{sg}")
        a.e(f"v_add_u32 v{vX0[1]}, s37, v{vX0[0]}")
        a.e(f"v_add_u32 v{vX0[0]}, s36, v{vX0[0]}")
        period(state[0][1], 1, True)
        stamp(8, False)
        rstamp(13)
        a.e("s_setprio 0")
        a.vm, a.lg = [], []

    a.e(f"s_cmp_ge_u32 s{sWv}, 4")
    a.e(f"s_cbranch_scc1 L_{name}_m2")
    vm0 = list(a.vm)
    mwave(1)
    a.e(f"s_branch L_{name}_epi")
    a.label(f"L_{name}_m2")
    a.vm, a.lg = list(vm0), []
    a.e(f"s_mul_i32 s37, s38, {2*FB6}")
    a.e(f"s_add_u32 s37, s37, {6*SEQB}")
    a.e(f"v_add_u32 v{vP[0]}, s37, v{vU}")
    a.e(f"v_add_u32 v{vP[2]}, s37, v{vS_}")
    a.e(f"v_add_u32 v{vP[1]}, {6*SEQB + 6*FB6}, v{vU}")
    a.e("s_cmp_eq_u32 s38, 0")
    a.e(f"s_cbranch_scc1 L_{name}_hh0")
    a.e(f"v_add_u32 v{vP[1]}, {6*SEQB}, v{vS_}")
    a.label(f"L_{name}_hh0")
    a.e("s_lshl_b32 s37, s38, 12")
    a.e("s_add_u32 s37, s37, s43")
    a.e(f"s_add_u32 s37, s37, {6*8192}")
    a.e(f"v_lshl_add_u32 v{vBZ}, v{vL}, 4, s37")
    mwave(2)
    a.e(f"s_branch L_{name}_epi")

    a.label(f"L_{name}_helper")
    a.vm, a.lg = [], []
    a.e("s_setprio 3")
    PB = (0, 32)
    XO = 64
    TMP = 76
    vX = 92
    vW = (96, 97, 98)

    def praw(b, half, p):
        return PB[b] + half * 16 + p * 4

    def xload(pair, p):
        for half in range(2):
            a.vmem(f"buffer_load_dwordx4 {vr(praw(pair & 1, half, p))}, v{vX+p}, {sr(sX)}, "
                   f"s{sXo} offen offset:{half*64}", ("X", pair))
        a.e(f"v_add_u32 v{vX+p}, 128, v{vX+p}")

    def uregs(chunk):
        return [praw((chunk >> 1) & 1, chunk & 1, p) for p in range(4)]

    def wr(chunk, i):
        if "nowr" in EXP:
            return
        u = uregs(chunk)
        reg, seq = [(XO, 3), (XO + 4, 4), (XO + 8, 5), (u[0], 0), (u[1], 1), (u[2], 2), (u[3], 6)][i]
        lds_throttle()
        if seq == 6:
            a.lds(f"ds_write_b128 v{vW[2]}, {vr(reg)} offset:{(chunk & 1)*BB6}", "W")
        else:
            a.lds(f"ds_write_b128 v{vW[seq >> 2]}, {vr(reg)} offset:{(seq & 3)*SEQB + (chunk & 1)*BB}", "W")

    def tr_ops(chunk):
        u = uregs(chunk)
        o = [u[1], u[2], XO, XO + 4, XO + 8]
        ops = []
        for d in range(4):
            lo = [TMP + p for p in range(4)]
            hi = [TMP + 8 + p for p in range(4)]
            for p in range(4):
                ops.append(f"v_lshlrev_b32 v{lo[p]}, 16, v{u[p]+d}")
                ops.append(f"v_and_b32 v{hi[p]}, s{sMask}, v{u[p]+d}")
            o1, r1 = eval_ops(lo, [TMP + 4 + i for i in range(4)])
            o2, r2 = eval_ops(hi, [TMP + 12 + i for i in range(4)])
            for x, y in zip(o1, o2):
                ops += [x, y]
            for i in range(5):
                ops.append(f"v_cvt_pk_bf16_f32 v{o[i]+d}, v{r1[i]}, v{r2[i]}")
        if "notr" in EXP:
            ops = ["s_nop 0"] * 8
        return ops

    for p in range(4):
        a.e(f"v_add_u32 v{vX+p}, {p*1024}, v7")
    a.e(f"v_and_b32 v{TMP}, 4, v5")
    a.e(f"v_lshrrev_b32 v{TMP}, 1, v{TMP}")
    a.e(f"v_xor_b32 v{TMP}, v6, v{TMP}")
    a.e(f"v_lshlrev_b32 v{TMP}, 4, v{TMP}")
    a.e(f"v_lshl_add_u32 v{TMP}, v5, 6, v{TMP}")
    a.e(f"s_mov_b32 s{sXo}, 0")
    stamp(2)
    for p in range(4):
        xload(0, p)
    if "nob0" not in EXP:
        a.e("s_barrier")
    a.e(f"s_mul_i32 s36, s42, {FB}")
    a.e(f"v_add_u32 v{vW[0]}, s36, v{TMP}")
    a.e(f"v_add_u32 v{vW[1]}, {4*SEQB}, v{vW[0]}")
    a.e(f"s_mul_i32 s36, s42, {FB6}")
    a.e(f"s_add_u32 s36, s36, {6*SEQB}")
    a.e(f"v_add_u32 v{vW[2]}, s36, v{TMP}")
    stamp(3)
    a.wait(vm=(("X", 0),))
    stamp(4)
    a.e(f"s_mov_b32 s{sK}, 0")
    a.e(f"s_mov_b32 s{sCnt}, {N//4}")
    a.e(f"s_cmp_ge_u32 s{sWv}, 12")
    a.e(f"s_cbranch_scc1 L_{name}_h2")

    def hwave(role):
        SH = 33 * int(os.environ.get(f"SH{role}", "0" if role == 1 else "4"))
        ahead = 2 if SH else 1
        a.vm, a.lg = [], []
        wr(0, 3)
        wr(0, 6)
        for op in tr_ops(0):
            a.e(op)
        for i in (0, 1, 2, 4, 5):
            wr(0, i)
        NF = int(os.environ.get("NF", "2"))
        for p in range(4 if SH else NF):
            xload(1, p)
        stamp(5)
        a.wait(lg_all=True)
        stamp(6)
        a.e("s_barrier")
        stamp(7)
        rstamp(12)
        PA, PB_ = os.environ.get(f'PH{role}', '11' if role == 1 else '00')
        a.e(f"s_setprio {PA}")
        for op in tr_ops(1)[:SH]:
            a.e(op)
        XP = [float(x) for x in os.environ.get(f"XP{role}", "0.2,0.6,0.02,0.15" if SH else "0.3,0.7,0.1,0.5").split(",")]

        def period(k, pos, last=False):
            pair = (k >> 1) + 2 if SH else (k + 3) >> 1
            first = not (k & 1) if SH else (k & 1)
            if pos == 4 - ahead and not last:
                a.e(f"s_cmp_eq_u32 s{sCnt}, 1")
                a.e(f"s_cbranch_scc1 L_{name}_hlast{role}")
            if "hst" in EXP and pos == 1:
                stamp(2)
            V1 = tr_ops(k + 1)[SH:]
            V2 = [] if last else tr_ops(k + 2)[:SH]
            V = V1 + V2
            n = len(V)
            ev = {}

            def at(i, f):
                ev.setdefault(max(0, min(int(i), n)), []).append(f)

            def stores():
                if "hst" in EXP and pos == 1:
                    stamp(3)
                for i in range(7):
                    wr(k + 1, i)
                if "hst" in EXP and pos == 1:
                    stamp(4)
                if PA != PB_:
                    a.e(f"s_setprio {PB_}")
            if PA != PB_:
                a.e(f"s_setprio {PA}")
            at(len(V1), stores)
            if not last:
                a.e(f"s_cmp_lt_u32 s{sK}, {N - 2 - ahead}")
                a.e(f"s_cselect_b32 s{sXo}, 0, {OOB}")
                at(len(V1) if SH else 0, lambda: a.wait(vm=(("X", (k + ahead) >> 1),)))
                if "nox" not in EXP:
                    for p in (range(NF) if first else range(NF, 4)):
                        w = len(V1) + XP[p] * SH if SH and first else XP[p] * n
                        at(w, lambda p=p: xload(pair, p))
            for i in range(n + 1):
                for f in ev.get(i, []):
                    f()
                if i < n:
                    a.e(V[i])
            if not last:
                a.e(f"s_add_u32 s{sK}, s{sK}, 1")
            if "hst" in EXP and pos == 1:
                stamp(5)
            a.e("s_waitcnt lgkmcnt(0)")
            a.lg = []
            a.e("s_barrier")
            if "hst" in EXP and pos == 1:
                stamp(6)

        body = steady(period, 4, "nox" not in EXP)
        a.label(f"L_{name}_hloop{role}")
        a.L.extend(body)
        a.e(f"s_sub_u32 s{sCnt}, s{sCnt}, 1")
        a.e(f"s_branch L_{name}_hloop{role}")
        a.label(f"L_{name}_hlast{role}")
        a.vm, a.lg = [], []

        def last_period():
            vm = a.vm
            a.vm, a.lg = [], []
            if SH:
                a.e(f"s_mov_b32 s{sMask}, 0xffff0000")
                period(2, 2, True)
            a.vm = vm
        if role == 1 or KSPLIT:
            last_period()
        else:
            assert SH
            a.e("s_waitcnt vmcnt(0)")
            a.e(f"s_mov_b32 s58, s{sWv}")
            a.e(f"s_lshl_b32 s20, s2, 2")
            a.e(f"s_add_u32 s20, s20, s{sH}")
            a.e(f"v_mov_b32 v1, v{vL}")
            wprep(a, 16, WS_W2P, True, barrier=last_period)
            a.e(f"s_mov_b32 s{sWv}, s58")
        stamp(8)
        rstamp(13)
        a.e(f"s_branch L_{name}_end")

    hwave(1)
    a.label(f"L_{name}_h2")
    hwave(2)

    a.label(f"L_{name}_epi")
    R0 = (120, 121, 125)
    vO, vBW = 122, 123
    BND = SPB
    t0, t1, t2, t3 = 108, 109, 110, 111
    a.e(f"v_and_b32 v{t0}, 15, v{vL}")
    a.e(f"v_lshrrev_b32 v{t1}, 4, v{vL}")
    a.e(f"v_lshrrev_b32 v{t2}, 3, v{t0}")
    a.e(f"s_lshl_b32 s36, s{sWv}, 1")
    a.e(f"v_add_u32 v{t2}, s36, v{t2}")
    a.e(f"v_xor_b32 v{t3}, v{t2}, v{t0}")
    a.e(f"v_and_b32 v{t3}, 7, v{t3}")
    a.e(f"v_lshlrev_b32 v{t3}, 4, v{t3}")
    a.e(f"v_lshl_add_u32 v{t3}, v{t2}, 7, v{t3}")
    a.e(f"v_lshl_add_u32 v{R0[0]}, v{t1}, 11, v{t3}")
    a.e(f"v_add_u32 v{R0[1]}, 65536, v{R0[0]}")
    a.e(f"v_add_u32 v{R0[2]}, 131072, v{R0[0]}")
    a.e(f"s_lshl_b32 s36, s{sWv}, 9")
    a.e(f"s_add_u32 s36, s36, {BND}")
    a.e(f"v_lshl_add_u32 v{vBW}, v{t1}, 7, s36")
    a.e(f"s_lshl_b32 s36, s{sWv}, 4")
    a.e(f"v_add_u32 v{t0}, s36, v{t0}")
    a.e(f"v_lshl_add_u32 v{t2}, v{t0}, 2, s{sT0}")
    a.e(f"v_lshlrev_b32 v{t2}, 9, v{t2}")
    a.e(f"v_lshl_add_u32 v{t2}, v{t1}, 4, v{t2}")
    a.e(f"s_lshl_b32 s36, s{sCb}, 6")
    a.e(f"v_add_u32 v{t2}, s36, v{t2}")
    a.e(f"v_mov_b32 v{t3}, {OOB}")
    a.e(f"v_cmp_gt_u32 vcc, 125, v{t0}")
    k0 = -2.0 * 1.4426950408889634 * 0.7978845608028654
    consts = [-1.0 / 3, 0.25, -5.0, -32.0 / 9, -8.0 / 9, -2.0 / 9, -1.0 / 18, 17.0 / 9, -2.0 / 3, 0.4, -1.0 / 15, -0.2,
              k0 * 0.044715, 1.0]
    KS = [4, 6, 8, 10, 12, 14, 22, 24, 26, 32, 34, 38, 40, 42]
    for sg, cv in zip(KS, consts):
        a.e(f"s_mov_b32 s{sg}, {f32hex(cv)}")
        a.e(f"s_mov_b32 s{sg+1}, s{sg}")
    K = [sr(x, 2) for x in KS]
    a.e("s_waitcnt lgkmcnt(0)")
    a.e("s_barrier")
    if "est" in EXP:
        stamp(2)
    a.e(f"v_cndmask_b32 v{vO}, v{t3}, v{t2}, vcc")

    def P(c, s, r=0):
        return c * 32 + s * 4 + r
    Y = 64
    TB = 96
    ELS = (0, 1, 2)
    for c in range(2):
        for s_ in range(8):
            if c == 1 and s_ == 7:
                a.e("s_waitcnt lgkmcnt(7)")
            u = UNIT[s_][c]
            a.e(f"ds_read_b128 {vr(P(c, s_))}, v{R0[u >> 16]} offset:{u & 0xffff}")

    def p2(x):
        return vr(x, 2)

    def padd(d, x, y):
        return f"v_pk_add_f32 {p2(d)}, {p2(x)}, {p2(y)}"

    def psub(d, x, y):
        return f"v_pk_add_f32 {p2(d)}, {p2(x)}, {p2(y)} neg_lo:[0,1] neg_hi:[0,1]"

    def pfma(d, x, k, y, neg=False):
        return f"v_pk_fma_f32 {p2(d)}, {p2(x)}, {k}, {p2(y)}" + (" neg_lo:[0,0,1] neg_hi:[0,0,1]" if neg else "")

    def interp(c):
        seq = []
        for r in (0, 2):
            E0, A, B, C, D, Q, E6, E6b = (P(c, x, r) for x in range(8))
            y = [Y + ph * 8 + c * 4 + r for ph in range(4)]
            S1, G = E6, C
            seq.append([
                padd(y[3], E6, E6b),
                padd(S1, A, B),
                psub(A, A, B),
                padd(y[1], C, D),
                psub(G, C, D),
                pfma(y[1], S1, K[0], y[1]),
                pfma(Q, E0, K[3], Q),
                pfma(y[1], E0, K[1], y[1]),
                psub(S1, S1, E0),
                pfma(y[1], y[3], K[2], y[1]),
                psub(S1, S1, y[3]),
                pfma(Q, y[3], K[6], Q),
                psub(B, S1, y[1]),
                pfma(Q, y[1], K[5], Q),
                f"v_pk_mul_f32 {p2(y[2])}, {p2(G)}, {K[9]}",
                pfma(Q, B, K[4], Q),
                pfma(y[2], A, K[10], y[2]),
                pfma(y[0], A, K[7], Q, True),
                pfma(y[0], G, K[8], y[0]),
                pfma(y[2], y[0], K[11], y[2]),
                psub(A, A, y[0]),
                psub(A, A, y[2]),
            ])
        for ops in zip(*seq):
            for op in ops:
                a.e(op)

    a.e("s_waitcnt lgkmcnt(8)")
    interp(0)
    a.e("s_waitcnt lgkmcnt(0)")
    interp(1)
    if "est" in EXP:
        stamp(3)
    a.e("s_mov_b32 s36, 0x00010001")
    a.e("s_mov_b32 s37, 0x00010001")
    a.e("s_mov_b64 exec, s[36:37]")
    for k in range(3):
        for c in range(2):
            a.e(f"ds_write_b128 v{vBW}, {vr(P(c, ELS[k]))} offset:{(k*2+c)*16}")
    a.e("s_mov_b64 exec, -1")

    def finish(ph):
        ys = [Y + ph * 8 + i for i in range(8)]
        if not KSPLIT:
            ts = [16 + (ph & 1) * 8 + i for i in range(8)]
            ev = list(zip(ys[::2], ts[::2]))
            for y, t in ev:
                a.e(f"v_pk_mul_f32 {p2(t)}, {p2(y)}, {p2(y)}")
            for y, t in ev:
                a.e(pfma(t, t, K[12], 44))
            for y, t in ev:
                a.e(f"v_pk_mul_f32 {p2(t)}, {p2(t)}, {p2(y)}")
            for t in ts:
                a.e(f"v_exp_f32 v{t}, v{t}")
            for y, t in ev:
                a.e(f"v_pk_add_f32 {p2(t)}, {p2(t)}, {K[13]}")
            for t in ts:
                a.e(f"v_rcp_f32 v{t}, v{t}")
            for y, t in ev:
                a.e(f"v_pk_mul_f32 {p2(y)}, {p2(y)}, {p2(t)}")
        o = 48 + ph * 4
        for r in range(4):
            a.e(f"v_cvt_pk_bf16_f32 v{o+r}, v{ys[r]}, v{ys[4+r]}")
        a.e(f"buffer_store_dwordx4 {vr(o)}, v{vO}, {sr(sO)}, 0 offen offset:{ph*512}{NTF if KSPLIT else NTH}")

    a.e(f"v_mov_b32 v44, {f32hex(k0)}")
    a.e("v_mov_b32 v45, v44")
    finish(0)
    a.e("s_waitcnt lgkmcnt(0)")
    a.e("s_barrier")
    if "est" in EXP:
        stamp(4)
    for i in range(6):
        a.e(f"ds_read_b128 {vr(TB+4*i)}, v{vBW} offset:{512 + i*16}")
    for ph in range(1, 4):
        a.e(f"s_waitcnt lgkmcnt({6 - 2*ph})")
        for c in range(2):
            for r in range(4):
                i = (ph - 1) * 8 + c * 4 + r
                a.e(f"v_mov_b32_dpp v{TB+i}, v{P(c, ELS[ph-1], r)} row_shl:1 row_mask:0xf bank_mask:0xf")
        for i in range(0, 8, 2):
            a.e(padd(Y + ph * 8 + i, Y + ph * 8 + i, TB + (ph - 1) * 8 + i))
        finish(ph)
    if "est" in EXP:
        stamp(5)
    a.label(f"L_{name}_end")
    if STAMP:
        a.e("s_waitcnt vmcnt(0)")
        stamp(9, False)
        a.e(f"s_memrealtime s[{sSt+22}:{sSt+23}]")
        a.e(f"s_cmp_lg_u32 s{sWv}, {os.environ.get('SW', '0')}")
        a.e(f"s_cbranch_scc1 L_{name}_done")
        a.e("s_lshl_b32 s36, s2, 7")
        a.e(f"s_add_u32 s36, s36, {WS_STAMP + cfg['stamp']*0x10000}")
        add64(a, 40, 30, "s36")
        a.e("s_mov_b32 s42, 128")
        a.e("s_mov_b32 s43, 0x00020000")
        a.e("s_waitcnt lgkmcnt(0)")
        a.e("v_mov_b32 v8, 0")
        for i in range(28):
            a.e(f"v_mov_b32 v0, s{sSt+i}")
            a.e(f"buffer_store_dword v0, v8, s[40:43], 0 offen offset:{4*i}")
    a.label(f"L_{name}_done")
    a.e("s_endpgm")
    return a.L, TOPB + 40960, 128


CONV1 = dict(tin=16000, tout=8000, nchunk=16, ksplit=False, in_arg=0, in_off=0, w_off=WS_W1P, out_off=WS_H, stamp=0)
CONV2 = dict(tin=8000, tout=4000, nchunk=8, ksplit=True, in_arg=72, in_off=WS_H, w_off=WS_W2P, out_off=WS_FP, stamp=1)

HEADER = """; Kernarg layout for this problem (80 bytes, ptrs only, base s[0:1]):
"""


def main():
    ks = [("prep_kernel", 268, 256) + prep_kernel("prep_kernel"),
          ("conv1_kernel", 256, 1024) + conv_kernel("conv1_kernel", CONV1),
          ("conv2_kernel", 256, 1024) + conv_kernel("conv2_kernel", CONV2)]
    ks = joint_kernels(ks)
    out = HEADER
    for nm, grid, block, code, lds, vg in ks:
        out += f"; @launch kernel={nm} grid=({grid},1,1) block=({block},1,1) lds={lds}\n"
    out += '.amdgcn_target "amdgcn-amd-amdhsa--gfx950"\n.text\n'
    for nm, grid, block, code, lds, vg in ks:
        if "noalign" not in EXP:
            code = align8(code)
        out += f".globl {nm}\n.p2align 8\n.type {nm},@function\n" + "\n".join(code) + "\n"
    out += '.section .rodata,"a"\n'
    for nm, grid, block, code, lds, vg in ks:
        out += ".p2align 6\n" + kd(nm, vg)
    out = out.replace("0x7fc0de00", "L_joint_kernel_done-L_prep_kernel_pc")
    path = sys.argv[1] if len(sys.argv) > 1 else "standalone__seq2seq_rnn_t_joint__speech.s"
    open(path, "w").write(out)


if __name__ == "__main__":
    main()
```

```python
import os
from asmlib import Asm, vr, sr, f32hex

EXP = os.environ.get("EXP", "").split(",")
WS_FP = 0x1A00000
WS_FPS = 0x800000
WS_WF = 0x2A00000
WS_WO = 0x2A20000
WS_GE = 0x2A40000
WS_STAMP = 0x3000000
C2 = 2.0 * 1.4426950408889634
RANGE = 120.0


def add64(a, d, lo, off):
    a.e(f"s_add_u32 s{d}, s{lo}, {off}")
    a.e(f"s_addc_u32 s{d+1}, s{lo+1}, 0")


def code_warm(a, name, v, sh):
    a.e("s_getpc_b64 s[62:63]")
    a.label(f"L_{name}_pc")
    a.e(f"v_lshlrev_b32 v{v}, {7 - sh}, v0")
    a.e(f"v_min_u32 v{v}, L_{name}_done-L_{name}_pc, v{v}")
    a.e(f"v_mov_b32 v{v+1}, s63")
    a.e(f"v_add_co_u32 v{v}, vcc, s62, v{v}")
    a.e(f"v_addc_co_u32 v{v+1}, vcc, 0, v{v+1}, vcc")
    a.e(f"global_load_dword v{v+2}, v[{v}:{v+1}], off")


def prep_small(a, name):
    a.label(f"L_{name}_small")
    a.e("s_load_dwordx4 s[4:7], s[0:1], 24")
    a.e("s_load_dwordx4 s[36:39], s[0:1], 40")
    a.e("s_load_dwordx2 s[30:31], s[0:1], 72")
    a.e("v_readfirstlane_b32 s20, v0")
    a.e("s_lshr_b32 s20, s20, 6")
    a.e("s_lshr_b32 s21, s2, 2")
    a.e("s_and_b32 s22, s2, 3")
    a.e("v_and_b32 v1, 63, v0")
    a.e("v_lshrrev_b32 v2, 5, v1")
    a.e("v_and_b32 v3, 31, v1")
    a.e("v_lshlrev_b32 v5, 12, v2")
    a.e("v_lshl_add_u32 v5, v3, 2, v5")
    a.e("s_lshl_b32 s23, s20, 15")
    a.e("s_lshl_b32 s24, s22, 7")
    a.e("s_add_u32 s23, s23, s24")
    a.e("s_mov_b32 s32, 0x05040100")
    a.e("s_mov_b32 s33, 0x07060302")
    a.e("s_waitcnt lgkmcnt(0)")
    a.e("s_cmp_eq_u32 s21, 1")
    a.e("s_cselect_b32 s8, s38, s6")
    a.e("s_cselect_b32 s9, s39, s7")
    a.e("s_cmp_eq_u32 s21, 2")
    a.e("s_cselect_b32 s8, s36, s8")
    a.e("s_cselect_b32 s9, s37, s9")
    a.e("s_mov_b32 s10, 131072")
    a.e("s_mov_b32 s11, 0x00020000")
    R, O = 16, 48
    for k in range(4):
        for e in range(8):
            a.e(f"buffer_load_dword v{R+k*8+e}, v5, s[8:11], s23 offen offset:{e*512}")
        if k < 3:
            a.e("s_add_u32 s23, s23, 8192")
    a.e("s_mov_b32 s16, s4")
    a.e("s_mov_b32 s17, s5")
    a.e("s_mov_b32 s18, 8192")
    a.e("s_mov_b32 s19, 0x00020000")
    a.e("v_lshlrev_b32 v6, 9, v3")
    a.e("v_lshl_add_u32 v6, v2, 4, v6")
    a.e("s_lshl_b32 s24, s20, 7")
    for k in range(4):
        a.e(f"buffer_load_dwordx4 {vr(80+4*k)}, v6, s[16:19], s24 offen offset:{k*32}")
    a.e("s_lshl_b32 s24, s21, 17")
    a.e(f"s_add_u32 s24, s24, {WS_WF}")
    add64(a, 12, 30, "s24")
    a.e("s_mov_b32 s14, 131072")
    a.e("s_mov_b32 s15, 0x00020000")
    a.e("s_waitcnt vmcnt(0)")
    for k in range(4):
        for jn in range(2):
            for e2 in range(4):
                a.e(f"v_perm_b32 v{O+(k*2+jn)*4+e2}, v{R+k*8+2*e2+1}, v{R+k*8+2*e2}, s{32+jn}")
    a.e("s_cmp_eq_u32 s21, 2")
    a.e(f"s_cbranch_scc1 L_{name}_ge")
    a.e("v_lshlrev_b32 v4, 4, v1")
    a.e("s_lshl_b32 s24, s22, 15")
    a.e("s_lshl_b32 s25, s20, 13")
    a.e("s_add_u32 s24, s24, s25")
    a.e("s_add_u32 s25, s24, 4096")
    for i in range(8):
        a.e(f"buffer_store_dwordx4 {vr(O+4*i)}, v4, s[12:15], s{24+(i>>2)} offen offset:{(i&3)*1024}")
    a.e("s_endpgm")
    a.label(f"L_{name}_ge")
    ACC = 96
    for k in range(4):
        for jn in range(2):
            c = "0" if k == 0 else vr(ACC + 16 * jn, 16)
            a.e(f"v_mfma_f32_32x32x16_bf16 {vr(ACC+16*jn,16)}, {vr(O+(k*2+jn)*4)}, {vr(80+4*k)}, {c}")
    a.e("v_lshlrev_b32 v4, 4, v1")
    a.e("s_lshl_b32 s24, s20, 13")
    a.e("v_add_u32 v7, s24, v4")
    a.e("s_nop 15")
    for i in range(8):
        a.e(f"ds_write_b128 v7, {vr(ACC+4*i)} offset:{i*1024}")
    a.e("s_waitcnt lgkmcnt(0)")
    a.e("s_barrier")
    a.e("s_lshl_b32 s24, s20, 10")
    a.e("v_add_u32 v7, s24, v4")
    for src in range(4):
        for jn in range(2):
            a.e(f"ds_read_b128 {vr(16+(src*2+jn)*4)}, v7 offset:{src*8192 + jn*4096}")
    a.e("s_mov_b32 s14, 16384")
    a.e("v_lshlrev_b32 v8, 10, v3")
    a.e("v_lshl_add_u32 v8, v2, 5, v8")
    a.e("s_lshl_b32 s24, s22, 8")
    a.e("s_lshl_b32 s25, s20, 6")
    a.e("s_add_u32 s24, s24, s25")
    a.e("s_mov_b32 s34, 0xffff0000")
    a.e(f"s_mov_b32 s35, {f32hex(C2)}")
    a.e("s_waitcnt lgkmcnt(0)")
    for r in range(8):
        for src in range(1, 4):
            a.e(f"v_add_f32 v{16+r}, v{16+r}, v{16+src*8+r}")
    for i in range(4):
        a.e(f"v_cvt_pk_bf16_f32 v{48+i}, v{16+i}, v{20+i}")
    for i in range(4):
        a.e(f"v_lshlrev_b32 v{56+2*i}, 16, v{48+i}")
        a.e(f"v_and_b32 v{57+2*i}, s34, v{48+i}")
    for r in range(8):
        a.e(f"v_mul_f32 v{56+r}, s35, v{56+r}")
    a.e(f"buffer_store_dwordx4 {vr(56)}, v8, s[12:15], s24 offen")
    a.e(f"buffer_store_dwordx4 {vr(60)}, v8, s[12:15], s24 offen offset:16")
    for r in range(8):
        a.e(f"v_exp_f32 v{64+r}, v{56+r}")
    a.e("v_max3_f32 v72, |v56|, |v57|, |v58|")
    a.e("v_max3_f32 v72, |v59|, |v60|, v72")
    a.e("v_max3_f32 v72, |v61|, |v62|, v72")
    a.e("v_max_f32 v72, |v63|, v72")
    add64(a, 12, 12, 16384)
    a.e(f"v_cmp_lt_f32 vcc, {f32hex(RANGE)}, v72")
    a.e(f"buffer_store_dwordx4 {vr(64)}, v8, s[12:15], s24 offen")
    a.e(f"buffer_store_dwordx4 {vr(68)}, v8, s[12:15], s24 offen offset:16")
    add64(a, 12, 12, 16384)
    a.e("s_or_b32 s26, vcc_lo, vcc_hi")
    a.e("s_lshr_b32 s24, s24, 4")
    a.e("v_mov_b32 v73, s26")
    a.e("v_mov_b32 v74, 0")
    a.e("buffer_store_dword v73, v74, s[12:15], s24 offen")
    a.e("s_endpgm")


def joint_kernel(name):
    a = Asm()
    NWG = 250
    STAMP = "stamp" in EXP
    FP = 528
    F_B, J_B = 32768, 0
    EP = 272
    E_B = F_B + 32 * FP
    GE_B = E_B + 4 * 36 * EP
    LDS = GE_B + 8 * 1040
    sF, sW, sO, sG = 8, 12, 16, 40
    sWv, sW4, sCnt = 20, 21, 22
    sSt = 64
    vL = 255
    NTO = os.environ.get("NTO", " nt")
    UROT = int(os.environ.get("UROT", "7"))
    USH = int(os.environ.get("USH", "0"))

    def stamp(i, fence=True):
        if STAMP:
            a.e(f"s_memtime s[{sSt+2*i}:{sSt+2*i+1}]")
            if fence:
                a.e("s_waitcnt lgkmcnt(0)")
                a.lg = []

    def rstamp(i):
        if STAMP:
            a.e(f"s_memrealtime s[{sSt+2*i}:{sSt+2*i+1}]")
            a.e("s_waitcnt lgkmcnt(0)")
            a.lg = []

    a.label(name)
    a.e(f"s_cmp_ge_u32 s2, {NWG}")
    a.e(f"s_cbranch_scc1 L_{name}_done")
    if STAMP:
        for i in range(28):
            a.e(f"s_mov_b32 s{sSt+i}, 0")
        a.e(f"s_memrealtime s[{sSt+20}:{sSt+21}]")
    stamp(0, False)
    a.e("s_load_dwordx2 s[28:29], s[0:1], 56")
    a.e("s_load_dwordx2 s[30:31], s[0:1], 72")
    a.e(f"v_readfirstlane_b32 s{sWv}, v0")
    a.e(f"s_lshr_b32 s{sWv}, s{sWv}, 6")
    a.e(f"s_and_b32 s{sW4}, s{sWv}, 3")
    a.e(f"v_and_b32 v{vL}, 63, v0")
    a.e(f"v_lshlrev_b32 v254, 4, v{vL}")
    if "cw" in EXP:
        code_warm(a, name, 244, 2)
    a.e(f"s_cmp_ge_u32 s{sWv}, 4")
    a.e(f"s_mov_b32 s33, {WS_WO}")
    a.e(f"s_cselect_b32 s33, {WS_WF}, s33")
    a.e(f"s_lshl_b32 s36, s{sW4}, 15")
    a.e("s_add_u32 s33, s33, s36")
    a.e(f"s_mov_b32 s{sW+2}, 32768")
    a.e(f"s_mov_b32 s{sW+3}, 0x00020000")
    a.e("s_lshl_b32 s35, s2, 14")
    a.e(f"s_add_u32 s35, s35, {WS_FP}")
    a.e(f"s_mov_b32 s{sF+2}, {WS_FPS + 16384}")
    a.e(f"s_mov_b32 s{sF+3}, 0x00020000")
    a.e("s_waitcnt lgkmcnt(0)")
    add64(a, sW, 30, "s33")
    W = 0

    def gsrd():
        a.e("s_cmp_ge_u32 s2, 125")
        a.e("s_cselect_b32 s34, 8192, 0")
        a.e(f"s_add_u32 s34, s34, {WS_GE}")
        add64(a, sG, 30, "s34")
        a.e(f"s_mov_b32 s{sG+2}, {16384 + 8192}")
        a.e(f"s_mov_b32 s{sG+3}, 0x00020000")

    def wload(ks):
        if ks % 2 == 0:
            a.e(f"s_mov_b32 s36, {ks*2048}")
        for jn in range(2):
            i = ks * 2 + jn
            a.vmem(f"buffer_load_dwordx4 {vr(W+4*i)}, v254, {sr(sW)}, s36 offen offset:{(i%4)*1024}", ("W", ks))

    a.e(f"s_cmp_ge_u32 s{sWv}, 4")
    a.e(f"s_cbranch_scc1 L_{name}_T")

    add64(a, sF, 30, "s35")
    X = 128
    a.e(f"s_lshl_b32 s36, s{sWv}, 12")
    a.e(f"s_add_u32 s37, s36, {WS_FPS}")
    for r2 in range(4):
        a.vmem(f"buffer_load_dwordx4 {vr(X+4*r2)}, v254, {sr(sF)}, s36 offen offset:{r2*1024}", ("F", r2))
        a.vmem(f"buffer_load_dwordx4 {vr(X+16+4*r2)}, v254, {sr(sF)}, s37 offen offset:{r2*1024}", ("F", r2))
    gsrd()
    a.e(f"s_lshl_b32 s38, s{sWv}, 11")
    a.e("s_add_u32 s38, s38, 16384")
    for i in range(2):
        a.vmem(f"buffer_load_dwordx4 {vr(X+64+4*i)}, v254, {sr(sG)}, s38 offen offset:{i*1024}", "G")
    stamp(1)
    if "nojb0" not in EXP:
        a.e("s_barrier")
    stamp(5)
    a.e("s_lshl_b32 s35, s2, 17")
    add64(a, sO, 28, "s35")
    a.e(f"s_mov_b32 s{sO+2}, 131072")
    a.e(f"s_mov_b32 s{sO+3}, 0x00020000")
    k0 = -2.0 * 1.4426950408889634 * 0.7978845608028654
    a.e(f"s_mov_b32 s44, {f32hex(k0 * 0.044715)}")
    a.e(f"v_mov_b32 v253, {f32hex(k0)}")
    a.e(f"s_mul_i32 s36, s{sWv}, {8*FP}")
    a.e(f"v_lshrrev_b32 v252, 5, v{vL}")
    a.e("v_lshlrev_b32 v252, 4, v252")
    a.e("v_add3_u32 v252, v252, v254, s36")
    a.e("s_mov_b32 s45, 0xffff0000")
    T = 232
    a.e("s_mov_b32 s46, s44")
    a.e("s_mov_b32 s47, s44")
    a.e("s_mov_b32 s48, 1.0")
    a.e("s_mov_b32 s49, 1.0")
    a.e("v_mov_b32 v248, v253")
    a.e("v_mov_b32 v249, v253")
    stamp(6)
    a.e(f"s_mov_b32 s{sCnt}, 2")
    a.label(f"L_{name}_floop")
    p2 = lambda x: vr(x, 2)
    for r2 in range(2):
        a.e(f"s_waitcnt vmcnt({8 - 2*r2})")
        ys = [X + 40 + i for i in range(8)]
        ts = [T + i for i in range(8)]
        ev = list(zip(ys[::2], ts[::2]))
        for i in range(4):
            a.e(f"v_lshlrev_b32 v{ys[2*i]}, 16, v{X+4*r2+i}")
            a.e(f"v_and_b32 v{ys[2*i+1]}, s45, v{X+4*r2+i}")
            a.e(f"v_lshlrev_b32 v{ts[2*i]}, 16, v{X+16+4*r2+i}")
            a.e(f"v_and_b32 v{ts[2*i+1]}, s45, v{X+16+4*r2+i}")
        for y, t in ev:
            a.e(f"v_pk_add_f32 {p2(y)}, {p2(y)}, {p2(t)}")
        for y, t in ev:
            a.e(f"v_pk_mul_f32 {p2(t)}, {p2(y)}, {p2(y)}")
        for y, t in ev:
            a.e(f"v_pk_fma_f32 {p2(t)}, {p2(t)}, s[46:47], v[248:249]")
        for y, t in ev:
            a.e(f"v_pk_mul_f32 {p2(t)}, {p2(t)}, {p2(y)}")
        for t in ts:
            a.e(f"v_exp_f32 v{t}, v{t}")
        for y, t in ev:
            a.e(f"v_pk_add_f32 {p2(t)}, {p2(t)}, s[48:49]")
        for t in ts:
            a.e(f"v_rcp_f32 v{t}, v{t}")
        for y, t in ev:
            a.e(f"v_pk_mul_f32 {p2(y)}, {p2(y)}, {p2(t)}")
        for i in range(4):
            a.e(f"v_cvt_pk_bf16_f32 v{240+4*r2+i}, v{ys[2*i]}, v{ys[2*i+1]}")
        a.e(f"ds_write_b128 v252, {vr(240+4*r2)} offset:{F_B + 2*r2*FP}")
    a.e("s_waitcnt vmcnt(0)")
    a.vm = []
    for i in range(0, 8, 2):
        for b in (X, X + 16):
            a.e(f"v_pk_mov_b32 {vr(b+i,2)}, {vr(b+8+i,2)}, {vr(b+8+i,2)} op_sel:[0,1]")
    a.e(f"v_add_u32 v252, {4*FP}, v252")
    a.e(f"s_sub_u32 s{sCnt}, s{sCnt}, 1")
    a.e(f"s_cmp_lg_u32 s{sCnt}, 0")
    a.e(f"s_cbranch_scc1 L_{name}_floop")
    a.e(f"s_mul_i32 s36, s{sWv}, 2080")
    a.e(f"s_add_u32 s36, s36, {GE_B}")
    a.e("v_add_u32 v251, s36, v254")
    for i in range(2):
        a.e(f"ds_write_b128 v251, {vr(X+64+4*i)} offset:{i*1040}")
    a.e("s_waitcnt lgkmcnt(0)")
    stamp(2)
    a.e("s_barrier")
    if os.environ.get("NPRE", "16") != "16":
        a.e("s_barrier")
    stamp(3)
    for ks in range(16):
        wload(ks)
    ACC = (128, 160)
    JR = 192
    PKR = 224
    vO = 250
    a.e(f"v_lshrrev_b32 v{vO}, 5, v{vL}")
    a.e(f"v_lshlrev_b32 v{vO}, 11, v{vO}")
    a.e(f"v_and_b32 v249, 31, v{vL}")
    a.e(f"v_lshl_add_u32 v{vO}, v249, 2, v{vO}")
    a.e(f"s_lshl_b32 s36, s{sW4}, 7")
    a.e(f"v_add_u32 v{vO}, s36, v{vO}")
    for r in range(4):
        a.e(f"s_mov_b32 s{44+r}, {r * 4096}")

    def out_ops(par):
        ops = []
        ac = ACC[par]
        for r in range(16):
            ops.append(f"v_cvt_pk_bf16_f32 v{PKR+r}, v{ac+r}, v{ac+16+r}")
            ops.append(f"buffer_store_dword v{PKR+r}, v{vO}, {sr(sO)}, s{44+(r>>2)} offen offset:{(r&3)*512}{NTO}")
        ops.append(f"v_add_u32 v{vO}, 16384, v{vO}")
        return ops

    PD = int(os.environ.get('JPD', '4'))

    def jread(par, ks):
        a.lds(f"ds_read_b128 {vr(JR+4*(ks%8))}, v254 offset:{J_B + par*16384 + ks*1024}", ("J", par, ks))

    def ustep(par, side):
        for ks in range(16):
            if ks + PD == 16:
                a.wait(lg_all=True)
                a.e("s_barrier")
            a.wait(lg=(("J", par, ks),), vm=(("W", ks),))
            for jn in range(2):
                ac = ACC[par] + 16 * jn
                c = "0" if ks == 0 else vr(ac, 16)
                a.e(f"v_mfma_f32_32x32x16_bf16 {vr(ac,16)}, {vr(JR+4*(ks%8))}, {vr(W+(ks*2+jn)*4)}, {c}")
                if jn == 0:
                    if ks + PD < 16:
                        jread(par, ks + PD)
                    else:
                        jread(1 - par, ks + PD - 16)
                if ks >= 4:
                    for _ in range(2 if ks < 10 else 1):
                        if side:
                            a.e(side.pop(0))
        assert not side

    stamp(4)
    a.e("s_barrier")
    for ks in range(PD):
        jread(0, ks)
    ustep(0, [])
    lg0 = list(a.lg)
    stamp(7)
    rstamp(12)
    a.lg = list(lg0)
    a.e(f"s_mov_b32 s{sCnt}, 4")
    a.c("ALIGN ON")
    a.label(f"L_{name}_oloop")
    ustep(1, out_ops(0))
    a.e(f"s_sub_u32 s{sCnt}, s{sCnt}, 1")
    a.e(f"s_cmp_eq_u32 s{sCnt}, 0")
    a.e(f"s_cbranch_scc1 L_{name}_oend")
    ustep(0, out_ops(1))
    assert a.lg == lg0
    a.e("s_waitcnt vmcnt(24)")
    a.e(f"s_branch L_{name}_oloop")
    a.c("ALIGN OFF")
    a.label(f"L_{name}_oend")
    stamp(8, False)
    rstamp(13)
    a.e("s_nop 15")
    for op in out_ops(1):
        a.e(op)
    a.e(f"s_branch L_{name}_fin")

    a.label(f"L_{name}_T")
    a.vm, a.lg = [], []
    a.e("s_setprio 3")
    add64(a, 36, 30, WS_GE + 32768)
    a.e("s_load_dwordx16 s[44:59], s[36:37], 0")
    FE = 128
    FR = 160
    GEC = 192
    PK = 224
    vF, vG, vJ, vEW, vER = 250, 249, 248, 247, 246
    gsrd()
    a.e(f"v_and_b32 v{vJ}, 31, v{vL}")
    a.e(f"v_lshrrev_b32 v{vER}, 5, v{vL}")
    a.e(f"v_mul_u32_u24 v{vF}, {FP}, v{vJ}")
    a.e(f"v_lshl_add_u32 v{vF}, v{vER}, 4, v{vF}")
    a.e(f"v_lshlrev_b32 v{vER}, 5, v{vER}")
    a.e(f"v_and_b32 v{vG}, 7, v{vL}")
    a.e(f"v_lshl_add_u32 v{vG}, v{vG}, 10, v{vER}")
    a.e(f"s_lshl_b32 s38, s{sW4}, 8")
    a.e("s_add_u32 s39, s38, 16384")
    a.e(f"v_and_b32 v245, 7, v{vL}")
    a.e("v_mul_u32_u24 v245, 1040, v245")
    a.e(f"s_add_u32 s36, s38, {GE_B}")
    a.e(f"v_add3_u32 v245, v245, v{vER}, s36")
    a.e(f"s_mul_i32 s36, s{sW4}, {36*EP}")
    a.e(f"s_add_u32 s36, s36, {E_B}")
    a.e(f"v_add_u32 v{vER}, s36, v{vER}")
    a.e(f"v_mul_u32_u24 v{vEW}, {EP}, v{vJ}")
    a.e(f"v_add_u32 v{vEW}, v{vEW}, v{vER}")
    a.e(f"v_lshrrev_b32 v{vJ}, 3, v{vJ}")
    a.e(f"v_mul_u32_u24 v{vJ}, {EP}, v{vJ}")
    a.e(f"v_add_u32 v{vER}, v{vJ}, v{vER}")
    a.e(f"s_lshl_b32 s36, s{sW4}, 12")
    a.e(f"v_add_u32 v{vJ}, s36, v254")

    def gload(fast):
        for k4 in range(4):
            for h in range(2):
                a.vmem(f"buffer_load_dwordx4 {vr(GEC+8*k4+4*h)}, v{vG}, {sr(sG)}, s{38+fast} offen offset:{k4*64 + h*16}", "G")
    NPRE = int(os.environ.get("NPRE", "16"))
    JB = int(os.environ.get("JB", "0"))
    if JB == 0 and "nojb0" not in EXP:
        a.e("s_barrier")
    if "tst" in EXP:
        stamp(1)
    for ks in range(NPRE):
        wload(ks)
        if ks + 1 == JB:
            a.e("s_barrier")
        if "tst" in EXP and ks in (3, 7):
            stamp(6 + (ks >> 2))
    a.e("s_waitcnt lgkmcnt(0)")
    a.e(f"s_setprio {os.environ.get('PT', '0')}")
    for i in range(1, 16):
        a.e(f"s_or_b32 s44, s44, s{44+i}")
    stamp(2)
    a.e("s_barrier")
    stamp(3)
    for ks in range(8):
        a.lds(f"ds_read_b128 {vr(FR+4*ks)}, v{vF} offset:{F_B + ks*32}", ("A", ks))
    nxt = NPRE
    for ks in range(16):
        for _ in range(2):
            if nxt < 16:
                wload(nxt)
                nxt += 1
                if nxt == 16:
                    a.e("s_barrier")
        a.wait(lg=(("A", ks),), vm=(("W", ks),))
        for jn in range(2):
            c = "0" if ks == 0 else vr(FE + 16 * jn, 16)
            a.e(f"v_mfma_f32_32x32x16_bf16 {vr(FE+16*jn,16)}, {vr(W+(ks*2+jn)*4)}, {vr(FR+4*(ks%8))}, {c}")
        if ks + 8 < 16:
            a.lds(f"ds_read_b128 {vr(FR+4*(ks%8))}, v{vF} offset:{F_B + (ks+8)*32}", ("A", ks + 8))
        else:
            i = ks - 8
            a.lds(f"ds_read_b128 {vr(GEC+4*i)}, v245 offset:{(i>>1)*64 + (i&1)*16}", "GE")
    a.e("s_mov_b32 s46, 0xffff0000")
    a.e(f"s_mov_b32 s45, {f32hex(C2)}")
    a.e("s_nop 10")
    stamp(4)
    FS, EX = 0, 32
    a.e("s_mov_b32 s48, s45")
    a.e("s_mov_b32 s49, s45")
    a.e("v_mov_b32 v96, 0")
    a.wait(lg_all=True)
    for g in range(4):
        for r in range(4 * g, 4 * g + 4):
            a.e(f"v_cvt_pk_bf16_f32 v{PK+r}, v{FE+r}, v{FE+16+r}")
        for r in range(4 * g, 4 * g + 4):
            a.e(f"v_lshlrev_b32 v{FS+2*r}, 16, v{PK+r}")
            a.e(f"v_and_b32 v{FS+2*r+1}, s46, v{PK+r}")
        for r in range(8 * g, 8 * g + 8, 2):
            a.e(f"v_pk_mul_f32 {vr(FS+r,2)}, {vr(FS+r,2)}, s[48:49]")
        for h in range(2):
            for r in range(8 * g + 4 * h, 8 * g + 4 * h + 4):
                a.e(f"v_exp_f32 v{EX+r}, v{FS+r}")
            for r in range(4 * g + 2 * h, 4 * g + 2 * h + 2):
                a.e(f"v_max3_f32 v96, |v{FS+2*r}|, |v{FS+2*r+1}|, v96")
            a.e(f"ds_write_b128 v{vEW}, {vr(EX+8*g+4*h)} offset:{g*64 + h*16}")
    a.e(f"v_cmp_lt_f32 vcc, {f32hex(RANGE)}, v96")
    a.e(f"s_mov_b32 s{sCnt}, 4")
    a.e("s_or_b32 s44, s44, vcc_lo")
    a.e("s_or_b32 s44, s44, vcc_hi")
    a.e("s_cmp_lg_u32 s44, 0")
    if "slow" in EXP:
        a.e(f"s_branch L_{name}_tslow")
    a.e(f"s_cbranch_scc1 L_{name}_tslow")
    G2, EA = 32, 64

    def earead():
        for k4 in range(4):
            for h in range(2):
                a.lds(f"ds_read_b128 {vr(EA+8*k4+4*h)}, v{vER} offset:{k4*64 + h*16}", ("G", k4))
        a.e(f"v_add_u32 v{vER}, {4*EP}, v{vER}")

    def tstep(fast, par):
        for k4 in range(4):
            a.wait(lg=(("G", k4),))
            xs = [G2 + 8 * k4 + i for i in range(8)]
            for i, x in enumerate(xs):
                if fast:
                    a.e(f"v_fma_f32 v{x}, v{GEC+8*k4+i}, v{EA+8*k4+i}, 1.0")
                else:
                    a.e(f"v_add_f32 v{x}, v{GEC+8*k4+i}, v{EA+8*k4+i}")
            if k4 == 3:
                earead()
            if not fast:
                for x in xs:
                    a.e(f"v_exp_f32 v{x}, v{x}")
                for x in xs:
                    a.e(f"v_add_f32 v{x}, 1.0, v{x}")
            for x in xs:
                a.e(f"v_rcp_f32 v{x}, v{x}")
            for x in xs:
                a.e(f"v_fma_f32 v{x}, v{x}, -2.0, 1.0")
            for i in range(4):
                a.e(f"v_cvt_pk_bf16_f32 v{PK+4*k4+i}, v{xs[2*i]}, v{xs[2*i+1]}")
            a.lds(f"ds_write_b128 v{vJ}, {vr(PK+4*k4)} offset:{J_B + par*16384 + k4*1024}", "W")
        a.wait(lg_all=True)
        a.e("s_barrier")

    for fast in (1, 0):
        if not fast:
            a.label(f"L_{name}_tslow")
            a.e("s_waitcnt vmcnt(0)")
            a.vm = []
            gload(0)
        a.lg = []
        if not fast:
            a.e("s_waitcnt lgkmcnt(0)")
            for i in range(8):
                a.e(f"ds_write_b128 v{vEW}, {vr(FS+4*i)} offset:{(i>>1)*64 + (i&1)*16}")
        a.e("s_waitcnt lgkmcnt(4)")
        earead()
        a.e("s_waitcnt vmcnt(0) lgkmcnt(0)")
        a.vm, a.lg = [], []
        stamp(5)
        a.label(f"L_{name}_tloop{fast}")
        tstep(fast, 0)
        tstep(fast, 1)
        a.e(f"s_sub_u32 s{sCnt}, s{sCnt}, 1")
        a.e(f"s_cmp_lg_u32 s{sCnt}, 0")
        a.e(f"s_cbranch_scc1 L_{name}_tloop{fast}")
        stamp(8)
        if fast:
            a.e(f"s_branch L_{name}_fin")
    a.label(f"L_{name}_fin")
    if STAMP:
        a.e("s_waitcnt vmcnt(0)")
        stamp(9, False)
        a.e(f"s_memrealtime s[{sSt+22}:{sSt+23}]")
        a.e(f"s_cmp_lg_u32 s{sWv}, {os.environ.get('SWJ', '0')}")
        a.e(f"s_cbranch_scc1 L_{name}_done")
        a.e("s_lshl_b32 s36, s2, 7")
        a.e(f"s_add_u32 s36, s36, {WS_STAMP + 2*0x10000}")
        add64(a, 40, 30, "s36")
        a.e("s_mov_b32 s42, 128")
        a.e("s_mov_b32 s43, 0x00020000")
        a.e("s_waitcnt lgkmcnt(0)")
        a.e("v_mov_b32 v8, 0")
        for i in range(28):
            a.e(f"v_mov_b32 v0, s{sSt+i}")
            a.e(f"buffer_store_dword v0, v8, s[40:43], 0 offen offset:{4*i}")
    a.label(f"L_{name}_done")
    a.e("s_endpgm")
    return a.L, LDS, 256


def joint_kernels(ks):
    return ks + [("joint_kernel", 250, 512) + joint_kernel("joint_kernel")]
```

```python
import os
from asmlib import Asm, vr, sr, f32hex

EXP = os.environ.get("EXP", "").split(",")
WS_FP = 0x1A00000
WS_FPS = 0x800000
PLF = int(os.environ.get('PLF', 65536))
WS_WF = 0x2A00000
WS_WO = 0x2A20000
WS_GE = 0x2A40000
WS_STAMP = 0x3000000
C2 = 2.0 * 1.4426950408889634
RANGE = 120.0


def add64(a, d, lo, off):
    a.e(f"s_add_u32 s{d}, s{lo}, {off}")
    a.e(f"s_addc_u32 s{d+1}, s{lo+1}, 0")


def small_select(a):
    a.e("s_lshr_b32 s41, s3, 2")
    a.e("s_and_b32 s42, s3, 3")
    a.e("s_lshl_b32 s42, s42, 1")
    a.e("s_and_b32 s43, s40, 1")
    a.e("s_add_u32 s42, s42, s43")
    a.e("s_lshr_b32 s43, s40, 1")
    a.e("s_lshl_b32 s4, s43, 16")
    a.e("s_lshl_b32 s5, s42, 6")
    a.e("s_add_u32 s4, s4, s5")
    a.e("s_cmp_lt_u32 s3, 12")
    a.e("s_cselect_b32 s26, s4, s26")
    a.e("s_cselect_b32 s10, 131072, s10")
    a.e(f"s_mov_b32 s5, {2*131072}")
    a.e("s_cselect_b32 s5, 16384, s5")


def small_ptr(a):
    for m, sg in ((0, 52), (1, 56), (2, 54)):
        a.e(f"s_cmp_eq_u32 s41, {m}")
        a.e(f"s_cselect_b32 s8, s{sg}, s8")
        a.e(f"s_cselect_b32 s9, s{sg+1}, s9")


def small_tail(a, name):
    a.label(f"L_{name}_small")
    R, O = 16, 48
    a.e("s_mov_b32 s16, s50")
    a.e("s_mov_b32 s17, s51")
    a.e("s_mov_b32 s18, 8192")
    a.e("s_mov_b32 s19, 0x00020000")
    a.e("v_lshrrev_b32 v2, 4, v1")
    a.e("v_lshlrev_b32 v6, 9, v3")
    a.e("v_lshl_add_u32 v6, v2, 4, v6")
    a.e("s_lshl_b32 s24, s43, 8")
    a.e("s_cmp_eq_u32 s41, 2")
    a.e("s_cselect_b32 s24, s24, 0x100000")
    for k in range(4):
        a.e(f"buffer_load_dwordx4 {vr(80+4*k)}, v6, s[16:19], s24 offen offset:{k*64}")
    a.e("s_lshl_b32 s24, s41, 17")
    a.e(f"s_add_u32 s24, s24, {WS_WF}")
    add64(a, 12, 30, "s24")
    a.e("s_mov_b32 s14, 131072")
    a.e("s_mov_b32 s15, 0x00020000")
    a.e("s_mov_b32 s32, 0x05040100")
    a.e("s_mov_b32 s33, 0x07060302")
    a.e("v_lshlrev_b32 v4, 4, v1")
    a.e("s_lshl_b32 s24, s42, 14")
    a.e("s_lshl_b32 s25, s43, 13")
    a.e("s_add_u32 s24, s24, s25")
    a.e("s_add_u32 s25, s24, 4096")
    a.e("s_waitcnt vmcnt(4)")
    for k in range(4):
        for jn in range(2):
            for e2 in range(4):
                a.e(f"v_perm_b32 v{O+(k*2+jn)*4+e2}, v{R+k*8+2*e2+1}, v{R+k*8+2*e2}, s{32+jn}")
    a.e("s_cmp_eq_u32 s41, 2")
    a.e(f"s_cbranch_scc1 L_{name}_ge")
    for i in range(8):
        a.e(f"buffer_store_dwordx4 {vr(O+4*i)}, v4, s[12:15], s{24+(i>>2)} offen offset:{(i&3)*1024} sc1")
    a.e("s_endpgm")
    a.label(f"L_{name}_ge")
    ACC = 96
    a.e("s_waitcnt vmcnt(0)")
    for k in range(4):
        for jn in range(2):
            c = "0" if k == 0 else vr(ACC + 4 * jn)
            a.e(f"v_mfma_f32_16x16x32_bf16 {vr(ACC+4*jn)}, {vr(O+(k*2+jn)*4)}, {vr(80+4*k)}, {c}")
    a.e("s_and_b32 s24, s40, 1")
    a.e("s_lshl_b32 s24, s24, 11")
    a.e("v_add_u32 v7, s24, v4")
    a.e("s_mov_b32 s14, 16384")
    a.e("v_lshlrev_b32 v8, 10, v3")
    a.e("v_lshl_add_u32 v8, v2, 5, v8")
    a.e("s_lshl_b32 s24, s42, 7")
    a.e("s_mov_b32 s34, 0xffff0000")
    a.e(f"s_mov_b32 s35, {f32hex(C2)}")
    a.e("s_cmp_eq_u32 s43, 0")
    a.e(f"s_cbranch_scc1 L_{name}_ge0")
    a.e(f"ds_write_b128 v7, {vr(ACC)}")
    a.e(f"ds_write_b128 v7, {vr(ACC+4)} offset:1024")
    a.e("s_waitcnt lgkmcnt(0)")
    a.e("s_barrier")
    a.e("s_endpgm")
    a.label(f"L_{name}_ge0")
    a.e("s_barrier")
    a.e(f"ds_read_b128 {vr(16)}, v7")
    a.e(f"ds_read_b128 {vr(20)}, v7 offset:1024")
    a.e("s_waitcnt lgkmcnt(0)")
    for r in range(8):
        a.e(f"v_add_f32 v{16+r}, v{16+r}, v{ACC+r}")
    for i in range(4):
        a.e(f"v_cvt_pk_bf16_f32 v{48+i}, v{16+i}, v{20+i}")
    for i in range(4):
        a.e(f"v_lshlrev_b32 v{56+2*i}, 16, v{48+i}")
        a.e(f"v_and_b32 v{57+2*i}, s34, v{48+i}")
    for r in range(8):
        a.e(f"v_mul_f32 v{56+r}, s35, v{56+r}")
    a.e(f"buffer_store_dwordx4 {vr(56)}, v8, s[12:15], s24 offen sc1")
    a.e(f"buffer_store_dwordx4 {vr(60)}, v8, s[12:15], s24 offen offset:16 sc1")
    for r in range(8):
        a.e(f"v_exp_f32 v{64+r}, v{56+r}")
    a.e("v_max3_f32 v72, |v56|, |v57|, |v58|")
    a.e("v_max3_f32 v72, |v59|, |v60|, v72")
    a.e("v_max3_f32 v72, |v61|, |v62|, v72")
    a.e("v_max_f32 v72, |v63|, v72")
    add64(a, 12, 12, 16384)
    a.e(f"v_cmp_lt_f32 vcc, {f32hex(RANGE)}, v72")
    a.e(f"buffer_store_dwordx4 {vr(64)}, v8, s[12:15], s24 offen sc1")
    a.e(f"buffer_store_dwordx4 {vr(68)}, v8, s[12:15], s24 offen offset:16 sc1")
    add64(a, 12, 12, 16384)
    a.e("s_or_b32 s26, vcc_lo, vcc_hi")
    a.e("s_lshl_b32 s24, s42, 2")
    a.e("v_mov_b32 v73, s26")
    a.e("v_mov_b32 v74, 0")
    a.e("buffer_store_dword v73, v74, s[12:15], s24 offen sc1")
    a.e("s_endpgm")


def joint_kernel(name):
    a = Asm()
    NWG = 250
    STAMP = "stamp" in EXP
    FP = 528
    EP = 144
    J_B, F_B = 0, 32768
    E_B = F_B + 32 * FP
    GE_B = E_B + 8 * 36 * EP
    C_B = GE_B + 8 * 1040
    LDS = C_B + 16
    SPIN = 'nospin' not in EXP
    sF, sW, sO, sG = 8, 12, 16, 40
    sWv, sV, sCnt = 20, 21, 22
    sSt = 64
    vL, vL16 = 127, 126
    NTO = os.environ.get("NTO", " nt")

    def stamp(i, fence=True):
        if STAMP:
            a.e(f"s_memtime s[{sSt+2*i}:{sSt+2*i+1}]")
            if fence:
                a.e("s_waitcnt lgkmcnt(0)")
                a.lg = []

    def rstamp(i):
        if STAMP:
            a.e(f"s_memrealtime s[{sSt+2*i}:{sSt+2*i+1}]")
            a.e("s_waitcnt lgkmcnt(0)")
            a.lg = []

    a.label(name)
    a.e(f"s_cmp_ge_u32 s2, {NWG}")
    a.e(f"s_cbranch_scc1 L_{name}_done")
    if STAMP:
        for i in range(28):
            a.e(f"s_mov_b32 s{sSt+i}, 0")
        a.e(f"s_memrealtime s[{sSt+20}:{sSt+21}]")
    stamp(0, False)
    a.e("s_load_dwordx2 s[28:29], s[0:1], 56")
    a.e("s_load_dwordx2 s[30:31], s[0:1], 72")
    a.e(f"v_readfirstlane_b32 s{sWv}, v0")
    a.e(f"s_lshr_b32 s{sWv}, s{sWv}, 6")
    a.e(f"s_and_b32 s{sV}, s{sWv}, 7")
    a.e(f"v_and_b32 v{vL}, 63, v0")
    a.e(f"v_lshlrev_b32 v{vL16}, 4, v{vL}")
    a.e(f"s_cmp_ge_u32 s{sWv}, 8")
    a.e(f"s_mov_b32 s33, {WS_WO}")
    a.e(f"s_cselect_b32 s33, {WS_WF}, s33")
    a.e(f"s_lshl_b32 s36, s{sV}, 14")
    a.e("s_add_u32 s33, s33, s36")
    a.e(f"s_mov_b32 s{sW+2}, 16384")
    a.e(f"s_mov_b32 s{sW+3}, 0x00020000")
    a.e("s_lshl_b32 s35, s2, 9")
    a.e("s_cmp_ge_u32 s2, 125")
    a.e(f"s_cselect_b32 s36, {32*PLF - 125*512}, 0")
    a.e("s_cselect_b32 s34, 8192, 0")
    a.e("s_add_u32 s35, s35, s36")
    a.e(f"s_add_u32 s34, s34, {WS_GE}")
    a.e(f"s_mov_b32 s{sF+2}, {WS_FPS + 64*PLF}")
    a.e(f"s_mov_b32 s{sF+3}, 0x00020000")
    a.e(f"s_mov_b32 s{sG+2}, {16384 + 8192}")
    a.e(f"s_mov_b32 s{sG+3}, 0x00020000")
    a.e("s_waitcnt lgkmcnt(0)")
    add64(a, sW, 30, "s33")
    add64(a, sG, 30, "s34")
    W = 0

    def arrive_wait(mine, other, lbl, v):
        a.e(f"v_mov_b32 v{v}, {C_B}")
        a.e(f"v_mov_b32 v{v+1}, 1")
        a.e("s_mov_b64 exec, 1")
        a.e(f"ds_add_u32 v{v}, v{v+1} offset:{4*mine}")
        a.e("s_mov_b64 exec, -1")
        a.label(lbl)
        a.e(f"ds_read_b32 v{v+1}, v{v} offset:{4*other}")
        a.e("s_waitcnt lgkmcnt(0)")
        a.e(f"v_readfirstlane_b32 s37, v{v+1}")
        a.e("s_cmp_ge_u32 s37, 8")
        a.e(f"s_cbranch_scc1 {lbl}_d")
        a.e("s_sleep 1")
        a.e(f"s_branch {lbl}")
        a.label(f"{lbl}_d")

    def wload(ks):
        if ks % 2 == 0:
            a.e(f"s_mov_b32 s36, {ks*2048}")
        for jn in range(2):
            i = ks * 2 + jn
            a.vmem(f"buffer_load_dwordx4 {vr(W+4*i)}, v{vL16}, {sr(sW)}, s36 offen offset:{(i%4)*1024}", ("W", ks))

    a.e(f"s_cmp_ge_u32 s{sWv}, 8")
    a.e(f"s_cbranch_scc1 L_{name}_T")

    add64(a, sF, 30, WS_FP)
    X = 64
    a.e(f"v_mov_b32 v0, {C_B}")
    a.e("v_mov_b32 v2, 0")
    a.e("v_mov_b32 v3, 0")
    a.e("ds_write_b64 v0, v[2:3]")
    a.e(f"v_lshrrev_b32 v124, 5, v{vL}")
    a.e(f"v_and_b32 v123, 0x1ff, v{vL16}")
    a.e(f"v_mul_u32_u24 v125, {PLF}, v124")
    a.e("v_add_u32 v123, v125, v123")
    a.e(f"s_mul_i32 s36, s{sV}, {4*PLF}")
    a.e("s_add_u32 s36, s36, s35")
    for r2 in range(2):
        a.e(f"s_add_u32 s37, s36, {WS_FPS}")
        a.vmem(f"buffer_load_dwordx4 {vr(X+4*r2)}, v123, {sr(sF)}, s36 offen", ("F", r2))
        a.vmem(f"buffer_load_dwordx4 {vr(X+8+4*r2)}, v123, {sr(sF)}, s37 offen", ("F", r2))
        if r2 == 0:
            a.e(f"s_add_u32 s36, s36, {2*PLF}")
    a.e(f"s_lshl_b32 s38, s{sV}, 10")
    a.e("s_add_u32 s38, s38, 16384")
    a.vmem(f"buffer_load_dwordx4 {vr(X+16)}, v{vL16}, {sr(sG)}, s38 offen", "G")
    a.e("s_waitcnt lgkmcnt(0)")
    stamp(1)
    a.e("s_barrier")
    stamp(5)
    a.e("s_lshl_b32 s35, s2, 17")
    add64(a, sO, 28, "s35")
    a.e(f"s_mov_b32 s{sO+2}, 131072")
    a.e(f"s_mov_b32 s{sO+3}, 0x00020000")
    k0 = -2.0 * 1.4426950408889634 * 0.7978845608028654
    a.e(f"s_mov_b32 s46, {f32hex(k0 * 0.044715)}")
    a.e("s_mov_b32 s47, s46")
    a.e(f"v_mov_b32 v120, {f32hex(k0)}")
    a.e("v_mov_b32 v121, v120")
    a.e("s_mov_b32 s48, 1.0")
    a.e("s_mov_b32 s49, 1.0")
    a.e(f"v_bfe_u32 v123, v{vL}, 2, 3")
    a.e("v_lshl_add_u32 v124, v123, 2, v124")
    a.e(f"v_mul_u32_u24 v124, {FP}, v124")
    a.e(f"v_and_b32 v123, 0x30, v{vL16}")
    a.e(f"s_lshl_b32 s36, s{sV}, 6")
    a.e("v_add3_u32 v124, v124, v123, s36")
    a.e("s_mov_b32 s45, 0xffff0000")
    a.e(f"s_mul_i32 s36, s{sV}, 1040")
    a.e(f"s_add_u32 s36, s36, {GE_B}")
    a.e(f"v_add_u32 v123, s36, v{vL16}")
    a.e(f"s_mov_b32 s{sCnt}, 2")
    a.e("s_waitcnt vmcnt(3)")
    stamp(6)
    a.label(f"L_{name}_floop")

    def p2(x):
        return vr(x, 2)
    ys = [88 + i for i in range(8)]
    ts = [96 + i for i in range(8)]
    ev = list(zip(ys[::2], ts[::2]))
    for i in range(4):
        a.e(f"v_lshlrev_b32 v{ys[2*i]}, 16, v{X+i}")
        a.e(f"v_and_b32 v{ys[2*i+1]}, s45, v{X+i}")
        a.e(f"v_lshlrev_b32 v{ts[2*i]}, 16, v{X+8+i}")
        a.e(f"v_and_b32 v{ts[2*i+1]}, s45, v{X+8+i}")
    for y, t in ev:
        a.e(f"v_pk_add_f32 {p2(y)}, {p2(y)}, {p2(t)}")
    for y, t in ev:
        a.e(f"v_pk_mul_f32 {p2(t)}, {p2(y)}, {p2(y)}")
    for y, t in ev:
        a.e(f"v_pk_fma_f32 {p2(t)}, {p2(t)}, s[46:47], v[120:121]")
    for y, t in ev:
        a.e(f"v_pk_mul_f32 {p2(t)}, {p2(t)}, {p2(y)}")
    for t in ts:
        a.e(f"v_exp_f32 v{t}, v{t}")
    for y, t in ev:
        a.e(f"v_pk_add_f32 {p2(t)}, {p2(t)}, s[48:49]")
    for t in ts:
        a.e(f"v_rcp_f32 v{t}, v{t}")
    for y, t in ev:
        a.e(f"v_pk_mul_f32 {p2(y)}, {p2(y)}, {p2(t)}")
    for i in range(4):
        a.e(f"v_cvt_pk_bf16_f32 v{104+i}, v{ys[2*i]}, v{ys[2*i+1]}")
    a.e(f"ds_write_b128 v124, {vr(104)} offset:{F_B}")
    a.e("s_waitcnt vmcnt(0)")
    a.vm = []
    for i in range(0, 4, 2):
        for b in (X, X + 8):
            a.e(f"v_pk_mov_b32 {vr(b+i,2)}, {vr(b+4+i,2)}, {vr(b+4+i,2)} op_sel:[0,1]")
    a.e(f"v_add_u32 v124, {2*FP}, v124")
    a.e(f"s_sub_u32 s{sCnt}, s{sCnt}, 1")
    a.e(f"s_cmp_lg_u32 s{sCnt}, 0")
    a.e(f"s_cbranch_scc1 L_{name}_floop")
    a.e(f"ds_write_b128 v123, {vr(X+16)}")
    a.e("s_waitcnt lgkmcnt(0)")
    stamp(2)
    if SPIN:
        arrive_wait(0, 1, f"L_{name}_ow", 120)
    else:
        a.e("s_barrier")
    stamp(3)
    for ks in range(8):
        wload(ks)
    ACC = (64, 80)
    JR = 96
    PKR = 112
    vO = 125
    a.e(f"v_lshrrev_b32 v{vO}, 4, v{vL}")
    a.e(f"v_lshlrev_b32 v{vO}, 11, v{vO}")
    a.e(f"v_and_b32 v124, 15, v{vL}")
    a.e(f"v_lshl_add_u32 v{vO}, v124, 2, v{vO}")
    a.e(f"s_lshl_b32 s36, s{sV}, 6")
    a.e(f"v_add_u32 v{vO}, s36, v{vO}")
    a.e("s_mov_b32 s44, 8192")
    a.e(f"s_setprio {os.environ.get('PO', '1')}")

    def out_ops(par):
        ops = []
        ac = ACC[par]
        for rt in range(2):
            for r in range(4):
                ops.append(f"v_cvt_pk_bf16_f32 v{PKR+rt*4+r}, v{ac+rt*8+r}, v{ac+rt*8+4+r}")
                ops.append(f"buffer_store_dword v{PKR+rt*4+r}, v{vO}, {sr(sO)}, {'s44' if rt else '0'} offen offset:{r*512}{NTO}")
        ops.append(f"v_add_u32 v{vO}, 16384, v{vO}")
        return ops

    PD = 4

    def jread(par, n):
        a.lds(f"ds_read_b128 {vr(JR+4*(n%4))}, v{vL16} offset:{J_B + par*16384 + n*1024}", ("J", par, n))

    def ustep(par, side):
        for n in range(16):
            ks, rt = n >> 1, n & 1
            a.wait(lg=(("J", par, n),), vm=(("W", ks),))
            for jn in range(2):
                ac = ACC[par] + rt * 8 + 4 * jn
                c = "0" if ks == 0 else vr(ac)
                a.e(f"v_mfma_f32_16x16x32_bf16 {vr(ac)}, {vr(JR+4*(n%4))}, {vr(W+(ks*2+jn)*4)}, {c}")
                if n >= 3 and side:
                    a.e(side.pop(0))
            if n + PD == 16:
                a.wait(lg_all=True)
                a.e("s_barrier")
            if n + PD < 16:
                jread(par, n + PD)
            else:
                jread(1 - par, n + PD - 16)
        assert not side

    stamp(4)
    a.e("s_barrier")
    for n in range(PD):
        jread(0, n)
    ustep(0, [])
    lg0 = list(a.lg)
    stamp(7)
    rstamp(12)
    a.lg = list(lg0)
    a.e(f"s_mov_b32 s{sCnt}, 4")
    a.label(f"L_{name}_oloop")
    ustep(1, out_ops(0))
    a.e(f"s_sub_u32 s{sCnt}, s{sCnt}, 1")
    a.e(f"s_cmp_eq_u32 s{sCnt}, 0")
    a.e(f"s_cbranch_scc1 L_{name}_oend")
    ustep(0, out_ops(1))
    assert a.lg == lg0
    a.e("s_waitcnt vmcnt(32)")
    a.e(f"s_branch L_{name}_oloop")
    a.label(f"L_{name}_oend")
    stamp(8, False)
    rstamp(13)
    a.e("s_nop 7")
    for op in out_ops(1):
        a.e(op)
    a.e(f"s_branch L_{name}_fin")

    a.label(f"L_{name}_T")
    a.vm, a.lg = [], []
    a.e("s_setprio 3")
    a.e(f"s_lshl_b32 s36, s{sV}, 2")
    a.e(f"s_add_u32 s36, s36, {WS_GE + 32768}")
    add64(a, 36, 30, "s36")
    a.e("s_load_dword s44, s[36:37], 0")
    FE = 64
    FR = 80
    GB = 112
    vF, vG, vJ, vEW, vER, vGL = 125, 124, 123, 122, 121, 120
    a.e(f"v_and_b32 v{vJ}, 15, v{vL}")
    a.e(f"v_lshrrev_b32 v{vER}, 4, v{vL}")
    a.e(f"v_mul_u32_u24 v{vF}, {FP}, v{vJ}")
    a.e(f"v_lshl_add_u32 v{vF}, v{vER}, 4, v{vF}")
    a.e(f"v_lshlrev_b32 v{vER}, 5, v{vER}")
    a.e(f"v_and_b32 v{vGL}, 7, v{vL}")
    a.e(f"v_lshl_add_u32 v{vG}, v{vGL}, 10, v{vER}")
    a.e(f"s_lshl_b32 s38, s{sV}, 7")
    a.e(f"v_mul_u32_u24 v{vGL}, 1040, v{vGL}")
    a.e(f"s_add_u32 s36, s38, {GE_B}")
    a.e(f"v_add3_u32 v{vGL}, v{vGL}, v{vER}, s36")
    a.e(f"s_mul_i32 s36, s{sV}, {36*EP}")
    a.e(f"s_add_u32 s36, s36, {E_B}")
    a.e(f"v_add_u32 v{vER}, s36, v{vER}")
    a.e(f"v_mul_u32_u24 v{vEW}, {EP}, v{vJ}")
    a.e(f"v_add_u32 v{vEW}, v{vEW}, v{vER}")
    a.e(f"v_lshrrev_b32 v{vJ}, 3, v{vJ}")
    a.e(f"v_mul_u32_u24 v{vJ}, {EP}, v{vJ}")
    a.e(f"v_add_u32 v{vER}, v{vJ}, v{vER}")
    a.e(f"s_lshl_b32 s36, s{sV}, 11")
    a.e(f"v_add_u32 v{vJ}, s36, v{vL16}")
    a.e("s_barrier")
    NPRE = int(os.environ.get("NPRE", "8"))
    for ks in range(NPRE):
        wload(ks)
    stamp(2)
    if SPIN:
        arrive_wait(1, 0, f"L_{name}_tw", FE)
    else:
        a.e("s_waitcnt lgkmcnt(0)")
        a.e("s_barrier")
    stamp(3)

    def fread(n):
        tt, ks = n & 1, n >> 1
        a.lds(f"ds_read_b128 {vr(FR+4*(n%8))}, v{vF} offset:{F_B + tt*16*FP + ks*64}", ("A", n))

    for n in range(8):
        fread(n)
    for ks in range(NPRE, 8):
        wload(ks)
    if NPRE < 8:
        a.e("s_barrier")
    a.e(f"s_setprio {os.environ.get('PT', '0')}")
    for n in range(16):
        tt, ks = n & 1, n >> 1
        a.wait(lg=(("A", n),), vm=(("W", ks),))
        for jn in range(2):
            ac = FE + tt * 8 + jn * 4
            c = "0" if ks == 0 else vr(ac)
            a.e(f"v_mfma_f32_16x16x32_bf16 {vr(ac)}, {vr(W+(ks*2+jn)*4)}, {vr(FR+4*(n%8))}, {c}")
        if n + 8 < 16:
            fread(n + 8)
        elif n < 10:
            a.lds(f"ds_read_b128 {vr(GB+4*(n-8))}, v{vGL} offset:{(n-8)*16}", "GE")
    a.e("s_mov_b32 s46, 0xffff0000")
    a.e(f"s_mov_b32 s48, {f32hex(C2)}")
    a.e("s_mov_b32 s49, s48")
    a.e("s_nop 3")
    stamp(4)
    FS, EX, EA, XS, PK = 80, 96, 32, 48, 64
    a.e("v_mov_b32 v28, 0")
    a.wait(lg_all=True)
    for tt in range(2):
        for r in range(4):
            a.e(f"v_cvt_pk_bf16_f32 v{24+r}, v{FE+tt*8+r}, v{FE+tt*8+4+r}")
        for r in range(4):
            a.e(f"v_lshlrev_b32 v{FS+tt*8+2*r}, 16, v{24+r}")
            a.e(f"v_and_b32 v{FS+tt*8+2*r+1}, s46, v{24+r}")
        for r in range(8 * tt, 8 * tt + 8, 2):
            a.e(f"v_pk_mul_f32 {vr(FS+r,2)}, {vr(FS+r,2)}, s[48:49]")
        for h in range(2):
            for r in range(8 * tt + 4 * h, 8 * tt + 4 * h + 4):
                a.e(f"v_exp_f32 v{EX+r}, v{FS+r}")
            for r in range(4 * tt + 2 * h, 4 * tt + 2 * h + 2):
                a.e(f"v_max3_f32 v28, |v{FS+2*r}|, |v{FS+2*r+1}|, v28")
            a.e(f"ds_write_b128 v{vEW}, {vr(EX+8*tt+4*h)} offset:{tt*16*EP + h*16}")
    a.e(f"v_cmp_lt_f32 vcc, {f32hex(RANGE)}, v28")
    a.e(f"s_mov_b32 s{sCnt}, 4")
    a.e("s_or_b32 s44, s44, vcc_lo")
    a.e("s_or_b32 s44, s44, vcc_hi")
    a.e("s_cmp_lg_u32 s44, 0")
    if "slow" in EXP:
        a.e(f"s_branch L_{name}_tslow")
    a.e(f"s_cbranch_scc1 L_{name}_tslow")

    def earead():
        for rt in range(2):
            for h in range(2):
                a.lds(f"ds_read_b128 {vr(EA+8*rt+4*h)}, v{vER} offset:{rt*2*EP + h*16}", ("G", rt))
        a.e(f"v_add_u32 v{vER}, {4*EP}, v{vER}")

    def tcomp(fast, early=None):
        a.wait(lg=(("G", 1),))
        for i in range(16):
            if fast:
                a.e(f"v_fma_f32 v{XS+i}, v{GB+(i&7)}, v{EA+i}, 1.0")
            else:
                a.e(f"v_add_f32 v{XS+i}, v{GB+(i&7)}, v{EA+i}")
        earead()
        for rt in range(2):
            xs = [XS + 8 * rt + i for i in range(8)]
            if not fast:
                for x in xs:
                    a.e(f"v_exp_f32 v{x}, v{x}")
                for x in xs:
                    a.e(f"v_add_f32 v{x}, 1.0, v{x}")
            for x in xs:
                a.e(f"v_rcp_f32 v{x}, v{x}")
            for x in xs:
                a.e(f"v_fma_f32 v{x}, v{x}, -2.0, 1.0")
            for i in range(4):
                a.e(f"v_cvt_pk_bf16_f32 v{PK+4*rt+i}, v{xs[2*i]}, v{xs[2*i+1]}")
            if early is not None:
                twrite(early, rt)

    def twrite(par, rt):
        a.lds(f"ds_write_b128 v{vJ}, {vr(PK+4*rt)} offset:{J_B + par*16384 + rt*1024}", "W")

    def tsync():
        a.wait(lg_all=True)
        a.e("s_barrier")

    TSH = os.environ.get("TSH", "0") == "1"
    for fast in (1, 0):
        a.lg = []
        if not fast:
            a.label(f"L_{name}_tslow")
            for h in range(2):
                a.e(f"buffer_load_dwordx4 {vr(GB+4*h)}, v{vG}, {sr(sG)}, s38 offen offset:{h*16}")
            for i in range(4):
                a.e(f"ds_write_b128 v{vEW}, {vr(FS+4*i)} offset:{(i>>1)*16*EP + (i&1)*16}")
        earead()
        a.e("s_waitcnt vmcnt(0) lgkmcnt(0)")
        a.vm, a.lg = [], []
        stamp(5)
        if TSH and fast:
            tcomp(fast, 0)
            tsync()
            tcomp(fast)
            a.wait(lg_all=True)
            a.e(f"s_mov_b32 s{sCnt}, 3")
            a.label(f"L_{name}_tloop{fast}")
            for par in (1, 0):
                twrite(par, 0)
                twrite(par, 1)
                tcomp(fast)
                tsync()
            a.e(f"s_sub_u32 s{sCnt}, s{sCnt}, 1")
            a.e(f"s_cmp_lg_u32 s{sCnt}, 0")
            a.e(f"s_cbranch_scc1 L_{name}_tloop{fast}")
            twrite(1, 0)
            twrite(1, 1)
            tsync()
        else:
            a.label(f"L_{name}_tloop{fast}")
            for par in (0, 1):
                tcomp(fast, par)
                tsync()
            a.e(f"s_sub_u32 s{sCnt}, s{sCnt}, 1")
            a.e(f"s_cmp_lg_u32 s{sCnt}, 0")
            a.e(f"s_cbranch_scc1 L_{name}_tloop{fast}")
        stamp(8)
        if fast:
            a.e(f"s_branch L_{name}_fin")
    a.label(f"L_{name}_fin")
    if STAMP:
        a.e("s_waitcnt vmcnt(0)")
        stamp(9, False)
        a.e(f"s_memrealtime s[{sSt+22}:{sSt+23}]")
        a.e(f"s_cmp_lg_u32 s{sWv}, {os.environ.get('SWJ', '0')}")
        a.e(f"s_cbranch_scc1 L_{name}_done")
        a.e("s_lshl_b32 s36, s2, 7")
        a.e(f"s_add_u32 s36, s36, {WS_STAMP + 2*0x10000}")
        add64(a, 40, 30, "s36")
        a.e("s_mov_b32 s42, 128")
        a.e("s_mov_b32 s43, 0x00020000")
        a.e("s_waitcnt lgkmcnt(0)")
        a.e("v_mov_b32 v8, 0")
        for i in range(28):
            a.e(f"v_mov_b32 v0, s{sSt+i}")
            a.e(f"buffer_store_dword v0, v8, s[40:43], 0 offen offset:{4*i}")
    a.label(f"L_{name}_done")
    a.e("s_endpgm")
    return a.L, LDS, 128


def joint_kernels(ks):
    return ks + [("joint_kernel", 250, 1024) + joint_kernel("joint_kernel")]
```

```python
import os
import sys

from asmlib import Asm, vr, sr, kd, f32hex, align8
from gen10_joint import small_select, small_ptr, small_tail, joint_kernels

EXP = os.environ.get("EXP", "").split(",")

WS_W1P = 0x0000000
WS_W2P = 0x0900000
WS_H = 0x1200000
WS_FP = 0x1A00000
WS_FPS = 0x800000
WS_WF = 0x2A00000
WS_STAMP = 0x3000000

CHUNKB = 7 * 8192
FB = 1024
BB = 8 * FB
SEQB = 2 * BB
FB6 = 1088
BB6 = 8 * FB6
SPB = 6 * SEQB + 2 * BB6
TOPB = SPB + 6144
OOB = 0x7f000000
PLH, PLF = int(os.environ.get('PLH', 131072)), int(os.environ.get('PLF', 65536))
NTW, NTH, NTF = ({"0": "", "1": " nt", "2": " sc1", "3": " sc0 sc1"}[c] for c in os.environ.get("NT", "222"))


def add64(a, d, lo, off):
    a.e(f"s_add_u32 s{d}, s{lo}, {off}")
    a.e(f"s_addc_u32 s{d+1}, s{lo+1}, 0")


def eval_ops(c, t):
    e1, o1, e2, o2 = t
    ops = [f"v_add_f32 v{e1}, v{c[0]}, v{c[2]}",
           f"v_add_f32 v{o1}, v{c[1]}, v{c[3]}",
           f"v_fma_f32 v{e2}, v{c[2]}, 4.0, v{c[0]}",
           f"v_fma_f32 v{o2}, v{c[3]}, 4.0, v{c[1]}",
           f"v_add_f32 v{c[1]}, v{e1}, v{o1}",
           f"v_sub_f32 v{c[2]}, v{e1}, v{o1}",
           f"v_fma_f32 v{c[3]}, v{o2}, 2.0, v{e2}",
           f"v_fma_f32 v{e2}, v{o2}, -2.0, v{e2}",
           f"v_fmamk_f32 v{e1}, v{c[0]}, {f32hex(15.0)}, v{e2}",
           f"v_fmamk_f32 v{e1}, v{o1}, {f32hex(10.0)}, v{e1}"]
    return ops, [c[1], c[2], c[3], e2, e1]


def wprep(a, karg, wsoff, ws_loaded, barrier=False, extra=None, small=None):
    a.vm, a.lg = [], []
    a.e(f"s_load_dwordx2 s[8:9], s[0:1], {karg}")
    if not ws_loaded:
        a.e("s_load_dwordx2 s[30:31], s[0:1], 72")
    a.e("s_lshr_b32 s22, s20, 8")
    a.e("s_bfe_u32 s23, s20, 0x40004")
    a.e("s_bfe_u32 s24, s20, 0x30001")
    a.e("s_and_b32 s21, s20, 1")
    a.e("v_lshrrev_b32 v2, 4, v1")
    a.e("v_lshlrev_b32 v2, 12, v2")
    a.e("v_and_b32 v3, 15, v1")
    a.e("v_lshl_add_u32 v2, v3, 2, v2")
    a.e("s_lshl_b32 s26, s22, 3")
    a.e("s_lshr_b32 s27, s23, 3")
    a.e("s_add_u32 s26, s26, s27")
    a.e("s_lshl_b32 s26, s26, 17")
    a.e("s_and_b32 s27, s23, 7")
    a.e("s_lshl_b32 s27, s27, 14")
    a.e("s_add_u32 s26, s26, s27")
    a.e("s_lshl_b32 s27, s24, 6")
    a.e("s_add_u32 s26, s26, s27")
    a.e(f"s_mov_b32 s10, {31*131072}")
    a.e("s_mov_b32 s11, 0x00020000")
    if small:
        small_select(a)
        a.e("s_add_u32 s37, s26, s5")
        a.e("s_add_u32 s38, s37, s5")
        a.e("s_add_u32 s39, s38, s5")
    else:
        for p in range(1, 4):
            a.e(f"s_add_u32 s{36+p}, s26, {2*131072*p}")
    a.e("s_waitcnt lgkmcnt(0)")
    if small:
        small_ptr(a)
    R = 16
    for e2 in range(4):
        for p in range(4):
            for e in (2 * e2, 2 * e2 + 1):
                a.vmem(f"buffer_load_dword v{R+p*8+e}, v2, s[8:11], s{36+p if p else 26} offen offset:{e*512}", ("L", e2))
    if small:
        a.e("s_cmp_lt_u32 s3, 12")
        a.e(f"s_cbranch_scc1 {small}")
    add64(a, 12, 30, wsoff)
    a.e(f"s_mov_b32 s14, {8*16*CHUNKB}")
    a.e("s_mov_b32 s15, 0x00020000")
    a.e("v_lshlrev_b32 v4, 4, v1")
    a.e("s_lshl_b32 s27, s24, 4")
    a.e("s_add_u32 s27, s27, s23")
    a.e(f"s_mul_i32 s27, s27, {CHUNKB}")
    a.e("s_lshl_b32 s28, s22, 11")
    a.e("s_add_u32 s27, s27, s28")
    a.e("s_lshl_b32 s28, s21, 10")
    a.e("s_add_u32 s27, s27, s28")
    a.e("s_cmp_eq_u32 s21, 0")
    a.e("s_mov_b32 s32, 0x07060302")
    a.e("s_cselect_b32 s32, 0x05040100, s32")
    a.e("s_mov_b32 s33, 0x03020c0c")
    a.e("s_cselect_b32 s33, 0x01000c0c, s33")
    a.e(f"s_mov_b32 s35, {f32hex(1.0/24)}")
    a.e(f"s_mov_b32 s36, {f32hex(1.0/72)}")
    if barrier:
        barrier()
    OUT = 48
    T = 76
    scale = ("0.5", "0.5", "s35", "s35", "s36")
    for e2 in range(4):
        a.wait(vm=(("L", e2),))
        if extra and e2 == int(os.environ.get("XT", "3")):
            a.vm += ["T"] * (extra() or 2)
        for p, seq in ((0, 6), (3, 0)):
            a.e(f"v_perm_b32 v{OUT+seq*4+e2}, v{R+p*8+2*e2+1}, v{R+p*8+2*e2}, s32")
        res, lists = [], []
        for e in range(2):
            cf = [T + e * 8 + i for i in range(4)]
            ops = [f"v_perm_b32 v{cf[i]}, v{cf[i]}, v{R + (3 - i) * 8 + 2 * e2 + e}, s33" for i in range(4)]
            o, rr = eval_ops(cf, [T + e * 8 + 4 + i for i in range(4)])
            ops += o + [f"v_mul_f32 v{r}, {sc}, v{r}" for r, sc in zip(rr, scale)]
            res.append(rr)
            lists.append(ops)
        for x, y in zip(*lists):
            a.e(x)
            a.e(y)
        for i in range(5):
            a.e(f"v_cvt_pk_bf16_f32 v{OUT+(1+i)*4+e2}, v{res[0][i]}, v{res[1][i]}")
    for seq in (6, 0, 1, 2, 3, 4, 5):
        a.e(f"s_add_u32 s28, s27, {seq*8192}")
        a.e(f"buffer_store_dwordx4 {vr(OUT+seq*4)}, v4, s[12:15], s28 offen{NTW}")


def prep_kernel(name):
    a = Asm()
    NWG = 268
    a.label(name)
    a.e(f"s_cmp_ge_u32 s2, {NWG}")
    a.e(f"s_cbranch_scc1 L_{name}_done")
    if "nocw" not in EXP:
        a.e("s_getpc_b64 s[62:63]")
        a.label(f"L_{name}_pc")
        a.e("s_and_b32 s3, s2, 8")
        a.e("s_lshl_b32 s3, s3, 12")
        a.e("v_lshlrev_b32 v120, 7, v0")
        a.e("v_add_u32 v120, s3, v120")
        a.e(f"v_min_u32 v120, 0x7fc0de00, v120")
        a.e("v_mov_b32 v121, s63")
        a.e("v_add_co_u32 v120, vcc, s62, v120")
        a.e("v_addc_co_u32 v121, vcc, 0, v121, vcc")
        a.e("global_load_dword v122, v[120:121], off")
    a.e("s_load_dwordx16 s[44:59], s[0:1], 0")
    a.e("s_mov_b32 s3, s2")
    a.e("s_sub_u32 s2, s2, 12")
    if "stamp" in EXP:
        a.e("s_memrealtime s[60:61]")
    a.e("v_readfirstlane_b32 s40, v0")
    a.e("s_lshr_b32 s40, s40, 6")
    a.e("s_lshl_b32 s21, s2, 2")
    a.e("s_add_u32 s20, s40, s21")
    a.e("v_and_b32 v1, 63, v0")
    wprep(a, 8, WS_W1P, False, small=f"L_{name}_small")
    if "stamp" in EXP:
        a.e("s_waitcnt vmcnt(0)")
        a.e("s_memrealtime s[62:63]")
        a.e("s_lshl_b32 s36, s2, 7")
        a.e(f"s_add_u32 s36, s36, {WS_STAMP + 3*0x10000}")
        add64(a, 40, 30, "s36")
        a.e("s_mov_b32 s42, 128")
        a.e("s_mov_b32 s43, 0x00020000")
        a.e("s_waitcnt lgkmcnt(0)")
        a.e("v_mov_b32 v8, 0")
        a.e("v_mov_b32 v0, 1")
        a.e("buffer_store_dword v0, v8, s[40:43], 0 offen")
        for i in range(4):
            a.e(f"v_mov_b32 v0, s{60+i}")
            a.e(f"buffer_store_dword v0, v8, s[40:43], 0 offen offset:{80+4*i}")
    a.label(f"L_{name}_done")
    a.e("s_endpgm")
    small_tail(a, name)
    return a.L, 4096, 128


def conv_kernel(name, cfg):
    TIN, TOUT = cfg["tin"], cfg["tout"]
    N = cfg["nchunk"]
    KSPLIT = cfg["ksplit"]
    NWG = 256
    STAMP = "stamp" in EXP
    sX, sW, sO = 8, 12, 16
    sWv, sT0, sCnt, sBo, sXo, sMask = 20, 21, 22, 23, 24, 25
    sBo2 = 26
    sK, sCb, sH = 28, 29, 32
    sSt = 60
    vL = 127
    vU, vS_, vI, vKG = 8, 9, 10, 11

    a = Asm()
    a.label(name)
    a.e(f"s_cmp_ge_u32 s2, {NWG}")
    a.e(f"s_cbranch_scc1 L_{name}_done")

    def stamp(i, fence=True):
        if STAMP:
            a.e(f"s_memtime s[{sSt+2*i}:{sSt+2*i+1}]")
            if fence:
                a.e("s_waitcnt lgkmcnt(0)")
                a.lg = []

    def rstamp(i):
        if STAMP:
            a.e(f"s_memrealtime s[{sSt+2*i}:{sSt+2*i+1}]")
            a.e("s_waitcnt lgkmcnt(0)")
            a.lg = []
    if STAMP:
        for i in range(28):
            a.e(f"s_mov_b32 s{sSt+i}, 0")
        a.e(f"s_memrealtime s[{sSt+20}:{sSt+21}]")
    stamp(0, False)
    a.e(f"s_load_dwordx2 s[4:5], s[0:1], {cfg['in_arg']}")
    a.e("s_load_dwordx2 s[30:31], s[0:1], 72")
    a.e(f"v_readfirstlane_b32 s{sWv}, v0")
    a.e(f"s_lshr_b32 s{sWv}, s{sWv}, 6")
    XL = int(os.environ.get("XL", "3"))
    a.e(f"s_and_b32 s36, s2, {(8 >> XL) - 1}")
    a.e(f"s_lshl_b32 s36, s36, {XL}")
    a.e(f"s_bfe_u32 s37, s2, {(XL << 16) | 3}")
    a.e(f"s_or_b32 s{sCb}, s36, s37")
    a.e(f"s_bfe_u32 s36, s2, {(XL << 16) | (3 - XL)}")
    a.e(f"s_lshl_b32 s36, s36, {5 - XL}")
    a.e(f"s_lshr_b32 s37, s2, {3 + XL}")
    a.e("s_or_b32 s36, s36, s37")
    if KSPLIT:
        a.e("s_lshr_b32 s33, s36, 4")
        a.e("s_and_b32 s34, s36, 7")
        a.e("s_bfe_u32 s35, s36, 0x10003")
    else:
        a.e("s_mov_b32 s33, 0")
        a.e("s_and_b32 s34, s36, 15")
        a.e("s_lshr_b32 s35, s36, 4")
    a.e(f"s_mul_i32 s{sT0}, s34, 500")
    a.e(f"s_and_b32 s{sH}, s{sWv}, 3")
    a.e(f"v_and_b32 v{vL}, 63, v0")
    a.e(f"v_lshrrev_b32 v5, 2, v{vL}")
    a.e(f"v_and_b32 v6, 3, v{vL}")
    a.e(f"s_and_b32 s42, s{sWv}, 7")
    if not KSPLIT:
        a.e("v_lshlrev_b32 v7, 15, v5")
        a.e("v_lshl_add_u32 v7, v6, 4, v7")
        a.e(f"s_lshl_b32 s41, s{sT0}, 10")
        a.e("s_sub_u32 s41, s41, 7680")
        a.e("s_lshl_b32 s37, s42, 12")
        a.e("s_add_u32 s37, s37, s41")
        a.e("v_add_u32 v7, s37, v7")
        a.e(f"s_mul_i32 s36, s35, {TIN*512}")
        a.e(f"s_mov_b32 s{sX+2}, {TIN*512}")
    else:
        a.e(f"s_lshr_b32 s41, s{sT0}, 2")
        a.e("s_sub_u32 s41, s41, 1")
        a.e("s_add_u32 s37, s41, s42")
        a.e("v_lshl_add_u32 v7, v5, 3, s37")
        a.e(f"s_mul_i32 s36, s35, {32*PLH}")
        a.e(f"s_add_u32 s36, s36, {cfg['in_off']}")
        a.e(f"s_mov_b32 s{sX+2}, {32*PLH}")

    def haddr(dst, vG, vlane, p, t):
        a.e(f"s_add_u32 s37, s33, {2*p - 7 & 0xffffffff}")
        a.e(f"v_lshl_add_u32 v{t}, v{vG}, 3, s37")
        a.e(f"v_cmp_gt_u32 vcc, {TIN}, v{t}")
        a.e(f"s_mul_i32 s37, s33, {PLH}")
        a.e(f"s_add_u32 s37, s37, {(2*p & 3)*PLH + (p >> 1)*64}")
        a.e(f"v_lshl_add_u32 v{dst}, v{vG}, 7, s37")
        a.e(f"v_add_u32 v{dst}, v{dst}, v{vlane}")
        a.e(f"v_mov_b32 v{t}, {OOB}")
        a.e(f"v_cndmask_b32 v{dst}, v{t}, v{dst}, vcc")
    a.e(f"s_mov_b32 s{sX+3}, 0x00020000")
    a.e(f"s_mov_b32 s{sMask}, 0xffff0000")
    a.e("s_waitcnt lgkmcnt(0)")
    stamp(1)
    add64(a, sX, 4, "s36")
    OB = 512

    def wsrd():
        a.e(f"s_lshl_b32 s36, s{sCb}, 4")
        a.e("s_lshl_b32 s37, s33, 3")
        a.e("s_add_u32 s36, s36, s37")
        a.e(f"s_mul_i32 s36, s36, {CHUNKB}")
        a.e(f"s_add_u32 s36, s36, {cfg['w_off']}")
        add64(a, sW, 30, "s36")
        a.e(f"s_mov_b32 s{sW+2}, {N*CHUNKB}")
        a.e(f"s_mov_b32 s{sW+3}, 0x00020000")

    def lds_throttle(need=1):
        if len(a.lg) + need > 15:
            a.e("s_waitcnt lgkmcnt(8)")
            a.lg = a.lg[-8:]

    def mf(acc, b, av):
        if "nomfma" not in EXP:
            a.e(f"v_mfma_f32_16x16x32_bf16 {vr(acc)}, {vr(b)}, {vr(av)}, {vr(acc)}")

    def steady(gen, per, strict=True):
        st = []
        for it in range(3):
            st.append(len(a.L))
            for pos in range(per):
                gen(per * it + pos, pos)
        st.append(len(a.L))
        bodies = [a.L[st[i]:st[i + 1]] for i in range(3)]
        if strict:
            assert bodies[1] == bodies[2], "loop not steady"
            assert bodies[0] == bodies[1], "loop entry not steady"
        del a.L[st[0]:]
        return bodies[1]

    a.e(f"s_cmp_ge_u32 s{sWv}, 8")
    a.e(f"s_cbranch_scc1 L_{name}_helper")

    ACC = 0
    vF, vA8, vD, vB = (120, 121), 122, (123, 124), 125
    vP = (116, 117, 118)
    vBZ = 119
    S, T, O = 96, 108, 64
    if not KSPLIT:
        a.e(f"s_add_u32 s37, s41, {128*4096}")
        a.e(f"v_lshl_add_u32 v{T}, v{vL}, 4, s37")
        for p in range(1, 3):
            a.e(f"v_add_u32 v{T+p}, {p*1024}, v{T}")
    else:
        a.e("s_add_u32 s37, s41, 128")
        a.e("v_mov_b32 v16, s37")
        a.e(f"v_mul_u32_u24 v17, {4*PLH}, v5")
        a.e("v_lshl_add_u32 v17, v6, 4, v17")
        for p in range(3):
            haddr(T + p, 16, 17, p, 18)
    wsrd()
    PLO = PLF if KSPLIT else PLH
    a.e(f"s_mul_i32 s36, s35, {32*PLO}")
    a.e(f"s_add_u32 s36, s36, {cfg['out_off']}")
    if KSPLIT:
        a.e(f"s_mul_i32 s37, s33, {WS_FPS}")
        a.e("s_add_u32 s36, s36, s37")
    add64(a, sO, 30, "s36")
    a.e(f"s_mov_b32 s{sO+2}, {32*PLO}")
    a.e(f"s_mov_b32 s{sO+3}, 0x00020000")
    a.e(f"v_and_b32 v{vI}, 15, v{vL}")
    a.e(f"v_lshrrev_b32 v{vKG}, 4, v{vL}")
    t = 16
    for d, sh in ((vU, 0), (vS_, 1)):
        a.e(f"v_add_u32 v{d}, {sh}, v{vI}")
        a.e(f"v_and_b32 v{t}, 4, v{d}")
        a.e(f"v_lshrrev_b32 v{t}, 1, v{t}")
        a.e(f"v_xor_b32 v{t}, v{vKG}, v{t}")
        a.e(f"v_lshlrev_b32 v{t}, 4, v{t}")
        a.e(f"v_lshl_add_u32 v{d}, v{d}, 6, v{t}")
    a.e(f"s_lshr_b32 s38, s{sH}, 1")
    a.e(f"s_and_b32 s39, s{sH}, 1")
    a.e("s_add_u32 s40, s38, 4")
    a.e("s_lshl_b32 s43, s39, 10")
    a.e(f"s_cmp_lt_u32 s{sWv}, 4")
    a.e(f"s_cselect_b32 s40, s{sWv}, s40")
    a.e("s_cselect_b32 s36, 0, s43")
    a.e("s_lshl_b32 s37, s40, 13")
    a.e("s_add_u32 s37, s37, s36")
    a.e(f"v_lshl_add_u32 v{vB}, v{vL}, 4, s37")
    a.e(f"s_mul_i32 s37, s40, {SEQB}")
    a.e(f"v_add_u32 v{vF[0]}, s37, v{vU}")
    a.e(f"v_add_u32 v{vF[1]}, s37, v{vS_}")
    a.e("s_lshl_b32 s37, s40, 10")
    a.e(f"s_add_u32 s37, s37, {SPB}")
    a.e(f"v_lshl_add_u32 v{t}, v{vKG}, 4, s37")
    a.e(f"v_cmp_eq_u32 vcc, 15, v{vI}")
    a.e(f"v_mov_b32 v{t+1}, {BB}")
    a.e(f"v_mov_b32 v{t+2}, {-BB & 0xffffffff}")
    a.e(f"v_mov_b32 v{t+3}, 64")
    a.e(f"v_cndmask_b32 v{vA8}, v{vF[1]}, v{t}, vcc")
    a.e(f"v_cndmask_b32 v{vD[0]}, v{t+1}, v{t+3}, vcc")
    a.e(f"v_cndmask_b32 v{vD[1]}, v{t+2}, v{t+3}, vcc")
    a.e(f"v_lshl_add_u32 v126, v{vL}, 4, s37")
    tabs = {44: (1.0, 1.0, 1.0, 1.0, 1.0, 16.0), 45: (0.0, 1.0, -1.0, 2.0, -2.0, 8.0),
            46: (0.0, 1.0, 1.0, 4.0, 4.0, 4.0)}
    for sg, tab in tabs.items():
        a.e(f"s_mov_b32 s{sg}, {f32hex(tab[0])}")
    for q in range(1, 6):
        a.e(f"s_cmp_eq_u32 s40, {q}")
        for sg, tab in tabs.items():
            if tab[q] != tab[0]:
                a.e(f"s_cselect_b32 s{sg}, {f32hex(tab[q])}, s{sg}")

    def special_rows():
        a.wait(vm=("SP",))
        for d in range(4):
            for p in range(3):
                a.e(f"v_lshlrev_b32 v{T+p}, 16, v{S+4*p+d}")
                a.e(f"v_and_b32 v{T+3+p}, s{sMask}, v{S+4*p+d}")
            for h in range(2):
                a.e(f"v_mul_f32 v{T+6+h}, s44, v{T+3*h}")
            for h in range(2):
                a.e(f"v_fmac_f32 v{T+6+h}, s45, v{T+3*h+1}")
            for h in range(2):
                a.e(f"v_fmac_f32 v{T+6+h}, s46, v{T+3*h+2}")
            a.e(f"v_cvt_pk_bf16_f32 v{S+d}, v{T+6}, v{T+7}")
        a.e(f"ds_write_b128 v126, {vr(S)}")

    def own_read(k, g, reg, tag, last=False):
        if g == 8:
            base, off = vA8, 0
        else:
            base, off = vF[g >> 3], (k & 1) * BB + (g & 7) * FB
        a.lds(f"ds_read_b128 {vr(reg)}, v{base} offset:{off}", tag)
        if g == 8 and not last:
            a.e(f"v_add_u32 v{vA8}, v{vD[k & 1]}, v{vA8}")

    UNIT = [(s * SEQB, s * SEQB + BB) for s in range(4)] + [(4 * SEQB, TOPB), (5 * SEQB, TOPB + 8192),
            (6 * SEQB, TOPB + 16384), (TOPB + 24576, TOPB + 32768)]
    EA = 96

    def ex_addr(sbase):
        a.e(f"v_and_b32 v{EA}, 15, v{vL}")
        a.e(f"v_and_b32 v{EA+1}, 7, v{vL}")
        a.e(f"v_lshlrev_b32 v{EA+1}, 4, v{EA+1}")
        a.e(f"v_lshl_add_u32 v{EA}, v{EA}, 7, v{EA+1}")
        a.e(f"v_lshrrev_b32 v{EA+1}, 4, v{vL}")
        a.e(f"v_lshl_add_u32 v{EA}, v{EA+1}, 11, v{EA}")
        a.e(f"v_add_u32 v{EA}, s{sbase}, v{EA}")
        for f in range(1, 8):
            a.e(f"v_xor_b32 v{EA+f}, {f << 4}, v{EA}")

    def mwave(role):
        if role == 1:
            BR, AR, NR = 64, 96, 6
            steps = [("X", g) for g in range(11)]
        else:
            BR, AR, NR = 64, 88, 7
            steps = []
            for g in range(11):
                steps.append(("Y", g))
                if 1 <= g <= 9:
                    steps.append(("Z", g - 1))
        NS = len(steps)

        def bload(k, kind, q):
            if "nob" in EXP and k > 0:
                return
            so = sBo2 if q >> 1 else sBo
            if kind == "X":
                for c in range(2):
                    a.vmem(f"buffer_load_dwordx4 {vr(BR+(q*2+c)*4)}, v{vB}, {sr(sW)}, s{so} offen "
                           f"offset:{(q&1)*2048 + c*1024}", ("B", k, kind, q))
            elif kind == "Y":
                a.vmem(f"buffer_load_dwordx4 {vr(BR+q*4)}, v{vB}, {sr(sW)}, s{so} offen offset:{(q&1)*2048}",
                       ("B", k, kind, q))
            else:
                a.vmem(f"buffer_load_dwordx4 {vr(BR+16+q*4)}, v{vBZ}, {sr(sW)}, s{sBo} offen offset:{q*2048}",
                       ("B", k, kind, q))

        def rd(k, n, last=False):
            kind, g = steps[n]
            reg = AR + 4 * (n % NR)
            if kind == "Z":
                base, off = (vP[0], g * FB6) if g < 6 else (vP[1], (g - 6) * FB6) if g < 8 else (vP[2], 0)
                a.lds(f"ds_read_b128 {vr(reg)}, v{base} offset:{(k & 1)*BB6 + off}", ("A", k, n))
            else:
                own_read(k, g, reg, ("A", k, n), last)

        for i in range(64):
            a.e(f"v_mov_b32 v{ACC+i}, 0")
        if "nob0" not in EXP:
            a.e("s_barrier")
            for p in range(3):
                a.vmem(f"buffer_load_dwordx4 {vr(S+4*p)}, v{T+p}, {sr(sX)}, 0 offen", "SP")
        a.e(f"s_mov_b32 s{sBo}, 0")
        a.e(f"s_mov_b32 s{sBo2}, 4096")
        for st in steps:
            if st and st[1] >= 7:
                bload(0, st[0], st[1] - 7)
        a.e(f"s_mov_b32 s{sBo}, {CHUNKB}")
        a.e(f"s_mov_b32 s{sBo2}, {CHUNKB + 4096}")
        special_rows()
        if role == 2:
            a.e(f"v_and_b32 v126, 15, v{vL}")
            a.e("v_lshlrev_b32 v126, 2, v126")
            a.e(f"v_add_u32 v126, {6*SEQB + 1024}, v126")
            a.e(f"ds_write_b32 v126, v{ACC}")
            a.e(f"ds_write_b32 v126, v{ACC} offset:{BB6}")
        a.e("s_waitcnt lgkmcnt(0)")
        a.e("s_barrier")
        stamp(7)
        rstamp(12)
        a.e(f"s_mov_b32 s{sCnt}, {N//2}")
        a.e(f"s_setprio {os.environ.get(f'PM{role}', '2')}")

        CO = int(os.environ.get(f"CO{role}", "0" if role == 1 else "5"))
        assert CO < NR
        FM = int("fmaj" in EXP)
        vE = (vD[0], vD[1])

        def period(k, _, last=False):
            if "mst" in EXP and _ == 0:
                stamp(2)
            if "bst" in EXP and _ == 1 and not last:
                a.e("s_memtime s[90:91]")
                a.e("s_waitcnt vmcnt(0) lgkmcnt(0)")
                a.e("s_memtime s[92:93]")
                a.e("s_waitcnt lgkmcnt(0)")
                a.e("s_sub_u32 s92, s92, s90")
                a.e(f"s_add_u32 s{sSt+4}, s{sSt+4}, s92")
                a.e(f"s_max_u32 s{sSt+6}, s{sSt+6}, s92")
                a.vm = []
            for n in range(NR):
                rd(k, n, last)
            pend = []

            def flush(n, cnt):
                while pend and pend[0][0] <= n and cnt > 0:
                    _, h, f = pend.pop(0)
                    t = vE[(h + f) & 1]
                    a.e(f"v_xor_b32 v{t}, {f << 4}, v{vX0[h]}")
                    lds_throttle()
                    a.lds(f"ds_write_b128 v{t}, {vr(ACC + h*32 + f*4)}", "E")
                    cnt -= 1

            for n, st in enumerate(steps):
                if CO and n == NS - CO and not last:
                    a.wait(lg_all=True)
                    if "mst" in EXP and _ == 0:
                        stamp(3)
                    a.e("s_barrier")
                    if "mst" in EXP and _ == 0:
                        stamp(4)
                kind, g = st
                nt = 2 if kind == "Z" else 4
                qs = [q for q in range(nt) if 0 <= g - q <= 7]
                if FM and kind == "X":
                    if g >= 3:
                        f = g - 3
                        for c in range(2):
                            for q in range(4):
                                a.wait(lg=(("A", k, f + q),), vm=(("B", k, kind, q),))
                                mf(ACC + 32 * c + f * 4, BR + q * 8 + 4 * c, AR + 4 * ((f + q) % NR))
                        if f + NR < NS:
                            rd(k, f + NR, last)
                        if g == 10 and not last:
                            for q in range(4):
                                bload(k + 1, kind, q)
                    qs = []
                else:
                    a.wait(lg=(("A", k, n),), vm=tuple(("B", k, kind, q) for q in qs))
                reg = AR + 4 * (n % NR)
                for q in qs:
                    f = g - q
                    if kind == "X":
                        mf(ACC + f * 4, BR + q * 8, reg)
                        mf(ACC + 32 + f * 4, BR + q * 8 + 4, reg)
                    elif kind == "Y":
                        mf(ACC + f * 4, BR + q * 4, reg)
                    else:
                        mf(ACC + 32 + f * 4, BR + 16 + q * 4, reg)
                if g >= 7 and not last and not (FM and kind == "X"):
                    bload(k + 1, kind, g - 7)
                if n + NR < NS and not (FM and kind == "X"):
                    rd(k, n + NR, last)
                if last:
                    flush(n, 2)
                    f = g - (nt - 1)
                    if f >= 0:
                        if kind == "X":
                            pend.append((n + 1, 0, f))
                            pend.append((max(n + 1, NS - NR + 1 + 3 * FM), 1, f))
                            pend.sort()
                        else:
                            pend.append((n + 3, 0 if kind == "Y" else 1, f))
                    if kind == "X" and n == NS - NR + 3 * FM:
                        a.wait(lg=(("A", k, NS - 1),))
            if last:
                a.e("s_nop 7")
                flush(1000, 1000)
                return
            a.e(f"s_add_u32 s{sBo}, s{sBo}, {CHUNKB}")
            a.e(f"s_add_u32 s{sBo2}, s{sBo2}, {CHUNKB}")
            assert not a.lg
            if "mst" in EXP and _ == 0:
                stamp(5)
            if not CO:
                a.e("s_barrier")
            if "mst" in EXP and _ == 0:
                stamp(6)

        def period2(k, pos):
            if pos == 1:
                a.e(f"s_sub_u32 s{sCnt}, s{sCnt}, 1")
                a.e(f"s_cmp_eq_u32 s{sCnt}, 0")
                a.e(f"s_cbranch_scc1 L_{name}_mlast{role}")
                state[0] = (list(a.vm), k)
            period(k, pos)

        state = [None]
        body = steady(period2, 2, "nob" not in EXP)
        if "nob" in EXP:
            a.e("s_waitcnt vmcnt(0)")
        a.label(f"L_{name}_mloop{role}")
        a.L.extend(body)
        a.e(f"s_branch L_{name}_mloop{role}")
        a.label(f"L_{name}_mlast{role}")
        a.vm, a.lg = state[0][0], []
        vX0 = (vB, 126)
        a.e(f"v_and_b32 v{vX0[0]}, 15, v{vL}")
        a.e(f"v_and_b32 v{vX0[1]}, 7, v{vL}")
        a.e(f"v_lshlrev_b32 v{vX0[1]}, 4, v{vX0[1]}")
        a.e(f"v_lshl_add_u32 v{vX0[0]}, v{vX0[0]}, 7, v{vX0[1]}")
        a.e(f"v_lshrrev_b32 v{vX0[1]}, 4, v{vL}")
        a.e(f"v_lshl_add_u32 v{vX0[0]}, v{vX0[1]}, 11, v{vX0[0]}")
        if role == 1:
            a.e(f"s_lshl_b32 s36, s{sWv}, 14")
            a.e("s_add_u32 s37, s36, 8192")
        else:
            for sg, tab in ((36, [UNIT[4 + (h >> 1)][h & 1] for h in range(4)]),
                            (37, [UNIT[6 + (h >> 1)][h & 1] for h in range(4)])):
                a.e(f"s_mov_b32 s{sg}, {tab[0]}")
                for h in range(1, 4):
                    a.e(f"s_cmp_eq_u32 s{sH}, {h}")
                    a.e(f"s_cselect_b32 s{sg}, {tab[h]}, s{sg}")
        a.e(f"v_add_u32 v{vX0[1]}, s37, v{vX0[0]}")
        a.e(f"v_add_u32 v{vX0[0]}, s36, v{vX0[0]}")
        period(state[0][1], 1, True)
        stamp(8, False)
        rstamp(13)
        a.e("s_setprio 0")
        a.vm, a.lg = [], []

    a.e(f"s_cmp_ge_u32 s{sWv}, 4")
    a.e(f"s_cbranch_scc1 L_{name}_m2")
    vm0 = list(a.vm)
    mwave(1)
    a.e(f"s_branch L_{name}_epi")
    a.label(f"L_{name}_m2")
    a.vm, a.lg = list(vm0), []
    a.e(f"s_mul_i32 s37, s38, {2*FB6}")
    a.e(f"s_add_u32 s37, s37, {6*SEQB}")
    a.e(f"v_add_u32 v{vP[0]}, s37, v{vU}")
    a.e(f"v_add_u32 v{vP[2]}, s37, v{vS_}")
    a.e(f"v_add_u32 v{vP[1]}, {6*SEQB + 6*FB6}, v{vU}")
    a.e("s_cmp_eq_u32 s38, 0")
    a.e(f"s_cbranch_scc1 L_{name}_hh0")
    a.e(f"v_add_u32 v{vP[1]}, {6*SEQB}, v{vS_}")
    a.label(f"L_{name}_hh0")
    a.e("s_lshl_b32 s37, s38, 12")
    a.e("s_add_u32 s37, s37, s43")
    a.e(f"s_add_u32 s37, s37, {6*8192}")
    a.e(f"v_lshl_add_u32 v{vBZ}, v{vL}, 4, s37")
    mwave(2)
    a.e(f"s_branch L_{name}_epi")

    a.label(f"L_{name}_helper")
    a.vm, a.lg = [], []
    a.e("s_setprio 3")
    PB = (0, 32)
    XO = 64
    TMP = 76
    vX = 92
    vW = (96, 97, 98)

    def praw(b, half, p):
        return PB[b] + half * 16 + p * 4

    sXo2 = 27

    def xload(pair, p):
        if KSPLIT:
            half, q = p >> 1, p & 1
            for r in (q, q + 2):
                a.vmem(f"buffer_load_dwordx4 {vr(praw(pair & 1, half, r))}, v{vX+r}, {sr(sX)}, "
                       f"s{sXo2 if half else sXo} offen", ("X", pair))
            return
        for half in range(2):
            a.vmem(f"buffer_load_dwordx4 {vr(praw(pair & 1, half, p))}, v{vX+p}, {sr(sX)}, "
                   f"s{sXo} offen offset:{half*64}", ("X", pair))
        a.e(f"v_add_u32 v{vX+p}, 128, v{vX+p}")

    def uregs(chunk):
        return [praw((chunk >> 1) & 1, chunk & 1, p) for p in range(4)]

    def wr(chunk, i):
        if "nowr" in EXP:
            return
        u = uregs(chunk)
        reg, seq = [(XO, 3), (XO + 4, 4), (XO + 8, 5), (u[0], 0), (u[1], 1), (u[2], 2), (u[3], 6)][i]
        lds_throttle()
        if seq == 6:
            a.lds(f"ds_write_b128 v{vW[2]}, {vr(reg)} offset:{(chunk & 1)*BB6}", "W")
        else:
            a.lds(f"ds_write_b128 v{vW[seq >> 2]}, {vr(reg)} offset:{(seq & 3)*SEQB + (chunk & 1)*BB}", "W")

    def tr_ops(chunk):
        u = uregs(chunk)
        o = [u[1], u[2], XO, XO + 4, XO + 8]
        ops = []
        for d in range(4):
            lo = [TMP + p for p in range(4)]
            hi = [TMP + 8 + p for p in range(4)]
            for p in range(4):
                ops.append(f"v_lshlrev_b32 v{lo[p]}, 16, v{u[p]+d}")
                ops.append(f"v_and_b32 v{hi[p]}, s{sMask}, v{u[p]+d}")
            o1, r1 = eval_ops(lo, [TMP + 4 + i for i in range(4)])
            o2, r2 = eval_ops(hi, [TMP + 12 + i for i in range(4)])
            for x, y in zip(o1, o2):
                ops += [x, y]
            for i in range(5):
                ops.append(f"v_cvt_pk_bf16_f32 v{o[i]+d}, v{r1[i]}, v{r2[i]}")
        if "notr" in EXP:
            ops = ["s_nop 0"] * 8
        return ops

    if KSPLIT:
        a.e("v_lshlrev_b32 v8, 4, v6")
    for p in range(4):
        if KSPLIT:
            haddr(vX + p, 7, 8, p, 9)
        else:
            a.e(f"v_add_u32 v{vX+p}, {p*1024}, v7")
    a.e(f"v_and_b32 v{TMP}, 4, v5")
    a.e(f"v_lshrrev_b32 v{TMP}, 1, v{TMP}")
    a.e(f"v_xor_b32 v{TMP}, v6, v{TMP}")
    a.e(f"v_lshlrev_b32 v{TMP}, 4, v{TMP}")
    a.e(f"v_lshl_add_u32 v{TMP}, v5, 6, v{TMP}")
    a.e(f"s_mov_b32 s{sXo}, 0")
    a.e(f"s_mov_b32 s{sXo2}, {4*PLH}")
    stamp(2)
    P0 = os.environ.get("P0", "0")
    if P0 == "0" or KSPLIT:
        for p in range(4):
            xload(0, p)
            if p == 1 and P0 == "2":
                a.e("s_barrier")
    else:
        for half in range(2):
            for p in range(4):
                a.vmem(f"buffer_load_dwordx4 {vr(praw(0, half, p))}, v{vX+p}, {sr(sX)}, s{sXo} offen offset:{half*64}", ("X", 0))
            if half == 0 and P0 == "2":
                a.e("s_barrier")
        for p in range(4):
            a.e(f"v_add_u32 v{vX+p}, 128, v{vX+p}")
    if P0 != "2":
        a.e("s_barrier")
    a.e(f"s_mul_i32 s36, s42, {FB}")
    a.e(f"v_add_u32 v{vW[0]}, s36, v{TMP}")
    a.e(f"v_add_u32 v{vW[1]}, {4*SEQB}, v{vW[0]}")
    a.e(f"s_mul_i32 s36, s42, {FB6}")
    a.e(f"s_add_u32 s36, s36, {6*SEQB}")
    a.e(f"v_add_u32 v{vW[2]}, s36, v{TMP}")
    stamp(3)
    a.e(f"s_waitcnt vmcnt({0 if P0 == '0' else 4})")
    stamp(4)
    a.e(f"s_mov_b32 s{sK}, 0")
    a.e(f"s_mov_b32 s{sCnt}, {N//4}")
    a.e(f"s_cmp_ge_u32 s{sWv}, 12")
    a.e(f"s_cbranch_scc1 L_{name}_h2")

    def hwave(role):
        SH = 33 * int(os.environ.get(f"SH{role}", "0" if role == 1 else "4"))
        ahead = 2 if SH else 1
        a.vm, a.lg = [], []
        wr(0, 3)
        wr(0, 6)
        for op in tr_ops(0):
            a.e(op)
        for i in (0, 1, 2, 4, 5):
            wr(0, i)
        a.e("s_waitcnt vmcnt(0)")
        NF = int(os.environ.get("NF", "2"))
        if KSPLIT:
            a.e(f"s_mov_b32 s{sXo}, {8*PLH}")
            a.e(f"s_mov_b32 s{sXo2}, {12*PLH}")
        for p in range(4 if SH else NF):
            xload(1, p)
        stamp(5)
        a.wait(lg_all=True)
        stamp(6)
        a.e("s_barrier")
        stamp(7)
        rstamp(12)
        PA, PB_ = os.environ.get(f'PH{role}', '11' if role == 1 else '00')
        a.e(f"s_setprio {PA}")
        for op in tr_ops(1)[:SH]:
            a.e(op)
        XP = [float(x) for x in os.environ.get(f"XP{role}", "0.2,0.6,0.02,0.15" if SH else "0.3,0.7,0.1,0.5").split(",")]

        def period(k, pos, last=False):
            pair = (k >> 1) + 2 if SH else (k + 3) >> 1
            first = not (k & 1) if SH else (k & 1)
            if pos == 4 - ahead and not last:
                a.e(f"s_cmp_eq_u32 s{sCnt}, 1")
                a.e(f"s_cbranch_scc1 L_{name}_hlast{role}")
            if "hst" in EXP and pos == 1:
                stamp(2)
            V1 = tr_ops(k + 1)[SH:]
            V2 = [] if last else tr_ops(k + 2)[:SH]
            V = V1 + V2
            n = len(V)
            ev = {}

            def at(i, f):
                ev.setdefault(max(0, min(int(i), n)), []).append(f)

            def stores():
                if "hst" in EXP and pos == 1:
                    stamp(3)
                for i in range(7):
                    wr(k + 1, i)
                if "hst" in EXP and pos == 1:
                    stamp(4)
                if PA != PB_:
                    a.e(f"s_setprio {PB_}")
            if PA != PB_:
                a.e(f"s_setprio {PA}")
            at(len(V1), stores)
            if not last:
                if not KSPLIT:
                    a.e(f"s_cmp_lt_u32 s{sK}, {N - 2 - ahead}")
                    a.e(f"s_cselect_b32 s{sXo}, 0, {OOB}")
                elif first:
                    a.e(f"s_add_u32 s{sXo}, s{sXo}, {8*PLH}")
                    a.e(f"s_add_u32 s{sXo2}, s{sXo2}, {8*PLH}")
                at(len(V1) if SH else 0, lambda: a.wait(vm=(("X", (k + ahead) >> 1),)))
                if "nox" not in EXP:
                    for p in (range(NF) if first else range(NF, 4)):
                        w = len(V1) + XP[p] * SH if SH and first else XP[p] * n
                        at(w, lambda p=p: xload(pair, p))
            for i in range(n + 1):
                for f in ev.get(i, []):
                    f()
                if i < n:
                    a.e(V[i])
            if not last:
                a.e(f"s_add_u32 s{sK}, s{sK}, 1")
            if "hst" in EXP and pos == 1:
                stamp(5)
            a.e("s_waitcnt lgkmcnt(0)")
            a.lg = []
            a.e("s_barrier")
            if "hst" in EXP and pos == 1:
                stamp(6)

        body = steady(period, 4, "nox" not in EXP)
        a.label(f"L_{name}_hloop{role}")
        a.L.extend(body)
        a.e(f"s_sub_u32 s{sCnt}, s{sCnt}, 1")
        a.e(f"s_branch L_{name}_hloop{role}")
        a.label(f"L_{name}_hlast{role}")
        a.vm, a.lg = [], []

        def last_period():
            vm = a.vm
            a.vm, a.lg = [], []
            if SH:
                a.e(f"s_mov_b32 s{sMask}, 0xffff0000")
                period(2, 2, True)
            a.vm = vm
        if role == 1 or KSPLIT:
            last_period()
        else:
            assert SH
            a.e("s_waitcnt vmcnt(0)")
            a.e(f"s_mov_b32 s58, s{sWv}")
            a.e(f"s_lshl_b32 s20, s2, 2")
            a.e(f"s_add_u32 s20, s20, s{sH}")
            a.e(f"v_mov_b32 v1, v{vL}")
            wprep(a, 16, WS_W2P, True, barrier=last_period)
            a.e(f"s_mov_b32 s{sWv}, s58")
        stamp(8)
        rstamp(13)
        a.e(f"s_branch L_{name}_end")

    hwave(1)
    a.label(f"L_{name}_h2")
    hwave(2)

    a.label(f"L_{name}_epi")
    R0 = (120, 121, 125)
    vO, vBW = 122, 123
    BND = SPB
    t0, t1, t2, t3 = 108, 109, 110, 111
    a.e(f"v_and_b32 v{t0}, 15, v{vL}")
    a.e(f"v_lshrrev_b32 v{t1}, 4, v{vL}")
    a.e(f"v_lshrrev_b32 v{t2}, 3, v{t0}")
    a.e(f"s_lshl_b32 s36, s{sWv}, 1")
    a.e(f"v_add_u32 v{t2}, s36, v{t2}")
    a.e(f"v_xor_b32 v{t3}, v{t2}, v{t0}")
    a.e(f"v_and_b32 v{t3}, 7, v{t3}")
    a.e(f"v_lshlrev_b32 v{t3}, 4, v{t3}")
    a.e(f"v_lshl_add_u32 v{t3}, v{t2}, 7, v{t3}")
    a.e(f"v_lshl_add_u32 v{R0[0]}, v{t1}, 11, v{t3}")
    a.e(f"v_add_u32 v{R0[1]}, 65536, v{R0[0]}")
    a.e(f"v_add_u32 v{R0[2]}, 131072, v{R0[0]}")
    a.e(f"s_lshl_b32 s36, s{sWv}, 9")
    a.e(f"s_add_u32 s36, s36, {BND}")
    a.e(f"v_lshl_add_u32 v{vBW}, v{t1}, 7, s36")
    a.e(f"s_lshl_b32 s36, s{sWv}, 4")
    a.e(f"v_add_u32 v{t0}, s36, v{t0}")
    a.e(f"v_lshlrev_b32 v{t2}, 6, v{t0}")
    a.e(f"v_lshl_add_u32 v{t2}, v{t1}, 4, v{t2}")
    a.e(f"s_mul_i32 s36, s{sCb}, {4*PLO}")
    a.e(f"s_lshl_b32 s37, s{sT0}, 4")
    a.e("s_add_u32 s36, s36, s37")
    a.e(f"v_add_u32 v{t2}, s36, v{t2}")
    a.e(f"v_mov_b32 v{t3}, {OOB}")
    a.e(f"v_cmp_gt_u32 vcc, 125, v{t0}")
    k0 = -2.0 * 1.4426950408889634 * 0.7978845608028654
    consts = [-1.0 / 3, 0.25, -5.0, -32.0 / 9, -8.0 / 9, -2.0 / 9, -1.0 / 18, 17.0 / 9, -2.0 / 3, 0.4, -1.0 / 15, -0.2,
              k0 * 0.044715, 1.0]
    KS = [4, 6, 8, 10, 12, 14, 22, 24, 26, 32, 34, 38, 40, 42]
    for sg, cv in zip(KS, consts):
        a.e(f"s_mov_b32 s{sg}, {f32hex(cv)}")
        a.e(f"s_mov_b32 s{sg+1}, s{sg}")
    K = [sr(x, 2) for x in KS]
    a.e("s_waitcnt lgkmcnt(0)")
    a.e("s_barrier")
    if "est" in EXP:
        stamp(2)
    a.e(f"v_cndmask_b32 v{vO}, v{t3}, v{t2}, vcc")

    def P(c, s, r=0):
        return c * 32 + s * 4 + r
    Y = 64
    TB = 96
    ELS = (0, 1, 2)
    for c in range(2):
        for s_ in range(8):
            if c == 1 and s_ == 7:
                a.e("s_waitcnt lgkmcnt(7)")
            u = UNIT[s_][c]
            a.e(f"ds_read_b128 {vr(P(c, s_))}, v{R0[u >> 16]} offset:{u & 0xffff}")

    def p2(x):
        return vr(x, 2)

    def padd(d, x, y):
        return f"v_pk_add_f32 {p2(d)}, {p2(x)}, {p2(y)}"

    def psub(d, x, y):
        return f"v_pk_add_f32 {p2(d)}, {p2(x)}, {p2(y)} neg_lo:[0,1] neg_hi:[0,1]"

    def pfma(d, x, k, y, neg=False):
        return f"v_pk_fma_f32 {p2(d)}, {p2(x)}, {k}, {p2(y)}" + (" neg_lo:[0,0,1] neg_hi:[0,0,1]" if neg else "")

    def interp(c):
        seq = []
        for r in (0, 2):
            E0, A, B, C, D, Q, E6, E6b = (P(c, x, r) for x in range(8))
            y = [Y + ph * 8 + c * 4 + r for ph in range(4)]
            S1, G = E6, C
            seq.append([
                padd(y[3], E6, E6b),
                padd(S1, A, B),
                psub(A, A, B),
                padd(y[1], C, D),
                psub(G, C, D),
                pfma(y[1], S1, K[0], y[1]),
                pfma(Q, E0, K[3], Q),
                pfma(y[1], E0, K[1], y[1]),
                psub(S1, S1, E0),
                pfma(y[1], y[3], K[2], y[1]),
                psub(S1, S1, y[3]),
                pfma(Q, y[3], K[6], Q),
                psub(B, S1, y[1]),
                pfma(Q, y[1], K[5], Q),
                f"v_pk_mul_f32 {p2(y[2])}, {p2(G)}, {K[9]}",
                pfma(Q, B, K[4], Q),
                pfma(y[2], A, K[10], y[2]),
                pfma(y[0], A, K[7], Q, True),
                pfma(y[0], G, K[8], y[0]),
                pfma(y[2], y[0], K[11], y[2]),
                psub(A, A, y[0]),
                psub(A, A, y[2]),
            ])
        for ops in zip(*seq):
            for op in ops:
                a.e(op)

    a.e("s_waitcnt lgkmcnt(8)")
    interp(0)
    a.e("s_waitcnt lgkmcnt(0)")
    interp(1)
    if "est" in EXP:
        stamp(3)
    a.e("s_mov_b32 s36, 0x00010001")
    a.e("s_mov_b32 s37, 0x00010001")
    a.e("s_mov_b64 exec, s[36:37]")
    for k in range(3):
        for c in range(2):
            a.e(f"ds_write_b128 v{vBW}, {vr(P(c, ELS[k]))} offset:{(k*2+c)*16}")
    a.e("s_mov_b64 exec, -1")

    def finish(ph):
        ys = [Y + ph * 8 + i for i in range(8)]
        if not KSPLIT:
            ts = [16 + (ph & 1) * 8 + i for i in range(8)]
            ev = list(zip(ys[::2], ts[::2]))
            for y, t in ev:
                a.e(f"v_pk_mul_f32 {p2(t)}, {p2(y)}, {p2(y)}")
            for y, t in ev:
                a.e(pfma(t, t, K[12], 44))
            for y, t in ev:
                a.e(f"v_pk_mul_f32 {p2(t)}, {p2(t)}, {p2(y)}")
            for t in ts:
                a.e(f"v_exp_f32 v{t}, v{t}")
            for y, t in ev:
                a.e(f"v_pk_add_f32 {p2(t)}, {p2(t)}, {K[13]}")
            for t in ts:
                a.e(f"v_rcp_f32 v{t}, v{t}")
            for y, t in ev:
                a.e(f"v_pk_mul_f32 {p2(y)}, {p2(y)}, {p2(t)}")
        o = 48 + ph * 4
        for r in range(4):
            a.e(f"v_cvt_pk_bf16_f32 v{o+r}, v{ys[r]}, v{ys[4+r]}")
        so = ph * PLF if KSPLIT else ((ph + 3) & 3) * PLH + ((ph + 7) >> 2) * 64
        a.e(f"s_mov_b32 s44, {so}")
        a.e(f"buffer_store_dwordx4 {vr(o)}, v{vO}, {sr(sO)}, s44 offen{NTF if KSPLIT else NTH}")

    a.e(f"v_mov_b32 v44, {f32hex(k0)}")
    a.e("v_mov_b32 v45, v44")
    finish(0)
    a.e("s_waitcnt lgkmcnt(0)")
    a.e("s_barrier")
    if "est" in EXP:
        stamp(4)
    for i in range(6):
        a.e(f"ds_read_b128 {vr(TB+4*i)}, v{vBW} offset:{512 + i*16}")
    for ph in range(1, 4):
        a.e(f"s_waitcnt lgkmcnt({6 - 2*ph})")
        for c in range(2):
            for r in range(4):
                i = (ph - 1) * 8 + c * 4 + r
                a.e(f"v_mov_b32_dpp v{TB+i}, v{P(c, ELS[ph-1], r)} row_shl:1 row_mask:0xf bank_mask:0xf")
        for i in range(0, 8, 2):
            a.e(padd(Y + ph * 8 + i, Y + ph * 8 + i, TB + (ph - 1) * 8 + i))
        finish(ph)
    if "est" in EXP:
        stamp(5)
    a.label(f"L_{name}_end")
    if STAMP:
        a.e("s_waitcnt vmcnt(0)")
        stamp(9, False)
        a.e(f"s_memrealtime s[{sSt+22}:{sSt+23}]")
        a.e(f"s_cmp_lg_u32 s{sWv}, {os.environ.get('SW', '0')}")
        a.e(f"s_cbranch_scc1 L_{name}_done")
        a.e("s_lshl_b32 s36, s2, 7")
        a.e(f"s_add_u32 s36, s36, {WS_STAMP + cfg['stamp']*0x10000}")
        add64(a, 40, 30, "s36")
        a.e("s_mov_b32 s42, 128")
        a.e("s_mov_b32 s43, 0x00020000")
        a.e("s_waitcnt lgkmcnt(0)")
        a.e("v_mov_b32 v8, 0")
        for i in range(28):
            a.e(f"v_mov_b32 v0, s{sSt+i}")
            a.e(f"buffer_store_dword v0, v8, s[40:43], 0 offen offset:{4*i}")
    a.label(f"L_{name}_done")
    a.e("s_endpgm")
    return a.L, TOPB + 40960, 128


CONV1 = dict(tin=16000, tout=8000, nchunk=16, ksplit=False, in_arg=0, in_off=0, w_off=WS_W1P, out_off=WS_H, stamp=0)
CONV2 = dict(tin=8000, tout=4000, nchunk=8, ksplit=True, in_arg=72, in_off=WS_H, w_off=WS_W2P, out_off=WS_FP, stamp=1)

HEADER = f"""; Kernarg layout for this problem (80 bytes, ptrs only, base s[0:1]):
"""


def main():
    ks = [("prep_kernel", 268, 256) + prep_kernel("prep_kernel"),
          ("conv1_kernel", 256, 1024) + conv_kernel("conv1_kernel", CONV1),
          ("conv2_kernel", 256, 1024) + conv_kernel("conv2_kernel", CONV2)]
    ks = joint_kernels(ks)
    out = HEADER
    for nm, grid, block, code, lds, vg in ks:
        out += f"; @launch kernel={nm} grid=({grid},1,1) block=({block},1,1) lds={lds}\n"
    out += '.amdgcn_target "amdgcn-amd-amdhsa--gfx950"\n.text\n'
    for nm, grid, block, code, lds, vg in ks:
        if "noalign" not in EXP:
            code = align8(code)
        out += f".globl {nm}\n.p2align 8\n.type {nm},@function\n" + "\n".join(code) + "\n"
    out += '.section .rodata,"a"\n'
    for nm, grid, block, code, lds, vg in ks:
        out += ".p2align 6\n" + kd(nm, vg)
    out = out.replace("0x7fc0de00", "L_joint_kernel_done-L_prep_kernel_pc")
    path = sys.argv[1] if len(sys.argv) > 1 else "standalone__seq2seq_rnn_t_joint__speech.s"
    open(path, "w").write(out)


if __name__ == "__main__":
    main()
```

```python
import os
import sys

from asmlib import Asm, vr, sr, kd, f32hex, align8
from gen10_joint import small_select, small_ptr, small_tail, joint_kernels

EXP = os.environ.get("EXP", "").split(",")

WS_W1P = 0x0000000
WS_W2P = 0x0900000
WS_H = 0x1200000
WS_FP = 0x1A00000
WS_FPS = 0x800000
WS_WF = 0x2A00000
WS_STAMP = 0x3000000

CHUNKB = 7 * 8192
FB = 1024
BB = 8 * FB
SEQB = 2 * BB
FB6 = 1088
BB6 = 8 * FB6
SPB = 6 * SEQB + 2 * BB6
TOPB = SPB + 6144
OOB = 0x7f000000
PLH, PLF = int(os.environ.get('PLH', 131072)), int(os.environ.get('PLF', 65536))
NTW, NTH, NTF = ({"0": "", "1": " nt", "2": " sc1", "3": " sc0 sc1"}[c] for c in os.environ.get("NT", "222"))


def add64(a, d, lo, off):
    a.e(f"s_add_u32 s{d}, s{lo}, {off}")
    a.e(f"s_addc_u32 s{d+1}, s{lo+1}, 0")


def eval_ops(c, t):
    e1, o1, e2, o2 = t
    ops = [f"v_add_f32 v{e1}, v{c[0]}, v{c[2]}",
           f"v_add_f32 v{o1}, v{c[1]}, v{c[3]}",
           f"v_fma_f32 v{e2}, v{c[2]}, 4.0, v{c[0]}",
           f"v_fma_f32 v{o2}, v{c[3]}, 4.0, v{c[1]}",
           f"v_add_f32 v{c[1]}, v{e1}, v{o1}",
           f"v_sub_f32 v{c[2]}, v{e1}, v{o1}",
           f"v_fma_f32 v{c[3]}, v{o2}, 2.0, v{e2}",
           f"v_fma_f32 v{e2}, v{o2}, -2.0, v{e2}",
           f"v_fmamk_f32 v{e1}, v{c[0]}, {f32hex(15.0)}, v{e2}",
           f"v_fmamk_f32 v{e1}, v{o1}, {f32hex(10.0)}, v{e1}"]
    return ops, [c[1], c[2], c[3], e2, e1]


def wprep(a, karg, wsoff, ws_loaded, barrier=False, extra=None, small=None):
    a.vm, a.lg = [], []
    a.e(f"s_load_dwordx2 s[8:9], s[0:1], {karg}")
    if not ws_loaded:
        a.e("s_load_dwordx2 s[30:31], s[0:1], 72")
    a.e("s_lshr_b32 s22, s20, 8")
    a.e("s_bfe_u32 s23, s20, 0x40004")
    a.e("s_bfe_u32 s24, s20, 0x30001")
    a.e("s_and_b32 s21, s20, 1")
    a.e("v_lshrrev_b32 v2, 4, v1")
    a.e("v_lshlrev_b32 v2, 12, v2")
    a.e("v_and_b32 v3, 15, v1")
    a.e("v_lshl_add_u32 v2, v3, 2, v2")
    a.e("s_lshl_b32 s26, s22, 3")
    a.e("s_lshr_b32 s27, s23, 3")
    a.e("s_add_u32 s26, s26, s27")
    a.e("s_lshl_b32 s26, s26, 17")
    a.e("s_and_b32 s27, s23, 7")
    a.e("s_lshl_b32 s27, s27, 14")
    a.e("s_add_u32 s26, s26, s27")
    a.e("s_lshl_b32 s27, s24, 6")
    a.e("s_add_u32 s26, s26, s27")
    a.e(f"s_mov_b32 s10, {31*131072}")
    a.e("s_mov_b32 s11, 0x00020000")
    if small:
        small_select(a)
        a.e("s_add_u32 s37, s26, s5")
        a.e("s_add_u32 s38, s37, s5")
        a.e("s_add_u32 s39, s38, s5")
    else:
        for p in range(1, 4):
            a.e(f"s_add_u32 s{36+p}, s26, {2*131072*p}")
    a.e("s_waitcnt lgkmcnt(0)")
    if small:
        small_ptr(a)
    R = 16
    for e2 in range(4):
        for p in range(4):
            for e in (2 * e2, 2 * e2 + 1):
                a.vmem(f"buffer_load_dword v{R+p*8+e}, v2, s[8:11], s{36+p if p else 26} offen offset:{e*512}", ("L", e2))
    if small:
        a.e("s_cmp_lt_u32 s3, 12")
        a.e(f"s_cbranch_scc1 {small}")
    add64(a, 12, 30, wsoff)
    a.e(f"s_mov_b32 s14, {8*16*CHUNKB}")
    a.e("s_mov_b32 s15, 0x00020000")
    a.e("v_lshlrev_b32 v4, 4, v1")
    a.e("s_lshl_b32 s27, s24, 4")
    a.e("s_add_u32 s27, s27, s23")
    a.e(f"s_mul_i32 s27, s27, {CHUNKB}")
    a.e("s_lshl_b32 s28, s22, 11")
    a.e("s_add_u32 s27, s27, s28")
    a.e("s_lshl_b32 s28, s21, 10")
    a.e("s_add_u32 s27, s27, s28")
    a.e("s_cmp_eq_u32 s21, 0")
    a.e("s_mov_b32 s32, 0x07060302")
    a.e("s_cselect_b32 s32, 0x05040100, s32")
    a.e("s_mov_b32 s33, 0x03020c0c")
    a.e("s_cselect_b32 s33, 0x01000c0c, s33")
    a.e(f"s_mov_b32 s35, {f32hex(1.0/24)}")
    a.e(f"s_mov_b32 s36, {f32hex(1.0/72)}")
    if barrier:
        barrier()
    OUT = 48
    T = 76
    scale = ("0.5", "0.5", "s35", "s35", "s36")
    for e2 in range(4):
        a.wait(vm=(("L", e2),))
        if extra and e2 == int(os.environ.get("XT", "3")):
            assert not a.vm
            extra()
        for p, seq in ((0, 6), (3, 0)):
            a.e(f"v_perm_b32 v{OUT+seq*4+e2}, v{R+p*8+2*e2+1}, v{R+p*8+2*e2}, s32")
        res, lists = [], []
        for e in range(2):
            cf = [T + e * 8 + i for i in range(4)]
            ops = [f"v_perm_b32 v{cf[i]}, v{cf[i]}, v{R + (3 - i) * 8 + 2 * e2 + e}, s33" for i in range(4)]
            o, rr = eval_ops(cf, [T + e * 8 + 4 + i for i in range(4)])
            ops += o + [f"v_mul_f32 v{r}, {sc}, v{r}" for r, sc in zip(rr, scale)]
            res.append(rr)
            lists.append(ops)
        for x, y in zip(*lists):
            a.e(x)
            a.e(y)
        for i in range(5):
            a.e(f"v_cvt_pk_bf16_f32 v{OUT+(1+i)*4+e2}, v{res[0][i]}, v{res[1][i]}")
    for seq in (6, 0, 1, 2, 3, 4, 5):
        a.e(f"s_add_u32 s28, s27, {seq*8192}")
        a.e(f"buffer_store_dwordx4 {vr(OUT+seq*4)}, v4, s[12:15], s28 offen{NTW}")


def prep_kernel(name):
    a = Asm()
    NWG = 268
    a.label(name)
    a.e(f"s_cmp_ge_u32 s2, {NWG}")
    a.e(f"s_cbranch_scc1 L_{name}_done")
    CW = os.environ.get("CW", "late")
    CWN = int(os.environ.get("CWN", "268"))

    def code_warm():
        a.e(f"s_cmp_ge_u32 s3, {CWN}")
        a.e(f"s_cbranch_scc1 L_{name}_ncw")
        a.e("s_getpc_b64 s[62:63]")
        a.label(f"L_{name}_pc")
        a.e("s_and_b32 s64, s3, 8")
        a.e("s_lshl_b32 s64, s64, 12")
        a.e("v_lshlrev_b32 v120, 7, v0")
        a.e("v_add_u32 v120, s64, v120")
        a.e(f"v_min_u32 v120, 0x7fc0de00, v120")
        a.e("v_mov_b32 v121, s63")
        a.e("v_add_co_u32 v120, vcc, s62, v120")
        a.e("v_addc_co_u32 v121, vcc, 0, v121, vcc")
        a.e("global_load_dword v122, v[120:121], off")
        a.label(f"L_{name}_ncw")
        return 0
    a.e("s_mov_b32 s3, s2")
    if CW == "early":
        code_warm()
    a.e("s_load_dwordx16 s[44:59], s[0:1], 0")
    a.e("s_sub_u32 s2, s2, 12")
    if "stamp" in EXP:
        a.e("s_memrealtime s[60:61]")
    a.e("v_readfirstlane_b32 s40, v0")
    a.e("s_lshr_b32 s40, s40, 6")
    a.e("s_lshl_b32 s21, s2, 2")
    a.e("s_add_u32 s20, s40, s21")
    a.e("v_and_b32 v1, 63, v0")
    wprep(a, 8, WS_W1P, False, small=f"L_{name}_small", extra=code_warm if CW == "late" else None)
    if "stamp" in EXP:
        a.e("s_waitcnt vmcnt(0)")
        a.e("s_memrealtime s[62:63]")
        a.e("s_lshl_b32 s36, s2, 7")
        a.e(f"s_add_u32 s36, s36, {WS_STAMP + 3*0x10000}")
        add64(a, 40, 30, "s36")
        a.e("s_mov_b32 s42, 128")
        a.e("s_mov_b32 s43, 0x00020000")
        a.e("s_waitcnt lgkmcnt(0)")
        a.e("v_mov_b32 v8, 0")
        a.e("v_mov_b32 v0, 1")
        a.e("buffer_store_dword v0, v8, s[40:43], 0 offen")
        for i in range(4):
            a.e(f"v_mov_b32 v0, s{60+i}")
            a.e(f"buffer_store_dword v0, v8, s[40:43], 0 offen offset:{80+4*i}")
    a.label(f"L_{name}_done")
    a.e("s_endpgm")
    small_tail(a, name)
    return a.L, 4096, 128


def conv_kernel(name, cfg):
    TIN, TOUT = cfg["tin"], cfg["tout"]
    N = cfg["nchunk"]
    KSPLIT = cfg["ksplit"]
    NWG = 256
    STAMP = "stamp" in EXP
    sX, sW, sO = 8, 12, 16
    sWv, sT0, sCnt, sBo, sXo, sMask = 20, 21, 22, 23, 24, 25
    sBo2 = 26
    sK, sCb, sH = 28, 29, 32
    sSt = 60
    vL = 127
    vU, vS_, vI, vKG = 8, 9, 10, 11

    a = Asm()
    a.label(name)
    a.e(f"s_cmp_ge_u32 s2, {NWG}")
    a.e(f"s_cbranch_scc1 L_{name}_done")

    def stamp(i, fence=True):
        if STAMP:
            a.e(f"s_memtime s[{sSt+2*i}:{sSt+2*i+1}]")
            if fence:
                a.e("s_waitcnt lgkmcnt(0)")
                a.lg = []

    def rstamp(i):
        if STAMP:
            a.e(f"s_memrealtime s[{sSt+2*i}:{sSt+2*i+1}]")
            a.e("s_waitcnt lgkmcnt(0)")
            a.lg = []
    if STAMP:
        for i in range(28):
            a.e(f"s_mov_b32 s{sSt+i}, 0")
        a.e(f"s_memrealtime s[{sSt+20}:{sSt+21}]")
    stamp(0, False)
    a.e(f"s_load_dwordx2 s[4:5], s[0:1], {cfg['in_arg']}")
    a.e("s_load_dwordx2 s[30:31], s[0:1], 72")
    a.e(f"v_readfirstlane_b32 s{sWv}, v0")
    a.e(f"s_lshr_b32 s{sWv}, s{sWv}, 6")
    XL = int(os.environ.get("XL", "3"))
    a.e(f"s_and_b32 s36, s2, {(8 >> XL) - 1}")
    a.e(f"s_lshl_b32 s36, s36, {XL}")
    a.e(f"s_bfe_u32 s37, s2, {(XL << 16) | 3}")
    a.e(f"s_or_b32 s{sCb}, s36, s37")
    a.e(f"s_bfe_u32 s36, s2, {(XL << 16) | (3 - XL)}")
    a.e(f"s_lshl_b32 s36, s36, {5 - XL}")
    a.e(f"s_lshr_b32 s37, s2, {3 + XL}")
    a.e("s_or_b32 s36, s36, s37")
    if KSPLIT:
        a.e("s_lshr_b32 s33, s36, 4")
        a.e("s_and_b32 s34, s36, 7")
        a.e("s_bfe_u32 s35, s36, 0x10003")
    else:
        a.e("s_mov_b32 s33, 0")
        a.e("s_and_b32 s34, s36, 15")
        a.e("s_lshr_b32 s35, s36, 4")
    a.e(f"s_mul_i32 s{sT0}, s34, 500")
    a.e(f"s_and_b32 s{sH}, s{sWv}, 3")
    a.e(f"v_and_b32 v{vL}, 63, v0")
    a.e(f"v_lshrrev_b32 v5, 2, v{vL}")
    a.e(f"v_and_b32 v6, 3, v{vL}")
    a.e(f"s_and_b32 s42, s{sWv}, 7")
    if not KSPLIT:
        a.e("v_lshlrev_b32 v7, 15, v5")
        a.e("v_lshl_add_u32 v7, v6, 4, v7")
        a.e(f"s_lshl_b32 s41, s{sT0}, 10")
        a.e("s_sub_u32 s41, s41, 7680")
        a.e("s_lshl_b32 s37, s42, 12")
        a.e("s_add_u32 s37, s37, s41")
        a.e("v_add_u32 v7, s37, v7")
        a.e(f"s_mul_i32 s36, s35, {TIN*512}")
        a.e(f"s_mov_b32 s{sX+2}, {TIN*512}")
    else:
        a.e(f"s_lshr_b32 s41, s{sT0}, 2")
        a.e("s_sub_u32 s41, s41, 1")
        a.e("s_add_u32 s37, s41, s42")
        a.e("v_lshl_add_u32 v7, v5, 3, s37")
        a.e(f"s_mul_i32 s36, s35, {32*PLH}")
        a.e(f"s_add_u32 s36, s36, {cfg['in_off']}")
        a.e(f"s_mov_b32 s{sX+2}, {32*PLH}")

    def haddr(dst, vG, vlane, p, t):
        a.e(f"s_add_u32 s37, s33, {2*p - 7 & 0xffffffff}")
        a.e(f"v_lshl_add_u32 v{t}, v{vG}, 3, s37")
        a.e(f"v_cmp_gt_u32 vcc, {TIN}, v{t}")
        a.e(f"s_mul_i32 s37, s33, {PLH}")
        a.e(f"s_add_u32 s37, s37, {(2*p & 3)*PLH + (p >> 1)*64}")
        a.e(f"v_lshl_add_u32 v{dst}, v{vG}, 7, s37")
        a.e(f"v_add_u32 v{dst}, v{dst}, v{vlane}")
        a.e(f"v_mov_b32 v{t}, {OOB}")
        a.e(f"v_cndmask_b32 v{dst}, v{t}, v{dst}, vcc")
    a.e(f"s_mov_b32 s{sX+3}, 0x00020000")
    a.e(f"s_mov_b32 s{sMask}, 0xffff0000")
    a.e("s_waitcnt lgkmcnt(0)")
    stamp(1)
    add64(a, sX, 4, "s36")
    OB = 512

    def wsrd():
        a.e(f"s_lshl_b32 s36, s{sCb}, 4")
        a.e("s_lshl_b32 s37, s33, 3")
        a.e("s_add_u32 s36, s36, s37")
        a.e(f"s_mul_i32 s36, s36, {CHUNKB}")
        a.e(f"s_add_u32 s36, s36, {cfg['w_off']}")
        add64(a, sW, 30, "s36")
        a.e(f"s_mov_b32 s{sW+2}, {N*CHUNKB}")
        a.e(f"s_mov_b32 s{sW+3}, 0x00020000")

    def lds_throttle(need=1):
        if len(a.lg) + need > 15:
            a.e("s_waitcnt lgkmcnt(8)")
            a.lg = a.lg[-8:]

    def mf(acc, b, av):
        if "nomfma" not in EXP:
            a.e(f"v_mfma_f32_16x16x32_bf16 {vr(acc)}, {vr(b)}, {vr(av)}, {vr(acc)}")

    def steady(gen, per, strict=True):
        st = []
        for it in range(3):
            st.append(len(a.L))
            for pos in range(per):
                gen(per * it + pos, pos)
        st.append(len(a.L))
        bodies = [a.L[st[i]:st[i + 1]] for i in range(3)]
        if strict:
            assert bodies[1] == bodies[2], "loop not steady"
            assert bodies[0] == bodies[1], "loop entry not steady"
        del a.L[st[0]:]
        return bodies[1]

    a.e(f"s_cmp_ge_u32 s{sWv}, 8")
    a.e(f"s_cbranch_scc1 L_{name}_helper")

    ACC = 0
    vF, vA8, vD, vB = (120, 121), 122, (123, 124), 125
    vP = (116, 117, 118)
    vBZ = 119
    S, T, O = 96, 108, 64
    if not KSPLIT:
        a.e(f"s_add_u32 s37, s41, {128*4096}")
        a.e(f"v_lshl_add_u32 v{T}, v{vL}, 4, s37")
        for p in range(1, 3):
            a.e(f"v_add_u32 v{T+p}, {p*1024}, v{T}")
    else:
        a.e("s_add_u32 s37, s41, 128")
        a.e("v_mov_b32 v16, s37")
        a.e(f"v_mul_u32_u24 v17, {4*PLH}, v5")
        a.e("v_lshl_add_u32 v17, v6, 4, v17")
        for p in range(3):
            haddr(T + p, 16, 17, p, 18)
    wsrd()
    PLO = PLF if KSPLIT else PLH
    a.e(f"s_mul_i32 s36, s35, {32*PLO}")
    a.e(f"s_add_u32 s36, s36, {cfg['out_off']}")
    if KSPLIT:
        a.e(f"s_mul_i32 s37, s33, {WS_FPS}")
        a.e("s_add_u32 s36, s36, s37")
    add64(a, sO, 30, "s36")
    a.e(f"s_mov_b32 s{sO+2}, {32*PLO}")
    a.e(f"s_mov_b32 s{sO+3}, 0x00020000")
    a.e(f"v_and_b32 v{vI}, 15, v{vL}")
    a.e(f"v_lshrrev_b32 v{vKG}, 4, v{vL}")
    t = 16
    for d, sh in ((vU, 0), (vS_, 1)):
        a.e(f"v_add_u32 v{d}, {sh}, v{vI}")
        a.e(f"v_and_b32 v{t}, 4, v{d}")
        a.e(f"v_lshrrev_b32 v{t}, 1, v{t}")
        a.e(f"v_xor_b32 v{t}, v{vKG}, v{t}")
        a.e(f"v_lshlrev_b32 v{t}, 4, v{t}")
        a.e(f"v_lshl_add_u32 v{d}, v{d}, 6, v{t}")
    a.e(f"s_lshr_b32 s38, s{sH}, 1")
    a.e(f"s_and_b32 s39, s{sH}, 1")
    a.e("s_add_u32 s40, s38, 4")
    a.e("s_lshl_b32 s43, s39, 10")
    a.e(f"s_cmp_lt_u32 s{sWv}, 4")
    a.e(f"s_cselect_b32 s40, s{sWv}, s40")
    a.e("s_cselect_b32 s36, 0, s43")
    a.e("s_lshl_b32 s37, s40, 13")
    a.e("s_add_u32 s37, s37, s36")
    a.e(f"v_lshl_add_u32 v{vB}, v{vL}, 4, s37")
    a.e(f"s_mul_i32 s37, s40, {SEQB}")
    a.e(f"v_add_u32 v{vF[0]}, s37, v{vU}")
    a.e(f"v_add_u32 v{vF[1]}, s37, v{vS_}")
    a.e("s_lshl_b32 s37, s40, 10")
    a.e(f"s_add_u32 s37, s37, {SPB}")
    a.e(f"v_lshl_add_u32 v{t}, v{vKG}, 4, s37")
    a.e(f"v_cmp_eq_u32 vcc, 15, v{vI}")
    a.e(f"v_mov_b32 v{t+1}, {BB}")
    a.e(f"v_mov_b32 v{t+2}, {-BB & 0xffffffff}")
    a.e(f"v_mov_b32 v{t+3}, 64")
    a.e(f"v_cndmask_b32 v{vA8}, v{vF[1]}, v{t}, vcc")
    a.e(f"v_cndmask_b32 v{vD[0]}, v{t+1}, v{t+3}, vcc")
    a.e(f"v_cndmask_b32 v{vD[1]}, v{t+2}, v{t+3}, vcc")
    a.e(f"v_lshl_add_u32 v126, v{vL}, 4, s37")
    tabs = {44: (1.0, 1.0, 1.0, 1.0, 1.0, 16.0), 45: (0.0, 1.0, -1.0, 2.0, -2.0, 8.0),
            46: (0.0, 1.0, 1.0, 4.0, 4.0, 4.0)}
    for sg, tab in tabs.items():
        a.e(f"s_mov_b32 s{sg}, {f32hex(tab[0])}")
    for q in range(1, 6):
        a.e(f"s_cmp_eq_u32 s40, {q}")
        for sg, tab in tabs.items():
            if tab[q] != tab[0]:
                a.e(f"s_cselect_b32 s{sg}, {f32hex(tab[q])}, s{sg}")

    def special_rows():
        a.wait(vm=("SP",))
        for d in range(4):
            for p in range(3):
                a.e(f"v_lshlrev_b32 v{T+p}, 16, v{S+4*p+d}")
                a.e(f"v_and_b32 v{T+3+p}, s{sMask}, v{S+4*p+d}")
            for h in range(2):
                a.e(f"v_mul_f32 v{T+6+h}, s44, v{T+3*h}")
            for h in range(2):
                a.e(f"v_fmac_f32 v{T+6+h}, s45, v{T+3*h+1}")
            for h in range(2):
                a.e(f"v_fmac_f32 v{T+6+h}, s46, v{T+3*h+2}")
            a.e(f"v_cvt_pk_bf16_f32 v{S+d}, v{T+6}, v{T+7}")
        a.e(f"ds_write_b128 v126, {vr(S)}")

    def own_read(k, g, reg, tag, last=False):
        if g == 8:
            base, off = vA8, 0
        else:
            base, off = vF[g >> 3], (k & 1) * BB + (g & 7) * FB
        a.lds(f"ds_read_b128 {vr(reg)}, v{base} offset:{off}", tag)
        if g == 8 and not last:
            a.e(f"v_add_u32 v{vA8}, v{vD[k & 1]}, v{vA8}")

    UNIT = [(s * SEQB, s * SEQB + BB) for s in range(4)] + [(4 * SEQB, TOPB), (5 * SEQB, TOPB + 8192),
            (6 * SEQB, TOPB + 16384), (TOPB + 24576, TOPB + 32768)]
    EA = 96

    def ex_addr(sbase):
        a.e(f"v_and_b32 v{EA}, 15, v{vL}")
        a.e(f"v_and_b32 v{EA+1}, 7, v{vL}")
        a.e(f"v_lshlrev_b32 v{EA+1}, 4, v{EA+1}")
        a.e(f"v_lshl_add_u32 v{EA}, v{EA}, 7, v{EA+1}")
        a.e(f"v_lshrrev_b32 v{EA+1}, 4, v{vL}")
        a.e(f"v_lshl_add_u32 v{EA}, v{EA+1}, 11, v{EA}")
        a.e(f"v_add_u32 v{EA}, s{sbase}, v{EA}")
        for f in range(1, 8):
            a.e(f"v_xor_b32 v{EA+f}, {f << 4}, v{EA}")

    def mwave(role):
        if role == 1:
            BR, AR, NR = 64, 96, 6
            steps = [("X", g) for g in range(11)]
        else:
            BR, AR, NR = 64, 88, 7
            steps = []
            for g in range(11):
                steps.append(("Y", g))
                if 1 <= g <= 9:
                    steps.append(("Z", g - 1))
        NS = len(steps)

        def bload(k, kind, q):
            if "nob" in EXP and k > 0:
                return
            so = sBo2 if q >> 1 else sBo
            if kind == "X":
                for c in range(2):
                    a.vmem(f"buffer_load_dwordx4 {vr(BR+(q*2+c)*4)}, v{vB}, {sr(sW)}, s{so} offen "
                           f"offset:{(q&1)*2048 + c*1024}", ("B", k, kind, q))
            elif kind == "Y":
                a.vmem(f"buffer_load_dwordx4 {vr(BR+q*4)}, v{vB}, {sr(sW)}, s{so} offen offset:{(q&1)*2048}",
                       ("B", k, kind, q))
            else:
                a.vmem(f"buffer_load_dwordx4 {vr(BR+16+q*4)}, v{vBZ}, {sr(sW)}, s{sBo} offen offset:{q*2048}",
                       ("B", k, kind, q))

        def rd(k, n, last=False):
            kind, g = steps[n]
            reg = AR + 4 * (n % NR)
            if kind == "Z":
                base, off = (vP[0], g * FB6) if g < 6 else (vP[1], (g - 6) * FB6) if g < 8 else (vP[2], 0)
                a.lds(f"ds_read_b128 {vr(reg)}, v{base} offset:{(k & 1)*BB6 + off}", ("A", k, n))
            else:
                own_read(k, g, reg, ("A", k, n), last)

        for i in range(64):
            a.e(f"v_mov_b32 v{ACC+i}, 0")
        if "nob0" not in EXP:
            a.e("s_barrier")
            for p in range(3):
                a.vmem(f"buffer_load_dwordx4 {vr(S+4*p)}, v{T+p}, {sr(sX)}, 0 offen", "SP")
        a.e(f"s_mov_b32 s{sBo}, 0")
        a.e(f"s_mov_b32 s{sBo2}, 4096")
        for st in steps:
            if st and st[1] >= 7:
                bload(0, st[0], st[1] - 7)
        a.e(f"s_mov_b32 s{sBo}, {CHUNKB}")
        a.e(f"s_mov_b32 s{sBo2}, {CHUNKB + 4096}")
        special_rows()
        if role == 2:
            a.e(f"v_and_b32 v126, 15, v{vL}")
            a.e("v_lshlrev_b32 v126, 2, v126")
            a.e(f"v_add_u32 v126, {6*SEQB + 1024}, v126")
            a.e(f"ds_write_b32 v126, v{ACC}")
            a.e(f"ds_write_b32 v126, v{ACC} offset:{BB6}")
        a.e("s_waitcnt lgkmcnt(0)")
        a.e("s_barrier")
        stamp(7)
        rstamp(12)
        a.e(f"s_mov_b32 s{sCnt}, {N//2}")
        a.e(f"s_setprio {os.environ.get(f'PM{role}', '2')}")

        CO = int(os.environ.get(f"CO{role}", "0" if role == 1 else "5"))
        assert CO < NR
        FM = int("fmaj" in EXP)
        vE = (vD[0], vD[1])

        def period(k, _, last=False):
            if "mst" in EXP and _ == 0:
                stamp(2)
            if "bst" in EXP and _ == 1 and not last:
                a.e("s_memtime s[90:91]")
                a.e("s_waitcnt vmcnt(0) lgkmcnt(0)")
                a.e("s_memtime s[92:93]")
                a.e("s_waitcnt lgkmcnt(0)")
                a.e("s_sub_u32 s92, s92, s90")
                a.e(f"s_add_u32 s{sSt+4}, s{sSt+4}, s92")
                a.e(f"s_max_u32 s{sSt+6}, s{sSt+6}, s92")
                a.vm = []
            for n in range(NR):
                rd(k, n, last)
            pend = []

            def flush(n, cnt):
                while pend and pend[0][0] <= n and cnt > 0:
                    _, h, f = pend.pop(0)
                    t = vE[(h + f) & 1]
                    a.e(f"v_xor_b32 v{t}, {f << 4}, v{vX0[h]}")
                    lds_throttle()
                    a.lds(f"ds_write_b128 v{t}, {vr(ACC + h*32 + f*4)}", "E")
                    cnt -= 1

            for n, st in enumerate(steps):
                if CO and n == NS - CO and not last:
                    a.wait(lg_all=True)
                    if "mst" in EXP and _ == 0:
                        stamp(3)
                    a.e("s_barrier")
                    if "mst" in EXP and _ == 0:
                        stamp(4)
                kind, g = st
                nt = 2 if kind == "Z" else 4
                qs = [q for q in range(nt) if 0 <= g - q <= 7]
                if FM and kind == "X":
                    if g >= 3:
                        f = g - 3
                        for c in range(2):
                            for q in range(4):
                                a.wait(lg=(("A", k, f + q),), vm=(("B", k, kind, q),))
                                mf(ACC + 32 * c + f * 4, BR + q * 8 + 4 * c, AR + 4 * ((f + q) % NR))
                        if f + NR < NS:
                            rd(k, f + NR, last)
                        if g == 10 and not last:
                            for q in range(4):
                                bload(k + 1, kind, q)
                    qs = []
                else:
                    a.wait(lg=(("A", k, n),), vm=tuple(("B", k, kind, q) for q in qs))
                reg = AR + 4 * (n % NR)
                for q in qs:
                    f = g - q
                    if kind == "X":
                        mf(ACC + f * 4, BR + q * 8, reg)
                        mf(ACC + 32 + f * 4, BR + q * 8 + 4, reg)
                    elif kind == "Y":
                        mf(ACC + f * 4, BR + q * 4, reg)
                    else:
                        mf(ACC + 32 + f * 4, BR + 16 + q * 4, reg)
                if g >= 7 and not last and not (FM and kind == "X"):
                    bload(k + 1, kind, g - 7)
                if n + NR < NS and not (FM and kind == "X"):
                    rd(k, n + NR, last)
                if last:
                    flush(n, 2)
                    f = g - (nt - 1)
                    if f >= 0:
                        if kind == "X":
                            pend.append((n + 1, 0, f))
                            pend.append((max(n + 1, NS - NR + 1 + 3 * FM), 1, f))
                            pend.sort()
                        else:
                            pend.append((n + 3, 0 if kind == "Y" else 1, f))
                    if kind == "X" and n == NS - NR + 3 * FM:
                        a.wait(lg=(("A", k, NS - 1),))
            if last:
                a.e("s_nop 7")
                flush(1000, 1000)
                return
            a.e(f"s_add_u32 s{sBo}, s{sBo}, {CHUNKB}")
            a.e(f"s_add_u32 s{sBo2}, s{sBo2}, {CHUNKB}")
            assert not a.lg
            if "mst" in EXP and _ == 0:
                stamp(5)
            if not CO:
                a.e("s_barrier")
            if "mst" in EXP and _ == 0:
                stamp(6)

        def period2(k, pos):
            if pos == 1:
                a.e(f"s_sub_u32 s{sCnt}, s{sCnt}, 1")
                a.e(f"s_cmp_eq_u32 s{sCnt}, 0")
                a.e(f"s_cbranch_scc1 L_{name}_mlast{role}")
                state[0] = (list(a.vm), k)
            period(k, pos)

        state = [None]
        body = steady(period2, 2, "nob" not in EXP)
        if "nob" in EXP:
            a.e("s_waitcnt vmcnt(0)")
        a.label(f"L_{name}_mloop{role}")
        a.L.extend(body)
        a.e(f"s_branch L_{name}_mloop{role}")
        a.label(f"L_{name}_mlast{role}")
        a.vm, a.lg = state[0][0], []
        vX0 = (vB, 126)
        a.e(f"v_and_b32 v{vX0[0]}, 15, v{vL}")
        a.e(f"v_and_b32 v{vX0[1]}, 7, v{vL}")
        a.e(f"v_lshlrev_b32 v{vX0[1]}, 4, v{vX0[1]}")
        a.e(f"v_lshl_add_u32 v{vX0[0]}, v{vX0[0]}, 7, v{vX0[1]}")
        a.e(f"v_lshrrev_b32 v{vX0[1]}, 4, v{vL}")
        a.e(f"v_lshl_add_u32 v{vX0[0]}, v{vX0[1]}, 11, v{vX0[0]}")
        if role == 1:
            a.e(f"s_lshl_b32 s36, s{sWv}, 14")
            a.e("s_add_u32 s37, s36, 8192")
        else:
            for sg, tab in ((36, [UNIT[4 + (h >> 1)][h & 1] for h in range(4)]),
                            (37, [UNIT[6 + (h >> 1)][h & 1] for h in range(4)])):
                a.e(f"s_mov_b32 s{sg}, {tab[0]}")
                for h in range(1, 4):
                    a.e(f"s_cmp_eq_u32 s{sH}, {h}")
                    a.e(f"s_cselect_b32 s{sg}, {tab[h]}, s{sg}")
        a.e(f"v_add_u32 v{vX0[1]}, s37, v{vX0[0]}")
        a.e(f"v_add_u32 v{vX0[0]}, s36, v{vX0[0]}")
        period(state[0][1], 1, True)
        stamp(8, False)
        rstamp(13)
        a.e("s_setprio 0")
        a.vm, a.lg = [], []

    a.e(f"s_cmp_ge_u32 s{sWv}, 4")
    a.e(f"s_cbranch_scc1 L_{name}_m2")
    vm0 = list(a.vm)
    mwave(1)
    a.e(f"s_branch L_{name}_epi")
    a.label(f"L_{name}_m2")
    a.vm, a.lg = list(vm0), []
    a.e(f"s_mul_i32 s37, s38, {2*FB6}")
    a.e(f"s_add_u32 s37, s37, {6*SEQB}")
    a.e(f"v_add_u32 v{vP[0]}, s37, v{vU}")
    a.e(f"v_add_u32 v{vP[2]}, s37, v{vS_}")
    a.e(f"v_add_u32 v{vP[1]}, {6*SEQB + 6*FB6}, v{vU}")
    a.e("s_cmp_eq_u32 s38, 0")
    a.e(f"s_cbranch_scc1 L_{name}_hh0")
    a.e(f"v_add_u32 v{vP[1]}, {6*SEQB}, v{vS_}")
    a.label(f"L_{name}_hh0")
    a.e("s_lshl_b32 s37, s38, 12")
    a.e("s_add_u32 s37, s37, s43")
    a.e(f"s_add_u32 s37, s37, {6*8192}")
    a.e(f"v_lshl_add_u32 v{vBZ}, v{vL}, 4, s37")
    mwave(2)
    a.e(f"s_branch L_{name}_epi")

    a.label(f"L_{name}_helper")
    a.vm, a.lg = [], []
    a.e("s_setprio 3")
    PB = (0, 32)
    XO = 64
    TMP = 76
    vX = 92
    vW = (96, 97, 98)

    def praw(b, half, p):
        return PB[b] + half * 16 + p * 4

    sXo2 = 27

    def xload(pair, p):
        if KSPLIT:
            half, q = p >> 1, p & 1
            for r in (q, q + 2):
                a.vmem(f"buffer_load_dwordx4 {vr(praw(pair & 1, half, r))}, v{vX+r}, {sr(sX)}, "
                       f"s{sXo2 if half else sXo} offen", ("X", pair))
            return
        for half in range(2):
            a.vmem(f"buffer_load_dwordx4 {vr(praw(pair & 1, half, p))}, v{vX+p}, {sr(sX)}, "
                   f"s{sXo} offen offset:{half*64}", ("X", pair))
        a.e(f"v_add_u32 v{vX+p}, 128, v{vX+p}")

    def uregs(chunk):
        return [praw((chunk >> 1) & 1, chunk & 1, p) for p in range(4)]

    def wr(chunk, i):
        if "nowr" in EXP:
            return
        u = uregs(chunk)
        reg, seq = [(XO, 3), (XO + 4, 4), (XO + 8, 5), (u[0], 0), (u[1], 1), (u[2], 2), (u[3], 6)][i]
        lds_throttle()
        if seq == 6:
            a.lds(f"ds_write_b128 v{vW[2]}, {vr(reg)} offset:{(chunk & 1)*BB6}", "W")
        else:
            a.lds(f"ds_write_b128 v{vW[seq >> 2]}, {vr(reg)} offset:{(seq & 3)*SEQB + (chunk & 1)*BB}", "W")

    def tr_ops(chunk):
        u = uregs(chunk)
        o = [u[1], u[2], XO, XO + 4, XO + 8]
        ops = []
        for d in range(4):
            lo = [TMP + p for p in range(4)]
            hi = [TMP + 8 + p for p in range(4)]
            for p in range(4):
                ops.append(f"v_lshlrev_b32 v{lo[p]}, 16, v{u[p]+d}")
                ops.append(f"v_and_b32 v{hi[p]}, s{sMask}, v{u[p]+d}")
            o1, r1 = eval_ops(lo, [TMP + 4 + i for i in range(4)])
            o2, r2 = eval_ops(hi, [TMP + 12 + i for i in range(4)])
            for x, y in zip(o1, o2):
                ops += [x, y]
            for i in range(5):
                ops.append(f"v_cvt_pk_bf16_f32 v{o[i]+d}, v{r1[i]}, v{r2[i]}")
        if "notr" in EXP:
            ops = ["s_nop 0"] * 8
        return ops

    if KSPLIT:
        a.e("v_lshlrev_b32 v8, 4, v6")
    for p in range(4):
        if KSPLIT:
            haddr(vX + p, 7, 8, p, 9)
        else:
            a.e(f"v_add_u32 v{vX+p}, {p*1024}, v7")
    a.e(f"v_and_b32 v{TMP}, 4, v5")
    a.e(f"v_lshrrev_b32 v{TMP}, 1, v{TMP}")
    a.e(f"v_xor_b32 v{TMP}, v6, v{TMP}")
    a.e(f"v_lshlrev_b32 v{TMP}, 4, v{TMP}")
    a.e(f"v_lshl_add_u32 v{TMP}, v5, 6, v{TMP}")
    a.e(f"s_mov_b32 s{sXo}, 0")
    a.e(f"s_mov_b32 s{sXo2}, {4*PLH}")
    stamp(2)
    P0 = os.environ.get("P0", "0")
    if P0 == "0" or KSPLIT:
        for p in range(4):
            xload(0, p)
            if p == 1 and P0 == "2":
                a.e("s_barrier")
    else:
        for half in range(2):
            for p in range(4):
                a.vmem(f"buffer_load_dwordx4 {vr(praw(0, half, p))}, v{vX+p}, {sr(sX)}, s{sXo} offen offset:{half*64}", ("X", 0))
            if half == 0 and P0 == "2":
                a.e("s_barrier")
        for p in range(4):
            a.e(f"v_add_u32 v{vX+p}, 128, v{vX+p}")
    if P0 != "2":
        a.e("s_barrier")
    a.e(f"s_mul_i32 s36, s42, {FB}")
    a.e(f"v_add_u32 v{vW[0]}, s36, v{TMP}")
    a.e(f"v_add_u32 v{vW[1]}, {4*SEQB}, v{vW[0]}")
    a.e(f"s_mul_i32 s36, s42, {FB6}")
    a.e(f"s_add_u32 s36, s36, {6*SEQB}")
    a.e(f"v_add_u32 v{vW[2]}, s36, v{TMP}")
    stamp(3)
    a.e(f"s_waitcnt vmcnt({0 if P0 == '0' else 4})")
    stamp(4)
    a.e(f"s_mov_b32 s{sK}, 0")
    a.e(f"s_mov_b32 s{sCnt}, {N//4}")
    a.e(f"s_cmp_ge_u32 s{sWv}, 12")
    a.e(f"s_cbranch_scc1 L_{name}_h2")

    def hwave(role):
        SH = 33 * int(os.environ.get(f"SH{role}", "0" if role == 1 else "4"))
        ahead = 2 if SH else 1
        a.vm, a.lg = [], []
        wr(0, 3)
        wr(0, 6)
        for op in tr_ops(0):
            a.e(op)
        for i in (0, 1, 2, 4, 5):
            wr(0, i)
        a.e("s_waitcnt vmcnt(0)")
        NF = int(os.environ.get("NF", "2"))
        if KSPLIT:
            a.e(f"s_mov_b32 s{sXo}, {8*PLH}")
            a.e(f"s_mov_b32 s{sXo2}, {12*PLH}")
        for p in range(4 if SH else NF):
            xload(1, p)
        stamp(5)
        a.wait(lg_all=True)
        stamp(6)
        a.e("s_barrier")
        stamp(7)
        rstamp(12)
        PA, PB_ = os.environ.get(f'PH{role}', '11' if role == 1 else '00')
        a.e(f"s_setprio {PA}")
        for op in tr_ops(1)[:SH]:
            a.e(op)
        XP = [float(x) for x in os.environ.get(f"XP{role}", "0.2,0.6,0.02,0.15" if SH else "0.3,0.7,0.1,0.5").split(",")]

        def period(k, pos, last=False):
            pair = (k >> 1) + 2 if SH else (k + 3) >> 1
            first = not (k & 1) if SH else (k & 1)
            if pos == 4 - ahead and not last:
                a.e(f"s_cmp_eq_u32 s{sCnt}, 1")
                a.e(f"s_cbranch_scc1 L_{name}_hlast{role}")
            if "hst" in EXP and pos == 1:
                stamp(2)
            V1 = tr_ops(k + 1)[SH:]
            V2 = [] if last else tr_ops(k + 2)[:SH]
            V = V1 + V2
            n = len(V)
            ev = {}

            def at(i, f):
                ev.setdefault(max(0, min(int(i), n)), []).append(f)

            def stores():
                if "hst" in EXP and pos == 1:
                    stamp(3)
                for i in range(7):
                    wr(k + 1, i)
                if "hst" in EXP and pos == 1:
                    stamp(4)
                if PA != PB_:
                    a.e(f"s_setprio {PB_}")
            if PA != PB_:
                a.e(f"s_setprio {PA}")
            at(len(V1), stores)
            if not last:
                if not KSPLIT:
                    a.e(f"s_cmp_lt_u32 s{sK}, {N - 2 - ahead}")
                    a.e(f"s_cselect_b32 s{sXo}, 0, {OOB}")
                elif first:
                    a.e(f"s_add_u32 s{sXo}, s{sXo}, {8*PLH}")
                    a.e(f"s_add_u32 s{sXo2}, s{sXo2}, {8*PLH}")
                at(len(V1) if SH else 0, lambda: a.wait(vm=(("X", (k + ahead) >> 1),)))
                if "nox" not in EXP:
                    for p in (range(NF) if first else range(NF, 4)):
                        w = len(V1) + XP[p] * SH if SH and first else XP[p] * n
                        at(w, lambda p=p: xload(pair, p))
            for i in range(n + 1):
                for f in ev.get(i, []):
                    f()
                if i < n:
                    a.e(V[i])
            if not last:
                a.e(f"s_add_u32 s{sK}, s{sK}, 1")
            if "hst" in EXP and pos == 1:
                stamp(5)
            a.e("s_waitcnt lgkmcnt(0)")
            a.lg = []
            a.e("s_barrier")
            if "hst" in EXP and pos == 1:
                stamp(6)

        body = steady(period, 4, "nox" not in EXP)
        a.label(f"L_{name}_hloop{role}")
        a.L.extend(body)
        a.e(f"s_sub_u32 s{sCnt}, s{sCnt}, 1")
        a.e(f"s_branch L_{name}_hloop{role}")
        a.label(f"L_{name}_hlast{role}")
        a.vm, a.lg = [], []

        def last_period():
            vm = a.vm
            a.vm, a.lg = [], []
            if SH:
                a.e(f"s_mov_b32 s{sMask}, 0xffff0000")
                period(2, 2, True)
            a.vm = vm
        if role == 1 or KSPLIT:
            last_period()
        else:
            assert SH
            a.e("s_waitcnt vmcnt(0)")
            a.e(f"s_mov_b32 s58, s{sWv}")
            a.e(f"s_lshl_b32 s20, s2, 2")
            a.e(f"s_add_u32 s20, s20, s{sH}")
            a.e(f"v_mov_b32 v1, v{vL}")
            wprep(a, 16, WS_W2P, True, barrier=last_period)
            a.e(f"s_mov_b32 s{sWv}, s58")
        stamp(8)
        rstamp(13)
        a.e(f"s_branch L_{name}_end")

    hwave(1)
    a.label(f"L_{name}_h2")
    hwave(2)

    a.label(f"L_{name}_epi")
    R0 = (120, 121, 125)
    vO, vBW = 122, 123
    BND = SPB
    t0, t1, t2, t3 = 108, 109, 110, 111
    a.e(f"v_and_b32 v{t0}, 15, v{vL}")
    a.e(f"v_lshrrev_b32 v{t1}, 4, v{vL}")
    a.e(f"v_lshrrev_b32 v{t2}, 3, v{t0}")
    a.e(f"s_lshl_b32 s36, s{sWv}, 1")
    a.e(f"v_add_u32 v{t2}, s36, v{t2}")
    a.e(f"v_xor_b32 v{t3}, v{t2}, v{t0}")
    a.e(f"v_and_b32 v{t3}, 7, v{t3}")
    a.e(f"v_lshlrev_b32 v{t3}, 4, v{t3}")
    a.e(f"v_lshl_add_u32 v{t3}, v{t2}, 7, v{t3}")
    a.e(f"v_lshl_add_u32 v{R0[0]}, v{t1}, 11, v{t3}")
    a.e(f"v_add_u32 v{R0[1]}, 65536, v{R0[0]}")
    a.e(f"v_add_u32 v{R0[2]}, 131072, v{R0[0]}")
    a.e(f"s_lshl_b32 s36, s{sWv}, 9")
    a.e(f"s_add_u32 s36, s36, {BND}")
    a.e(f"v_lshl_add_u32 v{vBW}, v{t1}, 7, s36")
    a.e(f"s_lshl_b32 s36, s{sWv}, 4")
    a.e(f"v_add_u32 v{t0}, s36, v{t0}")
    a.e(f"v_lshlrev_b32 v{t2}, 6, v{t0}")
    a.e(f"v_lshl_add_u32 v{t2}, v{t1}, 4, v{t2}")
    a.e(f"s_mul_i32 s36, s{sCb}, {4*PLO}")
    a.e(f"s_lshl_b32 s37, s{sT0}, 4")
    a.e("s_add_u32 s36, s36, s37")
    a.e(f"v_add_u32 v{t2}, s36, v{t2}")
    a.e(f"v_mov_b32 v{t3}, {OOB}")
    a.e(f"v_cmp_gt_u32 vcc, 125, v{t0}")
    k0 = -2.0 * 1.4426950408889634 * 0.7978845608028654
    consts = [-1.0 / 3, 0.25, -5.0, -32.0 / 9, -8.0 / 9, -2.0 / 9, -1.0 / 18, 17.0 / 9, -2.0 / 3, 0.4, -1.0 / 15, -0.2,
              k0 * 0.044715, 1.0]
    KS = [4, 6, 8, 10, 12, 14, 22, 24, 26, 32, 34, 38, 40, 42]
    for sg, cv in zip(KS, consts):
        a.e(f"s_mov_b32 s{sg}, {f32hex(cv)}")
        a.e(f"s_mov_b32 s{sg+1}, s{sg}")
    K = [sr(x, 2) for x in KS]
    a.e("s_waitcnt lgkmcnt(0)")
    a.e("s_barrier")
    if "est" in EXP:
        stamp(2)
    a.e(f"v_cndmask_b32 v{vO}, v{t3}, v{t2}, vcc")

    def P(c, s, r=0):
        return c * 32 + s * 4 + r
    Y = 64
    TB = 96
    ELS = (0, 1, 2)
    for c in range(2):
        for s_ in range(8):
            if c == 1 and s_ == 7:
                a.e("s_waitcnt lgkmcnt(7)")
            u = UNIT[s_][c]
            a.e(f"ds_read_b128 {vr(P(c, s_))}, v{R0[u >> 16]} offset:{u & 0xffff}")

    def p2(x):
        return vr(x, 2)

    def padd(d, x, y):
        return f"v_pk_add_f32 {p2(d)}, {p2(x)}, {p2(y)}"

    def psub(d, x, y):
        return f"v_pk_add_f32 {p2(d)}, {p2(x)}, {p2(y)} neg_lo:[0,1] neg_hi:[0,1]"

    def pfma(d, x, k, y, neg=False):
        return f"v_pk_fma_f32 {p2(d)}, {p2(x)}, {k}, {p2(y)}" + (" neg_lo:[0,0,1] neg_hi:[0,0,1]" if neg else "")

    def interp(c):
        seq = []
        for r in (0, 2):
            E0, A, B, C, D, Q, E6, E6b = (P(c, x, r) for x in range(8))
            y = [Y + ph * 8 + c * 4 + r for ph in range(4)]
            S1, G = E6, C
            seq.append([
                padd(y[3], E6, E6b),
                padd(S1, A, B),
                psub(A, A, B),
                padd(y[1], C, D),
                psub(G, C, D),
                pfma(y[1], S1, K[0], y[1]),
                pfma(Q, E0, K[3], Q),
                pfma(y[1], E0, K[1], y[1]),
                psub(S1, S1, E0),
                pfma(y[1], y[3], K[2], y[1]),
                psub(S1, S1, y[3]),
                pfma(Q, y[3], K[6], Q),
                psub(B, S1, y[1]),
                pfma(Q, y[1], K[5], Q),
                f"v_pk_mul_f32 {p2(y[2])}, {p2(G)}, {K[9]}",
                pfma(Q, B, K[4], Q),
                pfma(y[2], A, K[10], y[2]),
                pfma(y[0], A, K[7], Q, True),
                pfma(y[0], G, K[8], y[0]),
                pfma(y[2], y[0], K[11], y[2]),
                psub(A, A, y[0]),
                psub(A, A, y[2]),
            ])
        for ops in zip(*seq):
            for op in ops:
                a.e(op)

    a.e("s_waitcnt lgkmcnt(8)")
    interp(0)
    a.e("s_waitcnt lgkmcnt(0)")
    interp(1)
    if "est" in EXP:
        stamp(3)
    a.e("s_mov_b32 s36, 0x00010001")
    a.e("s_mov_b32 s37, 0x00010001")
    a.e("s_mov_b64 exec, s[36:37]")
    for k in range(3):
        for c in range(2):
            a.e(f"ds_write_b128 v{vBW}, {vr(P(c, ELS[k]))} offset:{(k*2+c)*16}")
    a.e("s_mov_b64 exec, -1")

    def finish(ph):
        ys = [Y + ph * 8 + i for i in range(8)]
        if not KSPLIT:
            ts = [16 + (ph & 1) * 8 + i for i in range(8)]
            ev = list(zip(ys[::2], ts[::2]))
            for y, t in ev:
                a.e(f"v_pk_mul_f32 {p2(t)}, {p2(y)}, {p2(y)}")
            for y, t in ev:
                a.e(pfma(t, t, K[12], 44))
            for y, t in ev:
                a.e(f"v_pk_mul_f32 {p2(t)}, {p2(t)}, {p2(y)}")
            for t in ts:
                a.e(f"v_exp_f32 v{t}, v{t}")
            for y, t in ev:
                a.e(f"v_pk_add_f32 {p2(t)}, {p2(t)}, {K[13]}")
            for t in ts:
                a.e(f"v_rcp_f32 v{t}, v{t}")
            for y, t in ev:
                a.e(f"v_pk_mul_f32 {p2(y)}, {p2(y)}, {p2(t)}")
        o = 48 + ph * 4
        for r in range(4):
            a.e(f"v_cvt_pk_bf16_f32 v{o+r}, v{ys[r]}, v{ys[4+r]}")
        so = ph * PLF if KSPLIT else ((ph + 3) & 3) * PLH + ((ph + 7) >> 2) * 64
        a.e(f"s_mov_b32 s44, {so}")
        a.e(f"buffer_store_dwordx4 {vr(o)}, v{vO}, {sr(sO)}, s44 offen{NTF if KSPLIT else NTH}")

    a.e(f"v_mov_b32 v44, {f32hex(k0)}")
    a.e("v_mov_b32 v45, v44")
    finish(0)
    a.e("s_waitcnt lgkmcnt(0)")
    a.e("s_barrier")
    if "est" in EXP:
        stamp(4)
    for i in range(6):
        a.e(f"ds_read_b128 {vr(TB+4*i)}, v{vBW} offset:{512 + i*16}")
    for ph in range(1, 4):
        a.e(f"s_waitcnt lgkmcnt({6 - 2*ph})")
        for c in range(2):
            for r in range(4):
                i = (ph - 1) * 8 + c * 4 + r
                a.e(f"v_mov_b32_dpp v{TB+i}, v{P(c, ELS[ph-1], r)} row_shl:1 row_mask:0xf bank_mask:0xf")
        for i in range(0, 8, 2):
            a.e(padd(Y + ph * 8 + i, Y + ph * 8 + i, TB + (ph - 1) * 8 + i))
        finish(ph)
    if "est" in EXP:
        stamp(5)
    a.label(f"L_{name}_end")
    if STAMP:
        a.e("s_waitcnt vmcnt(0)")
        stamp(9, False)
        a.e(f"s_memrealtime s[{sSt+22}:{sSt+23}]")
        a.e(f"s_cmp_lg_u32 s{sWv}, {os.environ.get('SW', '0')}")
        a.e(f"s_cbranch_scc1 L_{name}_done")
        a.e("s_lshl_b32 s36, s2, 7")
        a.e(f"s_add_u32 s36, s36, {WS_STAMP + cfg['stamp']*0x10000}")
        add64(a, 40, 30, "s36")
        a.e("s_mov_b32 s42, 128")
        a.e("s_mov_b32 s43, 0x00020000")
        a.e("s_waitcnt lgkmcnt(0)")
        a.e("v_mov_b32 v8, 0")
        for i in range(28):
            a.e(f"v_mov_b32 v0, s{sSt+i}")
            a.e(f"buffer_store_dword v0, v8, s[40:43], 0 offen offset:{4*i}")
    a.label(f"L_{name}_done")
    a.e("s_endpgm")
    return a.L, TOPB + 40960, 128


CONV1 = dict(tin=16000, tout=8000, nchunk=16, ksplit=False, in_arg=0, in_off=0, w_off=WS_W1P, out_off=WS_H, stamp=0)
CONV2 = dict(tin=8000, tout=4000, nchunk=8, ksplit=True, in_arg=72, in_off=WS_H, w_off=WS_W2P, out_off=WS_FP, stamp=1)

HEADER = f"""; Kernarg layout for this problem (80 bytes, ptrs only, base s[0:1]):
"""


def main():
    ks = [("prep_kernel", 268, 256) + prep_kernel("prep_kernel"),
          ("conv1_kernel", 256, 1024) + conv_kernel("conv1_kernel", CONV1),
          ("conv2_kernel", 256, 1024) + conv_kernel("conv2_kernel", CONV2)]
    ks = joint_kernels(ks)
    out = HEADER
    for nm, grid, block, code, lds, vg in ks:
        out += f"; @launch kernel={nm} grid=({grid},1,1) block=({block},1,1) lds={lds}\n"
    out += '.amdgcn_target "amdgcn-amd-amdhsa--gfx950"\n.text\n'
    for nm, grid, block, code, lds, vg in ks:
        if "noalign" not in EXP:
            code = align8(code)
        out += f".globl {nm}\n.p2align 8\n.type {nm},@function\n" + "\n".join(code) + "\n"
    out += '.section .rodata,"a"\n'
    for nm, grid, block, code, lds, vg in ks:
        out += ".p2align 6\n" + kd(nm, vg)
    out = out.replace("0x7fc0de00", "L_joint_kernel_done-L_prep_kernel_pc")
    path = sys.argv[1] if len(sys.argv) > 1 else "standalone__seq2seq_rnn_t_joint__speech.s"
    open(path, "w").write(out)


if __name__ == "__main__":
    main()
```

```python
import os
import sys

from asmlib import Asm, vr, sr, kd, f32hex, align8
from gen10_joint import small_select, small_ptr, small_tail, joint_kernels

EXP = os.environ.get("EXP", "").split(",")

WS_W1P = 0x0000000
WS_W2P = 0x0900000
WS_H = 0x1200000
WS_FP = 0x1A00000
WS_FPS = 0x800000
WS_WF = 0x2A00000
WS_STAMP = 0x3000000

CHUNKB = 7 * 8192
FB = 1024
BB = 8 * FB
SEQB = 2 * BB
FB6 = 1088
BB6 = 8 * FB6
SPB = 6 * SEQB + 2 * BB6
TOPB = SPB + 6144
OOB = 0x7f000000
PLH, PLF = int(os.environ.get('PLH', 131072)), int(os.environ.get('PLF', 65536))
NTW, NTH, NTF = ({"0": "", "1": " nt", "2": " sc1", "3": " sc0 sc1"}[c] for c in os.environ.get("NT", "222"))


def add64(a, d, lo, off):
    a.e(f"s_add_u32 s{d}, s{lo}, {off}")
    a.e(f"s_addc_u32 s{d+1}, s{lo+1}, 0")


def eval_ops(c, t):
    e1, o1, e2, o2 = t
    ops = [f"v_add_f32 v{e1}, v{c[0]}, v{c[2]}",
           f"v_add_f32 v{o1}, v{c[1]}, v{c[3]}",
           f"v_fma_f32 v{e2}, v{c[2]}, 4.0, v{c[0]}",
           f"v_fma_f32 v{o2}, v{c[3]}, 4.0, v{c[1]}",
           f"v_add_f32 v{c[1]}, v{e1}, v{o1}",
           f"v_sub_f32 v{c[2]}, v{e1}, v{o1}",
           f"v_fma_f32 v{c[3]}, v{o2}, 2.0, v{e2}",
           f"v_fma_f32 v{e2}, v{o2}, -2.0, v{e2}",
           f"v_fmamk_f32 v{e1}, v{c[0]}, {f32hex(15.0)}, v{e2}",
           f"v_fmamk_f32 v{e1}, v{o1}, {f32hex(10.0)}, v{e1}"]
    return ops, [c[1], c[2], c[3], e2, e1]


def wprep(a, karg, wsoff, ws_loaded, barrier=False, extra=None, small=None):
    a.vm, a.lg = [], []
    a.e(f"s_load_dwordx2 s[8:9], s[0:1], {karg}")
    if not ws_loaded:
        a.e("s_load_dwordx2 s[30:31], s[0:1], 72")
    a.e("s_lshr_b32 s22, s20, 8")
    a.e("s_bfe_u32 s23, s20, 0x40004")
    a.e("s_bfe_u32 s24, s20, 0x30001")
    a.e("s_and_b32 s21, s20, 1")
    a.e("v_lshrrev_b32 v2, 4, v1")
    a.e("v_lshlrev_b32 v2, 12, v2")
    a.e("v_and_b32 v3, 15, v1")
    a.e("v_lshl_add_u32 v2, v3, 2, v2")
    a.e("s_lshl_b32 s26, s22, 3")
    a.e("s_lshr_b32 s27, s23, 3")
    a.e("s_add_u32 s26, s26, s27")
    a.e("s_lshl_b32 s26, s26, 17")
    a.e("s_and_b32 s27, s23, 7")
    a.e("s_lshl_b32 s27, s27, 14")
    a.e("s_add_u32 s26, s26, s27")
    a.e("s_lshl_b32 s27, s24, 6")
    a.e("s_add_u32 s26, s26, s27")
    a.e(f"s_mov_b32 s10, {31*131072}")
    a.e("s_mov_b32 s11, 0x00020000")
    if small:
        small_select(a)
        a.e("s_add_u32 s37, s26, s5")
        a.e("s_add_u32 s38, s37, s5")
        a.e("s_add_u32 s39, s38, s5")
    else:
        for p in range(1, 4):
            a.e(f"s_add_u32 s{36+p}, s26, {2*131072*p}")
    a.e("s_waitcnt lgkmcnt(0)")
    if small:
        small_ptr(a)
    R = 16
    for e2 in range(4):
        for p in range(4):
            for e in (2 * e2, 2 * e2 + 1):
                a.vmem(f"buffer_load_dword v{R+p*8+e}, v2, s[8:11], s{36+p if p else 26} offen offset:{e*512}", ("L", e2))
    if small:
        a.e("s_cmp_lt_u32 s3, 12")
        a.e(f"s_cbranch_scc1 {small}")
    add64(a, 12, 30, wsoff)
    a.e(f"s_mov_b32 s14, {8*16*CHUNKB}")
    a.e("s_mov_b32 s15, 0x00020000")
    a.e("v_lshlrev_b32 v4, 4, v1")
    a.e("s_lshl_b32 s27, s24, 4")
    a.e("s_add_u32 s27, s27, s23")
    a.e(f"s_mul_i32 s27, s27, {CHUNKB}")
    a.e("s_lshl_b32 s28, s22, 11")
    a.e("s_add_u32 s27, s27, s28")
    a.e("s_lshl_b32 s28, s21, 10")
    a.e("s_add_u32 s27, s27, s28")
    a.e("s_cmp_eq_u32 s21, 0")
    a.e("s_mov_b32 s32, 0x07060302")
    a.e("s_cselect_b32 s32, 0x05040100, s32")
    a.e("s_mov_b32 s33, 0x03020c0c")
    a.e("s_cselect_b32 s33, 0x01000c0c, s33")
    a.e(f"s_mov_b32 s35, {f32hex(1.0/24)}")
    a.e(f"s_mov_b32 s36, {f32hex(1.0/72)}")
    if barrier:
        barrier()
    OUT = 48
    T = 76
    scale = ("0.5", "0.5", "s35", "s35", "s36")
    for e2 in range(4):
        a.wait(vm=(("L", e2),))
        if extra and e2 == int(os.environ.get("XT", "3")):
            assert not a.vm
            extra()
        for p, seq in ((0, 6), (3, 0)):
            a.e(f"v_perm_b32 v{OUT+seq*4+e2}, v{R+p*8+2*e2+1}, v{R+p*8+2*e2}, s32")
        res, lists = [], []
        for e in range(2):
            cf = [T + e * 8 + i for i in range(4)]
            ops = [f"v_perm_b32 v{cf[i]}, v{cf[i]}, v{R + (3 - i) * 8 + 2 * e2 + e}, s33" for i in range(4)]
            o, rr = eval_ops(cf, [T + e * 8 + 4 + i for i in range(4)])
            ops += o + [f"v_mul_f32 v{r}, {sc}, v{r}" for r, sc in zip(rr, scale)]
            res.append(rr)
            lists.append(ops)
        for x, y in zip(*lists):
            a.e(x)
            a.e(y)
        for i in range(5):
            a.e(f"v_cvt_pk_bf16_f32 v{OUT+(1+i)*4+e2}, v{res[0][i]}, v{res[1][i]}")
    for seq in (6, 0, 1, 2, 3, 4, 5):
        a.e(f"s_add_u32 s28, s27, {seq*8192}")
        a.e(f"buffer_store_dwordx4 {vr(OUT+seq*4)}, v4, s[12:15], s28 offen{NTW}")


def prep_kernel(name):
    a = Asm()
    NWG = 268
    a.label(name)
    a.e(f"s_cmp_ge_u32 s2, {NWG}")
    a.e(f"s_cbranch_scc1 L_{name}_done")
    CW = os.environ.get("CW", "late")
    CWN = int(os.environ.get("CWN", "44"))

    def code_warm():
        a.e(f"s_cmp_ge_u32 s3, {CWN}")
        a.e(f"s_cbranch_scc1 L_{name}_ncw")
        a.e("s_getpc_b64 s[62:63]")
        a.label(f"L_{name}_pc")
        a.e("s_and_b32 s64, s3, 8")
        a.e("s_lshl_b32 s64, s64, 12")
        a.e("v_lshlrev_b32 v120, 7, v0")
        a.e("v_add_u32 v120, s64, v120")
        a.e(f"v_min_u32 v120, 0x7fc0de00, v120")
        a.e("v_mov_b32 v121, s63")
        a.e("v_add_co_u32 v120, vcc, s62, v120")
        a.e("v_addc_co_u32 v121, vcc, 0, v121, vcc")
        a.e("global_load_dword v122, v[120:121], off")
        a.label(f"L_{name}_ncw")
        return 0
    a.e("s_mov_b32 s3, s2")
    if CW == "early":
        code_warm()
    a.e("s_load_dwordx16 s[44:59], s[0:1], 0")
    a.e("s_sub_u32 s2, s2, 12")
    if "stamp" in EXP:
        a.e("s_memrealtime s[60:61]")
    a.e("v_readfirstlane_b32 s40, v0")
    a.e("s_lshr_b32 s40, s40, 6")
    a.e("s_lshl_b32 s21, s2, 2")
    a.e("s_add_u32 s20, s40, s21")
    a.e("v_and_b32 v1, 63, v0")
    wprep(a, 8, WS_W1P, False, small=f"L_{name}_small", extra=code_warm if CW == "late" else None)
    if "stamp" in EXP:
        a.e("s_waitcnt vmcnt(0)")
        a.e("s_memrealtime s[62:63]")
        a.e("s_lshl_b32 s36, s2, 7")
        a.e(f"s_add_u32 s36, s36, {WS_STAMP + 3*0x10000}")
        add64(a, 40, 30, "s36")
        a.e("s_mov_b32 s42, 128")
        a.e("s_mov_b32 s43, 0x00020000")
        a.e("s_waitcnt lgkmcnt(0)")
        a.e("v_mov_b32 v8, 0")
        a.e("v_mov_b32 v0, 1")
        a.e("buffer_store_dword v0, v8, s[40:43], 0 offen")
        for i in range(4):
            a.e(f"v_mov_b32 v0, s{60+i}")
            a.e(f"buffer_store_dword v0, v8, s[40:43], 0 offen offset:{80+4*i}")
    a.label(f"L_{name}_done")
    a.e("s_endpgm")
    small_tail(a, name)
    return a.L, 4096, 128


def conv_kernel(name, cfg):
    TIN, TOUT = cfg["tin"], cfg["tout"]
    N = cfg["nchunk"]
    KSPLIT = cfg["ksplit"]
    NWG = 256
    STAMP = "stamp" in EXP
    sX, sW, sO = 8, 12, 16
    sWv, sT0, sCnt, sBo, sXo, sMask = 20, 21, 22, 23, 24, 25
    sBo2 = 26
    sK, sCb, sH = 28, 29, 32
    sSt = 60
    vL = 127
    vU, vS_, vI, vKG = 8, 9, 10, 11

    a = Asm()
    a.label(name)
    a.e(f"s_cmp_ge_u32 s2, {NWG}")
    a.e(f"s_cbranch_scc1 L_{name}_done")

    def stamp(i, fence=True):
        if STAMP:
            a.e(f"s_memtime s[{sSt+2*i}:{sSt+2*i+1}]")
            if fence:
                a.e("s_waitcnt lgkmcnt(0)")
                a.lg = []

    def rstamp(i):
        if STAMP:
            a.e(f"s_memrealtime s[{sSt+2*i}:{sSt+2*i+1}]")
            a.e("s_waitcnt lgkmcnt(0)")
            a.lg = []
    if STAMP:
        for i in range(28):
            a.e(f"s_mov_b32 s{sSt+i}, 0")
        a.e(f"s_memrealtime s[{sSt+20}:{sSt+21}]")
    stamp(0, False)
    a.e(f"s_load_dwordx2 s[4:5], s[0:1], {cfg['in_arg']}")
    a.e("s_load_dwordx2 s[30:31], s[0:1], 72")
    a.e(f"v_readfirstlane_b32 s{sWv}, v0")
    a.e(f"s_lshr_b32 s{sWv}, s{sWv}, 6")
    XL = int(os.environ.get("XL", "3"))
    a.e(f"s_and_b32 s36, s2, {(8 >> XL) - 1}")
    a.e(f"s_lshl_b32 s36, s36, {XL}")
    a.e(f"s_bfe_u32 s37, s2, {(XL << 16) | 3}")
    a.e(f"s_or_b32 s{sCb}, s36, s37")
    a.e(f"s_bfe_u32 s36, s2, {(XL << 16) | (3 - XL)}")
    a.e(f"s_lshl_b32 s36, s36, {5 - XL}")
    a.e(f"s_lshr_b32 s37, s2, {3 + XL}")
    a.e("s_or_b32 s36, s36, s37")
    if KSPLIT:
        a.e("s_lshr_b32 s33, s36, 4")
        a.e("s_and_b32 s34, s36, 7")
        a.e("s_bfe_u32 s35, s36, 0x10003")
    else:
        a.e("s_mov_b32 s33, 0")
        a.e("s_and_b32 s34, s36, 15")
        a.e("s_lshr_b32 s35, s36, 4")
    a.e(f"s_mul_i32 s{sT0}, s34, 500")
    a.e(f"s_and_b32 s{sH}, s{sWv}, 3")
    a.e(f"v_and_b32 v{vL}, 63, v0")
    a.e(f"v_lshrrev_b32 v5, 2, v{vL}")
    a.e(f"v_and_b32 v6, 3, v{vL}")
    a.e(f"s_and_b32 s42, s{sWv}, 7")
    if not KSPLIT:
        a.e("v_lshlrev_b32 v7, 15, v5")
        a.e("v_lshl_add_u32 v7, v6, 4, v7")
        a.e(f"s_lshl_b32 s41, s{sT0}, 10")
        a.e("s_sub_u32 s41, s41, 7680")
        a.e("s_lshl_b32 s37, s42, 12")
        a.e("s_add_u32 s37, s37, s41")
        a.e("v_add_u32 v7, s37, v7")
        a.e(f"s_mul_i32 s36, s35, {TIN*512}")
        a.e(f"s_mov_b32 s{sX+2}, {TIN*512}")
    else:
        a.e(f"s_lshr_b32 s41, s{sT0}, 2")
        a.e("s_sub_u32 s41, s41, 1")
        a.e("s_add_u32 s37, s41, s42")
        a.e("v_lshl_add_u32 v7, v5, 3, s37")
        a.e(f"s_mul_i32 s36, s35, {32*PLH}")
        a.e(f"s_add_u32 s36, s36, {cfg['in_off']}")
        a.e(f"s_mov_b32 s{sX+2}, {32*PLH}")

    def haddr(dst, vG, vlane, p, t):
        a.e(f"s_add_u32 s37, s33, {2*p - 7 & 0xffffffff}")
        a.e(f"v_lshl_add_u32 v{t}, v{vG}, 3, s37")
        a.e(f"v_cmp_gt_u32 vcc, {TIN}, v{t}")
        a.e(f"s_mul_i32 s37, s33, {PLH}")
        a.e(f"s_add_u32 s37, s37, {(2*p & 3)*PLH + (p >> 1)*64}")
        a.e(f"v_lshl_add_u32 v{dst}, v{vG}, 7, s37")
        a.e(f"v_add_u32 v{dst}, v{dst}, v{vlane}")
        a.e(f"v_mov_b32 v{t}, {OOB}")
        a.e(f"v_cndmask_b32 v{dst}, v{t}, v{dst}, vcc")
    a.e(f"s_mov_b32 s{sX+3}, 0x00020000")
    a.e(f"s_mov_b32 s{sMask}, 0xffff0000")
    a.e("s_waitcnt lgkmcnt(0)")
    stamp(1)
    add64(a, sX, 4, "s36")
    OB = 512

    def wsrd():
        a.e(f"s_lshl_b32 s36, s{sCb}, 4")
        a.e("s_lshl_b32 s37, s33, 3")
        a.e("s_add_u32 s36, s36, s37")
        a.e(f"s_mul_i32 s36, s36, {CHUNKB}")
        a.e(f"s_add_u32 s36, s36, {cfg['w_off']}")
        add64(a, sW, 30, "s36")
        a.e(f"s_mov_b32 s{sW+2}, {N*CHUNKB}")
        a.e(f"s_mov_b32 s{sW+3}, 0x00020000")

    def lds_throttle(need=1):
        if len(a.lg) + need > 15:
            a.e("s_waitcnt lgkmcnt(8)")
            a.lg = a.lg[-8:]

    def mf(acc, b, av):
        if "nomfma" not in EXP:
            a.e(f"v_mfma_f32_16x16x32_bf16 {vr(acc)}, {vr(b)}, {vr(av)}, {vr(acc)}")

    def steady(gen, per, strict=True):
        st = []
        for it in range(3):
            st.append(len(a.L))
            for pos in range(per):
                gen(per * it + pos, pos)
        st.append(len(a.L))
        bodies = [a.L[st[i]:st[i + 1]] for i in range(3)]
        if strict:
            assert bodies[1] == bodies[2], "loop not steady"
            assert bodies[0] == bodies[1], "loop entry not steady"
        del a.L[st[0]:]
        return bodies[1]

    a.e(f"s_cmp_ge_u32 s{sWv}, 8")
    a.e(f"s_cbranch_scc1 L_{name}_helper")

    ACC = 0
    vF, vA8, vD, vB = (120, 121), 122, (123, 124), 125
    vP = (116, 117, 118)
    vBZ = 119
    S, T, O = 96, 108, 64
    if not KSPLIT:
        a.e(f"s_add_u32 s37, s41, {128*4096}")
        a.e(f"v_lshl_add_u32 v{T}, v{vL}, 4, s37")
        for p in range(1, 3):
            a.e(f"v_add_u32 v{T+p}, {p*1024}, v{T}")
    else:
        a.e("s_add_u32 s37, s41, 128")
        a.e("v_mov_b32 v16, s37")
        a.e(f"v_mul_u32_u24 v17, {4*PLH}, v5")
        a.e("v_lshl_add_u32 v17, v6, 4, v17")
        for p in range(3):
            haddr(T + p, 16, 17, p, 18)
    wsrd()
    PLO = PLF if KSPLIT else PLH
    a.e(f"s_mul_i32 s36, s35, {32*PLO}")
    a.e(f"s_add_u32 s36, s36, {cfg['out_off']}")
    if KSPLIT:
        a.e(f"s_mul_i32 s37, s33, {WS_FPS}")
        a.e("s_add_u32 s36, s36, s37")
    add64(a, sO, 30, "s36")
    a.e(f"s_mov_b32 s{sO+2}, {32*PLO}")
    a.e(f"s_mov_b32 s{sO+3}, 0x00020000")
    a.e(f"v_and_b32 v{vI}, 15, v{vL}")
    a.e(f"v_lshrrev_b32 v{vKG}, 4, v{vL}")
    t = 16
    for d, sh in ((vU, 0), (vS_, 1)):
        a.e(f"v_add_u32 v{d}, {sh}, v{vI}")
        a.e(f"v_and_b32 v{t}, 4, v{d}")
        a.e(f"v_lshrrev_b32 v{t}, 1, v{t}")
        a.e(f"v_xor_b32 v{t}, v{vKG}, v{t}")
        a.e(f"v_lshlrev_b32 v{t}, 4, v{t}")
        a.e(f"v_lshl_add_u32 v{d}, v{d}, 6, v{t}")
    a.e(f"s_lshr_b32 s38, s{sH}, 1")
    a.e(f"s_and_b32 s39, s{sH}, 1")
    a.e("s_add_u32 s40, s38, 4")
    a.e("s_lshl_b32 s43, s39, 10")
    a.e(f"s_cmp_lt_u32 s{sWv}, 4")
    a.e(f"s_cselect_b32 s40, s{sWv}, s40")
    a.e("s_cselect_b32 s36, 0, s43")
    a.e("s_lshl_b32 s37, s40, 13")
    a.e("s_add_u32 s37, s37, s36")
    a.e(f"v_lshl_add_u32 v{vB}, v{vL}, 4, s37")
    a.e(f"s_mul_i32 s37, s40, {SEQB}")
    a.e(f"v_add_u32 v{vF[0]}, s37, v{vU}")
    a.e(f"v_add_u32 v{vF[1]}, s37, v{vS_}")
    a.e("s_lshl_b32 s37, s40, 10")
    a.e(f"s_add_u32 s37, s37, {SPB}")
    a.e(f"v_lshl_add_u32 v{t}, v{vKG}, 4, s37")
    a.e(f"v_cmp_eq_u32 vcc, 15, v{vI}")
    a.e(f"v_mov_b32 v{t+1}, {BB}")
    a.e(f"v_mov_b32 v{t+2}, {-BB & 0xffffffff}")
    a.e(f"v_mov_b32 v{t+3}, 64")
    a.e(f"v_cndmask_b32 v{vA8}, v{vF[1]}, v{t}, vcc")
    a.e(f"v_cndmask_b32 v{vD[0]}, v{t+1}, v{t+3}, vcc")
    a.e(f"v_cndmask_b32 v{vD[1]}, v{t+2}, v{t+3}, vcc")
    a.e(f"v_lshl_add_u32 v126, v{vL}, 4, s37")
    tabs = {44: (1.0, 1.0, 1.0, 1.0, 1.0, 16.0), 45: (0.0, 1.0, -1.0, 2.0, -2.0, 8.0),
            46: (0.0, 1.0, 1.0, 4.0, 4.0, 4.0)}
    for sg, tab in tabs.items():
        a.e(f"s_mov_b32 s{sg}, {f32hex(tab[0])}")
    for q in range(1, 6):
        a.e(f"s_cmp_eq_u32 s40, {q}")
        for sg, tab in tabs.items():
            if tab[q] != tab[0]:
                a.e(f"s_cselect_b32 s{sg}, {f32hex(tab[q])}, s{sg}")

    def special_rows():
        a.wait(vm=("SP",))
        for d in range(4):
            for p in range(3):
                a.e(f"v_lshlrev_b32 v{T+p}, 16, v{S+4*p+d}")
                a.e(f"v_and_b32 v{T+3+p}, s{sMask}, v{S+4*p+d}")
            for h in range(2):
                a.e(f"v_mul_f32 v{T+6+h}, s44, v{T+3*h}")
            for h in range(2):
                a.e(f"v_fmac_f32 v{T+6+h}, s45, v{T+3*h+1}")
            for h in range(2):
                a.e(f"v_fmac_f32 v{T+6+h}, s46, v{T+3*h+2}")
            a.e(f"v_cvt_pk_bf16_f32 v{S+d}, v{T+6}, v{T+7}")
        a.e(f"ds_write_b128 v126, {vr(S)}")

    def own_read(k, g, reg, tag, last=False):
        if g == 8:
            base, off = vA8, 0
        else:
            base, off = vF[g >> 3], (k & 1) * BB + (g & 7) * FB
        a.lds(f"ds_read_b128 {vr(reg)}, v{base} offset:{off}", tag)
        if g == 8 and not last:
            a.e(f"v_add_u32 v{vA8}, v{vD[k & 1]}, v{vA8}")

    UNIT = [(s * SEQB, s * SEQB + BB) for s in range(4)] + [(4 * SEQB, TOPB), (5 * SEQB, TOPB + 8192),
            (6 * SEQB, TOPB + 16384), (TOPB + 24576, TOPB + 32768)]
    EA = 96

    def ex_addr(sbase):
        a.e(f"v_and_b32 v{EA}, 15, v{vL}")
        a.e(f"v_and_b32 v{EA+1}, 7, v{vL}")
        a.e(f"v_lshlrev_b32 v{EA+1}, 4, v{EA+1}")
        a.e(f"v_lshl_add_u32 v{EA}, v{EA}, 7, v{EA+1}")
        a.e(f"v_lshrrev_b32 v{EA+1}, 4, v{vL}")
        a.e(f"v_lshl_add_u32 v{EA}, v{EA+1}, 11, v{EA}")
        a.e(f"v_add_u32 v{EA}, s{sbase}, v{EA}")
        for f in range(1, 8):
            a.e(f"v_xor_b32 v{EA+f}, {f << 4}, v{EA}")

    def mwave(role):
        if role == 1:
            BR, AR, NR = 64, 96, 6
            steps = [("X", g) for g in range(11)]
        else:
            BR, AR, NR = 64, 88, 7
            steps = []
            for g in range(11):
                steps.append(("Y", g))
                if 1 <= g <= 9:
                    steps.append(("Z", g - 1))
        NS = len(steps)

        def bload(k, kind, q):
            if "nob" in EXP and k > 0:
                return
            so = sBo2 if q >> 1 else sBo
            if kind == "X":
                for c in range(2):
                    a.vmem(f"buffer_load_dwordx4 {vr(BR+(q*2+c)*4)}, v{vB}, {sr(sW)}, s{so} offen "
                           f"offset:{(q&1)*2048 + c*1024}", ("B", k, kind, q))
            elif kind == "Y":
                a.vmem(f"buffer_load_dwordx4 {vr(BR+q*4)}, v{vB}, {sr(sW)}, s{so} offen offset:{(q&1)*2048}",
                       ("B", k, kind, q))
            else:
                a.vmem(f"buffer_load_dwordx4 {vr(BR+16+q*4)}, v{vBZ}, {sr(sW)}, s{sBo} offen offset:{q*2048}",
                       ("B", k, kind, q))

        def rd(k, n, last=False):
            kind, g = steps[n]
            reg = AR + 4 * (n % NR)
            if kind == "Z":
                base, off = (vP[0], g * FB6) if g < 6 else (vP[1], (g - 6) * FB6) if g < 8 else (vP[2], 0)
                a.lds(f"ds_read_b128 {vr(reg)}, v{base} offset:{(k & 1)*BB6 + off}", ("A", k, n))
            else:
                own_read(k, g, reg, ("A", k, n), last)

        for i in range(64):
            a.e(f"v_mov_b32 v{ACC+i}, 0")
        if "nob0" not in EXP:
            a.e("s_barrier")
            for p in range(3):
                a.vmem(f"buffer_load_dwordx4 {vr(S+4*p)}, v{T+p}, {sr(sX)}, 0 offen", "SP")
        a.e(f"s_mov_b32 s{sBo}, 0")
        a.e(f"s_mov_b32 s{sBo2}, 4096")
        for st in steps:
            if st and st[1] >= 7:
                bload(0, st[0], st[1] - 7)
        a.e(f"s_mov_b32 s{sBo}, {CHUNKB}")
        a.e(f"s_mov_b32 s{sBo2}, {CHUNKB + 4096}")
        special_rows()
        if role == 2:
            a.e(f"v_and_b32 v126, 15, v{vL}")
            a.e("v_lshlrev_b32 v126, 2, v126")
            a.e(f"v_add_u32 v126, {6*SEQB + 1024}, v126")
            a.e(f"ds_write_b32 v126, v{ACC}")
            a.e(f"ds_write_b32 v126, v{ACC} offset:{BB6}")
        a.e("s_waitcnt lgkmcnt(0)")
        a.e("s_barrier")
        stamp(7)
        rstamp(12)
        a.e(f"s_mov_b32 s{sCnt}, {N//2}")
        a.e(f"s_setprio {os.environ.get(f'PM{role}', '2')}")

        CO = int(os.environ.get(f"CO{role}", "0" if role == 1 else "5"))
        assert CO < NR
        FM = int("fmaj" in EXP)
        vE = (vD[0], vD[1])

        def period(k, _, last=False):
            if "mst" in EXP and _ == 0:
                stamp(2)
            if "bst" in EXP and _ == 1 and not last:
                a.e("s_memtime s[90:91]")
                a.e("s_waitcnt vmcnt(0) lgkmcnt(0)")
                a.e("s_memtime s[92:93]")
                a.e("s_waitcnt lgkmcnt(0)")
                a.e("s_sub_u32 s92, s92, s90")
                a.e(f"s_add_u32 s{sSt+4}, s{sSt+4}, s92")
                a.e(f"s_max_u32 s{sSt+6}, s{sSt+6}, s92")
                a.vm = []
            for n in range(NR):
                rd(k, n, last)
            pend = []

            def flush(n, cnt):
                while pend and pend[0][0] <= n and cnt > 0:
                    _, h, f = pend.pop(0)
                    t = vE[(h + f) & 1]
                    a.e(f"v_xor_b32 v{t}, {f << 4}, v{vX0[h]}")
                    lds_throttle()
                    a.lds(f"ds_write_b128 v{t}, {vr(ACC + h*32 + f*4)}", "E")
                    cnt -= 1

            for n, st in enumerate(steps):
                if CO and n == NS - CO and not last:
                    a.wait(lg_all=True)
                    if "mst" in EXP and _ == 0:
                        stamp(3)
                    a.e("s_barrier")
                    if "mst" in EXP and _ == 0:
                        stamp(4)
                kind, g = st
                nt = 2 if kind == "Z" else 4
                qs = [q for q in range(nt) if 0 <= g - q <= 7]
                if FM and kind == "X":
                    if g >= 3:
                        f = g - 3
                        for c in range(2):
                            for q in range(4):
                                a.wait(lg=(("A", k, f + q),), vm=(("B", k, kind, q),))
                                mf(ACC + 32 * c + f * 4, BR + q * 8 + 4 * c, AR + 4 * ((f + q) % NR))
                        if f + NR < NS:
                            rd(k, f + NR, last)
                        if g == 10 and not last:
                            for q in range(4):
                                bload(k + 1, kind, q)
                    qs = []
                else:
                    a.wait(lg=(("A", k, n),), vm=tuple(("B", k, kind, q) for q in qs))
                reg = AR + 4 * (n % NR)
                for q in qs:
                    f = g - q
                    if kind == "X":
                        mf(ACC + f * 4, BR + q * 8, reg)
                        mf(ACC + 32 + f * 4, BR + q * 8 + 4, reg)
                    elif kind == "Y":
                        mf(ACC + f * 4, BR + q * 4, reg)
                    else:
                        mf(ACC + 32 + f * 4, BR + 16 + q * 4, reg)
                if g >= 7 and not last and not (FM and kind == "X"):
                    bload(k + 1, kind, g - 7)
                if n + NR < NS and not (FM and kind == "X"):
                    rd(k, n + NR, last)
                if last:
                    flush(n, 2)
                    f = g - (nt - 1)
                    if f >= 0:
                        if kind == "X":
                            pend.append((n + 1, 0, f))
                            pend.append((max(n + 1, NS - NR + 1 + 3 * FM), 1, f))
                            pend.sort()
                        else:
                            pend.append((n + 3, 0 if kind == "Y" else 1, f))
                    if kind == "X" and n == NS - NR + 3 * FM:
                        a.wait(lg=(("A", k, NS - 1),))
            if last:
                a.e("s_nop 7")
                flush(1000, 1000)
                return
            a.e(f"s_add_u32 s{sBo}, s{sBo}, {CHUNKB}")
            a.e(f"s_add_u32 s{sBo2}, s{sBo2}, {CHUNKB}")
            assert not a.lg
            if "mst" in EXP and _ == 0:
                stamp(5)
            if not CO:
                a.e("s_barrier")
            if "mst" in EXP and _ == 0:
                stamp(6)

        def period2(k, pos):
            if pos == 1:
                a.e(f"s_sub_u32 s{sCnt}, s{sCnt}, 1")
                a.e(f"s_cmp_eq_u32 s{sCnt}, 0")
                a.e(f"s_cbranch_scc1 L_{name}_mlast{role}")
                state[0] = (list(a.vm), k)
            period(k, pos)

        state = [None]
        body = steady(period2, 2, "nob" not in EXP)
        if "nob" in EXP:
            a.e("s_waitcnt vmcnt(0)")
        a.label(f"L_{name}_mloop{role}")
        a.L.extend(body)
        a.e(f"s_branch L_{name}_mloop{role}")
        a.label(f"L_{name}_mlast{role}")
        a.vm, a.lg = state[0][0], []
        vX0 = (vB, 126)
        a.e(f"v_and_b32 v{vX0[0]}, 15, v{vL}")
        a.e(f"v_and_b32 v{vX0[1]}, 7, v{vL}")
        a.e(f"v_lshlrev_b32 v{vX0[1]}, 4, v{vX0[1]}")
        a.e(f"v_lshl_add_u32 v{vX0[0]}, v{vX0[0]}, 7, v{vX0[1]}")
        a.e(f"v_lshrrev_b32 v{vX0[1]}, 4, v{vL}")
        a.e(f"v_lshl_add_u32 v{vX0[0]}, v{vX0[1]}, 11, v{vX0[0]}")
        if role == 1:
            a.e(f"s_lshl_b32 s36, s{sWv}, 14")
            a.e("s_add_u32 s37, s36, 8192")
        else:
            for sg, tab in ((36, [UNIT[4 + (h >> 1)][h & 1] for h in range(4)]),
                            (37, [UNIT[6 + (h >> 1)][h & 1] for h in range(4)])):
                a.e(f"s_mov_b32 s{sg}, {tab[0]}")
                for h in range(1, 4):
                    a.e(f"s_cmp_eq_u32 s{sH}, {h}")
                    a.e(f"s_cselect_b32 s{sg}, {tab[h]}, s{sg}")
        a.e(f"v_add_u32 v{vX0[1]}, s37, v{vX0[0]}")
        a.e(f"v_add_u32 v{vX0[0]}, s36, v{vX0[0]}")
        period(state[0][1], 1, True)
        stamp(8, False)
        rstamp(13)
        a.e("s_setprio 0")
        a.vm, a.lg = [], []

    a.e(f"s_cmp_ge_u32 s{sWv}, 4")
    a.e(f"s_cbranch_scc1 L_{name}_m2")
    vm0 = list(a.vm)
    mwave(1)
    a.e(f"s_branch L_{name}_epi")
    a.label(f"L_{name}_m2")
    a.vm, a.lg = list(vm0), []
    a.e(f"s_mul_i32 s37, s38, {2*FB6}")
    a.e(f"s_add_u32 s37, s37, {6*SEQB}")
    a.e(f"v_add_u32 v{vP[0]}, s37, v{vU}")
    a.e(f"v_add_u32 v{vP[2]}, s37, v{vS_}")
    a.e(f"v_add_u32 v{vP[1]}, {6*SEQB + 6*FB6}, v{vU}")
    a.e("s_cmp_eq_u32 s38, 0")
    a.e(f"s_cbranch_scc1 L_{name}_hh0")
    a.e(f"v_add_u32 v{vP[1]}, {6*SEQB}, v{vS_}")
    a.label(f"L_{name}_hh0")
    a.e("s_lshl_b32 s37, s38, 12")
    a.e("s_add_u32 s37, s37, s43")
    a.e(f"s_add_u32 s37, s37, {6*8192}")
    a.e(f"v_lshl_add_u32 v{vBZ}, v{vL}, 4, s37")
    mwave(2)
    a.e(f"s_branch L_{name}_epi")

    a.label(f"L_{name}_helper")
    a.vm, a.lg = [], []
    a.e("s_setprio 3")
    PB = (0, 32)
    XO = 64
    TMP = 76
    vX = 92
    vW = (96, 97, 98)

    def praw(b, half, p):
        return PB[b] + half * 16 + p * 4

    sXo2 = 27

    def xload(pair, p):
        if KSPLIT:
            half, q = p >> 1, p & 1
            for r in (q, q + 2):
                a.vmem(f"buffer_load_dwordx4 {vr(praw(pair & 1, half, r))}, v{vX+r}, {sr(sX)}, "
                       f"s{sXo2 if half else sXo} offen", ("X", pair))
            return
        for half in range(2):
            a.vmem(f"buffer_load_dwordx4 {vr(praw(pair & 1, half, p))}, v{vX+p}, {sr(sX)}, "
                   f"s{sXo} offen offset:{half*64}", ("X", pair))
        a.e(f"v_add_u32 v{vX+p}, 128, v{vX+p}")

    def uregs(chunk):
        return [praw((chunk >> 1) & 1, chunk & 1, p) for p in range(4)]

    def wr(chunk, i):
        if "nowr" in EXP:
            return
        u = uregs(chunk)
        reg, seq = [(XO, 3), (XO + 4, 4), (XO + 8, 5), (u[0], 0), (u[1], 1), (u[2], 2), (u[3], 6)][i]
        lds_throttle()
        if seq == 6:
            a.lds(f"ds_write_b128 v{vW[2]}, {vr(reg)} offset:{(chunk & 1)*BB6}", "W")
        else:
            a.lds(f"ds_write_b128 v{vW[seq >> 2]}, {vr(reg)} offset:{(seq & 3)*SEQB + (chunk & 1)*BB}", "W")

    def tr_ops(chunk):
        u = uregs(chunk)
        o = [u[1], u[2], XO, XO + 4, XO + 8]
        ops = []
        for d in range(4):
            lo = [TMP + p for p in range(4)]
            hi = [TMP + 8 + p for p in range(4)]
            for p in range(4):
                ops.append(f"v_lshlrev_b32 v{lo[p]}, 16, v{u[p]+d}")
                ops.append(f"v_and_b32 v{hi[p]}, s{sMask}, v{u[p]+d}")
            o1, r1 = eval_ops(lo, [TMP + 4 + i for i in range(4)])
            o2, r2 = eval_ops(hi, [TMP + 12 + i for i in range(4)])
            for x, y in zip(o1, o2):
                ops += [x, y]
            for i in range(5):
                ops.append(f"v_cvt_pk_bf16_f32 v{o[i]+d}, v{r1[i]}, v{r2[i]}")
        if "notr" in EXP:
            ops = ["s_nop 0"] * 8
        return ops

    if KSPLIT:
        a.e("v_lshlrev_b32 v8, 4, v6")
    for p in range(4):
        if KSPLIT:
            haddr(vX + p, 7, 8, p, 9)
        else:
            a.e(f"v_add_u32 v{vX+p}, {p*1024}, v7")
    a.e(f"v_and_b32 v{TMP}, 4, v5")
    a.e(f"v_lshrrev_b32 v{TMP}, 1, v{TMP}")
    a.e(f"v_xor_b32 v{TMP}, v6, v{TMP}")
    a.e(f"v_lshlrev_b32 v{TMP}, 4, v{TMP}")
    a.e(f"v_lshl_add_u32 v{TMP}, v5, 6, v{TMP}")
    a.e(f"s_mov_b32 s{sXo}, 0")
    a.e(f"s_mov_b32 s{sXo2}, {4*PLH}")
    stamp(2)
    P0 = os.environ.get("P0", "0")
    if P0 == "0" or KSPLIT:
        for p in range(4):
            xload(0, p)
            if p == 1 and P0 == "2":
                a.e("s_barrier")
    else:
        for half in range(2):
            for p in range(4):
                a.vmem(f"buffer_load_dwordx4 {vr(praw(0, half, p))}, v{vX+p}, {sr(sX)}, s{sXo} offen offset:{half*64}", ("X", 0))
            if half == 0 and P0 == "2":
                a.e("s_barrier")
        for p in range(4):
            a.e(f"v_add_u32 v{vX+p}, 128, v{vX+p}")
    if P0 != "2":
        a.e("s_barrier")
    a.e(f"s_mul_i32 s36, s42, {FB}")
    a.e(f"v_add_u32 v{vW[0]}, s36, v{TMP}")
    a.e(f"v_add_u32 v{vW[1]}, {4*SEQB}, v{vW[0]}")
    a.e(f"s_mul_i32 s36, s42, {FB6}")
    a.e(f"s_add_u32 s36, s36, {6*SEQB}")
    a.e(f"v_add_u32 v{vW[2]}, s36, v{TMP}")
    stamp(3)
    a.e(f"s_waitcnt vmcnt({0 if P0 == '0' else 4})")
    stamp(4)
    a.e(f"s_mov_b32 s{sK}, 0")
    a.e(f"s_mov_b32 s{sCnt}, {N//4}")
    a.e(f"s_cmp_ge_u32 s{sWv}, 12")
    a.e(f"s_cbranch_scc1 L_{name}_h2")

    def hwave(role):
        SH = 33 * int(os.environ.get(f"SH{role}", "0" if role == 1 else "4"))
        ahead = 2 if SH else 1
        a.vm, a.lg = [], []
        wr(0, 3)
        wr(0, 6)
        for op in tr_ops(0):
            a.e(op)
        for i in (0, 1, 2, 4, 5):
            wr(0, i)
        a.e("s_waitcnt vmcnt(0)")
        NF = int(os.environ.get("NF", "2"))
        if KSPLIT:
            a.e(f"s_mov_b32 s{sXo}, {8*PLH}")
            a.e(f"s_mov_b32 s{sXo2}, {12*PLH}")
        for p in range(4 if SH else NF):
            xload(1, p)
        stamp(5)
        a.wait(lg_all=True)
        stamp(6)
        a.e("s_barrier")
        stamp(7)
        rstamp(12)
        PA, PB_ = os.environ.get(f'PH{role}', '11' if role == 1 else '00')
        a.e(f"s_setprio {PA}")
        for op in tr_ops(1)[:SH]:
            a.e(op)
        XP = [float(x) for x in os.environ.get(f"XP{role}", "0.2,0.6,0.02,0.15" if SH else "0.3,0.7,0.1,0.5").split(",")]

        def period(k, pos, last=False):
            pair = (k >> 1) + 2 if SH else (k + 3) >> 1
            first = not (k & 1) if SH else (k & 1)
            if pos == 4 - ahead and not last:
                a.e(f"s_cmp_eq_u32 s{sCnt}, 1")
                a.e(f"s_cbranch_scc1 L_{name}_hlast{role}")
            if "hst" in EXP and pos == 1:
                stamp(2)
            V1 = tr_ops(k + 1)[SH:]
            V2 = [] if last else tr_ops(k + 2)[:SH]
            V = V1 + V2
            n = len(V)
            ev = {}

            def at(i, f):
                ev.setdefault(max(0, min(int(i), n)), []).append(f)

            def stores():
                if "hst" in EXP and pos == 1:
                    stamp(3)
                for i in range(7):
                    wr(k + 1, i)
                if "hst" in EXP and pos == 1:
                    stamp(4)
                if PA != PB_:
                    a.e(f"s_setprio {PB_}")
            if PA != PB_:
                a.e(f"s_setprio {PA}")
            at(len(V1), stores)
            if not last:
                if not KSPLIT:
                    a.e(f"s_cmp_lt_u32 s{sK}, {N - 2 - ahead}")
                    a.e(f"s_cselect_b32 s{sXo}, 0, {OOB}")
                elif first:
                    a.e(f"s_add_u32 s{sXo}, s{sXo}, {8*PLH}")
                    a.e(f"s_add_u32 s{sXo2}, s{sXo2}, {8*PLH}")
                at(len(V1) if SH else 0, lambda: a.wait(vm=(("X", (k + ahead) >> 1),)))
                if "nox" not in EXP:
                    for p in (range(NF) if first else range(NF, 4)):
                        w = len(V1) + XP[p] * SH if SH and first else XP[p] * n
                        at(w, lambda p=p: xload(pair, p))
            for i in range(n + 1):
                for f in ev.get(i, []):
                    f()
                if i < n:
                    a.e(V[i])
            if not last:
                a.e(f"s_add_u32 s{sK}, s{sK}, 1")
            if "hst" in EXP and pos == 1:
                stamp(5)
            a.e("s_waitcnt lgkmcnt(0)")
            a.lg = []
            a.e("s_barrier")
            if "hst" in EXP and pos == 1:
                stamp(6)

        body = steady(period, 4, "nox" not in EXP)
        a.label(f"L_{name}_hloop{role}")
        a.L.extend(body)
        a.e(f"s_sub_u32 s{sCnt}, s{sCnt}, 1")
        a.e(f"s_branch L_{name}_hloop{role}")
        a.label(f"L_{name}_hlast{role}")
        a.vm, a.lg = [], []

        def last_period():
            vm = a.vm
            a.vm, a.lg = [], []
            if SH:
                a.e(f"s_mov_b32 s{sMask}, 0xffff0000")
                period(2, 2, True)
            a.vm = vm
        if role == 1 or KSPLIT:
            last_period()
        else:
            assert SH
            a.e("s_waitcnt vmcnt(0)")
            a.e(f"s_mov_b32 s58, s{sWv}")
            a.e(f"s_lshl_b32 s20, s2, 2")
            a.e(f"s_add_u32 s20, s20, s{sH}")
            a.e(f"v_mov_b32 v1, v{vL}")
            wprep(a, 16, WS_W2P, True, barrier=last_period)
            a.e(f"s_mov_b32 s{sWv}, s58")
        if role == 1 and "notw" not in EXP:
            a.e(f"s_cmp_ge_u32 s2, {os.environ.get('TWN', '32')}")
            a.e(f"s_cbranch_scc1 L_{name}_ntw")
            a.e("s_getpc_b64 s[36:37]")
            a.label(f"L_{name}_pc")
            a.e(f"s_lshl_b32 s38, s{sH}, 13")
            a.e(f"s_add_u32 s38, s38, L_{name}_epi-L_{name}_pc")
            a.e(f"v_lshl_add_u32 v2, v{vL}, 7, s38")
            a.e(f"v_min_u32 v2, {0x7fc0de01 + KSPLIT:#x}, v2")
            a.e("v_mov_b32 v3, s37")
            a.e("v_add_co_u32 v2, vcc, s36, v2")
            a.e("v_addc_co_u32 v3, vcc, 0, v3, vcc")
            a.e("global_load_dword v4, v[2:3], off")
            a.label(f"L_{name}_ntw")
        stamp(8)
        rstamp(13)
        a.e(f"s_branch L_{name}_end")

    hwave(1)
    a.label(f"L_{name}_h2")
    hwave(2)

    a.label(f"L_{name}_epi")
    R0 = (120, 121, 125)
    vO, vBW = 122, 123
    BND = SPB
    t0, t1, t2, t3 = 108, 109, 110, 111
    a.e(f"v_and_b32 v{t0}, 15, v{vL}")
    a.e(f"v_lshrrev_b32 v{t1}, 4, v{vL}")
    a.e(f"v_lshrrev_b32 v{t2}, 3, v{t0}")
    a.e(f"s_lshl_b32 s36, s{sWv}, 1")
    a.e(f"v_add_u32 v{t2}, s36, v{t2}")
    a.e(f"v_xor_b32 v{t3}, v{t2}, v{t0}")
    a.e(f"v_and_b32 v{t3}, 7, v{t3}")
    a.e(f"v_lshlrev_b32 v{t3}, 4, v{t3}")
    a.e(f"v_lshl_add_u32 v{t3}, v{t2}, 7, v{t3}")
    a.e(f"v_lshl_add_u32 v{R0[0]}, v{t1}, 11, v{t3}")
    a.e(f"v_add_u32 v{R0[1]}, 65536, v{R0[0]}")
    a.e(f"v_add_u32 v{R0[2]}, 131072, v{R0[0]}")
    a.e(f"s_lshl_b32 s36, s{sWv}, 9")
    a.e(f"s_add_u32 s36, s36, {BND}")
    a.e(f"v_lshl_add_u32 v{vBW}, v{t1}, 7, s36")
    a.e(f"s_lshl_b32 s36, s{sWv}, 4")
    a.e(f"v_add_u32 v{t0}, s36, v{t0}")
    a.e(f"v_lshlrev_b32 v{t2}, 6, v{t0}")
    a.e(f"v_lshl_add_u32 v{t2}, v{t1}, 4, v{t2}")
    a.e(f"s_mul_i32 s36, s{sCb}, {4*PLO}")
    a.e(f"s_lshl_b32 s37, s{sT0}, 4")
    a.e("s_add_u32 s36, s36, s37")
    a.e(f"v_add_u32 v{t2}, s36, v{t2}")
    a.e(f"v_mov_b32 v{t3}, {OOB}")
    a.e(f"v_cmp_gt_u32 vcc, 125, v{t0}")
    k0 = -2.0 * 1.4426950408889634 * 0.7978845608028654
    consts = [-1.0 / 3, 0.25, -5.0, -32.0 / 9, -8.0 / 9, -2.0 / 9, -1.0 / 18, 17.0 / 9, -2.0 / 3, 0.4, -1.0 / 15, -0.2,
              k0 * 0.044715, 1.0]
    KS = [4, 6, 8, 10, 12, 14, 22, 24, 26, 32, 34, 38, 40, 42]
    for sg, cv in zip(KS, consts):
        a.e(f"s_mov_b32 s{sg}, {f32hex(cv)}")
        a.e(f"s_mov_b32 s{sg+1}, s{sg}")
    K = [sr(x, 2) for x in KS]
    a.e("s_waitcnt lgkmcnt(0)")
    a.e("s_barrier")
    if "est" in EXP:
        stamp(2)
    a.e(f"v_cndmask_b32 v{vO}, v{t3}, v{t2}, vcc")

    def P(c, s, r=0):
        return c * 32 + s * 4 + r
    Y = 64
    TB = 96
    ELS = (0, 1, 2)
    for c in range(2):
        for s_ in range(8):
            if c == 1 and s_ == 7:
                a.e("s_waitcnt lgkmcnt(7)")
            u = UNIT[s_][c]
            a.e(f"ds_read_b128 {vr(P(c, s_))}, v{R0[u >> 16]} offset:{u & 0xffff}")

    def p2(x):
        return vr(x, 2)

    def padd(d, x, y):
        return f"v_pk_add_f32 {p2(d)}, {p2(x)}, {p2(y)}"

    def psub(d, x, y):
        return f"v_pk_add_f32 {p2(d)}, {p2(x)}, {p2(y)} neg_lo:[0,1] neg_hi:[0,1]"

    def pfma(d, x, k, y, neg=False):
        return f"v_pk_fma_f32 {p2(d)}, {p2(x)}, {k}, {p2(y)}" + (" neg_lo:[0,0,1] neg_hi:[0,0,1]" if neg else "")

    def interp(c):
        seq = []
        for r in (0, 2):
            E0, A, B, C, D, Q, E6, E6b = (P(c, x, r) for x in range(8))
            y = [Y + ph * 8 + c * 4 + r for ph in range(4)]
            S1, G = E6, C
            seq.append([
                padd(y[3], E6, E6b),
                padd(S1, A, B),
                psub(A, A, B),
                padd(y[1], C, D),
                psub(G, C, D),
                pfma(y[1], S1, K[0], y[1]),
                pfma(Q, E0, K[3], Q),
                pfma(y[1], E0, K[1], y[1]),
                psub(S1, S1, E0),
                pfma(y[1], y[3], K[2], y[1]),
                psub(S1, S1, y[3]),
                pfma(Q, y[3], K[6], Q),
                psub(B, S1, y[1]),
                pfma(Q, y[1], K[5], Q),
                f"v_pk_mul_f32 {p2(y[2])}, {p2(G)}, {K[9]}",
                pfma(Q, B, K[4], Q),
                pfma(y[2], A, K[10], y[2]),
                pfma(y[0], A, K[7], Q, True),
                pfma(y[0], G, K[8], y[0]),
                pfma(y[2], y[0], K[11], y[2]),
                psub(A, A, y[0]),
                psub(A, A, y[2]),
            ])
        for ops in zip(*seq):
            for op in ops:
                a.e(op)

    a.e("s_waitcnt lgkmcnt(8)")
    interp(0)
    a.e("s_waitcnt lgkmcnt(0)")
    interp(1)
    if "est" in EXP:
        stamp(3)
    a.e("s_mov_b32 s36, 0x00010001")
    a.e("s_mov_b32 s37, 0x00010001")
    a.e("s_mov_b64 exec, s[36:37]")
    for k in range(3):
        for c in range(2):
            a.e(f"ds_write_b128 v{vBW}, {vr(P(c, ELS[k]))} offset:{(k*2+c)*16}")
    a.e("s_mov_b64 exec, -1")

    def finish(ph):
        ys = [Y + ph * 8 + i for i in range(8)]
        if not KSPLIT:
            ts = [16 + (ph & 1) * 8 + i for i in range(8)]
            ev = list(zip(ys[::2], ts[::2]))
            for y, t in ev:
                a.e(f"v_pk_mul_f32 {p2(t)}, {p2(y)}, {p2(y)}")
            for y, t in ev:
                a.e(pfma(t, t, K[12], 44))
            for y, t in ev:
                a.e(f"v_pk_mul_f32 {p2(t)}, {p2(t)}, {p2(y)}")
            for t in ts:
                a.e(f"v_exp_f32 v{t}, v{t}")
            for y, t in ev:
                a.e(f"v_pk_add_f32 {p2(t)}, {p2(t)}, {K[13]}")
            for t in ts:
                a.e(f"v_rcp_f32 v{t}, v{t}")
            for y, t in ev:
                a.e(f"v_pk_mul_f32 {p2(y)}, {p2(y)}, {p2(t)}")
        o = 48 + ph * 4
        for r in range(4):
            a.e(f"v_cvt_pk_bf16_f32 v{o+r}, v{ys[r]}, v{ys[4+r]}")
        so = ph * PLF if KSPLIT else ((ph + 3) & 3) * PLH + ((ph + 7) >> 2) * 64
        a.e(f"s_mov_b32 s44, {so}")
        a.e(f"buffer_store_dwordx4 {vr(o)}, v{vO}, {sr(sO)}, s44 offen{NTF if KSPLIT else NTH}")

    a.e(f"v_mov_b32 v44, {f32hex(k0)}")
    a.e("v_mov_b32 v45, v44")
    finish(0)
    a.e("s_waitcnt lgkmcnt(0)")
    a.e("s_barrier")
    if "est" in EXP:
        stamp(4)
    for i in range(6):
        a.e(f"ds_read_b128 {vr(TB+4*i)}, v{vBW} offset:{512 + i*16}")
    for ph in range(1, 4):
        a.e(f"s_waitcnt lgkmcnt({6 - 2*ph})")
        for c in range(2):
            for r in range(4):
                i = (ph - 1) * 8 + c * 4 + r
                a.e(f"v_mov_b32_dpp v{TB+i}, v{P(c, ELS[ph-1], r)} row_shl:1 row_mask:0xf bank_mask:0xf")
        for i in range(0, 8, 2):
            a.e(padd(Y + ph * 8 + i, Y + ph * 8 + i, TB + (ph - 1) * 8 + i))
        finish(ph)
    if "est" in EXP:
        stamp(5)
    a.label(f"L_{name}_end")
    if STAMP:
        a.e("s_waitcnt vmcnt(0)")
        stamp(9, False)
        a.e(f"s_memrealtime s[{sSt+22}:{sSt+23}]")
        a.e(f"s_cmp_lg_u32 s{sWv}, {os.environ.get('SW', '0')}")
        a.e(f"s_cbranch_scc1 L_{name}_done")
        a.e("s_lshl_b32 s36, s2, 7")
        a.e(f"s_add_u32 s36, s36, {WS_STAMP + cfg['stamp']*0x10000}")
        add64(a, 40, 30, "s36")
        a.e("s_mov_b32 s42, 128")
        a.e("s_mov_b32 s43, 0x00020000")
        a.e("s_waitcnt lgkmcnt(0)")
        a.e("v_mov_b32 v8, 0")
        for i in range(28):
            a.e(f"v_mov_b32 v0, s{sSt+i}")
            a.e(f"buffer_store_dword v0, v8, s[40:43], 0 offen offset:{4*i}")
    a.label(f"L_{name}_done")
    a.e("s_endpgm")
    return a.L, TOPB + 40960, 128


CONV1 = dict(tin=16000, tout=8000, nchunk=16, ksplit=False, in_arg=0, in_off=0, w_off=WS_W1P, out_off=WS_H, stamp=0)
CONV2 = dict(tin=8000, tout=4000, nchunk=8, ksplit=True, in_arg=72, in_off=WS_H, w_off=WS_W2P, out_off=WS_FP, stamp=1)

HEADER = f"""; Kernarg layout for this problem (80 bytes, ptrs only, base s[0:1]):
"""


def main():
    ks = [("prep_kernel", 268, 256) + prep_kernel("prep_kernel"),
          ("conv1_kernel", 256, 1024) + conv_kernel("conv1_kernel", CONV1),
          ("conv2_kernel", 256, 1024) + conv_kernel("conv2_kernel", CONV2)]
    ks = joint_kernels(ks)
    out = HEADER
    for nm, grid, block, code, lds, vg in ks:
        out += f"; @launch kernel={nm} grid=({grid},1,1) block=({block},1,1) lds={lds}\n"
    out += '.amdgcn_target "amdgcn-amd-amdhsa--gfx950"\n.text\n'
    for nm, grid, block, code, lds, vg in ks:
        if "noalign" not in EXP:
            code = align8(code)
        out += f".globl {nm}\n.p2align 8\n.type {nm},@function\n" + "\n".join(code) + "\n"
    out += '.section .rodata,"a"\n'
    for nm, grid, block, code, lds, vg in ks:
        out += ".p2align 6\n" + kd(nm, vg)
    out = out.replace("0x7fc0de00", "L_joint_kernel_done-L_prep_kernel_pc")
    out = out.replace("0x7fc0de01", "L_conv2_kernel_done-L_conv1_kernel_pc")
    out = out.replace("0x7fc0de02", "L_joint_kernel_done-L_conv2_kernel_pc")
    path = sys.argv[1] if len(sys.argv) > 1 else "standalone__seq2seq_rnn_t_joint__speech.s"
    open(path, "w").write(out)


if __name__ == "__main__":
    main()
```

```python
import os
import sys

from asmlib import Asm, vr, sr, kd, f32hex, align8
from gen10_joint import small_select, small_ptr, small_tail, joint_kernels

EXP = os.environ.get("EXP", "").split(",")

WS_W1P = 0x0000000
WS_W2P = 0x0900000
WS_H = 0x1200000
WS_FP = 0x1A00000
WS_FPS = 0x800000
WS_WF = 0x2A00000
WS_STAMP = 0x3000000

CHUNKB = 7 * 8192
FB = 1024
BB = 8 * FB
SEQB = 2 * BB
FB6 = 1088
BB6 = 8 * FB6
SPB = 6 * SEQB + 2 * BB6
TOPB = SPB + 6144
OOB = 0x7f000000
PLH, PLF = int(os.environ.get('PLH', 131072)), int(os.environ.get('PLF', 65536))
NTW, NTH, NTF = ({"0": "", "1": " nt", "2": " sc1", "3": " sc0 sc1"}[c] for c in os.environ.get("NT", "222"))


def add64(a, d, lo, off):
    a.e(f"s_add_u32 s{d}, s{lo}, {off}")
    a.e(f"s_addc_u32 s{d+1}, s{lo+1}, 0")


def eval_ops(c, t):
    e1, o1, e2, o2 = t
    ops = [f"v_add_f32 v{e1}, v{c[0]}, v{c[2]}",
           f"v_add_f32 v{o1}, v{c[1]}, v{c[3]}",
           f"v_fma_f32 v{e2}, v{c[2]}, 4.0, v{c[0]}",
           f"v_fma_f32 v{o2}, v{c[3]}, 4.0, v{c[1]}",
           f"v_add_f32 v{c[1]}, v{e1}, v{o1}",
           f"v_sub_f32 v{c[2]}, v{e1}, v{o1}",
           f"v_fma_f32 v{c[3]}, v{o2}, 2.0, v{e2}",
           f"v_fma_f32 v{e2}, v{o2}, -2.0, v{e2}",
           f"v_fmamk_f32 v{e1}, v{c[0]}, {f32hex(15.0)}, v{e2}",
           f"v_fmamk_f32 v{e1}, v{o1}, {f32hex(10.0)}, v{e1}"]
    return ops, [c[1], c[2], c[3], e2, e1]


def wprep(a, karg, wsoff, ws_loaded, barrier=False, extra=None, small=None):
    a.vm, a.lg = [], []
    a.e(f"s_load_dwordx2 s[8:9], s[0:1], {karg}")
    if not ws_loaded:
        a.e("s_load_dwordx2 s[30:31], s[0:1], 72")
    a.e("s_lshr_b32 s22, s20, 8")
    a.e("s_bfe_u32 s23, s20, 0x40004")
    a.e("s_bfe_u32 s24, s20, 0x30001")
    a.e("s_and_b32 s21, s20, 1")
    a.e("v_lshrrev_b32 v2, 4, v1")
    a.e("v_lshlrev_b32 v2, 12, v2")
    a.e("v_and_b32 v3, 15, v1")
    a.e("v_lshl_add_u32 v2, v3, 2, v2")
    a.e("s_lshl_b32 s26, s22, 3")
    a.e("s_lshr_b32 s27, s23, 3")
    a.e("s_add_u32 s26, s26, s27")
    a.e("s_lshl_b32 s26, s26, 17")
    a.e("s_and_b32 s27, s23, 7")
    a.e("s_lshl_b32 s27, s27, 14")
    a.e("s_add_u32 s26, s26, s27")
    a.e("s_lshl_b32 s27, s24, 6")
    a.e("s_add_u32 s26, s26, s27")
    a.e(f"s_mov_b32 s10, {31*131072}")
    a.e("s_mov_b32 s11, 0x00020000")
    if small:
        small_select(a)
        a.e("s_add_u32 s37, s26, s5")
        a.e("s_add_u32 s38, s37, s5")
        a.e("s_add_u32 s39, s38, s5")
    else:
        for p in range(1, 4):
            a.e(f"s_add_u32 s{36+p}, s26, {2*131072*p}")
    a.e("s_waitcnt lgkmcnt(0)")
    if small:
        small_ptr(a)
    R = 16
    for e2 in range(4):
        for p in range(4):
            for e in (2 * e2, 2 * e2 + 1):
                a.vmem(f"buffer_load_dword v{R+p*8+e}, v2, s[8:11], s{36+p if p else 26} offen offset:{e*512}", ("L", e2))
    if small:
        a.e("s_cmp_lt_u32 s3, 12")
        a.e(f"s_cbranch_scc1 {small}")
    add64(a, 12, 30, wsoff)
    a.e(f"s_mov_b32 s14, {8*16*CHUNKB}")
    a.e("s_mov_b32 s15, 0x00020000")
    a.e("v_lshlrev_b32 v4, 4, v1")
    a.e("s_lshl_b32 s27, s24, 4")
    a.e("s_add_u32 s27, s27, s23")
    a.e(f"s_mul_i32 s27, s27, {CHUNKB}")
    a.e("s_lshl_b32 s28, s22, 11")
    a.e("s_add_u32 s27, s27, s28")
    a.e("s_lshl_b32 s28, s21, 10")
    a.e("s_add_u32 s27, s27, s28")
    a.e("s_cmp_eq_u32 s21, 0")
    a.e("s_mov_b32 s32, 0x07060302")
    a.e("s_cselect_b32 s32, 0x05040100, s32")
    a.e("s_mov_b32 s33, 0x03020c0c")
    a.e("s_cselect_b32 s33, 0x01000c0c, s33")
    a.e(f"s_mov_b32 s35, {f32hex(1.0/24)}")
    a.e(f"s_mov_b32 s36, {f32hex(1.0/72)}")
    if barrier:
        barrier()
    OUT = 48
    T = 76
    scale = ("0.5", "0.5", "s35", "s35", "s36")
    for e2 in range(4):
        a.wait(vm=(("L", e2),))
        if extra and e2 == int(os.environ.get("XT", "3")):
            assert not a.vm
            extra()
        for p, seq in ((0, 6), (3, 0)):
            a.e(f"v_perm_b32 v{OUT+seq*4+e2}, v{R+p*8+2*e2+1}, v{R+p*8+2*e2}, s32")
        res, lists = [], []
        for e in range(2):
            cf = [T + e * 8 + i for i in range(4)]
            ops = [f"v_perm_b32 v{cf[i]}, v{cf[i]}, v{R + (3 - i) * 8 + 2 * e2 + e}, s33" for i in range(4)]
            o, rr = eval_ops(cf, [T + e * 8 + 4 + i for i in range(4)])
            ops += o + [f"v_mul_f32 v{r}, {sc}, v{r}" for r, sc in zip(rr, scale)]
            res.append(rr)
            lists.append(ops)
        for x, y in zip(*lists):
            a.e(x)
            a.e(y)
        for i in range(5):
            a.e(f"v_cvt_pk_bf16_f32 v{OUT+(1+i)*4+e2}, v{res[0][i]}, v{res[1][i]}")
    for seq in (6, 0, 1, 2, 3, 4, 5):
        a.e(f"s_add_u32 s28, s27, {seq*8192}")
        a.e(f"buffer_store_dwordx4 {vr(OUT+seq*4)}, v4, s[12:15], s28 offen{NTW}")


def prep_kernel(name):
    a = Asm()
    NWG = 268
    a.label(name)
    a.e(f"s_cmp_ge_u32 s2, {NWG}")
    a.e(f"s_cbranch_scc1 L_{name}_done")
    CW = os.environ.get("CW", "late")
    CWN = int(os.environ.get("CWN", "44"))

    def code_warm():
        a.e(f"s_cmp_ge_u32 s3, {CWN}")
        a.e(f"s_cbranch_scc1 L_{name}_ncw")
        a.e("s_getpc_b64 s[62:63]")
        a.label(f"L_{name}_pc")
        a.e("s_and_b32 s64, s3, 8")
        a.e("s_lshl_b32 s64, s64, 12")
        a.e("v_lshlrev_b32 v120, 7, v0")
        a.e("v_add_u32 v120, s64, v120")
        a.e(f"v_min_u32 v120, 0x7fc0de00, v120")
        a.e("v_mov_b32 v121, s63")
        a.e("v_add_co_u32 v120, vcc, s62, v120")
        a.e("v_addc_co_u32 v121, vcc, 0, v121, vcc")
        a.e("global_load_dword v122, v[120:121], off")
        a.label(f"L_{name}_ncw")
        return 0
    a.e("s_mov_b32 s3, s2")
    if CW == "early":
        code_warm()
    a.e("s_load_dwordx16 s[44:59], s[0:1], 0")
    a.e("s_sub_u32 s2, s2, 12")
    if "stamp" in EXP:
        a.e("s_memrealtime s[60:61]")
    a.e("v_readfirstlane_b32 s40, v0")
    a.e("s_lshr_b32 s40, s40, 6")
    a.e("s_lshl_b32 s21, s2, 2")
    a.e("s_add_u32 s20, s40, s21")
    a.e("v_and_b32 v1, 63, v0")
    wprep(a, 8, WS_W1P, False, small=f"L_{name}_small", extra=code_warm if CW == "late" else None)
    if "stamp" in EXP:
        a.e("s_waitcnt vmcnt(0)")
        a.e("s_memrealtime s[62:63]")
        a.e("s_lshl_b32 s36, s2, 7")
        a.e(f"s_add_u32 s36, s36, {WS_STAMP + 3*0x10000}")
        add64(a, 40, 30, "s36")
        a.e("s_mov_b32 s42, 128")
        a.e("s_mov_b32 s43, 0x00020000")
        a.e("s_waitcnt lgkmcnt(0)")
        a.e("v_mov_b32 v8, 0")
        a.e("v_mov_b32 v0, 1")
        a.e("buffer_store_dword v0, v8, s[40:43], 0 offen")
        for i in range(4):
            a.e(f"v_mov_b32 v0, s{60+i}")
            a.e(f"buffer_store_dword v0, v8, s[40:43], 0 offen offset:{80+4*i}")
    a.label(f"L_{name}_done")
    a.e("s_endpgm")
    small_tail(a, name)
    return a.L, 4096, 128


def conv_kernel(name, cfg):
    TIN, TOUT = cfg["tin"], cfg["tout"]
    N = cfg["nchunk"]
    KSPLIT = cfg["ksplit"]
    NWG = 256
    STAMP = "stamp" in EXP
    sX, sW, sO = 8, 12, 16
    sWv, sT0, sCnt, sBo, sXo, sMask = 20, 21, 22, 23, 24, 25
    sBo2 = 26
    sK, sCb, sH = 28, 29, 32
    sSt = 60
    vL = 127
    vU, vS_, vI, vKG = 8, 9, 10, 11

    a = Asm()
    a.label(name)
    a.e(f"s_cmp_ge_u32 s2, {NWG}")
    a.e(f"s_cbranch_scc1 L_{name}_done")

    def stamp(i, fence=True):
        if STAMP:
            a.e(f"s_memtime s[{sSt+2*i}:{sSt+2*i+1}]")
            if fence:
                a.e("s_waitcnt lgkmcnt(0)")
                a.lg = []

    def rstamp(i):
        if STAMP:
            a.e(f"s_memrealtime s[{sSt+2*i}:{sSt+2*i+1}]")
            a.e("s_waitcnt lgkmcnt(0)")
            a.lg = []
    if STAMP:
        for i in range(28):
            a.e(f"s_mov_b32 s{sSt+i}, 0")
        a.e(f"s_memrealtime s[{sSt+20}:{sSt+21}]")
    stamp(0, False)
    a.e(f"s_load_dwordx2 s[4:5], s[0:1], {cfg['in_arg']}")
    a.e("s_load_dwordx2 s[30:31], s[0:1], 72")
    a.e(f"v_readfirstlane_b32 s{sWv}, v0")
    a.e(f"s_lshr_b32 s{sWv}, s{sWv}, 6")
    if os.environ.get("WX", "8") != "0":
        a.e(f"s_xor_b32 s{sWv}, s{sWv}, {os.environ.get('WX', '8')}")
    XL = int(os.environ.get("XL", "3"))
    a.e(f"s_and_b32 s36, s2, {(8 >> XL) - 1}")
    a.e(f"s_lshl_b32 s36, s36, {XL}")
    a.e(f"s_bfe_u32 s37, s2, {(XL << 16) | 3}")
    a.e(f"s_or_b32 s{sCb}, s36, s37")
    a.e(f"s_bfe_u32 s36, s2, {(XL << 16) | (3 - XL)}")
    a.e(f"s_lshl_b32 s36, s36, {5 - XL}")
    a.e(f"s_lshr_b32 s37, s2, {3 + XL}")
    a.e("s_or_b32 s36, s36, s37")
    if KSPLIT:
        a.e("s_lshr_b32 s33, s36, 4")
        a.e("s_and_b32 s34, s36, 7")
        a.e("s_bfe_u32 s35, s36, 0x10003")
    else:
        a.e("s_mov_b32 s33, 0")
        a.e("s_and_b32 s34, s36, 15")
        a.e("s_lshr_b32 s35, s36, 4")
    a.e(f"s_mul_i32 s{sT0}, s34, 500")
    a.e(f"s_and_b32 s{sH}, s{sWv}, 3")
    a.e(f"v_and_b32 v{vL}, 63, v0")
    a.e(f"v_lshrrev_b32 v5, 2, v{vL}")
    a.e(f"v_and_b32 v6, 3, v{vL}")
    a.e(f"s_and_b32 s42, s{sWv}, 7")
    if not KSPLIT:
        a.e("v_lshlrev_b32 v7, 15, v5")
        a.e("v_lshl_add_u32 v7, v6, 4, v7")
        a.e(f"s_lshl_b32 s41, s{sT0}, 10")
        a.e("s_sub_u32 s41, s41, 7680")
        a.e("s_lshl_b32 s37, s42, 12")
        a.e("s_add_u32 s37, s37, s41")
        a.e("v_add_u32 v7, s37, v7")
        a.e(f"s_mul_i32 s36, s35, {TIN*512}")
        a.e(f"s_mov_b32 s{sX+2}, {TIN*512}")
    else:
        a.e(f"s_lshr_b32 s41, s{sT0}, 2")
        a.e("s_sub_u32 s41, s41, 1")
        a.e("s_add_u32 s37, s41, s42")
        a.e("v_lshl_add_u32 v7, v5, 3, s37")
        a.e(f"s_mul_i32 s36, s35, {32*PLH}")
        a.e(f"s_add_u32 s36, s36, {cfg['in_off']}")
        a.e(f"s_mov_b32 s{sX+2}, {32*PLH}")

    def haddr(dst, vG, vlane, p, t):
        a.e(f"s_add_u32 s37, s33, {2*p - 7 & 0xffffffff}")
        a.e(f"v_lshl_add_u32 v{t}, v{vG}, 3, s37")
        a.e(f"v_cmp_gt_u32 vcc, {TIN}, v{t}")
        a.e(f"s_mul_i32 s37, s33, {PLH}")
        a.e(f"s_add_u32 s37, s37, {(2*p & 3)*PLH + (p >> 1)*64}")
        a.e(f"v_lshl_add_u32 v{dst}, v{vG}, 7, s37")
        a.e(f"v_add_u32 v{dst}, v{dst}, v{vlane}")
        a.e(f"v_mov_b32 v{t}, {OOB}")
        a.e(f"v_cndmask_b32 v{dst}, v{t}, v{dst}, vcc")
    a.e(f"s_mov_b32 s{sX+3}, 0x00020000")
    a.e(f"s_mov_b32 s{sMask}, 0xffff0000")
    a.e("s_mov_b32 s47, s36")

    def kwait():
        a.e("s_waitcnt lgkmcnt(0)")
        stamp(1)
        add64(a, sX, 4, "s47")
    OB = 512

    def wsrd():
        a.e(f"s_lshl_b32 s36, s{sCb}, 4")
        a.e("s_lshl_b32 s37, s33, 3")
        a.e("s_add_u32 s36, s36, s37")
        a.e(f"s_mul_i32 s36, s36, {CHUNKB}")
        a.e(f"s_add_u32 s36, s36, {cfg['w_off']}")
        add64(a, sW, 30, "s36")
        a.e(f"s_mov_b32 s{sW+2}, {N*CHUNKB}")
        a.e(f"s_mov_b32 s{sW+3}, 0x00020000")

    def lds_throttle(need=1):
        if len(a.lg) + need > 15:
            a.e("s_waitcnt lgkmcnt(8)")
            a.lg = a.lg[-8:]

    def mf(acc, b, av):
        if "nomfma" not in EXP:
            a.e(f"v_mfma_f32_16x16x32_bf16 {vr(acc)}, {vr(b)}, {vr(av)}, {vr(acc)}")

    def steady(gen, per, strict=True):
        st = []
        for it in range(3):
            st.append(len(a.L))
            for pos in range(per):
                gen(per * it + pos, pos)
        st.append(len(a.L))
        bodies = [a.L[st[i]:st[i + 1]] for i in range(3)]
        if strict:
            assert bodies[1] == bodies[2], "loop not steady"
            assert bodies[0] == bodies[1], "loop entry not steady"
        del a.L[st[0]:]
        return bodies[1]

    a.e(f"s_cmp_ge_u32 s{sWv}, 8")
    a.e(f"s_cbranch_scc1 L_{name}_helper")

    ACC = 0
    vF, vA8, vD, vB = (120, 121), 122, (123, 124), 125
    vP = (116, 117, 118)
    vBZ = 119
    S, T, O = 96, 108, 64
    if not KSPLIT:
        a.e(f"s_add_u32 s37, s41, {128*4096}")
        a.e(f"v_lshl_add_u32 v{T}, v{vL}, 4, s37")
        for p in range(1, 3):
            a.e(f"v_add_u32 v{T+p}, {p*1024}, v{T}")
    else:
        a.e("s_add_u32 s37, s41, 128")
        a.e("v_mov_b32 v16, s37")
        a.e(f"v_mul_u32_u24 v17, {4*PLH}, v5")
        a.e("v_lshl_add_u32 v17, v6, 4, v17")
        for p in range(3):
            haddr(T + p, 16, 17, p, 18)
    kwait()
    wsrd()
    PLO = PLF if KSPLIT else PLH
    a.e(f"s_mul_i32 s36, s35, {32*PLO}")
    a.e(f"s_add_u32 s36, s36, {cfg['out_off']}")
    if KSPLIT:
        a.e(f"s_mul_i32 s37, s33, {WS_FPS}")
        a.e("s_add_u32 s36, s36, s37")
    add64(a, sO, 30, "s36")
    a.e(f"s_mov_b32 s{sO+2}, {32*PLO}")
    a.e(f"s_mov_b32 s{sO+3}, 0x00020000")
    a.e(f"v_and_b32 v{vI}, 15, v{vL}")
    a.e(f"v_lshrrev_b32 v{vKG}, 4, v{vL}")
    t = 16
    for d, sh in ((vU, 0), (vS_, 1)):
        a.e(f"v_add_u32 v{d}, {sh}, v{vI}")
        a.e(f"v_and_b32 v{t}, 4, v{d}")
        a.e(f"v_lshrrev_b32 v{t}, 1, v{t}")
        a.e(f"v_xor_b32 v{t}, v{vKG}, v{t}")
        a.e(f"v_lshlrev_b32 v{t}, 4, v{t}")
        a.e(f"v_lshl_add_u32 v{d}, v{d}, 6, v{t}")
    a.e(f"s_lshr_b32 s38, s{sH}, 1")
    a.e(f"s_and_b32 s39, s{sH}, 1")
    a.e("s_add_u32 s40, s38, 4")
    a.e("s_lshl_b32 s43, s39, 10")
    a.e(f"s_cmp_lt_u32 s{sWv}, 4")
    a.e(f"s_cselect_b32 s40, s{sWv}, s40")
    a.e("s_cselect_b32 s36, 0, s43")
    a.e("s_lshl_b32 s37, s40, 13")
    a.e("s_add_u32 s37, s37, s36")
    a.e(f"v_lshl_add_u32 v{vB}, v{vL}, 4, s37")
    a.e(f"s_mul_i32 s37, s40, {SEQB}")
    a.e(f"v_add_u32 v{vF[0]}, s37, v{vU}")
    a.e(f"v_add_u32 v{vF[1]}, s37, v{vS_}")
    a.e("s_lshl_b32 s37, s40, 10")
    a.e(f"s_add_u32 s37, s37, {SPB}")
    a.e(f"v_lshl_add_u32 v{t}, v{vKG}, 4, s37")
    a.e(f"v_cmp_eq_u32 vcc, 15, v{vI}")
    a.e(f"v_mov_b32 v{t+1}, {BB}")
    a.e(f"v_mov_b32 v{t+2}, {-BB & 0xffffffff}")
    a.e(f"v_mov_b32 v{t+3}, 64")
    a.e(f"v_cndmask_b32 v{vA8}, v{vF[1]}, v{t}, vcc")
    a.e(f"v_cndmask_b32 v{vD[0]}, v{t+1}, v{t+3}, vcc")
    a.e(f"v_cndmask_b32 v{vD[1]}, v{t+2}, v{t+3}, vcc")
    a.e(f"v_lshl_add_u32 v126, v{vL}, 4, s37")
    tabs = {44: (1.0, 1.0, 1.0, 1.0, 1.0, 16.0), 45: (0.0, 1.0, -1.0, 2.0, -2.0, 8.0),
            46: (0.0, 1.0, 1.0, 4.0, 4.0, 4.0)}
    for sg, tab in tabs.items():
        a.e(f"s_mov_b32 s{sg}, {f32hex(tab[0])}")
    for q in range(1, 6):
        a.e(f"s_cmp_eq_u32 s40, {q}")
        for sg, tab in tabs.items():
            if tab[q] != tab[0]:
                a.e(f"s_cselect_b32 s{sg}, {f32hex(tab[q])}, s{sg}")

    def special_rows():
        a.wait(vm=("SP",))
        for d in range(4):
            for p in range(3):
                a.e(f"v_lshlrev_b32 v{T+p}, 16, v{S+4*p+d}")
                a.e(f"v_and_b32 v{T+3+p}, s{sMask}, v{S+4*p+d}")
            for h in range(2):
                a.e(f"v_mul_f32 v{T+6+h}, s44, v{T+3*h}")
            for h in range(2):
                a.e(f"v_fmac_f32 v{T+6+h}, s45, v{T+3*h+1}")
            for h in range(2):
                a.e(f"v_fmac_f32 v{T+6+h}, s46, v{T+3*h+2}")
            a.e(f"v_cvt_pk_bf16_f32 v{S+d}, v{T+6}, v{T+7}")
        a.e(f"ds_write_b128 v126, {vr(S)}")

    def own_read(k, g, reg, tag, last=False):
        if g == 8:
            base, off = vA8, 0
        else:
            base, off = vF[g >> 3], (k & 1) * BB + (g & 7) * FB
        a.lds(f"ds_read_b128 {vr(reg)}, v{base} offset:{off}", tag)
        if g == 8 and not last:
            a.e(f"v_add_u32 v{vA8}, v{vD[k & 1]}, v{vA8}")

    UNIT = [(s * SEQB, s * SEQB + BB) for s in range(4)] + [(4 * SEQB, TOPB), (5 * SEQB, TOPB + 8192),
            (6 * SEQB, TOPB + 16384), (TOPB + 24576, TOPB + 32768)]
    EA = 96
    ES = []
    R0 = (120, 121, 64)
    vO, vBW = 122, 127
    BND = SPB
    t0, t1, t2, t3 = 108, 109, 110, 111
    ES.append(f"v_and_b32 v{t0}, 15, v{vL}")
    ES.append(f"v_lshrrev_b32 v{t1}, 4, v{vL}")
    ES.append(f"v_lshrrev_b32 v{t2}, 3, v{t0}")
    ES.append(f"s_lshl_b32 s36, s{sWv}, 1")
    ES.append(f"v_add_u32 v{t2}, s36, v{t2}")
    ES.append(f"v_xor_b32 v{t3}, v{t2}, v{t0}")
    ES.append(f"v_and_b32 v{t3}, 7, v{t3}")
    ES.append(f"v_lshlrev_b32 v{t3}, 4, v{t3}")
    ES.append(f"v_lshl_add_u32 v{t3}, v{t2}, 7, v{t3}")
    ES.append(f"v_lshl_add_u32 v{R0[0]}, v{t1}, 11, v{t3}")
    ES.append(f"v_add_u32 v{R0[1]}, 65536, v{R0[0]}")
    ES.append(f"v_add_u32 v{R0[2]}, 131072, v{R0[0]}")
    ES.append(f"s_lshl_b32 s36, s{sWv}, 9")
    ES.append(f"s_add_u32 s36, s36, {BND}")
    ES.append(f"v_lshl_add_u32 v{vBW}, v{t1}, 7, s36")
    ES.append(f"s_lshl_b32 s36, s{sWv}, 4")
    ES.append(f"v_add_u32 v{t0}, s36, v{t0}")
    ES.append(f"v_lshlrev_b32 v{t2}, 6, v{t0}")
    ES.append(f"v_lshl_add_u32 v{t2}, v{t1}, 4, v{t2}")
    ES.append(f"s_mul_i32 s36, s{sCb}, {4*PLO}")
    ES.append(f"s_lshl_b32 s37, s{sT0}, 4")
    ES.append("s_add_u32 s36, s36, s37")
    ES.append(f"v_add_u32 v{t2}, s36, v{t2}")
    ES.append(f"v_mov_b32 v{t3}, {OOB}")
    ES.append(f"v_cmp_gt_u32 vcc, 125, v{t0}")
    k0 = -2.0 * 1.4426950408889634 * 0.7978845608028654
    consts = [-1.0 / 3, 0.25, -5.0, -32.0 / 9, -8.0 / 9, -2.0 / 9, -1.0 / 18, 17.0 / 9, -2.0 / 3, 0.4, -1.0 / 15, -0.2,
              k0 * 0.044715, 1.0]
    KS = [4, 6, 8, 10, 12, 14, 22, 24, 26, 32, 34, 38, 40, 42]
    for sg, cv in zip(KS, consts):
        ES.append(f"s_mov_b32 s{sg}, {f32hex(cv)}")
        ES.append(f"s_mov_b32 s{sg+1}, s{sg}")

    def ex_addr(sbase):
        a.e(f"v_and_b32 v{EA}, 15, v{vL}")
        a.e(f"v_and_b32 v{EA+1}, 7, v{vL}")
        a.e(f"v_lshlrev_b32 v{EA+1}, 4, v{EA+1}")
        a.e(f"v_lshl_add_u32 v{EA}, v{EA}, 7, v{EA+1}")
        a.e(f"v_lshrrev_b32 v{EA+1}, 4, v{vL}")
        a.e(f"v_lshl_add_u32 v{EA}, v{EA+1}, 11, v{EA}")
        a.e(f"v_add_u32 v{EA}, s{sbase}, v{EA}")
        for f in range(1, 8):
            a.e(f"v_xor_b32 v{EA+f}, {f << 4}, v{EA}")

    def mwave(role):
        if role == 1:
            BR, AR, NR = 64, 96, 6
            steps = [("X", g) for g in range(11)]
        else:
            BR, AR, NR = 64, 88, 7
            steps = []
            for g in range(11):
                steps.append(("Y", g))
                if 1 <= g <= 9:
                    steps.append(("Z", g - 1))
        NS = len(steps)

        def bload(k, kind, q):
            if "nob" in EXP and k > 0:
                return
            so = sBo2 if q >> 1 else sBo
            if kind == "X":
                for c in range(2):
                    a.vmem(f"buffer_load_dwordx4 {vr(BR+(q*2+c)*4)}, v{vB}, {sr(sW)}, s{so} offen "
                           f"offset:{(q&1)*2048 + c*1024}", ("B", k, kind, q))
            elif kind == "Y":
                a.vmem(f"buffer_load_dwordx4 {vr(BR+q*4)}, v{vB}, {sr(sW)}, s{so} offen offset:{(q&1)*2048}",
                       ("B", k, kind, q))
            else:
                a.vmem(f"buffer_load_dwordx4 {vr(BR+16+q*4)}, v{vBZ}, {sr(sW)}, s{sBo} offen offset:{q*2048}",
                       ("B", k, kind, q))

        def rd(k, n, last=False):
            kind, g = steps[n]
            reg = AR + 4 * (n % NR)
            if kind == "Z":
                base, off = (vP[0], g * FB6) if g < 6 else (vP[1], (g - 6) * FB6) if g < 8 else (vP[2], 0)
                a.lds(f"ds_read_b128 {vr(reg)}, v{base} offset:{(k & 1)*BB6 + off}", ("A", k, n))
            else:
                own_read(k, g, reg, ("A", k, n), last)

        for i in range(64):
            a.e(f"v_mov_b32 v{ACC+i}, 0")
        if "b0" in EXP:
            a.e("s_barrier")
        for p in range(3):
            a.vmem(f"buffer_load_dwordx4 {vr(S+4*p)}, v{T+p}, {sr(sX)}, 0 offen", "SP")
        a.e(f"s_mov_b32 s{sBo}, 0")
        a.e(f"s_mov_b32 s{sBo2}, 4096")
        for st in steps:
            if st and st[1] >= 7:
                bload(0, st[0], st[1] - 7)
        a.e(f"s_mov_b32 s{sBo}, {CHUNKB}")
        a.e(f"s_mov_b32 s{sBo2}, {CHUNKB + 4096}")
        SPL = os.environ.get("SPL", "0") == "1"
        if not SPL:
            special_rows()
        if role == 2:
            a.e(f"v_and_b32 v{T+3}, 15, v{vL}")
            a.e(f"v_lshlrev_b32 v{T+3}, 2, v{T+3}")
            a.e(f"v_add_u32 v{T+3}, {6*SEQB + 1024}, v{T+3}")
            a.e(f"ds_write_b32 v{T+3}, v{ACC}")
            a.e(f"ds_write_b32 v{T+3}, v{ACC} offset:{BB6}")
        a.e("s_waitcnt lgkmcnt(0)")
        a.e("s_barrier")
        if SPL:
            a.e("s_setprio 3")
            special_rows()
            a.e("s_waitcnt lgkmcnt(0)")
        stamp(7)
        rstamp(12)
        a.e(f"s_mov_b32 s{sCnt}, {N//2}")
        a.e(f"s_setprio {os.environ.get(f'PM{role}', '2')}")

        CO = int(os.environ.get(f"CO{role}", "0" if role == 1 else "5"))
        assert CO < NR
        FM = int("fmaj" in EXP)
        vE = (vD[0], vD[1])

        def period(k, _, last=False):
            if "mst" in EXP and _ == 0:
                stamp(2)
            if "bst" in EXP and _ == 1 and not last:
                a.e("s_memtime s[90:91]")
                a.e("s_waitcnt vmcnt(0) lgkmcnt(0)")
                a.e("s_memtime s[92:93]")
                a.e("s_waitcnt lgkmcnt(0)")
                a.e("s_sub_u32 s92, s92, s90")
                a.e(f"s_add_u32 s{sSt+4}, s{sSt+4}, s92")
                a.e(f"s_max_u32 s{sSt+6}, s{sSt+6}, s92")
                a.vm = []
            for n in range(NR):
                rd(k, n, last)
            pend = []
            fill = []

            def flush(n, cnt):
                while pend and pend[0][0] <= n and cnt > 0:
                    _, h, f = pend.pop(0)
                    t = vE[(h + f) & 1]
                    a.e(f"v_xor_b32 v{t}, {f << 4}, v{vX0[h]}")
                    lds_throttle()
                    a.lds(f"ds_write_b128 v{t}, {vr(ACC + h*32 + f*4)}", "E")
                    cnt -= 1
                    for _i in range(min(12, len(fill))):
                        a.e(fill.pop(0))

            for n, st in enumerate(steps):
                if CO and n == NS - CO and not last:
                    a.wait(lg_all=True)
                    if "mst" in EXP and _ == 0:
                        stamp(3)
                    a.e("s_barrier")
                    if "mst" in EXP and _ == 0:
                        stamp(4)
                kind, g = st
                nt = 2 if kind == "Z" else 4
                qs = [q for q in range(nt) if 0 <= g - q <= 7]
                if FM and kind == "X":
                    if g >= 3:
                        f = g - 3
                        for c in range(2):
                            for q in range(4):
                                a.wait(lg=(("A", k, f + q),), vm=(("B", k, kind, q),))
                                mf(ACC + 32 * c + f * 4, BR + q * 8 + 4 * c, AR + 4 * ((f + q) % NR))
                        if f + NR < NS:
                            rd(k, f + NR, last)
                        if g == 10 and not last:
                            for q in range(4):
                                bload(k + 1, kind, q)
                    qs = []
                else:
                    a.wait(lg=(("A", k, n),), vm=tuple(("B", k, kind, q) for q in qs))
                reg = AR + 4 * (n % NR)
                for q in qs:
                    f = g - q
                    if kind == "X":
                        mf(ACC + f * 4, BR + q * 8, reg)
                        mf(ACC + 32 + f * 4, BR + q * 8 + 4, reg)
                    elif kind == "Y":
                        mf(ACC + f * 4, BR + q * 4, reg)
                    else:
                        mf(ACC + 32 + f * 4, BR + 16 + q * 4, reg)
                if g >= 7 and not last and not (FM and kind == "X"):
                    bload(k + 1, kind, g - 7)
                if n + NR < NS and not (FM and kind == "X"):
                    rd(k, n + NR, last)
                if last:
                    flush(n, int(os.environ.get('FL', '2')))
                    f = g - (nt - 1)
                    if f >= 0:
                        if kind == "X":
                            pend.append((n + 1, 0, f))
                            pend.append((max(n + 1, NS - NR + 1 + 3 * FM), 1, f))
                            pend.sort()
                        else:
                            pend.append((n + 3, 0 if kind == "Y" else 1, f))
                    if kind == "X" and n == NS - NR + 3 * FM:
                        a.wait(lg=(("A", k, NS - 1),))
            if last:
                fill += ES
                for _i in range(8):
                    a.e(fill.pop(0))
                flush(1000, 1000)
                for op in fill:
                    a.e(op)
                return
            a.e(f"s_add_u32 s{sBo}, s{sBo}, {CHUNKB}")
            a.e(f"s_add_u32 s{sBo2}, s{sBo2}, {CHUNKB}")
            assert not a.lg
            if "mst" in EXP and _ == 0:
                stamp(5)
            if not CO:
                a.e("s_barrier")
            if "mst" in EXP and _ == 0:
                stamp(6)

        def period2(k, pos):
            if pos == 1:
                a.e(f"s_sub_u32 s{sCnt}, s{sCnt}, 1")
                a.e(f"s_cmp_eq_u32 s{sCnt}, 0")
                a.e(f"s_cbranch_scc1 L_{name}_mlast{role}")
                state[0] = (list(a.vm), k)
            period(k, pos)

        state = [None]
        body = steady(period2, 2, "nob" not in EXP)
        if "nob" in EXP:
            a.e("s_waitcnt vmcnt(0)")
        a.label(f"L_{name}_mloop{role}")
        a.L.extend(body)
        a.e(f"s_branch L_{name}_mloop{role}")
        a.label(f"L_{name}_mlast{role}")
        a.vm, a.lg = state[0][0], []
        vX0 = (vB, 126)
        a.e(f"v_and_b32 v{vX0[0]}, 15, v{vL}")
        a.e(f"v_and_b32 v{vX0[1]}, 7, v{vL}")
        a.e(f"v_lshlrev_b32 v{vX0[1]}, 4, v{vX0[1]}")
        a.e(f"v_lshl_add_u32 v{vX0[0]}, v{vX0[0]}, 7, v{vX0[1]}")
        a.e(f"v_lshrrev_b32 v{vX0[1]}, 4, v{vL}")
        a.e(f"v_lshl_add_u32 v{vX0[0]}, v{vX0[1]}, 11, v{vX0[0]}")
        if role == 1:
            a.e(f"s_lshl_b32 s36, s{sWv}, 14")
            a.e("s_add_u32 s37, s36, 8192")
        else:
            for sg, tab in ((36, [UNIT[4 + (h >> 1)][h & 1] for h in range(4)]),
                            (37, [UNIT[6 + (h >> 1)][h & 1] for h in range(4)])):
                a.e(f"s_mov_b32 s{sg}, {tab[0]}")
                for h in range(1, 4):
                    a.e(f"s_cmp_eq_u32 s{sH}, {h}")
                    a.e(f"s_cselect_b32 s{sg}, {tab[h]}, s{sg}")
        a.e(f"v_add_u32 v{vX0[1]}, s37, v{vX0[0]}")
        a.e(f"v_add_u32 v{vX0[0]}, s36, v{vX0[0]}")
        if os.environ.get(f"PL{role}"):
            a.e(f"s_setprio {os.environ.get(f'PL{role}')}")
        period(state[0][1], 1, True)
        stamp(8, False)
        rstamp(13)
        a.e("s_setprio 0")
        a.vm, a.lg = [], []

    a.e(f"s_cmp_ge_u32 s{sWv}, 4")
    a.e(f"s_cbranch_scc1 L_{name}_m2")
    vm0 = list(a.vm)
    mwave(1)
    a.e(f"s_branch L_{name}_epi")
    a.label(f"L_{name}_m2")
    a.vm, a.lg = list(vm0), []
    a.e(f"s_mul_i32 s37, s38, {2*FB6}")
    a.e(f"s_add_u32 s37, s37, {6*SEQB}")
    a.e(f"v_add_u32 v{vP[0]}, s37, v{vU}")
    a.e(f"v_add_u32 v{vP[2]}, s37, v{vS_}")
    a.e(f"v_add_u32 v{vP[1]}, {6*SEQB + 6*FB6}, v{vU}")
    a.e("s_cmp_eq_u32 s38, 0")
    a.e(f"s_cbranch_scc1 L_{name}_hh0")
    a.e(f"v_add_u32 v{vP[1]}, {6*SEQB}, v{vS_}")
    a.label(f"L_{name}_hh0")
    a.e("s_lshl_b32 s37, s38, 12")
    a.e("s_add_u32 s37, s37, s43")
    a.e(f"s_add_u32 s37, s37, {6*8192}")
    a.e(f"v_lshl_add_u32 v{vBZ}, v{vL}, 4, s37")
    mwave(2)
    a.e(f"s_branch L_{name}_epi")

    a.label(f"L_{name}_helper")
    a.vm, a.lg = [], []
    a.e("s_setprio 3")
    PB = (0, 32)
    XO = 64
    TMP = 76
    vX = 92
    vW = (96, 97, 98)

    def praw(b, half, p):
        return PB[b] + half * 16 + p * 4

    sXo2 = 27

    def xload(pair, p):
        if KSPLIT:
            half, q = p >> 1, p & 1
            for r in (q, q + 2):
                a.vmem(f"buffer_load_dwordx4 {vr(praw(pair & 1, half, r))}, v{vX+r}, {sr(sX)}, "
                       f"s{sXo2 if half else sXo} offen", ("X", pair))
            return
        for half in range(2):
            a.vmem(f"buffer_load_dwordx4 {vr(praw(pair & 1, half, p))}, v{vX+p}, {sr(sX)}, "
                   f"s{sXo} offen offset:{half*64}", ("X", pair))
        a.e(f"v_add_u32 v{vX+p}, 128, v{vX+p}")

    def uregs(chunk):
        return [praw((chunk >> 1) & 1, chunk & 1, p) for p in range(4)]

    def wr(chunk, i):
        if "nowr" in EXP:
            return
        u = uregs(chunk)
        reg, seq = [(XO, 3), (XO + 4, 4), (XO + 8, 5), (u[0], 0), (u[1], 1), (u[2], 2), (u[3], 6)][i]
        lds_throttle()
        if seq == 6:
            a.lds(f"ds_write_b128 v{vW[2]}, {vr(reg)} offset:{(chunk & 1)*BB6}", "W")
        else:
            a.lds(f"ds_write_b128 v{vW[seq >> 2]}, {vr(reg)} offset:{(seq & 3)*SEQB + (chunk & 1)*BB}", "W")

    def tr_ops(chunk):
        u = uregs(chunk)
        o = [u[1], u[2], XO, XO + 4, XO + 8]
        ops = []
        for d in range(4):
            lo = [TMP + p for p in range(4)]
            hi = [TMP + 8 + p for p in range(4)]
            for p in range(4):
                ops.append(f"v_lshlrev_b32 v{lo[p]}, 16, v{u[p]+d}")
                ops.append(f"v_and_b32 v{hi[p]}, s{sMask}, v{u[p]+d}")
            o1, r1 = eval_ops(lo, [TMP + 4 + i for i in range(4)])
            o2, r2 = eval_ops(hi, [TMP + 12 + i for i in range(4)])
            for x, y in zip(o1, o2):
                ops += [x, y]
            for i in range(5):
                ops.append(f"v_cvt_pk_bf16_f32 v{o[i]+d}, v{r1[i]}, v{r2[i]}")
        if "notr" in EXP:
            ops = ["s_nop 0"] * 8
        return ops

    if KSPLIT:
        a.e("v_lshlrev_b32 v8, 4, v6")
    for p in range(4):
        if KSPLIT:
            haddr(vX + p, 7, 8, p, 9)
        else:
            a.e(f"v_add_u32 v{vX+p}, {p*1024}, v7")
    a.e(f"v_and_b32 v{TMP}, 4, v5")
    a.e(f"v_lshrrev_b32 v{TMP}, 1, v{TMP}")
    a.e(f"v_xor_b32 v{TMP}, v6, v{TMP}")
    a.e(f"v_lshlrev_b32 v{TMP}, 4, v{TMP}")
    a.e(f"v_lshl_add_u32 v{TMP}, v5, 6, v{TMP}")
    a.e(f"s_mov_b32 s{sXo}, 0")
    a.e(f"s_mov_b32 s{sXo2}, {4*PLH}")
    kwait()
    stamp(2)
    P0 = os.environ.get("P0", "0")
    if P0 == "0" or KSPLIT:
        for p in range(4):
            xload(0, p)
            if p == 1 and P0 == "2":
                a.e("s_barrier")
    else:
        for half in range(2):
            for p in range(4):
                a.vmem(f"buffer_load_dwordx4 {vr(praw(0, half, p))}, v{vX+p}, {sr(sX)}, s{sXo} offen offset:{half*64}", ("X", 0))
            if half == 0 and P0 == "2":
                a.e("s_barrier")
        for p in range(4):
            a.e(f"v_add_u32 v{vX+p}, 128, v{vX+p}")
    if P0 != "2" and "b0" in EXP:
        a.e("s_barrier")
    a.e(f"s_mul_i32 s36, s42, {FB}")
    a.e(f"v_add_u32 v{vW[0]}, s36, v{TMP}")
    a.e(f"v_add_u32 v{vW[1]}, {4*SEQB}, v{vW[0]}")
    a.e(f"s_mul_i32 s36, s42, {FB6}")
    a.e(f"s_add_u32 s36, s36, {6*SEQB}")
    a.e(f"v_add_u32 v{vW[2]}, s36, v{TMP}")
    stamp(3)
    a.e(f"s_waitcnt vmcnt({0 if P0 == '0' else 4})")
    stamp(4)
    a.e(f"s_mov_b32 s{sK}, 0")
    a.e(f"s_mov_b32 s{sCnt}, {N//4}")
    a.e(f"s_cmp_ge_u32 s{sWv}, 12")
    a.e(f"s_cbranch_scc1 L_{name}_h2")

    def hwave(role):
        SH = 33 * int(os.environ.get(f"SH{role}", "0" if role == 1 else "4"))
        ahead = 2 if SH else 1
        a.vm, a.lg = [], []
        wr(0, 3)
        wr(0, 6)
        for op in tr_ops(0):
            a.e(op)
        for i in (0, 1, 2, 4, 5):
            wr(0, i)
        a.e("s_waitcnt vmcnt(0)")
        NF = int(os.environ.get("NF", "2"))
        if KSPLIT:
            a.e(f"s_mov_b32 s{sXo}, {8*PLH}")
            a.e(f"s_mov_b32 s{sXo2}, {12*PLH}")
        X1 = os.environ.get("X1", "1")
        if X1 == "0":
            for p in range(4 if SH else NF):
                xload(1, p)
        stamp(5)
        a.wait(lg_all=True)
        stamp(6)
        a.e("s_barrier")
        stamp(7)
        rstamp(12)
        if X1 == "1":
            for p in range(4 if SH else NF):
                xload(1, p)
        PA, PB_ = os.environ.get(f'PH{role}', '11' if role == 1 else '00')
        a.e(f"s_setprio {PA}")
        for op in tr_ops(1)[:SH]:
            a.e(op)
        VPF = int(os.environ.get("VPF", "0")) if role == 1 and not KSPLIT and XL == 3 else 0
        if VPF:
            a.e(f"s_lshl_b32 s36, s{sCb}, 6")
            a.e(f"s_lshl_b32 s37, s{sH}, 3")
            a.e("s_add_u32 s36, s36, s37")
            a.e("s_lshl_b32 s36, s36, 10")
            a.e("s_add_u32 s36, s36, s41")
            a.e(f"s_add_u32 s36, s36, {VPF*128}")
            a.e(f"v_and_b32 v100, 7, v{vL}")
            a.e("v_lshl_add_u32 v100, v100, 10, s36")

        def vpf(k):
            a.e(f"s_cmp_lt_u32 s{sK}, {N - 2*VPF}")
            a.e(f"s_cselect_b32 s36, 0, {OOB}")
            a.vmem(f"buffer_load_dword v99, v100, {sr(sX)}, s36 offen", "PF")
            a.e(f"v_add_u32 v100, {(128 - 32768) & 0xffffffff if k & 1 else 32768}, v100")
        XP = [float(x) for x in os.environ.get(f"XP{role}", "0.2,0.6,0.02,0.15" if SH else "0.3,0.7,0.1,0.5").split(",")]

        def period(k, pos, last=False):
            pair = (k >> 1) + 2 if SH else (k + 3) >> 1
            first = not (k & 1) if SH else (k & 1)
            if pos == 4 - ahead and not last:
                a.e(f"s_cmp_eq_u32 s{sCnt}, 1")
                a.e(f"s_cbranch_scc1 L_{name}_hlast{role}")
            if "hst" in EXP and pos == 1:
                stamp(2)
            V1 = tr_ops(k + 1)[SH:]
            V2 = [] if last else tr_ops(k + 2)[:SH]
            V = V1 + V2
            n = len(V)
            ev = {}

            def at(i, f):
                ev.setdefault(max(0, min(int(i), n)), []).append(f)

            def stores():
                if "hst" in EXP and pos == 1:
                    stamp(3)
                for i in range(7):
                    wr(k + 1, i)
                if "hst" in EXP and pos == 1:
                    stamp(4)
                if PA != PB_:
                    a.e(f"s_setprio {PB_}")
            if PA != PB_:
                a.e(f"s_setprio {PA}")
            if VPF and not last:
                at(float(os.environ.get("VPP", "1.0")) * n, lambda: vpf(k))
            at(len(V1), stores)
            if not last:
                if not KSPLIT:
                    a.e(f"s_cmp_lt_u32 s{sK}, {N - 2 - ahead}")
                    a.e(f"s_cselect_b32 s{sXo}, 0, {OOB}")
                elif first:
                    a.e(f"s_add_u32 s{sXo}, s{sXo}, {8*PLH}")
                    a.e(f"s_add_u32 s{sXo2}, s{sXo2}, {8*PLH}")
                at(len(V1) if SH else 0, lambda: a.wait(vm=(("X", (k + ahead) >> 1),)))
                if "nox" not in EXP:
                    for p in (range(NF) if first else range(NF, 4)):
                        w = len(V1) + XP[p] * SH if SH and first else XP[p] * n
                        at(w, lambda p=p: xload(pair, p))
            for i in range(n + 1):
                for f in ev.get(i, []):
                    f()
                if i < n:
                    a.e(V[i])
            if not last:
                a.e(f"s_add_u32 s{sK}, s{sK}, 1")
            if "hst" in EXP and pos == 1:
                stamp(5)
            a.e("s_waitcnt lgkmcnt(0)")
            a.lg = []
            a.e("s_barrier")
            if "hst" in EXP and pos == 1:
                stamp(6)

        body = steady(period, 4, "nox" not in EXP)
        a.label(f"L_{name}_hloop{role}")
        a.L.extend(body)
        a.e(f"s_sub_u32 s{sCnt}, s{sCnt}, 1")
        a.e(f"s_branch L_{name}_hloop{role}")
        a.label(f"L_{name}_hlast{role}")
        a.vm, a.lg = [], []

        def last_period():
            vm = a.vm
            a.vm, a.lg = [], []
            if SH:
                a.e(f"s_mov_b32 s{sMask}, 0xffff0000")
                period(2, 2, True)
            a.vm = vm
        if role == 1 or KSPLIT:
            last_period()
        else:
            assert SH
            a.e("s_waitcnt vmcnt(0)")
            a.e(f"s_mov_b32 s58, s{sWv}")
            a.e(f"s_lshl_b32 s20, s2, 2")
            a.e(f"s_add_u32 s20, s20, s{sH}")
            a.e(f"v_mov_b32 v1, v{vL}")
            wprep(a, 16, WS_W2P, True, barrier=last_period)
            a.e(f"s_mov_b32 s{sWv}, s58")
        if role == 1 and "tw" in EXP:
            a.e(f"s_cmp_ge_u32 s2, {os.environ.get('TWN', '32')}")
            a.e(f"s_cbranch_scc1 L_{name}_ntw")
            a.e("s_getpc_b64 s[36:37]")
            a.label(f"L_{name}_pc")
            a.e(f"s_lshl_b32 s38, s{sH}, 13")
            a.e(f"s_add_u32 s38, s38, L_{name}_epi-L_{name}_pc")
            a.e(f"v_lshl_add_u32 v2, v{vL}, 7, s38")
            a.e(f"v_min_u32 v2, {0x7fc0de01 + KSPLIT:#x}, v2")
            a.e("v_mov_b32 v3, s37")
            a.e("v_add_co_u32 v2, vcc, s36, v2")
            a.e("v_addc_co_u32 v3, vcc, 0, v3, vcc")
            a.e("global_load_dword v4, v[2:3], off")
            a.label(f"L_{name}_ntw")
        stamp(8)
        rstamp(13)
        a.e(f"s_branch L_{name}_end")

    hwave(1)
    a.label(f"L_{name}_h2")
    hwave(2)

    a.label(f"L_{name}_epi")
    K = [sr(x, 2) for x in KS]
    a.e("s_waitcnt lgkmcnt(0)")
    a.e("s_barrier")
    if "est" in EXP:
        stamp(2)
    a.e(f"v_cndmask_b32 v{vO}, v{t3}, v{t2}, vcc")

    def P(c, s, r=0):
        return c * 32 + s * 4 + r
    Y = 64
    TB = 96
    ELS = (0, 1, 2)
    for c in range(2):
        for s_ in range(8):
            if c == 1 and s_ == 7:
                a.e("s_waitcnt lgkmcnt(7)")
            u = UNIT[s_][c]
            a.e(f"ds_read_b128 {vr(P(c, s_))}, v{R0[u >> 16]} offset:{u & 0xffff}")

    def p2(x):
        return vr(x, 2)

    def padd(d, x, y):
        return f"v_pk_add_f32 {p2(d)}, {p2(x)}, {p2(y)}"

    def psub(d, x, y):
        return f"v_pk_add_f32 {p2(d)}, {p2(x)}, {p2(y)} neg_lo:[0,1] neg_hi:[0,1]"

    def pfma(d, x, k, y, neg=False):
        return f"v_pk_fma_f32 {p2(d)}, {p2(x)}, {k}, {p2(y)}" + (" neg_lo:[0,0,1] neg_hi:[0,0,1]" if neg else "")

    def interp(c):
        seq = []
        for r in (0, 2):
            E0, A, B, C, D, Q, E6, E6b = (P(c, x, r) for x in range(8))
            y = [Y + ph * 8 + c * 4 + r for ph in range(4)]
            S1, G = E6, C
            seq.append([
                padd(y[3], E6, E6b),
                padd(S1, A, B),
                psub(A, A, B),
                padd(y[1], C, D),
                psub(G, C, D),
                pfma(y[1], S1, K[0], y[1]),
                pfma(Q, E0, K[3], Q),
                pfma(y[1], E0, K[1], y[1]),
                psub(S1, S1, E0),
                pfma(y[1], y[3], K[2], y[1]),
                psub(S1, S1, y[3]),
                pfma(Q, y[3], K[6], Q),
                psub(B, S1, y[1]),
                pfma(Q, y[1], K[5], Q),
                f"v_pk_mul_f32 {p2(y[2])}, {p2(G)}, {K[9]}",
                pfma(Q, B, K[4], Q),
                pfma(y[2], A, K[10], y[2]),
                pfma(y[0], A, K[7], Q, True),
                pfma(y[0], G, K[8], y[0]),
                pfma(y[2], y[0], K[11], y[2]),
                psub(A, A, y[0]),
                psub(A, A, y[2]),
            ])
        for ops in zip(*seq):
            for op in ops:
                a.e(op)

    a.e("s_waitcnt lgkmcnt(8)")
    interp(0)
    a.e("s_waitcnt lgkmcnt(0)")
    interp(1)
    if "est" in EXP:
        stamp(3)
    a.e("s_mov_b32 s36, 0x00010001")
    a.e("s_mov_b32 s37, 0x00010001")
    a.e("s_mov_b64 exec, s[36:37]")
    for k in range(3):
        for c in range(2):
            a.e(f"ds_write_b128 v{vBW}, {vr(P(c, ELS[k]))} offset:{(k*2+c)*16}")
    a.e("s_mov_b64 exec, -1")

    def finish(ph):
        ys = [Y + ph * 8 + i for i in range(8)]
        if not KSPLIT:
            ts = [16 + (ph & 1) * 8 + i for i in range(8)]
            ev = list(zip(ys[::2], ts[::2]))
            for y, t in ev:
                a.e(f"v_pk_mul_f32 {p2(t)}, {p2(y)}, {p2(y)}")
            for y, t in ev:
                a.e(pfma(t, t, K[12], 44))
            for y, t in ev:
                a.e(f"v_pk_mul_f32 {p2(t)}, {p2(t)}, {p2(y)}")
            for t in ts:
                a.e(f"v_exp_f32 v{t}, v{t}")
            for y, t in ev:
                a.e(f"v_pk_add_f32 {p2(t)}, {p2(t)}, {K[13]}")
            for t in ts:
                a.e(f"v_rcp_f32 v{t}, v{t}")
            for y, t in ev:
                a.e(f"v_pk_mul_f32 {p2(y)}, {p2(y)}, {p2(t)}")
        o = 48 + ph * 4
        for r in range(4):
            a.e(f"v_cvt_pk_bf16_f32 v{o+r}, v{ys[r]}, v{ys[4+r]}")
        so = ph * PLF if KSPLIT else ((ph + 3) & 3) * PLH + ((ph + 7) >> 2) * 64
        a.e(f"s_mov_b32 s44, {so}")
        a.e(f"buffer_store_dwordx4 {vr(o)}, v{vO}, {sr(sO)}, s44 offen{NTF if KSPLIT else NTH}")

    a.e(f"v_mov_b32 v44, {f32hex(k0)}")
    a.e("v_mov_b32 v45, v44")
    finish(0)
    a.e("s_waitcnt lgkmcnt(0)")
    a.e("s_barrier")
    if "est" in EXP:
        stamp(4)
    for i in range(6):
        a.e(f"ds_read_b128 {vr(TB+4*i)}, v{vBW} offset:{512 + i*16}")
    for ph in range(1, 4):
        a.e(f"s_waitcnt lgkmcnt({6 - 2*ph})")
        for c in range(2):
            for r in range(4):
                i = (ph - 1) * 8 + c * 4 + r
                a.e(f"v_mov_b32_dpp v{TB+i}, v{P(c, ELS[ph-1], r)} row_shl:1 row_mask:0xf bank_mask:0xf")
        for i in range(0, 8, 2):
            a.e(padd(Y + ph * 8 + i, Y + ph * 8 + i, TB + (ph - 1) * 8 + i))
        finish(ph)
    if "est" in EXP:
        stamp(5)
    a.label(f"L_{name}_end")
    if STAMP:
        a.e("s_waitcnt vmcnt(0)")
        stamp(9, False)
        a.e(f"s_memrealtime s[{sSt+22}:{sSt+23}]")
        a.e(f"s_cmp_lg_u32 s{sWv}, {os.environ.get('SW', '0')}")
        a.e(f"s_cbranch_scc1 L_{name}_done")
        a.e("s_lshl_b32 s36, s2, 7")
        a.e(f"s_add_u32 s36, s36, {WS_STAMP + cfg['stamp']*0x10000}")
        add64(a, 40, 30, "s36")
        a.e("s_mov_b32 s42, 128")
        a.e("s_mov_b32 s43, 0x00020000")
        a.e("s_waitcnt lgkmcnt(0)")
        a.e("v_mov_b32 v8, 0")
        for i in range(28):
            a.e(f"v_mov_b32 v0, s{sSt+i}")
            a.e(f"buffer_store_dword v0, v8, s[40:43], 0 offen offset:{4*i}")
    a.label(f"L_{name}_done")
    a.e("s_endpgm")
    return a.L, TOPB + 40960, 128


CONV1 = dict(tin=16000, tout=8000, nchunk=16, ksplit=False, in_arg=0, in_off=0, w_off=WS_W1P, out_off=WS_H, stamp=0)
CONV2 = dict(tin=8000, tout=4000, nchunk=8, ksplit=True, in_arg=72, in_off=WS_H, w_off=WS_W2P, out_off=WS_FP, stamp=1)

HEADER = f"""; Kernarg layout for this problem (80 bytes, ptrs only, base s[0:1]):
"""


def main():
    ks = [("prep_kernel", 268, 256) + prep_kernel("prep_kernel"),
          ("conv1_kernel", 256, 1024) + conv_kernel("conv1_kernel", CONV1),
          ("conv2_kernel", 256, 1024) + conv_kernel("conv2_kernel", CONV2)]
    ks = joint_kernels(ks)
    out = HEADER
    for nm, grid, block, code, lds, vg in ks:
        out += f"; @launch kernel={nm} grid=({grid},1,1) block=({block},1,1) lds={lds}\n"
    out += '.amdgcn_target "amdgcn-amd-amdhsa--gfx950"\n.text\n'
    for nm, grid, block, code, lds, vg in ks:
        if "noalign" not in EXP:
            code = align8(code)
        out += f".globl {nm}\n.p2align 8\n.type {nm},@function\n" + "\n".join(code) + "\n"
    out += '.section .rodata,"a"\n'
    for nm, grid, block, code, lds, vg in ks:
        out += ".p2align 6\n" + kd(nm, vg)
    out = out.replace("0x7fc0de00", "L_joint_kernel_done-L_prep_kernel_pc")
    out = out.replace("0x7fc0de01", "L_conv2_kernel_done-L_conv1_kernel_pc")
    out = out.replace("0x7fc0de02", "L_joint_kernel_done-L_conv2_kernel_pc")
    path = sys.argv[1] if len(sys.argv) > 1 else "standalone__seq2seq_rnn_t_joint__speech.s"
    open(path, "w").write(out)


if __name__ == "__main__":
    main()
```

```python
import os
from asmlib import Asm, vr, sr, f32hex

EXP = os.environ.get("EXP", "").split(",")
WS_FP = 0x1A00000
WS_FPS = 0x800000
PLF = int(os.environ.get('PLF', 65536))
WS_WF = 0x2A00000
WS_WO = 0x2A20000
WS_GE = 0x2A40000
WS_STAMP = 0x3000000
C2 = 2.0 * 1.4426950408889634
RANGE = 120.0


def add64(a, d, lo, off):
    a.e(f"s_add_u32 s{d}, s{lo}, {off}")
    a.e(f"s_addc_u32 s{d+1}, s{lo+1}, 0")


def small_select(a):
    a.e("s_lshr_b32 s41, s3, 2")
    a.e("s_and_b32 s42, s3, 3")
    a.e("s_lshl_b32 s42, s42, 1")
    a.e("s_and_b32 s43, s40, 1")
    a.e("s_add_u32 s42, s42, s43")
    a.e("s_lshr_b32 s43, s40, 1")
    a.e("s_lshl_b32 s4, s43, 16")
    a.e("s_lshl_b32 s5, s42, 6")
    a.e("s_add_u32 s4, s4, s5")
    a.e("s_cmp_lt_u32 s3, 12")
    a.e("s_cselect_b32 s26, s4, s26")
    a.e("s_cselect_b32 s10, 131072, s10")
    a.e(f"s_mov_b32 s5, {2*131072}")
    a.e("s_cselect_b32 s5, 16384, s5")


def small_ptr(a):
    for m, sg in ((0, 52), (1, 56), (2, 54)):
        a.e(f"s_cmp_eq_u32 s41, {m}")
        a.e(f"s_cselect_b32 s8, s{sg}, s8")
        a.e(f"s_cselect_b32 s9, s{sg+1}, s9")


def small_tail(a, name):
    a.label(f"L_{name}_small")
    R, O = 16, 48
    a.e("s_mov_b32 s16, s50")
    a.e("s_mov_b32 s17, s51")
    a.e("s_mov_b32 s18, 8192")
    a.e("s_mov_b32 s19, 0x00020000")
    a.e("v_lshrrev_b32 v2, 4, v1")
    a.e("v_lshlrev_b32 v6, 9, v3")
    a.e("v_lshl_add_u32 v6, v2, 4, v6")
    a.e("s_lshl_b32 s24, s43, 8")
    a.e("s_cmp_eq_u32 s41, 2")
    a.e("s_cselect_b32 s24, s24, 0x100000")
    for k in range(4):
        a.e(f"buffer_load_dwordx4 {vr(80+4*k)}, v6, s[16:19], s24 offen offset:{k*64}")
    a.e("s_lshl_b32 s24, s41, 17")
    a.e(f"s_add_u32 s24, s24, {WS_WF}")
    add64(a, 12, 30, "s24")
    a.e("s_mov_b32 s14, 131072")
    a.e("s_mov_b32 s15, 0x00020000")
    a.e("s_mov_b32 s32, 0x05040100")
    a.e("s_mov_b32 s33, 0x07060302")
    a.e("v_lshlrev_b32 v4, 4, v1")
    a.e("s_lshl_b32 s24, s42, 14")
    a.e("s_lshl_b32 s25, s43, 13")
    a.e("s_add_u32 s24, s24, s25")
    a.e("s_add_u32 s25, s24, 4096")
    a.e("s_waitcnt vmcnt(4)")
    for k in range(4):
        for jn in range(2):
            for e2 in range(4):
                a.e(f"v_perm_b32 v{O+(k*2+jn)*4+e2}, v{R+k*8+2*e2+1}, v{R+k*8+2*e2}, s{32+jn}")
    a.e("s_cmp_eq_u32 s41, 2")
    a.e(f"s_cbranch_scc1 L_{name}_ge")
    for i in range(8):
        a.e(f"buffer_store_dwordx4 {vr(O+4*i)}, v4, s[12:15], s{24+(i>>2)} offen offset:{(i&3)*1024} sc1")
    a.e("s_endpgm")
    a.label(f"L_{name}_ge")
    ACC = 96
    a.e("s_waitcnt vmcnt(0)")
    for k in range(4):
        for jn in range(2):
            c = "0" if k == 0 else vr(ACC + 4 * jn)
            a.e(f"v_mfma_f32_16x16x32_bf16 {vr(ACC+4*jn)}, {vr(O+(k*2+jn)*4)}, {vr(80+4*k)}, {c}")
    a.e("s_and_b32 s24, s40, 1")
    a.e("s_lshl_b32 s24, s24, 11")
    a.e("v_add_u32 v7, s24, v4")
    a.e("s_mov_b32 s14, 16384")
    a.e("v_lshlrev_b32 v8, 10, v3")
    a.e("v_lshl_add_u32 v8, v2, 5, v8")
    a.e("s_lshl_b32 s24, s42, 7")
    a.e("s_mov_b32 s34, 0xffff0000")
    a.e(f"s_mov_b32 s35, {f32hex(C2)}")
    a.e("s_cmp_eq_u32 s43, 0")
    a.e(f"s_cbranch_scc1 L_{name}_ge0")
    a.e(f"ds_write_b128 v7, {vr(ACC)}")
    a.e(f"ds_write_b128 v7, {vr(ACC+4)} offset:1024")
    a.e("s_waitcnt lgkmcnt(0)")
    a.e("s_barrier")
    a.e("s_endpgm")
    a.label(f"L_{name}_ge0")
    a.e("s_barrier")
    a.e(f"ds_read_b128 {vr(16)}, v7")
    a.e(f"ds_read_b128 {vr(20)}, v7 offset:1024")
    a.e("s_waitcnt lgkmcnt(0)")
    for r in range(8):
        a.e(f"v_add_f32 v{16+r}, v{16+r}, v{ACC+r}")
    for i in range(4):
        a.e(f"v_cvt_pk_bf16_f32 v{48+i}, v{16+i}, v{20+i}")
    for i in range(4):
        a.e(f"v_lshlrev_b32 v{56+2*i}, 16, v{48+i}")
        a.e(f"v_and_b32 v{57+2*i}, s34, v{48+i}")
    for r in range(8):
        a.e(f"v_mul_f32 v{56+r}, s35, v{56+r}")
    a.e(f"buffer_store_dwordx4 {vr(56)}, v8, s[12:15], s24 offen sc1")
    a.e(f"buffer_store_dwordx4 {vr(60)}, v8, s[12:15], s24 offen offset:16 sc1")
    for r in range(8):
        a.e(f"v_exp_f32 v{64+r}, v{56+r}")
    a.e("v_max3_f32 v72, |v56|, |v57|, |v58|")
    a.e("v_max3_f32 v72, |v59|, |v60|, v72")
    a.e("v_max3_f32 v72, |v61|, |v62|, v72")
    a.e("v_max_f32 v72, |v63|, v72")
    add64(a, 12, 12, 16384)
    a.e(f"v_cmp_lt_f32 vcc, {f32hex(RANGE)}, v72")
    a.e(f"buffer_store_dwordx4 {vr(64)}, v8, s[12:15], s24 offen sc1")
    a.e(f"buffer_store_dwordx4 {vr(68)}, v8, s[12:15], s24 offen offset:16 sc1")
    add64(a, 12, 12, 16384)
    a.e("s_or_b32 s26, vcc_lo, vcc_hi")
    a.e("s_lshl_b32 s24, s42, 2")
    a.e("v_mov_b32 v73, s26")
    a.e("v_mov_b32 v74, 0")
    a.e("buffer_store_dword v73, v74, s[12:15], s24 offen sc1")
    a.e("s_endpgm")


def joint_kernel(name):
    a = Asm()
    NWG = 250
    STAMP = "stamp" in EXP
    FP = 528
    EP = 144
    J_B, F_B = 0, 32768
    E_B = F_B + 32 * FP
    GE_B = E_B + 8 * 36 * EP
    C_B = GE_B + 8 * 1040
    LDS = C_B + 16
    SPIN = 'nospin' not in EXP
    sF, sW, sO, sG = 8, 12, 16, 40
    sWv, sV, sCnt = 20, 21, 22
    sSt = 64
    vL, vL16 = 127, 126
    NTO = os.environ.get("NTO", " nt")

    def stamp(i, fence=True):
        if STAMP:
            a.e(f"s_memtime s[{sSt+2*i}:{sSt+2*i+1}]")
            if fence:
                a.e("s_waitcnt lgkmcnt(0)")
                a.lg = []

    def rstamp(i):
        if STAMP:
            a.e(f"s_memrealtime s[{sSt+2*i}:{sSt+2*i+1}]")
            a.e("s_waitcnt lgkmcnt(0)")
            a.lg = []

    a.label(name)
    if "local" in EXP:
        a.e("s_cmp_ge_u32 s2, 256")
        a.e(f"s_cbranch_scc1 L_{name}_done")
        a.e("s_and_b32 s3, s2, 7")
        a.e("s_lshr_b32 s2, s2, 3")
        a.e("s_mul_i32 s4, s3, 125")
        a.e("s_add_u32 s5, s4, 128")
        a.e("s_add_u32 s4, s4, 3")
        a.e("s_lshr_b32 s4, s4, 2")
        a.e("s_lshr_b32 s5, s5, 2")
        a.e("s_add_u32 s2, s2, s4")
        a.e("s_cmp_ge_u32 s2, s5")
    else:
        a.e(f"s_cmp_ge_u32 s2, {NWG}")
    a.e(f"s_cbranch_scc1 L_{name}_done")
    if STAMP:
        for i in range(28):
            a.e(f"s_mov_b32 s{sSt+i}, 0")
        a.e(f"s_memrealtime s[{sSt+20}:{sSt+21}]")
    stamp(0, False)
    a.e("s_load_dwordx2 s[28:29], s[0:1], 56")
    a.e("s_load_dwordx2 s[30:31], s[0:1], 72")
    a.e(f"v_readfirstlane_b32 s{sWv}, v0")
    a.e(f"s_lshr_b32 s{sWv}, s{sWv}, 6")
    a.e(f"s_and_b32 s{sV}, s{sWv}, 7")
    a.e(f"v_and_b32 v{vL}, 63, v0")
    a.e(f"v_lshlrev_b32 v{vL16}, 4, v{vL}")
    a.e(f"s_cmp_ge_u32 s{sWv}, 8")
    a.e(f"s_mov_b32 s33, {WS_WO}")
    a.e(f"s_cselect_b32 s33, {WS_WF}, s33")
    a.e(f"s_lshl_b32 s36, s{sV}, 14")
    a.e("s_add_u32 s33, s33, s36")
    a.e(f"s_mov_b32 s{sW+2}, 16384")
    a.e(f"s_mov_b32 s{sW+3}, 0x00020000")
    a.e("s_lshl_b32 s35, s2, 9")
    a.e("s_cmp_ge_u32 s2, 125")
    a.e(f"s_cselect_b32 s36, {32*PLF - 125*512}, 0")
    a.e("s_cselect_b32 s34, 8192, 0")
    a.e("s_add_u32 s35, s35, s36")
    a.e(f"s_add_u32 s34, s34, {WS_GE}")
    a.e(f"s_mov_b32 s{sF+2}, {WS_FPS + 64*PLF}")
    a.e(f"s_mov_b32 s{sF+3}, 0x00020000")
    a.e(f"s_mov_b32 s{sG+2}, {16384 + 8192}")
    a.e(f"s_mov_b32 s{sG+3}, 0x00020000")
    a.e("s_waitcnt lgkmcnt(0)")
    add64(a, sW, 30, "s33")
    add64(a, sG, 30, "s34")
    W = 0

    def arrive_wait(mine, other, lbl, v):
        a.e(f"v_mov_b32 v{v}, {C_B}")
        a.e(f"v_mov_b32 v{v+1}, 1")
        a.e("s_mov_b64 exec, 1")
        a.e(f"ds_add_u32 v{v}, v{v+1} offset:{4*mine}")
        a.e("s_mov_b64 exec, -1")
        a.label(lbl)
        a.e(f"ds_read_b32 v{v+1}, v{v} offset:{4*other}")
        a.e("s_waitcnt lgkmcnt(0)")
        a.e(f"v_readfirstlane_b32 s37, v{v+1}")
        a.e("s_cmp_ge_u32 s37, 8")
        a.e(f"s_cbranch_scc1 {lbl}_d")
        a.e("s_sleep 1")
        a.e(f"s_branch {lbl}")
        a.label(f"{lbl}_d")

    def wload(ks):
        if ks % 2 == 0:
            a.e(f"s_mov_b32 s36, {ks*2048}")
        for jn in range(2):
            i = ks * 2 + jn
            a.vmem(f"buffer_load_dwordx4 {vr(W+4*i)}, v{vL16}, {sr(sW)}, s36 offen offset:{(i%4)*1024}", ("W", ks))

    a.e(f"s_cmp_ge_u32 s{sWv}, 8")
    a.e(f"s_cbranch_scc1 L_{name}_T")

    add64(a, sF, 30, WS_FP)
    X = 64
    a.e(f"v_mov_b32 v0, {C_B}")
    a.e("v_mov_b32 v2, 0")
    a.e("v_mov_b32 v3, 0")
    a.e("ds_write_b64 v0, v[2:3]")
    a.e(f"v_lshrrev_b32 v124, 5, v{vL}")
    a.e(f"v_and_b32 v123, 0x1ff, v{vL16}")
    a.e(f"v_mul_u32_u24 v125, {PLF}, v124")
    a.e("v_add_u32 v123, v125, v123")
    a.e(f"s_mul_i32 s36, s{sV}, {4*PLF}")
    a.e("s_add_u32 s36, s36, s35")
    for r2 in range(2):
        a.e(f"s_add_u32 s37, s36, {WS_FPS}")
        a.vmem(f"buffer_load_dwordx4 {vr(X+4*r2)}, v123, {sr(sF)}, s36 offen", ("F", r2))
        a.vmem(f"buffer_load_dwordx4 {vr(X+8+4*r2)}, v123, {sr(sF)}, s37 offen", ("F", r2))
        if r2 == 0:
            a.e(f"s_add_u32 s36, s36, {2*PLF}")
    a.e(f"s_lshl_b32 s38, s{sV}, 10")
    a.e("s_add_u32 s38, s38, 16384")
    a.vmem(f"buffer_load_dwordx4 {vr(X+16)}, v{vL16}, {sr(sG)}, s38 offen", "G")
    a.e("s_waitcnt lgkmcnt(0)")
    stamp(1)
    a.e("s_barrier")
    stamp(5)
    a.e("s_lshl_b32 s35, s2, 17")
    add64(a, sO, 28, "s35")
    a.e(f"s_mov_b32 s{sO+2}, 131072")
    a.e(f"s_mov_b32 s{sO+3}, 0x00020000")
    k0 = -2.0 * 1.4426950408889634 * 0.7978845608028654
    a.e(f"s_mov_b32 s46, {f32hex(k0 * 0.044715)}")
    a.e("s_mov_b32 s47, s46")
    a.e(f"v_mov_b32 v120, {f32hex(k0)}")
    a.e("v_mov_b32 v121, v120")
    a.e("s_mov_b32 s48, 1.0")
    a.e("s_mov_b32 s49, 1.0")
    a.e(f"v_bfe_u32 v123, v{vL}, 2, 3")
    a.e("v_lshl_add_u32 v124, v123, 2, v124")
    a.e(f"v_mul_u32_u24 v124, {FP}, v124")
    a.e(f"v_and_b32 v123, 0x30, v{vL16}")
    a.e(f"s_lshl_b32 s36, s{sV}, 6")
    a.e("v_add3_u32 v124, v124, v123, s36")
    a.e("s_mov_b32 s45, 0xffff0000")
    a.e(f"s_mul_i32 s36, s{sV}, 1040")
    a.e(f"s_add_u32 s36, s36, {GE_B}")
    a.e(f"v_add_u32 v123, s36, v{vL16}")
    a.e(f"s_mov_b32 s{sCnt}, 2")
    a.e("s_waitcnt vmcnt(3)")
    stamp(6)
    a.label(f"L_{name}_floop")

    def p2(x):
        return vr(x, 2)
    ys = [88 + i for i in range(8)]
    ts = [96 + i for i in range(8)]
    ev = list(zip(ys[::2], ts[::2]))
    for i in range(4):
        a.e(f"v_lshlrev_b32 v{ys[2*i]}, 16, v{X+i}")
        a.e(f"v_and_b32 v{ys[2*i+1]}, s45, v{X+i}")
        a.e(f"v_lshlrev_b32 v{ts[2*i]}, 16, v{X+8+i}")
        a.e(f"v_and_b32 v{ts[2*i+1]}, s45, v{X+8+i}")
    for y, t in ev:
        a.e(f"v_pk_add_f32 {p2(y)}, {p2(y)}, {p2(t)}")
    for y, t in ev:
        a.e(f"v_pk_mul_f32 {p2(t)}, {p2(y)}, {p2(y)}")
    for y, t in ev:
        a.e(f"v_pk_fma_f32 {p2(t)}, {p2(t)}, s[46:47], v[120:121]")
    for y, t in ev:
        a.e(f"v_pk_mul_f32 {p2(t)}, {p2(t)}, {p2(y)}")
    for t in ts:
        a.e(f"v_exp_f32 v{t}, v{t}")
    for y, t in ev:
        a.e(f"v_pk_add_f32 {p2(t)}, {p2(t)}, s[48:49]")
    for t in ts:
        a.e(f"v_rcp_f32 v{t}, v{t}")
    for y, t in ev:
        a.e(f"v_pk_mul_f32 {p2(y)}, {p2(y)}, {p2(t)}")
    for i in range(4):
        a.e(f"v_cvt_pk_bf16_f32 v{104+i}, v{ys[2*i]}, v{ys[2*i+1]}")
    a.e(f"ds_write_b128 v124, {vr(104)} offset:{F_B}")
    a.e("s_waitcnt vmcnt(0)")
    a.vm = []
    for i in range(0, 4, 2):
        for b in (X, X + 8):
            a.e(f"v_pk_mov_b32 {vr(b+i,2)}, {vr(b+4+i,2)}, {vr(b+4+i,2)} op_sel:[0,1]")
    a.e(f"v_add_u32 v124, {2*FP}, v124")
    a.e(f"s_sub_u32 s{sCnt}, s{sCnt}, 1")
    a.e(f"s_cmp_lg_u32 s{sCnt}, 0")
    a.e(f"s_cbranch_scc1 L_{name}_floop")
    a.e(f"ds_write_b128 v123, {vr(X+16)}")
    a.e("s_waitcnt lgkmcnt(0)")
    stamp(2)
    if SPIN:
        arrive_wait(0, 1, f"L_{name}_ow", 120)
    else:
        a.e("s_barrier")
    stamp(3)
    for ks in range(8):
        wload(ks)
    ACC = (64, 80)
    JR = 96
    PKR = 112
    vO = 125
    a.e(f"v_lshrrev_b32 v{vO}, 4, v{vL}")
    a.e(f"v_lshlrev_b32 v{vO}, 11, v{vO}")
    a.e(f"v_and_b32 v124, 15, v{vL}")
    a.e(f"v_lshl_add_u32 v{vO}, v124, 2, v{vO}")
    a.e(f"s_lshl_b32 s36, s{sV}, 6")
    a.e(f"v_add_u32 v{vO}, s36, v{vO}")
    a.e("s_mov_b32 s44, 8192")
    a.e(f"s_setprio {os.environ.get('PO', '1')}")

    def out_ops(par):
        ops = []
        ac = ACC[par]
        for rt in range(2):
            for r in range(4):
                ops.append(f"v_cvt_pk_bf16_f32 v{PKR+rt*4+r}, v{ac+rt*8+r}, v{ac+rt*8+4+r}")
                ops.append(f"buffer_store_dword v{PKR+rt*4+r}, v{vO}, {sr(sO)}, {'s44' if rt else '0'} offen offset:{r*512}{NTO}")
        ops.append(f"v_add_u32 v{vO}, 16384, v{vO}")
        return ops

    PD = 4

    def jread(par, n):
        a.lds(f"ds_read_b128 {vr(JR+4*(n%4))}, v{vL16} offset:{J_B + par*16384 + n*1024}", ("J", par, n))

    def ustep(par, side):
        for n in range(16):
            ks, rt = n >> 1, n & 1
            a.wait(lg=(("J", par, n),), vm=(("W", ks),))
            for jn in range(2):
                ac = ACC[par] + rt * 8 + 4 * jn
                c = "0" if ks == 0 else vr(ac)
                a.e(f"v_mfma_f32_16x16x32_bf16 {vr(ac)}, {vr(JR+4*(n%4))}, {vr(W+(ks*2+jn)*4)}, {c}")
                if n >= 3 and side:
                    a.e(side.pop(0))
            if n + PD == 16:
                a.wait(lg_all=True)
                a.e("s_barrier")
            if n + PD < 16:
                jread(par, n + PD)
            else:
                jread(1 - par, n + PD - 16)
        assert not side

    stamp(4)
    a.e("s_barrier")
    for n in range(PD):
        jread(0, n)
    ustep(0, [])
    lg0 = list(a.lg)
    stamp(7)
    rstamp(12)
    a.lg = list(lg0)
    a.e(f"s_mov_b32 s{sCnt}, 4")
    a.label(f"L_{name}_oloop")
    ustep(1, out_ops(0))
    a.e(f"s_sub_u32 s{sCnt}, s{sCnt}, 1")
    a.e(f"s_cmp_eq_u32 s{sCnt}, 0")
    a.e(f"s_cbranch_scc1 L_{name}_oend")
    ustep(0, out_ops(1))
    assert a.lg == lg0
    a.e("s_waitcnt vmcnt(32)")
    a.e(f"s_branch L_{name}_oloop")
    a.label(f"L_{name}_oend")
    stamp(8, False)
    rstamp(13)
    a.e("s_nop 7")
    for op in out_ops(1):
        a.e(op)
    a.e(f"s_branch L_{name}_fin")

    a.label(f"L_{name}_T")
    a.vm, a.lg = [], []
    a.e("s_setprio 3")
    if "wwarm" in EXP:
        add64(a, sF, 30, WS_WF)
        a.e(f"s_mov_b32 s{sF+2}, 262144")
        a.e("s_lshr_b32 s36, s2, 3")
        a.e("s_lshl_b32 s36, s36, 3")
        a.e(f"s_add_u32 s36, s36, s{sV}")
        a.e("s_lshl_b32 s36, s36, 10")
        a.vmem(f"buffer_load_dwordx4 {vr(80)}, v{vL16}, {sr(sF)}, s36 offen", "P")
    a.e(f"s_lshl_b32 s36, s{sV}, 2")
    a.e(f"s_add_u32 s36, s36, {WS_GE + 32768}")
    add64(a, 36, 30, "s36")
    a.e("s_load_dword s44, s[36:37], 0")
    FE = 64
    FR = 80
    GB = 112
    vF, vG, vJ, vEW, vER, vGL = 125, 124, 123, 122, 121, 120
    a.e(f"v_and_b32 v{vJ}, 15, v{vL}")
    a.e(f"v_lshrrev_b32 v{vER}, 4, v{vL}")
    a.e(f"v_mul_u32_u24 v{vF}, {FP}, v{vJ}")
    a.e(f"v_lshl_add_u32 v{vF}, v{vER}, 4, v{vF}")
    a.e(f"v_lshlrev_b32 v{vER}, 5, v{vER}")
    a.e(f"v_and_b32 v{vGL}, 7, v{vL}")
    a.e(f"v_lshl_add_u32 v{vG}, v{vGL}, 10, v{vER}")
    a.e(f"s_lshl_b32 s38, s{sV}, 7")
    a.e(f"v_mul_u32_u24 v{vGL}, 1040, v{vGL}")
    a.e(f"s_add_u32 s36, s38, {GE_B}")
    a.e(f"v_add3_u32 v{vGL}, v{vGL}, v{vER}, s36")
    a.e(f"s_mul_i32 s36, s{sV}, {36*EP}")
    a.e(f"s_add_u32 s36, s36, {E_B}")
    a.e(f"v_add_u32 v{vER}, s36, v{vER}")
    a.e(f"v_mul_u32_u24 v{vEW}, {EP}, v{vJ}")
    a.e(f"v_add_u32 v{vEW}, v{vEW}, v{vER}")
    a.e(f"v_lshrrev_b32 v{vJ}, 3, v{vJ}")
    a.e(f"v_mul_u32_u24 v{vJ}, {EP}, v{vJ}")
    a.e(f"v_add_u32 v{vER}, v{vJ}, v{vER}")
    a.e(f"s_lshl_b32 s36, s{sV}, 11")
    a.e(f"v_add_u32 v{vJ}, s36, v{vL16}")
    a.e("s_barrier")
    NPRE = int(os.environ.get("NPRE", "8"))
    for ks in range(NPRE):
        wload(ks)
    stamp(2)
    if SPIN:
        arrive_wait(1, 0, f"L_{name}_tw", FE)
    else:
        a.e("s_waitcnt lgkmcnt(0)")
        a.e("s_barrier")
    stamp(3)

    def fread(n):
        tt, ks = n & 1, n >> 1
        a.lds(f"ds_read_b128 {vr(FR+4*(n%8))}, v{vF} offset:{F_B + tt*16*FP + ks*64}", ("A", n))

    for n in range(8):
        fread(n)
    for ks in range(NPRE, 8):
        wload(ks)
    if NPRE < 8:
        a.e("s_barrier")
    a.e(f"s_setprio {os.environ.get('PT', '0')}")
    for n in range(16):
        tt, ks = n & 1, n >> 1
        a.wait(lg=(("A", n),), vm=(("W", ks),))
        for jn in range(2):
            ac = FE + tt * 8 + jn * 4
            c = "0" if ks == 0 else vr(ac)
            a.e(f"v_mfma_f32_16x16x32_bf16 {vr(ac)}, {vr(W+(ks*2+jn)*4)}, {vr(FR+4*(n%8))}, {c}")
        if n + 8 < 16:
            fread(n + 8)
        elif n < 10:
            a.lds(f"ds_read_b128 {vr(GB+4*(n-8))}, v{vGL} offset:{(n-8)*16}", "GE")
    a.e("s_mov_b32 s46, 0xffff0000")
    a.e(f"s_mov_b32 s48, {f32hex(C2)}")
    a.e("s_mov_b32 s49, s48")
    a.e("s_nop 3")
    stamp(4)
    FS, EX, EA, XS, PK = 80, 96, 32, 48, 64
    a.e("v_mov_b32 v28, 0")
    a.wait(lg_all=True)
    for tt in range(2):
        for r in range(4):
            a.e(f"v_cvt_pk_bf16_f32 v{24+r}, v{FE+tt*8+r}, v{FE+tt*8+4+r}")
        for r in range(4):
            a.e(f"v_lshlrev_b32 v{FS+tt*8+2*r}, 16, v{24+r}")
            a.e(f"v_and_b32 v{FS+tt*8+2*r+1}, s46, v{24+r}")
        for r in range(8 * tt, 8 * tt + 8, 2):
            a.e(f"v_pk_mul_f32 {vr(FS+r,2)}, {vr(FS+r,2)}, s[48:49]")
        for h in range(2):
            for r in range(8 * tt + 4 * h, 8 * tt + 4 * h + 4):
                a.e(f"v_exp_f32 v{EX+r}, v{FS+r}")
            for r in range(4 * tt + 2 * h, 4 * tt + 2 * h + 2):
                a.e(f"v_max3_f32 v28, |v{FS+2*r}|, |v{FS+2*r+1}|, v28")
            a.e(f"ds_write_b128 v{vEW}, {vr(EX+8*tt+4*h)} offset:{tt*16*EP + h*16}")
    a.e(f"v_cmp_lt_f32 vcc, {f32hex(RANGE)}, v28")
    a.e(f"s_mov_b32 s{sCnt}, 4")
    a.e("s_or_b32 s44, s44, vcc_lo")
    a.e("s_or_b32 s44, s44, vcc_hi")
    a.e("s_cmp_lg_u32 s44, 0")
    if "slow" in EXP:
        a.e(f"s_branch L_{name}_tslow")
    a.e(f"s_cbranch_scc1 L_{name}_tslow")

    def earead():
        for rt in range(2):
            for h in range(2):
                a.lds(f"ds_read_b128 {vr(EA+8*rt+4*h)}, v{vER} offset:{rt*2*EP + h*16}", ("G", rt))
        a.e(f"v_add_u32 v{vER}, {4*EP}, v{vER}")

    def tcomp(fast, early=None):
        a.wait(lg=(("G", 1),))
        for i in range(16):
            if fast:
                a.e(f"v_fma_f32 v{XS+i}, v{GB+(i&7)}, v{EA+i}, 1.0")
            else:
                a.e(f"v_add_f32 v{XS+i}, v{GB+(i&7)}, v{EA+i}")
        earead()
        for rt in range(2):
            xs = [XS + 8 * rt + i for i in range(8)]
            if not fast:
                for x in xs:
                    a.e(f"v_exp_f32 v{x}, v{x}")
                for x in xs:
                    a.e(f"v_add_f32 v{x}, 1.0, v{x}")
            for x in xs:
                a.e(f"v_rcp_f32 v{x}, v{x}")
            for x in xs:
                a.e(f"v_fma_f32 v{x}, v{x}, -2.0, 1.0")
            for i in range(4):
                a.e(f"v_cvt_pk_bf16_f32 v{PK+4*rt+i}, v{xs[2*i]}, v{xs[2*i+1]}")
            if early is not None:
                twrite(early, rt)

    def twrite(par, rt):
        a.lds(f"ds_write_b128 v{vJ}, {vr(PK+4*rt)} offset:{J_B + par*16384 + rt*1024}", "W")

    def tsync():
        a.wait(lg_all=True)
        a.e("s_barrier")

    TSH = os.environ.get("TSH", "0") == "1"
    for fast in (1, 0):
        a.lg = []
        if not fast:
            a.label(f"L_{name}_tslow")
            for h in range(2):
                a.e(f"buffer_load_dwordx4 {vr(GB+4*h)}, v{vG}, {sr(sG)}, s38 offen offset:{h*16}")
            for i in range(4):
                a.e(f"ds_write_b128 v{vEW}, {vr(FS+4*i)} offset:{(i>>1)*16*EP + (i&1)*16}")
        earead()
        a.e("s_waitcnt vmcnt(0) lgkmcnt(0)")
        a.vm, a.lg = [], []
        stamp(5)
        if TSH and fast:
            tcomp(fast, 0)
            tsync()
            tcomp(fast)
            a.wait(lg_all=True)
            a.e(f"s_mov_b32 s{sCnt}, 3")
            a.label(f"L_{name}_tloop{fast}")
            for par in (1, 0):
                twrite(par, 0)
                twrite(par, 1)
                tcomp(fast)
                tsync()
            a.e(f"s_sub_u32 s{sCnt}, s{sCnt}, 1")
            a.e(f"s_cmp_lg_u32 s{sCnt}, 0")
            a.e(f"s_cbranch_scc1 L_{name}_tloop{fast}")
            twrite(1, 0)
            twrite(1, 1)
            tsync()
        else:
            a.label(f"L_{name}_tloop{fast}")
            for par in (0, 1):
                tcomp(fast, par)
                tsync()
            a.e(f"s_sub_u32 s{sCnt}, s{sCnt}, 1")
            a.e(f"s_cmp_lg_u32 s{sCnt}, 0")
            a.e(f"s_cbranch_scc1 L_{name}_tloop{fast}")
        stamp(8)
        if fast:
            a.e(f"s_branch L_{name}_fin")
    a.label(f"L_{name}_fin")
    if STAMP:
        a.e("s_waitcnt vmcnt(0)")
        stamp(9, False)
        a.e(f"s_memrealtime s[{sSt+22}:{sSt+23}]")
        a.e(f"s_cmp_lg_u32 s{sWv}, {os.environ.get('SWJ', '0')}")
        a.e(f"s_cbranch_scc1 L_{name}_done")
        a.e("s_lshl_b32 s36, s2, 7")
        a.e(f"s_add_u32 s36, s36, {WS_STAMP + 2*0x10000}")
        add64(a, 40, 30, "s36")
        a.e("s_mov_b32 s42, 128")
        a.e("s_mov_b32 s43, 0x00020000")
        a.e("s_waitcnt lgkmcnt(0)")
        a.e("v_mov_b32 v8, 0")
        for i in range(28):
            a.e(f"v_mov_b32 v0, s{sSt+i}")
            a.e(f"buffer_store_dword v0, v8, s[40:43], 0 offen offset:{4*i}")
    a.label(f"L_{name}_done")
    a.e("s_endpgm")
    return a.L, LDS, 128


def joint_kernels(ks):
    return ks + [("joint_kernel", 256 if "local" in EXP else 250, 1024) + joint_kernel("joint_kernel")]
```

```python
import os
import sys

from asmlib import Asm, vr, sr, kd, f32hex, align8
from gen10_joint import small_select, small_ptr, small_tail, joint_kernels

EXP = os.environ.get("EXP", "").split(",")

WS_W1P = 0x0000000
WS_W2P = 0x0900000
WS_H = 0x1200000
WS_FP = 0x1A00000
WS_FPS = 0x800000
WS_WF = 0x2A00000
WS_STAMP = 0x3000000

CHUNKB = 7 * 8192
FB = 1024
BB = 8 * FB
SEQB = 2 * BB
FB6 = 1088
BB6 = 8 * FB6
SPB = 6 * SEQB + 2 * BB6
TOPB = SPB + 6144
OOB = 0x7f000000
LOCAL = 'local' in EXP
PLH, PLF = int(os.environ.get('PLH', 131072)), int(os.environ.get('PLF', 65536))
NTW, NTH, NTF = ({"0": "", "1": " nt", "2": " sc1", "3": " sc0 sc1"}[c] for c in os.environ.get("NT", "222"))


def add64(a, d, lo, off):
    a.e(f"s_add_u32 s{d}, s{lo}, {off}")
    a.e(f"s_addc_u32 s{d+1}, s{lo+1}, 0")


def eval_ops(c, t):
    e1, o1, e2, o2 = t
    ops = [f"v_add_f32 v{e1}, v{c[0]}, v{c[2]}",
           f"v_add_f32 v{o1}, v{c[1]}, v{c[3]}",
           f"v_fma_f32 v{e2}, v{c[2]}, 4.0, v{c[0]}",
           f"v_fma_f32 v{o2}, v{c[3]}, 4.0, v{c[1]}",
           f"v_add_f32 v{c[1]}, v{e1}, v{o1}",
           f"v_sub_f32 v{c[2]}, v{e1}, v{o1}",
           f"v_fma_f32 v{c[3]}, v{o2}, 2.0, v{e2}",
           f"v_fma_f32 v{e2}, v{o2}, -2.0, v{e2}",
           f"v_fmamk_f32 v{e1}, v{c[0]}, {f32hex(15.0)}, v{e2}",
           f"v_fmamk_f32 v{e1}, v{o1}, {f32hex(10.0)}, v{e1}"]
    return ops, [c[1], c[2], c[3], e2, e1]


def wprep(a, karg, wsoff, ws_loaded, barrier=False, extra=None, small=None, mid=None):
    a.vm, a.lg = [], []
    a.e(f"s_load_dwordx2 s[8:9], s[0:1], {karg}")
    if not ws_loaded:
        a.e("s_load_dwordx2 s[30:31], s[0:1], 72")
    a.e("s_lshr_b32 s22, s20, 8")
    a.e("s_bfe_u32 s23, s20, 0x40004")
    a.e("s_bfe_u32 s24, s20, 0x30001")
    a.e("s_and_b32 s21, s20, 1")
    a.e("v_lshrrev_b32 v2, 4, v1")
    a.e("v_lshlrev_b32 v2, 12, v2")
    a.e("v_and_b32 v3, 15, v1")
    a.e("v_lshl_add_u32 v2, v3, 2, v2")
    a.e("s_lshl_b32 s26, s22, 3")
    a.e("s_lshr_b32 s27, s23, 3")
    a.e("s_add_u32 s26, s26, s27")
    a.e("s_lshl_b32 s26, s26, 17")
    a.e("s_and_b32 s27, s23, 7")
    a.e("s_lshl_b32 s27, s27, 14")
    a.e("s_add_u32 s26, s26, s27")
    a.e("s_lshl_b32 s27, s24, 6")
    a.e("s_add_u32 s26, s26, s27")
    a.e(f"s_mov_b32 s10, {31*131072}")
    a.e("s_mov_b32 s11, 0x00020000")
    if small:
        small_select(a)
        a.e("s_add_u32 s37, s26, s5")
        a.e("s_add_u32 s38, s37, s5")
        a.e("s_add_u32 s39, s38, s5")
    else:
        for p in range(1, 4):
            a.e(f"s_add_u32 s{36+p}, s26, {2*131072*p}")
    a.e("s_waitcnt lgkmcnt(0)")
    if small:
        small_ptr(a)
    R = 16
    for e2 in range(4):
        for p in range(4):
            for e in (2 * e2, 2 * e2 + 1):
                a.vmem(f"buffer_load_dword v{R+p*8+e}, v2, s[8:11], s{36+p if p else 26} offen offset:{e*512}", ("L", e2))
    if small:
        a.e("s_cmp_lt_u32 s3, 12")
        a.e(f"s_cbranch_scc1 {small}")
    if mid:
        mid()
    add64(a, 12, 30, wsoff)
    a.e(f"s_mov_b32 s14, {8*16*CHUNKB}")
    a.e("s_mov_b32 s15, 0x00020000")
    a.e("v_lshlrev_b32 v4, 4, v1")
    a.e("s_lshl_b32 s27, s24, 4")
    a.e("s_add_u32 s27, s27, s23")
    a.e(f"s_mul_i32 s27, s27, {CHUNKB}")
    a.e("s_lshl_b32 s28, s22, 11")
    a.e("s_add_u32 s27, s27, s28")
    a.e("s_lshl_b32 s28, s21, 10")
    a.e("s_add_u32 s27, s27, s28")
    a.e("s_cmp_eq_u32 s21, 0")
    a.e("s_mov_b32 s32, 0x07060302")
    a.e("s_cselect_b32 s32, 0x05040100, s32")
    a.e("s_mov_b32 s33, 0x03020c0c")
    a.e("s_cselect_b32 s33, 0x01000c0c, s33")
    a.e(f"s_mov_b32 s35, {f32hex(1.0/24)}")
    a.e(f"s_mov_b32 s36, {f32hex(1.0/72)}")
    if barrier:
        barrier()
    OUT = 48
    T = 76
    scale = ("0.5", "0.5", "s35", "s35", "s36")
    for e2 in range(4):
        a.wait(vm=(("L", e2),))
        if extra and e2 == int(os.environ.get("XT", "3")):
            extra()
        for p, seq in ((0, 6), (3, 0)):
            a.e(f"v_perm_b32 v{OUT+seq*4+e2}, v{R+p*8+2*e2+1}, v{R+p*8+2*e2}, s32")
        res, lists = [], []
        for e in range(2):
            cf = [T + e * 8 + i for i in range(4)]
            ops = [f"v_perm_b32 v{cf[i]}, v{cf[i]}, v{R + (3 - i) * 8 + 2 * e2 + e}, s33" for i in range(4)]
            o, rr = eval_ops(cf, [T + e * 8 + 4 + i for i in range(4)])
            ops += o + [f"v_mul_f32 v{r}, {sc}, v{r}" for r, sc in zip(rr, scale)]
            res.append(rr)
            lists.append(ops)
        for x, y in zip(*lists):
            a.e(x)
            a.e(y)
        for i in range(5):
            a.e(f"v_cvt_pk_bf16_f32 v{OUT+(1+i)*4+e2}, v{res[0][i]}, v{res[1][i]}")
    for seq in (6, 0, 1, 2, 3, 4, 5):
        a.e(f"s_add_u32 s28, s27, {seq*8192}")
        a.e(f"buffer_store_dwordx4 {vr(OUT+seq*4)}, v4, s[12:15], s28 offen{NTW}")


def prep_kernel(name):
    a = Asm()
    NWG = 268
    a.label(name)
    a.e(f"s_cmp_ge_u32 s2, {NWG}")
    a.e(f"s_cbranch_scc1 L_{name}_done")
    CW = os.environ.get("CW", "late")
    CWN = int(os.environ.get("CWN", "44"))

    def code_warm():
        a.e(f"s_cmp_ge_u32 s3, {CWN}")
        a.e(f"s_cbranch_scc1 L_{name}_ncw")
        a.e("s_getpc_b64 s[62:63]")
        a.label(f"L_{name}_pc")
        a.e("s_and_b32 s64, s3, 8")
        a.e("s_lshl_b32 s64, s64, 12")
        a.e("v_lshlrev_b32 v120, 7, v0")
        a.e("v_add_u32 v120, s64, v120")
        a.e(f"v_min_u32 v120, 0x7fc0de00, v120")
        a.e("v_mov_b32 v121, s63")
        a.e("v_add_co_u32 v120, vcc, s62, v120")
        a.e("v_addc_co_u32 v121, vcc, 0, v121, vcc")
        a.e("global_load_dword v122, v[120:121], off")
        a.label(f"L_{name}_ncw")
        return 0

    def x_warm():
        XW = int(os.environ.get("XW", "0"))
        if XW:
            a.e("s_and_b32 s64, s3, 7")
            a.e("s_lshr_b32 s65, s2, 3")
            a.e("s_lshr_b32 s66, s65, 3")
            a.e("s_lshl_b32 s64, s64, 2")
            a.e("s_add_u32 s64, s64, s66")
            a.e("s_mul_i32 s64, s64, 512000")
            a.e("s_and_b32 s65, s65, 7")
            a.e("s_lshl_b32 s65, s65, 2")
            a.e("s_add_u32 s65, s65, s40")
            a.e("s_lshl_b32 s65, s65, 14")
            a.e("s_add_u32 s64, s64, s65")
            a.e("s_sub_u32 s64, s64, 7680")
            a.e("v_lshrrev_b32 v120, 2, v1")
            a.e("v_lshlrev_b32 v120, 10, v120")
            a.e(f"v_and_b32 v121, {XW - 1}, v1")
            a.e("v_lshl_add_u32 v120, v121, 7, v120")
            a.e("v_add_u32 v120, s64, v120")
            a.e("s_mov_b32 s68, s44")
            a.e("s_mov_b32 s69, s45")
            a.e(f"s_mov_b32 s70, {2*16000*512}")
            a.e("s_mov_b32 s71, 0x00020000")
            a.vmem("buffer_load_dword v123, v120, s[68:71], 0 offen", "XW")
    a.e("s_mov_b32 s3, s2")
    if CW == "early":
        code_warm()
    a.e("s_load_dwordx16 s[44:59], s[0:1], 0")
    a.e("s_sub_u32 s2, s2, 12")
    if "stamp" in EXP:
        a.e("s_memrealtime s[60:61]")
    a.e("v_readfirstlane_b32 s40, v0")
    a.e("s_lshr_b32 s40, s40, 6")
    a.e("s_lshl_b32 s21, s2, 2")
    a.e("s_add_u32 s20, s40, s21")
    a.e("v_and_b32 v1, 63, v0")
    wprep(a, 8, WS_W1P, False, small=f"L_{name}_small", extra=code_warm if CW == "late" else None, mid=x_warm)
    if "stamp" in EXP:
        a.e("s_waitcnt vmcnt(0)")
        a.e("s_memrealtime s[62:63]")
        a.e("s_lshl_b32 s36, s2, 7")
        a.e(f"s_add_u32 s36, s36, {WS_STAMP + 3*0x10000}")
        add64(a, 40, 30, "s36")
        a.e("s_mov_b32 s42, 128")
        a.e("s_mov_b32 s43, 0x00020000")
        a.e("s_waitcnt lgkmcnt(0)")
        a.e("v_mov_b32 v8, 0")
        a.e("v_mov_b32 v0, 1")
        a.e("buffer_store_dword v0, v8, s[40:43], 0 offen")
        for i in range(4):
            a.e(f"v_mov_b32 v0, s{60+i}")
            a.e(f"buffer_store_dword v0, v8, s[40:43], 0 offen offset:{80+4*i}")
    a.label(f"L_{name}_done")
    a.e("s_endpgm")
    small_tail(a, name)
    return a.L, 4096, 128


def conv_kernel(name, cfg):
    TIN, TOUT = cfg["tin"], cfg["tout"]
    N = cfg["nchunk"]
    KSPLIT = cfg["ksplit"]
    NWG = 256
    STAMP = "stamp" in EXP
    sX, sW, sO = 8, 12, 16
    sWv, sT0, sCnt, sBo, sXo, sMask = 20, 21, 22, 23, 24, 25
    sBo2 = 26
    sK, sCb, sH = 28, 29, 32
    sSt = 60
    vL = 127
    vU, vS_, vI, vKG = 8, 9, 10, 11

    a = Asm()
    a.label(name)
    a.e(f"s_cmp_ge_u32 s2, {NWG}")
    a.e(f"s_cbranch_scc1 L_{name}_done")

    def stamp(i, fence=True):
        if STAMP:
            a.e(f"s_memtime s[{sSt+2*i}:{sSt+2*i+1}]")
            if fence:
                a.e("s_waitcnt lgkmcnt(0)")
                a.lg = []

    def rstamp(i):
        if STAMP:
            a.e(f"s_memrealtime s[{sSt+2*i}:{sSt+2*i+1}]")
            a.e("s_waitcnt lgkmcnt(0)")
            a.lg = []
    if STAMP:
        for i in range(28):
            a.e(f"s_mov_b32 s{sSt+i}, 0")
        a.e(f"s_memrealtime s[{sSt+20}:{sSt+21}]")
    stamp(0, False)
    a.e(f"s_load_dwordx2 s[4:5], s[0:1], {cfg['in_arg']}")
    a.e("s_load_dwordx2 s[30:31], s[0:1], 72")
    a.e(f"v_readfirstlane_b32 s{sWv}, v0")
    a.e(f"s_lshr_b32 s{sWv}, s{sWv}, 6")
    if os.environ.get("WX", "8") != "0":
        a.e(f"s_xor_b32 s{sWv}, s{sWv}, {os.environ.get('WX', '8')}")
    XL = int(os.environ.get("XL", "3"))
    a.e(f"s_and_b32 s36, s2, {(8 >> XL) - 1}")
    a.e(f"s_lshl_b32 s36, s36, {XL}")
    a.e(f"s_bfe_u32 s37, s2, {(XL << 16) | 3}")
    a.e(f"s_or_b32 s{sCb}, s36, s37")
    a.e(f"s_bfe_u32 s36, s2, {(XL << 16) | (3 - XL)}")
    a.e(f"s_lshl_b32 s36, s36, {5 - XL}")
    a.e(f"s_lshr_b32 s37, s2, {3 + XL}")
    a.e("s_or_b32 s36, s36, s37")
    if KSPLIT:
        if LOCAL:
            a.e("s_and_b32 s33, s36, 1")
            a.e("s_bfe_u32 s34, s36, 0x30001")
            a.e("s_lshr_b32 s35, s36, 4")
        else:
            a.e("s_lshr_b32 s33, s36, 4")
            a.e("s_and_b32 s34, s36, 7")
            a.e("s_bfe_u32 s35, s36, 0x10003")
    else:
        a.e("s_mov_b32 s33, 0")
        a.e("s_and_b32 s34, s36, 15")
        a.e("s_lshr_b32 s35, s36, 4")
    a.e(f"s_mul_i32 s{sT0}, s34, 500")
    a.e(f"s_and_b32 s{sH}, s{sWv}, 3")
    a.e(f"v_and_b32 v{vL}, 63, v0")
    a.e(f"v_lshrrev_b32 v5, 2, v{vL}")
    a.e(f"v_and_b32 v6, 3, v{vL}")
    a.e(f"s_and_b32 s42, s{sWv}, 7")
    if not KSPLIT:
        a.e("v_lshlrev_b32 v7, 15, v5")
        a.e("v_lshl_add_u32 v7, v6, 4, v7")
        a.e(f"s_lshl_b32 s41, s{sT0}, 10")
        a.e("s_sub_u32 s41, s41, 7680")
        a.e("s_lshl_b32 s37, s42, 12")
        a.e("s_add_u32 s37, s37, s41")
        a.e("v_add_u32 v7, s37, v7")
        a.e(f"s_mul_i32 s36, s35, {TIN*512}")
        a.e(f"s_mov_b32 s{sX+2}, {TIN*512}")
    else:
        a.e(f"s_lshr_b32 s41, s{sT0}, 2")
        a.e("s_sub_u32 s41, s41, 1")
        a.e("s_add_u32 s37, s41, s42")
        a.e("v_lshl_add_u32 v7, v5, 3, s37")
        a.e(f"s_mul_i32 s36, s35, {32*PLH}")
        a.e(f"s_add_u32 s36, s36, {cfg['in_off']}")
        a.e(f"s_mov_b32 s{sX+2}, {32*PLH}")

    def haddr(dst, vG, vlane, p, t):
        a.e(f"s_add_u32 s37, s33, {2*p - 7 & 0xffffffff}")
        a.e(f"v_lshl_add_u32 v{t}, v{vG}, 3, s37")
        a.e(f"v_cmp_gt_u32 vcc, {TIN}, v{t}")
        a.e(f"s_mul_i32 s37, s33, {PLH}")
        a.e(f"s_add_u32 s37, s37, {(2*p & 3)*PLH + (p >> 1)*64}")
        a.e(f"v_lshl_add_u32 v{dst}, v{vG}, 7, s37")
        a.e(f"v_add_u32 v{dst}, v{dst}, v{vlane}")
        a.e(f"v_mov_b32 v{t}, {OOB}")
        a.e(f"v_cndmask_b32 v{dst}, v{t}, v{dst}, vcc")
    a.e(f"s_mov_b32 s{sX+3}, 0x00020000")
    a.e(f"s_mov_b32 s{sMask}, 0xffff0000")
    a.e("s_mov_b32 s47, s36")

    def kwait():
        a.e("s_waitcnt lgkmcnt(0)")
        stamp(1)
        add64(a, sX, 4, "s47")
    OB = 512

    def wsrd():
        a.e(f"s_lshl_b32 s36, s{sCb}, 4")
        a.e("s_lshl_b32 s37, s33, 3")
        a.e("s_add_u32 s36, s36, s37")
        a.e(f"s_mul_i32 s36, s36, {CHUNKB}")
        a.e(f"s_add_u32 s36, s36, {cfg['w_off']}")
        add64(a, sW, 30, "s36")
        a.e(f"s_mov_b32 s{sW+2}, {N*CHUNKB}")
        a.e(f"s_mov_b32 s{sW+3}, 0x00020000")

    def lds_throttle(need=1):
        if len(a.lg) + need > 15:
            a.e("s_waitcnt lgkmcnt(8)")
            a.lg = a.lg[-8:]

    def mf(acc, b, av):
        if "nomfma" not in EXP:
            a.e(f"v_mfma_f32_16x16x32_bf16 {vr(acc)}, {vr(b)}, {vr(av)}, {vr(acc)}")

    def steady(gen, per, strict=True):
        st = []
        for it in range(3):
            st.append(len(a.L))
            for pos in range(per):
                gen(per * it + pos, pos)
        st.append(len(a.L))
        bodies = [a.L[st[i]:st[i + 1]] for i in range(3)]
        if strict:
            assert bodies[1] == bodies[2], "loop not steady"
            assert bodies[0] == bodies[1], "loop entry not steady"
        del a.L[st[0]:]
        return bodies[1]

    a.e(f"s_cmp_ge_u32 s{sWv}, 8")
    a.e(f"s_cbranch_scc1 L_{name}_helper")

    ACC = 0
    vF, vA8, vD, vB = (120, 121), 122, (123, 124), 125
    vP = (116, 117, 118)
    vBZ = 119
    S, T, O = 96, 108, 64
    if not KSPLIT:
        a.e(f"s_add_u32 s37, s41, {128*4096}")
        a.e(f"v_lshl_add_u32 v{T}, v{vL}, 4, s37")
        for p in range(1, 3):
            a.e(f"v_add_u32 v{T+p}, {p*1024}, v{T}")
    else:
        a.e("s_add_u32 s37, s41, 128")
        a.e("v_mov_b32 v16, s37")
        a.e(f"v_mul_u32_u24 v17, {4*PLH}, v5")
        a.e("v_lshl_add_u32 v17, v6, 4, v17")
        for p in range(3):
            haddr(T + p, 16, 17, p, 18)
    kwait()
    wsrd()
    PLO = PLF if KSPLIT else PLH
    a.e(f"s_mul_i32 s36, s35, {32*PLO}")
    a.e(f"s_add_u32 s36, s36, {cfg['out_off']}")
    if KSPLIT:
        a.e(f"s_mul_i32 s37, s33, {WS_FPS}")
        a.e("s_add_u32 s36, s36, s37")
    add64(a, sO, 30, "s36")
    a.e(f"s_mov_b32 s{sO+2}, {32*PLO}")
    a.e(f"s_mov_b32 s{sO+3}, 0x00020000")
    a.e(f"v_and_b32 v{vI}, 15, v{vL}")
    a.e(f"v_lshrrev_b32 v{vKG}, 4, v{vL}")
    t = 16
    for d, sh in ((vU, 0), (vS_, 1)):
        a.e(f"v_add_u32 v{d}, {sh}, v{vI}")
        a.e(f"v_and_b32 v{t}, 4, v{d}")
        a.e(f"v_lshrrev_b32 v{t}, 1, v{t}")
        a.e(f"v_xor_b32 v{t}, v{vKG}, v{t}")
        a.e(f"v_lshlrev_b32 v{t}, 4, v{t}")
        a.e(f"v_lshl_add_u32 v{d}, v{d}, 6, v{t}")
    a.e(f"s_lshr_b32 s38, s{sH}, 1")
    a.e(f"s_and_b32 s39, s{sH}, 1")
    a.e("s_add_u32 s40, s38, 4")
    a.e("s_lshl_b32 s43, s39, 10")
    a.e(f"s_cmp_lt_u32 s{sWv}, 4")
    a.e(f"s_cselect_b32 s40, s{sWv}, s40")
    a.e("s_cselect_b32 s36, 0, s43")
    a.e("s_lshl_b32 s37, s40, 13")
    a.e("s_add_u32 s37, s37, s36")
    a.e(f"v_lshl_add_u32 v{vB}, v{vL}, 4, s37")
    a.e(f"s_mul_i32 s37, s40, {SEQB}")
    a.e(f"v_add_u32 v{vF[0]}, s37, v{vU}")
    a.e(f"v_add_u32 v{vF[1]}, s37, v{vS_}")
    a.e("s_lshl_b32 s37, s40, 10")
    a.e(f"s_add_u32 s37, s37, {SPB}")
    a.e(f"v_lshl_add_u32 v{t}, v{vKG}, 4, s37")
    a.e(f"v_cmp_eq_u32 vcc, 15, v{vI}")
    a.e(f"v_mov_b32 v{t+1}, {BB}")
    a.e(f"v_mov_b32 v{t+2}, {-BB & 0xffffffff}")
    a.e(f"v_mov_b32 v{t+3}, 64")
    a.e(f"v_cndmask_b32 v{vA8}, v{vF[1]}, v{t}, vcc")
    a.e(f"v_cndmask_b32 v{vD[0]}, v{t+1}, v{t+3}, vcc")
    a.e(f"v_cndmask_b32 v{vD[1]}, v{t+2}, v{t+3}, vcc")
    a.e(f"v_lshl_add_u32 v126, v{vL}, 4, s37")
    tabs = {44: (1.0, 1.0, 1.0, 1.0, 1.0, 16.0), 45: (0.0, 1.0, -1.0, 2.0, -2.0, 8.0),
            46: (0.0, 1.0, 1.0, 4.0, 4.0, 4.0)}
    for sg, tab in tabs.items():
        a.e(f"s_mov_b32 s{sg}, {f32hex(tab[0])}")
    for q in range(1, 6):
        a.e(f"s_cmp_eq_u32 s40, {q}")
        for sg, tab in tabs.items():
            if tab[q] != tab[0]:
                a.e(f"s_cselect_b32 s{sg}, {f32hex(tab[q])}, s{sg}")

    def special_rows():
        a.wait(vm=("SP",))
        for d in range(4):
            for p in range(3):
                a.e(f"v_lshlrev_b32 v{T+p}, 16, v{S+4*p+d}")
                a.e(f"v_and_b32 v{T+3+p}, s{sMask}, v{S+4*p+d}")
            for h in range(2):
                a.e(f"v_mul_f32 v{T+6+h}, s44, v{T+3*h}")
            for h in range(2):
                a.e(f"v_fmac_f32 v{T+6+h}, s45, v{T+3*h+1}")
            for h in range(2):
                a.e(f"v_fmac_f32 v{T+6+h}, s46, v{T+3*h+2}")
            a.e(f"v_cvt_pk_bf16_f32 v{S+d}, v{T+6}, v{T+7}")
        a.e(f"ds_write_b128 v126, {vr(S)}")

    def own_read(k, g, reg, tag, last=False):
        if g == 8:
            base, off = vA8, 0
        else:
            base, off = vF[g >> 3], (k & 1) * BB + (g & 7) * FB
        a.lds(f"ds_read_b128 {vr(reg)}, v{base} offset:{off}", tag)
        if g == 8 and not last:
            a.e(f"v_add_u32 v{vA8}, v{vD[k & 1]}, v{vA8}")

    UNIT = [(s * SEQB, s * SEQB + BB) for s in range(4)] + [(4 * SEQB, TOPB), (5 * SEQB, TOPB + 8192),
            (6 * SEQB, TOPB + 16384), (TOPB + 24576, TOPB + 32768)]
    EA = 96
    ES = []
    R0 = (120, 121, 64)
    vO, vBW = 122, 127
    BND = SPB
    t0, t1, t2, t3 = 108, 109, 110, 111
    ES.append(f"v_and_b32 v{t0}, 15, v{vL}")
    ES.append(f"v_lshrrev_b32 v{t1}, 4, v{vL}")
    ES.append(f"v_lshrrev_b32 v{t2}, 3, v{t0}")
    ES.append(f"s_lshl_b32 s36, s{sWv}, 1")
    ES.append(f"v_add_u32 v{t2}, s36, v{t2}")
    ES.append(f"v_xor_b32 v{t3}, v{t2}, v{t0}")
    ES.append(f"v_and_b32 v{t3}, 7, v{t3}")
    ES.append(f"v_lshlrev_b32 v{t3}, 4, v{t3}")
    ES.append(f"v_lshl_add_u32 v{t3}, v{t2}, 7, v{t3}")
    ES.append(f"v_lshl_add_u32 v{R0[0]}, v{t1}, 11, v{t3}")
    ES.append(f"v_add_u32 v{R0[1]}, 65536, v{R0[0]}")
    ES.append(f"v_add_u32 v{R0[2]}, 131072, v{R0[0]}")
    ES.append(f"s_lshl_b32 s36, s{sWv}, 9")
    ES.append(f"s_add_u32 s36, s36, {BND}")
    ES.append(f"v_lshl_add_u32 v{vBW}, v{t1}, 7, s36")
    ES.append(f"s_lshl_b32 s36, s{sWv}, 4")
    ES.append(f"v_add_u32 v{t0}, s36, v{t0}")
    ES.append(f"v_lshlrev_b32 v{t2}, 6, v{t0}")
    ES.append(f"v_lshl_add_u32 v{t2}, v{t1}, 4, v{t2}")
    ES.append(f"s_mul_i32 s36, s{sCb}, {4*PLO}")
    ES.append(f"s_lshl_b32 s37, s{sT0}, 4")
    ES.append("s_add_u32 s36, s36, s37")
    ES.append(f"v_add_u32 v{t2}, s36, v{t2}")
    ES.append(f"v_mov_b32 v{t3}, {OOB}")
    ES.append(f"v_cmp_gt_u32 vcc, 125, v{t0}")
    k0 = -2.0 * 1.4426950408889634 * 0.7978845608028654
    consts = [-1.0 / 3, 0.25, -5.0, -32.0 / 9, -8.0 / 9, -2.0 / 9, -1.0 / 18, 17.0 / 9, -2.0 / 3, 0.4, -1.0 / 15, -0.2,
              k0 * 0.044715, 1.0]
    KS = [4, 6, 8, 10, 12, 14, 22, 24, 26, 32, 34, 38, 40, 42]
    for sg, cv in zip(KS, consts):
        ES.append(f"s_mov_b32 s{sg}, {f32hex(cv)}")
        ES.append(f"s_mov_b32 s{sg+1}, s{sg}")

    def ex_addr(sbase):
        a.e(f"v_and_b32 v{EA}, 15, v{vL}")
        a.e(f"v_and_b32 v{EA+1}, 7, v{vL}")
        a.e(f"v_lshlrev_b32 v{EA+1}, 4, v{EA+1}")
        a.e(f"v_lshl_add_u32 v{EA}, v{EA}, 7, v{EA+1}")
        a.e(f"v_lshrrev_b32 v{EA+1}, 4, v{vL}")
        a.e(f"v_lshl_add_u32 v{EA}, v{EA+1}, 11, v{EA}")
        a.e(f"v_add_u32 v{EA}, s{sbase}, v{EA}")
        for f in range(1, 8):
            a.e(f"v_xor_b32 v{EA+f}, {f << 4}, v{EA}")

    def mwave(role):
        if role == 1:
            BR, AR, NR = 64, 96, 6
            steps = [("X", g) for g in range(11)]
        else:
            BR, AR, NR = 64, 88, 7
            steps = []
            for g in range(11):
                steps.append(("Y", g))
                if 1 <= g <= 9:
                    steps.append(("Z", g - 1))
        NS = len(steps)

        def bload(k, kind, q):
            if "nob" in EXP and k > 0:
                return
            so = sBo2 if q >> 1 else sBo
            if kind == "X":
                for c in range(2):
                    a.vmem(f"buffer_load_dwordx4 {vr(BR+(q*2+c)*4)}, v{vB}, {sr(sW)}, s{so} offen "
                           f"offset:{(q&1)*2048 + c*1024}", ("B", k, kind, q))
            elif kind == "Y":
                a.vmem(f"buffer_load_dwordx4 {vr(BR+q*4)}, v{vB}, {sr(sW)}, s{so} offen offset:{(q&1)*2048}",
                       ("B", k, kind, q))
            else:
                a.vmem(f"buffer_load_dwordx4 {vr(BR+16+q*4)}, v{vBZ}, {sr(sW)}, s{sBo} offen offset:{q*2048}",
                       ("B", k, kind, q))

        def rd(k, n, last=False):
            kind, g = steps[n]
            reg = AR + 4 * (n % NR)
            if kind == "Z":
                base, off = (vP[0], g * FB6) if g < 6 else (vP[1], (g - 6) * FB6) if g < 8 else (vP[2], 0)
                a.lds(f"ds_read_b128 {vr(reg)}, v{base} offset:{(k & 1)*BB6 + off}", ("A", k, n))
            else:
                own_read(k, g, reg, ("A", k, n), last)

        for i in range(64):
            a.e(f"v_mov_b32 v{ACC+i}, 0")
        if "b0" in EXP:
            a.e("s_barrier")
        for p in range(3):
            a.vmem(f"buffer_load_dwordx4 {vr(S+4*p)}, v{T+p}, {sr(sX)}, 0 offen", "SP")
        a.e(f"s_mov_b32 s{sBo}, 0")
        a.e(f"s_mov_b32 s{sBo2}, 4096")
        for st in steps:
            if st and st[1] >= 7:
                bload(0, st[0], st[1] - 7)
        a.e(f"s_mov_b32 s{sBo}, {CHUNKB}")
        a.e(f"s_mov_b32 s{sBo2}, {CHUNKB + 4096}")
        SPL = os.environ.get("SPL", "0") == "1"
        if not SPL:
            special_rows()
        if role == 2:
            a.e(f"v_and_b32 v{T+3}, 15, v{vL}")
            a.e(f"v_lshlrev_b32 v{T+3}, 2, v{T+3}")
            a.e(f"v_add_u32 v{T+3}, {6*SEQB + 1024}, v{T+3}")
            a.e(f"ds_write_b32 v{T+3}, v{ACC}")
            a.e(f"ds_write_b32 v{T+3}, v{ACC} offset:{BB6}")
        a.e("s_waitcnt lgkmcnt(0)")
        a.e("s_barrier")
        if SPL:
            a.e("s_setprio 3")
            special_rows()
            a.e("s_waitcnt lgkmcnt(0)")
        stamp(7)
        rstamp(12)
        a.e(f"s_mov_b32 s{sCnt}, {N//2}")
        a.e(f"s_setprio {os.environ.get(f'PM{role}', '2')}")

        CO = int(os.environ.get(f"CO{role}", "0" if role == 1 else "5"))
        assert CO < NR
        FM = int("fmaj" in EXP)
        vE = (vD[0], vD[1])

        def period(k, _, last=False):
            if "mst" in EXP and _ == 0:
                stamp(2)
            if "bst" in EXP and _ == 1 and not last:
                a.e("s_memtime s[90:91]")
                a.e("s_waitcnt vmcnt(0) lgkmcnt(0)")
                a.e("s_memtime s[92:93]")
                a.e("s_waitcnt lgkmcnt(0)")
                a.e("s_sub_u32 s92, s92, s90")
                a.e(f"s_add_u32 s{sSt+4}, s{sSt+4}, s92")
                a.e(f"s_max_u32 s{sSt+6}, s{sSt+6}, s92")
                a.vm = []
            for n in range(NR):
                rd(k, n, last)
            pend = []
            fill = []

            def flush(n, cnt):
                while pend and pend[0][0] <= n and cnt > 0:
                    _, h, f = pend.pop(0)
                    t = vE[(h + f) & 1]
                    a.e(f"v_xor_b32 v{t}, {f << 4}, v{vX0[h]}")
                    lds_throttle()
                    a.lds(f"ds_write_b128 v{t}, {vr(ACC + h*32 + f*4)}", "E")
                    cnt -= 1
                    for _i in range(min(12, len(fill))):
                        a.e(fill.pop(0))

            for n, st in enumerate(steps):
                if CO and n == NS - CO and not last:
                    a.wait(lg_all=True)
                    if "mst" in EXP and _ == 0:
                        stamp(3)
                    a.e("s_barrier")
                    if "mst" in EXP and _ == 0:
                        stamp(4)
                kind, g = st
                nt = 2 if kind == "Z" else 4
                qs = [q for q in range(nt) if 0 <= g - q <= 7]
                if FM and kind == "X":
                    if g >= 3:
                        f = g - 3
                        for c in range(2):
                            for q in range(4):
                                a.wait(lg=(("A", k, f + q),), vm=(("B", k, kind, q),))
                                mf(ACC + 32 * c + f * 4, BR + q * 8 + 4 * c, AR + 4 * ((f + q) % NR))
                        if f + NR < NS:
                            rd(k, f + NR, last)
                        if g == 10 and not last:
                            for q in range(4):
                                bload(k + 1, kind, q)
                    qs = []
                else:
                    a.wait(lg=(("A", k, n),), vm=tuple(("B", k, kind, q) for q in qs))
                reg = AR + 4 * (n % NR)
                for q in qs:
                    f = g - q
                    if kind == "X":
                        mf(ACC + f * 4, BR + q * 8, reg)
                        mf(ACC + 32 + f * 4, BR + q * 8 + 4, reg)
                    elif kind == "Y":
                        mf(ACC + f * 4, BR + q * 4, reg)
                    else:
                        mf(ACC + 32 + f * 4, BR + 16 + q * 4, reg)
                if g >= 7 and not last and not (FM and kind == "X"):
                    bload(k + 1, kind, g - 7)
                if n + NR < NS and not (FM and kind == "X"):
                    rd(k, n + NR, last)
                if last:
                    flush(n, int(os.environ.get('FL', '2')))
                    f = g - (nt - 1)
                    if f >= 0:
                        if kind == "X":
                            pend.append((n + 1, 0, f))
                            pend.append((max(n + 1, NS - NR + 1 + 3 * FM), 1, f))
                            pend.sort()
                        else:
                            pend.append((n + 3, 0 if kind == "Y" else 1, f))
                    if kind == "X" and n == NS - NR + 3 * FM:
                        a.wait(lg=(("A", k, NS - 1),))
            if last:
                fill += ES
                for _i in range(8):
                    a.e(fill.pop(0))
                flush(1000, 1000)
                for op in fill:
                    a.e(op)
                return
            a.e(f"s_add_u32 s{sBo}, s{sBo}, {CHUNKB}")
            a.e(f"s_add_u32 s{sBo2}, s{sBo2}, {CHUNKB}")
            assert not a.lg
            if "mst" in EXP and _ == 0:
                stamp(5)
            if not CO:
                a.e("s_barrier")
            if "mst" in EXP and _ == 0:
                stamp(6)

        def period2(k, pos):
            if pos == 1:
                a.e(f"s_sub_u32 s{sCnt}, s{sCnt}, 1")
                a.e(f"s_cmp_eq_u32 s{sCnt}, 0")
                a.e(f"s_cbranch_scc1 L_{name}_mlast{role}")
                state[0] = (list(a.vm), k)
            period(k, pos)

        state = [None]
        body = steady(period2, 2, "nob" not in EXP)
        if "nob" in EXP:
            a.e("s_waitcnt vmcnt(0)")
        a.label(f"L_{name}_mloop{role}")
        a.L.extend(body)
        a.e(f"s_branch L_{name}_mloop{role}")
        a.label(f"L_{name}_mlast{role}")
        a.vm, a.lg = state[0][0], []
        vX0 = (vB, 126)
        a.e(f"v_and_b32 v{vX0[0]}, 15, v{vL}")
        a.e(f"v_and_b32 v{vX0[1]}, 7, v{vL}")
        a.e(f"v_lshlrev_b32 v{vX0[1]}, 4, v{vX0[1]}")
        a.e(f"v_lshl_add_u32 v{vX0[0]}, v{vX0[0]}, 7, v{vX0[1]}")
        a.e(f"v_lshrrev_b32 v{vX0[1]}, 4, v{vL}")
        a.e(f"v_lshl_add_u32 v{vX0[0]}, v{vX0[1]}, 11, v{vX0[0]}")
        if role == 1:
            a.e(f"s_lshl_b32 s36, s{sWv}, 14")
            a.e("s_add_u32 s37, s36, 8192")
        else:
            for sg, tab in ((36, [UNIT[4 + (h >> 1)][h & 1] for h in range(4)]),
                            (37, [UNIT[6 + (h >> 1)][h & 1] for h in range(4)])):
                a.e(f"s_mov_b32 s{sg}, {tab[0]}")
                for h in range(1, 4):
                    a.e(f"s_cmp_eq_u32 s{sH}, {h}")
                    a.e(f"s_cselect_b32 s{sg}, {tab[h]}, s{sg}")
        a.e(f"v_add_u32 v{vX0[1]}, s37, v{vX0[0]}")
        a.e(f"v_add_u32 v{vX0[0]}, s36, v{vX0[0]}")
        if os.environ.get(f"PL{role}"):
            a.e(f"s_setprio {os.environ.get(f'PL{role}')}")
        period(state[0][1], 1, True)
        stamp(8, False)
        rstamp(13)
        a.e("s_setprio 0")
        a.vm, a.lg = [], []

    a.e(f"s_cmp_ge_u32 s{sWv}, 4")
    a.e(f"s_cbranch_scc1 L_{name}_m2")
    vm0 = list(a.vm)
    mwave(1)
    a.e(f"s_branch L_{name}_epi")
    a.label(f"L_{name}_m2")
    a.vm, a.lg = list(vm0), []
    a.e(f"s_mul_i32 s37, s38, {2*FB6}")
    a.e(f"s_add_u32 s37, s37, {6*SEQB}")
    a.e(f"v_add_u32 v{vP[0]}, s37, v{vU}")
    a.e(f"v_add_u32 v{vP[2]}, s37, v{vS_}")
    a.e(f"v_add_u32 v{vP[1]}, {6*SEQB + 6*FB6}, v{vU}")
    a.e("s_cmp_eq_u32 s38, 0")
    a.e(f"s_cbranch_scc1 L_{name}_hh0")
    a.e(f"v_add_u32 v{vP[1]}, {6*SEQB}, v{vS_}")
    a.label(f"L_{name}_hh0")
    a.e("s_lshl_b32 s37, s38, 12")
    a.e("s_add_u32 s37, s37, s43")
    a.e(f"s_add_u32 s37, s37, {6*8192}")
    a.e(f"v_lshl_add_u32 v{vBZ}, v{vL}, 4, s37")
    mwave(2)
    a.e(f"s_branch L_{name}_epi")

    a.label(f"L_{name}_helper")
    a.vm, a.lg = [], []
    a.e("s_setprio 3")
    PB = (0, 32)
    XO = 64
    TMP = 76
    vX = 92
    vW = (96, 97, 98)

    def praw(b, half, p):
        return PB[b] + half * 16 + p * 4

    sXo2 = 27

    def xload(pair, p):
        if KSPLIT:
            half, q = p >> 1, p & 1
            for r in (q, q + 2):
                a.vmem(f"buffer_load_dwordx4 {vr(praw(pair & 1, half, r))}, v{vX+r}, {sr(sX)}, "
                       f"s{sXo2 if half else sXo} offen", ("X", pair))
            return
        for half in range(2):
            a.vmem(f"buffer_load_dwordx4 {vr(praw(pair & 1, half, p))}, v{vX+p}, {sr(sX)}, "
                   f"s{sXo} offen offset:{half*64}", ("X", pair))
        a.e(f"v_add_u32 v{vX+p}, 128, v{vX+p}")

    def uregs(chunk):
        return [praw((chunk >> 1) & 1, chunk & 1, p) for p in range(4)]

    def wr(chunk, i):
        if "nowr" in EXP:
            return
        u = uregs(chunk)
        reg, seq = [(XO, 3), (XO + 4, 4), (XO + 8, 5), (u[0], 0), (u[1], 1), (u[2], 2), (u[3], 6)][i]
        lds_throttle()
        if seq == 6:
            a.lds(f"ds_write_b128 v{vW[2]}, {vr(reg)} offset:{(chunk & 1)*BB6}", "W")
        else:
            a.lds(f"ds_write_b128 v{vW[seq >> 2]}, {vr(reg)} offset:{(seq & 3)*SEQB + (chunk & 1)*BB}", "W")

    def tr_ops(chunk):
        u = uregs(chunk)
        o = [u[1], u[2], XO, XO + 4, XO + 8]
        ops = []
        for d in range(4):
            lo = [TMP + p for p in range(4)]
            hi = [TMP + 8 + p for p in range(4)]
            for p in range(4):
                ops.append(f"v_lshlrev_b32 v{lo[p]}, 16, v{u[p]+d}")
                ops.append(f"v_and_b32 v{hi[p]}, s{sMask}, v{u[p]+d}")
            o1, r1 = eval_ops(lo, [TMP + 4 + i for i in range(4)])
            o2, r2 = eval_ops(hi, [TMP + 12 + i for i in range(4)])
            for x, y in zip(o1, o2):
                ops += [x, y]
            for i in range(5):
                ops.append(f"v_cvt_pk_bf16_f32 v{o[i]+d}, v{r1[i]}, v{r2[i]}")
        if "notr" in EXP:
            ops = ["s_nop 0"] * 8
        return ops

    if KSPLIT:
        a.e("v_lshlrev_b32 v8, 4, v6")
    for p in range(4):
        if KSPLIT:
            haddr(vX + p, 7, 8, p, 9)
        else:
            a.e(f"v_add_u32 v{vX+p}, {p*1024}, v7")
    a.e(f"v_and_b32 v{TMP}, 4, v5")
    a.e(f"v_lshrrev_b32 v{TMP}, 1, v{TMP}")
    a.e(f"v_xor_b32 v{TMP}, v6, v{TMP}")
    a.e(f"v_lshlrev_b32 v{TMP}, 4, v{TMP}")
    a.e(f"v_lshl_add_u32 v{TMP}, v5, 6, v{TMP}")
    a.e(f"s_mov_b32 s{sXo}, 0")
    a.e(f"s_mov_b32 s{sXo2}, {4*PLH}")
    kwait()
    stamp(2)
    P0 = os.environ.get("P0", "0")
    if P0 == "0" or KSPLIT:
        for p in range(4):
            xload(0, p)
            if p == 1 and P0 == "2":
                a.e("s_barrier")
    else:
        for half in range(2):
            for p in range(4):
                a.vmem(f"buffer_load_dwordx4 {vr(praw(0, half, p))}, v{vX+p}, {sr(sX)}, s{sXo} offen offset:{half*64}", ("X", 0))
            if half == 0 and P0 == "2":
                a.e("s_barrier")
        for p in range(4):
            a.e(f"v_add_u32 v{vX+p}, 128, v{vX+p}")
    if P0 != "2" and "b0" in EXP:
        a.e("s_barrier")
    a.e(f"s_mul_i32 s36, s42, {FB}")
    a.e(f"v_add_u32 v{vW[0]}, s36, v{TMP}")
    a.e(f"v_add_u32 v{vW[1]}, {4*SEQB}, v{vW[0]}")
    a.e(f"s_mul_i32 s36, s42, {FB6}")
    a.e(f"s_add_u32 s36, s36, {6*SEQB}")
    a.e(f"v_add_u32 v{vW[2]}, s36, v{TMP}")
    stamp(3)
    a.e(f"s_waitcnt vmcnt({0 if P0 == '0' else 4})")
    stamp(4)
    a.e(f"s_mov_b32 s{sK}, 0")
    a.e(f"s_mov_b32 s{sCnt}, {N//4}")
    a.e(f"s_cmp_ge_u32 s{sWv}, 12")
    a.e(f"s_cbranch_scc1 L_{name}_h2")

    def hwave(role):
        SH = 33 * int(os.environ.get(f"SH{role}", "0" if role == 1 else "4"))
        ahead = 2 if SH else 1
        a.vm, a.lg = [], []
        wr(0, 3)
        wr(0, 6)
        for op in tr_ops(0):
            a.e(op)
        for i in (0, 1, 2, 4, 5):
            wr(0, i)
        a.e("s_waitcnt vmcnt(0)")
        NF = int(os.environ.get("NF", "2"))
        if KSPLIT:
            a.e(f"s_mov_b32 s{sXo}, {8*PLH}")
            a.e(f"s_mov_b32 s{sXo2}, {12*PLH}")
        X1 = os.environ.get("X1", "1")
        if X1 == "0":
            for p in range(4 if SH else NF):
                xload(1, p)
        stamp(5)
        a.wait(lg_all=True)
        stamp(6)
        a.e("s_barrier")
        stamp(7)
        rstamp(12)
        if X1 == "1":
            for p in range(4 if SH else NF):
                xload(1, p)
        PA, PB_ = os.environ.get(f'PH{role}', '11' if role == 1 else '00')
        a.e(f"s_setprio {PA}")
        for op in tr_ops(1)[:SH]:
            a.e(op)
        VPF = int(os.environ.get("VPF", "0")) if role == 1 and not KSPLIT and XL == 3 else 0
        if VPF:
            a.e(f"s_lshl_b32 s36, s{sCb}, 6")
            a.e(f"s_lshl_b32 s37, s{sH}, 3")
            a.e("s_add_u32 s36, s36, s37")
            a.e("s_lshl_b32 s36, s36, 10")
            a.e("s_add_u32 s36, s36, s41")
            a.e(f"s_add_u32 s36, s36, {VPF*128}")
            a.e(f"v_and_b32 v100, 7, v{vL}")
            a.e("v_lshl_add_u32 v100, v100, 10, s36")

        def vpf(k):
            a.e(f"s_cmp_lt_u32 s{sK}, {N - 2*VPF}")
            a.e(f"s_cselect_b32 s36, 0, {OOB}")
            a.vmem(f"buffer_load_dword v99, v100, {sr(sX)}, s36 offen", "PF")
            a.e(f"v_add_u32 v100, {(128 - 32768) & 0xffffffff if k & 1 else 32768}, v100")
        XP = [float(x) for x in os.environ.get(f"XP{role}", "0.2,0.6,0.02,0.15" if SH else "0.3,0.7,0.1,0.5").split(",")]

        def period(k, pos, last=False):
            pair = (k >> 1) + 2 if SH else (k + 3) >> 1
            first = not (k & 1) if SH else (k & 1)
            if pos == 4 - ahead and not last:
                a.e(f"s_cmp_eq_u32 s{sCnt}, 1")
                a.e(f"s_cbranch_scc1 L_{name}_hlast{role}")
            if "hst" in EXP and pos == 1:
                stamp(2)
            V1 = tr_ops(k + 1)[SH:]
            V2 = [] if last else tr_ops(k + 2)[:SH]
            V = V1 + V2
            n = len(V)
            ev = {}

            def at(i, f):
                ev.setdefault(max(0, min(int(i), n)), []).append(f)

            def stores():
                if "hst" in EXP and pos == 1:
                    stamp(3)
                for i in range(7):
                    wr(k + 1, i)
                if "hst" in EXP and pos == 1:
                    stamp(4)
                if PA != PB_:
                    a.e(f"s_setprio {PB_}")
            if PA != PB_:
                a.e(f"s_setprio {PA}")
            if VPF and not last:
                at(float(os.environ.get("VPP", "1.0")) * n, lambda: vpf(k))
            at(len(V1), stores)
            if not last:
                if not KSPLIT:
                    a.e(f"s_cmp_lt_u32 s{sK}, {N - 2 - ahead}")
                    a.e(f"s_cselect_b32 s{sXo}, 0, {OOB}")
                elif first:
                    a.e(f"s_add_u32 s{sXo}, s{sXo}, {8*PLH}")
                    a.e(f"s_add_u32 s{sXo2}, s{sXo2}, {8*PLH}")
                at(len(V1) if SH else 0, lambda: a.wait(vm=(("X", (k + ahead) >> 1),)))
                if "nox" not in EXP:
                    for p in (range(NF) if first else range(NF, 4)):
                        w = len(V1) + XP[p] * SH if SH and first else XP[p] * n
                        at(w, lambda p=p: xload(pair, p))
            for i in range(n + 1):
                for f in ev.get(i, []):
                    f()
                if i < n:
                    a.e(V[i])
            if not last:
                a.e(f"s_add_u32 s{sK}, s{sK}, 1")
            if "hst" in EXP and pos == 1:
                stamp(5)
            a.e("s_waitcnt lgkmcnt(0)")
            a.lg = []
            a.e("s_barrier")
            if "hst" in EXP and pos == 1:
                stamp(6)

        body = steady(period, 4, "nox" not in EXP)
        a.label(f"L_{name}_hloop{role}")
        a.L.extend(body)
        a.e(f"s_sub_u32 s{sCnt}, s{sCnt}, 1")
        a.e(f"s_branch L_{name}_hloop{role}")
        a.label(f"L_{name}_hlast{role}")
        a.vm, a.lg = [], []

        def last_period():
            vm = a.vm
            a.vm, a.lg = [], []
            if SH:
                a.e(f"s_mov_b32 s{sMask}, 0xffff0000")
                period(2, 2, True)
            a.vm = vm
        if role == 1 or KSPLIT:
            last_period()
        else:
            assert SH
            a.e("s_waitcnt vmcnt(0)")
            a.e(f"s_mov_b32 s58, s{sWv}")
            a.e(f"s_lshl_b32 s20, s2, 2")
            a.e(f"s_add_u32 s20, s20, s{sH}")
            a.e(f"v_mov_b32 v1, v{vL}")
            wprep(a, 16, WS_W2P, True, barrier=last_period)
            a.e(f"s_mov_b32 s{sWv}, s58")
        if role == 1 and KSPLIT and "tailwarm" in EXP:
            add64(a, sW, 30, WS_WF)
            a.e(f"s_mov_b32 s{sW+2}, {262144 + 32768}")
            a.e(f"s_mov_b32 s{sW+3}, 0x00020000")
            a.e("s_lshr_b32 s36, s2, 3")
            a.e("s_lshl_b32 s36, s36, 2")
            a.e(f"s_add_u32 s36, s36, s{sH}")
            a.e("s_mul_i32 s36, s36, 2304")
            a.e(f"v_lshlrev_b32 v1, 4, v{vL}")
            for i in range(3):
                a.e(f"buffer_load_dwordx4 v[4:7], v1, {sr(sW)}, s36 offen offset:{i*1024}")
        if role == 1 and "tw" in EXP:
            a.e(f"s_cmp_ge_u32 s2, {os.environ.get('TWN', '32')}")
            a.e(f"s_cbranch_scc1 L_{name}_ntw")
            a.e("s_getpc_b64 s[36:37]")
            a.label(f"L_{name}_pc")
            a.e(f"s_lshl_b32 s38, s{sH}, 13")
            a.e(f"s_add_u32 s38, s38, L_{name}_epi-L_{name}_pc")
            a.e(f"v_lshl_add_u32 v2, v{vL}, 7, s38")
            a.e(f"v_min_u32 v2, {0x7fc0de01 + KSPLIT:#x}, v2")
            a.e("v_mov_b32 v3, s37")
            a.e("v_add_co_u32 v2, vcc, s36, v2")
            a.e("v_addc_co_u32 v3, vcc, 0, v3, vcc")
            a.e("global_load_dword v4, v[2:3], off")
            a.label(f"L_{name}_ntw")
        stamp(8)
        rstamp(13)
        a.e(f"s_branch L_{name}_end")

    hwave(1)
    a.label(f"L_{name}_h2")
    hwave(2)

    a.label(f"L_{name}_epi")
    K = [sr(x, 2) for x in KS]
    a.e("s_waitcnt lgkmcnt(0)")
    a.e("s_barrier")
    if "est" in EXP:
        stamp(2)
    a.e(f"v_cndmask_b32 v{vO}, v{t3}, v{t2}, vcc")

    def P(c, s, r=0):
        return c * 32 + s * 4 + r
    Y = 64
    TB = 96
    ELS = (0, 1, 2)
    for c in range(2):
        for s_ in range(8):
            if c == 1 and s_ == 7:
                a.e("s_waitcnt lgkmcnt(7)")
            u = UNIT[s_][c]
            a.e(f"ds_read_b128 {vr(P(c, s_))}, v{R0[u >> 16]} offset:{u & 0xffff}")

    def p2(x):
        return vr(x, 2)

    def padd(d, x, y):
        return f"v_pk_add_f32 {p2(d)}, {p2(x)}, {p2(y)}"

    def psub(d, x, y):
        return f"v_pk_add_f32 {p2(d)}, {p2(x)}, {p2(y)} neg_lo:[0,1] neg_hi:[0,1]"

    def pfma(d, x, k, y, neg=False):
        return f"v_pk_fma_f32 {p2(d)}, {p2(x)}, {k}, {p2(y)}" + (" neg_lo:[0,0,1] neg_hi:[0,0,1]" if neg else "")

    def interp(c):
        seq = []
        for r in (0, 2):
            E0, A, B, C, D, Q, E6, E6b = (P(c, x, r) for x in range(8))
            y = [Y + ph * 8 + c * 4 + r for ph in range(4)]
            S1, G = E6, C
            seq.append([
                padd(y[3], E6, E6b),
                padd(S1, A, B),
                psub(A, A, B),
                padd(y[1], C, D),
                psub(G, C, D),
                pfma(y[1], S1, K[0], y[1]),
                pfma(Q, E0, K[3], Q),
                pfma(y[1], E0, K[1], y[1]),
                psub(S1, S1, E0),
                pfma(y[1], y[3], K[2], y[1]),
                psub(S1, S1, y[3]),
                pfma(Q, y[3], K[6], Q),
                psub(B, S1, y[1]),
                pfma(Q, y[1], K[5], Q),
                f"v_pk_mul_f32 {p2(y[2])}, {p2(G)}, {K[9]}",
                pfma(Q, B, K[4], Q),
                pfma(y[2], A, K[10], y[2]),
                pfma(y[0], A, K[7], Q, True),
                pfma(y[0], G, K[8], y[0]),
                pfma(y[2], y[0], K[11], y[2]),
                psub(A, A, y[0]),
                psub(A, A, y[2]),
            ])
        for ops in zip(*seq):
            for op in ops:
                a.e(op)

    a.e("s_waitcnt lgkmcnt(8)")
    interp(0)
    a.e("s_waitcnt lgkmcnt(0)")
    interp(1)
    if "est" in EXP:
        stamp(3)
    a.e("s_mov_b32 s36, 0x00010001")
    a.e("s_mov_b32 s37, 0x00010001")
    a.e("s_mov_b64 exec, s[36:37]")
    for k in range(3):
        for c in range(2):
            a.e(f"ds_write_b128 v{vBW}, {vr(P(c, ELS[k]))} offset:{(k*2+c)*16}")
    a.e("s_mov_b64 exec, -1")

    def finish(ph):
        ys = [Y + ph * 8 + i for i in range(8)]
        if not KSPLIT:
            ts = [16 + (ph & 1) * 8 + i for i in range(8)]
            ev = list(zip(ys[::2], ts[::2]))
            for y, t in ev:
                a.e(f"v_pk_mul_f32 {p2(t)}, {p2(y)}, {p2(y)}")
            for y, t in ev:
                a.e(pfma(t, t, K[12], 44))
            for y, t in ev:
                a.e(f"v_pk_mul_f32 {p2(t)}, {p2(t)}, {p2(y)}")
            for t in ts:
                a.e(f"v_exp_f32 v{t}, v{t}")
            for y, t in ev:
                a.e(f"v_pk_add_f32 {p2(t)}, {p2(t)}, {K[13]}")
            for t in ts:
                a.e(f"v_rcp_f32 v{t}, v{t}")
            for y, t in ev:
                a.e(f"v_pk_mul_f32 {p2(y)}, {p2(y)}, {p2(t)}")
        o = 48 + ph * 4
        for r in range(4):
            a.e(f"v_cvt_pk_bf16_f32 v{o+r}, v{ys[r]}, v{ys[4+r]}")
        so = ph * PLF if KSPLIT else ((ph + 3) & 3) * PLH + ((ph + 7) >> 2) * 64
        a.e(f"s_mov_b32 s44, {so}")
        a.e(f"buffer_store_dwordx4 {vr(o)}, v{vO}, {sr(sO)}, s44 offen{NTF if KSPLIT else NTH}")

    a.e(f"v_mov_b32 v44, {f32hex(k0)}")
    a.e("v_mov_b32 v45, v44")
    finish(0)
    a.e("s_waitcnt lgkmcnt(0)")
    a.e("s_barrier")
    if "est" in EXP:
        stamp(4)
    for i in range(6):
        a.e(f"ds_read_b128 {vr(TB+4*i)}, v{vBW} offset:{512 + i*16}")
    for ph in range(1, 4):
        a.e(f"s_waitcnt lgkmcnt({6 - 2*ph})")
        for c in range(2):
            for r in range(4):
                i = (ph - 1) * 8 + c * 4 + r
                a.e(f"v_mov_b32_dpp v{TB+i}, v{P(c, ELS[ph-1], r)} row_shl:1 row_mask:0xf bank_mask:0xf")
        for i in range(0, 8, 2):
            a.e(padd(Y + ph * 8 + i, Y + ph * 8 + i, TB + (ph - 1) * 8 + i))
        finish(ph)
    if "est" in EXP:
        stamp(5)
    RB = os.environ.get("RB", "00")[int(KSPLIT)]
    if RB != "0":
        if not KSPLIT:
            a.e(f"s_cmp_ge_u32 s{sCb}, {RB}")
            a.e(f"s_cbranch_scc1 L_{name}_end")
        a.e("s_waitcnt vmcnt(0)")
        for ph in range(4):
            so = ph * PLF if KSPLIT else ((ph + 3) & 3) * PLH + ((ph + 7) >> 2) * 64
            a.e(f"s_mov_b32 s44, {so}")
            a.e(f"buffer_load_dword v0, v{vO}, {sr(sO)}, s44 offen")
    a.label(f"L_{name}_end")
    if STAMP:
        a.e("s_waitcnt vmcnt(0)")
        stamp(9, False)
        a.e(f"s_memrealtime s[{sSt+22}:{sSt+23}]")
        a.e(f"s_cmp_lg_u32 s{sWv}, {os.environ.get('SW', '0')}")
        a.e(f"s_cbranch_scc1 L_{name}_done")
        a.e("s_lshl_b32 s36, s2, 7")
        a.e(f"s_add_u32 s36, s36, {WS_STAMP + cfg['stamp']*0x10000}")
        add64(a, 40, 30, "s36")
        a.e("s_mov_b32 s42, 128")
        a.e("s_mov_b32 s43, 0x00020000")
        a.e("s_waitcnt lgkmcnt(0)")
        a.e("v_mov_b32 v8, 0")
        for i in range(28):
            a.e(f"v_mov_b32 v0, s{sSt+i}")
            a.e(f"buffer_store_dword v0, v8, s[40:43], 0 offen offset:{4*i}")
    a.label(f"L_{name}_done")
    a.e("s_endpgm")
    return a.L, TOPB + 40960, 128


CONV1 = dict(tin=16000, tout=8000, nchunk=16, ksplit=False, in_arg=0, in_off=0, w_off=WS_W1P, out_off=WS_H, stamp=0)
CONV2 = dict(tin=8000, tout=4000, nchunk=8, ksplit=True, in_arg=72, in_off=WS_H, w_off=WS_W2P, out_off=WS_FP, stamp=1)

HEADER = f"""; Kernarg layout for this problem (80 bytes, ptrs only, base s[0:1]):
"""


def main():
    ks = [("prep_kernel", 268, 256) + prep_kernel("prep_kernel"),
          ("conv1_kernel", 256, 1024) + conv_kernel("conv1_kernel", CONV1),
          ("conv2_kernel", 256, 1024) + conv_kernel("conv2_kernel", CONV2)]
    ks = joint_kernels(ks)
    out = HEADER
    for nm, grid, block, code, lds, vg in ks:
        out += f"; @launch kernel={nm} grid=({grid},1,1) block=({block},1,1) lds={lds}\n"
    out += '.amdgcn_target "amdgcn-amd-amdhsa--gfx950"\n.text\n'
    for nm, grid, block, code, lds, vg in ks:
        if "noalign" not in EXP:
            code = align8(code)
        out += f".globl {nm}\n.p2align 8\n.type {nm},@function\n" + "\n".join(code) + "\n"
    out += '.section .rodata,"a"\n'
    for nm, grid, block, code, lds, vg in ks:
        out += ".p2align 6\n" + kd(nm, vg)
    out = out.replace("0x7fc0de00", "L_joint_kernel_done-L_prep_kernel_pc")
    out = out.replace("0x7fc0de01", "L_conv2_kernel_done-L_conv1_kernel_pc")
    out = out.replace("0x7fc0de02", "L_joint_kernel_done-L_conv2_kernel_pc")
    path = sys.argv[1] if len(sys.argv) > 1 else "standalone__seq2seq_rnn_t_joint__speech.s"
    open(path, "w").write(out)


if __name__ == "__main__":
    main()
```

```python
import os
from asmlib import Asm, vr, sr, f32hex

EXP = os.environ.get("EXP", "").split(",")
WS_FP = 0x1A00000
WS_FPS = 0x800000
PLF = int(os.environ.get('PLF', 65536))
WS_WF = 0x2A00000
WS_WO = 0x2A20000
WS_GE = 0x2A40000
WS_STAMP = 0x3000000
C2 = 2.0 * 1.4426950408889634
RANGE = 120.0


def add64(a, d, lo, off):
    a.e(f"s_add_u32 s{d}, s{lo}, {off}")
    a.e(f"s_addc_u32 s{d+1}, s{lo+1}, 0")


def small_select(a):
    a.e("s_lshr_b32 s41, s3, 2")
    a.e("s_and_b32 s42, s3, 3")
    a.e("s_lshl_b32 s42, s42, 1")
    a.e("s_and_b32 s43, s40, 1")
    a.e("s_add_u32 s42, s42, s43")
    a.e("s_lshr_b32 s43, s40, 1")
    a.e("s_lshl_b32 s4, s43, 16")
    a.e("s_lshl_b32 s5, s42, 6")
    a.e("s_add_u32 s4, s4, s5")
    a.e("s_cmp_lt_u32 s3, 12")
    a.e("s_cselect_b32 s26, s4, s26")
    a.e("s_cselect_b32 s10, 131072, s10")
    a.e(f"s_mov_b32 s5, {2*131072}")
    a.e("s_cselect_b32 s5, 16384, s5")


def small_ptr(a):
    for m, sg in ((0, 52), (1, 56), (2, 54)):
        a.e(f"s_cmp_eq_u32 s41, {m}")
        a.e(f"s_cselect_b32 s8, s{sg}, s8")
        a.e(f"s_cselect_b32 s9, s{sg+1}, s9")


def small_tail(a, name):
    a.label(f"L_{name}_small")
    R, O = 16, 48
    a.e("s_mov_b32 s16, s50")
    a.e("s_mov_b32 s17, s51")
    a.e("s_mov_b32 s18, 8192")
    a.e("s_mov_b32 s19, 0x00020000")
    a.e("v_lshrrev_b32 v2, 4, v1")
    a.e("v_lshlrev_b32 v6, 9, v3")
    a.e("v_lshl_add_u32 v6, v2, 4, v6")
    a.e("s_lshl_b32 s24, s43, 8")
    a.e("s_cmp_eq_u32 s41, 2")
    a.e("s_cselect_b32 s24, s24, 0x100000")
    for k in range(4):
        a.e(f"buffer_load_dwordx4 {vr(80+4*k)}, v6, s[16:19], s24 offen offset:{k*64}")
    a.e("s_lshl_b32 s24, s41, 17")
    a.e(f"s_add_u32 s24, s24, {WS_WF}")
    add64(a, 12, 30, "s24")
    a.e("s_mov_b32 s14, 131072")
    a.e("s_mov_b32 s15, 0x00020000")
    a.e("s_mov_b32 s32, 0x05040100")
    a.e("s_mov_b32 s33, 0x07060302")
    a.e("v_lshlrev_b32 v4, 4, v1")
    a.e("s_lshl_b32 s24, s42, 14")
    a.e("s_lshl_b32 s25, s43, 13")
    a.e("s_add_u32 s24, s24, s25")
    a.e("s_add_u32 s25, s24, 4096")
    a.e("s_waitcnt vmcnt(4)")
    for k in range(4):
        for jn in range(2):
            for e2 in range(4):
                a.e(f"v_perm_b32 v{O+(k*2+jn)*4+e2}, v{R+k*8+2*e2+1}, v{R+k*8+2*e2}, s{32+jn}")
    a.e("s_cmp_eq_u32 s41, 2")
    a.e(f"s_cbranch_scc1 L_{name}_ge")
    for i in range(8):
        a.e(f"buffer_store_dwordx4 {vr(O+4*i)}, v4, s[12:15], s{24+(i>>2)} offen offset:{(i&3)*1024} sc1")
    a.e("s_endpgm")
    a.label(f"L_{name}_ge")
    ACC = 96
    a.e("s_waitcnt vmcnt(0)")
    for k in range(4):
        for jn in range(2):
            c = "0" if k == 0 else vr(ACC + 4 * jn)
            a.e(f"v_mfma_f32_16x16x32_bf16 {vr(ACC+4*jn)}, {vr(O+(k*2+jn)*4)}, {vr(80+4*k)}, {c}")
    a.e("s_and_b32 s24, s40, 1")
    a.e("s_lshl_b32 s24, s24, 11")
    a.e("v_add_u32 v7, s24, v4")
    a.e("s_mov_b32 s14, 16384")
    a.e("v_lshlrev_b32 v8, 10, v3")
    a.e("v_lshl_add_u32 v8, v2, 5, v8")
    a.e("s_lshl_b32 s24, s42, 7")
    a.e("s_mov_b32 s34, 0xffff0000")
    a.e(f"s_mov_b32 s35, {f32hex(C2)}")
    a.e("s_cmp_eq_u32 s43, 0")
    a.e(f"s_cbranch_scc1 L_{name}_ge0")
    a.e(f"ds_write_b128 v7, {vr(ACC)}")
    a.e(f"ds_write_b128 v7, {vr(ACC+4)} offset:1024")
    a.e("s_waitcnt lgkmcnt(0)")
    a.e("s_barrier")
    a.e("s_endpgm")
    a.label(f"L_{name}_ge0")
    a.e("s_barrier")
    a.e(f"ds_read_b128 {vr(16)}, v7")
    a.e(f"ds_read_b128 {vr(20)}, v7 offset:1024")
    a.e("s_waitcnt lgkmcnt(0)")
    for r in range(8):
        a.e(f"v_add_f32 v{16+r}, v{16+r}, v{ACC+r}")
    for i in range(4):
        a.e(f"v_cvt_pk_bf16_f32 v{48+i}, v{16+i}, v{20+i}")
    for i in range(4):
        a.e(f"v_lshlrev_b32 v{56+2*i}, 16, v{48+i}")
        a.e(f"v_and_b32 v{57+2*i}, s34, v{48+i}")
    for r in range(8):
        a.e(f"v_mul_f32 v{56+r}, s35, v{56+r}")
    a.e(f"buffer_store_dwordx4 {vr(56)}, v8, s[12:15], s24 offen sc1")
    a.e(f"buffer_store_dwordx4 {vr(60)}, v8, s[12:15], s24 offen offset:16 sc1")
    for r in range(8):
        a.e(f"v_exp_f32 v{64+r}, v{56+r}")
    a.e("v_max3_f32 v72, |v56|, |v57|, |v58|")
    a.e("v_max3_f32 v72, |v59|, |v60|, v72")
    a.e("v_max3_f32 v72, |v61|, |v62|, v72")
    a.e("v_max_f32 v72, |v63|, v72")
    add64(a, 12, 12, 16384)
    a.e(f"v_cmp_lt_f32 vcc, {f32hex(RANGE)}, v72")
    a.e(f"buffer_store_dwordx4 {vr(64)}, v8, s[12:15], s24 offen sc1")
    a.e(f"buffer_store_dwordx4 {vr(68)}, v8, s[12:15], s24 offen offset:16 sc1")
    add64(a, 12, 12, 16384)
    a.e("s_or_b32 s26, vcc_lo, vcc_hi")
    a.e("s_lshl_b32 s24, s42, 2")
    a.e("v_mov_b32 v73, s26")
    a.e("v_mov_b32 v74, 0")
    a.e("buffer_store_dword v73, v74, s[12:15], s24 offen sc1")
    a.e("s_endpgm")


def joint_kernel(name):
    a = Asm()
    NWG = 250
    STAMP = "stamp" in EXP
    FP = 528
    EP = 144
    J_B, F_B = 0, 32768
    E_B = F_B + 32 * FP
    GE_B = E_B + 8 * 36 * EP
    C_B = GE_B + 8 * 1040
    LDS = C_B + 16
    SPIN = 'nospin' not in EXP
    sF, sW, sO, sG = 8, 12, 16, 40
    sWv, sV, sCnt = 20, 21, 22
    sSt = 64
    vL, vL16 = 127, 126
    NTO = os.environ.get("NTO", " nt")

    def stamp(i, fence=True):
        if STAMP:
            a.e(f"s_memtime s[{sSt+2*i}:{sSt+2*i+1}]")
            if fence:
                a.e("s_waitcnt lgkmcnt(0)")
                a.lg = []

    def rstamp(i):
        if STAMP:
            a.e(f"s_memrealtime s[{sSt+2*i}:{sSt+2*i+1}]")
            a.e("s_waitcnt lgkmcnt(0)")
            a.lg = []

    a.label(name)
    if "local" in EXP:
        a.e("s_cmp_ge_u32 s2, 256")
        a.e(f"s_cbranch_scc1 L_{name}_done")
        a.e("s_and_b32 s3, s2, 7")
        a.e("s_lshr_b32 s2, s2, 3")
        a.e("s_mul_i32 s4, s3, 125")
        a.e("s_add_u32 s5, s4, 128")
        a.e("s_add_u32 s4, s4, 3")
        a.e("s_lshr_b32 s4, s4, 2")
        a.e("s_lshr_b32 s5, s5, 2")
        a.e("s_add_u32 s2, s2, s4")
        a.e("s_cmp_ge_u32 s2, s5")
    else:
        a.e(f"s_cmp_ge_u32 s2, {NWG}")
    a.e(f"s_cbranch_scc1 L_{name}_done")
    if STAMP:
        for i in range(28):
            a.e(f"s_mov_b32 s{sSt+i}, 0")
        a.e(f"s_memrealtime s[{sSt+20}:{sSt+21}]")
    stamp(0, False)
    a.e("s_load_dwordx2 s[28:29], s[0:1], 56")
    a.e("s_load_dwordx2 s[30:31], s[0:1], 72")
    a.e(f"v_readfirstlane_b32 s{sWv}, v0")
    a.e(f"s_lshr_b32 s{sWv}, s{sWv}, 6")
    a.e(f"s_and_b32 s{sV}, s{sWv}, 7")
    a.e(f"v_and_b32 v{vL}, 63, v0")
    a.e(f"v_lshlrev_b32 v{vL16}, 4, v{vL}")
    a.e(f"s_cmp_ge_u32 s{sWv}, 8")
    a.e(f"s_mov_b32 s33, {WS_WO}")
    a.e(f"s_cselect_b32 s33, {WS_WF}, s33")
    a.e(f"s_lshl_b32 s36, s{sV}, 14")
    a.e("s_add_u32 s33, s33, s36")
    a.e(f"s_mov_b32 s{sW+2}, 16384")
    a.e(f"s_mov_b32 s{sW+3}, 0x00020000")
    a.e("s_lshl_b32 s35, s2, 9")
    a.e("s_cmp_ge_u32 s2, 125")
    a.e(f"s_cselect_b32 s36, {32*PLF - 125*512}, 0")
    a.e("s_cselect_b32 s34, 8192, 0")
    a.e("s_add_u32 s35, s35, s36")
    a.e(f"s_add_u32 s34, s34, {WS_GE}")
    a.e(f"s_mov_b32 s{sF+2}, {WS_FPS + 64*PLF}")
    a.e(f"s_mov_b32 s{sF+3}, 0x00020000")
    a.e(f"s_mov_b32 s{sG+2}, {16384 + 8192}")
    a.e(f"s_mov_b32 s{sG+3}, 0x00020000")
    a.e("s_waitcnt lgkmcnt(0)")
    add64(a, sW, 30, "s33")
    add64(a, sG, 30, "s34")
    W = 0

    def arrive_wait(mine, other, lbl, v):
        a.e(f"v_mov_b32 v{v}, {C_B}")
        a.e(f"v_mov_b32 v{v+1}, 1")
        a.e("s_mov_b64 exec, 1")
        a.e(f"ds_add_u32 v{v}, v{v+1} offset:{4*mine}")
        a.e("s_mov_b64 exec, -1")
        a.label(lbl)
        a.e(f"ds_read_b32 v{v+1}, v{v} offset:{4*other}")
        a.e("s_waitcnt lgkmcnt(0)")
        a.e(f"v_readfirstlane_b32 s37, v{v+1}")
        a.e("s_cmp_ge_u32 s37, 8")
        a.e(f"s_cbranch_scc1 {lbl}_d")
        a.e("s_sleep 1")
        a.e(f"s_branch {lbl}")
        a.label(f"{lbl}_d")

    def wload(ks):
        if ks % 2 == 0:
            a.e(f"s_mov_b32 s36, {ks*2048}")
        for jn in range(2):
            i = ks * 2 + jn
            a.vmem(f"buffer_load_dwordx4 {vr(W+4*i)}, v{vL16}, {sr(sW)}, s36 offen offset:{(i%4)*1024}", ("W", ks))

    a.e(f"s_cmp_ge_u32 s{sWv}, 8")
    a.e(f"s_cbranch_scc1 L_{name}_T")

    add64(a, sF, 30, WS_FP)
    X = 64
    a.e(f"v_mov_b32 v0, {C_B}")
    a.e("v_mov_b32 v2, 0")
    a.e("v_mov_b32 v3, 0")
    a.e("ds_write_b64 v0, v[2:3]")
    a.e(f"v_lshrrev_b32 v124, 5, v{vL}")
    a.e(f"v_and_b32 v123, 0x1ff, v{vL16}")
    a.e(f"v_mul_u32_u24 v125, {PLF}, v124")
    a.e("v_add_u32 v123, v125, v123")
    a.e(f"s_mul_i32 s36, s{sV}, {4*PLF}")
    a.e("s_add_u32 s36, s36, s35")
    for r2 in range(2):
        a.e(f"s_add_u32 s37, s36, {WS_FPS}")
        a.vmem(f"buffer_load_dwordx4 {vr(X+4*r2)}, v123, {sr(sF)}, s36 offen", ("F", r2))
        a.vmem(f"buffer_load_dwordx4 {vr(X+8+4*r2)}, v123, {sr(sF)}, s37 offen", ("F", r2))
        if r2 == 0:
            a.e(f"s_add_u32 s36, s36, {2*PLF}")
    a.e(f"s_lshl_b32 s38, s{sV}, 10")
    a.e("s_add_u32 s38, s38, 16384")
    a.vmem(f"buffer_load_dwordx4 {vr(X+16)}, v{vL16}, {sr(sG)}, s38 offen", "G")
    a.e("s_waitcnt lgkmcnt(0)")
    stamp(1)
    a.e("s_barrier")
    stamp(5)
    a.e("s_lshl_b32 s35, s2, 17")
    add64(a, sO, 28, "s35")
    a.e(f"s_mov_b32 s{sO+2}, 131072")
    a.e(f"s_mov_b32 s{sO+3}, 0x00020000")
    k0 = -2.0 * 1.4426950408889634 * 0.7978845608028654
    a.e(f"s_mov_b32 s46, {f32hex(k0 * 0.044715)}")
    a.e("s_mov_b32 s47, s46")
    a.e(f"v_mov_b32 v120, {f32hex(k0)}")
    a.e("v_mov_b32 v121, v120")
    a.e("s_mov_b32 s48, 1.0")
    a.e("s_mov_b32 s49, 1.0")
    a.e(f"v_bfe_u32 v123, v{vL}, 2, 3")
    a.e("v_lshl_add_u32 v124, v123, 2, v124")
    a.e(f"v_mul_u32_u24 v124, {FP}, v124")
    a.e(f"v_and_b32 v123, 0x30, v{vL16}")
    a.e(f"s_lshl_b32 s36, s{sV}, 6")
    a.e("v_add3_u32 v124, v124, v123, s36")
    a.e("s_mov_b32 s45, 0xffff0000")
    a.e(f"s_mul_i32 s36, s{sV}, 1040")
    a.e(f"s_add_u32 s36, s36, {GE_B}")
    a.e(f"v_add_u32 v123, s36, v{vL16}")
    a.e(f"s_mov_b32 s{sCnt}, 2")
    a.e("s_waitcnt vmcnt(3)")
    stamp(6)
    a.label(f"L_{name}_floop")

    def p2(x):
        return vr(x, 2)
    ys = [88 + i for i in range(8)]
    ts = [96 + i for i in range(8)]
    ev = list(zip(ys[::2], ts[::2]))
    for i in range(4):
        a.e(f"v_lshlrev_b32 v{ys[2*i]}, 16, v{X+i}")
        a.e(f"v_and_b32 v{ys[2*i+1]}, s45, v{X+i}")
        a.e(f"v_lshlrev_b32 v{ts[2*i]}, 16, v{X+8+i}")
        a.e(f"v_and_b32 v{ts[2*i+1]}, s45, v{X+8+i}")
    for y, t in ev:
        a.e(f"v_pk_add_f32 {p2(y)}, {p2(y)}, {p2(t)}")
    for y, t in ev:
        a.e(f"v_pk_mul_f32 {p2(t)}, {p2(y)}, {p2(y)}")
    for y, t in ev:
        a.e(f"v_pk_fma_f32 {p2(t)}, {p2(t)}, s[46:47], v[120:121]")
    for y, t in ev:
        a.e(f"v_pk_mul_f32 {p2(t)}, {p2(t)}, {p2(y)}")
    for t in ts:
        a.e(f"v_exp_f32 v{t}, v{t}")
    for y, t in ev:
        a.e(f"v_pk_add_f32 {p2(t)}, {p2(t)}, s[48:49]")
    for t in ts:
        a.e(f"v_rcp_f32 v{t}, v{t}")
    for y, t in ev:
        a.e(f"v_pk_mul_f32 {p2(y)}, {p2(y)}, {p2(t)}")
    for i in range(4):
        a.e(f"v_cvt_pk_bf16_f32 v{104+i}, v{ys[2*i]}, v{ys[2*i+1]}")
    a.e(f"ds_write_b128 v124, {vr(104)} offset:{F_B}")
    a.e("s_waitcnt vmcnt(0)")
    a.vm = []
    for i in range(0, 4, 2):
        for b in (X, X + 8):
            a.e(f"v_pk_mov_b32 {vr(b+i,2)}, {vr(b+4+i,2)}, {vr(b+4+i,2)} op_sel:[0,1]")
    a.e(f"v_add_u32 v124, {2*FP}, v124")
    a.e(f"s_sub_u32 s{sCnt}, s{sCnt}, 1")
    a.e(f"s_cmp_lg_u32 s{sCnt}, 0")
    a.e(f"s_cbranch_scc1 L_{name}_floop")
    a.e(f"ds_write_b128 v123, {vr(X+16)}")
    a.e("s_waitcnt lgkmcnt(0)")
    stamp(2)
    if SPIN:
        arrive_wait(0, 1, f"L_{name}_ow", 120)
    else:
        a.e("s_barrier")
    stamp(3)
    for ks in range(8):
        wload(ks)
    ACC = (64, 80)
    JR = 96
    PKR = 112
    vO = 125
    a.e(f"v_lshrrev_b32 v{vO}, 4, v{vL}")
    a.e(f"v_lshlrev_b32 v{vO}, 11, v{vO}")
    a.e(f"v_and_b32 v124, 15, v{vL}")
    a.e(f"v_lshl_add_u32 v{vO}, v124, 2, v{vO}")
    a.e(f"s_lshl_b32 s36, s{sV}, 6")
    a.e(f"v_add_u32 v{vO}, s36, v{vO}")
    SROT = os.environ.get("SROT", "")
    if SROT:
        a.e(f"s_bfe_u32 s23, s2, {0x30000 | int(SROT)}")
        a.e("s_lshl_b32 s23, s23, 14")
        a.e(f"v_add_u32 v{vO}, s23, v{vO}")
    a.e("s_mov_b32 s44, 8192")
    a.e(f"s_setprio {os.environ.get('PO', '1')}")

    def out_ops(par):
        ops = []
        ac = ACC[par]
        for rt in range(2):
            for r in range(4):
                ops.append(f"v_cvt_pk_bf16_f32 v{PKR+rt*4+r}, v{ac+rt*8+r}, v{ac+rt*8+4+r}")
                ops.append(f"buffer_store_dword v{PKR+rt*4+r}, v{vO}, {sr(sO)}, {'s44' if rt else '0'} offen offset:{r*512}{NTO}")
        ops.append(f"v_add_u32 v{vO}, 16384, v{vO}")
        if SROT:
            ops.append(f"v_and_b32 v{vO}, 0x1ffff, v{vO}")
        return ops

    PD = 4

    def jread(par, n):
        a.lds(f"ds_read_b128 {vr(JR+4*(n%4))}, v{vL16} offset:{J_B + par*16384 + n*1024}", ("J", par, n))

    def ustep(par, side):
        for n in range(16):
            ks, rt = n >> 1, n & 1
            a.wait(lg=(("J", par, n),), vm=(("W", ks),))
            for jn in range(2):
                ac = ACC[par] + rt * 8 + 4 * jn
                c = "0" if ks == 0 else vr(ac)
                a.e(f"v_mfma_f32_16x16x32_bf16 {vr(ac)}, {vr(JR+4*(n%4))}, {vr(W+(ks*2+jn)*4)}, {c}")
                if n >= 3 and side:
                    a.e(side.pop(0))
            if n + PD == 16:
                a.wait(lg_all=True)
                a.e("s_barrier")
            if n + PD < 16:
                jread(par, n + PD)
            else:
                jread(1 - par, n + PD - 16)
        assert not side

    stamp(4)
    a.e("s_barrier")
    for n in range(PD):
        jread(0, n)
    ustep(0, [])
    lg0 = list(a.lg)
    stamp(7)
    rstamp(12)
    a.lg = list(lg0)
    a.e(f"s_mov_b32 s{sCnt}, 4")
    a.label(f"L_{name}_oloop")
    ustep(1, out_ops(0))
    a.e(f"s_sub_u32 s{sCnt}, s{sCnt}, 1")
    a.e(f"s_cmp_eq_u32 s{sCnt}, 0")
    a.e(f"s_cbranch_scc1 L_{name}_oend")
    ustep(0, out_ops(1))
    assert a.lg == lg0
    a.e("s_waitcnt vmcnt(32)")
    a.e(f"s_branch L_{name}_oloop")
    a.label(f"L_{name}_oend")
    stamp(8, False)
    rstamp(13)
    a.e("s_nop 7")
    for op in out_ops(1):
        a.e(op)
    a.e(f"s_branch L_{name}_fin")

    a.label(f"L_{name}_T")
    a.vm, a.lg = [], []
    a.e("s_setprio 3")
    if "wwarm" in EXP:
        add64(a, sF, 30, WS_WF)
        a.e(f"s_mov_b32 s{sF+2}, 262144")
        a.e("s_lshr_b32 s36, s2, 3")
        a.e("s_lshl_b32 s36, s36, 3")
        a.e(f"s_add_u32 s36, s36, s{sV}")
        a.e("s_lshl_b32 s36, s36, 10")
        a.vmem(f"buffer_load_dwordx4 {vr(80)}, v{vL16}, {sr(sF)}, s36 offen", "P")
    a.e(f"s_lshl_b32 s36, s{sV}, 2")
    a.e(f"s_add_u32 s36, s36, {WS_GE + 32768}")
    add64(a, 36, 30, "s36")
    a.e("s_load_dword s44, s[36:37], 0")
    FE = 64
    FR = 80
    GB = 112
    vF, vG, vJ, vEW, vER, vGL = 125, 124, 123, 122, 121, 120
    a.e(f"v_and_b32 v{vJ}, 15, v{vL}")
    a.e(f"v_lshrrev_b32 v{vER}, 4, v{vL}")
    a.e(f"v_mul_u32_u24 v{vF}, {FP}, v{vJ}")
    a.e(f"v_lshl_add_u32 v{vF}, v{vER}, 4, v{vF}")
    a.e(f"v_lshlrev_b32 v{vER}, 5, v{vER}")
    a.e(f"v_and_b32 v{vGL}, 7, v{vL}")
    a.e(f"v_lshl_add_u32 v{vG}, v{vGL}, 10, v{vER}")
    a.e(f"s_lshl_b32 s38, s{sV}, 7")
    a.e(f"v_mul_u32_u24 v{vGL}, 1040, v{vGL}")
    a.e(f"s_add_u32 s36, s38, {GE_B}")
    a.e(f"v_add3_u32 v{vGL}, v{vGL}, v{vER}, s36")
    a.e(f"s_mul_i32 s36, s{sV}, {36*EP}")
    a.e(f"s_add_u32 s36, s36, {E_B}")
    a.e(f"v_add_u32 v{vER}, s36, v{vER}")
    a.e(f"v_mul_u32_u24 v{vEW}, {EP}, v{vJ}")
    a.e(f"v_add_u32 v{vEW}, v{vEW}, v{vER}")
    a.e(f"v_lshrrev_b32 v{vJ}, 3, v{vJ}")
    a.e(f"v_mul_u32_u24 v{vJ}, {EP}, v{vJ}")
    a.e(f"v_add_u32 v{vER}, v{vJ}, v{vER}")
    a.e(f"s_lshl_b32 s36, s{sV}, 11")
    a.e(f"v_add_u32 v{vJ}, s36, v{vL16}")
    a.e("s_barrier")
    NPRE = int(os.environ.get("NPRE", "8"))
    for ks in range(NPRE):
        wload(ks)
    stamp(2)
    if SPIN:
        arrive_wait(1, 0, f"L_{name}_tw", FE)
    else:
        a.e("s_waitcnt lgkmcnt(0)")
        a.e("s_barrier")
    stamp(3)

    def fread(n):
        tt, ks = n & 1, n >> 1
        a.lds(f"ds_read_b128 {vr(FR+4*(n%8))}, v{vF} offset:{F_B + tt*16*FP + ks*64}", ("A", n))

    for n in range(8):
        fread(n)
    for ks in range(NPRE, 8):
        wload(ks)
    if NPRE < 8:
        a.e("s_barrier")
    a.e(f"s_setprio {os.environ.get('PT', '0')}")
    for n in range(16):
        tt, ks = n & 1, n >> 1
        a.wait(lg=(("A", n),), vm=(("W", ks),))
        for jn in range(2):
            ac = FE + tt * 8 + jn * 4
            c = "0" if ks == 0 else vr(ac)
            a.e(f"v_mfma_f32_16x16x32_bf16 {vr(ac)}, {vr(W+(ks*2+jn)*4)}, {vr(FR+4*(n%8))}, {c}")
        if n + 8 < 16:
            fread(n + 8)
        elif n < 10:
            a.lds(f"ds_read_b128 {vr(GB+4*(n-8))}, v{vGL} offset:{(n-8)*16}", "GE")
    a.e("s_mov_b32 s46, 0xffff0000")
    a.e(f"s_mov_b32 s48, {f32hex(C2)}")
    a.e("s_mov_b32 s49, s48")
    a.e("s_nop 3")
    stamp(4)
    FS, EX, EA, XS, PK = 80, 96, 32, 48, 64
    a.e("v_mov_b32 v28, 0")
    a.wait(lg_all=True)
    for tt in range(2):
        for r in range(4):
            a.e(f"v_cvt_pk_bf16_f32 v{24+r}, v{FE+tt*8+r}, v{FE+tt*8+4+r}")
        for r in range(4):
            a.e(f"v_lshlrev_b32 v{FS+tt*8+2*r}, 16, v{24+r}")
            a.e(f"v_and_b32 v{FS+tt*8+2*r+1}, s46, v{24+r}")
        for r in range(8 * tt, 8 * tt + 8, 2):
            a.e(f"v_pk_mul_f32 {vr(FS+r,2)}, {vr(FS+r,2)}, s[48:49]")
        for h in range(2):
            for r in range(8 * tt + 4 * h, 8 * tt + 4 * h + 4):
                a.e(f"v_exp_f32 v{EX+r}, v{FS+r}")
            for r in range(4 * tt + 2 * h, 4 * tt + 2 * h + 2):
                a.e(f"v_max3_f32 v28, |v{FS+2*r}|, |v{FS+2*r+1}|, v28")
            a.e(f"ds_write_b128 v{vEW}, {vr(EX+8*tt+4*h)} offset:{tt*16*EP + h*16}")
    if SROT:
        a.e(f"v_mov_b32 v{vF}, v{vER}")
        a.e(f"s_bfe_u32 s23, s2, {0x30000 | int(SROT)}")
        a.e(f"s_mul_i32 s24, s23, {4*EP}")
        a.e(f"v_add_u32 v{vER}, s24, v{vF}")
    a.e(f"v_cmp_lt_f32 vcc, {f32hex(RANGE)}, v28")
    a.e(f"s_mov_b32 s{sCnt}, 4")
    a.e("s_or_b32 s44, s44, vcc_lo")
    a.e("s_or_b32 s44, s44, vcc_hi")
    a.e("s_cmp_lg_u32 s44, 0")
    if "slow" in EXP:
        a.e(f"s_branch L_{name}_tslow")
    a.e(f"s_cbranch_scc1 L_{name}_tslow")

    def earead():
        for rt in range(2):
            for h in range(2):
                a.lds(f"ds_read_b128 {vr(EA+8*rt+4*h)}, v{vER} offset:{rt*2*EP + h*16}", ("G", rt))
        if SROT:
            a.e("s_add_u32 s23, s23, 1")
            a.e("s_and_b32 s23, s23, 7")
            a.e(f"s_mul_i32 s24, s23, {4*EP}")
            a.e(f"v_add_u32 v{vER}, s24, v{vF}")
        else:
            a.e(f"v_add_u32 v{vER}, {4*EP}, v{vER}")

    def tcomp(fast, early=None):
        a.wait(lg=(("G", 1),))
        for i in range(16):
            if fast:
                a.e(f"v_fma_f32 v{XS+i}, v{GB+(i&7)}, v{EA+i}, 1.0")
            else:
                a.e(f"v_add_f32 v{XS+i}, v{GB+(i&7)}, v{EA+i}")
        earead()
        for rt in range(2):
            xs = [XS + 8 * rt + i for i in range(8)]
            if not fast:
                for x in xs:
                    a.e(f"v_exp_f32 v{x}, v{x}")
                for x in xs:
                    a.e(f"v_add_f32 v{x}, 1.0, v{x}")
            for x in xs:
                a.e(f"v_rcp_f32 v{x}, v{x}")
            for x in xs:
                a.e(f"v_fma_f32 v{x}, v{x}, -2.0, 1.0")
            for i in range(4):
                a.e(f"v_cvt_pk_bf16_f32 v{PK+4*rt+i}, v{xs[2*i]}, v{xs[2*i+1]}")
            if early is not None:
                twrite(early, rt)

    def twrite(par, rt):
        a.lds(f"ds_write_b128 v{vJ}, {vr(PK+4*rt)} offset:{J_B + par*16384 + rt*1024}", "W")

    def tsync():
        a.wait(lg_all=True)
        a.e("s_barrier")

    TSH = os.environ.get("TSH", "0") == "1"
    for fast in (1, 0):
        a.lg = []
        if not fast:
            a.label(f"L_{name}_tslow")
            for h in range(2):
                a.e(f"buffer_load_dwordx4 {vr(GB+4*h)}, v{vG}, {sr(sG)}, s38 offen offset:{h*16}")
            for i in range(4):
                a.e(f"ds_write_b128 v{vEW}, {vr(FS+4*i)} offset:{(i>>1)*16*EP + (i&1)*16}")
        earead()
        a.e("s_waitcnt vmcnt(0) lgkmcnt(0)")
        a.vm, a.lg = [], []
        stamp(5)
        if TSH and fast:
            tcomp(fast, 0)
            tsync()
            tcomp(fast)
            a.wait(lg_all=True)
            a.e(f"s_mov_b32 s{sCnt}, 3")
            a.label(f"L_{name}_tloop{fast}")
            for par in (1, 0):
                twrite(par, 0)
                twrite(par, 1)
                tcomp(fast)
                tsync()
            a.e(f"s_sub_u32 s{sCnt}, s{sCnt}, 1")
            a.e(f"s_cmp_lg_u32 s{sCnt}, 0")
            a.e(f"s_cbranch_scc1 L_{name}_tloop{fast}")
            twrite(1, 0)
            twrite(1, 1)
            tsync()
        else:
            a.label(f"L_{name}_tloop{fast}")
            for par in (0, 1):
                tcomp(fast, par)
                tsync()
            a.e(f"s_sub_u32 s{sCnt}, s{sCnt}, 1")
            a.e(f"s_cmp_lg_u32 s{sCnt}, 0")
            a.e(f"s_cbranch_scc1 L_{name}_tloop{fast}")
        stamp(8)
        if fast:
            a.e(f"s_branch L_{name}_fin")
    a.label(f"L_{name}_fin")
    if STAMP:
        a.e("s_waitcnt vmcnt(0)")
        stamp(9, False)
        a.e(f"s_memrealtime s[{sSt+22}:{sSt+23}]")
        a.e(f"s_cmp_lg_u32 s{sWv}, {os.environ.get('SWJ', '0')}")
        a.e(f"s_cbranch_scc1 L_{name}_done")
        a.e("s_lshl_b32 s36, s2, 7")
        a.e(f"s_add_u32 s36, s36, {WS_STAMP + 2*0x10000}")
        add64(a, 40, 30, "s36")
        a.e("s_mov_b32 s42, 128")
        a.e("s_mov_b32 s43, 0x00020000")
        a.e("s_waitcnt lgkmcnt(0)")
        a.e("v_mov_b32 v8, 0")
        for i in range(28):
            a.e(f"v_mov_b32 v0, s{sSt+i}")
            a.e(f"buffer_store_dword v0, v8, s[40:43], 0 offen offset:{4*i}")
    a.label(f"L_{name}_done")
    a.e("s_endpgm")
    return a.L, LDS, 128


def joint_kernels(ks):
    return ks + [("joint_kernel", 256 if "local" in EXP else 250, 1024) + joint_kernel("joint_kernel")]
```

```python
import os
import sys

from asmlib import Asm, vr, sr, kd, f32hex, align8
from gen10_joint import small_select, small_ptr, small_tail, joint_kernels

EXP = os.environ.get("EXP", "").split(",")

WS_W1P = 0x0000000
WS_W2P = 0x0900000
WS_H = 0x1200000
WS_FP = 0x1A00000
WS_FPS = 0x800000
WS_WF = 0x2A00000
WS_STAMP = 0x3000000

CHUNKB = 7 * 8192
FB = 1024
BB = 8 * FB
SEQB = 2 * BB
FB6 = 1088
BB6 = 8 * FB6
SPB = 6 * SEQB + 2 * BB6
TOPB = SPB + 6144
OOB = 0x7f000000
LOCAL = 'local' in EXP
PLH, PLF = int(os.environ.get('PLH', 131072)), int(os.environ.get('PLF', 65536))
NTW, NTH, NTF = ({"0": "", "1": " nt", "2": " sc1", "3": " sc0 sc1"}[c] for c in os.environ.get("NT", "222"))


def add64(a, d, lo, off):
    a.e(f"s_add_u32 s{d}, s{lo}, {off}")
    a.e(f"s_addc_u32 s{d+1}, s{lo+1}, 0")


def eval_ops(c, t):
    e1, o1, e2, o2 = t
    ops = [f"v_add_f32 v{e1}, v{c[0]}, v{c[2]}",
           f"v_add_f32 v{o1}, v{c[1]}, v{c[3]}",
           f"v_fma_f32 v{e2}, v{c[2]}, 4.0, v{c[0]}",
           f"v_fma_f32 v{o2}, v{c[3]}, 4.0, v{c[1]}",
           f"v_add_f32 v{c[1]}, v{e1}, v{o1}",
           f"v_sub_f32 v{c[2]}, v{e1}, v{o1}",
           f"v_fma_f32 v{c[3]}, v{o2}, 2.0, v{e2}",
           f"v_fma_f32 v{e2}, v{o2}, -2.0, v{e2}",
           f"v_fmamk_f32 v{e1}, v{c[0]}, {f32hex(15.0)}, v{e2}",
           f"v_fmamk_f32 v{e1}, v{o1}, {f32hex(10.0)}, v{e1}"]
    return ops, [c[1], c[2], c[3], e2, e1]


def wprep(a, karg, wsoff, ws_loaded, barrier=False, extra=None, small=None, mid=None):
    a.vm, a.lg = [], []
    a.e(f"s_load_dwordx2 s[8:9], s[0:1], {karg}")
    if not ws_loaded:
        a.e("s_load_dwordx2 s[30:31], s[0:1], 72")
    a.e("s_lshr_b32 s22, s20, 8")
    a.e("s_bfe_u32 s23, s20, 0x40004")
    a.e("s_bfe_u32 s24, s20, 0x30001")
    a.e("s_and_b32 s21, s20, 1")
    a.e("v_lshrrev_b32 v2, 4, v1")
    a.e("v_lshlrev_b32 v2, 12, v2")
    a.e("v_and_b32 v3, 15, v1")
    a.e("v_lshl_add_u32 v2, v3, 2, v2")
    a.e("s_lshl_b32 s26, s22, 3")
    a.e("s_lshr_b32 s27, s23, 3")
    a.e("s_add_u32 s26, s26, s27")
    a.e("s_lshl_b32 s26, s26, 17")
    a.e("s_and_b32 s27, s23, 7")
    a.e("s_lshl_b32 s27, s27, 14")
    a.e("s_add_u32 s26, s26, s27")
    a.e("s_lshl_b32 s27, s24, 6")
    a.e("s_add_u32 s26, s26, s27")
    a.e(f"s_mov_b32 s10, {31*131072}")
    a.e("s_mov_b32 s11, 0x00020000")
    if small:
        small_select(a)
        a.e("s_add_u32 s37, s26, s5")
        a.e("s_add_u32 s38, s37, s5")
        a.e("s_add_u32 s39, s38, s5")
    else:
        for p in range(1, 4):
            a.e(f"s_add_u32 s{36+p}, s26, {2*131072*p}")
    a.e("s_waitcnt lgkmcnt(0)")
    if small:
        small_ptr(a)
    R = 16
    for e2 in range(4):
        for p in range(4):
            for e in (2 * e2, 2 * e2 + 1):
                a.vmem(f"buffer_load_dword v{R+p*8+e}, v2, s[8:11], s{36+p if p else 26} offen offset:{e*512}", ("L", e2))
    if small:
        a.e("s_cmp_lt_u32 s3, 12")
        a.e(f"s_cbranch_scc1 {small}")
    if mid:
        mid()
    add64(a, 12, 30, wsoff)
    a.e(f"s_mov_b32 s14, {8*16*CHUNKB}")
    a.e("s_mov_b32 s15, 0x00020000")
    a.e("v_lshlrev_b32 v4, 4, v1")
    a.e("s_lshl_b32 s27, s24, 4")
    a.e("s_add_u32 s27, s27, s23")
    a.e(f"s_mul_i32 s27, s27, {CHUNKB}")
    a.e("s_lshl_b32 s28, s22, 11")
    a.e("s_add_u32 s27, s27, s28")
    a.e("s_lshl_b32 s28, s21, 10")
    a.e("s_add_u32 s27, s27, s28")
    a.e("s_cmp_eq_u32 s21, 0")
    a.e("s_mov_b32 s32, 0x07060302")
    a.e("s_cselect_b32 s32, 0x05040100, s32")
    a.e("s_mov_b32 s33, 0x03020c0c")
    a.e("s_cselect_b32 s33, 0x01000c0c, s33")
    a.e(f"s_mov_b32 s35, {f32hex(1.0/24)}")
    a.e(f"s_mov_b32 s36, {f32hex(1.0/72)}")
    if barrier:
        barrier()
    OUT = 48
    T = 76
    scale = ("0.5", "0.5", "s35", "s35", "s36")
    for e2 in range(4):
        a.wait(vm=(("L", e2),))
        if extra and e2 == int(os.environ.get("XT", "3")):
            extra()
        for p, seq in ((0, 6), (3, 0)):
            a.e(f"v_perm_b32 v{OUT+seq*4+e2}, v{R+p*8+2*e2+1}, v{R+p*8+2*e2}, s32")
        res, lists = [], []
        for e in range(2):
            cf = [T + e * 8 + i for i in range(4)]
            ops = [f"v_perm_b32 v{cf[i]}, v{cf[i]}, v{R + (3 - i) * 8 + 2 * e2 + e}, s33" for i in range(4)]
            o, rr = eval_ops(cf, [T + e * 8 + 4 + i for i in range(4)])
            ops += o + [f"v_mul_f32 v{r}, {sc}, v{r}" for r, sc in zip(rr, scale)]
            res.append(rr)
            lists.append(ops)
        for x, y in zip(*lists):
            a.e(x)
            a.e(y)
        for i in range(5):
            a.e(f"v_cvt_pk_bf16_f32 v{OUT+(1+i)*4+e2}, v{res[0][i]}, v{res[1][i]}")
    for seq in (6, 0, 1, 2, 3, 4, 5):
        a.e(f"s_add_u32 s28, s27, {seq*8192}")
        a.e(f"buffer_store_dwordx4 {vr(OUT+seq*4)}, v4, s[12:15], s28 offen{NTW}")


def wprep2(a, karg, wsoff, barrier):
    a.vm, a.lg = [], []
    a.e(f"s_load_dwordx2 s[8:9], s[0:1], {karg}")
    a.e("s_lshr_b32 s22, s20, 8")
    a.e("s_bfe_u32 s23, s20, 0x40004")
    a.e("s_bfe_u32 s24, s20, 0x30001")
    a.e("s_and_b32 s21, s20, 1")
    a.e("v_lshrrev_b32 v5, 4, v1")
    a.e("v_lshlrev_b32 v2, 11, v5")
    a.e("v_and_b32 v3, 15, v1")
    a.e("v_lshl_add_u32 v2, v3, 2, v2")
    a.e("s_lshl_b32 s26, s22, 3")
    a.e("s_lshr_b32 s27, s23, 3")
    a.e("s_add_u32 s26, s26, s27")
    a.e("s_lshl_b32 s26, s26, 17")
    a.e("s_and_b32 s27, s23, 7")
    a.e("s_lshl_b32 s27, s27, 1")
    a.e("s_add_u32 s27, s27, s21")
    a.e("s_lshl_b32 s27, s27, 13")
    a.e("s_add_u32 s26, s26, s27")
    a.e("s_lshl_b32 s27, s24, 6")
    a.e("s_add_u32 s26, s26, s27")
    a.e(f"s_mov_b32 s10, {31*131072}")
    a.e("s_mov_b32 s11, 0x00020000")
    for p in range(1, 4):
        a.e(f"s_add_u32 s{36+p}, s26, {2*131072*p}")
    add64(a, 12, 30, wsoff)
    a.e(f"s_mov_b32 s14, {8*16*CHUNKB}")
    a.e("s_mov_b32 s15, 0x00020000")
    a.e("v_lshrrev_b32 v4, 1, v5")
    a.e("v_lshlrev_b32 v4, 8, v4")
    a.e("v_lshl_add_u32 v4, v3, 4, v4")
    a.e("v_and_b32 v5, 1, v5")
    a.e("v_lshl_add_u32 v4, v5, 3, v4")
    a.e("s_lshl_b32 s27, s24, 4")
    a.e("s_add_u32 s27, s27, s23")
    a.e(f"s_mul_i32 s27, s27, {CHUNKB}")
    a.e("s_lshl_b32 s28, s22, 11")
    a.e("s_add_u32 s27, s27, s28")
    a.e("s_lshl_b32 s28, s21, 9")
    a.e("s_add_u32 s27, s27, s28")
    a.e("s_mov_b32 s32, 0x05040100")
    a.e("s_mov_b32 s33, 0x07060302")
    a.e("s_mov_b32 s34, 0xffff0000")
    a.e(f"s_mov_b32 s35, {f32hex(1.0/24)}")
    a.e(f"s_mov_b32 s40, {f32hex(1.0/72)}")
    a.e("s_waitcnt lgkmcnt(0)")
    LB = os.environ.get("W2B", "1") == "1"
    if LB:
        barrier()
    R, OUT, T = 16, 76, 104
    for e2 in range(2):
        for p in range(4):
            for e in (2 * e2, 2 * e2 + 1):
                a.vmem(f"buffer_load_dword v{R+p*4+e}, v2, s[8:11], s{36+p if p else 26} offen offset:{e*512}", ("L", e2))
    if not LB:
        barrier()
    scale = ("0.5", "0.5", "s35", "s35", "s40")

    def out(seq, c):
        return OUT + (seq * 2 + c) * 2
    for e2 in range(2):
        a.wait(vm=(("L", e2),))
        for c in range(2):
            for p, seq in ((0, 6), (3, 0)):
                a.e(f"v_perm_b32 v{out(seq, c)+e2}, v{R+p*4+2*e2+1}, v{R+p*4+2*e2}, s{32+c}")
            res, lists = [], []
            for e in range(2):
                cf = [T + e * 8 + i for i in range(4)]
                src = [R + (3 - i) * 4 + 2 * e2 + e for i in range(4)]
                ops = [f"v_and_b32 v{d}, s34, v{x}" if c else f"v_lshlrev_b32 v{d}, 16, v{x}" for d, x in zip(cf, src)]
                o, rr = eval_ops(cf, [T + e * 8 + 4 + i for i in range(4)])
                ops += o + [f"v_mul_f32 v{r}, {sc}, v{r}" for r, sc in zip(rr, scale)]
                res.append(rr)
                lists.append(ops)
            for x, y in zip(*lists):
                a.e(x)
                a.e(y)
            for i in range(5):
                a.e(f"v_cvt_pk_bf16_f32 v{out(1+i, c)+e2}, v{res[0][i]}, v{res[1][i]}")
            if e2 == 1:
                for seq in range(7):
                    a.e(f"s_add_u32 s28, s27, {seq*8192}")
                    a.e(f"buffer_store_dwordx2 {vr(out(seq, c), 2)}, v4, s[12:15], s28 offen offset:{c*1024}{NTW}")


def prep_kernel(name):
    a = Asm()
    NWG = 268
    a.label(name)
    a.e(f"s_cmp_ge_u32 s2, {NWG}")
    a.e(f"s_cbranch_scc1 L_{name}_done")
    CW = os.environ.get("CW", "late")
    CWN = int(os.environ.get("CWN", "44"))

    def code_warm():
        a.e(f"s_cmp_ge_u32 s3, {CWN}")
        a.e(f"s_cbranch_scc1 L_{name}_ncw")
        a.e("s_getpc_b64 s[62:63]")
        a.label(f"L_{name}_pc")
        a.e("s_and_b32 s64, s3, 8")
        a.e("s_lshl_b32 s64, s64, 12")
        a.e("v_lshlrev_b32 v120, 7, v0")
        a.e("v_add_u32 v120, s64, v120")
        a.e(f"v_min_u32 v120, 0x7fc0de00, v120")
        a.e("v_mov_b32 v121, s63")
        a.e("v_add_co_u32 v120, vcc, s62, v120")
        a.e("s_nop 1")
        a.e("v_addc_co_u32 v121, vcc, 0, v121, vcc")
        a.e("global_load_dword v122, v[120:121], off")
        a.label(f"L_{name}_ncw")
        return 0

    def x_warm():
        XW = int(os.environ.get("XW", "0"))
        if XW:
            a.e("s_and_b32 s64, s3, 7")
            a.e("s_lshr_b32 s65, s2, 3")
            a.e("s_lshr_b32 s66, s65, 3")
            a.e("s_lshl_b32 s64, s64, 2")
            a.e("s_add_u32 s64, s64, s66")
            a.e("s_mul_i32 s64, s64, 512000")
            a.e("s_and_b32 s65, s65, 7")
            a.e("s_lshl_b32 s65, s65, 2")
            a.e("s_add_u32 s65, s65, s40")
            a.e("s_lshl_b32 s65, s65, 14")
            a.e("s_add_u32 s64, s64, s65")
            a.e("s_sub_u32 s64, s64, 7680")
            a.e("v_lshrrev_b32 v120, 2, v1")
            a.e("v_lshlrev_b32 v120, 10, v120")
            a.e(f"v_and_b32 v121, {XW - 1}, v1")
            a.e("v_lshl_add_u32 v120, v121, 7, v120")
            a.e("v_add_u32 v120, s64, v120")
            a.e("s_mov_b32 s68, s44")
            a.e("s_mov_b32 s69, s45")
            a.e(f"s_mov_b32 s70, {2*16000*512}")
            a.e("s_mov_b32 s71, 0x00020000")
            a.vmem("buffer_load_dword v123, v120, s[68:71], 0 offen", "XW")
    a.e("s_mov_b32 s3, s2")
    if CW == "early":
        code_warm()
    a.e("s_load_dwordx16 s[44:59], s[0:1], 0")
    a.e("s_sub_u32 s2, s2, 12")
    if "stamp" in EXP:
        a.e("s_memrealtime s[60:61]")
    a.e("v_readfirstlane_b32 s40, v0")
    a.e("s_lshr_b32 s40, s40, 6")
    a.e("s_lshl_b32 s21, s2, 2")
    a.e("s_add_u32 s20, s40, s21")
    a.e("v_and_b32 v1, 63, v0")
    wprep(a, 8, WS_W1P, False, small=f"L_{name}_small", extra=code_warm if CW == "late" else None, mid=x_warm)
    if "stamp" in EXP:
        a.e("s_waitcnt vmcnt(0)")
        a.e("s_memrealtime s[62:63]")
        a.e("s_lshl_b32 s36, s2, 7")
        a.e(f"s_add_u32 s36, s36, {WS_STAMP + 3*0x10000}")
        add64(a, 40, 30, "s36")
        a.e("s_mov_b32 s42, 128")
        a.e("s_mov_b32 s43, 0x00020000")
        a.e("s_waitcnt lgkmcnt(0)")
        a.e("v_mov_b32 v8, 0")
        a.e("v_mov_b32 v0, 1")
        a.e("buffer_store_dword v0, v8, s[40:43], 0 offen")
        for i in range(4):
            a.e(f"v_mov_b32 v0, s{60+i}")
            a.e(f"buffer_store_dword v0, v8, s[40:43], 0 offen offset:{80+4*i}")
    a.label(f"L_{name}_done")
    a.e("s_endpgm")
    small_tail(a, name)
    return a.L, 4096, 128


def conv_kernel(name, cfg):
    TIN, TOUT = cfg["tin"], cfg["tout"]
    N = cfg["nchunk"]
    KSPLIT = cfg["ksplit"]
    NWG = 256
    STAMP = "stamp" in EXP
    sX, sW, sO = 8, 12, 16
    sWv, sT0, sCnt, sBo, sXo, sMask = 20, 21, 22, 23, 24, 25
    sBo2 = 26
    sK, sCb, sH = 28, 29, 32
    sSt = 60
    vL = 127
    vU, vS_, vI, vKG = 8, 9, 10, 11

    a = Asm()
    a.label(name)
    a.e(f"s_cmp_ge_u32 s2, {NWG}")
    a.e(f"s_cbranch_scc1 L_{name}_done")

    def stamp(i, fence=True):
        if STAMP:
            a.e(f"s_memtime s[{sSt+2*i}:{sSt+2*i+1}]")
            if fence:
                a.e("s_waitcnt lgkmcnt(0)")
                a.lg = []

    def rstamp(i):
        if STAMP:
            a.e(f"s_memrealtime s[{sSt+2*i}:{sSt+2*i+1}]")
            a.e("s_waitcnt lgkmcnt(0)")
            a.lg = []
    if STAMP:
        for i in range(28):
            a.e(f"s_mov_b32 s{sSt+i}, 0")
        a.e(f"s_memrealtime s[{sSt+20}:{sSt+21}]")
    stamp(0, False)
    a.e(f"s_load_dwordx2 s[4:5], s[0:1], {cfg['in_arg']}")
    a.e("s_load_dwordx2 s[30:31], s[0:1], 72")
    a.e(f"v_readfirstlane_b32 s{sWv}, v0")
    a.e(f"s_lshr_b32 s{sWv}, s{sWv}, 6")
    if os.environ.get("WX", "8") != "0":
        a.e(f"s_xor_b32 s{sWv}, s{sWv}, {os.environ.get('WX', '8')}")
    XL = int((os.environ.get("XL", "33") * 2)[int(KSPLIT)])
    a.e(f"s_and_b32 s36, s2, {(8 >> XL) - 1}")
    a.e(f"s_lshl_b32 s36, s36, {XL}")
    a.e(f"s_bfe_u32 s37, s2, {(XL << 16) | 3}")
    a.e(f"s_or_b32 s{sCb}, s36, s37")
    a.e(f"s_bfe_u32 s36, s2, {(XL << 16) | (3 - XL)}")
    a.e(f"s_lshl_b32 s36, s36, {5 - XL}")
    a.e(f"s_lshr_b32 s37, s2, {3 + XL}")
    a.e("s_or_b32 s36, s36, s37")
    if KSPLIT:
        if LOCAL:
            a.e("s_and_b32 s33, s36, 1")
            a.e("s_bfe_u32 s34, s36, 0x30001")
            a.e("s_lshr_b32 s35, s36, 4")
        else:
            a.e("s_lshr_b32 s33, s36, 4")
            a.e("s_and_b32 s34, s36, 7")
            a.e("s_bfe_u32 s35, s36, 0x10003")
    else:
        a.e("s_mov_b32 s33, 0")
        a.e("s_and_b32 s34, s36, 15")
        a.e("s_lshr_b32 s35, s36, 4")
    a.e(f"s_mul_i32 s{sT0}, s34, 500")
    a.e(f"s_and_b32 s{sH}, s{sWv}, 3")
    a.e(f"v_and_b32 v{vL}, 63, v0")
    a.e(f"v_lshrrev_b32 v5, 2, v{vL}")
    a.e(f"v_and_b32 v6, 3, v{vL}")
    a.e(f"s_and_b32 s42, s{sWv}, 7")
    if not KSPLIT:
        a.e("v_lshlrev_b32 v7, 15, v5")
        a.e("v_lshl_add_u32 v7, v6, 4, v7")
        a.e(f"s_lshl_b32 s41, s{sT0}, 10")
        a.e("s_sub_u32 s41, s41, 7680")
        a.e("s_lshl_b32 s37, s42, 12")
        a.e("s_add_u32 s37, s37, s41")
        a.e("v_add_u32 v7, s37, v7")
        a.e(f"s_mul_i32 s36, s35, {TIN*512}")
        a.e(f"s_mov_b32 s{sX+2}, {TIN*512}")
    else:
        a.e(f"s_lshr_b32 s41, s{sT0}, 2")
        a.e("s_sub_u32 s41, s41, 1")
        a.e("s_add_u32 s37, s41, s42")
        a.e("v_lshl_add_u32 v7, v5, 3, s37")
        a.e(f"s_mul_i32 s36, s35, {32*PLH}")
        a.e(f"s_add_u32 s36, s36, {cfg['in_off']}")
        a.e(f"s_mov_b32 s{sX+2}, {32*PLH}")

    def haddr(dst, vG, vlane, p, t):
        a.e(f"s_add_u32 s37, s33, {2*p - 7 & 0xffffffff}")
        a.e(f"v_lshl_add_u32 v{t}, v{vG}, 3, s37")
        a.e(f"v_cmp_gt_u32 vcc, {TIN}, v{t}")
        a.e(f"s_mul_i32 s37, s33, {PLH}")
        a.e(f"s_add_u32 s37, s37, {(2*p & 3)*PLH + (p >> 1)*64}")
        a.e(f"v_lshl_add_u32 v{dst}, v{vG}, 7, s37")
        a.e(f"v_add_u32 v{dst}, v{dst}, v{vlane}")
        a.e(f"v_mov_b32 v{t}, {OOB}")
        a.e(f"v_cndmask_b32 v{dst}, v{t}, v{dst}, vcc")
    a.e(f"s_mov_b32 s{sX+3}, 0x00020000")
    a.e(f"s_mov_b32 s{sMask}, 0xffff0000")
    a.e("s_mov_b32 s47, s36")

    def kwait():
        a.e("s_waitcnt lgkmcnt(0)")
        stamp(1)
        add64(a, sX, 4, "s47")
    OB = 512

    def wsrd():
        a.e(f"s_lshl_b32 s36, s{sCb}, 4")
        a.e("s_lshl_b32 s37, s33, 3")
        a.e("s_add_u32 s36, s36, s37")
        a.e(f"s_mul_i32 s36, s36, {CHUNKB}")
        a.e(f"s_add_u32 s36, s36, {cfg['w_off']}")
        add64(a, sW, 30, "s36")
        a.e(f"s_mov_b32 s{sW+2}, {N*CHUNKB}")
        a.e(f"s_mov_b32 s{sW+3}, 0x00020000")

    def lds_throttle(need=1):
        if len(a.lg) + need > 15:
            a.e("s_waitcnt lgkmcnt(8)")
            a.lg = a.lg[-8:]

    def mf(acc, b, av):
        if "nomfma" not in EXP:
            a.e(f"v_mfma_f32_16x16x32_bf16 {vr(acc)}, {vr(b)}, {vr(av)}, {vr(acc)}")

    def steady(gen, per, strict=True):
        st = []
        for it in range(3):
            st.append(len(a.L))
            for pos in range(per):
                gen(per * it + pos, pos)
        st.append(len(a.L))
        bodies = [a.L[st[i]:st[i + 1]] for i in range(3)]
        if strict:
            assert bodies[1] == bodies[2], "loop not steady"
            assert bodies[0] == bodies[1], "loop entry not steady"
        del a.L[st[0]:]
        return bodies[1]

    a.e(f"s_cmp_ge_u32 s{sWv}, 8")
    a.e(f"s_cbranch_scc1 L_{name}_helper")

    ACC = 0
    vF, vA8, vD, vB = (120, 121), 122, (123, 124), 125
    vP = (116, 117, 118)
    vBZ = 119
    S, T, O = 96, 108, 64
    if not KSPLIT:
        a.e(f"s_add_u32 s37, s41, {128*4096}")
        a.e(f"v_lshl_add_u32 v{T}, v{vL}, 4, s37")
        for p in range(1, 3):
            a.e(f"v_add_u32 v{T+p}, {p*1024}, v{T}")
    else:
        a.e("s_add_u32 s37, s41, 128")
        a.e("v_mov_b32 v16, s37")
        a.e(f"v_mul_u32_u24 v17, {4*PLH}, v5")
        a.e("v_lshl_add_u32 v17, v6, 4, v17")
        for p in range(3):
            haddr(T + p, 16, 17, p, 18)
    kwait()
    wsrd()
    PLO = PLF if KSPLIT else PLH
    a.e(f"s_mul_i32 s36, s35, {32*PLO}")
    a.e(f"s_add_u32 s36, s36, {cfg['out_off']}")
    if KSPLIT:
        a.e(f"s_mul_i32 s37, s33, {WS_FPS}")
        a.e("s_add_u32 s36, s36, s37")
    add64(a, sO, 30, "s36")
    a.e(f"s_mov_b32 s{sO+2}, {32*PLO}")
    a.e(f"s_mov_b32 s{sO+3}, 0x00020000")
    a.e(f"v_and_b32 v{vI}, 15, v{vL}")
    a.e(f"v_lshrrev_b32 v{vKG}, 4, v{vL}")
    t = 16
    for d, sh in ((vU, 0), (vS_, 1)):
        a.e(f"v_add_u32 v{d}, {sh}, v{vI}")
        a.e(f"v_and_b32 v{t}, 4, v{d}")
        a.e(f"v_lshrrev_b32 v{t}, 1, v{t}")
        a.e(f"v_xor_b32 v{t}, v{vKG}, v{t}")
        a.e(f"v_lshlrev_b32 v{t}, 4, v{t}")
        a.e(f"v_lshl_add_u32 v{d}, v{d}, 6, v{t}")
    a.e(f"s_lshr_b32 s38, s{sH}, 1")
    a.e(f"s_and_b32 s39, s{sH}, 1")
    a.e("s_add_u32 s40, s38, 4")
    a.e("s_lshl_b32 s43, s39, 10")
    a.e(f"s_cmp_lt_u32 s{sWv}, 4")
    a.e(f"s_cselect_b32 s40, s{sWv}, s40")
    a.e("s_cselect_b32 s36, 0, s43")
    a.e("s_lshl_b32 s37, s40, 13")
    a.e("s_add_u32 s37, s37, s36")
    a.e(f"v_lshl_add_u32 v{vB}, v{vL}, 4, s37")
    a.e(f"s_mul_i32 s37, s40, {SEQB}")
    a.e(f"v_add_u32 v{vF[0]}, s37, v{vU}")
    a.e(f"v_add_u32 v{vF[1]}, s37, v{vS_}")
    a.e("s_lshl_b32 s37, s40, 10")
    a.e(f"s_add_u32 s37, s37, {SPB}")
    a.e(f"v_lshl_add_u32 v{t}, v{vKG}, 4, s37")
    a.e(f"v_cmp_eq_u32 vcc, 15, v{vI}")
    a.e(f"v_mov_b32 v{t+1}, {BB}")
    a.e(f"v_mov_b32 v{t+2}, {-BB & 0xffffffff}")
    a.e(f"v_mov_b32 v{t+3}, 64")
    a.e(f"v_cndmask_b32 v{vA8}, v{vF[1]}, v{t}, vcc")
    a.e(f"v_cndmask_b32 v{vD[0]}, v{t+1}, v{t+3}, vcc")
    a.e(f"v_cndmask_b32 v{vD[1]}, v{t+2}, v{t+3}, vcc")
    a.e(f"v_lshl_add_u32 v126, v{vL}, 4, s37")
    tabs = {44: (1.0, 1.0, 1.0, 1.0, 1.0, 16.0), 45: (0.0, 1.0, -1.0, 2.0, -2.0, 8.0),
            46: (0.0, 1.0, 1.0, 4.0, 4.0, 4.0)}
    for sg, tab in tabs.items():
        a.e(f"s_mov_b32 s{sg}, {f32hex(tab[0])}")
    for q in range(1, 6):
        a.e(f"s_cmp_eq_u32 s40, {q}")
        for sg, tab in tabs.items():
            if tab[q] != tab[0]:
                a.e(f"s_cselect_b32 s{sg}, {f32hex(tab[q])}, s{sg}")

    def special_rows():
        a.wait(vm=("SP",))
        for d in range(4):
            for p in range(3):
                a.e(f"v_lshlrev_b32 v{T+p}, 16, v{S+4*p+d}")
                a.e(f"v_and_b32 v{T+3+p}, s{sMask}, v{S+4*p+d}")
            for h in range(2):
                a.e(f"v_mul_f32 v{T+6+h}, s44, v{T+3*h}")
            for h in range(2):
                a.e(f"v_fmac_f32 v{T+6+h}, s45, v{T+3*h+1}")
            for h in range(2):
                a.e(f"v_fmac_f32 v{T+6+h}, s46, v{T+3*h+2}")
            a.e(f"v_cvt_pk_bf16_f32 v{S+d}, v{T+6}, v{T+7}")
        a.e(f"ds_write_b128 v126, {vr(S)}")

    def own_read(k, g, reg, tag, last=False):
        if g == 8:
            base, off = vA8, 0
        else:
            base, off = vF[g >> 3], (k & 1) * BB + (g & 7) * FB
        a.lds(f"ds_read_b128 {vr(reg)}, v{base} offset:{off}", tag)
        if g == 8 and not last:
            a.e(f"v_add_u32 v{vA8}, v{vD[k & 1]}, v{vA8}")

    UNIT = [(s * SEQB, s * SEQB + BB) for s in range(4)] + [(4 * SEQB, TOPB), (5 * SEQB, TOPB + 8192),
            (6 * SEQB, TOPB + 16384), (TOPB + 24576, TOPB + 32768)]
    EA = 96
    ES = []
    R0 = (120, 121, 64)
    vO, vBW = 122, 127
    BND = SPB
    t0, t1, t2, t3 = 108, 109, 110, 111
    ES.append(f"v_and_b32 v{t0}, 15, v{vL}")
    ES.append(f"v_lshrrev_b32 v{t1}, 4, v{vL}")
    ES.append(f"v_lshrrev_b32 v{t2}, 3, v{t0}")
    ES.append(f"s_lshl_b32 s36, s{sWv}, 1")
    ES.append(f"v_add_u32 v{t2}, s36, v{t2}")
    ES.append(f"v_xor_b32 v{t3}, v{t2}, v{t0}")
    ES.append(f"v_and_b32 v{t3}, 7, v{t3}")
    ES.append(f"v_lshlrev_b32 v{t3}, 4, v{t3}")
    ES.append(f"v_lshl_add_u32 v{t3}, v{t2}, 7, v{t3}")
    ES.append(f"v_lshl_add_u32 v{R0[0]}, v{t1}, 11, v{t3}")
    ES.append(f"v_add_u32 v{R0[1]}, 65536, v{R0[0]}")
    ES.append(f"v_add_u32 v{R0[2]}, 131072, v{R0[0]}")
    ES.append(f"s_lshl_b32 s36, s{sWv}, 9")
    ES.append(f"s_add_u32 s36, s36, {BND}")
    ES.append(f"v_lshl_add_u32 v{vBW}, v{t1}, 7, s36")
    ES.append(f"s_lshl_b32 s36, s{sWv}, 4")
    ES.append(f"v_add_u32 v{t0}, s36, v{t0}")
    ES.append(f"v_lshlrev_b32 v{t2}, 6, v{t0}")
    ES.append(f"v_lshl_add_u32 v{t2}, v{t1}, 4, v{t2}")
    ES.append(f"s_mul_i32 s36, s{sCb}, {4*PLO}")
    ES.append(f"s_lshl_b32 s37, s{sT0}, 4")
    ES.append("s_add_u32 s36, s36, s37")
    ES.append(f"v_add_u32 v{t2}, s36, v{t2}")
    ES.append(f"v_mov_b32 v{t3}, {OOB}")
    ES.append(f"v_cmp_gt_u32 vcc, 125, v{t0}")
    k0 = -2.0 * 1.4426950408889634 * 0.7978845608028654
    consts = [-1.0 / 3, 0.25, -5.0, -32.0 / 9, -8.0 / 9, -2.0 / 9, -1.0 / 18, 17.0 / 9, -2.0 / 3, 0.4, -1.0 / 15, -0.2,
              k0 * 0.044715, 1.0]
    KS = [4, 6, 8, 10, 12, 14, 22, 24, 26, 32, 34, 38, 40, 42]
    for sg, cv in zip(KS, consts):
        ES.append(f"s_mov_b32 s{sg}, {f32hex(cv)}")
        ES.append(f"s_mov_b32 s{sg+1}, s{sg}")

    def ex_addr(sbase):
        a.e(f"v_and_b32 v{EA}, 15, v{vL}")
        a.e(f"v_and_b32 v{EA+1}, 7, v{vL}")
        a.e(f"v_lshlrev_b32 v{EA+1}, 4, v{EA+1}")
        a.e(f"v_lshl_add_u32 v{EA}, v{EA}, 7, v{EA+1}")
        a.e(f"v_lshrrev_b32 v{EA+1}, 4, v{vL}")
        a.e(f"v_lshl_add_u32 v{EA}, v{EA+1}, 11, v{EA}")
        a.e(f"v_add_u32 v{EA}, s{sbase}, v{EA}")
        for f in range(1, 8):
            a.e(f"v_xor_b32 v{EA+f}, {f << 4}, v{EA}")

    def mwave(role):
        if role == 1:
            BR, AR, NR = 64, 96, 6
            steps = [("X", g) for g in range(11)]
        else:
            BR, AR, NR = 64, 88, 7
            steps = []
            for g in range(11):
                steps.append(("Y", g))
                if 1 <= g <= 9:
                    steps.append(("Z", g - 1))
        NS = len(steps)

        def bload(k, kind, q):
            if "nob" in EXP and k > 0:
                return
            so = sBo2 if q >> 1 else sBo
            if kind == "X":
                for c in range(2):
                    a.vmem(f"buffer_load_dwordx4 {vr(BR+(q*2+c)*4)}, v{vB}, {sr(sW)}, s{so} offen "
                           f"offset:{(q&1)*2048 + c*1024}", ("B", k, kind, q))
            elif kind == "Y":
                a.vmem(f"buffer_load_dwordx4 {vr(BR+q*4)}, v{vB}, {sr(sW)}, s{so} offen offset:{(q&1)*2048}",
                       ("B", k, kind, q))
            else:
                a.vmem(f"buffer_load_dwordx4 {vr(BR+16+q*4)}, v{vBZ}, {sr(sW)}, s{sBo} offen offset:{q*2048}",
                       ("B", k, kind, q))

        def rd(k, n, last=False):
            kind, g = steps[n]
            reg = AR + 4 * (n % NR)
            if kind == "Z":
                base, off = (vP[0], g * FB6) if g < 6 else (vP[1], (g - 6) * FB6) if g < 8 else (vP[2], 0)
                a.lds(f"ds_read_b128 {vr(reg)}, v{base} offset:{(k & 1)*BB6 + off}", ("A", k, n))
            else:
                own_read(k, g, reg, ("A", k, n), last)

        for i in range(64):
            a.e(f"v_mov_b32 v{ACC+i}, 0")
        if "b0" in EXP:
            a.e("s_barrier")
        for p in range(3):
            a.vmem(f"buffer_load_dwordx4 {vr(S+4*p)}, v{T+p}, {sr(sX)}, 0 offen", "SP")
        a.e(f"s_mov_b32 s{sBo}, 0")
        a.e(f"s_mov_b32 s{sBo2}, 4096")
        for st in steps:
            if st and st[1] >= 7:
                bload(0, st[0], st[1] - 7)
        a.e(f"s_mov_b32 s{sBo}, {CHUNKB}")
        a.e(f"s_mov_b32 s{sBo2}, {CHUNKB + 4096}")
        SPL = os.environ.get("SPL", "0") == "1"
        if not SPL:
            special_rows()
        if role == 2:
            a.e(f"v_and_b32 v{T+3}, 15, v{vL}")
            a.e(f"v_lshlrev_b32 v{T+3}, 2, v{T+3}")
            a.e(f"v_add_u32 v{T+3}, {6*SEQB + 1024}, v{T+3}")
            a.e(f"ds_write_b32 v{T+3}, v{ACC}")
            a.e(f"ds_write_b32 v{T+3}, v{ACC} offset:{BB6}")
        a.e("s_waitcnt lgkmcnt(0)")
        a.e("s_barrier")
        if SPL:
            a.e("s_setprio 3")
            special_rows()
            a.e("s_waitcnt lgkmcnt(0)")
        stamp(7)
        rstamp(12)
        a.e(f"s_mov_b32 s{sCnt}, {N//2}")
        a.e(f"s_setprio {os.environ.get(f'PM{role}', '2')}")

        CO = int(os.environ.get(f"CO{role}", "0" if role == 1 else "5"))
        assert CO < NR
        FM = int("fmaj" in EXP)
        vE = (vD[0], vD[1])

        def period(k, _, last=False):
            if "mst" in EXP and _ == 0:
                stamp(2)
            if "bst" in EXP and _ == 1 and not last:
                a.e("s_memtime s[90:91]")
                a.e("s_waitcnt vmcnt(0) lgkmcnt(0)")
                a.e("s_memtime s[92:93]")
                a.e("s_waitcnt lgkmcnt(0)")
                a.e("s_sub_u32 s92, s92, s90")
                a.e(f"s_add_u32 s{sSt+4}, s{sSt+4}, s92")
                a.e(f"s_max_u32 s{sSt+6}, s{sSt+6}, s92")
                a.vm = []
            for n in range(NR):
                rd(k, n, last)
            pend = []
            fill = []

            def flush(n, cnt):
                while pend and pend[0][0] <= n and cnt > 0:
                    _, h, f = pend.pop(0)
                    t = vE[(h + f) & 1]
                    a.e(f"v_xor_b32 v{t}, {f << 4}, v{vX0[h]}")
                    lds_throttle()
                    a.lds(f"ds_write_b128 v{t}, {vr(ACC + h*32 + f*4)}", "E")
                    cnt -= 1
                    for _i in range(min(12, len(fill))):
                        a.e(fill.pop(0))

            for n, st in enumerate(steps):
                if CO and n == NS - CO and not last:
                    a.wait(lg_all=True)
                    if "mst" in EXP and _ == 0:
                        stamp(3)
                    a.e("s_barrier")
                    if "mst" in EXP and _ == 0:
                        stamp(4)
                kind, g = st
                nt = 2 if kind == "Z" else 4
                qs = [q for q in range(nt) if 0 <= g - q <= 7]
                if FM and kind == "X":
                    if g >= 3:
                        f = g - 3
                        for c in range(2):
                            for q in range(4):
                                a.wait(lg=(("A", k, f + q),), vm=(("B", k, kind, q),))
                                mf(ACC + 32 * c + f * 4, BR + q * 8 + 4 * c, AR + 4 * ((f + q) % NR))
                        if f + NR < NS:
                            rd(k, f + NR, last)
                        if g == 10 and not last:
                            for q in range(4):
                                bload(k + 1, kind, q)
                    qs = []
                else:
                    a.wait(lg=(("A", k, n),), vm=tuple(("B", k, kind, q) for q in qs))
                reg = AR + 4 * (n % NR)
                for q in qs:
                    f = g - q
                    if kind == "X":
                        mf(ACC + f * 4, BR + q * 8, reg)
                        mf(ACC + 32 + f * 4, BR + q * 8 + 4, reg)
                    elif kind == "Y":
                        mf(ACC + f * 4, BR + q * 4, reg)
                    else:
                        mf(ACC + 32 + f * 4, BR + 16 + q * 4, reg)
                if g >= 7 and not last and not (FM and kind == "X"):
                    bload(k + 1, kind, g - 7)
                if n + NR < NS and not (FM and kind == "X"):
                    rd(k, n + NR, last)
                if last:
                    flush(n, int(os.environ.get('FL', '2')))
                    f = g - (nt - 1)
                    if f >= 0:
                        if kind == "X":
                            pend.append((n + 1, 0, f))
                            pend.append((max(n + 1, NS - NR + 1 + 3 * FM), 1, f))
                            pend.sort()
                        else:
                            pend.append((n + 3, 0 if kind == "Y" else 1, f))
                    if kind == "X" and n == NS - NR + 3 * FM:
                        a.wait(lg=(("A", k, NS - 1),))
            if last:
                fill += ES
                for _i in range(8):
                    a.e(fill.pop(0))
                flush(1000, 1000)
                for op in fill:
                    a.e(op)
                return
            a.e(f"s_add_u32 s{sBo}, s{sBo}, {CHUNKB}")
            a.e(f"s_add_u32 s{sBo2}, s{sBo2}, {CHUNKB}")
            assert not a.lg
            if "mst" in EXP and _ == 0:
                stamp(5)
            if not CO:
                a.e("s_barrier")
            if "mst" in EXP and _ == 0:
                stamp(6)

        def period2(k, pos):
            if pos == 1:
                a.e(f"s_sub_u32 s{sCnt}, s{sCnt}, 1")
                a.e(f"s_cmp_eq_u32 s{sCnt}, 0")
                a.e(f"s_cbranch_scc1 L_{name}_mlast{role}")
                state[0] = (list(a.vm), k)
            period(k, pos)

        state = [None]
        body = steady(period2, 2, "nob" not in EXP)
        if "nob" in EXP:
            a.e("s_waitcnt vmcnt(0)")
        a.label(f"L_{name}_mloop{role}")
        a.L.extend(body)
        a.e(f"s_branch L_{name}_mloop{role}")
        a.label(f"L_{name}_mlast{role}")
        a.vm, a.lg = state[0][0], []
        vX0 = (vB, 126)
        a.e(f"v_and_b32 v{vX0[0]}, 15, v{vL}")
        a.e(f"v_and_b32 v{vX0[1]}, 7, v{vL}")
        a.e(f"v_lshlrev_b32 v{vX0[1]}, 4, v{vX0[1]}")
        a.e(f"v_lshl_add_u32 v{vX0[0]}, v{vX0[0]}, 7, v{vX0[1]}")
        a.e(f"v_lshrrev_b32 v{vX0[1]}, 4, v{vL}")
        a.e(f"v_lshl_add_u32 v{vX0[0]}, v{vX0[1]}, 11, v{vX0[0]}")
        if role == 1:
            a.e(f"s_lshl_b32 s36, s{sWv}, 14")
            a.e("s_add_u32 s37, s36, 8192")
        else:
            for sg, tab in ((36, [UNIT[4 + (h >> 1)][h & 1] for h in range(4)]),
                            (37, [UNIT[6 + (h >> 1)][h & 1] for h in range(4)])):
                a.e(f"s_mov_b32 s{sg}, {tab[0]}")
                for h in range(1, 4):
                    a.e(f"s_cmp_eq_u32 s{sH}, {h}")
                    a.e(f"s_cselect_b32 s{sg}, {tab[h]}, s{sg}")
        a.e(f"v_add_u32 v{vX0[1]}, s37, v{vX0[0]}")
        a.e(f"v_add_u32 v{vX0[0]}, s36, v{vX0[0]}")
        if os.environ.get(f"PL{role}"):
            a.e(f"s_setprio {os.environ.get(f'PL{role}')}")
        period(state[0][1], 1, True)
        stamp(8, False)
        rstamp(13)
        a.e("s_setprio 0")
        a.vm, a.lg = [], []

    a.e(f"s_cmp_ge_u32 s{sWv}, 4")
    a.e(f"s_cbranch_scc1 L_{name}_m2")
    vm0 = list(a.vm)
    mwave(1)
    a.e(f"s_branch L_{name}_epi")
    a.label(f"L_{name}_m2")
    a.vm, a.lg = list(vm0), []
    a.e(f"s_mul_i32 s37, s38, {2*FB6}")
    a.e(f"s_add_u32 s37, s37, {6*SEQB}")
    a.e(f"v_add_u32 v{vP[0]}, s37, v{vU}")
    a.e(f"v_add_u32 v{vP[2]}, s37, v{vS_}")
    a.e(f"v_add_u32 v{vP[1]}, {6*SEQB + 6*FB6}, v{vU}")
    a.e("s_cmp_eq_u32 s38, 0")
    a.e(f"s_cbranch_scc1 L_{name}_hh0")
    a.e(f"v_add_u32 v{vP[1]}, {6*SEQB}, v{vS_}")
    a.label(f"L_{name}_hh0")
    a.e("s_lshl_b32 s37, s38, 12")
    a.e("s_add_u32 s37, s37, s43")
    a.e(f"s_add_u32 s37, s37, {6*8192}")
    a.e(f"v_lshl_add_u32 v{vBZ}, v{vL}, 4, s37")
    mwave(2)
    a.e(f"s_branch L_{name}_epi")

    a.label(f"L_{name}_helper")
    a.vm, a.lg = [], []
    a.e("s_setprio 3")
    PB = (0, 32)
    XO = 64
    TMP = 76
    vX = 92
    vW = (96, 97, 98)

    def praw(b, half, p):
        return PB[b] + half * 16 + p * 4

    sXo2 = 27

    def xload(pair, p):
        if KSPLIT:
            half, q = p >> 1, p & 1
            for r in (q, q + 2):
                a.vmem(f"buffer_load_dwordx4 {vr(praw(pair & 1, half, r))}, v{vX+r}, {sr(sX)}, "
                       f"s{sXo2 if half else sXo} offen", ("X", pair))
            return
        for half in range(2):
            a.vmem(f"buffer_load_dwordx4 {vr(praw(pair & 1, half, p))}, v{vX+p}, {sr(sX)}, "
                   f"s{sXo} offen offset:{half*64}", ("X", pair))
        a.e(f"v_add_u32 v{vX+p}, 128, v{vX+p}")

    def uregs(chunk):
        return [praw((chunk >> 1) & 1, chunk & 1, p) for p in range(4)]

    def wr(chunk, i):
        if "nowr" in EXP:
            return
        u = uregs(chunk)
        reg, seq = [(XO, 3), (XO + 4, 4), (XO + 8, 5), (u[0], 0), (u[1], 1), (u[2], 2), (u[3], 6)][i]
        lds_throttle()
        if seq == 6:
            a.lds(f"ds_write_b128 v{vW[2]}, {vr(reg)} offset:{(chunk & 1)*BB6}", "W")
        else:
            a.lds(f"ds_write_b128 v{vW[seq >> 2]}, {vr(reg)} offset:{(seq & 3)*SEQB + (chunk & 1)*BB}", "W")

    def tr_ops(chunk):
        u = uregs(chunk)
        o = [u[1], u[2], XO, XO + 4, XO + 8]
        ops = []
        for d in range(4):
            lo = [TMP + p for p in range(4)]
            hi = [TMP + 8 + p for p in range(4)]
            for p in range(4):
                ops.append(f"v_lshlrev_b32 v{lo[p]}, 16, v{u[p]+d}")
                ops.append(f"v_and_b32 v{hi[p]}, s{sMask}, v{u[p]+d}")
            o1, r1 = eval_ops(lo, [TMP + 4 + i for i in range(4)])
            o2, r2 = eval_ops(hi, [TMP + 12 + i for i in range(4)])
            for x, y in zip(o1, o2):
                ops += [x, y]
            for i in range(5):
                ops.append(f"v_cvt_pk_bf16_f32 v{o[i]+d}, v{r1[i]}, v{r2[i]}")
        if "notr" in EXP:
            ops = ["s_nop 0"] * 8
        return ops

    if KSPLIT:
        a.e("v_lshlrev_b32 v8, 4, v6")
    for p in range(4):
        if KSPLIT:
            haddr(vX + p, 7, 8, p, 9)
        else:
            a.e(f"v_add_u32 v{vX+p}, {p*1024}, v7")
    a.e(f"v_and_b32 v{TMP}, 4, v5")
    a.e(f"v_lshrrev_b32 v{TMP}, 1, v{TMP}")
    a.e(f"v_xor_b32 v{TMP}, v6, v{TMP}")
    a.e(f"v_lshlrev_b32 v{TMP}, 4, v{TMP}")
    a.e(f"v_lshl_add_u32 v{TMP}, v5, 6, v{TMP}")
    a.e(f"s_mov_b32 s{sXo}, 0")
    a.e(f"s_mov_b32 s{sXo2}, {4*PLH}")
    kwait()
    stamp(2)
    P0 = os.environ.get("P0", "0")
    if P0 == "0" or KSPLIT:
        for p in range(4):
            xload(0, p)
            if p == 1 and P0 == "2":
                a.e("s_barrier")
    else:
        for half in range(2):
            for p in range(4):
                a.vmem(f"buffer_load_dwordx4 {vr(praw(0, half, p))}, v{vX+p}, {sr(sX)}, s{sXo} offen offset:{half*64}", ("X", 0))
            if half == 0 and P0 == "2":
                a.e("s_barrier")
        for p in range(4):
            a.e(f"v_add_u32 v{vX+p}, 128, v{vX+p}")
    if P0 != "2" and "b0" in EXP:
        a.e("s_barrier")
    a.e(f"s_mul_i32 s36, s42, {FB}")
    a.e(f"v_add_u32 v{vW[0]}, s36, v{TMP}")
    a.e(f"v_add_u32 v{vW[1]}, {4*SEQB}, v{vW[0]}")
    a.e(f"s_mul_i32 s36, s42, {FB6}")
    a.e(f"s_add_u32 s36, s36, {6*SEQB}")
    a.e(f"v_add_u32 v{vW[2]}, s36, v{TMP}")
    stamp(3)
    a.e(f"s_waitcnt vmcnt({0 if P0 == '0' else 4})")
    stamp(4)
    a.e(f"s_mov_b32 s{sK}, 0")
    a.e(f"s_mov_b32 s{sCnt}, {N//4}")
    a.e(f"s_cmp_ge_u32 s{sWv}, 12")
    a.e(f"s_cbranch_scc1 L_{name}_h2")

    def hwave(role):
        SH = 33 * int(os.environ.get(f"SH{role}", "0" if role == 1 else "4"))
        ahead = 2 if SH else 1
        a.vm, a.lg = [], []
        wr(0, 3)
        wr(0, 6)
        for op in tr_ops(0):
            a.e(op)
        for i in (0, 1, 2, 4, 5):
            wr(0, i)
        a.e("s_waitcnt vmcnt(0)")
        NF = int(os.environ.get("NF", "2"))
        if KSPLIT:
            a.e(f"s_mov_b32 s{sXo}, {8*PLH}")
            a.e(f"s_mov_b32 s{sXo2}, {12*PLH}")
        X1 = os.environ.get("X1", "1")
        if X1 == "0":
            for p in range(4 if SH else NF):
                xload(1, p)
        stamp(5)
        a.wait(lg_all=True)
        stamp(6)
        a.e("s_barrier")
        stamp(7)
        rstamp(12)
        if X1 == "1":
            for p in range(4 if SH else NF):
                xload(1, p)
        PA, PB_ = os.environ.get(f'PH{role}', '11' if role == 1 else '00')
        a.e(f"s_setprio {PA}")
        for op in tr_ops(1)[:SH]:
            a.e(op)
        VPF = int(os.environ.get("VPF", "0")) if role == 1 and not KSPLIT and XL == 3 else 0
        if VPF:
            a.e(f"s_lshl_b32 s36, s{sCb}, 6")
            a.e(f"s_lshl_b32 s37, s{sH}, 3")
            a.e("s_add_u32 s36, s36, s37")
            a.e("s_lshl_b32 s36, s36, 10")
            a.e("s_add_u32 s36, s36, s41")
            a.e(f"s_add_u32 s36, s36, {VPF*128}")
            a.e(f"v_and_b32 v100, 7, v{vL}")
            a.e("v_lshl_add_u32 v100, v100, 10, s36")

        def vpf(k):
            a.e(f"s_cmp_lt_u32 s{sK}, {N - 2*VPF}")
            a.e(f"s_cselect_b32 s36, 0, {OOB}")
            a.vmem(f"buffer_load_dword v99, v100, {sr(sX)}, s36 offen", "PF")
            a.e(f"v_add_u32 v100, {(128 - 32768) & 0xffffffff if k & 1 else 32768}, v100")
        XP = [float(x) for x in os.environ.get(f"XP{role}", "0.2,0.6,0.02,0.15" if SH else "0.3,0.7,0.1,0.5").split(",")]

        def period(k, pos, last=False):
            pair = (k >> 1) + 2 if SH else (k + 3) >> 1
            first = not (k & 1) if SH else (k & 1)
            if pos == 4 - ahead and not last:
                a.e(f"s_cmp_eq_u32 s{sCnt}, 1")
                a.e(f"s_cbranch_scc1 L_{name}_hlast{role}")
            if "hst" in EXP and pos == 1:
                stamp(2)
            V1 = tr_ops(k + 1)[SH:]
            V2 = [] if last else tr_ops(k + 2)[:SH]
            V = V1 + V2
            n = len(V)
            ev = {}

            def at(i, f):
                ev.setdefault(max(0, min(int(i), n)), []).append(f)

            def stores():
                if "hst" in EXP and pos == 1:
                    stamp(3)
                for i in range(7):
                    wr(k + 1, i)
                if "hst" in EXP and pos == 1:
                    stamp(4)
                if PA != PB_:
                    a.e(f"s_setprio {PB_}")
            if PA != PB_:
                a.e(f"s_setprio {PA}")
            if VPF and not last:
                at(float(os.environ.get("VPP", "1.0")) * n, lambda: vpf(k))
            at(len(V1), stores)
            if not last:
                if not KSPLIT:
                    a.e(f"s_cmp_lt_u32 s{sK}, {N - 2 - ahead}")
                    a.e(f"s_cselect_b32 s{sXo}, 0, {OOB}")
                elif first:
                    a.e(f"s_add_u32 s{sXo}, s{sXo}, {8*PLH}")
                    a.e(f"s_add_u32 s{sXo2}, s{sXo2}, {8*PLH}")
                at(len(V1) if SH else 0, lambda: a.wait(vm=(("X", (k + ahead) >> 1),)))
                if "nox" not in EXP:
                    for p in (range(NF) if first else range(NF, 4)):
                        w = len(V1) + XP[p] * SH if SH and first else XP[p] * n
                        at(w, lambda p=p: xload(pair, p))
            for i in range(n + 1):
                for f in ev.get(i, []):
                    f()
                if i < n:
                    a.e(V[i])
            if not last:
                a.e(f"s_add_u32 s{sK}, s{sK}, 1")
            if "hst" in EXP and pos == 1:
                stamp(5)
            a.e("s_waitcnt lgkmcnt(0)")
            a.lg = []
            a.e("s_barrier")
            if "hst" in EXP and pos == 1:
                stamp(6)

        body = steady(period, 4, "nox" not in EXP)
        a.label(f"L_{name}_hloop{role}")
        a.L.extend(body)
        a.e(f"s_sub_u32 s{sCnt}, s{sCnt}, 1")
        a.e(f"s_branch L_{name}_hloop{role}")
        a.label(f"L_{name}_hlast{role}")
        a.vm, a.lg = [], []

        def last_period():
            vm = a.vm
            a.vm, a.lg = [], []
            if SH:
                a.e(f"s_mov_b32 s{sMask}, 0xffff0000")
                period(2, 2, True)
            a.vm = vm
        if role == 1 or KSPLIT:
            last_period()
        else:
            assert SH
            W2L = os.environ.get("W2L", "0") == "1"
            if W2L:
                last_period()
            a.e("s_waitcnt vmcnt(0)")
            a.e(f"s_mov_b32 s58, s{sWv}")
            a.e(f"s_lshl_b32 s20, s2, 2")
            a.e(f"s_add_u32 s20, s20, s{sH}")
            a.e(f"v_mov_b32 v1, v{vL}")
            if os.environ.get("W2", "1") == "2":
                wprep2(a, 16, WS_W2P, last_period)
            else:
                wprep(a, 16, WS_W2P, True, barrier=None if W2L else last_period)
            a.e(f"s_mov_b32 s{sWv}, s58")
        if role == 1 and KSPLIT and "tailwarm" in EXP:
            add64(a, sW, 30, WS_WF)
            a.e(f"s_mov_b32 s{sW+2}, {262144 + 32768}")
            a.e(f"s_mov_b32 s{sW+3}, 0x00020000")
            a.e("s_lshr_b32 s36, s2, 3")
            a.e("s_lshl_b32 s36, s36, 2")
            a.e(f"s_add_u32 s36, s36, s{sH}")
            a.e("s_mul_i32 s36, s36, 2304")
            a.e(f"v_lshlrev_b32 v1, 4, v{vL}")
            for i in range(3):
                a.e(f"buffer_load_dwordx4 v[4:7], v1, {sr(sW)}, s36 offen offset:{i*1024}")
        if role == 1 and "tw" in EXP:
            a.e(f"s_cmp_ge_u32 s2, {os.environ.get('TWN', '32')}")
            a.e(f"s_cbranch_scc1 L_{name}_ntw")
            a.e("s_getpc_b64 s[36:37]")
            a.label(f"L_{name}_pc")
            a.e(f"s_lshl_b32 s38, s{sH}, 13")
            a.e(f"s_add_u32 s38, s38, L_{name}_epi-L_{name}_pc")
            a.e(f"v_lshl_add_u32 v2, v{vL}, 7, s38")
            a.e(f"v_min_u32 v2, {0x7fc0de01 + KSPLIT:#x}, v2")
            a.e("v_mov_b32 v3, s37")
            a.e("v_add_co_u32 v2, vcc, s36, v2")
            a.e("s_nop 1")
            a.e("v_addc_co_u32 v3, vcc, 0, v3, vcc")
            a.e("global_load_dword v4, v[2:3], off")
            a.label(f"L_{name}_ntw")
        stamp(8)
        rstamp(13)
        a.e(f"s_branch L_{name}_end")

    hwave(1)
    a.label(f"L_{name}_h2")
    hwave(2)

    a.label(f"L_{name}_epi")
    K = [sr(x, 2) for x in KS]
    a.e("s_waitcnt lgkmcnt(0)")
    a.e("s_barrier")
    if "est" in EXP:
        stamp(2)
    a.e(f"v_cndmask_b32 v{vO}, v{t3}, v{t2}, vcc")

    def P(c, s, r=0):
        return c * 32 + s * 4 + r
    Y = 64
    TB = 96
    ELS = (0, 1, 2)
    for c in range(2):
        for s_ in range(8):
            if c == 1 and s_ == 7:
                a.e("s_waitcnt lgkmcnt(7)")
            u = UNIT[s_][c]
            a.e(f"ds_read_b128 {vr(P(c, s_))}, v{R0[u >> 16]} offset:{u & 0xffff}")

    def p2(x):
        return vr(x, 2)

    def padd(d, x, y):
        return f"v_pk_add_f32 {p2(d)}, {p2(x)}, {p2(y)}"

    def psub(d, x, y):
        return f"v_pk_add_f32 {p2(d)}, {p2(x)}, {p2(y)} neg_lo:[0,1] neg_hi:[0,1]"

    def pfma(d, x, k, y, neg=False):
        return f"v_pk_fma_f32 {p2(d)}, {p2(x)}, {k}, {p2(y)}" + (" neg_lo:[0,0,1] neg_hi:[0,0,1]" if neg else "")

    def interp(c):
        seq = []
        for r in (0, 2):
            E0, A, B, C, D, Q, E6, E6b = (P(c, x, r) for x in range(8))
            y = [Y + ph * 8 + c * 4 + r for ph in range(4)]
            S1, G = E6, C
            seq.append([
                padd(y[3], E6, E6b),
                padd(S1, A, B),
                psub(A, A, B),
                padd(y[1], C, D),
                psub(G, C, D),
                pfma(y[1], S1, K[0], y[1]),
                pfma(Q, E0, K[3], Q),
                pfma(y[1], E0, K[1], y[1]),
                psub(S1, S1, E0),
                pfma(y[1], y[3], K[2], y[1]),
                psub(S1, S1, y[3]),
                pfma(Q, y[3], K[6], Q),
                psub(B, S1, y[1]),
                pfma(Q, y[1], K[5], Q),
                f"v_pk_mul_f32 {p2(y[2])}, {p2(G)}, {K[9]}",
                pfma(Q, B, K[4], Q),
                pfma(y[2], A, K[10], y[2]),
                pfma(y[0], A, K[7], Q, True),
                pfma(y[0], G, K[8], y[0]),
                pfma(y[2], y[0], K[11], y[2]),
                psub(A, A, y[0]),
                psub(A, A, y[2]),
            ])
        for ops in zip(*seq):
            for op in ops:
                a.e(op)

    a.e("s_waitcnt lgkmcnt(8)")
    interp(0)
    a.e("s_waitcnt lgkmcnt(0)")
    interp(1)
    if "est" in EXP:
        stamp(3)
    a.e("s_mov_b32 s36, 0x00010001")
    a.e("s_mov_b32 s37, 0x00010001")
    a.e("s_mov_b64 exec, s[36:37]")
    for k in range(3):
        for c in range(2):
            a.e(f"ds_write_b128 v{vBW}, {vr(P(c, ELS[k]))} offset:{(k*2+c)*16}")
    a.e("s_mov_b64 exec, -1")

    def finish(ph):
        ys = [Y + ph * 8 + i for i in range(8)]
        if not KSPLIT:
            ts = [16 + (ph & 1) * 8 + i for i in range(8)]
            ev = list(zip(ys[::2], ts[::2]))
            for y, t in ev:
                a.e(f"v_pk_mul_f32 {p2(t)}, {p2(y)}, {p2(y)}")
            for y, t in ev:
                a.e(pfma(t, t, K[12], 44))
            for y, t in ev:
                a.e(f"v_pk_mul_f32 {p2(t)}, {p2(t)}, {p2(y)}")
            for t in ts:
                a.e(f"v_exp_f32 v{t}, v{t}")
            for y, t in ev:
                a.e(f"v_pk_add_f32 {p2(t)}, {p2(t)}, {K[13]}")
            for t in ts:
                a.e(f"v_rcp_f32 v{t}, v{t}")
            for y, t in ev:
                a.e(f"v_pk_mul_f32 {p2(y)}, {p2(y)}, {p2(t)}")
        o = 48 + ph * 4
        for r in range(4):
            a.e(f"v_cvt_pk_bf16_f32 v{o+r}, v{ys[r]}, v{ys[4+r]}")
        so = ph * PLF if KSPLIT else ((ph + 3) & 3) * PLH + ((ph + 7) >> 2) * 64
        a.e(f"s_mov_b32 s44, {so}")
        a.e(f"buffer_store_dwordx4 {vr(o)}, v{vO}, {sr(sO)}, s44 offen{NTF if KSPLIT else NTH}")

    a.e(f"v_mov_b32 v44, {f32hex(k0)}")
    a.e("v_mov_b32 v45, v44")
    finish(0)
    a.e("s_waitcnt lgkmcnt(0)")
    a.e("s_barrier")
    if "est" in EXP:
        stamp(4)
    for i in range(6):
        a.e(f"ds_read_b128 {vr(TB+4*i)}, v{vBW} offset:{512 + i*16}")
    for ph in range(1, 4):
        a.e(f"s_waitcnt lgkmcnt({6 - 2*ph})")
        for c in range(2):
            for r in range(4):
                i = (ph - 1) * 8 + c * 4 + r
                a.e(f"v_mov_b32_dpp v{TB+i}, v{P(c, ELS[ph-1], r)} row_shl:1 row_mask:0xf bank_mask:0xf")
        for i in range(0, 8, 2):
            a.e(padd(Y + ph * 8 + i, Y + ph * 8 + i, TB + (ph - 1) * 8 + i))
        finish(ph)
    if "est" in EXP:
        stamp(5)
    RB = os.environ.get("RB", "00")[int(KSPLIT)]
    if RB != "0":
        if not KSPLIT:
            a.e(f"s_cmp_ge_u32 s{sCb}, {RB}")
            a.e(f"s_cbranch_scc1 L_{name}_end")
        a.e("s_waitcnt vmcnt(0)")
        for ph in range(4):
            so = ph * PLF if KSPLIT else ((ph + 3) & 3) * PLH + ((ph + 7) >> 2) * 64
            a.e(f"s_mov_b32 s44, {so}")
            a.e(f"buffer_load_dword v0, v{vO}, {sr(sO)}, s44 offen")
    a.label(f"L_{name}_end")
    if STAMP:
        a.e("s_waitcnt vmcnt(0)")
        stamp(9, False)
        a.e(f"s_memrealtime s[{sSt+22}:{sSt+23}]")
        a.e(f"s_cmp_lg_u32 s{sWv}, {os.environ.get('SW', '0')}")
        a.e(f"s_cbranch_scc1 L_{name}_done")
        a.e("s_lshl_b32 s36, s2, 7")
        a.e(f"s_add_u32 s36, s36, {WS_STAMP + cfg['stamp']*0x10000}")
        add64(a, 40, 30, "s36")
        a.e("s_mov_b32 s42, 128")
        a.e("s_mov_b32 s43, 0x00020000")
        a.e("s_waitcnt lgkmcnt(0)")
        a.e("v_mov_b32 v8, 0")
        for i in range(28):
            a.e(f"v_mov_b32 v0, s{sSt+i}")
            a.e(f"buffer_store_dword v0, v8, s[40:43], 0 offen offset:{4*i}")
    a.label(f"L_{name}_done")
    a.e("s_endpgm")
    return a.L, TOPB + 40960, 128


CONV1 = dict(tin=16000, tout=8000, nchunk=16, ksplit=False, in_arg=0, in_off=0, w_off=WS_W1P, out_off=WS_H, stamp=0)
CONV2 = dict(tin=8000, tout=4000, nchunk=8, ksplit=True, in_arg=72, in_off=WS_H, w_off=WS_W2P, out_off=WS_FP, stamp=1)

HEADER = f"""; Kernarg layout for this problem (80 bytes, ptrs only, base s[0:1]):
"""


def main():
    ks = [("prep_kernel", 268, 256) + prep_kernel("prep_kernel"),
          ("conv1_kernel", 256, 1024) + conv_kernel("conv1_kernel", CONV1),
          ("conv2_kernel", 256, 1024) + conv_kernel("conv2_kernel", CONV2)]
    ks = joint_kernels(ks)
    out = HEADER
    for nm, grid, block, code, lds, vg in ks:
        out += f"; @launch kernel={nm} grid=({grid},1,1) block=({block},1,1) lds={lds}\n"
    out += '.amdgcn_target "amdgcn-amd-amdhsa--gfx950"\n.text\n'
    for nm, grid, block, code, lds, vg in ks:
        if "noalign" not in EXP:
            code = align8(code)
        out += f".globl {nm}\n.p2align 8\n.type {nm},@function\n" + "\n".join(code) + "\n"
    out += '.section .rodata,"a"\n'
    for nm, grid, block, code, lds, vg in ks:
        out += ".p2align 6\n" + kd(nm, vg)
    out = out.replace("0x7fc0de00", "L_joint_kernel_done-L_prep_kernel_pc")
    out = out.replace("0x7fc0de01", "L_conv2_kernel_done-L_conv1_kernel_pc")
    out = out.replace("0x7fc0de02", "L_joint_kernel_done-L_conv2_kernel_pc")
    path = sys.argv[1] if len(sys.argv) > 1 else "standalone__seq2seq_rnn_t_joint__speech.s"
    open(path, "w").write(out)


if __name__ == "__main__":
    main()
```

```python
import os
from asmlib import Asm, vr, sr, f32hex

EXP = os.environ.get("EXP", "").split(",")
WS_FP = 0x1A00000
WS_FPS = 0x800000
PLF = int(os.environ.get('PLF', 65536))
WS_WF = 0x2A00000
WS_WO = 0x2A20000
WS_GE = 0x2A40000
WS_STAMP = 0x3000000
C2 = 2.0 * 1.4426950408889634
RANGE = 120.0


def add64(a, d, lo, off):
    a.e(f"s_add_u32 s{d}, s{lo}, {off}")
    a.e(f"s_addc_u32 s{d+1}, s{lo+1}, 0")


def small_select(a):
    a.e("s_lshr_b32 s41, s3, 2")
    a.e("s_and_b32 s42, s3, 3")
    a.e("s_lshl_b32 s42, s42, 1")
    a.e("s_and_b32 s43, s40, 1")
    a.e("s_add_u32 s42, s42, s43")
    a.e("s_lshr_b32 s43, s40, 1")
    a.e("s_lshl_b32 s4, s43, 16")
    a.e("s_lshl_b32 s5, s42, 6")
    a.e("s_add_u32 s4, s4, s5")
    a.e("s_cmp_lt_u32 s3, 12")
    a.e("s_cselect_b32 s26, s4, s26")
    a.e("s_cselect_b32 s10, 131072, s10")
    a.e(f"s_mov_b32 s5, {2*131072}")
    a.e("s_cselect_b32 s5, 16384, s5")


def small_ptr(a):
    for m, sg in ((0, 52), (1, 56), (2, 54)):
        a.e(f"s_cmp_eq_u32 s41, {m}")
        a.e(f"s_cselect_b32 s8, s{sg}, s8")
        a.e(f"s_cselect_b32 s9, s{sg+1}, s9")


def small_g(a, name):
    a.e("s_cmp_lg_u32 s41, 2")
    a.e(f"s_cbranch_scc1 L_{name}_nog")
    a.e("s_mov_b32 s16, s50")
    a.e("s_mov_b32 s17, s51")
    a.e("s_mov_b32 s18, 8192")
    a.e("s_mov_b32 s19, 0x00020000")
    a.e("v_and_b32 v6, 0x30, v1")
    a.e("v_lshl_add_u32 v6, v3, 9, v6")
    a.e("s_lshl_b32 s6, s43, 8")
    for k in range(4):
        a.e(f"buffer_load_dwordx4 {vr(80+4*k)}, v6, s[16:19], s6 offen offset:{k*64}")
    a.label(f"L_{name}_nog")


def small_tail(a, name):
    a.label(f"L_{name}_small")
    R, O = 16, 48
    a.e("v_lshrrev_b32 v2, 4, v1")
    a.e("s_lshl_b32 s24, s41, 17")
    a.e(f"s_add_u32 s24, s24, {WS_WF}")
    add64(a, 12, 30, "s24")
    a.e("s_mov_b32 s14, 131072")
    a.e("s_mov_b32 s15, 0x00020000")
    a.e("s_mov_b32 s32, 0x05040100")
    a.e("s_mov_b32 s33, 0x07060302")
    a.e("v_lshlrev_b32 v4, 4, v1")
    a.e("s_lshl_b32 s24, s42, 14")
    a.e("s_lshl_b32 s25, s43, 13")
    a.e("s_add_u32 s24, s24, s25")
    a.e("s_add_u32 s25, s24, 4096")
    a.e("s_waitcnt vmcnt(0)")
    for k in range(4):
        for jn in range(2):
            for e2 in range(4):
                a.e(f"v_perm_b32 v{O+(k*2+jn)*4+e2}, v{R+k*8+2*e2+1}, v{R+k*8+2*e2}, s{32+jn}")
    a.e("s_cmp_eq_u32 s41, 2")
    a.e(f"s_cbranch_scc1 L_{name}_ge")
    for i in range(8):
        a.e(f"buffer_store_dwordx4 {vr(O+4*i)}, v4, s[12:15], s{24+(i>>2)} offen offset:{(i&3)*1024} sc1")
    a.e("s_endpgm")
    a.label(f"L_{name}_ge")
    ACC = 96
    for k in range(4):
        for jn in range(2):
            c = "0" if k == 0 else vr(ACC + 4 * jn)
            a.e(f"v_mfma_f32_16x16x32_bf16 {vr(ACC+4*jn)}, {vr(O+(k*2+jn)*4)}, {vr(80+4*k)}, {c}")
    a.e("s_and_b32 s24, s40, 1")
    a.e("s_lshl_b32 s24, s24, 11")
    a.e("v_add_u32 v7, s24, v4")
    a.e("s_mov_b32 s14, 16384")
    a.e("v_lshlrev_b32 v8, 10, v3")
    a.e("v_lshl_add_u32 v8, v2, 5, v8")
    a.e("s_lshl_b32 s24, s42, 7")
    a.e("s_mov_b32 s34, 0xffff0000")
    a.e(f"s_mov_b32 s35, {f32hex(C2)}")
    a.e("s_cmp_eq_u32 s43, 0")
    a.e(f"s_cbranch_scc1 L_{name}_ge0")
    a.e(f"ds_write_b128 v7, {vr(ACC)}")
    a.e(f"ds_write_b128 v7, {vr(ACC+4)} offset:1024")
    a.e("s_waitcnt lgkmcnt(0)")
    a.e("s_barrier")
    a.e("s_endpgm")
    a.label(f"L_{name}_ge0")
    a.e("s_barrier")
    a.e(f"ds_read_b128 {vr(16)}, v7")
    a.e(f"ds_read_b128 {vr(20)}, v7 offset:1024")
    a.e("s_waitcnt lgkmcnt(0)")
    for r in range(8):
        a.e(f"v_add_f32 v{16+r}, v{16+r}, v{ACC+r}")
    for i in range(4):
        a.e(f"v_cvt_pk_bf16_f32 v{48+i}, v{16+i}, v{20+i}")
    for i in range(4):
        a.e(f"v_lshlrev_b32 v{56+2*i}, 16, v{48+i}")
        a.e(f"v_and_b32 v{57+2*i}, s34, v{48+i}")
    for r in range(8):
        a.e(f"v_mul_f32 v{56+r}, s35, v{56+r}")
    a.e(f"buffer_store_dwordx4 {vr(56)}, v8, s[12:15], s24 offen sc1")
    a.e(f"buffer_store_dwordx4 {vr(60)}, v8, s[12:15], s24 offen offset:16 sc1")
    for r in range(8):
        a.e(f"v_exp_f32 v{64+r}, v{56+r}")
    a.e("v_max3_f32 v72, |v56|, |v57|, |v58|")
    a.e("v_max3_f32 v72, |v59|, |v60|, v72")
    a.e("v_max3_f32 v72, |v61|, |v62|, v72")
    a.e("v_max_f32 v72, |v63|, v72")
    add64(a, 12, 12, 16384)
    a.e(f"v_cmp_lt_f32 vcc, {f32hex(RANGE)}, v72")
    a.e(f"buffer_store_dwordx4 {vr(64)}, v8, s[12:15], s24 offen sc1")
    a.e(f"buffer_store_dwordx4 {vr(68)}, v8, s[12:15], s24 offen offset:16 sc1")
    add64(a, 12, 12, 16384)
    a.e("s_or_b32 s26, vcc_lo, vcc_hi")
    a.e("s_lshl_b32 s24, s42, 2")
    a.e("v_mov_b32 v73, s26")
    a.e("v_mov_b32 v74, 0")
    a.e("buffer_store_dword v73, v74, s[12:15], s24 offen sc1")
    a.e("s_endpgm")


def joint_kernel(name):
    a = Asm()
    NWG = 250
    STAMP = "stamp" in EXP
    FP = 528
    EP = 144
    J_B, F_B = 0, 32768
    E_B = F_B + 32 * FP
    GE_B = E_B + 8 * 36 * EP
    C_B = GE_B + 8 * 1040
    LDS = C_B + 16
    SPIN = 'nospin' not in EXP
    sF, sW, sO, sG = 8, 12, 16, 40
    sWv, sV, sCnt = 20, 21, 22
    sSt = 64
    vL, vL16 = 127, 126
    NTO = os.environ.get("NTO", " nt")

    def stamp(i, fence=True):
        if STAMP:
            a.e(f"s_memtime s[{sSt+2*i}:{sSt+2*i+1}]")
            if fence:
                a.e("s_waitcnt lgkmcnt(0)")
                a.lg = []

    def rstamp(i):
        if STAMP:
            a.e(f"s_memrealtime s[{sSt+2*i}:{sSt+2*i+1}]")
            a.e("s_waitcnt lgkmcnt(0)")
            a.lg = []

    a.label(name)
    if "local" in EXP:
        a.e("s_cmp_ge_u32 s2, 256")
        a.e(f"s_cbranch_scc1 L_{name}_done")
        a.e("s_and_b32 s3, s2, 7")
        a.e("s_lshr_b32 s2, s2, 3")
        a.e("s_mul_i32 s4, s3, 125")
        a.e("s_add_u32 s5, s4, 128")
        a.e("s_add_u32 s4, s4, 3")
        a.e("s_lshr_b32 s4, s4, 2")
        a.e("s_lshr_b32 s5, s5, 2")
        a.e("s_add_u32 s2, s2, s4")
        a.e("s_cmp_ge_u32 s2, s5")
    else:
        a.e(f"s_cmp_ge_u32 s2, {NWG}")
    a.e(f"s_cbranch_scc1 L_{name}_done")
    if STAMP:
        for i in range(28):
            a.e(f"s_mov_b32 s{sSt+i}, 0")
        a.e(f"s_memrealtime s[{sSt+20}:{sSt+21}]")
    stamp(0, False)
    a.e("s_load_dwordx2 s[28:29], s[0:1], 56")
    a.e("s_load_dwordx2 s[30:31], s[0:1], 72")
    a.e(f"v_readfirstlane_b32 s{sWv}, v0")
    a.e(f"s_lshr_b32 s{sWv}, s{sWv}, 6")
    a.e(f"s_and_b32 s{sV}, s{sWv}, 7")
    a.e(f"v_and_b32 v{vL}, 63, v0")
    a.e(f"v_lshlrev_b32 v{vL16}, 4, v{vL}")
    a.e(f"s_cmp_ge_u32 s{sWv}, 8")
    a.e(f"s_mov_b32 s33, {WS_WO}")
    a.e(f"s_cselect_b32 s33, {WS_WF}, s33")
    a.e(f"s_lshl_b32 s36, s{sV}, 14")
    a.e("s_add_u32 s33, s33, s36")
    a.e(f"s_mov_b32 s{sW+2}, 16384")
    a.e(f"s_mov_b32 s{sW+3}, 0x00020000")
    a.e("s_lshl_b32 s35, s2, 9")
    a.e("s_cmp_ge_u32 s2, 125")
    a.e(f"s_cselect_b32 s36, {32*PLF - 125*512}, 0")
    a.e("s_cselect_b32 s34, 8192, 0")
    a.e("s_add_u32 s35, s35, s36")
    a.e(f"s_add_u32 s34, s34, {WS_GE}")
    a.e(f"s_mov_b32 s{sF+2}, {WS_FPS + 64*PLF}")
    a.e(f"s_mov_b32 s{sF+3}, 0x00020000")
    a.e(f"s_mov_b32 s{sG+2}, {16384 + 8192}")
    a.e(f"s_mov_b32 s{sG+3}, 0x00020000")
    a.e("s_waitcnt lgkmcnt(0)")
    add64(a, sW, 30, "s33")
    add64(a, sG, 30, "s34")
    W = 0

    def arrive_wait(mine, other, lbl, v):
        a.e(f"v_mov_b32 v{v}, {C_B}")
        a.e(f"v_mov_b32 v{v+1}, 1")
        a.e("s_mov_b64 exec, 1")
        a.e(f"ds_add_u32 v{v}, v{v+1} offset:{4*mine}")
        a.e("s_mov_b64 exec, -1")
        a.label(lbl)
        a.e(f"ds_read_b32 v{v+1}, v{v} offset:{4*other}")
        a.e("s_waitcnt lgkmcnt(0)")
        a.e(f"v_readfirstlane_b32 s37, v{v+1}")
        a.e("s_cmp_ge_u32 s37, 8")
        a.e(f"s_cbranch_scc1 {lbl}_d")
        a.e("s_sleep 1")
        a.e(f"s_branch {lbl}")
        a.label(f"{lbl}_d")

    def wload(ks):
        if ks % 2 == 0:
            a.e(f"s_mov_b32 s36, {ks*2048}")
        for jn in range(2):
            i = ks * 2 + jn
            a.vmem(f"buffer_load_dwordx4 {vr(W+4*i)}, v{vL16}, {sr(sW)}, s36 offen offset:{(i%4)*1024}", ("W", ks))

    a.e(f"s_cmp_ge_u32 s{sWv}, 8")
    a.e(f"s_cbranch_scc1 L_{name}_T")

    add64(a, sF, 30, WS_FP)
    X = 64
    a.e(f"v_mov_b32 v0, {C_B}")
    a.e("v_mov_b32 v2, 0")
    a.e("v_mov_b32 v3, 0")
    a.e("ds_write_b64 v0, v[2:3]")
    a.e(f"v_lshrrev_b32 v124, 5, v{vL}")
    a.e(f"v_and_b32 v123, 0x1ff, v{vL16}")
    a.e(f"v_mul_u32_u24 v125, {PLF}, v124")
    a.e("v_add_u32 v123, v125, v123")
    a.e(f"s_mul_i32 s36, s{sV}, {4*PLF}")
    a.e("s_add_u32 s36, s36, s35")
    for r2 in range(2):
        a.e(f"s_add_u32 s37, s36, {WS_FPS}")
        a.vmem(f"buffer_load_dwordx4 {vr(X+4*r2)}, v123, {sr(sF)}, s36 offen", ("F", r2))
        a.vmem(f"buffer_load_dwordx4 {vr(X+8+4*r2)}, v123, {sr(sF)}, s37 offen", ("F", r2))
        if r2 == 0:
            a.e(f"s_add_u32 s36, s36, {2*PLF}")
    a.e(f"s_lshl_b32 s38, s{sV}, 10")
    a.e("s_add_u32 s38, s38, 16384")
    a.vmem(f"buffer_load_dwordx4 {vr(X+16)}, v{vL16}, {sr(sG)}, s38 offen", "G")
    a.e("s_waitcnt lgkmcnt(0)")
    stamp(1)
    a.e("s_barrier")
    stamp(5)
    a.e("s_lshl_b32 s35, s2, 17")
    add64(a, sO, 28, "s35")
    a.e(f"s_mov_b32 s{sO+2}, 131072")
    a.e(f"s_mov_b32 s{sO+3}, 0x00020000")
    k0 = -2.0 * 1.4426950408889634 * 0.7978845608028654
    a.e(f"s_mov_b32 s46, {f32hex(k0 * 0.044715)}")
    a.e("s_mov_b32 s47, s46")
    a.e(f"v_mov_b32 v120, {f32hex(k0)}")
    a.e("v_mov_b32 v121, v120")
    a.e("s_mov_b32 s48, 1.0")
    a.e("s_mov_b32 s49, 1.0")
    a.e(f"v_bfe_u32 v123, v{vL}, 2, 3")
    a.e("v_lshl_add_u32 v124, v123, 2, v124")
    a.e(f"v_mul_u32_u24 v124, {FP}, v124")
    a.e(f"v_and_b32 v123, 0x30, v{vL16}")
    a.e(f"s_lshl_b32 s36, s{sV}, 6")
    a.e("v_add3_u32 v124, v124, v123, s36")
    a.e("s_mov_b32 s45, 0xffff0000")
    a.e(f"s_mul_i32 s36, s{sV}, 1040")
    a.e(f"s_add_u32 s36, s36, {GE_B}")
    a.e(f"v_add_u32 v123, s36, v{vL16}")
    a.e(f"s_mov_b32 s{sCnt}, 2")
    a.e("s_waitcnt vmcnt(3)")
    stamp(6)
    a.label(f"L_{name}_floop")

    def p2(x):
        return vr(x, 2)
    ys = [88 + i for i in range(8)]
    ts = [96 + i for i in range(8)]
    ev = list(zip(ys[::2], ts[::2]))
    for i in range(4):
        a.e(f"v_lshlrev_b32 v{ys[2*i]}, 16, v{X+i}")
        a.e(f"v_and_b32 v{ys[2*i+1]}, s45, v{X+i}")
        a.e(f"v_lshlrev_b32 v{ts[2*i]}, 16, v{X+8+i}")
        a.e(f"v_and_b32 v{ts[2*i+1]}, s45, v{X+8+i}")
    for y, t in ev:
        a.e(f"v_pk_add_f32 {p2(y)}, {p2(y)}, {p2(t)}")
    for y, t in ev:
        a.e(f"v_pk_mul_f32 {p2(t)}, {p2(y)}, {p2(y)}")
    for y, t in ev:
        a.e(f"v_pk_fma_f32 {p2(t)}, {p2(t)}, s[46:47], v[120:121]")
    for y, t in ev:
        a.e(f"v_pk_mul_f32 {p2(t)}, {p2(t)}, {p2(y)}")
    for t in ts:
        a.e(f"v_exp_f32 v{t}, v{t}")
    for y, t in ev:
        a.e(f"v_pk_add_f32 {p2(t)}, {p2(t)}, s[48:49]")
    for t in ts:
        a.e(f"v_rcp_f32 v{t}, v{t}")
    for y, t in ev:
        a.e(f"v_pk_mul_f32 {p2(y)}, {p2(y)}, {p2(t)}")
    for i in range(4):
        a.e(f"v_cvt_pk_bf16_f32 v{104+i}, v{ys[2*i]}, v{ys[2*i+1]}")
    a.e(f"ds_write_b128 v124, {vr(104)} offset:{F_B}")
    a.e("s_waitcnt vmcnt(0)")
    a.vm = []
    for i in range(0, 4, 2):
        for b in (X, X + 8):
            a.e(f"v_pk_mov_b32 {vr(b+i,2)}, {vr(b+4+i,2)}, {vr(b+4+i,2)} op_sel:[0,1]")
    a.e(f"v_add_u32 v124, {2*FP}, v124")
    a.e(f"s_sub_u32 s{sCnt}, s{sCnt}, 1")
    a.e(f"s_cmp_lg_u32 s{sCnt}, 0")
    a.e(f"s_cbranch_scc1 L_{name}_floop")
    a.e(f"ds_write_b128 v123, {vr(X+16)}")
    a.e("s_waitcnt lgkmcnt(0)")
    stamp(2)
    if SPIN:
        arrive_wait(0, 1, f"L_{name}_ow", 120)
    else:
        a.e("s_barrier")
    stamp(3)
    for ks in range(8):
        wload(ks)
    ACC = (64, 80)
    JR = 96
    PKR = 112
    vO = 125
    a.e(f"v_lshrrev_b32 v{vO}, 4, v{vL}")
    a.e(f"v_lshlrev_b32 v{vO}, 11, v{vO}")
    a.e(f"v_and_b32 v124, 15, v{vL}")
    a.e(f"v_lshl_add_u32 v{vO}, v124, 2, v{vO}")
    a.e(f"s_lshl_b32 s36, s{sV}, 6")
    a.e(f"v_add_u32 v{vO}, s36, v{vO}")
    SROT = os.environ.get("SROT", "")
    if SROT:
        a.e(f"s_bfe_u32 s23, s2, {0x30000 | int(SROT)}")
        a.e("s_lshl_b32 s23, s23, 14")
        a.e(f"v_add_u32 v{vO}, s23, v{vO}")
    a.e("s_mov_b32 s44, 8192")
    a.e(f"s_setprio {os.environ.get('PO', '1')}")

    def out_ops(par):
        ops = []
        ac = ACC[par]
        for rt in range(2):
            for r in range(4):
                ops.append(f"v_cvt_pk_bf16_f32 v{PKR+rt*4+r}, v{ac+rt*8+r}, v{ac+rt*8+4+r}")
                ops.append(f"buffer_store_dword v{PKR+rt*4+r}, v{vO}, {sr(sO)}, {'s44' if rt else '0'} offen offset:{r*512}{NTO}")
        ops.append(f"v_add_u32 v{vO}, 16384, v{vO}")
        if SROT:
            ops.append(f"v_and_b32 v{vO}, 0x1ffff, v{vO}")
        return ops

    PD = 4

    def jread(par, n):
        a.lds(f"ds_read_b128 {vr(JR+4*(n%4))}, v{vL16} offset:{J_B + par*16384 + n*1024}", ("J", par, n))

    def ustep(par, side):
        for n in range(16):
            ks, rt = n >> 1, n & 1
            a.wait(lg=(("J", par, n),), vm=(("W", ks),))
            for jn in range(2):
                ac = ACC[par] + rt * 8 + 4 * jn
                c = "0" if ks == 0 else vr(ac)
                a.e(f"v_mfma_f32_16x16x32_bf16 {vr(ac)}, {vr(JR+4*(n%4))}, {vr(W+(ks*2+jn)*4)}, {c}")
                if n >= 3 and side:
                    a.e(side.pop(0))
            if n + PD == 16:
                a.wait(lg_all=True)
                a.e("s_barrier")
            if n + PD < 16:
                jread(par, n + PD)
            else:
                jread(1 - par, n + PD - 16)
        assert not side

    stamp(4)
    a.e("s_barrier")
    for n in range(PD):
        jread(0, n)
    ustep(0, [])
    lg0 = list(a.lg)
    stamp(7)
    rstamp(12)
    a.lg = list(lg0)
    a.e(f"s_mov_b32 s{sCnt}, 4")
    a.label(f"L_{name}_oloop")
    ustep(1, out_ops(0))
    a.e(f"s_sub_u32 s{sCnt}, s{sCnt}, 1")
    a.e(f"s_cmp_eq_u32 s{sCnt}, 0")
    a.e(f"s_cbranch_scc1 L_{name}_oend")
    ustep(0, out_ops(1))
    assert a.lg == lg0
    a.e("s_waitcnt vmcnt(32)")
    a.e(f"s_branch L_{name}_oloop")
    a.label(f"L_{name}_oend")
    stamp(8, False)
    rstamp(13)
    a.e("s_nop 7")
    for op in out_ops(1):
        a.e(op)
    a.e(f"s_branch L_{name}_fin")

    a.label(f"L_{name}_T")
    a.vm, a.lg = [], []
    a.e("s_setprio 3")
    if "wwarm" in EXP:
        add64(a, sF, 30, WS_WF)
        a.e(f"s_mov_b32 s{sF+2}, 262144")
        a.e("s_lshr_b32 s36, s2, 3")
        a.e("s_lshl_b32 s36, s36, 3")
        a.e(f"s_add_u32 s36, s36, s{sV}")
        a.e("s_lshl_b32 s36, s36, 10")
        a.vmem(f"buffer_load_dwordx4 {vr(80)}, v{vL16}, {sr(sF)}, s36 offen", "P")
    a.e(f"s_lshl_b32 s36, s{sV}, 2")
    a.e(f"s_add_u32 s36, s36, {WS_GE + 32768}")
    add64(a, 36, 30, "s36")
    a.e("s_load_dword s44, s[36:37], 0")
    FE = 64
    FR = 80
    GB = 112
    vF, vG, vJ, vEW, vER, vGL = 125, 124, 123, 122, 121, 120
    a.e(f"v_and_b32 v{vJ}, 15, v{vL}")
    a.e(f"v_lshrrev_b32 v{vER}, 4, v{vL}")
    a.e(f"v_mul_u32_u24 v{vF}, {FP}, v{vJ}")
    a.e(f"v_lshl_add_u32 v{vF}, v{vER}, 4, v{vF}")
    a.e(f"v_lshlrev_b32 v{vER}, 5, v{vER}")
    a.e(f"v_and_b32 v{vGL}, 7, v{vL}")
    a.e(f"v_lshl_add_u32 v{vG}, v{vGL}, 10, v{vER}")
    a.e(f"s_lshl_b32 s38, s{sV}, 7")
    a.e(f"v_mul_u32_u24 v{vGL}, 1040, v{vGL}")
    a.e(f"s_add_u32 s36, s38, {GE_B}")
    a.e(f"v_add3_u32 v{vGL}, v{vGL}, v{vER}, s36")
    a.e(f"s_mul_i32 s36, s{sV}, {36*EP}")
    a.e(f"s_add_u32 s36, s36, {E_B}")
    a.e(f"v_add_u32 v{vER}, s36, v{vER}")
    a.e(f"v_mul_u32_u24 v{vEW}, {EP}, v{vJ}")
    a.e(f"v_add_u32 v{vEW}, v{vEW}, v{vER}")
    a.e(f"v_lshrrev_b32 v{vJ}, 3, v{vJ}")
    a.e(f"v_mul_u32_u24 v{vJ}, {EP}, v{vJ}")
    a.e(f"v_add_u32 v{vER}, v{vJ}, v{vER}")
    a.e(f"s_lshl_b32 s36, s{sV}, 11")
    a.e(f"v_add_u32 v{vJ}, s36, v{vL16}")
    a.e("s_barrier")
    NPRE = int(os.environ.get("NPRE", "8"))
    for ks in range(NPRE):
        wload(ks)
    stamp(2)
    if SPIN:
        arrive_wait(1, 0, f"L_{name}_tw", FE)
    else:
        a.e("s_waitcnt lgkmcnt(0)")
        a.e("s_barrier")
    stamp(3)

    def fread(n):
        tt, ks = n & 1, n >> 1
        a.lds(f"ds_read_b128 {vr(FR+4*(n%8))}, v{vF} offset:{F_B + tt*16*FP + ks*64}", ("A", n))

    for n in range(8):
        fread(n)
    for ks in range(NPRE, 8):
        wload(ks)
    if NPRE < 8:
        a.e("s_barrier")
    a.e(f"s_setprio {os.environ.get('PT', '0')}")
    for n in range(16):
        tt, ks = n & 1, n >> 1
        a.wait(lg=(("A", n),), vm=(("W", ks),))
        for jn in range(2):
            ac = FE + tt * 8 + jn * 4
            c = "0" if ks == 0 else vr(ac)
            a.e(f"v_mfma_f32_16x16x32_bf16 {vr(ac)}, {vr(W+(ks*2+jn)*4)}, {vr(FR+4*(n%8))}, {c}")
        if n + 8 < 16:
            fread(n + 8)
        elif n < 10:
            a.lds(f"ds_read_b128 {vr(GB+4*(n-8))}, v{vGL} offset:{(n-8)*16}", "GE")
    a.e("s_mov_b32 s46, 0xffff0000")
    a.e(f"s_mov_b32 s48, {f32hex(C2)}")
    a.e("s_mov_b32 s49, s48")
    a.e("s_nop 3")
    stamp(4)
    FS, EX, EA, XS, PK = 80, 96, 32, 48, 64
    a.e("v_mov_b32 v28, 0")
    a.wait(lg_all=True)
    for tt in range(2):
        for r in range(4):
            a.e(f"v_cvt_pk_bf16_f32 v{24+r}, v{FE+tt*8+r}, v{FE+tt*8+4+r}")
        for r in range(4):
            a.e(f"v_lshlrev_b32 v{FS+tt*8+2*r}, 16, v{24+r}")
            a.e(f"v_and_b32 v{FS+tt*8+2*r+1}, s46, v{24+r}")
        for r in range(8 * tt, 8 * tt + 8, 2):
            a.e(f"v_pk_mul_f32 {vr(FS+r,2)}, {vr(FS+r,2)}, s[48:49]")
        for h in range(2):
            for r in range(8 * tt + 4 * h, 8 * tt + 4 * h + 4):
                a.e(f"v_exp_f32 v{EX+r}, v{FS+r}")
            for r in range(4 * tt + 2 * h, 4 * tt + 2 * h + 2):
                a.e(f"v_max3_f32 v28, |v{FS+2*r}|, |v{FS+2*r+1}|, v28")
            a.e(f"ds_write_b128 v{vEW}, {vr(EX+8*tt+4*h)} offset:{tt*16*EP + h*16}")
    if SROT:
        a.e(f"v_mov_b32 v{vF}, v{vER}")
        a.e(f"s_bfe_u32 s23, s2, {0x30000 | int(SROT)}")
        a.e(f"s_mul_i32 s24, s23, {4*EP}")
        a.e(f"v_add_u32 v{vER}, s24, v{vF}")
    a.e(f"v_cmp_lt_f32 vcc, {f32hex(RANGE)}, v28")
    a.e(f"s_mov_b32 s{sCnt}, 4")
    a.e("s_or_b32 s44, s44, vcc_lo")
    a.e("s_or_b32 s44, s44, vcc_hi")
    a.e("s_cmp_lg_u32 s44, 0")
    if "slow" in EXP:
        a.e(f"s_branch L_{name}_tslow")
    a.e(f"s_cbranch_scc1 L_{name}_tslow")

    def earead():
        for rt in range(2):
            for h in range(2):
                a.lds(f"ds_read_b128 {vr(EA+8*rt+4*h)}, v{vER} offset:{rt*2*EP + h*16}", ("G", rt))
        if SROT:
            a.e("s_add_u32 s23, s23, 1")
            a.e("s_and_b32 s23, s23, 7")
            a.e(f"s_mul_i32 s24, s23, {4*EP}")
            a.e(f"v_add_u32 v{vER}, s24, v{vF}")
        else:
            a.e(f"v_add_u32 v{vER}, {4*EP}, v{vER}")

    def tcomp(fast, early=None):
        a.wait(lg=(("G", 1),))
        for i in range(16):
            if fast:
                a.e(f"v_fma_f32 v{XS+i}, v{GB+(i&7)}, v{EA+i}, 1.0")
            else:
                a.e(f"v_add_f32 v{XS+i}, v{GB+(i&7)}, v{EA+i}")
        earead()
        for rt in range(2):
            xs = [XS + 8 * rt + i for i in range(8)]
            if not fast:
                for x in xs:
                    a.e(f"v_exp_f32 v{x}, v{x}")
                for x in xs:
                    a.e(f"v_add_f32 v{x}, 1.0, v{x}")
            for x in xs:
                a.e(f"v_rcp_f32 v{x}, v{x}")
            for x in xs:
                a.e(f"v_fma_f32 v{x}, v{x}, -2.0, 1.0")
            for i in range(4):
                a.e(f"v_cvt_pk_bf16_f32 v{PK+4*rt+i}, v{xs[2*i]}, v{xs[2*i+1]}")
            if early is not None:
                twrite(early, rt)

    def twrite(par, rt):
        a.lds(f"ds_write_b128 v{vJ}, {vr(PK+4*rt)} offset:{J_B + par*16384 + rt*1024}", "W")

    def tsync():
        a.wait(lg_all=True)
        a.e("s_barrier")

    TSH = os.environ.get("TSH", "0") == "1"
    for fast in (1, 0):
        a.lg = []
        if not fast:
            a.label(f"L_{name}_tslow")
            for h in range(2):
                a.e(f"buffer_load_dwordx4 {vr(GB+4*h)}, v{vG}, {sr(sG)}, s38 offen offset:{h*16}")
            for i in range(4):
                a.e(f"ds_write_b128 v{vEW}, {vr(FS+4*i)} offset:{(i>>1)*16*EP + (i&1)*16}")
        earead()
        a.e("s_waitcnt vmcnt(0) lgkmcnt(0)")
        a.vm, a.lg = [], []
        stamp(5)
        if TSH and fast:
            tcomp(fast, 0)
            tsync()
            tcomp(fast)
            a.wait(lg_all=True)
            a.e(f"s_mov_b32 s{sCnt}, 3")
            a.label(f"L_{name}_tloop{fast}")
            for par in (1, 0):
                twrite(par, 0)
                twrite(par, 1)
                tcomp(fast)
                tsync()
            a.e(f"s_sub_u32 s{sCnt}, s{sCnt}, 1")
            a.e(f"s_cmp_lg_u32 s{sCnt}, 0")
            a.e(f"s_cbranch_scc1 L_{name}_tloop{fast}")
            twrite(1, 0)
            twrite(1, 1)
            tsync()
        else:
            a.label(f"L_{name}_tloop{fast}")
            for par in (0, 1):
                tcomp(fast, par)
                tsync()
            a.e(f"s_sub_u32 s{sCnt}, s{sCnt}, 1")
            a.e(f"s_cmp_lg_u32 s{sCnt}, 0")
            a.e(f"s_cbranch_scc1 L_{name}_tloop{fast}")
        stamp(8)
        if fast:
            a.e(f"s_branch L_{name}_fin")
    a.label(f"L_{name}_fin")
    if STAMP:
        a.e("s_waitcnt vmcnt(0)")
        stamp(9, False)
        a.e(f"s_memrealtime s[{sSt+22}:{sSt+23}]")
        a.e(f"s_cmp_lg_u32 s{sWv}, {os.environ.get('SWJ', '0')}")
        a.e(f"s_cbranch_scc1 L_{name}_done")
        a.e("s_lshl_b32 s36, s2, 7")
        a.e(f"s_add_u32 s36, s36, {WS_STAMP + 2*0x10000}")
        add64(a, 40, 30, "s36")
        a.e("s_mov_b32 s42, 128")
        a.e("s_mov_b32 s43, 0x00020000")
        a.e("s_waitcnt lgkmcnt(0)")
        a.e("v_mov_b32 v8, 0")
        for i in range(28):
            a.e(f"v_mov_b32 v0, s{sSt+i}")
            a.e(f"buffer_store_dword v0, v8, s[40:43], 0 offen offset:{4*i}")
    a.label(f"L_{name}_done")
    a.e("s_endpgm")
    return a.L, LDS, 128


def joint_kernels(ks):
    return ks + [("joint_kernel", 256 if "local" in EXP else 250, 1024) + joint_kernel("joint_kernel")]
```

```python
import os
import sys

from asmlib import Asm, vr, sr, kd, f32hex, align8
from gen10_joint import small_select, small_ptr, small_g, small_tail, joint_kernels

EXP = os.environ.get("EXP", "").split(",")

WS_W1P = 0x0000000
WS_W2P = 0x0900000
WS_H = 0x1200000
WS_FP = 0x1A00000
WS_FPS = 0x800000
WS_WF = 0x2A00000
WS_STAMP = 0x3000000

CHUNKB = 7 * 8192
FB = 1024
BB = 8 * FB
SEQB = 2 * BB
FB6 = 1088
BB6 = 8 * FB6
SPB = 6 * SEQB + 2 * BB6
TOPB = SPB + 6144
OOB = 0x7f000000
LOCAL = 'local' in EXP
PLH, PLF = int(os.environ.get('PLH', 131072)), int(os.environ.get('PLF', 65536))
NTW, NTH, NTF = ({"0": "", "1": " nt", "2": " sc1", "3": " sc0 sc1"}[c] for c in os.environ.get("NT", "222"))


def add64(a, d, lo, off):
    a.e(f"s_add_u32 s{d}, s{lo}, {off}")
    a.e(f"s_addc_u32 s{d+1}, s{lo+1}, 0")


def eval_ops(c, t):
    e1, o1, e2, o2 = t
    ops = [f"v_add_f32 v{e1}, v{c[0]}, v{c[2]}",
           f"v_add_f32 v{o1}, v{c[1]}, v{c[3]}",
           f"v_fma_f32 v{e2}, v{c[2]}, 4.0, v{c[0]}",
           f"v_fma_f32 v{o2}, v{c[3]}, 4.0, v{c[1]}",
           f"v_add_f32 v{c[1]}, v{e1}, v{o1}",
           f"v_sub_f32 v{c[2]}, v{e1}, v{o1}",
           f"v_fma_f32 v{c[3]}, v{o2}, 2.0, v{e2}",
           f"v_fma_f32 v{e2}, v{o2}, -2.0, v{e2}",
           f"v_fmamk_f32 v{e1}, v{c[0]}, {f32hex(15.0)}, v{e2}",
           f"v_fmamk_f32 v{e1}, v{o1}, {f32hex(10.0)}, v{e1}"]
    return ops, [c[1], c[2], c[3], e2, e1]


def wprep(a, karg, wsoff, ws_loaded, barrier=False, extra=None, small=None, mid=None):
    a.vm, a.lg = [], []
    a.e(f"s_load_dwordx2 s[8:9], s[0:1], {karg}")
    if not ws_loaded:
        a.e("s_load_dwordx2 s[30:31], s[0:1], 72")
    a.e("s_lshr_b32 s22, s20, 8")
    a.e("s_bfe_u32 s23, s20, 0x40004")
    a.e("s_bfe_u32 s24, s20, 0x30001")
    a.e("s_and_b32 s21, s20, 1")
    a.e("v_lshrrev_b32 v2, 4, v1")
    a.e("v_lshlrev_b32 v2, 12, v2")
    a.e("v_and_b32 v3, 15, v1")
    a.e("v_lshl_add_u32 v2, v3, 2, v2")
    a.e("s_lshl_b32 s26, s22, 3")
    a.e("s_lshr_b32 s27, s23, 3")
    a.e("s_add_u32 s26, s26, s27")
    a.e("s_lshl_b32 s26, s26, 17")
    a.e("s_and_b32 s27, s23, 7")
    a.e("s_lshl_b32 s27, s27, 14")
    a.e("s_add_u32 s26, s26, s27")
    a.e("s_lshl_b32 s27, s24, 6")
    a.e("s_add_u32 s26, s26, s27")
    a.e(f"s_mov_b32 s10, {31*131072}")
    a.e("s_mov_b32 s11, 0x00020000")
    if small:
        small_select(a)
        a.e("s_add_u32 s37, s26, s5")
        a.e("s_add_u32 s38, s37, s5")
        a.e("s_add_u32 s39, s38, s5")
    else:
        for p in range(1, 4):
            a.e(f"s_add_u32 s{36+p}, s26, {2*131072*p}")
    a.e("s_waitcnt lgkmcnt(0)")
    if small:
        small_ptr(a)
        small_g(a, "prep_kernel")
    R = 16
    for e2 in range(4):
        for p in range(4):
            for e in (2 * e2, 2 * e2 + 1):
                a.vmem(f"buffer_load_dword v{R+p*8+e}, v2, s[8:11], s{36+p if p else 26} offen offset:{e*512}", ("L", e2))
    if small:
        a.e("s_cmp_lt_u32 s3, 12")
        a.e(f"s_cbranch_scc1 {small}")
    if mid:
        mid()
    add64(a, 12, 30, wsoff)
    a.e(f"s_mov_b32 s14, {8*16*CHUNKB}")
    a.e("s_mov_b32 s15, 0x00020000")
    a.e("v_lshlrev_b32 v4, 4, v1")
    a.e("s_lshl_b32 s27, s24, 4")
    a.e("s_add_u32 s27, s27, s23")
    a.e(f"s_mul_i32 s27, s27, {CHUNKB}")
    a.e("s_lshl_b32 s28, s22, 11")
    a.e("s_add_u32 s27, s27, s28")
    a.e("s_lshl_b32 s28, s21, 10")
    a.e("s_add_u32 s27, s27, s28")
    a.e("s_cmp_eq_u32 s21, 0")
    a.e("s_mov_b32 s32, 0x07060302")
    a.e("s_cselect_b32 s32, 0x05040100, s32")
    a.e("s_mov_b32 s33, 0x03020c0c")
    a.e("s_cselect_b32 s33, 0x01000c0c, s33")
    a.e(f"s_mov_b32 s35, {f32hex(1.0/24)}")
    a.e(f"s_mov_b32 s36, {f32hex(1.0/72)}")
    if barrier:
        barrier()
    OUT = 48
    T = 76
    scale = ("0.5", "0.5", "s35", "s35", "s36")
    for e2 in range(4):
        a.wait(vm=(("L", e2),))
        if extra and e2 == int(os.environ.get("XT", "3")):
            extra()
        for p, seq in ((0, 6), (3, 0)):
            a.e(f"v_perm_b32 v{OUT+seq*4+e2}, v{R+p*8+2*e2+1}, v{R+p*8+2*e2}, s32")
        res, lists = [], []
        for e in range(2):
            cf = [T + e * 8 + i for i in range(4)]
            ops = [f"v_perm_b32 v{cf[i]}, v{cf[i]}, v{R + (3 - i) * 8 + 2 * e2 + e}, s33" for i in range(4)]
            o, rr = eval_ops(cf, [T + e * 8 + 4 + i for i in range(4)])
            ops += o + [f"v_mul_f32 v{r}, {sc}, v{r}" for r, sc in zip(rr, scale)]
            res.append(rr)
            lists.append(ops)
        for x, y in zip(*lists):
            a.e(x)
            a.e(y)
        for i in range(5):
            a.e(f"v_cvt_pk_bf16_f32 v{OUT+(1+i)*4+e2}, v{res[0][i]}, v{res[1][i]}")
    for seq in (6, 0, 1, 2, 3, 4, 5):
        a.e(f"s_add_u32 s28, s27, {seq*8192}")
        a.e(f"buffer_store_dwordx4 {vr(OUT+seq*4)}, v4, s[12:15], s28 offen{NTW}")


def wprep2(a, karg, wsoff, barrier):
    a.vm, a.lg = [], []
    a.e(f"s_load_dwordx2 s[8:9], s[0:1], {karg}")
    a.e("s_lshr_b32 s22, s20, 8")
    a.e("s_bfe_u32 s23, s20, 0x40004")
    a.e("s_bfe_u32 s24, s20, 0x30001")
    a.e("s_and_b32 s21, s20, 1")
    a.e("v_lshrrev_b32 v5, 4, v1")
    a.e("v_lshlrev_b32 v2, 11, v5")
    a.e("v_and_b32 v3, 15, v1")
    a.e("v_lshl_add_u32 v2, v3, 2, v2")
    a.e("s_lshl_b32 s26, s22, 3")
    a.e("s_lshr_b32 s27, s23, 3")
    a.e("s_add_u32 s26, s26, s27")
    a.e("s_lshl_b32 s26, s26, 17")
    a.e("s_and_b32 s27, s23, 7")
    a.e("s_lshl_b32 s27, s27, 1")
    a.e("s_add_u32 s27, s27, s21")
    a.e("s_lshl_b32 s27, s27, 13")
    a.e("s_add_u32 s26, s26, s27")
    a.e("s_lshl_b32 s27, s24, 6")
    a.e("s_add_u32 s26, s26, s27")
    a.e(f"s_mov_b32 s10, {31*131072}")
    a.e("s_mov_b32 s11, 0x00020000")
    for p in range(1, 4):
        a.e(f"s_add_u32 s{36+p}, s26, {2*131072*p}")
    add64(a, 12, 30, wsoff)
    a.e(f"s_mov_b32 s14, {8*16*CHUNKB}")
    a.e("s_mov_b32 s15, 0x00020000")
    a.e("v_lshrrev_b32 v4, 1, v5")
    a.e("v_lshlrev_b32 v4, 8, v4")
    a.e("v_lshl_add_u32 v4, v3, 4, v4")
    a.e("v_and_b32 v5, 1, v5")
    a.e("v_lshl_add_u32 v4, v5, 3, v4")
    a.e("s_lshl_b32 s27, s24, 4")
    a.e("s_add_u32 s27, s27, s23")
    a.e(f"s_mul_i32 s27, s27, {CHUNKB}")
    a.e("s_lshl_b32 s28, s22, 11")
    a.e("s_add_u32 s27, s27, s28")
    a.e("s_lshl_b32 s28, s21, 9")
    a.e("s_add_u32 s27, s27, s28")
    a.e("s_mov_b32 s32, 0x05040100")
    a.e("s_mov_b32 s33, 0x07060302")
    a.e("s_mov_b32 s34, 0xffff0000")
    a.e(f"s_mov_b32 s35, {f32hex(1.0/24)}")
    a.e(f"s_mov_b32 s40, {f32hex(1.0/72)}")
    a.e("s_waitcnt lgkmcnt(0)")
    LB = os.environ.get("W2B", "1") == "1"
    if LB:
        barrier()
    R, OUT, T = 16, 76, 104
    for e2 in range(2):
        for p in range(4):
            for e in (2 * e2, 2 * e2 + 1):
                a.vmem(f"buffer_load_dword v{R+p*4+e}, v2, s[8:11], s{36+p if p else 26} offen offset:{e*512}", ("L", e2))
    if not LB:
        barrier()
    scale = ("0.5", "0.5", "s35", "s35", "s40")

    def out(seq, c):
        return OUT + (seq * 2 + c) * 2
    for e2 in range(2):
        a.wait(vm=(("L", e2),))
        for c in range(2):
            for p, seq in ((0, 6), (3, 0)):
                a.e(f"v_perm_b32 v{out(seq, c)+e2}, v{R+p*4+2*e2+1}, v{R+p*4+2*e2}, s{32+c}")
            res, lists = [], []
            for e in range(2):
                cf = [T + e * 8 + i for i in range(4)]
                src = [R + (3 - i) * 4 + 2 * e2 + e for i in range(4)]
                ops = [f"v_and_b32 v{d}, s34, v{x}" if c else f"v_lshlrev_b32 v{d}, 16, v{x}" for d, x in zip(cf, src)]
                o, rr = eval_ops(cf, [T + e * 8 + 4 + i for i in range(4)])
                ops += o + [f"v_mul_f32 v{r}, {sc}, v{r}" for r, sc in zip(rr, scale)]
                res.append(rr)
                lists.append(ops)
            for x, y in zip(*lists):
                a.e(x)
                a.e(y)
            for i in range(5):
                a.e(f"v_cvt_pk_bf16_f32 v{out(1+i, c)+e2}, v{res[0][i]}, v{res[1][i]}")
            if e2 == 1:
                for seq in range(7):
                    a.e(f"s_add_u32 s28, s27, {seq*8192}")
                    a.e(f"buffer_store_dwordx2 {vr(out(seq, c), 2)}, v4, s[12:15], s28 offen offset:{c*1024}{NTW}")


def prep_kernel(name):
    a = Asm()
    NWG = 268
    a.label(name)
    a.e(f"s_cmp_ge_u32 s2, {NWG}")
    a.e(f"s_cbranch_scc1 L_{name}_done")
    CW = os.environ.get("CW", "late")
    CWN = int(os.environ.get("CWN", "44"))

    def code_warm():
        a.e(f"s_cmp_ge_u32 s3, {CWN}")
        a.e(f"s_cbranch_scc1 L_{name}_ncw")
        a.e("s_getpc_b64 s[62:63]")
        a.label(f"L_{name}_pc")
        a.e("s_and_b32 s64, s3, 8")
        a.e("s_lshl_b32 s64, s64, 12")
        a.e("v_lshlrev_b32 v120, 7, v0")
        a.e("v_add_u32 v120, s64, v120")
        a.e(f"v_min_u32 v120, 0x7fc0de00, v120")
        a.e("v_mov_b32 v121, s63")
        a.e("v_add_co_u32 v120, vcc, s62, v120")
        a.e("s_nop 1")
        a.e("v_addc_co_u32 v121, vcc, 0, v121, vcc")
        a.e("global_load_dword v122, v[120:121], off")
        a.label(f"L_{name}_ncw")
        return 0

    def x_warm():
        XW = int(os.environ.get("XW", "0"))
        if XW:
            a.e("s_and_b32 s64, s3, 7")
            a.e("s_lshr_b32 s65, s2, 3")
            a.e("s_lshr_b32 s66, s65, 3")
            a.e("s_lshl_b32 s64, s64, 2")
            a.e("s_add_u32 s64, s64, s66")
            a.e("s_mul_i32 s64, s64, 512000")
            a.e("s_and_b32 s65, s65, 7")
            a.e("s_lshl_b32 s65, s65, 2")
            a.e("s_add_u32 s65, s65, s40")
            a.e("s_lshl_b32 s65, s65, 14")
            a.e("s_add_u32 s64, s64, s65")
            a.e("s_sub_u32 s64, s64, 7680")
            a.e("v_lshrrev_b32 v120, 2, v1")
            a.e("v_lshlrev_b32 v120, 10, v120")
            a.e(f"v_and_b32 v121, {XW - 1}, v1")
            a.e("v_lshl_add_u32 v120, v121, 7, v120")
            a.e("v_add_u32 v120, s64, v120")
            a.e("s_mov_b32 s68, s44")
            a.e("s_mov_b32 s69, s45")
            a.e(f"s_mov_b32 s70, {2*16000*512}")
            a.e("s_mov_b32 s71, 0x00020000")
            a.vmem("buffer_load_dword v123, v120, s[68:71], 0 offen", "XW")
    a.e("s_mov_b32 s3, s2")
    if "nosw" not in EXP:
        a.e("s_cmp_ge_u32 s2, 12")
        a.e(f"s_cbranch_scc1 L_{name}_nsw")
        a.e("s_getpc_b64 s[62:63]")
        a.label(f"L_{name}_pc2")
        a.e("v_lshlrev_b32 v120, 4, v0")
        a.e(f"v_min_u32 v120, L_{name}_last-L_{name}_pc2, v120")
        a.e("v_mov_b32 v121, s63")
        a.e("v_add_co_u32 v120, vcc, s62, v120")
        a.e("s_nop 1")
        a.e("v_addc_co_u32 v121, vcc, 0, v121, vcc")
        a.e("global_load_dword v122, v[120:121], off")
        a.label(f"L_{name}_nsw")
    if CW == "early":
        code_warm()
    a.e("s_load_dwordx16 s[44:59], s[0:1], 0")
    a.e("s_sub_u32 s2, s2, 12")
    if "stamp" in EXP:
        a.e("s_memrealtime s[60:61]")
    a.e("v_readfirstlane_b32 s40, v0")
    a.e("s_lshr_b32 s40, s40, 6")
    a.e("s_lshl_b32 s21, s2, 2")
    a.e("s_add_u32 s20, s40, s21")
    a.e("v_and_b32 v1, 63, v0")
    wprep(a, 8, WS_W1P, False, small=f"L_{name}_small", extra=code_warm if CW == "late" else None, mid=x_warm)
    if "stamp" in EXP:
        a.e("s_waitcnt vmcnt(0)")
        a.e("s_memrealtime s[62:63]")
        a.e("s_lshl_b32 s36, s2, 7")
        a.e(f"s_add_u32 s36, s36, {WS_STAMP + 3*0x10000}")
        add64(a, 40, 30, "s36")
        a.e("s_mov_b32 s42, 128")
        a.e("s_mov_b32 s43, 0x00020000")
        a.e("s_waitcnt lgkmcnt(0)")
        a.e("v_mov_b32 v8, 0")
        a.e("v_mov_b32 v0, 1")
        a.e("buffer_store_dword v0, v8, s[40:43], 0 offen")
        for i in range(4):
            a.e(f"v_mov_b32 v0, s{60+i}")
            a.e(f"buffer_store_dword v0, v8, s[40:43], 0 offen offset:{80+4*i}")
    a.label(f"L_{name}_done")
    a.e("s_endpgm")
    small_tail(a, name)
    a.L.insert(len(a.L) - 1, f"L_{name}_last:")
    return a.L, 4096, 128


def conv_kernel(name, cfg):
    TIN, TOUT = cfg["tin"], cfg["tout"]
    N = cfg["nchunk"]
    KSPLIT = cfg["ksplit"]
    NWG = 256
    STAMP = "stamp" in EXP
    sX, sW, sO = 8, 12, 16
    sWv, sT0, sCnt, sBo, sXo, sMask = 20, 21, 22, 23, 24, 25
    sBo2 = 26
    sK, sCb, sH = 28, 29, 32
    sSt = 60
    vL = 127
    vU, vS_, vI, vKG = 8, 9, 10, 11

    a = Asm()
    a.label(name)
    a.e(f"s_cmp_ge_u32 s2, {NWG}")
    a.e(f"s_cbranch_scc1 L_{name}_done")

    def stamp(i, fence=True):
        if STAMP:
            a.e(f"s_memtime s[{sSt+2*i}:{sSt+2*i+1}]")
            if fence:
                a.e("s_waitcnt lgkmcnt(0)")
                a.lg = []

    def rstamp(i):
        if STAMP:
            a.e(f"s_memrealtime s[{sSt+2*i}:{sSt+2*i+1}]")
            a.e("s_waitcnt lgkmcnt(0)")
            a.lg = []
    if STAMP:
        for i in range(28):
            a.e(f"s_mov_b32 s{sSt+i}, 0")
        a.e(f"s_memrealtime s[{sSt+20}:{sSt+21}]")
    stamp(0, False)
    a.e(f"s_load_dwordx2 s[4:5], s[0:1], {cfg['in_arg']}")
    a.e("s_load_dwordx2 s[30:31], s[0:1], 72")
    a.e(f"v_readfirstlane_b32 s{sWv}, v0")
    a.e(f"s_lshr_b32 s{sWv}, s{sWv}, 6")
    if os.environ.get("WX", "8") != "0":
        a.e(f"s_xor_b32 s{sWv}, s{sWv}, {os.environ.get('WX', '8')}")
    XL = int((os.environ.get("XL", "33") * 2)[int(KSPLIT)])
    a.e(f"s_and_b32 s36, s2, {(8 >> XL) - 1}")
    a.e(f"s_lshl_b32 s36, s36, {XL}")
    a.e(f"s_bfe_u32 s37, s2, {(XL << 16) | 3}")
    a.e(f"s_or_b32 s{sCb}, s36, s37")
    a.e(f"s_bfe_u32 s36, s2, {(XL << 16) | (3 - XL)}")
    a.e(f"s_lshl_b32 s36, s36, {5 - XL}")
    a.e(f"s_lshr_b32 s37, s2, {3 + XL}")
    a.e("s_or_b32 s36, s36, s37")
    if KSPLIT:
        if LOCAL:
            a.e("s_and_b32 s33, s36, 1")
            a.e("s_bfe_u32 s34, s36, 0x30001")
            a.e("s_lshr_b32 s35, s36, 4")
        else:
            a.e("s_lshr_b32 s33, s36, 4")
            a.e("s_and_b32 s34, s36, 7")
            a.e("s_bfe_u32 s35, s36, 0x10003")
    else:
        a.e("s_mov_b32 s33, 0")
        a.e("s_and_b32 s34, s36, 15")
        a.e("s_lshr_b32 s35, s36, 4")
    a.e(f"s_mul_i32 s{sT0}, s34, 500")
    a.e(f"s_and_b32 s{sH}, s{sWv}, 3")
    a.e(f"v_and_b32 v{vL}, 63, v0")
    a.e(f"v_lshrrev_b32 v5, 2, v{vL}")
    a.e(f"v_and_b32 v6, 3, v{vL}")
    a.e(f"s_and_b32 s42, s{sWv}, 7")
    if not KSPLIT:
        a.e("v_lshlrev_b32 v7, 15, v5")
        a.e("v_lshl_add_u32 v7, v6, 4, v7")
        a.e(f"s_lshl_b32 s41, s{sT0}, 10")
        a.e("s_sub_u32 s41, s41, 7680")
        a.e("s_lshl_b32 s37, s42, 12")
        a.e("s_add_u32 s37, s37, s41")
        a.e("v_add_u32 v7, s37, v7")
        a.e(f"s_mul_i32 s36, s35, {TIN*512}")
        a.e(f"s_mov_b32 s{sX+2}, {TIN*512}")
    else:
        a.e(f"s_lshr_b32 s41, s{sT0}, 2")
        a.e("s_sub_u32 s41, s41, 1")
        a.e("s_add_u32 s37, s41, s42")
        a.e("v_lshl_add_u32 v7, v5, 3, s37")
        a.e(f"s_mul_i32 s36, s35, {32*PLH}")
        a.e(f"s_add_u32 s36, s36, {cfg['in_off']}")
        a.e(f"s_mov_b32 s{sX+2}, {32*PLH}")

    def haddr(dst, vG, vlane, p, t):
        a.e(f"s_add_u32 s37, s33, {2*p - 7 & 0xffffffff}")
        a.e(f"v_lshl_add_u32 v{t}, v{vG}, 3, s37")
        a.e(f"v_cmp_gt_u32 vcc, {TIN}, v{t}")
        a.e(f"s_mul_i32 s37, s33, {PLH}")
        a.e(f"s_add_u32 s37, s37, {(2*p & 3)*PLH + (p >> 1)*64}")
        a.e(f"v_lshl_add_u32 v{dst}, v{vG}, 7, s37")
        a.e(f"v_add_u32 v{dst}, v{dst}, v{vlane}")
        a.e(f"v_mov_b32 v{t}, {OOB}")
        a.e(f"v_cndmask_b32 v{dst}, v{t}, v{dst}, vcc")
    a.e(f"s_mov_b32 s{sX+3}, 0x00020000")
    a.e(f"s_mov_b32 s{sMask}, 0xffff0000")
    a.e("s_mov_b32 s47, s36")

    def kwait():
        a.e("s_waitcnt lgkmcnt(0)")
        stamp(1)
        add64(a, sX, 4, "s47")
    OB = 512

    def wsrd():
        a.e(f"s_lshl_b32 s36, s{sCb}, 4")
        a.e("s_lshl_b32 s37, s33, 3")
        a.e("s_add_u32 s36, s36, s37")
        a.e(f"s_mul_i32 s36, s36, {CHUNKB}")
        a.e(f"s_add_u32 s36, s36, {cfg['w_off']}")
        add64(a, sW, 30, "s36")
        a.e(f"s_mov_b32 s{sW+2}, {N*CHUNKB}")
        a.e(f"s_mov_b32 s{sW+3}, 0x00020000")

    def lds_throttle(need=1):
        if len(a.lg) + need > 15:
            a.e("s_waitcnt lgkmcnt(8)")
            a.lg = a.lg[-8:]

    def mf(acc, b, av):
        if "nomfma" not in EXP:
            a.e(f"v_mfma_f32_16x16x32_bf16 {vr(acc)}, {vr(b)}, {vr(av)}, {vr(acc)}")

    def steady(gen, per, strict=True):
        st = []
        for it in range(3):
            st.append(len(a.L))
            for pos in range(per):
                gen(per * it + pos, pos)
        st.append(len(a.L))
        bodies = [a.L[st[i]:st[i + 1]] for i in range(3)]
        if strict:
            assert bodies[1] == bodies[2], "loop not steady"
            assert bodies[0] == bodies[1], "loop entry not steady"
        del a.L[st[0]:]
        return bodies[1]

    a.e(f"s_cmp_ge_u32 s{sWv}, 8")
    a.e(f"s_cbranch_scc1 L_{name}_helper")

    ACC = 0
    vF, vA8, vD, vB = (120, 121), 122, (123, 124), 125
    vP = (116, 117, 118)
    vBZ = 119
    S, T, O = 96, 108, 64
    if not KSPLIT:
        a.e(f"s_add_u32 s37, s41, {128*4096}")
        a.e(f"v_lshl_add_u32 v{T}, v{vL}, 4, s37")
        for p in range(1, 3):
            a.e(f"v_add_u32 v{T+p}, {p*1024}, v{T}")
    else:
        a.e("s_add_u32 s37, s41, 128")
        a.e("v_mov_b32 v16, s37")
        a.e(f"v_mul_u32_u24 v17, {4*PLH}, v5")
        a.e("v_lshl_add_u32 v17, v6, 4, v17")
        for p in range(3):
            haddr(T + p, 16, 17, p, 18)
    kwait()
    wsrd()
    PLO = PLF if KSPLIT else PLH
    a.e(f"s_mul_i32 s36, s35, {32*PLO}")
    a.e(f"s_add_u32 s36, s36, {cfg['out_off']}")
    if KSPLIT:
        a.e(f"s_mul_i32 s37, s33, {WS_FPS}")
        a.e("s_add_u32 s36, s36, s37")
    add64(a, sO, 30, "s36")
    a.e(f"s_mov_b32 s{sO+2}, {32*PLO}")
    a.e(f"s_mov_b32 s{sO+3}, 0x00020000")
    a.e(f"v_and_b32 v{vI}, 15, v{vL}")
    a.e(f"v_lshrrev_b32 v{vKG}, 4, v{vL}")
    t = 16
    for d, sh in ((vU, 0), (vS_, 1)):
        a.e(f"v_add_u32 v{d}, {sh}, v{vI}")
        a.e(f"v_and_b32 v{t}, 4, v{d}")
        a.e(f"v_lshrrev_b32 v{t}, 1, v{t}")
        a.e(f"v_xor_b32 v{t}, v{vKG}, v{t}")
        a.e(f"v_lshlrev_b32 v{t}, 4, v{t}")
        a.e(f"v_lshl_add_u32 v{d}, v{d}, 6, v{t}")
    a.e(f"s_lshr_b32 s38, s{sH}, 1")
    a.e(f"s_and_b32 s39, s{sH}, 1")
    a.e("s_add_u32 s40, s38, 4")
    a.e("s_lshl_b32 s43, s39, 10")
    a.e(f"s_cmp_lt_u32 s{sWv}, 4")
    a.e(f"s_cselect_b32 s40, s{sWv}, s40")
    a.e("s_cselect_b32 s36, 0, s43")
    a.e("s_lshl_b32 s37, s40, 13")
    a.e("s_add_u32 s37, s37, s36")
    a.e(f"v_lshl_add_u32 v{vB}, v{vL}, 4, s37")
    a.e(f"s_mul_i32 s37, s40, {SEQB}")
    a.e(f"v_add_u32 v{vF[0]}, s37, v{vU}")
    a.e(f"v_add_u32 v{vF[1]}, s37, v{vS_}")
    a.e("s_lshl_b32 s37, s40, 10")
    a.e(f"s_add_u32 s37, s37, {SPB}")
    a.e(f"v_lshl_add_u32 v{t}, v{vKG}, 4, s37")
    a.e(f"v_cmp_eq_u32 vcc, 15, v{vI}")
    a.e(f"v_mov_b32 v{t+1}, {BB}")
    a.e(f"v_mov_b32 v{t+2}, {-BB & 0xffffffff}")
    a.e(f"v_mov_b32 v{t+3}, 64")
    a.e(f"v_cndmask_b32 v{vA8}, v{vF[1]}, v{t}, vcc")
    a.e(f"v_cndmask_b32 v{vD[0]}, v{t+1}, v{t+3}, vcc")
    a.e(f"v_cndmask_b32 v{vD[1]}, v{t+2}, v{t+3}, vcc")
    a.e(f"v_lshl_add_u32 v126, v{vL}, 4, s37")
    tabs = {44: (1.0, 1.0, 1.0, 1.0, 1.0, 16.0), 45: (0.0, 1.0, -1.0, 2.0, -2.0, 8.0),
            46: (0.0, 1.0, 1.0, 4.0, 4.0, 4.0)}
    for sg, tab in tabs.items():
        a.e(f"s_mov_b32 s{sg}, {f32hex(tab[0])}")
    for q in range(1, 6):
        a.e(f"s_cmp_eq_u32 s40, {q}")
        for sg, tab in tabs.items():
            if tab[q] != tab[0]:
                a.e(f"s_cselect_b32 s{sg}, {f32hex(tab[q])}, s{sg}")

    def special_rows():
        a.wait(vm=("SP",))
        for d in range(4):
            for p in range(3):
                a.e(f"v_lshlrev_b32 v{T+p}, 16, v{S+4*p+d}")
                a.e(f"v_and_b32 v{T+3+p}, s{sMask}, v{S+4*p+d}")
            for h in range(2):
                a.e(f"v_mul_f32 v{T+6+h}, s44, v{T+3*h}")
            for h in range(2):
                a.e(f"v_fmac_f32 v{T+6+h}, s45, v{T+3*h+1}")
            for h in range(2):
                a.e(f"v_fmac_f32 v{T+6+h}, s46, v{T+3*h+2}")
            a.e(f"v_cvt_pk_bf16_f32 v{S+d}, v{T+6}, v{T+7}")
        a.e(f"ds_write_b128 v126, {vr(S)}")

    def own_read(k, g, reg, tag, last=False):
        if g == 8:
            base, off = vA8, 0
        else:
            base, off = vF[g >> 3], (k & 1) * BB + (g & 7) * FB
        a.lds(f"ds_read_b128 {vr(reg)}, v{base} offset:{off}", tag)
        if g == 8 and not last:
            a.e(f"v_add_u32 v{vA8}, v{vD[k & 1]}, v{vA8}")

    UNIT = [(s * SEQB, s * SEQB + BB) for s in range(4)] + [(4 * SEQB, TOPB), (5 * SEQB, TOPB + 8192),
            (6 * SEQB, TOPB + 16384), (TOPB + 24576, TOPB + 32768)]
    EA = 96
    ES = []
    R0 = (120, 121, 64)
    vO, vBW = 122, 127
    BND = SPB
    t0, t1, t2, t3 = 108, 109, 110, 111
    ES.append(f"v_and_b32 v{t0}, 15, v{vL}")
    ES.append(f"v_lshrrev_b32 v{t1}, 4, v{vL}")
    ES.append(f"v_lshrrev_b32 v{t2}, 3, v{t0}")
    ES.append(f"s_lshl_b32 s36, s{sWv}, 1")
    ES.append(f"v_add_u32 v{t2}, s36, v{t2}")
    ES.append(f"v_xor_b32 v{t3}, v{t2}, v{t0}")
    ES.append(f"v_and_b32 v{t3}, 7, v{t3}")
    ES.append(f"v_lshlrev_b32 v{t3}, 4, v{t3}")
    ES.append(f"v_lshl_add_u32 v{t3}, v{t2}, 7, v{t3}")
    ES.append(f"v_lshl_add_u32 v{R0[0]}, v{t1}, 11, v{t3}")
    ES.append(f"v_add_u32 v{R0[1]}, 65536, v{R0[0]}")
    ES.append(f"v_add_u32 v{R0[2]}, 131072, v{R0[0]}")
    ES.append(f"s_lshl_b32 s36, s{sWv}, 9")
    ES.append(f"s_add_u32 s36, s36, {BND}")
    ES.append(f"v_lshl_add_u32 v{vBW}, v{t1}, 7, s36")
    ES.append(f"s_lshl_b32 s36, s{sWv}, 4")
    ES.append(f"v_add_u32 v{t0}, s36, v{t0}")
    ES.append(f"v_lshlrev_b32 v{t2}, 6, v{t0}")
    ES.append(f"v_lshl_add_u32 v{t2}, v{t1}, 4, v{t2}")
    ES.append(f"s_mul_i32 s36, s{sCb}, {4*PLO}")
    ES.append(f"s_lshl_b32 s37, s{sT0}, 4")
    ES.append("s_add_u32 s36, s36, s37")
    ES.append(f"v_add_u32 v{t2}, s36, v{t2}")
    ES.append(f"v_mov_b32 v{t3}, {OOB}")
    ES.append(f"v_cmp_gt_u32 vcc, 125, v{t0}")
    k0 = -2.0 * 1.4426950408889634 * 0.7978845608028654
    consts = [-1.0 / 3, 0.25, -5.0, -32.0 / 9, -8.0 / 9, -2.0 / 9, -1.0 / 18, 17.0 / 9, -2.0 / 3, 0.4, -1.0 / 15, -0.2,
              k0 * 0.044715, 1.0]
    KS = [4, 6, 8, 10, 12, 14, 22, 24, 26, 32, 34, 38, 40, 42]
    for sg, cv in zip(KS, consts):
        ES.append(f"s_mov_b32 s{sg}, {f32hex(cv)}")
        ES.append(f"s_mov_b32 s{sg+1}, s{sg}")

    def ex_addr(sbase):
        a.e(f"v_and_b32 v{EA}, 15, v{vL}")
        a.e(f"v_and_b32 v{EA+1}, 7, v{vL}")
        a.e(f"v_lshlrev_b32 v{EA+1}, 4, v{EA+1}")
        a.e(f"v_lshl_add_u32 v{EA}, v{EA}, 7, v{EA+1}")
        a.e(f"v_lshrrev_b32 v{EA+1}, 4, v{vL}")
        a.e(f"v_lshl_add_u32 v{EA}, v{EA+1}, 11, v{EA}")
        a.e(f"v_add_u32 v{EA}, s{sbase}, v{EA}")
        for f in range(1, 8):
            a.e(f"v_xor_b32 v{EA+f}, {f << 4}, v{EA}")

    def mwave(role):
        if role == 1:
            BR, AR, NR = 64, 96, 6
            steps = [("X", g) for g in range(11)]
        else:
            BR, AR, NR = 64, 88, 7
            steps = []
            for g in range(11):
                steps.append(("Y", g))
                if 1 <= g <= 9:
                    steps.append(("Z", g - 1))
        NS = len(steps)

        def bload(k, kind, q):
            if "nob" in EXP and k > 0:
                return
            so = sBo2 if q >> 1 else sBo
            if kind == "X":
                for c in range(2):
                    a.vmem(f"buffer_load_dwordx4 {vr(BR+(q*2+c)*4)}, v{vB}, {sr(sW)}, s{so} offen "
                           f"offset:{(q&1)*2048 + c*1024}", ("B", k, kind, q))
            elif kind == "Y":
                a.vmem(f"buffer_load_dwordx4 {vr(BR+q*4)}, v{vB}, {sr(sW)}, s{so} offen offset:{(q&1)*2048}",
                       ("B", k, kind, q))
            else:
                a.vmem(f"buffer_load_dwordx4 {vr(BR+16+q*4)}, v{vBZ}, {sr(sW)}, s{sBo} offen offset:{q*2048}",
                       ("B", k, kind, q))

        def rd(k, n, last=False):
            kind, g = steps[n]
            reg = AR + 4 * (n % NR)
            if kind == "Z":
                base, off = (vP[0], g * FB6) if g < 6 else (vP[1], (g - 6) * FB6) if g < 8 else (vP[2], 0)
                a.lds(f"ds_read_b128 {vr(reg)}, v{base} offset:{(k & 1)*BB6 + off}", ("A", k, n))
            else:
                own_read(k, g, reg, ("A", k, n), last)

        for i in range(64):
            a.e(f"v_mov_b32 v{ACC+i}, 0")
        if "b0" in EXP:
            a.e("s_barrier")
        for p in range(3):
            a.vmem(f"buffer_load_dwordx4 {vr(S+4*p)}, v{T+p}, {sr(sX)}, 0 offen", "SP")
        a.e(f"s_mov_b32 s{sBo}, 0")
        a.e(f"s_mov_b32 s{sBo2}, 4096")
        for st in steps:
            if st and st[1] >= 7:
                bload(0, st[0], st[1] - 7)
        a.e(f"s_mov_b32 s{sBo}, {CHUNKB}")
        a.e(f"s_mov_b32 s{sBo2}, {CHUNKB + 4096}")
        SPL = os.environ.get("SPL", "0") == "1"
        if not SPL:
            special_rows()
        if role == 2:
            a.e(f"v_and_b32 v{T+3}, 15, v{vL}")
            a.e(f"v_lshlrev_b32 v{T+3}, 2, v{T+3}")
            a.e(f"v_add_u32 v{T+3}, {6*SEQB + 1024}, v{T+3}")
            a.e(f"ds_write_b32 v{T+3}, v{ACC}")
            a.e(f"ds_write_b32 v{T+3}, v{ACC} offset:{BB6}")
        a.e("s_waitcnt lgkmcnt(0)")
        a.e("s_barrier")
        if SPL:
            a.e("s_setprio 3")
            special_rows()
            a.e("s_waitcnt lgkmcnt(0)")
        stamp(7)
        rstamp(12)
        a.e(f"s_mov_b32 s{sCnt}, {N//2}")
        a.e(f"s_setprio {os.environ.get(f'PM{role}', '2')}")

        CO = int(os.environ.get(f"CO{role}", "0" if role == 1 else "5"))
        assert CO < NR
        FM = int("fmaj" in EXP)
        vE = (vD[0], vD[1])

        def period(k, _, last=False):
            if "mst" in EXP and _ == 0:
                stamp(2)
            if "bst" in EXP and _ == 1 and not last:
                a.e("s_memtime s[90:91]")
                a.e("s_waitcnt vmcnt(0) lgkmcnt(0)")
                a.e("s_memtime s[92:93]")
                a.e("s_waitcnt lgkmcnt(0)")
                a.e("s_sub_u32 s92, s92, s90")
                a.e(f"s_add_u32 s{sSt+4}, s{sSt+4}, s92")
                a.e(f"s_max_u32 s{sSt+6}, s{sSt+6}, s92")
                a.vm = []
            for n in range(NR):
                rd(k, n, last)
            pend = []
            fill = []

            def flush(n, cnt):
                while pend and pend[0][0] <= n and cnt > 0:
                    _, h, f = pend.pop(0)
                    t = vE[(h + f) & 1]
                    a.e(f"v_xor_b32 v{t}, {f << 4}, v{vX0[h]}")
                    lds_throttle()
                    a.lds(f"ds_write_b128 v{t}, {vr(ACC + h*32 + f*4)}", "E")
                    cnt -= 1
                    for _i in range(min(12, len(fill))):
                        a.e(fill.pop(0))

            for n, st in enumerate(steps):
                if CO and n == NS - CO and not last:
                    a.wait(lg_all=True)
                    if "mst" in EXP and _ == 0:
                        stamp(3)
                    a.e("s_barrier")
                    if "mst" in EXP and _ == 0:
                        stamp(4)
                kind, g = st
                nt = 2 if kind == "Z" else 4
                qs = [q for q in range(nt) if 0 <= g - q <= 7]
                if FM and kind == "X":
                    if g >= 3:
                        f = g - 3
                        for c in range(2):
                            for q in range(4):
                                a.wait(lg=(("A", k, f + q),), vm=(("B", k, kind, q),))
                                mf(ACC + 32 * c + f * 4, BR + q * 8 + 4 * c, AR + 4 * ((f + q) % NR))
                        if f + NR < NS:
                            rd(k, f + NR, last)
                        if g == 10 and not last:
                            for q in range(4):
                                bload(k + 1, kind, q)
                    qs = []
                else:
                    a.wait(lg=(("A", k, n),), vm=tuple(("B", k, kind, q) for q in qs))
                reg = AR + 4 * (n % NR)
                for q in qs:
                    f = g - q
                    if kind == "X":
                        mf(ACC + f * 4, BR + q * 8, reg)
                        mf(ACC + 32 + f * 4, BR + q * 8 + 4, reg)
                    elif kind == "Y":
                        mf(ACC + f * 4, BR + q * 4, reg)
                    else:
                        mf(ACC + 32 + f * 4, BR + 16 + q * 4, reg)
                if g >= 7 and not last and not (FM and kind == "X"):
                    bload(k + 1, kind, g - 7)
                if n + NR < NS and not (FM and kind == "X"):
                    rd(k, n + NR, last)
                if last:
                    flush(n, int(os.environ.get('FL', '2')))
                    f = g - (nt - 1)
                    if f >= 0:
                        if kind == "X":
                            pend.append((n + 1, 0, f))
                            pend.append((max(n + 1, NS - NR + 1 + 3 * FM), 1, f))
                            pend.sort()
                        else:
                            pend.append((n + 3, 0 if kind == "Y" else 1, f))
                    if kind == "X" and n == NS - NR + 3 * FM:
                        a.wait(lg=(("A", k, NS - 1),))
            if last:
                fill += ES
                for _i in range(8):
                    a.e(fill.pop(0))
                flush(1000, 1000)
                for op in fill:
                    a.e(op)
                return
            a.e(f"s_add_u32 s{sBo}, s{sBo}, {CHUNKB}")
            a.e(f"s_add_u32 s{sBo2}, s{sBo2}, {CHUNKB}")
            assert not a.lg
            if "mst" in EXP and _ == 0:
                stamp(5)
            if not CO:
                a.e("s_barrier")
            if "mst" in EXP and _ == 0:
                stamp(6)

        def period2(k, pos):
            if pos == 1:
                a.e(f"s_sub_u32 s{sCnt}, s{sCnt}, 1")
                a.e(f"s_cmp_eq_u32 s{sCnt}, 0")
                a.e(f"s_cbranch_scc1 L_{name}_mlast{role}")
                state[0] = (list(a.vm), k)
            period(k, pos)

        state = [None]
        body = steady(period2, 2, "nob" not in EXP)
        if "nob" in EXP:
            a.e("s_waitcnt vmcnt(0)")
        a.label(f"L_{name}_mloop{role}")
        a.L.extend(body)
        a.e(f"s_branch L_{name}_mloop{role}")
        a.label(f"L_{name}_mlast{role}")
        a.vm, a.lg = state[0][0], []
        vX0 = (vB, 126)
        a.e(f"v_and_b32 v{vX0[0]}, 15, v{vL}")
        a.e(f"v_and_b32 v{vX0[1]}, 7, v{vL}")
        a.e(f"v_lshlrev_b32 v{vX0[1]}, 4, v{vX0[1]}")
        a.e(f"v_lshl_add_u32 v{vX0[0]}, v{vX0[0]}, 7, v{vX0[1]}")
        a.e(f"v_lshrrev_b32 v{vX0[1]}, 4, v{vL}")
        a.e(f"v_lshl_add_u32 v{vX0[0]}, v{vX0[1]}, 11, v{vX0[0]}")
        if role == 1:
            a.e(f"s_lshl_b32 s36, s{sWv}, 14")
            a.e("s_add_u32 s37, s36, 8192")
        else:
            for sg, tab in ((36, [UNIT[4 + (h >> 1)][h & 1] for h in range(4)]),
                            (37, [UNIT[6 + (h >> 1)][h & 1] for h in range(4)])):
                a.e(f"s_mov_b32 s{sg}, {tab[0]}")
                for h in range(1, 4):
                    a.e(f"s_cmp_eq_u32 s{sH}, {h}")
                    a.e(f"s_cselect_b32 s{sg}, {tab[h]}, s{sg}")
        a.e(f"v_add_u32 v{vX0[1]}, s37, v{vX0[0]}")
        a.e(f"v_add_u32 v{vX0[0]}, s36, v{vX0[0]}")
        if os.environ.get(f"PL{role}"):
            a.e(f"s_setprio {os.environ.get(f'PL{role}')}")
        period(state[0][1], 1, True)
        stamp(8, False)
        rstamp(13)
        a.e("s_setprio 0")
        a.vm, a.lg = [], []

    a.e(f"s_cmp_ge_u32 s{sWv}, 4")
    a.e(f"s_cbranch_scc1 L_{name}_m2")
    vm0 = list(a.vm)
    mwave(1)
    a.e(f"s_branch L_{name}_epi")
    a.label(f"L_{name}_m2")
    a.vm, a.lg = list(vm0), []
    a.e(f"s_mul_i32 s37, s38, {2*FB6}")
    a.e(f"s_add_u32 s37, s37, {6*SEQB}")
    a.e(f"v_add_u32 v{vP[0]}, s37, v{vU}")
    a.e(f"v_add_u32 v{vP[2]}, s37, v{vS_}")
    a.e(f"v_add_u32 v{vP[1]}, {6*SEQB + 6*FB6}, v{vU}")
    a.e("s_cmp_eq_u32 s38, 0")
    a.e(f"s_cbranch_scc1 L_{name}_hh0")
    a.e(f"v_add_u32 v{vP[1]}, {6*SEQB}, v{vS_}")
    a.label(f"L_{name}_hh0")
    a.e("s_lshl_b32 s37, s38, 12")
    a.e("s_add_u32 s37, s37, s43")
    a.e(f"s_add_u32 s37, s37, {6*8192}")
    a.e(f"v_lshl_add_u32 v{vBZ}, v{vL}, 4, s37")
    mwave(2)
    a.e(f"s_branch L_{name}_epi")

    a.label(f"L_{name}_helper")
    a.vm, a.lg = [], []
    a.e("s_setprio 3")
    PB = (0, 32)
    XO = 64
    TMP = 76
    vX = 92
    vW = (96, 97, 98)

    def praw(b, half, p):
        return PB[b] + half * 16 + p * 4

    sXo2 = 27

    def xload(pair, p):
        if KSPLIT:
            half, q = p >> 1, p & 1
            for r in (q, q + 2):
                a.vmem(f"buffer_load_dwordx4 {vr(praw(pair & 1, half, r))}, v{vX+r}, {sr(sX)}, "
                       f"s{sXo2 if half else sXo} offen", ("X", pair))
            return
        for half in range(2):
            a.vmem(f"buffer_load_dwordx4 {vr(praw(pair & 1, half, p))}, v{vX+p}, {sr(sX)}, "
                   f"s{sXo} offen offset:{half*64}", ("X", pair))
        a.e(f"v_add_u32 v{vX+p}, 128, v{vX+p}")

    def uregs(chunk):
        return [praw((chunk >> 1) & 1, chunk & 1, p) for p in range(4)]

    def wr(chunk, i):
        if "nowr" in EXP:
            return
        u = uregs(chunk)
        reg, seq = [(XO, 3), (XO + 4, 4), (XO + 8, 5), (u[0], 0), (u[1], 1), (u[2], 2), (u[3], 6)][i]
        lds_throttle()
        if seq == 6:
            a.lds(f"ds_write_b128 v{vW[2]}, {vr(reg)} offset:{(chunk & 1)*BB6}", "W")
        else:
            a.lds(f"ds_write_b128 v{vW[seq >> 2]}, {vr(reg)} offset:{(seq & 3)*SEQB + (chunk & 1)*BB}", "W")

    def tr_ops(chunk):
        u = uregs(chunk)
        o = [u[1], u[2], XO, XO + 4, XO + 8]
        ops = []
        for d in range(4):
            lo = [TMP + p for p in range(4)]
            hi = [TMP + 8 + p for p in range(4)]
            for p in range(4):
                ops.append(f"v_lshlrev_b32 v{lo[p]}, 16, v{u[p]+d}")
                ops.append(f"v_and_b32 v{hi[p]}, s{sMask}, v{u[p]+d}")
            o1, r1 = eval_ops(lo, [TMP + 4 + i for i in range(4)])
            o2, r2 = eval_ops(hi, [TMP + 12 + i for i in range(4)])
            for x, y in zip(o1, o2):
                ops += [x, y]
            for i in range(5):
                ops.append(f"v_cvt_pk_bf16_f32 v{o[i]+d}, v{r1[i]}, v{r2[i]}")
        if "notr" in EXP:
            ops = ["s_nop 0"] * 8
        return ops

    if KSPLIT:
        a.e("v_lshlrev_b32 v8, 4, v6")
    for p in range(4):
        if KSPLIT:
            haddr(vX + p, 7, 8, p, 9)
        else:
            a.e(f"v_add_u32 v{vX+p}, {p*1024}, v7")
    a.e(f"v_and_b32 v{TMP}, 4, v5")
    a.e(f"v_lshrrev_b32 v{TMP}, 1, v{TMP}")
    a.e(f"v_xor_b32 v{TMP}, v6, v{TMP}")
    a.e(f"v_lshlrev_b32 v{TMP}, 4, v{TMP}")
    a.e(f"v_lshl_add_u32 v{TMP}, v5, 6, v{TMP}")
    a.e(f"s_mov_b32 s{sXo}, 0")
    a.e(f"s_mov_b32 s{sXo2}, {4*PLH}")
    kwait()
    stamp(2)
    P0 = os.environ.get("P0", "0")
    if P0 == "0" or KSPLIT:
        for p in range(4):
            xload(0, p)
            if p == 1 and P0 == "2":
                a.e("s_barrier")
    else:
        for half in range(2):
            for p in range(4):
                a.vmem(f"buffer_load_dwordx4 {vr(praw(0, half, p))}, v{vX+p}, {sr(sX)}, s{sXo} offen offset:{half*64}", ("X", 0))
            if half == 0 and P0 == "2":
                a.e("s_barrier")
        for p in range(4):
            a.e(f"v_add_u32 v{vX+p}, 128, v{vX+p}")
    if P0 != "2" and "b0" in EXP:
        a.e("s_barrier")
    a.e(f"s_mul_i32 s36, s42, {FB}")
    a.e(f"v_add_u32 v{vW[0]}, s36, v{TMP}")
    a.e(f"v_add_u32 v{vW[1]}, {4*SEQB}, v{vW[0]}")
    a.e(f"s_mul_i32 s36, s42, {FB6}")
    a.e(f"s_add_u32 s36, s36, {6*SEQB}")
    a.e(f"v_add_u32 v{vW[2]}, s36, v{TMP}")
    stamp(3)
    a.e(f"s_waitcnt vmcnt({0 if P0 == '0' else 4})")
    stamp(4)
    a.e(f"s_mov_b32 s{sK}, 0")
    a.e(f"s_mov_b32 s{sCnt}, {N//4}")
    a.e(f"s_cmp_ge_u32 s{sWv}, 12")
    a.e(f"s_cbranch_scc1 L_{name}_h2")

    def hwave(role):
        SH = 33 * int(os.environ.get(f"SH{role}", "0" if role == 1 else "4"))
        ahead = 2 if SH else 1
        a.vm, a.lg = [], []
        wr(0, 3)
        wr(0, 6)
        for op in tr_ops(0):
            a.e(op)
        for i in (0, 1, 2, 4, 5):
            wr(0, i)
        a.e("s_waitcnt vmcnt(0)")
        NF = int(os.environ.get("NF", "2"))
        if KSPLIT:
            a.e(f"s_mov_b32 s{sXo}, {8*PLH}")
            a.e(f"s_mov_b32 s{sXo2}, {12*PLH}")
        X1 = os.environ.get("X1", "1")
        if X1 == "0":
            for p in range(4 if SH else NF):
                xload(1, p)
        stamp(5)
        a.wait(lg_all=True)
        stamp(6)
        a.e("s_barrier")
        stamp(7)
        rstamp(12)
        if X1 == "1":
            for p in range(4 if SH else NF):
                xload(1, p)
        PA, PB_ = os.environ.get(f'PH{role}', '11' if role == 1 else '00')
        a.e(f"s_setprio {PA}")
        for op in tr_ops(1)[:SH]:
            a.e(op)
        VPF = int(os.environ.get("VPF", "0")) if role == 1 and not KSPLIT and XL == 3 else 0
        if VPF:
            a.e(f"s_lshl_b32 s36, s{sCb}, 6")
            a.e(f"s_lshl_b32 s37, s{sH}, 3")
            a.e("s_add_u32 s36, s36, s37")
            a.e("s_lshl_b32 s36, s36, 10")
            a.e("s_add_u32 s36, s36, s41")
            a.e(f"s_add_u32 s36, s36, {VPF*128}")
            a.e(f"v_and_b32 v100, 7, v{vL}")
            a.e("v_lshl_add_u32 v100, v100, 10, s36")

        def vpf(k):
            a.e(f"s_cmp_lt_u32 s{sK}, {N - 2*VPF}")
            a.e(f"s_cselect_b32 s36, 0, {OOB}")
            a.vmem(f"buffer_load_dword v99, v100, {sr(sX)}, s36 offen", "PF")
            a.e(f"v_add_u32 v100, {(128 - 32768) & 0xffffffff if k & 1 else 32768}, v100")
        XP = [float(x) for x in os.environ.get(f"XP{role}", "0,0,0,0" if SH else "0.3,0.7,0.1,0.5").split(",")]

        def period(k, pos, last=False):
            pair = (k >> 1) + 2 if SH else (k + 3) >> 1
            first = not (k & 1) if SH else (k & 1)
            if pos == 4 - ahead and not last:
                a.e(f"s_cmp_eq_u32 s{sCnt}, 1")
                a.e(f"s_cbranch_scc1 L_{name}_hlast{role}")
            if "hst" in EXP and pos == 1:
                stamp(2)
            V1 = tr_ops(k + 1)[SH:]
            V2 = [] if last else tr_ops(k + 2)[:SH]
            V = V1 + V2
            n = len(V)
            ev = {}

            def at(i, f):
                ev.setdefault(max(0, min(int(i), n)), []).append(f)

            def stores():
                if "hst" in EXP and pos == 1:
                    stamp(3)
                for i in range(7):
                    wr(k + 1, i)
                if "hst" in EXP and pos == 1:
                    stamp(4)
                if PA != PB_:
                    a.e(f"s_setprio {PB_}")
            if PA != PB_:
                a.e(f"s_setprio {PA}")
            if VPF and not last:
                at(float(os.environ.get("VPP", "1.0")) * n, lambda: vpf(k))
            at(len(V1), stores)
            if not last:
                if not KSPLIT:
                    a.e(f"s_cmp_lt_u32 s{sK}, {N - 2 - ahead}")
                    a.e(f"s_cselect_b32 s{sXo}, 0, {OOB}")
                elif first:
                    a.e(f"s_add_u32 s{sXo}, s{sXo}, {8*PLH}")
                    a.e(f"s_add_u32 s{sXo2}, s{sXo2}, {8*PLH}")
                at(len(V1) if SH else 0, lambda: a.wait(vm=(("X", (k + ahead) >> 1),)))
                if "nox" not in EXP:
                    for p in (range(NF) if first else range(NF, 4)):
                        w = len(V1) + XP[p] * SH if SH and first else XP[p] * n
                        at(w, lambda p=p: xload(pair, p))
            for i in range(n + 1):
                for f in ev.get(i, []):
                    f()
                if i < n:
                    a.e(V[i])
            if not last:
                a.e(f"s_add_u32 s{sK}, s{sK}, 1")
            if "hst" in EXP and pos == 1:
                stamp(5)
            a.e("s_waitcnt lgkmcnt(0)")
            a.lg = []
            a.e("s_barrier")
            if "hst" in EXP and pos == 1:
                stamp(6)

        body = steady(period, 4, "nox" not in EXP)
        a.label(f"L_{name}_hloop{role}")
        a.L.extend(body)
        a.e(f"s_sub_u32 s{sCnt}, s{sCnt}, 1")
        a.e(f"s_branch L_{name}_hloop{role}")
        a.label(f"L_{name}_hlast{role}")
        a.vm, a.lg = [], []

        def last_period():
            vm = a.vm
            a.vm, a.lg = [], []
            if SH:
                a.e(f"s_mov_b32 s{sMask}, 0xffff0000")
                period(2, 2, True)
            a.vm = vm
        if role == 1 or KSPLIT:
            last_period()
        else:
            assert SH
            W2L = os.environ.get("W2L", "0") == "1"
            if W2L:
                last_period()
            a.e("s_waitcnt vmcnt(0)")
            a.e(f"s_mov_b32 s58, s{sWv}")
            a.e(f"s_lshl_b32 s20, s2, 2")
            a.e(f"s_add_u32 s20, s20, s{sH}")
            a.e(f"v_mov_b32 v1, v{vL}")
            if os.environ.get("W2", "1") == "2":
                wprep2(a, 16, WS_W2P, last_period)
            else:
                wprep(a, 16, WS_W2P, True, barrier=None if W2L else last_period)
            a.e(f"s_mov_b32 s{sWv}, s58")
        if role == 1 and KSPLIT and "tailwarm" in EXP:
            add64(a, sW, 30, WS_WF)
            a.e(f"s_mov_b32 s{sW+2}, {262144 + 32768}")
            a.e(f"s_mov_b32 s{sW+3}, 0x00020000")
            a.e("s_lshr_b32 s36, s2, 3")
            a.e("s_lshl_b32 s36, s36, 2")
            a.e(f"s_add_u32 s36, s36, s{sH}")
            a.e("s_mul_i32 s36, s36, 2304")
            a.e(f"v_lshlrev_b32 v1, 4, v{vL}")
            for i in range(3):
                a.e(f"buffer_load_dwordx4 v[4:7], v1, {sr(sW)}, s36 offen offset:{i*1024}")
        if role == 1 and "tw" in EXP:
            a.e(f"s_cmp_ge_u32 s2, {os.environ.get('TWN', '32')}")
            a.e(f"s_cbranch_scc1 L_{name}_ntw")
            a.e("s_getpc_b64 s[36:37]")
            a.label(f"L_{name}_pc")
            a.e(f"s_lshl_b32 s38, s{sH}, 13")
            a.e(f"s_add_u32 s38, s38, L_{name}_epi-L_{name}_pc")
            a.e(f"v_lshl_add_u32 v2, v{vL}, 7, s38")
            a.e(f"v_min_u32 v2, {0x7fc0de01 + KSPLIT:#x}, v2")
            a.e("v_mov_b32 v3, s37")
            a.e("v_add_co_u32 v2, vcc, s36, v2")
            a.e("s_nop 1")
            a.e("v_addc_co_u32 v3, vcc, 0, v3, vcc")
            a.e("global_load_dword v4, v[2:3], off")
            a.label(f"L_{name}_ntw")
        stamp(8)
        rstamp(13)
        a.e(f"s_branch L_{name}_end")

    hwave(1)
    a.label(f"L_{name}_h2")
    hwave(2)

    a.label(f"L_{name}_epi")
    K = [sr(x, 2) for x in KS]
    a.e("s_waitcnt lgkmcnt(0)")
    a.e("s_barrier")
    if "est" in EXP:
        stamp(2)
    a.e(f"v_cndmask_b32 v{vO}, v{t3}, v{t2}, vcc")

    def P(c, s, r=0):
        return c * 32 + s * 4 + r
    Y = 64
    TB = 96
    ELS = (0, 1, 2)
    for c in range(2):
        for s_ in range(8):
            if c == 1 and s_ == 7:
                a.e("s_waitcnt lgkmcnt(7)")
            u = UNIT[s_][c]
            a.e(f"ds_read_b128 {vr(P(c, s_))}, v{R0[u >> 16]} offset:{u & 0xffff}")

    def p2(x):
        return vr(x, 2)

    def padd(d, x, y):
        return f"v_pk_add_f32 {p2(d)}, {p2(x)}, {p2(y)}"

    def psub(d, x, y):
        return f"v_pk_add_f32 {p2(d)}, {p2(x)}, {p2(y)} neg_lo:[0,1] neg_hi:[0,1]"

    def pfma(d, x, k, y, neg=False):
        return f"v_pk_fma_f32 {p2(d)}, {p2(x)}, {k}, {p2(y)}" + (" neg_lo:[0,0,1] neg_hi:[0,0,1]" if neg else "")

    def interp(c):
        seq = []
        for r in (0, 2):
            E0, A, B, C, D, Q, E6, E6b = (P(c, x, r) for x in range(8))
            y = [Y + ph * 8 + c * 4 + r for ph in range(4)]
            S1, G = E6, C
            seq.append([
                padd(y[3], E6, E6b),
                padd(S1, A, B),
                psub(A, A, B),
                padd(y[1], C, D),
                psub(G, C, D),
                pfma(y[1], S1, K[0], y[1]),
                pfma(Q, E0, K[3], Q),
                pfma(y[1], E0, K[1], y[1]),
                psub(S1, S1, E0),
                pfma(y[1], y[3], K[2], y[1]),
                psub(S1, S1, y[3]),
                pfma(Q, y[3], K[6], Q),
                psub(B, S1, y[1]),
                pfma(Q, y[1], K[5], Q),
                f"v_pk_mul_f32 {p2(y[2])}, {p2(G)}, {K[9]}",
                pfma(Q, B, K[4], Q),
                pfma(y[2], A, K[10], y[2]),
                pfma(y[0], A, K[7], Q, True),
                pfma(y[0], G, K[8], y[0]),
                pfma(y[2], y[0], K[11], y[2]),
                psub(A, A, y[0]),
                psub(A, A, y[2]),
            ])
        for ops in zip(*seq):
            for op in ops:
                a.e(op)

    a.e("s_waitcnt lgkmcnt(8)")
    interp(0)
    a.e("s_waitcnt lgkmcnt(0)")
    interp(1)
    if "est" in EXP:
        stamp(3)
    a.e("s_mov_b32 s36, 0x00010001")
    a.e("s_mov_b32 s37, 0x00010001")
    a.e("s_mov_b64 exec, s[36:37]")
    for k in range(3):
        for c in range(2):
            a.e(f"ds_write_b128 v{vBW}, {vr(P(c, ELS[k]))} offset:{(k*2+c)*16}")
    a.e("s_mov_b64 exec, -1")

    def finish(ph):
        ys = [Y + ph * 8 + i for i in range(8)]
        if not KSPLIT:
            ts = [16 + (ph & 1) * 8 + i for i in range(8)]
            ev = list(zip(ys[::2], ts[::2]))
            for y, t in ev:
                a.e(f"v_pk_mul_f32 {p2(t)}, {p2(y)}, {p2(y)}")
            for y, t in ev:
                a.e(pfma(t, t, K[12], 44))
            for y, t in ev:
                a.e(f"v_pk_mul_f32 {p2(t)}, {p2(t)}, {p2(y)}")
            for t in ts:
                a.e(f"v_exp_f32 v{t}, v{t}")
            for y, t in ev:
                a.e(f"v_pk_add_f32 {p2(t)}, {p2(t)}, {K[13]}")
            for t in ts:
                a.e(f"v_rcp_f32 v{t}, v{t}")
            for y, t in ev:
                a.e(f"v_pk_mul_f32 {p2(y)}, {p2(y)}, {p2(t)}")
        o = 48 + ph * 4
        for r in range(4):
            a.e(f"v_cvt_pk_bf16_f32 v{o+r}, v{ys[r]}, v{ys[4+r]}")
        so = ph * PLF if KSPLIT else ((ph + 3) & 3) * PLH + ((ph + 7) >> 2) * 64
        a.e(f"s_mov_b32 s44, {so}")
        a.e(f"buffer_store_dwordx4 {vr(o)}, v{vO}, {sr(sO)}, s44 offen{NTF if KSPLIT else NTH}")

    a.e(f"v_mov_b32 v44, {f32hex(k0)}")
    a.e("v_mov_b32 v45, v44")
    finish(0)
    a.e("s_waitcnt lgkmcnt(0)")
    a.e("s_barrier")
    if "est" in EXP:
        stamp(4)
    for i in range(6):
        a.e(f"ds_read_b128 {vr(TB+4*i)}, v{vBW} offset:{512 + i*16}")
    for ph in range(1, 4):
        a.e(f"s_waitcnt lgkmcnt({6 - 2*ph})")
        for c in range(2):
            for r in range(4):
                i = (ph - 1) * 8 + c * 4 + r
                a.e(f"v_mov_b32_dpp v{TB+i}, v{P(c, ELS[ph-1], r)} row_shl:1 row_mask:0xf bank_mask:0xf")
        for i in range(0, 8, 2):
            a.e(padd(Y + ph * 8 + i, Y + ph * 8 + i, TB + (ph - 1) * 8 + i))
        finish(ph)
    if "est" in EXP:
        stamp(5)
    RB = os.environ.get("RB", "00")[int(KSPLIT)]
    if RB != "0":
        if not KSPLIT:
            a.e(f"s_cmp_ge_u32 s{sCb}, {RB}")
            a.e(f"s_cbranch_scc1 L_{name}_end")
        a.e("s_waitcnt vmcnt(0)")
        for ph in range(4):
            so = ph * PLF if KSPLIT else ((ph + 3) & 3) * PLH + ((ph + 7) >> 2) * 64
            a.e(f"s_mov_b32 s44, {so}")
            a.e(f"buffer_load_dword v0, v{vO}, {sr(sO)}, s44 offen")
    a.label(f"L_{name}_end")
    if STAMP:
        a.e("s_waitcnt vmcnt(0)")
        stamp(9, False)
        a.e(f"s_memrealtime s[{sSt+22}:{sSt+23}]")
        a.e(f"s_cmp_lg_u32 s{sWv}, {os.environ.get('SW', '0')}")
        a.e(f"s_cbranch_scc1 L_{name}_done")
        a.e("s_lshl_b32 s36, s2, 7")
        a.e(f"s_add_u32 s36, s36, {WS_STAMP + cfg['stamp']*0x10000}")
        add64(a, 40, 30, "s36")
        a.e("s_mov_b32 s42, 128")
        a.e("s_mov_b32 s43, 0x00020000")
        a.e("s_waitcnt lgkmcnt(0)")
        a.e("v_mov_b32 v8, 0")
        for i in range(28):
            a.e(f"v_mov_b32 v0, s{sSt+i}")
            a.e(f"buffer_store_dword v0, v8, s[40:43], 0 offen offset:{4*i}")
    a.label(f"L_{name}_done")
    a.e("s_endpgm")
    return a.L, TOPB + 40960, 128


CONV1 = dict(tin=16000, tout=8000, nchunk=16, ksplit=False, in_arg=0, in_off=0, w_off=WS_W1P, out_off=WS_H, stamp=0)
CONV2 = dict(tin=8000, tout=4000, nchunk=8, ksplit=True, in_arg=72, in_off=WS_H, w_off=WS_W2P, out_off=WS_FP, stamp=1)

HEADER = f"""; Kernarg layout for this problem (80 bytes, ptrs only, base s[0:1]):
"""


def main():
    ks = [("prep_kernel", 268, 256) + prep_kernel("prep_kernel"),
          ("conv1_kernel", 256, 1024) + conv_kernel("conv1_kernel", CONV1),
          ("conv2_kernel", 256, 1024) + conv_kernel("conv2_kernel", CONV2)]
    ks = joint_kernels(ks)
    out = HEADER
    for nm, grid, block, code, lds, vg in ks:
        out += f"; @launch kernel={nm} grid=({grid},1,1) block=({block},1,1) lds={lds}\n"
    out += '.amdgcn_target "amdgcn-amd-amdhsa--gfx950"\n.text\n'
    for nm, grid, block, code, lds, vg in ks:
        if "noalign" not in EXP:
            code = align8(code)
        out += f".globl {nm}\n.p2align 8\n.type {nm},@function\n" + "\n".join(code) + "\n"
    out += '.section .rodata,"a"\n'
    for nm, grid, block, code, lds, vg in ks:
        out += ".p2align 6\n" + kd(nm, vg)
    out = out.replace("0x7fc0de00", "L_joint_kernel_done-L_prep_kernel_pc")
    out = out.replace("0x7fc0de01", "L_conv2_kernel_done-L_conv1_kernel_pc")
    out = out.replace("0x7fc0de02", "L_joint_kernel_done-L_conv2_kernel_pc")
    path = sys.argv[1] if len(sys.argv) > 1 else "standalone__seq2seq_rnn_t_joint__speech.s"
    open(path, "w").write(out)


if __name__ == "__main__":
    main()
```

```python
import os
from asmlib import Asm, vr, sr, f32hex

EXP = os.environ.get("EXP", "").split(",")
WS_FP = 0x1A00000
WS_FPS = 0x800000
PLF = int(os.environ.get('PLF', 65536))
WS_WF = 0x2A00000
WS_WO = 0x2A20000
WS_GE = 0x2A40000
WS_STAMP = 0x3000000
C2 = 2.0 * 1.4426950408889634
RANGE = 120.0


def add64(a, d, lo, off):
    a.e(f"s_add_u32 s{d}, s{lo}, {off}")
    a.e(f"s_addc_u32 s{d+1}, s{lo+1}, 0")


def small_head(a, name):
    a.e("s_cmp_ge_u32 s2, 24")
    a.e(f"s_cbranch_scc1 L_{name}_done")
    a.e("s_lshr_b32 s41, s2, 3")
    a.e("s_and_b32 s42, s2, 7")
    a.e("s_sub_u32 s43, s40, 4")
    a.e("s_lshl_b32 s26, s43, 16")
    a.e("s_lshl_b32 s5, s42, 6")
    a.e("s_add_u32 s26, s26, s5")
    a.e("s_mov_b32 s10, 131072")
    a.e("s_mov_b32 s11, 0x00020000")
    a.e("v_lshrrev_b32 v2, 4, v1")
    a.e("v_lshlrev_b32 v2, 12, v2")
    a.e("v_and_b32 v3, 15, v1")
    a.e("v_lshl_add_u32 v2, v3, 2, v2")
    a.e("v_mov_b32 v9, 0")
    a.e("ds_write_b32 v9, v9 offset:2048")
    a.e("s_waitcnt lgkmcnt(0)")
    a.e("s_cmp_eq_u32 s41, 1")
    a.e("s_cselect_b32 s8, s56, s52")
    a.e("s_cselect_b32 s9, s57, s53")
    a.e("s_cmp_eq_u32 s41, 2")
    a.e("s_cselect_b32 s8, s54, s8")
    a.e("s_cselect_b32 s9, s55, s9")
    a.e("s_barrier")
    small_g(a, name)
    for k in range(4):
        for e in range(8):
            a.e(f"buffer_load_dword v{16+k*8+e}, v2, s[8:11], s26 offen offset:{e*512}")
        if k < 3:
            a.e("s_add_u32 s26, s26, 16384")
    a.e(f"s_branch L_{name}_small")


def small_g(a, name):
    a.e("s_cmp_lg_u32 s41, 2")
    a.e(f"s_cbranch_scc1 L_{name}_nog")
    a.e("s_mov_b32 s16, s50")
    a.e("s_mov_b32 s17, s51")
    a.e("s_mov_b32 s18, 8192")
    a.e("s_mov_b32 s19, 0x00020000")
    a.e("v_and_b32 v6, 0x30, v1")
    a.e("v_lshl_add_u32 v6, v3, 9, v6")
    a.e("s_lshl_b32 s6, s43, 8")
    for k in range(4):
        a.e(f"buffer_load_dwordx4 {vr(80+4*k)}, v6, s[16:19], s6 offen offset:{k*64}")
    a.label(f"L_{name}_nog")


def small_tail(a, name):
    a.label(f"L_{name}_small")
    R, O = 16, 48
    a.e("v_lshrrev_b32 v2, 4, v1")
    a.e("s_lshl_b32 s24, s41, 17")
    a.e(f"s_add_u32 s24, s24, {WS_WF}")
    add64(a, 12, 30, "s24")
    a.e("s_mov_b32 s14, 131072")
    a.e("s_mov_b32 s15, 0x00020000")
    a.e("s_mov_b32 s32, 0x05040100")
    a.e("s_mov_b32 s33, 0x07060302")
    a.e("v_lshlrev_b32 v4, 4, v1")
    a.e("s_lshl_b32 s24, s42, 14")
    a.e("s_lshl_b32 s25, s43, 13")
    a.e("s_add_u32 s24, s24, s25")
    a.e("s_add_u32 s25, s24, 4096")
    a.e("s_waitcnt vmcnt(0)")
    for k in range(4):
        for jn in range(2):
            for e2 in range(4):
                a.e(f"v_perm_b32 v{O+(k*2+jn)*4+e2}, v{R+k*8+2*e2+1}, v{R+k*8+2*e2}, s{32+jn}")
    a.e("s_cmp_eq_u32 s41, 2")
    a.e(f"s_cbranch_scc1 L_{name}_ge")
    for i in range(8):
        a.e(f"buffer_store_dwordx4 {vr(O+4*i)}, v4, s[12:15], s{24+(i>>2)} offen offset:{(i&3)*1024} sc1")
    a.e("s_endpgm")
    a.label(f"L_{name}_ge")
    ACC = 96
    for k in range(4):
        for jn in range(2):
            c = "0" if k == 0 else vr(ACC + 4 * jn)
            a.e(f"v_mfma_f32_16x16x32_bf16 {vr(ACC+4*jn)}, {vr(O+(k*2+jn)*4)}, {vr(80+4*k)}, {c}")
    a.e("v_mov_b32 v7, v4")
    a.e("v_mov_b32 v10, 1")
    a.e("s_nop 0")
    a.e("s_mov_b32 s14, 16384")
    a.e("v_lshlrev_b32 v8, 10, v3")
    a.e("v_lshl_add_u32 v8, v2, 5, v8")
    a.e("s_lshl_b32 s24, s42, 7")
    a.e("s_mov_b32 s34, 0xffff0000")
    a.e(f"s_mov_b32 s35, {f32hex(C2)}")
    a.e("s_cmp_eq_u32 s43, 0")
    a.e(f"s_cbranch_scc1 L_{name}_ge0")
    a.e(f"ds_write_b128 v7, {vr(ACC)}")
    a.e(f"ds_write_b128 v7, {vr(ACC+4)} offset:1024")
    a.e("ds_write_b32 v9, v10 offset:2048")
    a.e("s_endpgm")
    a.label(f"L_{name}_ge0")
    a.e("ds_read_b32 v10, v9 offset:2048")
    a.e("s_waitcnt lgkmcnt(0)")
    a.e("v_readfirstlane_b32 s27, v10")
    a.e("s_cmp_eq_u32 s27, 0")
    a.e(f"s_cbranch_scc1 L_{name}_ge0")
    a.e(f"ds_read_b128 {vr(16)}, v7")
    a.e(f"ds_read_b128 {vr(20)}, v7 offset:1024")
    a.e("s_waitcnt lgkmcnt(0)")
    for r in range(8):
        a.e(f"v_add_f32 v{16+r}, v{16+r}, v{ACC+r}")
    for i in range(4):
        a.e(f"v_cvt_pk_bf16_f32 v{48+i}, v{16+i}, v{20+i}")
    for i in range(4):
        a.e(f"v_lshlrev_b32 v{56+2*i}, 16, v{48+i}")
        a.e(f"v_and_b32 v{57+2*i}, s34, v{48+i}")
    for r in range(8):
        a.e(f"v_mul_f32 v{56+r}, s35, v{56+r}")
    a.e(f"buffer_store_dwordx4 {vr(56)}, v8, s[12:15], s24 offen sc1")
    a.e(f"buffer_store_dwordx4 {vr(60)}, v8, s[12:15], s24 offen offset:16 sc1")
    for r in range(8):
        a.e(f"v_exp_f32 v{64+r}, v{56+r}")
    a.e("v_max3_f32 v72, |v56|, |v57|, |v58|")
    a.e("v_max3_f32 v72, |v59|, |v60|, v72")
    a.e("v_max3_f32 v72, |v61|, |v62|, v72")
    a.e("v_max_f32 v72, |v63|, v72")
    add64(a, 12, 12, 16384)
    a.e(f"v_cmp_lt_f32 vcc, {f32hex(RANGE)}, v72")
    a.e(f"buffer_store_dwordx4 {vr(64)}, v8, s[12:15], s24 offen sc1")
    a.e(f"buffer_store_dwordx4 {vr(68)}, v8, s[12:15], s24 offen offset:16 sc1")
    add64(a, 12, 12, 16384)
    a.e("s_or_b32 s26, vcc_lo, vcc_hi")
    a.e("s_lshl_b32 s24, s42, 2")
    a.e("v_mov_b32 v73, s26")
    a.e("v_mov_b32 v74, 0")
    a.e("buffer_store_dword v73, v74, s[12:15], s24 offen sc1")
    a.e("s_endpgm")


def joint_kernel(name):
    a = Asm()
    NWG = 250
    STAMP = "stamp" in EXP
    FP = 528
    EP = 144
    J_B, F_B = 0, 32768
    E_B = F_B + 32 * FP
    GE_B = E_B + 8 * 36 * EP
    C_B = GE_B + 8 * 1040
    LDS = C_B + 16
    SPIN = 'nospin' not in EXP
    sF, sW, sO, sG = 8, 12, 16, 40
    sWv, sV, sCnt = 20, 21, 22
    sSt = 64
    vL, vL16 = 127, 126
    NTO = os.environ.get("NTO", " nt")

    def stamp(i, fence=True):
        if STAMP:
            a.e(f"s_memtime s[{sSt+2*i}:{sSt+2*i+1}]")
            if fence:
                a.e("s_waitcnt lgkmcnt(0)")
                a.lg = []

    def rstamp(i):
        if STAMP:
            a.e(f"s_memrealtime s[{sSt+2*i}:{sSt+2*i+1}]")
            a.e("s_waitcnt lgkmcnt(0)")
            a.lg = []

    a.label(name)
    if "local" in EXP:
        a.e("s_cmp_ge_u32 s2, 256")
        a.e(f"s_cbranch_scc1 L_{name}_done")
        a.e("s_and_b32 s3, s2, 7")
        a.e("s_lshr_b32 s2, s2, 3")
        a.e("s_mul_i32 s4, s3, 125")
        a.e("s_add_u32 s5, s4, 128")
        a.e("s_add_u32 s4, s4, 3")
        a.e("s_lshr_b32 s4, s4, 2")
        a.e("s_lshr_b32 s5, s5, 2")
        a.e("s_add_u32 s2, s2, s4")
        a.e("s_cmp_ge_u32 s2, s5")
    else:
        a.e(f"s_cmp_ge_u32 s2, {NWG}")
    a.e(f"s_cbranch_scc1 L_{name}_done")
    if STAMP:
        for i in range(28):
            a.e(f"s_mov_b32 s{sSt+i}, 0")
        a.e(f"s_memrealtime s[{sSt+20}:{sSt+21}]")
    stamp(0, False)
    a.e("s_load_dwordx2 s[28:29], s[0:1], 56")
    a.e("s_load_dwordx2 s[30:31], s[0:1], 72")
    a.e(f"v_readfirstlane_b32 s{sWv}, v0")
    a.e(f"s_lshr_b32 s{sWv}, s{sWv}, 6")
    a.e(f"s_and_b32 s{sV}, s{sWv}, 7")
    a.e(f"v_and_b32 v{vL}, 63, v0")
    a.e(f"v_lshlrev_b32 v{vL16}, 4, v{vL}")
    a.e(f"s_cmp_ge_u32 s{sWv}, 8")
    a.e(f"s_mov_b32 s33, {WS_WO}")
    a.e(f"s_cselect_b32 s33, {WS_WF}, s33")
    a.e(f"s_lshl_b32 s36, s{sV}, 14")
    a.e("s_add_u32 s33, s33, s36")
    a.e(f"s_mov_b32 s{sW+2}, 16384")
    a.e(f"s_mov_b32 s{sW+3}, 0x00020000")
    a.e("s_lshl_b32 s35, s2, 9")
    a.e("s_cmp_ge_u32 s2, 125")
    a.e(f"s_cselect_b32 s36, {32*PLF - 125*512}, 0")
    a.e("s_cselect_b32 s34, 8192, 0")
    a.e("s_add_u32 s35, s35, s36")
    a.e(f"s_add_u32 s34, s34, {WS_GE}")
    a.e(f"s_mov_b32 s{sF+2}, {WS_FPS + 64*PLF}")
    a.e(f"s_mov_b32 s{sF+3}, 0x00020000")
    a.e(f"s_mov_b32 s{sG+2}, {16384 + 8192}")
    a.e(f"s_mov_b32 s{sG+3}, 0x00020000")
    a.e("s_waitcnt lgkmcnt(0)")
    add64(a, sW, 30, "s33")
    add64(a, sG, 30, "s34")
    W = 0

    def arrive_wait(mine, other, lbl, v):
        a.e(f"v_mov_b32 v{v}, {C_B}")
        a.e(f"v_mov_b32 v{v+1}, 1")
        a.e("s_mov_b64 exec, 1")
        a.e(f"ds_add_u32 v{v}, v{v+1} offset:{4*mine}")
        a.e("s_mov_b64 exec, -1")
        a.label(lbl)
        a.e(f"ds_read_b32 v{v+1}, v{v} offset:{4*other}")
        a.e("s_waitcnt lgkmcnt(0)")
        a.e(f"v_readfirstlane_b32 s37, v{v+1}")
        a.e("s_cmp_ge_u32 s37, 8")
        a.e(f"s_cbranch_scc1 {lbl}_d")
        a.e("s_sleep 1")
        a.e(f"s_branch {lbl}")
        a.label(f"{lbl}_d")

    def wload(ks):
        if ks % 2 == 0:
            a.e(f"s_mov_b32 s36, {ks*2048}")
        for jn in range(2):
            i = ks * 2 + jn
            a.vmem(f"buffer_load_dwordx4 {vr(W+4*i)}, v{vL16}, {sr(sW)}, s36 offen offset:{(i%4)*1024}", ("W", ks))

    a.e(f"s_cmp_ge_u32 s{sWv}, 8")
    a.e(f"s_cbranch_scc1 L_{name}_T")

    add64(a, sF, 30, WS_FP)
    X = 64
    a.e(f"v_mov_b32 v0, {C_B}")
    a.e("v_mov_b32 v2, 0")
    a.e("v_mov_b32 v3, 0")
    a.e("ds_write_b64 v0, v[2:3]")
    a.e(f"v_lshrrev_b32 v124, 5, v{vL}")
    a.e(f"v_and_b32 v123, 0x1ff, v{vL16}")
    a.e(f"v_mul_u32_u24 v125, {PLF}, v124")
    a.e("v_add_u32 v123, v125, v123")
    a.e(f"s_mul_i32 s36, s{sV}, {4*PLF}")
    a.e("s_add_u32 s36, s36, s35")
    for r2 in range(2):
        a.e(f"s_add_u32 s37, s36, {WS_FPS}")
        a.vmem(f"buffer_load_dwordx4 {vr(X+4*r2)}, v123, {sr(sF)}, s36 offen", ("F", r2))
        a.vmem(f"buffer_load_dwordx4 {vr(X+8+4*r2)}, v123, {sr(sF)}, s37 offen", ("F", r2))
        if r2 == 0:
            a.e(f"s_add_u32 s36, s36, {2*PLF}")
    a.e(f"s_lshl_b32 s38, s{sV}, 10")
    a.e("s_add_u32 s38, s38, 16384")
    a.vmem(f"buffer_load_dwordx4 {vr(X+16)}, v{vL16}, {sr(sG)}, s38 offen", "G")
    a.e("s_waitcnt lgkmcnt(0)")
    stamp(1)
    a.e("s_barrier")
    stamp(5)
    a.e("s_lshl_b32 s35, s2, 17")
    add64(a, sO, 28, "s35")
    a.e(f"s_mov_b32 s{sO+2}, 131072")
    a.e(f"s_mov_b32 s{sO+3}, 0x00020000")
    k0 = -2.0 * 1.4426950408889634 * 0.7978845608028654
    a.e(f"s_mov_b32 s46, {f32hex(k0 * 0.044715)}")
    a.e("s_mov_b32 s47, s46")
    a.e(f"v_mov_b32 v120, {f32hex(k0)}")
    a.e("v_mov_b32 v121, v120")
    a.e("s_mov_b32 s48, 1.0")
    a.e("s_mov_b32 s49, 1.0")
    a.e(f"v_bfe_u32 v123, v{vL}, 2, 3")
    a.e("v_lshl_add_u32 v124, v123, 2, v124")
    a.e(f"v_mul_u32_u24 v124, {FP}, v124")
    a.e(f"v_and_b32 v123, 0x30, v{vL16}")
    a.e(f"s_lshl_b32 s36, s{sV}, 6")
    a.e("v_add3_u32 v124, v124, v123, s36")
    a.e("s_mov_b32 s45, 0xffff0000")
    a.e(f"s_mul_i32 s36, s{sV}, 1040")
    a.e(f"s_add_u32 s36, s36, {GE_B}")
    a.e(f"v_add_u32 v123, s36, v{vL16}")
    a.e(f"s_mov_b32 s{sCnt}, 2")
    a.e("s_waitcnt vmcnt(3)")
    stamp(6)
    a.label(f"L_{name}_floop")

    def p2(x):
        return vr(x, 2)
    ys = [88 + i for i in range(8)]
    ts = [96 + i for i in range(8)]
    ev = list(zip(ys[::2], ts[::2]))
    for i in range(4):
        a.e(f"v_lshlrev_b32 v{ys[2*i]}, 16, v{X+i}")
        a.e(f"v_and_b32 v{ys[2*i+1]}, s45, v{X+i}")
        a.e(f"v_lshlrev_b32 v{ts[2*i]}, 16, v{X+8+i}")
        a.e(f"v_and_b32 v{ts[2*i+1]}, s45, v{X+8+i}")
    for y, t in ev:
        a.e(f"v_pk_add_f32 {p2(y)}, {p2(y)}, {p2(t)}")
    for y, t in ev:
        a.e(f"v_pk_mul_f32 {p2(t)}, {p2(y)}, {p2(y)}")
    for y, t in ev:
        a.e(f"v_pk_fma_f32 {p2(t)}, {p2(t)}, s[46:47], v[120:121]")
    for y, t in ev:
        a.e(f"v_pk_mul_f32 {p2(t)}, {p2(t)}, {p2(y)}")
    for t in ts:
        a.e(f"v_exp_f32 v{t}, v{t}")
    for y, t in ev:
        a.e(f"v_pk_add_f32 {p2(t)}, {p2(t)}, s[48:49]")
    for t in ts:
        a.e(f"v_rcp_f32 v{t}, v{t}")
    for y, t in ev:
        a.e(f"v_pk_mul_f32 {p2(y)}, {p2(y)}, {p2(t)}")
    for i in range(4):
        a.e(f"v_cvt_pk_bf16_f32 v{104+i}, v{ys[2*i]}, v{ys[2*i+1]}")
    a.e(f"ds_write_b128 v124, {vr(104)} offset:{F_B}")
    a.e("s_waitcnt vmcnt(0)")
    a.vm = []
    for i in range(0, 4, 2):
        for b in (X, X + 8):
            a.e(f"v_pk_mov_b32 {vr(b+i,2)}, {vr(b+4+i,2)}, {vr(b+4+i,2)} op_sel:[0,1]")
    a.e(f"v_add_u32 v124, {2*FP}, v124")
    a.e(f"s_sub_u32 s{sCnt}, s{sCnt}, 1")
    a.e(f"s_cmp_lg_u32 s{sCnt}, 0")
    a.e(f"s_cbranch_scc1 L_{name}_floop")
    a.e(f"ds_write_b128 v123, {vr(X+16)}")
    a.e("s_waitcnt lgkmcnt(0)")
    stamp(2)
    if SPIN:
        arrive_wait(0, 1, f"L_{name}_ow", 120)
    else:
        a.e("s_barrier")
    stamp(3)
    for ks in range(8):
        wload(ks)
    ACC = (64, 80)
    JR = 96
    PKR = 112
    vO = 125
    a.e(f"v_lshrrev_b32 v{vO}, 4, v{vL}")
    a.e(f"v_lshlrev_b32 v{vO}, 11, v{vO}")
    a.e(f"v_and_b32 v124, 15, v{vL}")
    a.e(f"v_lshl_add_u32 v{vO}, v124, 2, v{vO}")
    a.e(f"s_lshl_b32 s36, s{sV}, 6")
    a.e(f"v_add_u32 v{vO}, s36, v{vO}")
    SROT = os.environ.get("SROT", "")
    if SROT:
        a.e(f"s_bfe_u32 s23, s2, {0x30000 | int(SROT)}")
        a.e("s_lshl_b32 s23, s23, 14")
        a.e(f"v_add_u32 v{vO}, s23, v{vO}")
    a.e("s_mov_b32 s44, 8192")
    a.e(f"s_setprio {os.environ.get('PO', '1')}")

    def out_ops(par):
        ops = []
        ac = ACC[par]
        for rt in range(2):
            for r in range(4):
                ops.append(f"v_cvt_pk_bf16_f32 v{PKR+rt*4+r}, v{ac+rt*8+r}, v{ac+rt*8+4+r}")
                ops.append(f"buffer_store_dword v{PKR+rt*4+r}, v{vO}, {sr(sO)}, {'s44' if rt else '0'} offen offset:{r*512}{NTO}")
        ops.append(f"v_add_u32 v{vO}, 16384, v{vO}")
        if SROT:
            ops.append(f"v_and_b32 v{vO}, 0x1ffff, v{vO}")
        return ops

    PD = 4

    def jread(par, n):
        a.lds(f"ds_read_b128 {vr(JR+4*(n%4))}, v{vL16} offset:{J_B + par*16384 + n*1024}", ("J", par, n))

    def ustep(par, side):
        for n in range(16):
            ks, rt = n >> 1, n & 1
            a.wait(lg=(("J", par, n),), vm=(("W", ks),))
            for jn in range(2):
                ac = ACC[par] + rt * 8 + 4 * jn
                c = "0" if ks == 0 else vr(ac)
                a.e(f"v_mfma_f32_16x16x32_bf16 {vr(ac)}, {vr(JR+4*(n%4))}, {vr(W+(ks*2+jn)*4)}, {c}")
                if n >= 3 and side:
                    a.e(side.pop(0))
            if n + PD == 16:
                a.wait(lg_all=True)
                a.e("s_barrier")
            if n + PD < 16:
                jread(par, n + PD)
            else:
                jread(1 - par, n + PD - 16)
        assert not side

    stamp(4)
    a.e("s_barrier")
    for n in range(PD):
        jread(0, n)
    ustep(0, [])
    lg0 = list(a.lg)
    stamp(7)
    rstamp(12)
    a.lg = list(lg0)
    a.e(f"s_mov_b32 s{sCnt}, 4")
    a.label(f"L_{name}_oloop")
    ustep(1, out_ops(0))
    a.e(f"s_sub_u32 s{sCnt}, s{sCnt}, 1")
    a.e(f"s_cmp_eq_u32 s{sCnt}, 0")
    a.e(f"s_cbranch_scc1 L_{name}_oend")
    ustep(0, out_ops(1))
    assert a.lg == lg0
    a.e("s_waitcnt vmcnt(32)")
    a.e(f"s_branch L_{name}_oloop")
    a.label(f"L_{name}_oend")
    stamp(8, False)
    rstamp(13)
    a.e("s_nop 7")
    for op in out_ops(1):
        a.e(op)
    a.e(f"s_branch L_{name}_fin")

    a.label(f"L_{name}_T")
    a.vm, a.lg = [], []
    a.e("s_setprio 3")
    if "wwarm" in EXP:
        add64(a, sF, 30, WS_WF)
        a.e(f"s_mov_b32 s{sF+2}, 262144")
        a.e("s_lshr_b32 s36, s2, 3")
        a.e("s_lshl_b32 s36, s36, 3")
        a.e(f"s_add_u32 s36, s36, s{sV}")
        a.e("s_lshl_b32 s36, s36, 10")
        a.vmem(f"buffer_load_dwordx4 {vr(80)}, v{vL16}, {sr(sF)}, s36 offen", "P")
    a.e(f"s_lshl_b32 s36, s{sV}, 2")
    a.e(f"s_add_u32 s36, s36, {WS_GE + 32768}")
    add64(a, 36, 30, "s36")
    a.e("s_load_dword s44, s[36:37], 0")
    FE = 64
    FR = 80
    GB = 112
    vF, vG, vJ, vEW, vER, vGL = 125, 124, 123, 122, 121, 120
    a.e(f"v_and_b32 v{vJ}, 15, v{vL}")
    a.e(f"v_lshrrev_b32 v{vER}, 4, v{vL}")
    a.e(f"v_mul_u32_u24 v{vF}, {FP}, v{vJ}")
    a.e(f"v_lshl_add_u32 v{vF}, v{vER}, 4, v{vF}")
    a.e(f"v_lshlrev_b32 v{vER}, 5, v{vER}")
    a.e(f"v_and_b32 v{vGL}, 7, v{vL}")
    a.e(f"v_lshl_add_u32 v{vG}, v{vGL}, 10, v{vER}")
    a.e(f"s_lshl_b32 s38, s{sV}, 7")
    a.e(f"v_mul_u32_u24 v{vGL}, 1040, v{vGL}")
    a.e(f"s_add_u32 s36, s38, {GE_B}")
    a.e(f"v_add3_u32 v{vGL}, v{vGL}, v{vER}, s36")
    a.e(f"s_mul_i32 s36, s{sV}, {36*EP}")
    a.e(f"s_add_u32 s36, s36, {E_B}")
    a.e(f"v_add_u32 v{vER}, s36, v{vER}")
    a.e(f"v_mul_u32_u24 v{vEW}, {EP}, v{vJ}")
    a.e(f"v_add_u32 v{vEW}, v{vEW}, v{vER}")
    a.e(f"v_lshrrev_b32 v{vJ}, 3, v{vJ}")
    a.e(f"v_mul_u32_u24 v{vJ}, {EP}, v{vJ}")
    a.e(f"v_add_u32 v{vER}, v{vJ}, v{vER}")
    a.e(f"s_lshl_b32 s36, s{sV}, 11")
    a.e(f"v_add_u32 v{vJ}, s36, v{vL16}")
    a.e("s_barrier")
    NPRE = int(os.environ.get("NPRE", "8"))
    for ks in range(NPRE):
        wload(ks)
    stamp(2)
    if SPIN:
        arrive_wait(1, 0, f"L_{name}_tw", FE)
    else:
        a.e("s_waitcnt lgkmcnt(0)")
        a.e("s_barrier")
    stamp(3)

    def fread(n):
        tt, ks = n & 1, n >> 1
        a.lds(f"ds_read_b128 {vr(FR+4*(n%8))}, v{vF} offset:{F_B + tt*16*FP + ks*64}", ("A", n))

    for n in range(8):
        fread(n)
    for ks in range(NPRE, 8):
        wload(ks)
    if NPRE < 8:
        a.e("s_barrier")
    a.e(f"s_setprio {os.environ.get('PT', '0')}")
    for n in range(16):
        tt, ks = n & 1, n >> 1
        a.wait(lg=(("A", n),), vm=(("W", ks),))
        for jn in range(2):
            ac = FE + tt * 8 + jn * 4
            c = "0" if ks == 0 else vr(ac)
            a.e(f"v_mfma_f32_16x16x32_bf16 {vr(ac)}, {vr(W+(ks*2+jn)*4)}, {vr(FR+4*(n%8))}, {c}")
        if n + 8 < 16:
            fread(n + 8)
        elif n < 10:
            a.lds(f"ds_read_b128 {vr(GB+4*(n-8))}, v{vGL} offset:{(n-8)*16}", "GE")
    a.e("s_mov_b32 s46, 0xffff0000")
    a.e(f"s_mov_b32 s48, {f32hex(C2)}")
    a.e("s_mov_b32 s49, s48")
    a.e("s_nop 3")
    stamp(4)
    FS, EX, EA, XS, PK = 80, 96, 32, 48, 64
    a.e("v_mov_b32 v28, 0")
    a.wait(lg_all=True)
    for tt in range(2):
        for r in range(4):
            a.e(f"v_cvt_pk_bf16_f32 v{24+r}, v{FE+tt*8+r}, v{FE+tt*8+4+r}")
        for r in range(4):
            a.e(f"v_lshlrev_b32 v{FS+tt*8+2*r}, 16, v{24+r}")
            a.e(f"v_and_b32 v{FS+tt*8+2*r+1}, s46, v{24+r}")
        for r in range(8 * tt, 8 * tt + 8, 2):
            a.e(f"v_pk_mul_f32 {vr(FS+r,2)}, {vr(FS+r,2)}, s[48:49]")
        for h in range(2):
            for r in range(8 * tt + 4 * h, 8 * tt + 4 * h + 4):
                a.e(f"v_exp_f32 v{EX+r}, v{FS+r}")
            for r in range(4 * tt + 2 * h, 4 * tt + 2 * h + 2):
                a.e(f"v_max3_f32 v28, |v{FS+2*r}|, |v{FS+2*r+1}|, v28")
            a.e(f"ds_write_b128 v{vEW}, {vr(EX+8*tt+4*h)} offset:{tt*16*EP + h*16}")
    if SROT:
        a.e(f"v_mov_b32 v{vF}, v{vER}")
        a.e(f"s_bfe_u32 s23, s2, {0x30000 | int(SROT)}")
        a.e(f"s_mul_i32 s24, s23, {4*EP}")
        a.e(f"v_add_u32 v{vER}, s24, v{vF}")
    a.e(f"v_cmp_lt_f32 vcc, {f32hex(RANGE)}, v28")
    a.e(f"s_mov_b32 s{sCnt}, 4")
    a.e("s_or_b32 s44, s44, vcc_lo")
    a.e("s_or_b32 s44, s44, vcc_hi")
    a.e("s_cmp_lg_u32 s44, 0")
    if "slow" in EXP:
        a.e(f"s_branch L_{name}_tslow")
    a.e(f"s_cbranch_scc1 L_{name}_tslow")

    def earead():
        for rt in range(2):
            for h in range(2):
                a.lds(f"ds_read_b128 {vr(EA+8*rt+4*h)}, v{vER} offset:{rt*2*EP + h*16}", ("G", rt))
        if SROT:
            a.e("s_add_u32 s23, s23, 1")
            a.e("s_and_b32 s23, s23, 7")
            a.e(f"s_mul_i32 s24, s23, {4*EP}")
            a.e(f"v_add_u32 v{vER}, s24, v{vF}")
        else:
            a.e(f"v_add_u32 v{vER}, {4*EP}, v{vER}")

    def tcomp(fast, early=None):
        a.wait(lg=(("G", 1),))
        for i in range(16):
            if fast:
                a.e(f"v_fma_f32 v{XS+i}, v{GB+(i&7)}, v{EA+i}, 1.0")
            else:
                a.e(f"v_add_f32 v{XS+i}, v{GB+(i&7)}, v{EA+i}")
        earead()
        for rt in range(2):
            xs = [XS + 8 * rt + i for i in range(8)]
            if not fast:
                for x in xs:
                    a.e(f"v_exp_f32 v{x}, v{x}")
                for x in xs:
                    a.e(f"v_add_f32 v{x}, 1.0, v{x}")
            for x in xs:
                a.e(f"v_rcp_f32 v{x}, v{x}")
            for x in xs:
                a.e(f"v_fma_f32 v{x}, v{x}, -2.0, 1.0")
            for i in range(4):
                a.e(f"v_cvt_pk_bf16_f32 v{PK+4*rt+i}, v{xs[2*i]}, v{xs[2*i+1]}")
            if early is not None:
                twrite(early, rt)

    def twrite(par, rt):
        a.lds(f"ds_write_b128 v{vJ}, {vr(PK+4*rt)} offset:{J_B + par*16384 + rt*1024}", "W")

    def tsync():
        a.wait(lg_all=True)
        a.e("s_barrier")

    TSH = os.environ.get("TSH", "0") == "1"
    for fast in (1, 0):
        a.lg = []
        if not fast:
            a.label(f"L_{name}_tslow")
            for h in range(2):
                a.e(f"buffer_load_dwordx4 {vr(GB+4*h)}, v{vG}, {sr(sG)}, s38 offen offset:{h*16}")
            for i in range(4):
                a.e(f"ds_write_b128 v{vEW}, {vr(FS+4*i)} offset:{(i>>1)*16*EP + (i&1)*16}")
        earead()
        a.e("s_waitcnt vmcnt(0) lgkmcnt(0)")
        a.vm, a.lg = [], []
        stamp(5)
        if TSH and fast:
            tcomp(fast, 0)
            tsync()
            tcomp(fast)
            a.wait(lg_all=True)
            a.e(f"s_mov_b32 s{sCnt}, 3")
            a.label(f"L_{name}_tloop{fast}")
            for par in (1, 0):
                twrite(par, 0)
                twrite(par, 1)
                tcomp(fast)
                tsync()
            a.e(f"s_sub_u32 s{sCnt}, s{sCnt}, 1")
            a.e(f"s_cmp_lg_u32 s{sCnt}, 0")
            a.e(f"s_cbranch_scc1 L_{name}_tloop{fast}")
            twrite(1, 0)
            twrite(1, 1)
            tsync()
        else:
            a.label(f"L_{name}_tloop{fast}")
            for par in (0, 1):
                tcomp(fast, par)
                tsync()
            a.e(f"s_sub_u32 s{sCnt}, s{sCnt}, 1")
            a.e(f"s_cmp_lg_u32 s{sCnt}, 0")
            a.e(f"s_cbranch_scc1 L_{name}_tloop{fast}")
        stamp(8)
        if fast:
            a.e(f"s_branch L_{name}_fin")
    a.label(f"L_{name}_fin")
    if STAMP:
        a.e("s_waitcnt vmcnt(0)")
        stamp(9, False)
        a.e(f"s_memrealtime s[{sSt+22}:{sSt+23}]")
        a.e(f"s_cmp_lg_u32 s{sWv}, {os.environ.get('SWJ', '0')}")
        a.e(f"s_cbranch_scc1 L_{name}_done")
        a.e("s_lshl_b32 s36, s2, 7")
        a.e(f"s_add_u32 s36, s36, {WS_STAMP + 2*0x10000}")
        add64(a, 40, 30, "s36")
        a.e("s_mov_b32 s42, 128")
        a.e("s_mov_b32 s43, 0x00020000")
        a.e("s_waitcnt lgkmcnt(0)")
        a.e("v_mov_b32 v8, 0")
        for i in range(28):
            a.e(f"v_mov_b32 v0, s{sSt+i}")
            a.e(f"buffer_store_dword v0, v8, s[40:43], 0 offen offset:{4*i}")
    a.label(f"L_{name}_done")
    a.e("s_endpgm")
    return a.L, LDS, 128


def joint_kernels(ks):
    return ks + [("joint_kernel", 256 if "local" in EXP else 250, 1024) + joint_kernel("joint_kernel")]
```

```python
import os
import sys

from asmlib import Asm, vr, sr, kd, f32hex, align8
from gen13_joint import small_head, small_tail, joint_kernels

EXP = os.environ.get("EXP", "").split(",")

WS_W1P = 0x0000000
WS_W2P = 0x0900000
WS_H = 0x1200000
WS_FP = 0x1A00000
WS_FPS = 0x800000
WS_WF = 0x2A00000
WS_STAMP = 0x3000000

CHUNKB = 7 * 8192
FB = 1024
BB = 8 * FB
SEQB = 2 * BB
FB6 = 1088
BB6 = 8 * FB6
SPB = 6 * SEQB + 2 * BB6
TOPB = SPB + 6144
OOB = 0x7f000000
LOCAL = 'local' in EXP
PLH, PLF = int(os.environ.get('PLH', 131072)), int(os.environ.get('PLF', 65536))
NTW, NTH, NTF = ({"0": "", "1": " nt", "2": " sc1", "3": " sc0 sc1"}[c] for c in os.environ.get("NT", "222"))


def add64(a, d, lo, off):
    a.e(f"s_add_u32 s{d}, s{lo}, {off}")
    a.e(f"s_addc_u32 s{d+1}, s{lo+1}, 0")


def eval_ops(c, t):
    e1, o1, e2, o2 = t
    ops = [f"v_add_f32 v{e1}, v{c[0]}, v{c[2]}",
           f"v_add_f32 v{o1}, v{c[1]}, v{c[3]}",
           f"v_fma_f32 v{e2}, v{c[2]}, 4.0, v{c[0]}",
           f"v_fma_f32 v{o2}, v{c[3]}, 4.0, v{c[1]}",
           f"v_add_f32 v{c[1]}, v{e1}, v{o1}",
           f"v_sub_f32 v{c[2]}, v{e1}, v{o1}",
           f"v_fma_f32 v{c[3]}, v{o2}, 2.0, v{e2}",
           f"v_fma_f32 v{e2}, v{o2}, -2.0, v{e2}",
           f"v_fmamk_f32 v{e1}, v{c[0]}, {f32hex(15.0)}, v{e2}",
           f"v_fmamk_f32 v{e1}, v{o1}, {f32hex(10.0)}, v{e1}"]
    return ops, [c[1], c[2], c[3], e2, e1]


def wprep(a, karg, wsoff, ws_loaded, barrier=False, extra=None, small=None, mid=None):
    a.vm, a.lg = [], []
    a.e(f"s_load_dwordx2 s[8:9], s[0:1], {karg}")
    if not ws_loaded:
        a.e("s_load_dwordx2 s[30:31], s[0:1], 72")
    a.e("s_lshr_b32 s22, s20, 8")
    a.e("s_bfe_u32 s23, s20, 0x40004")
    a.e("s_bfe_u32 s24, s20, 0x30001")
    a.e("s_and_b32 s21, s20, 1")
    a.e("v_lshrrev_b32 v2, 4, v1")
    a.e("v_lshlrev_b32 v2, 12, v2")
    a.e("v_and_b32 v3, 15, v1")
    a.e("v_lshl_add_u32 v2, v3, 2, v2")
    a.e("s_lshl_b32 s26, s22, 3")
    a.e("s_lshr_b32 s27, s23, 3")
    a.e("s_add_u32 s26, s26, s27")
    a.e("s_lshl_b32 s26, s26, 17")
    a.e("s_and_b32 s27, s23, 7")
    a.e("s_lshl_b32 s27, s27, 14")
    a.e("s_add_u32 s26, s26, s27")
    a.e("s_lshl_b32 s27, s24, 6")
    a.e("s_add_u32 s26, s26, s27")
    a.e(f"s_mov_b32 s10, {31*131072}")
    a.e("s_mov_b32 s11, 0x00020000")
    if small:
        small_select(a)
        a.e("s_add_u32 s37, s26, s5")
        a.e("s_add_u32 s38, s37, s5")
        a.e("s_add_u32 s39, s38, s5")
    else:
        for p in range(1, 4):
            a.e(f"s_add_u32 s{36+p}, s26, {2*131072*p}")
    a.e("s_waitcnt lgkmcnt(0)")
    if small:
        small_ptr(a)
        small_g(a, "prep_kernel")
    R = 16
    for e2 in range(4):
        for p in range(4):
            for e in (2 * e2, 2 * e2 + 1):
                a.vmem(f"buffer_load_dword v{R+p*8+e}, v2, s[8:11], s{36+p if p else 26} offen offset:{e*512}", ("L", e2))
    if small:
        a.e("s_cmp_lt_u32 s3, 12")
        a.e(f"s_cbranch_scc1 {small}")
    if mid:
        mid()
    add64(a, 12, 30, wsoff)
    a.e(f"s_mov_b32 s14, {8*16*CHUNKB}")
    a.e("s_mov_b32 s15, 0x00020000")
    a.e("v_lshlrev_b32 v4, 4, v1")
    a.e("s_lshl_b32 s27, s24, 4")
    a.e("s_add_u32 s27, s27, s23")
    a.e(f"s_mul_i32 s27, s27, {CHUNKB}")
    a.e("s_lshl_b32 s28, s22, 11")
    a.e("s_add_u32 s27, s27, s28")
    a.e("s_lshl_b32 s28, s21, 10")
    a.e("s_add_u32 s27, s27, s28")
    a.e("s_cmp_eq_u32 s21, 0")
    a.e("s_mov_b32 s32, 0x07060302")
    a.e("s_cselect_b32 s32, 0x05040100, s32")
    a.e("s_mov_b32 s33, 0x03020c0c")
    a.e("s_cselect_b32 s33, 0x01000c0c, s33")
    a.e(f"s_mov_b32 s35, {f32hex(1.0/24)}")
    a.e(f"s_mov_b32 s36, {f32hex(1.0/72)}")
    if barrier:
        barrier()
    OUT = 48
    T = 76
    scale = ("0.5", "0.5", "s35", "s35", "s36")
    for e2 in range(4):
        a.wait(vm=(("L", e2),))
        if extra and e2 == int(os.environ.get("XT", "3")):
            extra()
        for p, seq in ((0, 6), (3, 0)):
            a.e(f"v_perm_b32 v{OUT+seq*4+e2}, v{R+p*8+2*e2+1}, v{R+p*8+2*e2}, s32")
        res, lists = [], []
        for e in range(2):
            cf = [T + e * 8 + i for i in range(4)]
            ops = [f"v_perm_b32 v{cf[i]}, v{cf[i]}, v{R + (3 - i) * 8 + 2 * e2 + e}, s33" for i in range(4)]
            o, rr = eval_ops(cf, [T + e * 8 + 4 + i for i in range(4)])
            ops += o + [f"v_mul_f32 v{r}, {sc}, v{r}" for r, sc in zip(rr, scale)]
            res.append(rr)
            lists.append(ops)
        for x, y in zip(*lists):
            a.e(x)
            a.e(y)
        for i in range(5):
            a.e(f"v_cvt_pk_bf16_f32 v{OUT+(1+i)*4+e2}, v{res[0][i]}, v{res[1][i]}")
    for seq in (6, 0, 1, 2, 3, 4, 5):
        a.e(f"s_add_u32 s28, s27, {seq*8192}")
        a.e(f"buffer_store_dwordx4 {vr(OUT+seq*4)}, v4, s[12:15], s28 offen{NTW}")


def wprep2(a, karg, wsoff, barrier, LB=True, extra=None):
    a.vm, a.lg = [], []
    a.e(f"s_load_dwordx2 s[8:9], s[0:1], {karg}")
    a.e("s_lshr_b32 s22, s20, 8")
    a.e("s_bfe_u32 s23, s20, 0x40004")
    a.e("s_bfe_u32 s24, s20, 0x30001")
    a.e("s_and_b32 s21, s20, 1")
    a.e("v_lshrrev_b32 v5, 4, v1")
    a.e("v_lshlrev_b32 v2, 11, v5")
    a.e("v_and_b32 v3, 15, v1")
    a.e("v_lshl_add_u32 v2, v3, 2, v2")
    a.e("s_lshl_b32 s26, s22, 3")
    a.e("s_lshr_b32 s27, s23, 3")
    a.e("s_add_u32 s26, s26, s27")
    a.e("s_lshl_b32 s26, s26, 17")
    a.e("s_and_b32 s27, s23, 7")
    a.e("s_lshl_b32 s27, s27, 1")
    a.e("s_add_u32 s27, s27, s21")
    a.e("s_lshl_b32 s27, s27, 13")
    a.e("s_add_u32 s26, s26, s27")
    a.e("s_lshl_b32 s27, s24, 6")
    a.e("s_add_u32 s26, s26, s27")
    a.e(f"s_mov_b32 s10, {31*131072}")
    a.e("s_mov_b32 s11, 0x00020000")
    for p in range(1, 4):
        a.e(f"s_add_u32 s{36+p}, s26, {2*131072*p}")
    a.e(f"s_mov_b32 s14, {8*16*CHUNKB}")
    a.e("s_mov_b32 s15, 0x00020000")
    a.e("v_lshrrev_b32 v4, 1, v5")
    a.e("v_lshlrev_b32 v4, 8, v4")
    a.e("v_lshl_add_u32 v4, v3, 4, v4")
    a.e("v_and_b32 v5, 1, v5")
    a.e("v_lshl_add_u32 v4, v5, 3, v4")
    a.e("s_lshl_b32 s27, s24, 4")
    a.e("s_add_u32 s27, s27, s23")
    a.e(f"s_mul_i32 s27, s27, {CHUNKB}")
    a.e("s_lshl_b32 s28, s22, 11")
    a.e("s_add_u32 s27, s27, s28")
    a.e("s_lshl_b32 s28, s21, 9")
    a.e("s_add_u32 s27, s27, s28")
    a.e("s_mov_b32 s32, 0x05040100")
    a.e("s_mov_b32 s33, 0x07060302")
    a.e("s_mov_b32 s34, 0xffff0000")
    a.e(f"s_mov_b32 s35, {f32hex(1.0/24)}")
    a.e(f"s_mov_b32 s40, {f32hex(1.0/72)}")
    a.e("s_waitcnt lgkmcnt(0)")
    if LB:
        barrier()
    R, OUT, T = 16, 76, 104
    for e2 in range(2):
        for p in range(4):
            for e in (2 * e2, 2 * e2 + 1):
                a.vmem(f"buffer_load_dword v{R+p*4+e}, v2, s[8:11], s{36+p if p else 26} offen offset:{e*512}", ("L", e2))
    if not LB:
        barrier()
    add64(a, 12, 30, wsoff)
    scale = ("0.5", "0.5", "s35", "s35", "s40")

    def out(seq, c):
        return OUT + (seq * 2 + c) * 2
    for e2 in range(2):
        a.wait(vm=(("L", e2),))
        if extra and e2 == 1:
            extra()
        for c in range(2):
            for p, seq in ((0, 6), (3, 0)):
                a.e(f"v_perm_b32 v{out(seq, c)+e2}, v{R+p*4+2*e2+1}, v{R+p*4+2*e2}, s{32+c}")
            res, lists = [], []
            for e in range(2):
                cf = [T + e * 8 + i for i in range(4)]
                src = [R + (3 - i) * 4 + 2 * e2 + e for i in range(4)]
                ops = [f"v_and_b32 v{d}, s34, v{x}" if c else f"v_lshlrev_b32 v{d}, 16, v{x}" for d, x in zip(cf, src)]
                o, rr = eval_ops(cf, [T + e * 8 + 4 + i for i in range(4)])
                ops += o + [f"v_mul_f32 v{r}, {sc}, v{r}" for r, sc in zip(rr, scale)]
                res.append(rr)
                lists.append(ops)
            for x, y in zip(*lists):
                a.e(x)
                a.e(y)
            for i in range(5):
                a.e(f"v_cvt_pk_bf16_f32 v{out(1+i, c)+e2}, v{res[0][i]}, v{res[1][i]}")
            if e2 == 1:
                for seq in range(7):
                    a.e(f"s_add_u32 s28, s27, {seq*8192}")
                    a.e(f"buffer_store_dwordx2 {vr(out(seq, c), 2)}, v4, s[12:15], s28 offen offset:{c*1024}{NTW}")


def prep_kernel(name):
    a = Asm()
    NWG = 256
    a.label(name)
    a.e(f"s_cmp_ge_u32 s2, {NWG}")
    a.e(f"s_cbranch_scc1 L_{name}_done")
    CW = os.environ.get("CW", "late")
    CWN = int(os.environ.get("CWN", "32"))

    def code_warm():
        a.e(f"s_cmp_lt_u32 s3, {256 - CWN}")
        a.e(f"s_cbranch_scc1 L_{name}_ncw")
        a.e("s_getpc_b64 s[62:63]")
        a.label(f"L_{name}_pc")
        a.e("s_and_b32 s64, s3, 8")
        a.e("s_lshl_b32 s64, s64, 12")
        a.e("v_lshlrev_b32 v120, 7, v0")
        a.e("v_add_u32 v120, s64, v120")
        a.e(f"v_min_u32 v120, 0x7fc0de00, v120")
        a.e("v_mov_b32 v121, s63")
        a.e("v_add_co_u32 v120, vcc, s62, v120")
        a.e("s_nop 1")
        a.e("v_addc_co_u32 v121, vcc, 0, v121, vcc")
        a.e("global_load_dword v122, v[120:121], off")
        a.label(f"L_{name}_ncw")
        return 0

    def x_warm():
        XW = int(os.environ.get("XW", "0"))
        if XW:
            a.e("s_and_b32 s64, s3, 7")
            a.e("s_lshr_b32 s65, s2, 3")
            a.e("s_lshr_b32 s66, s65, 3")
            a.e("s_lshl_b32 s64, s64, 2")
            a.e("s_add_u32 s64, s64, s66")
            a.e("s_mul_i32 s64, s64, 512000")
            a.e("s_and_b32 s65, s65, 7")
            a.e("s_lshl_b32 s65, s65, 2")
            a.e("s_add_u32 s65, s65, s40")
            a.e("s_lshl_b32 s65, s65, 14")
            a.e("s_add_u32 s64, s64, s65")
            a.e("s_sub_u32 s64, s64, 7680")
            a.e("v_lshrrev_b32 v120, 2, v1")
            a.e("v_lshlrev_b32 v120, 10, v120")
            a.e(f"v_and_b32 v121, {XW - 1}, v1")
            a.e("v_lshl_add_u32 v120, v121, 7, v120")
            a.e("v_add_u32 v120, s64, v120")
            a.e("s_mov_b32 s68, s44")
            a.e("s_mov_b32 s69, s45")
            a.e(f"s_mov_b32 s70, {2*16000*512}")
            a.e("s_mov_b32 s71, 0x00020000")
            a.vmem("buffer_load_dword v123, v120, s[68:71], 0 offen", "XW")
    a.e("s_mov_b32 s3, s2")
    if CW == "early":
        code_warm()
    a.e("s_load_dwordx16 s[44:59], s[0:1], 0")
    a.e("s_load_dwordx2 s[30:31], s[0:1], 72")
    if "stamp" in EXP:
        a.e("s_memrealtime s[60:61]")
    a.e("v_readfirstlane_b32 s40, v0")
    a.e("s_lshr_b32 s40, s40, 6")
    a.e("v_and_b32 v1, 63, v0")
    a.e("s_cmp_lt_u32 s40, 4")
    a.e(f"s_cbranch_scc1 L_{name}_w")
    small_head(a, name)
    a.label(f"L_{name}_w")
    a.e("s_lshl_b32 s21, s2, 2")
    a.e("s_add_u32 s20, s40, s21")
    wprep2(a, 8, WS_W1P, lambda: a.e("s_barrier"), False, code_warm if CW == "late" else None)
    if "stamp" in EXP:
        a.e("s_waitcnt vmcnt(0)")
        a.e("s_memrealtime s[62:63]")
        a.e("s_lshl_b32 s36, s2, 7")
        a.e(f"s_add_u32 s36, s36, {WS_STAMP + 3*0x10000}")
        add64(a, 40, 30, "s36")
        a.e("s_mov_b32 s42, 128")
        a.e("s_mov_b32 s43, 0x00020000")
        a.e("s_waitcnt lgkmcnt(0)")
        a.e("v_mov_b32 v8, 0")
        a.e("v_mov_b32 v0, 1")
        a.e("buffer_store_dword v0, v8, s[40:43], 0 offen")
        for i in range(4):
            a.e(f"v_mov_b32 v0, s{60+i}")
            a.e(f"buffer_store_dword v0, v8, s[40:43], 0 offen offset:{80+4*i}")
    a.label(f"L_{name}_done")
    a.e("s_endpgm")
    small_tail(a, name)
    a.L.insert(len(a.L) - 1, f"L_{name}_last:")
    return a.L, 4096, 128


def conv_kernel(name, cfg):
    TIN, TOUT = cfg["tin"], cfg["tout"]
    N = cfg["nchunk"]
    KSPLIT = cfg["ksplit"]
    NWG = 256
    STAMP = "stamp" in EXP
    sX, sW, sO = 8, 12, 16
    sWv, sT0, sCnt, sBo, sXo, sMask = 20, 21, 22, 23, 24, 25
    sBo2 = 26
    sK, sCb, sH = 28, 29, 32
    sSt = 60
    vL = 127
    vU, vS_, vI, vKG = 8, 9, 10, 11

    a = Asm()
    a.label(name)
    a.e(f"s_cmp_ge_u32 s2, {NWG}")
    a.e(f"s_cbranch_scc1 L_{name}_done")

    def stamp(i, fence=True):
        if STAMP:
            a.e(f"s_memtime s[{sSt+2*i}:{sSt+2*i+1}]")
            if fence:
                a.e("s_waitcnt lgkmcnt(0)")
                a.lg = []

    def rstamp(i):
        if STAMP:
            a.e(f"s_memrealtime s[{sSt+2*i}:{sSt+2*i+1}]")
            a.e("s_waitcnt lgkmcnt(0)")
            a.lg = []
    if STAMP:
        for i in range(28):
            a.e(f"s_mov_b32 s{sSt+i}, 0")
        a.e(f"s_memrealtime s[{sSt+20}:{sSt+21}]")
    stamp(0, False)
    a.e(f"s_load_dwordx2 s[4:5], s[0:1], {cfg['in_arg']}")
    a.e("s_load_dwordx2 s[30:31], s[0:1], 72")
    a.e(f"v_readfirstlane_b32 s{sWv}, v0")
    a.e(f"s_lshr_b32 s{sWv}, s{sWv}, 6")
    if os.environ.get("WX", "8") != "0":
        a.e(f"s_xor_b32 s{sWv}, s{sWv}, {os.environ.get('WX', '8')}")
    XL = int((os.environ.get("XL", "33") * 2)[int(KSPLIT)])
    a.e(f"s_and_b32 s36, s2, {(8 >> XL) - 1}")
    a.e(f"s_lshl_b32 s36, s36, {XL}")
    a.e(f"s_bfe_u32 s37, s2, {(XL << 16) | 3}")
    a.e(f"s_or_b32 s{sCb}, s36, s37")
    a.e(f"s_bfe_u32 s36, s2, {(XL << 16) | (3 - XL)}")
    a.e(f"s_lshl_b32 s36, s36, {5 - XL}")
    a.e(f"s_lshr_b32 s37, s2, {3 + XL}")
    a.e("s_or_b32 s36, s36, s37")
    if KSPLIT:
        if LOCAL:
            a.e("s_and_b32 s33, s36, 1")
            a.e("s_bfe_u32 s34, s36, 0x30001")
            a.e("s_lshr_b32 s35, s36, 4")
        else:
            a.e("s_lshr_b32 s33, s36, 4")
            a.e("s_and_b32 s34, s36, 7")
            a.e("s_bfe_u32 s35, s36, 0x10003")
    else:
        a.e("s_mov_b32 s33, 0")
        a.e("s_and_b32 s34, s36, 15")
        a.e("s_lshr_b32 s35, s36, 4")
    a.e(f"s_mul_i32 s{sT0}, s34, 500")
    a.e(f"s_and_b32 s{sH}, s{sWv}, 3")
    a.e(f"v_and_b32 v{vL}, 63, v0")
    a.e(f"v_lshrrev_b32 v5, 2, v{vL}")
    a.e(f"v_and_b32 v6, 3, v{vL}")
    a.e(f"s_and_b32 s42, s{sWv}, 7")
    if not KSPLIT:
        a.e("v_lshlrev_b32 v7, 15, v5")
        a.e("v_lshl_add_u32 v7, v6, 4, v7")
        a.e(f"s_lshl_b32 s41, s{sT0}, 10")
        a.e("s_sub_u32 s41, s41, 7680")
        a.e("s_lshl_b32 s37, s42, 12")
        a.e("s_add_u32 s37, s37, s41")
        a.e("v_add_u32 v7, s37, v7")
        a.e(f"s_mul_i32 s36, s35, {TIN*512}")
        a.e(f"s_mov_b32 s{sX+2}, {TIN*512}")
    else:
        a.e(f"s_lshr_b32 s41, s{sT0}, 2")
        a.e("s_sub_u32 s41, s41, 1")
        a.e("s_add_u32 s37, s41, s42")
        a.e("v_lshl_add_u32 v7, v5, 3, s37")
        a.e(f"s_mul_i32 s36, s35, {32*PLH}")
        a.e(f"s_add_u32 s36, s36, {cfg['in_off']}")
        a.e(f"s_mov_b32 s{sX+2}, {32*PLH}")

    def haddr(dst, vG, vlane, p, t):
        a.e(f"s_add_u32 s37, s33, {2*p - 7 & 0xffffffff}")
        a.e(f"v_lshl_add_u32 v{t}, v{vG}, 3, s37")
        a.e(f"v_cmp_gt_u32 vcc, {TIN}, v{t}")
        a.e(f"s_mul_i32 s37, s33, {PLH}")
        a.e(f"s_add_u32 s37, s37, {(2*p & 3)*PLH + (p >> 1)*64}")
        a.e(f"v_lshl_add_u32 v{dst}, v{vG}, 7, s37")
        a.e(f"v_add_u32 v{dst}, v{dst}, v{vlane}")
        a.e(f"v_mov_b32 v{t}, {OOB}")
        a.e(f"v_cndmask_b32 v{dst}, v{t}, v{dst}, vcc")
    a.e(f"s_mov_b32 s{sX+3}, 0x00020000")
    a.e(f"s_mov_b32 s{sMask}, 0xffff0000")
    a.e("s_mov_b32 s47, s36")

    def kwait():
        a.e("s_waitcnt lgkmcnt(0)")
        stamp(1)
        add64(a, sX, 4, "s47")
    OB = 512

    def wsrd():
        a.e(f"s_lshl_b32 s36, s{sCb}, 4")
        a.e("s_lshl_b32 s37, s33, 3")
        a.e("s_add_u32 s36, s36, s37")
        a.e(f"s_mul_i32 s36, s36, {CHUNKB}")
        a.e(f"s_add_u32 s36, s36, {cfg['w_off']}")
        add64(a, sW, 30, "s36")
        a.e(f"s_mov_b32 s{sW+2}, {N*CHUNKB}")
        a.e(f"s_mov_b32 s{sW+3}, 0x00020000")

    def lds_throttle(need=1):
        if len(a.lg) + need > 15:
            a.e("s_waitcnt lgkmcnt(8)")
            a.lg = a.lg[-8:]

    def mf(acc, b, av):
        if "nomfma" not in EXP:
            a.e(f"v_mfma_f32_16x16x32_bf16 {vr(acc)}, {vr(b)}, {vr(av)}, {vr(acc)}")

    def steady(gen, per, strict=True):
        st = []
        for it in range(3):
            st.append(len(a.L))
            for pos in range(per):
                gen(per * it + pos, pos)
        st.append(len(a.L))
        bodies = [a.L[st[i]:st[i + 1]] for i in range(3)]
        if strict:
            assert bodies[1] == bodies[2], "loop not steady"
            assert bodies[0] == bodies[1], "loop entry not steady"
        del a.L[st[0]:]
        return bodies[1]

    a.e(f"s_cmp_ge_u32 s{sWv}, 8")
    a.e(f"s_cbranch_scc1 L_{name}_helper")

    ACC = 0
    vF, vA8, vD, vB = (120, 121), 122, (123, 124), 125
    vP = (116, 117, 118)
    vBZ = 119
    S, T, O = 96, 108, 64
    if not KSPLIT:
        a.e(f"s_add_u32 s37, s41, {128*4096}")
        a.e(f"v_lshl_add_u32 v{T}, v{vL}, 4, s37")
        for p in range(1, 3):
            a.e(f"v_add_u32 v{T+p}, {p*1024}, v{T}")
    else:
        a.e("s_add_u32 s37, s41, 128")
        a.e("v_mov_b32 v16, s37")
        a.e(f"v_mul_u32_u24 v17, {4*PLH}, v5")
        a.e("v_lshl_add_u32 v17, v6, 4, v17")
        for p in range(3):
            haddr(T + p, 16, 17, p, 18)
    kwait()
    wsrd()
    PLO = PLF if KSPLIT else PLH
    a.e(f"s_mul_i32 s36, s35, {32*PLO}")
    a.e(f"s_add_u32 s36, s36, {cfg['out_off']}")
    if KSPLIT:
        a.e(f"s_mul_i32 s37, s33, {WS_FPS}")
        a.e("s_add_u32 s36, s36, s37")
    add64(a, sO, 30, "s36")
    a.e(f"s_mov_b32 s{sO+2}, {32*PLO}")
    a.e(f"s_mov_b32 s{sO+3}, 0x00020000")
    a.e(f"v_and_b32 v{vI}, 15, v{vL}")
    a.e(f"v_lshrrev_b32 v{vKG}, 4, v{vL}")
    t = 16
    for d, sh in ((vU, 0), (vS_, 1)):
        a.e(f"v_add_u32 v{d}, {sh}, v{vI}")
        a.e(f"v_and_b32 v{t}, 4, v{d}")
        a.e(f"v_lshrrev_b32 v{t}, 1, v{t}")
        a.e(f"v_xor_b32 v{t}, v{vKG}, v{t}")
        a.e(f"v_lshlrev_b32 v{t}, 4, v{t}")
        a.e(f"v_lshl_add_u32 v{d}, v{d}, 6, v{t}")
    a.e(f"s_lshr_b32 s38, s{sH}, 1")
    a.e(f"s_and_b32 s39, s{sH}, 1")
    a.e("s_add_u32 s40, s38, 4")
    a.e("s_lshl_b32 s43, s39, 10")
    a.e(f"s_cmp_lt_u32 s{sWv}, 4")
    a.e(f"s_cselect_b32 s40, s{sWv}, s40")
    a.e("s_cselect_b32 s36, 0, s43")
    a.e("s_lshl_b32 s37, s40, 13")
    a.e("s_add_u32 s37, s37, s36")
    a.e(f"v_lshl_add_u32 v{vB}, v{vL}, 4, s37")
    a.e(f"s_mul_i32 s37, s40, {SEQB}")
    a.e(f"v_add_u32 v{vF[0]}, s37, v{vU}")
    a.e(f"v_add_u32 v{vF[1]}, s37, v{vS_}")
    a.e("s_lshl_b32 s37, s40, 10")
    a.e(f"s_add_u32 s37, s37, {SPB}")
    a.e(f"v_lshl_add_u32 v{t}, v{vKG}, 4, s37")
    a.e(f"v_cmp_eq_u32 vcc, 15, v{vI}")
    a.e(f"v_mov_b32 v{t+1}, {BB}")
    a.e(f"v_mov_b32 v{t+2}, {-BB & 0xffffffff}")
    a.e(f"v_mov_b32 v{t+3}, 64")
    a.e(f"v_cndmask_b32 v{vA8}, v{vF[1]}, v{t}, vcc")
    a.e(f"v_cndmask_b32 v{vD[0]}, v{t+1}, v{t+3}, vcc")
    a.e(f"v_cndmask_b32 v{vD[1]}, v{t+2}, v{t+3}, vcc")
    a.e(f"v_lshl_add_u32 v126, v{vL}, 4, s37")
    tabs = {44: (1.0, 1.0, 1.0, 1.0, 1.0, 16.0), 45: (0.0, 1.0, -1.0, 2.0, -2.0, 8.0),
            46: (0.0, 1.0, 1.0, 4.0, 4.0, 4.0)}
    for sg, tab in tabs.items():
        a.e(f"s_mov_b32 s{sg}, {f32hex(tab[0])}")
    for q in range(1, 6):
        a.e(f"s_cmp_eq_u32 s40, {q}")
        for sg, tab in tabs.items():
            if tab[q] != tab[0]:
                a.e(f"s_cselect_b32 s{sg}, {f32hex(tab[q])}, s{sg}")

    def special_rows():
        a.wait(vm=("SP",))
        for d in range(4):
            for p in range(3):
                a.e(f"v_lshlrev_b32 v{T+p}, 16, v{S+4*p+d}")
                a.e(f"v_and_b32 v{T+3+p}, s{sMask}, v{S+4*p+d}")
            for h in range(2):
                a.e(f"v_mul_f32 v{T+6+h}, s44, v{T+3*h}")
            for h in range(2):
                a.e(f"v_fmac_f32 v{T+6+h}, s45, v{T+3*h+1}")
            for h in range(2):
                a.e(f"v_fmac_f32 v{T+6+h}, s46, v{T+3*h+2}")
            a.e(f"v_cvt_pk_bf16_f32 v{S+d}, v{T+6}, v{T+7}")
        a.e(f"ds_write_b128 v126, {vr(S)}")

    def own_read(k, g, reg, tag, last=False):
        if g == 8:
            base, off = vA8, 0
        else:
            base, off = vF[g >> 3], (k & 1) * BB + (g & 7) * FB
        a.lds(f"ds_read_b128 {vr(reg)}, v{base} offset:{off}", tag)
        if g == 8 and not last:
            a.e(f"v_add_u32 v{vA8}, v{vD[k & 1]}, v{vA8}")

    UNIT = [(s * SEQB, s * SEQB + BB) for s in range(4)] + [(4 * SEQB, TOPB), (5 * SEQB, TOPB + 8192),
            (6 * SEQB, TOPB + 16384), (TOPB + 24576, TOPB + 32768)]
    EA = 96
    ES = []
    R0 = (120, 121, 64)
    vO, vBW = 122, 127
    BND = SPB
    t0, t1, t2, t3 = 108, 109, 110, 111
    ES.append(f"v_and_b32 v{t0}, 15, v{vL}")
    ES.append(f"v_lshrrev_b32 v{t1}, 4, v{vL}")
    ES.append(f"v_lshrrev_b32 v{t2}, 3, v{t0}")
    ES.append(f"s_lshl_b32 s36, s{sWv}, 1")
    ES.append(f"v_add_u32 v{t2}, s36, v{t2}")
    ES.append(f"v_xor_b32 v{t3}, v{t2}, v{t0}")
    ES.append(f"v_and_b32 v{t3}, 7, v{t3}")
    ES.append(f"v_lshlrev_b32 v{t3}, 4, v{t3}")
    ES.append(f"v_lshl_add_u32 v{t3}, v{t2}, 7, v{t3}")
    ES.append(f"v_lshl_add_u32 v{R0[0]}, v{t1}, 11, v{t3}")
    ES.append(f"v_add_u32 v{R0[1]}, 65536, v{R0[0]}")
    ES.append(f"v_add_u32 v{R0[2]}, 131072, v{R0[0]}")
    ES.append(f"s_lshl_b32 s36, s{sWv}, 9")
    ES.append(f"s_add_u32 s36, s36, {BND}")
    ES.append(f"v_lshl_add_u32 v{vBW}, v{t1}, 7, s36")
    ES.append(f"s_lshl_b32 s36, s{sWv}, 4")
    ES.append(f"v_add_u32 v{t0}, s36, v{t0}")
    ES.append(f"v_lshlrev_b32 v{t2}, 6, v{t0}")
    ES.append(f"v_lshl_add_u32 v{t2}, v{t1}, 4, v{t2}")
    ES.append(f"s_mul_i32 s36, s{sCb}, {4*PLO}")
    ES.append(f"s_lshl_b32 s37, s{sT0}, 4")
    ES.append("s_add_u32 s36, s36, s37")
    ES.append(f"v_add_u32 v{t2}, s36, v{t2}")
    ES.append(f"v_mov_b32 v{t3}, {OOB}")
    ES.append(f"v_cmp_gt_u32 vcc, 125, v{t0}")
    k0 = -2.0 * 1.4426950408889634 * 0.7978845608028654
    consts = [-1.0 / 3, 0.25, -5.0, -32.0 / 9, -8.0 / 9, -2.0 / 9, -1.0 / 18, 17.0 / 9, -2.0 / 3, 0.4, -1.0 / 15, -0.2,
              k0 * 0.044715, 1.0]
    KS = [4, 6, 8, 10, 12, 14, 22, 24, 26, 32, 34, 38, 40, 42]
    for sg, cv in zip(KS, consts):
        ES.append(f"s_mov_b32 s{sg}, {f32hex(cv)}")
        ES.append(f"s_mov_b32 s{sg+1}, s{sg}")

    def ex_addr(sbase):
        a.e(f"v_and_b32 v{EA}, 15, v{vL}")
        a.e(f"v_and_b32 v{EA+1}, 7, v{vL}")
        a.e(f"v_lshlrev_b32 v{EA+1}, 4, v{EA+1}")
        a.e(f"v_lshl_add_u32 v{EA}, v{EA}, 7, v{EA+1}")
        a.e(f"v_lshrrev_b32 v{EA+1}, 4, v{vL}")
        a.e(f"v_lshl_add_u32 v{EA}, v{EA+1}, 11, v{EA}")
        a.e(f"v_add_u32 v{EA}, s{sbase}, v{EA}")
        for f in range(1, 8):
            a.e(f"v_xor_b32 v{EA+f}, {f << 4}, v{EA}")

    def mwave(role):
        if role == 1:
            BR, AR, NR = 64, 96, 6
            steps = [("X", g) for g in range(11)]
        else:
            BR, AR, NR = 64, 88, 7
            steps = []
            for g in range(11):
                steps.append(("Y", g))
                if 1 <= g <= 9:
                    steps.append(("Z", g - 1))
        NS = len(steps)

        def bload(k, kind, q):
            if "nob" in EXP and k > 0:
                return
            so = sBo2 if q >> 1 else sBo
            if kind == "X":
                for c in range(2):
                    a.vmem(f"buffer_load_dwordx4 {vr(BR+(q*2+c)*4)}, v{vB}, {sr(sW)}, s{so} offen "
                           f"offset:{(q&1)*2048 + c*1024}", ("B", k, kind, q))
            elif kind == "Y":
                a.vmem(f"buffer_load_dwordx4 {vr(BR+q*4)}, v{vB}, {sr(sW)}, s{so} offen offset:{(q&1)*2048}",
                       ("B", k, kind, q))
            else:
                a.vmem(f"buffer_load_dwordx4 {vr(BR+16+q*4)}, v{vBZ}, {sr(sW)}, s{sBo} offen offset:{q*2048}",
                       ("B", k, kind, q))

        def rd(k, n, last=False):
            kind, g = steps[n]
            reg = AR + 4 * (n % NR)
            if kind == "Z":
                base, off = (vP[0], g * FB6) if g < 6 else (vP[1], (g - 6) * FB6) if g < 8 else (vP[2], 0)
                a.lds(f"ds_read_b128 {vr(reg)}, v{base} offset:{(k & 1)*BB6 + off}", ("A", k, n))
            else:
                own_read(k, g, reg, ("A", k, n), last)

        for i in range(64):
            a.e(f"v_mov_b32 v{ACC+i}, 0")
        if "b0" in EXP:
            a.e("s_barrier")
        for p in range(3):
            a.vmem(f"buffer_load_dwordx4 {vr(S+4*p)}, v{T+p}, {sr(sX)}, 0 offen", "SP")
        a.e(f"s_mov_b32 s{sBo}, 0")
        a.e(f"s_mov_b32 s{sBo2}, 4096")
        for st in steps:
            if st and st[1] >= 7:
                bload(0, st[0], st[1] - 7)
        a.e(f"s_mov_b32 s{sBo}, {CHUNKB}")
        a.e(f"s_mov_b32 s{sBo2}, {CHUNKB + 4096}")
        SPL = os.environ.get("SPL", "0") == "1"
        if not SPL:
            special_rows()
        if role == 2:
            a.e(f"v_and_b32 v{T+3}, 15, v{vL}")
            a.e(f"v_lshlrev_b32 v{T+3}, 2, v{T+3}")
            a.e(f"v_add_u32 v{T+3}, {6*SEQB + 1024}, v{T+3}")
            a.e(f"ds_write_b32 v{T+3}, v{ACC}")
            a.e(f"ds_write_b32 v{T+3}, v{ACC} offset:{BB6}")
        a.e("s_waitcnt lgkmcnt(0)")
        a.e("s_barrier")
        if SPL:
            a.e("s_setprio 3")
            special_rows()
            a.e("s_waitcnt lgkmcnt(0)")
        stamp(7)
        rstamp(12)
        a.e(f"s_mov_b32 s{sCnt}, {N//2}")
        a.e(f"s_setprio {os.environ.get(f'PM{role}', '2')}")

        CO = int(os.environ.get(f"CO{role}", "0" if role == 1 else "5"))
        assert CO < NR
        FM = int("fmaj" in EXP)
        vE = (vD[0], vD[1])

        def period(k, _, last=False):
            if "mst" in EXP and _ == 0:
                stamp(2)
            if "bst" in EXP and _ == 1 and not last:
                a.e("s_memtime s[90:91]")
                a.e("s_waitcnt vmcnt(0) lgkmcnt(0)")
                a.e("s_memtime s[92:93]")
                a.e("s_waitcnt lgkmcnt(0)")
                a.e("s_sub_u32 s92, s92, s90")
                a.e(f"s_add_u32 s{sSt+4}, s{sSt+4}, s92")
                a.e(f"s_max_u32 s{sSt+6}, s{sSt+6}, s92")
                a.vm = []
            for n in range(NR):
                rd(k, n, last)
            pend = []
            fill = []

            def flush(n, cnt):
                while pend and pend[0][0] <= n and cnt > 0:
                    _, h, f = pend.pop(0)
                    t = vE[(h + f) & 1]
                    a.e(f"v_xor_b32 v{t}, {f << 4}, v{vX0[h]}")
                    lds_throttle()
                    a.lds(f"ds_write_b128 v{t}, {vr(ACC + h*32 + f*4)}", "E")
                    cnt -= 1
                    for _i in range(min(12, len(fill))):
                        a.e(fill.pop(0))

            for n, st in enumerate(steps):
                if CO and n == NS - CO and not last:
                    a.wait(lg_all=True)
                    if "mst" in EXP and _ == 0:
                        stamp(3)
                    a.e("s_barrier")
                    if "mst" in EXP and _ == 0:
                        stamp(4)
                kind, g = st
                nt = 2 if kind == "Z" else 4
                qs = [q for q in range(nt) if 0 <= g - q <= 7]
                if FM and kind == "X":
                    if g >= 3:
                        f = g - 3
                        for c in range(2):
                            for q in range(4):
                                a.wait(lg=(("A", k, f + q),), vm=(("B", k, kind, q),))
                                mf(ACC + 32 * c + f * 4, BR + q * 8 + 4 * c, AR + 4 * ((f + q) % NR))
                        if f + NR < NS:
                            rd(k, f + NR, last)
                        if g == 10 and not last:
                            for q in range(4):
                                bload(k + 1, kind, q)
                    qs = []
                else:
                    a.wait(lg=(("A", k, n),), vm=tuple(("B", k, kind, q) for q in qs))
                reg = AR + 4 * (n % NR)
                for q in qs:
                    f = g - q
                    if kind == "X":
                        mf(ACC + f * 4, BR + q * 8, reg)
                        mf(ACC + 32 + f * 4, BR + q * 8 + 4, reg)
                    elif kind == "Y":
                        mf(ACC + f * 4, BR + q * 4, reg)
                    else:
                        mf(ACC + 32 + f * 4, BR + 16 + q * 4, reg)
                if g >= 7 and not last and not (FM and kind == "X"):
                    bload(k + 1, kind, g - 7)
                if n + NR < NS and not (FM and kind == "X"):
                    rd(k, n + NR, last)
                if last:
                    flush(n, int(os.environ.get('FL', '2')))
                    f = g - (nt - 1)
                    if f >= 0:
                        if kind == "X":
                            pend.append((n + 1, 0, f))
                            pend.append((max(n + 1, NS - NR + 1 + 3 * FM), 1, f))
                            pend.sort()
                        else:
                            pend.append((n + 3, 0 if kind == "Y" else 1, f))
                    if kind == "X" and n == NS - NR + 3 * FM:
                        a.wait(lg=(("A", k, NS - 1),))
            if last:
                fill += ES
                for _i in range(8):
                    a.e(fill.pop(0))
                flush(1000, 1000)
                for op in fill:
                    a.e(op)
                return
            a.e(f"s_add_u32 s{sBo}, s{sBo}, {CHUNKB}")
            a.e(f"s_add_u32 s{sBo2}, s{sBo2}, {CHUNKB}")
            assert not a.lg
            if "mst" in EXP and _ == 0:
                stamp(5)
            if not CO:
                a.e("s_barrier")
            if "mst" in EXP and _ == 0:
                stamp(6)

        def period2(k, pos):
            if pos == 1:
                a.e(f"s_sub_u32 s{sCnt}, s{sCnt}, 1")
                a.e(f"s_cmp_eq_u32 s{sCnt}, 0")
                a.e(f"s_cbranch_scc1 L_{name}_mlast{role}")
                state[0] = (list(a.vm), k)
            period(k, pos)

        state = [None]
        body = steady(period2, 2, "nob" not in EXP)
        if "nob" in EXP:
            a.e("s_waitcnt vmcnt(0)")
        a.label(f"L_{name}_mloop{role}")
        a.L.extend(body)
        a.e(f"s_branch L_{name}_mloop{role}")
        a.label(f"L_{name}_mlast{role}")
        a.vm, a.lg = state[0][0], []
        vX0 = (vB, 126)
        a.e(f"v_and_b32 v{vX0[0]}, 15, v{vL}")
        a.e(f"v_and_b32 v{vX0[1]}, 7, v{vL}")
        a.e(f"v_lshlrev_b32 v{vX0[1]}, 4, v{vX0[1]}")
        a.e(f"v_lshl_add_u32 v{vX0[0]}, v{vX0[0]}, 7, v{vX0[1]}")
        a.e(f"v_lshrrev_b32 v{vX0[1]}, 4, v{vL}")
        a.e(f"v_lshl_add_u32 v{vX0[0]}, v{vX0[1]}, 11, v{vX0[0]}")
        if role == 1:
            a.e(f"s_lshl_b32 s36, s{sWv}, 14")
            a.e("s_add_u32 s37, s36, 8192")
        else:
            for sg, tab in ((36, [UNIT[4 + (h >> 1)][h & 1] for h in range(4)]),
                            (37, [UNIT[6 + (h >> 1)][h & 1] for h in range(4)])):
                a.e(f"s_mov_b32 s{sg}, {tab[0]}")
                for h in range(1, 4):
                    a.e(f"s_cmp_eq_u32 s{sH}, {h}")
                    a.e(f"s_cselect_b32 s{sg}, {tab[h]}, s{sg}")
        a.e(f"v_add_u32 v{vX0[1]}, s37, v{vX0[0]}")
        a.e(f"v_add_u32 v{vX0[0]}, s36, v{vX0[0]}")
        if os.environ.get(f"PL{role}"):
            a.e(f"s_setprio {os.environ.get(f'PL{role}')}")
        period(state[0][1], 1, True)
        stamp(8, False)
        rstamp(13)
        a.e("s_setprio 0")
        a.vm, a.lg = [], []

    a.e(f"s_cmp_ge_u32 s{sWv}, 4")
    a.e(f"s_cbranch_scc1 L_{name}_m2")
    vm0 = list(a.vm)
    mwave(1)
    a.e(f"s_branch L_{name}_epi")
    a.label(f"L_{name}_m2")
    a.vm, a.lg = list(vm0), []
    a.e(f"s_mul_i32 s37, s38, {2*FB6}")
    a.e(f"s_add_u32 s37, s37, {6*SEQB}")
    a.e(f"v_add_u32 v{vP[0]}, s37, v{vU}")
    a.e(f"v_add_u32 v{vP[2]}, s37, v{vS_}")
    a.e(f"v_add_u32 v{vP[1]}, {6*SEQB + 6*FB6}, v{vU}")
    a.e("s_cmp_eq_u32 s38, 0")
    a.e(f"s_cbranch_scc1 L_{name}_hh0")
    a.e(f"v_add_u32 v{vP[1]}, {6*SEQB}, v{vS_}")
    a.label(f"L_{name}_hh0")
    a.e("s_lshl_b32 s37, s38, 12")
    a.e("s_add_u32 s37, s37, s43")
    a.e(f"s_add_u32 s37, s37, {6*8192}")
    a.e(f"v_lshl_add_u32 v{vBZ}, v{vL}, 4, s37")
    mwave(2)
    a.e(f"s_branch L_{name}_epi")

    a.label(f"L_{name}_helper")
    a.vm, a.lg = [], []
    a.e("s_setprio 3")
    PB = (0, 32)
    XO = 64
    TMP = 76
    vX = 92
    vW = (96, 97, 98)

    def praw(b, half, p):
        return PB[b] + half * 16 + p * 4

    sXo2 = 27

    def xload(pair, p):
        if KSPLIT:
            half, q = p >> 1, p & 1
            for r in (q, q + 2):
                a.vmem(f"buffer_load_dwordx4 {vr(praw(pair & 1, half, r))}, v{vX+r}, {sr(sX)}, "
                       f"s{sXo2 if half else sXo} offen", ("X", pair))
            return
        for half in range(2):
            a.vmem(f"buffer_load_dwordx4 {vr(praw(pair & 1, half, p))}, v{vX+p}, {sr(sX)}, "
                   f"s{sXo} offen offset:{half*64}", ("X", pair))
        a.e(f"v_add_u32 v{vX+p}, 128, v{vX+p}")

    def uregs(chunk):
        return [praw((chunk >> 1) & 1, chunk & 1, p) for p in range(4)]

    def wr(chunk, i):
        if "nowr" in EXP:
            return
        u = uregs(chunk)
        reg, seq = [(XO, 3), (XO + 4, 4), (XO + 8, 5), (u[0], 0), (u[1], 1), (u[2], 2), (u[3], 6)][i]
        lds_throttle()
        if seq == 6:
            a.lds(f"ds_write_b128 v{vW[2]}, {vr(reg)} offset:{(chunk & 1)*BB6}", "W")
        else:
            a.lds(f"ds_write_b128 v{vW[seq >> 2]}, {vr(reg)} offset:{(seq & 3)*SEQB + (chunk & 1)*BB}", "W")

    def tr_ops(chunk):
        u = uregs(chunk)
        o = [u[1], u[2], XO, XO + 4, XO + 8]
        ops = []
        for d in range(4):
            lo = [TMP + p for p in range(4)]
            hi = [TMP + 8 + p for p in range(4)]
            for p in range(4):
                ops.append(f"v_lshlrev_b32 v{lo[p]}, 16, v{u[p]+d}")
                ops.append(f"v_and_b32 v{hi[p]}, s{sMask}, v{u[p]+d}")
            o1, r1 = eval_ops(lo, [TMP + 4 + i for i in range(4)])
            o2, r2 = eval_ops(hi, [TMP + 12 + i for i in range(4)])
            for x, y in zip(o1, o2):
                ops += [x, y]
            for i in range(5):
                ops.append(f"v_cvt_pk_bf16_f32 v{o[i]+d}, v{r1[i]}, v{r2[i]}")
        if "notr" in EXP:
            ops = ["s_nop 0"] * 8
        return ops

    if KSPLIT:
        a.e("v_lshlrev_b32 v8, 4, v6")
    for p in range(4):
        if KSPLIT:
            haddr(vX + p, 7, 8, p, 9)
        else:
            a.e(f"v_add_u32 v{vX+p}, {p*1024}, v7")
    a.e(f"v_and_b32 v{TMP}, 4, v5")
    a.e(f"v_lshrrev_b32 v{TMP}, 1, v{TMP}")
    a.e(f"v_xor_b32 v{TMP}, v6, v{TMP}")
    a.e(f"v_lshlrev_b32 v{TMP}, 4, v{TMP}")
    a.e(f"v_lshl_add_u32 v{TMP}, v5, 6, v{TMP}")
    a.e(f"s_mov_b32 s{sXo}, 0")
    a.e(f"s_mov_b32 s{sXo2}, {4*PLH}")
    kwait()
    stamp(2)
    P0 = os.environ.get("P0", "0")
    if P0 == "0" or KSPLIT:
        for p in range(4):
            xload(0, p)
            if p == 1 and P0 == "2":
                a.e("s_barrier")
    else:
        for half in range(2):
            for p in range(4):
                a.vmem(f"buffer_load_dwordx4 {vr(praw(0, half, p))}, v{vX+p}, {sr(sX)}, s{sXo} offen offset:{half*64}", ("X", 0))
            if half == 0 and P0 == "2":
                a.e("s_barrier")
        for p in range(4):
            a.e(f"v_add_u32 v{vX+p}, 128, v{vX+p}")
    if P0 != "2" and "b0" in EXP:
        a.e("s_barrier")
    a.e(f"s_mul_i32 s36, s42, {FB}")
    a.e(f"v_add_u32 v{vW[0]}, s36, v{TMP}")
    a.e(f"v_add_u32 v{vW[1]}, {4*SEQB}, v{vW[0]}")
    a.e(f"s_mul_i32 s36, s42, {FB6}")
    a.e(f"s_add_u32 s36, s36, {6*SEQB}")
    a.e(f"v_add_u32 v{vW[2]}, s36, v{TMP}")
    stamp(3)
    a.e(f"s_waitcnt vmcnt({0 if P0 == '0' else 4})")
    stamp(4)
    a.e(f"s_mov_b32 s{sK}, 0")
    a.e(f"s_mov_b32 s{sCnt}, {N//4}")
    a.e(f"s_cmp_ge_u32 s{sWv}, 12")
    a.e(f"s_cbranch_scc1 L_{name}_h2")

    def hwave(role):
        SH = 33 * int(os.environ.get(f"SH{role}", "0" if role == 1 else "4"))
        ahead = 2 if SH else 1
        a.vm, a.lg = [], []
        wr(0, 3)
        wr(0, 6)
        for op in tr_ops(0):
            a.e(op)
        for i in (0, 1, 2, 4, 5):
            wr(0, i)
        a.e("s_waitcnt vmcnt(0)")
        NF = int(os.environ.get("NF", "2"))
        if KSPLIT:
            a.e(f"s_mov_b32 s{sXo}, {8*PLH}")
            a.e(f"s_mov_b32 s{sXo2}, {12*PLH}")
        X1 = os.environ.get("X1", "1")
        if X1 == "0":
            for p in range(4 if SH else NF):
                xload(1, p)
        stamp(5)
        a.wait(lg_all=True)
        stamp(6)
        a.e("s_barrier")
        stamp(7)
        rstamp(12)
        if X1 == "1":
            for p in range(4 if SH else NF):
                xload(1, p)
        PA, PB_ = os.environ.get(f'PH{role}', '11' if role == 1 else '00')
        a.e(f"s_setprio {PA}")
        for op in tr_ops(1)[:SH]:
            a.e(op)
        VPF = int(os.environ.get("VPF", "0")) if role == 1 and not KSPLIT and XL == 3 else 0
        if VPF:
            a.e(f"s_lshl_b32 s36, s{sCb}, 6")
            a.e(f"s_lshl_b32 s37, s{sH}, 3")
            a.e("s_add_u32 s36, s36, s37")
            a.e("s_lshl_b32 s36, s36, 10")
            a.e("s_add_u32 s36, s36, s41")
            a.e(f"s_add_u32 s36, s36, {VPF*128}")
            a.e(f"v_and_b32 v100, 7, v{vL}")
            a.e("v_lshl_add_u32 v100, v100, 10, s36")

        def vpf(k):
            a.e(f"s_cmp_lt_u32 s{sK}, {N - 2*VPF}")
            a.e(f"s_cselect_b32 s36, 0, {OOB}")
            a.vmem(f"buffer_load_dword v99, v100, {sr(sX)}, s36 offen", "PF")
            a.e(f"v_add_u32 v100, {(128 - 32768) & 0xffffffff if k & 1 else 32768}, v100")
        XP = [float(x) for x in os.environ.get(f"XP{role}", "0,0,0,0" if SH else "0.3,0.7,0.1,0.5").split(",")]

        def period(k, pos, last=False):
            pair = (k >> 1) + 2 if SH else (k + 3) >> 1
            first = not (k & 1) if SH else (k & 1)
            if pos == 4 - ahead and not last:
                a.e(f"s_cmp_eq_u32 s{sCnt}, 1")
                a.e(f"s_cbranch_scc1 L_{name}_hlast{role}")
            if "hst" in EXP and pos == 1:
                stamp(2)
            V1 = tr_ops(k + 1)[SH:]
            V2 = [] if last else tr_ops(k + 2)[:SH]
            V = V1 + V2
            n = len(V)
            ev = {}

            def at(i, f):
                ev.setdefault(max(0, min(int(i), n)), []).append(f)

            def stores():
                if "hst" in EXP and pos == 1:
                    stamp(3)
                for i in range(7):
                    wr(k + 1, i)
                if "hst" in EXP and pos == 1:
                    stamp(4)
                if PA != PB_:
                    a.e(f"s_setprio {PB_}")
            if PA != PB_:
                a.e(f"s_setprio {PA}")
            if VPF and not last:
                at(float(os.environ.get("VPP", "1.0")) * n, lambda: vpf(k))
            at(len(V1), stores)
            if not last:
                if not KSPLIT:
                    a.e(f"s_cmp_lt_u32 s{sK}, {N - 2 - ahead}")
                    a.e(f"s_cselect_b32 s{sXo}, 0, {OOB}")
                elif first:
                    a.e(f"s_add_u32 s{sXo}, s{sXo}, {8*PLH}")
                    a.e(f"s_add_u32 s{sXo2}, s{sXo2}, {8*PLH}")
                at(len(V1) if SH else 0, lambda: a.wait(vm=(("X", (k + ahead) >> 1),)))
                if "nox" not in EXP:
                    for p in (range(NF) if first else range(NF, 4)):
                        w = len(V1) + XP[p] * SH if SH and first else XP[p] * n
                        at(w, lambda p=p: xload(pair, p))
            for i in range(n + 1):
                for f in ev.get(i, []):
                    f()
                if i < n:
                    a.e(V[i])
            if not last:
                a.e(f"s_add_u32 s{sK}, s{sK}, 1")
            if "hst" in EXP and pos == 1:
                stamp(5)
            a.e("s_waitcnt lgkmcnt(0)")
            a.lg = []
            a.e("s_barrier")
            if "hst" in EXP and pos == 1:
                stamp(6)

        body = steady(period, 4, "nox" not in EXP)
        a.label(f"L_{name}_hloop{role}")
        a.L.extend(body)
        a.e(f"s_sub_u32 s{sCnt}, s{sCnt}, 1")
        a.e(f"s_branch L_{name}_hloop{role}")
        a.label(f"L_{name}_hlast{role}")
        a.vm, a.lg = [], []

        def last_period():
            vm = a.vm
            a.vm, a.lg = [], []
            if SH:
                a.e(f"s_mov_b32 s{sMask}, 0xffff0000")
                period(2, 2, True)
            a.vm = vm
        if role == 1 or KSPLIT:
            last_period()
        else:
            assert SH
            W2L = os.environ.get("W2L", "0") == "1"
            if W2L:
                last_period()
            a.e("s_waitcnt vmcnt(0)")
            a.e(f"s_mov_b32 s58, s{sWv}")
            a.e(f"s_lshl_b32 s20, s2, 2")
            a.e(f"s_add_u32 s20, s20, s{sH}")
            a.e(f"v_mov_b32 v1, v{vL}")
            if os.environ.get("W2", "1") == "2":
                wprep2(a, 16, WS_W2P, last_period)
            else:
                wprep(a, 16, WS_W2P, True, barrier=None if W2L else last_period)
            a.e(f"s_mov_b32 s{sWv}, s58")
        if role == 1 and KSPLIT and "tailwarm" in EXP:
            add64(a, sW, 30, WS_WF)
            a.e(f"s_mov_b32 s{sW+2}, {262144 + 32768}")
            a.e(f"s_mov_b32 s{sW+3}, 0x00020000")
            a.e("s_lshr_b32 s36, s2, 3")
            a.e("s_lshl_b32 s36, s36, 2")
            a.e(f"s_add_u32 s36, s36, s{sH}")
            a.e("s_mul_i32 s36, s36, 2304")
            a.e(f"v_lshlrev_b32 v1, 4, v{vL}")
            for i in range(3):
                a.e(f"buffer_load_dwordx4 v[4:7], v1, {sr(sW)}, s36 offen offset:{i*1024}")
        if role == 1 and "tw" in EXP:
            a.e(f"s_cmp_ge_u32 s2, {os.environ.get('TWN', '32')}")
            a.e(f"s_cbranch_scc1 L_{name}_ntw")
            a.e("s_getpc_b64 s[36:37]")
            a.label(f"L_{name}_pc")
            a.e(f"s_lshl_b32 s38, s{sH}, 13")
            a.e(f"s_add_u32 s38, s38, L_{name}_epi-L_{name}_pc")
            a.e(f"v_lshl_add_u32 v2, v{vL}, 7, s38")
            a.e(f"v_min_u32 v2, {0x7fc0de01 + KSPLIT:#x}, v2")
            a.e("v_mov_b32 v3, s37")
            a.e("v_add_co_u32 v2, vcc, s36, v2")
            a.e("s_nop 1")
            a.e("v_addc_co_u32 v3, vcc, 0, v3, vcc")
            a.e("global_load_dword v4, v[2:3], off")
            a.label(f"L_{name}_ntw")
        stamp(8)
        rstamp(13)
        a.e(f"s_branch L_{name}_end")

    hwave(1)
    a.label(f"L_{name}_h2")
    hwave(2)

    a.label(f"L_{name}_epi")
    K = [sr(x, 2) for x in KS]
    a.e("s_waitcnt lgkmcnt(0)")
    a.e("s_barrier")
    if "est" in EXP:
        stamp(2)
    a.e(f"v_cndmask_b32 v{vO}, v{t3}, v{t2}, vcc")

    def P(c, s, r=0):
        return c * 32 + s * 4 + r
    Y = 64
    TB = 96
    ELS = (0, 1, 2)
    for c in range(2):
        for s_ in range(8):
            if c == 1 and s_ == 7:
                a.e("s_waitcnt lgkmcnt(7)")
            u = UNIT[s_][c]
            a.e(f"ds_read_b128 {vr(P(c, s_))}, v{R0[u >> 16]} offset:{u & 0xffff}")

    def p2(x):
        return vr(x, 2)

    def padd(d, x, y):
        return f"v_pk_add_f32 {p2(d)}, {p2(x)}, {p2(y)}"

    def psub(d, x, y):
        return f"v_pk_add_f32 {p2(d)}, {p2(x)}, {p2(y)} neg_lo:[0,1] neg_hi:[0,1]"

    def pfma(d, x, k, y, neg=False):
        return f"v_pk_fma_f32 {p2(d)}, {p2(x)}, {k}, {p2(y)}" + (" neg_lo:[0,0,1] neg_hi:[0,0,1]" if neg else "")

    def interp(c):
        seq = []
        for r in (0, 2):
            E0, A, B, C, D, Q, E6, E6b = (P(c, x, r) for x in range(8))
            y = [Y + ph * 8 + c * 4 + r for ph in range(4)]
            S1, G = E6, C
            seq.append([
                padd(y[3], E6, E6b),
                padd(S1, A, B),
                psub(A, A, B),
                padd(y[1], C, D),
                psub(G, C, D),
                pfma(y[1], S1, K[0], y[1]),
                pfma(Q, E0, K[3], Q),
                pfma(y[1], E0, K[1], y[1]),
                psub(S1, S1, E0),
                pfma(y[1], y[3], K[2], y[1]),
                psub(S1, S1, y[3]),
                pfma(Q, y[3], K[6], Q),
                psub(B, S1, y[1]),
                pfma(Q, y[1], K[5], Q),
                f"v_pk_mul_f32 {p2(y[2])}, {p2(G)}, {K[9]}",
                pfma(Q, B, K[4], Q),
                pfma(y[2], A, K[10], y[2]),
                pfma(y[0], A, K[7], Q, True),
                pfma(y[0], G, K[8], y[0]),
                pfma(y[2], y[0], K[11], y[2]),
                psub(A, A, y[0]),
                psub(A, A, y[2]),
            ])
        for ops in zip(*seq):
            for op in ops:
                a.e(op)

    a.e("s_waitcnt lgkmcnt(8)")
    interp(0)
    a.e("s_waitcnt lgkmcnt(0)")
    interp(1)
    if "est" in EXP:
        stamp(3)
    a.e("s_mov_b32 s36, 0x00010001")
    a.e("s_mov_b32 s37, 0x00010001")
    a.e("s_mov_b64 exec, s[36:37]")
    for k in range(3):
        for c in range(2):
            a.e(f"ds_write_b128 v{vBW}, {vr(P(c, ELS[k]))} offset:{(k*2+c)*16}")
    a.e("s_mov_b64 exec, -1")

    def finish(ph):
        ys = [Y + ph * 8 + i for i in range(8)]
        if not KSPLIT:
            ts = [16 + (ph & 1) * 8 + i for i in range(8)]
            ev = list(zip(ys[::2], ts[::2]))
            for y, t in ev:
                a.e(f"v_pk_mul_f32 {p2(t)}, {p2(y)}, {p2(y)}")
            for y, t in ev:
                a.e(pfma(t, t, K[12], 44))
            for y, t in ev:
                a.e(f"v_pk_mul_f32 {p2(t)}, {p2(t)}, {p2(y)}")
            for t in ts:
                a.e(f"v_exp_f32 v{t}, v{t}")
            for y, t in ev:
                a.e(f"v_pk_add_f32 {p2(t)}, {p2(t)}, {K[13]}")
            for t in ts:
                a.e(f"v_rcp_f32 v{t}, v{t}")
            for y, t in ev:
                a.e(f"v_pk_mul_f32 {p2(y)}, {p2(y)}, {p2(t)}")
        o = 48 + ph * 4
        for r in range(4):
            a.e(f"v_cvt_pk_bf16_f32 v{o+r}, v{ys[r]}, v{ys[4+r]}")
        so = ph * PLF if KSPLIT else ((ph + 3) & 3) * PLH + ((ph + 7) >> 2) * 64
        a.e(f"s_mov_b32 s44, {so}")
        a.e(f"buffer_store_dwordx4 {vr(o)}, v{vO}, {sr(sO)}, s44 offen{NTF if KSPLIT else NTH}")

    a.e(f"v_mov_b32 v44, {f32hex(k0)}")
    a.e("v_mov_b32 v45, v44")
    finish(0)
    a.e("s_waitcnt lgkmcnt(0)")
    a.e("s_barrier")
    if "est" in EXP:
        stamp(4)
    for i in range(6):
        a.e(f"ds_read_b128 {vr(TB+4*i)}, v{vBW} offset:{512 + i*16}")
    for ph in range(1, 4):
        a.e(f"s_waitcnt lgkmcnt({6 - 2*ph})")
        for c in range(2):
            for r in range(4):
                i = (ph - 1) * 8 + c * 4 + r
                a.e(f"v_mov_b32_dpp v{TB+i}, v{P(c, ELS[ph-1], r)} row_shl:1 row_mask:0xf bank_mask:0xf")
        for i in range(0, 8, 2):
            a.e(padd(Y + ph * 8 + i, Y + ph * 8 + i, TB + (ph - 1) * 8 + i))
        finish(ph)
    if "est" in EXP:
        stamp(5)
    RB = os.environ.get("RB", "00")[int(KSPLIT)]
    if RB != "0":
        if not KSPLIT:
            a.e(f"s_cmp_ge_u32 s{sCb}, {RB}")
            a.e(f"s_cbranch_scc1 L_{name}_end")
        a.e("s_waitcnt vmcnt(0)")
        for ph in range(4):
            so = ph * PLF if KSPLIT else ((ph + 3) & 3) * PLH + ((ph + 7) >> 2) * 64
            a.e(f"s_mov_b32 s44, {so}")
            a.e(f"buffer_load_dword v0, v{vO}, {sr(sO)}, s44 offen")
    a.label(f"L_{name}_end")
    if STAMP:
        a.e("s_waitcnt vmcnt(0)")
        stamp(9, False)
        a.e(f"s_memrealtime s[{sSt+22}:{sSt+23}]")
        a.e(f"s_cmp_lg_u32 s{sWv}, {os.environ.get('SW', '0')}")
        a.e(f"s_cbranch_scc1 L_{name}_done")
        a.e("s_lshl_b32 s36, s2, 7")
        a.e(f"s_add_u32 s36, s36, {WS_STAMP + cfg['stamp']*0x10000}")
        add64(a, 40, 30, "s36")
        a.e("s_mov_b32 s42, 128")
        a.e("s_mov_b32 s43, 0x00020000")
        a.e("s_waitcnt lgkmcnt(0)")
        a.e("v_mov_b32 v8, 0")
        for i in range(28):
            a.e(f"v_mov_b32 v0, s{sSt+i}")
            a.e(f"buffer_store_dword v0, v8, s[40:43], 0 offen offset:{4*i}")
    a.label(f"L_{name}_done")
    a.e("s_endpgm")
    return a.L, TOPB + 40960, 128


CONV1 = dict(tin=16000, tout=8000, nchunk=16, ksplit=False, in_arg=0, in_off=0, w_off=WS_W1P, out_off=WS_H, stamp=0)
CONV2 = dict(tin=8000, tout=4000, nchunk=8, ksplit=True, in_arg=72, in_off=WS_H, w_off=WS_W2P, out_off=WS_FP, stamp=1)

HEADER = f"""; Kernarg layout for this problem (80 bytes, ptrs only, base s[0:1]):
"""


def main():
    ks = [("prep_kernel", 256, 384) + prep_kernel("prep_kernel"),
          ("conv1_kernel", 256, 1024) + conv_kernel("conv1_kernel", CONV1),
          ("conv2_kernel", 256, 1024) + conv_kernel("conv2_kernel", CONV2)]
    ks = joint_kernels(ks)
    out = HEADER
    for nm, grid, block, code, lds, vg in ks:
        out += f"; @launch kernel={nm} grid=({grid},1,1) block=({block},1,1) lds={lds}\n"
    out += '.amdgcn_target "amdgcn-amd-amdhsa--gfx950"\n.text\n'
    for nm, grid, block, code, lds, vg in ks:
        if "noalign" not in EXP:
            code = align8(code)
        out += f".globl {nm}\n.p2align 8\n.type {nm},@function\n" + "\n".join(code) + "\n"
    out += '.section .rodata,"a"\n'
    for nm, grid, block, code, lds, vg in ks:
        out += ".p2align 6\n" + kd(nm, vg)
    out = out.replace("0x7fc0de00", "L_joint_kernel_done-L_prep_kernel_pc")
    out = out.replace("0x7fc0de01", "L_conv2_kernel_done-L_conv1_kernel_pc")
    out = out.replace("0x7fc0de02", "L_joint_kernel_done-L_conv2_kernel_pc")
    path = sys.argv[1] if len(sys.argv) > 1 else "standalone__seq2seq_rnn_t_joint__speech.s"
    open(path, "w").write(out)


if __name__ == "__main__":
    main()
```

```python
import os
import sys

from asmlib import Asm, vr, sr, kd, f32hex, align8
from gen13_joint import small_head, small_tail, joint_kernels

EXP = os.environ.get("EXP", "").split(",")

WS_W1P = 0x0000000
WS_W2P = 0x0900000
WS_H = 0x1200000
WS_FP = 0x1A00000
WS_FPS = 0x800000
WS_WF = 0x2A00000
WS_STAMP = 0x3000000

CHUNKB = 7 * 8192
FB = 1024
BB = 8 * FB
SEQB = 2 * BB
FB6 = 1088
BB6 = 8 * FB6
SPB = 6 * SEQB + 2 * BB6
TOPB = SPB + 6144
OOB = 0x7f000000
LOCAL = 'local' in EXP
PLH, PLF = int(os.environ.get('PLH', 131072)), int(os.environ.get('PLF', 65536))
NTW, NTH, NTF = ({"0": "", "1": " nt", "2": " sc1", "3": " sc0 sc1"}[c] for c in os.environ.get("NT", "222"))


def add64(a, d, lo, off):
    a.e(f"s_add_u32 s{d}, s{lo}, {off}")
    a.e(f"s_addc_u32 s{d+1}, s{lo+1}, 0")


def eval_ops(c, t):
    e1, o1, e2, o2 = t
    ops = [f"v_add_f32 v{e1}, v{c[0]}, v{c[2]}",
           f"v_add_f32 v{o1}, v{c[1]}, v{c[3]}",
           f"v_fma_f32 v{e2}, v{c[2]}, 4.0, v{c[0]}",
           f"v_fma_f32 v{o2}, v{c[3]}, 4.0, v{c[1]}",
           f"v_add_f32 v{c[1]}, v{e1}, v{o1}",
           f"v_sub_f32 v{c[2]}, v{e1}, v{o1}",
           f"v_fma_f32 v{c[3]}, v{o2}, 2.0, v{e2}",
           f"v_fma_f32 v{e2}, v{o2}, -2.0, v{e2}",
           f"v_fmamk_f32 v{e1}, v{c[0]}, {f32hex(15.0)}, v{e2}",
           f"v_fmamk_f32 v{e1}, v{o1}, {f32hex(10.0)}, v{e1}"]
    return ops, [c[1], c[2], c[3], e2, e1]


def wprep(a, karg, wsoff, ws_loaded, barrier=False, extra=None, small=None, mid=None):
    a.vm, a.lg = [], []
    a.e(f"s_load_dwordx2 s[8:9], s[0:1], {karg}")
    if not ws_loaded:
        a.e("s_load_dwordx2 s[30:31], s[0:1], 72")
    a.e("s_lshr_b32 s22, s20, 8")
    a.e("s_bfe_u32 s23, s20, 0x40004")
    a.e("s_bfe_u32 s24, s20, 0x30001")
    a.e("s_and_b32 s21, s20, 1")
    a.e("v_lshrrev_b32 v2, 4, v1")
    a.e("v_lshlrev_b32 v2, 12, v2")
    a.e("v_and_b32 v3, 15, v1")
    a.e("v_lshl_add_u32 v2, v3, 2, v2")
    a.e("s_lshl_b32 s26, s22, 3")
    a.e("s_lshr_b32 s27, s23, 3")
    a.e("s_add_u32 s26, s26, s27")
    a.e("s_lshl_b32 s26, s26, 17")
    a.e("s_and_b32 s27, s23, 7")
    a.e("s_lshl_b32 s27, s27, 14")
    a.e("s_add_u32 s26, s26, s27")
    a.e("s_lshl_b32 s27, s24, 6")
    a.e("s_add_u32 s26, s26, s27")
    a.e(f"s_mov_b32 s10, {31*131072}")
    a.e("s_mov_b32 s11, 0x00020000")
    if small:
        small_select(a)
        a.e("s_add_u32 s37, s26, s5")
        a.e("s_add_u32 s38, s37, s5")
        a.e("s_add_u32 s39, s38, s5")
    else:
        for p in range(1, 4):
            a.e(f"s_add_u32 s{36+p}, s26, {2*131072*p}")
    a.e("s_waitcnt lgkmcnt(0)")
    if small:
        small_ptr(a)
        small_g(a, "prep_kernel")
    R = 16
    for e2 in range(4):
        for p in range(4):
            for e in (2 * e2, 2 * e2 + 1):
                a.vmem(f"buffer_load_dword v{R+p*8+e}, v2, s[8:11], s{36+p if p else 26} offen offset:{e*512}", ("L", e2))
    if small:
        a.e("s_cmp_lt_u32 s3, 12")
        a.e(f"s_cbranch_scc1 {small}")
    if mid:
        mid()
    add64(a, 12, 30, wsoff)
    a.e(f"s_mov_b32 s14, {8*16*CHUNKB}")
    a.e("s_mov_b32 s15, 0x00020000")
    a.e("v_lshlrev_b32 v4, 4, v1")
    a.e("s_lshl_b32 s27, s24, 4")
    a.e("s_add_u32 s27, s27, s23")
    a.e(f"s_mul_i32 s27, s27, {CHUNKB}")
    a.e("s_lshl_b32 s28, s22, 11")
    a.e("s_add_u32 s27, s27, s28")
    a.e("s_lshl_b32 s28, s21, 10")
    a.e("s_add_u32 s27, s27, s28")
    a.e("s_cmp_eq_u32 s21, 0")
    a.e("s_mov_b32 s32, 0x07060302")
    a.e("s_cselect_b32 s32, 0x05040100, s32")
    a.e("s_mov_b32 s33, 0x03020c0c")
    a.e("s_cselect_b32 s33, 0x01000c0c, s33")
    a.e(f"s_mov_b32 s35, {f32hex(1.0/24)}")
    a.e(f"s_mov_b32 s36, {f32hex(1.0/72)}")
    if barrier:
        barrier()
    OUT = 48
    T = 76
    scale = ("0.5", "0.5", "s35", "s35", "s36")
    for e2 in range(4):
        a.wait(vm=(("L", e2),))
        if extra and e2 == int(os.environ.get("XT", "3")):
            extra()
        for p, seq in ((0, 6), (3, 0)):
            a.e(f"v_perm_b32 v{OUT+seq*4+e2}, v{R+p*8+2*e2+1}, v{R+p*8+2*e2}, s32")
        res, lists = [], []
        for e in range(2):
            cf = [T + e * 8 + i for i in range(4)]
            ops = [f"v_perm_b32 v{cf[i]}, v{cf[i]}, v{R + (3 - i) * 8 + 2 * e2 + e}, s33" for i in range(4)]
            o, rr = eval_ops(cf, [T + e * 8 + 4 + i for i in range(4)])
            ops += o + [f"v_mul_f32 v{r}, {sc}, v{r}" for r, sc in zip(rr, scale)]
            res.append(rr)
            lists.append(ops)
        for x, y in zip(*lists):
            a.e(x)
            a.e(y)
        for i in range(5):
            a.e(f"v_cvt_pk_bf16_f32 v{OUT+(1+i)*4+e2}, v{res[0][i]}, v{res[1][i]}")
    for seq in (6, 0, 1, 2, 3, 4, 5):
        a.e(f"s_add_u32 s28, s27, {seq*8192}")
        a.e(f"buffer_store_dwordx4 {vr(OUT+seq*4)}, v4, s[12:15], s28 offen{NTW}")


def wprep2(a, karg, wsoff, barrier, LB=True, extra=None, pre=None):
    a.vm, a.lg = [], []
    if not pre:
        a.e(f"s_load_dwordx2 s[8:9], s[0:1], {karg}")
    a.e("s_lshr_b32 s22, s20, 8")
    a.e("s_bfe_u32 s23, s20, 0x40004")
    a.e("s_bfe_u32 s24, s20, 0x30001")
    a.e("s_and_b32 s21, s20, 1")
    a.e("v_lshrrev_b32 v5, 4, v1")
    a.e("v_lshlrev_b32 v2, 11, v5")
    a.e("v_and_b32 v3, 15, v1")
    a.e("v_lshl_add_u32 v2, v3, 2, v2")
    a.e("s_lshl_b32 s26, s22, 3")
    a.e("s_lshr_b32 s27, s23, 3")
    a.e("s_add_u32 s26, s26, s27")
    a.e("s_lshl_b32 s26, s26, 17")
    a.e("s_and_b32 s27, s23, 7")
    a.e("s_lshl_b32 s27, s27, 1")
    a.e("s_add_u32 s27, s27, s21")
    a.e("s_lshl_b32 s27, s27, 13")
    a.e("s_add_u32 s26, s26, s27")
    a.e("s_lshl_b32 s27, s24, 6")
    a.e("s_add_u32 s26, s26, s27")
    a.e(f"s_mov_b32 s10, {31*131072}")
    a.e("s_mov_b32 s11, 0x00020000")
    for p in range(1, 4):
        a.e(f"s_add_u32 s{36+p}, s26, {2*131072*p}")
    a.e(f"s_mov_b32 s14, {8*16*CHUNKB}")
    a.e("s_mov_b32 s15, 0x00020000")
    a.e("v_lshrrev_b32 v4, 1, v5")
    a.e("v_lshlrev_b32 v4, 8, v4")
    a.e("v_lshl_add_u32 v4, v3, 4, v4")
    a.e("v_and_b32 v5, 1, v5")
    a.e("v_lshl_add_u32 v4, v5, 3, v4")
    a.e("s_lshl_b32 s27, s24, 4")
    a.e("s_add_u32 s27, s27, s23")
    a.e(f"s_mul_i32 s27, s27, {CHUNKB}")
    a.e("s_lshl_b32 s28, s22, 11")
    a.e("s_add_u32 s27, s27, s28")
    a.e("s_lshl_b32 s28, s21, 9")
    a.e("s_add_u32 s27, s27, s28")
    a.e("s_mov_b32 s32, 0x05040100")
    a.e("s_mov_b32 s33, 0x07060302")
    a.e("s_mov_b32 s34, 0xffff0000")
    a.e(f"s_mov_b32 s35, {f32hex(1.0/24)}")
    a.e(f"s_mov_b32 s40, {f32hex(1.0/72)}")
    a.e("s_waitcnt lgkmcnt(0)")
    if LB:
        barrier()
    R, OUT, T = (pre, 16, 76) if pre else (16, 76, 104)
    for e2 in range(0 if pre else 2):
        for p in range(4):
            for e in (2 * e2, 2 * e2 + 1):
                a.vmem(f"buffer_load_dword v{R+p*4+e}, v2, s[8:11], s{36+p if p else 26} offen offset:{e*512}", ("L", e2))
    if not LB:
        barrier()
    add64(a, 12, 30, wsoff)
    scale = ("0.5", "0.5", "s35", "s35", "s40")

    def out(seq, c):
        return OUT + (seq * 2 + c) * 2
    for e2 in range(2):
        a.wait(vm=(("L", e2),))
        if extra and e2 == 1:
            extra()
        for c in range(2):
            for p, seq in ((0, 6), (3, 0)):
                a.e(f"v_perm_b32 v{out(seq, c)+e2}, v{R+p*4+2*e2+1}, v{R+p*4+2*e2}, s{32+c}")
            res, lists = [], []
            for e in range(2):
                cf = [T + e * 8 + i for i in range(4)]
                src = [R + (3 - i) * 4 + 2 * e2 + e for i in range(4)]
                ops = [f"v_and_b32 v{d}, s34, v{x}" if c else f"v_lshlrev_b32 v{d}, 16, v{x}" for d, x in zip(cf, src)]
                o, rr = eval_ops(cf, [T + e * 8 + 4 + i for i in range(4)])
                ops += o + [f"v_mul_f32 v{r}, {sc}, v{r}" for r, sc in zip(rr, scale)]
                res.append(rr)
                lists.append(ops)
            for x, y in zip(*lists):
                a.e(x)
                a.e(y)
            for i in range(5):
                a.e(f"v_cvt_pk_bf16_f32 v{out(1+i, c)+e2}, v{res[0][i]}, v{res[1][i]}")
            if e2 == 1:
                for seq in range(7):
                    a.e(f"s_add_u32 s28, s27, {seq*8192}")
                    a.e(f"buffer_store_dwordx2 {vr(out(seq, c), 2)}, v4, s[12:15], s28 offen offset:{c*1024}{NTW}")


def prep_kernel(name):
    a = Asm()
    NWG = 256
    a.label(name)
    a.e(f"s_cmp_ge_u32 s2, {NWG}")
    a.e(f"s_cbranch_scc1 L_{name}_done")
    CW = os.environ.get("CW", "late")
    CWN = int(os.environ.get("CWN", "32"))

    def code_warm():
        a.e(f"s_cmp_lt_u32 s3, {256 - CWN}")
        a.e(f"s_cbranch_scc1 L_{name}_ncw")
        a.e("s_getpc_b64 s[62:63]")
        a.label(f"L_{name}_pc")
        a.e("s_and_b32 s64, s3, 8")
        a.e("s_lshl_b32 s64, s64, 12")
        a.e("v_lshlrev_b32 v120, 7, v0")
        a.e("v_add_u32 v120, s64, v120")
        a.e(f"v_min_u32 v120, 0x7fc0de00, v120")
        a.e("v_mov_b32 v121, s63")
        a.e("v_add_co_u32 v120, vcc, s62, v120")
        a.e("s_nop 1")
        a.e("v_addc_co_u32 v121, vcc, 0, v121, vcc")
        a.e("global_load_dword v122, v[120:121], off")
        a.label(f"L_{name}_ncw")
        return 0

    def x_warm():
        XW = int(os.environ.get("XW", "0"))
        if XW:
            a.e("s_and_b32 s64, s3, 7")
            a.e("s_lshr_b32 s65, s2, 3")
            a.e("s_lshr_b32 s66, s65, 3")
            a.e("s_lshl_b32 s64, s64, 2")
            a.e("s_add_u32 s64, s64, s66")
            a.e("s_mul_i32 s64, s64, 512000")
            a.e("s_and_b32 s65, s65, 7")
            a.e("s_lshl_b32 s65, s65, 2")
            a.e("s_add_u32 s65, s65, s40")
            a.e("s_lshl_b32 s65, s65, 14")
            a.e("s_add_u32 s64, s64, s65")
            a.e("s_sub_u32 s64, s64, 7680")
            a.e("v_lshrrev_b32 v120, 2, v1")
            a.e("v_lshlrev_b32 v120, 10, v120")
            a.e(f"v_and_b32 v121, {XW - 1}, v1")
            a.e("v_lshl_add_u32 v120, v121, 7, v120")
            a.e("v_add_u32 v120, s64, v120")
            a.e("s_mov_b32 s68, s44")
            a.e("s_mov_b32 s69, s45")
            a.e(f"s_mov_b32 s70, {2*16000*512}")
            a.e("s_mov_b32 s71, 0x00020000")
            a.vmem("buffer_load_dword v123, v120, s[68:71], 0 offen", "XW")
    a.e("s_mov_b32 s3, s2")
    if CW == "early":
        code_warm()
    a.e("s_load_dwordx16 s[44:59], s[0:1], 0")
    a.e("s_load_dwordx2 s[30:31], s[0:1], 72")
    if "stamp" in EXP:
        a.e("s_memrealtime s[60:61]")
    a.e("v_readfirstlane_b32 s40, v0")
    a.e("s_lshr_b32 s40, s40, 6")
    a.e("v_and_b32 v1, 63, v0")
    a.e("s_cmp_lt_u32 s40, 4")
    a.e(f"s_cbranch_scc1 L_{name}_w")
    small_head(a, name)
    a.label(f"L_{name}_w")
    a.e("s_lshl_b32 s21, s2, 2")
    a.e("s_add_u32 s20, s40, s21")
    wprep2(a, 8, WS_W1P, lambda: a.e("s_barrier"), False, code_warm if CW == "late" else None)
    if "stamp" in EXP:
        a.e("s_waitcnt vmcnt(0)")
        a.e("s_memrealtime s[62:63]")
        a.e("s_lshl_b32 s36, s2, 7")
        a.e(f"s_add_u32 s36, s36, {WS_STAMP + 3*0x10000}")
        add64(a, 40, 30, "s36")
        a.e("s_mov_b32 s42, 128")
        a.e("s_mov_b32 s43, 0x00020000")
        a.e("s_waitcnt lgkmcnt(0)")
        a.e("v_mov_b32 v8, 0")
        a.e("v_mov_b32 v0, 1")
        a.e("buffer_store_dword v0, v8, s[40:43], 0 offen")
        for i in range(4):
            a.e(f"v_mov_b32 v0, s{60+i}")
            a.e(f"buffer_store_dword v0, v8, s[40:43], 0 offen offset:{80+4*i}")
    a.label(f"L_{name}_done")
    a.e("s_endpgm")
    small_tail(a, name)
    a.L.insert(len(a.L) - 1, f"L_{name}_last:")
    return a.L, 4096, 128


def conv_kernel(name, cfg):
    TIN, TOUT = cfg["tin"], cfg["tout"]
    N = cfg["nchunk"]
    KSPLIT = cfg["ksplit"]
    NWG = 256
    STAMP = "stamp" in EXP
    sX, sW, sO = 8, 12, 16
    sWv, sT0, sCnt, sBo, sXo, sMask = 20, 21, 22, 23, 24, 25
    sBo2 = 26
    sK, sCb, sH = 28, 29, 32
    sSt = 60
    vL = 127
    vU, vS_, vI, vKG = 8, 9, 10, 11

    a = Asm()
    a.label(name)
    a.e(f"s_cmp_ge_u32 s2, {NWG}")
    a.e(f"s_cbranch_scc1 L_{name}_done")

    def stamp(i, fence=True):
        if STAMP:
            a.e(f"s_memtime s[{sSt+2*i}:{sSt+2*i+1}]")
            if fence:
                a.e("s_waitcnt lgkmcnt(0)")
                a.lg = []

    def rstamp(i):
        if STAMP:
            a.e(f"s_memrealtime s[{sSt+2*i}:{sSt+2*i+1}]")
            a.e("s_waitcnt lgkmcnt(0)")
            a.lg = []
    if STAMP:
        for i in range(28):
            a.e(f"s_mov_b32 s{sSt+i}, 0")
        a.e(f"s_memrealtime s[{sSt+20}:{sSt+21}]")
    stamp(0, False)
    a.e(f"s_load_dwordx2 s[4:5], s[0:1], {cfg['in_arg']}")
    a.e("s_load_dwordx2 s[30:31], s[0:1], 72")
    a.e(f"v_readfirstlane_b32 s{sWv}, v0")
    a.e(f"s_lshr_b32 s{sWv}, s{sWv}, 6")
    if os.environ.get("WX", "8") != "0":
        a.e(f"s_xor_b32 s{sWv}, s{sWv}, {os.environ.get('WX', '8')}")
    XL = int((os.environ.get("XL", "33") * 2)[int(KSPLIT)])
    a.e(f"s_and_b32 s36, s2, {(8 >> XL) - 1}")
    a.e(f"s_lshl_b32 s36, s36, {XL}")
    a.e(f"s_bfe_u32 s37, s2, {(XL << 16) | 3}")
    a.e(f"s_or_b32 s{sCb}, s36, s37")
    a.e(f"s_bfe_u32 s36, s2, {(XL << 16) | (3 - XL)}")
    a.e(f"s_lshl_b32 s36, s36, {5 - XL}")
    a.e(f"s_lshr_b32 s37, s2, {3 + XL}")
    a.e("s_or_b32 s36, s36, s37")
    if KSPLIT:
        if LOCAL:
            a.e("s_and_b32 s33, s36, 1")
            a.e("s_bfe_u32 s34, s36, 0x30001")
            a.e("s_lshr_b32 s35, s36, 4")
        else:
            a.e("s_lshr_b32 s33, s36, 4")
            a.e("s_and_b32 s34, s36, 7")
            a.e("s_bfe_u32 s35, s36, 0x10003")
    else:
        a.e("s_mov_b32 s33, 0")
        a.e("s_and_b32 s34, s36, 15")
        a.e("s_lshr_b32 s35, s36, 4")
    a.e(f"s_mul_i32 s{sT0}, s34, 500")
    a.e(f"s_and_b32 s{sH}, s{sWv}, 3")
    a.e(f"v_and_b32 v{vL}, 63, v0")
    a.e(f"v_lshrrev_b32 v5, 2, v{vL}")
    a.e(f"v_and_b32 v6, 3, v{vL}")
    a.e(f"s_and_b32 s42, s{sWv}, 7")
    if not KSPLIT:
        a.e("v_lshlrev_b32 v7, 15, v5")
        a.e("v_lshl_add_u32 v7, v6, 4, v7")
        a.e(f"s_lshl_b32 s41, s{sT0}, 10")
        a.e("s_sub_u32 s41, s41, 7680")
        a.e("s_lshl_b32 s37, s42, 12")
        a.e("s_add_u32 s37, s37, s41")
        a.e("v_add_u32 v7, s37, v7")
        a.e(f"s_mul_i32 s36, s35, {TIN*512}")
        a.e(f"s_mov_b32 s{sX+2}, {TIN*512}")
    else:
        a.e(f"s_lshr_b32 s41, s{sT0}, 2")
        a.e("s_sub_u32 s41, s41, 1")
        a.e("s_add_u32 s37, s41, s42")
        a.e("v_lshl_add_u32 v7, v5, 3, s37")
        a.e(f"s_mul_i32 s36, s35, {32*PLH}")
        a.e(f"s_add_u32 s36, s36, {cfg['in_off']}")
        a.e(f"s_mov_b32 s{sX+2}, {32*PLH}")

    def haddr(dst, vG, vlane, p, t):
        a.e(f"s_add_u32 s37, s33, {2*p - 7 & 0xffffffff}")
        a.e(f"v_lshl_add_u32 v{t}, v{vG}, 3, s37")
        a.e(f"v_cmp_gt_u32 vcc, {TIN}, v{t}")
        a.e(f"s_mul_i32 s37, s33, {PLH}")
        a.e(f"s_add_u32 s37, s37, {(2*p & 3)*PLH + (p >> 1)*64}")
        a.e(f"v_lshl_add_u32 v{dst}, v{vG}, 7, s37")
        a.e(f"v_add_u32 v{dst}, v{dst}, v{vlane}")
        a.e(f"v_mov_b32 v{t}, {OOB}")
        a.e(f"v_cndmask_b32 v{dst}, v{t}, v{dst}, vcc")
    a.e(f"s_mov_b32 s{sX+3}, 0x00020000")
    a.e(f"s_mov_b32 s{sMask}, 0xffff0000")
    a.e("s_mov_b32 s47, s36")

    def kwait():
        a.e("s_waitcnt lgkmcnt(0)")
        stamp(1)
        add64(a, sX, 4, "s47")
    OB = 512

    def wsrd():
        a.e(f"s_lshl_b32 s36, s{sCb}, 4")
        a.e("s_lshl_b32 s37, s33, 3")
        a.e("s_add_u32 s36, s36, s37")
        a.e(f"s_mul_i32 s36, s36, {CHUNKB}")
        a.e(f"s_add_u32 s36, s36, {cfg['w_off']}")
        add64(a, sW, 30, "s36")
        a.e(f"s_mov_b32 s{sW+2}, {N*CHUNKB}")
        a.e(f"s_mov_b32 s{sW+3}, 0x00020000")

    def lds_throttle(need=1):
        if len(a.lg) + need > 15:
            a.e("s_waitcnt lgkmcnt(8)")
            a.lg = a.lg[-8:]

    def mf(acc, b, av):
        if "nomfma" not in EXP:
            a.e(f"v_mfma_f32_16x16x32_bf16 {vr(acc)}, {vr(b)}, {vr(av)}, {vr(acc)}")

    def steady(gen, per, strict=True):
        st = []
        for it in range(3):
            st.append(len(a.L))
            for pos in range(per):
                gen(per * it + pos, pos)
        st.append(len(a.L))
        bodies = [a.L[st[i]:st[i + 1]] for i in range(3)]
        if strict:
            assert bodies[1] == bodies[2], "loop not steady"
            assert bodies[0] == bodies[1], "loop entry not steady"
        del a.L[st[0]:]
        return bodies[1]

    a.e(f"s_cmp_ge_u32 s{sWv}, 8")
    a.e(f"s_cbranch_scc1 L_{name}_helper")

    ACC = 0
    vF, vA8, vD, vB = (120, 121), 122, (123, 124), 125
    vP = (116, 117, 118)
    vBZ = 119
    S, T, O = 96, 108, 64
    if not KSPLIT:
        a.e(f"s_add_u32 s37, s41, {128*4096}")
        a.e(f"v_lshl_add_u32 v{T}, v{vL}, 4, s37")
        for p in range(1, 3):
            a.e(f"v_add_u32 v{T+p}, {p*1024}, v{T}")
    else:
        a.e("s_add_u32 s37, s41, 128")
        a.e("v_mov_b32 v16, s37")
        a.e(f"v_mul_u32_u24 v17, {4*PLH}, v5")
        a.e("v_lshl_add_u32 v17, v6, 4, v17")
        for p in range(3):
            haddr(T + p, 16, 17, p, 18)
    kwait()
    wsrd()
    PLO = PLF if KSPLIT else PLH
    a.e(f"s_mul_i32 s36, s35, {32*PLO}")
    a.e(f"s_add_u32 s36, s36, {cfg['out_off']}")
    if KSPLIT:
        a.e(f"s_mul_i32 s37, s33, {WS_FPS}")
        a.e("s_add_u32 s36, s36, s37")
    add64(a, sO, 30, "s36")
    a.e(f"s_mov_b32 s{sO+2}, {32*PLO}")
    a.e(f"s_mov_b32 s{sO+3}, 0x00020000")
    a.e(f"v_and_b32 v{vI}, 15, v{vL}")
    a.e(f"v_lshrrev_b32 v{vKG}, 4, v{vL}")
    t = 16
    for d, sh in ((vU, 0), (vS_, 1)):
        a.e(f"v_add_u32 v{d}, {sh}, v{vI}")
        a.e(f"v_and_b32 v{t}, 4, v{d}")
        a.e(f"v_lshrrev_b32 v{t}, 1, v{t}")
        a.e(f"v_xor_b32 v{t}, v{vKG}, v{t}")
        a.e(f"v_lshlrev_b32 v{t}, 4, v{t}")
        a.e(f"v_lshl_add_u32 v{d}, v{d}, 6, v{t}")
    a.e(f"s_lshr_b32 s38, s{sH}, 1")
    a.e(f"s_and_b32 s39, s{sH}, 1")
    a.e("s_add_u32 s40, s38, 4")
    a.e("s_lshl_b32 s43, s39, 10")
    a.e(f"s_cmp_lt_u32 s{sWv}, 4")
    a.e(f"s_cselect_b32 s40, s{sWv}, s40")
    a.e("s_cselect_b32 s36, 0, s43")
    a.e("s_lshl_b32 s37, s40, 13")
    a.e("s_add_u32 s37, s37, s36")
    a.e(f"v_lshl_add_u32 v{vB}, v{vL}, 4, s37")
    a.e(f"s_mul_i32 s37, s40, {SEQB}")
    a.e(f"v_add_u32 v{vF[0]}, s37, v{vU}")
    a.e(f"v_add_u32 v{vF[1]}, s37, v{vS_}")
    a.e("s_lshl_b32 s37, s40, 10")
    a.e(f"s_add_u32 s37, s37, {SPB}")
    a.e(f"v_lshl_add_u32 v{t}, v{vKG}, 4, s37")
    a.e(f"v_cmp_eq_u32 vcc, 15, v{vI}")
    a.e(f"v_mov_b32 v{t+1}, {BB}")
    a.e(f"v_mov_b32 v{t+2}, {-BB & 0xffffffff}")
    a.e(f"v_mov_b32 v{t+3}, 64")
    a.e(f"v_cndmask_b32 v{vA8}, v{vF[1]}, v{t}, vcc")
    a.e(f"v_cndmask_b32 v{vD[0]}, v{t+1}, v{t+3}, vcc")
    a.e(f"v_cndmask_b32 v{vD[1]}, v{t+2}, v{t+3}, vcc")
    a.e(f"v_lshl_add_u32 v126, v{vL}, 4, s37")
    tabs = {44: (1.0, 1.0, 1.0, 1.0, 1.0, 16.0), 45: (0.0, 1.0, -1.0, 2.0, -2.0, 8.0),
            46: (0.0, 1.0, 1.0, 4.0, 4.0, 4.0)}
    for sg, tab in tabs.items():
        a.e(f"s_mov_b32 s{sg}, {f32hex(tab[0])}")
    for q in range(1, 6):
        a.e(f"s_cmp_eq_u32 s40, {q}")
        for sg, tab in tabs.items():
            if tab[q] != tab[0]:
                a.e(f"s_cselect_b32 s{sg}, {f32hex(tab[q])}, s{sg}")

    def special_rows():
        a.wait(vm=("SP",))
        for d in range(4):
            for p in range(3):
                a.e(f"v_lshlrev_b32 v{T+p}, 16, v{S+4*p+d}")
                a.e(f"v_and_b32 v{T+3+p}, s{sMask}, v{S+4*p+d}")
            for h in range(2):
                a.e(f"v_mul_f32 v{T+6+h}, s44, v{T+3*h}")
            for h in range(2):
                a.e(f"v_fmac_f32 v{T+6+h}, s45, v{T+3*h+1}")
            for h in range(2):
                a.e(f"v_fmac_f32 v{T+6+h}, s46, v{T+3*h+2}")
            a.e(f"v_cvt_pk_bf16_f32 v{S+d}, v{T+6}, v{T+7}")
        a.e(f"ds_write_b128 v126, {vr(S)}")

    def own_read(k, g, reg, tag, last=False):
        if g == 8:
            base, off = vA8, 0
        else:
            base, off = vF[g >> 3], (k & 1) * BB + (g & 7) * FB
        a.lds(f"ds_read_b128 {vr(reg)}, v{base} offset:{off}", tag)
        if g == 8 and not last:
            a.e(f"v_add_u32 v{vA8}, v{vD[k & 1]}, v{vA8}")

    UNIT = [(s * SEQB, s * SEQB + BB) for s in range(4)] + [(4 * SEQB, TOPB), (5 * SEQB, TOPB + 8192),
            (6 * SEQB, TOPB + 16384), (TOPB + 24576, TOPB + 32768)]
    EA = 96
    ES = []
    R0 = (120, 121, 64)
    vO, vBW = 122, 127
    BND = SPB
    t0, t1, t2, t3 = 108, 109, 110, 111
    ES.append(f"v_and_b32 v{t0}, 15, v{vL}")
    ES.append(f"v_lshrrev_b32 v{t1}, 4, v{vL}")
    ES.append(f"v_lshrrev_b32 v{t2}, 3, v{t0}")
    ES.append(f"s_lshl_b32 s36, s{sWv}, 1")
    ES.append(f"v_add_u32 v{t2}, s36, v{t2}")
    ES.append(f"v_xor_b32 v{t3}, v{t2}, v{t0}")
    ES.append(f"v_and_b32 v{t3}, 7, v{t3}")
    ES.append(f"v_lshlrev_b32 v{t3}, 4, v{t3}")
    ES.append(f"v_lshl_add_u32 v{t3}, v{t2}, 7, v{t3}")
    ES.append(f"v_lshl_add_u32 v{R0[0]}, v{t1}, 11, v{t3}")
    ES.append(f"v_add_u32 v{R0[1]}, 65536, v{R0[0]}")
    ES.append(f"v_add_u32 v{R0[2]}, 131072, v{R0[0]}")
    ES.append(f"s_lshl_b32 s36, s{sWv}, 9")
    ES.append(f"s_add_u32 s36, s36, {BND}")
    ES.append(f"v_lshl_add_u32 v{vBW}, v{t1}, 7, s36")
    ES.append(f"s_lshl_b32 s36, s{sWv}, 4")
    ES.append(f"v_add_u32 v{t0}, s36, v{t0}")
    ES.append(f"v_lshlrev_b32 v{t2}, 6, v{t0}")
    ES.append(f"v_lshl_add_u32 v{t2}, v{t1}, 4, v{t2}")
    ES.append(f"s_mul_i32 s36, s{sCb}, {4*PLO}")
    ES.append(f"s_lshl_b32 s37, s{sT0}, 4")
    ES.append("s_add_u32 s36, s36, s37")
    ES.append(f"v_add_u32 v{t2}, s36, v{t2}")
    ES.append(f"v_mov_b32 v{t3}, {OOB}")
    ES.append(f"v_cmp_gt_u32 vcc, 125, v{t0}")
    k0 = -2.0 * 1.4426950408889634 * 0.7978845608028654
    consts = [-1.0 / 3, 0.25, -5.0, -32.0 / 9, -8.0 / 9, -2.0 / 9, -1.0 / 18, 17.0 / 9, -2.0 / 3, 0.4, -1.0 / 15, -0.2,
              k0 * 0.044715, 1.0]
    KS = [4, 6, 8, 10, 12, 14, 22, 24, 26, 32, 34, 38, 40, 42]
    for sg, cv in zip(KS, consts):
        ES.append(f"s_mov_b32 s{sg}, {f32hex(cv)}")
        ES.append(f"s_mov_b32 s{sg+1}, s{sg}")

    def ex_addr(sbase):
        a.e(f"v_and_b32 v{EA}, 15, v{vL}")
        a.e(f"v_and_b32 v{EA+1}, 7, v{vL}")
        a.e(f"v_lshlrev_b32 v{EA+1}, 4, v{EA+1}")
        a.e(f"v_lshl_add_u32 v{EA}, v{EA}, 7, v{EA+1}")
        a.e(f"v_lshrrev_b32 v{EA+1}, 4, v{vL}")
        a.e(f"v_lshl_add_u32 v{EA}, v{EA+1}, 11, v{EA}")
        a.e(f"v_add_u32 v{EA}, s{sbase}, v{EA}")
        for f in range(1, 8):
            a.e(f"v_xor_b32 v{EA+f}, {f << 4}, v{EA}")

    def mwave(role):
        if role == 1:
            BR, AR, NR = 64, 96, 6
            steps = [("X", g) for g in range(11)]
        else:
            BR, AR, NR = 64, 88, 7
            steps = []
            for g in range(11):
                steps.append(("Y", g))
                if 1 <= g <= 9:
                    steps.append(("Z", g - 1))
        NS = len(steps)

        def bload(k, kind, q):
            if "nob" in EXP and k > 0:
                return
            so = sBo2 if q >> 1 else sBo
            if kind == "X":
                for c in range(2):
                    a.vmem(f"buffer_load_dwordx4 {vr(BR+(q*2+c)*4)}, v{vB}, {sr(sW)}, s{so} offen "
                           f"offset:{(q&1)*2048 + c*1024}", ("B", k, kind, q))
            elif kind == "Y":
                a.vmem(f"buffer_load_dwordx4 {vr(BR+q*4)}, v{vB}, {sr(sW)}, s{so} offen offset:{(q&1)*2048}",
                       ("B", k, kind, q))
            else:
                a.vmem(f"buffer_load_dwordx4 {vr(BR+16+q*4)}, v{vBZ}, {sr(sW)}, s{sBo} offen offset:{q*2048}",
                       ("B", k, kind, q))

        def rd(k, n, last=False):
            kind, g = steps[n]
            reg = AR + 4 * (n % NR)
            if kind == "Z":
                base, off = (vP[0], g * FB6) if g < 6 else (vP[1], (g - 6) * FB6) if g < 8 else (vP[2], 0)
                a.lds(f"ds_read_b128 {vr(reg)}, v{base} offset:{(k & 1)*BB6 + off}", ("A", k, n))
            else:
                own_read(k, g, reg, ("A", k, n), last)

        for i in range(64):
            a.e(f"v_mov_b32 v{ACC+i}, 0")
        if "b0" in EXP:
            a.e("s_barrier")
        for p in range(3):
            a.vmem(f"buffer_load_dwordx4 {vr(S+4*p)}, v{T+p}, {sr(sX)}, 0 offen", "SP")
        a.e(f"s_mov_b32 s{sBo}, 0")
        a.e(f"s_mov_b32 s{sBo2}, 4096")
        for st in steps:
            if st and st[1] >= 7:
                bload(0, st[0], st[1] - 7)
        a.e(f"s_mov_b32 s{sBo}, {CHUNKB}")
        a.e(f"s_mov_b32 s{sBo2}, {CHUNKB + 4096}")
        SPL = os.environ.get("SPL", "0") == "1"
        if not SPL:
            special_rows()
        if role == 2:
            a.e(f"v_and_b32 v{T+3}, 15, v{vL}")
            a.e(f"v_lshlrev_b32 v{T+3}, 2, v{T+3}")
            a.e(f"v_add_u32 v{T+3}, {6*SEQB + 1024}, v{T+3}")
            a.e(f"ds_write_b32 v{T+3}, v{ACC}")
            a.e(f"ds_write_b32 v{T+3}, v{ACC} offset:{BB6}")
        a.e("s_waitcnt lgkmcnt(0)")
        a.e("s_barrier")
        if SPL:
            a.e("s_setprio 3")
            special_rows()
            a.e("s_waitcnt lgkmcnt(0)")
        stamp(7)
        rstamp(12)
        a.e(f"s_mov_b32 s{sCnt}, {N//2}")
        a.e(f"s_setprio {os.environ.get(f'PM{role}', '2')}")

        CO = int(os.environ.get(f"CO{role}", "0" if role == 1 else "5"))
        assert CO < NR
        FM = int("fmaj" in EXP)
        vE = (vD[0], vD[1])

        def period(k, _, last=False):
            if "mst" in EXP and _ == 0:
                stamp(2)
            if "bst" in EXP and _ == 1 and not last:
                a.e("s_memtime s[90:91]")
                a.e("s_waitcnt vmcnt(0) lgkmcnt(0)")
                a.e("s_memtime s[92:93]")
                a.e("s_waitcnt lgkmcnt(0)")
                a.e("s_sub_u32 s92, s92, s90")
                a.e(f"s_add_u32 s{sSt+4}, s{sSt+4}, s92")
                a.e(f"s_max_u32 s{sSt+6}, s{sSt+6}, s92")
                a.vm = []
            for n in range(NR):
                rd(k, n, last)
            pend = []
            fill = []

            def flush(n, cnt):
                while pend and pend[0][0] <= n and cnt > 0:
                    _, h, f = pend.pop(0)
                    t = vE[(h + f) & 1]
                    a.e(f"v_xor_b32 v{t}, {f << 4}, v{vX0[h]}")
                    lds_throttle()
                    a.lds(f"ds_write_b128 v{t}, {vr(ACC + h*32 + f*4)}", "E")
                    cnt -= 1
                    for _i in range(min(12, len(fill))):
                        a.e(fill.pop(0))

            for n, st in enumerate(steps):
                if CO and n == NS - CO and not last:
                    a.wait(lg_all=True)
                    if "mst" in EXP and _ == 0:
                        stamp(3)
                    a.e("s_barrier")
                    if "mst" in EXP and _ == 0:
                        stamp(4)
                kind, g = st
                nt = 2 if kind == "Z" else 4
                qs = [q for q in range(nt) if 0 <= g - q <= 7]
                if FM and kind == "X":
                    if g >= 3:
                        f = g - 3
                        for c in range(2):
                            for q in range(4):
                                a.wait(lg=(("A", k, f + q),), vm=(("B", k, kind, q),))
                                mf(ACC + 32 * c + f * 4, BR + q * 8 + 4 * c, AR + 4 * ((f + q) % NR))
                        if f + NR < NS:
                            rd(k, f + NR, last)
                        if g == 10 and not last:
                            for q in range(4):
                                bload(k + 1, kind, q)
                    qs = []
                else:
                    a.wait(lg=(("A", k, n),), vm=tuple(("B", k, kind, q) for q in qs))
                reg = AR + 4 * (n % NR)
                for q in qs:
                    f = g - q
                    if kind == "X":
                        mf(ACC + f * 4, BR + q * 8, reg)
                        mf(ACC + 32 + f * 4, BR + q * 8 + 4, reg)
                    elif kind == "Y":
                        mf(ACC + f * 4, BR + q * 4, reg)
                    else:
                        mf(ACC + 32 + f * 4, BR + 16 + q * 4, reg)
                if g >= 7 and not last and not (FM and kind == "X"):
                    bload(k + 1, kind, g - 7)
                if n + NR < NS and not (FM and kind == "X"):
                    rd(k, n + NR, last)
                if last:
                    flush(n, int(os.environ.get('FL', '2')))
                    f = g - (nt - 1)
                    if f >= 0:
                        if kind == "X":
                            pend.append((n + 1, 0, f))
                            pend.append((max(n + 1, NS - NR + 1 + 3 * FM), 1, f))
                            pend.sort()
                        else:
                            pend.append((n + 3, 0 if kind == "Y" else 1, f))
                    if kind == "X" and n == NS - NR + 3 * FM:
                        a.wait(lg=(("A", k, NS - 1),))
            if last:
                fill += ES
                for _i in range(8):
                    a.e(fill.pop(0))
                flush(1000, 1000)
                for op in fill:
                    a.e(op)
                return
            a.e(f"s_add_u32 s{sBo}, s{sBo}, {CHUNKB}")
            a.e(f"s_add_u32 s{sBo2}, s{sBo2}, {CHUNKB}")
            assert not a.lg
            if "mst" in EXP and _ == 0:
                stamp(5)
            if not CO:
                a.e("s_barrier")
            if "mst" in EXP and _ == 0:
                stamp(6)

        def period2(k, pos):
            if pos == 1:
                a.e(f"s_sub_u32 s{sCnt}, s{sCnt}, 1")
                a.e(f"s_cmp_eq_u32 s{sCnt}, 0")
                a.e(f"s_cbranch_scc1 L_{name}_mlast{role}")
                state[0] = (list(a.vm), k)
            period(k, pos)

        state = [None]
        body = steady(period2, 2, "nob" not in EXP)
        if "nob" in EXP:
            a.e("s_waitcnt vmcnt(0)")
        a.label(f"L_{name}_mloop{role}")
        a.L.extend(body)
        a.e(f"s_branch L_{name}_mloop{role}")
        a.label(f"L_{name}_mlast{role}")
        a.vm, a.lg = state[0][0], []
        vX0 = (vB, 126)
        a.e(f"v_and_b32 v{vX0[0]}, 15, v{vL}")
        a.e(f"v_and_b32 v{vX0[1]}, 7, v{vL}")
        a.e(f"v_lshlrev_b32 v{vX0[1]}, 4, v{vX0[1]}")
        a.e(f"v_lshl_add_u32 v{vX0[0]}, v{vX0[0]}, 7, v{vX0[1]}")
        a.e(f"v_lshrrev_b32 v{vX0[1]}, 4, v{vL}")
        a.e(f"v_lshl_add_u32 v{vX0[0]}, v{vX0[1]}, 11, v{vX0[0]}")
        if role == 1:
            a.e(f"s_lshl_b32 s36, s{sWv}, 14")
            a.e("s_add_u32 s37, s36, 8192")
        else:
            for sg, tab in ((36, [UNIT[4 + (h >> 1)][h & 1] for h in range(4)]),
                            (37, [UNIT[6 + (h >> 1)][h & 1] for h in range(4)])):
                a.e(f"s_mov_b32 s{sg}, {tab[0]}")
                for h in range(1, 4):
                    a.e(f"s_cmp_eq_u32 s{sH}, {h}")
                    a.e(f"s_cselect_b32 s{sg}, {tab[h]}, s{sg}")
        a.e(f"v_add_u32 v{vX0[1]}, s37, v{vX0[0]}")
        a.e(f"v_add_u32 v{vX0[0]}, s36, v{vX0[0]}")
        if os.environ.get(f"PL{role}"):
            a.e(f"s_setprio {os.environ.get(f'PL{role}')}")
        period(state[0][1], 1, True)
        stamp(8, False)
        rstamp(13)
        a.e("s_setprio 0")
        a.vm, a.lg = [], []

    a.e(f"s_cmp_ge_u32 s{sWv}, 4")
    a.e(f"s_cbranch_scc1 L_{name}_m2")
    vm0 = list(a.vm)
    mwave(1)
    a.e(f"s_branch L_{name}_epi")
    a.label(f"L_{name}_m2")
    a.vm, a.lg = list(vm0), []
    a.e(f"s_mul_i32 s37, s38, {2*FB6}")
    a.e(f"s_add_u32 s37, s37, {6*SEQB}")
    a.e(f"v_add_u32 v{vP[0]}, s37, v{vU}")
    a.e(f"v_add_u32 v{vP[2]}, s37, v{vS_}")
    a.e(f"v_add_u32 v{vP[1]}, {6*SEQB + 6*FB6}, v{vU}")
    a.e("s_cmp_eq_u32 s38, 0")
    a.e(f"s_cbranch_scc1 L_{name}_hh0")
    a.e(f"v_add_u32 v{vP[1]}, {6*SEQB}, v{vS_}")
    a.label(f"L_{name}_hh0")
    a.e("s_lshl_b32 s37, s38, 12")
    a.e("s_add_u32 s37, s37, s43")
    a.e(f"s_add_u32 s37, s37, {6*8192}")
    a.e(f"v_lshl_add_u32 v{vBZ}, v{vL}, 4, s37")
    mwave(2)
    a.e(f"s_branch L_{name}_epi")

    a.label(f"L_{name}_helper")
    a.vm, a.lg = [], []
    a.e("s_setprio 3")
    PB = (0, 32)
    XO = 64
    TMP = 76
    vX = 92
    vW = (96, 97, 98)

    def praw(b, half, p):
        return PB[b] + half * 16 + p * 4

    sXo2 = 27

    def xload(pair, p):
        if KSPLIT:
            half, q = p >> 1, p & 1
            for r in (q, q + 2):
                a.vmem(f"buffer_load_dwordx4 {vr(praw(pair & 1, half, r))}, v{vX+r}, {sr(sX)}, "
                       f"s{sXo2 if half else sXo} offen", ("X", pair))
            return
        for half in range(2):
            a.vmem(f"buffer_load_dwordx4 {vr(praw(pair & 1, half, p))}, v{vX+p}, {sr(sX)}, "
                   f"s{sXo} offen offset:{half*64}", ("X", pair))
        a.e(f"v_add_u32 v{vX+p}, 128, v{vX+p}")

    def uregs(chunk):
        return [praw((chunk >> 1) & 1, chunk & 1, p) for p in range(4)]

    def wr(chunk, i):
        if "nowr" in EXP:
            return
        u = uregs(chunk)
        reg, seq = [(XO, 3), (XO + 4, 4), (XO + 8, 5), (u[0], 0), (u[1], 1), (u[2], 2), (u[3], 6)][i]
        lds_throttle()
        if seq == 6:
            a.lds(f"ds_write_b128 v{vW[2]}, {vr(reg)} offset:{(chunk & 1)*BB6}", "W")
        else:
            a.lds(f"ds_write_b128 v{vW[seq >> 2]}, {vr(reg)} offset:{(seq & 3)*SEQB + (chunk & 1)*BB}", "W")

    def tr_ops(chunk):
        u = uregs(chunk)
        o = [u[1], u[2], XO, XO + 4, XO + 8]
        ops = []
        for d in range(4):
            lo = [TMP + p for p in range(4)]
            hi = [TMP + 8 + p for p in range(4)]
            for p in range(4):
                ops.append(f"v_lshlrev_b32 v{lo[p]}, 16, v{u[p]+d}")
                ops.append(f"v_and_b32 v{hi[p]}, s{sMask}, v{u[p]+d}")
            o1, r1 = eval_ops(lo, [TMP + 4 + i for i in range(4)])
            o2, r2 = eval_ops(hi, [TMP + 12 + i for i in range(4)])
            for x, y in zip(o1, o2):
                ops += [x, y]
            for i in range(5):
                ops.append(f"v_cvt_pk_bf16_f32 v{o[i]+d}, v{r1[i]}, v{r2[i]}")
        if "notr" in EXP:
            ops = ["s_nop 0"] * 8
        return ops

    if KSPLIT:
        a.e("v_lshlrev_b32 v8, 4, v6")
    for p in range(4):
        if KSPLIT:
            haddr(vX + p, 7, 8, p, 9)
        else:
            a.e(f"v_add_u32 v{vX+p}, {p*1024}, v7")
    a.e(f"v_and_b32 v{TMP}, 4, v5")
    a.e(f"v_lshrrev_b32 v{TMP}, 1, v{TMP}")
    a.e(f"v_xor_b32 v{TMP}, v6, v{TMP}")
    a.e(f"v_lshlrev_b32 v{TMP}, 4, v{TMP}")
    a.e(f"v_lshl_add_u32 v{TMP}, v5, 6, v{TMP}")
    a.e(f"s_mov_b32 s{sXo}, 0")
    a.e(f"s_mov_b32 s{sXo2}, {4*PLH}")
    kwait()
    stamp(2)
    P0 = os.environ.get("P0", "0")
    if P0 == "0" or KSPLIT:
        for p in range(4):
            xload(0, p)
            if p == 1 and P0 == "2":
                a.e("s_barrier")
    else:
        for half in range(2):
            for p in range(4):
                a.vmem(f"buffer_load_dwordx4 {vr(praw(0, half, p))}, v{vX+p}, {sr(sX)}, s{sXo} offen offset:{half*64}", ("X", 0))
            if half == 0 and P0 == "2":
                a.e("s_barrier")
        for p in range(4):
            a.e(f"v_add_u32 v{vX+p}, 128, v{vX+p}")
    if P0 != "2" and "b0" in EXP:
        a.e("s_barrier")
    a.e(f"s_mul_i32 s36, s42, {FB}")
    a.e(f"v_add_u32 v{vW[0]}, s36, v{TMP}")
    a.e(f"v_add_u32 v{vW[1]}, {4*SEQB}, v{vW[0]}")
    a.e(f"s_mul_i32 s36, s42, {FB6}")
    a.e(f"s_add_u32 s36, s36, {6*SEQB}")
    a.e(f"v_add_u32 v{vW[2]}, s36, v{TMP}")
    stamp(3)
    a.e(f"s_waitcnt vmcnt({0 if P0 == '0' else 4})")
    stamp(4)
    a.e(f"s_mov_b32 s{sK}, 0")
    a.e(f"s_mov_b32 s{sCnt}, {N//4}")
    a.e(f"s_cmp_ge_u32 s{sWv}, 12")
    a.e(f"s_cbranch_scc1 L_{name}_h2")

    def hwave(role):
        SH = 33 * int(os.environ.get(f"SH{role}", "0" if role == 1 else "4"))
        ahead = 2 if SH else 1
        a.vm, a.lg = [], []
        if role == 2 and not KSPLIT:
            a.e("s_load_dwordx2 s[48:49], s[0:1], 16")
        wr(0, 3)
        wr(0, 6)
        for op in tr_ops(0):
            a.e(op)
        for i in (0, 1, 2, 4, 5):
            wr(0, i)
        a.e("s_waitcnt vmcnt(0)")
        W2E = role == 2 and not KSPLIT and os.environ.get("W2", "3") == "3"
        NF = int(os.environ.get("NF", "2"))
        if KSPLIT:
            a.e(f"s_mov_b32 s{sXo}, {8*PLH}")
            a.e(f"s_mov_b32 s{sXo2}, {12*PLH}")
        X1 = os.environ.get("X1", "1")
        if X1 == "0":
            for p in range(4 if SH else NF):
                xload(1, p)
        stamp(5)
        a.wait(lg_all=True)
        stamp(6)
        a.e("s_barrier")
        stamp(7)
        rstamp(12)
        if X1 == "1":
            for p in range(4 if SH else NF):
                xload(1, p)
        PA, PB_ = os.environ.get(f'PH{role}', '11' if role == 1 else '00')
        a.e(f"s_setprio {PA}")
        for op in tr_ops(1)[:SH]:
            a.e(op)
        if W2E:
            a.e("s_lshr_b32 s52, s2, 6")
            a.e("s_lshl_b32 s52, s52, 3")
            a.e("s_bfe_u32 s36, s2, 0x10005")
            a.e("s_add_u32 s52, s52, s36")
            a.e("s_lshl_b32 s52, s52, 17")
            a.e("s_bfe_u32 s36, s2, 0x30002")
            a.e("s_lshl_b32 s36, s36, 1")
            a.e(f"s_and_b32 s37, s{sH}, 1")
            a.e("s_add_u32 s36, s36, s37")
            a.e("s_lshl_b32 s36, s36, 13")
            a.e("s_add_u32 s52, s52, s36")
            a.e("s_and_b32 s36, s2, 3")
            a.e("s_lshl_b32 s36, s36, 1")
            a.e(f"s_lshr_b32 s37, s{sH}, 1")
            a.e("s_add_u32 s36, s36, s37")
            a.e("s_lshl_b32 s36, s36, 6")
            a.e("s_add_u32 s52, s52, s36")
            a.e(f"s_mov_b32 s50, {31*131072}")
            a.e("s_mov_b32 s51, 0x00020000")
            a.e(f"v_lshrrev_b32 v99, 4, v{vL}")
            a.e("v_lshlrev_b32 v99, 11, v99")
            a.e(f"v_and_b32 v100, 15, v{vL}")
            a.e("v_lshl_add_u32 v99, v100, 2, v99")

        def w2load(pos):
            a.e(f"s_cmp_lg_u32 s{sCnt}, {os.environ.get('W2I', '3')}")
            a.e(f"s_cbranch_scc1 L_{name}_w2s{pos}")
            for e in range(4):
                a.e(f"buffer_load_dword v{100+pos*4+e}, v99, s[48:51], s52 offen offset:{e*512}")
            a.e(f"s_add_u32 s52, s52, {2*131072}")
            a.label(f"L_{name}_w2s{pos}")
        VPF = int(os.environ.get("VPF", "0")) if role == 1 and not KSPLIT and XL == 3 else 0
        if VPF:
            a.e(f"s_lshl_b32 s36, s{sCb}, 6")
            a.e(f"s_lshl_b32 s37, s{sH}, 3")
            a.e("s_add_u32 s36, s36, s37")
            a.e("s_lshl_b32 s36, s36, 10")
            a.e("s_add_u32 s36, s36, s41")
            a.e(f"s_add_u32 s36, s36, {VPF*128}")
            a.e(f"v_and_b32 v100, 7, v{vL}")
            a.e("v_lshl_add_u32 v100, v100, 10, s36")

        def vpf(k):
            a.e(f"s_cmp_lt_u32 s{sK}, {N - 2*VPF}")
            a.e(f"s_cselect_b32 s36, 0, {OOB}")
            a.vmem(f"buffer_load_dword v99, v100, {sr(sX)}, s36 offen", "PF")
            a.e(f"v_add_u32 v100, {(128 - 32768) & 0xffffffff if k & 1 else 32768}, v100")
        XP = [float(x) for x in os.environ.get(f"XP{role}", "0,0,0,0" if SH else "0.3,0.7,0.1,0.5").split(",")]

        def period(k, pos, last=False):
            pair = (k >> 1) + 2 if SH else (k + 3) >> 1
            first = not (k & 1) if SH else (k & 1)
            if pos == 4 - ahead and not last:
                a.e(f"s_cmp_eq_u32 s{sCnt}, 1")
                a.e(f"s_cbranch_scc1 L_{name}_hlast{role}")
            if "hst" in EXP and pos == 1:
                stamp(2)
            V1 = tr_ops(k + 1)[SH:]
            V2 = [] if last else tr_ops(k + 2)[:SH]
            V = V1 + V2
            n = len(V)
            ev = {}

            def at(i, f):
                ev.setdefault(max(0, min(int(i), n)), []).append(f)

            def stores():
                if "hst" in EXP and pos == 1:
                    stamp(3)
                for i in range(7):
                    wr(k + 1, i)
                if "hst" in EXP and pos == 1:
                    stamp(4)
                if PA != PB_:
                    a.e(f"s_setprio {PB_}")
            if PA != PB_:
                a.e(f"s_setprio {PA}")
            if VPF and not last:
                at(float(os.environ.get("VPP", "1.0")) * n, lambda: vpf(k))
            at(len(V1), stores)
            if W2E and not last:
                at(len(V1) + 1, lambda: w2load(pos))
            if not last:
                if not KSPLIT:
                    a.e(f"s_cmp_lt_u32 s{sK}, {N - 2 - ahead}")
                    a.e(f"s_cselect_b32 s{sXo}, 0, {OOB}")
                elif first:
                    a.e(f"s_add_u32 s{sXo}, s{sXo}, {8*PLH}")
                    a.e(f"s_add_u32 s{sXo2}, s{sXo2}, {8*PLH}")
                at(len(V1) if SH else 0, lambda: a.wait(vm=(("X", (k + ahead) >> 1),)))
                if "nox" not in EXP:
                    for p in (range(NF) if first else range(NF, 4)):
                        w = len(V1) + XP[p] * SH if SH and first else XP[p] * n
                        at(w, lambda p=p: xload(pair, p))
            for i in range(n + 1):
                for f in ev.get(i, []):
                    f()
                if i < n:
                    a.e(V[i])
            if not last:
                a.e(f"s_add_u32 s{sK}, s{sK}, 1")
            if "hst" in EXP and pos == 1:
                stamp(5)
            a.e("s_waitcnt lgkmcnt(0)")
            a.lg = []
            a.e("s_barrier")
            if "hst" in EXP and pos == 1:
                stamp(6)

        body = steady(period, 4, "nox" not in EXP)
        a.label(f"L_{name}_hloop{role}")
        a.L.extend(body)
        a.e(f"s_sub_u32 s{sCnt}, s{sCnt}, 1")
        a.e(f"s_branch L_{name}_hloop{role}")
        a.label(f"L_{name}_hlast{role}")
        a.vm, a.lg = [], []

        def last_period():
            vm = a.vm
            a.vm, a.lg = [], []
            if SH:
                a.e(f"s_mov_b32 s{sMask}, 0xffff0000")
                period(2, 2, True)
            a.vm = vm
        if role == 1 or KSPLIT:
            last_period()
        else:
            assert SH
            W2L = os.environ.get("W2L", "0") == "1"
            if W2L:
                last_period()
            a.e("s_waitcnt vmcnt(0)")
            a.e(f"s_mov_b32 s58, s{sWv}")
            a.e(f"s_lshl_b32 s20, s2, 2")
            a.e(f"s_add_u32 s20, s20, s{sH}")
            a.e(f"v_mov_b32 v1, v{vL}")
            if W2E:
                wprep2(a, 16, WS_W2P, last_period, pre=100)
            elif os.environ.get("W2", "1") == "2":
                wprep2(a, 16, WS_W2P, last_period, LB=False)
            else:
                wprep(a, 16, WS_W2P, True, barrier=None if W2L else last_period)
            a.e(f"s_mov_b32 s{sWv}, s58")
        if role == 1 and KSPLIT and "tailwarm" in EXP:
            add64(a, sW, 30, WS_WF)
            a.e(f"s_mov_b32 s{sW+2}, {262144 + 32768}")
            a.e(f"s_mov_b32 s{sW+3}, 0x00020000")
            a.e("s_lshr_b32 s36, s2, 3")
            a.e("s_lshl_b32 s36, s36, 2")
            a.e(f"s_add_u32 s36, s36, s{sH}")
            a.e("s_mul_i32 s36, s36, 2304")
            a.e(f"v_lshlrev_b32 v1, 4, v{vL}")
            for i in range(3):
                a.e(f"buffer_load_dwordx4 v[4:7], v1, {sr(sW)}, s36 offen offset:{i*1024}")
        if role == 1 and "tw" in EXP:
            a.e(f"s_cmp_ge_u32 s2, {os.environ.get('TWN', '32')}")
            a.e(f"s_cbranch_scc1 L_{name}_ntw")
            a.e("s_getpc_b64 s[36:37]")
            a.label(f"L_{name}_pc")
            a.e(f"s_lshl_b32 s38, s{sH}, 13")
            a.e(f"s_add_u32 s38, s38, L_{name}_epi-L_{name}_pc")
            a.e(f"v_lshl_add_u32 v2, v{vL}, 7, s38")
            a.e(f"v_min_u32 v2, {0x7fc0de01 + KSPLIT:#x}, v2")
            a.e("v_mov_b32 v3, s37")
            a.e("v_add_co_u32 v2, vcc, s36, v2")
            a.e("s_nop 1")
            a.e("v_addc_co_u32 v3, vcc, 0, v3, vcc")
            a.e("global_load_dword v4, v[2:3], off")
            a.label(f"L_{name}_ntw")
        stamp(8)
        rstamp(13)
        a.e(f"s_branch L_{name}_end")

    hwave(1)
    a.label(f"L_{name}_h2")
    hwave(2)

    a.label(f"L_{name}_epi")
    K = [sr(x, 2) for x in KS]
    a.e("s_waitcnt lgkmcnt(0)")
    a.e("s_barrier")
    if "est" in EXP:
        stamp(2)
    a.e(f"v_cndmask_b32 v{vO}, v{t3}, v{t2}, vcc")

    def P(c, s, r=0):
        return c * 32 + s * 4 + r
    Y = 64
    TB = 96
    ELS = (0, 1, 2)
    for c in range(2):
        for s_ in range(8):
            if c == 1 and s_ == 7:
                a.e("s_waitcnt lgkmcnt(7)")
            u = UNIT[s_][c]
            a.e(f"ds_read_b128 {vr(P(c, s_))}, v{R0[u >> 16]} offset:{u & 0xffff}")

    def p2(x):
        return vr(x, 2)

    def padd(d, x, y):
        return f"v_pk_add_f32 {p2(d)}, {p2(x)}, {p2(y)}"

    def psub(d, x, y):
        return f"v_pk_add_f32 {p2(d)}, {p2(x)}, {p2(y)} neg_lo:[0,1] neg_hi:[0,1]"

    def pfma(d, x, k, y, neg=False):
        return f"v_pk_fma_f32 {p2(d)}, {p2(x)}, {k}, {p2(y)}" + (" neg_lo:[0,0,1] neg_hi:[0,0,1]" if neg else "")

    def interp(c):
        seq = []
        for r in (0, 2):
            E0, A, B, C, D, Q, E6, E6b = (P(c, x, r) for x in range(8))
            y = [Y + ph * 8 + c * 4 + r for ph in range(4)]
            S1, G = E6, C
            seq.append([
                padd(y[3], E6, E6b),
                padd(S1, A, B),
                psub(A, A, B),
                padd(y[1], C, D),
                psub(G, C, D),
                pfma(y[1], S1, K[0], y[1]),
                pfma(Q, E0, K[3], Q),
                pfma(y[1], E0, K[1], y[1]),
                psub(S1, S1, E0),
                pfma(y[1], y[3], K[2], y[1]),
                psub(S1, S1, y[3]),
                pfma(Q, y[3], K[6], Q),
                psub(B, S1, y[1]),
                pfma(Q, y[1], K[5], Q),
                f"v_pk_mul_f32 {p2(y[2])}, {p2(G)}, {K[9]}",
                pfma(Q, B, K[4], Q),
                pfma(y[2], A, K[10], y[2]),
                pfma(y[0], A, K[7], Q, True),
                pfma(y[0], G, K[8], y[0]),
                pfma(y[2], y[0], K[11], y[2]),
                psub(A, A, y[0]),
                psub(A, A, y[2]),
            ])
        for ops in zip(*seq):
            for op in ops:
                a.e(op)

    a.e("s_waitcnt lgkmcnt(8)")
    interp(0)
    a.e("s_waitcnt lgkmcnt(0)")
    interp(1)
    if "est" in EXP:
        stamp(3)
    a.e("s_mov_b32 s36, 0x00010001")
    a.e("s_mov_b32 s37, 0x00010001")
    a.e("s_mov_b64 exec, s[36:37]")
    for k in range(3):
        for c in range(2):
            a.e(f"ds_write_b128 v{vBW}, {vr(P(c, ELS[k]))} offset:{(k*2+c)*16}")
    a.e("s_mov_b64 exec, -1")

    def finish(ph):
        ys = [Y + ph * 8 + i for i in range(8)]
        if not KSPLIT:
            ts = [16 + (ph & 1) * 8 + i for i in range(8)]
            ev = list(zip(ys[::2], ts[::2]))
            for y, t in ev:
                a.e(f"v_pk_mul_f32 {p2(t)}, {p2(y)}, {p2(y)}")
            for y, t in ev:
                a.e(pfma(t, t, K[12], 44))
            for y, t in ev:
                a.e(f"v_pk_mul_f32 {p2(t)}, {p2(t)}, {p2(y)}")
            for t in ts:
                a.e(f"v_exp_f32 v{t}, v{t}")
            for y, t in ev:
                a.e(f"v_pk_add_f32 {p2(t)}, {p2(t)}, {K[13]}")
            for t in ts:
                a.e(f"v_rcp_f32 v{t}, v{t}")
            for y, t in ev:
                a.e(f"v_pk_mul_f32 {p2(y)}, {p2(y)}, {p2(t)}")
        o = 48 + ph * 4
        for r in range(4):
            a.e(f"v_cvt_pk_bf16_f32 v{o+r}, v{ys[r]}, v{ys[4+r]}")
        so = ph * PLF if KSPLIT else ((ph + 3) & 3) * PLH + ((ph + 7) >> 2) * 64
        a.e(f"s_mov_b32 s44, {so}")
        a.e(f"buffer_store_dwordx4 {vr(o)}, v{vO}, {sr(sO)}, s44 offen{NTF if KSPLIT else NTH}")

    a.e(f"v_mov_b32 v44, {f32hex(k0)}")
    a.e("v_mov_b32 v45, v44")
    finish(0)
    a.e("s_waitcnt lgkmcnt(0)")
    a.e("s_barrier")
    if "est" in EXP:
        stamp(4)
    for i in range(6):
        a.e(f"ds_read_b128 {vr(TB+4*i)}, v{vBW} offset:{512 + i*16}")
    for ph in range(1, 4):
        a.e(f"s_waitcnt lgkmcnt({6 - 2*ph})")
        for c in range(2):
            for r in range(4):
                i = (ph - 1) * 8 + c * 4 + r
                a.e(f"v_mov_b32_dpp v{TB+i}, v{P(c, ELS[ph-1], r)} row_shl:1 row_mask:0xf bank_mask:0xf")
        for i in range(0, 8, 2):
            a.e(padd(Y + ph * 8 + i, Y + ph * 8 + i, TB + (ph - 1) * 8 + i))
        finish(ph)
    if "est" in EXP:
        stamp(5)
    RB = os.environ.get("RB", "00")[int(KSPLIT)]
    if RB != "0":
        if not KSPLIT:
            a.e(f"s_cmp_ge_u32 s{sCb}, {RB}")
            a.e(f"s_cbranch_scc1 L_{name}_end")
        a.e("s_waitcnt vmcnt(0)")
        for ph in range(4):
            so = ph * PLF if KSPLIT else ((ph + 3) & 3) * PLH + ((ph + 7) >> 2) * 64
            a.e(f"s_mov_b32 s44, {so}")
            a.e(f"buffer_load_dword v0, v{vO}, {sr(sO)}, s44 offen")
    a.label(f"L_{name}_end")
    if STAMP:
        a.e("s_waitcnt vmcnt(0)")
        stamp(9, False)
        a.e(f"s_memrealtime s[{sSt+22}:{sSt+23}]")
        a.e(f"s_cmp_lg_u32 s{sWv}, {os.environ.get('SW', '0')}")
        a.e(f"s_cbranch_scc1 L_{name}_done")
        a.e("s_lshl_b32 s36, s2, 7")
        a.e(f"s_add_u32 s36, s36, {WS_STAMP + cfg['stamp']*0x10000}")
        add64(a, 40, 30, "s36")
        a.e("s_mov_b32 s42, 128")
        a.e("s_mov_b32 s43, 0x00020000")
        a.e("s_waitcnt lgkmcnt(0)")
        a.e("v_mov_b32 v8, 0")
        for i in range(28):
            a.e(f"v_mov_b32 v0, s{sSt+i}")
            a.e(f"buffer_store_dword v0, v8, s[40:43], 0 offen offset:{4*i}")
    a.label(f"L_{name}_done")
    a.e("s_endpgm")
    return a.L, TOPB + 40960, 128


CONV1 = dict(tin=16000, tout=8000, nchunk=16, ksplit=False, in_arg=0, in_off=0, w_off=WS_W1P, out_off=WS_H, stamp=0)
CONV2 = dict(tin=8000, tout=4000, nchunk=8, ksplit=True, in_arg=72, in_off=WS_H, w_off=WS_W2P, out_off=WS_FP, stamp=1)

HEADER = f"""; Kernarg layout for this problem (80 bytes, ptrs only, base s[0:1]):
"""


def main():
    ks = [("prep_kernel", 256, 384) + prep_kernel("prep_kernel"),
          ("conv1_kernel", 256, 1024) + conv_kernel("conv1_kernel", CONV1),
          ("conv2_kernel", 256, 1024) + conv_kernel("conv2_kernel", CONV2)]
    ks = joint_kernels(ks)
    out = HEADER
    for nm, grid, block, code, lds, vg in ks:
        out += f"; @launch kernel={nm} grid=({grid},1,1) block=({block},1,1) lds={lds}\n"
    out += '.amdgcn_target "amdgcn-amd-amdhsa--gfx950"\n.text\n'
    for nm, grid, block, code, lds, vg in ks:
        if "noalign" not in EXP:
            code = align8(code)
        out += f".globl {nm}\n.p2align 8\n.type {nm},@function\n" + "\n".join(code) + "\n"
    out += '.section .rodata,"a"\n'
    for nm, grid, block, code, lds, vg in ks:
        out += ".p2align 6\n" + kd(nm, vg)
    out = out.replace("0x7fc0de00", "L_joint_kernel_done-L_prep_kernel_pc")
    out = out.replace("0x7fc0de01", "L_conv2_kernel_done-L_conv1_kernel_pc")
    out = out.replace("0x7fc0de02", "L_joint_kernel_done-L_conv2_kernel_pc")
    path = sys.argv[1] if len(sys.argv) > 1 else "standalone__seq2seq_rnn_t_joint__speech.s"
    open(path, "w").write(out)


if __name__ == "__main__":
    main()
```

```python
import os
import sys

from asmlib import Asm, vr, sr, kd, f32hex, align8
from gen13_joint import small_head, small_tail, joint_kernels

EXP = os.environ.get("EXP", "").split(",")

WS_W1P = 0x0000000
WS_W2P = 0x0900000
WS_H = 0x1200000
WS_FP = 0x1A00000
WS_FPS = 0x800000
WS_WF = 0x2A00000
WS_STAMP = 0x3000000

CHUNKB = 7 * 8192
FB = 1024
BB = 8 * FB
SEQB = 2 * BB
FB6 = 1088
BB6 = 8 * FB6
SPB = 6 * SEQB + 2 * BB6
TOPB = SPB + 6144
OOB = 0x7f000000
LOCAL = 'local' in EXP
PLH, PLF = int(os.environ.get('PLH', 131072)), int(os.environ.get('PLF', 65536))
NTW, NTH, NTF = ({"0": "", "1": " nt", "2": " sc1", "3": " sc0 sc1"}[c] for c in os.environ.get("NT", "222"))


def add64(a, d, lo, off):
    a.e(f"s_add_u32 s{d}, s{lo}, {off}")
    a.e(f"s_addc_u32 s{d+1}, s{lo+1}, 0")


def eval_ops(c, t):
    e1, o1, e2, o2 = t
    ops = [f"v_add_f32 v{e1}, v{c[0]}, v{c[2]}",
           f"v_add_f32 v{o1}, v{c[1]}, v{c[3]}",
           f"v_fma_f32 v{e2}, v{c[2]}, 4.0, v{c[0]}",
           f"v_fma_f32 v{o2}, v{c[3]}, 4.0, v{c[1]}",
           f"v_add_f32 v{c[1]}, v{e1}, v{o1}",
           f"v_sub_f32 v{c[2]}, v{e1}, v{o1}",
           f"v_fma_f32 v{c[3]}, v{o2}, 2.0, v{e2}",
           f"v_fma_f32 v{e2}, v{o2}, -2.0, v{e2}",
           f"v_fmamk_f32 v{e1}, v{c[0]}, {f32hex(15.0)}, v{e2}",
           f"v_fmamk_f32 v{e1}, v{o1}, {f32hex(10.0)}, v{e1}"]
    return ops, [c[1], c[2], c[3], e2, e1]


def wprep(a, karg, wsoff, ws_loaded, barrier=False, extra=None, small=None, mid=None):
    a.vm, a.lg = [], []
    a.e(f"s_load_dwordx2 s[8:9], s[0:1], {karg}")
    if not ws_loaded:
        a.e("s_load_dwordx2 s[30:31], s[0:1], 72")
    a.e("s_lshr_b32 s22, s20, 8")
    a.e("s_bfe_u32 s23, s20, 0x40004")
    a.e("s_bfe_u32 s24, s20, 0x30001")
    a.e("s_and_b32 s21, s20, 1")
    a.e("v_lshrrev_b32 v2, 4, v1")
    a.e("v_lshlrev_b32 v2, 12, v2")
    a.e("v_and_b32 v3, 15, v1")
    a.e("v_lshl_add_u32 v2, v3, 2, v2")
    a.e("s_lshl_b32 s26, s22, 3")
    a.e("s_lshr_b32 s27, s23, 3")
    a.e("s_add_u32 s26, s26, s27")
    a.e("s_lshl_b32 s26, s26, 17")
    a.e("s_and_b32 s27, s23, 7")
    a.e("s_lshl_b32 s27, s27, 14")
    a.e("s_add_u32 s26, s26, s27")
    a.e("s_lshl_b32 s27, s24, 6")
    a.e("s_add_u32 s26, s26, s27")
    a.e(f"s_mov_b32 s10, {31*131072}")
    a.e("s_mov_b32 s11, 0x00020000")
    if small:
        small_select(a)
        a.e("s_add_u32 s37, s26, s5")
        a.e("s_add_u32 s38, s37, s5")
        a.e("s_add_u32 s39, s38, s5")
    else:
        for p in range(1, 4):
            a.e(f"s_add_u32 s{36+p}, s26, {2*131072*p}")
    a.e("s_waitcnt lgkmcnt(0)")
    if small:
        small_ptr(a)
        small_g(a, "prep_kernel")
    R = 16
    for e2 in range(4):
        for p in range(4):
            for e in (2 * e2, 2 * e2 + 1):
                a.vmem(f"buffer_load_dword v{R+p*8+e}, v2, s[8:11], s{36+p if p else 26} offen offset:{e*512}", ("L", e2))
    if small:
        a.e("s_cmp_lt_u32 s3, 12")
        a.e(f"s_cbranch_scc1 {small}")
    if mid:
        mid()
    add64(a, 12, 30, wsoff)
    a.e(f"s_mov_b32 s14, {8*16*CHUNKB}")
    a.e("s_mov_b32 s15, 0x00020000")
    a.e("v_lshlrev_b32 v4, 4, v1")
    a.e("s_lshl_b32 s27, s24, 4")
    a.e("s_add_u32 s27, s27, s23")
    a.e(f"s_mul_i32 s27, s27, {CHUNKB}")
    a.e("s_lshl_b32 s28, s22, 11")
    a.e("s_add_u32 s27, s27, s28")
    a.e("s_lshl_b32 s28, s21, 10")
    a.e("s_add_u32 s27, s27, s28")
    a.e("s_cmp_eq_u32 s21, 0")
    a.e("s_mov_b32 s32, 0x07060302")
    a.e("s_cselect_b32 s32, 0x05040100, s32")
    a.e("s_mov_b32 s33, 0x03020c0c")
    a.e("s_cselect_b32 s33, 0x01000c0c, s33")
    a.e(f"s_mov_b32 s35, {f32hex(1.0/24)}")
    a.e(f"s_mov_b32 s36, {f32hex(1.0/72)}")
    if barrier:
        barrier()
    OUT = 48
    T = 76
    scale = ("0.5", "0.5", "s35", "s35", "s36")
    for e2 in range(4):
        a.wait(vm=(("L", e2),))
        if extra and e2 == int(os.environ.get("XT", "3")):
            extra()
        for p, seq in ((0, 6), (3, 0)):
            a.e(f"v_perm_b32 v{OUT+seq*4+e2}, v{R+p*8+2*e2+1}, v{R+p*8+2*e2}, s32")
        res, lists = [], []
        for e in range(2):
            cf = [T + e * 8 + i for i in range(4)]
            ops = [f"v_perm_b32 v{cf[i]}, v{cf[i]}, v{R + (3 - i) * 8 + 2 * e2 + e}, s33" for i in range(4)]
            o, rr = eval_ops(cf, [T + e * 8 + 4 + i for i in range(4)])
            ops += o + [f"v_mul_f32 v{r}, {sc}, v{r}" for r, sc in zip(rr, scale)]
            res.append(rr)
            lists.append(ops)
        for x, y in zip(*lists):
            a.e(x)
            a.e(y)
        for i in range(5):
            a.e(f"v_cvt_pk_bf16_f32 v{OUT+(1+i)*4+e2}, v{res[0][i]}, v{res[1][i]}")
    for seq in (6, 0, 1, 2, 3, 4, 5):
        a.e(f"s_add_u32 s28, s27, {seq*8192}")
        a.e(f"buffer_store_dwordx4 {vr(OUT+seq*4)}, v4, s[12:15], s28 offen{NTW}")


def wprep2(a, karg, wsoff, barrier, LB=True, extra=None, pre=None):
    a.vm, a.lg = [], []
    if not pre:
        a.e(f"s_load_dwordx2 s[8:9], s[0:1], {karg}")
    a.e("s_lshr_b32 s22, s20, 8")
    a.e("s_bfe_u32 s23, s20, 0x40004")
    a.e("s_bfe_u32 s24, s20, 0x30001")
    a.e("s_and_b32 s21, s20, 1")
    a.e("v_lshrrev_b32 v5, 4, v1")
    a.e("v_lshlrev_b32 v2, 11, v5")
    a.e("v_and_b32 v3, 15, v1")
    a.e("v_lshl_add_u32 v2, v3, 2, v2")
    a.e("s_lshl_b32 s26, s22, 3")
    a.e("s_lshr_b32 s27, s23, 3")
    a.e("s_add_u32 s26, s26, s27")
    a.e("s_lshl_b32 s26, s26, 17")
    a.e("s_and_b32 s27, s23, 7")
    a.e("s_lshl_b32 s27, s27, 1")
    a.e("s_add_u32 s27, s27, s21")
    a.e("s_lshl_b32 s27, s27, 13")
    a.e("s_add_u32 s26, s26, s27")
    a.e("s_lshl_b32 s27, s24, 6")
    a.e("s_add_u32 s26, s26, s27")
    a.e(f"s_mov_b32 s10, {31*131072}")
    a.e("s_mov_b32 s11, 0x00020000")
    for p in range(1, 4):
        a.e(f"s_add_u32 s{36+p}, s26, {2*131072*p}")
    a.e(f"s_mov_b32 s14, {8*16*CHUNKB}")
    a.e("s_mov_b32 s15, 0x00020000")
    a.e("v_lshrrev_b32 v4, 1, v5")
    a.e("v_lshlrev_b32 v4, 8, v4")
    a.e("v_lshl_add_u32 v4, v3, 4, v4")
    a.e("v_and_b32 v5, 1, v5")
    a.e("v_lshl_add_u32 v4, v5, 10, v4")
    a.e("s_lshl_b32 s27, s24, 4")
    a.e("s_add_u32 s27, s27, s23")
    a.e(f"s_mul_i32 s27, s27, {CHUNKB}")
    a.e("s_lshl_b32 s28, s22, 11")
    a.e("s_add_u32 s27, s27, s28")
    a.e("s_lshl_b32 s28, s21, 9")
    a.e("s_add_u32 s27, s27, s28")
    a.e("s_mov_b32 s32, 0x05040100")
    a.e("s_mov_b32 s33, 0x07060302")
    a.e("s_mov_b32 s34, 0xffff0000")
    a.e(f"s_mov_b32 s35, {f32hex(1.0/24)}")
    a.e(f"s_mov_b32 s40, {f32hex(1.0/72)}")
    a.e("s_waitcnt lgkmcnt(0)")
    if LB:
        barrier()
    R, OUT, T = (pre, 16, 76) if pre else (16, 76, 104)
    for e2 in range(0 if pre else 2):
        for p in range(4):
            for e in (2 * e2, 2 * e2 + 1):
                a.vmem(f"buffer_load_dword v{R+p*4+e}, v2, s[8:11], s{36+p if p else 26} offen offset:{e*512}", ("L", e2))
    if not LB:
        barrier()
    add64(a, 12, 30, wsoff)
    scale = ("0.5", "0.5", "s35", "s35", "s40")

    def out(seq, c):
        return OUT + (seq * 2 + c) * 2
    for e2 in range(2):
        a.wait(vm=(("L", e2),))
        if extra and e2 == 1:
            extra()
        for c in range(2):
            for p, seq in ((0, 6), (3, 0)):
                a.e(f"v_perm_b32 v{out(seq, c)+e2}, v{R+p*4+2*e2+1}, v{R+p*4+2*e2}, s{32+c}")
            res, lists = [], []
            for e in range(2):
                cf = [T + e * 8 + i for i in range(4)]
                src = [R + (3 - i) * 4 + 2 * e2 + e for i in range(4)]
                ops = [f"v_and_b32 v{d}, s34, v{x}" if c else f"v_lshlrev_b32 v{d}, 16, v{x}" for d, x in zip(cf, src)]
                o, rr = eval_ops(cf, [T + e * 8 + 4 + i for i in range(4)])
                ops += o + [f"v_mul_f32 v{r}, {sc}, v{r}" for r, sc in zip(rr, scale)]
                res.append(rr)
                lists.append(ops)
            for x, y in zip(*lists):
                a.e(x)
                a.e(y)
            for i in range(5):
                a.e(f"v_cvt_pk_bf16_f32 v{out(1+i, c)+e2}, v{res[0][i]}, v{res[1][i]}")
    for seq in (6, 0, 1, 2, 3, 4, 5):
        for d in range(2):
            a.e(f"v_permlane16_swap_b32 v{out(seq, 0)+d}, v{out(seq, 1)+d}")
        a.e(f"s_add_u32 s28, s27, {seq*8192}")
        a.e(f"buffer_store_dwordx4 {vr(out(seq, 0))}, v4, s[12:15], s28 offen{NTW}")


def prep_kernel(name):
    a = Asm()
    NWG = 256
    a.label(name)
    a.e(f"s_cmp_ge_u32 s2, {NWG}")
    a.e(f"s_cbranch_scc1 L_{name}_done")
    CW = os.environ.get("CW", "late")
    CWN = int(os.environ.get("CWN", "32"))

    def code_warm():
        a.e(f"s_cmp_lt_u32 s3, {256 - CWN}")
        a.e(f"s_cbranch_scc1 L_{name}_ncw")
        a.e("s_getpc_b64 s[62:63]")
        a.label(f"L_{name}_pc")
        a.e("s_and_b32 s64, s3, 8")
        a.e("s_lshl_b32 s64, s64, 12")
        a.e("v_lshlrev_b32 v120, 7, v0")
        a.e("v_add_u32 v120, s64, v120")
        a.e(f"v_min_u32 v120, 0x7fc0de00, v120")
        a.e("v_mov_b32 v121, s63")
        a.e("v_add_co_u32 v120, vcc, s62, v120")
        a.e("s_nop 1")
        a.e("v_addc_co_u32 v121, vcc, 0, v121, vcc")
        a.e("global_load_dword v122, v[120:121], off")
        a.label(f"L_{name}_ncw")
        return 0

    def x_warm():
        XW = int(os.environ.get("XW", "0"))
        if XW:
            a.e("s_and_b32 s64, s3, 7")
            a.e("s_lshr_b32 s65, s2, 3")
            a.e("s_lshr_b32 s66, s65, 3")
            a.e("s_lshl_b32 s64, s64, 2")
            a.e("s_add_u32 s64, s64, s66")
            a.e("s_mul_i32 s64, s64, 512000")
            a.e("s_and_b32 s65, s65, 7")
            a.e("s_lshl_b32 s65, s65, 2")
            a.e("s_add_u32 s65, s65, s40")
            a.e("s_lshl_b32 s65, s65, 14")
            a.e("s_add_u32 s64, s64, s65")
            a.e("s_sub_u32 s64, s64, 7680")
            a.e("v_lshrrev_b32 v120, 2, v1")
            a.e("v_lshlrev_b32 v120, 10, v120")
            a.e(f"v_and_b32 v121, {XW - 1}, v1")
            a.e("v_lshl_add_u32 v120, v121, 7, v120")
            a.e("v_add_u32 v120, s64, v120")
            a.e("s_mov_b32 s68, s44")
            a.e("s_mov_b32 s69, s45")
            a.e(f"s_mov_b32 s70, {2*16000*512}")
            a.e("s_mov_b32 s71, 0x00020000")
            a.vmem("buffer_load_dword v123, v120, s[68:71], 0 offen", "XW")
    a.e("s_mov_b32 s3, s2")
    if CW == "early":
        code_warm()
    a.e("s_load_dwordx16 s[44:59], s[0:1], 0")
    a.e("s_load_dwordx2 s[30:31], s[0:1], 72")
    if "stamp" in EXP:
        a.e("s_memrealtime s[60:61]")
    a.e("v_readfirstlane_b32 s40, v0")
    a.e("s_lshr_b32 s40, s40, 6")
    a.e("v_and_b32 v1, 63, v0")
    a.e("s_cmp_lt_u32 s40, 4")
    a.e(f"s_cbranch_scc1 L_{name}_w")
    small_head(a, name)
    a.label(f"L_{name}_w")
    a.e("s_lshl_b32 s21, s2, 2")
    a.e("s_add_u32 s20, s40, s21")
    wprep2(a, 8, WS_W1P, lambda: a.e("s_barrier"), False, code_warm if CW == "late" else None)
    if "stamp" in EXP:
        a.e("s_waitcnt vmcnt(0)")
        a.e("s_memrealtime s[62:63]")
        a.e("s_lshl_b32 s36, s2, 7")
        a.e(f"s_add_u32 s36, s36, {WS_STAMP + 3*0x10000}")
        add64(a, 40, 30, "s36")
        a.e("s_mov_b32 s42, 128")
        a.e("s_mov_b32 s43, 0x00020000")
        a.e("s_waitcnt lgkmcnt(0)")
        a.e("v_mov_b32 v8, 0")
        a.e("v_mov_b32 v0, 1")
        a.e("buffer_store_dword v0, v8, s[40:43], 0 offen")
        for i in range(4):
            a.e(f"v_mov_b32 v0, s{60+i}")
            a.e(f"buffer_store_dword v0, v8, s[40:43], 0 offen offset:{80+4*i}")
    a.label(f"L_{name}_done")
    a.e("s_endpgm")
    small_tail(a, name)
    a.L.insert(len(a.L) - 1, f"L_{name}_last:")
    return a.L, 4096, 128


def conv_kernel(name, cfg):
    TIN, TOUT = cfg["tin"], cfg["tout"]
    N = cfg["nchunk"]
    KSPLIT = cfg["ksplit"]
    NWG = 256
    STAMP = "stamp" in EXP
    sX, sW, sO = 8, 12, 16
    sWv, sT0, sCnt, sBo, sXo, sMask = 20, 21, 22, 23, 24, 25
    sBo2 = 26
    sK, sCb, sH = 28, 29, 32
    sSt = 60
    vL = 127
    vU, vS_, vI, vKG = 8, 9, 10, 11

    a = Asm()
    a.label(name)
    a.e(f"s_cmp_ge_u32 s2, {NWG}")
    a.e(f"s_cbranch_scc1 L_{name}_done")

    def stamp(i, fence=True):
        if STAMP:
            a.e(f"s_memtime s[{sSt+2*i}:{sSt+2*i+1}]")
            if fence:
                a.e("s_waitcnt lgkmcnt(0)")
                a.lg = []

    def rstamp(i):
        if STAMP:
            a.e(f"s_memrealtime s[{sSt+2*i}:{sSt+2*i+1}]")
            a.e("s_waitcnt lgkmcnt(0)")
            a.lg = []
    if STAMP:
        for i in range(28):
            a.e(f"s_mov_b32 s{sSt+i}, 0")
        a.e(f"s_memrealtime s[{sSt+20}:{sSt+21}]")
    stamp(0, False)
    a.e(f"s_load_dwordx2 s[4:5], s[0:1], {cfg['in_arg']}")
    a.e("s_load_dwordx2 s[30:31], s[0:1], 72")
    a.e(f"v_readfirstlane_b32 s{sWv}, v0")
    a.e(f"s_lshr_b32 s{sWv}, s{sWv}, 6")
    if os.environ.get("WX", "8") != "0":
        a.e(f"s_xor_b32 s{sWv}, s{sWv}, {os.environ.get('WX', '8')}")
    XL = int((os.environ.get("XL", "33") * 2)[int(KSPLIT)])
    a.e(f"s_and_b32 s36, s2, {(8 >> XL) - 1}")
    a.e(f"s_lshl_b32 s36, s36, {XL}")
    a.e(f"s_bfe_u32 s37, s2, {(XL << 16) | 3}")
    a.e(f"s_or_b32 s{sCb}, s36, s37")
    a.e(f"s_bfe_u32 s36, s2, {(XL << 16) | (3 - XL)}")
    a.e(f"s_lshl_b32 s36, s36, {5 - XL}")
    a.e(f"s_lshr_b32 s37, s2, {3 + XL}")
    a.e("s_or_b32 s36, s36, s37")
    if KSPLIT:
        if LOCAL:
            a.e("s_and_b32 s33, s36, 1")
            a.e("s_bfe_u32 s34, s36, 0x30001")
            a.e("s_lshr_b32 s35, s36, 4")
        else:
            a.e("s_lshr_b32 s33, s36, 4")
            a.e("s_and_b32 s34, s36, 7")
            a.e("s_bfe_u32 s35, s36, 0x10003")
    else:
        a.e("s_mov_b32 s33, 0")
        a.e("s_and_b32 s34, s36, 15")
        a.e("s_lshr_b32 s35, s36, 4")
    a.e(f"s_mul_i32 s{sT0}, s34, 500")
    a.e(f"s_and_b32 s{sH}, s{sWv}, 3")
    a.e(f"v_and_b32 v{vL}, 63, v0")
    a.e(f"v_lshrrev_b32 v5, 2, v{vL}")
    a.e(f"v_and_b32 v6, 3, v{vL}")
    a.e(f"s_and_b32 s42, s{sWv}, 7")
    if not KSPLIT:
        a.e("v_lshlrev_b32 v7, 15, v5")
        a.e("v_lshl_add_u32 v7, v6, 4, v7")
        a.e(f"s_lshl_b32 s41, s{sT0}, 10")
        a.e("s_sub_u32 s41, s41, 7680")
        a.e("s_lshl_b32 s37, s42, 12")
        a.e("s_add_u32 s37, s37, s41")
        a.e("v_add_u32 v7, s37, v7")
        a.e(f"s_mul_i32 s36, s35, {TIN*512}")
        a.e(f"s_mov_b32 s{sX+2}, {TIN*512}")
    else:
        a.e(f"s_lshr_b32 s41, s{sT0}, 2")
        a.e("s_sub_u32 s41, s41, 1")
        a.e("s_add_u32 s37, s41, s42")
        a.e("v_lshl_add_u32 v7, v5, 3, s37")
        a.e(f"s_mul_i32 s36, s35, {32*PLH}")
        a.e(f"s_add_u32 s36, s36, {cfg['in_off']}")
        a.e(f"s_mov_b32 s{sX+2}, {32*PLH}")

    def haddr(dst, vG, vlane, p, t):
        a.e(f"s_add_u32 s37, s33, {2*p - 7 & 0xffffffff}")
        a.e(f"v_lshl_add_u32 v{t}, v{vG}, 3, s37")
        a.e(f"v_cmp_gt_u32 vcc, {TIN}, v{t}")
        a.e(f"s_mul_i32 s37, s33, {PLH}")
        a.e(f"s_add_u32 s37, s37, {(2*p & 3)*PLH + (p >> 1)*64}")
        a.e(f"v_lshl_add_u32 v{dst}, v{vG}, 7, s37")
        a.e(f"v_add_u32 v{dst}, v{dst}, v{vlane}")
        a.e(f"v_mov_b32 v{t}, {OOB}")
        a.e(f"v_cndmask_b32 v{dst}, v{t}, v{dst}, vcc")
    a.e(f"s_mov_b32 s{sX+3}, 0x00020000")
    a.e(f"s_mov_b32 s{sMask}, 0xffff0000")
    a.e("s_mov_b32 s47, s36")

    def kwait():
        a.e("s_waitcnt lgkmcnt(0)")
        stamp(1)
        add64(a, sX, 4, "s47")
    OB = 512

    def wsrd():
        a.e(f"s_lshl_b32 s36, s{sCb}, 4")
        a.e("s_lshl_b32 s37, s33, 3")
        a.e("s_add_u32 s36, s36, s37")
        a.e(f"s_mul_i32 s36, s36, {CHUNKB}")
        a.e(f"s_add_u32 s36, s36, {cfg['w_off']}")
        add64(a, sW, 30, "s36")
        a.e(f"s_mov_b32 s{sW+2}, {N*CHUNKB}")
        a.e(f"s_mov_b32 s{sW+3}, 0x00020000")

    def lds_throttle(need=1):
        if len(a.lg) + need > 15:
            a.e("s_waitcnt lgkmcnt(8)")
            a.lg = a.lg[-8:]

    def mf(acc, b, av):
        if "nomfma" not in EXP:
            a.e(f"v_mfma_f32_16x16x32_bf16 {vr(acc)}, {vr(b)}, {vr(av)}, {vr(acc)}")

    def steady(gen, per, strict=True):
        st = []
        for it in range(3):
            st.append(len(a.L))
            for pos in range(per):
                gen(per * it + pos, pos)
        st.append(len(a.L))
        bodies = [a.L[st[i]:st[i + 1]] for i in range(3)]
        if strict:
            assert bodies[1] == bodies[2], "loop not steady"
            assert bodies[0] == bodies[1], "loop entry not steady"
        del a.L[st[0]:]
        return bodies[1]

    a.e(f"s_cmp_ge_u32 s{sWv}, 8")
    a.e(f"s_cbranch_scc1 L_{name}_helper")

    ACC = 0
    vF, vA8, vD, vB = (120, 121), 122, (123, 124), 125
    vP = (116, 117, 118)
    vBZ = 119
    S, T, O = 96, 108, 64
    if not KSPLIT:
        a.e(f"s_add_u32 s37, s41, {128*4096}")
        a.e(f"v_lshl_add_u32 v{T}, v{vL}, 4, s37")
        for p in range(1, 3):
            a.e(f"v_add_u32 v{T+p}, {p*1024}, v{T}")
    else:
        a.e("s_add_u32 s37, s41, 128")
        a.e("v_mov_b32 v16, s37")
        a.e(f"v_mul_u32_u24 v17, {4*PLH}, v5")
        a.e("v_lshl_add_u32 v17, v6, 4, v17")
        for p in range(3):
            haddr(T + p, 16, 17, p, 18)
    kwait()
    wsrd()
    PLO = PLF if KSPLIT else PLH
    a.e(f"s_mul_i32 s36, s35, {32*PLO}")
    a.e(f"s_add_u32 s36, s36, {cfg['out_off']}")
    if KSPLIT:
        a.e(f"s_mul_i32 s37, s33, {WS_FPS}")
        a.e("s_add_u32 s36, s36, s37")
    add64(a, sO, 30, "s36")
    a.e(f"s_mov_b32 s{sO+2}, {32*PLO}")
    a.e(f"s_mov_b32 s{sO+3}, 0x00020000")
    a.e(f"v_and_b32 v{vI}, 15, v{vL}")
    a.e(f"v_lshrrev_b32 v{vKG}, 4, v{vL}")
    t = 16
    for d, sh in ((vU, 0), (vS_, 1)):
        a.e(f"v_add_u32 v{d}, {sh}, v{vI}")
        a.e(f"v_and_b32 v{t}, 4, v{d}")
        a.e(f"v_lshrrev_b32 v{t}, 1, v{t}")
        a.e(f"v_xor_b32 v{t}, v{vKG}, v{t}")
        a.e(f"v_lshlrev_b32 v{t}, 4, v{t}")
        a.e(f"v_lshl_add_u32 v{d}, v{d}, 6, v{t}")
    a.e(f"s_lshr_b32 s38, s{sH}, 1")
    a.e(f"s_and_b32 s39, s{sH}, 1")
    a.e("s_add_u32 s40, s38, 4")
    a.e("s_lshl_b32 s43, s39, 10")
    a.e(f"s_cmp_lt_u32 s{sWv}, 4")
    a.e(f"s_cselect_b32 s40, s{sWv}, s40")
    a.e("s_cselect_b32 s36, 0, s43")
    a.e("s_lshl_b32 s37, s40, 13")
    a.e("s_add_u32 s37, s37, s36")
    a.e(f"v_lshl_add_u32 v{vB}, v{vL}, 4, s37")
    a.e(f"s_mul_i32 s37, s40, {SEQB}")
    a.e(f"v_add_u32 v{vF[0]}, s37, v{vU}")
    a.e(f"v_add_u32 v{vF[1]}, s37, v{vS_}")
    a.e("s_lshl_b32 s37, s40, 10")
    a.e(f"s_add_u32 s37, s37, {SPB}")
    a.e(f"v_lshl_add_u32 v{t}, v{vKG}, 4, s37")
    a.e(f"v_cmp_eq_u32 vcc, 15, v{vI}")
    a.e(f"v_mov_b32 v{t+1}, {BB}")
    a.e(f"v_mov_b32 v{t+2}, {-BB & 0xffffffff}")
    a.e(f"v_mov_b32 v{t+3}, 64")
    a.e(f"v_cndmask_b32 v{vA8}, v{vF[1]}, v{t}, vcc")
    a.e(f"v_cndmask_b32 v{vD[0]}, v{t+1}, v{t+3}, vcc")
    a.e(f"v_cndmask_b32 v{vD[1]}, v{t+2}, v{t+3}, vcc")
    a.e(f"v_lshl_add_u32 v126, v{vL}, 4, s37")
    tabs = {44: (1.0, 1.0, 1.0, 1.0, 1.0, 16.0), 45: (0.0, 1.0, -1.0, 2.0, -2.0, 8.0),
            46: (0.0, 1.0, 1.0, 4.0, 4.0, 4.0)}
    for sg, tab in tabs.items():
        a.e(f"s_mov_b32 s{sg}, {f32hex(tab[0])}")
    for q in range(1, 6):
        a.e(f"s_cmp_eq_u32 s40, {q}")
        for sg, tab in tabs.items():
            if tab[q] != tab[0]:
                a.e(f"s_cselect_b32 s{sg}, {f32hex(tab[q])}, s{sg}")

    def special_rows():
        a.wait(vm=("SP",))
        for d in range(4):
            for p in range(3):
                a.e(f"v_lshlrev_b32 v{T+p}, 16, v{S+4*p+d}")
                a.e(f"v_and_b32 v{T+3+p}, s{sMask}, v{S+4*p+d}")
            for h in range(2):
                a.e(f"v_mul_f32 v{T+6+h}, s44, v{T+3*h}")
            for h in range(2):
                a.e(f"v_fmac_f32 v{T+6+h}, s45, v{T+3*h+1}")
            for h in range(2):
                a.e(f"v_fmac_f32 v{T+6+h}, s46, v{T+3*h+2}")
            a.e(f"v_cvt_pk_bf16_f32 v{S+d}, v{T+6}, v{T+7}")
        a.e(f"ds_write_b128 v126, {vr(S)}")

    def own_read(k, g, reg, tag, last=False):
        if g == 8:
            base, off = vA8, 0
        else:
            base, off = vF[g >> 3], (k & 1) * BB + (g & 7) * FB
        a.lds(f"ds_read_b128 {vr(reg)}, v{base} offset:{off}", tag)
        if g == 8 and not last:
            a.e(f"v_add_u32 v{vA8}, v{vD[k & 1]}, v{vA8}")

    UNIT = [(s * SEQB, s * SEQB + BB) for s in range(4)] + [(4 * SEQB, TOPB), (5 * SEQB, TOPB + 8192),
            (6 * SEQB, TOPB + 16384), (TOPB + 24576, TOPB + 32768)]
    EA = 96
    ES = []
    R0 = (120, 121, 64)
    vO, vBW = 122, 127
    BND = SPB
    t0, t1, t2, t3 = 108, 109, 110, 111
    ES.append(f"v_and_b32 v{t0}, 15, v{vL}")
    ES.append(f"v_lshrrev_b32 v{t1}, 4, v{vL}")
    ES.append(f"v_lshrrev_b32 v{t2}, 3, v{t0}")
    ES.append(f"s_lshl_b32 s36, s{sWv}, 1")
    ES.append(f"v_add_u32 v{t2}, s36, v{t2}")
    ES.append(f"v_xor_b32 v{t3}, v{t2}, v{t0}")
    ES.append(f"v_and_b32 v{t3}, 7, v{t3}")
    ES.append(f"v_lshlrev_b32 v{t3}, 4, v{t3}")
    ES.append(f"v_lshl_add_u32 v{t3}, v{t2}, 7, v{t3}")
    ES.append(f"v_lshl_add_u32 v{R0[0]}, v{t1}, 11, v{t3}")
    ES.append(f"v_add_u32 v{R0[1]}, 65536, v{R0[0]}")
    ES.append(f"v_add_u32 v{R0[2]}, 131072, v{R0[0]}")
    ES.append(f"s_lshl_b32 s36, s{sWv}, 9")
    ES.append(f"s_add_u32 s36, s36, {BND}")
    ES.append(f"v_lshl_add_u32 v{vBW}, v{t1}, 7, s36")
    ES.append(f"s_lshl_b32 s36, s{sWv}, 4")
    ES.append(f"v_add_u32 v{t0}, s36, v{t0}")
    ES.append(f"v_lshlrev_b32 v{t2}, 6, v{t0}")
    ES.append(f"v_lshl_add_u32 v{t2}, v{t1}, 4, v{t2}")
    ES.append(f"s_mul_i32 s36, s{sCb}, {4*PLO}")
    ES.append(f"s_lshl_b32 s37, s{sT0}, 4")
    ES.append("s_add_u32 s36, s36, s37")
    ES.append(f"v_add_u32 v{t2}, s36, v{t2}")
    ES.append(f"v_mov_b32 v{t3}, {OOB}")
    ES.append(f"v_cmp_gt_u32 vcc, 125, v{t0}")
    k0 = -2.0 * 1.4426950408889634 * 0.7978845608028654
    consts = [-1.0 / 3, 0.25, -5.0, -32.0 / 9, -8.0 / 9, -2.0 / 9, -1.0 / 18, 17.0 / 9, -2.0 / 3, 0.4, -1.0 / 15, -0.2,
              k0 * 0.044715, 1.0]
    KS = [4, 6, 8, 10, 12, 14, 22, 24, 26, 32, 34, 38, 40, 42]
    for sg, cv in zip(KS, consts):
        ES.append(f"s_mov_b32 s{sg}, {f32hex(cv)}")
        ES.append(f"s_mov_b32 s{sg+1}, s{sg}")

    def ex_addr(sbase):
        a.e(f"v_and_b32 v{EA}, 15, v{vL}")
        a.e(f"v_and_b32 v{EA+1}, 7, v{vL}")
        a.e(f"v_lshlrev_b32 v{EA+1}, 4, v{EA+1}")
        a.e(f"v_lshl_add_u32 v{EA}, v{EA}, 7, v{EA+1}")
        a.e(f"v_lshrrev_b32 v{EA+1}, 4, v{vL}")
        a.e(f"v_lshl_add_u32 v{EA}, v{EA+1}, 11, v{EA}")
        a.e(f"v_add_u32 v{EA}, s{sbase}, v{EA}")
        for f in range(1, 8):
            a.e(f"v_xor_b32 v{EA+f}, {f << 4}, v{EA}")

    def mwave(role):
        if role == 1:
            BR, AR, NR = 64, 96, 6
            steps = [("X", g) for g in range(11)]
        else:
            BR, AR, NR = 64, 88, 7
            steps = []
            for g in range(11):
                steps.append(("Y", g))
                if 1 <= g <= 9:
                    steps.append(("Z", g - 1))
        NS = len(steps)

        def bload(k, kind, q):
            if "nob" in EXP and k > 0:
                return
            so = sBo2 if q >> 1 else sBo
            if kind == "X":
                for c in range(2):
                    a.vmem(f"buffer_load_dwordx4 {vr(BR+(q*2+c)*4)}, v{vB}, {sr(sW)}, s{so} offen "
                           f"offset:{(q&1)*2048 + c*1024}", ("B", k, kind, q))
            elif kind == "Y":
                a.vmem(f"buffer_load_dwordx4 {vr(BR+q*4)}, v{vB}, {sr(sW)}, s{so} offen offset:{(q&1)*2048}",
                       ("B", k, kind, q))
            else:
                a.vmem(f"buffer_load_dwordx4 {vr(BR+16+q*4)}, v{vBZ}, {sr(sW)}, s{sBo} offen offset:{q*2048}",
                       ("B", k, kind, q))

        def rd(k, n, last=False):
            kind, g = steps[n]
            reg = AR + 4 * (n % NR)
            if kind == "Z":
                base, off = (vP[0], g * FB6) if g < 6 else (vP[1], (g - 6) * FB6) if g < 8 else (vP[2], 0)
                a.lds(f"ds_read_b128 {vr(reg)}, v{base} offset:{(k & 1)*BB6 + off}", ("A", k, n))
            else:
                own_read(k, g, reg, ("A", k, n), last)

        for i in range(64):
            a.e(f"v_mov_b32 v{ACC+i}, 0")
        if "b0" in EXP:
            a.e("s_barrier")
        for p in range(3):
            a.vmem(f"buffer_load_dwordx4 {vr(S+4*p)}, v{T+p}, {sr(sX)}, 0 offen", "SP")
        a.e(f"s_mov_b32 s{sBo}, 0")
        a.e(f"s_mov_b32 s{sBo2}, 4096")
        for st in steps:
            if st and st[1] >= 7:
                bload(0, st[0], st[1] - 7)
        a.e(f"s_mov_b32 s{sBo}, {CHUNKB}")
        a.e(f"s_mov_b32 s{sBo2}, {CHUNKB + 4096}")
        SPL = os.environ.get("SPL", "0") == "1"
        if not SPL:
            special_rows()
        if role == 2:
            a.e(f"v_and_b32 v{T+3}, 15, v{vL}")
            a.e(f"v_lshlrev_b32 v{T+3}, 2, v{T+3}")
            a.e(f"v_add_u32 v{T+3}, {6*SEQB + 1024}, v{T+3}")
            a.e(f"ds_write_b32 v{T+3}, v{ACC}")
            a.e(f"ds_write_b32 v{T+3}, v{ACC} offset:{BB6}")
        a.e("s_waitcnt lgkmcnt(0)")
        a.e("s_barrier")
        if SPL:
            a.e("s_setprio 3")
            special_rows()
            a.e("s_waitcnt lgkmcnt(0)")
        stamp(7)
        rstamp(12)
        a.e(f"s_mov_b32 s{sCnt}, {N//2}")
        a.e(f"s_setprio {os.environ.get(f'PM{role}', '2')}")

        CO = int(os.environ.get(f"CO{role}", "0" if role == 1 else "5"))
        assert CO < NR
        FM = int("fmaj" in EXP)
        vE = (vD[0], vD[1])

        def period(k, _, last=False):
            if "mst" in EXP and _ == 0:
                stamp(2)
            if "bst" in EXP and _ == 1 and not last:
                a.e("s_memtime s[90:91]")
                a.e("s_waitcnt vmcnt(0) lgkmcnt(0)")
                a.e("s_memtime s[92:93]")
                a.e("s_waitcnt lgkmcnt(0)")
                a.e("s_sub_u32 s92, s92, s90")
                a.e(f"s_add_u32 s{sSt+4}, s{sSt+4}, s92")
                a.e(f"s_max_u32 s{sSt+6}, s{sSt+6}, s92")
                a.vm = []
            for n in range(NR):
                rd(k, n, last)
            pend = []
            fill = []

            def flush(n, cnt):
                while pend and pend[0][0] <= n and cnt > 0:
                    _, h, f = pend.pop(0)
                    t = vE[(h + f) & 1]
                    a.e(f"v_xor_b32 v{t}, {f << 4}, v{vX0[h]}")
                    lds_throttle()
                    a.lds(f"ds_write_b128 v{t}, {vr(ACC + h*32 + f*4)}", "E")
                    cnt -= 1
                    for _i in range(min(12, len(fill))):
                        a.e(fill.pop(0))

            for n, st in enumerate(steps):
                if CO and n == NS - CO and not last:
                    a.wait(lg_all=True)
                    if "mst" in EXP and _ == 0:
                        stamp(3)
                    a.e("s_barrier")
                    if "mst" in EXP and _ == 0:
                        stamp(4)
                kind, g = st
                nt = 2 if kind == "Z" else 4
                qs = [q for q in range(nt) if 0 <= g - q <= 7]
                if FM and kind == "X":
                    if g >= 3:
                        f = g - 3
                        for c in range(2):
                            for q in range(4):
                                a.wait(lg=(("A", k, f + q),), vm=(("B", k, kind, q),))
                                mf(ACC + 32 * c + f * 4, BR + q * 8 + 4 * c, AR + 4 * ((f + q) % NR))
                        if f + NR < NS:
                            rd(k, f + NR, last)
                        if g == 10 and not last:
                            for q in range(4):
                                bload(k + 1, kind, q)
                    qs = []
                else:
                    a.wait(lg=(("A", k, n),), vm=tuple(("B", k, kind, q) for q in qs))
                reg = AR + 4 * (n % NR)
                for q in qs:
                    f = g - q
                    if kind == "X":
                        mf(ACC + f * 4, BR + q * 8, reg)
                        mf(ACC + 32 + f * 4, BR + q * 8 + 4, reg)
                    elif kind == "Y":
                        mf(ACC + f * 4, BR + q * 4, reg)
                    else:
                        mf(ACC + 32 + f * 4, BR + 16 + q * 4, reg)
                if g >= 7 and not last and not (FM and kind == "X"):
                    bload(k + 1, kind, g - 7)
                if n + NR < NS and not (FM and kind == "X"):
                    rd(k, n + NR, last)
                if last:
                    flush(n, int(os.environ.get('FL', '2')))
                    f = g - (nt - 1)
                    if f >= 0:
                        if kind == "X":
                            pend.append((n + 1, 0, f))
                            pend.append((max(n + 1, NS - NR + 1 + 3 * FM), 1, f))
                            pend.sort()
                        else:
                            pend.append((n + 3, 0 if kind == "Y" else 1, f))
                    if kind == "X" and n == NS - NR + 3 * FM:
                        a.wait(lg=(("A", k, NS - 1),))
            if last:
                fill += ES
                for _i in range(8):
                    a.e(fill.pop(0))
                flush(1000, 1000)
                for op in fill:
                    a.e(op)
                return
            a.e(f"s_add_u32 s{sBo}, s{sBo}, {CHUNKB}")
            a.e(f"s_add_u32 s{sBo2}, s{sBo2}, {CHUNKB}")
            assert not a.lg
            if "mst" in EXP and _ == 0:
                stamp(5)
            if not CO:
                a.e("s_barrier")
            if "mst" in EXP and _ == 0:
                stamp(6)

        def period2(k, pos):
            if pos == 1:
                a.e(f"s_sub_u32 s{sCnt}, s{sCnt}, 1")
                a.e(f"s_cmp_eq_u32 s{sCnt}, 0")
                a.e(f"s_cbranch_scc1 L_{name}_mlast{role}")
                state[0] = (list(a.vm), k)
            period(k, pos)

        state = [None]
        body = steady(period2, 2, "nob" not in EXP)
        if "nob" in EXP:
            a.e("s_waitcnt vmcnt(0)")
        a.label(f"L_{name}_mloop{role}")
        a.L.extend(body)
        a.e(f"s_branch L_{name}_mloop{role}")
        a.label(f"L_{name}_mlast{role}")
        a.vm, a.lg = state[0][0], []
        vX0 = (vB, 126)
        a.e(f"v_and_b32 v{vX0[0]}, 15, v{vL}")
        a.e(f"v_and_b32 v{vX0[1]}, 7, v{vL}")
        a.e(f"v_lshlrev_b32 v{vX0[1]}, 4, v{vX0[1]}")
        a.e(f"v_lshl_add_u32 v{vX0[0]}, v{vX0[0]}, 7, v{vX0[1]}")
        a.e(f"v_lshrrev_b32 v{vX0[1]}, 4, v{vL}")
        a.e(f"v_lshl_add_u32 v{vX0[0]}, v{vX0[1]}, 11, v{vX0[0]}")
        if role == 1:
            a.e(f"s_lshl_b32 s36, s{sWv}, 14")
            a.e("s_add_u32 s37, s36, 8192")
        else:
            for sg, tab in ((36, [UNIT[4 + (h >> 1)][h & 1] for h in range(4)]),
                            (37, [UNIT[6 + (h >> 1)][h & 1] for h in range(4)])):
                a.e(f"s_mov_b32 s{sg}, {tab[0]}")
                for h in range(1, 4):
                    a.e(f"s_cmp_eq_u32 s{sH}, {h}")
                    a.e(f"s_cselect_b32 s{sg}, {tab[h]}, s{sg}")
        a.e(f"v_add_u32 v{vX0[1]}, s37, v{vX0[0]}")
        a.e(f"v_add_u32 v{vX0[0]}, s36, v{vX0[0]}")
        if os.environ.get(f"PL{role}"):
            a.e(f"s_setprio {os.environ.get(f'PL{role}')}")
        period(state[0][1], 1, True)
        stamp(8, False)
        rstamp(13)
        a.e("s_setprio 0")
        a.vm, a.lg = [], []

    a.e(f"s_cmp_ge_u32 s{sWv}, 4")
    a.e(f"s_cbranch_scc1 L_{name}_m2")
    vm0 = list(a.vm)
    mwave(1)
    a.e(f"s_branch L_{name}_epi")
    a.label(f"L_{name}_m2")
    a.vm, a.lg = list(vm0), []
    a.e(f"s_mul_i32 s37, s38, {2*FB6}")
    a.e(f"s_add_u32 s37, s37, {6*SEQB}")
    a.e(f"v_add_u32 v{vP[0]}, s37, v{vU}")
    a.e(f"v_add_u32 v{vP[2]}, s37, v{vS_}")
    a.e(f"v_add_u32 v{vP[1]}, {6*SEQB + 6*FB6}, v{vU}")
    a.e("s_cmp_eq_u32 s38, 0")
    a.e(f"s_cbranch_scc1 L_{name}_hh0")
    a.e(f"v_add_u32 v{vP[1]}, {6*SEQB}, v{vS_}")
    a.label(f"L_{name}_hh0")
    a.e("s_lshl_b32 s37, s38, 12")
    a.e("s_add_u32 s37, s37, s43")
    a.e(f"s_add_u32 s37, s37, {6*8192}")
    a.e(f"v_lshl_add_u32 v{vBZ}, v{vL}, 4, s37")
    mwave(2)
    a.e(f"s_branch L_{name}_epi")

    a.label(f"L_{name}_helper")
    a.vm, a.lg = [], []
    a.e("s_setprio 3")
    PB = (0, 32)
    XO = 64
    TMP = 76
    vX = 92
    vW = (96, 97, 98)

    def praw(b, half, p):
        return PB[b] + half * 16 + p * 4

    sXo2 = 27

    def xload(pair, p):
        if KSPLIT:
            half, q = p >> 1, p & 1
            for r in (q, q + 2):
                a.vmem(f"buffer_load_dwordx4 {vr(praw(pair & 1, half, r))}, v{vX+r}, {sr(sX)}, "
                       f"s{sXo2 if half else sXo} offen", ("X", pair))
            return
        for half in range(2):
            a.vmem(f"buffer_load_dwordx4 {vr(praw(pair & 1, half, p))}, v{vX+p}, {sr(sX)}, "
                   f"s{sXo} offen offset:{half*64}", ("X", pair))
        a.e(f"v_add_u32 v{vX+p}, 128, v{vX+p}")

    def uregs(chunk):
        return [praw((chunk >> 1) & 1, chunk & 1, p) for p in range(4)]

    def wr(chunk, i):
        if "nowr" in EXP:
            return
        u = uregs(chunk)
        reg, seq = [(XO, 3), (XO + 4, 4), (XO + 8, 5), (u[0], 0), (u[1], 1), (u[2], 2), (u[3], 6)][i]
        lds_throttle()
        if seq == 6:
            a.lds(f"ds_write_b128 v{vW[2]}, {vr(reg)} offset:{(chunk & 1)*BB6}", "W")
        else:
            a.lds(f"ds_write_b128 v{vW[seq >> 2]}, {vr(reg)} offset:{(seq & 3)*SEQB + (chunk & 1)*BB}", "W")

    def tr_ops(chunk):
        u = uregs(chunk)
        o = [u[1], u[2], XO, XO + 4, XO + 8]
        ops = []
        for d in range(4):
            lo = [TMP + p for p in range(4)]
            hi = [TMP + 8 + p for p in range(4)]
            for p in range(4):
                ops.append(f"v_lshlrev_b32 v{lo[p]}, 16, v{u[p]+d}")
                ops.append(f"v_and_b32 v{hi[p]}, s{sMask}, v{u[p]+d}")
            o1, r1 = eval_ops(lo, [TMP + 4 + i for i in range(4)])
            o2, r2 = eval_ops(hi, [TMP + 12 + i for i in range(4)])
            for x, y in zip(o1, o2):
                ops += [x, y]
            for i in range(5):
                ops.append(f"v_cvt_pk_bf16_f32 v{o[i]+d}, v{r1[i]}, v{r2[i]}")
        if "notr" in EXP:
            ops = ["s_nop 0"] * 8
        return ops

    if KSPLIT:
        a.e("v_lshlrev_b32 v8, 4, v6")
    for p in range(4):
        if KSPLIT:
            haddr(vX + p, 7, 8, p, 9)
        else:
            a.e(f"v_add_u32 v{vX+p}, {p*1024}, v7")
    a.e(f"v_and_b32 v{TMP}, 4, v5")
    a.e(f"v_lshrrev_b32 v{TMP}, 1, v{TMP}")
    a.e(f"v_xor_b32 v{TMP}, v6, v{TMP}")
    a.e(f"v_lshlrev_b32 v{TMP}, 4, v{TMP}")
    a.e(f"v_lshl_add_u32 v{TMP}, v5, 6, v{TMP}")
    a.e(f"s_mov_b32 s{sXo}, 0")
    a.e(f"s_mov_b32 s{sXo2}, {4*PLH}")
    kwait()
    stamp(2)
    P0 = os.environ.get("P0", "0")
    if P0 == "0" or KSPLIT:
        for p in range(4):
            xload(0, p)
            if p == 1 and P0 == "2":
                a.e("s_barrier")
    else:
        for half in range(2):
            for p in range(4):
                a.vmem(f"buffer_load_dwordx4 {vr(praw(0, half, p))}, v{vX+p}, {sr(sX)}, s{sXo} offen offset:{half*64}", ("X", 0))
            if half == 0 and P0 == "2":
                a.e("s_barrier")
        for p in range(4):
            a.e(f"v_add_u32 v{vX+p}, 128, v{vX+p}")
    if P0 != "2" and "b0" in EXP:
        a.e("s_barrier")
    a.e(f"s_mul_i32 s36, s42, {FB}")
    a.e(f"v_add_u32 v{vW[0]}, s36, v{TMP}")
    a.e(f"v_add_u32 v{vW[1]}, {4*SEQB}, v{vW[0]}")
    a.e(f"s_mul_i32 s36, s42, {FB6}")
    a.e(f"s_add_u32 s36, s36, {6*SEQB}")
    a.e(f"v_add_u32 v{vW[2]}, s36, v{TMP}")
    stamp(3)
    a.e(f"s_waitcnt vmcnt({0 if P0 == '0' else 4})")
    stamp(4)
    a.e(f"s_mov_b32 s{sK}, 0")
    a.e(f"s_mov_b32 s{sCnt}, {N//4}")
    a.e(f"s_cmp_ge_u32 s{sWv}, 12")
    a.e(f"s_cbranch_scc1 L_{name}_h2")

    def hwave(role):
        SH = 33 * int(os.environ.get(f"SH{role}", "0" if role == 1 else "4"))
        ahead = 2 if SH else 1
        a.vm, a.lg = [], []
        if role == 2 and not KSPLIT:
            a.e("s_load_dwordx2 s[48:49], s[0:1], 16")
        wr(0, 3)
        wr(0, 6)
        for op in tr_ops(0):
            a.e(op)
        for i in (0, 1, 2, 4, 5):
            wr(0, i)
        a.e("s_waitcnt vmcnt(0)")
        W2E = role == 2 and not KSPLIT and os.environ.get("W2", "3") == "3"
        NF = int(os.environ.get("NF", "2"))
        if KSPLIT:
            a.e(f"s_mov_b32 s{sXo}, {8*PLH}")
            a.e(f"s_mov_b32 s{sXo2}, {12*PLH}")
        X1 = os.environ.get("X1", "1")
        if X1 == "0":
            for p in range(4 if SH else NF):
                xload(1, p)
        stamp(5)
        a.wait(lg_all=True)
        stamp(6)
        a.e("s_barrier")
        stamp(7)
        rstamp(12)
        if X1 == "1":
            for p in range(4 if SH else NF):
                xload(1, p)
        PA, PB_ = os.environ.get(f'PH{role}', '11' if role == 1 else '00')
        a.e(f"s_setprio {PA}")
        for op in tr_ops(1)[:SH]:
            a.e(op)
        if W2E:
            a.e("s_lshr_b32 s52, s2, 6")
            a.e("s_lshl_b32 s52, s52, 3")
            a.e("s_bfe_u32 s36, s2, 0x10005")
            a.e("s_add_u32 s52, s52, s36")
            a.e("s_lshl_b32 s52, s52, 17")
            a.e("s_bfe_u32 s36, s2, 0x30002")
            a.e("s_lshl_b32 s36, s36, 1")
            a.e(f"s_and_b32 s37, s{sH}, 1")
            a.e("s_add_u32 s36, s36, s37")
            a.e("s_lshl_b32 s36, s36, 13")
            a.e("s_add_u32 s52, s52, s36")
            a.e("s_and_b32 s36, s2, 3")
            a.e("s_lshl_b32 s36, s36, 1")
            a.e(f"s_lshr_b32 s37, s{sH}, 1")
            a.e("s_add_u32 s36, s36, s37")
            a.e("s_lshl_b32 s36, s36, 6")
            a.e("s_add_u32 s52, s52, s36")
            a.e(f"s_mov_b32 s50, {31*131072}")
            a.e("s_mov_b32 s51, 0x00020000")
            a.e(f"v_lshrrev_b32 v99, 4, v{vL}")
            a.e("v_lshlrev_b32 v99, 11, v99")
            a.e(f"v_and_b32 v100, 15, v{vL}")
            a.e("v_lshl_add_u32 v99, v100, 2, v99")

        def w2load(pos):
            a.e(f"s_cmp_lg_u32 s{sCnt}, {os.environ.get('W2I', '3')}")
            a.e(f"s_cbranch_scc1 L_{name}_w2s{pos}")
            for e in range(4):
                a.e(f"buffer_load_dword v{100+pos*4+e}, v99, s[48:51], s52 offen offset:{e*512}")
            a.e(f"s_add_u32 s52, s52, {2*131072}")
            a.label(f"L_{name}_w2s{pos}")
        VPF = int(os.environ.get("VPF", "0")) if role == 1 and not KSPLIT and XL == 3 else 0
        if VPF:
            a.e(f"s_lshl_b32 s36, s{sCb}, 6")
            a.e(f"s_lshl_b32 s37, s{sH}, 3")
            a.e("s_add_u32 s36, s36, s37")
            a.e("s_lshl_b32 s36, s36, 10")
            a.e("s_add_u32 s36, s36, s41")
            a.e(f"s_add_u32 s36, s36, {VPF*128}")
            a.e(f"v_and_b32 v100, 7, v{vL}")
            a.e("v_lshl_add_u32 v100, v100, 10, s36")

        def vpf(k):
            a.e(f"s_cmp_lt_u32 s{sK}, {N - 2*VPF}")
            a.e(f"s_cselect_b32 s36, 0, {OOB}")
            a.vmem(f"buffer_load_dword v99, v100, {sr(sX)}, s36 offen", "PF")
            a.e(f"v_add_u32 v100, {(128 - 32768) & 0xffffffff if k & 1 else 32768}, v100")
        XP = [float(x) for x in os.environ.get(f"XP{role}", "0,0,0,0" if SH else "0.3,0.7,0.1,0.5").split(",")]

        def period(k, pos, last=False):
            pair = (k >> 1) + 2 if SH else (k + 3) >> 1
            first = not (k & 1) if SH else (k & 1)
            if pos == 4 - ahead and not last:
                a.e(f"s_cmp_eq_u32 s{sCnt}, 1")
                a.e(f"s_cbranch_scc1 L_{name}_hlast{role}")
            if "hst" in EXP and pos == 1:
                stamp(2)
            V1 = tr_ops(k + 1)[SH:]
            V2 = [] if last else tr_ops(k + 2)[:SH]
            V = V1 + V2
            n = len(V)
            ev = {}

            def at(i, f):
                ev.setdefault(max(0, min(int(i), n)), []).append(f)

            def stores():
                if "hst" in EXP and pos == 1:
                    stamp(3)
                for i in range(7):
                    wr(k + 1, i)
                if "hst" in EXP and pos == 1:
                    stamp(4)
                if PA != PB_:
                    a.e(f"s_setprio {PB_}")
            if PA != PB_:
                a.e(f"s_setprio {PA}")
            if VPF and not last:
                at(float(os.environ.get("VPP", "1.0")) * n, lambda: vpf(k))
            at(len(V1), stores)
            if W2E and not last:
                at(len(V1) + 1, lambda: w2load(pos))
            if not last:
                if not KSPLIT:
                    a.e(f"s_cmp_lt_u32 s{sK}, {N - 2 - ahead}")
                    a.e(f"s_cselect_b32 s{sXo}, 0, {OOB}")
                elif first:
                    a.e(f"s_add_u32 s{sXo}, s{sXo}, {8*PLH}")
                    a.e(f"s_add_u32 s{sXo2}, s{sXo2}, {8*PLH}")
                at(len(V1) if SH else 0, lambda: a.wait(vm=(("X", (k + ahead) >> 1),)))
                if "nox" not in EXP:
                    for p in (range(NF) if first else range(NF, 4)):
                        w = len(V1) + XP[p] * SH if SH and first else XP[p] * n
                        at(w, lambda p=p: xload(pair, p))
            for i in range(n + 1):
                for f in ev.get(i, []):
                    f()
                if i < n:
                    a.e(V[i])
            if not last:
                a.e(f"s_add_u32 s{sK}, s{sK}, 1")
            if "hst" in EXP and pos == 1:
                stamp(5)
            a.e("s_waitcnt lgkmcnt(0)")
            a.lg = []
            a.e("s_barrier")
            if "hst" in EXP and pos == 1:
                stamp(6)

        body = steady(period, 4, "nox" not in EXP)
        a.label(f"L_{name}_hloop{role}")
        a.L.extend(body)
        a.e(f"s_sub_u32 s{sCnt}, s{sCnt}, 1")
        a.e(f"s_branch L_{name}_hloop{role}")
        a.label(f"L_{name}_hlast{role}")
        a.vm, a.lg = [], []

        def last_period():
            vm = a.vm
            a.vm, a.lg = [], []
            if SH:
                a.e(f"s_mov_b32 s{sMask}, 0xffff0000")
                period(2, 2, True)
            a.vm = vm
        if role == 1 or KSPLIT:
            last_period()
        else:
            assert SH
            W2L = os.environ.get("W2L", "0") == "1"
            if W2L:
                last_period()
            a.e("s_waitcnt vmcnt(0)")
            a.e(f"s_mov_b32 s58, s{sWv}")
            a.e(f"s_lshl_b32 s20, s2, 2")
            a.e(f"s_add_u32 s20, s20, s{sH}")
            a.e(f"v_mov_b32 v1, v{vL}")
            if W2E:
                wprep2(a, 16, WS_W2P, last_period, pre=100)
            elif os.environ.get("W2", "1") == "2":
                wprep2(a, 16, WS_W2P, last_period, LB=False)
            else:
                wprep(a, 16, WS_W2P, True, barrier=None if W2L else last_period)
            a.e(f"s_mov_b32 s{sWv}, s58")
        if role == 1 and KSPLIT and "tailwarm" in EXP:
            add64(a, sW, 30, WS_WF)
            a.e(f"s_mov_b32 s{sW+2}, {262144 + 32768}")
            a.e(f"s_mov_b32 s{sW+3}, 0x00020000")
            a.e("s_lshr_b32 s36, s2, 3")
            a.e("s_lshl_b32 s36, s36, 2")
            a.e(f"s_add_u32 s36, s36, s{sH}")
            a.e("s_mul_i32 s36, s36, 2304")
            a.e(f"v_lshlrev_b32 v1, 4, v{vL}")
            for i in range(3):
                a.e(f"buffer_load_dwordx4 v[4:7], v1, {sr(sW)}, s36 offen offset:{i*1024}")
        if role == 1 and "tw" in EXP:
            a.e(f"s_cmp_ge_u32 s2, {os.environ.get('TWN', '32')}")
            a.e(f"s_cbranch_scc1 L_{name}_ntw")
            a.e("s_getpc_b64 s[36:37]")
            a.label(f"L_{name}_pc")
            a.e(f"s_lshl_b32 s38, s{sH}, 13")
            a.e(f"s_add_u32 s38, s38, L_{name}_epi-L_{name}_pc")
            a.e(f"v_lshl_add_u32 v2, v{vL}, 7, s38")
            a.e(f"v_min_u32 v2, {0x7fc0de01 + KSPLIT:#x}, v2")
            a.e("v_mov_b32 v3, s37")
            a.e("v_add_co_u32 v2, vcc, s36, v2")
            a.e("s_nop 1")
            a.e("v_addc_co_u32 v3, vcc, 0, v3, vcc")
            a.e("global_load_dword v4, v[2:3], off")
            a.label(f"L_{name}_ntw")
        stamp(8)
        rstamp(13)
        a.e(f"s_branch L_{name}_end")

    hwave(1)
    a.label(f"L_{name}_h2")
    hwave(2)

    a.label(f"L_{name}_epi")
    K = [sr(x, 2) for x in KS]
    a.e("s_waitcnt lgkmcnt(0)")
    a.e("s_barrier")
    if "est" in EXP:
        stamp(2)
    a.e(f"v_cndmask_b32 v{vO}, v{t3}, v{t2}, vcc")

    def P(c, s, r=0):
        return c * 32 + s * 4 + r
    Y = 64
    TB = 96
    ELS = (0, 1, 2)
    for c in range(2):
        for s_ in range(8):
            if c == 1 and s_ == 7:
                a.e("s_waitcnt lgkmcnt(7)")
            u = UNIT[s_][c]
            a.e(f"ds_read_b128 {vr(P(c, s_))}, v{R0[u >> 16]} offset:{u & 0xffff}")

    def p2(x):
        return vr(x, 2)

    def padd(d, x, y):
        return f"v_pk_add_f32 {p2(d)}, {p2(x)}, {p2(y)}"

    def psub(d, x, y):
        return f"v_pk_add_f32 {p2(d)}, {p2(x)}, {p2(y)} neg_lo:[0,1] neg_hi:[0,1]"

    def pfma(d, x, k, y, neg=False):
        return f"v_pk_fma_f32 {p2(d)}, {p2(x)}, {k}, {p2(y)}" + (" neg_lo:[0,0,1] neg_hi:[0,0,1]" if neg else "")

    def interp(c):
        seq = []
        for r in (0, 2):
            E0, A, B, C, D, Q, E6, E6b = (P(c, x, r) for x in range(8))
            y = [Y + ph * 8 + c * 4 + r for ph in range(4)]
            S1, G = E6, C
            seq.append([
                padd(y[3], E6, E6b),
                padd(S1, A, B),
                psub(A, A, B),
                padd(y[1], C, D),
                psub(G, C, D),
                pfma(y[1], S1, K[0], y[1]),
                pfma(Q, E0, K[3], Q),
                pfma(y[1], E0, K[1], y[1]),
                psub(S1, S1, E0),
                pfma(y[1], y[3], K[2], y[1]),
                psub(S1, S1, y[3]),
                pfma(Q, y[3], K[6], Q),
                psub(B, S1, y[1]),
                pfma(Q, y[1], K[5], Q),
                f"v_pk_mul_f32 {p2(y[2])}, {p2(G)}, {K[9]}",
                pfma(Q, B, K[4], Q),
                pfma(y[2], A, K[10], y[2]),
                pfma(y[0], A, K[7], Q, True),
                pfma(y[0], G, K[8], y[0]),
                pfma(y[2], y[0], K[11], y[2]),
                psub(A, A, y[0]),
                psub(A, A, y[2]),
            ])
        for ops in zip(*seq):
            for op in ops:
                a.e(op)

    a.e("s_waitcnt lgkmcnt(8)")
    interp(0)
    a.e("s_waitcnt lgkmcnt(0)")
    interp(1)
    if "est" in EXP:
        stamp(3)
    a.e("s_mov_b32 s36, 0x00010001")
    a.e("s_mov_b32 s37, 0x00010001")
    a.e("s_mov_b64 exec, s[36:37]")
    for k in range(3):
        for c in range(2):
            a.e(f"ds_write_b128 v{vBW}, {vr(P(c, ELS[k]))} offset:{(k*2+c)*16}")
    a.e("s_mov_b64 exec, -1")

    def finish(ph):
        ys = [Y + ph * 8 + i for i in range(8)]
        if not KSPLIT:
            ts = [16 + (ph & 1) * 8 + i for i in range(8)]
            ev = list(zip(ys[::2], ts[::2]))
            for y, t in ev:
                a.e(f"v_pk_mul_f32 {p2(t)}, {p2(y)}, {p2(y)}")
            for y, t in ev:
                a.e(pfma(t, t, K[12], 44))
            for y, t in ev:
                a.e(f"v_pk_mul_f32 {p2(t)}, {p2(t)}, {p2(y)}")
            for t in ts:
                a.e(f"v_exp_f32 v{t}, v{t}")
            for y, t in ev:
                a.e(f"v_pk_add_f32 {p2(t)}, {p2(t)}, {K[13]}")
            for t in ts:
                a.e(f"v_rcp_f32 v{t}, v{t}")
            for y, t in ev:
                a.e(f"v_pk_mul_f32 {p2(y)}, {p2(y)}, {p2(t)}")
        o = 48 + ph * 4
        for r in range(4):
            a.e(f"v_cvt_pk_bf16_f32 v{o+r}, v{ys[r]}, v{ys[4+r]}")
        so = ph * PLF if KSPLIT else ((ph + 3) & 3) * PLH + ((ph + 7) >> 2) * 64
        a.e(f"s_mov_b32 s44, {so}")
        a.e(f"buffer_store_dwordx4 {vr(o)}, v{vO}, {sr(sO)}, s44 offen{NTF if KSPLIT else NTH}")

    a.e(f"v_mov_b32 v44, {f32hex(k0)}")
    a.e("v_mov_b32 v45, v44")
    finish(0)
    a.e("s_waitcnt lgkmcnt(0)")
    a.e("s_barrier")
    if "est" in EXP:
        stamp(4)
    for i in range(6):
        a.e(f"ds_read_b128 {vr(TB+4*i)}, v{vBW} offset:{512 + i*16}")
    for ph in range(1, 4):
        a.e(f"s_waitcnt lgkmcnt({6 - 2*ph})")
        for c in range(2):
            for r in range(4):
                i = (ph - 1) * 8 + c * 4 + r
                a.e(f"v_mov_b32_dpp v{TB+i}, v{P(c, ELS[ph-1], r)} row_shl:1 row_mask:0xf bank_mask:0xf")
        for i in range(0, 8, 2):
            a.e(padd(Y + ph * 8 + i, Y + ph * 8 + i, TB + (ph - 1) * 8 + i))
        finish(ph)
    if "est" in EXP:
        stamp(5)
    RB = os.environ.get("RB", "00")[int(KSPLIT)]
    if RB != "0":
        if not KSPLIT:
            a.e(f"s_cmp_ge_u32 s{sCb}, {RB}")
            a.e(f"s_cbranch_scc1 L_{name}_end")
        a.e("s_waitcnt vmcnt(0)")
        for ph in range(4):
            so = ph * PLF if KSPLIT else ((ph + 3) & 3) * PLH + ((ph + 7) >> 2) * 64
            a.e(f"s_mov_b32 s44, {so}")
            a.e(f"buffer_load_dword v0, v{vO}, {sr(sO)}, s44 offen")
    a.label(f"L_{name}_end")
    if STAMP:
        a.e("s_waitcnt vmcnt(0)")
        stamp(9, False)
        a.e(f"s_memrealtime s[{sSt+22}:{sSt+23}]")
        a.e(f"s_cmp_lg_u32 s{sWv}, {os.environ.get('SW', '0')}")
        a.e(f"s_cbranch_scc1 L_{name}_done")
        a.e("s_lshl_b32 s36, s2, 7")
        a.e(f"s_add_u32 s36, s36, {WS_STAMP + cfg['stamp']*0x10000}")
        add64(a, 40, 30, "s36")
        a.e("s_mov_b32 s42, 128")
        a.e("s_mov_b32 s43, 0x00020000")
        a.e("s_waitcnt lgkmcnt(0)")
        a.e("v_mov_b32 v8, 0")
        for i in range(28):
            a.e(f"v_mov_b32 v0, s{sSt+i}")
            a.e(f"buffer_store_dword v0, v8, s[40:43], 0 offen offset:{4*i}")
    a.label(f"L_{name}_done")
    a.e("s_endpgm")
    return a.L, TOPB + 40960, 128


CONV1 = dict(tin=16000, tout=8000, nchunk=16, ksplit=False, in_arg=0, in_off=0, w_off=WS_W1P, out_off=WS_H, stamp=0)
CONV2 = dict(tin=8000, tout=4000, nchunk=8, ksplit=True, in_arg=72, in_off=WS_H, w_off=WS_W2P, out_off=WS_FP, stamp=1)

HEADER = f"""; Kernarg layout for this problem (80 bytes, ptrs only, base s[0:1]):
"""


def main():
    ks = [("prep_kernel", 256, 384) + prep_kernel("prep_kernel"),
          ("conv1_kernel", 256, 1024) + conv_kernel("conv1_kernel", CONV1),
          ("conv2_kernel", 256, 1024) + conv_kernel("conv2_kernel", CONV2)]
    ks = joint_kernels(ks)
    out = HEADER
    for nm, grid, block, code, lds, vg in ks:
        out += f"; @launch kernel={nm} grid=({grid},1,1) block=({block},1,1) lds={lds}\n"
    out += '.amdgcn_target "amdgcn-amd-amdhsa--gfx950"\n.text\n'
    for nm, grid, block, code, lds, vg in ks:
        if "noalign" not in EXP:
            code = align8(code)
        out += f".globl {nm}\n.p2align 8\n.type {nm},@function\n" + "\n".join(code) + "\n"
    out += '.section .rodata,"a"\n'
    for nm, grid, block, code, lds, vg in ks:
        out += ".p2align 6\n" + kd(nm, vg)
    out = out.replace("0x7fc0de00", "L_joint_kernel_done-L_prep_kernel_pc")
    out = out.replace("0x7fc0de01", "L_conv2_kernel_done-L_conv1_kernel_pc")
    out = out.replace("0x7fc0de02", "L_joint_kernel_done-L_conv2_kernel_pc")
    path = sys.argv[1] if len(sys.argv) > 1 else "standalone__seq2seq_rnn_t_joint__speech.s"
    open(path, "w").write(out)


if __name__ == "__main__":
    main()
```

```python
import os
import sys

from asmlib import Asm, vr, sr, kd, f32hex, align8
from gen13_joint import small_head, small_tail, joint_kernels

EXP = os.environ.get("EXP", "").split(",")

WS_W1P = 0x0000000
WS_W2P = 0x0900000
WS_H = 0x1200000
WS_FP = 0x1A00000
WS_FPS = 0x800000
WS_WF = 0x2A00000
WS_STAMP = 0x3000000

CHUNKB = 7 * 8192
FB = 1024
BB = 8 * FB
SEQB = 2 * BB
FB6 = 1088
BB6 = 8 * FB6
SPB = 6 * SEQB + 2 * BB6
TOPB = SPB + 6144
OOB = 0x7f000000
W2P = os.environ.get('W2', '1') == '0'
LOCAL = 'local' in EXP
PLH, PLF = int(os.environ.get('PLH', 131072)), int(os.environ.get('PLF', 65536))
NTW, NTH, NTF = ({"0": "", "1": " nt", "2": " sc1", "3": " sc0 sc1"}[c] for c in os.environ.get("NT", "222"))


def add64(a, d, lo, off):
    a.e(f"s_add_u32 s{d}, s{lo}, {off}")
    a.e(f"s_addc_u32 s{d+1}, s{lo+1}, 0")


def eval_ops(c, t):
    e1, o1, e2, o2 = t
    ops = [f"v_add_f32 v{e1}, v{c[0]}, v{c[2]}",
           f"v_add_f32 v{o1}, v{c[1]}, v{c[3]}",
           f"v_fma_f32 v{e2}, v{c[2]}, 4.0, v{c[0]}",
           f"v_fma_f32 v{o2}, v{c[3]}, 4.0, v{c[1]}",
           f"v_add_f32 v{c[1]}, v{e1}, v{o1}",
           f"v_sub_f32 v{c[2]}, v{e1}, v{o1}",
           f"v_fma_f32 v{c[3]}, v{o2}, 2.0, v{e2}",
           f"v_fma_f32 v{e2}, v{o2}, -2.0, v{e2}",
           f"v_fmamk_f32 v{e1}, v{c[0]}, {f32hex(15.0)}, v{e2}",
           f"v_fmamk_f32 v{e1}, v{o1}, {f32hex(10.0)}, v{e1}"]
    return ops, [c[1], c[2], c[3], e2, e1]


def wprep(a, karg, wsoff, ws_loaded, barrier=False, extra=None, small=None, mid=None):
    a.vm, a.lg = [], []
    a.e(f"s_load_dwordx2 s[8:9], s[0:1], {karg}")
    if not ws_loaded:
        a.e("s_load_dwordx2 s[30:31], s[0:1], 72")
    a.e("s_lshr_b32 s22, s20, 8")
    a.e("s_bfe_u32 s23, s20, 0x40004")
    a.e("s_bfe_u32 s24, s20, 0x30001")
    a.e("s_and_b32 s21, s20, 1")
    a.e("v_lshrrev_b32 v2, 4, v1")
    a.e("v_lshlrev_b32 v2, 12, v2")
    a.e("v_and_b32 v3, 15, v1")
    a.e("v_lshl_add_u32 v2, v3, 2, v2")
    a.e("s_lshl_b32 s26, s22, 3")
    a.e("s_lshr_b32 s27, s23, 3")
    a.e("s_add_u32 s26, s26, s27")
    a.e("s_lshl_b32 s26, s26, 17")
    a.e("s_and_b32 s27, s23, 7")
    a.e("s_lshl_b32 s27, s27, 14")
    a.e("s_add_u32 s26, s26, s27")
    a.e("s_lshl_b32 s27, s24, 6")
    a.e("s_add_u32 s26, s26, s27")
    a.e(f"s_mov_b32 s10, {31*131072}")
    a.e("s_mov_b32 s11, 0x00020000")
    if small:
        small_select(a)
        a.e("s_add_u32 s37, s26, s5")
        a.e("s_add_u32 s38, s37, s5")
        a.e("s_add_u32 s39, s38, s5")
    else:
        for p in range(1, 4):
            a.e(f"s_add_u32 s{36+p}, s26, {2*131072*p}")
    a.e("s_waitcnt lgkmcnt(0)")
    if small:
        small_ptr(a)
        small_g(a, "prep_kernel")
    R = 16
    for e2 in range(4):
        for p in range(4):
            for e in (2 * e2, 2 * e2 + 1):
                a.vmem(f"buffer_load_dword v{R+p*8+e}, v2, s[8:11], s{36+p if p else 26} offen offset:{e*512}", ("L", e2))
    if small:
        a.e("s_cmp_lt_u32 s3, 12")
        a.e(f"s_cbranch_scc1 {small}")
    if mid:
        mid()
    add64(a, 12, 30, wsoff)
    a.e(f"s_mov_b32 s14, {8*16*CHUNKB}")
    a.e("s_mov_b32 s15, 0x00020000")
    a.e("v_lshlrev_b32 v4, 4, v1")
    a.e("s_lshl_b32 s27, s24, 4")
    a.e("s_add_u32 s27, s27, s23")
    a.e(f"s_mul_i32 s27, s27, {CHUNKB}")
    a.e("s_lshl_b32 s28, s22, 11")
    a.e("s_add_u32 s27, s27, s28")
    a.e("s_lshl_b32 s28, s21, 10")
    a.e("s_add_u32 s27, s27, s28")
    a.e("s_cmp_eq_u32 s21, 0")
    a.e("s_mov_b32 s32, 0x07060302")
    a.e("s_cselect_b32 s32, 0x05040100, s32")
    a.e("s_mov_b32 s33, 0x03020c0c")
    a.e("s_cselect_b32 s33, 0x01000c0c, s33")
    a.e(f"s_mov_b32 s35, {f32hex(1.0/24)}")
    a.e(f"s_mov_b32 s36, {f32hex(1.0/72)}")
    if barrier:
        barrier()
    OUT = 48
    T = 76
    scale = ("0.5", "0.5", "s35", "s35", "s36")
    for e2 in range(4):
        a.wait(vm=(("L", e2),))
        if extra and e2 == int(os.environ.get("XT", "3")):
            extra()
        for p, seq in ((0, 6), (3, 0)):
            a.e(f"v_perm_b32 v{OUT+seq*4+e2}, v{R+p*8+2*e2+1}, v{R+p*8+2*e2}, s32")
        res, lists = [], []
        for e in range(2):
            cf = [T + e * 8 + i for i in range(4)]
            ops = [f"v_perm_b32 v{cf[i]}, v{cf[i]}, v{R + (3 - i) * 8 + 2 * e2 + e}, s33" for i in range(4)]
            o, rr = eval_ops(cf, [T + e * 8 + 4 + i for i in range(4)])
            ops += o + [f"v_mul_f32 v{r}, {sc}, v{r}" for r, sc in zip(rr, scale)]
            res.append(rr)
            lists.append(ops)
        for x, y in zip(*lists):
            a.e(x)
            a.e(y)
        for i in range(5):
            a.e(f"v_cvt_pk_bf16_f32 v{OUT+(1+i)*4+e2}, v{res[0][i]}, v{res[1][i]}")
    for seq in (6, 0, 1, 2, 3, 4, 5):
        a.e(f"s_add_u32 s28, s27, {seq*8192}")
        a.e(f"buffer_store_dwordx4 {vr(OUT+seq*4)}, v4, s[12:15], s28 offen{NTW}")


def wprep2(a, karg, wsoff, barrier, LB=True, extra=None, pre=None):
    a.vm, a.lg = [], []
    if not pre:
        a.e(f"s_load_dwordx2 s[8:9], s[0:1], {karg}")
    a.e("s_lshr_b32 s22, s20, 8")
    a.e("s_bfe_u32 s23, s20, 0x40004")
    a.e("s_bfe_u32 s24, s20, 0x30001")
    a.e("s_and_b32 s21, s20, 1")
    a.e("v_lshrrev_b32 v5, 4, v1")
    a.e("v_lshlrev_b32 v2, 11, v5")
    a.e("v_and_b32 v3, 15, v1")
    a.e("v_lshl_add_u32 v2, v3, 2, v2")
    a.e("s_lshl_b32 s26, s22, 3")
    a.e("s_lshr_b32 s27, s23, 3")
    a.e("s_add_u32 s26, s26, s27")
    a.e("s_lshl_b32 s26, s26, 17")
    a.e("s_and_b32 s27, s23, 7")
    a.e("s_lshl_b32 s27, s27, 1")
    a.e("s_add_u32 s27, s27, s21")
    a.e("s_lshl_b32 s27, s27, 13")
    a.e("s_add_u32 s26, s26, s27")
    a.e("s_lshl_b32 s27, s24, 6")
    a.e("s_add_u32 s26, s26, s27")
    a.e(f"s_mov_b32 s10, {31*131072}")
    a.e("s_mov_b32 s11, 0x00020000")
    for p in range(1, 4):
        a.e(f"s_add_u32 s{36+p}, s26, {2*131072*p}")
    a.e(f"s_mov_b32 s14, {8*16*CHUNKB}")
    a.e("s_mov_b32 s15, 0x00020000")
    a.e("v_lshrrev_b32 v4, 1, v5")
    a.e("v_lshlrev_b32 v4, 8, v4")
    a.e("v_lshl_add_u32 v4, v3, 4, v4")
    a.e("v_and_b32 v5, 1, v5")
    a.e("v_lshl_add_u32 v4, v5, 10, v4")
    a.e("s_lshl_b32 s27, s24, 4")
    a.e("s_add_u32 s27, s27, s23")
    a.e(f"s_mul_i32 s27, s27, {CHUNKB}")
    a.e("s_lshl_b32 s28, s22, 11")
    a.e("s_add_u32 s27, s27, s28")
    a.e("s_lshl_b32 s28, s21, 9")
    a.e("s_add_u32 s27, s27, s28")
    a.e("s_mov_b32 s32, 0x05040100")
    a.e("s_mov_b32 s33, 0x07060302")
    a.e("s_mov_b32 s34, 0xffff0000")
    a.e(f"s_mov_b32 s35, {f32hex(1.0/24)}")
    a.e(f"s_mov_b32 s40, {f32hex(1.0/72)}")
    a.e("s_waitcnt lgkmcnt(0)")
    if W2P and karg == 8:
        a.e("s_cmp_eq_u32 s29, 1")
        a.e("s_cselect_b32 s8, s48, s8")
        a.e("s_cselect_b32 s9, s49, s9")
        a.e(f"s_mul_i32 s29, s29, {WS_W2P - WS_W1P}")
        wsoff = "s29"
    if LB:
        barrier()
    R, OUT, T = (pre, 16, 76) if pre else (16, 76, 104)
    for e2 in range(0 if pre else 2):
        for p in range(4):
            for e in (2 * e2, 2 * e2 + 1):
                a.vmem(f"buffer_load_dword v{R+p*4+e}, v2, s[8:11], s{36+p if p else 26} offen offset:{e*512}", ("L", e2))
    if not LB:
        barrier()
    add64(a, 12, 30, wsoff)
    scale = ("0.5", "0.5", "s35", "s35", "s40")

    def out(seq, c):
        return OUT + (seq * 2 + c) * 2
    for e2 in range(2):
        a.wait(vm=(("L", e2),))
        if extra and e2 == 1:
            extra()
        for c in range(2):
            for p, seq in ((0, 6), (3, 0)):
                a.e(f"v_perm_b32 v{out(seq, c)+e2}, v{R+p*4+2*e2+1}, v{R+p*4+2*e2}, s{32+c}")
            res, lists = [], []
            for e in range(2):
                cf = [T + e * 8 + i for i in range(4)]
                src = [R + (3 - i) * 4 + 2 * e2 + e for i in range(4)]
                ops = [f"v_and_b32 v{d}, s34, v{x}" if c else f"v_lshlrev_b32 v{d}, 16, v{x}" for d, x in zip(cf, src)]
                o, rr = eval_ops(cf, [T + e * 8 + 4 + i for i in range(4)])
                ops += o + [f"v_mul_f32 v{r}, {sc}, v{r}" for r, sc in zip(rr, scale)]
                res.append(rr)
                lists.append(ops)
            for x, y in zip(*lists):
                a.e(x)
                a.e(y)
            for i in range(5):
                a.e(f"v_cvt_pk_bf16_f32 v{out(1+i, c)+e2}, v{res[0][i]}, v{res[1][i]}")
    for seq in (6, 0, 1, 2, 3, 4, 5):
        for d in range(2):
            a.e(f"v_permlane16_swap_b32 v{out(seq, 0)+d}, v{out(seq, 1)+d}")
        a.e(f"s_add_u32 s28, s27, {seq*8192}")
        a.e(f"buffer_store_dwordx4 {vr(out(seq, 0))}, v4, s[12:15], s28 offen{NTW}")


def prep_kernel(name):
    a = Asm()
    NWG = 256
    a.label(name)
    a.e(f"s_cmp_ge_u32 s2, {NWG}")
    a.e(f"s_cbranch_scc1 L_{name}_done")
    CW = os.environ.get("CW", "late")
    CWN = int(os.environ.get("CWN", "32"))

    def code_warm():
        a.e(f"s_cmp_lt_u32 s3, {256 - CWN}")
        a.e(f"s_cbranch_scc1 L_{name}_ncw")
        a.e("s_getpc_b64 s[62:63]")
        a.label(f"L_{name}_pc")
        a.e("s_and_b32 s64, s3, 8")
        a.e("s_lshl_b32 s64, s64, 12")
        a.e("v_lshlrev_b32 v120, 7, v0")
        a.e("v_add_u32 v120, s64, v120")
        a.e(f"v_min_u32 v120, 0x7fc0de00, v120")
        a.e("v_mov_b32 v121, s63")
        a.e("v_add_co_u32 v120, vcc, s62, v120")
        a.e("s_nop 1")
        a.e("v_addc_co_u32 v121, vcc, 0, v121, vcc")
        a.e("global_load_dword v122, v[120:121], off")
        a.label(f"L_{name}_ncw")
        return 0

    def x_warm():
        XW = int(os.environ.get("XW", "0"))
        if XW:
            a.e("s_and_b32 s64, s3, 7")
            a.e("s_lshr_b32 s65, s2, 3")
            a.e("s_lshr_b32 s66, s65, 3")
            a.e("s_lshl_b32 s64, s64, 2")
            a.e("s_add_u32 s64, s64, s66")
            a.e("s_mul_i32 s64, s64, 512000")
            a.e("s_and_b32 s65, s65, 7")
            a.e("s_lshl_b32 s65, s65, 2")
            a.e("s_add_u32 s65, s65, s40")
            a.e("s_lshl_b32 s65, s65, 14")
            a.e("s_add_u32 s64, s64, s65")
            a.e("s_sub_u32 s64, s64, 7680")
            a.e("v_lshrrev_b32 v120, 2, v1")
            a.e("v_lshlrev_b32 v120, 10, v120")
            a.e(f"v_and_b32 v121, {XW - 1}, v1")
            a.e("v_lshl_add_u32 v120, v121, 7, v120")
            a.e("v_add_u32 v120, s64, v120")
            a.e("s_mov_b32 s68, s44")
            a.e("s_mov_b32 s69, s45")
            a.e(f"s_mov_b32 s70, {2*16000*512}")
            a.e("s_mov_b32 s71, 0x00020000")
            a.vmem("buffer_load_dword v123, v120, s[68:71], 0 offen", "XW")
    a.e("s_mov_b32 s3, s2")
    if CW == "early":
        code_warm()
    a.e("s_load_dwordx16 s[44:59], s[0:1], 0")
    a.e("s_load_dwordx2 s[30:31], s[0:1], 72")
    if "stamp" in EXP:
        a.e("s_memrealtime s[60:61]")
    a.e("v_readfirstlane_b32 s40, v0")
    a.e("s_lshr_b32 s40, s40, 6")
    a.e("v_and_b32 v1, 63, v0")
    if W2P:
        a.e("s_sub_u32 s40, s40, 2")
        a.e("s_lshr_b32 s29, s40, 2")
        a.e(f"s_cbranch_scc0 L_{name}_w")
        a.e("s_cmp_lt_u32 s40, 8")
        a.e(f"s_cbranch_scc1 L_{name}_w")
        a.e("s_add_u32 s40, s40, 6")
    else:
        a.e("s_cmp_lt_u32 s40, 4")
        a.e(f"s_cbranch_scc1 L_{name}_w")
    small_head(a, name)
    a.label(f"L_{name}_w")
    if W2P:
        a.e("s_and_b32 s40, s40, 3")
    a.e("s_lshl_b32 s21, s2, 2")
    a.e("s_add_u32 s20, s40, s21")
    wprep2(a, 8, WS_W1P, lambda: a.e("s_barrier"), False, code_warm if CW == "late" else None)
    if "stamp" in EXP:
        a.e("s_waitcnt vmcnt(0)")
        a.e("s_memrealtime s[62:63]")
        a.e("s_lshl_b32 s36, s2, 7")
        a.e(f"s_add_u32 s36, s36, {WS_STAMP + 3*0x10000}")
        add64(a, 40, 30, "s36")
        a.e("s_mov_b32 s42, 128")
        a.e("s_mov_b32 s43, 0x00020000")
        a.e("s_waitcnt lgkmcnt(0)")
        a.e("v_mov_b32 v8, 0")
        a.e("v_mov_b32 v0, 1")
        a.e("buffer_store_dword v0, v8, s[40:43], 0 offen")
        for i in range(4):
            a.e(f"v_mov_b32 v0, s{60+i}")
            a.e(f"buffer_store_dword v0, v8, s[40:43], 0 offen offset:{80+4*i}")
    a.label(f"L_{name}_done")
    a.e("s_endpgm")
    small_tail(a, name)
    a.L.insert(len(a.L) - 1, f"L_{name}_last:")
    return a.L, 4096, 128


def conv_kernel(name, cfg):
    TIN, TOUT = cfg["tin"], cfg["tout"]
    N = cfg["nchunk"]
    KSPLIT = cfg["ksplit"]
    NWG = 256
    STAMP = "stamp" in EXP
    sX, sW, sO = 8, 12, 16
    sWv, sT0, sCnt, sBo, sXo, sMask = 20, 21, 22, 23, 24, 25
    sBo2 = 26
    sK, sCb, sH = 28, 29, 32
    sSt = 60
    vL = 127
    vU, vS_, vI, vKG = 8, 9, 10, 11

    a = Asm()
    a.label(name)
    a.e(f"s_cmp_ge_u32 s2, {NWG}")
    a.e(f"s_cbranch_scc1 L_{name}_done")

    def stamp(i, fence=True):
        if STAMP:
            a.e(f"s_memtime s[{sSt+2*i}:{sSt+2*i+1}]")
            if fence:
                a.e("s_waitcnt lgkmcnt(0)")
                a.lg = []

    def rstamp(i):
        if STAMP:
            a.e(f"s_memrealtime s[{sSt+2*i}:{sSt+2*i+1}]")
            a.e("s_waitcnt lgkmcnt(0)")
            a.lg = []
    if STAMP:
        for i in range(28):
            a.e(f"s_mov_b32 s{sSt+i}, 0")
        a.e(f"s_memrealtime s[{sSt+20}:{sSt+21}]")
    stamp(0, False)
    a.e(f"s_load_dwordx2 s[4:5], s[0:1], {cfg['in_arg']}")
    a.e("s_load_dwordx2 s[30:31], s[0:1], 72")
    a.e(f"v_readfirstlane_b32 s{sWv}, v0")
    a.e(f"s_lshr_b32 s{sWv}, s{sWv}, 6")
    if os.environ.get("WX", "8") != "0":
        a.e(f"s_xor_b32 s{sWv}, s{sWv}, {os.environ.get('WX', '8')}")
    XL = int((os.environ.get("XL", "33") * 2)[int(KSPLIT)])
    a.e(f"s_and_b32 s36, s2, {(8 >> XL) - 1}")
    a.e(f"s_lshl_b32 s36, s36, {XL}")
    a.e(f"s_bfe_u32 s37, s2, {(XL << 16) | 3}")
    a.e(f"s_or_b32 s{sCb}, s36, s37")
    a.e(f"s_bfe_u32 s36, s2, {(XL << 16) | (3 - XL)}")
    a.e(f"s_lshl_b32 s36, s36, {5 - XL}")
    a.e(f"s_lshr_b32 s37, s2, {3 + XL}")
    a.e("s_or_b32 s36, s36, s37")
    if KSPLIT:
        if LOCAL:
            a.e("s_and_b32 s33, s36, 1")
            a.e("s_bfe_u32 s34, s36, 0x30001")
            a.e("s_lshr_b32 s35, s36, 4")
        else:
            a.e("s_lshr_b32 s33, s36, 4")
            a.e("s_and_b32 s34, s36, 7")
            a.e("s_bfe_u32 s35, s36, 0x10003")
    else:
        a.e("s_mov_b32 s33, 0")
        a.e("s_and_b32 s34, s36, 15")
        a.e("s_lshr_b32 s35, s36, 4")
    a.e(f"s_mul_i32 s{sT0}, s34, 500")
    a.e(f"s_and_b32 s{sH}, s{sWv}, 3")
    a.e(f"v_and_b32 v{vL}, 63, v0")
    a.e(f"v_lshrrev_b32 v5, 2, v{vL}")
    a.e(f"v_and_b32 v6, 3, v{vL}")
    a.e(f"s_and_b32 s42, s{sWv}, 7")
    if not KSPLIT:
        a.e("v_lshlrev_b32 v7, 15, v5")
        a.e("v_lshl_add_u32 v7, v6, 4, v7")
        a.e(f"s_lshl_b32 s41, s{sT0}, 10")
        a.e("s_sub_u32 s41, s41, 7680")
        a.e("s_lshl_b32 s37, s42, 12")
        a.e("s_add_u32 s37, s37, s41")
        a.e("v_add_u32 v7, s37, v7")
        a.e(f"s_mul_i32 s36, s35, {TIN*512}")
        a.e(f"s_mov_b32 s{sX+2}, {TIN*512}")
    else:
        a.e(f"s_lshr_b32 s41, s{sT0}, 2")
        a.e("s_sub_u32 s41, s41, 1")
        a.e("s_add_u32 s37, s41, s42")
        a.e("v_lshl_add_u32 v7, v5, 3, s37")
        a.e(f"s_mul_i32 s36, s35, {32*PLH}")
        a.e(f"s_add_u32 s36, s36, {cfg['in_off']}")
        a.e(f"s_mov_b32 s{sX+2}, {32*PLH}")

    def haddr(dst, vG, vlane, p, t):
        a.e(f"s_add_u32 s37, s33, {2*p - 7 & 0xffffffff}")
        a.e(f"v_lshl_add_u32 v{t}, v{vG}, 3, s37")
        a.e(f"v_cmp_gt_u32 vcc, {TIN}, v{t}")
        a.e(f"s_mul_i32 s37, s33, {PLH}")
        a.e(f"s_add_u32 s37, s37, {(2*p & 3)*PLH + (p >> 1)*64}")
        a.e(f"v_lshl_add_u32 v{dst}, v{vG}, 7, s37")
        a.e(f"v_add_u32 v{dst}, v{dst}, v{vlane}")
        a.e(f"v_mov_b32 v{t}, {OOB}")
        a.e(f"v_cndmask_b32 v{dst}, v{t}, v{dst}, vcc")
    a.e(f"s_mov_b32 s{sX+3}, 0x00020000")
    a.e(f"s_mov_b32 s{sMask}, 0xffff0000")
    a.e("s_mov_b32 s47, s36")

    def kwait():
        a.e("s_waitcnt lgkmcnt(0)")
        stamp(1)
        add64(a, sX, 4, "s47")
    OB = 512

    def wsrd():
        a.e(f"s_lshl_b32 s36, s{sCb}, 4")
        a.e("s_lshl_b32 s37, s33, 3")
        a.e("s_add_u32 s36, s36, s37")
        a.e(f"s_mul_i32 s36, s36, {CHUNKB}")
        a.e(f"s_add_u32 s36, s36, {cfg['w_off']}")
        add64(a, sW, 30, "s36")
        a.e(f"s_mov_b32 s{sW+2}, {N*CHUNKB}")
        a.e(f"s_mov_b32 s{sW+3}, 0x00020000")

    def lds_throttle(need=1):
        if len(a.lg) + need > 15:
            a.e("s_waitcnt lgkmcnt(8)")
            a.lg = a.lg[-8:]

    def mf(acc, b, av):
        if "nomfma" not in EXP:
            a.e(f"v_mfma_f32_16x16x32_bf16 {vr(acc)}, {vr(b)}, {vr(av)}, {vr(acc)}")

    def steady(gen, per, strict=True):
        st = []
        for it in range(3):
            st.append(len(a.L))
            for pos in range(per):
                gen(per * it + pos, pos)
        st.append(len(a.L))
        bodies = [a.L[st[i]:st[i + 1]] for i in range(3)]
        if strict:
            assert bodies[1] == bodies[2], "loop not steady"
            assert bodies[0] == bodies[1], "loop entry not steady"
        del a.L[st[0]:]
        return bodies[1]

    a.e(f"s_cmp_ge_u32 s{sWv}, 8")
    a.e(f"s_cbranch_scc1 L_{name}_helper")

    ACC = 0
    vF, vA8, vD, vB = (120, 121), 122, (123, 124), 125
    vP = (116, 117, 118)
    vBZ = 119
    S, T, O = 96, 108, 64
    if not KSPLIT:
        a.e(f"s_add_u32 s37, s41, {128*4096}")
        a.e(f"v_lshl_add_u32 v{T}, v{vL}, 4, s37")
        for p in range(1, 3):
            a.e(f"v_add_u32 v{T+p}, {p*1024}, v{T}")
    else:
        a.e("s_add_u32 s37, s41, 128")
        a.e("v_mov_b32 v16, s37")
        a.e(f"v_mul_u32_u24 v17, {4*PLH}, v5")
        a.e("v_lshl_add_u32 v17, v6, 4, v17")
        for p in range(3):
            haddr(T + p, 16, 17, p, 18)
    kwait()
    wsrd()
    PLO = PLF if KSPLIT else PLH
    a.e(f"s_mul_i32 s36, s35, {32*PLO}")
    a.e(f"s_add_u32 s36, s36, {cfg['out_off']}")
    if KSPLIT:
        a.e(f"s_mul_i32 s37, s33, {WS_FPS}")
        a.e("s_add_u32 s36, s36, s37")
    add64(a, sO, 30, "s36")
    a.e(f"s_mov_b32 s{sO+2}, {32*PLO}")
    a.e(f"s_mov_b32 s{sO+3}, 0x00020000")
    a.e(f"v_and_b32 v{vI}, 15, v{vL}")
    a.e(f"v_lshrrev_b32 v{vKG}, 4, v{vL}")
    t = 16
    for d, sh in ((vU, 0), (vS_, 1)):
        a.e(f"v_add_u32 v{d}, {sh}, v{vI}")
        a.e(f"v_and_b32 v{t}, 4, v{d}")
        a.e(f"v_lshrrev_b32 v{t}, 1, v{t}")
        a.e(f"v_xor_b32 v{t}, v{vKG}, v{t}")
        a.e(f"v_lshlrev_b32 v{t}, 4, v{t}")
        a.e(f"v_lshl_add_u32 v{d}, v{d}, 6, v{t}")
    a.e(f"s_lshr_b32 s38, s{sH}, 1")
    a.e(f"s_and_b32 s39, s{sH}, 1")
    a.e("s_add_u32 s40, s38, 4")
    a.e("s_lshl_b32 s43, s39, 10")
    a.e(f"s_cmp_lt_u32 s{sWv}, 4")
    a.e(f"s_cselect_b32 s40, s{sWv}, s40")
    a.e("s_cselect_b32 s36, 0, s43")
    a.e("s_lshl_b32 s37, s40, 13")
    a.e("s_add_u32 s37, s37, s36")
    a.e(f"v_lshl_add_u32 v{vB}, v{vL}, 4, s37")
    a.e(f"s_mul_i32 s37, s40, {SEQB}")
    a.e(f"v_add_u32 v{vF[0]}, s37, v{vU}")
    a.e(f"v_add_u32 v{vF[1]}, s37, v{vS_}")
    a.e("s_lshl_b32 s37, s40, 10")
    a.e(f"s_add_u32 s37, s37, {SPB}")
    a.e(f"v_lshl_add_u32 v{t}, v{vKG}, 4, s37")
    a.e(f"v_cmp_eq_u32 vcc, 15, v{vI}")
    a.e(f"v_mov_b32 v{t+1}, {BB}")
    a.e(f"v_mov_b32 v{t+2}, {-BB & 0xffffffff}")
    a.e(f"v_mov_b32 v{t+3}, 64")
    a.e(f"v_cndmask_b32 v{vA8}, v{vF[1]}, v{t}, vcc")
    a.e(f"v_cndmask_b32 v{vD[0]}, v{t+1}, v{t+3}, vcc")
    a.e(f"v_cndmask_b32 v{vD[1]}, v{t+2}, v{t+3}, vcc")
    a.e(f"v_lshl_add_u32 v126, v{vL}, 4, s37")
    tabs = {44: (1.0, 1.0, 1.0, 1.0, 1.0, 16.0), 45: (0.0, 1.0, -1.0, 2.0, -2.0, 8.0),
            46: (0.0, 1.0, 1.0, 4.0, 4.0, 4.0)}
    for sg, tab in tabs.items():
        a.e(f"s_mov_b32 s{sg}, {f32hex(tab[0])}")
    for q in range(1, 6):
        a.e(f"s_cmp_eq_u32 s40, {q}")
        for sg, tab in tabs.items():
            if tab[q] != tab[0]:
                a.e(f"s_cselect_b32 s{sg}, {f32hex(tab[q])}, s{sg}")

    def special_rows():
        a.wait(vm=("SP",))
        for d in range(4):
            for p in range(3):
                a.e(f"v_lshlrev_b32 v{T+p}, 16, v{S+4*p+d}")
                a.e(f"v_and_b32 v{T+3+p}, s{sMask}, v{S+4*p+d}")
            for h in range(2):
                a.e(f"v_mul_f32 v{T+6+h}, s44, v{T+3*h}")
            for h in range(2):
                a.e(f"v_fmac_f32 v{T+6+h}, s45, v{T+3*h+1}")
            for h in range(2):
                a.e(f"v_fmac_f32 v{T+6+h}, s46, v{T+3*h+2}")
            a.e(f"v_cvt_pk_bf16_f32 v{S+d}, v{T+6}, v{T+7}")
        a.e(f"ds_write_b128 v126, {vr(S)}")

    def own_read(k, g, reg, tag, last=False):
        if g == 8:
            base, off = vA8, 0
        else:
            base, off = vF[g >> 3], (k & 1) * BB + (g & 7) * FB
        a.lds(f"ds_read_b128 {vr(reg)}, v{base} offset:{off}", tag)
        if g == 8 and not last:
            a.e(f"v_add_u32 v{vA8}, v{vD[k & 1]}, v{vA8}")

    UNIT = [(s * SEQB, s * SEQB + BB) for s in range(4)] + [(4 * SEQB, TOPB), (5 * SEQB, TOPB + 8192),
            (6 * SEQB, TOPB + 16384), (TOPB + 24576, TOPB + 32768)]
    EA = 96
    ES = []
    R0 = (120, 121, 64)
    vO, vBW = 122, 127
    BND = SPB
    t0, t1, t2, t3 = 108, 109, 110, 111
    ES.append(f"v_and_b32 v{t0}, 15, v{vL}")
    ES.append(f"v_lshrrev_b32 v{t1}, 4, v{vL}")
    ES.append(f"v_lshrrev_b32 v{t2}, 3, v{t0}")
    ES.append(f"s_lshl_b32 s36, s{sWv}, 1")
    ES.append(f"v_add_u32 v{t2}, s36, v{t2}")
    ES.append(f"v_xor_b32 v{t3}, v{t2}, v{t0}")
    ES.append(f"v_and_b32 v{t3}, 7, v{t3}")
    ES.append(f"v_lshlrev_b32 v{t3}, 4, v{t3}")
    ES.append(f"v_lshl_add_u32 v{t3}, v{t2}, 7, v{t3}")
    ES.append(f"v_lshl_add_u32 v{R0[0]}, v{t1}, 11, v{t3}")
    ES.append(f"v_add_u32 v{R0[1]}, 65536, v{R0[0]}")
    ES.append(f"v_add_u32 v{R0[2]}, 131072, v{R0[0]}")
    ES.append(f"s_lshl_b32 s36, s{sWv}, 9")
    ES.append(f"s_add_u32 s36, s36, {BND}")
    ES.append(f"v_lshl_add_u32 v{vBW}, v{t1}, 7, s36")
    ES.append(f"s_lshl_b32 s36, s{sWv}, 4")
    ES.append(f"v_add_u32 v{t0}, s36, v{t0}")
    ES.append(f"v_lshlrev_b32 v{t2}, 6, v{t0}")
    ES.append(f"v_lshl_add_u32 v{t2}, v{t1}, 4, v{t2}")
    ES.append(f"s_mul_i32 s36, s{sCb}, {4*PLO}")
    ES.append(f"s_lshl_b32 s37, s{sT0}, 4")
    ES.append("s_add_u32 s36, s36, s37")
    ES.append(f"v_add_u32 v{t2}, s36, v{t2}")
    ES.append(f"v_mov_b32 v{t3}, {OOB}")
    ES.append(f"v_cmp_gt_u32 vcc, 125, v{t0}")
    k0 = -2.0 * 1.4426950408889634 * 0.7978845608028654
    consts = [-1.0 / 3, 0.25, -5.0, -32.0 / 9, -8.0 / 9, -2.0 / 9, -1.0 / 18, 17.0 / 9, -2.0 / 3, 0.4, -1.0 / 15, -0.2,
              k0 * 0.044715, 1.0]
    KS = [4, 6, 8, 10, 12, 14, 22, 24, 26, 32, 34, 38, 40, 42]
    for sg, cv in zip(KS, consts):
        ES.append(f"s_mov_b32 s{sg}, {f32hex(cv)}")
        ES.append(f"s_mov_b32 s{sg+1}, s{sg}")

    def ex_addr(sbase):
        a.e(f"v_and_b32 v{EA}, 15, v{vL}")
        a.e(f"v_and_b32 v{EA+1}, 7, v{vL}")
        a.e(f"v_lshlrev_b32 v{EA+1}, 4, v{EA+1}")
        a.e(f"v_lshl_add_u32 v{EA}, v{EA}, 7, v{EA+1}")
        a.e(f"v_lshrrev_b32 v{EA+1}, 4, v{vL}")
        a.e(f"v_lshl_add_u32 v{EA}, v{EA+1}, 11, v{EA}")
        a.e(f"v_add_u32 v{EA}, s{sbase}, v{EA}")
        for f in range(1, 8):
            a.e(f"v_xor_b32 v{EA+f}, {f << 4}, v{EA}")

    def mwave(role):
        if role == 1:
            BR, AR, NR = 64, 96, 6
            steps = [("X", g) for g in range(11)]
        else:
            BR, AR, NR = 64, 88, 7
            steps = []
            for g in range(11):
                steps.append(("Y", g))
                if 1 <= g <= 9:
                    steps.append(("Z", g - 1))
        NS = len(steps)

        def bload(k, kind, q):
            if "nob" in EXP and k > 0:
                return
            so = sBo2 if q >> 1 else sBo
            if kind == "X":
                for c in range(2):
                    a.vmem(f"buffer_load_dwordx4 {vr(BR+(q*2+c)*4)}, v{vB}, {sr(sW)}, s{so} offen "
                           f"offset:{(q&1)*2048 + c*1024}", ("B", k, kind, q))
            elif kind == "Y":
                a.vmem(f"buffer_load_dwordx4 {vr(BR+q*4)}, v{vB}, {sr(sW)}, s{so} offen offset:{(q&1)*2048}",
                       ("B", k, kind, q))
            else:
                a.vmem(f"buffer_load_dwordx4 {vr(BR+16+q*4)}, v{vBZ}, {sr(sW)}, s{sBo} offen offset:{q*2048}",
                       ("B", k, kind, q))

        def rd(k, n, last=False):
            kind, g = steps[n]
            reg = AR + 4 * (n % NR)
            if kind == "Z":
                base, off = (vP[0], g * FB6) if g < 6 else (vP[1], (g - 6) * FB6) if g < 8 else (vP[2], 0)
                a.lds(f"ds_read_b128 {vr(reg)}, v{base} offset:{(k & 1)*BB6 + off}", ("A", k, n))
            else:
                own_read(k, g, reg, ("A", k, n), last)

        for i in range(64):
            a.e(f"v_mov_b32 v{ACC+i}, 0")
        if "b0" in EXP:
            a.e("s_barrier")
        for p in range(3):
            a.vmem(f"buffer_load_dwordx4 {vr(S+4*p)}, v{T+p}, {sr(sX)}, 0 offen", "SP")
        a.e(f"s_mov_b32 s{sBo}, 0")
        a.e(f"s_mov_b32 s{sBo2}, 4096")
        for st in steps:
            if st and st[1] >= 7:
                bload(0, st[0], st[1] - 7)
        a.e(f"s_mov_b32 s{sBo}, {CHUNKB}")
        a.e(f"s_mov_b32 s{sBo2}, {CHUNKB + 4096}")
        SPL = os.environ.get("SPL", "0") == "1"
        if not SPL:
            special_rows()
        if role == 2:
            a.e(f"v_and_b32 v{T+3}, 15, v{vL}")
            a.e(f"v_lshlrev_b32 v{T+3}, 2, v{T+3}")
            a.e(f"v_add_u32 v{T+3}, {6*SEQB + 1024}, v{T+3}")
            a.e(f"ds_write_b32 v{T+3}, v{ACC}")
            a.e(f"ds_write_b32 v{T+3}, v{ACC} offset:{BB6}")
        a.e("s_waitcnt lgkmcnt(0)")
        a.e("s_barrier")
        if SPL:
            a.e("s_setprio 3")
            special_rows()
            a.e("s_waitcnt lgkmcnt(0)")
        stamp(7)
        rstamp(12)
        a.e(f"s_mov_b32 s{sCnt}, {N//2}")
        a.e(f"s_setprio {os.environ.get(f'PM{role}', '2')}")

        CO = int(os.environ.get(f"CO{role}", "0" if role == 1 else "5"))
        assert CO < NR
        FM = int("fmaj" in EXP)
        vE = (vD[0], vD[1])

        def period(k, _, last=False):
            if "mst" in EXP and _ == 0:
                stamp(2)
            if "bst" in EXP and _ == 1 and not last:
                a.e("s_memtime s[90:91]")
                a.e("s_waitcnt vmcnt(0) lgkmcnt(0)")
                a.e("s_memtime s[92:93]")
                a.e("s_waitcnt lgkmcnt(0)")
                a.e("s_sub_u32 s92, s92, s90")
                a.e(f"s_add_u32 s{sSt+4}, s{sSt+4}, s92")
                a.e(f"s_max_u32 s{sSt+6}, s{sSt+6}, s92")
                a.vm = []
            for n in range(NR):
                rd(k, n, last)
            pend = []
            fill = []

            def flush(n, cnt):
                while pend and pend[0][0] <= n and cnt > 0:
                    _, h, f = pend.pop(0)
                    t = vE[(h + f) & 1]
                    a.e(f"v_xor_b32 v{t}, {f << 4}, v{vX0[h]}")
                    lds_throttle()
                    a.lds(f"ds_write_b128 v{t}, {vr(ACC + h*32 + f*4)}", "E")
                    cnt -= 1
                    for _i in range(min(12, len(fill))):
                        a.e(fill.pop(0))

            for n, st in enumerate(steps):
                if CO and n == NS - CO and not last:
                    a.wait(lg_all=True)
                    if "mst" in EXP and _ == 0:
                        stamp(3)
                    a.e("s_barrier")
                    if "mst" in EXP and _ == 0:
                        stamp(4)
                kind, g = st
                nt = 2 if kind == "Z" else 4
                qs = [q for q in range(nt) if 0 <= g - q <= 7]
                if FM and kind == "X":
                    if g >= 3:
                        f = g - 3
                        for c in range(2):
                            for q in range(4):
                                a.wait(lg=(("A", k, f + q),), vm=(("B", k, kind, q),))
                                mf(ACC + 32 * c + f * 4, BR + q * 8 + 4 * c, AR + 4 * ((f + q) % NR))
                        if f + NR < NS:
                            rd(k, f + NR, last)
                        if g == 10 and not last:
                            for q in range(4):
                                bload(k + 1, kind, q)
                    qs = []
                else:
                    a.wait(lg=(("A", k, n),), vm=tuple(("B", k, kind, q) for q in qs))
                reg = AR + 4 * (n % NR)
                for q in qs:
                    f = g - q
                    if kind == "X":
                        mf(ACC + f * 4, BR + q * 8, reg)
                        mf(ACC + 32 + f * 4, BR + q * 8 + 4, reg)
                    elif kind == "Y":
                        mf(ACC + f * 4, BR + q * 4, reg)
                    else:
                        mf(ACC + 32 + f * 4, BR + 16 + q * 4, reg)
                if g >= 7 and not last and not (FM and kind == "X"):
                    bload(k + 1, kind, g - 7)
                if n + NR < NS and not (FM and kind == "X"):
                    rd(k, n + NR, last)
                if last:
                    flush(n, int(os.environ.get('FL', '2')))
                    f = g - (nt - 1)
                    if f >= 0:
                        if kind == "X":
                            pend.append((n + 1, 0, f))
                            pend.append((max(n + 1, NS - NR + 1 + 3 * FM), 1, f))
                            pend.sort()
                        else:
                            pend.append((n + 3, 0 if kind == "Y" else 1, f))
                    if kind == "X" and n == NS - NR + 3 * FM:
                        a.wait(lg=(("A", k, NS - 1),))
            if last:
                fill += ES
                for _i in range(8):
                    a.e(fill.pop(0))
                flush(1000, 1000)
                for op in fill:
                    a.e(op)
                return
            a.e(f"s_add_u32 s{sBo}, s{sBo}, {CHUNKB}")
            a.e(f"s_add_u32 s{sBo2}, s{sBo2}, {CHUNKB}")
            assert not a.lg
            if "mst" in EXP and _ == 0:
                stamp(5)
            if not CO:
                a.e("s_barrier")
            if "mst" in EXP and _ == 0:
                stamp(6)

        def period2(k, pos):
            if pos == 1:
                a.e(f"s_sub_u32 s{sCnt}, s{sCnt}, 1")
                a.e(f"s_cmp_eq_u32 s{sCnt}, 0")
                a.e(f"s_cbranch_scc1 L_{name}_mlast{role}")
                state[0] = (list(a.vm), k)
            period(k, pos)

        state = [None]
        body = steady(period2, 2, "nob" not in EXP)
        if "nob" in EXP:
            a.e("s_waitcnt vmcnt(0)")
        a.label(f"L_{name}_mloop{role}")
        a.L.extend(body)
        a.e(f"s_branch L_{name}_mloop{role}")
        a.label(f"L_{name}_mlast{role}")
        a.vm, a.lg = state[0][0], []
        vX0 = (vB, 126)
        a.e(f"v_and_b32 v{vX0[0]}, 15, v{vL}")
        a.e(f"v_and_b32 v{vX0[1]}, 7, v{vL}")
        a.e(f"v_lshlrev_b32 v{vX0[1]}, 4, v{vX0[1]}")
        a.e(f"v_lshl_add_u32 v{vX0[0]}, v{vX0[0]}, 7, v{vX0[1]}")
        a.e(f"v_lshrrev_b32 v{vX0[1]}, 4, v{vL}")
        a.e(f"v_lshl_add_u32 v{vX0[0]}, v{vX0[1]}, 11, v{vX0[0]}")
        if role == 1:
            a.e(f"s_lshl_b32 s36, s{sWv}, 14")
            a.e("s_add_u32 s37, s36, 8192")
        else:
            for sg, tab in ((36, [UNIT[4 + (h >> 1)][h & 1] for h in range(4)]),
                            (37, [UNIT[6 + (h >> 1)][h & 1] for h in range(4)])):
                a.e(f"s_mov_b32 s{sg}, {tab[0]}")
                for h in range(1, 4):
                    a.e(f"s_cmp_eq_u32 s{sH}, {h}")
                    a.e(f"s_cselect_b32 s{sg}, {tab[h]}, s{sg}")
        a.e(f"v_add_u32 v{vX0[1]}, s37, v{vX0[0]}")
        a.e(f"v_add_u32 v{vX0[0]}, s36, v{vX0[0]}")
        if os.environ.get(f"PL{role}"):
            a.e(f"s_setprio {os.environ.get(f'PL{role}')}")
        period(state[0][1], 1, True)
        stamp(8, False)
        rstamp(13)
        a.e("s_setprio 0")
        a.vm, a.lg = [], []

    a.e(f"s_cmp_ge_u32 s{sWv}, 4")
    a.e(f"s_cbranch_scc1 L_{name}_m2")
    vm0 = list(a.vm)
    mwave(1)
    a.e(f"s_branch L_{name}_epi")
    a.label(f"L_{name}_m2")
    a.vm, a.lg = list(vm0), []
    a.e(f"s_mul_i32 s37, s38, {2*FB6}")
    a.e(f"s_add_u32 s37, s37, {6*SEQB}")
    a.e(f"v_add_u32 v{vP[0]}, s37, v{vU}")
    a.e(f"v_add_u32 v{vP[2]}, s37, v{vS_}")
    a.e(f"v_add_u32 v{vP[1]}, {6*SEQB + 6*FB6}, v{vU}")
    a.e("s_cmp_eq_u32 s38, 0")
    a.e(f"s_cbranch_scc1 L_{name}_hh0")
    a.e(f"v_add_u32 v{vP[1]}, {6*SEQB}, v{vS_}")
    a.label(f"L_{name}_hh0")
    a.e("s_lshl_b32 s37, s38, 12")
    a.e("s_add_u32 s37, s37, s43")
    a.e(f"s_add_u32 s37, s37, {6*8192}")
    a.e(f"v_lshl_add_u32 v{vBZ}, v{vL}, 4, s37")
    mwave(2)
    a.e(f"s_branch L_{name}_epi")

    a.label(f"L_{name}_helper")
    a.vm, a.lg = [], []
    a.e("s_setprio 3")
    PB = (0, 32)
    XO = 64
    TMP = 76
    vX = 92
    vW = (96, 97, 98)

    def praw(b, half, p):
        return PB[b] + half * 16 + p * 4

    sXo2 = 27

    def xload(pair, p):
        if KSPLIT:
            half, q = p >> 1, p & 1
            for r in (q, q + 2):
                a.vmem(f"buffer_load_dwordx4 {vr(praw(pair & 1, half, r))}, v{vX+r}, {sr(sX)}, "
                       f"s{sXo2 if half else sXo} offen", ("X", pair))
            return
        for half in range(2):
            a.vmem(f"buffer_load_dwordx4 {vr(praw(pair & 1, half, p))}, v{vX+p}, {sr(sX)}, "
                   f"s{sXo} offen offset:{half*64}", ("X", pair))
        a.e(f"v_add_u32 v{vX+p}, 128, v{vX+p}")

    def uregs(chunk):
        return [praw((chunk >> 1) & 1, chunk & 1, p) for p in range(4)]

    def wr(chunk, i):
        if "nowr" in EXP:
            return
        u = uregs(chunk)
        reg, seq = [(XO, 3), (XO + 4, 4), (XO + 8, 5), (u[0], 0), (u[1], 1), (u[2], 2), (u[3], 6)][i]
        lds_throttle()
        if seq == 6:
            a.lds(f"ds_write_b128 v{vW[2]}, {vr(reg)} offset:{(chunk & 1)*BB6}", "W")
        else:
            a.lds(f"ds_write_b128 v{vW[seq >> 2]}, {vr(reg)} offset:{(seq & 3)*SEQB + (chunk & 1)*BB}", "W")

    def tr_ops(chunk):
        u = uregs(chunk)
        o = [u[1], u[2], XO, XO + 4, XO + 8]
        ops = []
        for d in range(4):
            lo = [TMP + p for p in range(4)]
            hi = [TMP + 8 + p for p in range(4)]
            for p in range(4):
                ops.append(f"v_lshlrev_b32 v{lo[p]}, 16, v{u[p]+d}")
                ops.append(f"v_and_b32 v{hi[p]}, s{sMask}, v{u[p]+d}")
            o1, r1 = eval_ops(lo, [TMP + 4 + i for i in range(4)])
            o2, r2 = eval_ops(hi, [TMP + 12 + i for i in range(4)])
            for x, y in zip(o1, o2):
                ops += [x, y]
            for i in range(5):
                ops.append(f"v_cvt_pk_bf16_f32 v{o[i]+d}, v{r1[i]}, v{r2[i]}")
        if "notr" in EXP:
            ops = ["s_nop 0"] * 8
        return ops

    if KSPLIT:
        a.e("v_lshlrev_b32 v8, 4, v6")
    for p in range(4):
        if KSPLIT:
            haddr(vX + p, 7, 8, p, 9)
        else:
            a.e(f"v_add_u32 v{vX+p}, {p*1024}, v7")
    a.e(f"v_and_b32 v{TMP}, 4, v5")
    a.e(f"v_lshrrev_b32 v{TMP}, 1, v{TMP}")
    a.e(f"v_xor_b32 v{TMP}, v6, v{TMP}")
    a.e(f"v_lshlrev_b32 v{TMP}, 4, v{TMP}")
    a.e(f"v_lshl_add_u32 v{TMP}, v5, 6, v{TMP}")
    a.e(f"s_mov_b32 s{sXo}, 0")
    a.e(f"s_mov_b32 s{sXo2}, {4*PLH}")
    kwait()
    stamp(2)
    P0 = os.environ.get("P0", "0")
    if P0 == "0" or KSPLIT:
        for p in range(4):
            xload(0, p)
            if p == 1 and P0 == "2":
                a.e("s_barrier")
    else:
        for half in range(2):
            for p in range(4):
                a.vmem(f"buffer_load_dwordx4 {vr(praw(0, half, p))}, v{vX+p}, {sr(sX)}, s{sXo} offen offset:{half*64}", ("X", 0))
            if half == 0 and P0 == "2":
                a.e("s_barrier")
        for p in range(4):
            a.e(f"v_add_u32 v{vX+p}, 128, v{vX+p}")
    if P0 != "2" and "b0" in EXP:
        a.e("s_barrier")
    a.e(f"s_mul_i32 s36, s42, {FB}")
    a.e(f"v_add_u32 v{vW[0]}, s36, v{TMP}")
    a.e(f"v_add_u32 v{vW[1]}, {4*SEQB}, v{vW[0]}")
    a.e(f"s_mul_i32 s36, s42, {FB6}")
    a.e(f"s_add_u32 s36, s36, {6*SEQB}")
    a.e(f"v_add_u32 v{vW[2]}, s36, v{TMP}")
    stamp(3)
    a.e(f"s_waitcnt vmcnt({0 if P0 == '0' else 4})")
    stamp(4)
    a.e(f"s_mov_b32 s{sK}, 0")
    a.e(f"s_mov_b32 s{sCnt}, {N//4}")
    a.e(f"s_cmp_ge_u32 s{sWv}, 12")
    a.e(f"s_cbranch_scc1 L_{name}_h2")

    def hwave(role):
        SH = 33 * int(os.environ.get(f"SH{role}", "0" if role == 1 else "4"))
        ahead = 2 if SH else 1
        a.vm, a.lg = [], []
        if role == 2 and not KSPLIT:
            a.e("s_load_dwordx2 s[48:49], s[0:1], 16")
        wr(0, 3)
        wr(0, 6)
        for op in tr_ops(0):
            a.e(op)
        for i in (0, 1, 2, 4, 5):
            wr(0, i)
        a.e("s_waitcnt vmcnt(0)")
        W2E = role == 2 and not KSPLIT and os.environ.get("W2", "1") == "3"
        NF = int(os.environ.get("NF", "2"))
        if KSPLIT:
            a.e(f"s_mov_b32 s{sXo}, {8*PLH}")
            a.e(f"s_mov_b32 s{sXo2}, {12*PLH}")
        X1 = os.environ.get("X1", "1")
        if X1 == "0":
            for p in range(4 if SH else NF):
                xload(1, p)
        stamp(5)
        a.wait(lg_all=True)
        stamp(6)
        a.e("s_barrier")
        stamp(7)
        rstamp(12)
        if X1 == "1":
            for p in range(4 if SH else NF):
                xload(1, p)
        PA, PB_ = os.environ.get(f'PH{role}', '11' if role == 1 else '00')
        a.e(f"s_setprio {PA}")
        for op in tr_ops(1)[:SH]:
            a.e(op)
        if W2E:
            a.e("s_lshr_b32 s52, s2, 6")
            a.e("s_lshl_b32 s52, s52, 3")
            a.e("s_bfe_u32 s36, s2, 0x10005")
            a.e("s_add_u32 s52, s52, s36")
            a.e("s_lshl_b32 s52, s52, 17")
            a.e("s_bfe_u32 s36, s2, 0x30002")
            a.e("s_lshl_b32 s36, s36, 1")
            a.e(f"s_and_b32 s37, s{sH}, 1")
            a.e("s_add_u32 s36, s36, s37")
            a.e("s_lshl_b32 s36, s36, 13")
            a.e("s_add_u32 s52, s52, s36")
            a.e("s_and_b32 s36, s2, 3")
            a.e("s_lshl_b32 s36, s36, 1")
            a.e(f"s_lshr_b32 s37, s{sH}, 1")
            a.e("s_add_u32 s36, s36, s37")
            a.e("s_lshl_b32 s36, s36, 6")
            a.e("s_add_u32 s52, s52, s36")
            a.e(f"s_mov_b32 s50, {31*131072}")
            a.e("s_mov_b32 s51, 0x00020000")
            a.e(f"v_lshrrev_b32 v99, 4, v{vL}")
            a.e("v_lshlrev_b32 v99, 11, v99")
            a.e(f"v_and_b32 v100, 15, v{vL}")
            a.e("v_lshl_add_u32 v99, v100, 2, v99")

        def w2load(pos):
            a.e(f"s_cmp_lg_u32 s{sCnt}, {os.environ.get('W2I', '3')}")
            a.e(f"s_cbranch_scc1 L_{name}_w2s{pos}")
            for e in range(4):
                a.e(f"buffer_load_dword v{100+pos*4+e}, v99, s[48:51], s52 offen offset:{e*512}")
            a.e(f"s_add_u32 s52, s52, {2*131072}")
            a.label(f"L_{name}_w2s{pos}")
        VPF = int(os.environ.get("VPF", "0")) if role == 1 and not KSPLIT and XL == 3 else 0
        if VPF:
            a.e(f"s_lshl_b32 s36, s{sCb}, 6")
            a.e(f"s_lshl_b32 s37, s{sH}, 3")
            a.e("s_add_u32 s36, s36, s37")
            a.e("s_lshl_b32 s36, s36, 10")
            a.e("s_add_u32 s36, s36, s41")
            a.e(f"s_add_u32 s36, s36, {VPF*128}")
            a.e(f"v_and_b32 v100, 7, v{vL}")
            a.e("v_lshl_add_u32 v100, v100, 10, s36")

        def vpf(k):
            a.e(f"s_cmp_lt_u32 s{sK}, {N - 2*VPF}")
            a.e(f"s_cselect_b32 s36, 0, {OOB}")
            a.vmem(f"buffer_load_dword v99, v100, {sr(sX)}, s36 offen", "PF")
            a.e(f"v_add_u32 v100, {(128 - 32768) & 0xffffffff if k & 1 else 32768}, v100")
        XP = [float(x) for x in os.environ.get(f"XP{role}", "0,0,0,0" if SH else "0.3,0.7,0.1,0.5").split(",")]

        def period(k, pos, last=False):
            pair = (k >> 1) + 2 if SH else (k + 3) >> 1
            first = not (k & 1) if SH else (k & 1)
            if pos == 4 - ahead and not last:
                a.e(f"s_cmp_eq_u32 s{sCnt}, 1")
                a.e(f"s_cbranch_scc1 L_{name}_hlast{role}")
            if "hst" in EXP and pos == 1:
                stamp(2)
            V1 = tr_ops(k + 1)[SH:]
            V2 = [] if last else tr_ops(k + 2)[:SH]
            V = V1 + V2
            n = len(V)
            ev = {}

            def at(i, f):
                ev.setdefault(max(0, min(int(i), n)), []).append(f)

            def stores():
                if "hst" in EXP and pos == 1:
                    stamp(3)
                for i in range(7):
                    wr(k + 1, i)
                if "hst" in EXP and pos == 1:
                    stamp(4)
                if PA != PB_:
                    a.e(f"s_setprio {PB_}")
            if PA != PB_:
                a.e(f"s_setprio {PA}")
            if VPF and not last:
                at(float(os.environ.get("VPP", "1.0")) * n, lambda: vpf(k))
            at(len(V1), stores)
            if W2E and not last:
                at(len(V1) + 1, lambda: w2load(pos))
            if not last:
                if not KSPLIT:
                    a.e(f"s_cmp_lt_u32 s{sK}, {N - 2 - ahead}")
                    a.e(f"s_cselect_b32 s{sXo}, 0, {OOB}")
                elif first:
                    a.e(f"s_add_u32 s{sXo}, s{sXo}, {8*PLH}")
                    a.e(f"s_add_u32 s{sXo2}, s{sXo2}, {8*PLH}")
                at(len(V1) if SH else 0, lambda: a.wait(vm=(("X", (k + ahead) >> 1),)))
                if "nox" not in EXP:
                    for p in (range(NF) if first else range(NF, 4)):
                        w = len(V1) + XP[p] * SH if SH and first else XP[p] * n
                        at(w, lambda p=p: xload(pair, p))
            for i in range(n + 1):
                for f in ev.get(i, []):
                    f()
                if i < n:
                    a.e(V[i])
            if not last:
                a.e(f"s_add_u32 s{sK}, s{sK}, 1")
            if "hst" in EXP and pos == 1:
                stamp(5)
            a.e("s_waitcnt lgkmcnt(0)")
            a.lg = []
            a.e("s_barrier")
            if "hst" in EXP and pos == 1:
                stamp(6)

        body = steady(period, 4, "nox" not in EXP)
        a.label(f"L_{name}_hloop{role}")
        a.L.extend(body)
        a.e(f"s_sub_u32 s{sCnt}, s{sCnt}, 1")
        a.e(f"s_branch L_{name}_hloop{role}")
        a.label(f"L_{name}_hlast{role}")
        a.vm, a.lg = [], []

        def last_period():
            vm = a.vm
            a.vm, a.lg = [], []
            if SH:
                a.e(f"s_mov_b32 s{sMask}, 0xffff0000")
                period(2, 2, True)
            a.vm = vm
        if role == 1 or KSPLIT or W2P:
            last_period()
        else:
            assert SH
            W2L = os.environ.get("W2L", "0") == "1"
            if W2L:
                last_period()
            a.e("s_waitcnt vmcnt(0)")
            a.e(f"s_mov_b32 s58, s{sWv}")
            a.e(f"s_lshl_b32 s20, s2, 2")
            a.e(f"s_add_u32 s20, s20, s{sH}")
            a.e(f"v_mov_b32 v1, v{vL}")
            if W2E:
                wprep2(a, 16, WS_W2P, last_period, pre=100)
            elif os.environ.get("W2", "1") == "2":
                wprep2(a, 16, WS_W2P, last_period, LB=False)
            else:
                wprep(a, 16, WS_W2P, True, barrier=None if W2L else last_period)
            a.e(f"s_mov_b32 s{sWv}, s58")
        if role == 1 and KSPLIT and "tailwarm" in EXP:
            add64(a, sW, 30, WS_WF)
            a.e(f"s_mov_b32 s{sW+2}, {262144 + 32768}")
            a.e(f"s_mov_b32 s{sW+3}, 0x00020000")
            a.e("s_lshr_b32 s36, s2, 3")
            a.e("s_lshl_b32 s36, s36, 2")
            a.e(f"s_add_u32 s36, s36, s{sH}")
            a.e("s_mul_i32 s36, s36, 2304")
            a.e(f"v_lshlrev_b32 v1, 4, v{vL}")
            for i in range(3):
                a.e(f"buffer_load_dwordx4 v[4:7], v1, {sr(sW)}, s36 offen offset:{i*1024}")
        if role == 1 and "tw" in EXP:
            a.e(f"s_cmp_ge_u32 s2, {os.environ.get('TWN', '32')}")
            a.e(f"s_cbranch_scc1 L_{name}_ntw")
            a.e("s_getpc_b64 s[36:37]")
            a.label(f"L_{name}_pc")
            a.e(f"s_lshl_b32 s38, s{sH}, 13")
            a.e(f"s_add_u32 s38, s38, L_{name}_epi-L_{name}_pc")
            a.e(f"v_lshl_add_u32 v2, v{vL}, 7, s38")
            a.e(f"v_min_u32 v2, {0x7fc0de01 + KSPLIT:#x}, v2")
            a.e("v_mov_b32 v3, s37")
            a.e("v_add_co_u32 v2, vcc, s36, v2")
            a.e("s_nop 1")
            a.e("v_addc_co_u32 v3, vcc, 0, v3, vcc")
            a.e("global_load_dword v4, v[2:3], off")
            a.label(f"L_{name}_ntw")
        stamp(8)
        rstamp(13)
        a.e(f"s_branch L_{name}_end")

    hwave(1)
    a.label(f"L_{name}_h2")
    hwave(2)

    a.label(f"L_{name}_epi")
    K = [sr(x, 2) for x in KS]
    a.e("s_waitcnt lgkmcnt(0)")
    a.e("s_barrier")
    if "est" in EXP:
        stamp(2)
    a.e(f"v_cndmask_b32 v{vO}, v{t3}, v{t2}, vcc")

    def P(c, s, r=0):
        return c * 32 + s * 4 + r
    Y = 64
    TB = 96
    ELS = (0, 1, 2)
    for c in range(2):
        for s_ in range(8):
            if c == 1 and s_ == 7:
                a.e("s_waitcnt lgkmcnt(7)")
            u = UNIT[s_][c]
            a.e(f"ds_read_b128 {vr(P(c, s_))}, v{R0[u >> 16]} offset:{u & 0xffff}")

    def p2(x):
        return vr(x, 2)

    def padd(d, x, y):
        return f"v_pk_add_f32 {p2(d)}, {p2(x)}, {p2(y)}"

    def psub(d, x, y):
        return f"v_pk_add_f32 {p2(d)}, {p2(x)}, {p2(y)} neg_lo:[0,1] neg_hi:[0,1]"

    def pfma(d, x, k, y, neg=False):
        return f"v_pk_fma_f32 {p2(d)}, {p2(x)}, {k}, {p2(y)}" + (" neg_lo:[0,0,1] neg_hi:[0,0,1]" if neg else "")

    def interp(c):
        seq = []
        for r in (0, 2):
            E0, A, B, C, D, Q, E6, E6b = (P(c, x, r) for x in range(8))
            y = [Y + ph * 8 + c * 4 + r for ph in range(4)]
            S1, G = E6, C
            seq.append([
                padd(y[3], E6, E6b),
                padd(S1, A, B),
                psub(A, A, B),
                padd(y[1], C, D),
                psub(G, C, D),
                pfma(y[1], S1, K[0], y[1]),
                pfma(Q, E0, K[3], Q),
                pfma(y[1], E0, K[1], y[1]),
                psub(S1, S1, E0),
                pfma(y[1], y[3], K[2], y[1]),
                psub(S1, S1, y[3]),
                pfma(Q, y[3], K[6], Q),
                psub(B, S1, y[1]),
                pfma(Q, y[1], K[5], Q),
                f"v_pk_mul_f32 {p2(y[2])}, {p2(G)}, {K[9]}",
                pfma(Q, B, K[4], Q),
                pfma(y[2], A, K[10], y[2]),
                pfma(y[0], A, K[7], Q, True),
                pfma(y[0], G, K[8], y[0]),
                pfma(y[2], y[0], K[11], y[2]),
                psub(A, A, y[0]),
                psub(A, A, y[2]),
            ])
        for ops in zip(*seq):
            for op in ops:
                a.e(op)

    a.e("s_waitcnt lgkmcnt(8)")
    interp(0)
    a.e("s_waitcnt lgkmcnt(0)")
    interp(1)
    if "est" in EXP:
        stamp(3)
    a.e("s_mov_b32 s36, 0x00010001")
    a.e("s_mov_b32 s37, 0x00010001")
    a.e("s_mov_b64 exec, s[36:37]")
    for k in range(3):
        for c in range(2):
            a.e(f"ds_write_b128 v{vBW}, {vr(P(c, ELS[k]))} offset:{(k*2+c)*16}")
    a.e("s_mov_b64 exec, -1")

    def finish(ph):
        ys = [Y + ph * 8 + i for i in range(8)]
        if not KSPLIT:
            ts = [16 + (ph & 1) * 8 + i for i in range(8)]
            ev = list(zip(ys[::2], ts[::2]))
            for y, t in ev:
                a.e(f"v_pk_mul_f32 {p2(t)}, {p2(y)}, {p2(y)}")
            for y, t in ev:
                a.e(pfma(t, t, K[12], 44))
            for y, t in ev:
                a.e(f"v_pk_mul_f32 {p2(t)}, {p2(t)}, {p2(y)}")
            for t in ts:
                a.e(f"v_exp_f32 v{t}, v{t}")
            for y, t in ev:
                a.e(f"v_pk_add_f32 {p2(t)}, {p2(t)}, {K[13]}")
            for t in ts:
                a.e(f"v_rcp_f32 v{t}, v{t}")
            for y, t in ev:
                a.e(f"v_pk_mul_f32 {p2(y)}, {p2(y)}, {p2(t)}")
        o = 48 + ph * 4
        for r in range(4):
            a.e(f"v_cvt_pk_bf16_f32 v{o+r}, v{ys[r]}, v{ys[4+r]}")
        so = ph * PLF if KSPLIT else ((ph + 3) & 3) * PLH + ((ph + 7) >> 2) * 64
        a.e(f"s_mov_b32 s44, {so}")
        a.e(f"buffer_store_dwordx4 {vr(o)}, v{vO}, {sr(sO)}, s44 offen{NTF if KSPLIT else NTH}")

    a.e(f"v_mov_b32 v44, {f32hex(k0)}")
    a.e("v_mov_b32 v45, v44")
    finish(0)
    a.e("s_waitcnt lgkmcnt(0)")
    a.e("s_barrier")
    if "est" in EXP:
        stamp(4)
    for i in range(6):
        a.e(f"ds_read_b128 {vr(TB+4*i)}, v{vBW} offset:{512 + i*16}")
    for ph in range(1, 4):
        a.e(f"s_waitcnt lgkmcnt({6 - 2*ph})")
        for c in range(2):
            for r in range(4):
                i = (ph - 1) * 8 + c * 4 + r
                a.e(f"v_mov_b32_dpp v{TB+i}, v{P(c, ELS[ph-1], r)} row_shl:1 row_mask:0xf bank_mask:0xf")
        for i in range(0, 8, 2):
            a.e(padd(Y + ph * 8 + i, Y + ph * 8 + i, TB + (ph - 1) * 8 + i))
        finish(ph)
    if "est" in EXP:
        stamp(5)
    RB = os.environ.get("RB", "00")[int(KSPLIT)]
    if RB != "0":
        if not KSPLIT:
            a.e(f"s_cmp_ge_u32 s{sCb}, {RB}")
            a.e(f"s_cbranch_scc1 L_{name}_end")
        a.e("s_waitcnt vmcnt(0)")
        for ph in range(4):
            so = ph * PLF if KSPLIT else ((ph + 3) & 3) * PLH + ((ph + 7) >> 2) * 64
            a.e(f"s_mov_b32 s44, {so}")
            a.e(f"buffer_load_dword v0, v{vO}, {sr(sO)}, s44 offen")
    a.label(f"L_{name}_end")
    if STAMP:
        a.e("s_waitcnt vmcnt(0)")
        stamp(9, False)
        a.e(f"s_memrealtime s[{sSt+22}:{sSt+23}]")
        a.e(f"s_cmp_lg_u32 s{sWv}, {os.environ.get('SW', '0')}")
        a.e(f"s_cbranch_scc1 L_{name}_done")
        a.e("s_lshl_b32 s36, s2, 7")
        a.e(f"s_add_u32 s36, s36, {WS_STAMP + cfg['stamp']*0x10000}")
        add64(a, 40, 30, "s36")
        a.e("s_mov_b32 s42, 128")
        a.e("s_mov_b32 s43, 0x00020000")
        a.e("s_waitcnt lgkmcnt(0)")
        a.e("v_mov_b32 v8, 0")
        for i in range(28):
            a.e(f"v_mov_b32 v0, s{sSt+i}")
            a.e(f"buffer_store_dword v0, v8, s[40:43], 0 offen offset:{4*i}")
    a.label(f"L_{name}_done")
    a.e("s_endpgm")
    return a.L, TOPB + 40960, 128


CONV1 = dict(tin=16000, tout=8000, nchunk=16, ksplit=False, in_arg=0, in_off=0, w_off=WS_W1P, out_off=WS_H, stamp=0)
CONV2 = dict(tin=8000, tout=4000, nchunk=8, ksplit=True, in_arg=72, in_off=WS_H, w_off=WS_W2P, out_off=WS_FP, stamp=1)

HEADER = f"""; Kernarg layout for this problem (80 bytes, ptrs only, base s[0:1]):
"""


def main():
    ks = [("prep_kernel", 256, 640 if W2P else 384) + prep_kernel("prep_kernel"),
          ("conv1_kernel", 256, 1024) + conv_kernel("conv1_kernel", CONV1),
          ("conv2_kernel", 256, 1024) + conv_kernel("conv2_kernel", CONV2)]
    ks = joint_kernels(ks)
    out = HEADER
    for nm, grid, block, code, lds, vg in ks:
        out += f"; @launch kernel={nm} grid=({grid},1,1) block=({block},1,1) lds={lds}\n"
    out += '.amdgcn_target "amdgcn-amd-amdhsa--gfx950"\n.text\n'
    for nm, grid, block, code, lds, vg in ks:
        if "noalign" not in EXP:
            code = align8(code)
        out += f".globl {nm}\n.p2align 8\n.type {nm},@function\n" + "\n".join(code) + "\n"
    out += '.section .rodata,"a"\n'
    for nm, grid, block, code, lds, vg in ks:
        out += ".p2align 6\n" + kd(nm, vg)
    out = out.replace("0x7fc0de00", "L_joint_kernel_done-L_prep_kernel_pc")
    out = out.replace("0x7fc0de01", "L_conv2_kernel_done-L_conv1_kernel_pc")
    out = out.replace("0x7fc0de02", "L_joint_kernel_done-L_conv2_kernel_pc")
    path = sys.argv[1] if len(sys.argv) > 1 else "standalone__seq2seq_rnn_t_joint__speech.s"
    open(path, "w").write(out)


if __name__ == "__main__":
    main()
```

```python
import os
from asmlib import Asm, vr, sr, f32hex

EXP = os.environ.get("EXP", "").split(",")
WS_FP = 0x1A00000
WS_FPS = 0x800000
PLF = int(os.environ.get('PLF', 65536))
WS_WF = 0x2A00000
WS_WO = 0x2A20000
WS_GE = 0x2A40000
WS_STAMP = 0x3000000
C2 = 2.0 * 1.4426950408889634
RANGE = 120.0


def add64(a, d, lo, off):
    a.e(f"s_add_u32 s{d}, s{lo}, {off}")
    a.e(f"s_addc_u32 s{d+1}, s{lo+1}, 0")


def small_head(a, name):
    a.e("s_cmp_ge_u32 s2, 24")
    a.e(f"s_cbranch_scc1 L_{name}_done")
    a.e("s_lshr_b32 s41, s2, 3")
    a.e("s_and_b32 s42, s2, 7")
    a.e("s_sub_u32 s43, s40, 4")
    a.e("s_lshl_b32 s26, s43, 16")
    a.e("s_lshl_b32 s5, s42, 6")
    a.e("s_add_u32 s26, s26, s5")
    a.e("s_mov_b32 s10, 131072")
    a.e("s_mov_b32 s11, 0x00020000")
    a.e("v_lshrrev_b32 v2, 4, v1")
    a.e("v_lshlrev_b32 v2, 12, v2")
    a.e("v_and_b32 v3, 15, v1")
    a.e("v_lshl_add_u32 v2, v3, 2, v2")
    a.e("v_mov_b32 v9, 0")
    a.e("ds_write_b32 v9, v9 offset:2048")
    a.e("s_waitcnt lgkmcnt(0)")
    a.e("s_cmp_eq_u32 s41, 1")
    a.e("s_cselect_b32 s8, s56, s52")
    a.e("s_cselect_b32 s9, s57, s53")
    a.e("s_cmp_eq_u32 s41, 2")
    a.e("s_cselect_b32 s8, s54, s8")
    a.e("s_cselect_b32 s9, s55, s9")
    a.e("s_barrier")
    small_g(a, name)
    for k in range(4):
        for e in range(8):
            a.e(f"buffer_load_dword v{16+k*8+e}, v2, s[8:11], s26 offen offset:{e*512}")
        if k < 3:
            a.e("s_add_u32 s26, s26, 16384")
    a.e(f"s_branch L_{name}_small")


def small_g(a, name):
    a.e("s_cmp_lg_u32 s41, 2")
    a.e(f"s_cbranch_scc1 L_{name}_nog")
    a.e("s_mov_b32 s16, s50")
    a.e("s_mov_b32 s17, s51")
    a.e("s_mov_b32 s18, 8192")
    a.e("s_mov_b32 s19, 0x00020000")
    a.e("v_and_b32 v6, 0x30, v1")
    a.e("v_lshl_add_u32 v6, v3, 9, v6")
    a.e("s_lshl_b32 s6, s43, 8")
    for k in range(4):
        a.e(f"buffer_load_dwordx4 {vr(80+4*k)}, v6, s[16:19], s6 offen offset:{k*64}")
    a.label(f"L_{name}_nog")


def small_tail(a, name):
    a.label(f"L_{name}_small")
    R, O = 16, 48
    a.e("v_lshrrev_b32 v2, 4, v1")
    a.e("s_lshl_b32 s24, s41, 17")
    a.e(f"s_add_u32 s24, s24, {WS_WF}")
    add64(a, 12, 30, "s24")
    a.e("s_mov_b32 s14, 131072")
    a.e("s_mov_b32 s15, 0x00020000")
    a.e("s_mov_b32 s32, 0x05040100")
    a.e("s_mov_b32 s33, 0x07060302")
    a.e("v_lshlrev_b32 v4, 4, v1")
    a.e("s_lshl_b32 s24, s42, 14")
    a.e("s_lshl_b32 s25, s43, 13")
    a.e("s_add_u32 s24, s24, s25")
    a.e("s_add_u32 s25, s24, 4096")
    a.e("s_waitcnt vmcnt(0)")
    for k in range(4):
        for jn in range(2):
            for e2 in range(4):
                a.e(f"v_perm_b32 v{O+(k*2+jn)*4+e2}, v{R+k*8+2*e2+1}, v{R+k*8+2*e2}, s{32+jn}")
    a.e("s_cmp_eq_u32 s41, 2")
    a.e(f"s_cbranch_scc1 L_{name}_ge")
    for i in range(8):
        a.e(f"buffer_store_dwordx4 {vr(O+4*i)}, v4, s[12:15], s{24+(i>>2)} offen offset:{(i&3)*1024} sc1")
    a.e("s_endpgm")
    a.label(f"L_{name}_ge")
    ACC = 96
    for k in range(4):
        for jn in range(2):
            c = "0" if k == 0 else vr(ACC + 4 * jn)
            a.e(f"v_mfma_f32_16x16x32_bf16 {vr(ACC+4*jn)}, {vr(O+(k*2+jn)*4)}, {vr(80+4*k)}, {c}")
    a.e("v_mov_b32 v7, v4")
    a.e("v_mov_b32 v10, 1")
    a.e("s_nop 0")
    a.e("s_mov_b32 s14, 16384")
    a.e("v_lshlrev_b32 v8, 10, v3")
    a.e("v_lshl_add_u32 v8, v2, 5, v8")
    a.e("s_lshl_b32 s24, s42, 7")
    a.e("s_mov_b32 s34, 0xffff0000")
    a.e(f"s_mov_b32 s35, {f32hex(C2)}")
    a.e("s_cmp_eq_u32 s43, 0")
    a.e(f"s_cbranch_scc1 L_{name}_ge0")
    a.e(f"ds_write_b128 v7, {vr(ACC)}")
    a.e(f"ds_write_b128 v7, {vr(ACC+4)} offset:1024")
    a.e("ds_write_b32 v9, v10 offset:2048")
    a.e("s_endpgm")
    a.label(f"L_{name}_ge0")
    a.e("ds_read_b32 v10, v9 offset:2048")
    a.e("s_waitcnt lgkmcnt(0)")
    a.e("v_readfirstlane_b32 s27, v10")
    a.e("s_cmp_eq_u32 s27, 0")
    a.e(f"s_cbranch_scc1 L_{name}_ge0")
    a.e(f"ds_read_b128 {vr(16)}, v7")
    a.e(f"ds_read_b128 {vr(20)}, v7 offset:1024")
    a.e("s_waitcnt lgkmcnt(0)")
    for r in range(8):
        a.e(f"v_add_f32 v{16+r}, v{16+r}, v{ACC+r}")
    for i in range(4):
        a.e(f"v_cvt_pk_bf16_f32 v{48+i}, v{16+i}, v{20+i}")
    for i in range(4):
        a.e(f"v_lshlrev_b32 v{56+2*i}, 16, v{48+i}")
        a.e(f"v_and_b32 v{57+2*i}, s34, v{48+i}")
    for r in range(8):
        a.e(f"v_mul_f32 v{56+r}, s35, v{56+r}")
    a.e(f"buffer_store_dwordx4 {vr(56)}, v8, s[12:15], s24 offen sc1")
    a.e(f"buffer_store_dwordx4 {vr(60)}, v8, s[12:15], s24 offen offset:16 sc1")
    for r in range(8):
        a.e(f"v_exp_f32 v{64+r}, v{56+r}")
    a.e("v_max3_f32 v72, |v56|, |v57|, |v58|")
    a.e("v_max3_f32 v72, |v59|, |v60|, v72")
    a.e("v_max3_f32 v72, |v61|, |v62|, v72")
    a.e("v_max_f32 v72, |v63|, v72")
    add64(a, 12, 12, 16384)
    a.e(f"v_cmp_lt_f32 vcc, {f32hex(RANGE)}, v72")
    a.e(f"buffer_store_dwordx4 {vr(64)}, v8, s[12:15], s24 offen sc1")
    a.e(f"buffer_store_dwordx4 {vr(68)}, v8, s[12:15], s24 offen offset:16 sc1")
    add64(a, 12, 12, 16384)
    a.e("s_or_b32 s26, vcc_lo, vcc_hi")
    a.e("s_lshl_b32 s24, s42, 2")
    a.e("v_mov_b32 v73, s26")
    a.e("v_mov_b32 v74, 0")
    a.e("buffer_store_dword v73, v74, s[12:15], s24 offen sc1")
    a.e("s_endpgm")


def joint_kernel(name):
    a = Asm()
    NWG = 250
    STAMP = "stamp" in EXP
    FP = 528
    EP = 144
    J_B, F_B = 0, 32768
    E_B = F_B + 32 * FP
    GE_B = E_B + 8 * 36 * EP
    C_B = GE_B + 8 * 1040
    LDS = C_B + 16
    SPIN = 'nospin' not in EXP
    sF, sW, sO, sG = 8, 12, 16, 40
    sWv, sV, sCnt = 20, 21, 22
    sSt = 64
    vL, vL16 = 127, 126
    NTO = os.environ.get("NTO", " nt")

    def stamp(i, fence=True):
        if STAMP:
            a.e(f"s_memtime s[{sSt+2*i}:{sSt+2*i+1}]")
            if fence:
                a.e("s_waitcnt lgkmcnt(0)")
                a.lg = []

    def rstamp(i):
        if STAMP:
            a.e(f"s_memrealtime s[{sSt+2*i}:{sSt+2*i+1}]")
            a.e("s_waitcnt lgkmcnt(0)")
            a.lg = []

    a.label(name)
    if "local" in EXP:
        a.e("s_cmp_ge_u32 s2, 256")
        a.e(f"s_cbranch_scc1 L_{name}_done")
        a.e("s_and_b32 s3, s2, 7")
        a.e("s_lshr_b32 s2, s2, 3")
        a.e("s_mul_i32 s4, s3, 125")
        a.e("s_add_u32 s5, s4, 128")
        a.e("s_add_u32 s4, s4, 3")
        a.e("s_lshr_b32 s4, s4, 2")
        a.e("s_lshr_b32 s5, s5, 2")
        a.e("s_add_u32 s2, s2, s4")
        a.e("s_cmp_ge_u32 s2, s5")
    else:
        a.e(f"s_cmp_ge_u32 s2, {NWG}")
    a.e(f"s_cbranch_scc1 L_{name}_done")
    if STAMP:
        for i in range(28):
            a.e(f"s_mov_b32 s{sSt+i}, 0")
        a.e(f"s_memrealtime s[{sSt+20}:{sSt+21}]")
    stamp(0, False)
    a.e("s_load_dwordx2 s[28:29], s[0:1], 56")
    a.e("s_load_dwordx2 s[30:31], s[0:1], 72")
    a.e(f"v_readfirstlane_b32 s{sWv}, v0")
    a.e(f"s_lshr_b32 s{sWv}, s{sWv}, 6")
    a.e(f"s_and_b32 s{sV}, s{sWv}, 7")
    a.e(f"v_and_b32 v{vL}, 63, v0")
    a.e(f"v_lshlrev_b32 v{vL16}, 4, v{vL}")
    a.e(f"s_cmp_ge_u32 s{sWv}, 8")
    a.e(f"s_mov_b32 s33, {WS_WO}")
    a.e(f"s_cselect_b32 s33, {WS_WF}, s33")
    a.e(f"s_lshl_b32 s36, s{sV}, 14")
    a.e("s_add_u32 s33, s33, s36")
    a.e(f"s_mov_b32 s{sW+2}, 16384")
    a.e(f"s_mov_b32 s{sW+3}, 0x00020000")
    a.e("s_lshl_b32 s35, s2, 9")
    a.e("s_cmp_ge_u32 s2, 125")
    a.e(f"s_cselect_b32 s36, {32*PLF - 125*512}, 0")
    a.e("s_cselect_b32 s34, 8192, 0")
    a.e("s_add_u32 s35, s35, s36")
    a.e(f"s_add_u32 s34, s34, {WS_GE}")
    a.e(f"s_mov_b32 s{sF+2}, {WS_FPS + 64*PLF}")
    a.e(f"s_mov_b32 s{sF+3}, 0x00020000")
    a.e(f"s_mov_b32 s{sG+2}, {16384 + 8192}")
    a.e(f"s_mov_b32 s{sG+3}, 0x00020000")
    a.e("s_waitcnt lgkmcnt(0)")
    add64(a, sW, 30, "s33")
    add64(a, sG, 30, "s34")
    W = 0

    def arrive_wait(mine, other, lbl, v):
        a.e(f"v_mov_b32 v{v}, {C_B}")
        a.e(f"v_mov_b32 v{v+1}, 1")
        a.e("s_mov_b64 exec, 1")
        a.e(f"ds_add_u32 v{v}, v{v+1} offset:{4*mine}")
        a.e("s_mov_b64 exec, -1")
        a.label(lbl)
        a.e(f"ds_read_b32 v{v+1}, v{v} offset:{4*other}")
        a.e("s_waitcnt lgkmcnt(0)")
        a.e(f"v_readfirstlane_b32 s37, v{v+1}")
        a.e("s_cmp_ge_u32 s37, 8")
        a.e(f"s_cbranch_scc1 {lbl}_d")
        a.e("s_sleep 1")
        a.e(f"s_branch {lbl}")
        a.label(f"{lbl}_d")

    def wload(ks):
        if ks % 2 == 0:
            a.e(f"s_mov_b32 s36, {ks*2048}")
        for jn in range(2):
            i = ks * 2 + jn
            a.vmem(f"buffer_load_dwordx4 {vr(W+4*i)}, v{vL16}, {sr(sW)}, s36 offen offset:{(i%4)*1024}", ("W", ks))

    a.e(f"s_cmp_ge_u32 s{sWv}, 8")
    a.e(f"s_cbranch_scc1 L_{name}_T")

    add64(a, sF, 30, WS_FP)
    X = 64
    a.e(f"v_mov_b32 v0, {C_B}")
    a.e("v_mov_b32 v2, 0")
    a.e("v_mov_b32 v3, 0")
    a.e("ds_write_b64 v0, v[2:3]")
    a.e(f"v_lshrrev_b32 v124, 5, v{vL}")
    a.e(f"v_and_b32 v123, 0x1ff, v{vL16}")
    a.e(f"v_mul_u32_u24 v125, {PLF}, v124")
    a.e("v_add_u32 v123, v125, v123")
    a.e(f"s_mul_i32 s36, s{sV}, {4*PLF}")
    a.e("s_add_u32 s36, s36, s35")
    for r2 in range(2):
        a.e(f"s_add_u32 s37, s36, {WS_FPS}")
        a.vmem(f"buffer_load_dwordx4 {vr(X+4*r2)}, v123, {sr(sF)}, s36 offen", ("F", r2))
        a.vmem(f"buffer_load_dwordx4 {vr(X+8+4*r2)}, v123, {sr(sF)}, s37 offen", ("F", r2))
        if r2 == 0:
            a.e(f"s_add_u32 s36, s36, {2*PLF}")
    a.e(f"s_lshl_b32 s38, s{sV}, 10")
    a.e("s_add_u32 s38, s38, 16384")
    a.vmem(f"buffer_load_dwordx4 {vr(X+16)}, v{vL16}, {sr(sG)}, s38 offen", "G")
    a.e("s_waitcnt lgkmcnt(0)")
    stamp(1)
    a.e("s_barrier")
    stamp(5)
    a.e("s_lshl_b32 s35, s2, 17")
    add64(a, sO, 28, "s35")
    a.e(f"s_mov_b32 s{sO+2}, 131072")
    a.e(f"s_mov_b32 s{sO+3}, 0x00020000")
    k0 = -2.0 * 1.4426950408889634 * 0.7978845608028654
    a.e(f"s_mov_b32 s46, {f32hex(k0 * 0.044715)}")
    a.e("s_mov_b32 s47, s46")
    a.e(f"v_mov_b32 v120, {f32hex(k0)}")
    a.e("v_mov_b32 v121, v120")
    a.e("s_mov_b32 s48, 1.0")
    a.e("s_mov_b32 s49, 1.0")
    a.e(f"v_bfe_u32 v123, v{vL}, 2, 3")
    a.e("v_lshl_add_u32 v124, v123, 2, v124")
    a.e(f"v_mul_u32_u24 v124, {FP}, v124")
    a.e(f"v_and_b32 v123, 0x30, v{vL16}")
    a.e(f"s_lshl_b32 s36, s{sV}, 6")
    a.e("v_add3_u32 v124, v124, v123, s36")
    a.e("s_mov_b32 s45, 0xffff0000")
    a.e(f"s_mul_i32 s36, s{sV}, 1040")
    a.e(f"s_add_u32 s36, s36, {GE_B}")
    a.e(f"v_add_u32 v123, s36, v{vL16}")
    a.e(f"s_mov_b32 s{sCnt}, 2")
    a.e("s_waitcnt vmcnt(3)")
    stamp(6)
    a.label(f"L_{name}_floop")

    def p2(x):
        return vr(x, 2)
    ys = [88 + i for i in range(8)]
    ts = [96 + i for i in range(8)]
    ev = list(zip(ys[::2], ts[::2]))
    for i in range(4):
        a.e(f"v_lshlrev_b32 v{ys[2*i]}, 16, v{X+i}")
        a.e(f"v_and_b32 v{ys[2*i+1]}, s45, v{X+i}")
        a.e(f"v_lshlrev_b32 v{ts[2*i]}, 16, v{X+8+i}")
        a.e(f"v_and_b32 v{ts[2*i+1]}, s45, v{X+8+i}")
    for y, t in ev:
        a.e(f"v_pk_add_f32 {p2(y)}, {p2(y)}, {p2(t)}")
    for y, t in ev:
        a.e(f"v_pk_mul_f32 {p2(t)}, {p2(y)}, {p2(y)}")
    for y, t in ev:
        a.e(f"v_pk_fma_f32 {p2(t)}, {p2(t)}, s[46:47], v[120:121]")
    for y, t in ev:
        a.e(f"v_pk_mul_f32 {p2(t)}, {p2(t)}, {p2(y)}")
    for t in ts:
        a.e(f"v_exp_f32 v{t}, v{t}")
    for y, t in ev:
        a.e(f"v_pk_add_f32 {p2(t)}, {p2(t)}, s[48:49]")
    for t in ts:
        a.e(f"v_rcp_f32 v{t}, v{t}")
    for y, t in ev:
        a.e(f"v_pk_mul_f32 {p2(y)}, {p2(y)}, {p2(t)}")
    for i in range(4):
        a.e(f"v_cvt_pk_bf16_f32 v{104+i}, v{ys[2*i]}, v{ys[2*i+1]}")
    a.e(f"ds_write_b128 v124, {vr(104)} offset:{F_B}")
    a.e("s_waitcnt vmcnt(0)")
    a.vm = []
    for i in range(0, 4, 2):
        for b in (X, X + 8):
            a.e(f"v_pk_mov_b32 {vr(b+i,2)}, {vr(b+4+i,2)}, {vr(b+4+i,2)} op_sel:[0,1]")
    a.e(f"v_add_u32 v124, {2*FP}, v124")
    a.e(f"s_sub_u32 s{sCnt}, s{sCnt}, 1")
    a.e(f"s_cmp_lg_u32 s{sCnt}, 0")
    a.e(f"s_cbranch_scc1 L_{name}_floop")
    a.e(f"ds_write_b128 v123, {vr(X+16)}")
    a.e("s_waitcnt lgkmcnt(0)")
    stamp(2)
    if SPIN:
        arrive_wait(0, 1, f"L_{name}_ow", 120)
    else:
        a.e("s_barrier")
    stamp(3)
    for ks in range(8):
        wload(ks)
    ACC = (64, 80)
    JR = 96
    PKR = 112
    vO = 125
    a.e(f"v_lshrrev_b32 v{vO}, 4, v{vL}")
    a.e(f"v_lshlrev_b32 v{vO}, 11, v{vO}")
    a.e(f"v_and_b32 v124, 15, v{vL}")
    a.e(f"v_lshl_add_u32 v{vO}, v124, 2, v{vO}")
    a.e(f"s_lshl_b32 s36, s{sV}, 6")
    a.e(f"v_add_u32 v{vO}, s36, v{vO}")
    SROT = os.environ.get("SROT", "")
    if SROT:
        a.e(f"s_bfe_u32 s23, s2, {0x30000 | int(SROT)}")
        a.e("s_lshl_b32 s23, s23, 14")
        a.e(f"v_add_u32 v{vO}, s23, v{vO}")
    a.e("s_mov_b32 s44, 8192")
    a.e(f"s_setprio {os.environ.get('PO', '1')}")

    def out_ops(par):
        ops = []
        ac = ACC[par]
        for rt in range(2):
            for r in range(4):
                ops.append(f"v_cvt_pk_bf16_f32 v{PKR+rt*4+r}, v{ac+rt*8+r}, v{ac+rt*8+4+r}")
                ops.append(f"buffer_store_dword v{PKR+rt*4+r}, v{vO}, {sr(sO)}, {'s44' if rt else '0'} offen offset:{r*512}{NTO}")
        ops.append(f"v_add_u32 v{vO}, 16384, v{vO}")
        if SROT:
            ops.append(f"v_and_b32 v{vO}, 0x1ffff, v{vO}")
        return ops

    PD = 4

    def jread(par, n):
        a.lds(f"ds_read_b128 {vr(JR+4*(n%4))}, v{vL16} offset:{J_B + par*16384 + n*1024}", ("J", par, n))

    def ustep(par, side):
        for n in range(16):
            ks, rt = n >> 1, n & 1
            a.wait(lg=(("J", par, n),), vm=(("W", ks),))
            for jn in range(2):
                ac = ACC[par] + rt * 8 + 4 * jn
                c = "0" if ks == 0 else vr(ac)
                a.e(f"v_mfma_f32_16x16x32_bf16 {vr(ac)}, {vr(JR+4*(n%4))}, {vr(W+(ks*2+jn)*4)}, {c}")
                if n >= 3 and side:
                    a.e(side.pop(0))
            if n + PD == 16:
                a.wait(lg_all=True)
                a.e("s_barrier")
            if n + PD < 16:
                jread(par, n + PD)
            else:
                jread(1 - par, n + PD - 16)
        assert not side

    stamp(4)
    a.e("s_barrier")
    for n in range(PD):
        jread(0, n)
    ustep(0, [])
    lg0 = list(a.lg)
    stamp(7)
    rstamp(12)
    a.lg = list(lg0)
    a.e(f"s_mov_b32 s{sCnt}, 4")
    a.label(f"L_{name}_oloop")
    ustep(1, out_ops(0))
    a.e(f"s_sub_u32 s{sCnt}, s{sCnt}, 1")
    a.e(f"s_cmp_eq_u32 s{sCnt}, 0")
    a.e(f"s_cbranch_scc1 L_{name}_oend")
    ustep(0, out_ops(1))
    assert a.lg == lg0
    a.e("s_waitcnt vmcnt(32)")
    a.e(f"s_branch L_{name}_oloop")
    a.label(f"L_{name}_oend")
    stamp(8, False)
    rstamp(13)
    a.e("s_nop 7")
    for op in out_ops(1):
        a.e(op)
    a.e(f"s_branch L_{name}_fin")

    a.label(f"L_{name}_T")
    a.vm, a.lg = [], []
    a.e("s_setprio 3")
    JB = int(os.environ.get("JB", "0"))
    JB2 = int(os.environ.get("JB2", JB))
    for ks in range(JB):
        wload(ks)
    if "wwarm" in EXP:
        add64(a, sF, 30, WS_WF)
        a.e(f"s_mov_b32 s{sF+2}, 262144")
        a.e("s_lshr_b32 s36, s2, 3")
        a.e("s_lshl_b32 s36, s36, 3")
        a.e(f"s_add_u32 s36, s36, s{sV}")
        a.e("s_lshl_b32 s36, s36, 10")
        a.vmem(f"buffer_load_dwordx4 {vr(80)}, v{vL16}, {sr(sF)}, s36 offen", "P")
    a.e(f"s_lshl_b32 s36, s{sV}, 2")
    a.e(f"s_add_u32 s36, s36, {WS_GE + 32768}")
    add64(a, 36, 30, "s36")
    a.e("s_load_dword s44, s[36:37], 0")
    FE = 64
    FR = 80
    GB = 112
    vF, vG, vJ, vEW, vER, vGL = 125, 124, 123, 122, 121, 120
    a.e(f"v_and_b32 v{vJ}, 15, v{vL}")
    a.e(f"v_lshrrev_b32 v{vER}, 4, v{vL}")
    a.e(f"v_mul_u32_u24 v{vF}, {FP}, v{vJ}")
    a.e(f"v_lshl_add_u32 v{vF}, v{vER}, 4, v{vF}")
    a.e(f"v_lshlrev_b32 v{vER}, 5, v{vER}")
    a.e(f"v_and_b32 v{vGL}, 7, v{vL}")
    a.e(f"v_lshl_add_u32 v{vG}, v{vGL}, 10, v{vER}")
    a.e(f"s_lshl_b32 s38, s{sV}, 7")
    a.e(f"v_mul_u32_u24 v{vGL}, 1040, v{vGL}")
    a.e(f"s_add_u32 s36, s38, {GE_B}")
    a.e(f"v_add3_u32 v{vGL}, v{vGL}, v{vER}, s36")
    a.e(f"s_mul_i32 s36, s{sV}, {36*EP}")
    a.e(f"s_add_u32 s36, s36, {E_B}")
    a.e(f"v_add_u32 v{vER}, s36, v{vER}")
    a.e(f"v_mul_u32_u24 v{vEW}, {EP}, v{vJ}")
    a.e(f"v_add_u32 v{vEW}, v{vEW}, v{vER}")
    a.e(f"v_lshrrev_b32 v{vJ}, 3, v{vJ}")
    a.e(f"v_mul_u32_u24 v{vJ}, {EP}, v{vJ}")
    a.e(f"v_add_u32 v{vER}, v{vJ}, v{vER}")
    a.e(f"s_lshl_b32 s36, s{sV}, 11")
    a.e(f"v_add_u32 v{vJ}, s36, v{vL16}")
    NPRE = int(os.environ.get("NPRE", "8"))
    for ks in range(JB, NPRE + 1):
        if ks == JB2:
            a.e("s_barrier")
        if ks < NPRE:
            wload(ks)
    stamp(2)
    if SPIN:
        arrive_wait(1, 0, f"L_{name}_tw", FE)
    else:
        a.e("s_waitcnt lgkmcnt(0)")
        a.e("s_barrier")
    stamp(3)

    def fread(n):
        tt, ks = n & 1, n >> 1
        a.lds(f"ds_read_b128 {vr(FR+4*(n%8))}, v{vF} offset:{F_B + tt*16*FP + ks*64}", ("A", n))

    for n in range(8):
        fread(n)
    for ks in range(NPRE, 8):
        wload(ks)
    if NPRE < 8:
        a.e("s_barrier")
    a.e(f"s_setprio {os.environ.get('PT', '0')}")
    for n in range(16):
        tt, ks = n & 1, n >> 1
        a.wait(lg=(("A", n),), vm=(("W", ks),))
        for jn in range(2):
            ac = FE + tt * 8 + jn * 4
            c = "0" if ks == 0 else vr(ac)
            a.e(f"v_mfma_f32_16x16x32_bf16 {vr(ac)}, {vr(W+(ks*2+jn)*4)}, {vr(FR+4*(n%8))}, {c}")
        if n + 8 < 16:
            fread(n + 8)
        elif n < 10:
            a.lds(f"ds_read_b128 {vr(GB+4*(n-8))}, v{vGL} offset:{(n-8)*16}", "GE")
    a.e("s_mov_b32 s46, 0xffff0000")
    a.e(f"s_mov_b32 s48, {f32hex(C2)}")
    a.e("s_mov_b32 s49, s48")
    a.e("s_nop 3")
    stamp(4)
    FS, EX, EA, XS, PK = 80, 96, 32, 48, 64
    a.e("v_mov_b32 v28, 0")
    a.wait(lg_all=True)
    for tt in range(2):
        for r in range(4):
            a.e(f"v_cvt_pk_bf16_f32 v{24+r}, v{FE+tt*8+r}, v{FE+tt*8+4+r}")
        for r in range(4):
            a.e(f"v_lshlrev_b32 v{FS+tt*8+2*r}, 16, v{24+r}")
            a.e(f"v_and_b32 v{FS+tt*8+2*r+1}, s46, v{24+r}")
        for r in range(8 * tt, 8 * tt + 8, 2):
            a.e(f"v_pk_mul_f32 {vr(FS+r,2)}, {vr(FS+r,2)}, s[48:49]")
        for h in range(2):
            for r in range(8 * tt + 4 * h, 8 * tt + 4 * h + 4):
                a.e(f"v_exp_f32 v{EX+r}, v{FS+r}")
            for r in range(4 * tt + 2 * h, 4 * tt + 2 * h + 2):
                a.e(f"v_max3_f32 v28, |v{FS+2*r}|, |v{FS+2*r+1}|, v28")
            a.e(f"ds_write_b128 v{vEW}, {vr(EX+8*tt+4*h)} offset:{tt*16*EP + h*16}")
    if SROT:
        a.e(f"v_mov_b32 v{vF}, v{vER}")
        a.e(f"s_bfe_u32 s23, s2, {0x30000 | int(SROT)}")
        a.e(f"s_mul_i32 s24, s23, {4*EP}")
        a.e(f"v_add_u32 v{vER}, s24, v{vF}")
    a.e(f"v_cmp_lt_f32 vcc, {f32hex(RANGE)}, v28")
    a.e(f"s_mov_b32 s{sCnt}, 4")
    a.e("s_or_b32 s44, s44, vcc_lo")
    a.e("s_or_b32 s44, s44, vcc_hi")
    a.e("s_cmp_lg_u32 s44, 0")
    if "slow" in EXP:
        a.e(f"s_branch L_{name}_tslow")
    a.e(f"s_cbranch_scc1 L_{name}_tslow")

    def earead():
        for rt in range(2):
            for h in range(2):
                a.lds(f"ds_read_b128 {vr(EA+8*rt+4*h)}, v{vER} offset:{rt*2*EP + h*16}", ("G", rt))
        if SROT:
            a.e("s_add_u32 s23, s23, 1")
            a.e("s_and_b32 s23, s23, 7")
            a.e(f"s_mul_i32 s24, s23, {4*EP}")
            a.e(f"v_add_u32 v{vER}, s24, v{vF}")
        else:
            a.e(f"v_add_u32 v{vER}, {4*EP}, v{vER}")

    def tcomp(fast, early=None):
        a.wait(lg=(("G", 1),))
        for i in range(16):
            if fast:
                a.e(f"v_fma_f32 v{XS+i}, v{GB+(i&7)}, v{EA+i}, 1.0")
            else:
                a.e(f"v_add_f32 v{XS+i}, v{GB+(i&7)}, v{EA+i}")
        earead()
        for rt in range(2):
            xs = [XS + 8 * rt + i for i in range(8)]
            if not fast:
                for x in xs:
                    a.e(f"v_exp_f32 v{x}, v{x}")
                for x in xs:
                    a.e(f"v_add_f32 v{x}, 1.0, v{x}")
            for x in xs:
                a.e(f"v_rcp_f32 v{x}, v{x}")
            for x in xs:
                a.e(f"v_fma_f32 v{x}, v{x}, -2.0, 1.0")
            for i in range(4):
                a.e(f"v_cvt_pk_bf16_f32 v{PK+4*rt+i}, v{xs[2*i]}, v{xs[2*i+1]}")
            if early is not None:
                twrite(early, rt)

    def twrite(par, rt):
        a.lds(f"ds_write_b128 v{vJ}, {vr(PK+4*rt)} offset:{J_B + par*16384 + rt*1024}", "W")

    def tsync():
        a.wait(lg_all=True)
        a.e("s_barrier")

    TSH = os.environ.get("TSH", "0") == "1"
    for fast in (1, 0):
        a.lg = []
        if not fast:
            a.label(f"L_{name}_tslow")
            for h in range(2):
                a.e(f"buffer_load_dwordx4 {vr(GB+4*h)}, v{vG}, {sr(sG)}, s38 offen offset:{h*16}")
            for i in range(4):
                a.e(f"ds_write_b128 v{vEW}, {vr(FS+4*i)} offset:{(i>>1)*16*EP + (i&1)*16}")
        earead()
        a.e("s_waitcnt vmcnt(0) lgkmcnt(0)")
        a.vm, a.lg = [], []
        stamp(5)
        if TSH and fast:
            tcomp(fast, 0)
            tsync()
            tcomp(fast)
            a.wait(lg_all=True)
            a.e(f"s_mov_b32 s{sCnt}, 3")
            a.label(f"L_{name}_tloop{fast}")
            for par in (1, 0):
                twrite(par, 0)
                twrite(par, 1)
                tcomp(fast)
                tsync()
            a.e(f"s_sub_u32 s{sCnt}, s{sCnt}, 1")
            a.e(f"s_cmp_lg_u32 s{sCnt}, 0")
            a.e(f"s_cbranch_scc1 L_{name}_tloop{fast}")
            twrite(1, 0)
            twrite(1, 1)
            tsync()
        else:
            a.label(f"L_{name}_tloop{fast}")
            for par in (0, 1):
                tcomp(fast, par)
                tsync()
            a.e(f"s_sub_u32 s{sCnt}, s{sCnt}, 1")
            a.e(f"s_cmp_lg_u32 s{sCnt}, 0")
            a.e(f"s_cbranch_scc1 L_{name}_tloop{fast}")
        stamp(8)
        if fast:
            a.e(f"s_branch L_{name}_fin")
    a.label(f"L_{name}_fin")
    if STAMP:
        a.e("s_waitcnt vmcnt(0)")
        stamp(9, False)
        a.e(f"s_memrealtime s[{sSt+22}:{sSt+23}]")
        a.e(f"s_cmp_lg_u32 s{sWv}, {os.environ.get('SWJ', '0')}")
        a.e(f"s_cbranch_scc1 L_{name}_done")
        a.e("s_lshl_b32 s36, s2, 7")
        a.e(f"s_add_u32 s36, s36, {WS_STAMP + 2*0x10000}")
        add64(a, 40, 30, "s36")
        a.e("s_mov_b32 s42, 128")
        a.e("s_mov_b32 s43, 0x00020000")
        a.e("s_waitcnt lgkmcnt(0)")
        a.e("v_mov_b32 v8, 0")
        for i in range(28):
            a.e(f"v_mov_b32 v0, s{sSt+i}")
            a.e(f"buffer_store_dword v0, v8, s[40:43], 0 offen offset:{4*i}")
    a.label(f"L_{name}_done")
    a.e("s_endpgm")
    return a.L, LDS, 128


def joint_kernels(ks):
    return ks + [("joint_kernel", 256 if "local" in EXP else 250, 1024) + joint_kernel("joint_kernel")]
```

```python
import os
import sys

from asmlib import Asm, vr, sr, kd, f32hex, align8
from gen13_joint import small_head, small_tail, joint_kernels

EXP = os.environ.get("EXP", "").split(",")

WS_W1P = 0x0000000
WS_W2P = 0x0900000
WS_H = 0x1200000
WS_FP = 0x1A00000
WS_FPS = 0x800000
WS_WF = 0x2A00000
WS_STAMP = 0x3000000

CHUNKB = 7 * 8192
FB = 1024
BB = 8 * FB
SEQB = 2 * BB
FB6 = 1088
BB6 = 8 * FB6
SPB = 6 * SEQB + 2 * BB6
TOPB = SPB + 6144
OOB = 0x7f000000
W2P = os.environ.get('W2', '1') == '0'
LOCAL = 'local' in EXP
PLH, PLF = int(os.environ.get('PLH', 131072)), int(os.environ.get('PLF', 65536))
NTW, NTH, NTF = ({"0": "", "1": " nt", "2": " sc1", "3": " sc0 sc1"}[c] for c in os.environ.get("NT", "222"))


def add64(a, d, lo, off):
    a.e(f"s_add_u32 s{d}, s{lo}, {off}")
    a.e(f"s_addc_u32 s{d+1}, s{lo+1}, 0")


def eval_ops(c, t):
    e1, o1, e2, o2 = t
    ops = [f"v_add_f32 v{e1}, v{c[0]}, v{c[2]}",
           f"v_add_f32 v{o1}, v{c[1]}, v{c[3]}",
           f"v_fma_f32 v{e2}, v{c[2]}, 4.0, v{c[0]}",
           f"v_fma_f32 v{o2}, v{c[3]}, 4.0, v{c[1]}",
           f"v_add_f32 v{c[1]}, v{e1}, v{o1}",
           f"v_sub_f32 v{c[2]}, v{e1}, v{o1}",
           f"v_fma_f32 v{c[3]}, v{o2}, 2.0, v{e2}",
           f"v_fma_f32 v{e2}, v{o2}, -2.0, v{e2}",
           f"v_fmamk_f32 v{e1}, v{c[0]}, {f32hex(15.0)}, v{e2}",
           f"v_fmamk_f32 v{e1}, v{o1}, {f32hex(10.0)}, v{e1}"]
    return ops, [c[1], c[2], c[3], e2, e1]


def wprep(a, karg, wsoff, ws_loaded, barrier=False, extra=None, small=None, mid=None):
    a.vm, a.lg = [], []
    a.e(f"s_load_dwordx2 s[8:9], s[0:1], {karg}")
    if not ws_loaded:
        a.e("s_load_dwordx2 s[30:31], s[0:1], 72")
    a.e("s_lshr_b32 s22, s20, 8")
    a.e("s_bfe_u32 s23, s20, 0x40004")
    a.e("s_bfe_u32 s24, s20, 0x30001")
    a.e("s_and_b32 s21, s20, 1")
    a.e("v_lshrrev_b32 v2, 4, v1")
    a.e("v_lshlrev_b32 v2, 12, v2")
    a.e("v_and_b32 v3, 15, v1")
    a.e("v_lshl_add_u32 v2, v3, 2, v2")
    a.e("s_lshl_b32 s26, s22, 3")
    a.e("s_lshr_b32 s27, s23, 3")
    a.e("s_add_u32 s26, s26, s27")
    a.e("s_lshl_b32 s26, s26, 17")
    a.e("s_and_b32 s27, s23, 7")
    a.e("s_lshl_b32 s27, s27, 14")
    a.e("s_add_u32 s26, s26, s27")
    a.e("s_lshl_b32 s27, s24, 6")
    a.e("s_add_u32 s26, s26, s27")
    a.e(f"s_mov_b32 s10, {31*131072}")
    a.e("s_mov_b32 s11, 0x00020000")
    if small:
        small_select(a)
        a.e("s_add_u32 s37, s26, s5")
        a.e("s_add_u32 s38, s37, s5")
        a.e("s_add_u32 s39, s38, s5")
    else:
        for p in range(1, 4):
            a.e(f"s_add_u32 s{36+p}, s26, {2*131072*p}")
    a.e("s_waitcnt lgkmcnt(0)")
    if small:
        small_ptr(a)
        small_g(a, "prep_kernel")
    R = 16
    for e2 in range(4):
        for p in range(4):
            for e in (2 * e2, 2 * e2 + 1):
                a.vmem(f"buffer_load_dword v{R+p*8+e}, v2, s[8:11], s{36+p if p else 26} offen offset:{e*512}", ("L", e2))
    if small:
        a.e("s_cmp_lt_u32 s3, 12")
        a.e(f"s_cbranch_scc1 {small}")
    if mid:
        mid()
    add64(a, 12, 30, wsoff)
    a.e(f"s_mov_b32 s14, {8*16*CHUNKB}")
    a.e("s_mov_b32 s15, 0x00020000")
    a.e("v_lshlrev_b32 v4, 4, v1")
    a.e("s_lshl_b32 s27, s24, 4")
    a.e("s_add_u32 s27, s27, s23")
    a.e(f"s_mul_i32 s27, s27, {CHUNKB}")
    a.e("s_lshl_b32 s28, s22, 11")
    a.e("s_add_u32 s27, s27, s28")
    a.e("s_lshl_b32 s28, s21, 10")
    a.e("s_add_u32 s27, s27, s28")
    a.e("s_cmp_eq_u32 s21, 0")
    a.e("s_mov_b32 s32, 0x07060302")
    a.e("s_cselect_b32 s32, 0x05040100, s32")
    a.e("s_mov_b32 s33, 0x03020c0c")
    a.e("s_cselect_b32 s33, 0x01000c0c, s33")
    a.e(f"s_mov_b32 s35, {f32hex(1.0/24)}")
    a.e(f"s_mov_b32 s36, {f32hex(1.0/72)}")
    if barrier:
        barrier()
    OUT = 48
    T = 76
    scale = ("0.5", "0.5", "s35", "s35", "s36")
    for e2 in range(4):
        a.wait(vm=(("L", e2),))
        if extra and e2 == int(os.environ.get("XT", "3")):
            extra()
        for p, seq in ((0, 6), (3, 0)):
            a.e(f"v_perm_b32 v{OUT+seq*4+e2}, v{R+p*8+2*e2+1}, v{R+p*8+2*e2}, s32")
        res, lists = [], []
        for e in range(2):
            cf = [T + e * 8 + i for i in range(4)]
            ops = [f"v_perm_b32 v{cf[i]}, v{cf[i]}, v{R + (3 - i) * 8 + 2 * e2 + e}, s33" for i in range(4)]
            o, rr = eval_ops(cf, [T + e * 8 + 4 + i for i in range(4)])
            ops += o + [f"v_mul_f32 v{r}, {sc}, v{r}" for r, sc in zip(rr, scale)]
            res.append(rr)
            lists.append(ops)
        for x, y in zip(*lists):
            a.e(x)
            a.e(y)
        for i in range(5):
            a.e(f"v_cvt_pk_bf16_f32 v{OUT+(1+i)*4+e2}, v{res[0][i]}, v{res[1][i]}")
    for seq in (6, 0, 1, 2, 3, 4, 5):
        a.e(f"s_add_u32 s28, s27, {seq*8192}")
        a.e(f"buffer_store_dwordx4 {vr(OUT+seq*4)}, v4, s[12:15], s28 offen{NTW}")


def wprep2(a, karg, wsoff, barrier, LB=True, extra=None, pre=None):
    a.vm, a.lg = [], []
    if not pre:
        a.e(f"s_load_dwordx2 s[8:9], s[0:1], {karg}")
    a.e("s_lshr_b32 s22, s20, 8")
    a.e("s_bfe_u32 s23, s20, 0x40004")
    a.e("s_bfe_u32 s24, s20, 0x30001")
    a.e("s_and_b32 s21, s20, 1")
    a.e("v_lshrrev_b32 v5, 4, v1")
    a.e("v_lshlrev_b32 v2, 11, v5")
    a.e("v_and_b32 v3, 15, v1")
    a.e("v_lshl_add_u32 v2, v3, 2, v2")
    a.e("s_lshl_b32 s26, s22, 3")
    a.e("s_lshr_b32 s27, s23, 3")
    a.e("s_add_u32 s26, s26, s27")
    a.e("s_lshl_b32 s26, s26, 17")
    a.e("s_and_b32 s27, s23, 7")
    a.e("s_lshl_b32 s27, s27, 1")
    a.e("s_add_u32 s27, s27, s21")
    a.e("s_lshl_b32 s27, s27, 13")
    a.e("s_add_u32 s26, s26, s27")
    a.e("s_lshl_b32 s27, s24, 6")
    a.e("s_add_u32 s26, s26, s27")
    a.e(f"s_mov_b32 s10, {31*131072}")
    a.e("s_mov_b32 s11, 0x00020000")
    for p in range(1, 4):
        a.e(f"s_add_u32 s{36+p}, s26, {2*131072*p}")
    a.e(f"s_mov_b32 s14, {8*16*CHUNKB}")
    a.e("s_mov_b32 s15, 0x00020000")
    a.e("v_lshrrev_b32 v4, 1, v5")
    a.e("v_lshlrev_b32 v4, 8, v4")
    a.e("v_lshl_add_u32 v4, v3, 4, v4")
    a.e("v_and_b32 v5, 1, v5")
    a.e("v_lshl_add_u32 v4, v5, 10, v4")
    a.e("s_lshl_b32 s27, s24, 4")
    a.e("s_add_u32 s27, s27, s23")
    a.e(f"s_mul_i32 s27, s27, {CHUNKB}")
    a.e("s_lshl_b32 s28, s22, 11")
    a.e("s_add_u32 s27, s27, s28")
    a.e("s_lshl_b32 s28, s21, 9")
    a.e("s_add_u32 s27, s27, s28")
    a.e("s_mov_b32 s32, 0x05040100")
    a.e("s_mov_b32 s33, 0x07060302")
    a.e("s_mov_b32 s34, 0xffff0000")
    a.e(f"s_mov_b32 s35, {f32hex(1.0/24)}")
    a.e(f"s_mov_b32 s40, {f32hex(1.0/72)}")
    a.e("s_waitcnt lgkmcnt(0)")
    if W2P and karg == 8:
        a.e("s_cmp_eq_u32 s29, 1")
        a.e("s_cselect_b32 s8, s48, s8")
        a.e("s_cselect_b32 s9, s49, s9")
        a.e(f"s_mul_i32 s29, s29, {WS_W2P - WS_W1P}")
        wsoff = "s29"
    if LB:
        barrier()
    R, OUT, T = (pre, 16, 76) if pre else (16, 76, 104)
    for e2 in range(0 if pre else 2):
        for p in range(4):
            for e in (2 * e2, 2 * e2 + 1):
                a.vmem(f"buffer_load_dword v{R+p*4+e}, v2, s[8:11], s{36+p if p else 26} offen offset:{e*512}", ("L", e2))
    if not LB:
        barrier()
    add64(a, 12, 30, wsoff)
    scale = ("0.5", "0.5", "s35", "s35", "s40")

    def out(seq, c):
        return OUT + (seq * 2 + c) * 2
    for e2 in range(2):
        a.wait(vm=(("L", e2),))
        if extra and e2 == 1:
            extra()
        for c in range(2):
            for p, seq in ((0, 6), (3, 0)):
                a.e(f"v_perm_b32 v{out(seq, c)+e2}, v{R+p*4+2*e2+1}, v{R+p*4+2*e2}, s{32+c}")
            res, lists = [], []
            for e in range(2):
                cf = [T + e * 8 + i for i in range(4)]
                src = [R + (3 - i) * 4 + 2 * e2 + e for i in range(4)]
                ops = [f"v_and_b32 v{d}, s34, v{x}" if c else f"v_lshlrev_b32 v{d}, 16, v{x}" for d, x in zip(cf, src)]
                o, rr = eval_ops(cf, [T + e * 8 + 4 + i for i in range(4)])
                ops += o + [f"v_mul_f32 v{r}, {sc}, v{r}" for r, sc in zip(rr, scale)]
                res.append(rr)
                lists.append(ops)
            for x, y in zip(*lists):
                a.e(x)
                a.e(y)
            for i in range(5):
                a.e(f"v_cvt_pk_bf16_f32 v{out(1+i, c)+e2}, v{res[0][i]}, v{res[1][i]}")
    for seq in (6, 0, 1, 2, 3, 4, 5):
        for d in range(2):
            a.e(f"v_permlane16_swap_b32 v{out(seq, 0)+d}, v{out(seq, 1)+d}")
        a.e(f"s_add_u32 s28, s27, {seq*8192}")
        a.e(f"buffer_store_dwordx4 {vr(out(seq, 0))}, v4, s[12:15], s28 offen{NTW}")


def prep_kernel(name):
    a = Asm()
    NWG = 256
    a.label(name)
    a.e(f"s_cmp_ge_u32 s2, {NWG}")
    a.e(f"s_cbranch_scc1 L_{name}_done")
    CW = os.environ.get("CW", "late")
    CWN = int(os.environ.get("CWN", "32"))

    def code_warm():
        a.e(f"s_cmp_lt_u32 s3, {256 - CWN}")
        a.e(f"s_cbranch_scc1 L_{name}_ncw")
        a.e("s_getpc_b64 s[62:63]")
        a.label(f"L_{name}_pc")
        a.e("s_and_b32 s64, s3, 8")
        a.e("s_lshl_b32 s64, s64, 12")
        a.e("v_lshlrev_b32 v120, 7, v0")
        a.e("v_add_u32 v120, s64, v120")
        a.e(f"v_min_u32 v120, 0x7fc0de00, v120")
        a.e("v_mov_b32 v121, s63")
        a.e("v_add_co_u32 v120, vcc, s62, v120")
        a.e("s_nop 1")
        a.e("v_addc_co_u32 v121, vcc, 0, v121, vcc")
        a.e("global_load_dword v122, v[120:121], off")
        a.label(f"L_{name}_ncw")
        return 0

    def x_warm():
        XW = int(os.environ.get("XW", "0"))
        if XW:
            a.e("s_and_b32 s64, s3, 7")
            a.e("s_lshr_b32 s65, s2, 3")
            a.e("s_lshr_b32 s66, s65, 3")
            a.e("s_lshl_b32 s64, s64, 2")
            a.e("s_add_u32 s64, s64, s66")
            a.e("s_mul_i32 s64, s64, 512000")
            a.e("s_and_b32 s65, s65, 7")
            a.e("s_lshl_b32 s65, s65, 2")
            a.e("s_add_u32 s65, s65, s40")
            a.e("s_lshl_b32 s65, s65, 14")
            a.e("s_add_u32 s64, s64, s65")
            a.e("s_sub_u32 s64, s64, 7680")
            a.e("v_lshrrev_b32 v120, 2, v1")
            a.e("v_lshlrev_b32 v120, 10, v120")
            a.e(f"v_and_b32 v121, {XW - 1}, v1")
            a.e("v_lshl_add_u32 v120, v121, 7, v120")
            a.e("v_add_u32 v120, s64, v120")
            a.e("s_mov_b32 s68, s44")
            a.e("s_mov_b32 s69, s45")
            a.e(f"s_mov_b32 s70, {2*16000*512}")
            a.e("s_mov_b32 s71, 0x00020000")
            a.vmem("buffer_load_dword v123, v120, s[68:71], 0 offen", "XW")
    a.e("s_mov_b32 s3, s2")
    if CW == "early":
        code_warm()
    a.e("s_load_dwordx16 s[44:59], s[0:1], 0")
    a.e("s_load_dwordx2 s[30:31], s[0:1], 72")
    if "stamp" in EXP:
        a.e("s_memrealtime s[60:61]")
    a.e("v_readfirstlane_b32 s40, v0")
    a.e("s_lshr_b32 s40, s40, 6")
    a.e("v_and_b32 v1, 63, v0")
    if W2P:
        a.e("s_sub_u32 s40, s40, 2")
        a.e("s_lshr_b32 s29, s40, 2")
        a.e(f"s_cbranch_scc0 L_{name}_w")
        a.e("s_cmp_lt_u32 s40, 8")
        a.e(f"s_cbranch_scc1 L_{name}_w")
        a.e("s_add_u32 s40, s40, 6")
    else:
        a.e("s_cmp_lt_u32 s40, 4")
        a.e(f"s_cbranch_scc1 L_{name}_w")
    small_head(a, name)
    a.label(f"L_{name}_w")
    if W2P:
        a.e("s_and_b32 s40, s40, 3")
    a.e("s_lshl_b32 s21, s2, 2")
    a.e("s_add_u32 s20, s40, s21")
    wprep2(a, 8, WS_W1P, lambda: a.e("s_barrier"), False, code_warm if CW == "late" else None)
    if "stamp" in EXP:
        a.e("s_waitcnt vmcnt(0)")
        a.e("s_memrealtime s[62:63]")
        a.e("s_lshl_b32 s36, s2, 7")
        a.e(f"s_add_u32 s36, s36, {WS_STAMP + 3*0x10000}")
        add64(a, 40, 30, "s36")
        a.e("s_mov_b32 s42, 128")
        a.e("s_mov_b32 s43, 0x00020000")
        a.e("s_waitcnt lgkmcnt(0)")
        a.e("v_mov_b32 v8, 0")
        a.e("v_mov_b32 v0, 1")
        a.e("buffer_store_dword v0, v8, s[40:43], 0 offen")
        for i in range(4):
            a.e(f"v_mov_b32 v0, s{60+i}")
            a.e(f"buffer_store_dword v0, v8, s[40:43], 0 offen offset:{80+4*i}")
    a.label(f"L_{name}_done")
    a.e("s_endpgm")
    small_tail(a, name)
    a.L.insert(len(a.L) - 1, f"L_{name}_last:")
    return a.L, 4096, 128


def conv_kernel(name, cfg):
    TIN, TOUT = cfg["tin"], cfg["tout"]
    N = cfg["nchunk"]
    KSPLIT = cfg["ksplit"]
    NWG = 256
    STAMP = "stamp" in EXP
    sX, sW, sO = 8, 12, 16
    sWv, sT0, sCnt, sBo, sXo, sMask = 20, 21, 22, 23, 24, 25
    sBo2 = 26
    sK, sCb, sH = 28, 29, 32
    sSt = 60
    vL = 127
    vU, vS_, vI, vKG = 8, 9, 10, 11

    a = Asm()
    a.label(name)
    a.e(f"s_cmp_ge_u32 s2, {NWG}")
    a.e(f"s_cbranch_scc1 L_{name}_done")

    def stamp(i, fence=True):
        if STAMP:
            a.e(f"s_memtime s[{sSt+2*i}:{sSt+2*i+1}]")
            if fence:
                a.e("s_waitcnt lgkmcnt(0)")
                a.lg = []

    def rstamp(i):
        if STAMP:
            a.e(f"s_memrealtime s[{sSt+2*i}:{sSt+2*i+1}]")
            a.e("s_waitcnt lgkmcnt(0)")
            a.lg = []
    if STAMP:
        for i in range(28):
            a.e(f"s_mov_b32 s{sSt+i}, 0")
        a.e(f"s_memrealtime s[{sSt+20}:{sSt+21}]")
    stamp(0, False)
    a.e(f"s_load_dwordx2 s[4:5], s[0:1], {cfg['in_arg']}")
    a.e("s_load_dwordx2 s[30:31], s[0:1], 72")
    a.e(f"v_readfirstlane_b32 s{sWv}, v0")
    a.e(f"s_lshr_b32 s{sWv}, s{sWv}, 6")
    if os.environ.get("WX", "8") != "0":
        a.e(f"s_xor_b32 s{sWv}, s{sWv}, {os.environ.get('WX', '8')}")
    XL = int((os.environ.get("XL", "33") * 2)[int(KSPLIT)])
    a.e(f"s_and_b32 s36, s2, {(8 >> XL) - 1}")
    a.e(f"s_lshl_b32 s36, s36, {XL}")
    a.e(f"s_bfe_u32 s37, s2, {(XL << 16) | 3}")
    a.e(f"s_or_b32 s{sCb}, s36, s37")
    a.e(f"s_bfe_u32 s36, s2, {(XL << 16) | (3 - XL)}")
    a.e(f"s_lshl_b32 s36, s36, {5 - XL}")
    a.e(f"s_lshr_b32 s37, s2, {3 + XL}")
    a.e("s_or_b32 s36, s36, s37")
    if KSPLIT:
        if LOCAL:
            a.e("s_and_b32 s33, s36, 1")
            a.e("s_bfe_u32 s34, s36, 0x30001")
            a.e("s_lshr_b32 s35, s36, 4")
        else:
            a.e("s_lshr_b32 s33, s36, 4")
            a.e("s_and_b32 s34, s36, 7")
            a.e("s_bfe_u32 s35, s36, 0x10003")
    else:
        a.e("s_mov_b32 s33, 0")
        a.e("s_and_b32 s34, s36, 15")
        a.e("s_lshr_b32 s35, s36, 4")
    a.e(f"s_mul_i32 s{sT0}, s34, 500")
    a.e(f"s_and_b32 s{sH}, s{sWv}, 3")
    a.e(f"v_and_b32 v{vL}, 63, v0")
    a.e(f"v_lshrrev_b32 v5, 2, v{vL}")
    a.e(f"v_and_b32 v6, 3, v{vL}")
    a.e(f"s_and_b32 s42, s{sWv}, 7")
    if not KSPLIT:
        a.e("v_lshlrev_b32 v7, 15, v5")
        a.e("v_lshl_add_u32 v7, v6, 4, v7")
        a.e(f"s_lshl_b32 s41, s{sT0}, 10")
        a.e("s_sub_u32 s41, s41, 7680")
        a.e("s_lshl_b32 s37, s42, 12")
        a.e("s_add_u32 s37, s37, s41")
        a.e("v_add_u32 v7, s37, v7")
        a.e(f"s_mul_i32 s36, s35, {TIN*512}")
        a.e(f"s_mov_b32 s{sX+2}, {TIN*512}")
    else:
        a.e(f"s_lshr_b32 s41, s{sT0}, 2")
        a.e("s_sub_u32 s41, s41, 1")
        a.e("s_add_u32 s37, s41, s42")
        a.e("v_lshl_add_u32 v7, v5, 3, s37")
        a.e(f"s_mul_i32 s36, s35, {32*PLH}")
        a.e(f"s_add_u32 s36, s36, {cfg['in_off']}")
        a.e(f"s_mov_b32 s{sX+2}, {32*PLH}")

    def haddr(dst, vG, vlane, p, t):
        a.e(f"s_add_u32 s37, s33, {2*p - 7 & 0xffffffff}")
        a.e(f"v_lshl_add_u32 v{t}, v{vG}, 3, s37")
        a.e(f"v_cmp_gt_u32 vcc, {TIN}, v{t}")
        a.e(f"s_mul_i32 s37, s33, {PLH}")
        a.e(f"s_add_u32 s37, s37, {(2*p & 3)*PLH + (p >> 1)*64}")
        a.e(f"v_lshl_add_u32 v{dst}, v{vG}, 7, s37")
        a.e(f"v_add_u32 v{dst}, v{dst}, v{vlane}")
        a.e(f"v_mov_b32 v{t}, {OOB}")
        a.e(f"v_cndmask_b32 v{dst}, v{t}, v{dst}, vcc")
    a.e(f"s_mov_b32 s{sX+3}, 0x00020000")
    a.e(f"s_mov_b32 s{sMask}, 0xffff0000")
    a.e("s_mov_b32 s47, s36")

    def kwait():
        a.e("s_waitcnt lgkmcnt(0)")
        stamp(1)
        add64(a, sX, 4, "s47")
    OB = 512

    def wsrd():
        a.e(f"s_lshl_b32 s36, s{sCb}, 4")
        a.e("s_lshl_b32 s37, s33, 3")
        a.e("s_add_u32 s36, s36, s37")
        a.e(f"s_mul_i32 s36, s36, {CHUNKB}")
        a.e(f"s_add_u32 s36, s36, {cfg['w_off']}")
        add64(a, sW, 30, "s36")
        a.e(f"s_mov_b32 s{sW+2}, {N*CHUNKB}")
        a.e(f"s_mov_b32 s{sW+3}, 0x00020000")

    def lds_throttle(need=1):
        if len(a.lg) + need > 15:
            a.e("s_waitcnt lgkmcnt(8)")
            a.lg = a.lg[-8:]

    def mf(acc, b, av):
        if "nomfma" not in EXP:
            a.e(f"v_mfma_f32_16x16x32_bf16 {vr(acc)}, {vr(b)}, {vr(av)}, {vr(acc)}")

    def steady(gen, per, strict=True):
        st = []
        for it in range(3):
            st.append(len(a.L))
            for pos in range(per):
                gen(per * it + pos, pos)
        st.append(len(a.L))
        bodies = [a.L[st[i]:st[i + 1]] for i in range(3)]
        if strict:
            assert bodies[1] == bodies[2], "loop not steady"
            assert bodies[0] == bodies[1], "loop entry not steady"
        del a.L[st[0]:]
        return bodies[1]

    a.e(f"s_cmp_ge_u32 s{sWv}, 8")
    a.e(f"s_cbranch_scc1 L_{name}_helper")

    ACC = 0
    vF, vA8, vD, vB = (120, 121), 122, (123, 124), 125
    vP = (116, 117, 118)
    vBZ = 119
    S, T, O = 96, 108, 64
    if not KSPLIT:
        a.e(f"s_add_u32 s37, s41, {128*4096}")
        a.e(f"v_lshl_add_u32 v{T}, v{vL}, 4, s37")
        for p in range(1, 3):
            a.e(f"v_add_u32 v{T+p}, {p*1024}, v{T}")
    else:
        a.e("s_add_u32 s37, s41, 128")
        a.e("v_mov_b32 v16, s37")
        a.e(f"v_mul_u32_u24 v17, {4*PLH}, v5")
        a.e("v_lshl_add_u32 v17, v6, 4, v17")
        for p in range(3):
            haddr(T + p, 16, 17, p, 18)
    kwait()
    wsrd()
    PLO = PLF if KSPLIT else PLH
    a.e(f"s_mul_i32 s36, s35, {32*PLO}")
    a.e(f"s_add_u32 s36, s36, {cfg['out_off']}")
    if KSPLIT:
        a.e(f"s_mul_i32 s37, s33, {WS_FPS}")
        a.e("s_add_u32 s36, s36, s37")
    add64(a, sO, 30, "s36")
    a.e(f"s_mov_b32 s{sO+2}, {32*PLO}")
    a.e(f"s_mov_b32 s{sO+3}, 0x00020000")
    a.e(f"v_and_b32 v{vI}, 15, v{vL}")
    a.e(f"v_lshrrev_b32 v{vKG}, 4, v{vL}")
    t = 16
    for d, sh in ((vU, 0), (vS_, 1)):
        a.e(f"v_add_u32 v{d}, {sh}, v{vI}")
        a.e(f"v_and_b32 v{t}, 4, v{d}")
        a.e(f"v_lshrrev_b32 v{t}, 1, v{t}")
        a.e(f"v_xor_b32 v{t}, v{vKG}, v{t}")
        a.e(f"v_lshlrev_b32 v{t}, 4, v{t}")
        a.e(f"v_lshl_add_u32 v{d}, v{d}, 6, v{t}")
    a.e(f"s_lshr_b32 s38, s{sH}, 1")
    a.e(f"s_and_b32 s39, s{sH}, 1")
    a.e("s_add_u32 s40, s38, 4")
    a.e("s_lshl_b32 s43, s39, 10")
    a.e(f"s_cmp_lt_u32 s{sWv}, 4")
    a.e(f"s_cselect_b32 s40, s{sWv}, s40")
    a.e("s_cselect_b32 s36, 0, s43")
    a.e("s_lshl_b32 s37, s40, 13")
    a.e("s_add_u32 s37, s37, s36")
    a.e(f"v_lshl_add_u32 v{vB}, v{vL}, 4, s37")
    a.e(f"s_mul_i32 s37, s40, {SEQB}")
    a.e(f"v_add_u32 v{vF[0]}, s37, v{vU}")
    a.e(f"v_add_u32 v{vF[1]}, s37, v{vS_}")
    a.e("s_lshl_b32 s37, s40, 10")
    a.e(f"s_add_u32 s37, s37, {SPB}")
    a.e(f"v_lshl_add_u32 v{t}, v{vKG}, 4, s37")
    a.e(f"v_cmp_eq_u32 vcc, 15, v{vI}")
    a.e(f"v_mov_b32 v{t+1}, {BB}")
    a.e(f"v_mov_b32 v{t+2}, {-BB & 0xffffffff}")
    a.e(f"v_mov_b32 v{t+3}, 64")
    a.e(f"v_cndmask_b32 v{vA8}, v{vF[1]}, v{t}, vcc")
    a.e(f"v_cndmask_b32 v{vD[0]}, v{t+1}, v{t+3}, vcc")
    a.e(f"v_cndmask_b32 v{vD[1]}, v{t+2}, v{t+3}, vcc")
    a.e(f"v_lshl_add_u32 v126, v{vL}, 4, s37")
    tabs = {44: (1.0, 1.0, 1.0, 1.0, 1.0, 16.0), 45: (0.0, 1.0, -1.0, 2.0, -2.0, 8.0),
            46: (0.0, 1.0, 1.0, 4.0, 4.0, 4.0)}
    for sg, tab in tabs.items():
        a.e(f"s_mov_b32 s{sg}, {f32hex(tab[0])}")
    for q in range(1, 6):
        a.e(f"s_cmp_eq_u32 s40, {q}")
        for sg, tab in tabs.items():
            if tab[q] != tab[0]:
                a.e(f"s_cselect_b32 s{sg}, {f32hex(tab[q])}, s{sg}")

    def special_rows():
        a.wait(vm=("SP",))
        for d in range(4):
            for p in range(3):
                a.e(f"v_lshlrev_b32 v{T+p}, 16, v{S+4*p+d}")
                a.e(f"v_and_b32 v{T+3+p}, s{sMask}, v{S+4*p+d}")
            for h in range(2):
                a.e(f"v_mul_f32 v{T+6+h}, s44, v{T+3*h}")
            for h in range(2):
                a.e(f"v_fmac_f32 v{T+6+h}, s45, v{T+3*h+1}")
            for h in range(2):
                a.e(f"v_fmac_f32 v{T+6+h}, s46, v{T+3*h+2}")
            a.e(f"v_cvt_pk_bf16_f32 v{S+d}, v{T+6}, v{T+7}")
        a.e(f"ds_write_b128 v126, {vr(S)}")

    def own_read(k, g, reg, tag, last=False):
        if g == 8:
            base, off = vA8, 0
        else:
            base, off = vF[g >> 3], (k & 1) * BB + (g & 7) * FB
        a.lds(f"ds_read_b128 {vr(reg)}, v{base} offset:{off}", tag)
        if g == 8 and not last:
            a.e(f"v_add_u32 v{vA8}, v{vD[k & 1]}, v{vA8}")

    UNIT = [(s * SEQB, s * SEQB + BB) for s in range(4)] + [(4 * SEQB, TOPB), (5 * SEQB, TOPB + 8192),
            (6 * SEQB, TOPB + 16384), (TOPB + 24576, TOPB + 32768)]
    EA = 96
    ES = []
    R0 = (120, 121, 64)
    vO, vBW = 122, 127
    BND = SPB
    t0, t1, t2, t3 = 108, 109, 110, 111
    ES.append(f"v_and_b32 v{t0}, 15, v{vL}")
    ES.append(f"v_lshrrev_b32 v{t1}, 4, v{vL}")
    ES.append(f"v_lshrrev_b32 v{t2}, 3, v{t0}")
    ES.append(f"s_lshl_b32 s36, s{sWv}, 1")
    ES.append(f"v_add_u32 v{t2}, s36, v{t2}")
    ES.append(f"v_xor_b32 v{t3}, v{t2}, v{t0}")
    ES.append(f"v_and_b32 v{t3}, 7, v{t3}")
    ES.append(f"v_lshlrev_b32 v{t3}, 4, v{t3}")
    ES.append(f"v_lshl_add_u32 v{t3}, v{t2}, 7, v{t3}")
    ES.append(f"v_lshl_add_u32 v{R0[0]}, v{t1}, 11, v{t3}")
    ES.append(f"v_add_u32 v{R0[1]}, 65536, v{R0[0]}")
    ES.append(f"v_add_u32 v{R0[2]}, 131072, v{R0[0]}")
    ES.append(f"s_lshl_b32 s36, s{sWv}, 9")
    ES.append(f"s_add_u32 s36, s36, {BND}")
    ES.append(f"v_lshl_add_u32 v{vBW}, v{t1}, 7, s36")
    ES.append(f"s_lshl_b32 s36, s{sWv}, 4")
    ES.append(f"v_add_u32 v{t0}, s36, v{t0}")
    ES.append(f"v_lshlrev_b32 v{t2}, 6, v{t0}")
    ES.append(f"v_lshl_add_u32 v{t2}, v{t1}, 4, v{t2}")
    ES.append(f"s_mul_i32 s36, s{sCb}, {4*PLO}")
    ES.append(f"s_lshl_b32 s37, s{sT0}, 4")
    ES.append("s_add_u32 s36, s36, s37")
    ES.append(f"v_add_u32 v{t2}, s36, v{t2}")
    ES.append(f"v_mov_b32 v{t3}, {OOB}")
    ES.append(f"v_cmp_gt_u32 vcc, 125, v{t0}")
    k0 = -2.0 * 1.4426950408889634 * 0.7978845608028654
    consts = [-1.0 / 3, 0.25, -5.0, -32.0 / 9, -8.0 / 9, -2.0 / 9, -1.0 / 18, 17.0 / 9, -2.0 / 3, 0.4, -1.0 / 15, -0.2,
              k0 * 0.044715, 1.0]
    KS = [4, 6, 8, 10, 12, 14, 22, 24, 26, 32, 34, 38, 40, 42]
    for sg, cv in zip(KS, consts):
        ES.append(f"s_mov_b32 s{sg}, {f32hex(cv)}")
        ES.append(f"s_mov_b32 s{sg+1}, s{sg}")

    def ex_addr(sbase):
        a.e(f"v_and_b32 v{EA}, 15, v{vL}")
        a.e(f"v_and_b32 v{EA+1}, 7, v{vL}")
        a.e(f"v_lshlrev_b32 v{EA+1}, 4, v{EA+1}")
        a.e(f"v_lshl_add_u32 v{EA}, v{EA}, 7, v{EA+1}")
        a.e(f"v_lshrrev_b32 v{EA+1}, 4, v{vL}")
        a.e(f"v_lshl_add_u32 v{EA}, v{EA+1}, 11, v{EA}")
        a.e(f"v_add_u32 v{EA}, s{sbase}, v{EA}")
        for f in range(1, 8):
            a.e(f"v_xor_b32 v{EA+f}, {f << 4}, v{EA}")

    def mwave(role):
        if role == 1:
            BR, AR, NR = 64, 96, 6
            steps = [("X", g) for g in range(11)]
        else:
            BR, AR, NR = 64, 88, 7
            steps = []
            for g in range(11):
                steps.append(("Y", g))
                if 1 <= g <= 9:
                    steps.append(("Z", g - 1))
        NS = len(steps)

        def bload(k, kind, q):
            if "nob" in EXP and k > 0:
                return
            so = sBo2 if q >> 1 else sBo
            if kind == "X":
                for c in range(2):
                    a.vmem(f"buffer_load_dwordx4 {vr(BR+(q*2+c)*4)}, v{vB}, {sr(sW)}, s{so} offen "
                           f"offset:{(q&1)*2048 + c*1024}", ("B", k, kind, q))
            elif kind == "Y":
                a.vmem(f"buffer_load_dwordx4 {vr(BR+q*4)}, v{vB}, {sr(sW)}, s{so} offen offset:{(q&1)*2048}",
                       ("B", k, kind, q))
            else:
                a.vmem(f"buffer_load_dwordx4 {vr(BR+16+q*4)}, v{vBZ}, {sr(sW)}, s{sBo} offen offset:{q*2048}",
                       ("B", k, kind, q))

        def rd(k, n, last=False):
            kind, g = steps[n]
            reg = AR + 4 * (n % NR)
            if kind == "Z":
                base, off = (vP[0], g * FB6) if g < 6 else (vP[1], (g - 6) * FB6) if g < 8 else (vP[2], 0)
                a.lds(f"ds_read_b128 {vr(reg)}, v{base} offset:{(k & 1)*BB6 + off}", ("A", k, n))
            else:
                own_read(k, g, reg, ("A", k, n), last)

        for i in range(64):
            a.e(f"v_mov_b32 v{ACC+i}, 0")
        if "b0" in EXP:
            a.e("s_barrier")
        for p in range(3):
            a.vmem(f"buffer_load_dwordx4 {vr(S+4*p)}, v{T+p}, {sr(sX)}, 0 offen", "SP")
        a.e(f"s_mov_b32 s{sBo}, 0")
        a.e(f"s_mov_b32 s{sBo2}, 4096")
        for st in steps:
            if st and st[1] >= 7:
                bload(0, st[0], st[1] - 7)
        a.e(f"s_mov_b32 s{sBo}, {CHUNKB}")
        a.e(f"s_mov_b32 s{sBo2}, {CHUNKB + 4096}")
        SPL = os.environ.get("SPL", "0") == "1"
        if not SPL:
            special_rows()
        if role == 2:
            a.e(f"v_and_b32 v{T+3}, 15, v{vL}")
            a.e(f"v_lshlrev_b32 v{T+3}, 2, v{T+3}")
            a.e(f"v_add_u32 v{T+3}, {6*SEQB + 1024}, v{T+3}")
            a.e(f"ds_write_b32 v{T+3}, v{ACC}")
            a.e(f"ds_write_b32 v{T+3}, v{ACC} offset:{BB6}")
        a.e("s_waitcnt lgkmcnt(0)")
        a.e("s_barrier")
        if SPL:
            a.e("s_setprio 3")
            special_rows()
            a.e("s_waitcnt lgkmcnt(0)")
        stamp(7)
        rstamp(12)
        a.e(f"s_mov_b32 s{sCnt}, {N//2}")
        a.e(f"s_setprio {os.environ.get(f'PM{role}', '2')}")

        CO = int(os.environ.get(f"CO{role}", "0" if role == 1 else "5"))
        assert CO < NR
        FM = int("fmaj" in EXP)
        vE = (vD[0], vD[1])

        def period(k, _, last=False):
            if "mst" in EXP and _ == 0:
                stamp(2)
            if "bst" in EXP and _ == 1 and not last:
                a.e("s_memtime s[90:91]")
                a.e("s_waitcnt vmcnt(0) lgkmcnt(0)")
                a.e("s_memtime s[92:93]")
                a.e("s_waitcnt lgkmcnt(0)")
                a.e("s_sub_u32 s92, s92, s90")
                a.e(f"s_add_u32 s{sSt+4}, s{sSt+4}, s92")
                a.e(f"s_max_u32 s{sSt+6}, s{sSt+6}, s92")
                a.vm = []
            for n in range(NR):
                rd(k, n, last)
            pend = []
            fill = []

            def flush(n, cnt):
                while pend and pend[0][0] <= n and cnt > 0:
                    _, h, f = pend.pop(0)
                    t = vE[(h + f) & 1]
                    a.e(f"v_xor_b32 v{t}, {f << 4}, v{vX0[h]}")
                    lds_throttle()
                    a.lds(f"ds_write_b128 v{t}, {vr(ACC + h*32 + f*4)}", "E")
                    cnt -= 1
                    for _i in range(min(12, len(fill))):
                        a.e(fill.pop(0))

            for n, st in enumerate(steps):
                if CO and n == NS - CO and not last:
                    a.wait(lg_all=True)
                    if "mst" in EXP and _ == 0:
                        stamp(3)
                    a.e("s_barrier")
                    if "mst" in EXP and _ == 0:
                        stamp(4)
                kind, g = st
                nt = 2 if kind == "Z" else 4
                qs = [q for q in range(nt) if 0 <= g - q <= 7]
                if FM and kind == "X":
                    if g >= 3:
                        f = g - 3
                        for c in range(2):
                            for q in range(4):
                                a.wait(lg=(("A", k, f + q),), vm=(("B", k, kind, q),))
                                mf(ACC + 32 * c + f * 4, BR + q * 8 + 4 * c, AR + 4 * ((f + q) % NR))
                        if f + NR < NS:
                            rd(k, f + NR, last)
                        if g == 10 and not last:
                            for q in range(4):
                                bload(k + 1, kind, q)
                    qs = []
                else:
                    a.wait(lg=(("A", k, n),), vm=tuple(("B", k, kind, q) for q in qs))
                reg = AR + 4 * (n % NR)
                for q in qs:
                    f = g - q
                    if kind == "X":
                        mf(ACC + f * 4, BR + q * 8, reg)
                        mf(ACC + 32 + f * 4, BR + q * 8 + 4, reg)
                    elif kind == "Y":
                        mf(ACC + f * 4, BR + q * 4, reg)
                    else:
                        mf(ACC + 32 + f * 4, BR + 16 + q * 4, reg)
                if g >= 7 and not last and not (FM and kind == "X"):
                    bload(k + 1, kind, g - 7)
                if n + NR < NS and not (FM and kind == "X"):
                    rd(k, n + NR, last)
                if last:
                    flush(n, int(os.environ.get('FL', '2')))
                    f = g - (nt - 1)
                    if f >= 0:
                        if kind == "X":
                            pend.append((n + 1, 0, f))
                            pend.append((max(n + 1, NS - NR + 1 + 3 * FM), 1, f))
                            pend.sort()
                        else:
                            pend.append((n + 3, 0 if kind == "Y" else 1, f))
                    if kind == "X" and n == NS - NR + 3 * FM:
                        a.wait(lg=(("A", k, NS - 1),))
            if last:
                fill += ES
                for _i in range(8):
                    a.e(fill.pop(0))
                flush(1000, 1000)
                for op in fill:
                    a.e(op)
                return
            a.e(f"s_add_u32 s{sBo}, s{sBo}, {CHUNKB}")
            a.e(f"s_add_u32 s{sBo2}, s{sBo2}, {CHUNKB}")
            assert not a.lg
            if "mst" in EXP and _ == 0:
                stamp(5)
            if not CO:
                a.e("s_barrier")
            if "mst" in EXP and _ == 0:
                stamp(6)

        def period2(k, pos):
            if pos == 1:
                a.e(f"s_sub_u32 s{sCnt}, s{sCnt}, 1")
                a.e(f"s_cmp_eq_u32 s{sCnt}, 0")
                a.e(f"s_cbranch_scc1 L_{name}_mlast{role}")
                state[0] = (list(a.vm), k)
            period(k, pos)

        state = [None]
        body = steady(period2, 2, "nob" not in EXP)
        if "nob" in EXP:
            a.e("s_waitcnt vmcnt(0)")
        a.label(f"L_{name}_mloop{role}")
        a.L.extend(body)
        a.e(f"s_branch L_{name}_mloop{role}")
        a.label(f"L_{name}_mlast{role}")
        a.vm, a.lg = state[0][0], []
        vX0 = (vB, 126)
        a.e(f"v_and_b32 v{vX0[0]}, 15, v{vL}")
        a.e(f"v_and_b32 v{vX0[1]}, 7, v{vL}")
        a.e(f"v_lshlrev_b32 v{vX0[1]}, 4, v{vX0[1]}")
        a.e(f"v_lshl_add_u32 v{vX0[0]}, v{vX0[0]}, 7, v{vX0[1]}")
        a.e(f"v_lshrrev_b32 v{vX0[1]}, 4, v{vL}")
        a.e(f"v_lshl_add_u32 v{vX0[0]}, v{vX0[1]}, 11, v{vX0[0]}")
        if role == 1:
            a.e(f"s_lshl_b32 s36, s{sWv}, 14")
            a.e("s_add_u32 s37, s36, 8192")
        else:
            for sg, tab in ((36, [UNIT[4 + (h >> 1)][h & 1] for h in range(4)]),
                            (37, [UNIT[6 + (h >> 1)][h & 1] for h in range(4)])):
                a.e(f"s_mov_b32 s{sg}, {tab[0]}")
                for h in range(1, 4):
                    a.e(f"s_cmp_eq_u32 s{sH}, {h}")
                    a.e(f"s_cselect_b32 s{sg}, {tab[h]}, s{sg}")
        a.e(f"v_add_u32 v{vX0[1]}, s37, v{vX0[0]}")
        a.e(f"v_add_u32 v{vX0[0]}, s36, v{vX0[0]}")
        if os.environ.get(f"PL{role}"):
            a.e(f"s_setprio {os.environ.get(f'PL{role}')}")
        period(state[0][1], 1, True)
        stamp(8, False)
        rstamp(13)
        a.e("s_setprio 0")
        a.vm, a.lg = [], []

    a.e(f"s_cmp_ge_u32 s{sWv}, 4")
    a.e(f"s_cbranch_scc1 L_{name}_m2")
    vm0 = list(a.vm)
    mwave(1)
    a.e(f"s_branch L_{name}_epi")
    a.label(f"L_{name}_m2")
    a.vm, a.lg = list(vm0), []
    a.e(f"s_mul_i32 s37, s38, {2*FB6}")
    a.e(f"s_add_u32 s37, s37, {6*SEQB}")
    a.e(f"v_add_u32 v{vP[0]}, s37, v{vU}")
    a.e(f"v_add_u32 v{vP[2]}, s37, v{vS_}")
    a.e(f"v_add_u32 v{vP[1]}, {6*SEQB + 6*FB6}, v{vU}")
    a.e("s_cmp_eq_u32 s38, 0")
    a.e(f"s_cbranch_scc1 L_{name}_hh0")
    a.e(f"v_add_u32 v{vP[1]}, {6*SEQB}, v{vS_}")
    a.label(f"L_{name}_hh0")
    a.e("s_lshl_b32 s37, s38, 12")
    a.e("s_add_u32 s37, s37, s43")
    a.e(f"s_add_u32 s37, s37, {6*8192}")
    a.e(f"v_lshl_add_u32 v{vBZ}, v{vL}, 4, s37")
    mwave(2)
    a.e(f"s_branch L_{name}_epi")

    a.label(f"L_{name}_helper")
    a.vm, a.lg = [], []
    a.e("s_setprio 3")
    PB = (0, 32)
    XO = 64
    TMP = 76
    vX = 92
    vW = (96, 97, 98)

    def praw(b, half, p):
        return PB[b] + half * 16 + p * 4

    sXo2 = 27

    def xload(pair, p):
        if KSPLIT:
            half, q = p >> 1, p & 1
            for r in (q, q + 2):
                a.vmem(f"buffer_load_dwordx4 {vr(praw(pair & 1, half, r))}, v{vX+r}, {sr(sX)}, "
                       f"s{sXo2 if half else sXo} offen", ("X", pair))
            return
        for half in range(2):
            a.vmem(f"buffer_load_dwordx4 {vr(praw(pair & 1, half, p))}, v{vX+p}, {sr(sX)}, "
                   f"s{sXo} offen offset:{half*64}", ("X", pair))
        a.e(f"v_add_u32 v{vX+p}, 128, v{vX+p}")

    def uregs(chunk):
        return [praw((chunk >> 1) & 1, chunk & 1, p) for p in range(4)]

    def wr(chunk, i):
        if "nowr" in EXP:
            return
        u = uregs(chunk)
        reg, seq = [(XO, 3), (XO + 4, 4), (XO + 8, 5), (u[0], 0), (u[1], 1), (u[2], 2), (u[3], 6)][i]
        lds_throttle()
        if seq == 6:
            a.lds(f"ds_write_b128 v{vW[2]}, {vr(reg)} offset:{(chunk & 1)*BB6}", "W")
        else:
            a.lds(f"ds_write_b128 v{vW[seq >> 2]}, {vr(reg)} offset:{(seq & 3)*SEQB + (chunk & 1)*BB}", "W")

    def tr_ops(chunk):
        u = uregs(chunk)
        o = [u[1], u[2], XO, XO + 4, XO + 8]
        ops = []
        for d in range(4):
            lo = [TMP + p for p in range(4)]
            hi = [TMP + 8 + p for p in range(4)]
            for p in range(4):
                ops.append(f"v_lshlrev_b32 v{lo[p]}, 16, v{u[p]+d}")
                ops.append(f"v_and_b32 v{hi[p]}, s{sMask}, v{u[p]+d}")
            o1, r1 = eval_ops(lo, [TMP + 4 + i for i in range(4)])
            o2, r2 = eval_ops(hi, [TMP + 12 + i for i in range(4)])
            for x, y in zip(o1, o2):
                ops += [x, y]
            for i in range(5):
                ops.append(f"v_cvt_pk_bf16_f32 v{o[i]+d}, v{r1[i]}, v{r2[i]}")
        if "notr" in EXP:
            ops = ["s_nop 0"] * 8
        return ops

    if KSPLIT:
        a.e("v_lshlrev_b32 v8, 4, v6")
    for p in range(4):
        if KSPLIT:
            haddr(vX + p, 7, 8, p, 9)
        else:
            a.e(f"v_add_u32 v{vX+p}, {p*1024}, v7")
    a.e(f"v_and_b32 v{TMP}, 4, v5")
    a.e(f"v_lshrrev_b32 v{TMP}, 1, v{TMP}")
    a.e(f"v_xor_b32 v{TMP}, v6, v{TMP}")
    a.e(f"v_lshlrev_b32 v{TMP}, 4, v{TMP}")
    a.e(f"v_lshl_add_u32 v{TMP}, v5, 6, v{TMP}")
    a.e(f"s_mov_b32 s{sXo}, 0")
    a.e(f"s_mov_b32 s{sXo2}, {4*PLH}")
    kwait()
    stamp(2)
    P0 = os.environ.get("P0", "0")
    if P0 == "0" or KSPLIT:
        for p in range(4):
            xload(0, p)
            if p == 1 and P0 == "2":
                a.e("s_barrier")
    else:
        for half in range(2):
            for p in range(4):
                a.vmem(f"buffer_load_dwordx4 {vr(praw(0, half, p))}, v{vX+p}, {sr(sX)}, s{sXo} offen offset:{half*64}", ("X", 0))
            if half == 0 and P0 == "2":
                a.e("s_barrier")
        for p in range(4):
            a.e(f"v_add_u32 v{vX+p}, 128, v{vX+p}")
    if P0 != "2" and "b0" in EXP:
        a.e("s_barrier")
    a.e(f"s_mul_i32 s36, s42, {FB}")
    a.e(f"v_add_u32 v{vW[0]}, s36, v{TMP}")
    a.e(f"v_add_u32 v{vW[1]}, {4*SEQB}, v{vW[0]}")
    a.e(f"s_mul_i32 s36, s42, {FB6}")
    a.e(f"s_add_u32 s36, s36, {6*SEQB}")
    a.e(f"v_add_u32 v{vW[2]}, s36, v{TMP}")
    stamp(3)
    a.e(f"s_waitcnt vmcnt({0 if P0 == '0' else 4})")
    stamp(4)
    a.e(f"s_mov_b32 s{sK}, 0")
    a.e(f"s_mov_b32 s{sCnt}, {N//4}")
    a.e(f"s_cmp_ge_u32 s{sWv}, 12")
    a.e(f"s_cbranch_scc1 L_{name}_h2")

    def hwave(role):
        SH = 33 * int(os.environ.get(f"SH{role}", "0" if role == 1 else "4"))
        ahead = 2 if SH else 1
        a.vm, a.lg = [], []
        if role == 2 and not KSPLIT:
            a.e("s_load_dwordx2 s[48:49], s[0:1], 16")
        wr(0, 3)
        wr(0, 6)
        for op in tr_ops(0):
            a.e(op)
        for i in (0, 1, 2, 4, 5):
            wr(0, i)
        a.e("s_waitcnt vmcnt(0)")
        W2E = role == 2 and not KSPLIT and os.environ.get("W2", "1") == "3"
        NF = int(os.environ.get("NF", "2"))
        if KSPLIT:
            a.e(f"s_mov_b32 s{sXo}, {8*PLH}")
            a.e(f"s_mov_b32 s{sXo2}, {12*PLH}")
        X1 = os.environ.get("X1", "1")
        if X1 == "0":
            for p in range(4 if SH else NF):
                xload(1, p)
        stamp(5)
        a.wait(lg_all=True)
        stamp(6)
        a.e("s_barrier")
        stamp(7)
        rstamp(12)
        if X1 == "1":
            for p in range(4 if SH else NF):
                xload(1, p)
        PA, PB_ = os.environ.get(f'PH{role}', '11' if role == 1 else '00')
        a.e(f"s_setprio {PA}")
        for op in tr_ops(1)[:SH]:
            a.e(op)
        if role == 1 and os.environ.get("MW", ""):
            a.e(f"s_cmp_lt_u32 s2, {os.environ.get('TWN', '32')}")
            a.e("s_cselect_b32 s55, 1, 99")
            a.e("s_getpc_b64 s[36:37]")
            a.label(f"L_{name}_pc3")
            a.e(f"s_sub_u32 s36, s36, L_{name}_pc3-{name}")
            a.e("s_subb_u32 s37, s37, 0")
            a.e(f"s_lshl_b32 s38, s{sH}, 13")
            a.e(f"v_lshl_add_u32 v102, v{vL}, 7, s38")
            a.e(f"v_min_u32 v102, L_{name}_done-{name}, v102")
            a.e("v_mov_b32 v103, s37")
            a.e("v_add_co_u32 v102, vcc, s36, v102")
            a.e("s_nop 1")
            a.e("v_addc_co_u32 v103, vcc, 0, v103, vcc")
        if W2E:
            a.e("s_lshr_b32 s52, s2, 6")
            a.e("s_lshl_b32 s52, s52, 3")
            a.e("s_bfe_u32 s36, s2, 0x10005")
            a.e("s_add_u32 s52, s52, s36")
            a.e("s_lshl_b32 s52, s52, 17")
            a.e("s_bfe_u32 s36, s2, 0x30002")
            a.e("s_lshl_b32 s36, s36, 1")
            a.e(f"s_and_b32 s37, s{sH}, 1")
            a.e("s_add_u32 s36, s36, s37")
            a.e("s_lshl_b32 s36, s36, 13")
            a.e("s_add_u32 s52, s52, s36")
            a.e("s_and_b32 s36, s2, 3")
            a.e("s_lshl_b32 s36, s36, 1")
            a.e(f"s_lshr_b32 s37, s{sH}, 1")
            a.e("s_add_u32 s36, s36, s37")
            a.e("s_lshl_b32 s36, s36, 6")
            a.e("s_add_u32 s52, s52, s36")
            a.e(f"s_mov_b32 s50, {31*131072}")
            a.e("s_mov_b32 s51, 0x00020000")
            a.e(f"v_lshrrev_b32 v99, 4, v{vL}")
            a.e("v_lshlrev_b32 v99, 11, v99")
            a.e(f"v_and_b32 v100, 15, v{vL}")
            a.e("v_lshl_add_u32 v99, v100, 2, v99")

        def w2load(pos):
            a.e(f"s_cmp_lg_u32 s{sCnt}, {os.environ.get('W2I', '3')}")
            a.e(f"s_cbranch_scc1 L_{name}_w2s{pos}")
            for e in range(4):
                a.e(f"buffer_load_dword v{100+pos*4+e}, v99, s[48:51], s52 offen offset:{e*512}")
            a.e(f"s_add_u32 s52, s52, {2*131072}")
            a.label(f"L_{name}_w2s{pos}")
        VPF = int(os.environ.get("VPF", "0")) if role == 1 and not KSPLIT and XL == 3 else 0
        if VPF:
            a.e(f"s_lshl_b32 s36, s{sCb}, 6")
            a.e(f"s_lshl_b32 s37, s{sH}, 3")
            a.e("s_add_u32 s36, s36, s37")
            a.e("s_lshl_b32 s36, s36, 10")
            a.e("s_add_u32 s36, s36, s41")
            a.e(f"s_add_u32 s36, s36, {VPF*128}")
            a.e(f"v_and_b32 v100, 7, v{vL}")
            a.e("v_lshl_add_u32 v100, v100, 10, s36")

        def vpf(k):
            a.e(f"s_cmp_lt_u32 s{sK}, {N - 2*VPF}")
            a.e(f"s_cselect_b32 s36, 0, {OOB}")
            a.vmem(f"buffer_load_dword v99, v100, {sr(sX)}, s36 offen", "PF")
            a.e(f"v_add_u32 v100, {(128 - 32768) & 0xffffffff if k & 1 else 32768}, v100")
        XP = [float(x) for x in os.environ.get(f"XP{role}", "0,0,0,0" if SH else "0.3,0.7,0.1,0.5").split(",")]

        def period(k, pos, last=False):
            pair = (k >> 1) + 2 if SH else (k + 3) >> 1
            first = not (k & 1) if SH else (k & 1)
            if pos == 4 - ahead and not last:
                a.e(f"s_cmp_eq_u32 s{sCnt}, 1")
                a.e(f"s_cbranch_scc1 L_{name}_hlast{role}")
            if "hst" in EXP and pos == 1:
                stamp(2)
            V1 = tr_ops(k + 1)[SH:]
            V2 = [] if last else tr_ops(k + 2)[:SH]
            V = V1 + V2
            n = len(V)
            ev = {}

            def at(i, f):
                ev.setdefault(max(0, min(int(i), n)), []).append(f)

            def stores():
                if "hst" in EXP and pos == 1:
                    stamp(3)
                for i in range(7):
                    wr(k + 1, i)
                if "hst" in EXP and pos == 1:
                    stamp(4)
                if PA != PB_:
                    a.e(f"s_setprio {PB_}")
            if PA != PB_:
                a.e(f"s_setprio {PA}")
            if VPF and not last:
                at(float(os.environ.get("VPP", "1.0")) * n, lambda: vpf(k))
            at(len(V1), stores)
            if W2E and not last:
                at(len(V1) + 1, lambda: w2load(pos))
            if not last:
                if not KSPLIT:
                    a.e(f"s_cmp_lt_u32 s{sK}, {N - 2 - ahead}")
                    a.e(f"s_cselect_b32 s{sXo}, 0, {OOB}")
                elif first:
                    a.e(f"s_add_u32 s{sXo}, s{sXo}, {8*PLH}")
                    a.e(f"s_add_u32 s{sXo2}, s{sXo2}, {8*PLH}")
                at(len(V1) if SH else 0, lambda: a.wait(vm=(("X", (k + ahead) >> 1),)))
                if "nox" not in EXP:
                    for p in (range(NF) if first else range(NF, 4)):
                        w = len(V1) + XP[p] * SH if SH and first else XP[p] * n
                        at(w, lambda p=p: xload(pair, p))
            for i in range(n + 1):
                for f in ev.get(i, []):
                    f()
                if i < n:
                    a.e(V[i])
            MW = os.environ.get("MW", "")
            if role == 1 and MW and pos == int(MW) and not last:
                a.e(f"s_cmp_lg_u32 s{sCnt}, s55")
                a.e(f"s_cbranch_scc1 L_{name}_nmw")
                a.e("global_load_dword v101, v[102:103], off")
                a.label(f"L_{name}_nmw")
            if not last:
                a.e(f"s_add_u32 s{sK}, s{sK}, 1")
            if "hst" in EXP and pos == 1:
                stamp(5)
            a.e("s_waitcnt lgkmcnt(0)")
            a.lg = []
            a.e("s_barrier")
            if "hst" in EXP and pos == 1:
                stamp(6)

        body = steady(period, 4, "nox" not in EXP)
        a.label(f"L_{name}_hloop{role}")
        a.L.extend(body)
        a.e(f"s_sub_u32 s{sCnt}, s{sCnt}, 1")
        a.e(f"s_branch L_{name}_hloop{role}")
        a.label(f"L_{name}_hlast{role}")
        a.vm, a.lg = [], []

        def last_period():
            vm = a.vm
            a.vm, a.lg = [], []
            if SH:
                a.e(f"s_mov_b32 s{sMask}, 0xffff0000")
                period(2, 2, True)
            a.vm = vm
        if role == 1 or KSPLIT or W2P:
            last_period()
        else:
            assert SH
            W2L = os.environ.get("W2L", "0") == "1"
            if W2L:
                last_period()
            a.e("s_waitcnt vmcnt(0)")
            a.e(f"s_mov_b32 s58, s{sWv}")
            a.e(f"s_lshl_b32 s20, s2, 2")
            a.e(f"s_add_u32 s20, s20, s{sH}")
            a.e(f"v_mov_b32 v1, v{vL}")
            if W2E:
                wprep2(a, 16, WS_W2P, last_period, pre=100)
            elif os.environ.get("W2", "1") == "2":
                wprep2(a, 16, WS_W2P, last_period, LB=False)
            else:
                wprep(a, 16, WS_W2P, True, barrier=None if W2L else last_period)
            a.e(f"s_mov_b32 s{sWv}, s58")
        if role == 1 and KSPLIT and "tailwarm" in EXP:
            add64(a, sW, 30, WS_WF)
            a.e(f"s_mov_b32 s{sW+2}, {262144 + 32768}")
            a.e(f"s_mov_b32 s{sW+3}, 0x00020000")
            a.e("s_lshr_b32 s36, s2, 3")
            a.e("s_lshl_b32 s36, s36, 2")
            a.e(f"s_add_u32 s36, s36, s{sH}")
            a.e("s_mul_i32 s36, s36, 2304")
            a.e(f"v_lshlrev_b32 v1, 4, v{vL}")
            for i in range(3):
                a.e(f"buffer_load_dwordx4 v[4:7], v1, {sr(sW)}, s36 offen offset:{i*1024}")
        if role == 1 and "notw" not in EXP:
            a.e(f"s_cmp_ge_u32 s2, {os.environ.get('TWN', '32')}")
            a.e(f"s_cbranch_scc1 L_{name}_ntw")
            a.e("s_getpc_b64 s[36:37]")
            a.label(f"L_{name}_pc")
            a.e(f"s_lshl_b32 s38, s{sH}, 13")
            a.e(f"s_add_u32 s38, s38, L_{name}_epi-L_{name}_pc")
            a.e(f"v_lshl_add_u32 v2, v{vL}, 7, s38")
            a.e(f"v_min_u32 v2, {0x7fc0de01 + KSPLIT:#x}, v2")
            a.e("v_mov_b32 v3, s37")
            a.e("v_add_co_u32 v2, vcc, s36, v2")
            a.e("s_nop 1")
            a.e("v_addc_co_u32 v3, vcc, 0, v3, vcc")
            a.e("global_load_dword v4, v[2:3], off")
            a.label(f"L_{name}_ntw")
        stamp(8)
        rstamp(13)
        a.e(f"s_branch L_{name}_end")

    hwave(1)
    a.label(f"L_{name}_h2")
    hwave(2)

    a.label(f"L_{name}_epi")
    K = [sr(x, 2) for x in KS]
    a.e("s_waitcnt lgkmcnt(0)")
    a.e("s_barrier")
    if "est" in EXP:
        stamp(2)
    a.e(f"v_cndmask_b32 v{vO}, v{t3}, v{t2}, vcc")

    def P(c, s, r=0):
        return c * 32 + s * 4 + r
    Y = 64
    TB = 96
    ELS = (0, 1, 2)
    for c in range(2):
        for s_ in range(8):
            if c == 1 and s_ == 7:
                a.e("s_waitcnt lgkmcnt(7)")
            u = UNIT[s_][c]
            a.e(f"ds_read_b128 {vr(P(c, s_))}, v{R0[u >> 16]} offset:{u & 0xffff}")

    def p2(x):
        return vr(x, 2)

    def padd(d, x, y):
        return f"v_pk_add_f32 {p2(d)}, {p2(x)}, {p2(y)}"

    def psub(d, x, y):
        return f"v_pk_add_f32 {p2(d)}, {p2(x)}, {p2(y)} neg_lo:[0,1] neg_hi:[0,1]"

    def pfma(d, x, k, y, neg=False):
        return f"v_pk_fma_f32 {p2(d)}, {p2(x)}, {k}, {p2(y)}" + (" neg_lo:[0,0,1] neg_hi:[0,0,1]" if neg else "")

    def interp(c):
        seq = []
        for r in (0, 2):
            E0, A, B, C, D, Q, E6, E6b = (P(c, x, r) for x in range(8))
            y = [Y + ph * 8 + c * 4 + r for ph in range(4)]
            S1, G = E6, C
            seq.append([
                padd(y[3], E6, E6b),
                padd(S1, A, B),
                psub(A, A, B),
                padd(y[1], C, D),
                psub(G, C, D),
                pfma(y[1], S1, K[0], y[1]),
                pfma(Q, E0, K[3], Q),
                pfma(y[1], E0, K[1], y[1]),
                psub(S1, S1, E0),
                pfma(y[1], y[3], K[2], y[1]),
                psub(S1, S1, y[3]),
                pfma(Q, y[3], K[6], Q),
                psub(B, S1, y[1]),
                pfma(Q, y[1], K[5], Q),
                f"v_pk_mul_f32 {p2(y[2])}, {p2(G)}, {K[9]}",
                pfma(Q, B, K[4], Q),
                pfma(y[2], A, K[10], y[2]),
                pfma(y[0], A, K[7], Q, True),
                pfma(y[0], G, K[8], y[0]),
                pfma(y[2], y[0], K[11], y[2]),
                psub(A, A, y[0]),
                psub(A, A, y[2]),
            ])
        for ops in zip(*seq):
            for op in ops:
                a.e(op)

    a.e("s_waitcnt lgkmcnt(8)")
    interp(0)
    a.e("s_waitcnt lgkmcnt(0)")
    interp(1)
    if "est" in EXP:
        stamp(3)
    a.e("s_mov_b32 s36, 0x00010001")
    a.e("s_mov_b32 s37, 0x00010001")
    a.e("s_mov_b64 exec, s[36:37]")
    for k in range(3):
        for c in range(2):
            a.e(f"ds_write_b128 v{vBW}, {vr(P(c, ELS[k]))} offset:{(k*2+c)*16}")
    a.e("s_mov_b64 exec, -1")

    def finish(ph):
        ys = [Y + ph * 8 + i for i in range(8)]
        if not KSPLIT:
            ts = [16 + (ph & 1) * 8 + i for i in range(8)]
            ev = list(zip(ys[::2], ts[::2]))
            for y, t in ev:
                a.e(f"v_pk_mul_f32 {p2(t)}, {p2(y)}, {p2(y)}")
            for y, t in ev:
                a.e(pfma(t, t, K[12], 44))
            for y, t in ev:
                a.e(f"v_pk_mul_f32 {p2(t)}, {p2(t)}, {p2(y)}")
            for t in ts:
                a.e(f"v_exp_f32 v{t}, v{t}")
            for y, t in ev:
                a.e(f"v_pk_add_f32 {p2(t)}, {p2(t)}, {K[13]}")
            for t in ts:
                a.e(f"v_rcp_f32 v{t}, v{t}")
            for y, t in ev:
                a.e(f"v_pk_mul_f32 {p2(y)}, {p2(y)}, {p2(t)}")
        o = 48 + ph * 4
        for r in range(4):
            a.e(f"v_cvt_pk_bf16_f32 v{o+r}, v{ys[r]}, v{ys[4+r]}")
        so = ph * PLF if KSPLIT else ((ph + 3) & 3) * PLH + ((ph + 7) >> 2) * 64
        a.e(f"s_mov_b32 s44, {so}")
        a.e(f"buffer_store_dwordx4 {vr(o)}, v{vO}, {sr(sO)}, s44 offen{NTF if KSPLIT else NTH}")

    a.e(f"v_mov_b32 v44, {f32hex(k0)}")
    a.e("v_mov_b32 v45, v44")
    finish(0)
    a.e("s_waitcnt lgkmcnt(0)")
    a.e("s_barrier")
    if "est" in EXP:
        stamp(4)
    for i in range(6):
        a.e(f"ds_read_b128 {vr(TB+4*i)}, v{vBW} offset:{512 + i*16}")
    for ph in range(1, 4):
        a.e(f"s_waitcnt lgkmcnt({6 - 2*ph})")
        for c in range(2):
            for r in range(4):
                i = (ph - 1) * 8 + c * 4 + r
                a.e(f"v_mov_b32_dpp v{TB+i}, v{P(c, ELS[ph-1], r)} row_shl:1 row_mask:0xf bank_mask:0xf")
        for i in range(0, 8, 2):
            a.e(padd(Y + ph * 8 + i, Y + ph * 8 + i, TB + (ph - 1) * 8 + i))
        finish(ph)
    if "est" in EXP:
        stamp(5)
    RB = os.environ.get("RB", "00")[int(KSPLIT)]
    if RB != "0":
        if not KSPLIT:
            a.e(f"s_cmp_ge_u32 s{sCb}, {RB}")
            a.e(f"s_cbranch_scc1 L_{name}_end")
        a.e("s_waitcnt vmcnt(0)")
        for ph in range(4):
            so = ph * PLF if KSPLIT else ((ph + 3) & 3) * PLH + ((ph + 7) >> 2) * 64
            a.e(f"s_mov_b32 s44, {so}")
            a.e(f"buffer_load_dword v0, v{vO}, {sr(sO)}, s44 offen")
    a.label(f"L_{name}_end")
    if STAMP:
        a.e("s_waitcnt vmcnt(0)")
        stamp(9, False)
        a.e(f"s_memrealtime s[{sSt+22}:{sSt+23}]")
        a.e(f"s_cmp_lg_u32 s{sWv}, {os.environ.get('SW', '0')}")
        a.e(f"s_cbranch_scc1 L_{name}_done")
        a.e("s_lshl_b32 s36, s2, 7")
        a.e(f"s_add_u32 s36, s36, {WS_STAMP + cfg['stamp']*0x10000}")
        add64(a, 40, 30, "s36")
        a.e("s_mov_b32 s42, 128")
        a.e("s_mov_b32 s43, 0x00020000")
        a.e("s_waitcnt lgkmcnt(0)")
        a.e("v_mov_b32 v8, 0")
        for i in range(28):
            a.e(f"v_mov_b32 v0, s{sSt+i}")
            a.e(f"buffer_store_dword v0, v8, s[40:43], 0 offen offset:{4*i}")
    a.label(f"L_{name}_done")
    a.e("s_endpgm")
    return a.L, TOPB + 40960, 128


CONV1 = dict(tin=16000, tout=8000, nchunk=16, ksplit=False, in_arg=0, in_off=0, w_off=WS_W1P, out_off=WS_H, stamp=0)
CONV2 = dict(tin=8000, tout=4000, nchunk=8, ksplit=True, in_arg=72, in_off=WS_H, w_off=WS_W2P, out_off=WS_FP, stamp=1)

HEADER = f"""; Kernarg layout for this problem (80 bytes, ptrs only, base s[0:1]):
"""


def main():
    ks = [("prep_kernel", 256, 640 if W2P else 384) + prep_kernel("prep_kernel"),
          ("conv1_kernel", 256, 1024) + conv_kernel("conv1_kernel", CONV1),
          ("conv2_kernel", 256, 1024) + conv_kernel("conv2_kernel", CONV2)]
    ks = joint_kernels(ks)
    out = HEADER
    for nm, grid, block, code, lds, vg in ks:
        out += f"; @launch kernel={nm} grid=({grid},1,1) block=({block},1,1) lds={lds}\n"
    out += '.amdgcn_target "amdgcn-amd-amdhsa--gfx950"\n.text\n'
    for nm, grid, block, code, lds, vg in ks:
        if "noalign" not in EXP:
            code = align8(code)
        out += f".globl {nm}\n.p2align 8\n.type {nm},@function\n" + "\n".join(code) + "\n"
    out += '.section .rodata,"a"\n'
    for nm, grid, block, code, lds, vg in ks:
        out += ".p2align 6\n" + kd(nm, vg)
    out = out.replace("0x7fc0de00", "L_joint_kernel_done-L_prep_kernel_pc")
    out = out.replace("0x7fc0de01", "L_conv2_kernel_done-L_conv1_kernel_pc")
    out = out.replace("0x7fc0de02", "L_joint_kernel_done-L_conv2_kernel_pc")
    path = sys.argv[1] if len(sys.argv) > 1 else "standalone__seq2seq_rnn_t_joint__speech.s"
    open(path, "w").write(out)


if __name__ == "__main__":
    main()
```

```python
import os
from asmlib import Asm, vr, sr, f32hex

EXP = os.environ.get("EXP", "").split(",")
WS_FP = 0x1A00000
WS_FPS = 0x800000
PLF = int(os.environ.get('PLF', 65536))
WS_WF = 0x2A00000
WS_WO = 0x2A20000
WS_GE = 0x2A40000
WS_STAMP = 0x3000000
C2 = 2.0 * 1.4426950408889634
RANGE = 120.0


def add64(a, d, lo, off):
    a.e(f"s_add_u32 s{d}, s{lo}, {off}")
    a.e(f"s_addc_u32 s{d+1}, s{lo+1}, 0")


def small_head(a, name):
    a.e("s_cmp_ge_u32 s2, 24")
    a.e(f"s_cbranch_scc1 L_{name}_done")
    a.e("s_lshr_b32 s41, s2, 3")
    a.e("s_and_b32 s42, s2, 7")
    a.e("s_sub_u32 s43, s40, 4")
    a.e("s_lshl_b32 s26, s43, 16")
    a.e("s_lshl_b32 s5, s42, 6")
    a.e("s_add_u32 s26, s26, s5")
    a.e("s_mov_b32 s10, 131072")
    a.e("s_mov_b32 s11, 0x00020000")
    a.e("v_lshrrev_b32 v2, 4, v1")
    a.e("v_lshlrev_b32 v2, 12, v2")
    a.e("v_and_b32 v3, 15, v1")
    a.e("v_lshl_add_u32 v2, v3, 2, v2")
    a.e("v_mov_b32 v9, 0")
    a.e("ds_write_b32 v9, v9 offset:2048")
    a.e("s_waitcnt lgkmcnt(0)")
    a.e("s_cmp_eq_u32 s41, 1")
    a.e("s_cselect_b32 s8, s56, s52")
    a.e("s_cselect_b32 s9, s57, s53")
    a.e("s_cmp_eq_u32 s41, 2")
    a.e("s_cselect_b32 s8, s54, s8")
    a.e("s_cselect_b32 s9, s55, s9")
    a.e("s_barrier")
    small_g(a, name)
    for k in range(4):
        for e in range(8):
            a.e(f"buffer_load_dword v{16+k*8+e}, v2, s[8:11], s26 offen offset:{e*512}")
        if k < 3:
            a.e("s_add_u32 s26, s26, 16384")
    a.e(f"s_branch L_{name}_small")


def small_g(a, name):
    a.e("s_cmp_lg_u32 s41, 2")
    a.e(f"s_cbranch_scc1 L_{name}_nog")
    a.e("s_mov_b32 s16, s50")
    a.e("s_mov_b32 s17, s51")
    a.e("s_mov_b32 s18, 8192")
    a.e("s_mov_b32 s19, 0x00020000")
    a.e("v_and_b32 v6, 0x30, v1")
    a.e("v_lshl_add_u32 v6, v3, 9, v6")
    a.e("s_lshl_b32 s6, s43, 8")
    for k in range(4):
        a.e(f"buffer_load_dwordx4 {vr(80+4*k)}, v6, s[16:19], s6 offen offset:{k*64}")
    a.label(f"L_{name}_nog")


def small_tail(a, name):
    a.label(f"L_{name}_small")
    R, O = 16, 48
    a.e("v_lshrrev_b32 v2, 4, v1")
    a.e("s_lshl_b32 s24, s41, 17")
    a.e(f"s_add_u32 s24, s24, {WS_WF}")
    add64(a, 12, 30, "s24")
    a.e("s_mov_b32 s14, 131072")
    a.e("s_mov_b32 s15, 0x00020000")
    a.e("s_mov_b32 s32, 0x05040100")
    a.e("s_mov_b32 s33, 0x07060302")
    a.e("v_lshlrev_b32 v4, 4, v1")
    a.e("s_lshl_b32 s24, s42, 14")
    a.e("s_lshl_b32 s25, s43, 13")
    a.e("s_add_u32 s24, s24, s25")
    a.e("s_add_u32 s25, s24, 4096")
    a.e("s_waitcnt vmcnt(0)")
    for k in range(4):
        for jn in range(2):
            for e2 in range(4):
                a.e(f"v_perm_b32 v{O+(k*2+jn)*4+e2}, v{R+k*8+2*e2+1}, v{R+k*8+2*e2}, s{32+jn}")
    a.e("s_cmp_eq_u32 s41, 2")
    a.e(f"s_cbranch_scc1 L_{name}_ge")
    for i in range(8):
        a.e(f"buffer_store_dwordx4 {vr(O+4*i)}, v4, s[12:15], s{24+(i>>2)} offen offset:{(i&3)*1024} sc1")
    a.e("s_endpgm")
    a.label(f"L_{name}_ge")
    ACC = 96
    for k in range(4):
        for jn in range(2):
            c = "0" if k == 0 else vr(ACC + 4 * jn)
            a.e(f"v_mfma_f32_16x16x32_bf16 {vr(ACC+4*jn)}, {vr(O+(k*2+jn)*4)}, {vr(80+4*k)}, {c}")
    a.e("v_mov_b32 v7, v4")
    a.e("v_mov_b32 v10, 1")
    a.e("s_nop 0")
    a.e("s_mov_b32 s14, 16384")
    a.e("v_lshlrev_b32 v8, 10, v3")
    a.e("v_lshl_add_u32 v8, v2, 5, v8")
    a.e("s_lshl_b32 s24, s42, 7")
    a.e("s_mov_b32 s34, 0xffff0000")
    a.e(f"s_mov_b32 s35, {f32hex(C2)}")
    a.e("s_cmp_eq_u32 s43, 0")
    a.e(f"s_cbranch_scc1 L_{name}_ge0")
    a.e(f"ds_write_b128 v7, {vr(ACC)}")
    a.e(f"ds_write_b128 v7, {vr(ACC+4)} offset:1024")
    a.e("ds_write_b32 v9, v10 offset:2048")
    a.e("s_endpgm")
    a.label(f"L_{name}_ge0")
    a.e("ds_read_b32 v10, v9 offset:2048")
    a.e("s_waitcnt lgkmcnt(0)")
    a.e("v_readfirstlane_b32 s27, v10")
    a.e("s_cmp_eq_u32 s27, 0")
    a.e(f"s_cbranch_scc1 L_{name}_ge0")
    a.e(f"ds_read_b128 {vr(16)}, v7")
    a.e(f"ds_read_b128 {vr(20)}, v7 offset:1024")
    a.e("s_waitcnt lgkmcnt(0)")
    for r in range(8):
        a.e(f"v_add_f32 v{16+r}, v{16+r}, v{ACC+r}")
    for i in range(4):
        a.e(f"v_cvt_pk_bf16_f32 v{48+i}, v{16+i}, v{20+i}")
    for i in range(4):
        a.e(f"v_lshlrev_b32 v{56+2*i}, 16, v{48+i}")
        a.e(f"v_and_b32 v{57+2*i}, s34, v{48+i}")
    for r in range(8):
        a.e(f"v_mul_f32 v{56+r}, s35, v{56+r}")
    a.e(f"buffer_store_dwordx4 {vr(56)}, v8, s[12:15], s24 offen sc1")
    a.e(f"buffer_store_dwordx4 {vr(60)}, v8, s[12:15], s24 offen offset:16 sc1")
    for r in range(8):
        a.e(f"v_exp_f32 v{64+r}, v{56+r}")
    a.e("v_max3_f32 v72, |v56|, |v57|, |v58|")
    a.e("v_max3_f32 v72, |v59|, |v60|, v72")
    a.e("v_max3_f32 v72, |v61|, |v62|, v72")
    a.e("v_max_f32 v72, |v63|, v72")
    add64(a, 12, 12, 16384)
    a.e(f"v_cmp_lt_f32 vcc, {f32hex(RANGE)}, v72")
    a.e(f"buffer_store_dwordx4 {vr(64)}, v8, s[12:15], s24 offen sc1")
    a.e(f"buffer_store_dwordx4 {vr(68)}, v8, s[12:15], s24 offen offset:16 sc1")
    add64(a, 12, 12, 16384)
    a.e("s_or_b32 s26, vcc_lo, vcc_hi")
    a.e("s_lshl_b32 s24, s42, 2")
    a.e("v_mov_b32 v73, s26")
    a.e("v_mov_b32 v74, 0")
    a.e("buffer_store_dword v73, v74, s[12:15], s24 offen sc1")
    a.e("s_endpgm")


def joint_kernel(name):
    a = Asm()
    NWG = 250
    STAMP = "stamp" in EXP
    FP = 528
    EP = 144
    J_B, F_B = 0, 32768
    E_B = F_B + 32 * FP
    GE_B = E_B + 8 * 36 * EP
    C_B = GE_B + 8 * 1040
    LDS = C_B + 16
    SPIN = 'nospin' not in EXP
    sF, sW, sO, sG = 8, 12, 16, 40
    sWv, sV, sCnt = 20, 21, 22
    sSt = 64
    vL, vL16 = 127, 126
    NTO = os.environ.get("NTO", " nt")

    def stamp(i, fence=True):
        if STAMP:
            a.e(f"s_memtime s[{sSt+2*i}:{sSt+2*i+1}]")
            if fence:
                a.e("s_waitcnt lgkmcnt(0)")
                a.lg = []

    def rstamp(i):
        if STAMP:
            a.e(f"s_memrealtime s[{sSt+2*i}:{sSt+2*i+1}]")
            a.e("s_waitcnt lgkmcnt(0)")
            a.lg = []

    a.label(name)
    if "local" in EXP:
        a.e("s_cmp_ge_u32 s2, 256")
        a.e(f"s_cbranch_scc1 L_{name}_done")
        a.e("s_and_b32 s3, s2, 7")
        a.e("s_lshr_b32 s2, s2, 3")
        a.e("s_mul_i32 s4, s3, 125")
        a.e("s_add_u32 s5, s4, 128")
        a.e("s_add_u32 s4, s4, 3")
        a.e("s_lshr_b32 s4, s4, 2")
        a.e("s_lshr_b32 s5, s5, 2")
        a.e("s_add_u32 s2, s2, s4")
        a.e("s_cmp_ge_u32 s2, s5")
    else:
        a.e(f"s_cmp_ge_u32 s2, {NWG}")
    a.e(f"s_cbranch_scc1 L_{name}_done")
    if STAMP:
        for i in range(28):
            a.e(f"s_mov_b32 s{sSt+i}, 0")
        a.e(f"s_memrealtime s[{sSt+20}:{sSt+21}]")
    stamp(0, False)
    a.e("s_load_dwordx2 s[28:29], s[0:1], 56")
    a.e("s_load_dwordx2 s[30:31], s[0:1], 72")
    a.e(f"v_readfirstlane_b32 s{sWv}, v0")
    a.e(f"s_lshr_b32 s{sWv}, s{sWv}, 6")
    a.e(f"s_and_b32 s{sV}, s{sWv}, 7")
    a.e(f"v_and_b32 v{vL}, 63, v0")
    a.e(f"v_lshlrev_b32 v{vL16}, 4, v{vL}")
    a.e(f"s_cmp_ge_u32 s{sWv}, 8")
    a.e(f"s_mov_b32 s33, {WS_WO}")
    a.e(f"s_cselect_b32 s33, {WS_WF}, s33")
    a.e(f"s_lshl_b32 s36, s{sV}, 14")
    a.e("s_add_u32 s33, s33, s36")
    a.e(f"s_mov_b32 s{sW+2}, 16384")
    a.e(f"s_mov_b32 s{sW+3}, 0x00020000")
    a.e("s_lshl_b32 s35, s2, 9")
    a.e("s_cmp_ge_u32 s2, 125")
    a.e(f"s_cselect_b32 s36, {32*PLF - 125*512}, 0")
    a.e("s_cselect_b32 s34, 8192, 0")
    a.e("s_add_u32 s35, s35, s36")
    a.e(f"s_add_u32 s34, s34, {WS_GE}")
    a.e(f"s_mov_b32 s{sF+2}, {WS_FPS + 64*PLF}")
    a.e(f"s_mov_b32 s{sF+3}, 0x00020000")
    a.e(f"s_mov_b32 s{sG+2}, {16384 + 8192}")
    a.e(f"s_mov_b32 s{sG+3}, 0x00020000")
    W = 0

    def arrive_wait(mine, other, lbl, v):
        a.e(f"v_mov_b32 v{v}, {C_B}")
        a.e(f"v_mov_b32 v{v+1}, 1")
        a.e("s_mov_b64 exec, 1")
        a.e(f"ds_add_u32 v{v}, v{v+1} offset:{4*mine}")
        a.e("s_mov_b64 exec, -1")
        a.label(lbl)
        a.e(f"ds_read_b32 v{v+1}, v{v} offset:{4*other}")
        a.e("s_waitcnt lgkmcnt(0)")
        a.e(f"v_readfirstlane_b32 s37, v{v+1}")
        a.e("s_cmp_ge_u32 s37, 8")
        a.e(f"s_cbranch_scc1 {lbl}_d")
        a.e("s_sleep 1")
        a.e(f"s_branch {lbl}")
        a.label(f"{lbl}_d")

    def wload(ks):
        if ks % 2 == 0:
            a.e(f"s_mov_b32 s36, {ks*2048}")
        for jn in range(2):
            i = ks * 2 + jn
            a.vmem(f"buffer_load_dwordx4 {vr(W+4*i)}, v{vL16}, {sr(sW)}, s36 offen offset:{(i%4)*1024}", ("W", ks))

    a.e(f"s_cmp_ge_u32 s{sWv}, 8")
    a.e(f"s_cbranch_scc1 L_{name}_T")

    X = 64
    a.e(f"v_lshrrev_b32 v124, 5, v{vL}")
    a.e(f"v_and_b32 v123, 0x1ff, v{vL16}")
    a.e(f"v_mul_u32_u24 v125, {PLF}, v124")
    a.e("v_add_u32 v123, v125, v123")
    a.e(f"s_mul_i32 s36, s{sV}, {4*PLF}")
    a.e("s_add_u32 s36, s36, s35")
    a.e("s_waitcnt lgkmcnt(0)")
    add64(a, sF, 30, WS_FP)
    for r2 in range(2):
        a.e(f"s_add_u32 s37, s36, {WS_FPS}")
        a.vmem(f"buffer_load_dwordx4 {vr(X+4*r2)}, v123, {sr(sF)}, s36 offen", ("F", r2))
        a.vmem(f"buffer_load_dwordx4 {vr(X+8+4*r2)}, v123, {sr(sF)}, s37 offen", ("F", r2))
        if r2 == 0:
            a.e(f"s_add_u32 s36, s36, {2*PLF}")
    a.e(f"v_mov_b32 v0, {C_B}")
    a.e("v_mov_b32 v2, 0")
    a.e("v_mov_b32 v3, 0")
    a.e("ds_write_b64 v0, v[2:3]")
    add64(a, sW, 30, "s33")
    add64(a, sG, 30, "s34")
    a.e(f"s_lshl_b32 s38, s{sV}, 10")
    a.e("s_add_u32 s38, s38, 16384")
    a.vmem(f"buffer_load_dwordx4 {vr(X+16)}, v{vL16}, {sr(sG)}, s38 offen", "G")
    a.e("s_waitcnt lgkmcnt(0)")
    stamp(1)
    a.e("s_barrier")
    stamp(5)
    a.e("s_lshl_b32 s35, s2, 17")
    add64(a, sO, 28, "s35")
    a.e(f"s_mov_b32 s{sO+2}, 131072")
    a.e(f"s_mov_b32 s{sO+3}, 0x00020000")
    k0 = -2.0 * 1.4426950408889634 * 0.7978845608028654
    a.e(f"s_mov_b32 s46, {f32hex(k0 * 0.044715)}")
    a.e("s_mov_b32 s47, s46")
    a.e(f"v_mov_b32 v120, {f32hex(k0)}")
    a.e("v_mov_b32 v121, v120")
    a.e("s_mov_b32 s48, 1.0")
    a.e("s_mov_b32 s49, 1.0")
    a.e(f"v_bfe_u32 v123, v{vL}, 2, 3")
    a.e("v_lshl_add_u32 v124, v123, 2, v124")
    a.e(f"v_mul_u32_u24 v124, {FP}, v124")
    a.e(f"v_and_b32 v123, 0x30, v{vL16}")
    a.e(f"s_lshl_b32 s36, s{sV}, 6")
    a.e("v_add3_u32 v124, v124, v123, s36")
    a.e("s_mov_b32 s45, 0xffff0000")
    a.e(f"s_mul_i32 s36, s{sV}, 1040")
    a.e(f"s_add_u32 s36, s36, {GE_B}")
    a.e(f"v_add_u32 v123, s36, v{vL16}")
    a.e(f"s_mov_b32 s{sCnt}, 2")
    a.e("s_waitcnt vmcnt(3)")
    stamp(6)
    a.label(f"L_{name}_floop")

    def p2(x):
        return vr(x, 2)
    ys = [88 + i for i in range(8)]
    ts = [96 + i for i in range(8)]
    ev = list(zip(ys[::2], ts[::2]))
    for i in range(4):
        a.e(f"v_lshlrev_b32 v{ys[2*i]}, 16, v{X+i}")
        a.e(f"v_and_b32 v{ys[2*i+1]}, s45, v{X+i}")
        a.e(f"v_lshlrev_b32 v{ts[2*i]}, 16, v{X+8+i}")
        a.e(f"v_and_b32 v{ts[2*i+1]}, s45, v{X+8+i}")
    for y, t in ev:
        a.e(f"v_pk_add_f32 {p2(y)}, {p2(y)}, {p2(t)}")
    for y, t in ev:
        a.e(f"v_pk_mul_f32 {p2(t)}, {p2(y)}, {p2(y)}")
    for y, t in ev:
        a.e(f"v_pk_fma_f32 {p2(t)}, {p2(t)}, s[46:47], v[120:121]")
    for y, t in ev:
        a.e(f"v_pk_mul_f32 {p2(t)}, {p2(t)}, {p2(y)}")
    for t in ts:
        a.e(f"v_exp_f32 v{t}, v{t}")
    for y, t in ev:
        a.e(f"v_pk_add_f32 {p2(t)}, {p2(t)}, s[48:49]")
    for t in ts:
        a.e(f"v_rcp_f32 v{t}, v{t}")
    for y, t in ev:
        a.e(f"v_pk_mul_f32 {p2(y)}, {p2(y)}, {p2(t)}")
    for i in range(4):
        a.e(f"v_cvt_pk_bf16_f32 v{104+i}, v{ys[2*i]}, v{ys[2*i+1]}")
    a.e(f"ds_write_b128 v124, {vr(104)} offset:{F_B}")
    a.e("s_waitcnt vmcnt(0)")
    a.vm = []
    for i in range(0, 4, 2):
        for b in (X, X + 8):
            a.e(f"v_pk_mov_b32 {vr(b+i,2)}, {vr(b+4+i,2)}, {vr(b+4+i,2)} op_sel:[0,1]")
    a.e(f"v_add_u32 v124, {2*FP}, v124")
    a.e(f"s_sub_u32 s{sCnt}, s{sCnt}, 1")
    a.e(f"s_cmp_lg_u32 s{sCnt}, 0")
    a.e(f"s_cbranch_scc1 L_{name}_floop")
    a.e(f"ds_write_b128 v123, {vr(X+16)}")
    a.e("s_waitcnt lgkmcnt(0)")
    stamp(2)
    if SPIN:
        arrive_wait(0, 1, f"L_{name}_ow", 120)
    else:
        a.e("s_barrier")
    stamp(3)
    for ks in range(8):
        wload(ks)
    ACC = (64, 80)
    JR = 96
    PKR = 112
    vO = 125
    a.e(f"v_lshrrev_b32 v{vO}, 4, v{vL}")
    a.e(f"v_lshlrev_b32 v{vO}, 11, v{vO}")
    a.e(f"v_and_b32 v124, 15, v{vL}")
    a.e(f"v_lshl_add_u32 v{vO}, v124, 2, v{vO}")
    a.e(f"s_lshl_b32 s36, s{sV}, 6")
    a.e(f"v_add_u32 v{vO}, s36, v{vO}")
    SROT = os.environ.get("SROT", "")
    if SROT:
        a.e(f"s_bfe_u32 s23, s2, {0x30000 | int(SROT)}")
        a.e("s_lshl_b32 s23, s23, 14")
        a.e(f"v_add_u32 v{vO}, s23, v{vO}")
    a.e("s_mov_b32 s44, 8192")
    a.e(f"s_setprio {os.environ.get('PO', '1')}")

    def out_ops(par):
        ops = []
        ac = ACC[par]
        for rt in range(2):
            for r in range(4):
                ops.append(f"v_cvt_pk_bf16_f32 v{PKR+rt*4+r}, v{ac+rt*8+r}, v{ac+rt*8+4+r}")
                ops.append(f"buffer_store_dword v{PKR+rt*4+r}, v{vO}, {sr(sO)}, {'s44' if rt else '0'} offen offset:{r*512}{NTO}")
        ops.append(f"v_add_u32 v{vO}, 16384, v{vO}")
        if SROT:
            ops.append(f"v_and_b32 v{vO}, 0x1ffff, v{vO}")
        return ops

    PD = 4

    def jread(par, n):
        a.lds(f"ds_read_b128 {vr(JR+4*(n%4))}, v{vL16} offset:{J_B + par*16384 + n*1024}", ("J", par, n))

    def ustep(par, side):
        for n in range(16):
            ks, rt = n >> 1, n & 1
            a.wait(lg=(("J", par, n),), vm=(("W", ks),))
            for jn in range(2):
                ac = ACC[par] + rt * 8 + 4 * jn
                c = "0" if ks == 0 else vr(ac)
                a.e(f"v_mfma_f32_16x16x32_bf16 {vr(ac)}, {vr(JR+4*(n%4))}, {vr(W+(ks*2+jn)*4)}, {c}")
                if n >= 3 and side:
                    a.e(side.pop(0))
            if n + PD == 16:
                a.wait(lg_all=True)
                a.e("s_barrier")
            if n + PD < 16:
                jread(par, n + PD)
            else:
                jread(1 - par, n + PD - 16)
        assert not side

    stamp(4)
    a.e("s_barrier")
    for n in range(PD):
        jread(0, n)
    ustep(0, [])
    lg0 = list(a.lg)
    stamp(7)
    rstamp(12)
    a.lg = list(lg0)
    a.e(f"s_mov_b32 s{sCnt}, 4")
    a.label(f"L_{name}_oloop")
    ustep(1, out_ops(0))
    a.e(f"s_sub_u32 s{sCnt}, s{sCnt}, 1")
    a.e(f"s_cmp_eq_u32 s{sCnt}, 0")
    a.e(f"s_cbranch_scc1 L_{name}_oend")
    ustep(0, out_ops(1))
    assert a.lg == lg0
    a.e("s_waitcnt vmcnt(32)")
    a.e(f"s_branch L_{name}_oloop")
    a.label(f"L_{name}_oend")
    stamp(8, False)
    rstamp(13)
    a.e("s_nop 7")
    for op in out_ops(1):
        a.e(op)
    a.e(f"s_branch L_{name}_fin")

    a.label(f"L_{name}_T")
    a.vm, a.lg = [], []
    a.e("s_setprio 3")
    a.e("s_waitcnt lgkmcnt(0)")
    add64(a, sW, 30, "s33")
    add64(a, sG, 30, "s34")
    JB = int(os.environ.get("JB", "0"))
    JB2 = int(os.environ.get("JB2", JB))
    for ks in range(JB):
        wload(ks)
    if "wwarm" in EXP:
        add64(a, sF, 30, WS_WF)
        a.e(f"s_mov_b32 s{sF+2}, 262144")
        a.e("s_lshr_b32 s36, s2, 3")
        a.e("s_lshl_b32 s36, s36, 3")
        a.e(f"s_add_u32 s36, s36, s{sV}")
        a.e("s_lshl_b32 s36, s36, 10")
        a.vmem(f"buffer_load_dwordx4 {vr(80)}, v{vL16}, {sr(sF)}, s36 offen", "P")
    a.e(f"s_lshl_b32 s36, s{sV}, 2")
    a.e(f"s_add_u32 s36, s36, {WS_GE + 32768}")
    add64(a, 36, 30, "s36")
    a.e("s_load_dword s44, s[36:37], 0")
    FE = 64
    FR = 80
    GB = 112
    vF, vG, vJ, vEW, vER, vGL = 125, 124, 123, 122, 121, 120
    a.e(f"v_and_b32 v{vJ}, 15, v{vL}")
    a.e(f"v_lshrrev_b32 v{vER}, 4, v{vL}")
    a.e(f"v_mul_u32_u24 v{vF}, {FP}, v{vJ}")
    a.e(f"v_lshl_add_u32 v{vF}, v{vER}, 4, v{vF}")
    a.e(f"v_lshlrev_b32 v{vER}, 5, v{vER}")
    a.e(f"v_and_b32 v{vGL}, 7, v{vL}")
    a.e(f"v_lshl_add_u32 v{vG}, v{vGL}, 10, v{vER}")
    a.e(f"s_lshl_b32 s38, s{sV}, 7")
    a.e(f"v_mul_u32_u24 v{vGL}, 1040, v{vGL}")
    a.e(f"s_add_u32 s36, s38, {GE_B}")
    a.e(f"v_add3_u32 v{vGL}, v{vGL}, v{vER}, s36")
    a.e(f"s_mul_i32 s36, s{sV}, {36*EP}")
    a.e(f"s_add_u32 s36, s36, {E_B}")
    a.e(f"v_add_u32 v{vER}, s36, v{vER}")
    a.e(f"v_mul_u32_u24 v{vEW}, {EP}, v{vJ}")
    a.e(f"v_add_u32 v{vEW}, v{vEW}, v{vER}")
    a.e(f"v_lshrrev_b32 v{vJ}, 3, v{vJ}")
    a.e(f"v_mul_u32_u24 v{vJ}, {EP}, v{vJ}")
    a.e(f"v_add_u32 v{vER}, v{vJ}, v{vER}")
    a.e(f"s_lshl_b32 s36, s{sV}, 11")
    a.e(f"v_add_u32 v{vJ}, s36, v{vL16}")
    NPRE = int(os.environ.get("NPRE", "8"))
    for ks in range(JB, NPRE + 1):
        if ks == JB2:
            a.e("s_barrier")
        if ks < NPRE:
            wload(ks)
    stamp(2)
    if SPIN:
        arrive_wait(1, 0, f"L_{name}_tw", FE)
    else:
        a.e("s_waitcnt lgkmcnt(0)")
        a.e("s_barrier")
    stamp(3)

    def fread(n):
        tt, ks = n & 1, n >> 1
        a.lds(f"ds_read_b128 {vr(FR+4*(n%8))}, v{vF} offset:{F_B + tt*16*FP + ks*64}", ("A", n))

    for n in range(8):
        fread(n)
    for ks in range(NPRE, 8):
        wload(ks)
    if NPRE < 8:
        a.e("s_barrier")
    a.e(f"s_setprio {os.environ.get('PT', '0')}")
    for n in range(16):
        tt, ks = n & 1, n >> 1
        a.wait(lg=(("A", n),), vm=(("W", ks),))
        for jn in range(2):
            ac = FE + tt * 8 + jn * 4
            c = "0" if ks == 0 else vr(ac)
            a.e(f"v_mfma_f32_16x16x32_bf16 {vr(ac)}, {vr(W+(ks*2+jn)*4)}, {vr(FR+4*(n%8))}, {c}")
        if n + 8 < 16:
            fread(n + 8)
        elif n < 10:
            a.lds(f"ds_read_b128 {vr(GB+4*(n-8))}, v{vGL} offset:{(n-8)*16}", "GE")
    a.e("s_mov_b32 s46, 0xffff0000")
    a.e(f"s_mov_b32 s48, {f32hex(C2)}")
    a.e("s_mov_b32 s49, s48")
    a.e("s_nop 3")
    stamp(4)
    FS, EX, EA, XS, PK = 80, 96, 32, 48, 64
    a.e("v_mov_b32 v28, 0")
    a.wait(lg_all=True)
    for tt in range(2):
        for r in range(4):
            a.e(f"v_cvt_pk_bf16_f32 v{24+r}, v{FE+tt*8+r}, v{FE+tt*8+4+r}")
        for r in range(4):
            a.e(f"v_lshlrev_b32 v{FS+tt*8+2*r}, 16, v{24+r}")
            a.e(f"v_and_b32 v{FS+tt*8+2*r+1}, s46, v{24+r}")
        for r in range(8 * tt, 8 * tt + 8, 2):
            a.e(f"v_pk_mul_f32 {vr(FS+r,2)}, {vr(FS+r,2)}, s[48:49]")
        for h in range(2):
            for r in range(8 * tt + 4 * h, 8 * tt + 4 * h + 4):
                a.e(f"v_exp_f32 v{EX+r}, v{FS+r}")
            for r in range(4 * tt + 2 * h, 4 * tt + 2 * h + 2):
                a.e(f"v_max3_f32 v28, |v{FS+2*r}|, |v{FS+2*r+1}|, v28")
            a.e(f"ds_write_b128 v{vEW}, {vr(EX+8*tt+4*h)} offset:{tt*16*EP + h*16}")
    if SROT:
        a.e(f"v_mov_b32 v{vF}, v{vER}")
        a.e(f"s_bfe_u32 s23, s2, {0x30000 | int(SROT)}")
        a.e(f"s_mul_i32 s24, s23, {4*EP}")
        a.e(f"v_add_u32 v{vER}, s24, v{vF}")
    a.e(f"v_cmp_lt_f32 vcc, {f32hex(RANGE)}, v28")
    a.e(f"s_mov_b32 s{sCnt}, 4")
    a.e("s_or_b32 s44, s44, vcc_lo")
    a.e("s_or_b32 s44, s44, vcc_hi")
    a.e("s_cmp_lg_u32 s44, 0")
    if "slow" in EXP:
        a.e(f"s_branch L_{name}_tslow")
    a.e(f"s_cbranch_scc1 L_{name}_tslow")

    def earead():
        for rt in range(2):
            for h in range(2):
                a.lds(f"ds_read_b128 {vr(EA+8*rt+4*h)}, v{vER} offset:{rt*2*EP + h*16}", ("G", rt))
        if SROT:
            a.e("s_add_u32 s23, s23, 1")
            a.e("s_and_b32 s23, s23, 7")
            a.e(f"s_mul_i32 s24, s23, {4*EP}")
            a.e(f"v_add_u32 v{vER}, s24, v{vF}")
        else:
            a.e(f"v_add_u32 v{vER}, {4*EP}, v{vER}")

    def tcomp(fast, early=None):
        a.wait(lg=(("G", 1),))
        for i in range(16):
            if fast:
                a.e(f"v_fma_f32 v{XS+i}, v{GB+(i&7)}, v{EA+i}, 1.0")
            else:
                a.e(f"v_add_f32 v{XS+i}, v{GB+(i&7)}, v{EA+i}")
        earead()
        for rt in range(2):
            xs = [XS + 8 * rt + i for i in range(8)]
            if not fast:
                for x in xs:
                    a.e(f"v_exp_f32 v{x}, v{x}")
                for x in xs:
                    a.e(f"v_add_f32 v{x}, 1.0, v{x}")
            for x in xs:
                a.e(f"v_rcp_f32 v{x}, v{x}")
            for x in xs:
                a.e(f"v_fma_f32 v{x}, v{x}, -2.0, 1.0")
            for i in range(4):
                a.e(f"v_cvt_pk_bf16_f32 v{PK+4*rt+i}, v{xs[2*i]}, v{xs[2*i+1]}")
            if early is not None:
                twrite(early, rt)

    def twrite(par, rt):
        a.lds(f"ds_write_b128 v{vJ}, {vr(PK+4*rt)} offset:{J_B + par*16384 + rt*1024}", "W")

    def tsync():
        a.wait(lg_all=True)
        a.e("s_barrier")

    TSH = os.environ.get("TSH", "0") == "1"
    for fast in (1, 0):
        a.lg = []
        if not fast:
            a.label(f"L_{name}_tslow")
            for h in range(2):
                a.e(f"buffer_load_dwordx4 {vr(GB+4*h)}, v{vG}, {sr(sG)}, s38 offen offset:{h*16}")
            for i in range(4):
                a.e(f"ds_write_b128 v{vEW}, {vr(FS+4*i)} offset:{(i>>1)*16*EP + (i&1)*16}")
        earead()
        a.e("s_waitcnt vmcnt(0) lgkmcnt(0)")
        a.vm, a.lg = [], []
        stamp(5)
        if TSH and fast:
            tcomp(fast, 0)
            tsync()
            tcomp(fast)
            a.wait(lg_all=True)
            a.e(f"s_mov_b32 s{sCnt}, 3")
            a.label(f"L_{name}_tloop{fast}")
            for par in (1, 0):
                twrite(par, 0)
                twrite(par, 1)
                tcomp(fast)
                tsync()
            a.e(f"s_sub_u32 s{sCnt}, s{sCnt}, 1")
            a.e(f"s_cmp_lg_u32 s{sCnt}, 0")
            a.e(f"s_cbranch_scc1 L_{name}_tloop{fast}")
            twrite(1, 0)
            twrite(1, 1)
            tsync()
        else:
            a.label(f"L_{name}_tloop{fast}")
            for par in (0, 1):
                tcomp(fast, par)
                tsync()
            a.e(f"s_sub_u32 s{sCnt}, s{sCnt}, 1")
            a.e(f"s_cmp_lg_u32 s{sCnt}, 0")
            a.e(f"s_cbranch_scc1 L_{name}_tloop{fast}")
        stamp(8)
        if fast:
            a.e(f"s_branch L_{name}_fin")
    a.label(f"L_{name}_fin")
    if STAMP:
        a.e("s_waitcnt vmcnt(0)")
        stamp(9, False)
        a.e(f"s_memrealtime s[{sSt+22}:{sSt+23}]")
        a.e(f"s_cmp_lg_u32 s{sWv}, {os.environ.get('SWJ', '0')}")
        a.e(f"s_cbranch_scc1 L_{name}_done")
        a.e("s_lshl_b32 s36, s2, 7")
        a.e(f"s_add_u32 s36, s36, {WS_STAMP + 2*0x10000}")
        add64(a, 40, 30, "s36")
        a.e("s_mov_b32 s42, 128")
        a.e("s_mov_b32 s43, 0x00020000")
        a.e("s_waitcnt lgkmcnt(0)")
        a.e("v_mov_b32 v8, 0")
        for i in range(28):
            a.e(f"v_mov_b32 v0, s{sSt+i}")
            a.e(f"buffer_store_dword v0, v8, s[40:43], 0 offen offset:{4*i}")
    a.label(f"L_{name}_done")
    a.e("s_endpgm")
    if not STAMP:
        a.L = ["    s_endpgm" if l == f"    s_branch L_{name}_fin" else l for l in a.L]
    return a.L, LDS, 128


def joint_kernels(ks):
    return ks + [("joint_kernel", 256 if "local" in EXP else 250, 1024) + joint_kernel("joint_kernel")]
```

```python
import os
import sys

from asmlib import Asm, vr, sr, kd, f32hex, align8
from gen13_joint import small_head, small_tail, joint_kernels

EXP = os.environ.get("EXP", "").split(",")

WS_W1P = 0x0000000
WS_W2P = 0x0900000
WS_H = 0x1200000
WS_FP = 0x1A00000
WS_FPS = 0x800000
WS_WF = 0x2A00000
WS_STAMP = 0x3000000

CHUNKB = 7 * 8192
FB = 1024
BB = 8 * FB
SEQB = 2 * BB
FB6 = 1088
BB6 = 8 * FB6
SPB = 6 * SEQB + 2 * BB6
TOPB = SPB + 6144
OOB = 0x7f000000
W2P = os.environ.get('W2', '1') == '0'
LOCAL = 'local' in EXP
PLH, PLF = int(os.environ.get('PLH', 131072)), int(os.environ.get('PLF', 65536))
NTW, NTH, NTF = ({"0": "", "1": " nt", "2": " sc1", "3": " sc0 sc1"}[c] for c in os.environ.get("NT", "222"))


def add64(a, d, lo, off):
    a.e(f"s_add_u32 s{d}, s{lo}, {off}")
    a.e(f"s_addc_u32 s{d+1}, s{lo+1}, 0")


def eval_ops(c, t):
    e1, o1, e2, o2 = t
    ops = [f"v_add_f32 v{e1}, v{c[0]}, v{c[2]}",
           f"v_add_f32 v{o1}, v{c[1]}, v{c[3]}",
           f"v_fma_f32 v{e2}, v{c[2]}, 4.0, v{c[0]}",
           f"v_fma_f32 v{o2}, v{c[3]}, 4.0, v{c[1]}",
           f"v_add_f32 v{c[1]}, v{e1}, v{o1}",
           f"v_sub_f32 v{c[2]}, v{e1}, v{o1}",
           f"v_fma_f32 v{c[3]}, v{o2}, 2.0, v{e2}",
           f"v_fma_f32 v{e2}, v{o2}, -2.0, v{e2}",
           f"v_fmamk_f32 v{e1}, v{c[0]}, {f32hex(15.0)}, v{e2}",
           f"v_fmamk_f32 v{e1}, v{o1}, {f32hex(10.0)}, v{e1}"]
    return ops, [c[1], c[2], c[3], e2, e1]


def wprep(a, karg, wsoff, ws_loaded, barrier=False, extra=None, small=None, mid=None):
    a.vm, a.lg = [], []
    a.e(f"s_load_dwordx2 s[8:9], s[0:1], {karg}")
    if not ws_loaded:
        a.e("s_load_dwordx2 s[30:31], s[0:1], 72")
    a.e("s_lshr_b32 s22, s20, 8")
    a.e("s_bfe_u32 s23, s20, 0x40004")
    a.e("s_bfe_u32 s24, s20, 0x30001")
    a.e("s_and_b32 s21, s20, 1")
    a.e("v_lshrrev_b32 v2, 4, v1")
    a.e("v_lshlrev_b32 v2, 12, v2")
    a.e("v_and_b32 v3, 15, v1")
    a.e("v_lshl_add_u32 v2, v3, 2, v2")
    a.e("s_lshl_b32 s26, s22, 3")
    a.e("s_lshr_b32 s27, s23, 3")
    a.e("s_add_u32 s26, s26, s27")
    a.e("s_lshl_b32 s26, s26, 17")
    a.e("s_and_b32 s27, s23, 7")
    a.e("s_lshl_b32 s27, s27, 14")
    a.e("s_add_u32 s26, s26, s27")
    a.e("s_lshl_b32 s27, s24, 6")
    a.e("s_add_u32 s26, s26, s27")
    a.e(f"s_mov_b32 s10, {31*131072}")
    a.e("s_mov_b32 s11, 0x00020000")
    if small:
        small_select(a)
        a.e("s_add_u32 s37, s26, s5")
        a.e("s_add_u32 s38, s37, s5")
        a.e("s_add_u32 s39, s38, s5")
    else:
        for p in range(1, 4):
            a.e(f"s_add_u32 s{36+p}, s26, {2*131072*p}")
    a.e("s_waitcnt lgkmcnt(0)")
    if small:
        small_ptr(a)
        small_g(a, "prep_kernel")
    R = 16
    for e2 in range(4):
        for p in range(4):
            for e in (2 * e2, 2 * e2 + 1):
                a.vmem(f"buffer_load_dword v{R+p*8+e}, v2, s[8:11], s{36+p if p else 26} offen offset:{e*512}", ("L", e2))
    if small:
        a.e("s_cmp_lt_u32 s3, 12")
        a.e(f"s_cbranch_scc1 {small}")
    if mid:
        mid()
    add64(a, 12, 30, wsoff)
    a.e(f"s_mov_b32 s14, {8*16*CHUNKB}")
    a.e("s_mov_b32 s15, 0x00020000")
    a.e("v_lshlrev_b32 v4, 4, v1")
    a.e("s_lshl_b32 s27, s24, 4")
    a.e("s_add_u32 s27, s27, s23")
    a.e(f"s_mul_i32 s27, s27, {CHUNKB}")
    a.e("s_lshl_b32 s28, s22, 11")
    a.e("s_add_u32 s27, s27, s28")
    a.e("s_lshl_b32 s28, s21, 10")
    a.e("s_add_u32 s27, s27, s28")
    a.e("s_cmp_eq_u32 s21, 0")
    a.e("s_mov_b32 s32, 0x07060302")
    a.e("s_cselect_b32 s32, 0x05040100, s32")
    a.e("s_mov_b32 s33, 0x03020c0c")
    a.e("s_cselect_b32 s33, 0x01000c0c, s33")
    a.e(f"s_mov_b32 s35, {f32hex(1.0/24)}")
    a.e(f"s_mov_b32 s36, {f32hex(1.0/72)}")
    if barrier:
        barrier()
    OUT = 48
    T = 76
    scale = ("0.5", "0.5", "s35", "s35", "s36")
    for e2 in range(4):
        a.wait(vm=(("L", e2),))
        if extra and e2 == int(os.environ.get("XT", "3")):
            extra()
        for p, seq in ((0, 6), (3, 0)):
            a.e(f"v_perm_b32 v{OUT+seq*4+e2}, v{R+p*8+2*e2+1}, v{R+p*8+2*e2}, s32")
        res, lists = [], []
        for e in range(2):
            cf = [T + e * 8 + i for i in range(4)]
            ops = [f"v_perm_b32 v{cf[i]}, v{cf[i]}, v{R + (3 - i) * 8 + 2 * e2 + e}, s33" for i in range(4)]
            o, rr = eval_ops(cf, [T + e * 8 + 4 + i for i in range(4)])
            ops += o + [f"v_mul_f32 v{r}, {sc}, v{r}" for r, sc in zip(rr, scale)]
            res.append(rr)
            lists.append(ops)
        for x, y in zip(*lists):
            a.e(x)
            a.e(y)
        for i in range(5):
            a.e(f"v_cvt_pk_bf16_f32 v{OUT+(1+i)*4+e2}, v{res[0][i]}, v{res[1][i]}")
    for seq in (6, 0, 1, 2, 3, 4, 5):
        a.e(f"s_add_u32 s28, s27, {seq*8192}")
        a.e(f"buffer_store_dwordx4 {vr(OUT+seq*4)}, v4, s[12:15], s28 offen{NTW}")


def wprep2(a, karg, wsoff, barrier, LB=True, extra=None, pre=None, mid=None):
    a.vm, a.lg = [], []
    if not pre:
        a.e(f"s_load_dwordx2 s[8:9], s[0:1], {karg}")
    a.e("s_lshr_b32 s22, s20, 8")
    a.e("s_bfe_u32 s23, s20, 0x40004")
    a.e("s_bfe_u32 s24, s20, 0x30001")
    a.e("s_and_b32 s21, s20, 1")
    a.e("v_lshrrev_b32 v5, 4, v1")
    a.e("v_lshlrev_b32 v2, 11, v5")
    a.e("v_and_b32 v3, 15, v1")
    a.e("v_lshl_add_u32 v2, v3, 2, v2")
    a.e("s_lshl_b32 s26, s22, 3")
    a.e("s_lshr_b32 s27, s23, 3")
    a.e("s_add_u32 s26, s26, s27")
    a.e("s_lshl_b32 s26, s26, 17")
    a.e("s_and_b32 s27, s23, 7")
    a.e("s_lshl_b32 s27, s27, 1")
    a.e("s_add_u32 s27, s27, s21")
    a.e("s_lshl_b32 s27, s27, 13")
    a.e("s_add_u32 s26, s26, s27")
    a.e("s_lshl_b32 s27, s24, 6")
    a.e("s_add_u32 s26, s26, s27")
    a.e(f"s_mov_b32 s10, {31*131072}")
    a.e("s_mov_b32 s11, 0x00020000")
    for p in range(1, 4):
        a.e(f"s_add_u32 s{36+p}, s26, {2*131072*p}")
    a.e(f"s_mov_b32 s14, {8*16*CHUNKB}")
    a.e("s_mov_b32 s15, 0x00020000")
    a.e("v_lshrrev_b32 v4, 1, v5")
    a.e("v_lshlrev_b32 v4, 8, v4")
    a.e("v_lshl_add_u32 v4, v3, 4, v4")
    a.e("v_and_b32 v5, 1, v5")
    a.e("v_lshl_add_u32 v4, v5, 10, v4")
    a.e("s_lshl_b32 s27, s24, 4")
    a.e("s_add_u32 s27, s27, s23")
    a.e(f"s_mul_i32 s27, s27, {CHUNKB}")
    a.e("s_lshl_b32 s28, s22, 11")
    a.e("s_add_u32 s27, s27, s28")
    a.e("s_lshl_b32 s28, s21, 9")
    a.e("s_add_u32 s27, s27, s28")
    a.e("s_mov_b32 s32, 0x05040100")
    a.e("s_mov_b32 s33, 0x07060302")
    a.e("s_mov_b32 s34, 0xffff0000")
    a.e(f"s_mov_b32 s35, {f32hex(1.0/24)}")
    a.e(f"s_mov_b32 s40, {f32hex(1.0/72)}")
    a.e("s_waitcnt lgkmcnt(0)")
    if W2P and karg == 8:
        a.e("s_cmp_eq_u32 s29, 1")
        a.e("s_cselect_b32 s8, s48, s8")
        a.e("s_cselect_b32 s9, s49, s9")
        a.e(f"s_mul_i32 s29, s29, {WS_W2P - WS_W1P}")
        wsoff = "s29"
    if LB:
        barrier()
    R, OUT, T = (pre, 16, 76) if pre else (16, 76, 104)
    for e2 in range(0 if pre else 2):
        for p in range(4):
            for e in (2 * e2, 2 * e2 + 1):
                a.vmem(f"buffer_load_dword v{R+p*4+e}, v2, s[8:11], s{36+p if p else 26} offen offset:{e*512}", ("L", e2))
    if mid:
        mid()
    if not LB:
        barrier()
    add64(a, 12, 30, wsoff)
    scale = ("0.5", "0.5", "s35", "s35", "s40")

    def out(seq, c):
        return OUT + (seq * 2 + c) * 2
    for e2 in range(2):
        a.wait(vm=(("L", e2),))
        if extra and e2 == 1:
            extra()
        for c in range(2):
            for p, seq in ((0, 6), (3, 0)):
                a.e(f"v_perm_b32 v{out(seq, c)+e2}, v{R+p*4+2*e2+1}, v{R+p*4+2*e2}, s{32+c}")
            res, lists = [], []
            for e in range(2):
                cf = [T + e * 8 + i for i in range(4)]
                src = [R + (3 - i) * 4 + 2 * e2 + e for i in range(4)]
                ops = [f"v_and_b32 v{d}, s34, v{x}" if c else f"v_lshlrev_b32 v{d}, 16, v{x}" for d, x in zip(cf, src)]
                o, rr = eval_ops(cf, [T + e * 8 + 4 + i for i in range(4)])
                ops += o + [f"v_mul_f32 v{r}, {sc}, v{r}" for r, sc in zip(rr, scale)]
                res.append(rr)
                lists.append(ops)
            for x, y in zip(*lists):
                a.e(x)
                a.e(y)
            for i in range(5):
                a.e(f"v_cvt_pk_bf16_f32 v{out(1+i, c)+e2}, v{res[0][i]}, v{res[1][i]}")
    for seq in (6, 0, 1, 2, 3, 4, 5):
        for d in range(2):
            a.e(f"v_permlane16_swap_b32 v{out(seq, 0)+d}, v{out(seq, 1)+d}")
        a.e(f"s_add_u32 s28, s27, {seq*8192}")
        a.e(f"buffer_store_dwordx4 {vr(out(seq, 0))}, v4, s[12:15], s28 offen{NTW}")


def prep_kernel(name):
    a = Asm()
    NWG = 256
    a.label(name)
    a.e(f"s_cmp_ge_u32 s2, {NWG}")
    a.e(f"s_cbranch_scc1 L_{name}_done")
    CW = os.environ.get("CW", "late")
    CWN = int(os.environ.get("CWN", "32"))

    def code_warm():
        a.e(f"s_cmp_lt_u32 s3, {256 - CWN}")
        a.e(f"s_cbranch_scc1 L_{name}_ncw")
        a.e("s_getpc_b64 s[62:63]")
        a.label(f"L_{name}_pc")
        a.e("s_and_b32 s64, s3, 8")
        a.e("s_lshl_b32 s64, s64, 12")
        a.e("v_lshlrev_b32 v120, 7, v0")
        a.e("v_add_u32 v120, s64, v120")
        a.e(f"v_min_u32 v120, 0x7fc0de00, v120")
        a.e("v_mov_b32 v121, s63")
        a.e("v_add_co_u32 v120, vcc, s62, v120")
        a.e("s_nop 1")
        a.e("v_addc_co_u32 v121, vcc, 0, v121, vcc")
        a.e("global_load_dword v122, v[120:121], off")
        a.label(f"L_{name}_ncw")
        return 0

    def x_warm():
        XW = int(os.environ.get("XW", "0"))
        if XW:
            a.e("s_and_b32 s64, s3, 7")
            a.e("s_lshr_b32 s65, s2, 3")
            a.e("s_lshr_b32 s66, s65, 3")
            a.e("s_lshl_b32 s64, s64, 2")
            a.e("s_add_u32 s64, s64, s66")
            a.e("s_mul_i32 s64, s64, 512000")
            a.e("s_and_b32 s65, s65, 7")
            a.e("s_lshl_b32 s65, s65, 2")
            a.e("s_and_b32 s66, s20, 3")
            a.e("s_add_u32 s65, s65, s66")
            a.e("s_lshl_b32 s65, s65, 14")
            a.e("s_add_u32 s64, s64, s65")
            a.e("s_sub_u32 s64, s64, 7680")
            a.e("v_lshrrev_b32 v120, 2, v1")
            a.e("v_lshlrev_b32 v120, 10, v120")
            a.e(f"v_and_b32 v121, {XW - 1}, v1")
            a.e("v_lshl_add_u32 v120, v121, 7, v120")
            a.e("v_add_u32 v120, s64, v120")
            a.e("s_mov_b32 s68, s44")
            a.e("s_mov_b32 s69, s45")
            a.e(f"s_mov_b32 s70, {2*16000*512}")
            a.e("s_mov_b32 s71, 0x00020000")
            a.vmem("buffer_load_dword v123, v120, s[68:71], 0 offen", "XW")
    a.e("s_mov_b32 s3, s2")
    if CW == "early":
        code_warm()
    a.e("s_load_dwordx16 s[44:59], s[0:1], 0")
    a.e("s_load_dwordx2 s[30:31], s[0:1], 72")
    if "stamp" in EXP:
        a.e("s_memrealtime s[60:61]")
    a.e("v_readfirstlane_b32 s40, v0")
    a.e("s_lshr_b32 s40, s40, 6")
    a.e("v_and_b32 v1, 63, v0")
    if W2P:
        a.e("s_sub_u32 s40, s40, 2")
        a.e("s_lshr_b32 s29, s40, 2")
        a.e(f"s_cbranch_scc0 L_{name}_w")
        a.e("s_cmp_lt_u32 s40, 8")
        a.e(f"s_cbranch_scc1 L_{name}_w")
        a.e("s_add_u32 s40, s40, 6")
    else:
        a.e("s_cmp_lt_u32 s40, 4")
        a.e(f"s_cbranch_scc1 L_{name}_w")
    small_head(a, name)
    a.label(f"L_{name}_w")
    if W2P:
        a.e("s_and_b32 s40, s40, 3")
    a.e("s_lshl_b32 s21, s2, 2")
    a.e("s_add_u32 s20, s40, s21")
    wprep2(a, 8, WS_W1P, lambda: a.e("s_barrier"), False, code_warm if CW == "late" else None, mid=x_warm)
    if "stamp" in EXP:
        a.e("s_waitcnt vmcnt(0)")
        a.e("s_memrealtime s[62:63]")
        a.e("s_lshl_b32 s36, s2, 7")
        a.e(f"s_add_u32 s36, s36, {WS_STAMP + 3*0x10000}")
        add64(a, 40, 30, "s36")
        a.e("s_mov_b32 s42, 128")
        a.e("s_mov_b32 s43, 0x00020000")
        a.e("s_waitcnt lgkmcnt(0)")
        a.e("v_mov_b32 v8, 0")
        a.e("v_mov_b32 v0, 1")
        a.e("buffer_store_dword v0, v8, s[40:43], 0 offen")
        for i in range(4):
            a.e(f"v_mov_b32 v0, s{60+i}")
            a.e(f"buffer_store_dword v0, v8, s[40:43], 0 offen offset:{80+4*i}")
    a.label(f"L_{name}_done")
    a.e("s_endpgm")
    small_tail(a, name)
    a.L.insert(len(a.L) - 1, f"L_{name}_last:")
    return a.L, 4096, 128


def conv_kernel(name, cfg):
    TIN, TOUT = cfg["tin"], cfg["tout"]
    N = cfg["nchunk"]
    KSPLIT = cfg["ksplit"]
    NWG = 256
    STAMP = "stamp" in EXP
    sX, sW, sO = 8, 12, 16
    sWv, sT0, sCnt, sBo, sXo, sMask = 20, 21, 22, 23, 24, 25
    sBo2 = 26
    sK, sCb, sH = 28, 29, 32
    sSt = 60
    vL = 127
    vU, vS_, vI, vKG = 8, 9, 10, 11

    a = Asm()
    a.label(name)
    a.e(f"s_cmp_ge_u32 s2, {NWG}")
    a.e(f"s_cbranch_scc1 L_{name}_done")

    def stamp(i, fence=True):
        if STAMP:
            a.e(f"s_memtime s[{sSt+2*i}:{sSt+2*i+1}]")
            if fence:
                a.e("s_waitcnt lgkmcnt(0)")
                a.lg = []

    def rstamp(i):
        if STAMP:
            a.e(f"s_memrealtime s[{sSt+2*i}:{sSt+2*i+1}]")
            a.e("s_waitcnt lgkmcnt(0)")
            a.lg = []
    if STAMP:
        for i in range(28):
            a.e(f"s_mov_b32 s{sSt+i}, 0")
        a.e(f"s_memrealtime s[{sSt+20}:{sSt+21}]")
    stamp(0, False)
    a.e(f"s_load_dwordx2 s[4:5], s[0:1], {cfg['in_arg']}")
    a.e("s_load_dwordx2 s[30:31], s[0:1], 72")
    a.e(f"v_readfirstlane_b32 s{sWv}, v0")
    a.e(f"s_lshr_b32 s{sWv}, s{sWv}, 6")
    if os.environ.get("WX", "8") != "0":
        a.e(f"s_xor_b32 s{sWv}, s{sWv}, {os.environ.get('WX', '8')}")
    XL = int((os.environ.get("XL", "33") * 2)[int(KSPLIT)])
    a.e(f"s_and_b32 s36, s2, {(8 >> XL) - 1}")
    a.e(f"s_lshl_b32 s36, s36, {XL}")
    a.e(f"s_bfe_u32 s37, s2, {(XL << 16) | 3}")
    a.e(f"s_or_b32 s{sCb}, s36, s37")
    a.e(f"s_bfe_u32 s36, s2, {(XL << 16) | (3 - XL)}")
    a.e(f"s_lshl_b32 s36, s36, {5 - XL}")
    a.e(f"s_lshr_b32 s37, s2, {3 + XL}")
    a.e("s_or_b32 s36, s36, s37")
    if KSPLIT:
        if LOCAL:
            a.e("s_and_b32 s33, s36, 1")
            a.e("s_bfe_u32 s34, s36, 0x30001")
            a.e("s_lshr_b32 s35, s36, 4")
        else:
            a.e("s_lshr_b32 s33, s36, 4")
            a.e("s_and_b32 s34, s36, 7")
            a.e("s_bfe_u32 s35, s36, 0x10003")
    else:
        a.e("s_mov_b32 s33, 0")
        a.e("s_and_b32 s34, s36, 15")
        a.e("s_lshr_b32 s35, s36, 4")
    a.e(f"s_mul_i32 s{sT0}, s34, 500")
    a.e(f"s_and_b32 s{sH}, s{sWv}, 3")
    a.e(f"v_and_b32 v{vL}, 63, v0")
    a.e(f"v_lshrrev_b32 v5, 2, v{vL}")
    a.e(f"v_and_b32 v6, 3, v{vL}")
    a.e(f"s_and_b32 s42, s{sWv}, 7")
    if not KSPLIT:
        a.e("v_lshlrev_b32 v7, 15, v5")
        a.e("v_lshl_add_u32 v7, v6, 4, v7")
        a.e(f"s_lshl_b32 s41, s{sT0}, 10")
        a.e("s_sub_u32 s41, s41, 7680")
        a.e("s_lshl_b32 s37, s42, 12")
        a.e("s_add_u32 s37, s37, s41")
        a.e("v_add_u32 v7, s37, v7")
        a.e(f"s_mul_i32 s36, s35, {TIN*512}")
        a.e(f"s_mov_b32 s{sX+2}, {TIN*512}")
    else:
        a.e(f"s_lshr_b32 s41, s{sT0}, 2")
        a.e("s_sub_u32 s41, s41, 1")
        a.e("s_add_u32 s37, s41, s42")
        a.e("v_lshl_add_u32 v7, v5, 3, s37")
        a.e(f"s_mul_i32 s36, s35, {32*PLH}")
        a.e(f"s_add_u32 s36, s36, {cfg['in_off']}")
        a.e(f"s_mov_b32 s{sX+2}, {32*PLH}")

    def haddr(dst, vG, vlane, p, t):
        a.e(f"s_add_u32 s37, s33, {2*p - 7 & 0xffffffff}")
        a.e(f"v_lshl_add_u32 v{t}, v{vG}, 3, s37")
        a.e(f"v_cmp_gt_u32 vcc, {TIN}, v{t}")
        a.e(f"s_mul_i32 s37, s33, {PLH}")
        a.e(f"s_add_u32 s37, s37, {(2*p & 3)*PLH + (p >> 1)*64}")
        a.e(f"v_lshl_add_u32 v{dst}, v{vG}, 7, s37")
        a.e(f"v_add_u32 v{dst}, v{dst}, v{vlane}")
        a.e(f"v_mov_b32 v{t}, {OOB}")
        a.e(f"v_cndmask_b32 v{dst}, v{t}, v{dst}, vcc")
    a.e(f"s_mov_b32 s{sX+3}, 0x00020000")
    a.e(f"s_mov_b32 s{sMask}, 0xffff0000")
    a.e("s_mov_b32 s47, s36")

    def kwait():
        a.e("s_waitcnt lgkmcnt(0)")
        stamp(1)
        add64(a, sX, 4, "s47")
    OB = 512

    def wsrd():
        a.e(f"s_lshl_b32 s36, s{sCb}, 4")
        a.e("s_lshl_b32 s37, s33, 3")
        a.e("s_add_u32 s36, s36, s37")
        a.e(f"s_mul_i32 s36, s36, {CHUNKB}")
        a.e(f"s_add_u32 s36, s36, {cfg['w_off']}")
        add64(a, sW, 30, "s36")
        a.e(f"s_mov_b32 s{sW+2}, {N*CHUNKB}")
        a.e(f"s_mov_b32 s{sW+3}, 0x00020000")

    def lds_throttle(need=1):
        if len(a.lg) + need > 15:
            a.e("s_waitcnt lgkmcnt(8)")
            a.lg = a.lg[-8:]

    def mf(acc, b, av):
        if "nomfma" not in EXP:
            a.e(f"v_mfma_f32_16x16x32_bf16 {vr(acc)}, {vr(b)}, {vr(av)}, {vr(acc)}")

    def steady(gen, per, strict=True):
        st = []
        for it in range(3):
            st.append(len(a.L))
            for pos in range(per):
                gen(per * it + pos, pos)
        st.append(len(a.L))
        bodies = [a.L[st[i]:st[i + 1]] for i in range(3)]
        if strict:
            assert bodies[1] == bodies[2], "loop not steady"
            assert bodies[0] == bodies[1], "loop entry not steady"
        del a.L[st[0]:]
        return bodies[1]

    a.e(f"s_cmp_ge_u32 s{sWv}, 8")
    a.e(f"s_cbranch_scc1 L_{name}_helper")

    ACC = 0
    vF, vA8, vD, vB = (120, 121), 122, (123, 124), 125
    vP = (116, 117, 118)
    vBZ = 119
    S, T, O = 96, 108, 64
    if not KSPLIT:
        a.e(f"s_add_u32 s37, s41, {128*4096}")
        a.e(f"v_lshl_add_u32 v{T}, v{vL}, 4, s37")
        for p in range(1, 3):
            a.e(f"v_add_u32 v{T+p}, {p*1024}, v{T}")
    else:
        a.e("s_add_u32 s37, s41, 128")
        a.e("v_mov_b32 v16, s37")
        a.e(f"v_mul_u32_u24 v17, {4*PLH}, v5")
        a.e("v_lshl_add_u32 v17, v6, 4, v17")
        for p in range(3):
            haddr(T + p, 16, 17, p, 18)
    kwait()
    wsrd()
    PLO = PLF if KSPLIT else PLH
    a.e(f"s_mul_i32 s36, s35, {32*PLO}")
    a.e(f"s_add_u32 s36, s36, {cfg['out_off']}")
    if KSPLIT:
        a.e(f"s_mul_i32 s37, s33, {WS_FPS}")
        a.e("s_add_u32 s36, s36, s37")
    add64(a, sO, 30, "s36")
    a.e(f"s_mov_b32 s{sO+2}, {32*PLO}")
    a.e(f"s_mov_b32 s{sO+3}, 0x00020000")
    a.e(f"v_and_b32 v{vI}, 15, v{vL}")
    a.e(f"v_lshrrev_b32 v{vKG}, 4, v{vL}")
    t = 16
    for d, sh in ((vU, 0), (vS_, 1)):
        a.e(f"v_add_u32 v{d}, {sh}, v{vI}")
        a.e(f"v_and_b32 v{t}, 4, v{d}")
        a.e(f"v_lshrrev_b32 v{t}, 1, v{t}")
        a.e(f"v_xor_b32 v{t}, v{vKG}, v{t}")
        a.e(f"v_lshlrev_b32 v{t}, 4, v{t}")
        a.e(f"v_lshl_add_u32 v{d}, v{d}, 6, v{t}")
    a.e(f"s_lshr_b32 s38, s{sH}, 1")
    a.e(f"s_and_b32 s39, s{sH}, 1")
    a.e("s_add_u32 s40, s38, 4")
    a.e("s_lshl_b32 s43, s39, 10")
    a.e(f"s_cmp_lt_u32 s{sWv}, 4")
    a.e(f"s_cselect_b32 s40, s{sWv}, s40")
    a.e("s_cselect_b32 s36, 0, s43")
    a.e("s_lshl_b32 s37, s40, 13")
    a.e("s_add_u32 s37, s37, s36")
    a.e(f"v_lshl_add_u32 v{vB}, v{vL}, 4, s37")
    a.e(f"s_mul_i32 s37, s40, {SEQB}")
    a.e(f"v_add_u32 v{vF[0]}, s37, v{vU}")
    a.e(f"v_add_u32 v{vF[1]}, s37, v{vS_}")
    a.e("s_lshl_b32 s37, s40, 10")
    a.e(f"s_add_u32 s37, s37, {SPB}")
    a.e(f"v_lshl_add_u32 v{t}, v{vKG}, 4, s37")
    a.e(f"v_cmp_eq_u32 vcc, 15, v{vI}")
    a.e(f"v_mov_b32 v{t+1}, {BB}")
    a.e(f"v_mov_b32 v{t+2}, {-BB & 0xffffffff}")
    a.e(f"v_mov_b32 v{t+3}, 64")
    a.e(f"v_cndmask_b32 v{vA8}, v{vF[1]}, v{t}, vcc")
    a.e(f"v_cndmask_b32 v{vD[0]}, v{t+1}, v{t+3}, vcc")
    a.e(f"v_cndmask_b32 v{vD[1]}, v{t+2}, v{t+3}, vcc")
    a.e(f"v_lshl_add_u32 v126, v{vL}, 4, s37")
    tabs = {44: (1.0, 1.0, 1.0, 1.0, 1.0, 16.0), 45: (0.0, 1.0, -1.0, 2.0, -2.0, 8.0),
            46: (0.0, 1.0, 1.0, 4.0, 4.0, 4.0)}
    for sg, tab in tabs.items():
        a.e(f"s_mov_b32 s{sg}, {f32hex(tab[0])}")
    for q in range(1, 6):
        a.e(f"s_cmp_eq_u32 s40, {q}")
        for sg, tab in tabs.items():
            if tab[q] != tab[0]:
                a.e(f"s_cselect_b32 s{sg}, {f32hex(tab[q])}, s{sg}")

    def special_rows():
        a.wait(vm=("SP",))
        for d in range(4):
            for p in range(3):
                a.e(f"v_lshlrev_b32 v{T+p}, 16, v{S+4*p+d}")
                a.e(f"v_and_b32 v{T+3+p}, s{sMask}, v{S+4*p+d}")
            for h in range(2):
                a.e(f"v_mul_f32 v{T+6+h}, s44, v{T+3*h}")
            for h in range(2):
                a.e(f"v_fmac_f32 v{T+6+h}, s45, v{T+3*h+1}")
            for h in range(2):
                a.e(f"v_fmac_f32 v{T+6+h}, s46, v{T+3*h+2}")
            a.e(f"v_cvt_pk_bf16_f32 v{S+d}, v{T+6}, v{T+7}")
        a.e(f"ds_write_b128 v126, {vr(S)}")

    def own_read(k, g, reg, tag, last=False):
        if g == 8:
            base, off = vA8, 0
        else:
            base, off = vF[g >> 3], (k & 1) * BB + (g & 7) * FB
        a.lds(f"ds_read_b128 {vr(reg)}, v{base} offset:{off}", tag)
        if g == 8 and not last:
            a.e(f"v_add_u32 v{vA8}, v{vD[k & 1]}, v{vA8}")

    UNIT = [(s * SEQB, s * SEQB + BB) for s in range(4)] + [(4 * SEQB, TOPB), (5 * SEQB, TOPB + 8192),
            (6 * SEQB, TOPB + 16384), (TOPB + 24576, TOPB + 32768)]
    EA = 96
    ES = []
    R0 = (120, 121, 64)
    vO, vBW = 122, 127
    BND = SPB
    t0, t1, t2, t3 = 108, 109, 110, 111
    ES.append(f"v_and_b32 v{t0}, 15, v{vL}")
    ES.append(f"v_lshrrev_b32 v{t1}, 4, v{vL}")
    ES.append(f"v_lshrrev_b32 v{t2}, 3, v{t0}")
    ES.append(f"s_lshl_b32 s36, s{sWv}, 1")
    ES.append(f"v_add_u32 v{t2}, s36, v{t2}")
    ES.append(f"v_xor_b32 v{t3}, v{t2}, v{t0}")
    ES.append(f"v_and_b32 v{t3}, 7, v{t3}")
    ES.append(f"v_lshlrev_b32 v{t3}, 4, v{t3}")
    ES.append(f"v_lshl_add_u32 v{t3}, v{t2}, 7, v{t3}")
    ES.append(f"v_lshl_add_u32 v{R0[0]}, v{t1}, 11, v{t3}")
    ES.append(f"v_add_u32 v{R0[1]}, 65536, v{R0[0]}")
    ES.append(f"v_add_u32 v{R0[2]}, 131072, v{R0[0]}")
    ES.append(f"s_lshl_b32 s36, s{sWv}, 9")
    ES.append(f"s_add_u32 s36, s36, {BND}")
    ES.append(f"v_lshl_add_u32 v{vBW}, v{t1}, 7, s36")
    ES.append(f"s_lshl_b32 s36, s{sWv}, 4")
    ES.append(f"v_add_u32 v{t0}, s36, v{t0}")
    ES.append(f"v_lshlrev_b32 v{t2}, 6, v{t0}")
    ES.append(f"v_lshl_add_u32 v{t2}, v{t1}, 4, v{t2}")
    ES.append(f"s_mul_i32 s36, s{sCb}, {4*PLO}")
    ES.append(f"s_lshl_b32 s37, s{sT0}, 4")
    ES.append("s_add_u32 s36, s36, s37")
    ES.append(f"v_add_u32 v{t2}, s36, v{t2}")
    ES.append(f"v_mov_b32 v{t3}, {OOB}")
    ES.append(f"v_cmp_gt_u32 vcc, 125, v{t0}")
    k0 = -2.0 * 1.4426950408889634 * 0.7978845608028654
    consts = [-1.0 / 3, 0.25, -5.0, -32.0 / 9, -8.0 / 9, -2.0 / 9, -1.0 / 18, 17.0 / 9, -2.0 / 3, 0.4, -1.0 / 15, -0.2,
              k0 * 0.044715, 1.0]
    KS = [4, 6, 8, 10, 12, 14, 22, 24, 26, 32, 34, 38, 40, 42]
    for sg, cv in zip(KS, consts):
        ES.append(f"s_mov_b32 s{sg}, {f32hex(cv)}")
        ES.append(f"s_mov_b32 s{sg+1}, s{sg}")

    def ex_addr(sbase):
        a.e(f"v_and_b32 v{EA}, 15, v{vL}")
        a.e(f"v_and_b32 v{EA+1}, 7, v{vL}")
        a.e(f"v_lshlrev_b32 v{EA+1}, 4, v{EA+1}")
        a.e(f"v_lshl_add_u32 v{EA}, v{EA}, 7, v{EA+1}")
        a.e(f"v_lshrrev_b32 v{EA+1}, 4, v{vL}")
        a.e(f"v_lshl_add_u32 v{EA}, v{EA+1}, 11, v{EA}")
        a.e(f"v_add_u32 v{EA}, s{sbase}, v{EA}")
        for f in range(1, 8):
            a.e(f"v_xor_b32 v{EA+f}, {f << 4}, v{EA}")

    def mwave(role):
        if role == 1:
            BR, AR, NR = 64, 96, 6
            steps = [("X", g) for g in range(11)]
        else:
            BR, AR, NR = 64, 88, 7
            steps = []
            for g in range(11):
                steps.append(("Y", g))
                if 1 <= g <= 9:
                    steps.append(("Z", g - 1))
        NS = len(steps)

        def bload(k, kind, q):
            if "nob" in EXP and k > 0:
                return
            so = sBo2 if q >> 1 else sBo
            if kind == "X":
                for c in range(2):
                    a.vmem(f"buffer_load_dwordx4 {vr(BR+(q*2+c)*4)}, v{vB}, {sr(sW)}, s{so} offen "
                           f"offset:{(q&1)*2048 + c*1024}", ("B", k, kind, q))
            elif kind == "Y":
                a.vmem(f"buffer_load_dwordx4 {vr(BR+q*4)}, v{vB}, {sr(sW)}, s{so} offen offset:{(q&1)*2048}",
                       ("B", k, kind, q))
            else:
                a.vmem(f"buffer_load_dwordx4 {vr(BR+16+q*4)}, v{vBZ}, {sr(sW)}, s{sBo} offen offset:{q*2048}",
                       ("B", k, kind, q))

        def rd(k, n, last=False):
            kind, g = steps[n]
            reg = AR + 4 * (n % NR)
            if kind == "Z":
                base, off = (vP[0], g * FB6) if g < 6 else (vP[1], (g - 6) * FB6) if g < 8 else (vP[2], 0)
                a.lds(f"ds_read_b128 {vr(reg)}, v{base} offset:{(k & 1)*BB6 + off}", ("A", k, n))
            else:
                own_read(k, g, reg, ("A", k, n), last)

        for i in range(64):
            a.e(f"v_mov_b32 v{ACC+i}, 0")
        if "b0" in EXP:
            a.e("s_barrier")
        for p in range(3):
            a.vmem(f"buffer_load_dwordx4 {vr(S+4*p)}, v{T+p}, {sr(sX)}, 0 offen", "SP")
        a.e(f"s_mov_b32 s{sBo}, 0")
        a.e(f"s_mov_b32 s{sBo2}, 4096")
        for st in steps:
            if st and st[1] >= 7:
                bload(0, st[0], st[1] - 7)
        a.e(f"s_mov_b32 s{sBo}, {CHUNKB}")
        a.e(f"s_mov_b32 s{sBo2}, {CHUNKB + 4096}")
        SPL = os.environ.get("SPL", "0") == "1"
        if not SPL:
            special_rows()
        if role == 2:
            a.e(f"v_and_b32 v{T+3}, 15, v{vL}")
            a.e(f"v_lshlrev_b32 v{T+3}, 2, v{T+3}")
            a.e(f"v_add_u32 v{T+3}, {6*SEQB + 1024}, v{T+3}")
            a.e(f"ds_write_b32 v{T+3}, v{ACC}")
            a.e(f"ds_write_b32 v{T+3}, v{ACC} offset:{BB6}")
        a.e("s_waitcnt lgkmcnt(0)")
        a.e("s_barrier")
        if SPL:
            a.e("s_setprio 3")
            special_rows()
            a.e("s_waitcnt lgkmcnt(0)")
        stamp(7)
        rstamp(12)
        a.e(f"s_mov_b32 s{sCnt}, {N//2}")
        a.e(f"s_setprio {os.environ.get(f'PM{role}', '2')}")

        CO = int(os.environ.get(f"CO{role}", "0" if role == 1 else "5"))
        assert CO < NR
        FM = int("fmaj" in EXP)
        vE = (vD[0], vD[1])

        def period(k, _, last=False):
            if "mst" in EXP and _ == 0:
                stamp(2)
            if "bst" in EXP and _ == 1 and not last:
                a.e("s_memtime s[90:91]")
                a.e("s_waitcnt vmcnt(0) lgkmcnt(0)")
                a.e("s_memtime s[92:93]")
                a.e("s_waitcnt lgkmcnt(0)")
                a.e("s_sub_u32 s92, s92, s90")
                a.e(f"s_add_u32 s{sSt+4}, s{sSt+4}, s92")
                a.e(f"s_max_u32 s{sSt+6}, s{sSt+6}, s92")
                a.vm = []
            for n in range(NR):
                rd(k, n, last)
            pend = []
            fill = []

            def flush(n, cnt):
                while pend and pend[0][0] <= n and cnt > 0:
                    _, h, f = pend.pop(0)
                    t = vE[(h + f) & 1]
                    a.e(f"v_xor_b32 v{t}, {f << 4}, v{vX0[h]}")
                    lds_throttle()
                    a.lds(f"ds_write_b128 v{t}, {vr(ACC + h*32 + f*4)}", "E")
                    cnt -= 1
                    for _i in range(min(12, len(fill))):
                        a.e(fill.pop(0))

            for n, st in enumerate(steps):
                if CO and n == NS - CO and not last:
                    a.wait(lg_all=True)
                    if "mst" in EXP and _ == 0:
                        stamp(3)
                    a.e("s_barrier")
                    if "mst" in EXP and _ == 0:
                        stamp(4)
                kind, g = st
                nt = 2 if kind == "Z" else 4
                qs = [q for q in range(nt) if 0 <= g - q <= 7]
                if FM and kind == "X":
                    if g >= 3:
                        f = g - 3
                        for c in range(2):
                            for q in range(4):
                                a.wait(lg=(("A", k, f + q),), vm=(("B", k, kind, q),))
                                mf(ACC + 32 * c + f * 4, BR + q * 8 + 4 * c, AR + 4 * ((f + q) % NR))
                        if f + NR < NS:
                            rd(k, f + NR, last)
                        if g == 10 and not last:
                            for q in range(4):
                                bload(k + 1, kind, q)
                    qs = []
                else:
                    a.wait(lg=(("A", k, n),), vm=tuple(("B", k, kind, q) for q in qs))
                reg = AR + 4 * (n % NR)
                for q in qs:
                    f = g - q
                    if kind == "X":
                        mf(ACC + f * 4, BR + q * 8, reg)
                        mf(ACC + 32 + f * 4, BR + q * 8 + 4, reg)
                    elif kind == "Y":
                        mf(ACC + f * 4, BR + q * 4, reg)
                    else:
                        mf(ACC + 32 + f * 4, BR + 16 + q * 4, reg)
                if g >= 7 and not last and not (FM and kind == "X"):
                    bload(k + 1, kind, g - 7)
                if n + NR < NS and not (FM and kind == "X"):
                    rd(k, n + NR, last)
                if last:
                    flush(n, int(os.environ.get('FL', '2')))
                    f = g - (nt - 1)
                    if f >= 0:
                        if kind == "X":
                            pend.append((n + 1, 0, f))
                            pend.append((max(n + 1, NS - NR + 1 + 3 * FM), 1, f))
                            pend.sort()
                        else:
                            pend.append((n + 3, 0 if kind == "Y" else 1, f))
                    if kind == "X" and n == NS - NR + 3 * FM:
                        a.wait(lg=(("A", k, NS - 1),))
            if last:
                fill += ES
                for _i in range(8):
                    a.e(fill.pop(0))
                flush(1000, 1000)
                for op in fill:
                    a.e(op)
                return
            a.e(f"s_add_u32 s{sBo}, s{sBo}, {CHUNKB}")
            a.e(f"s_add_u32 s{sBo2}, s{sBo2}, {CHUNKB}")
            assert not a.lg
            if "mst" in EXP and _ == 0:
                stamp(5)
            if not CO:
                a.e("s_barrier")
            if "mst" in EXP and _ == 0:
                stamp(6)

        def period2(k, pos):
            if pos == 1:
                a.e(f"s_sub_u32 s{sCnt}, s{sCnt}, 1")
                a.e(f"s_cmp_eq_u32 s{sCnt}, 0")
                a.e(f"s_cbranch_scc1 L_{name}_mlast{role}")
                state[0] = (list(a.vm), k)
            period(k, pos)

        state = [None]
        body = steady(period2, 2, "nob" not in EXP)
        if "nob" in EXP:
            a.e("s_waitcnt vmcnt(0)")
        a.label(f"L_{name}_mloop{role}")
        a.L.extend(body)
        a.e(f"s_branch L_{name}_mloop{role}")
        a.label(f"L_{name}_mlast{role}")
        a.vm, a.lg = state[0][0], []
        vX0 = (vB, 126)
        a.e(f"v_and_b32 v{vX0[0]}, 15, v{vL}")
        a.e(f"v_and_b32 v{vX0[1]}, 7, v{vL}")
        a.e(f"v_lshlrev_b32 v{vX0[1]}, 4, v{vX0[1]}")
        a.e(f"v_lshl_add_u32 v{vX0[0]}, v{vX0[0]}, 7, v{vX0[1]}")
        a.e(f"v_lshrrev_b32 v{vX0[1]}, 4, v{vL}")
        a.e(f"v_lshl_add_u32 v{vX0[0]}, v{vX0[1]}, 11, v{vX0[0]}")
        if role == 1:
            a.e(f"s_lshl_b32 s36, s{sWv}, 14")
            a.e("s_add_u32 s37, s36, 8192")
        else:
            for sg, tab in ((36, [UNIT[4 + (h >> 1)][h & 1] for h in range(4)]),
                            (37, [UNIT[6 + (h >> 1)][h & 1] for h in range(4)])):
                a.e(f"s_mov_b32 s{sg}, {tab[0]}")
                for h in range(1, 4):
                    a.e(f"s_cmp_eq_u32 s{sH}, {h}")
                    a.e(f"s_cselect_b32 s{sg}, {tab[h]}, s{sg}")
        a.e(f"v_add_u32 v{vX0[1]}, s37, v{vX0[0]}")
        a.e(f"v_add_u32 v{vX0[0]}, s36, v{vX0[0]}")
        if os.environ.get(f"PL{role}"):
            a.e(f"s_setprio {os.environ.get(f'PL{role}')}")
        period(state[0][1], 1, True)
        stamp(8, False)
        rstamp(13)
        a.e("s_setprio 0")
        a.vm, a.lg = [], []

    a.e(f"s_cmp_ge_u32 s{sWv}, 4")
    a.e(f"s_cbranch_scc1 L_{name}_m2")
    vm0 = list(a.vm)
    mwave(1)
    a.e(f"s_branch L_{name}_epi")
    a.label(f"L_{name}_m2")
    a.vm, a.lg = list(vm0), []
    a.e(f"s_mul_i32 s37, s38, {2*FB6}")
    a.e(f"s_add_u32 s37, s37, {6*SEQB}")
    a.e(f"v_add_u32 v{vP[0]}, s37, v{vU}")
    a.e(f"v_add_u32 v{vP[2]}, s37, v{vS_}")
    a.e(f"v_add_u32 v{vP[1]}, {6*SEQB + 6*FB6}, v{vU}")
    a.e("s_cmp_eq_u32 s38, 0")
    a.e(f"s_cbranch_scc1 L_{name}_hh0")
    a.e(f"v_add_u32 v{vP[1]}, {6*SEQB}, v{vS_}")
    a.label(f"L_{name}_hh0")
    a.e("s_lshl_b32 s37, s38, 12")
    a.e("s_add_u32 s37, s37, s43")
    a.e(f"s_add_u32 s37, s37, {6*8192}")
    a.e(f"v_lshl_add_u32 v{vBZ}, v{vL}, 4, s37")
    mwave(2)
    a.e(f"s_branch L_{name}_epi")

    a.label(f"L_{name}_helper")
    a.vm, a.lg = [], []
    a.e("s_setprio 3")
    PB = (0, 32)
    XO = 64
    TMP = 76
    vX = 92
    vW = (96, 97, 98)

    def praw(b, half, p):
        return PB[b] + half * 16 + p * 4

    sXo2 = 27

    def xload(pair, p):
        if KSPLIT:
            half, q = p >> 1, p & 1
            for r in (q, q + 2):
                a.vmem(f"buffer_load_dwordx4 {vr(praw(pair & 1, half, r))}, v{vX+r}, {sr(sX)}, "
                       f"s{sXo2 if half else sXo} offen", ("X", pair))
            return
        for half in range(2):
            a.vmem(f"buffer_load_dwordx4 {vr(praw(pair & 1, half, p))}, v{vX+p}, {sr(sX)}, "
                   f"s{sXo} offen offset:{half*64}", ("X", pair))
        a.e(f"v_add_u32 v{vX+p}, 128, v{vX+p}")

    def uregs(chunk):
        return [praw((chunk >> 1) & 1, chunk & 1, p) for p in range(4)]

    def wr(chunk, i):
        if "nowr" in EXP:
            return
        u = uregs(chunk)
        reg, seq = [(XO, 3), (XO + 4, 4), (XO + 8, 5), (u[0], 0), (u[1], 1), (u[2], 2), (u[3], 6)][i]
        lds_throttle()
        if seq == 6:
            a.lds(f"ds_write_b128 v{vW[2]}, {vr(reg)} offset:{(chunk & 1)*BB6}", "W")
        else:
            a.lds(f"ds_write_b128 v{vW[seq >> 2]}, {vr(reg)} offset:{(seq & 3)*SEQB + (chunk & 1)*BB}", "W")

    def tr_ops(chunk):
        u = uregs(chunk)
        o = [u[1], u[2], XO, XO + 4, XO + 8]
        ops = []
        for d in range(4):
            lo = [TMP + p for p in range(4)]
            hi = [TMP + 8 + p for p in range(4)]
            for p in range(4):
                ops.append(f"v_lshlrev_b32 v{lo[p]}, 16, v{u[p]+d}")
                ops.append(f"v_and_b32 v{hi[p]}, s{sMask}, v{u[p]+d}")
            o1, r1 = eval_ops(lo, [TMP + 4 + i for i in range(4)])
            o2, r2 = eval_ops(hi, [TMP + 12 + i for i in range(4)])
            for x, y in zip(o1, o2):
                ops += [x, y]
            for i in range(5):
                ops.append(f"v_cvt_pk_bf16_f32 v{o[i]+d}, v{r1[i]}, v{r2[i]}")
        if "notr" in EXP:
            ops = ["s_nop 0"] * 8
        return ops

    if KSPLIT:
        a.e("v_lshlrev_b32 v8, 4, v6")
    for p in range(4):
        if KSPLIT:
            haddr(vX + p, 7, 8, p, 9)
        else:
            a.e(f"v_add_u32 v{vX+p}, {p*1024}, v7")
    a.e(f"v_and_b32 v{TMP}, 4, v5")
    a.e(f"v_lshrrev_b32 v{TMP}, 1, v{TMP}")
    a.e(f"v_xor_b32 v{TMP}, v6, v{TMP}")
    a.e(f"v_lshlrev_b32 v{TMP}, 4, v{TMP}")
    a.e(f"v_lshl_add_u32 v{TMP}, v5, 6, v{TMP}")
    a.e(f"s_mov_b32 s{sXo}, 0")
    a.e(f"s_mov_b32 s{sXo2}, {4*PLH}")
    kwait()
    stamp(2)
    P0 = os.environ.get("P0", "0")
    if P0 == "0" or KSPLIT:
        for p in range(4):
            xload(0, p)
            if p == 1 and P0 == "2":
                a.e("s_barrier")
    else:
        for half in range(2):
            for p in range(4):
                a.vmem(f"buffer_load_dwordx4 {vr(praw(0, half, p))}, v{vX+p}, {sr(sX)}, s{sXo} offen offset:{half*64}", ("X", 0))
            if half == 0 and P0 == "2":
                a.e("s_barrier")
        for p in range(4):
            a.e(f"v_add_u32 v{vX+p}, 128, v{vX+p}")
    if P0 != "2" and "b0" in EXP:
        a.e("s_barrier")
    a.e(f"s_mul_i32 s36, s42, {FB}")
    a.e(f"v_add_u32 v{vW[0]}, s36, v{TMP}")
    a.e(f"v_add_u32 v{vW[1]}, {4*SEQB}, v{vW[0]}")
    a.e(f"s_mul_i32 s36, s42, {FB6}")
    a.e(f"s_add_u32 s36, s36, {6*SEQB}")
    a.e(f"v_add_u32 v{vW[2]}, s36, v{TMP}")
    stamp(3)
    a.e(f"s_waitcnt vmcnt({0 if P0 == '0' else 4})")
    stamp(4)
    a.e(f"s_mov_b32 s{sK}, 0")
    a.e(f"s_mov_b32 s{sCnt}, {N//4}")
    a.e(f"s_cmp_ge_u32 s{sWv}, 12")
    a.e(f"s_cbranch_scc1 L_{name}_h2")

    def hwave(role):
        SH = 33 * int(os.environ.get(f"SH{role}", "0" if role == 1 else "4"))
        ahead = 2 if SH else 1
        a.vm, a.lg = [], []
        if role == 2 and not KSPLIT:
            a.e("s_load_dwordx2 s[48:49], s[0:1], 16")
        wr(0, 3)
        wr(0, 6)
        for op in tr_ops(0):
            a.e(op)
        for i in (0, 1, 2, 4, 5):
            wr(0, i)
        a.e("s_waitcnt vmcnt(0)")
        W2E = role == 2 and not KSPLIT and os.environ.get("W2", "1") == "3"
        NF = int(os.environ.get("NF", "2"))
        if KSPLIT:
            a.e(f"s_mov_b32 s{sXo}, {8*PLH}")
            a.e(f"s_mov_b32 s{sXo2}, {12*PLH}")
        X1 = os.environ.get("X1", "1")
        if X1 == "0":
            for p in range(4 if SH else NF):
                xload(1, p)
        stamp(5)
        a.wait(lg_all=True)
        stamp(6)
        a.e("s_barrier")
        stamp(7)
        rstamp(12)
        if X1 == "1":
            for p in range(4 if SH else NF):
                xload(1, p)
        PA, PB_ = os.environ.get(f'PH{role}', '11' if role == 1 else '00')
        a.e(f"s_setprio {PA}")
        for op in tr_ops(1)[:SH]:
            a.e(op)
        if role == 1 and os.environ.get("MW", ""):
            a.e(f"s_cmp_lt_u32 s2, {os.environ.get('TWN', '32')}")
            a.e("s_cselect_b32 s55, 1, 99")
            a.e("s_getpc_b64 s[36:37]")
            a.label(f"L_{name}_pc3")
            a.e(f"s_sub_u32 s36, s36, L_{name}_pc3-{name}")
            a.e("s_subb_u32 s37, s37, 0")
            a.e(f"s_lshl_b32 s38, s{sH}, 13")
            a.e(f"v_lshl_add_u32 v102, v{vL}, 7, s38")
            a.e(f"v_min_u32 v102, L_{name}_done-{name}, v102")
            a.e("v_mov_b32 v103, s37")
            a.e("v_add_co_u32 v102, vcc, s36, v102")
            a.e("s_nop 1")
            a.e("v_addc_co_u32 v103, vcc, 0, v103, vcc")
        if W2E:
            a.e("s_lshr_b32 s52, s2, 6")
            a.e("s_lshl_b32 s52, s52, 3")
            a.e("s_bfe_u32 s36, s2, 0x10005")
            a.e("s_add_u32 s52, s52, s36")
            a.e("s_lshl_b32 s52, s52, 17")
            a.e("s_bfe_u32 s36, s2, 0x30002")
            a.e("s_lshl_b32 s36, s36, 1")
            a.e(f"s_and_b32 s37, s{sH}, 1")
            a.e("s_add_u32 s36, s36, s37")
            a.e("s_lshl_b32 s36, s36, 13")
            a.e("s_add_u32 s52, s52, s36")
            a.e("s_and_b32 s36, s2, 3")
            a.e("s_lshl_b32 s36, s36, 1")
            a.e(f"s_lshr_b32 s37, s{sH}, 1")
            a.e("s_add_u32 s36, s36, s37")
            a.e("s_lshl_b32 s36, s36, 6")
            a.e("s_add_u32 s52, s52, s36")
            a.e(f"s_mov_b32 s50, {31*131072}")
            a.e("s_mov_b32 s51, 0x00020000")
            a.e(f"v_lshrrev_b32 v99, 4, v{vL}")
            a.e("v_lshlrev_b32 v99, 11, v99")
            a.e(f"v_and_b32 v100, 15, v{vL}")
            a.e("v_lshl_add_u32 v99, v100, 2, v99")

        def w2load(pos):
            a.e(f"s_cmp_lg_u32 s{sCnt}, {os.environ.get('W2I', '3')}")
            a.e(f"s_cbranch_scc1 L_{name}_w2s{pos}")
            for e in range(4):
                a.e(f"buffer_load_dword v{100+pos*4+e}, v99, s[48:51], s52 offen offset:{e*512}")
            a.e(f"s_add_u32 s52, s52, {2*131072}")
            a.label(f"L_{name}_w2s{pos}")
        VPF = int(os.environ.get("VPF", "0")) if role == 1 and not KSPLIT and XL == 3 else 0
        if VPF:
            a.e(f"s_lshl_b32 s36, s{sCb}, 6")
            a.e(f"s_lshl_b32 s37, s{sH}, 3")
            a.e("s_add_u32 s36, s36, s37")
            a.e("s_lshl_b32 s36, s36, 10")
            a.e("s_add_u32 s36, s36, s41")
            a.e(f"s_add_u32 s36, s36, {VPF*128}")
            a.e(f"v_and_b32 v100, 7, v{vL}")
            a.e("v_lshl_add_u32 v100, v100, 10, s36")

        def vpf(k):
            a.e(f"s_cmp_lt_u32 s{sK}, {N - 2*VPF}")
            a.e(f"s_cselect_b32 s36, 0, {OOB}")
            a.vmem(f"buffer_load_dword v99, v100, {sr(sX)}, s36 offen", "PF")
            a.e(f"v_add_u32 v100, {(128 - 32768) & 0xffffffff if k & 1 else 32768}, v100")
        XP = [float(x) for x in os.environ.get(f"XP{role}", "0,0,0,0" if SH else "0.3,0.7,0.1,0.5").split(",")]

        def period(k, pos, last=False):
            pair = (k >> 1) + 2 if SH else (k + 3) >> 1
            first = not (k & 1) if SH else (k & 1)
            if pos == 4 - ahead and not last:
                a.e(f"s_cmp_eq_u32 s{sCnt}, 1")
                a.e(f"s_cbranch_scc1 L_{name}_hlast{role}")
            if "hst" in EXP and pos == 1:
                stamp(2)
            V1 = tr_ops(k + 1)[SH:]
            V2 = [] if last else tr_ops(k + 2)[:SH]
            V = V1 + V2
            n = len(V)
            ev = {}

            def at(i, f):
                ev.setdefault(max(0, min(int(i), n)), []).append(f)

            def stores():
                if "hst" in EXP and pos == 1:
                    stamp(3)
                for i in range(7):
                    wr(k + 1, i)
                if "hst" in EXP and pos == 1:
                    stamp(4)
                if PA != PB_:
                    a.e(f"s_setprio {PB_}")
            if PA != PB_:
                a.e(f"s_setprio {PA}")
            if VPF and not last:
                at(float(os.environ.get("VPP", "1.0")) * n, lambda: vpf(k))
            at(len(V1), stores)
            if W2E and not last:
                at(len(V1) + 1, lambda: w2load(pos))
            if not last:
                if not KSPLIT:
                    a.e(f"s_cmp_lt_u32 s{sK}, {N - 2 - ahead}")
                    a.e(f"s_cselect_b32 s{sXo}, 0, {OOB}")
                elif first:
                    a.e(f"s_add_u32 s{sXo}, s{sXo}, {8*PLH}")
                    a.e(f"s_add_u32 s{sXo2}, s{sXo2}, {8*PLH}")
                at(len(V1) if SH else 0, lambda: a.wait(vm=(("X", (k + ahead) >> 1),)))
                if "nox" not in EXP:
                    for p in (range(NF) if first else range(NF, 4)):
                        w = len(V1) + XP[p] * SH if SH and first else XP[p] * n
                        at(w, lambda p=p: xload(pair, p))
            for i in range(n + 1):
                for f in ev.get(i, []):
                    f()
                if i < n:
                    a.e(V[i])
            MW = os.environ.get("MW", "")
            if role == 1 and MW and pos == int(MW) and not last:
                a.e(f"s_cmp_lg_u32 s{sCnt}, s55")
                a.e(f"s_cbranch_scc1 L_{name}_nmw")
                a.e("global_load_dword v101, v[102:103], off")
                a.label(f"L_{name}_nmw")
            if not last:
                a.e(f"s_add_u32 s{sK}, s{sK}, 1")
            if "hst" in EXP and pos == 1:
                stamp(5)
            a.e("s_waitcnt lgkmcnt(0)")
            a.lg = []
            a.e("s_barrier")
            if "hst" in EXP and pos == 1:
                stamp(6)

        body = steady(period, 4, "nox" not in EXP)
        a.label(f"L_{name}_hloop{role}")
        a.L.extend(body)
        a.e(f"s_sub_u32 s{sCnt}, s{sCnt}, 1")
        a.e(f"s_branch L_{name}_hloop{role}")
        a.label(f"L_{name}_hlast{role}")
        a.vm, a.lg = [], []

        def last_period():
            vm = a.vm
            a.vm, a.lg = [], []
            if SH:
                a.e(f"s_mov_b32 s{sMask}, 0xffff0000")
                period(2, 2, True)
            a.vm = vm
        if role == 1 or KSPLIT or W2P:
            last_period()
        else:
            assert SH
            W2L = os.environ.get("W2L", "0") == "1"
            if W2L:
                last_period()
            a.e("s_waitcnt vmcnt(0)")
            a.e(f"s_mov_b32 s58, s{sWv}")
            a.e(f"s_lshl_b32 s20, s2, 2")
            a.e(f"s_add_u32 s20, s20, s{sH}")
            a.e(f"v_mov_b32 v1, v{vL}")
            if W2E:
                wprep2(a, 16, WS_W2P, last_period, pre=100)
            elif os.environ.get("W2", "1") == "2":
                wprep2(a, 16, WS_W2P, last_period, LB=False)
            else:
                wprep(a, 16, WS_W2P, True, barrier=None if W2L else last_period)
            a.e(f"s_mov_b32 s{sWv}, s58")
        if role == 1 and KSPLIT and "notail" not in EXP:
            add64(a, sW, 30, WS_WF)
            a.e(f"s_mov_b32 s{sW+2}, {262144 + 32768}")
            a.e(f"s_mov_b32 s{sW+3}, 0x00020000")
            a.e("s_lshr_b32 s36, s2, 3")
            a.e("s_lshl_b32 s36, s36, 2")
            a.e(f"s_add_u32 s36, s36, s{sH}")
            a.e("s_mul_i32 s36, s36, 2304")
            a.e(f"v_lshlrev_b32 v1, 4, v{vL}")
            for i in range(3):
                a.e(f"buffer_load_dwordx4 v[4:7], v1, {sr(sW)}, s36 offen offset:{i*1024}")
        if role == 1 and "notw" not in EXP:
            a.e(f"s_cmp_ge_u32 s2, {os.environ.get('TWN', '32')}")
            a.e(f"s_cbranch_scc1 L_{name}_ntw")
            a.e("s_getpc_b64 s[36:37]")
            a.label(f"L_{name}_pc")
            a.e(f"s_lshl_b32 s38, s{sH}, 13")
            a.e(f"s_add_u32 s38, s38, L_{name}_epi-L_{name}_pc")
            a.e(f"v_lshl_add_u32 v2, v{vL}, 7, s38")
            a.e(f"v_min_u32 v2, {0x7fc0de01 + KSPLIT:#x}, v2")
            a.e("v_mov_b32 v3, s37")
            a.e("v_add_co_u32 v2, vcc, s36, v2")
            a.e("s_nop 1")
            a.e("v_addc_co_u32 v3, vcc, 0, v3, vcc")
            a.e("global_load_dword v4, v[2:3], off")
            a.label(f"L_{name}_ntw")
        stamp(8)
        rstamp(13)
        a.e(f"s_branch L_{name}_end")

    hwave(1)
    a.label(f"L_{name}_h2")
    hwave(2)

    a.label(f"L_{name}_epi")
    K = [sr(x, 2) for x in KS]
    a.e("s_waitcnt lgkmcnt(0)")
    a.e("s_barrier")
    if "est" in EXP:
        stamp(2)
    a.e(f"v_cndmask_b32 v{vO}, v{t3}, v{t2}, vcc")

    def P(c, s, r=0):
        return c * 32 + s * 4 + r
    Y = 64
    TB = 96
    ELS = (0, 1, 2)
    for c in range(2):
        for s_ in range(8):
            if c == 1 and s_ == 7:
                a.e("s_waitcnt lgkmcnt(7)")
            u = UNIT[s_][c]
            a.e(f"ds_read_b128 {vr(P(c, s_))}, v{R0[u >> 16]} offset:{u & 0xffff}")

    def p2(x):
        return vr(x, 2)

    def padd(d, x, y):
        return f"v_pk_add_f32 {p2(d)}, {p2(x)}, {p2(y)}"

    def psub(d, x, y):
        return f"v_pk_add_f32 {p2(d)}, {p2(x)}, {p2(y)} neg_lo:[0,1] neg_hi:[0,1]"

    def pfma(d, x, k, y, neg=False):
        return f"v_pk_fma_f32 {p2(d)}, {p2(x)}, {k}, {p2(y)}" + (" neg_lo:[0,0,1] neg_hi:[0,0,1]" if neg else "")

    def interp(c):
        seq = []
        for r in (0, 2):
            E0, A, B, C, D, Q, E6, E6b = (P(c, x, r) for x in range(8))
            y = [Y + ph * 8 + c * 4 + r for ph in range(4)]
            S1, G = E6, C
            seq.append([
                padd(y[3], E6, E6b),
                padd(S1, A, B),
                psub(A, A, B),
                padd(y[1], C, D),
                psub(G, C, D),
                pfma(y[1], S1, K[0], y[1]),
                pfma(Q, E0, K[3], Q),
                pfma(y[1], E0, K[1], y[1]),
                psub(S1, S1, E0),
                pfma(y[1], y[3], K[2], y[1]),
                psub(S1, S1, y[3]),
                pfma(Q, y[3], K[6], Q),
                psub(B, S1, y[1]),
                pfma(Q, y[1], K[5], Q),
                f"v_pk_mul_f32 {p2(y[2])}, {p2(G)}, {K[9]}",
                pfma(Q, B, K[4], Q),
                pfma(y[2], A, K[10], y[2]),
                pfma(y[0], A, K[7], Q, True),
                pfma(y[0], G, K[8], y[0]),
                pfma(y[2], y[0], K[11], y[2]),
                psub(A, A, y[0]),
                psub(A, A, y[2]),
            ])
        for ops in zip(*seq):
            for op in ops:
                a.e(op)

    a.e("s_waitcnt lgkmcnt(8)")
    interp(0)
    a.e("s_waitcnt lgkmcnt(0)")
    interp(1)
    if "est" in EXP:
        stamp(3)
    a.e("s_mov_b32 s36, 0x00010001")
    a.e("s_mov_b32 s37, 0x00010001")
    a.e("s_mov_b64 exec, s[36:37]")
    for k in range(3):
        for c in range(2):
            a.e(f"ds_write_b128 v{vBW}, {vr(P(c, ELS[k]))} offset:{(k*2+c)*16}")
    a.e("s_mov_b64 exec, -1")

    def finish(ph):
        ys = [Y + ph * 8 + i for i in range(8)]
        if not KSPLIT:
            ts = [16 + (ph & 1) * 8 + i for i in range(8)]
            ev = list(zip(ys[::2], ts[::2]))
            for y, t in ev:
                a.e(f"v_pk_mul_f32 {p2(t)}, {p2(y)}, {p2(y)}")
            for y, t in ev:
                a.e(pfma(t, t, K[12], 44))
            for y, t in ev:
                a.e(f"v_pk_mul_f32 {p2(t)}, {p2(t)}, {p2(y)}")
            for t in ts:
                a.e(f"v_exp_f32 v{t}, v{t}")
            for y, t in ev:
                a.e(f"v_pk_add_f32 {p2(t)}, {p2(t)}, {K[13]}")
            for t in ts:
                a.e(f"v_rcp_f32 v{t}, v{t}")
            for y, t in ev:
                a.e(f"v_pk_mul_f32 {p2(y)}, {p2(y)}, {p2(t)}")
        o = 48 + ph * 4
        for r in range(4):
            a.e(f"v_cvt_pk_bf16_f32 v{o+r}, v{ys[r]}, v{ys[4+r]}")
        so = ph * PLF if KSPLIT else ((ph + 3) & 3) * PLH + ((ph + 7) >> 2) * 64
        a.e(f"s_mov_b32 s44, {so}")
        a.e(f"buffer_store_dwordx4 {vr(o)}, v{vO}, {sr(sO)}, s44 offen{NTF if KSPLIT else NTH}")

    a.e(f"v_mov_b32 v44, {f32hex(k0)}")
    a.e("v_mov_b32 v45, v44")
    finish(0)
    a.e("s_waitcnt lgkmcnt(0)")
    a.e("s_barrier")
    if "est" in EXP:
        stamp(4)
    for i in range(6):
        a.e(f"ds_read_b128 {vr(TB+4*i)}, v{vBW} offset:{512 + i*16}")
    for ph in range(1, 4):
        a.e(f"s_waitcnt lgkmcnt({6 - 2*ph})")
        for c in range(2):
            for r in range(4):
                i = (ph - 1) * 8 + c * 4 + r
                a.e(f"v_mov_b32_dpp v{TB+i}, v{P(c, ELS[ph-1], r)} row_shl:1 row_mask:0xf bank_mask:0xf")
        for i in range(0, 8, 2):
            a.e(padd(Y + ph * 8 + i, Y + ph * 8 + i, TB + (ph - 1) * 8 + i))
        finish(ph)
    if "est" in EXP:
        stamp(5)
    RB = os.environ.get("RB", "00")[int(KSPLIT)]
    if RB != "0":
        if not KSPLIT:
            a.e(f"s_cmp_ge_u32 s{sCb}, {RB}")
            a.e(f"s_cbranch_scc1 L_{name}_end")
        a.e("s_waitcnt vmcnt(0)")
        for ph in range(4):
            so = ph * PLF if KSPLIT else ((ph + 3) & 3) * PLH + ((ph + 7) >> 2) * 64
            a.e(f"s_mov_b32 s44, {so}")
            a.e(f"buffer_load_dword v0, v{vO}, {sr(sO)}, s44 offen")
    a.label(f"L_{name}_end")
    if STAMP:
        a.e("s_waitcnt vmcnt(0)")
        stamp(9, False)
        a.e(f"s_memrealtime s[{sSt+22}:{sSt+23}]")
        a.e(f"s_cmp_lg_u32 s{sWv}, {os.environ.get('SW', '0')}")
        a.e(f"s_cbranch_scc1 L_{name}_done")
        a.e("s_lshl_b32 s36, s2, 7")
        a.e(f"s_add_u32 s36, s36, {WS_STAMP + cfg['stamp']*0x10000}")
        add64(a, 40, 30, "s36")
        a.e("s_mov_b32 s42, 128")
        a.e("s_mov_b32 s43, 0x00020000")
        a.e("s_waitcnt lgkmcnt(0)")
        a.e("v_mov_b32 v8, 0")
        for i in range(28):
            a.e(f"v_mov_b32 v0, s{sSt+i}")
            a.e(f"buffer_store_dword v0, v8, s[40:43], 0 offen offset:{4*i}")
    a.label(f"L_{name}_done")
    a.e("s_endpgm")
    if "nohf" not in EXP:
        L = a.L
        b = L.index(f"    s_cbranch_scc1 L_{name}_helper")
        h0, h1 = L.index(f"L_{name}_helper:"), L.index(f"L_{name}_epi:")
        a.L = L[:b] + [f"    s_cbranch_scc0 L_{name}_mw"] + L[h0:h1] + [f"L_{name}_mw:"] + L[b + 1:h0] + L[h1:]
    return a.L, TOPB + 40960, 128


CONV1 = dict(tin=16000, tout=8000, nchunk=16, ksplit=False, in_arg=0, in_off=0, w_off=WS_W1P, out_off=WS_H, stamp=0)
CONV2 = dict(tin=8000, tout=4000, nchunk=8, ksplit=True, in_arg=72, in_off=WS_H, w_off=WS_W2P, out_off=WS_FP, stamp=1)

HEADER = f"""; Kernarg layout for this problem (80 bytes, ptrs only, base s[0:1]):
"""


def main():
    ks = [("prep_kernel", 256, 640 if W2P else 384) + prep_kernel("prep_kernel"),
          ("conv1_kernel", 256, 1024) + conv_kernel("conv1_kernel", CONV1),
          ("conv2_kernel", 256, 1024) + conv_kernel("conv2_kernel", CONV2)]
    ks = joint_kernels(ks)
    out = HEADER
    for nm, grid, block, code, lds, vg in ks:
        out += f"; @launch kernel={nm} grid=({grid},1,1) block=({block},1,1) lds={lds}\n"
    out += '.amdgcn_target "amdgcn-amd-amdhsa--gfx950"\n.text\n'
    for nm, grid, block, code, lds, vg in ks:
        if "noalign" not in EXP:
            code = align8(code)
        out += f".globl {nm}\n.p2align 8\n.type {nm},@function\n" + "\n".join(code) + "\n"
    out += '.section .rodata,"a"\n'
    for nm, grid, block, code, lds, vg in ks:
        out += ".p2align 6\n" + kd(nm, vg)
    out = out.replace("0x7fc0de00", "L_joint_kernel_done-L_prep_kernel_pc")
    out = out.replace("0x7fc0de01", "L_conv2_kernel_done-L_conv1_kernel_pc")
    out = out.replace("0x7fc0de02", "L_joint_kernel_done-L_conv2_kernel_pc")
    path = sys.argv[1] if len(sys.argv) > 1 else "standalone__seq2seq_rnn_t_joint__speech.s"
    open(path, "w").write(out)


if __name__ == "__main__":
    main()
```

```python
import os
import sys

from asmlib import Asm, vr, sr, kd, f32hex, align8
from gen13_joint import small_head, small_tail, joint_kernels

EXP = os.environ.get("EXP", "").split(",")

WS_W1P = 0x0000000
WS_W2P = 0x0900000
WS_H = 0x1200000
WS_FP = 0x1A00000
WS_FPS = 0x800000
WS_WF = 0x2A00000
WS_STAMP = 0x3000000

CHUNKB = 7 * 8192
FB = 1024
BB = 8 * FB
SEQB = 2 * BB
FB6 = 1088
BB6 = 8 * FB6
SPB = 6 * SEQB + 2 * BB6
TOPB = SPB + 6144
OOB = 0x7f000000
W2P = os.environ.get('W2', '1') == '0'
LOCAL = 'local' in EXP
PLH, PLF = int(os.environ.get('PLH', 131072)), int(os.environ.get('PLF', 65536))
NTW, NTH, NTF = ({"0": "", "1": " nt", "2": " sc1", "3": " sc0 sc1"}[c] for c in os.environ.get("NT", "222"))


def add64(a, d, lo, off):
    a.e(f"s_add_u32 s{d}, s{lo}, {off}")
    a.e(f"s_addc_u32 s{d+1}, s{lo+1}, 0")


def eval_ops(c, t):
    e1, o1, e2, o2 = t
    ops = [f"v_add_f32 v{e1}, v{c[0]}, v{c[2]}",
           f"v_add_f32 v{o1}, v{c[1]}, v{c[3]}",
           f"v_fma_f32 v{e2}, v{c[2]}, 4.0, v{c[0]}",
           f"v_fma_f32 v{o2}, v{c[3]}, 4.0, v{c[1]}",
           f"v_add_f32 v{c[1]}, v{e1}, v{o1}",
           f"v_sub_f32 v{c[2]}, v{e1}, v{o1}",
           f"v_fma_f32 v{c[3]}, v{o2}, 2.0, v{e2}",
           f"v_fma_f32 v{e2}, v{o2}, -2.0, v{e2}",
           f"v_fmamk_f32 v{e1}, v{c[0]}, {f32hex(15.0)}, v{e2}",
           f"v_fmamk_f32 v{e1}, v{o1}, {f32hex(10.0)}, v{e1}"]
    return ops, [c[1], c[2], c[3], e2, e1]


def wprep(a, karg, wsoff, ws_loaded, barrier=False, extra=None, small=None, mid=None):
    a.vm, a.lg = [], []
    a.e(f"s_load_dwordx2 s[8:9], s[0:1], {karg}")
    if not ws_loaded:
        a.e("s_load_dwordx2 s[30:31], s[0:1], 72")
    a.e("s_lshr_b32 s22, s20, 8")
    a.e("s_bfe_u32 s23, s20, 0x40004")
    a.e("s_bfe_u32 s24, s20, 0x30001")
    a.e("s_and_b32 s21, s20, 1")
    a.e("v_lshrrev_b32 v2, 4, v1")
    a.e("v_lshlrev_b32 v2, 12, v2")
    a.e("v_and_b32 v3, 15, v1")
    a.e("v_lshl_add_u32 v2, v3, 2, v2")
    a.e("s_lshl_b32 s26, s22, 3")
    a.e("s_lshr_b32 s27, s23, 3")
    a.e("s_add_u32 s26, s26, s27")
    a.e("s_lshl_b32 s26, s26, 17")
    a.e("s_and_b32 s27, s23, 7")
    a.e("s_lshl_b32 s27, s27, 14")
    a.e("s_add_u32 s26, s26, s27")
    a.e("s_lshl_b32 s27, s24, 6")
    a.e("s_add_u32 s26, s26, s27")
    a.e(f"s_mov_b32 s10, {31*131072}")
    a.e("s_mov_b32 s11, 0x00020000")
    if small:
        small_select(a)
        a.e("s_add_u32 s37, s26, s5")
        a.e("s_add_u32 s38, s37, s5")
        a.e("s_add_u32 s39, s38, s5")
    else:
        for p in range(1, 4):
            a.e(f"s_add_u32 s{36+p}, s26, {2*131072*p}")
    a.e("s_waitcnt lgkmcnt(0)")
    if small:
        small_ptr(a)
        small_g(a, "prep_kernel")
    R = 16
    for e2 in range(4):
        for p in range(4):
            for e in (2 * e2, 2 * e2 + 1):
                a.vmem(f"buffer_load_dword v{R+p*8+e}, v2, s[8:11], s{36+p if p else 26} offen offset:{e*512}", ("L", e2))
    if small:
        a.e("s_cmp_lt_u32 s3, 12")
        a.e(f"s_cbranch_scc1 {small}")
    if mid:
        mid()
    add64(a, 12, 30, wsoff)
    a.e(f"s_mov_b32 s14, {8*16*CHUNKB}")
    a.e("s_mov_b32 s15, 0x00020000")
    a.e("v_lshlrev_b32 v4, 4, v1")
    a.e("s_lshl_b32 s27, s24, 4")
    a.e("s_add_u32 s27, s27, s23")
    a.e(f"s_mul_i32 s27, s27, {CHUNKB}")
    a.e("s_lshl_b32 s28, s22, 11")
    a.e("s_add_u32 s27, s27, s28")
    a.e("s_lshl_b32 s28, s21, 10")
    a.e("s_add_u32 s27, s27, s28")
    a.e("s_cmp_eq_u32 s21, 0")
    a.e("s_mov_b32 s32, 0x07060302")
    a.e("s_cselect_b32 s32, 0x05040100, s32")
    a.e("s_mov_b32 s33, 0x03020c0c")
    a.e("s_cselect_b32 s33, 0x01000c0c, s33")
    a.e(f"s_mov_b32 s35, {f32hex(1.0/24)}")
    a.e(f"s_mov_b32 s36, {f32hex(1.0/72)}")
    if barrier:
        barrier()
    OUT = 48
    T = 76
    scale = ("0.5", "0.5", "s35", "s35", "s36")
    for e2 in range(4):
        a.wait(vm=(("L", e2),))
        if extra and e2 == int(os.environ.get("XT", "3")):
            extra()
        for p, seq in ((0, 6), (3, 0)):
            a.e(f"v_perm_b32 v{OUT+seq*4+e2}, v{R+p*8+2*e2+1}, v{R+p*8+2*e2}, s32")
        res, lists = [], []
        for e in range(2):
            cf = [T + e * 8 + i for i in range(4)]
            ops = [f"v_perm_b32 v{cf[i]}, v{cf[i]}, v{R + (3 - i) * 8 + 2 * e2 + e}, s33" for i in range(4)]
            o, rr = eval_ops(cf, [T + e * 8 + 4 + i for i in range(4)])
            ops += o + [f"v_mul_f32 v{r}, {sc}, v{r}" for r, sc in zip(rr, scale)]
            res.append(rr)
            lists.append(ops)
        for x, y in zip(*lists):
            a.e(x)
            a.e(y)
        for i in range(5):
            a.e(f"v_cvt_pk_bf16_f32 v{OUT+(1+i)*4+e2}, v{res[0][i]}, v{res[1][i]}")
    for seq in (6, 0, 1, 2, 3, 4, 5):
        a.e(f"s_add_u32 s28, s27, {seq*8192}")
        a.e(f"buffer_store_dwordx4 {vr(OUT+seq*4)}, v4, s[12:15], s28 offen{NTW}")


def wprep2(a, karg, wsoff, barrier, LB=True, extra=None, pre=None, mid=None):
    a.vm, a.lg = [], []
    if not pre:
        a.e(f"s_load_dwordx2 s[8:9], s[0:1], {karg}")
    a.e("s_lshr_b32 s22, s20, 8")
    a.e("s_bfe_u32 s23, s20, 0x40004")
    a.e("s_bfe_u32 s24, s20, 0x30001")
    a.e("s_and_b32 s21, s20, 1")
    a.e("v_lshrrev_b32 v5, 4, v1")
    a.e("v_lshlrev_b32 v2, 11, v5")
    a.e("v_and_b32 v3, 15, v1")
    a.e("v_lshl_add_u32 v2, v3, 2, v2")
    a.e("s_lshl_b32 s26, s22, 3")
    a.e("s_lshr_b32 s27, s23, 3")
    a.e("s_add_u32 s26, s26, s27")
    a.e("s_lshl_b32 s26, s26, 17")
    a.e("s_and_b32 s27, s23, 7")
    a.e("s_lshl_b32 s27, s27, 1")
    a.e("s_add_u32 s27, s27, s21")
    a.e("s_lshl_b32 s27, s27, 13")
    a.e("s_add_u32 s26, s26, s27")
    a.e("s_lshl_b32 s27, s24, 6")
    a.e("s_add_u32 s26, s26, s27")
    a.e(f"s_mov_b32 s10, {31*131072}")
    a.e("s_mov_b32 s11, 0x00020000")
    for p in range(1, 4):
        a.e(f"s_add_u32 s{36+p}, s26, {2*131072*p}")
    a.e(f"s_mov_b32 s14, {8*16*CHUNKB}")
    a.e("s_mov_b32 s15, 0x00020000")
    a.e("v_lshrrev_b32 v4, 1, v5")
    a.e("v_lshlrev_b32 v4, 8, v4")
    a.e("v_lshl_add_u32 v4, v3, 4, v4")
    a.e("v_and_b32 v5, 1, v5")
    a.e("v_lshl_add_u32 v4, v5, 10, v4")
    a.e("s_lshl_b32 s27, s24, 4")
    a.e("s_add_u32 s27, s27, s23")
    a.e(f"s_mul_i32 s27, s27, {CHUNKB}")
    a.e("s_lshl_b32 s28, s22, 11")
    a.e("s_add_u32 s27, s27, s28")
    a.e("s_lshl_b32 s28, s21, 9")
    a.e("s_add_u32 s27, s27, s28")
    a.e("s_mov_b32 s32, 0x05040100")
    a.e("s_mov_b32 s33, 0x07060302")
    a.e("s_mov_b32 s34, 0xffff0000")
    a.e(f"s_mov_b32 s35, {f32hex(1.0/24)}")
    a.e(f"s_mov_b32 s40, {f32hex(1.0/72)}")
    a.e("s_waitcnt lgkmcnt(0)")
    if W2P and karg == 8:
        a.e("s_cmp_eq_u32 s29, 1")
        a.e("s_cselect_b32 s8, s48, s8")
        a.e("s_cselect_b32 s9, s49, s9")
        a.e(f"s_mul_i32 s29, s29, {WS_W2P - WS_W1P}")
        wsoff = "s29"
    if LB:
        barrier()
    R, OUT, T = (pre, 16, 76) if pre else (16, 76, 104)
    for e2 in range(0 if pre else 2):
        for p in range(4):
            for e in (2 * e2, 2 * e2 + 1):
                a.vmem(f"buffer_load_dword v{R+p*4+e}, v2, s[8:11], s{36+p if p else 26} offen offset:{e*512}", ("L", e2))
    if mid:
        mid()
    if not LB:
        barrier()
    add64(a, 12, 30, wsoff)
    scale = ("0.5", "0.5", "s35", "s35", "s40")

    def out(seq, c):
        return OUT + (seq * 2 + c) * 2
    for e2 in range(2):
        a.wait(vm=(("L", e2),))
        if extra and e2 == 1:
            extra()
        for c in range(2):
            for p, seq in ((0, 6), (3, 0)):
                a.e(f"v_perm_b32 v{out(seq, c)+e2}, v{R+p*4+2*e2+1}, v{R+p*4+2*e2}, s{32+c}")
            res, lists = [], []
            for e in range(2):
                cf = [T + e * 8 + i for i in range(4)]
                src = [R + (3 - i) * 4 + 2 * e2 + e for i in range(4)]
                ops = [f"v_and_b32 v{d}, s34, v{x}" if c else f"v_lshlrev_b32 v{d}, 16, v{x}" for d, x in zip(cf, src)]
                o, rr = eval_ops(cf, [T + e * 8 + 4 + i for i in range(4)])
                ops += o + [f"v_mul_f32 v{r}, {sc}, v{r}" for r, sc in zip(rr, scale)]
                res.append(rr)
                lists.append(ops)
            for x, y in zip(*lists):
                a.e(x)
                a.e(y)
            for i in range(5):
                a.e(f"v_cvt_pk_bf16_f32 v{out(1+i, c)+e2}, v{res[0][i]}, v{res[1][i]}")
    for seq in (6, 0, 1, 2, 3, 4, 5):
        for d in range(2):
            a.e(f"v_permlane16_swap_b32 v{out(seq, 0)+d}, v{out(seq, 1)+d}")
        a.e(f"s_add_u32 s28, s27, {seq*8192}")
        a.e(f"buffer_store_dwordx4 {vr(out(seq, 0))}, v4, s[12:15], s28 offen{NTW}")


def prep_kernel(name):
    a = Asm()
    NWG = 256
    a.label(name)
    a.e(f"s_cmp_ge_u32 s2, {NWG}")
    a.e(f"s_cbranch_scc1 L_{name}_done")
    CW = os.environ.get("CW", "late")
    CWN = int(os.environ.get("CWN", "32"))

    def code_warm():
        a.e(f"s_cmp_lt_u32 s3, {256 - CWN}")
        a.e(f"s_cbranch_scc1 L_{name}_ncw")
        a.e("s_getpc_b64 s[62:63]")
        a.label(f"L_{name}_pc")
        a.e("s_and_b32 s64, s3, 8")
        a.e("s_lshl_b32 s64, s64, 12")
        a.e("v_lshlrev_b32 v120, 7, v0")
        a.e("v_add_u32 v120, s64, v120")
        a.e(f"v_min_u32 v120, 0x7fc0de00, v120")
        a.e("v_mov_b32 v121, s63")
        a.e("v_add_co_u32 v120, vcc, s62, v120")
        a.e("s_nop 1")
        a.e("v_addc_co_u32 v121, vcc, 0, v121, vcc")
        a.e("global_load_dword v122, v[120:121], off")
        a.label(f"L_{name}_ncw")
        return 0

    def x_warm():
        XW = int(os.environ.get("XW", "0"))
        if XW:
            a.e("s_and_b32 s64, s3, 7")
            a.e("s_lshr_b32 s65, s2, 3")
            a.e("s_lshr_b32 s66, s65, 3")
            a.e("s_lshl_b32 s64, s64, 2")
            a.e("s_add_u32 s64, s64, s66")
            a.e("s_mul_i32 s64, s64, 512000")
            a.e("s_and_b32 s65, s65, 7")
            a.e("s_lshl_b32 s65, s65, 2")
            a.e("s_and_b32 s66, s20, 3")
            a.e("s_add_u32 s65, s65, s66")
            a.e("s_lshl_b32 s65, s65, 14")
            a.e("s_add_u32 s64, s64, s65")
            a.e("s_sub_u32 s64, s64, 7680")
            a.e("v_lshrrev_b32 v120, 2, v1")
            a.e("v_lshlrev_b32 v120, 10, v120")
            a.e(f"v_and_b32 v121, {XW - 1}, v1")
            a.e("v_lshl_add_u32 v120, v121, 7, v120")
            a.e("v_add_u32 v120, s64, v120")
            a.e("s_mov_b32 s68, s44")
            a.e("s_mov_b32 s69, s45")
            a.e(f"s_mov_b32 s70, {2*16000*512}")
            a.e("s_mov_b32 s71, 0x00020000")
            a.vmem("buffer_load_dword v123, v120, s[68:71], 0 offen", "XW")
    a.e("s_mov_b32 s3, s2")
    if CW == "early":
        code_warm()
    a.e("s_load_dwordx16 s[44:59], s[0:1], 0")
    a.e("s_load_dwordx2 s[30:31], s[0:1], 72")
    if "stamp" in EXP:
        a.e("s_memrealtime s[60:61]")
    a.e("v_readfirstlane_b32 s40, v0")
    a.e("s_lshr_b32 s40, s40, 6")
    a.e("v_and_b32 v1, 63, v0")
    if W2P:
        a.e("s_sub_u32 s40, s40, 2")
        a.e("s_lshr_b32 s29, s40, 2")
        a.e(f"s_cbranch_scc0 L_{name}_w")
        a.e("s_cmp_lt_u32 s40, 8")
        a.e(f"s_cbranch_scc1 L_{name}_w")
        a.e("s_add_u32 s40, s40, 6")
    else:
        a.e("s_cmp_lt_u32 s40, 4")
        a.e(f"s_cbranch_scc1 L_{name}_w")
    small_head(a, name)
    a.label(f"L_{name}_w")
    if W2P:
        a.e("s_and_b32 s40, s40, 3")
    a.e("s_lshl_b32 s21, s2, 2")
    a.e("s_add_u32 s20, s40, s21")
    wprep2(a, 8, WS_W1P, lambda: a.e("s_barrier"), False, code_warm if CW == "late" else None, mid=x_warm)
    if "stamp" in EXP:
        a.e("s_waitcnt vmcnt(0)")
        a.e("s_memrealtime s[62:63]")
        a.e("s_lshl_b32 s36, s2, 7")
        a.e(f"s_add_u32 s36, s36, {WS_STAMP + 3*0x10000}")
        add64(a, 40, 30, "s36")
        a.e("s_mov_b32 s42, 128")
        a.e("s_mov_b32 s43, 0x00020000")
        a.e("s_waitcnt lgkmcnt(0)")
        a.e("v_mov_b32 v8, 0")
        a.e("v_mov_b32 v0, 1")
        a.e("buffer_store_dword v0, v8, s[40:43], 0 offen")
        for i in range(4):
            a.e(f"v_mov_b32 v0, s{60+i}")
            a.e(f"buffer_store_dword v0, v8, s[40:43], 0 offen offset:{80+4*i}")
    a.label(f"L_{name}_done")
    a.e("s_endpgm")
    small_tail(a, name)
    a.L.insert(len(a.L) - 1, f"L_{name}_last:")
    return a.L, 4096, 128


def conv_kernel(name, cfg):
    TIN, TOUT = cfg["tin"], cfg["tout"]
    N = cfg["nchunk"]
    KSPLIT = cfg["ksplit"]
    NWG = 256
    STAMP = "stamp" in EXP
    sX, sW, sO = 8, 12, 16
    sWv, sT0, sCnt, sBo, sXo, sMask = 20, 21, 22, 23, 24, 25
    sBo2 = 26
    sK, sCb, sH = 28, 29, 32
    sSt = 60
    vL = 127
    vU, vS_, vI, vKG = 8, 9, 10, 11

    a = Asm()
    a.label(name)
    a.e(f"s_cmp_ge_u32 s2, {NWG}")
    a.e(f"s_cbranch_scc1 L_{name}_done")

    def stamp(i, fence=True):
        if STAMP:
            a.e(f"s_memtime s[{sSt+2*i}:{sSt+2*i+1}]")
            if fence:
                a.e("s_waitcnt lgkmcnt(0)")
                a.lg = []

    def rstamp(i):
        if STAMP:
            a.e(f"s_memrealtime s[{sSt+2*i}:{sSt+2*i+1}]")
            a.e("s_waitcnt lgkmcnt(0)")
            a.lg = []
    if STAMP:
        for i in range(28):
            a.e(f"s_mov_b32 s{sSt+i}, 0")
        a.e(f"s_memrealtime s[{sSt+20}:{sSt+21}]")
    stamp(0, False)
    a.e(f"s_load_dwordx2 s[4:5], s[0:1], {cfg['in_arg']}")
    a.e("s_load_dwordx2 s[30:31], s[0:1], 72")
    a.e(f"v_readfirstlane_b32 s{sWv}, v0")
    a.e(f"s_lshr_b32 s{sWv}, s{sWv}, 6")
    if os.environ.get("WX", "8") != "0":
        a.e(f"s_xor_b32 s{sWv}, s{sWv}, {os.environ.get('WX', '8')}")
    XL = int((os.environ.get("XL", "33") * 2)[int(KSPLIT)])
    a.e(f"s_and_b32 s36, s2, {(8 >> XL) - 1}")
    a.e(f"s_lshl_b32 s36, s36, {XL}")
    a.e(f"s_bfe_u32 s37, s2, {(XL << 16) | 3}")
    a.e(f"s_or_b32 s{sCb}, s36, s37")
    a.e(f"s_bfe_u32 s36, s2, {(XL << 16) | (3 - XL)}")
    a.e(f"s_lshl_b32 s36, s36, {5 - XL}")
    a.e(f"s_lshr_b32 s37, s2, {3 + XL}")
    a.e("s_or_b32 s36, s36, s37")
    if KSPLIT:
        if LOCAL:
            a.e("s_and_b32 s33, s36, 1")
            a.e("s_bfe_u32 s34, s36, 0x30001")
            a.e("s_lshr_b32 s35, s36, 4")
        else:
            a.e("s_lshr_b32 s33, s36, 4")
            a.e("s_and_b32 s34, s36, 7")
            a.e("s_bfe_u32 s35, s36, 0x10003")
    else:
        a.e("s_mov_b32 s33, 0")
        a.e("s_and_b32 s34, s36, 15")
        a.e("s_lshr_b32 s35, s36, 4")
    a.e(f"s_mul_i32 s{sT0}, s34, 500")
    a.e(f"s_and_b32 s{sH}, s{sWv}, 3")
    a.e(f"v_and_b32 v{vL}, 63, v0")
    a.e(f"v_lshrrev_b32 v5, 2, v{vL}")
    a.e(f"v_and_b32 v6, 3, v{vL}")
    a.e(f"s_and_b32 s42, s{sWv}, 7")
    if not KSPLIT:
        a.e("v_lshlrev_b32 v7, 15, v5")
        a.e("v_lshl_add_u32 v7, v6, 4, v7")
        a.e(f"s_lshl_b32 s41, s{sT0}, 10")
        a.e("s_sub_u32 s41, s41, 7680")
        a.e("s_lshl_b32 s37, s42, 12")
        a.e("s_add_u32 s37, s37, s41")
        a.e("v_add_u32 v7, s37, v7")
        a.e(f"s_mul_i32 s36, s35, {TIN*512}")
        a.e(f"s_mov_b32 s{sX+2}, {TIN*512}")
    else:
        a.e(f"s_lshr_b32 s41, s{sT0}, 2")
        a.e("s_sub_u32 s41, s41, 1")
        a.e("s_add_u32 s37, s41, s42")
        a.e("v_lshl_add_u32 v7, v5, 3, s37")
        a.e(f"s_mul_i32 s36, s35, {32*PLH}")
        a.e(f"s_add_u32 s36, s36, {cfg['in_off']}")
        a.e(f"s_mov_b32 s{sX+2}, {32*PLH}")

    def haddr(dst, vG, vlane, p, t):
        a.e(f"s_add_u32 s37, s33, {2*p - 7 & 0xffffffff}")
        a.e(f"v_lshl_add_u32 v{t}, v{vG}, 3, s37")
        a.e(f"v_cmp_gt_u32 vcc, {TIN}, v{t}")
        a.e(f"s_mul_i32 s37, s33, {PLH}")
        a.e(f"s_add_u32 s37, s37, {(2*p & 3)*PLH + (p >> 1)*64}")
        a.e(f"v_lshl_add_u32 v{dst}, v{vG}, 7, s37")
        a.e(f"v_add_u32 v{dst}, v{dst}, v{vlane}")
        a.e(f"v_mov_b32 v{t}, {OOB}")
        a.e(f"v_cndmask_b32 v{dst}, v{t}, v{dst}, vcc")
    a.e(f"s_mov_b32 s{sX+3}, 0x00020000")
    a.e(f"s_mov_b32 s{sMask}, 0xffff0000")
    a.e("s_mov_b32 s47, s36")

    def kwait():
        a.e("s_waitcnt lgkmcnt(0)")
        stamp(1)
        add64(a, sX, 4, "s47")
    OB = 512

    def wsrd():
        a.e(f"s_lshl_b32 s36, s{sCb}, 4")
        a.e("s_lshl_b32 s37, s33, 3")
        a.e("s_add_u32 s36, s36, s37")
        a.e(f"s_mul_i32 s36, s36, {CHUNKB}")
        a.e(f"s_add_u32 s36, s36, {cfg['w_off']}")
        add64(a, sW, 30, "s36")
        a.e(f"s_mov_b32 s{sW+2}, {N*CHUNKB}")
        a.e(f"s_mov_b32 s{sW+3}, 0x00020000")

    def lds_throttle(need=1):
        if len(a.lg) + need > 15:
            a.e("s_waitcnt lgkmcnt(8)")
            a.lg = a.lg[-8:]

    def mf(acc, b, av):
        if "nomfma" not in EXP:
            a.e(f"v_mfma_f32_16x16x32_bf16 {vr(acc)}, {vr(b)}, {vr(av)}, {vr(acc)}")

    def steady(gen, per, strict=True):
        st = []
        for it in range(3):
            st.append(len(a.L))
            for pos in range(per):
                gen(per * it + pos, pos)
        st.append(len(a.L))
        bodies = [a.L[st[i]:st[i + 1]] for i in range(3)]
        if strict:
            assert bodies[1] == bodies[2], "loop not steady"
            assert bodies[0] == bodies[1], "loop entry not steady"
        del a.L[st[0]:]
        return bodies[1]

    a.e(f"s_cmp_ge_u32 s{sWv}, 8")
    a.e(f"s_cbranch_scc1 L_{name}_helper")

    ACC = 0
    vF, vA8, vD, vB = (120, 121), 122, (123, 124), 125
    vP = (116, 117, 118)
    vBZ = 119
    S, T, O = 96, 108, 64
    if not KSPLIT:
        a.e(f"s_add_u32 s37, s41, {128*4096}")
        a.e(f"v_lshl_add_u32 v{T}, v{vL}, 4, s37")
        for p in range(1, 3):
            a.e(f"v_add_u32 v{T+p}, {p*1024}, v{T}")
    else:
        a.e("s_add_u32 s37, s41, 128")
        a.e("v_mov_b32 v16, s37")
        a.e(f"v_mul_u32_u24 v17, {4*PLH}, v5")
        a.e("v_lshl_add_u32 v17, v6, 4, v17")
        for p in range(3):
            haddr(T + p, 16, 17, p, 18)
    kwait()
    wsrd()
    PLO = PLF if KSPLIT else PLH
    a.e(f"s_mul_i32 s36, s35, {32*PLO}")
    a.e(f"s_add_u32 s36, s36, {cfg['out_off']}")
    if KSPLIT:
        a.e(f"s_mul_i32 s37, s33, {WS_FPS}")
        a.e("s_add_u32 s36, s36, s37")
    add64(a, sO, 30, "s36")
    a.e(f"s_mov_b32 s{sO+2}, {32*PLO}")
    a.e(f"s_mov_b32 s{sO+3}, 0x00020000")
    a.e(f"v_and_b32 v{vI}, 15, v{vL}")
    a.e(f"v_lshrrev_b32 v{vKG}, 4, v{vL}")
    t = 16
    for d, sh in ((vU, 0), (vS_, 1)):
        a.e(f"v_add_u32 v{d}, {sh}, v{vI}")
        a.e(f"v_and_b32 v{t}, 4, v{d}")
        a.e(f"v_lshrrev_b32 v{t}, 1, v{t}")
        a.e(f"v_xor_b32 v{t}, v{vKG}, v{t}")
        a.e(f"v_lshlrev_b32 v{t}, 4, v{t}")
        a.e(f"v_lshl_add_u32 v{d}, v{d}, 6, v{t}")
    a.e(f"s_lshr_b32 s38, s{sH}, 1")
    a.e(f"s_and_b32 s39, s{sH}, 1")
    a.e("s_add_u32 s40, s38, 4")
    a.e("s_lshl_b32 s43, s39, 10")
    a.e(f"s_cmp_lt_u32 s{sWv}, 4")
    a.e(f"s_cselect_b32 s40, s{sWv}, s40")
    a.e("s_cselect_b32 s36, 0, s43")
    a.e("s_lshl_b32 s37, s40, 13")
    a.e("s_add_u32 s37, s37, s36")
    a.e(f"v_lshl_add_u32 v{vB}, v{vL}, 4, s37")
    a.e(f"s_mul_i32 s37, s40, {SEQB}")
    a.e(f"v_add_u32 v{vF[0]}, s37, v{vU}")
    a.e(f"v_add_u32 v{vF[1]}, s37, v{vS_}")
    a.e("s_lshl_b32 s37, s40, 10")
    a.e(f"s_add_u32 s37, s37, {SPB}")
    a.e(f"v_lshl_add_u32 v{t}, v{vKG}, 4, s37")
    a.e(f"v_cmp_eq_u32 vcc, 15, v{vI}")
    a.e(f"v_mov_b32 v{t+1}, {BB}")
    a.e(f"v_mov_b32 v{t+2}, {-BB & 0xffffffff}")
    a.e(f"v_mov_b32 v{t+3}, 64")
    a.e(f"v_cndmask_b32 v{vA8}, v{vF[1]}, v{t}, vcc")
    a.e(f"v_cndmask_b32 v{vD[0]}, v{t+1}, v{t+3}, vcc")
    a.e(f"v_cndmask_b32 v{vD[1]}, v{t+2}, v{t+3}, vcc")
    a.e(f"v_lshl_add_u32 v126, v{vL}, 4, s37")
    tabs = {44: (1.0, 1.0, 1.0, 1.0, 1.0, 16.0), 45: (0.0, 1.0, -1.0, 2.0, -2.0, 8.0),
            46: (0.0, 1.0, 1.0, 4.0, 4.0, 4.0)}
    for sg, tab in tabs.items():
        a.e(f"s_mov_b32 s{sg}, {f32hex(tab[0])}")
    for q in range(1, 6):
        a.e(f"s_cmp_eq_u32 s40, {q}")
        for sg, tab in tabs.items():
            if tab[q] != tab[0]:
                a.e(f"s_cselect_b32 s{sg}, {f32hex(tab[q])}, s{sg}")

    def special_rows():
        a.wait(vm=("SP",))
        for d in range(4):
            for p in range(3):
                a.e(f"v_lshlrev_b32 v{T+p}, 16, v{S+4*p+d}")
                a.e(f"v_and_b32 v{T+3+p}, s{sMask}, v{S+4*p+d}")
            for h in range(2):
                a.e(f"v_mul_f32 v{T+6+h}, s44, v{T+3*h}")
            for h in range(2):
                a.e(f"v_fmac_f32 v{T+6+h}, s45, v{T+3*h+1}")
            for h in range(2):
                a.e(f"v_fmac_f32 v{T+6+h}, s46, v{T+3*h+2}")
            a.e(f"v_cvt_pk_bf16_f32 v{S+d}, v{T+6}, v{T+7}")
        a.e(f"ds_write_b128 v126, {vr(S)}")

    def own_read(k, g, reg, tag, last=False):
        if g == 8:
            base, off = vA8, 0
        else:
            base, off = vF[g >> 3], (k & 1) * BB + (g & 7) * FB
        a.lds(f"ds_read_b128 {vr(reg)}, v{base} offset:{off}", tag)
        if g == 8 and not last:
            a.e(f"v_add_u32 v{vA8}, v{vD[k & 1]}, v{vA8}")

    UNIT = [(s * SEQB, s * SEQB + BB) for s in range(4)] + [(4 * SEQB, TOPB), (5 * SEQB, TOPB + 8192),
            (6 * SEQB, TOPB + 16384), (TOPB + 24576, TOPB + 32768)]
    EA = 96
    ES = []
    R0 = (120, 121, 64)
    vO, vBW = 122, 127
    BND = SPB
    t0, t1, t2, t3 = 108, 109, 110, 111
    ES.append(f"v_and_b32 v{t0}, 15, v{vL}")
    ES.append(f"v_lshrrev_b32 v{t1}, 4, v{vL}")
    ES.append(f"v_lshrrev_b32 v{t2}, 3, v{t0}")
    ES.append(f"s_lshl_b32 s36, s{sWv}, 1")
    ES.append(f"v_add_u32 v{t2}, s36, v{t2}")
    ES.append(f"v_xor_b32 v{t3}, v{t2}, v{t0}")
    ES.append(f"v_and_b32 v{t3}, 7, v{t3}")
    ES.append(f"v_lshlrev_b32 v{t3}, 4, v{t3}")
    ES.append(f"v_lshl_add_u32 v{t3}, v{t2}, 7, v{t3}")
    ES.append(f"v_lshl_add_u32 v{R0[0]}, v{t1}, 11, v{t3}")
    ES.append(f"v_add_u32 v{R0[1]}, 65536, v{R0[0]}")
    ES.append(f"v_add_u32 v{R0[2]}, 131072, v{R0[0]}")
    ES.append(f"s_lshl_b32 s36, s{sWv}, 9")
    ES.append(f"s_add_u32 s36, s36, {BND}")
    ES.append(f"v_lshl_add_u32 v{vBW}, v{t1}, 7, s36")
    ES.append(f"s_lshl_b32 s36, s{sWv}, 4")
    ES.append(f"v_add_u32 v{t0}, s36, v{t0}")
    ES.append(f"v_lshlrev_b32 v{t2}, 6, v{t0}")
    ES.append(f"v_lshl_add_u32 v{t2}, v{t1}, 4, v{t2}")
    ES.append(f"s_mul_i32 s36, s{sCb}, {4*PLO}")
    ES.append(f"s_lshl_b32 s37, s{sT0}, 4")
    ES.append("s_add_u32 s36, s36, s37")
    ES.append(f"v_add_u32 v{t2}, s36, v{t2}")
    ES.append(f"v_mov_b32 v{t3}, {OOB}")
    ES.append(f"v_cmp_gt_u32 vcc, 125, v{t0}")
    k0 = -2.0 * 1.4426950408889634 * 0.7978845608028654
    consts = [-1.0 / 3, 0.25, -5.0, -32.0 / 9, -8.0 / 9, -2.0 / 9, -1.0 / 18, 17.0 / 9, -2.0 / 3, 0.4, -1.0 / 15, -0.2,
              k0 * 0.044715, 1.0]
    KS = [4, 6, 8, 10, 12, 14, 22, 24, 26, 32, 34, 38, 40, 42]
    for sg, cv in zip(KS, consts):
        ES.append(f"s_mov_b32 s{sg}, {f32hex(cv)}")
        ES.append(f"s_mov_b32 s{sg+1}, s{sg}")

    def ex_addr(sbase):
        a.e(f"v_and_b32 v{EA}, 15, v{vL}")
        a.e(f"v_and_b32 v{EA+1}, 7, v{vL}")
        a.e(f"v_lshlrev_b32 v{EA+1}, 4, v{EA+1}")
        a.e(f"v_lshl_add_u32 v{EA}, v{EA}, 7, v{EA+1}")
        a.e(f"v_lshrrev_b32 v{EA+1}, 4, v{vL}")
        a.e(f"v_lshl_add_u32 v{EA}, v{EA+1}, 11, v{EA}")
        a.e(f"v_add_u32 v{EA}, s{sbase}, v{EA}")
        for f in range(1, 8):
            a.e(f"v_xor_b32 v{EA+f}, {f << 4}, v{EA}")

    def mwave(role):
        if role == 1:
            BR, AR, NR = 64, 96, 6
            steps = [("X", g) for g in range(11)]
        else:
            BR, AR, NR = 64, 88, 7
            steps = []
            for g in range(11):
                steps.append(("Y", g))
                if 1 <= g <= 9:
                    steps.append(("Z", g - 1))
        NS = len(steps)

        def bload(k, kind, q):
            if "nob" in EXP and k > 0:
                return
            so = sBo2 if q >> 1 else sBo
            if kind == "X":
                for c in range(2):
                    a.vmem(f"buffer_load_dwordx4 {vr(BR+(q*2+c)*4)}, v{vB}, {sr(sW)}, s{so} offen "
                           f"offset:{(q&1)*2048 + c*1024}", ("B", k, kind, q))
            elif kind == "Y":
                a.vmem(f"buffer_load_dwordx4 {vr(BR+q*4)}, v{vB}, {sr(sW)}, s{so} offen offset:{(q&1)*2048}",
                       ("B", k, kind, q))
            else:
                a.vmem(f"buffer_load_dwordx4 {vr(BR+16+q*4)}, v{vBZ}, {sr(sW)}, s{sBo} offen offset:{q*2048}",
                       ("B", k, kind, q))

        def rd(k, n, last=False):
            kind, g = steps[n]
            reg = AR + 4 * (n % NR)
            if kind == "Z":
                base, off = (vP[0], g * FB6) if g < 6 else (vP[1], (g - 6) * FB6) if g < 8 else (vP[2], 0)
                a.lds(f"ds_read_b128 {vr(reg)}, v{base} offset:{(k & 1)*BB6 + off}", ("A", k, n))
            else:
                own_read(k, g, reg, ("A", k, n), last)

        for i in range(64):
            a.e(f"v_mov_b32 v{ACC+i}, 0")
        if "b0" in EXP:
            a.e("s_barrier")
        for p in range(3):
            a.vmem(f"buffer_load_dwordx4 {vr(S+4*p)}, v{T+p}, {sr(sX)}, 0 offen", "SP")
        a.e(f"s_mov_b32 s{sBo}, 0")
        a.e(f"s_mov_b32 s{sBo2}, 4096")
        for st in steps:
            if st and st[1] >= 7:
                bload(0, st[0], st[1] - 7)
        a.e(f"s_mov_b32 s{sBo}, {CHUNKB}")
        a.e(f"s_mov_b32 s{sBo2}, {CHUNKB + 4096}")
        SPL = os.environ.get("SPL", "0") == "1"
        if not SPL:
            special_rows()
        if role == 2:
            a.e(f"v_and_b32 v{T+3}, 15, v{vL}")
            a.e(f"v_lshlrev_b32 v{T+3}, 2, v{T+3}")
            a.e(f"v_add_u32 v{T+3}, {6*SEQB + 1024}, v{T+3}")
            a.e(f"ds_write_b32 v{T+3}, v{ACC}")
            a.e(f"ds_write_b32 v{T+3}, v{ACC} offset:{BB6}")
        a.e("s_waitcnt lgkmcnt(0)")
        a.e("s_barrier")
        if SPL:
            a.e("s_setprio 3")
            special_rows()
            a.e("s_waitcnt lgkmcnt(0)")
        stamp(7)
        rstamp(12)
        a.e(f"s_mov_b32 s{sCnt}, {N//2}")
        a.e(f"s_setprio {os.environ.get(f'PM{role}', '2')}")

        CO = int(os.environ.get(f"CO{role}", "0" if role == 1 else "5"))
        assert CO < NR
        FM = int("fmaj" in EXP)
        vE = (vD[0], vD[1])

        def period(k, _, last=False):
            if "mst" in EXP and _ == 0:
                stamp(2)
            if "bst" in EXP and _ == 1 and not last:
                a.e("s_memtime s[90:91]")
                a.e("s_waitcnt vmcnt(0) lgkmcnt(0)")
                a.e("s_memtime s[92:93]")
                a.e("s_waitcnt lgkmcnt(0)")
                a.e("s_sub_u32 s92, s92, s90")
                a.e(f"s_add_u32 s{sSt+4}, s{sSt+4}, s92")
                a.e(f"s_max_u32 s{sSt+6}, s{sSt+6}, s92")
                a.vm = []
            for n in range(NR):
                rd(k, n, last)
            pend = []
            fill = []

            def flush(n, cnt):
                while pend and pend[0][0] <= n and cnt > 0:
                    _, h, f = pend.pop(0)
                    t = vE[(h + f) & 1]
                    a.e(f"v_xor_b32 v{t}, {f << 4}, v{vX0[h]}")
                    lds_throttle()
                    a.lds(f"ds_write_b128 v{t}, {vr(ACC + h*32 + f*4)}", "E")
                    cnt -= 1
                    for _i in range(min(12, len(fill))):
                        a.e(fill.pop(0))

            for n, st in enumerate(steps):
                if CO and n == NS - CO and not last:
                    a.wait(lg_all=True)
                    if "mst" in EXP and _ == 0:
                        stamp(3)
                    a.e("s_barrier")
                    if "mst" in EXP and _ == 0:
                        stamp(4)
                kind, g = st
                nt = 2 if kind == "Z" else 4
                qs = [q for q in range(nt) if 0 <= g - q <= 7]
                if FM and kind == "X":
                    if g >= 3:
                        f = g - 3
                        for c in range(2):
                            for q in range(4):
                                a.wait(lg=(("A", k, f + q),), vm=(("B", k, kind, q),))
                                mf(ACC + 32 * c + f * 4, BR + q * 8 + 4 * c, AR + 4 * ((f + q) % NR))
                        if f + NR < NS:
                            rd(k, f + NR, last)
                        if g == 10 and not last:
                            for q in range(4):
                                bload(k + 1, kind, q)
                    qs = []
                else:
                    a.wait(lg=(("A", k, n),), vm=tuple(("B", k, kind, q) for q in qs))
                reg = AR + 4 * (n % NR)
                for q in qs:
                    f = g - q
                    if kind == "X":
                        mf(ACC + f * 4, BR + q * 8, reg)
                        mf(ACC + 32 + f * 4, BR + q * 8 + 4, reg)
                    elif kind == "Y":
                        mf(ACC + f * 4, BR + q * 4, reg)
                    else:
                        mf(ACC + 32 + f * 4, BR + 16 + q * 4, reg)
                if g >= 7 and not last and not (FM and kind == "X"):
                    bload(k + 1, kind, g - 7)
                if n + NR < NS and not (FM and kind == "X"):
                    rd(k, n + NR, last)
                if last:
                    flush(n, int(os.environ.get('FL', '2')))
                    f = g - (nt - 1)
                    if f >= 0:
                        if kind == "X":
                            pend.append((n + 1, 0, f))
                            pend.append((max(n + 1, NS - NR + 1 + 3 * FM), 1, f))
                            pend.sort()
                        else:
                            pend.append((n + 3, 0 if kind == "Y" else 1, f))
                    if kind == "X" and n == NS - NR + 3 * FM:
                        a.wait(lg=(("A", k, NS - 1),))
            if last:
                fill += ES
                for _i in range(8):
                    a.e(fill.pop(0))
                flush(1000, 1000)
                for op in fill:
                    a.e(op)
                return
            a.e(f"s_add_u32 s{sBo}, s{sBo}, {CHUNKB}")
            a.e(f"s_add_u32 s{sBo2}, s{sBo2}, {CHUNKB}")
            assert not a.lg
            if "mst" in EXP and _ == 0:
                stamp(5)
            if not CO:
                a.e("s_barrier")
            if "mst" in EXP and _ == 0:
                stamp(6)

        def period2(k, pos):
            if pos == 1:
                a.e(f"s_sub_u32 s{sCnt}, s{sCnt}, 1")
                a.e(f"s_cmp_eq_u32 s{sCnt}, 0")
                a.e(f"s_cbranch_scc1 L_{name}_mlast{role}")
                state[0] = (list(a.vm), k)
            period(k, pos)

        state = [None]
        body = steady(period2, 2, "nob" not in EXP)
        if "nob" in EXP:
            a.e("s_waitcnt vmcnt(0)")
        a.label(f"L_{name}_mloop{role}")
        a.L.extend(body)
        a.e(f"s_branch L_{name}_mloop{role}")
        a.label(f"L_{name}_mlast{role}")
        a.vm, a.lg = state[0][0], []
        vX0 = (vB, 126)
        a.e(f"v_and_b32 v{vX0[0]}, 15, v{vL}")
        a.e(f"v_and_b32 v{vX0[1]}, 7, v{vL}")
        a.e(f"v_lshlrev_b32 v{vX0[1]}, 4, v{vX0[1]}")
        a.e(f"v_lshl_add_u32 v{vX0[0]}, v{vX0[0]}, 7, v{vX0[1]}")
        a.e(f"v_lshrrev_b32 v{vX0[1]}, 4, v{vL}")
        a.e(f"v_lshl_add_u32 v{vX0[0]}, v{vX0[1]}, 11, v{vX0[0]}")
        if role == 1:
            a.e(f"s_lshl_b32 s36, s{sWv}, 14")
            a.e("s_add_u32 s37, s36, 8192")
        else:
            for sg, tab in ((36, [UNIT[4 + (h >> 1)][h & 1] for h in range(4)]),
                            (37, [UNIT[6 + (h >> 1)][h & 1] for h in range(4)])):
                a.e(f"s_mov_b32 s{sg}, {tab[0]}")
                for h in range(1, 4):
                    a.e(f"s_cmp_eq_u32 s{sH}, {h}")
                    a.e(f"s_cselect_b32 s{sg}, {tab[h]}, s{sg}")
        a.e(f"v_add_u32 v{vX0[1]}, s37, v{vX0[0]}")
        a.e(f"v_add_u32 v{vX0[0]}, s36, v{vX0[0]}")
        if os.environ.get(f"PL{role}"):
            a.e(f"s_setprio {os.environ.get(f'PL{role}')}")
        period(state[0][1], 1, True)
        stamp(8, False)
        rstamp(13)
        a.e("s_setprio 0")
        a.vm, a.lg = [], []

    a.e(f"s_cmp_ge_u32 s{sWv}, 4")
    a.e(f"s_cbranch_scc1 L_{name}_m2")
    vm0 = list(a.vm)
    mwave(1)
    a.e(f"s_branch L_{name}_epi")
    a.label(f"L_{name}_m2")
    a.vm, a.lg = list(vm0), []
    a.e(f"s_mul_i32 s37, s38, {2*FB6}")
    a.e(f"s_add_u32 s37, s37, {6*SEQB}")
    a.e(f"v_add_u32 v{vP[0]}, s37, v{vU}")
    a.e(f"v_add_u32 v{vP[2]}, s37, v{vS_}")
    a.e(f"v_add_u32 v{vP[1]}, {6*SEQB + 6*FB6}, v{vU}")
    a.e("s_cmp_eq_u32 s38, 0")
    a.e(f"s_cbranch_scc1 L_{name}_hh0")
    a.e(f"v_add_u32 v{vP[1]}, {6*SEQB}, v{vS_}")
    a.label(f"L_{name}_hh0")
    a.e("s_lshl_b32 s37, s38, 12")
    a.e("s_add_u32 s37, s37, s43")
    a.e(f"s_add_u32 s37, s37, {6*8192}")
    a.e(f"v_lshl_add_u32 v{vBZ}, v{vL}, 4, s37")
    mwave(2)
    a.e(f"s_branch L_{name}_epi")

    a.label(f"L_{name}_helper")
    a.vm, a.lg = [], []
    a.e("s_setprio 3")
    PB = (0, 32)
    XO = 64
    TMP = 76
    vX = 92
    vW = (96, 97, 98)

    def praw(b, half, p):
        return PB[b] + half * 16 + p * 4

    sXo2 = 27

    def xload(pair, p):
        if KSPLIT:
            half, q = p >> 1, p & 1
            for r in (q, q + 2):
                a.vmem(f"buffer_load_dwordx4 {vr(praw(pair & 1, half, r))}, v{vX+r}, {sr(sX)}, "
                       f"s{sXo2 if half else sXo} offen", ("X", pair))
            return
        for half in range(2):
            a.vmem(f"buffer_load_dwordx4 {vr(praw(pair & 1, half, p))}, v{vX+p}, {sr(sX)}, "
                   f"s{sXo} offen offset:{half*64}", ("X", pair))
        a.e(f"v_add_u32 v{vX+p}, 128, v{vX+p}")

    def uregs(chunk):
        return [praw((chunk >> 1) & 1, chunk & 1, p) for p in range(4)]

    def wr(chunk, i):
        if "nowr" in EXP:
            return
        u = uregs(chunk)
        reg, seq = [(XO, 3), (XO + 4, 4), (XO + 8, 5), (u[0], 0), (u[1], 1), (u[2], 2), (u[3], 6)][i]
        lds_throttle()
        if seq == 6:
            a.lds(f"ds_write_b128 v{vW[2]}, {vr(reg)} offset:{(chunk & 1)*BB6}", "W")
        else:
            a.lds(f"ds_write_b128 v{vW[seq >> 2]}, {vr(reg)} offset:{(seq & 3)*SEQB + (chunk & 1)*BB}", "W")

    def tr_ops(chunk):
        u = uregs(chunk)
        o = [u[1], u[2], XO, XO + 4, XO + 8]
        ops = []
        for d in range(4):
            lo = [TMP + p for p in range(4)]
            hi = [TMP + 8 + p for p in range(4)]
            for p in range(4):
                ops.append(f"v_lshlrev_b32 v{lo[p]}, 16, v{u[p]+d}")
                ops.append(f"v_and_b32 v{hi[p]}, s{sMask}, v{u[p]+d}")
            o1, r1 = eval_ops(lo, [TMP + 4 + i for i in range(4)])
            o2, r2 = eval_ops(hi, [TMP + 12 + i for i in range(4)])
            for x, y in zip(o1, o2):
                ops += [x, y]
            for i in range(5):
                ops.append(f"v_cvt_pk_bf16_f32 v{o[i]+d}, v{r1[i]}, v{r2[i]}")
        if "notr" in EXP:
            ops = ["s_nop 0"] * 8
        return ops

    if KSPLIT:
        a.e("v_lshlrev_b32 v8, 4, v6")
    for p in range(4):
        if KSPLIT:
            haddr(vX + p, 7, 8, p, 9)
        else:
            a.e(f"v_add_u32 v{vX+p}, {p*1024}, v7")
    a.e(f"v_and_b32 v{TMP}, 4, v5")
    a.e(f"v_lshrrev_b32 v{TMP}, 1, v{TMP}")
    a.e(f"v_xor_b32 v{TMP}, v6, v{TMP}")
    a.e(f"v_lshlrev_b32 v{TMP}, 4, v{TMP}")
    a.e(f"v_lshl_add_u32 v{TMP}, v5, 6, v{TMP}")
    a.e(f"s_mov_b32 s{sXo}, 0")
    a.e(f"s_mov_b32 s{sXo2}, {4*PLH}")
    kwait()
    stamp(2)
    P0 = os.environ.get("P0", "0")
    if P0 == "0" or KSPLIT:
        for p in range(4):
            xload(0, p)
            if p == 1 and P0 == "2":
                a.e("s_barrier")
    else:
        for half in range(2):
            for p in range(4):
                a.vmem(f"buffer_load_dwordx4 {vr(praw(0, half, p))}, v{vX+p}, {sr(sX)}, s{sXo} offen offset:{half*64}", ("X", 0))
            if half == 0 and P0 == "2":
                a.e("s_barrier")
        for p in range(4):
            a.e(f"v_add_u32 v{vX+p}, 128, v{vX+p}")
    if P0 != "2" and "b0" in EXP:
        a.e("s_barrier")
    a.e(f"s_mul_i32 s36, s42, {FB}")
    a.e(f"v_add_u32 v{vW[0]}, s36, v{TMP}")
    a.e(f"v_add_u32 v{vW[1]}, {4*SEQB}, v{vW[0]}")
    a.e(f"s_mul_i32 s36, s42, {FB6}")
    a.e(f"s_add_u32 s36, s36, {6*SEQB}")
    a.e(f"v_add_u32 v{vW[2]}, s36, v{TMP}")
    stamp(3)
    a.e(f"s_waitcnt vmcnt({0 if P0 == '0' else 4})")
    stamp(4)
    a.e(f"s_mov_b32 s{sK}, 0")
    a.e(f"s_mov_b32 s{sCnt}, {N//4}")
    a.vm, a.lg = [], []
    if not KSPLIT and os.environ.get("W2", "1") == "3":
        a.e("s_load_dwordx2 s[48:49], s[0:1], 16")
    wr(0, 3)
    wr(0, 6)
    for op in tr_ops(0):
        a.e(op)
    for i in (0, 1, 2, 4, 5):
        wr(0, i)
    stamp(5)
    a.e(f"s_cmp_ge_u32 s{sWv}, 12")
    a.e(f"s_cbranch_scc1 L_{name}_h2")

    def hwave(role):
        SH = 33 * int(os.environ.get(f"SH{role}", "0" if role == 1 else "4"))
        ahead = 2 if SH else 1
        a.vm, a.lg = [], []
        W2E = role == 2 and not KSPLIT and os.environ.get("W2", "1") == "3"
        NF = int(os.environ.get("NF", "2"))
        if KSPLIT:
            a.e(f"s_mov_b32 s{sXo}, {8*PLH}")
            a.e(f"s_mov_b32 s{sXo2}, {12*PLH}")
        X1 = os.environ.get("X1", "1")
        if X1 == "0":
            for p in range(4 if SH else NF):
                xload(1, p)
        a.e("s_waitcnt lgkmcnt(0)")
        stamp(6)
        a.e("s_barrier")
        stamp(7)
        rstamp(12)
        if X1 == "1":
            for p in range(4 if SH else NF):
                xload(1, p)
        PA, PB_ = os.environ.get(f'PH{role}', '11' if role == 1 else '00')
        a.e(f"s_setprio {PA}")
        for op in tr_ops(1)[:SH]:
            a.e(op)
        if role == 1 and os.environ.get("MW", ""):
            a.e(f"s_cmp_lt_u32 s2, {os.environ.get('TWN', '32')}")
            a.e("s_cselect_b32 s55, 1, 99")
            a.e("s_getpc_b64 s[36:37]")
            a.label(f"L_{name}_pc3")
            a.e(f"s_sub_u32 s36, s36, L_{name}_pc3-{name}")
            a.e("s_subb_u32 s37, s37, 0")
            a.e(f"s_lshl_b32 s38, s{sH}, 13")
            a.e(f"v_lshl_add_u32 v102, v{vL}, 7, s38")
            a.e(f"v_min_u32 v102, L_{name}_done-{name}, v102")
            a.e("v_mov_b32 v103, s37")
            a.e("v_add_co_u32 v102, vcc, s36, v102")
            a.e("s_nop 1")
            a.e("v_addc_co_u32 v103, vcc, 0, v103, vcc")
        if W2E:
            a.e("s_lshr_b32 s52, s2, 6")
            a.e("s_lshl_b32 s52, s52, 3")
            a.e("s_bfe_u32 s36, s2, 0x10005")
            a.e("s_add_u32 s52, s52, s36")
            a.e("s_lshl_b32 s52, s52, 17")
            a.e("s_bfe_u32 s36, s2, 0x30002")
            a.e("s_lshl_b32 s36, s36, 1")
            a.e(f"s_and_b32 s37, s{sH}, 1")
            a.e("s_add_u32 s36, s36, s37")
            a.e("s_lshl_b32 s36, s36, 13")
            a.e("s_add_u32 s52, s52, s36")
            a.e("s_and_b32 s36, s2, 3")
            a.e("s_lshl_b32 s36, s36, 1")
            a.e(f"s_lshr_b32 s37, s{sH}, 1")
            a.e("s_add_u32 s36, s36, s37")
            a.e("s_lshl_b32 s36, s36, 6")
            a.e("s_add_u32 s52, s52, s36")
            a.e(f"s_mov_b32 s50, {31*131072}")
            a.e("s_mov_b32 s51, 0x00020000")
            a.e(f"v_lshrrev_b32 v99, 4, v{vL}")
            a.e("v_lshlrev_b32 v99, 11, v99")
            a.e(f"v_and_b32 v100, 15, v{vL}")
            a.e("v_lshl_add_u32 v99, v100, 2, v99")

        def w2load(pos):
            a.e(f"s_cmp_lg_u32 s{sCnt}, {os.environ.get('W2I', '3')}")
            a.e(f"s_cbranch_scc1 L_{name}_w2s{pos}")
            for e in range(4):
                a.e(f"buffer_load_dword v{100+pos*4+e}, v99, s[48:51], s52 offen offset:{e*512}")
            a.e(f"s_add_u32 s52, s52, {2*131072}")
            a.label(f"L_{name}_w2s{pos}")
        VPF = int(os.environ.get("VPF", "0")) if role == 1 and not KSPLIT and XL == 3 else 0
        if VPF:
            a.e(f"s_lshl_b32 s36, s{sCb}, 6")
            a.e(f"s_lshl_b32 s37, s{sH}, 3")
            a.e("s_add_u32 s36, s36, s37")
            a.e("s_lshl_b32 s36, s36, 10")
            a.e("s_add_u32 s36, s36, s41")
            a.e(f"s_add_u32 s36, s36, {VPF*128}")
            a.e(f"v_and_b32 v100, 7, v{vL}")
            a.e("v_lshl_add_u32 v100, v100, 10, s36")

        def vpf(k):
            a.e(f"s_cmp_lt_u32 s{sK}, {N - 2*VPF}")
            a.e(f"s_cselect_b32 s36, 0, {OOB}")
            a.vmem(f"buffer_load_dword v99, v100, {sr(sX)}, s36 offen", "PF")
            a.e(f"v_add_u32 v100, {(128 - 32768) & 0xffffffff if k & 1 else 32768}, v100")
        XD = {(0, 1): "0.2,0.4,0.2,0.4", (0, 2): "0.3,0.5,0.3,0.5", (1, 1): "1,1,1,1", (1, 2): "0,0,0,0"}
        XP = [float(x) for x in os.environ.get(f"XP{1 + int(KSPLIT)}{role}", XD[int(KSPLIT), role]).split(",")]

        def period(k, pos, last=False):
            pair = (k >> 1) + 2 if SH else (k + 3) >> 1
            first = not (k & 1) if SH else (k & 1)
            if pos == 4 - ahead and not last:
                a.e(f"s_cmp_eq_u32 s{sCnt}, 1")
                a.e(f"s_cbranch_scc1 L_{name}_hlast{role}")
            if "hst" in EXP and pos == 1:
                stamp(2)
            V1 = tr_ops(k + 1)[SH:]
            V2 = [] if last else tr_ops(k + 2)[:SH]
            V = V1 + V2
            n = len(V)
            ev = {}

            def at(i, f):
                ev.setdefault(max(0, min(int(i), n)), []).append(f)

            def stores():
                if "hst" in EXP and pos == 1:
                    stamp(3)
                for i in range(7):
                    wr(k + 1, i)
                if "hst" in EXP and pos == 1:
                    stamp(4)
                if PA != PB_:
                    a.e(f"s_setprio {PB_}")
            if PA != PB_:
                a.e(f"s_setprio {PA}")
            if VPF and not last:
                at(float(os.environ.get("VPP", "1.0")) * n, lambda: vpf(k))
            at(len(V1), stores)
            if W2E and not last:
                at(len(V1) + 1, lambda: w2load(pos))
            if not last:
                if not KSPLIT:
                    a.e(f"s_cmp_lt_u32 s{sK}, {N - 2 - ahead}")
                    a.e(f"s_cselect_b32 s{sXo}, 0, {OOB}")
                elif first:
                    a.e(f"s_add_u32 s{sXo}, s{sXo}, {8*PLH}")
                    a.e(f"s_add_u32 s{sXo2}, s{sXo2}, {8*PLH}")
                at(len(V1) if SH else 0, lambda: a.wait(vm=(("X", (k + ahead) >> 1),)))
                if "nox" not in EXP:
                    for p in (range(NF) if first else range(NF, 4)):
                        w = len(V1) + XP[p] * SH if SH and first else XP[p] * n
                        at(w, lambda p=p: xload(pair, p))
            for i in range(n + 1):
                for f in ev.get(i, []):
                    f()
                if i < n:
                    a.e(V[i])
            MW = os.environ.get("MW", "")
            if role == 1 and MW and pos == int(MW) and not last:
                a.e(f"s_cmp_lg_u32 s{sCnt}, s55")
                a.e(f"s_cbranch_scc1 L_{name}_nmw")
                a.e("global_load_dword v101, v[102:103], off")
                a.label(f"L_{name}_nmw")
            if not last:
                a.e(f"s_add_u32 s{sK}, s{sK}, 1")
            if "hst" in EXP and pos == 1:
                stamp(5)
            a.e("s_waitcnt lgkmcnt(0)")
            a.lg = []
            a.e("s_barrier")
            if "hst" in EXP and pos == 1:
                stamp(6)

        body = steady(period, 4, "nox" not in EXP)
        a.label(f"L_{name}_hloop{role}")
        a.L.extend(body)
        a.e(f"s_sub_u32 s{sCnt}, s{sCnt}, 1")
        a.e(f"s_branch L_{name}_hloop{role}")
        a.label(f"L_{name}_hlast{role}")
        a.vm, a.lg = [], []

        def last_period():
            vm = a.vm
            a.vm, a.lg = [], []
            if SH:
                a.e(f"s_mov_b32 s{sMask}, 0xffff0000")
                period(2, 2, True)
            a.vm = vm
        if role == 1 or KSPLIT or W2P:
            last_period()
        else:
            assert SH
            W2L = os.environ.get("W2L", "0") == "1"
            if W2L:
                last_period()
            a.e("s_waitcnt vmcnt(0)")
            a.e(f"s_mov_b32 s58, s{sWv}")
            a.e(f"s_lshl_b32 s20, s2, 2")
            a.e(f"s_add_u32 s20, s20, s{sH}")
            a.e(f"v_mov_b32 v1, v{vL}")
            if W2E:
                wprep2(a, 16, WS_W2P, last_period, pre=100)
            elif os.environ.get("W2", "1") == "2":
                wprep2(a, 16, WS_W2P, last_period, LB=False)
            else:
                wprep(a, 16, WS_W2P, True, barrier=None if W2L else last_period)
            a.e(f"s_mov_b32 s{sWv}, s58")
        if role == 1 and KSPLIT and "notail" not in EXP:
            add64(a, sW, 30, WS_WF)
            a.e(f"s_mov_b32 s{sW+2}, {262144 + 32768}")
            a.e(f"s_mov_b32 s{sW+3}, 0x00020000")
            a.e("s_lshr_b32 s36, s2, 3")
            a.e("s_lshl_b32 s36, s36, 2")
            a.e(f"s_add_u32 s36, s36, s{sH}")
            a.e("s_mul_i32 s36, s36, 2304")
            a.e(f"v_lshlrev_b32 v1, 4, v{vL}")
            for i in range(3):
                a.e(f"buffer_load_dwordx4 v[4:7], v1, {sr(sW)}, s36 offen offset:{i*1024}")
        if role == 1 and "notw" not in EXP:
            a.e(f"s_cmp_ge_u32 s2, {os.environ.get('TWN', '32')}")
            a.e(f"s_cbranch_scc1 L_{name}_ntw")
            a.e("s_getpc_b64 s[36:37]")
            a.label(f"L_{name}_pc")
            a.e(f"s_lshl_b32 s38, s{sH}, 13")
            a.e(f"s_add_u32 s38, s38, L_{name}_epi-L_{name}_pc")
            a.e(f"v_lshl_add_u32 v2, v{vL}, 7, s38")
            a.e(f"v_min_u32 v2, {0x7fc0de01 + KSPLIT:#x}, v2")
            a.e("v_mov_b32 v3, s37")
            a.e("v_add_co_u32 v2, vcc, s36, v2")
            a.e("s_nop 1")
            a.e("v_addc_co_u32 v3, vcc, 0, v3, vcc")
            a.e("global_load_dword v4, v[2:3], off")
            a.label(f"L_{name}_ntw")
        stamp(8)
        rstamp(13)
        a.e(f"s_branch L_{name}_end")

    hwave(1)
    a.label(f"L_{name}_h2")
    hwave(2)

    a.label(f"L_{name}_epi")
    K = [sr(x, 2) for x in KS]
    a.e("s_waitcnt lgkmcnt(0)")
    a.e("s_barrier")
    if "est" in EXP:
        stamp(2)
    a.e(f"v_cndmask_b32 v{vO}, v{t3}, v{t2}, vcc")

    def P(c, s, r=0):
        return c * 32 + s * 4 + r
    Y = 64
    TB = 96
    ELS = (0, 1, 2)
    for c in range(2):
        for s_ in range(8):
            if c == 1 and s_ == 7:
                a.e("s_waitcnt lgkmcnt(7)")
            u = UNIT[s_][c]
            a.e(f"ds_read_b128 {vr(P(c, s_))}, v{R0[u >> 16]} offset:{u & 0xffff}")

    def p2(x):
        return vr(x, 2)

    def padd(d, x, y):
        return f"v_pk_add_f32 {p2(d)}, {p2(x)}, {p2(y)}"

    def psub(d, x, y):
        return f"v_pk_add_f32 {p2(d)}, {p2(x)}, {p2(y)} neg_lo:[0,1] neg_hi:[0,1]"

    def pfma(d, x, k, y, neg=False):
        return f"v_pk_fma_f32 {p2(d)}, {p2(x)}, {k}, {p2(y)}" + (" neg_lo:[0,0,1] neg_hi:[0,0,1]" if neg else "")

    def interp(c):
        seq = []
        for r in (0, 2):
            E0, A, B, C, D, Q, E6, E6b = (P(c, x, r) for x in range(8))
            y = [Y + ph * 8 + c * 4 + r for ph in range(4)]
            S1, G = E6, C
            seq.append([
                padd(y[3], E6, E6b),
                padd(S1, A, B),
                psub(A, A, B),
                padd(y[1], C, D),
                psub(G, C, D),
                pfma(y[1], S1, K[0], y[1]),
                pfma(Q, E0, K[3], Q),
                pfma(y[1], E0, K[1], y[1]),
                psub(S1, S1, E0),
                pfma(y[1], y[3], K[2], y[1]),
                psub(S1, S1, y[3]),
                pfma(Q, y[3], K[6], Q),
                psub(B, S1, y[1]),
                pfma(Q, y[1], K[5], Q),
                f"v_pk_mul_f32 {p2(y[2])}, {p2(G)}, {K[9]}",
                pfma(Q, B, K[4], Q),
                pfma(y[2], A, K[10], y[2]),
                pfma(y[0], A, K[7], Q, True),
                pfma(y[0], G, K[8], y[0]),
                pfma(y[2], y[0], K[11], y[2]),
                psub(A, A, y[0]),
                psub(A, A, y[2]),
            ])
        for ops in zip(*seq):
            for op in ops:
                a.e(op)

    a.e("s_waitcnt lgkmcnt(8)")
    interp(0)
    a.e("s_waitcnt lgkmcnt(0)")
    interp(1)
    if "est" in EXP:
        stamp(3)
    a.e("s_mov_b32 s36, 0x00010001")
    a.e("s_mov_b32 s37, 0x00010001")
    a.e("s_mov_b64 exec, s[36:37]")
    for k in range(3):
        for c in range(2):
            a.e(f"ds_write_b128 v{vBW}, {vr(P(c, ELS[k]))} offset:{(k*2+c)*16}")
    a.e("s_mov_b64 exec, -1")

    def finish(ph):
        ys = [Y + ph * 8 + i for i in range(8)]
        if not KSPLIT:
            ts = [16 + (ph & 1) * 8 + i for i in range(8)]
            ev = list(zip(ys[::2], ts[::2]))
            for y, t in ev:
                a.e(f"v_pk_mul_f32 {p2(t)}, {p2(y)}, {p2(y)}")
            for y, t in ev:
                a.e(pfma(t, t, K[12], 44))
            for y, t in ev:
                a.e(f"v_pk_mul_f32 {p2(t)}, {p2(t)}, {p2(y)}")
            for t in ts:
                a.e(f"v_exp_f32 v{t}, v{t}")
            for y, t in ev:
                a.e(f"v_pk_add_f32 {p2(t)}, {p2(t)}, {K[13]}")
            for t in ts:
                a.e(f"v_rcp_f32 v{t}, v{t}")
            for y, t in ev:
                a.e(f"v_pk_mul_f32 {p2(y)}, {p2(y)}, {p2(t)}")
        o = 48 + ph * 4
        for r in range(4):
            a.e(f"v_cvt_pk_bf16_f32 v{o+r}, v{ys[r]}, v{ys[4+r]}")
        so = ph * PLF if KSPLIT else ((ph + 3) & 3) * PLH + ((ph + 7) >> 2) * 64
        a.e(f"s_mov_b32 s44, {so}")
        a.e(f"buffer_store_dwordx4 {vr(o)}, v{vO}, {sr(sO)}, s44 offen{NTF if KSPLIT else NTH}")

    a.e(f"v_mov_b32 v44, {f32hex(k0)}")
    a.e("v_mov_b32 v45, v44")
    finish(0)
    a.e("s_waitcnt lgkmcnt(0)")
    a.e("s_barrier")
    if "est" in EXP:
        stamp(4)
    for i in range(6):
        a.e(f"ds_read_b128 {vr(TB+4*i)}, v{vBW} offset:{512 + i*16}")
    for ph in range(1, 4):
        a.e(f"s_waitcnt lgkmcnt({6 - 2*ph})")
        for c in range(2):
            for r in range(4):
                i = (ph - 1) * 8 + c * 4 + r
                a.e(f"v_mov_b32_dpp v{TB+i}, v{P(c, ELS[ph-1], r)} row_shl:1 row_mask:0xf bank_mask:0xf")
        for i in range(0, 8, 2):
            a.e(padd(Y + ph * 8 + i, Y + ph * 8 + i, TB + (ph - 1) * 8 + i))
        finish(ph)
    if "est" in EXP:
        stamp(5)
    RB = os.environ.get("RB", "00")[int(KSPLIT)]
    if RB != "0":
        if not KSPLIT:
            a.e(f"s_cmp_ge_u32 s{sCb}, {RB}")
            a.e(f"s_cbranch_scc1 L_{name}_end")
        a.e("s_waitcnt vmcnt(0)")
        for ph in range(4):
            so = ph * PLF if KSPLIT else ((ph + 3) & 3) * PLH + ((ph + 7) >> 2) * 64
            a.e(f"s_mov_b32 s44, {so}")
            a.e(f"buffer_load_dword v0, v{vO}, {sr(sO)}, s44 offen")
    a.label(f"L_{name}_end")
    if STAMP:
        a.e("s_waitcnt vmcnt(0)")
        stamp(9, False)
        a.e(f"s_memrealtime s[{sSt+22}:{sSt+23}]")
        a.e(f"s_cmp_lg_u32 s{sWv}, {os.environ.get('SW', '0')}")
        a.e(f"s_cbranch_scc1 L_{name}_done")
        a.e("s_lshl_b32 s36, s2, 7")
        a.e(f"s_add_u32 s36, s36, {WS_STAMP + cfg['stamp']*0x10000}")
        add64(a, 40, 30, "s36")
        a.e("s_mov_b32 s42, 128")
        a.e("s_mov_b32 s43, 0x00020000")
        a.e("s_waitcnt lgkmcnt(0)")
        a.e("v_mov_b32 v8, 0")
        for i in range(28):
            a.e(f"v_mov_b32 v0, s{sSt+i}")
            a.e(f"buffer_store_dword v0, v8, s[40:43], 0 offen offset:{4*i}")
    a.label(f"L_{name}_done")
    a.e("s_endpgm")
    if "nohf" not in EXP:
        L = a.L
        b = L.index(f"    s_cbranch_scc1 L_{name}_helper")
        h0, h1 = L.index(f"L_{name}_helper:"), L.index(f"L_{name}_epi:")
        a.L = L[:b] + [f"    s_cbranch_scc0 L_{name}_mw"] + L[h0:h1] + [f"L_{name}_mw:"] + L[b + 1:h0] + L[h1:]
    return a.L, TOPB + 40960, 128


CONV1 = dict(tin=16000, tout=8000, nchunk=16, ksplit=False, in_arg=0, in_off=0, w_off=WS_W1P, out_off=WS_H, stamp=0)
CONV2 = dict(tin=8000, tout=4000, nchunk=8, ksplit=True, in_arg=72, in_off=WS_H, w_off=WS_W2P, out_off=WS_FP, stamp=1)

HEADER = f"""; Kernarg layout for this problem (80 bytes, ptrs only, base s[0:1]):
"""


def main():
    ks = [("prep_kernel", 256, 640 if W2P else 384) + prep_kernel("prep_kernel"),
          ("conv1_kernel", 256, 1024) + conv_kernel("conv1_kernel", CONV1),
          ("conv2_kernel", 256, 1024) + conv_kernel("conv2_kernel", CONV2)]
    ks = joint_kernels(ks)
    out = HEADER
    for nm, grid, block, code, lds, vg in ks:
        out += f"; @launch kernel={nm} grid=({grid},1,1) block=({block},1,1) lds={lds}\n"
    out += '.amdgcn_target "amdgcn-amd-amdhsa--gfx950"\n.text\n'
    for nm, grid, block, code, lds, vg in ks:
        if "noalign" not in EXP:
            code = align8(code)
        out += f".globl {nm}\n.p2align 8\n.type {nm},@function\n" + "\n".join(code) + "\n"
    out += '.section .rodata,"a"\n'
    for nm, grid, block, code, lds, vg in ks:
        out += ".p2align 6\n" + kd(nm, vg)
    out = out.replace("0x7fc0de00", "L_joint_kernel_done-L_prep_kernel_pc")
    out = out.replace("0x7fc0de01", "L_conv2_kernel_done-L_conv1_kernel_pc")
    out = out.replace("0x7fc0de02", "L_joint_kernel_done-L_conv2_kernel_pc")
    path = sys.argv[1] if len(sys.argv) > 1 else "standalone__seq2seq_rnn_t_joint__speech.s"
    open(path, "w").write(out)


if __name__ == "__main__":
    main()
```

```python
import os
import sys

from asmlib import Asm, vr, sr, kd, f32hex, align8
from gen13_joint import small_head, small_tail, joint_kernels

EXP = os.environ.get("EXP", "").split(",")

WS_W1P = 0x0000000
WS_W2P = 0x0900000
WS_H = 0x1200000
WS_FP = 0x1A00000
WS_FPS = 0x800000
WS_WF = 0x2A00000
WS_STAMP = 0x3000000

CHUNKB = 7 * 8192
FB = 1024
BB = 8 * FB
SEQB = 2 * BB
FB6 = 1088
BB6 = 8 * FB6
SPB = 6 * SEQB + 2 * BB6
TOPB = SPB + 6144
OOB = 0x7f000000
W2P = os.environ.get('W2', '1') == '0'
LOCAL = 'local' in EXP
PLH, PLF = int(os.environ.get('PLH', 131072)), int(os.environ.get('PLF', 65536))
NTW, NTH, NTF = ({"0": "", "1": " nt", "2": " sc1", "3": " sc0 sc1"}[c] for c in os.environ.get("NT", "222"))


def add64(a, d, lo, off):
    a.e(f"s_add_u32 s{d}, s{lo}, {off}")
    a.e(f"s_addc_u32 s{d+1}, s{lo+1}, 0")


def eval_ops(c, t):
    e1, o1, e2, o2 = t
    ops = [f"v_add_f32 v{e1}, v{c[0]}, v{c[2]}",
           f"v_add_f32 v{o1}, v{c[1]}, v{c[3]}",
           f"v_fma_f32 v{e2}, v{c[2]}, 4.0, v{c[0]}",
           f"v_fma_f32 v{o2}, v{c[3]}, 4.0, v{c[1]}",
           f"v_add_f32 v{c[1]}, v{e1}, v{o1}",
           f"v_sub_f32 v{c[2]}, v{e1}, v{o1}",
           f"v_fma_f32 v{c[3]}, v{o2}, 2.0, v{e2}",
           f"v_fma_f32 v{e2}, v{o2}, -2.0, v{e2}",
           f"v_fmamk_f32 v{e1}, v{c[0]}, {f32hex(15.0)}, v{e2}",
           f"v_fmamk_f32 v{e1}, v{o1}, {f32hex(10.0)}, v{e1}"]
    return ops, [c[1], c[2], c[3], e2, e1]


def wprep(a, karg, wsoff, ws_loaded, barrier=False, extra=None, small=None, mid=None):
    a.vm, a.lg = [], []
    a.e(f"s_load_dwordx2 s[8:9], s[0:1], {karg}")
    if not ws_loaded:
        a.e("s_load_dwordx2 s[30:31], s[0:1], 72")
    a.e("s_lshr_b32 s22, s20, 8")
    a.e("s_bfe_u32 s23, s20, 0x40004")
    a.e("s_bfe_u32 s24, s20, 0x30001")
    a.e("s_and_b32 s21, s20, 1")
    a.e("v_lshrrev_b32 v2, 4, v1")
    a.e("v_lshlrev_b32 v2, 12, v2")
    a.e("v_and_b32 v3, 15, v1")
    a.e("v_lshl_add_u32 v2, v3, 2, v2")
    a.e("s_lshl_b32 s26, s22, 3")
    a.e("s_lshr_b32 s27, s23, 3")
    a.e("s_add_u32 s26, s26, s27")
    a.e("s_lshl_b32 s26, s26, 17")
    a.e("s_and_b32 s27, s23, 7")
    a.e("s_lshl_b32 s27, s27, 14")
    a.e("s_add_u32 s26, s26, s27")
    a.e("s_lshl_b32 s27, s24, 6")
    a.e("s_add_u32 s26, s26, s27")
    a.e(f"s_mov_b32 s10, {31*131072}")
    a.e("s_mov_b32 s11, 0x00020000")
    if small:
        small_select(a)
        a.e("s_add_u32 s37, s26, s5")
        a.e("s_add_u32 s38, s37, s5")
        a.e("s_add_u32 s39, s38, s5")
    else:
        for p in range(1, 4):
            a.e(f"s_add_u32 s{36+p}, s26, {2*131072*p}")
    a.e("s_waitcnt lgkmcnt(0)")
    if small:
        small_ptr(a)
        small_g(a, "prep_kernel")
    R = 16
    for e2 in range(4):
        for p in range(4):
            for e in (2 * e2, 2 * e2 + 1):
                a.vmem(f"buffer_load_dword v{R+p*8+e}, v2, s[8:11], s{36+p if p else 26} offen offset:{e*512}", ("L", e2))
    if small:
        a.e("s_cmp_lt_u32 s3, 12")
        a.e(f"s_cbranch_scc1 {small}")
    if mid:
        mid()
    add64(a, 12, 30, wsoff)
    a.e(f"s_mov_b32 s14, {8*16*CHUNKB}")
    a.e("s_mov_b32 s15, 0x00020000")
    a.e("v_lshlrev_b32 v4, 4, v1")
    a.e("s_lshl_b32 s27, s24, 4")
    a.e("s_add_u32 s27, s27, s23")
    a.e(f"s_mul_i32 s27, s27, {CHUNKB}")
    a.e("s_lshl_b32 s28, s22, 11")
    a.e("s_add_u32 s27, s27, s28")
    a.e("s_lshl_b32 s28, s21, 10")
    a.e("s_add_u32 s27, s27, s28")
    a.e("s_cmp_eq_u32 s21, 0")
    a.e("s_mov_b32 s32, 0x07060302")
    a.e("s_cselect_b32 s32, 0x05040100, s32")
    a.e("s_mov_b32 s33, 0x03020c0c")
    a.e("s_cselect_b32 s33, 0x01000c0c, s33")
    a.e(f"s_mov_b32 s35, {f32hex(1.0/24)}")
    a.e(f"s_mov_b32 s36, {f32hex(1.0/72)}")
    if barrier:
        barrier()
    OUT = 48
    T = 76
    scale = ("0.5", "0.5", "s35", "s35", "s36")
    for e2 in range(4):
        a.wait(vm=(("L", e2),))
        if extra and e2 == int(os.environ.get("XT", "3")):
            extra()
        for p, seq in ((0, 6), (3, 0)):
            a.e(f"v_perm_b32 v{OUT+seq*4+e2}, v{R+p*8+2*e2+1}, v{R+p*8+2*e2}, s32")
        res, lists = [], []
        for e in range(2):
            cf = [T + e * 8 + i for i in range(4)]
            ops = [f"v_perm_b32 v{cf[i]}, v{cf[i]}, v{R + (3 - i) * 8 + 2 * e2 + e}, s33" for i in range(4)]
            o, rr = eval_ops(cf, [T + e * 8 + 4 + i for i in range(4)])
            ops += o + [f"v_mul_f32 v{r}, {sc}, v{r}" for r, sc in zip(rr, scale)]
            res.append(rr)
            lists.append(ops)
        for x, y in zip(*lists):
            a.e(x)
            a.e(y)
        for i in range(5):
            a.e(f"v_cvt_pk_bf16_f32 v{OUT+(1+i)*4+e2}, v{res[0][i]}, v{res[1][i]}")
    for seq in (6, 0, 1, 2, 3, 4, 5):
        a.e(f"s_add_u32 s28, s27, {seq*8192}")
        a.e(f"buffer_store_dwordx4 {vr(OUT+seq*4)}, v4, s[12:15], s28 offen{NTW}")


def wprep2(a, karg, wsoff, barrier, LB=True, extra=None, pre=None, mid=None):
    a.vm, a.lg = [], []
    if not pre:
        a.e(f"s_load_dwordx2 s[8:9], s[0:1], {karg}")
    a.e("s_lshr_b32 s22, s20, 8")
    a.e("s_bfe_u32 s23, s20, 0x40004")
    a.e("s_bfe_u32 s24, s20, 0x30001")
    a.e("s_and_b32 s21, s20, 1")
    a.e("v_lshrrev_b32 v5, 4, v1")
    a.e("v_lshlrev_b32 v2, 11, v5")
    a.e("v_and_b32 v3, 15, v1")
    a.e("v_lshl_add_u32 v2, v3, 2, v2")
    a.e("s_lshl_b32 s26, s22, 3")
    a.e("s_lshr_b32 s27, s23, 3")
    a.e("s_add_u32 s26, s26, s27")
    a.e("s_lshl_b32 s26, s26, 17")
    a.e("s_and_b32 s27, s23, 7")
    a.e("s_lshl_b32 s27, s27, 1")
    a.e("s_add_u32 s27, s27, s21")
    a.e("s_lshl_b32 s27, s27, 13")
    a.e("s_add_u32 s26, s26, s27")
    a.e("s_lshl_b32 s27, s24, 6")
    a.e("s_add_u32 s26, s26, s27")
    a.e(f"s_mov_b32 s10, {31*131072}")
    a.e("s_mov_b32 s11, 0x00020000")
    for p in range(1, 4):
        a.e(f"s_add_u32 s{36+p}, s26, {2*131072*p}")
    a.e(f"s_mov_b32 s14, {8*16*CHUNKB}")
    a.e("s_mov_b32 s15, 0x00020000")
    a.e("v_lshrrev_b32 v4, 1, v5")
    a.e("v_lshlrev_b32 v4, 8, v4")
    a.e("v_lshl_add_u32 v4, v3, 4, v4")
    a.e("v_and_b32 v5, 1, v5")
    a.e("v_lshl_add_u32 v4, v5, 10, v4")
    a.e("s_lshl_b32 s27, s24, 4")
    a.e("s_add_u32 s27, s27, s23")
    a.e(f"s_mul_i32 s27, s27, {CHUNKB}")
    a.e("s_lshl_b32 s28, s22, 11")
    a.e("s_add_u32 s27, s27, s28")
    a.e("s_lshl_b32 s28, s21, 9")
    a.e("s_add_u32 s27, s27, s28")
    a.e("s_mov_b32 s32, 0x05040100")
    a.e("s_mov_b32 s33, 0x07060302")
    a.e("s_mov_b32 s34, 0xffff0000")
    a.e(f"s_mov_b32 s35, {f32hex(1.0/24)}")
    a.e(f"s_mov_b32 s40, {f32hex(1.0/72)}")
    a.e("s_waitcnt lgkmcnt(0)")
    if W2P and karg == 8:
        a.e("s_cmp_eq_u32 s29, 1")
        a.e("s_cselect_b32 s8, s48, s8")
        a.e("s_cselect_b32 s9, s49, s9")
        a.e(f"s_mul_i32 s29, s29, {WS_W2P - WS_W1P}")
        wsoff = "s29"
    if LB:
        barrier()
    R, OUT, T = (pre, 16, 76) if pre else (16, 76, 104)
    for e2 in range(0 if pre else 2):
        for p in range(4):
            for e in (2 * e2, 2 * e2 + 1):
                a.vmem(f"buffer_load_dword v{R+p*4+e}, v2, s[8:11], s{36+p if p else 26} offen offset:{e*512}", ("L", e2))
    if mid:
        mid()
    if not LB:
        barrier()
    add64(a, 12, 30, wsoff)
    scale = ("0.5", "0.5", "s35", "s35", "s40")

    def out(seq, c):
        return OUT + (seq * 2 + c) * 2
    for e2 in range(2):
        a.wait(vm=(("L", e2),))
        if extra and e2 == 1:
            extra()
        for c in range(2):
            for p, seq in ((0, 6), (3, 0)):
                a.e(f"v_perm_b32 v{out(seq, c)+e2}, v{R+p*4+2*e2+1}, v{R+p*4+2*e2}, s{32+c}")
            res, lists = [], []
            for e in range(2):
                cf = [T + e * 8 + i for i in range(4)]
                src = [R + (3 - i) * 4 + 2 * e2 + e for i in range(4)]
                ops = [f"v_and_b32 v{d}, s34, v{x}" if c else f"v_lshlrev_b32 v{d}, 16, v{x}" for d, x in zip(cf, src)]
                o, rr = eval_ops(cf, [T + e * 8 + 4 + i for i in range(4)])
                ops += o + [f"v_mul_f32 v{r}, {sc}, v{r}" for r, sc in zip(rr, scale)]
                res.append(rr)
                lists.append(ops)
            for x, y in zip(*lists):
                a.e(x)
                a.e(y)
            for i in range(5):
                a.e(f"v_cvt_pk_bf16_f32 v{out(1+i, c)+e2}, v{res[0][i]}, v{res[1][i]}")
    for seq in (6, 0, 1, 2, 3, 4, 5):
        for d in range(2):
            a.e(f"v_permlane16_swap_b32 v{out(seq, 0)+d}, v{out(seq, 1)+d}")
        a.e(f"s_add_u32 s28, s27, {seq*8192}")
        a.e(f"buffer_store_dwordx4 {vr(out(seq, 0))}, v4, s[12:15], s28 offen{NTW}")


def prep_kernel(name):
    a = Asm()
    NWG = 256
    a.label(name)
    a.e(f"s_cmp_ge_u32 s2, {NWG}")
    a.e(f"s_cbranch_scc1 L_{name}_done")
    CW = os.environ.get("CW", "late")
    CWN = int(os.environ.get("CWN", "32"))

    def code_warm():
        a.e(f"s_cmp_lt_u32 s3, {256 - CWN}")
        a.e(f"s_cbranch_scc1 L_{name}_ncw")
        a.e("s_getpc_b64 s[62:63]")
        a.label(f"L_{name}_pc")
        a.e("s_and_b32 s64, s3, 8")
        a.e("s_lshl_b32 s64, s64, 12")
        a.e("v_lshlrev_b32 v120, 7, v0")
        a.e("v_add_u32 v120, s64, v120")
        a.e(f"v_min_u32 v120, 0x7fc0de00, v120")
        a.e("v_mov_b32 v121, s63")
        a.e("v_add_co_u32 v120, vcc, s62, v120")
        a.e("s_nop 1")
        a.e("v_addc_co_u32 v121, vcc, 0, v121, vcc")
        a.e("global_load_dword v122, v[120:121], off")
        a.label(f"L_{name}_ncw")
        return 0

    def x_warm():
        XW = int(os.environ.get("XW", "0"))
        if XW:
            a.e("s_and_b32 s64, s3, 7")
            a.e("s_lshr_b32 s65, s2, 3")
            a.e("s_lshr_b32 s66, s65, 3")
            a.e("s_lshl_b32 s64, s64, 2")
            a.e("s_add_u32 s64, s64, s66")
            a.e("s_mul_i32 s64, s64, 512000")
            a.e("s_and_b32 s65, s65, 7")
            a.e("s_lshl_b32 s65, s65, 2")
            a.e("s_and_b32 s66, s20, 3")
            a.e("s_add_u32 s65, s65, s66")
            a.e("s_lshl_b32 s65, s65, 14")
            a.e("s_add_u32 s64, s64, s65")
            a.e("s_sub_u32 s64, s64, 7680")
            a.e("v_lshrrev_b32 v120, 2, v1")
            a.e("v_lshlrev_b32 v120, 10, v120")
            a.e(f"v_and_b32 v121, {XW - 1}, v1")
            a.e("v_lshl_add_u32 v120, v121, 7, v120")
            a.e("v_add_u32 v120, s64, v120")
            a.e("s_mov_b32 s68, s44")
            a.e("s_mov_b32 s69, s45")
            a.e(f"s_mov_b32 s70, {2*16000*512}")
            a.e("s_mov_b32 s71, 0x00020000")
            a.vmem("buffer_load_dword v123, v120, s[68:71], 0 offen", "XW")
    a.e("s_mov_b32 s3, s2")
    if CW == "early":
        code_warm()
    a.e("s_load_dwordx16 s[44:59], s[0:1], 0")
    a.e("s_load_dwordx2 s[30:31], s[0:1], 72")
    if "stamp" in EXP:
        a.e("s_memrealtime s[60:61]")
    a.e("v_readfirstlane_b32 s40, v0")
    a.e("s_lshr_b32 s40, s40, 6")
    a.e("v_and_b32 v1, 63, v0")
    if W2P:
        a.e("s_sub_u32 s40, s40, 2")
        a.e("s_lshr_b32 s29, s40, 2")
        a.e(f"s_cbranch_scc0 L_{name}_w")
        a.e("s_cmp_lt_u32 s40, 8")
        a.e(f"s_cbranch_scc1 L_{name}_w")
        a.e("s_add_u32 s40, s40, 6")
    else:
        a.e("s_cmp_lt_u32 s40, 4")
        a.e(f"s_cbranch_scc1 L_{name}_w")
    small_head(a, name)
    a.label(f"L_{name}_w")
    if W2P:
        a.e("s_and_b32 s40, s40, 3")
    a.e("s_lshl_b32 s21, s2, 2")
    a.e("s_add_u32 s20, s40, s21")
    wprep2(a, 8, WS_W1P, lambda: a.e("s_barrier"), False, code_warm if CW == "late" else None, mid=x_warm)
    if "stamp" in EXP:
        a.e("s_waitcnt vmcnt(0)")
        a.e("s_memrealtime s[62:63]")
        a.e("s_lshl_b32 s36, s2, 7")
        a.e(f"s_add_u32 s36, s36, {WS_STAMP + 3*0x10000}")
        add64(a, 40, 30, "s36")
        a.e("s_mov_b32 s42, 128")
        a.e("s_mov_b32 s43, 0x00020000")
        a.e("s_waitcnt lgkmcnt(0)")
        a.e("v_mov_b32 v8, 0")
        a.e("v_mov_b32 v0, 1")
        a.e("buffer_store_dword v0, v8, s[40:43], 0 offen")
        for i in range(4):
            a.e(f"v_mov_b32 v0, s{60+i}")
            a.e(f"buffer_store_dword v0, v8, s[40:43], 0 offen offset:{80+4*i}")
    a.label(f"L_{name}_done")
    a.e("s_endpgm")
    small_tail(a, name)
    a.L.insert(len(a.L) - 1, f"L_{name}_last:")
    return a.L, 4096, 128


def conv_kernel(name, cfg):
    TIN, TOUT = cfg["tin"], cfg["tout"]
    N = cfg["nchunk"]
    KSPLIT = cfg["ksplit"]
    NWG = 256
    STAMP = "stamp" in EXP
    sX, sW, sO = 8, 12, 16
    sWv, sT0, sCnt, sBo, sXo, sMask = 20, 21, 22, 23, 24, 25
    sBo2 = 26
    sK, sCb, sH = 28, 29, 32
    sSt = 60
    vL = 127
    vU, vS_, vI, vKG = 8, 9, 10, 11

    a = Asm()
    a.label(name)
    a.e(f"s_cmp_ge_u32 s2, {NWG}")
    a.e(f"s_cbranch_scc1 L_{name}_done")

    def stamp(i, fence=True):
        if STAMP:
            a.e(f"s_memtime s[{sSt+2*i}:{sSt+2*i+1}]")
            if fence:
                a.e("s_waitcnt lgkmcnt(0)")
                a.lg = []

    def rstamp(i):
        if STAMP:
            a.e(f"s_memrealtime s[{sSt+2*i}:{sSt+2*i+1}]")
            a.e("s_waitcnt lgkmcnt(0)")
            a.lg = []
    if STAMP:
        for i in range(28):
            a.e(f"s_mov_b32 s{sSt+i}, 0")
        a.e(f"s_memrealtime s[{sSt+20}:{sSt+21}]")
    stamp(0, False)
    a.e(f"s_load_dwordx2 s[4:5], s[0:1], {cfg['in_arg']}")
    a.e("s_load_dwordx2 s[30:31], s[0:1], 72")
    a.e(f"v_readfirstlane_b32 s{sWv}, v0")
    a.e(f"s_lshr_b32 s{sWv}, s{sWv}, 6")
    if os.environ.get("WX", "8") != "0":
        a.e(f"s_xor_b32 s{sWv}, s{sWv}, {os.environ.get('WX', '8')}")
    XL = int((os.environ.get("XL", "33") * 2)[int(KSPLIT)])
    a.e(f"s_and_b32 s36, s2, {(8 >> XL) - 1}")
    a.e(f"s_lshl_b32 s36, s36, {XL}")
    a.e(f"s_bfe_u32 s37, s2, {(XL << 16) | 3}")
    a.e(f"s_or_b32 s{sCb}, s36, s37")
    a.e(f"s_bfe_u32 s36, s2, {(XL << 16) | (3 - XL)}")
    a.e(f"s_lshl_b32 s36, s36, {5 - XL}")
    a.e(f"s_lshr_b32 s37, s2, {3 + XL}")
    a.e("s_or_b32 s36, s36, s37")
    if KSPLIT:
        if LOCAL:
            a.e("s_and_b32 s33, s36, 1")
            a.e("s_bfe_u32 s34, s36, 0x30001")
            a.e("s_lshr_b32 s35, s36, 4")
        else:
            a.e("s_lshr_b32 s33, s36, 4")
            a.e("s_and_b32 s34, s36, 7")
            a.e("s_bfe_u32 s35, s36, 0x10003")
    else:
        a.e("s_mov_b32 s33, 0")
        a.e("s_and_b32 s34, s36, 15")
        a.e("s_lshr_b32 s35, s36, 4")
    a.e(f"s_mul_i32 s{sT0}, s34, 500")
    a.e(f"s_and_b32 s{sH}, s{sWv}, 3")
    a.e(f"v_and_b32 v{vL}, 63, v0")
    a.e(f"v_lshrrev_b32 v5, 2, v{vL}")
    a.e(f"v_and_b32 v6, 3, v{vL}")
    a.e(f"s_and_b32 s42, s{sWv}, 7")
    if not KSPLIT:
        a.e("v_lshlrev_b32 v7, 15, v5")
        a.e("v_lshl_add_u32 v7, v6, 4, v7")
        a.e(f"s_lshl_b32 s41, s{sT0}, 10")
        a.e("s_sub_u32 s41, s41, 7680")
        a.e("s_lshl_b32 s37, s42, 12")
        a.e("s_add_u32 s37, s37, s41")
        a.e("v_add_u32 v7, s37, v7")
        a.e(f"s_mul_i32 s36, s35, {TIN*512}")
        a.e(f"s_mov_b32 s{sX+2}, {TIN*512}")
    else:
        a.e(f"s_lshr_b32 s41, s{sT0}, 2")
        a.e("s_sub_u32 s41, s41, 1")
        a.e("s_add_u32 s37, s41, s42")
        a.e("v_lshl_add_u32 v7, v5, 3, s37")
        a.e(f"s_mul_i32 s36, s35, {32*PLH}")
        a.e(f"s_add_u32 s36, s36, {cfg['in_off']}")
        a.e(f"s_mov_b32 s{sX+2}, {32*PLH}")

    def haddr(dst, vG, vlane, p, t):
        a.e(f"s_add_u32 s37, s33, {2*p - 7 & 0xffffffff}")
        a.e(f"v_lshl_add_u32 v{t}, v{vG}, 3, s37")
        a.e(f"v_cmp_gt_u32 vcc, {TIN}, v{t}")
        a.e(f"s_mul_i32 s37, s33, {PLH}")
        a.e(f"s_add_u32 s37, s37, {(2*p & 3)*PLH + (p >> 1)*64}")
        a.e(f"v_lshl_add_u32 v{dst}, v{vG}, 7, s37")
        a.e(f"v_add_u32 v{dst}, v{dst}, v{vlane}")
        a.e(f"v_mov_b32 v{t}, {OOB}")
        a.e(f"v_cndmask_b32 v{dst}, v{t}, v{dst}, vcc")
    a.e(f"s_mov_b32 s{sX+3}, 0x00020000")
    a.e(f"s_mov_b32 s{sMask}, 0xffff0000")
    a.e("s_mov_b32 s47, s36")

    def kwait():
        a.e("s_waitcnt lgkmcnt(0)")
        stamp(1)
        add64(a, sX, 4, "s47")
    OB = 512

    def wsrd():
        a.e(f"s_lshl_b32 s36, s{sCb}, 4")
        a.e("s_lshl_b32 s37, s33, 3")
        a.e("s_add_u32 s36, s36, s37")
        a.e(f"s_mul_i32 s36, s36, {CHUNKB}")
        a.e(f"s_add_u32 s36, s36, {cfg['w_off']}")
        add64(a, sW, 30, "s36")
        a.e(f"s_mov_b32 s{sW+2}, {N*CHUNKB}")
        a.e(f"s_mov_b32 s{sW+3}, 0x00020000")

    def lds_throttle(need=1):
        if len(a.lg) + need > 15:
            a.e("s_waitcnt lgkmcnt(8)")
            a.lg = a.lg[-8:]

    def mf(acc, b, av):
        if "nomfma" not in EXP:
            a.e(f"v_mfma_f32_16x16x32_bf16 {vr(acc)}, {vr(b)}, {vr(av)}, {vr(acc)}")

    def steady(gen, per, strict=True):
        st = []
        for it in range(3):
            st.append(len(a.L))
            for pos in range(per):
                gen(per * it + pos, pos)
        st.append(len(a.L))
        bodies = [a.L[st[i]:st[i + 1]] for i in range(3)]
        if strict:
            assert bodies[1] == bodies[2], "loop not steady"
            assert bodies[0] == bodies[1], "loop entry not steady"
        del a.L[st[0]:]
        return bodies[1]

    a.e(f"s_cmp_ge_u32 s{sWv}, 8")
    a.e(f"s_cbranch_scc1 L_{name}_helper")

    ACC = 0
    vF, vA8, vD, vB = (120, 121), 122, (123, 124), 125
    vP = (116, 117, 118)
    vBZ = 119
    S, T, O = 96, 108, 64
    if not KSPLIT:
        a.e(f"s_add_u32 s37, s41, {128*4096}")
        a.e(f"v_lshl_add_u32 v{T}, v{vL}, 4, s37")
        for p in range(1, 3):
            a.e(f"v_add_u32 v{T+p}, {p*1024}, v{T}")
    else:
        a.e("s_add_u32 s37, s41, 128")
        a.e("v_mov_b32 v16, s37")
        a.e(f"v_mul_u32_u24 v17, {4*PLH}, v5")
        a.e("v_lshl_add_u32 v17, v6, 4, v17")
        for p in range(3):
            haddr(T + p, 16, 17, p, 18)
    kwait()
    wsrd()
    PLO = PLF if KSPLIT else PLH
    a.e(f"s_mul_i32 s36, s35, {32*PLO}")
    a.e(f"s_add_u32 s36, s36, {cfg['out_off']}")
    if KSPLIT:
        a.e(f"s_mul_i32 s37, s33, {WS_FPS}")
        a.e("s_add_u32 s36, s36, s37")
    add64(a, sO, 30, "s36")
    a.e(f"s_mov_b32 s{sO+2}, {32*PLO}")
    a.e(f"s_mov_b32 s{sO+3}, 0x00020000")
    a.e(f"v_and_b32 v{vI}, 15, v{vL}")
    a.e(f"v_lshrrev_b32 v{vKG}, 4, v{vL}")
    t = 16
    for d, sh in ((vU, 0), (vS_, 1)):
        a.e(f"v_add_u32 v{d}, {sh}, v{vI}")
        a.e(f"v_and_b32 v{t}, 4, v{d}")
        a.e(f"v_lshrrev_b32 v{t}, 1, v{t}")
        a.e(f"v_xor_b32 v{t}, v{vKG}, v{t}")
        a.e(f"v_lshlrev_b32 v{t}, 4, v{t}")
        a.e(f"v_lshl_add_u32 v{d}, v{d}, 6, v{t}")
    a.e(f"s_lshr_b32 s38, s{sH}, 1")
    a.e(f"s_and_b32 s39, s{sH}, 1")
    a.e("s_add_u32 s40, s38, 4")
    a.e("s_lshl_b32 s43, s39, 10")
    a.e(f"s_cmp_lt_u32 s{sWv}, 4")
    a.e(f"s_cselect_b32 s40, s{sWv}, s40")
    a.e("s_cselect_b32 s36, 0, s43")
    a.e("s_lshl_b32 s37, s40, 13")
    a.e("s_add_u32 s37, s37, s36")
    a.e(f"v_lshl_add_u32 v{vB}, v{vL}, 4, s37")
    a.e(f"s_mul_i32 s37, s40, {SEQB}")
    a.e(f"v_add_u32 v{vF[0]}, s37, v{vU}")
    a.e(f"v_add_u32 v{vF[1]}, s37, v{vS_}")
    a.e("s_lshl_b32 s37, s40, 10")
    a.e(f"s_add_u32 s37, s37, {SPB}")
    a.e(f"v_lshl_add_u32 v{t}, v{vKG}, 4, s37")
    a.e(f"v_cmp_eq_u32 vcc, 15, v{vI}")
    a.e(f"v_mov_b32 v{t+1}, {BB}")
    a.e(f"v_mov_b32 v{t+2}, {-BB & 0xffffffff}")
    a.e(f"v_mov_b32 v{t+3}, 64")
    a.e(f"v_cndmask_b32 v{vA8}, v{vF[1]}, v{t}, vcc")
    a.e(f"v_cndmask_b32 v{vD[0]}, v{t+1}, v{t+3}, vcc")
    a.e(f"v_cndmask_b32 v{vD[1]}, v{t+2}, v{t+3}, vcc")
    a.e(f"v_lshl_add_u32 v126, v{vL}, 4, s37")
    tabs = {44: (1.0, 1.0, 1.0, 1.0, 1.0, 16.0), 45: (0.0, 1.0, -1.0, 2.0, -2.0, 8.0),
            46: (0.0, 1.0, 1.0, 4.0, 4.0, 4.0)}
    for sg, tab in tabs.items():
        a.e(f"s_mov_b32 s{sg}, {f32hex(tab[0])}")
    for q in range(1, 6):
        a.e(f"s_cmp_eq_u32 s40, {q}")
        for sg, tab in tabs.items():
            if tab[q] != tab[0]:
                a.e(f"s_cselect_b32 s{sg}, {f32hex(tab[q])}, s{sg}")

    def special_rows():
        a.wait(vm=("SP",))
        for d in range(4):
            for p in range(3):
                a.e(f"v_lshlrev_b32 v{T+p}, 16, v{S+4*p+d}")
                a.e(f"v_and_b32 v{T+3+p}, s{sMask}, v{S+4*p+d}")
            for h in range(2):
                a.e(f"v_mul_f32 v{T+6+h}, s44, v{T+3*h}")
            for h in range(2):
                a.e(f"v_fmac_f32 v{T+6+h}, s45, v{T+3*h+1}")
            for h in range(2):
                a.e(f"v_fmac_f32 v{T+6+h}, s46, v{T+3*h+2}")
            a.e(f"v_cvt_pk_bf16_f32 v{S+d}, v{T+6}, v{T+7}")
        a.e(f"ds_write_b128 v126, {vr(S)}")

    def own_read(k, g, reg, tag, last=False):
        if g == 8:
            base, off = vA8, 0
        else:
            base, off = vF[g >> 3], (k & 1) * BB + (g & 7) * FB
        a.lds(f"ds_read_b128 {vr(reg)}, v{base} offset:{off}", tag)
        if g == 8 and not last:
            a.e(f"v_add_u32 v{vA8}, v{vD[k & 1]}, v{vA8}")

    UNIT = [(s * SEQB, s * SEQB + BB) for s in range(4)] + [(4 * SEQB, TOPB), (5 * SEQB, TOPB + 8192),
            (6 * SEQB, TOPB + 16384), (TOPB + 24576, TOPB + 32768)]
    EA = 96
    ES = []
    R0 = (120, 121, 64)
    vO, vBW = 122, 127
    BND = SPB
    t0, t1, t2, t3 = 108, 109, 110, 111
    ES.append(f"v_and_b32 v{t0}, 15, v{vL}")
    ES.append(f"v_lshrrev_b32 v{t1}, 4, v{vL}")
    ES.append(f"v_lshrrev_b32 v{t2}, 3, v{t0}")
    ES.append(f"s_lshl_b32 s36, s{sWv}, 1")
    ES.append(f"v_add_u32 v{t2}, s36, v{t2}")
    ES.append(f"v_xor_b32 v{t3}, v{t2}, v{t0}")
    ES.append(f"v_and_b32 v{t3}, 7, v{t3}")
    ES.append(f"v_lshlrev_b32 v{t3}, 4, v{t3}")
    ES.append(f"v_lshl_add_u32 v{t3}, v{t2}, 7, v{t3}")
    ES.append(f"v_lshl_add_u32 v{R0[0]}, v{t1}, 11, v{t3}")
    ES.append(f"v_add_u32 v{R0[1]}, 65536, v{R0[0]}")
    ES.append(f"v_add_u32 v{R0[2]}, 131072, v{R0[0]}")
    ES.append(f"s_lshl_b32 s36, s{sWv}, 9")
    ES.append(f"s_add_u32 s36, s36, {BND}")
    ES.append(f"v_lshl_add_u32 v{vBW}, v{t1}, 7, s36")
    ES.append(f"s_lshl_b32 s36, s{sWv}, 4")
    ES.append(f"v_add_u32 v{t0}, s36, v{t0}")
    ES.append(f"v_lshlrev_b32 v{t2}, 6, v{t0}")
    ES.append(f"v_lshl_add_u32 v{t2}, v{t1}, 4, v{t2}")
    ES.append(f"s_mul_i32 s36, s{sCb}, {4*PLO}")
    ES.append(f"s_lshl_b32 s37, s{sT0}, 4")
    ES.append("s_add_u32 s36, s36, s37")
    ES.append(f"v_add_u32 v{t2}, s36, v{t2}")
    ES.append(f"v_mov_b32 v{t3}, {OOB}")
    ES.append(f"v_cmp_gt_u32 vcc, 125, v{t0}")
    k0 = -2.0 * 1.4426950408889634 * 0.7978845608028654
    consts = [-1.0 / 3, 0.25, -5.0, -32.0 / 9, -8.0 / 9, -2.0 / 9, -1.0 / 18, 17.0 / 9, -2.0 / 3, 0.4, -1.0 / 15, -0.2,
              k0 * 0.044715, 1.0]
    KS = [4, 6, 8, 10, 12, 14, 22, 24, 26, 32, 34, 38, 40, 42]
    for sg, cv in zip(KS, consts):
        ES.append(f"s_mov_b32 s{sg}, {f32hex(cv)}")
        ES.append(f"s_mov_b32 s{sg+1}, s{sg}")

    def ex_addr(sbase):
        a.e(f"v_and_b32 v{EA}, 15, v{vL}")
        a.e(f"v_and_b32 v{EA+1}, 7, v{vL}")
        a.e(f"v_lshlrev_b32 v{EA+1}, 4, v{EA+1}")
        a.e(f"v_lshl_add_u32 v{EA}, v{EA}, 7, v{EA+1}")
        a.e(f"v_lshrrev_b32 v{EA+1}, 4, v{vL}")
        a.e(f"v_lshl_add_u32 v{EA}, v{EA+1}, 11, v{EA}")
        a.e(f"v_add_u32 v{EA}, s{sbase}, v{EA}")
        for f in range(1, 8):
            a.e(f"v_xor_b32 v{EA+f}, {f << 4}, v{EA}")

    def mwave(role):
        if role == 1:
            BR, AR, NR = 64, 96, 6
            steps = [("X", g) for g in range(11)]
        else:
            BR, AR, NR = 64, 88, 7
            steps = []
            for g in range(11):
                steps.append(("Y", g))
                if 1 <= g <= 9:
                    steps.append(("Z", g - 1))
        NS = len(steps)

        def bload(k, kind, q):
            if "nob" in EXP and k > 0:
                return
            so = sBo2 if q >> 1 else sBo
            if kind == "X":
                for c in range(2):
                    a.vmem(f"buffer_load_dwordx4 {vr(BR+(q*2+c)*4)}, v{vB}, {sr(sW)}, s{so} offen "
                           f"offset:{(q&1)*2048 + c*1024}", ("B", k, kind, q))
            elif kind == "Y":
                a.vmem(f"buffer_load_dwordx4 {vr(BR+q*4)}, v{vB}, {sr(sW)}, s{so} offen offset:{(q&1)*2048}",
                       ("B", k, kind, q))
            else:
                a.vmem(f"buffer_load_dwordx4 {vr(BR+16+q*4)}, v{vBZ}, {sr(sW)}, s{sBo} offen offset:{q*2048}",
                       ("B", k, kind, q))

        def rd(k, n, last=False):
            kind, g = steps[n]
            reg = AR + 4 * (n % NR)
            if kind == "Z":
                base, off = (vP[0], g * FB6) if g < 6 else (vP[1], (g - 6) * FB6) if g < 8 else (vP[2], 0)
                a.lds(f"ds_read_b128 {vr(reg)}, v{base} offset:{(k & 1)*BB6 + off}", ("A", k, n))
            else:
                own_read(k, g, reg, ("A", k, n), last)

        for i in range(64):
            a.e(f"v_mov_b32 v{ACC+i}, 0")
        if "b0" in EXP:
            a.e("s_barrier")
        for p in range(3):
            a.vmem(f"buffer_load_dwordx4 {vr(S+4*p)}, v{T+p}, {sr(sX)}, 0 offen", "SP")
        a.e(f"s_mov_b32 s{sBo}, 0")
        a.e(f"s_mov_b32 s{sBo2}, 4096")
        for st in steps:
            if st and st[1] >= 7:
                bload(0, st[0], st[1] - 7)
        a.e(f"s_mov_b32 s{sBo}, {CHUNKB}")
        a.e(f"s_mov_b32 s{sBo2}, {CHUNKB + 4096}")
        SPL = os.environ.get("SPL", "0") == "1"
        if not SPL:
            special_rows()
        if role == 2:
            a.e(f"v_and_b32 v{T+3}, 15, v{vL}")
            a.e(f"v_lshlrev_b32 v{T+3}, 2, v{T+3}")
            a.e(f"v_add_u32 v{T+3}, {6*SEQB + 1024}, v{T+3}")
            a.e(f"ds_write_b32 v{T+3}, v{ACC}")
            a.e(f"ds_write_b32 v{T+3}, v{ACC} offset:{BB6}")
        a.e("s_waitcnt lgkmcnt(0)")
        a.e("s_barrier")
        if SPL:
            a.e("s_setprio 3")
            special_rows()
            a.e("s_waitcnt lgkmcnt(0)")
        stamp(7)
        rstamp(12)
        a.e(f"s_mov_b32 s{sCnt}, {N//2}")
        a.e(f"s_setprio {os.environ.get(f'PM{role}', '2')}")

        CO = int(os.environ.get(f"CO{role}", "0" if role == 1 else "5"))
        assert CO < NR
        FM = int("fmaj" in EXP)
        vE = (vD[0], vD[1])

        def period(k, _, last=False):
            if "mst" in EXP and _ == 0:
                stamp(2)
            if "bst" in EXP and _ == 1 and not last:
                a.e("s_memtime s[90:91]")
                a.e("s_waitcnt vmcnt(0) lgkmcnt(0)")
                a.e("s_memtime s[92:93]")
                a.e("s_waitcnt lgkmcnt(0)")
                a.e("s_sub_u32 s92, s92, s90")
                a.e(f"s_add_u32 s{sSt+4}, s{sSt+4}, s92")
                a.e(f"s_max_u32 s{sSt+6}, s{sSt+6}, s92")
                a.vm = []
            for n in range(NR):
                rd(k, n, last)
            pend = []
            fill = []

            def flush(n, cnt):
                while pend and pend[0][0] <= n and cnt > 0:
                    _, h, f = pend.pop(0)
                    t = vE[(h + f) & 1]
                    a.e(f"v_xor_b32 v{t}, {f << 4}, v{vX0[h]}")
                    lds_throttle()
                    a.lds(f"ds_write_b128 v{t}, {vr(ACC + h*32 + f*4)}", "E")
                    cnt -= 1
                    for _i in range(min(12, len(fill))):
                        a.e(fill.pop(0))

            for n, st in enumerate(steps):
                if CO and n == NS - CO and not last:
                    a.wait(lg_all=True)
                    if "mst" in EXP and _ == 0:
                        stamp(3)
                    a.e("s_barrier")
                    if "mst" in EXP and _ == 0:
                        stamp(4)
                kind, g = st
                nt = 2 if kind == "Z" else 4
                qs = [q for q in range(nt) if 0 <= g - q <= 7]
                if FM and kind == "X":
                    if g >= 3:
                        f = g - 3
                        for c in range(2):
                            for q in range(4):
                                a.wait(lg=(("A", k, f + q),), vm=(("B", k, kind, q),))
                                mf(ACC + 32 * c + f * 4, BR + q * 8 + 4 * c, AR + 4 * ((f + q) % NR))
                        if f + NR < NS:
                            rd(k, f + NR, last)
                        if g == 10 and not last:
                            for q in range(4):
                                bload(k + 1, kind, q)
                    qs = []
                else:
                    a.wait(lg=(("A", k, n),), vm=tuple(("B", k, kind, q) for q in qs))
                reg = AR + 4 * (n % NR)
                for q in qs:
                    f = g - q
                    if kind == "X":
                        mf(ACC + f * 4, BR + q * 8, reg)
                        mf(ACC + 32 + f * 4, BR + q * 8 + 4, reg)
                    elif kind == "Y":
                        mf(ACC + f * 4, BR + q * 4, reg)
                    else:
                        mf(ACC + 32 + f * 4, BR + 16 + q * 4, reg)
                if g >= 7 and not last and not (FM and kind == "X"):
                    bload(k + 1, kind, g - 7)
                if n + NR < NS and not (FM and kind == "X"):
                    rd(k, n + NR, last)
                if last:
                    flush(n, int(os.environ.get('FL', '2')))
                    f = g - (nt - 1)
                    if f >= 0:
                        if kind == "X":
                            pend.append((n + 1, 0, f))
                            pend.append((max(n + 1, NS - NR + 1 + 3 * FM), 1, f))
                            pend.sort()
                        else:
                            pend.append((n + 3, 0 if kind == "Y" else 1, f))
                    if kind == "X" and n == NS - NR + 3 * FM:
                        a.wait(lg=(("A", k, NS - 1),))
            if last:
                fill += ES
                for _i in range(8):
                    a.e(fill.pop(0))
                flush(1000, 1000)
                for op in fill:
                    a.e(op)
                return
            a.e(f"s_add_u32 s{sBo}, s{sBo}, {CHUNKB}")
            a.e(f"s_add_u32 s{sBo2}, s{sBo2}, {CHUNKB}")
            assert not a.lg
            if "mst" in EXP and _ == 0:
                stamp(5)
            if not CO:
                a.e("s_barrier")
            if "mst" in EXP and _ == 0:
                stamp(6)

        def period2(k, pos):
            if pos == 1:
                a.e(f"s_sub_u32 s{sCnt}, s{sCnt}, 1")
                a.e(f"s_cmp_eq_u32 s{sCnt}, 0")
                a.e(f"s_cbranch_scc1 L_{name}_mlast{role}")
                state[0] = (list(a.vm), k)
            period(k, pos)

        state = [None]
        body = steady(period2, 2, "nob" not in EXP)
        if "nob" in EXP:
            a.e("s_waitcnt vmcnt(0)")
        a.label(f"L_{name}_mloop{role}")
        a.L.extend(body)
        a.e(f"s_branch L_{name}_mloop{role}")
        a.label(f"L_{name}_mlast{role}")
        a.vm, a.lg = state[0][0], []
        vX0 = (vB, 126)
        a.e(f"v_and_b32 v{vX0[0]}, 15, v{vL}")
        a.e(f"v_and_b32 v{vX0[1]}, 7, v{vL}")
        a.e(f"v_lshlrev_b32 v{vX0[1]}, 4, v{vX0[1]}")
        a.e(f"v_lshl_add_u32 v{vX0[0]}, v{vX0[0]}, 7, v{vX0[1]}")
        a.e(f"v_lshrrev_b32 v{vX0[1]}, 4, v{vL}")
        a.e(f"v_lshl_add_u32 v{vX0[0]}, v{vX0[1]}, 11, v{vX0[0]}")
        if role == 1:
            a.e(f"s_lshl_b32 s36, s{sWv}, 14")
            a.e("s_add_u32 s37, s36, 8192")
        else:
            for sg, tab in ((36, [UNIT[4 + (h >> 1)][h & 1] for h in range(4)]),
                            (37, [UNIT[6 + (h >> 1)][h & 1] for h in range(4)])):
                a.e(f"s_mov_b32 s{sg}, {tab[0]}")
                for h in range(1, 4):
                    a.e(f"s_cmp_eq_u32 s{sH}, {h}")
                    a.e(f"s_cselect_b32 s{sg}, {tab[h]}, s{sg}")
        a.e(f"v_add_u32 v{vX0[1]}, s37, v{vX0[0]}")
        a.e(f"v_add_u32 v{vX0[0]}, s36, v{vX0[0]}")
        if os.environ.get(f"PL{role}"):
            a.e(f"s_setprio {os.environ.get(f'PL{role}')}")
        period(state[0][1], 1, True)
        stamp(8, False)
        rstamp(13)
        a.e("s_setprio 0")
        a.vm, a.lg = [], []

    a.e(f"s_cmp_ge_u32 s{sWv}, 4")
    a.e(f"s_cbranch_scc1 L_{name}_m2")
    vm0 = list(a.vm)
    mwave(1)
    a.e(f"s_branch L_{name}_epi")
    a.label(f"L_{name}_m2")
    a.vm, a.lg = list(vm0), []
    a.e(f"s_mul_i32 s37, s38, {2*FB6}")
    a.e(f"s_add_u32 s37, s37, {6*SEQB}")
    a.e(f"v_add_u32 v{vP[0]}, s37, v{vU}")
    a.e(f"v_add_u32 v{vP[2]}, s37, v{vS_}")
    a.e(f"v_add_u32 v{vP[1]}, {6*SEQB + 6*FB6}, v{vU}")
    a.e("s_cmp_eq_u32 s38, 0")
    a.e(f"s_cbranch_scc1 L_{name}_hh0")
    a.e(f"v_add_u32 v{vP[1]}, {6*SEQB}, v{vS_}")
    a.label(f"L_{name}_hh0")
    a.e("s_lshl_b32 s37, s38, 12")
    a.e("s_add_u32 s37, s37, s43")
    a.e(f"s_add_u32 s37, s37, {6*8192}")
    a.e(f"v_lshl_add_u32 v{vBZ}, v{vL}, 4, s37")
    mwave(2)
    a.e(f"s_branch L_{name}_epi")

    a.label(f"L_{name}_helper")
    a.vm, a.lg = [], []
    a.e("s_setprio 3")
    PB = (0, 32)
    XO = 64
    TMP = 76
    vX = 92
    vW = (96, 97, 98)

    def praw(b, half, p):
        return PB[b] + half * 16 + p * 4

    sXo2 = 27

    def xload(pair, p):
        if KSPLIT:
            half, q = p >> 1, p & 1
            for r in (q, q + 2):
                a.vmem(f"buffer_load_dwordx4 {vr(praw(pair & 1, half, r))}, v{vX+r}, {sr(sX)}, "
                       f"s{sXo2 if half else sXo} offen", ("X", pair))
            return
        for half in range(2):
            a.vmem(f"buffer_load_dwordx4 {vr(praw(pair & 1, half, p))}, v{vX+p}, {sr(sX)}, "
                   f"s{sXo} offen offset:{half*64}", ("X", pair))
        a.e(f"v_add_u32 v{vX+p}, 128, v{vX+p}")

    def uregs(chunk):
        return [praw((chunk >> 1) & 1, chunk & 1, p) for p in range(4)]

    def wr(chunk, i):
        if "nowr" in EXP:
            return
        u = uregs(chunk)
        reg, seq = [(XO, 3), (XO + 4, 4), (XO + 8, 5), (u[0], 0), (u[1], 1), (u[2], 2), (u[3], 6)][i]
        lds_throttle()
        if seq == 6:
            a.lds(f"ds_write_b128 v{vW[2]}, {vr(reg)} offset:{(chunk & 1)*BB6}", "W")
        else:
            a.lds(f"ds_write_b128 v{vW[seq >> 2]}, {vr(reg)} offset:{(seq & 3)*SEQB + (chunk & 1)*BB}", "W")

    def tr_ops(chunk):
        u = uregs(chunk)
        o = [u[1], u[2], XO, XO + 4, XO + 8]
        ops = []
        for d in range(4):
            lo = [TMP + p for p in range(4)]
            hi = [TMP + 8 + p for p in range(4)]
            for p in range(4):
                ops.append(f"v_lshlrev_b32 v{lo[p]}, 16, v{u[p]+d}")
                ops.append(f"v_and_b32 v{hi[p]}, s{sMask}, v{u[p]+d}")
            o1, r1 = eval_ops(lo, [TMP + 4 + i for i in range(4)])
            o2, r2 = eval_ops(hi, [TMP + 12 + i for i in range(4)])
            for x, y in zip(o1, o2):
                ops += [x, y]
            for i in range(5):
                ops.append(f"v_cvt_pk_bf16_f32 v{o[i]+d}, v{r1[i]}, v{r2[i]}")
        if "notr" in EXP:
            ops = ["s_nop 0"] * 8
        return ops

    if KSPLIT:
        a.e("v_lshlrev_b32 v8, 4, v6")
    for p in range(4):
        if KSPLIT:
            haddr(vX + p, 7, 8, p, 9)
        else:
            a.e(f"v_add_u32 v{vX+p}, {p*1024}, v7")
    a.e(f"v_and_b32 v{TMP}, 4, v5")
    a.e(f"v_lshrrev_b32 v{TMP}, 1, v{TMP}")
    a.e(f"v_xor_b32 v{TMP}, v6, v{TMP}")
    a.e(f"v_lshlrev_b32 v{TMP}, 4, v{TMP}")
    a.e(f"v_lshl_add_u32 v{TMP}, v5, 6, v{TMP}")
    a.e(f"s_mov_b32 s{sXo}, 0")
    a.e(f"s_mov_b32 s{sXo2}, {4*PLH}")
    kwait()
    stamp(2)
    P0 = os.environ.get("P0", "0")
    if P0 == "0" or KSPLIT:
        for p in range(4):
            xload(0, p)
            if p == 1 and P0 == "2":
                a.e("s_barrier")
    else:
        for half in range(2):
            for p in range(4):
                a.vmem(f"buffer_load_dwordx4 {vr(praw(0, half, p))}, v{vX+p}, {sr(sX)}, s{sXo} offen offset:{half*64}", ("X", 0))
            if half == 0 and P0 == "2":
                a.e("s_barrier")
        for p in range(4):
            a.e(f"v_add_u32 v{vX+p}, 128, v{vX+p}")
    if P0 != "2" and "b0" in EXP:
        a.e("s_barrier")
    a.e(f"s_mul_i32 s36, s42, {FB}")
    a.e(f"v_add_u32 v{vW[0]}, s36, v{TMP}")
    a.e(f"v_add_u32 v{vW[1]}, {4*SEQB}, v{vW[0]}")
    a.e(f"s_mul_i32 s36, s42, {FB6}")
    a.e(f"s_add_u32 s36, s36, {6*SEQB}")
    a.e(f"v_add_u32 v{vW[2]}, s36, v{TMP}")
    def warm_tail():
        if KSPLIT and "notail" not in EXP:
            add64(a, sW, 30, WS_WF)
            a.e(f"s_mov_b32 s{sW+2}, {262144 + 32768}")
            a.e(f"s_mov_b32 s{sW+3}, 0x00020000")
            a.e("s_lshr_b32 s36, s2, 3")
            a.e("s_lshl_b32 s36, s36, 2")
            a.e(f"s_add_u32 s36, s36, s{sH}")
            a.e("s_mul_i32 s36, s36, 2304")
            a.e(f"v_lshlrev_b32 v1, 4, v{vL}")
            for i in range(3):
                a.e(f"buffer_load_dwordx4 v[4:7], v1, {sr(sW)}, s36 offen offset:{i*1024}")
        if "notw" not in EXP:
            a.e(f"s_cmp_ge_u32 s2, {os.environ.get('TWN', '32')}")
            a.e(f"s_cbranch_scc1 L_{name}_ntw")
            a.e("s_getpc_b64 s[36:37]")
            a.label(f"L_{name}_pc")
            a.e(f"s_lshl_b32 s38, s{sH}, 13")
            a.e(f"s_add_u32 s38, s38, L_{name}_epi-L_{name}_pc")
            a.e(f"v_lshl_add_u32 v2, v{vL}, 7, s38")
            a.e(f"v_min_u32 v2, {0x7fc0de01 + KSPLIT:#x}, v2")
            a.e("v_mov_b32 v3, s37")
            a.e("v_add_co_u32 v2, vcc, s36, v2")
            a.e("s_nop 1")
            a.e("v_addc_co_u32 v3, vcc, 0, v3, vcc")
            a.e("global_load_dword v4, v[2:3], off")
            a.label(f"L_{name}_ntw")

    UNI = KSPLIT and os.environ.get("UNI", "1") == "1"
    if UNI:
        sMA, sMB = 44, 45
        a.e(f"s_mov_b32 s{sK}, 0")
        a.e(f"s_mov_b32 s{sXo}, {8*PLH}")
        a.e(f"s_cmp_ge_u32 s{sWv}, 12")
        a.e(f"s_cselect_b32 s{sMA}, {(1 << N) - 4}, 0")
        a.e(f"s_cselect_b32 s{sMB}, {1 | 1 << (N - 1)}, -1")
        a.e("s_setprio 0")
        a.e(f"s_cbranch_scc1 L_{name}_hloop")
        a.e("s_setprio 1")

        def sync(mask, lbl):
            a.e(f"s_bitcmp1_b32 s{mask}, s{sK}")
            a.e(f"s_cbranch_scc0 {lbl}")
            a.e("s_waitcnt lgkmcnt(0)")
            a.e("s_barrier")
            a.label(lbl)
        a.label(f"L_{name}_hloop")
        for c in range(2):
            a.e("s_waitcnt vmcnt(4)")
            for op in tr_ops(c):
                a.e(op)
            sync(sMA, f"L_{name}_sa{c}")
            a.lg = []
            for i in range(7):
                wr(c, i)
            for r in (0, 2, 1, 3):
                a.e(f"buffer_load_dwordx4 {vr(praw(0, c, r))}, v{vX+r}, {sr(sX)}, s{sXo} offen")
            a.e(f"s_add_u32 s{sXo}, s{sXo}, {4*PLH}")
            sync(sMB, f"L_{name}_sb{c}")
            a.e(f"s_add_u32 s{sK}, s{sK}, 1")
        a.e(f"s_cmp_lt_u32 s{sK}, {N}")
        a.e(f"s_cbranch_scc1 L_{name}_hloop")
        a.e(f"s_cmp_ge_u32 s{sWv}, 12")
        a.e(f"s_cbranch_scc1 L_{name}_end")
        warm_tail()
        a.e(f"s_branch L_{name}_end")
    mark = len(a.L)
    stamp(3)
    a.e(f"s_waitcnt vmcnt({0 if P0 == '0' else 4})")
    stamp(4)
    a.e(f"s_mov_b32 s{sK}, 0")
    a.e(f"s_mov_b32 s{sCnt}, {N//4}")
    a.vm, a.lg = [], []
    if not KSPLIT and os.environ.get("W2", "1") == "3":
        a.e("s_load_dwordx2 s[48:49], s[0:1], 16")
    wr(0, 3)
    wr(0, 6)
    for op in tr_ops(0):
        a.e(op)
    for i in (0, 1, 2, 4, 5):
        wr(0, i)
    stamp(5)
    a.e(f"s_cmp_ge_u32 s{sWv}, 12")
    a.e(f"s_cbranch_scc1 L_{name}_h2")

    def hwave(role):
        SH = 33 * int(os.environ.get(f"SH{role}", "0" if role == 1 else "4"))
        ahead = 2 if SH else 1
        a.vm, a.lg = [], []
        W2E = role == 2 and not KSPLIT and os.environ.get("W2", "1") == "3"
        NF = int(os.environ.get("NF", "2"))
        if KSPLIT:
            a.e(f"s_mov_b32 s{sXo}, {8*PLH}")
            a.e(f"s_mov_b32 s{sXo2}, {12*PLH}")
        X1 = os.environ.get("X1", "1")
        if X1 == "0":
            for p in range(4 if SH else NF):
                xload(1, p)
        a.e("s_waitcnt lgkmcnt(0)")
        stamp(6)
        a.e("s_barrier")
        stamp(7)
        rstamp(12)
        if X1 == "1":
            for p in range(4 if SH else NF):
                xload(1, p)
        PA, PB_ = os.environ.get(f'PH{role}', '11' if role == 1 else '00')
        a.e(f"s_setprio {PA}")
        for op in tr_ops(1)[:SH]:
            a.e(op)
        if role == 1 and os.environ.get("MW", ""):
            a.e(f"s_cmp_lt_u32 s2, {os.environ.get('TWN', '32')}")
            a.e("s_cselect_b32 s55, 1, 99")
            a.e("s_getpc_b64 s[36:37]")
            a.label(f"L_{name}_pc3")
            a.e(f"s_sub_u32 s36, s36, L_{name}_pc3-{name}")
            a.e("s_subb_u32 s37, s37, 0")
            a.e(f"s_lshl_b32 s38, s{sH}, 13")
            a.e(f"v_lshl_add_u32 v102, v{vL}, 7, s38")
            a.e(f"v_min_u32 v102, L_{name}_done-{name}, v102")
            a.e("v_mov_b32 v103, s37")
            a.e("v_add_co_u32 v102, vcc, s36, v102")
            a.e("s_nop 1")
            a.e("v_addc_co_u32 v103, vcc, 0, v103, vcc")
        if W2E:
            a.e("s_lshr_b32 s52, s2, 6")
            a.e("s_lshl_b32 s52, s52, 3")
            a.e("s_bfe_u32 s36, s2, 0x10005")
            a.e("s_add_u32 s52, s52, s36")
            a.e("s_lshl_b32 s52, s52, 17")
            a.e("s_bfe_u32 s36, s2, 0x30002")
            a.e("s_lshl_b32 s36, s36, 1")
            a.e(f"s_and_b32 s37, s{sH}, 1")
            a.e("s_add_u32 s36, s36, s37")
            a.e("s_lshl_b32 s36, s36, 13")
            a.e("s_add_u32 s52, s52, s36")
            a.e("s_and_b32 s36, s2, 3")
            a.e("s_lshl_b32 s36, s36, 1")
            a.e(f"s_lshr_b32 s37, s{sH}, 1")
            a.e("s_add_u32 s36, s36, s37")
            a.e("s_lshl_b32 s36, s36, 6")
            a.e("s_add_u32 s52, s52, s36")
            a.e(f"s_mov_b32 s50, {31*131072}")
            a.e("s_mov_b32 s51, 0x00020000")
            a.e(f"v_lshrrev_b32 v99, 4, v{vL}")
            a.e("v_lshlrev_b32 v99, 11, v99")
            a.e(f"v_and_b32 v100, 15, v{vL}")
            a.e("v_lshl_add_u32 v99, v100, 2, v99")

        def w2load(pos):
            a.e(f"s_cmp_lg_u32 s{sCnt}, {os.environ.get('W2I', '3')}")
            a.e(f"s_cbranch_scc1 L_{name}_w2s{pos}")
            for e in range(4):
                a.e(f"buffer_load_dword v{100+pos*4+e}, v99, s[48:51], s52 offen offset:{e*512}")
            a.e(f"s_add_u32 s52, s52, {2*131072}")
            a.label(f"L_{name}_w2s{pos}")
        VPF = int(os.environ.get("VPF", "0")) if role == 1 and not KSPLIT and XL == 3 else 0
        if VPF:
            a.e(f"s_lshl_b32 s36, s{sCb}, 6")
            a.e(f"s_lshl_b32 s37, s{sH}, 3")
            a.e("s_add_u32 s36, s36, s37")
            a.e("s_lshl_b32 s36, s36, 10")
            a.e("s_add_u32 s36, s36, s41")
            a.e(f"s_add_u32 s36, s36, {VPF*128}")
            a.e(f"v_and_b32 v100, 7, v{vL}")
            a.e("v_lshl_add_u32 v100, v100, 10, s36")

        def vpf(k):
            a.e(f"s_cmp_lt_u32 s{sK}, {N - 2*VPF}")
            a.e(f"s_cselect_b32 s36, 0, {OOB}")
            a.vmem(f"buffer_load_dword v99, v100, {sr(sX)}, s36 offen", "PF")
            a.e(f"v_add_u32 v100, {(128 - 32768) & 0xffffffff if k & 1 else 32768}, v100")
        XD = {(0, 1): "0.2,0.4,0.2,0.4", (0, 2): "0.3,0.5,0.3,0.5", (1, 1): "1,1,1,1", (1, 2): "0,0,0,0"}
        XP = [float(x) for x in os.environ.get(f"XP{1 + int(KSPLIT)}{role}", XD[int(KSPLIT), role]).split(",")]

        def period(k, pos, last=False):
            pair = (k >> 1) + 2 if SH else (k + 3) >> 1
            first = not (k & 1) if SH else (k & 1)
            if pos == 4 - ahead and not last:
                a.e(f"s_cmp_eq_u32 s{sCnt}, 1")
                a.e(f"s_cbranch_scc1 L_{name}_hlast{role}")
            if "hst" in EXP and pos == 1:
                stamp(2)
            V1 = tr_ops(k + 1)[SH:]
            V2 = [] if last else tr_ops(k + 2)[:SH]
            V = V1 + V2
            n = len(V)
            ev = {}

            def at(i, f):
                ev.setdefault(max(0, min(int(i), n)), []).append(f)

            def stores():
                if "hst" in EXP and pos == 1:
                    stamp(3)
                for i in range(7):
                    wr(k + 1, i)
                if "hst" in EXP and pos == 1:
                    stamp(4)
                if PA != PB_:
                    a.e(f"s_setprio {PB_}")
            if PA != PB_:
                a.e(f"s_setprio {PA}")
            if VPF and not last:
                at(float(os.environ.get("VPP", "1.0")) * n, lambda: vpf(k))
            at(len(V1), stores)
            if W2E and not last:
                at(len(V1) + 1, lambda: w2load(pos))
            if not last:
                if not KSPLIT:
                    a.e(f"s_cmp_lt_u32 s{sK}, {N - 2 - ahead}")
                    a.e(f"s_cselect_b32 s{sXo}, 0, {OOB}")
                elif first:
                    a.e(f"s_add_u32 s{sXo}, s{sXo}, {8*PLH}")
                    a.e(f"s_add_u32 s{sXo2}, s{sXo2}, {8*PLH}")
                at(len(V1) if SH else 0, lambda: a.wait(vm=(("X", (k + ahead) >> 1),)))
                if "nox" not in EXP:
                    for p in (range(NF) if first else range(NF, 4)):
                        w = len(V1) + XP[p] * SH if SH and first else XP[p] * n
                        at(w, lambda p=p: xload(pair, p))
            for i in range(n + 1):
                for f in ev.get(i, []):
                    f()
                if i < n:
                    a.e(V[i])
            MW = os.environ.get("MW", "")
            if role == 1 and MW and pos == int(MW) and not last:
                a.e(f"s_cmp_lg_u32 s{sCnt}, s55")
                a.e(f"s_cbranch_scc1 L_{name}_nmw")
                a.e("global_load_dword v101, v[102:103], off")
                a.label(f"L_{name}_nmw")
            if not last:
                a.e(f"s_add_u32 s{sK}, s{sK}, 1")
            if "hst" in EXP and pos == 1:
                stamp(5)
            a.e("s_waitcnt lgkmcnt(0)")
            a.lg = []
            a.e("s_barrier")
            if "hst" in EXP and pos == 1:
                stamp(6)

        body = steady(period, 4, "nox" not in EXP)
        a.label(f"L_{name}_hloop{role}")
        a.L.extend(body)
        a.e(f"s_sub_u32 s{sCnt}, s{sCnt}, 1")
        a.e(f"s_branch L_{name}_hloop{role}")
        a.label(f"L_{name}_hlast{role}")
        a.vm, a.lg = [], []

        def last_period():
            vm = a.vm
            a.vm, a.lg = [], []
            if SH:
                a.e(f"s_mov_b32 s{sMask}, 0xffff0000")
                period(2, 2, True)
            a.vm = vm
        if role == 1 or KSPLIT or W2P:
            last_period()
        else:
            assert SH
            W2L = os.environ.get("W2L", "0") == "1"
            if W2L:
                last_period()
            a.e("s_waitcnt vmcnt(0)")
            a.e(f"s_mov_b32 s58, s{sWv}")
            a.e(f"s_lshl_b32 s20, s2, 2")
            a.e(f"s_add_u32 s20, s20, s{sH}")
            a.e(f"v_mov_b32 v1, v{vL}")
            if W2E:
                wprep2(a, 16, WS_W2P, last_period, pre=100)
            elif os.environ.get("W2", "1") == "2":
                wprep2(a, 16, WS_W2P, last_period, LB=False)
            else:
                wprep(a, 16, WS_W2P, True, barrier=None if W2L else last_period)
            a.e(f"s_mov_b32 s{sWv}, s58")
        if role == 1:
            warm_tail()
        stamp(8)
        rstamp(13)
        a.e(f"s_branch L_{name}_end")

    hwave(1)
    a.label(f"L_{name}_h2")
    hwave(2)
    if UNI:
        del a.L[mark:]

    a.label(f"L_{name}_epi")
    K = [sr(x, 2) for x in KS]
    a.e("s_waitcnt lgkmcnt(0)")
    a.e("s_barrier")
    if "est" in EXP:
        stamp(2)
    a.e(f"v_cndmask_b32 v{vO}, v{t3}, v{t2}, vcc")

    def P(c, s, r=0):
        return c * 32 + s * 4 + r
    Y = 64
    TB = 96
    ELS = (0, 1, 2)
    for c in range(2):
        for s_ in range(8):
            if c == 1 and s_ == 7:
                a.e("s_waitcnt lgkmcnt(7)")
            u = UNIT[s_][c]
            a.e(f"ds_read_b128 {vr(P(c, s_))}, v{R0[u >> 16]} offset:{u & 0xffff}")

    def p2(x):
        return vr(x, 2)

    def padd(d, x, y):
        return f"v_pk_add_f32 {p2(d)}, {p2(x)}, {p2(y)}"

    def psub(d, x, y):
        return f"v_pk_add_f32 {p2(d)}, {p2(x)}, {p2(y)} neg_lo:[0,1] neg_hi:[0,1]"

    def pfma(d, x, k, y, neg=False):
        return f"v_pk_fma_f32 {p2(d)}, {p2(x)}, {k}, {p2(y)}" + (" neg_lo:[0,0,1] neg_hi:[0,0,1]" if neg else "")

    def interp(c):
        seq = []
        for r in (0, 2):
            E0, A, B, C, D, Q, E6, E6b = (P(c, x, r) for x in range(8))
            y = [Y + ph * 8 + c * 4 + r for ph in range(4)]
            S1, G = E6, C
            seq.append([
                padd(y[3], E6, E6b),
                padd(S1, A, B),
                psub(A, A, B),
                padd(y[1], C, D),
                psub(G, C, D),
                pfma(y[1], S1, K[0], y[1]),
                pfma(Q, E0, K[3], Q),
                pfma(y[1], E0, K[1], y[1]),
                psub(S1, S1, E0),
                pfma(y[1], y[3], K[2], y[1]),
                psub(S1, S1, y[3]),
                pfma(Q, y[3], K[6], Q),
                psub(B, S1, y[1]),
                pfma(Q, y[1], K[5], Q),
                f"v_pk_mul_f32 {p2(y[2])}, {p2(G)}, {K[9]}",
                pfma(Q, B, K[4], Q),
                pfma(y[2], A, K[10], y[2]),
                pfma(y[0], A, K[7], Q, True),
                pfma(y[0], G, K[8], y[0]),
                pfma(y[2], y[0], K[11], y[2]),
                psub(A, A, y[0]),
                psub(A, A, y[2]),
            ])
        for ops in zip(*seq):
            for op in ops:
                a.e(op)

    a.e("s_waitcnt lgkmcnt(8)")
    interp(0)
    a.e("s_waitcnt lgkmcnt(0)")
    interp(1)
    if "est" in EXP:
        stamp(3)
    a.e("s_mov_b32 s36, 0x00010001")
    a.e("s_mov_b32 s37, 0x00010001")
    a.e("s_mov_b64 exec, s[36:37]")
    for k in range(3):
        for c in range(2):
            a.e(f"ds_write_b128 v{vBW}, {vr(P(c, ELS[k]))} offset:{(k*2+c)*16}")
    a.e("s_mov_b64 exec, -1")

    def finish(ph):
        ys = [Y + ph * 8 + i for i in range(8)]
        if not KSPLIT:
            ts = [16 + (ph & 1) * 8 + i for i in range(8)]
            ev = list(zip(ys[::2], ts[::2]))
            for y, t in ev:
                a.e(f"v_pk_mul_f32 {p2(t)}, {p2(y)}, {p2(y)}")
            for y, t in ev:
                a.e(pfma(t, t, K[12], 44))
            for y, t in ev:
                a.e(f"v_pk_mul_f32 {p2(t)}, {p2(t)}, {p2(y)}")
            for t in ts:
                a.e(f"v_exp_f32 v{t}, v{t}")
            for y, t in ev:
                a.e(f"v_pk_add_f32 {p2(t)}, {p2(t)}, {K[13]}")
            for t in ts:
                a.e(f"v_rcp_f32 v{t}, v{t}")
            for y, t in ev:
                a.e(f"v_pk_mul_f32 {p2(y)}, {p2(y)}, {p2(t)}")
        o = 48 + ph * 4
        for r in range(4):
            a.e(f"v_cvt_pk_bf16_f32 v{o+r}, v{ys[r]}, v{ys[4+r]}")
        so = ph * PLF if KSPLIT else ((ph + 3) & 3) * PLH + ((ph + 7) >> 2) * 64
        a.e(f"s_mov_b32 s44, {so}")
        a.e(f"buffer_store_dwordx4 {vr(o)}, v{vO}, {sr(sO)}, s44 offen{NTF if KSPLIT else NTH}")

    a.e(f"v_mov_b32 v44, {f32hex(k0)}")
    a.e("v_mov_b32 v45, v44")
    finish(0)
    a.e("s_waitcnt lgkmcnt(0)")
    a.e("s_barrier")
    if "est" in EXP:
        stamp(4)
    for i in range(6):
        a.e(f"ds_read_b128 {vr(TB+4*i)}, v{vBW} offset:{512 + i*16}")
    for ph in range(1, 4):
        a.e(f"s_waitcnt lgkmcnt({6 - 2*ph})")
        for c in range(2):
            for r in range(4):
                i = (ph - 1) * 8 + c * 4 + r
                a.e(f"v_mov_b32_dpp v{TB+i}, v{P(c, ELS[ph-1], r)} row_shl:1 row_mask:0xf bank_mask:0xf")
        for i in range(0, 8, 2):
            a.e(padd(Y + ph * 8 + i, Y + ph * 8 + i, TB + (ph - 1) * 8 + i))
        finish(ph)
    if "est" in EXP:
        stamp(5)
    RB = os.environ.get("RB", "00")[int(KSPLIT)]
    if RB != "0":
        if not KSPLIT:
            a.e(f"s_cmp_ge_u32 s{sCb}, {RB}")
            a.e(f"s_cbranch_scc1 L_{name}_end")
        a.e("s_waitcnt vmcnt(0)")
        for ph in range(4):
            so = ph * PLF if KSPLIT else ((ph + 3) & 3) * PLH + ((ph + 7) >> 2) * 64
            a.e(f"s_mov_b32 s44, {so}")
            a.e(f"buffer_load_dword v0, v{vO}, {sr(sO)}, s44 offen")
    a.label(f"L_{name}_end")
    if STAMP:
        a.e("s_waitcnt vmcnt(0)")
        stamp(9, False)
        a.e(f"s_memrealtime s[{sSt+22}:{sSt+23}]")
        a.e(f"s_cmp_lg_u32 s{sWv}, {os.environ.get('SW', '0')}")
        a.e(f"s_cbranch_scc1 L_{name}_done")
        a.e("s_lshl_b32 s36, s2, 7")
        a.e(f"s_add_u32 s36, s36, {WS_STAMP + cfg['stamp']*0x10000}")
        add64(a, 40, 30, "s36")
        a.e("s_mov_b32 s42, 128")
        a.e("s_mov_b32 s43, 0x00020000")
        a.e("s_waitcnt lgkmcnt(0)")
        a.e("v_mov_b32 v8, 0")
        for i in range(28):
            a.e(f"v_mov_b32 v0, s{sSt+i}")
            a.e(f"buffer_store_dword v0, v8, s[40:43], 0 offen offset:{4*i}")
    a.label(f"L_{name}_done")
    a.e("s_endpgm")
    if "nohf" not in EXP:
        L = a.L
        b = L.index(f"    s_cbranch_scc1 L_{name}_helper")
        h0, h1 = L.index(f"L_{name}_helper:"), L.index(f"L_{name}_epi:")
        a.L = L[:b] + [f"    s_cbranch_scc0 L_{name}_mw"] + L[h0:h1] + [f"L_{name}_mw:"] + L[b + 1:h0] + L[h1:]
    return a.L, TOPB + 40960, 128


CONV1 = dict(tin=16000, tout=8000, nchunk=16, ksplit=False, in_arg=0, in_off=0, w_off=WS_W1P, out_off=WS_H, stamp=0)
CONV2 = dict(tin=8000, tout=4000, nchunk=8, ksplit=True, in_arg=72, in_off=WS_H, w_off=WS_W2P, out_off=WS_FP, stamp=1)

HEADER = f"""; Kernarg layout for this problem (80 bytes, ptrs only, base s[0:1]):
"""


def main():
    ks = [("prep_kernel", 256, 640 if W2P else 384) + prep_kernel("prep_kernel"),
          ("conv1_kernel", 256, 1024) + conv_kernel("conv1_kernel", CONV1),
          ("conv2_kernel", 256, 1024) + conv_kernel("conv2_kernel", CONV2)]
    ks = joint_kernels(ks)
    out = HEADER
    for nm, grid, block, code, lds, vg in ks:
        out += f"; @launch kernel={nm} grid=({grid},1,1) block=({block},1,1) lds={lds}\n"
    out += '.amdgcn_target "amdgcn-amd-amdhsa--gfx950"\n.text\n'
    for nm, grid, block, code, lds, vg in ks:
        if "noalign" not in EXP:
            code = align8(code)
        out += f".globl {nm}\n.p2align 8\n.type {nm},@function\n" + "\n".join(code) + "\n"
    out += '.section .rodata,"a"\n'
    for nm, grid, block, code, lds, vg in ks:
        out += ".p2align 6\n" + kd(nm, vg)
    out = out.replace("0x7fc0de00", "L_joint_kernel_done-L_prep_kernel_pc")
    out = out.replace("0x7fc0de01", "L_conv2_kernel_done-L_conv1_kernel_pc")
    out = out.replace("0x7fc0de02", "L_joint_kernel_done-L_conv2_kernel_pc")
    path = sys.argv[1] if len(sys.argv) > 1 else "standalone__seq2seq_rnn_t_joint__speech.s"
    open(path, "w").write(out)


if __name__ == "__main__":
    main()
```

```python
import os
import sys

from asmlib import Asm, vr, sr, kd, f32hex, align8
from gen13_joint import small_head, small_tail, joint_kernels

EXP = os.environ.get("EXP", "").split(",")

WS_W1P = 0x0000000
WS_W2P = 0x0900000
WS_H = 0x1200000
WS_FP = 0x1A00000
WS_FPS = 0x800000
WS_WF = 0x2A00000
WS_STAMP = 0x3000000

CHUNKB = 7 * 8192
FB = 1024
BB = 8 * FB
SEQB = 2 * BB
FB6 = 1088
BB6 = 8 * FB6
SPB = 6 * SEQB + 2 * BB6
TOPB = SPB + 6144
OOB = 0x7f000000
W2P = os.environ.get('W2', '1') == '0'
LOCAL = 'local' in EXP
PLH, PLF = int(os.environ.get('PLH', 131072)), int(os.environ.get('PLF', 65536))
NTW, NTH, NTF = ({"0": "", "1": " nt", "2": " sc1", "3": " sc0 sc1"}[c] for c in os.environ.get("NT", "222"))


def add64(a, d, lo, off):
    a.e(f"s_add_u32 s{d}, s{lo}, {off}")
    a.e(f"s_addc_u32 s{d+1}, s{lo+1}, 0")


def eval_ops(c, t):
    e1, o1, e2, o2 = t
    ops = [f"v_add_f32 v{e1}, v{c[0]}, v{c[2]}",
           f"v_add_f32 v{o1}, v{c[1]}, v{c[3]}",
           f"v_fma_f32 v{e2}, v{c[2]}, 4.0, v{c[0]}",
           f"v_fma_f32 v{o2}, v{c[3]}, 4.0, v{c[1]}",
           f"v_add_f32 v{c[1]}, v{e1}, v{o1}",
           f"v_sub_f32 v{c[2]}, v{e1}, v{o1}",
           f"v_fma_f32 v{c[3]}, v{o2}, 2.0, v{e2}",
           f"v_fma_f32 v{e2}, v{o2}, -2.0, v{e2}",
           f"v_fmamk_f32 v{e1}, v{c[0]}, {f32hex(15.0)}, v{e2}",
           f"v_fmamk_f32 v{e1}, v{o1}, {f32hex(10.0)}, v{e1}"]
    return ops, [c[1], c[2], c[3], e2, e1]


def wprep(a, karg, wsoff, ws_loaded, barrier=False, extra=None, small=None, mid=None):
    a.vm, a.lg = [], []
    a.e(f"s_load_dwordx2 s[8:9], s[0:1], {karg}")
    if not ws_loaded:
        a.e("s_load_dwordx2 s[30:31], s[0:1], 72")
    a.e("s_lshr_b32 s22, s20, 8")
    a.e("s_bfe_u32 s23, s20, 0x40004")
    a.e("s_bfe_u32 s24, s20, 0x30001")
    a.e("s_and_b32 s21, s20, 1")
    a.e("v_lshrrev_b32 v2, 4, v1")
    a.e("v_lshlrev_b32 v2, 12, v2")
    a.e("v_and_b32 v3, 15, v1")
    a.e("v_lshl_add_u32 v2, v3, 2, v2")
    a.e("s_lshl_b32 s26, s22, 3")
    a.e("s_lshr_b32 s27, s23, 3")
    a.e("s_add_u32 s26, s26, s27")
    a.e("s_lshl_b32 s26, s26, 17")
    a.e("s_and_b32 s27, s23, 7")
    a.e("s_lshl_b32 s27, s27, 14")
    a.e("s_add_u32 s26, s26, s27")
    a.e("s_lshl_b32 s27, s24, 6")
    a.e("s_add_u32 s26, s26, s27")
    a.e(f"s_mov_b32 s10, {31*131072}")
    a.e("s_mov_b32 s11, 0x00020000")
    if small:
        small_select(a)
        a.e("s_add_u32 s37, s26, s5")
        a.e("s_add_u32 s38, s37, s5")
        a.e("s_add_u32 s39, s38, s5")
    else:
        for p in range(1, 4):
            a.e(f"s_add_u32 s{36+p}, s26, {2*131072*p}")
    a.e("s_waitcnt lgkmcnt(0)")
    if small:
        small_ptr(a)
        small_g(a, "prep_kernel")
    R = 16
    for e2 in range(4):
        for p in range(4):
            for e in (2 * e2, 2 * e2 + 1):
                a.vmem(f"buffer_load_dword v{R+p*8+e}, v2, s[8:11], s{36+p if p else 26} offen offset:{e*512}", ("L", e2))
    if small:
        a.e("s_cmp_lt_u32 s3, 12")
        a.e(f"s_cbranch_scc1 {small}")
    if mid:
        mid()
    add64(a, 12, 30, wsoff)
    a.e(f"s_mov_b32 s14, {8*16*CHUNKB}")
    a.e("s_mov_b32 s15, 0x00020000")
    a.e("v_lshlrev_b32 v4, 4, v1")
    a.e("s_lshl_b32 s27, s24, 4")
    a.e("s_add_u32 s27, s27, s23")
    a.e(f"s_mul_i32 s27, s27, {CHUNKB}")
    a.e("s_lshl_b32 s28, s22, 11")
    a.e("s_add_u32 s27, s27, s28")
    a.e("s_lshl_b32 s28, s21, 10")
    a.e("s_add_u32 s27, s27, s28")
    a.e("s_cmp_eq_u32 s21, 0")
    a.e("s_mov_b32 s32, 0x07060302")
    a.e("s_cselect_b32 s32, 0x05040100, s32")
    a.e("s_mov_b32 s33, 0x03020c0c")
    a.e("s_cselect_b32 s33, 0x01000c0c, s33")
    a.e(f"s_mov_b32 s35, {f32hex(1.0/24)}")
    a.e(f"s_mov_b32 s36, {f32hex(1.0/72)}")
    if barrier:
        barrier()
    OUT = 48
    T = 76
    scale = ("0.5", "0.5", "s35", "s35", "s36")
    for e2 in range(4):
        a.wait(vm=(("L", e2),))
        if extra and e2 == int(os.environ.get("XT", "3")):
            extra()
        for p, seq in ((0, 6), (3, 0)):
            a.e(f"v_perm_b32 v{OUT+seq*4+e2}, v{R+p*8+2*e2+1}, v{R+p*8+2*e2}, s32")
        res, lists = [], []
        for e in range(2):
            cf = [T + e * 8 + i for i in range(4)]
            ops = [f"v_perm_b32 v{cf[i]}, v{cf[i]}, v{R + (3 - i) * 8 + 2 * e2 + e}, s33" for i in range(4)]
            o, rr = eval_ops(cf, [T + e * 8 + 4 + i for i in range(4)])
            ops += o + [f"v_mul_f32 v{r}, {sc}, v{r}" for r, sc in zip(rr, scale)]
            res.append(rr)
            lists.append(ops)
        for x, y in zip(*lists):
            a.e(x)
            a.e(y)
        for i in range(5):
            a.e(f"v_cvt_pk_bf16_f32 v{OUT+(1+i)*4+e2}, v{res[0][i]}, v{res[1][i]}")
    for seq in (6, 0, 1, 2, 3, 4, 5):
        a.e(f"s_add_u32 s28, s27, {seq*8192}")
        a.e(f"buffer_store_dwordx4 {vr(OUT+seq*4)}, v4, s[12:15], s28 offen{NTW}")


def wprep2(a, karg, wsoff, barrier, LB=True, extra=None, pre=None, mid=None, late=None):
    a.vm, a.lg = [], []
    if not pre:
        a.e(f"s_load_dwordx2 s[8:9], s[0:1], {karg}")
    a.e("s_lshr_b32 s22, s20, 8")
    a.e("s_bfe_u32 s23, s20, 0x40004")
    a.e("s_bfe_u32 s24, s20, 0x30001")
    a.e("s_and_b32 s21, s20, 1")
    a.e("v_lshrrev_b32 v5, 4, v1")
    a.e("v_lshlrev_b32 v2, 11, v5")
    a.e("v_and_b32 v3, 15, v1")
    a.e("v_lshl_add_u32 v2, v3, 2, v2")
    a.e("s_lshl_b32 s26, s22, 3")
    a.e("s_lshr_b32 s27, s23, 3")
    a.e("s_add_u32 s26, s26, s27")
    a.e("s_lshl_b32 s26, s26, 17")
    a.e("s_and_b32 s27, s23, 7")
    a.e("s_lshl_b32 s27, s27, 1")
    a.e("s_add_u32 s27, s27, s21")
    a.e("s_lshl_b32 s27, s27, 13")
    a.e("s_add_u32 s26, s26, s27")
    a.e("s_lshl_b32 s27, s24, 6")
    a.e("s_add_u32 s26, s26, s27")
    a.e(f"s_mov_b32 s10, {31*131072}")
    a.e("s_mov_b32 s11, 0x00020000")
    for p in range(1, 4):
        a.e(f"s_add_u32 s{36+p}, s26, {2*131072*p}")
    a.e(f"s_mov_b32 s14, {8*16*CHUNKB}")
    a.e("s_mov_b32 s15, 0x00020000")
    a.e("v_lshrrev_b32 v4, 1, v5")
    a.e("v_lshlrev_b32 v4, 8, v4")
    a.e("v_lshl_add_u32 v4, v3, 4, v4")
    a.e("v_and_b32 v5, 1, v5")
    a.e("v_lshl_add_u32 v4, v5, 10, v4")
    a.e("s_lshl_b32 s27, s24, 4")
    a.e("s_add_u32 s27, s27, s23")
    a.e(f"s_mul_i32 s27, s27, {CHUNKB}")
    a.e("s_lshl_b32 s28, s22, 11")
    a.e("s_add_u32 s27, s27, s28")
    a.e("s_lshl_b32 s28, s21, 9")
    a.e("s_add_u32 s27, s27, s28")
    a.e("s_mov_b32 s32, 0x05040100")
    a.e("s_mov_b32 s33, 0x07060302")
    a.e("s_mov_b32 s34, 0xffff0000")
    a.e(f"s_mov_b32 s35, {f32hex(1.0/24)}")
    a.e(f"s_mov_b32 s40, {f32hex(1.0/72)}")
    a.e("s_waitcnt lgkmcnt(0)")
    if W2P and karg == 8:
        a.e("s_cmp_eq_u32 s29, 1")
        a.e("s_cselect_b32 s8, s48, s8")
        a.e("s_cselect_b32 s9, s49, s9")
        a.e(f"s_mul_i32 s29, s29, {WS_W2P - WS_W1P}")
        wsoff = "s29"
    if LB:
        barrier()
    R, OUT, T = (pre, 16, 76) if pre else (16, 76, 104)
    for e2 in range(0 if pre else 2):
        for p in range(4):
            for e in (2 * e2, 2 * e2 + 1):
                a.vmem(f"buffer_load_dword v{R+p*4+e}, v2, s[8:11], s{36+p if p else 26} offen offset:{e*512}", ("L", e2))
    if mid:
        mid()
    if not LB:
        barrier()
    add64(a, 12, 30, wsoff)
    scale = ("0.5", "0.5", "s35", "s35", "s40")

    def out(seq, c):
        return OUT + (seq * 2 + c) * 2
    for e2 in range(2):
        a.wait(vm=(("L", e2),))
        if extra and e2 == 1:
            extra()
        for c in range(2):
            for p, seq in ((0, 6), (3, 0)):
                a.e(f"v_perm_b32 v{out(seq, c)+e2}, v{R+p*4+2*e2+1}, v{R+p*4+2*e2}, s{32+c}")
            res, lists = [], []
            for e in range(2):
                cf = [T + e * 8 + i for i in range(4)]
                src = [R + (3 - i) * 4 + 2 * e2 + e for i in range(4)]
                ops = [f"v_and_b32 v{d}, s34, v{x}" if c else f"v_lshlrev_b32 v{d}, 16, v{x}" for d, x in zip(cf, src)]
                o, rr = eval_ops(cf, [T + e * 8 + 4 + i for i in range(4)])
                ops += o + [f"v_mul_f32 v{r}, {sc}, v{r}" for r, sc in zip(rr, scale)]
                res.append(rr)
                lists.append(ops)
            for x, y in zip(*lists):
                a.e(x)
                a.e(y)
            for i in range(5):
                a.e(f"v_cvt_pk_bf16_f32 v{out(1+i, c)+e2}, v{res[0][i]}, v{res[1][i]}")
            if late == e2 * 2 + c + 1:
                a.e("s_waitcnt lgkmcnt(0)")
                a.e("s_barrier")
    for seq in (6, 0, 1, 2, 3, 4, 5):
        for d in range(2):
            a.e(f"v_permlane16_swap_b32 v{out(seq, 0)+d}, v{out(seq, 1)+d}")
        a.e(f"s_add_u32 s28, s27, {seq*8192}")
        a.e(f"buffer_store_dwordx4 {vr(out(seq, 0))}, v4, s[12:15], s28 offen{NTW}")


def prep_kernel(name):
    a = Asm()
    NWG = 256
    a.label(name)
    a.e(f"s_cmp_ge_u32 s2, {NWG}")
    a.e(f"s_cbranch_scc1 L_{name}_done")
    CW = os.environ.get("CW", "late")
    CWN = int(os.environ.get("CWN", "32"))

    def code_warm():
        a.e(f"s_cmp_lt_u32 s3, {256 - CWN}")
        a.e(f"s_cbranch_scc1 L_{name}_ncw")
        a.e("s_getpc_b64 s[62:63]")
        a.label(f"L_{name}_pc")
        a.e("s_and_b32 s64, s3, 8")
        a.e("s_lshl_b32 s64, s64, 12")
        a.e("v_lshlrev_b32 v120, 7, v0")
        a.e("v_add_u32 v120, s64, v120")
        a.e(f"v_min_u32 v120, 0x7fc0de00, v120")
        a.e("v_mov_b32 v121, s63")
        a.e("v_add_co_u32 v120, vcc, s62, v120")
        a.e("s_nop 1")
        a.e("v_addc_co_u32 v121, vcc, 0, v121, vcc")
        a.e("global_load_dword v122, v[120:121], off")
        a.label(f"L_{name}_ncw")
        return 0

    def x_warm():
        XW = int(os.environ.get("XW", "0"))
        if XW:
            a.e("s_and_b32 s64, s3, 7")
            a.e("s_lshr_b32 s65, s2, 3")
            a.e("s_lshr_b32 s66, s65, 3")
            a.e("s_lshl_b32 s64, s64, 2")
            a.e("s_add_u32 s64, s64, s66")
            a.e("s_mul_i32 s64, s64, 512000")
            a.e("s_and_b32 s65, s65, 7")
            a.e("s_lshl_b32 s65, s65, 2")
            a.e("s_and_b32 s66, s20, 3")
            a.e("s_add_u32 s65, s65, s66")
            a.e("s_lshl_b32 s65, s65, 14")
            a.e("s_add_u32 s64, s64, s65")
            a.e("s_sub_u32 s64, s64, 7680")
            a.e("v_lshrrev_b32 v120, 2, v1")
            a.e("v_lshlrev_b32 v120, 10, v120")
            a.e(f"v_and_b32 v121, {XW - 1}, v1")
            a.e("v_lshl_add_u32 v120, v121, 7, v120")
            a.e("v_add_u32 v120, s64, v120")
            a.e("s_mov_b32 s68, s44")
            a.e("s_mov_b32 s69, s45")
            a.e(f"s_mov_b32 s70, {2*16000*512}")
            a.e("s_mov_b32 s71, 0x00020000")
            a.vmem("buffer_load_dword v123, v120, s[68:71], 0 offen", "XW")
    a.e("s_mov_b32 s3, s2")
    if CW == "early":
        code_warm()
    a.e("s_load_dwordx16 s[44:59], s[0:1], 0")
    a.e("s_load_dwordx2 s[30:31], s[0:1], 72")
    if "stamp" in EXP:
        a.e("s_memrealtime s[60:61]")
    a.e("v_readfirstlane_b32 s40, v0")
    a.e("s_lshr_b32 s40, s40, 6")
    a.e("v_and_b32 v1, 63, v0")
    if W2P:
        a.e("s_sub_u32 s40, s40, 2")
        a.e("s_lshr_b32 s29, s40, 2")
        a.e(f"s_cbranch_scc0 L_{name}_w")
        a.e("s_cmp_lt_u32 s40, 8")
        a.e(f"s_cbranch_scc1 L_{name}_w")
        a.e("s_add_u32 s40, s40, 6")
    else:
        a.e("s_cmp_lt_u32 s40, 4")
        a.e(f"s_cbranch_scc1 L_{name}_w")
    small_head(a, name)
    a.label(f"L_{name}_w")
    if W2P:
        a.e("s_and_b32 s40, s40, 3")
    a.e("s_lshl_b32 s21, s2, 2")
    a.e("s_add_u32 s20, s40, s21")
    wprep2(a, 8, WS_W1P, lambda: a.e("s_barrier"), False, code_warm if CW == "late" else None, mid=x_warm)
    if "stamp" in EXP:
        a.e("s_waitcnt vmcnt(0)")
        a.e("s_memrealtime s[62:63]")
        a.e("s_lshl_b32 s36, s2, 7")
        a.e(f"s_add_u32 s36, s36, {WS_STAMP + 3*0x10000}")
        add64(a, 40, 30, "s36")
        a.e("s_mov_b32 s42, 128")
        a.e("s_mov_b32 s43, 0x00020000")
        a.e("s_waitcnt lgkmcnt(0)")
        a.e("v_mov_b32 v8, 0")
        a.e("v_mov_b32 v0, 1")
        a.e("buffer_store_dword v0, v8, s[40:43], 0 offen")
        for i in range(4):
            a.e(f"v_mov_b32 v0, s{60+i}")
            a.e(f"buffer_store_dword v0, v8, s[40:43], 0 offen offset:{80+4*i}")
    a.label(f"L_{name}_done")
    a.e("s_endpgm")
    small_tail(a, name)
    a.L.insert(len(a.L) - 1, f"L_{name}_last:")
    return a.L, 4096, 128


def conv_kernel(name, cfg):
    TIN, TOUT = cfg["tin"], cfg["tout"]
    N = cfg["nchunk"]
    KSPLIT = cfg["ksplit"]
    NWG = 256
    STAMP = "stamp" in EXP
    sX, sW, sO = 8, 12, 16
    sWv, sT0, sCnt, sBo, sXo, sMask = 20, 21, 22, 23, 24, 25
    sBo2 = 26
    sK, sCb, sH = 28, 29, 32
    sSt = 60
    vL = 127
    vU, vS_, vI, vKG = 8, 9, 10, 11

    a = Asm()
    a.label(name)
    a.e(f"s_cmp_ge_u32 s2, {NWG}")
    a.e(f"s_cbranch_scc1 L_{name}_done")

    def stamp(i, fence=True):
        if STAMP:
            a.e(f"s_memtime s[{sSt+2*i}:{sSt+2*i+1}]")
            if fence:
                a.e("s_waitcnt lgkmcnt(0)")
                a.lg = []

    def rstamp(i):
        if STAMP:
            a.e(f"s_memrealtime s[{sSt+2*i}:{sSt+2*i+1}]")
            a.e("s_waitcnt lgkmcnt(0)")
            a.lg = []
    if STAMP:
        for i in range(28):
            a.e(f"s_mov_b32 s{sSt+i}, 0")
        a.e(f"s_memrealtime s[{sSt+20}:{sSt+21}]")
    stamp(0, False)
    a.e(f"s_load_dwordx2 s[4:5], s[0:1], {cfg['in_arg']}")
    a.e("s_load_dwordx2 s[30:31], s[0:1], 72")
    a.e(f"v_readfirstlane_b32 s{sWv}, v0")
    a.e(f"s_lshr_b32 s{sWv}, s{sWv}, 6")
    if os.environ.get("WX", "8") != "0":
        a.e(f"s_xor_b32 s{sWv}, s{sWv}, {os.environ.get('WX', '8')}")
    XL = int((os.environ.get("XL", "33") * 2)[int(KSPLIT)])
    a.e(f"s_and_b32 s36, s2, {(8 >> XL) - 1}")
    a.e(f"s_lshl_b32 s36, s36, {XL}")
    a.e(f"s_bfe_u32 s37, s2, {(XL << 16) | 3}")
    a.e(f"s_or_b32 s{sCb}, s36, s37")
    a.e(f"s_bfe_u32 s36, s2, {(XL << 16) | (3 - XL)}")
    a.e(f"s_lshl_b32 s36, s36, {5 - XL}")
    a.e(f"s_lshr_b32 s37, s2, {3 + XL}")
    a.e("s_or_b32 s36, s36, s37")
    if KSPLIT:
        if LOCAL:
            a.e("s_and_b32 s33, s36, 1")
            a.e("s_bfe_u32 s34, s36, 0x30001")
            a.e("s_lshr_b32 s35, s36, 4")
        else:
            a.e("s_lshr_b32 s33, s36, 4")
            a.e("s_and_b32 s34, s36, 7")
            a.e("s_bfe_u32 s35, s36, 0x10003")
    else:
        a.e("s_mov_b32 s33, 0")
        a.e("s_and_b32 s34, s36, 15")
        a.e("s_lshr_b32 s35, s36, 4")
    a.e(f"s_mul_i32 s{sT0}, s34, 500")
    a.e(f"s_and_b32 s{sH}, s{sWv}, 3")
    a.e(f"v_and_b32 v{vL}, 63, v0")
    a.e(f"v_lshrrev_b32 v5, 2, v{vL}")
    a.e(f"v_and_b32 v6, 3, v{vL}")
    a.e(f"s_and_b32 s42, s{sWv}, 7")
    if not KSPLIT:
        a.e("v_lshlrev_b32 v7, 15, v5")
        a.e("v_lshl_add_u32 v7, v6, 4, v7")
        a.e(f"s_lshl_b32 s41, s{sT0}, 10")
        a.e("s_sub_u32 s41, s41, 7680")
        a.e("s_lshl_b32 s37, s42, 12")
        a.e("s_add_u32 s37, s37, s41")
        a.e("v_add_u32 v7, s37, v7")
        a.e(f"s_mul_i32 s36, s35, {TIN*512}")
        a.e(f"s_mov_b32 s{sX+2}, {TIN*512}")
    else:
        a.e(f"s_lshr_b32 s41, s{sT0}, 2")
        a.e("s_sub_u32 s41, s41, 1")
        a.e("s_add_u32 s37, s41, s42")
        a.e("v_lshl_add_u32 v7, v5, 3, s37")
        a.e(f"s_mul_i32 s36, s35, {32*PLH}")
        a.e(f"s_add_u32 s36, s36, {cfg['in_off']}")
        a.e(f"s_mov_b32 s{sX+2}, {32*PLH}")

    def haddr(dst, vG, vlane, p, t):
        a.e(f"s_add_u32 s37, s33, {2*p - 7 & 0xffffffff}")
        a.e(f"v_lshl_add_u32 v{t}, v{vG}, 3, s37")
        a.e(f"v_cmp_gt_u32 vcc, {TIN}, v{t}")
        a.e(f"s_mul_i32 s37, s33, {PLH}")
        a.e(f"s_add_u32 s37, s37, {(2*p & 3)*PLH + (p >> 1)*64}")
        a.e(f"v_lshl_add_u32 v{dst}, v{vG}, 7, s37")
        a.e(f"v_add_u32 v{dst}, v{dst}, v{vlane}")
        a.e(f"v_mov_b32 v{t}, {OOB}")
        a.e(f"v_cndmask_b32 v{dst}, v{t}, v{dst}, vcc")
    a.e(f"s_mov_b32 s{sX+3}, 0x00020000")
    a.e(f"s_mov_b32 s{sMask}, 0xffff0000")
    a.e("s_mov_b32 s47, s36")

    def kwait():
        a.e("s_waitcnt lgkmcnt(0)")
        stamp(1)
        add64(a, sX, 4, "s47")
    OB = 512

    def wsrd():
        a.e(f"s_lshl_b32 s36, s{sCb}, 4")
        a.e("s_lshl_b32 s37, s33, 3")
        a.e("s_add_u32 s36, s36, s37")
        a.e(f"s_mul_i32 s36, s36, {CHUNKB}")
        a.e(f"s_add_u32 s36, s36, {cfg['w_off']}")
        add64(a, sW, 30, "s36")
        a.e(f"s_mov_b32 s{sW+2}, {N*CHUNKB}")
        a.e(f"s_mov_b32 s{sW+3}, 0x00020000")

    def lds_throttle(need=1):
        if len(a.lg) + need > 15:
            a.e("s_waitcnt lgkmcnt(8)")
            a.lg = a.lg[-8:]

    def mf(acc, b, av):
        if "nomfma" not in EXP:
            a.e(f"v_mfma_f32_16x16x32_bf16 {vr(acc)}, {vr(b)}, {vr(av)}, {vr(acc)}")

    def steady(gen, per, strict=True):
        st = []
        for it in range(3):
            st.append(len(a.L))
            for pos in range(per):
                gen(per * it + pos, pos)
        st.append(len(a.L))
        bodies = [a.L[st[i]:st[i + 1]] for i in range(3)]
        if strict:
            assert bodies[1] == bodies[2], "loop not steady"
            assert bodies[0] == bodies[1], "loop entry not steady"
        del a.L[st[0]:]
        return bodies[1]

    a.e(f"s_cmp_ge_u32 s{sWv}, 8")
    a.e(f"s_cbranch_scc1 L_{name}_helper")

    ACC = 0
    vF, vA8, vD, vB = (120, 121), 122, (123, 124), 125
    vP = (116, 117, 118)
    vBZ = 119
    S, T, O = 96, 108, 64
    if not KSPLIT:
        a.e(f"s_add_u32 s37, s41, {128*4096}")
        a.e(f"v_lshl_add_u32 v{T}, v{vL}, 4, s37")
        for p in range(1, 3):
            a.e(f"v_add_u32 v{T+p}, {p*1024}, v{T}")
    else:
        a.e("s_add_u32 s37, s41, 128")
        a.e("v_mov_b32 v16, s37")
        a.e(f"v_mul_u32_u24 v17, {4*PLH}, v5")
        a.e("v_lshl_add_u32 v17, v6, 4, v17")
        for p in range(3):
            haddr(T + p, 16, 17, p, 18)
    kwait()
    ME = int(os.environ.get("ME", "0"))
    if ME:
        for p in range(3):
            a.vmem(f"buffer_load_dwordx4 {vr(S+4*p)}, v{T+p}, {sr(sX)}, 0 offen", "SP")
    wsrd()
    PLO = PLF if KSPLIT else PLH
    a.e(f"s_mul_i32 s36, s35, {32*PLO}")
    a.e(f"s_add_u32 s36, s36, {cfg['out_off']}")
    if KSPLIT:
        a.e(f"s_mul_i32 s37, s33, {WS_FPS}")
        a.e("s_add_u32 s36, s36, s37")
    add64(a, sO, 30, "s36")
    a.e(f"s_mov_b32 s{sO+2}, {32*PLO}")
    a.e(f"s_mov_b32 s{sO+3}, 0x00020000")
    a.e(f"v_and_b32 v{vI}, 15, v{vL}")
    a.e(f"v_lshrrev_b32 v{vKG}, 4, v{vL}")
    t = 16
    for d, sh in ((vU, 0), (vS_, 1)):
        a.e(f"v_add_u32 v{d}, {sh}, v{vI}")
        a.e(f"v_and_b32 v{t}, 4, v{d}")
        a.e(f"v_lshrrev_b32 v{t}, 1, v{t}")
        a.e(f"v_xor_b32 v{t}, v{vKG}, v{t}")
        a.e(f"v_lshlrev_b32 v{t}, 4, v{t}")
        a.e(f"v_lshl_add_u32 v{d}, v{d}, 6, v{t}")
    a.e(f"s_lshr_b32 s38, s{sH}, 1")
    a.e(f"s_and_b32 s39, s{sH}, 1")
    a.e("s_add_u32 s40, s38, 4")
    a.e("s_lshl_b32 s43, s39, 10")
    a.e(f"s_cmp_lt_u32 s{sWv}, 4")
    a.e(f"s_cselect_b32 s40, s{sWv}, s40")
    a.e("s_cselect_b32 s36, 0, s43")
    a.e("s_lshl_b32 s37, s40, 13")
    a.e("s_add_u32 s37, s37, s36")
    a.e(f"v_lshl_add_u32 v{vB}, v{vL}, 4, s37")
    a.e(f"s_mul_i32 s37, s40, {SEQB}")
    a.e(f"v_add_u32 v{vF[0]}, s37, v{vU}")
    a.e(f"v_add_u32 v{vF[1]}, s37, v{vS_}")
    a.e("s_lshl_b32 s37, s40, 10")
    a.e(f"s_add_u32 s37, s37, {SPB}")
    a.e(f"v_lshl_add_u32 v{t}, v{vKG}, 4, s37")
    a.e(f"v_cmp_eq_u32 vcc, 15, v{vI}")
    a.e(f"v_mov_b32 v{t+1}, {BB}")
    a.e(f"v_mov_b32 v{t+2}, {-BB & 0xffffffff}")
    a.e(f"v_mov_b32 v{t+3}, 64")
    a.e(f"v_cndmask_b32 v{vA8}, v{vF[1]}, v{t}, vcc")
    a.e(f"v_cndmask_b32 v{vD[0]}, v{t+1}, v{t+3}, vcc")
    a.e(f"v_cndmask_b32 v{vD[1]}, v{t+2}, v{t+3}, vcc")
    a.e(f"v_lshl_add_u32 v126, v{vL}, 4, s37")
    tabs = {44: (1.0, 1.0, 1.0, 1.0, 1.0, 16.0), 45: (0.0, 1.0, -1.0, 2.0, -2.0, 8.0),
            46: (0.0, 1.0, 1.0, 4.0, 4.0, 4.0)}
    for sg, tab in tabs.items():
        a.e(f"s_mov_b32 s{sg}, {f32hex(tab[0])}")
    for q in range(1, 6):
        a.e(f"s_cmp_eq_u32 s40, {q}")
        for sg, tab in tabs.items():
            if tab[q] != tab[0]:
                a.e(f"s_cselect_b32 s{sg}, {f32hex(tab[q])}, s{sg}")

    def special_rows():
        a.wait(vm=("SP",))
        for d in range(4):
            for p in range(3):
                a.e(f"v_lshlrev_b32 v{T+p}, 16, v{S+4*p+d}")
                a.e(f"v_and_b32 v{T+3+p}, s{sMask}, v{S+4*p+d}")
            for h in range(2):
                a.e(f"v_mul_f32 v{T+6+h}, s44, v{T+3*h}")
            for h in range(2):
                a.e(f"v_fmac_f32 v{T+6+h}, s45, v{T+3*h+1}")
            for h in range(2):
                a.e(f"v_fmac_f32 v{T+6+h}, s46, v{T+3*h+2}")
            a.e(f"v_cvt_pk_bf16_f32 v{S+d}, v{T+6}, v{T+7}")
        a.e(f"ds_write_b128 v126, {vr(S)}")

    def own_read(k, g, reg, tag, last=False):
        if g == 8:
            base, off = vA8, 0
        else:
            base, off = vF[g >> 3], (k & 1) * BB + (g & 7) * FB
        a.lds(f"ds_read_b128 {vr(reg)}, v{base} offset:{off}", tag)
        if g == 8 and not last:
            a.e(f"v_add_u32 v{vA8}, v{vD[k & 1]}, v{vA8}")

    UNIT = [(s * SEQB, s * SEQB + BB) for s in range(4)] + [(4 * SEQB, TOPB), (5 * SEQB, TOPB + 8192),
            (6 * SEQB, TOPB + 16384), (TOPB + 24576, TOPB + 32768)]
    EA = 96
    ES = []
    R0 = (120, 121, 64)
    vO, vBW = 122, 127
    BND = SPB
    t0, t1, t2, t3 = 108, 109, 110, 111
    ES.append(f"v_and_b32 v{t0}, 15, v{vL}")
    ES.append(f"v_lshrrev_b32 v{t1}, 4, v{vL}")
    ES.append(f"v_lshrrev_b32 v{t2}, 3, v{t0}")
    ES.append(f"s_lshl_b32 s36, s{sWv}, 1")
    ES.append(f"v_add_u32 v{t2}, s36, v{t2}")
    ES.append(f"v_xor_b32 v{t3}, v{t2}, v{t0}")
    ES.append(f"v_and_b32 v{t3}, 7, v{t3}")
    ES.append(f"v_lshlrev_b32 v{t3}, 4, v{t3}")
    ES.append(f"v_lshl_add_u32 v{t3}, v{t2}, 7, v{t3}")
    ES.append(f"v_lshl_add_u32 v{R0[0]}, v{t1}, 11, v{t3}")
    ES.append(f"v_add_u32 v{R0[1]}, 65536, v{R0[0]}")
    ES.append(f"v_add_u32 v{R0[2]}, 131072, v{R0[0]}")
    ES.append(f"s_lshl_b32 s36, s{sWv}, 9")
    ES.append(f"s_add_u32 s36, s36, {BND}")
    ES.append(f"v_lshl_add_u32 v{vBW}, v{t1}, 7, s36")
    ES.append(f"s_lshl_b32 s36, s{sWv}, 4")
    ES.append(f"v_add_u32 v{t0}, s36, v{t0}")
    ES.append(f"v_lshlrev_b32 v{t2}, 6, v{t0}")
    ES.append(f"v_lshl_add_u32 v{t2}, v{t1}, 4, v{t2}")
    ES.append(f"s_mul_i32 s36, s{sCb}, {4*PLO}")
    ES.append(f"s_lshl_b32 s37, s{sT0}, 4")
    ES.append("s_add_u32 s36, s36, s37")
    ES.append(f"v_add_u32 v{t2}, s36, v{t2}")
    ES.append(f"v_mov_b32 v{t3}, {OOB}")
    ES.append(f"v_cmp_gt_u32 vcc, 125, v{t0}")
    k0 = -2.0 * 1.4426950408889634 * 0.7978845608028654
    consts = [-1.0 / 3, 0.25, -5.0, -32.0 / 9, -8.0 / 9, -2.0 / 9, -1.0 / 18, 17.0 / 9, -2.0 / 3, 0.4, -1.0 / 15, -0.2,
              k0 * 0.044715, 1.0]
    KS = [4, 6, 8, 10, 12, 14, 22, 24, 26, 32, 34, 38, 40, 42]
    for sg, cv in zip(KS, consts):
        ES.append(f"s_mov_b32 s{sg}, {f32hex(cv)}")
        ES.append(f"s_mov_b32 s{sg+1}, s{sg}")

    def ex_addr(sbase):
        a.e(f"v_and_b32 v{EA}, 15, v{vL}")
        a.e(f"v_and_b32 v{EA+1}, 7, v{vL}")
        a.e(f"v_lshlrev_b32 v{EA+1}, 4, v{EA+1}")
        a.e(f"v_lshl_add_u32 v{EA}, v{EA}, 7, v{EA+1}")
        a.e(f"v_lshrrev_b32 v{EA+1}, 4, v{vL}")
        a.e(f"v_lshl_add_u32 v{EA}, v{EA+1}, 11, v{EA}")
        a.e(f"v_add_u32 v{EA}, s{sbase}, v{EA}")
        for f in range(1, 8):
            a.e(f"v_xor_b32 v{EA+f}, {f << 4}, v{EA}")

    def mwave(role):
        if role == 1:
            BR, AR, NR = 64, 96, 6
            steps = [("X", g) for g in range(11)]
        else:
            BR, AR, NR = 64, 88, 7
            steps = []
            for g in range(11):
                steps.append(("Y", g))
                if 1 <= g <= 9:
                    steps.append(("Z", g - 1))
        NS = len(steps)

        def bload(k, kind, q):
            if "nob" in EXP and k > 0:
                return
            so = sBo2 if q >> 1 else sBo
            if kind == "X":
                for c in range(2):
                    a.vmem(f"buffer_load_dwordx4 {vr(BR+(q*2+c)*4)}, v{vB}, {sr(sW)}, s{so} offen "
                           f"offset:{(q&1)*2048 + c*1024}", ("B", k, kind, q))
            elif kind == "Y":
                a.vmem(f"buffer_load_dwordx4 {vr(BR+q*4)}, v{vB}, {sr(sW)}, s{so} offen offset:{(q&1)*2048}",
                       ("B", k, kind, q))
            else:
                a.vmem(f"buffer_load_dwordx4 {vr(BR+16+q*4)}, v{vBZ}, {sr(sW)}, s{sBo} offen offset:{q*2048}",
                       ("B", k, kind, q))

        def rd(k, n, last=False):
            kind, g = steps[n]
            reg = AR + 4 * (n % NR)
            if kind == "Z":
                base, off = (vP[0], g * FB6) if g < 6 else (vP[1], (g - 6) * FB6) if g < 8 else (vP[2], 0)
                a.lds(f"ds_read_b128 {vr(reg)}, v{base} offset:{(k & 1)*BB6 + off}", ("A", k, n))
            else:
                own_read(k, g, reg, ("A", k, n), last)

        for i in range(64 if ME < 2 else 0):
            a.e(f"v_mov_b32 v{ACC+i}, 0")
        if "b0" in EXP:
            a.e("s_barrier")
        for p in range(0 if ME else 3):
            a.vmem(f"buffer_load_dwordx4 {vr(S+4*p)}, v{T+p}, {sr(sX)}, 0 offen", "SP")
        a.e(f"s_mov_b32 s{sBo}, 0")
        a.e(f"s_mov_b32 s{sBo2}, 4096")
        for st in steps:
            if st and st[1] >= 7:
                bload(0, st[0], st[1] - 7)
        a.e(f"s_mov_b32 s{sBo}, {CHUNKB}")
        a.e(f"s_mov_b32 s{sBo2}, {CHUNKB + 4096}")
        for i in range(64 if ME == 2 else 0):
            a.e(f"v_mov_b32 v{ACC+i}, 0")
        SPL = os.environ.get("SPL", "0") == "1"
        if not SPL:
            special_rows()
        if role == 2:
            a.e(f"v_and_b32 v{T+3}, 15, v{vL}")
            a.e(f"v_lshlrev_b32 v{T+3}, 2, v{T+3}")
            a.e(f"v_add_u32 v{T+3}, {6*SEQB + 1024}, v{T+3}")
            a.e(f"ds_write_b32 v{T+3}, v{ACC}")
            a.e(f"ds_write_b32 v{T+3}, v{ACC} offset:{BB6}")
        a.e("s_waitcnt lgkmcnt(0)")
        a.e("s_barrier")
        if SPL:
            a.e("s_setprio 3")
            special_rows()
            a.e("s_waitcnt lgkmcnt(0)")
        stamp(7)
        rstamp(12)
        a.e(f"s_mov_b32 s{sCnt}, {N//2}")
        a.e(f"s_setprio {os.environ.get(f'PM{role}', '2')}")

        CO = int(os.environ.get(f"CO{role}", "0" if role == 1 else "5"))
        assert CO < NR
        FM = int("fmaj" in EXP)
        vE = (vD[0], vD[1])

        def period(k, _, last=False):
            if "mst" in EXP and _ == 0:
                stamp(2)
            if "bst" in EXP and _ == 1 and not last:
                a.e("s_memtime s[90:91]")
                a.e("s_waitcnt vmcnt(0) lgkmcnt(0)")
                a.e("s_memtime s[92:93]")
                a.e("s_waitcnt lgkmcnt(0)")
                a.e("s_sub_u32 s92, s92, s90")
                a.e(f"s_add_u32 s{sSt+4}, s{sSt+4}, s92")
                a.e(f"s_max_u32 s{sSt+6}, s{sSt+6}, s92")
                a.vm = []
            for n in range(NR):
                rd(k, n, last)
            pend = []
            fill = []

            def flush(n, cnt):
                while pend and pend[0][0] <= n and cnt > 0:
                    _, h, f = pend.pop(0)
                    t = vE[(h + f) & 1]
                    a.e(f"v_xor_b32 v{t}, {f << 4}, v{vX0[h]}")
                    lds_throttle()
                    a.lds(f"ds_write_b128 v{t}, {vr(ACC + h*32 + f*4)}", "E")
                    cnt -= 1
                    for _i in range(min(12, len(fill))):
                        a.e(fill.pop(0))

            for n, st in enumerate(steps):
                if CO and n == NS - CO and not last:
                    a.wait(lg_all=True)
                    if "mst" in EXP and _ == 0:
                        stamp(3)
                    a.e("s_barrier")
                    if "mst" in EXP and _ == 0:
                        stamp(4)
                kind, g = st
                nt = 2 if kind == "Z" else 4
                qs = [q for q in range(nt) if 0 <= g - q <= 7]
                if FM and kind == "X":
                    if g >= 3:
                        f = g - 3
                        for c in range(2):
                            for q in range(4):
                                a.wait(lg=(("A", k, f + q),), vm=(("B", k, kind, q),))
                                mf(ACC + 32 * c + f * 4, BR + q * 8 + 4 * c, AR + 4 * ((f + q) % NR))
                        if f + NR < NS:
                            rd(k, f + NR, last)
                        if g == 10 and not last:
                            for q in range(4):
                                bload(k + 1, kind, q)
                    qs = []
                else:
                    a.wait(lg=(("A", k, n),), vm=tuple(("B", k, kind, q) for q in qs))
                reg = AR + 4 * (n % NR)
                for q in qs:
                    f = g - q
                    if kind == "X":
                        mf(ACC + f * 4, BR + q * 8, reg)
                        mf(ACC + 32 + f * 4, BR + q * 8 + 4, reg)
                    elif kind == "Y":
                        mf(ACC + f * 4, BR + q * 4, reg)
                    else:
                        mf(ACC + 32 + f * 4, BR + 16 + q * 4, reg)
                if g >= 7 and not last and not (FM and kind == "X"):
                    bload(k + 1, kind, g - 7)
                if n + NR < NS and not (FM and kind == "X"):
                    rd(k, n + NR, last)
                if last:
                    flush(n, int(os.environ.get('FL', '2')))
                    f = g - (nt - 1)
                    if f >= 0:
                        if kind == "X":
                            pend.append((n + 1, 0, f))
                            pend.append((max(n + 1, NS - NR + 1 + 3 * FM), 1, f))
                            pend.sort()
                        else:
                            pend.append((n + 3, 0 if kind == "Y" else 1, f))
                    if kind == "X" and n == NS - NR + 3 * FM:
                        a.wait(lg=(("A", k, NS - 1),))
            if last:
                fill += ES
                for _i in range(8):
                    a.e(fill.pop(0))
                flush(1000, 1000)
                for op in fill:
                    a.e(op)
                return
            a.e(f"s_add_u32 s{sBo}, s{sBo}, {CHUNKB}")
            a.e(f"s_add_u32 s{sBo2}, s{sBo2}, {CHUNKB}")
            assert not a.lg
            if "mst" in EXP and _ == 0:
                stamp(5)
            if not CO:
                a.e("s_barrier")
            if "mst" in EXP and _ == 0:
                stamp(6)

        def period2(k, pos):
            if pos == 1:
                a.e(f"s_sub_u32 s{sCnt}, s{sCnt}, 1")
                a.e(f"s_cmp_eq_u32 s{sCnt}, 0")
                a.e(f"s_cbranch_scc1 L_{name}_mlast{role}")
                state[0] = (list(a.vm), k)
            period(k, pos)

        state = [None]
        body = steady(period2, 2, "nob" not in EXP)
        if "nob" in EXP:
            a.e("s_waitcnt vmcnt(0)")
        a.label(f"L_{name}_mloop{role}")
        a.L.extend(body)
        a.e(f"s_branch L_{name}_mloop{role}")
        a.label(f"L_{name}_mlast{role}")
        a.vm, a.lg = state[0][0], []
        vX0 = (vB, 126)
        a.e(f"v_and_b32 v{vX0[0]}, 15, v{vL}")
        a.e(f"v_and_b32 v{vX0[1]}, 7, v{vL}")
        a.e(f"v_lshlrev_b32 v{vX0[1]}, 4, v{vX0[1]}")
        a.e(f"v_lshl_add_u32 v{vX0[0]}, v{vX0[0]}, 7, v{vX0[1]}")
        a.e(f"v_lshrrev_b32 v{vX0[1]}, 4, v{vL}")
        a.e(f"v_lshl_add_u32 v{vX0[0]}, v{vX0[1]}, 11, v{vX0[0]}")
        if role == 1:
            a.e(f"s_lshl_b32 s36, s{sWv}, 14")
            a.e("s_add_u32 s37, s36, 8192")
        else:
            for sg, tab in ((36, [UNIT[4 + (h >> 1)][h & 1] for h in range(4)]),
                            (37, [UNIT[6 + (h >> 1)][h & 1] for h in range(4)])):
                a.e(f"s_mov_b32 s{sg}, {tab[0]}")
                for h in range(1, 4):
                    a.e(f"s_cmp_eq_u32 s{sH}, {h}")
                    a.e(f"s_cselect_b32 s{sg}, {tab[h]}, s{sg}")
        a.e(f"v_add_u32 v{vX0[1]}, s37, v{vX0[0]}")
        a.e(f"v_add_u32 v{vX0[0]}, s36, v{vX0[0]}")
        if os.environ.get(f"PL{role}"):
            a.e(f"s_setprio {os.environ.get(f'PL{role}')}")
        period(state[0][1], 1, True)
        stamp(8, False)
        rstamp(13)
        a.e("s_setprio 0")
        a.vm, a.lg = [], []

    a.e(f"s_cmp_ge_u32 s{sWv}, 4")
    a.e(f"s_cbranch_scc1 L_{name}_m2")
    vm0 = list(a.vm)
    mwave(1)
    a.e(f"s_branch L_{name}_epi")
    a.label(f"L_{name}_m2")
    a.vm, a.lg = list(vm0), []
    a.e(f"s_mul_i32 s37, s38, {2*FB6}")
    a.e(f"s_add_u32 s37, s37, {6*SEQB}")
    a.e(f"v_add_u32 v{vP[0]}, s37, v{vU}")
    a.e(f"v_add_u32 v{vP[2]}, s37, v{vS_}")
    a.e(f"v_add_u32 v{vP[1]}, {6*SEQB + 6*FB6}, v{vU}")
    a.e("s_cmp_eq_u32 s38, 0")
    a.e(f"s_cbranch_scc1 L_{name}_hh0")
    a.e(f"v_add_u32 v{vP[1]}, {6*SEQB}, v{vS_}")
    a.label(f"L_{name}_hh0")
    a.e("s_lshl_b32 s37, s38, 12")
    a.e("s_add_u32 s37, s37, s43")
    a.e(f"s_add_u32 s37, s37, {6*8192}")
    a.e(f"v_lshl_add_u32 v{vBZ}, v{vL}, 4, s37")
    mwave(2)
    a.e(f"s_branch L_{name}_epi")

    a.label(f"L_{name}_helper")
    a.vm, a.lg = [], []
    a.e("s_setprio 3")
    PB = (0, 32)
    XO = 64
    TMP = 76
    vX = 92
    vW = (96, 97, 98)

    def praw(b, half, p):
        return PB[b] + half * 16 + p * 4

    sXo2 = 27

    def xload(pair, p):
        if KSPLIT:
            half, q = p >> 1, p & 1
            for r in (q, q + 2):
                a.vmem(f"buffer_load_dwordx4 {vr(praw(pair & 1, half, r))}, v{vX+r}, {sr(sX)}, "
                       f"s{sXo2 if half else sXo} offen", ("X", pair))
            return
        for half in range(2):
            a.vmem(f"buffer_load_dwordx4 {vr(praw(pair & 1, half, p))}, v{vX+p}, {sr(sX)}, "
                   f"s{sXo} offen offset:{half*64}", ("X", pair))
        a.e(f"v_add_u32 v{vX+p}, 128, v{vX+p}")

    def uregs(chunk):
        return [praw((chunk >> 1) & 1, chunk & 1, p) for p in range(4)]

    def wr(chunk, i):
        if "nowr" in EXP:
            return
        u = uregs(chunk)
        reg, seq = [(XO, 3), (XO + 4, 4), (XO + 8, 5), (u[0], 0), (u[1], 1), (u[2], 2), (u[3], 6)][i]
        lds_throttle()
        if seq == 6:
            a.lds(f"ds_write_b128 v{vW[2]}, {vr(reg)} offset:{(chunk & 1)*BB6}", "W")
        else:
            a.lds(f"ds_write_b128 v{vW[seq >> 2]}, {vr(reg)} offset:{(seq & 3)*SEQB + (chunk & 1)*BB}", "W")

    def tr_ops(chunk):
        u = uregs(chunk)
        o = [u[1], u[2], XO, XO + 4, XO + 8]
        ops = []
        for d in range(4):
            lo = [TMP + p for p in range(4)]
            hi = [TMP + 8 + p for p in range(4)]
            for p in range(4):
                ops.append(f"v_lshlrev_b32 v{lo[p]}, 16, v{u[p]+d}")
                ops.append(f"v_and_b32 v{hi[p]}, s{sMask}, v{u[p]+d}")
            o1, r1 = eval_ops(lo, [TMP + 4 + i for i in range(4)])
            o2, r2 = eval_ops(hi, [TMP + 12 + i for i in range(4)])
            for x, y in zip(o1, o2):
                ops += [x, y]
            for i in range(5):
                ops.append(f"v_cvt_pk_bf16_f32 v{o[i]+d}, v{r1[i]}, v{r2[i]}")
        if "notr" in EXP:
            ops = ["s_nop 0"] * 8
        return ops

    if KSPLIT:
        a.e("v_lshlrev_b32 v8, 4, v6")
    for p in range(4):
        if KSPLIT:
            haddr(vX + p, 7, 8, p, 9)
        else:
            a.e(f"v_add_u32 v{vX+p}, {p*1024}, v7")
    a.e(f"v_and_b32 v{TMP}, 4, v5")
    a.e(f"v_lshrrev_b32 v{TMP}, 1, v{TMP}")
    a.e(f"v_xor_b32 v{TMP}, v6, v{TMP}")
    a.e(f"v_lshlrev_b32 v{TMP}, 4, v{TMP}")
    a.e(f"v_lshl_add_u32 v{TMP}, v5, 6, v{TMP}")
    a.e(f"s_mov_b32 s{sXo}, 0")
    a.e(f"s_mov_b32 s{sXo2}, {4*PLH}")
    kwait()
    stamp(2)
    P0 = os.environ.get("P0", "0")
    if P0 == "0" or KSPLIT:
        for p in range(4):
            xload(0, p)
            if p == 1 and P0 == "2":
                a.e("s_barrier")
    else:
        for half in range(2):
            for p in range(4):
                a.vmem(f"buffer_load_dwordx4 {vr(praw(0, half, p))}, v{vX+p}, {sr(sX)}, s{sXo} offen offset:{half*64}", ("X", 0))
            if half == 0 and P0 == "2":
                a.e("s_barrier")
        for p in range(4):
            a.e(f"v_add_u32 v{vX+p}, 128, v{vX+p}")
    if P0 != "2" and "b0" in EXP:
        a.e("s_barrier")
    a.e(f"s_mul_i32 s36, s42, {FB}")
    a.e(f"v_add_u32 v{vW[0]}, s36, v{TMP}")
    a.e(f"v_add_u32 v{vW[1]}, {4*SEQB}, v{vW[0]}")
    a.e(f"s_mul_i32 s36, s42, {FB6}")
    a.e(f"s_add_u32 s36, s36, {6*SEQB}")
    a.e(f"v_add_u32 v{vW[2]}, s36, v{TMP}")
    def warm_tail():
        if KSPLIT and "notail" not in EXP:
            add64(a, sW, 30, WS_WF)
            a.e(f"s_mov_b32 s{sW+2}, {262144 + 32768}")
            a.e(f"s_mov_b32 s{sW+3}, 0x00020000")
            a.e("s_lshr_b32 s36, s2, 3")
            a.e("s_lshl_b32 s36, s36, 2")
            a.e(f"s_add_u32 s36, s36, s{sH}")
            a.e("s_mul_i32 s36, s36, 2304")
            a.e(f"v_lshlrev_b32 v1, 4, v{vL}")
            for i in range(3):
                a.e(f"buffer_load_dwordx4 v[4:7], v1, {sr(sW)}, s36 offen offset:{i*1024}")
        if "notw" not in EXP:
            a.e(f"s_cmp_ge_u32 s2, {os.environ.get('TWN', '32')}")
            a.e(f"s_cbranch_scc1 L_{name}_ntw")
            a.e("s_getpc_b64 s[36:37]")
            a.label(f"L_{name}_pc")
            a.e(f"s_lshl_b32 s38, s{sH}, 13")
            a.e(f"s_add_u32 s38, s38, L_{name}_epi-L_{name}_pc")
            a.e(f"v_lshl_add_u32 v2, v{vL}, 7, s38")
            a.e(f"v_min_u32 v2, {0x7fc0de01 + KSPLIT:#x}, v2")
            a.e("v_mov_b32 v3, s37")
            a.e("v_add_co_u32 v2, vcc, s36, v2")
            a.e("s_nop 1")
            a.e("v_addc_co_u32 v3, vcc, 0, v3, vcc")
            a.e("global_load_dword v4, v[2:3], off")
            a.label(f"L_{name}_ntw")

    UNI = KSPLIT and os.environ.get("UNI", "1") == "1"
    if UNI:
        sMA, sMB = 44, 45
        a.e(f"s_mov_b32 s{sK}, 0")
        a.e(f"s_mov_b32 s{sXo}, {8*PLH}")
        a.e(f"s_cmp_ge_u32 s{sWv}, 12")
        a.e(f"s_cselect_b32 s{sMA}, {(1 << N) - 4}, 0")
        a.e(f"s_cselect_b32 s{sMB}, {1 | 1 << (N - 1)}, -1")
        a.e("s_setprio 0")
        a.e(f"s_cbranch_scc1 L_{name}_hloop")
        a.e("s_setprio 1")

        def sync(mask, lbl):
            a.e(f"s_bitcmp1_b32 s{mask}, s{sK}")
            a.e(f"s_cbranch_scc0 {lbl}")
            a.e("s_waitcnt lgkmcnt(0)")
            a.e("s_barrier")
            a.label(lbl)
        a.label(f"L_{name}_hloop")
        for c in range(2):
            a.e("s_waitcnt vmcnt(4)")
            for op in tr_ops(c):
                a.e(op)
            sync(sMA, f"L_{name}_sa{c}")
            a.lg = []
            for i in range(7):
                wr(c, i)
            for r in (0, 2, 1, 3):
                a.e(f"buffer_load_dwordx4 {vr(praw(0, c, r))}, v{vX+r}, {sr(sX)}, s{sXo} offen")
            a.e(f"s_add_u32 s{sXo}, s{sXo}, {4*PLH}")
            sync(sMB, f"L_{name}_sb{c}")
            a.e(f"s_add_u32 s{sK}, s{sK}, 1")
        a.e(f"s_cmp_lt_u32 s{sK}, {N}")
        a.e(f"s_cbranch_scc1 L_{name}_hloop")
        a.e(f"s_cmp_ge_u32 s{sWv}, 12")
        a.e(f"s_cbranch_scc1 L_{name}_end")
        warm_tail()
        a.e(f"s_branch L_{name}_end")
    mark = len(a.L)
    stamp(3)
    a.e(f"s_waitcnt vmcnt({0 if P0 == '0' else 4})")
    stamp(4)
    a.e(f"s_mov_b32 s{sK}, 0")
    a.e(f"s_mov_b32 s{sCnt}, {N//4}")
    a.vm, a.lg = [], []
    if not KSPLIT and os.environ.get("W2", "1") == "3":
        a.e("s_load_dwordx2 s[48:49], s[0:1], 16")
    wr(0, 3)
    wr(0, 6)
    for op in tr_ops(0):
        a.e(op)
    for i in (0, 1, 2, 4, 5):
        wr(0, i)
    stamp(5)
    a.e(f"s_cmp_ge_u32 s{sWv}, 12")
    a.e(f"s_cbranch_scc1 L_{name}_h2")

    def hwave(role):
        SH = 33 * int(os.environ.get(f"SH{role}", "0" if role == 1 else "4"))
        ahead = 2 if SH else 1
        a.vm, a.lg = [], []
        W2E = role == 2 and not KSPLIT and os.environ.get("W2", "1") == "3"
        NF = int(os.environ.get("NF", "2"))
        if KSPLIT:
            a.e(f"s_mov_b32 s{sXo}, {8*PLH}")
            a.e(f"s_mov_b32 s{sXo2}, {12*PLH}")
        X1 = os.environ.get("X1", "1")
        if X1 == "0":
            for p in range(4 if SH else NF):
                xload(1, p)
        a.e("s_waitcnt lgkmcnt(0)")
        stamp(6)
        a.e("s_barrier")
        stamp(7)
        rstamp(12)
        if X1 == "1":
            for p in range(4 if SH else NF):
                xload(1, p)
        PA, PB_ = os.environ.get(f'PH{role}', '11' if role == 1 else '00')
        a.e(f"s_setprio {PA}")
        for op in tr_ops(1)[:SH]:
            a.e(op)
        if role == 1 and os.environ.get("MW", ""):
            a.e(f"s_cmp_lt_u32 s2, {os.environ.get('TWN', '32')}")
            a.e("s_cselect_b32 s55, 1, 99")
            a.e("s_getpc_b64 s[36:37]")
            a.label(f"L_{name}_pc3")
            a.e(f"s_sub_u32 s36, s36, L_{name}_pc3-{name}")
            a.e("s_subb_u32 s37, s37, 0")
            a.e(f"s_lshl_b32 s38, s{sH}, 13")
            a.e(f"v_lshl_add_u32 v102, v{vL}, 7, s38")
            a.e(f"v_min_u32 v102, L_{name}_done-{name}, v102")
            a.e("v_mov_b32 v103, s37")
            a.e("v_add_co_u32 v102, vcc, s36, v102")
            a.e("s_nop 1")
            a.e("v_addc_co_u32 v103, vcc, 0, v103, vcc")
        if W2E:
            a.e("s_lshr_b32 s52, s2, 6")
            a.e("s_lshl_b32 s52, s52, 3")
            a.e("s_bfe_u32 s36, s2, 0x10005")
            a.e("s_add_u32 s52, s52, s36")
            a.e("s_lshl_b32 s52, s52, 17")
            a.e("s_bfe_u32 s36, s2, 0x30002")
            a.e("s_lshl_b32 s36, s36, 1")
            a.e(f"s_and_b32 s37, s{sH}, 1")
            a.e("s_add_u32 s36, s36, s37")
            a.e("s_lshl_b32 s36, s36, 13")
            a.e("s_add_u32 s52, s52, s36")
            a.e("s_and_b32 s36, s2, 3")
            a.e("s_lshl_b32 s36, s36, 1")
            a.e(f"s_lshr_b32 s37, s{sH}, 1")
            a.e("s_add_u32 s36, s36, s37")
            a.e("s_lshl_b32 s36, s36, 6")
            a.e("s_add_u32 s52, s52, s36")
            a.e(f"s_mov_b32 s50, {31*131072}")
            a.e("s_mov_b32 s51, 0x00020000")
            a.e(f"v_lshrrev_b32 v99, 4, v{vL}")
            a.e("v_lshlrev_b32 v99, 11, v99")
            a.e(f"v_and_b32 v100, 15, v{vL}")
            a.e("v_lshl_add_u32 v99, v100, 2, v99")

        def w2load(pos):
            a.e(f"s_cmp_lg_u32 s{sCnt}, {os.environ.get('W2I', '3')}")
            a.e(f"s_cbranch_scc1 L_{name}_w2s{pos}")
            for e in range(4):
                a.e(f"buffer_load_dword v{100+pos*4+e}, v99, s[48:51], s52 offen offset:{e*512}")
            a.e(f"s_add_u32 s52, s52, {2*131072}")
            a.label(f"L_{name}_w2s{pos}")
        VPF = int(os.environ.get("VPF", "0")) if role == 1 and not KSPLIT and XL == 3 else 0
        if VPF:
            a.e(f"s_lshl_b32 s36, s{sCb}, 6")
            a.e(f"s_lshl_b32 s37, s{sH}, 3")
            a.e("s_add_u32 s36, s36, s37")
            a.e("s_lshl_b32 s36, s36, 10")
            a.e("s_add_u32 s36, s36, s41")
            a.e(f"s_add_u32 s36, s36, {VPF*128}")
            a.e(f"v_and_b32 v100, 7, v{vL}")
            a.e("v_lshl_add_u32 v100, v100, 10, s36")

        def vpf(k):
            a.e(f"s_cmp_lt_u32 s{sK}, {N - 2*VPF}")
            a.e(f"s_cselect_b32 s36, 0, {OOB}")
            a.vmem(f"buffer_load_dword v99, v100, {sr(sX)}, s36 offen", "PF")
            a.e(f"v_add_u32 v100, {(128 - 32768) & 0xffffffff if k & 1 else 32768}, v100")
        XD = {(0, 1): "0.2,0.4,0.2,0.4", (0, 2): "0.3,0.5,0.3,0.5", (1, 1): "1,1,1,1", (1, 2): "0,0,0,0"}
        XP = [float(x) for x in os.environ.get(f"XP{1 + int(KSPLIT)}{role}", XD[int(KSPLIT), role]).split(",")]

        def period(k, pos, last=False):
            pair = (k >> 1) + 2 if SH else (k + 3) >> 1
            first = not (k & 1) if SH else (k & 1)
            if pos == 4 - ahead and not last:
                a.e(f"s_cmp_eq_u32 s{sCnt}, 1")
                a.e(f"s_cbranch_scc1 L_{name}_hlast{role}")
            if "hst" in EXP and pos == 1:
                stamp(2)
            V1 = tr_ops(k + 1)[SH:]
            V2 = [] if last else tr_ops(k + 2)[:SH]
            V = V1 + V2
            n = len(V)
            ev = {}

            def at(i, f):
                ev.setdefault(max(0, min(int(i), n)), []).append(f)

            def stores():
                if "hst" in EXP and pos == 1:
                    stamp(3)
                for i in range(7):
                    wr(k + 1, i)
                if "hst" in EXP and pos == 1:
                    stamp(4)
                if PA != PB_:
                    a.e(f"s_setprio {PB_}")
            if PA != PB_:
                a.e(f"s_setprio {PA}")
            if VPF and not last:
                at(float(os.environ.get("VPP", "1.0")) * n, lambda: vpf(k))
            at(len(V1), stores)
            if W2E and not last:
                at(len(V1) + 1, lambda: w2load(pos))
            if not last:
                if not KSPLIT:
                    a.e(f"s_cmp_lt_u32 s{sK}, {N - 2 - ahead}")
                    a.e(f"s_cselect_b32 s{sXo}, 0, {OOB}")
                elif first:
                    a.e(f"s_add_u32 s{sXo}, s{sXo}, {8*PLH}")
                    a.e(f"s_add_u32 s{sXo2}, s{sXo2}, {8*PLH}")
                at(len(V1) if SH else 0, lambda: a.wait(vm=(("X", (k + ahead) >> 1),)))
                if "nox" not in EXP:
                    for p in (range(NF) if first else range(NF, 4)):
                        w = len(V1) + XP[p] * SH if SH and first else XP[p] * n
                        at(w, lambda p=p: xload(pair, p))
            for i in range(n + 1):
                for f in ev.get(i, []):
                    f()
                if i < n:
                    a.e(V[i])
            MW = os.environ.get("MW", "")
            if role == 1 and MW and pos == int(MW) and not last:
                a.e(f"s_cmp_lg_u32 s{sCnt}, s55")
                a.e(f"s_cbranch_scc1 L_{name}_nmw")
                a.e("global_load_dword v101, v[102:103], off")
                a.label(f"L_{name}_nmw")
            if not last:
                a.e(f"s_add_u32 s{sK}, s{sK}, 1")
            if "hst" in EXP and pos == 1:
                stamp(5)
            a.e("s_waitcnt lgkmcnt(0)")
            a.lg = []
            a.e("s_barrier")
            if "hst" in EXP and pos == 1:
                stamp(6)

        body = steady(period, 4, "nox" not in EXP)
        a.label(f"L_{name}_hloop{role}")
        a.L.extend(body)
        a.e(f"s_sub_u32 s{sCnt}, s{sCnt}, 1")
        a.e(f"s_branch L_{name}_hloop{role}")
        a.label(f"L_{name}_hlast{role}")
        a.vm, a.lg = [], []

        def last_period():
            vm = a.vm
            a.vm, a.lg = [], []
            if SH:
                a.e(f"s_mov_b32 s{sMask}, 0xffff0000")
                period(2, 2, True)
            a.vm = vm
        if role == 1 or KSPLIT or W2P:
            last_period()
        else:
            assert SH
            W2L = os.environ.get("W2L", "0") == "1"
            if W2L:
                last_period()
            a.e("s_waitcnt vmcnt(0)")
            a.e(f"s_mov_b32 s58, s{sWv}")
            a.e(f"s_lshl_b32 s20, s2, 2")
            a.e(f"s_add_u32 s20, s20, s{sH}")
            a.e(f"v_mov_b32 v1, v{vL}")
            if W2E:
                W2R = int(os.environ.get("W2R", "0"))

                def only_stores():
                    a.lg = []
                    for i in range(7):
                        wr(3, i)
                wprep2(a, 16, WS_W2P, only_stores if W2R else last_period, pre=100, late=W2R)
            elif os.environ.get("W2", "1") == "2":
                wprep2(a, 16, WS_W2P, last_period, LB=False)
            else:
                wprep(a, 16, WS_W2P, True, barrier=None if W2L else last_period)
            a.e(f"s_mov_b32 s{sWv}, s58")
        if role == 1:
            warm_tail()
        stamp(8)
        rstamp(13)
        a.e(f"s_branch L_{name}_end")

    hwave(1)
    a.label(f"L_{name}_h2")
    hwave(2)
    if UNI:
        del a.L[mark:]

    a.label(f"L_{name}_epi")
    K = [sr(x, 2) for x in KS]
    a.e("s_waitcnt lgkmcnt(0)")
    a.e("s_barrier")
    if "est" in EXP:
        stamp(2)
    a.e(f"v_cndmask_b32 v{vO}, v{t3}, v{t2}, vcc")

    def P(c, s, r=0):
        return c * 32 + s * 4 + r
    Y = 64
    TB = 96
    ELS = (0, 1, 2)
    for c in range(2):
        for s_ in range(8):
            if c == 1 and s_ == 7:
                a.e("s_waitcnt lgkmcnt(7)")
            u = UNIT[s_][c]
            a.e(f"ds_read_b128 {vr(P(c, s_))}, v{R0[u >> 16]} offset:{u & 0xffff}")

    def p2(x):
        return vr(x, 2)

    def padd(d, x, y):
        return f"v_pk_add_f32 {p2(d)}, {p2(x)}, {p2(y)}"

    def psub(d, x, y):
        return f"v_pk_add_f32 {p2(d)}, {p2(x)}, {p2(y)} neg_lo:[0,1] neg_hi:[0,1]"

    def pfma(d, x, k, y, neg=False):
        return f"v_pk_fma_f32 {p2(d)}, {p2(x)}, {k}, {p2(y)}" + (" neg_lo:[0,0,1] neg_hi:[0,0,1]" if neg else "")

    def interp(c):
        seq = []
        for r in (0, 2):
            E0, A, B, C, D, Q, E6, E6b = (P(c, x, r) for x in range(8))
            y = [Y + ph * 8 + c * 4 + r for ph in range(4)]
            S1, G = E6, C
            seq.append([
                padd(y[3], E6, E6b),
                padd(S1, A, B),
                psub(A, A, B),
                padd(y[1], C, D),
                psub(G, C, D),
                pfma(y[1], S1, K[0], y[1]),
                pfma(Q, E0, K[3], Q),
                pfma(y[1], E0, K[1], y[1]),
                psub(S1, S1, E0),
                pfma(y[1], y[3], K[2], y[1]),
                psub(S1, S1, y[3]),
                pfma(Q, y[3], K[6], Q),
                psub(B, S1, y[1]),
                pfma(Q, y[1], K[5], Q),
                f"v_pk_mul_f32 {p2(y[2])}, {p2(G)}, {K[9]}",
                pfma(Q, B, K[4], Q),
                pfma(y[2], A, K[10], y[2]),
                pfma(y[0], A, K[7], Q, True),
                pfma(y[0], G, K[8], y[0]),
                pfma(y[2], y[0], K[11], y[2]),
                psub(A, A, y[0]),
                psub(A, A, y[2]),
            ])
        for ops in zip(*seq):
            for op in ops:
                a.e(op)

    a.e("s_waitcnt lgkmcnt(8)")
    interp(0)
    a.e("s_waitcnt lgkmcnt(0)")
    interp(1)
    if "est" in EXP:
        stamp(3)
    a.e("s_mov_b32 s36, 0x00010001")
    a.e("s_mov_b32 s37, 0x00010001")
    a.e("s_mov_b64 exec, s[36:37]")
    for k in range(3):
        for c in range(2):
            a.e(f"ds_write_b128 v{vBW}, {vr(P(c, ELS[k]))} offset:{(k*2+c)*16}")
    a.e("s_mov_b64 exec, -1")

    def finish(ph):
        ys = [Y + ph * 8 + i for i in range(8)]
        if not KSPLIT:
            ts = [16 + (ph & 1) * 8 + i for i in range(8)]
            ev = list(zip(ys[::2], ts[::2]))
            for y, t in ev:
                a.e(f"v_pk_mul_f32 {p2(t)}, {p2(y)}, {p2(y)}")
            for y, t in ev:
                a.e(pfma(t, t, K[12], 44))
            for y, t in ev:
                a.e(f"v_pk_mul_f32 {p2(t)}, {p2(t)}, {p2(y)}")
            for t in ts:
                a.e(f"v_exp_f32 v{t}, v{t}")
            for y, t in ev:
                a.e(f"v_pk_add_f32 {p2(t)}, {p2(t)}, {K[13]}")
            for t in ts:
                a.e(f"v_rcp_f32 v{t}, v{t}")
            for y, t in ev:
                a.e(f"v_pk_mul_f32 {p2(y)}, {p2(y)}, {p2(t)}")
        o = 48 + ph * 4
        for r in range(4):
            a.e(f"v_cvt_pk_bf16_f32 v{o+r}, v{ys[r]}, v{ys[4+r]}")
        so = ph * PLF if KSPLIT else ((ph + 3) & 3) * PLH + ((ph + 7) >> 2) * 64
        a.e(f"s_mov_b32 s44, {so}")
        a.e(f"buffer_store_dwordx4 {vr(o)}, v{vO}, {sr(sO)}, s44 offen{NTF if KSPLIT else NTH}")

    a.e(f"v_mov_b32 v44, {f32hex(k0)}")
    a.e("v_mov_b32 v45, v44")
    finish(0)
    a.e("s_waitcnt lgkmcnt(0)")
    a.e("s_barrier")
    if "est" in EXP:
        stamp(4)
    for i in range(6):
        a.e(f"ds_read_b128 {vr(TB+4*i)}, v{vBW} offset:{512 + i*16}")
    for ph in range(1, 4):
        a.e(f"s_waitcnt lgkmcnt({6 - 2*ph})")
        for c in range(2):
            for r in range(4):
                i = (ph - 1) * 8 + c * 4 + r
                a.e(f"v_mov_b32_dpp v{TB+i}, v{P(c, ELS[ph-1], r)} row_shl:1 row_mask:0xf bank_mask:0xf")
        for i in range(0, 8, 2):
            a.e(padd(Y + ph * 8 + i, Y + ph * 8 + i, TB + (ph - 1) * 8 + i))
        finish(ph)
    if "est" in EXP:
        stamp(5)
    RB = os.environ.get("RB", "00")[int(KSPLIT)]
    if RB != "0":
        if not KSPLIT:
            a.e(f"s_cmp_ge_u32 s{sCb}, {RB}")
            a.e(f"s_cbranch_scc1 L_{name}_end")
        a.e("s_waitcnt vmcnt(0)")
        for ph in range(4):
            so = ph * PLF if KSPLIT else ((ph + 3) & 3) * PLH + ((ph + 7) >> 2) * 64
            a.e(f"s_mov_b32 s44, {so}")
            a.e(f"buffer_load_dword v0, v{vO}, {sr(sO)}, s44 offen")
    a.label(f"L_{name}_end")
    if STAMP:
        a.e("s_waitcnt vmcnt(0)")
        stamp(9, False)
        a.e(f"s_memrealtime s[{sSt+22}:{sSt+23}]")
        a.e(f"s_cmp_lg_u32 s{sWv}, {os.environ.get('SW', '0')}")
        a.e(f"s_cbranch_scc1 L_{name}_done")
        a.e("s_lshl_b32 s36, s2, 7")
        a.e(f"s_add_u32 s36, s36, {WS_STAMP + cfg['stamp']*0x10000}")
        add64(a, 40, 30, "s36")
        a.e("s_mov_b32 s42, 128")
        a.e("s_mov_b32 s43, 0x00020000")
        a.e("s_waitcnt lgkmcnt(0)")
        a.e("v_mov_b32 v8, 0")
        for i in range(28):
            a.e(f"v_mov_b32 v0, s{sSt+i}")
            a.e(f"buffer_store_dword v0, v8, s[40:43], 0 offen offset:{4*i}")
    a.label(f"L_{name}_done")
    a.e("s_endpgm")
    if "nohf" not in EXP:
        L = a.L
        b = L.index(f"    s_cbranch_scc1 L_{name}_helper")
        h0, h1 = L.index(f"L_{name}_helper:"), L.index(f"L_{name}_epi:")
        a.L = L[:b] + [f"    s_cbranch_scc0 L_{name}_mw"] + L[h0:h1] + [f"L_{name}_mw:"] + L[b + 1:h0] + L[h1:]
    return a.L, TOPB + 40960, 128


CONV1 = dict(tin=16000, tout=8000, nchunk=16, ksplit=False, in_arg=0, in_off=0, w_off=WS_W1P, out_off=WS_H, stamp=0)
CONV2 = dict(tin=8000, tout=4000, nchunk=8, ksplit=True, in_arg=72, in_off=WS_H, w_off=WS_W2P, out_off=WS_FP, stamp=1)

HEADER = f"""; Kernarg layout for this problem (80 bytes, ptrs only, base s[0:1]):
"""


def main():
    ks = [("prep_kernel", 256, 640 if W2P else 384) + prep_kernel("prep_kernel"),
          ("conv1_kernel", 256, 1024) + conv_kernel("conv1_kernel", CONV1),
          ("conv2_kernel", 256, 1024) + conv_kernel("conv2_kernel", CONV2)]
    ks = joint_kernels(ks)
    out = HEADER
    for nm, grid, block, code, lds, vg in ks:
        out += f"; @launch kernel={nm} grid=({grid},1,1) block=({block},1,1) lds={lds}\n"
    out += '.amdgcn_target "amdgcn-amd-amdhsa--gfx950"\n.text\n'
    for nm, grid, block, code, lds, vg in ks:
        if "noalign" not in EXP:
            code = align8(code)
        out += f".globl {nm}\n.p2align 8\n.type {nm},@function\n" + "\n".join(code) + "\n"
    out += '.section .rodata,"a"\n'
    for nm, grid, block, code, lds, vg in ks:
        out += ".p2align 6\n" + kd(nm, vg)
    out = out.replace("0x7fc0de00", "L_joint_kernel_done-L_prep_kernel_pc")
    out = out.replace("0x7fc0de01", "L_conv2_kernel_done-L_conv1_kernel_pc")
    out = out.replace("0x7fc0de02", "L_joint_kernel_done-L_conv2_kernel_pc")
    path = sys.argv[1] if len(sys.argv) > 1 else "standalone__seq2seq_rnn_t_joint__speech.s"
    open(path, "w").write(out)


if __name__ == "__main__":
    main()
```

```python
import os
import sys

from asmlib import Asm, vr, sr, kd, f32hex, align8
from gen13_joint import small_head, small_tail, joint_kernels

EXP = os.environ.get("EXP", "").split(",")

WS_W1P = 0x0000000
WS_W2P = 0x0900000
WS_H = 0x1200000
WS_FP = 0x1A00000
WS_FPS = 0x800000
WS_WF = 0x2A00000
WS_STAMP = 0x3000000

CHUNKB = 7 * 8192
FB = 1024
BB = 8 * FB
SEQB = 2 * BB
FB6 = 1088
BB6 = 8 * FB6
SPB = 6 * SEQB + 2 * BB6
TOPB = SPB + 6144
OOB = 0x7f000000
W2P = os.environ.get('W2', '1') == '0'
LOCAL = 'local' in EXP
PLH, PLF = int(os.environ.get('PLH', 131072)), int(os.environ.get('PLF', 65536))
NTW, NTH, NTF = ({"0": "", "1": " nt", "2": " sc1", "3": " sc0 sc1"}[c] for c in os.environ.get("NT", "222"))


def add64(a, d, lo, off):
    a.e(f"s_add_u32 s{d}, s{lo}, {off}")
    a.e(f"s_addc_u32 s{d+1}, s{lo+1}, 0")


def eval_ops(c, t):
    e1, o1, e2, o2 = t
    ops = [f"v_add_f32 v{e1}, v{c[0]}, v{c[2]}",
           f"v_add_f32 v{o1}, v{c[1]}, v{c[3]}",
           f"v_fma_f32 v{e2}, v{c[2]}, 4.0, v{c[0]}",
           f"v_fma_f32 v{o2}, v{c[3]}, 4.0, v{c[1]}",
           f"v_add_f32 v{c[1]}, v{e1}, v{o1}",
           f"v_sub_f32 v{c[2]}, v{e1}, v{o1}",
           f"v_fma_f32 v{c[3]}, v{o2}, 2.0, v{e2}",
           f"v_fma_f32 v{e2}, v{o2}, -2.0, v{e2}",
           f"v_fmamk_f32 v{e1}, v{c[0]}, {f32hex(15.0)}, v{e2}",
           f"v_fmamk_f32 v{e1}, v{o1}, {f32hex(10.0)}, v{e1}"]
    return ops, [c[1], c[2], c[3], e2, e1]


def wprep(a, karg, wsoff, ws_loaded, barrier=False, extra=None, small=None, mid=None):
    a.vm, a.lg = [], []
    a.e(f"s_load_dwordx2 s[8:9], s[0:1], {karg}")
    if not ws_loaded:
        a.e("s_load_dwordx2 s[30:31], s[0:1], 72")
    a.e("s_lshr_b32 s22, s20, 8")
    a.e("s_bfe_u32 s23, s20, 0x40004")
    a.e("s_bfe_u32 s24, s20, 0x30001")
    a.e("s_and_b32 s21, s20, 1")
    a.e("v_lshrrev_b32 v2, 4, v1")
    a.e("v_lshlrev_b32 v2, 12, v2")
    a.e("v_and_b32 v3, 15, v1")
    a.e("v_lshl_add_u32 v2, v3, 2, v2")
    a.e("s_lshl_b32 s26, s22, 3")
    a.e("s_lshr_b32 s27, s23, 3")
    a.e("s_add_u32 s26, s26, s27")
    a.e("s_lshl_b32 s26, s26, 17")
    a.e("s_and_b32 s27, s23, 7")
    a.e("s_lshl_b32 s27, s27, 14")
    a.e("s_add_u32 s26, s26, s27")
    a.e("s_lshl_b32 s27, s24, 6")
    a.e("s_add_u32 s26, s26, s27")
    a.e(f"s_mov_b32 s10, {31*131072}")
    a.e("s_mov_b32 s11, 0x00020000")
    if small:
        small_select(a)
        a.e("s_add_u32 s37, s26, s5")
        a.e("s_add_u32 s38, s37, s5")
        a.e("s_add_u32 s39, s38, s5")
    else:
        for p in range(1, 4):
            a.e(f"s_add_u32 s{36+p}, s26, {2*131072*p}")
    a.e("s_waitcnt lgkmcnt(0)")
    if small:
        small_ptr(a)
        small_g(a, "prep_kernel")
    R = 16
    for e2 in range(4):
        for p in range(4):
            for e in (2 * e2, 2 * e2 + 1):
                a.vmem(f"buffer_load_dword v{R+p*8+e}, v2, s[8:11], s{36+p if p else 26} offen offset:{e*512}", ("L", e2))
    if small:
        a.e("s_cmp_lt_u32 s3, 12")
        a.e(f"s_cbranch_scc1 {small}")
    if mid:
        mid()
    add64(a, 12, 30, wsoff)
    a.e(f"s_mov_b32 s14, {8*16*CHUNKB}")
    a.e("s_mov_b32 s15, 0x00020000")
    a.e("v_lshlrev_b32 v4, 4, v1")
    a.e("s_lshl_b32 s27, s24, 4")
    a.e("s_add_u32 s27, s27, s23")
    a.e(f"s_mul_i32 s27, s27, {CHUNKB}")
    a.e("s_lshl_b32 s28, s22, 11")
    a.e("s_add_u32 s27, s27, s28")
    a.e("s_lshl_b32 s28, s21, 10")
    a.e("s_add_u32 s27, s27, s28")
    a.e("s_cmp_eq_u32 s21, 0")
    a.e("s_mov_b32 s32, 0x07060302")
    a.e("s_cselect_b32 s32, 0x05040100, s32")
    a.e("s_mov_b32 s33, 0x03020c0c")
    a.e("s_cselect_b32 s33, 0x01000c0c, s33")
    a.e(f"s_mov_b32 s35, {f32hex(1.0/24)}")
    a.e(f"s_mov_b32 s36, {f32hex(1.0/72)}")
    if barrier:
        barrier()
    OUT = 48
    T = 76
    scale = ("0.5", "0.5", "s35", "s35", "s36")
    for e2 in range(4):
        a.wait(vm=(("L", e2),))
        if extra and e2 == int(os.environ.get("XT", "3")):
            extra()
        for p, seq in ((0, 6), (3, 0)):
            a.e(f"v_perm_b32 v{OUT+seq*4+e2}, v{R+p*8+2*e2+1}, v{R+p*8+2*e2}, s32")
        res, lists = [], []
        for e in range(2):
            cf = [T + e * 8 + i for i in range(4)]
            ops = [f"v_perm_b32 v{cf[i]}, v{cf[i]}, v{R + (3 - i) * 8 + 2 * e2 + e}, s33" for i in range(4)]
            o, rr = eval_ops(cf, [T + e * 8 + 4 + i for i in range(4)])
            ops += o + [f"v_mul_f32 v{r}, {sc}, v{r}" for r, sc in zip(rr, scale)]
            res.append(rr)
            lists.append(ops)
        for x, y in zip(*lists):
            a.e(x)
            a.e(y)
        for i in range(5):
            a.e(f"v_cvt_pk_bf16_f32 v{OUT+(1+i)*4+e2}, v{res[0][i]}, v{res[1][i]}")
    for seq in (6, 0, 1, 2, 3, 4, 5):
        a.e(f"s_add_u32 s28, s27, {seq*8192}")
        a.e(f"buffer_store_dwordx4 {vr(OUT+seq*4)}, v4, s[12:15], s28 offen{NTW}")


def wprep2(a, karg, wsoff, barrier, LB=True, extra=None, pre=None, mid=None, late=None):
    a.vm, a.lg = [], []
    if not pre:
        a.e(f"s_load_dwordx2 s[8:9], s[0:1], {karg}")
    a.e("s_lshr_b32 s22, s20, 8")
    a.e("s_bfe_u32 s23, s20, 0x40004")
    a.e("s_bfe_u32 s24, s20, 0x30001")
    a.e("s_and_b32 s21, s20, 1")
    a.e("v_lshrrev_b32 v5, 4, v1")
    a.e("v_lshlrev_b32 v2, 11, v5")
    a.e("v_and_b32 v3, 15, v1")
    a.e("v_lshl_add_u32 v2, v3, 2, v2")
    a.e("s_lshl_b32 s26, s22, 3")
    a.e("s_lshr_b32 s27, s23, 3")
    a.e("s_add_u32 s26, s26, s27")
    a.e("s_lshl_b32 s26, s26, 17")
    a.e("s_and_b32 s27, s23, 7")
    a.e("s_lshl_b32 s27, s27, 1")
    a.e("s_add_u32 s27, s27, s21")
    a.e("s_lshl_b32 s27, s27, 13")
    a.e("s_add_u32 s26, s26, s27")
    a.e("s_lshl_b32 s27, s24, 6")
    a.e("s_add_u32 s26, s26, s27")
    a.e(f"s_mov_b32 s10, {31*131072}")
    a.e("s_mov_b32 s11, 0x00020000")
    for p in range(1, 4):
        a.e(f"s_add_u32 s{36+p}, s26, {2*131072*p}")
    a.e(f"s_mov_b32 s14, {8*16*CHUNKB}")
    a.e("s_mov_b32 s15, 0x00020000")
    a.e("v_lshrrev_b32 v4, 1, v5")
    a.e("v_lshlrev_b32 v4, 8, v4")
    a.e("v_lshl_add_u32 v4, v3, 4, v4")
    a.e("v_and_b32 v5, 1, v5")
    a.e("v_lshl_add_u32 v4, v5, 10, v4")
    a.e("s_lshl_b32 s27, s24, 4")
    a.e("s_add_u32 s27, s27, s23")
    a.e(f"s_mul_i32 s27, s27, {CHUNKB}")
    a.e("s_lshl_b32 s28, s22, 11")
    a.e("s_add_u32 s27, s27, s28")
    a.e("s_lshl_b32 s28, s21, 9")
    a.e("s_add_u32 s27, s27, s28")
    a.e("s_mov_b32 s32, 0x05040100")
    a.e("s_mov_b32 s33, 0x07060302")
    a.e("s_mov_b32 s34, 0xffff0000")
    a.e(f"s_mov_b32 s35, {f32hex(1.0/24)}")
    a.e(f"s_mov_b32 s40, {f32hex(1.0/72)}")
    a.e("s_waitcnt lgkmcnt(0)")
    if W2P and karg == 8:
        a.e("s_cmp_eq_u32 s29, 1")
        a.e("s_cselect_b32 s8, s48, s8")
        a.e("s_cselect_b32 s9, s49, s9")
        a.e(f"s_mul_i32 s29, s29, {WS_W2P - WS_W1P}")
        wsoff = "s29"
    if LB:
        barrier()
    R, OUT, T = (pre, 16, 76) if pre else (16, 76, 104)
    for e2 in range(0 if pre else 2):
        for p in range(4):
            for e in (2 * e2, 2 * e2 + 1):
                a.vmem(f"buffer_load_dword v{R+p*4+e}, v2, s[8:11], s{36+p if p else 26} offen offset:{e*512}", ("L", e2))
    if mid:
        mid()
    if not LB:
        barrier()
    add64(a, 12, 30, wsoff)
    scale = ("0.5", "0.5", "s35", "s35", "s40")

    def out(seq, c):
        return OUT + (seq * 2 + c) * 2
    for e2 in range(2):
        a.wait(vm=(("L", e2),))
        if extra and e2 == 1:
            extra()
        for c in range(2):
            for p, seq in ((0, 6), (3, 0)):
                a.e(f"v_perm_b32 v{out(seq, c)+e2}, v{R+p*4+2*e2+1}, v{R+p*4+2*e2}, s{32+c}")
            res, lists = [], []
            for e in range(2):
                cf = [T + e * 8 + i for i in range(4)]
                src = [R + (3 - i) * 4 + 2 * e2 + e for i in range(4)]
                ops = [f"v_and_b32 v{d}, s34, v{x}" if c else f"v_lshlrev_b32 v{d}, 16, v{x}" for d, x in zip(cf, src)]
                o, rr = eval_ops(cf, [T + e * 8 + 4 + i for i in range(4)])
                ops += o + [f"v_mul_f32 v{r}, {sc}, v{r}" for r, sc in zip(rr, scale)]
                res.append(rr)
                lists.append(ops)
            for x, y in zip(*lists):
                a.e(x)
                a.e(y)
            for i in range(5):
                a.e(f"v_cvt_pk_bf16_f32 v{out(1+i, c)+e2}, v{res[0][i]}, v{res[1][i]}")
            if late == e2 * 2 + c + 1:
                a.e("s_waitcnt lgkmcnt(0)")
                a.e("s_barrier")
    for seq in (6, 0, 1, 2, 3, 4, 5):
        for d in range(2):
            a.e(f"v_permlane16_swap_b32 v{out(seq, 0)+d}, v{out(seq, 1)+d}")
        a.e(f"s_add_u32 s28, s27, {seq*8192}")
        a.e(f"buffer_store_dwordx4 {vr(out(seq, 0))}, v4, s[12:15], s28 offen{NTW}")
    if late == 5:
        a.e("s_waitcnt lgkmcnt(0)")
        a.e("s_barrier")


def prep_kernel(name):
    a = Asm()
    NWG = 256
    a.label(name)
    a.e(f"s_cmp_ge_u32 s2, {NWG}")
    a.e(f"s_cbranch_scc1 L_{name}_done")
    CW = os.environ.get("CW", "late")
    CWN = int(os.environ.get("CWN", "32"))

    def code_warm():
        a.e(f"s_cmp_lt_u32 s3, {256 - CWN}")
        a.e(f"s_cbranch_scc1 L_{name}_ncw")
        a.e("s_getpc_b64 s[62:63]")
        a.label(f"L_{name}_pc")
        a.e("s_and_b32 s64, s3, 8")
        a.e("s_lshl_b32 s64, s64, 12")
        a.e("v_lshlrev_b32 v120, 7, v0")
        a.e("v_add_u32 v120, s64, v120")
        a.e(f"v_min_u32 v120, 0x7fc0de00, v120")
        a.e("v_mov_b32 v121, s63")
        a.e("v_add_co_u32 v120, vcc, s62, v120")
        a.e("s_nop 1")
        a.e("v_addc_co_u32 v121, vcc, 0, v121, vcc")
        a.e("global_load_dword v122, v[120:121], off")
        a.label(f"L_{name}_ncw")
        return 0

    def x_warm():
        XW = int(os.environ.get("XW", "0"))
        if XW:
            a.e("s_and_b32 s64, s3, 7")
            a.e("s_lshr_b32 s65, s2, 3")
            a.e("s_lshr_b32 s66, s65, 3")
            a.e("s_lshl_b32 s64, s64, 2")
            a.e("s_add_u32 s64, s64, s66")
            a.e("s_mul_i32 s64, s64, 512000")
            a.e("s_and_b32 s65, s65, 7")
            a.e("s_lshl_b32 s65, s65, 2")
            a.e("s_and_b32 s66, s20, 3")
            a.e("s_add_u32 s65, s65, s66")
            a.e("s_lshl_b32 s65, s65, 14")
            a.e("s_add_u32 s64, s64, s65")
            a.e("s_sub_u32 s64, s64, 7680")
            a.e("v_lshrrev_b32 v120, 2, v1")
            a.e("v_lshlrev_b32 v120, 10, v120")
            a.e(f"v_and_b32 v121, {XW - 1}, v1")
            a.e("v_lshl_add_u32 v120, v121, 7, v120")
            a.e("v_add_u32 v120, s64, v120")
            a.e("s_mov_b32 s68, s44")
            a.e("s_mov_b32 s69, s45")
            a.e(f"s_mov_b32 s70, {2*16000*512}")
            a.e("s_mov_b32 s71, 0x00020000")
            a.vmem("buffer_load_dword v123, v120, s[68:71], 0 offen", "XW")
    a.e("s_mov_b32 s3, s2")
    if CW == "early":
        code_warm()
    a.e("s_load_dwordx16 s[44:59], s[0:1], 0")
    a.e("s_load_dwordx2 s[30:31], s[0:1], 72")
    if "stamp" in EXP:
        a.e("s_memrealtime s[60:61]")
    a.e("v_readfirstlane_b32 s40, v0")
    a.e("s_lshr_b32 s40, s40, 6")
    a.e("v_and_b32 v1, 63, v0")
    if W2P:
        a.e("s_sub_u32 s40, s40, 2")
        a.e("s_lshr_b32 s29, s40, 2")
        a.e(f"s_cbranch_scc0 L_{name}_w")
        a.e("s_cmp_lt_u32 s40, 8")
        a.e(f"s_cbranch_scc1 L_{name}_w")
        a.e("s_add_u32 s40, s40, 6")
    else:
        a.e("s_cmp_lt_u32 s40, 4")
        a.e(f"s_cbranch_scc1 L_{name}_w")
    small_head(a, name)
    a.label(f"L_{name}_w")
    if W2P:
        a.e("s_and_b32 s40, s40, 3")
    a.e("s_lshl_b32 s21, s2, 2")
    a.e("s_add_u32 s20, s40, s21")
    wprep2(a, 8, WS_W1P, lambda: a.e("s_barrier"), False, code_warm if CW == "late" else None, mid=x_warm)
    if "stamp" in EXP:
        a.e("s_waitcnt vmcnt(0)")
        a.e("s_memrealtime s[62:63]")
        a.e("s_lshl_b32 s36, s2, 7")
        a.e(f"s_add_u32 s36, s36, {WS_STAMP + 3*0x10000}")
        add64(a, 40, 30, "s36")
        a.e("s_mov_b32 s42, 128")
        a.e("s_mov_b32 s43, 0x00020000")
        a.e("s_waitcnt lgkmcnt(0)")
        a.e("v_mov_b32 v8, 0")
        a.e("v_mov_b32 v0, 1")
        a.e("buffer_store_dword v0, v8, s[40:43], 0 offen")
        for i in range(4):
            a.e(f"v_mov_b32 v0, s{60+i}")
            a.e(f"buffer_store_dword v0, v8, s[40:43], 0 offen offset:{80+4*i}")
    a.label(f"L_{name}_done")
    a.e("s_endpgm")
    small_tail(a, name)
    a.L.insert(len(a.L) - 1, f"L_{name}_last:")
    return a.L, 4096, 128


def conv_kernel(name, cfg):
    TIN, TOUT = cfg["tin"], cfg["tout"]
    N = cfg["nchunk"]
    KSPLIT = cfg["ksplit"]
    NWG = 256
    STAMP = "stamp" in EXP
    sX, sW, sO = 8, 12, 16
    sWv, sT0, sCnt, sBo, sXo, sMask = 20, 21, 22, 23, 24, 25
    sBo2 = 26
    sK, sCb, sH = 28, 29, 32
    sSt = 60
    vL = 127
    vU, vS_, vI, vKG = 8, 9, 10, 11

    a = Asm()
    a.label(name)
    a.e(f"s_cmp_ge_u32 s2, {NWG}")
    a.e(f"s_cbranch_scc1 L_{name}_done")

    def stamp(i, fence=True):
        if STAMP:
            a.e(f"s_memtime s[{sSt+2*i}:{sSt+2*i+1}]")
            if fence:
                a.e("s_waitcnt lgkmcnt(0)")
                a.lg = []

    def rstamp(i):
        if STAMP:
            a.e(f"s_memrealtime s[{sSt+2*i}:{sSt+2*i+1}]")
            a.e("s_waitcnt lgkmcnt(0)")
            a.lg = []
    if STAMP:
        for i in range(28):
            a.e(f"s_mov_b32 s{sSt+i}, 0")
        a.e(f"s_memrealtime s[{sSt+20}:{sSt+21}]")
    stamp(0, False)
    a.e(f"s_load_dwordx2 s[4:5], s[0:1], {cfg['in_arg']}")
    a.e("s_load_dwordx2 s[30:31], s[0:1], 72")
    a.e(f"v_readfirstlane_b32 s{sWv}, v0")
    a.e(f"s_lshr_b32 s{sWv}, s{sWv}, 6")
    if os.environ.get("WX", "8") != "0":
        a.e(f"s_xor_b32 s{sWv}, s{sWv}, {os.environ.get('WX', '8')}")
    XL = int((os.environ.get("XL", "33") * 2)[int(KSPLIT)])
    a.e(f"s_and_b32 s36, s2, {(8 >> XL) - 1}")
    a.e(f"s_lshl_b32 s36, s36, {XL}")
    a.e(f"s_bfe_u32 s37, s2, {(XL << 16) | 3}")
    a.e(f"s_or_b32 s{sCb}, s36, s37")
    a.e(f"s_bfe_u32 s36, s2, {(XL << 16) | (3 - XL)}")
    a.e(f"s_lshl_b32 s36, s36, {5 - XL}")
    a.e(f"s_lshr_b32 s37, s2, {3 + XL}")
    a.e("s_or_b32 s36, s36, s37")
    if KSPLIT:
        if LOCAL:
            a.e("s_and_b32 s33, s36, 1")
            a.e("s_bfe_u32 s34, s36, 0x30001")
            a.e("s_lshr_b32 s35, s36, 4")
        else:
            a.e("s_lshr_b32 s33, s36, 4")
            a.e("s_and_b32 s34, s36, 7")
            a.e("s_bfe_u32 s35, s36, 0x10003")
    else:
        a.e("s_mov_b32 s33, 0")
        a.e("s_and_b32 s34, s36, 15")
        a.e("s_lshr_b32 s35, s36, 4")
    a.e(f"s_mul_i32 s{sT0}, s34, 500")
    a.e(f"s_and_b32 s{sH}, s{sWv}, 3")
    a.e(f"v_and_b32 v{vL}, 63, v0")
    a.e(f"v_lshrrev_b32 v5, 2, v{vL}")
    a.e(f"v_and_b32 v6, 3, v{vL}")
    a.e(f"s_and_b32 s42, s{sWv}, 7")
    if not KSPLIT:
        a.e("v_lshlrev_b32 v7, 15, v5")
        a.e("v_lshl_add_u32 v7, v6, 4, v7")
        a.e(f"s_lshl_b32 s41, s{sT0}, 10")
        a.e("s_sub_u32 s41, s41, 7680")
        a.e("s_lshl_b32 s37, s42, 12")
        a.e("s_add_u32 s37, s37, s41")
        a.e("v_add_u32 v7, s37, v7")
        a.e(f"s_mul_i32 s36, s35, {TIN*512}")
        a.e(f"s_mov_b32 s{sX+2}, {TIN*512}")
    else:
        a.e(f"s_lshr_b32 s41, s{sT0}, 2")
        a.e("s_sub_u32 s41, s41, 1")
        a.e("s_add_u32 s37, s41, s42")
        a.e("v_lshl_add_u32 v7, v5, 3, s37")
        a.e(f"s_mul_i32 s36, s35, {32*PLH}")
        a.e(f"s_add_u32 s36, s36, {cfg['in_off']}")
        a.e(f"s_mov_b32 s{sX+2}, {32*PLH}")

    def haddr(dst, vG, vlane, p, t):
        a.e(f"s_add_u32 s37, s33, {2*p - 7 & 0xffffffff}")
        a.e(f"v_lshl_add_u32 v{t}, v{vG}, 3, s37")
        a.e(f"v_cmp_gt_u32 vcc, {TIN}, v{t}")
        a.e(f"s_mul_i32 s37, s33, {PLH}")
        a.e(f"s_add_u32 s37, s37, {(2*p & 3)*PLH + (p >> 1)*64}")
        a.e(f"v_lshl_add_u32 v{dst}, v{vG}, 7, s37")
        a.e(f"v_add_u32 v{dst}, v{dst}, v{vlane}")
        a.e(f"v_mov_b32 v{t}, {OOB}")
        a.e(f"v_cndmask_b32 v{dst}, v{t}, v{dst}, vcc")
    a.e(f"s_mov_b32 s{sX+3}, 0x00020000")
    a.e(f"s_mov_b32 s{sMask}, 0xffff0000")
    a.e("s_mov_b32 s47, s36")

    def kwait():
        a.e("s_waitcnt lgkmcnt(0)")
        stamp(1)
        add64(a, sX, 4, "s47")
    OB = 512

    def wsrd():
        a.e(f"s_lshl_b32 s36, s{sCb}, 4")
        a.e("s_lshl_b32 s37, s33, 3")
        a.e("s_add_u32 s36, s36, s37")
        a.e(f"s_mul_i32 s36, s36, {CHUNKB}")
        a.e(f"s_add_u32 s36, s36, {cfg['w_off']}")
        add64(a, sW, 30, "s36")
        a.e(f"s_mov_b32 s{sW+2}, {N*CHUNKB}")
        a.e(f"s_mov_b32 s{sW+3}, 0x00020000")

    def lds_throttle(need=1):
        if len(a.lg) + need > 15:
            a.e("s_waitcnt lgkmcnt(8)")
            a.lg = a.lg[-8:]

    def mf(acc, b, av):
        if "nomfma" not in EXP:
            a.e(f"v_mfma_f32_16x16x32_bf16 {vr(acc)}, {vr(b)}, {vr(av)}, {vr(acc)}")

    def steady(gen, per, strict=True):
        st = []
        for it in range(3):
            st.append(len(a.L))
            for pos in range(per):
                gen(per * it + pos, pos)
        st.append(len(a.L))
        bodies = [a.L[st[i]:st[i + 1]] for i in range(3)]
        if strict:
            assert bodies[1] == bodies[2], "loop not steady"
            assert bodies[0] == bodies[1], "loop entry not steady"
        del a.L[st[0]:]
        return bodies[1]

    a.e(f"s_cmp_ge_u32 s{sWv}, 8")
    a.e(f"s_cbranch_scc1 L_{name}_helper")

    ACC = 0
    vF, vA8, vD, vB = (120, 121), 122, (123, 124), 125
    vP = (116, 117, 118)
    vBZ = 119
    S, T, O = 96, 108, 64
    if not KSPLIT:
        a.e(f"s_add_u32 s37, s41, {128*4096}")
        a.e(f"v_lshl_add_u32 v{T}, v{vL}, 4, s37")
        for p in range(1, 3):
            a.e(f"v_add_u32 v{T+p}, {p*1024}, v{T}")
    else:
        a.e("s_add_u32 s37, s41, 128")
        a.e("v_mov_b32 v16, s37")
        a.e(f"v_mul_u32_u24 v17, {4*PLH}, v5")
        a.e("v_lshl_add_u32 v17, v6, 4, v17")
        for p in range(3):
            haddr(T + p, 16, 17, p, 18)
    kwait()
    ME = int(os.environ.get("ME", "0"))
    if ME:
        for p in range(3):
            a.vmem(f"buffer_load_dwordx4 {vr(S+4*p)}, v{T+p}, {sr(sX)}, 0 offen", "SP")
    wsrd()
    PLO = PLF if KSPLIT else PLH
    a.e(f"s_mul_i32 s36, s35, {32*PLO}")
    a.e(f"s_add_u32 s36, s36, {cfg['out_off']}")
    if KSPLIT:
        a.e(f"s_mul_i32 s37, s33, {WS_FPS}")
        a.e("s_add_u32 s36, s36, s37")
    add64(a, sO, 30, "s36")
    a.e(f"s_mov_b32 s{sO+2}, {32*PLO}")
    a.e(f"s_mov_b32 s{sO+3}, 0x00020000")
    a.e(f"v_and_b32 v{vI}, 15, v{vL}")
    a.e(f"v_lshrrev_b32 v{vKG}, 4, v{vL}")
    t = 16
    for d, sh in ((vU, 0), (vS_, 1)):
        a.e(f"v_add_u32 v{d}, {sh}, v{vI}")
        a.e(f"v_and_b32 v{t}, 4, v{d}")
        a.e(f"v_lshrrev_b32 v{t}, 1, v{t}")
        a.e(f"v_xor_b32 v{t}, v{vKG}, v{t}")
        a.e(f"v_lshlrev_b32 v{t}, 4, v{t}")
        a.e(f"v_lshl_add_u32 v{d}, v{d}, 6, v{t}")
    a.e(f"s_lshr_b32 s38, s{sH}, 1")
    a.e(f"s_and_b32 s39, s{sH}, 1")
    a.e("s_add_u32 s40, s38, 4")
    a.e("s_lshl_b32 s43, s39, 10")
    a.e(f"s_cmp_lt_u32 s{sWv}, 4")
    a.e(f"s_cselect_b32 s40, s{sWv}, s40")
    a.e("s_cselect_b32 s36, 0, s43")
    a.e("s_lshl_b32 s37, s40, 13")
    a.e("s_add_u32 s37, s37, s36")
    a.e(f"v_lshl_add_u32 v{vB}, v{vL}, 4, s37")
    a.e(f"s_mul_i32 s37, s40, {SEQB}")
    a.e(f"v_add_u32 v{vF[0]}, s37, v{vU}")
    a.e(f"v_add_u32 v{vF[1]}, s37, v{vS_}")
    a.e("s_lshl_b32 s37, s40, 10")
    a.e(f"s_add_u32 s37, s37, {SPB}")
    a.e(f"v_lshl_add_u32 v{t}, v{vKG}, 4, s37")
    a.e(f"v_cmp_eq_u32 vcc, 15, v{vI}")
    a.e(f"v_mov_b32 v{t+1}, {BB}")
    a.e(f"v_mov_b32 v{t+2}, {-BB & 0xffffffff}")
    a.e(f"v_mov_b32 v{t+3}, 64")
    a.e(f"v_cndmask_b32 v{vA8}, v{vF[1]}, v{t}, vcc")
    a.e(f"v_cndmask_b32 v{vD[0]}, v{t+1}, v{t+3}, vcc")
    a.e(f"v_cndmask_b32 v{vD[1]}, v{t+2}, v{t+3}, vcc")
    a.e(f"v_lshl_add_u32 v126, v{vL}, 4, s37")
    tabs = {44: (1.0, 1.0, 1.0, 1.0, 1.0, 16.0), 45: (0.0, 1.0, -1.0, 2.0, -2.0, 8.0),
            46: (0.0, 1.0, 1.0, 4.0, 4.0, 4.0)}
    for sg, tab in tabs.items():
        a.e(f"s_mov_b32 s{sg}, {f32hex(tab[0])}")
    for q in range(1, 6):
        a.e(f"s_cmp_eq_u32 s40, {q}")
        for sg, tab in tabs.items():
            if tab[q] != tab[0]:
                a.e(f"s_cselect_b32 s{sg}, {f32hex(tab[q])}, s{sg}")

    def special_rows():
        a.wait(vm=("SP",))
        for d in range(4):
            for p in range(3):
                a.e(f"v_lshlrev_b32 v{T+p}, 16, v{S+4*p+d}")
                a.e(f"v_and_b32 v{T+3+p}, s{sMask}, v{S+4*p+d}")
            for h in range(2):
                a.e(f"v_mul_f32 v{T+6+h}, s44, v{T+3*h}")
            for h in range(2):
                a.e(f"v_fmac_f32 v{T+6+h}, s45, v{T+3*h+1}")
            for h in range(2):
                a.e(f"v_fmac_f32 v{T+6+h}, s46, v{T+3*h+2}")
            a.e(f"v_cvt_pk_bf16_f32 v{S+d}, v{T+6}, v{T+7}")
        a.e(f"ds_write_b128 v126, {vr(S)}")

    def own_read(k, g, reg, tag, last=False):
        if g == 8:
            base, off = vA8, 0
        else:
            base, off = vF[g >> 3], (k & 1) * BB + (g & 7) * FB
        a.lds(f"ds_read_b128 {vr(reg)}, v{base} offset:{off}", tag)
        if g == 8 and not last:
            a.e(f"v_add_u32 v{vA8}, v{vD[k & 1]}, v{vA8}")

    UNIT = [(s * SEQB, s * SEQB + BB) for s in range(4)] + [(4 * SEQB, TOPB), (5 * SEQB, TOPB + 8192),
            (6 * SEQB, TOPB + 16384), (TOPB + 24576, TOPB + 32768)]
    EA = 96
    ES = []
    R0 = (120, 121, 64)
    vO, vBW = 122, 127
    BND = SPB
    t0, t1, t2, t3 = 108, 109, 110, 111
    ES.append(f"v_and_b32 v{t0}, 15, v{vL}")
    ES.append(f"v_lshrrev_b32 v{t1}, 4, v{vL}")
    ES.append(f"v_lshrrev_b32 v{t2}, 3, v{t0}")
    ES.append(f"s_lshl_b32 s36, s{sWv}, 1")
    ES.append(f"v_add_u32 v{t2}, s36, v{t2}")
    ES.append(f"v_xor_b32 v{t3}, v{t2}, v{t0}")
    ES.append(f"v_and_b32 v{t3}, 7, v{t3}")
    ES.append(f"v_lshlrev_b32 v{t3}, 4, v{t3}")
    ES.append(f"v_lshl_add_u32 v{t3}, v{t2}, 7, v{t3}")
    ES.append(f"v_lshl_add_u32 v{R0[0]}, v{t1}, 11, v{t3}")
    ES.append(f"v_add_u32 v{R0[1]}, 65536, v{R0[0]}")
    ES.append(f"v_add_u32 v{R0[2]}, 131072, v{R0[0]}")
    ES.append(f"s_lshl_b32 s36, s{sWv}, 9")
    ES.append(f"s_add_u32 s36, s36, {BND}")
    ES.append(f"v_lshl_add_u32 v{vBW}, v{t1}, 7, s36")
    ES.append(f"s_lshl_b32 s36, s{sWv}, 4")
    ES.append(f"v_add_u32 v{t0}, s36, v{t0}")
    ES.append(f"v_lshlrev_b32 v{t2}, 6, v{t0}")
    ES.append(f"v_lshl_add_u32 v{t2}, v{t1}, 4, v{t2}")
    ES.append(f"s_mul_i32 s36, s{sCb}, {4*PLO}")
    ES.append(f"s_lshl_b32 s37, s{sT0}, 4")
    ES.append("s_add_u32 s36, s36, s37")
    ES.append(f"v_add_u32 v{t2}, s36, v{t2}")
    ES.append(f"v_mov_b32 v{t3}, {OOB}")
    ES.append(f"v_cmp_gt_u32 vcc, 125, v{t0}")
    k0 = -2.0 * 1.4426950408889634 * 0.7978845608028654
    consts = [-1.0 / 3, 0.25, -5.0, -32.0 / 9, -8.0 / 9, -2.0 / 9, -1.0 / 18, 17.0 / 9, -2.0 / 3, 0.4, -1.0 / 15, -0.2,
              k0 * 0.044715, 1.0]
    KS = [4, 6, 8, 10, 12, 14, 22, 24, 26, 32, 34, 38, 40, 42]
    for sg, cv in zip(KS, consts):
        ES.append(f"s_mov_b32 s{sg}, {f32hex(cv)}")
        ES.append(f"s_mov_b32 s{sg+1}, s{sg}")

    def ex_addr(sbase):
        a.e(f"v_and_b32 v{EA}, 15, v{vL}")
        a.e(f"v_and_b32 v{EA+1}, 7, v{vL}")
        a.e(f"v_lshlrev_b32 v{EA+1}, 4, v{EA+1}")
        a.e(f"v_lshl_add_u32 v{EA}, v{EA}, 7, v{EA+1}")
        a.e(f"v_lshrrev_b32 v{EA+1}, 4, v{vL}")
        a.e(f"v_lshl_add_u32 v{EA}, v{EA+1}, 11, v{EA}")
        a.e(f"v_add_u32 v{EA}, s{sbase}, v{EA}")
        for f in range(1, 8):
            a.e(f"v_xor_b32 v{EA+f}, {f << 4}, v{EA}")

    def mwave(role):
        if role == 1:
            BR, AR, NR = 64, 96, 6
            steps = [("X", g) for g in range(11)]
        else:
            BR, AR, NR = 64, 88, 7
            steps = []
            for g in range(11):
                steps.append(("Y", g))
                if 1 <= g <= 9:
                    steps.append(("Z", g - 1))
        NS = len(steps)

        def bload(k, kind, q):
            if "nob" in EXP and k > 0:
                return
            so = sBo2 if q >> 1 else sBo
            if kind == "X":
                for c in range(2):
                    a.vmem(f"buffer_load_dwordx4 {vr(BR+(q*2+c)*4)}, v{vB}, {sr(sW)}, s{so} offen "
                           f"offset:{(q&1)*2048 + c*1024}", ("B", k, kind, q))
            elif kind == "Y":
                a.vmem(f"buffer_load_dwordx4 {vr(BR+q*4)}, v{vB}, {sr(sW)}, s{so} offen offset:{(q&1)*2048}",
                       ("B", k, kind, q))
            else:
                a.vmem(f"buffer_load_dwordx4 {vr(BR+16+q*4)}, v{vBZ}, {sr(sW)}, s{sBo} offen offset:{q*2048}",
                       ("B", k, kind, q))

        def rd(k, n, last=False):
            kind, g = steps[n]
            reg = AR + 4 * (n % NR)
            if kind == "Z":
                base, off = (vP[0], g * FB6) if g < 6 else (vP[1], (g - 6) * FB6) if g < 8 else (vP[2], 0)
                a.lds(f"ds_read_b128 {vr(reg)}, v{base} offset:{(k & 1)*BB6 + off}", ("A", k, n))
            else:
                own_read(k, g, reg, ("A", k, n), last)

        for i in range(64 if ME < 2 else 0):
            a.e(f"v_mov_b32 v{ACC+i}, 0")
        if "b0" in EXP:
            a.e("s_barrier")
        for p in range(0 if ME else 3):
            a.vmem(f"buffer_load_dwordx4 {vr(S+4*p)}, v{T+p}, {sr(sX)}, 0 offen", "SP")
        a.e(f"s_mov_b32 s{sBo}, 0")
        a.e(f"s_mov_b32 s{sBo2}, 4096")
        for st in steps:
            if st and st[1] >= 7:
                bload(0, st[0], st[1] - 7)
        a.e(f"s_mov_b32 s{sBo}, {CHUNKB}")
        a.e(f"s_mov_b32 s{sBo2}, {CHUNKB + 4096}")
        for i in range(64 if ME == 2 else 0):
            a.e(f"v_mov_b32 v{ACC+i}, 0")
        SPL = os.environ.get("SPL", "0") == "1"
        if not SPL:
            special_rows()
        if role == 2:
            a.e(f"v_and_b32 v{T+3}, 15, v{vL}")
            a.e(f"v_lshlrev_b32 v{T+3}, 2, v{T+3}")
            a.e(f"v_add_u32 v{T+3}, {6*SEQB + 1024}, v{T+3}")
            a.e(f"ds_write_b32 v{T+3}, v{ACC}")
            a.e(f"ds_write_b32 v{T+3}, v{ACC} offset:{BB6}")
        a.e("s_waitcnt lgkmcnt(0)")
        a.e("s_barrier")
        if SPL:
            a.e("s_setprio 3")
            special_rows()
            a.e("s_waitcnt lgkmcnt(0)")
        stamp(7)
        rstamp(12)
        a.e(f"s_mov_b32 s{sCnt}, {N//2}")
        a.e(f"s_setprio {os.environ.get(f'PM{role}', '2')}")

        CO = int(os.environ.get(f"CO{role}", "0" if role == 1 else "5"))
        assert CO < NR
        FM = int("fmaj" in EXP)
        vE = (vD[0], vD[1])

        def period(k, _, last=False):
            if "mst" in EXP and _ == 0:
                stamp(2)
            if "bst" in EXP and _ == 1 and not last:
                a.e("s_memtime s[90:91]")
                a.e("s_waitcnt vmcnt(0) lgkmcnt(0)")
                a.e("s_memtime s[92:93]")
                a.e("s_waitcnt lgkmcnt(0)")
                a.e("s_sub_u32 s92, s92, s90")
                a.e(f"s_add_u32 s{sSt+4}, s{sSt+4}, s92")
                a.e(f"s_max_u32 s{sSt+6}, s{sSt+6}, s92")
                a.vm = []
            for n in range(NR):
                rd(k, n, last)
            pend = []
            fill = []

            def flush(n, cnt):
                while pend and pend[0][0] <= n and cnt > 0:
                    _, h, f = pend.pop(0)
                    t = vE[(h + f) & 1]
                    a.e(f"v_xor_b32 v{t}, {f << 4}, v{vX0[h]}")
                    lds_throttle()
                    a.lds(f"ds_write_b128 v{t}, {vr(ACC + h*32 + f*4)}", "E")
                    cnt -= 1
                    for _i in range(min(12, len(fill))):
                        a.e(fill.pop(0))

            for n, st in enumerate(steps):
                if CO and n == NS - CO and not last:
                    a.wait(lg_all=True)
                    if "mst" in EXP and _ == 0:
                        stamp(3)
                    a.e("s_barrier")
                    if "mst" in EXP and _ == 0:
                        stamp(4)
                kind, g = st
                nt = 2 if kind == "Z" else 4
                qs = [q for q in range(nt) if 0 <= g - q <= 7]
                if FM and kind == "X":
                    if g >= 3:
                        f = g - 3
                        for c in range(2):
                            for q in range(4):
                                a.wait(lg=(("A", k, f + q),), vm=(("B", k, kind, q),))
                                mf(ACC + 32 * c + f * 4, BR + q * 8 + 4 * c, AR + 4 * ((f + q) % NR))
                        if f + NR < NS:
                            rd(k, f + NR, last)
                        if g == 10 and not last:
                            for q in range(4):
                                bload(k + 1, kind, q)
                    qs = []
                else:
                    a.wait(lg=(("A", k, n),), vm=tuple(("B", k, kind, q) for q in qs))
                reg = AR + 4 * (n % NR)
                for q in qs:
                    f = g - q
                    if kind == "X":
                        mf(ACC + f * 4, BR + q * 8, reg)
                        mf(ACC + 32 + f * 4, BR + q * 8 + 4, reg)
                    elif kind == "Y":
                        mf(ACC + f * 4, BR + q * 4, reg)
                    else:
                        mf(ACC + 32 + f * 4, BR + 16 + q * 4, reg)
                if g >= 7 and not last and not (FM and kind == "X"):
                    bload(k + 1, kind, g - 7)
                if n + NR < NS and not (FM and kind == "X"):
                    rd(k, n + NR, last)
                if last:
                    flush(n, int(os.environ.get('FL', '2')))
                    f = g - (nt - 1)
                    if f >= 0:
                        if kind == "X":
                            pend.append((n + 1, 0, f))
                            pend.append((max(n + 1, NS - NR + 1 + 3 * FM), 1, f))
                            pend.sort()
                        else:
                            pend.append((n + 3, 0 if kind == "Y" else 1, f))
                    if kind == "X" and n == NS - NR + 3 * FM:
                        a.wait(lg=(("A", k, NS - 1),))
            if last:
                fill += ES
                for _i in range(8):
                    a.e(fill.pop(0))
                flush(1000, 1000)
                for op in fill:
                    a.e(op)
                return
            a.e(f"s_add_u32 s{sBo}, s{sBo}, {CHUNKB}")
            a.e(f"s_add_u32 s{sBo2}, s{sBo2}, {CHUNKB}")
            assert not a.lg
            if "mst" in EXP and _ == 0:
                stamp(5)
            if not CO:
                a.e("s_barrier")
            if "mst" in EXP and _ == 0:
                stamp(6)

        def period2(k, pos):
            if pos == 1:
                a.e(f"s_sub_u32 s{sCnt}, s{sCnt}, 1")
                a.e(f"s_cmp_eq_u32 s{sCnt}, 0")
                a.e(f"s_cbranch_scc1 L_{name}_mlast{role}")
                state[0] = (list(a.vm), k)
            period(k, pos)

        state = [None]
        body = steady(period2, 2, "nob" not in EXP)
        if "nob" in EXP:
            a.e("s_waitcnt vmcnt(0)")
        a.label(f"L_{name}_mloop{role}")
        a.L.extend(body)
        a.e(f"s_branch L_{name}_mloop{role}")
        a.label(f"L_{name}_mlast{role}")
        a.vm, a.lg = state[0][0], []
        vX0 = (vB, 126)
        a.e(f"v_and_b32 v{vX0[0]}, 15, v{vL}")
        a.e(f"v_and_b32 v{vX0[1]}, 7, v{vL}")
        a.e(f"v_lshlrev_b32 v{vX0[1]}, 4, v{vX0[1]}")
        a.e(f"v_lshl_add_u32 v{vX0[0]}, v{vX0[0]}, 7, v{vX0[1]}")
        a.e(f"v_lshrrev_b32 v{vX0[1]}, 4, v{vL}")
        a.e(f"v_lshl_add_u32 v{vX0[0]}, v{vX0[1]}, 11, v{vX0[0]}")
        if role == 1:
            a.e(f"s_lshl_b32 s36, s{sWv}, 14")
            a.e("s_add_u32 s37, s36, 8192")
        else:
            for sg, tab in ((36, [UNIT[4 + (h >> 1)][h & 1] for h in range(4)]),
                            (37, [UNIT[6 + (h >> 1)][h & 1] for h in range(4)])):
                a.e(f"s_mov_b32 s{sg}, {tab[0]}")
                for h in range(1, 4):
                    a.e(f"s_cmp_eq_u32 s{sH}, {h}")
                    a.e(f"s_cselect_b32 s{sg}, {tab[h]}, s{sg}")
        a.e(f"v_add_u32 v{vX0[1]}, s37, v{vX0[0]}")
        a.e(f"v_add_u32 v{vX0[0]}, s36, v{vX0[0]}")
        if os.environ.get(f"PL{role}"):
            a.e(f"s_setprio {os.environ.get(f'PL{role}')}")
        period(state[0][1], 1, True)
        stamp(8, False)
        rstamp(13)
        a.e("s_setprio 0")
        a.vm, a.lg = [], []

    a.e(f"s_cmp_ge_u32 s{sWv}, 4")
    a.e(f"s_cbranch_scc1 L_{name}_m2")
    vm0 = list(a.vm)
    mwave(1)
    a.e(f"s_branch L_{name}_epi")
    a.label(f"L_{name}_m2")
    a.vm, a.lg = list(vm0), []
    a.e(f"s_mul_i32 s37, s38, {2*FB6}")
    a.e(f"s_add_u32 s37, s37, {6*SEQB}")
    a.e(f"v_add_u32 v{vP[0]}, s37, v{vU}")
    a.e(f"v_add_u32 v{vP[2]}, s37, v{vS_}")
    a.e(f"v_add_u32 v{vP[1]}, {6*SEQB + 6*FB6}, v{vU}")
    a.e("s_cmp_eq_u32 s38, 0")
    a.e(f"s_cbranch_scc1 L_{name}_hh0")
    a.e(f"v_add_u32 v{vP[1]}, {6*SEQB}, v{vS_}")
    a.label(f"L_{name}_hh0")
    a.e("s_lshl_b32 s37, s38, 12")
    a.e("s_add_u32 s37, s37, s43")
    a.e(f"s_add_u32 s37, s37, {6*8192}")
    a.e(f"v_lshl_add_u32 v{vBZ}, v{vL}, 4, s37")
    mwave(2)
    a.e(f"s_branch L_{name}_epi")

    a.label(f"L_{name}_helper")
    a.vm, a.lg = [], []
    a.e("s_setprio 3")
    PB = (0, 32)
    XO = 64
    TMP = 76
    vX = 92
    vW = (96, 97, 98)

    def praw(b, half, p):
        return PB[b] + half * 16 + p * 4

    sXo2 = 27

    def xload(pair, p):
        if KSPLIT:
            half, q = p >> 1, p & 1
            for r in (q, q + 2):
                a.vmem(f"buffer_load_dwordx4 {vr(praw(pair & 1, half, r))}, v{vX+r}, {sr(sX)}, "
                       f"s{sXo2 if half else sXo} offen", ("X", pair))
            return
        for half in range(2):
            a.vmem(f"buffer_load_dwordx4 {vr(praw(pair & 1, half, p))}, v{vX+p}, {sr(sX)}, "
                   f"s{sXo} offen offset:{half*64}", ("X", pair))
        a.e(f"v_add_u32 v{vX+p}, 128, v{vX+p}")

    def uregs(chunk):
        return [praw((chunk >> 1) & 1, chunk & 1, p) for p in range(4)]

    def wr(chunk, i):
        if "nowr" in EXP:
            return
        u = uregs(chunk)
        reg, seq = [(XO, 3), (XO + 4, 4), (XO + 8, 5), (u[0], 0), (u[1], 1), (u[2], 2), (u[3], 6)][i]
        lds_throttle()
        if seq == 6:
            a.lds(f"ds_write_b128 v{vW[2]}, {vr(reg)} offset:{(chunk & 1)*BB6}", "W")
        else:
            a.lds(f"ds_write_b128 v{vW[seq >> 2]}, {vr(reg)} offset:{(seq & 3)*SEQB + (chunk & 1)*BB}", "W")

    def tr_ops(chunk):
        u = uregs(chunk)
        o = [u[1], u[2], XO, XO + 4, XO + 8]
        ops = []
        for d in range(4):
            lo = [TMP + p for p in range(4)]
            hi = [TMP + 8 + p for p in range(4)]
            for p in range(4):
                ops.append(f"v_lshlrev_b32 v{lo[p]}, 16, v{u[p]+d}")
                ops.append(f"v_and_b32 v{hi[p]}, s{sMask}, v{u[p]+d}")
            o1, r1 = eval_ops(lo, [TMP + 4 + i for i in range(4)])
            o2, r2 = eval_ops(hi, [TMP + 12 + i for i in range(4)])
            for x, y in zip(o1, o2):
                ops += [x, y]
            for i in range(5):
                ops.append(f"v_cvt_pk_bf16_f32 v{o[i]+d}, v{r1[i]}, v{r2[i]}")
        if "notr" in EXP:
            ops = ["s_nop 0"] * 8
        return ops

    if KSPLIT:
        a.e("v_lshlrev_b32 v8, 4, v6")
    for p in range(4):
        if KSPLIT:
            haddr(vX + p, 7, 8, p, 9)
        else:
            a.e(f"v_add_u32 v{vX+p}, {p*1024}, v7")
    a.e(f"v_and_b32 v{TMP}, 4, v5")
    a.e(f"v_lshrrev_b32 v{TMP}, 1, v{TMP}")
    a.e(f"v_xor_b32 v{TMP}, v6, v{TMP}")
    a.e(f"v_lshlrev_b32 v{TMP}, 4, v{TMP}")
    a.e(f"v_lshl_add_u32 v{TMP}, v5, 6, v{TMP}")
    a.e(f"s_mov_b32 s{sXo}, 0")
    a.e(f"s_mov_b32 s{sXo2}, {4*PLH}")
    kwait()
    stamp(2)
    P0 = os.environ.get("P0", "0")
    if P0 == "0" or KSPLIT:
        for p in range(4):
            xload(0, p)
            if p == 1 and P0 == "2":
                a.e("s_barrier")
    else:
        for half in range(2):
            for p in range(4):
                a.vmem(f"buffer_load_dwordx4 {vr(praw(0, half, p))}, v{vX+p}, {sr(sX)}, s{sXo} offen offset:{half*64}", ("X", 0))
            if half == 0 and P0 == "2":
                a.e("s_barrier")
        for p in range(4):
            a.e(f"v_add_u32 v{vX+p}, 128, v{vX+p}")
    if P0 != "2" and "b0" in EXP:
        a.e("s_barrier")
    a.e(f"s_mul_i32 s36, s42, {FB}")
    a.e(f"v_add_u32 v{vW[0]}, s36, v{TMP}")
    a.e(f"v_add_u32 v{vW[1]}, {4*SEQB}, v{vW[0]}")
    a.e(f"s_mul_i32 s36, s42, {FB6}")
    a.e(f"s_add_u32 s36, s36, {6*SEQB}")
    a.e(f"v_add_u32 v{vW[2]}, s36, v{TMP}")
    def warm_tail():
        if KSPLIT and "notail" not in EXP:
            add64(a, sW, 30, WS_WF)
            a.e(f"s_mov_b32 s{sW+2}, {262144 + 32768}")
            a.e(f"s_mov_b32 s{sW+3}, 0x00020000")
            a.e("s_lshr_b32 s36, s2, 3")
            a.e("s_lshl_b32 s36, s36, 2")
            a.e(f"s_add_u32 s36, s36, s{sH}")
            a.e("s_mul_i32 s36, s36, 2304")
            a.e(f"v_lshlrev_b32 v1, 4, v{vL}")
            for i in range(3):
                a.e(f"buffer_load_dwordx4 v[4:7], v1, {sr(sW)}, s36 offen offset:{i*1024}")
        if "notw" not in EXP:
            a.e(f"s_cmp_ge_u32 s2, {os.environ.get('TWN', '32')}")
            a.e(f"s_cbranch_scc1 L_{name}_ntw")
            a.e("s_getpc_b64 s[36:37]")
            a.label(f"L_{name}_pc")
            a.e(f"s_lshl_b32 s38, s{sH}, 13")
            a.e(f"s_add_u32 s38, s38, L_{name}_epi-L_{name}_pc")
            a.e(f"v_lshl_add_u32 v2, v{vL}, 7, s38")
            a.e(f"v_min_u32 v2, {0x7fc0de01 + KSPLIT:#x}, v2")
            a.e("v_mov_b32 v3, s37")
            a.e("v_add_co_u32 v2, vcc, s36, v2")
            a.e("s_nop 1")
            a.e("v_addc_co_u32 v3, vcc, 0, v3, vcc")
            a.e("global_load_dword v4, v[2:3], off")
            a.label(f"L_{name}_ntw")

    UNI = KSPLIT and os.environ.get("UNI", "1") == "1"
    if UNI:
        sMA, sMB = 44, 45
        a.e(f"s_mov_b32 s{sK}, 0")
        a.e(f"s_mov_b32 s{sXo}, {8*PLH}")
        a.e(f"s_cmp_ge_u32 s{sWv}, 12")
        a.e(f"s_cselect_b32 s{sMA}, {(1 << N) - 4}, 0")
        a.e(f"s_cselect_b32 s{sMB}, {1 | 1 << (N - 1)}, -1")
        a.e("s_setprio 0")
        a.e(f"s_cbranch_scc1 L_{name}_hloop")
        a.e("s_setprio 1")

        def sync(mask, lbl):
            a.e(f"s_bitcmp1_b32 s{mask}, s{sK}")
            a.e(f"s_cbranch_scc0 {lbl}")
            a.e("s_waitcnt lgkmcnt(0)")
            a.e("s_barrier")
            a.label(lbl)
        a.label(f"L_{name}_hloop")
        for c in range(2):
            a.e("s_waitcnt vmcnt(4)")
            for op in tr_ops(c):
                a.e(op)
            sync(sMA, f"L_{name}_sa{c}")
            a.lg = []
            for i in range(7):
                wr(c, i)
            for r in (0, 2, 1, 3):
                a.e(f"buffer_load_dwordx4 {vr(praw(0, c, r))}, v{vX+r}, {sr(sX)}, s{sXo} offen")
            a.e(f"s_add_u32 s{sXo}, s{sXo}, {4*PLH}")
            sync(sMB, f"L_{name}_sb{c}")
            a.e(f"s_add_u32 s{sK}, s{sK}, 1")
        a.e(f"s_cmp_lt_u32 s{sK}, {N}")
        a.e(f"s_cbranch_scc1 L_{name}_hloop")
        a.e(f"s_cmp_ge_u32 s{sWv}, 12")
        a.e(f"s_cbranch_scc1 L_{name}_end")
        warm_tail()
        a.e(f"s_branch L_{name}_end")
    mark = len(a.L)
    stamp(3)
    a.e(f"s_waitcnt vmcnt({0 if P0 == '0' else 4})")
    stamp(4)
    a.e(f"s_mov_b32 s{sK}, 0")
    a.e(f"s_mov_b32 s{sCnt}, {N//4}")
    a.vm, a.lg = [], []
    if not KSPLIT and os.environ.get("W2", "1") == "3":
        a.e("s_load_dwordx2 s[48:49], s[0:1], 16")
    wr(0, 3)
    wr(0, 6)
    for op in tr_ops(0):
        a.e(op)
    for i in (0, 1, 2, 4, 5):
        wr(0, i)
    stamp(5)
    a.e(f"s_cmp_ge_u32 s{sWv}, 12")
    a.e(f"s_cbranch_scc1 L_{name}_h2")

    def hwave(role):
        SH = 33 * int(os.environ.get(f"SH{role}", "0" if role == 1 else "4"))
        ahead = 2 if SH else 1
        a.vm, a.lg = [], []
        W2E = role == 2 and not KSPLIT and os.environ.get("W2", "1") == "3"
        NF = int(os.environ.get("NF", "2"))
        if KSPLIT:
            a.e(f"s_mov_b32 s{sXo}, {8*PLH}")
            a.e(f"s_mov_b32 s{sXo2}, {12*PLH}")
        X1 = os.environ.get("X1", "1")
        if X1 == "0":
            for p in range(4 if SH else NF):
                xload(1, p)
        a.e("s_waitcnt lgkmcnt(0)")
        stamp(6)
        a.e("s_barrier")
        stamp(7)
        rstamp(12)
        if X1 == "1":
            for p in range(4 if SH else NF):
                xload(1, p)
        PA, PB_ = os.environ.get(f'PH{role}', '11' if role == 1 else '00')
        a.e(f"s_setprio {PA}")
        for op in tr_ops(1)[:SH]:
            a.e(op)
        if role == 1 and os.environ.get("MW", ""):
            a.e(f"s_cmp_lt_u32 s2, {os.environ.get('TWN', '32')}")
            a.e("s_cselect_b32 s55, 1, 99")
            a.e("s_getpc_b64 s[36:37]")
            a.label(f"L_{name}_pc3")
            a.e(f"s_sub_u32 s36, s36, L_{name}_pc3-{name}")
            a.e("s_subb_u32 s37, s37, 0")
            a.e(f"s_lshl_b32 s38, s{sH}, 13")
            a.e(f"v_lshl_add_u32 v102, v{vL}, 7, s38")
            a.e(f"v_min_u32 v102, L_{name}_done-{name}, v102")
            a.e("v_mov_b32 v103, s37")
            a.e("v_add_co_u32 v102, vcc, s36, v102")
            a.e("s_nop 1")
            a.e("v_addc_co_u32 v103, vcc, 0, v103, vcc")
        if W2E:
            a.e("s_lshr_b32 s52, s2, 6")
            a.e("s_lshl_b32 s52, s52, 3")
            a.e("s_bfe_u32 s36, s2, 0x10005")
            a.e("s_add_u32 s52, s52, s36")
            a.e("s_lshl_b32 s52, s52, 17")
            a.e("s_bfe_u32 s36, s2, 0x30002")
            a.e("s_lshl_b32 s36, s36, 1")
            a.e(f"s_and_b32 s37, s{sH}, 1")
            a.e("s_add_u32 s36, s36, s37")
            a.e("s_lshl_b32 s36, s36, 13")
            a.e("s_add_u32 s52, s52, s36")
            a.e("s_and_b32 s36, s2, 3")
            a.e("s_lshl_b32 s36, s36, 1")
            a.e(f"s_lshr_b32 s37, s{sH}, 1")
            a.e("s_add_u32 s36, s36, s37")
            a.e("s_lshl_b32 s36, s36, 6")
            a.e("s_add_u32 s52, s52, s36")
            a.e(f"s_mov_b32 s50, {31*131072}")
            a.e("s_mov_b32 s51, 0x00020000")
            a.e(f"v_lshrrev_b32 v99, 4, v{vL}")
            a.e("v_lshlrev_b32 v99, 11, v99")
            a.e(f"v_and_b32 v100, 15, v{vL}")
            a.e("v_lshl_add_u32 v99, v100, 2, v99")

        def w2load(pos):
            a.e(f"s_cmp_lg_u32 s{sCnt}, {os.environ.get('W2I', '3')}")
            a.e(f"s_cbranch_scc1 L_{name}_w2s{pos}")
            for e in range(4):
                a.e(f"buffer_load_dword v{100+pos*4+e}, v99, s[48:51], s52 offen offset:{e*512}")
            a.e(f"s_add_u32 s52, s52, {2*131072}")
            a.label(f"L_{name}_w2s{pos}")
        VPF = int(os.environ.get("VPF", "0")) if role == 1 and not KSPLIT and XL == 3 else 0
        if VPF:
            a.e(f"s_lshl_b32 s36, s{sCb}, 6")
            a.e(f"s_lshl_b32 s37, s{sH}, 3")
            a.e("s_add_u32 s36, s36, s37")
            a.e("s_lshl_b32 s36, s36, 10")
            a.e("s_add_u32 s36, s36, s41")
            a.e(f"s_add_u32 s36, s36, {VPF*128}")
            a.e(f"v_and_b32 v100, 7, v{vL}")
            a.e("v_lshl_add_u32 v100, v100, 10, s36")

        def vpf(k):
            a.e(f"s_cmp_lt_u32 s{sK}, {N - 2*VPF}")
            a.e(f"s_cselect_b32 s36, 0, {OOB}")
            a.vmem(f"buffer_load_dword v99, v100, {sr(sX)}, s36 offen", "PF")
            a.e(f"v_add_u32 v100, {(128 - 32768) & 0xffffffff if k & 1 else 32768}, v100")
        XD = {(0, 1): "0.2,0.4,0.2,0.4", (0, 2): "0.3,0.5,0.3,0.5", (1, 1): "1,1,1,1", (1, 2): "0,0,0,0"}
        XP = [float(x) for x in os.environ.get(f"XP{1 + int(KSPLIT)}{role}", XD[int(KSPLIT), role]).split(",")]

        def period(k, pos, last=False):
            pair = (k >> 1) + 2 if SH else (k + 3) >> 1
            first = not (k & 1) if SH else (k & 1)
            if pos == 4 - ahead and not last:
                a.e(f"s_cmp_eq_u32 s{sCnt}, 1")
                a.e(f"s_cbranch_scc1 L_{name}_hlast{role}")
            if "hst" in EXP and pos == 1:
                stamp(2)
            V1 = tr_ops(k + 1)[SH:]
            V2 = [] if last else tr_ops(k + 2)[:SH]
            V = V1 + V2
            n = len(V)
            ev = {}

            def at(i, f):
                ev.setdefault(max(0, min(int(i), n)), []).append(f)

            def stores():
                if "hst" in EXP and pos == 1:
                    stamp(3)
                for i in range(7):
                    wr(k + 1, i)
                if "hst" in EXP and pos == 1:
                    stamp(4)
                if PA != PB_:
                    a.e(f"s_setprio {PB_}")
            if PA != PB_:
                a.e(f"s_setprio {PA}")
            if VPF and not last:
                at(float(os.environ.get("VPP", "1.0")) * n, lambda: vpf(k))
            at(len(V1), stores)
            if W2E and not last:
                at(len(V1) + 1 + float(os.environ.get("W2X", "0")) * n, lambda: w2load(pos))
            if not last:
                if not KSPLIT:
                    a.e(f"s_cmp_lt_u32 s{sK}, {N - 2 - ahead}")
                    a.e(f"s_cselect_b32 s{sXo}, 0, {OOB}")
                elif first:
                    a.e(f"s_add_u32 s{sXo}, s{sXo}, {8*PLH}")
                    a.e(f"s_add_u32 s{sXo2}, s{sXo2}, {8*PLH}")
                at(len(V1) if SH else 0, lambda: a.wait(vm=(("X", (k + ahead) >> 1),)))
                if "nox" not in EXP:
                    for p in (range(NF) if first else range(NF, 4)):
                        w = len(V1) + XP[p] * SH if SH and first else XP[p] * n
                        at(w, lambda p=p: xload(pair, p))
            for i in range(n + 1):
                for f in ev.get(i, []):
                    f()
                if i < n:
                    a.e(V[i])
            MW = os.environ.get("MW", "")
            if role == 1 and MW and pos == int(MW) and not last:
                a.e(f"s_cmp_lg_u32 s{sCnt}, s55")
                a.e(f"s_cbranch_scc1 L_{name}_nmw")
                a.e("global_load_dword v101, v[102:103], off")
                a.label(f"L_{name}_nmw")
            if not last:
                a.e(f"s_add_u32 s{sK}, s{sK}, 1")
            if "hst" in EXP and pos == 1:
                stamp(5)
            a.e("s_waitcnt lgkmcnt(0)")
            a.lg = []
            a.e("s_barrier")
            if "hst" in EXP and pos == 1:
                stamp(6)

        body = steady(period, 4, "nox" not in EXP)
        a.label(f"L_{name}_hloop{role}")
        a.L.extend(body)
        a.e(f"s_sub_u32 s{sCnt}, s{sCnt}, 1")
        a.e(f"s_branch L_{name}_hloop{role}")
        a.label(f"L_{name}_hlast{role}")
        a.vm, a.lg = [], []

        def last_period():
            vm = a.vm
            a.vm, a.lg = [], []
            if SH:
                a.e(f"s_mov_b32 s{sMask}, 0xffff0000")
                period(2, 2, True)
            a.vm = vm
        if role == 1 or KSPLIT or W2P:
            last_period()
        else:
            assert SH
            W2L = os.environ.get("W2L", "0") == "1"
            if W2L:
                last_period()
            a.e("s_waitcnt vmcnt(0)")
            a.e(f"s_mov_b32 s58, s{sWv}")
            a.e(f"s_lshl_b32 s20, s2, 2")
            a.e(f"s_add_u32 s20, s20, s{sH}")
            a.e(f"v_mov_b32 v1, v{vL}")
            if W2E:
                W2R = int(os.environ.get("W2R", "0"))

                def only_stores():
                    a.lg = []
                    for i in range(7):
                        wr(3, i)
                wprep2(a, 16, WS_W2P, only_stores if W2R else last_period, pre=100, late=W2R)
            elif os.environ.get("W2", "1") == "2":
                wprep2(a, 16, WS_W2P, last_period, LB=False)
            else:
                wprep(a, 16, WS_W2P, True, barrier=None if W2L else last_period)
            a.e(f"s_mov_b32 s{sWv}, s58")
            for _ in range(int(os.environ.get("HB1", "0"))):
                a.e("s_barrier")
        if role == 1:
            warm_tail()
        stamp(8)
        rstamp(13)
        a.e(f"s_branch L_{name}_end")

    hwave(1)
    a.label(f"L_{name}_h2")
    hwave(2)
    if UNI:
        del a.L[mark:]

    a.label(f"L_{name}_epi")
    K = [sr(x, 2) for x in KS]
    a.e("s_waitcnt lgkmcnt(0)")
    a.e("s_barrier")
    if "est" in EXP:
        stamp(2)
    a.e(f"v_cndmask_b32 v{vO}, v{t3}, v{t2}, vcc")

    def P(c, s, r=0):
        return c * 32 + s * 4 + r
    Y = 64
    TB = 96
    ELS = (0, 1, 2)
    for c in range(2):
        for s_ in range(8):
            if c == 1 and s_ == 7:
                a.e("s_waitcnt lgkmcnt(7)")
            u = UNIT[s_][c]
            a.e(f"ds_read_b128 {vr(P(c, s_))}, v{R0[u >> 16]} offset:{u & 0xffff}")

    def p2(x):
        return vr(x, 2)

    def padd(d, x, y):
        return f"v_pk_add_f32 {p2(d)}, {p2(x)}, {p2(y)}"

    def psub(d, x, y):
        return f"v_pk_add_f32 {p2(d)}, {p2(x)}, {p2(y)} neg_lo:[0,1] neg_hi:[0,1]"

    def pfma(d, x, k, y, neg=False):
        return f"v_pk_fma_f32 {p2(d)}, {p2(x)}, {k}, {p2(y)}" + (" neg_lo:[0,0,1] neg_hi:[0,0,1]" if neg else "")

    def interp(c):
        seq = []
        for r in (0, 2):
            E0, A, B, C, D, Q, E6, E6b = (P(c, x, r) for x in range(8))
            y = [Y + ph * 8 + c * 4 + r for ph in range(4)]
            S1, G = E6, C
            seq.append([
                padd(y[3], E6, E6b),
                padd(S1, A, B),
                psub(A, A, B),
                padd(y[1], C, D),
                psub(G, C, D),
                pfma(y[1], S1, K[0], y[1]),
                pfma(Q, E0, K[3], Q),
                pfma(y[1], E0, K[1], y[1]),
                psub(S1, S1, E0),
                pfma(y[1], y[3], K[2], y[1]),
                psub(S1, S1, y[3]),
                pfma(Q, y[3], K[6], Q),
                psub(B, S1, y[1]),
                pfma(Q, y[1], K[5], Q),
                f"v_pk_mul_f32 {p2(y[2])}, {p2(G)}, {K[9]}",
                pfma(Q, B, K[4], Q),
                pfma(y[2], A, K[10], y[2]),
                pfma(y[0], A, K[7], Q, True),
                pfma(y[0], G, K[8], y[0]),
                pfma(y[2], y[0], K[11], y[2]),
                psub(A, A, y[0]),
                psub(A, A, y[2]),
            ])
        for ops in zip(*seq):
            for op in ops:
                a.e(op)

    a.e("s_waitcnt lgkmcnt(8)")
    interp(0)
    a.e("s_waitcnt lgkmcnt(0)")
    interp(1)
    if "est" in EXP:
        stamp(3)
    a.e("s_mov_b32 s36, 0x00010001")
    a.e("s_mov_b32 s37, 0x00010001")
    a.e("s_mov_b64 exec, s[36:37]")
    for k in range(3):
        for c in range(2):
            a.e(f"ds_write_b128 v{vBW}, {vr(P(c, ELS[k]))} offset:{(k*2+c)*16}")
    a.e("s_mov_b64 exec, -1")

    def finish(ph):
        ys = [Y + ph * 8 + i for i in range(8)]
        if not KSPLIT:
            ts = [16 + (ph & 1) * 8 + i for i in range(8)]
            ev = list(zip(ys[::2], ts[::2]))
            for y, t in ev:
                a.e(f"v_pk_mul_f32 {p2(t)}, {p2(y)}, {p2(y)}")
            for y, t in ev:
                a.e(pfma(t, t, K[12], 44))
            for y, t in ev:
                a.e(f"v_pk_mul_f32 {p2(t)}, {p2(t)}, {p2(y)}")
            for t in ts:
                a.e(f"v_exp_f32 v{t}, v{t}")
            for y, t in ev:
                a.e(f"v_pk_add_f32 {p2(t)}, {p2(t)}, {K[13]}")
            for t in ts:
                a.e(f"v_rcp_f32 v{t}, v{t}")
            for y, t in ev:
                a.e(f"v_pk_mul_f32 {p2(y)}, {p2(y)}, {p2(t)}")
        o = 48 + ph * 4
        for r in range(4):
            a.e(f"v_cvt_pk_bf16_f32 v{o+r}, v{ys[r]}, v{ys[4+r]}")
        so = ph * PLF if KSPLIT else ((ph + 3) & 3) * PLH + ((ph + 7) >> 2) * 64
        a.e(f"s_mov_b32 s44, {so}")
        a.e(f"buffer_store_dwordx4 {vr(o)}, v{vO}, {sr(sO)}, s44 offen{NTF if KSPLIT else NTH}")

    a.e(f"v_mov_b32 v44, {f32hex(k0)}")
    a.e("v_mov_b32 v45, v44")
    finish(0)
    a.e("s_waitcnt lgkmcnt(0)")
    a.e("s_barrier")
    if "est" in EXP:
        stamp(4)
    for i in range(6):
        a.e(f"ds_read_b128 {vr(TB+4*i)}, v{vBW} offset:{512 + i*16}")
    for ph in range(1, 4):
        a.e(f"s_waitcnt lgkmcnt({6 - 2*ph})")
        for c in range(2):
            for r in range(4):
                i = (ph - 1) * 8 + c * 4 + r
                a.e(f"v_mov_b32_dpp v{TB+i}, v{P(c, ELS[ph-1], r)} row_shl:1 row_mask:0xf bank_mask:0xf")
        for i in range(0, 8, 2):
            a.e(padd(Y + ph * 8 + i, Y + ph * 8 + i, TB + (ph - 1) * 8 + i))
        finish(ph)
    if "est" in EXP:
        stamp(5)
    RB = os.environ.get("RB", "00")[int(KSPLIT)]
    if RB != "0":
        if not KSPLIT:
            a.e(f"s_cmp_ge_u32 s{sCb}, {RB}")
            a.e(f"s_cbranch_scc1 L_{name}_end")
        a.e("s_waitcnt vmcnt(0)")
        for ph in range(4):
            so = ph * PLF if KSPLIT else ((ph + 3) & 3) * PLH + ((ph + 7) >> 2) * 64
            a.e(f"s_mov_b32 s44, {so}")
            a.e(f"buffer_load_dword v0, v{vO}, {sr(sO)}, s44 offen")
    a.label(f"L_{name}_end")
    if STAMP:
        a.e("s_waitcnt vmcnt(0)")
        stamp(9, False)
        a.e(f"s_memrealtime s[{sSt+22}:{sSt+23}]")
        a.e(f"s_cmp_lg_u32 s{sWv}, {os.environ.get('SW', '0')}")
        a.e(f"s_cbranch_scc1 L_{name}_done")
        a.e("s_lshl_b32 s36, s2, 7")
        a.e(f"s_add_u32 s36, s36, {WS_STAMP + cfg['stamp']*0x10000}")
        add64(a, 40, 30, "s36")
        a.e("s_mov_b32 s42, 128")
        a.e("s_mov_b32 s43, 0x00020000")
        a.e("s_waitcnt lgkmcnt(0)")
        a.e("v_mov_b32 v8, 0")
        for i in range(28):
            a.e(f"v_mov_b32 v0, s{sSt+i}")
            a.e(f"buffer_store_dword v0, v8, s[40:43], 0 offen offset:{4*i}")
    a.label(f"L_{name}_done")
    a.e("s_endpgm")
    if "nohf" not in EXP:
        L = a.L
        b = L.index(f"    s_cbranch_scc1 L_{name}_helper")
        h0, h1 = L.index(f"L_{name}_helper:"), L.index(f"L_{name}_epi:")
        a.L = L[:b] + [f"    s_cbranch_scc0 L_{name}_mw"] + L[h0:h1] + [f"L_{name}_mw:"] + L[b + 1:h0] + L[h1:]
    return a.L, TOPB + 40960, 128


CONV1 = dict(tin=16000, tout=8000, nchunk=16, ksplit=False, in_arg=0, in_off=0, w_off=WS_W1P, out_off=WS_H, stamp=0)
CONV2 = dict(tin=8000, tout=4000, nchunk=8, ksplit=True, in_arg=72, in_off=WS_H, w_off=WS_W2P, out_off=WS_FP, stamp=1)

HEADER = f"""; Kernarg layout for this problem (80 bytes, ptrs only, base s[0:1]):
"""


def main():
    ks = [("prep_kernel", 256, 640 if W2P else 384) + prep_kernel("prep_kernel"),
          ("conv1_kernel", 256, 1024) + conv_kernel("conv1_kernel", CONV1),
          ("conv2_kernel", 256, 1024) + conv_kernel("conv2_kernel", CONV2)]
    ks = joint_kernels(ks)
    out = HEADER
    for nm, grid, block, code, lds, vg in ks:
        out += f"; @launch kernel={nm} grid=({grid},1,1) block=({block},1,1) lds={lds}\n"
    out += '.amdgcn_target "amdgcn-amd-amdhsa--gfx950"\n.text\n'
    for nm, grid, block, code, lds, vg in ks:
        if "noalign" not in EXP:
            code = align8(code)
        out += f".globl {nm}\n.p2align 8\n.type {nm},@function\n" + "\n".join(code) + "\n"
    out += '.section .rodata,"a"\n'
    for nm, grid, block, code, lds, vg in ks:
        out += ".p2align 6\n" + kd(nm, vg)
    out = out.replace("0x7fc0de00", "L_joint_kernel_done-L_prep_kernel_pc")
    out = out.replace("0x7fc0de01", "L_conv2_kernel_done-L_conv1_kernel_pc")
    out = out.replace("0x7fc0de02", "L_joint_kernel_done-L_conv2_kernel_pc")
    path = sys.argv[1] if len(sys.argv) > 1 else "standalone__seq2seq_rnn_t_joint__speech.s"
    open(path, "w").write(out)


if __name__ == "__main__":
    main()
```

```python
import os
import sys

from asmlib import Asm, vr, sr, kd, f32hex, align8
from gen13_joint import small_head, small_tail, joint_kernels

EXP = os.environ.get("EXP", "").split(",")

WS_W1P = 0x0000000
WS_W2P = 0x0900000
WS_H = 0x1200000
WS_FP = 0x1A00000
WS_FPS = 0x800000
WS_WF = 0x2A00000
WS_STAMP = 0x3000000

CHUNKB = 7 * 8192
FB = 1024
BB = 8 * FB
SEQB = 2 * BB
FB6 = 1088
BB6 = 8 * FB6
SPB = 6 * SEQB + 2 * BB6
TOPB = SPB + 6144
OOB = 0x7f000000
W2P = os.environ.get('W2', '1') == '0'
LOCAL = 'local' in EXP
PLH, PLF = int(os.environ.get('PLH', 131072)), int(os.environ.get('PLF', 65536))
NTW, NTH, NTF = ({"0": "", "1": " nt", "2": " sc1", "3": " sc0 sc1"}[c] for c in os.environ.get("NT", "222"))


def add64(a, d, lo, off):
    a.e(f"s_add_u32 s{d}, s{lo}, {off}")
    a.e(f"s_addc_u32 s{d+1}, s{lo+1}, 0")


def eval_ops(c, t):
    e1, o1, e2, o2 = t
    ops = [f"v_add_f32 v{e1}, v{c[0]}, v{c[2]}",
           f"v_add_f32 v{o1}, v{c[1]}, v{c[3]}",
           f"v_fma_f32 v{e2}, v{c[2]}, 4.0, v{c[0]}",
           f"v_fma_f32 v{o2}, v{c[3]}, 4.0, v{c[1]}",
           f"v_add_f32 v{c[1]}, v{e1}, v{o1}",
           f"v_sub_f32 v{c[2]}, v{e1}, v{o1}",
           f"v_fma_f32 v{c[3]}, v{o2}, 2.0, v{e2}",
           f"v_fma_f32 v{e2}, v{o2}, -2.0, v{e2}",
           f"v_fmamk_f32 v{e1}, v{c[0]}, {f32hex(15.0)}, v{e2}",
           f"v_fmamk_f32 v{e1}, v{o1}, {f32hex(10.0)}, v{e1}"]
    return ops, [c[1], c[2], c[3], e2, e1]


def wprep(a, karg, wsoff, ws_loaded, barrier=False, extra=None, small=None, mid=None):
    a.vm, a.lg = [], []
    a.e(f"s_load_dwordx2 s[8:9], s[0:1], {karg}")
    if not ws_loaded:
        a.e("s_load_dwordx2 s[30:31], s[0:1], 72")
    a.e("s_lshr_b32 s22, s20, 8")
    a.e("s_bfe_u32 s23, s20, 0x40004")
    a.e("s_bfe_u32 s24, s20, 0x30001")
    a.e("s_and_b32 s21, s20, 1")
    a.e("v_lshrrev_b32 v2, 4, v1")
    a.e("v_lshlrev_b32 v2, 12, v2")
    a.e("v_and_b32 v3, 15, v1")
    a.e("v_lshl_add_u32 v2, v3, 2, v2")
    a.e("s_lshl_b32 s26, s22, 3")
    a.e("s_lshr_b32 s27, s23, 3")
    a.e("s_add_u32 s26, s26, s27")
    a.e("s_lshl_b32 s26, s26, 17")
    a.e("s_and_b32 s27, s23, 7")
    a.e("s_lshl_b32 s27, s27, 14")
    a.e("s_add_u32 s26, s26, s27")
    a.e("s_lshl_b32 s27, s24, 6")
    a.e("s_add_u32 s26, s26, s27")
    a.e(f"s_mov_b32 s10, {31*131072}")
    a.e("s_mov_b32 s11, 0x00020000")
    if small:
        small_select(a)
        a.e("s_add_u32 s37, s26, s5")
        a.e("s_add_u32 s38, s37, s5")
        a.e("s_add_u32 s39, s38, s5")
    else:
        for p in range(1, 4):
            a.e(f"s_add_u32 s{36+p}, s26, {2*131072*p}")
    a.e("s_waitcnt lgkmcnt(0)")
    if small:
        small_ptr(a)
        small_g(a, "prep_kernel")
    R = 16
    for e2 in range(4):
        for p in range(4):
            for e in (2 * e2, 2 * e2 + 1):
                a.vmem(f"buffer_load_dword v{R+p*8+e}, v2, s[8:11], s{36+p if p else 26} offen offset:{e*512}", ("L", e2))
    if small:
        a.e("s_cmp_lt_u32 s3, 12")
        a.e(f"s_cbranch_scc1 {small}")
    if mid:
        mid()
    add64(a, 12, 30, wsoff)
    a.e(f"s_mov_b32 s14, {8*16*CHUNKB}")
    a.e("s_mov_b32 s15, 0x00020000")
    a.e("v_lshlrev_b32 v4, 4, v1")
    a.e("s_lshl_b32 s27, s24, 4")
    a.e("s_add_u32 s27, s27, s23")
    a.e(f"s_mul_i32 s27, s27, {CHUNKB}")
    a.e("s_lshl_b32 s28, s22, 11")
    a.e("s_add_u32 s27, s27, s28")
    a.e("s_lshl_b32 s28, s21, 10")
    a.e("s_add_u32 s27, s27, s28")
    a.e("s_cmp_eq_u32 s21, 0")
    a.e("s_mov_b32 s32, 0x07060302")
    a.e("s_cselect_b32 s32, 0x05040100, s32")
    a.e("s_mov_b32 s33, 0x03020c0c")
    a.e("s_cselect_b32 s33, 0x01000c0c, s33")
    a.e(f"s_mov_b32 s35, {f32hex(1.0/24)}")
    a.e(f"s_mov_b32 s36, {f32hex(1.0/72)}")
    if barrier:
        barrier()
    OUT = 48
    T = 76
    scale = ("0.5", "0.5", "s35", "s35", "s36")
    for e2 in range(4):
        a.wait(vm=(("L", e2),))
        if extra and e2 == int(os.environ.get("XT", "3")):
            extra()
        for p, seq in ((0, 6), (3, 0)):
            a.e(f"v_perm_b32 v{OUT+seq*4+e2}, v{R+p*8+2*e2+1}, v{R+p*8+2*e2}, s32")
        res, lists = [], []
        for e in range(2):
            cf = [T + e * 8 + i for i in range(4)]
            ops = [f"v_perm_b32 v{cf[i]}, v{cf[i]}, v{R + (3 - i) * 8 + 2 * e2 + e}, s33" for i in range(4)]
            o, rr = eval_ops(cf, [T + e * 8 + 4 + i for i in range(4)])
            ops += o + [f"v_mul_f32 v{r}, {sc}, v{r}" for r, sc in zip(rr, scale)]
            res.append(rr)
            lists.append(ops)
        for x, y in zip(*lists):
            a.e(x)
            a.e(y)
        for i in range(5):
            a.e(f"v_cvt_pk_bf16_f32 v{OUT+(1+i)*4+e2}, v{res[0][i]}, v{res[1][i]}")
    for seq in (6, 0, 1, 2, 3, 4, 5):
        a.e(f"s_add_u32 s28, s27, {seq*8192}")
        a.e(f"buffer_store_dwordx4 {vr(OUT+seq*4)}, v4, s[12:15], s28 offen{NTW}")


def wprep2(a, karg, wsoff, barrier, LB=True, extra=None, pre=None, mid=None, late=None):
    a.vm, a.lg = [], []
    if not pre:
        a.e(f"s_load_dwordx2 s[8:9], s[0:1], {karg}")
    a.e("s_lshr_b32 s22, s20, 8")
    a.e("s_bfe_u32 s23, s20, 0x40004")
    a.e("s_bfe_u32 s24, s20, 0x30001")
    a.e("s_and_b32 s21, s20, 1")
    a.e("v_lshrrev_b32 v5, 4, v1")
    a.e("v_lshlrev_b32 v2, 11, v5")
    a.e("v_and_b32 v3, 15, v1")
    a.e("v_lshl_add_u32 v2, v3, 2, v2")
    a.e("s_lshl_b32 s26, s22, 3")
    a.e("s_lshr_b32 s27, s23, 3")
    a.e("s_add_u32 s26, s26, s27")
    a.e("s_lshl_b32 s26, s26, 17")
    a.e("s_and_b32 s27, s23, 7")
    a.e("s_lshl_b32 s27, s27, 1")
    a.e("s_add_u32 s27, s27, s21")
    a.e("s_lshl_b32 s27, s27, 13")
    a.e("s_add_u32 s26, s26, s27")
    a.e("s_lshl_b32 s27, s24, 6")
    a.e("s_add_u32 s26, s26, s27")
    a.e(f"s_mov_b32 s10, {31*131072}")
    a.e("s_mov_b32 s11, 0x00020000")
    for p in range(1, 4):
        a.e(f"s_add_u32 s{36+p}, s26, {2*131072*p}")
    a.e(f"s_mov_b32 s14, {8*16*CHUNKB}")
    a.e("s_mov_b32 s15, 0x00020000")
    a.e("v_lshrrev_b32 v4, 1, v5")
    a.e("v_lshlrev_b32 v4, 8, v4")
    a.e("v_lshl_add_u32 v4, v3, 4, v4")
    a.e("v_and_b32 v5, 1, v5")
    a.e("v_lshl_add_u32 v4, v5, 10, v4")
    a.e("s_lshl_b32 s27, s24, 4")
    a.e("s_add_u32 s27, s27, s23")
    a.e(f"s_mul_i32 s27, s27, {CHUNKB}")
    a.e("s_lshl_b32 s28, s22, 11")
    a.e("s_add_u32 s27, s27, s28")
    a.e("s_lshl_b32 s28, s21, 9")
    a.e("s_add_u32 s27, s27, s28")
    a.e("s_mov_b32 s32, 0x05040100")
    a.e("s_mov_b32 s33, 0x07060302")
    a.e("s_mov_b32 s34, 0xffff0000")
    a.e(f"s_mov_b32 s35, {f32hex(1.0/24)}")
    a.e(f"s_mov_b32 s40, {f32hex(1.0/72)}")
    a.e("s_waitcnt lgkmcnt(0)")
    if W2P and karg == 8:
        a.e("s_cmp_eq_u32 s29, 1")
        a.e("s_cselect_b32 s8, s48, s8")
        a.e("s_cselect_b32 s9, s49, s9")
        a.e(f"s_mul_i32 s29, s29, {WS_W2P - WS_W1P}")
        wsoff = "s29"
    if LB:
        barrier()
    R, OUT, T = (pre, 16, 76) if pre else (16, 76, 104)
    for e2 in range(0 if pre else 2):
        for p in range(4):
            for e in (2 * e2, 2 * e2 + 1):
                a.vmem(f"buffer_load_dword v{R+p*4+e}, v2, s[8:11], s{36+p if p else 26} offen offset:{e*512}", ("L", e2))
    if mid:
        mid()
    if not LB:
        barrier()
    add64(a, 12, 30, wsoff)
    scale = ("0.5", "0.5", "s35", "s35", "s40")

    def out(seq, c):
        return OUT + (seq * 2 + c) * 2
    for e2 in range(2):
        a.wait(vm=(("L", e2),))
        if extra and e2 == 1:
            extra()
        for c in range(2):
            for p, seq in ((0, 6), (3, 0)):
                a.e(f"v_perm_b32 v{out(seq, c)+e2}, v{R+p*4+2*e2+1}, v{R+p*4+2*e2}, s{32+c}")
            res, lists = [], []
            for e in range(2):
                cf = [T + e * 8 + i for i in range(4)]
                src = [R + (3 - i) * 4 + 2 * e2 + e for i in range(4)]
                ops = [f"v_and_b32 v{d}, s34, v{x}" if c else f"v_lshlrev_b32 v{d}, 16, v{x}" for d, x in zip(cf, src)]
                o, rr = eval_ops(cf, [T + e * 8 + 4 + i for i in range(4)])
                ops += o + [f"v_mul_f32 v{r}, {sc}, v{r}" for r, sc in zip(rr, scale)]
                res.append(rr)
                lists.append(ops)
            for x, y in zip(*lists):
                a.e(x)
                a.e(y)
            for i in range(5):
                a.e(f"v_cvt_pk_bf16_f32 v{out(1+i, c)+e2}, v{res[0][i]}, v{res[1][i]}")
            if late == e2 * 2 + c + 1:
                a.e("s_waitcnt lgkmcnt(0)")
                a.e("s_barrier")
    for seq in (6, 0, 1, 2, 3, 4, 5):
        for d in range(2):
            a.e(f"v_permlane16_swap_b32 v{out(seq, 0)+d}, v{out(seq, 1)+d}")
        a.e(f"s_add_u32 s28, s27, {seq*8192}")
        a.e(f"buffer_store_dwordx4 {vr(out(seq, 0))}, v4, s[12:15], s28 offen{NTW}")
    if late == 5:
        a.e("s_waitcnt lgkmcnt(0)")
        a.e("s_barrier")


def prep_kernel(name):
    a = Asm()
    NWG = 256
    a.label(name)
    a.e(f"s_cmp_ge_u32 s2, {NWG}")
    a.e(f"s_cbranch_scc1 L_{name}_done")
    CW = os.environ.get("CW", "late")
    CWN = int(os.environ.get("CWN", "32"))

    def code_warm():
        a.e(f"s_cmp_lt_u32 s3, {256 - CWN}")
        a.e(f"s_cbranch_scc1 L_{name}_ncw")
        a.e("s_getpc_b64 s[62:63]")
        a.label(f"L_{name}_pc")
        a.e("s_and_b32 s64, s3, 8")
        a.e("s_lshl_b32 s64, s64, 12")
        a.e("v_lshlrev_b32 v120, 7, v0")
        a.e("v_add_u32 v120, s64, v120")
        a.e(f"v_min_u32 v120, 0x7fc0de00, v120")
        a.e("v_mov_b32 v121, s63")
        a.e("v_add_co_u32 v120, vcc, s62, v120")
        a.e("s_nop 1")
        a.e("v_addc_co_u32 v121, vcc, 0, v121, vcc")
        a.e("global_load_dword v122, v[120:121], off")
        a.label(f"L_{name}_ncw")
        return 0

    def x_warm():
        XW = int(os.environ.get("XW", "0"))
        if XW:
            a.e("s_and_b32 s64, s3, 7")
            a.e("s_lshr_b32 s65, s2, 3")
            a.e("s_lshr_b32 s66, s65, 3")
            a.e("s_lshl_b32 s64, s64, 2")
            a.e("s_add_u32 s64, s64, s66")
            a.e("s_mul_i32 s64, s64, 512000")
            a.e("s_and_b32 s65, s65, 7")
            a.e("s_lshl_b32 s65, s65, 2")
            a.e("s_and_b32 s66, s20, 3")
            a.e("s_add_u32 s65, s65, s66")
            a.e("s_lshl_b32 s65, s65, 14")
            a.e("s_add_u32 s64, s64, s65")
            a.e("s_sub_u32 s64, s64, 7680")
            a.e("v_lshrrev_b32 v120, 2, v1")
            a.e("v_lshlrev_b32 v120, 10, v120")
            a.e(f"v_and_b32 v121, {XW - 1}, v1")
            a.e("v_lshl_add_u32 v120, v121, 7, v120")
            a.e("v_add_u32 v120, s64, v120")
            a.e("s_mov_b32 s68, s44")
            a.e("s_mov_b32 s69, s45")
            a.e(f"s_mov_b32 s70, {2*16000*512}")
            a.e("s_mov_b32 s71, 0x00020000")
            a.vmem("buffer_load_dword v123, v120, s[68:71], 0 offen", "XW")
    a.e("s_mov_b32 s3, s2")
    if CW == "early":
        code_warm()
    a.e("s_load_dwordx16 s[44:59], s[0:1], 0")
    a.e("s_load_dwordx2 s[30:31], s[0:1], 72")
    if "stamp" in EXP:
        a.e("s_memrealtime s[60:61]")
    a.e("v_readfirstlane_b32 s40, v0")
    a.e("s_lshr_b32 s40, s40, 6")
    a.e("v_and_b32 v1, 63, v0")
    if W2P:
        a.e("s_sub_u32 s40, s40, 2")
        a.e("s_lshr_b32 s29, s40, 2")
        a.e(f"s_cbranch_scc0 L_{name}_w")
        a.e("s_cmp_lt_u32 s40, 8")
        a.e(f"s_cbranch_scc1 L_{name}_w")
        a.e("s_add_u32 s40, s40, 6")
    else:
        a.e("s_cmp_lt_u32 s40, 4")
        a.e(f"s_cbranch_scc1 L_{name}_w")
    small_head(a, name)
    a.label(f"L_{name}_w")
    if W2P:
        a.e("s_and_b32 s40, s40, 3")
    a.e("s_lshl_b32 s21, s2, 2")
    a.e("s_add_u32 s20, s40, s21")
    wprep2(a, 8, WS_W1P, lambda: a.e("s_barrier"), False, code_warm if CW == "late" else None, mid=x_warm)
    if "stamp" in EXP:
        a.e("s_waitcnt vmcnt(0)")
        a.e("s_memrealtime s[62:63]")
        a.e("s_lshl_b32 s36, s2, 7")
        a.e(f"s_add_u32 s36, s36, {WS_STAMP + 3*0x10000}")
        add64(a, 40, 30, "s36")
        a.e("s_mov_b32 s42, 128")
        a.e("s_mov_b32 s43, 0x00020000")
        a.e("s_waitcnt lgkmcnt(0)")
        a.e("v_mov_b32 v8, 0")
        a.e("v_mov_b32 v0, 1")
        a.e("buffer_store_dword v0, v8, s[40:43], 0 offen")
        for i in range(4):
            a.e(f"v_mov_b32 v0, s{60+i}")
            a.e(f"buffer_store_dword v0, v8, s[40:43], 0 offen offset:{80+4*i}")
    a.label(f"L_{name}_done")
    a.e("s_endpgm")
    small_tail(a, name)
    a.L.insert(len(a.L) - 1, f"L_{name}_last:")
    return a.L, 4096, 128


def conv_kernel(name, cfg):
    TIN, TOUT = cfg["tin"], cfg["tout"]
    N = cfg["nchunk"]
    KSPLIT = cfg["ksplit"]
    NWG = 256
    STAMP = "stamp" in EXP
    sX, sW, sO = 8, 12, 16
    sWv, sT0, sCnt, sBo, sXo, sMask = 20, 21, 22, 23, 24, 25
    sBo2 = 26
    sK, sCb, sH = 28, 29, 32
    sSt = 60
    vL = 127
    vU, vS_, vI, vKG = 8, 9, 10, 11

    a = Asm()
    a.label(name)
    a.e(f"s_cmp_ge_u32 s2, {NWG}")
    a.e(f"s_cbranch_scc1 L_{name}_done")

    def stamp(i, fence=True):
        if STAMP:
            a.e(f"s_memtime s[{sSt+2*i}:{sSt+2*i+1}]")
            if fence:
                a.e("s_waitcnt lgkmcnt(0)")
                a.lg = []

    def rstamp(i):
        if STAMP:
            a.e(f"s_memrealtime s[{sSt+2*i}:{sSt+2*i+1}]")
            a.e("s_waitcnt lgkmcnt(0)")
            a.lg = []
    if STAMP:
        for i in range(28):
            a.e(f"s_mov_b32 s{sSt+i}, 0")
        a.e(f"s_memrealtime s[{sSt+20}:{sSt+21}]")
    stamp(0, False)
    a.e(f"s_load_dwordx2 s[4:5], s[0:1], {cfg['in_arg']}")
    a.e("s_load_dwordx2 s[30:31], s[0:1], 72")
    a.e(f"v_readfirstlane_b32 s{sWv}, v0")
    a.e(f"s_lshr_b32 s{sWv}, s{sWv}, 6")
    if os.environ.get("WX", "8") != "0":
        a.e(f"s_xor_b32 s{sWv}, s{sWv}, {os.environ.get('WX', '8')}")
    XL = int((os.environ.get("XL", "33") * 2)[int(KSPLIT)])
    a.e(f"s_and_b32 s36, s2, {(8 >> XL) - 1}")
    a.e(f"s_lshl_b32 s36, s36, {XL}")
    a.e(f"s_bfe_u32 s37, s2, {(XL << 16) | 3}")
    a.e(f"s_or_b32 s{sCb}, s36, s37")
    a.e(f"s_bfe_u32 s36, s2, {(XL << 16) | (3 - XL)}")
    a.e(f"s_lshl_b32 s36, s36, {5 - XL}")
    a.e(f"s_lshr_b32 s37, s2, {3 + XL}")
    a.e("s_or_b32 s36, s36, s37")
    if KSPLIT:
        if LOCAL:
            a.e("s_and_b32 s33, s36, 1")
            a.e("s_bfe_u32 s34, s36, 0x30001")
            a.e("s_lshr_b32 s35, s36, 4")
        else:
            a.e("s_lshr_b32 s33, s36, 4")
            a.e("s_and_b32 s34, s36, 7")
            a.e("s_bfe_u32 s35, s36, 0x10003")
    else:
        a.e("s_mov_b32 s33, 0")
        a.e("s_and_b32 s34, s36, 15")
        a.e("s_lshr_b32 s35, s36, 4")
    a.e(f"s_mul_i32 s{sT0}, s34, 500")
    a.e(f"s_and_b32 s{sH}, s{sWv}, 3")
    a.e(f"v_and_b32 v{vL}, 63, v0")
    a.e(f"v_lshrrev_b32 v5, 2, v{vL}")
    a.e(f"v_and_b32 v6, 3, v{vL}")
    a.e(f"s_and_b32 s42, s{sWv}, 7")
    if not KSPLIT:
        a.e("v_lshlrev_b32 v7, 15, v5")
        a.e("v_lshl_add_u32 v7, v6, 4, v7")
        a.e(f"s_lshl_b32 s41, s{sT0}, 10")
        a.e("s_sub_u32 s41, s41, 7680")
        a.e("s_lshl_b32 s37, s42, 12")
        a.e("s_add_u32 s37, s37, s41")
        a.e("v_add_u32 v7, s37, v7")
        a.e(f"s_mul_i32 s36, s35, {TIN*512}")
        a.e(f"s_mov_b32 s{sX+2}, {TIN*512}")
    else:
        a.e(f"s_lshr_b32 s41, s{sT0}, 2")
        a.e("s_sub_u32 s41, s41, 1")
        a.e("s_add_u32 s37, s41, s42")
        a.e("v_lshl_add_u32 v7, v5, 3, s37")
        a.e(f"s_mul_i32 s36, s35, {32*PLH}")
        a.e(f"s_add_u32 s36, s36, {cfg['in_off']}")
        a.e(f"s_mov_b32 s{sX+2}, {32*PLH}")

    def haddr(dst, vG, vlane, p, t):
        a.e(f"s_add_u32 s37, s33, {2*p - 7 & 0xffffffff}")
        a.e(f"v_lshl_add_u32 v{t}, v{vG}, 3, s37")
        a.e(f"v_cmp_gt_u32 vcc, {TIN}, v{t}")
        a.e(f"s_mul_i32 s37, s33, {PLH}")
        a.e(f"s_add_u32 s37, s37, {(2*p & 3)*PLH + (p >> 1)*64}")
        a.e(f"v_lshl_add_u32 v{dst}, v{vG}, 7, s37")
        a.e(f"v_add_u32 v{dst}, v{dst}, v{vlane}")
        a.e(f"v_mov_b32 v{t}, {OOB}")
        a.e(f"v_cndmask_b32 v{dst}, v{t}, v{dst}, vcc")
    a.e(f"s_mov_b32 s{sX+3}, 0x00020000")
    a.e(f"s_mov_b32 s{sMask}, 0xffff0000")
    a.e("s_mov_b32 s47, s36")

    def kwait():
        a.e("s_waitcnt lgkmcnt(0)")
        stamp(1)
        add64(a, sX, 4, "s47")
    OB = 512

    def wsrd():
        a.e(f"s_lshl_b32 s36, s{sCb}, 4")
        a.e("s_lshl_b32 s37, s33, 3")
        a.e("s_add_u32 s36, s36, s37")
        a.e(f"s_mul_i32 s36, s36, {CHUNKB}")
        a.e(f"s_add_u32 s36, s36, {cfg['w_off']}")
        add64(a, sW, 30, "s36")
        a.e(f"s_mov_b32 s{sW+2}, {N*CHUNKB}")
        a.e(f"s_mov_b32 s{sW+3}, 0x00020000")

    def lds_throttle(need=1):
        if len(a.lg) + need > 15:
            a.e("s_waitcnt lgkmcnt(8)")
            a.lg = a.lg[-8:]

    def mf(acc, b, av):
        if "nomfma" not in EXP:
            a.e(f"v_mfma_f32_16x16x32_bf16 {vr(acc)}, {vr(b)}, {vr(av)}, {vr(acc)}")

    def steady(gen, per, strict=True):
        st = []
        for it in range(3):
            st.append(len(a.L))
            for pos in range(per):
                gen(per * it + pos, pos)
        st.append(len(a.L))
        bodies = [a.L[st[i]:st[i + 1]] for i in range(3)]
        if strict:
            assert bodies[1] == bodies[2], "loop not steady"
            assert bodies[0] == bodies[1], "loop entry not steady"
        del a.L[st[0]:]
        return bodies[1]

    a.e(f"s_cmp_ge_u32 s{sWv}, 8")
    a.e(f"s_cbranch_scc1 L_{name}_helper")

    ACC = 0
    vF, vA8, vD, vB = (120, 121), 122, (123, 124), 125
    vP = (116, 117, 118)
    vBZ = 119
    S, T, O = 96, 108, 64
    if not KSPLIT:
        a.e(f"s_add_u32 s37, s41, {128*4096}")
        a.e(f"v_lshl_add_u32 v{T}, v{vL}, 4, s37")
        for p in range(1, 3):
            a.e(f"v_add_u32 v{T+p}, {p*1024}, v{T}")
    else:
        a.e("s_add_u32 s37, s41, 128")
        a.e("v_mov_b32 v16, s37")
        a.e(f"v_mul_u32_u24 v17, {4*PLH}, v5")
        a.e("v_lshl_add_u32 v17, v6, 4, v17")
        for p in range(3):
            haddr(T + p, 16, 17, p, 18)
    kwait()
    ME = int(os.environ.get("ME", "0"))
    if ME:
        for p in range(3):
            a.vmem(f"buffer_load_dwordx4 {vr(S+4*p)}, v{T+p}, {sr(sX)}, 0 offen", "SP")
    wsrd()
    PLO = PLF if KSPLIT else PLH
    a.e(f"s_mul_i32 s36, s35, {32*PLO}")
    a.e(f"s_add_u32 s36, s36, {cfg['out_off']}")
    if KSPLIT:
        a.e(f"s_mul_i32 s37, s33, {WS_FPS}")
        a.e("s_add_u32 s36, s36, s37")
    add64(a, sO, 30, "s36")
    a.e(f"s_mov_b32 s{sO+2}, {32*PLO}")
    a.e(f"s_mov_b32 s{sO+3}, 0x00020000")
    a.e(f"v_and_b32 v{vI}, 15, v{vL}")
    a.e(f"v_lshrrev_b32 v{vKG}, 4, v{vL}")
    t = 16
    for d, sh in ((vU, 0), (vS_, 1)):
        a.e(f"v_add_u32 v{d}, {sh}, v{vI}")
        a.e(f"v_and_b32 v{t}, 4, v{d}")
        a.e(f"v_lshrrev_b32 v{t}, 1, v{t}")
        a.e(f"v_xor_b32 v{t}, v{vKG}, v{t}")
        a.e(f"v_lshlrev_b32 v{t}, 4, v{t}")
        a.e(f"v_lshl_add_u32 v{d}, v{d}, 6, v{t}")
    a.e(f"s_lshr_b32 s38, s{sH}, 1")
    a.e(f"s_and_b32 s39, s{sH}, 1")
    a.e("s_add_u32 s40, s38, 4")
    a.e("s_lshl_b32 s43, s39, 10")
    a.e(f"s_cmp_lt_u32 s{sWv}, 4")
    a.e(f"s_cselect_b32 s40, s{sWv}, s40")
    a.e("s_cselect_b32 s36, 0, s43")
    a.e("s_lshl_b32 s37, s40, 13")
    a.e("s_add_u32 s37, s37, s36")
    a.e(f"v_lshl_add_u32 v{vB}, v{vL}, 4, s37")
    a.e(f"s_mul_i32 s37, s40, {SEQB}")
    a.e(f"v_add_u32 v{vF[0]}, s37, v{vU}")
    a.e(f"v_add_u32 v{vF[1]}, s37, v{vS_}")
    a.e("s_lshl_b32 s37, s40, 10")
    a.e(f"s_add_u32 s37, s37, {SPB}")
    a.e(f"v_lshl_add_u32 v{t}, v{vKG}, 4, s37")
    a.e(f"v_cmp_eq_u32 vcc, 15, v{vI}")
    a.e(f"v_mov_b32 v{t+1}, {BB}")
    a.e(f"v_mov_b32 v{t+2}, {-BB & 0xffffffff}")
    a.e(f"v_mov_b32 v{t+3}, 64")
    a.e(f"v_cndmask_b32 v{vA8}, v{vF[1]}, v{t}, vcc")
    a.e(f"v_cndmask_b32 v{vD[0]}, v{t+1}, v{t+3}, vcc")
    a.e(f"v_cndmask_b32 v{vD[1]}, v{t+2}, v{t+3}, vcc")
    a.e(f"v_lshl_add_u32 v126, v{vL}, 4, s37")
    tabs = {44: (1.0, 1.0, 1.0, 1.0, 1.0, 16.0), 45: (0.0, 1.0, -1.0, 2.0, -2.0, 8.0),
            46: (0.0, 1.0, 1.0, 4.0, 4.0, 4.0)}
    for sg, tab in tabs.items():
        a.e(f"s_mov_b32 s{sg}, {f32hex(tab[0])}")
    for q in range(1, 6):
        a.e(f"s_cmp_eq_u32 s40, {q}")
        for sg, tab in tabs.items():
            if tab[q] != tab[0]:
                a.e(f"s_cselect_b32 s{sg}, {f32hex(tab[q])}, s{sg}")

    def special_rows():
        a.wait(vm=("SP",))
        for d in range(4):
            for p in range(3):
                a.e(f"v_lshlrev_b32 v{T+p}, 16, v{S+4*p+d}")
                a.e(f"v_and_b32 v{T+3+p}, s{sMask}, v{S+4*p+d}")
            for h in range(2):
                a.e(f"v_mul_f32 v{T+6+h}, s44, v{T+3*h}")
            for h in range(2):
                a.e(f"v_fmac_f32 v{T+6+h}, s45, v{T+3*h+1}")
            for h in range(2):
                a.e(f"v_fmac_f32 v{T+6+h}, s46, v{T+3*h+2}")
            a.e(f"v_cvt_pk_bf16_f32 v{S+d}, v{T+6}, v{T+7}")
        a.e(f"ds_write_b128 v126, {vr(S)}")

    def own_read(k, g, reg, tag, last=False):
        if g == 8:
            base, off = vA8, 0
        else:
            base, off = vF[g >> 3], (k & 1) * BB + (g & 7) * FB
        a.lds(f"ds_read_b128 {vr(reg)}, v{base} offset:{off}", tag)
        if g == 8 and not last:
            a.e(f"v_add_u32 v{vA8}, v{vD[k & 1]}, v{vA8}")

    UNIT = [(s * SEQB, s * SEQB + BB) for s in range(4)] + [(4 * SEQB, TOPB), (5 * SEQB, TOPB + 8192),
            (6 * SEQB, TOPB + 16384), (TOPB + 24576, TOPB + 32768)]
    EA = 96
    ES = []
    R0 = (120, 121, 64)
    vO, vBW = 122, 127
    BND = SPB
    t0, t1, t2, t3 = 108, 109, 110, 111
    ES.append(f"v_and_b32 v{t0}, 15, v{vL}")
    ES.append(f"v_lshrrev_b32 v{t1}, 4, v{vL}")
    ES.append(f"v_lshrrev_b32 v{t2}, 3, v{t0}")
    ES.append(f"s_lshl_b32 s36, s{sWv}, 1")
    ES.append(f"v_add_u32 v{t2}, s36, v{t2}")
    ES.append(f"v_xor_b32 v{t3}, v{t2}, v{t0}")
    ES.append(f"v_and_b32 v{t3}, 7, v{t3}")
    ES.append(f"v_lshlrev_b32 v{t3}, 4, v{t3}")
    ES.append(f"v_lshl_add_u32 v{t3}, v{t2}, 7, v{t3}")
    ES.append(f"v_lshl_add_u32 v{R0[0]}, v{t1}, 11, v{t3}")
    ES.append(f"v_add_u32 v{R0[1]}, 65536, v{R0[0]}")
    ES.append(f"v_add_u32 v{R0[2]}, 131072, v{R0[0]}")
    ES.append(f"s_lshl_b32 s36, s{sWv}, 9")
    ES.append(f"s_add_u32 s36, s36, {BND}")
    ES.append(f"v_lshl_add_u32 v{vBW}, v{t1}, 7, s36")
    ES.append(f"s_lshl_b32 s36, s{sWv}, 4")
    ES.append(f"v_add_u32 v{t0}, s36, v{t0}")
    ES.append(f"v_lshlrev_b32 v{t2}, 6, v{t0}")
    ES.append(f"v_lshl_add_u32 v{t2}, v{t1}, 4, v{t2}")
    ES.append(f"s_mul_i32 s36, s{sCb}, {4*PLO}")
    ES.append(f"s_lshl_b32 s37, s{sT0}, 4")
    ES.append("s_add_u32 s36, s36, s37")
    ES.append(f"v_add_u32 v{t2}, s36, v{t2}")
    ES.append(f"v_mov_b32 v{t3}, {OOB}")
    ES.append(f"v_cmp_gt_u32 vcc, 125, v{t0}")
    k0 = -2.0 * 1.4426950408889634 * 0.7978845608028654
    consts = [-1.0 / 3, 0.25, -5.0, -32.0 / 9, -8.0 / 9, -2.0 / 9, -1.0 / 18, 17.0 / 9, -2.0 / 3, 0.4, -1.0 / 15, -0.2,
              k0 * 0.044715, 1.0]
    KS = [4, 6, 8, 10, 12, 14, 22, 24, 26, 32, 34, 38, 40, 42]
    for sg, cv in zip(KS, consts):
        ES.append(f"s_mov_b32 s{sg}, {f32hex(cv)}")
        ES.append(f"s_mov_b32 s{sg+1}, s{sg}")

    def ex_addr(sbase):
        a.e(f"v_and_b32 v{EA}, 15, v{vL}")
        a.e(f"v_and_b32 v{EA+1}, 7, v{vL}")
        a.e(f"v_lshlrev_b32 v{EA+1}, 4, v{EA+1}")
        a.e(f"v_lshl_add_u32 v{EA}, v{EA}, 7, v{EA+1}")
        a.e(f"v_lshrrev_b32 v{EA+1}, 4, v{vL}")
        a.e(f"v_lshl_add_u32 v{EA}, v{EA+1}, 11, v{EA}")
        a.e(f"v_add_u32 v{EA}, s{sbase}, v{EA}")
        for f in range(1, 8):
            a.e(f"v_xor_b32 v{EA+f}, {f << 4}, v{EA}")

    def mwave(role):
        if role == 1:
            BR, AR, NR = 64, 96, 6
            steps = [("X", g) for g in range(11)]
        else:
            BR, AR, NR = 64, 88, 7
            steps = []
            for g in range(11):
                steps.append(("Y", g))
                if 1 <= g <= 9:
                    steps.append(("Z", g - 1))
        NS = len(steps)

        def bload(k, kind, q):
            if "nob" in EXP and k > 0:
                return
            so = sBo2 if q >> 1 else sBo
            if kind == "X":
                for c in range(2):
                    a.vmem(f"buffer_load_dwordx4 {vr(BR+(q*2+c)*4)}, v{vB}, {sr(sW)}, s{so} offen "
                           f"offset:{(q&1)*2048 + c*1024}", ("B", k, kind, q))
            elif kind == "Y":
                a.vmem(f"buffer_load_dwordx4 {vr(BR+q*4)}, v{vB}, {sr(sW)}, s{so} offen offset:{(q&1)*2048}",
                       ("B", k, kind, q))
            else:
                a.vmem(f"buffer_load_dwordx4 {vr(BR+16+q*4)}, v{vBZ}, {sr(sW)}, s{sBo} offen offset:{q*2048}",
                       ("B", k, kind, q))

        def rd(k, n, last=False):
            kind, g = steps[n]
            reg = AR + 4 * (n % NR)
            if kind == "Z":
                base, off = (vP[0], g * FB6) if g < 6 else (vP[1], (g - 6) * FB6) if g < 8 else (vP[2], 0)
                a.lds(f"ds_read_b128 {vr(reg)}, v{base} offset:{(k & 1)*BB6 + off}", ("A", k, n))
            else:
                own_read(k, g, reg, ("A", k, n), last)

        for i in range(64 if ME < 2 else 0):
            a.e(f"v_mov_b32 v{ACC+i}, 0")
        if "b0" in EXP:
            a.e("s_barrier")
        for p in range(0 if ME else 3):
            a.vmem(f"buffer_load_dwordx4 {vr(S+4*p)}, v{T+p}, {sr(sX)}, 0 offen", "SP")
        a.e(f"s_mov_b32 s{sBo}, 0")
        a.e(f"s_mov_b32 s{sBo2}, 4096")
        for st in steps:
            if st and st[1] >= 7:
                bload(0, st[0], st[1] - 7)
        a.e(f"s_mov_b32 s{sBo}, {CHUNKB}")
        a.e(f"s_mov_b32 s{sBo2}, {CHUNKB + 4096}")
        for i in range(64 if ME == 2 else 0):
            a.e(f"v_mov_b32 v{ACC+i}, 0")
        SPL = os.environ.get("SPL", "0") == "1"
        if not SPL:
            special_rows()
        if role == 2:
            a.e(f"v_and_b32 v{T+3}, 15, v{vL}")
            a.e(f"v_lshlrev_b32 v{T+3}, 2, v{T+3}")
            a.e(f"v_add_u32 v{T+3}, {6*SEQB + 1024}, v{T+3}")
            a.e(f"ds_write_b32 v{T+3}, v{ACC}")
            a.e(f"ds_write_b32 v{T+3}, v{ACC} offset:{BB6}")
        a.e("s_waitcnt lgkmcnt(0)")
        a.e("s_barrier")
        if SPL:
            a.e("s_setprio 3")
            special_rows()
            a.e("s_waitcnt lgkmcnt(0)")
        stamp(7)
        rstamp(12)
        a.e(f"s_mov_b32 s{sCnt}, {N//2}")
        a.e(f"s_setprio {os.environ.get(f'PM{role}', '2')}")

        CO = int(os.environ.get(f"CO{role}", "0" if role == 1 else "5"))
        assert CO < NR
        FM = int("fmaj" in EXP)
        vE = (vD[0], vD[1])

        def period(k, _, last=False):
            if "mst" in EXP and _ == 0:
                stamp(2)
            if "bst" in EXP and _ == 1 and not last:
                a.e("s_memtime s[90:91]")
                a.e("s_waitcnt vmcnt(0) lgkmcnt(0)")
                a.e("s_memtime s[92:93]")
                a.e("s_waitcnt lgkmcnt(0)")
                a.e("s_sub_u32 s92, s92, s90")
                a.e(f"s_add_u32 s{sSt+4}, s{sSt+4}, s92")
                a.e(f"s_max_u32 s{sSt+6}, s{sSt+6}, s92")
                a.vm = []
            for n in range(NR):
                rd(k, n, last)
            pend = []
            fill = []

            def flush(n, cnt):
                while pend and pend[0][0] <= n and cnt > 0:
                    _, h, f = pend.pop(0)
                    t = vE[(h + f) & 1]
                    a.e(f"v_xor_b32 v{t}, {f << 4}, v{vX0[h]}")
                    lds_throttle()
                    a.lds(f"ds_write_b128 v{t}, {vr(ACC + h*32 + f*4)}", "E")
                    cnt -= 1
                    for _i in range(min(12, len(fill))):
                        a.e(fill.pop(0))

            for n, st in enumerate(steps):
                if CO and n == NS - CO and not last:
                    a.wait(lg_all=True)
                    if "mst" in EXP and _ == 0:
                        stamp(3)
                    a.e("s_barrier")
                    if "mst" in EXP and _ == 0:
                        stamp(4)
                kind, g = st
                nt = 2 if kind == "Z" else 4
                qs = [q for q in range(nt) if 0 <= g - q <= 7]
                if FM and kind == "X":
                    if g >= 3:
                        f = g - 3
                        for c in range(2):
                            for q in range(4):
                                a.wait(lg=(("A", k, f + q),), vm=(("B", k, kind, q),))
                                mf(ACC + 32 * c + f * 4, BR + q * 8 + 4 * c, AR + 4 * ((f + q) % NR))
                        if f + NR < NS:
                            rd(k, f + NR, last)
                        if g == 10 and not last:
                            for q in range(4):
                                bload(k + 1, kind, q)
                    qs = []
                else:
                    a.wait(lg=(("A", k, n),), vm=tuple(("B", k, kind, q) for q in qs))
                reg = AR + 4 * (n % NR)
                for q in qs:
                    f = g - q
                    if kind == "X":
                        mf(ACC + f * 4, BR + q * 8, reg)
                        mf(ACC + 32 + f * 4, BR + q * 8 + 4, reg)
                    elif kind == "Y":
                        mf(ACC + f * 4, BR + q * 4, reg)
                    else:
                        mf(ACC + 32 + f * 4, BR + 16 + q * 4, reg)
                if g >= 7 and not last and not (FM and kind == "X"):
                    bload(k + 1, kind, g - 7)
                if n + NR < NS and not (FM and kind == "X"):
                    rd(k, n + NR, last)
                if last:
                    flush(n, int(os.environ.get('FL', '2')))
                    f = g - (nt - 1)
                    if f >= 0:
                        if kind == "X":
                            pend.append((n + 1, 0, f))
                            pend.append((max(n + 1, NS - NR + 1 + 3 * FM), 1, f))
                            pend.sort()
                        else:
                            pend.append((n + 3, 0 if kind == "Y" else 1, f))
                    if kind == "X" and n == NS - NR + 3 * FM:
                        a.wait(lg=(("A", k, NS - 1),))
            if last:
                fill += ES
                for _i in range(8):
                    a.e(fill.pop(0))
                flush(1000, 1000)
                for op in fill:
                    a.e(op)
                return
            a.e(f"s_add_u32 s{sBo}, s{sBo}, {CHUNKB}")
            a.e(f"s_add_u32 s{sBo2}, s{sBo2}, {CHUNKB}")
            assert not a.lg
            if "mst" in EXP and _ == 0:
                stamp(5)
            if not CO:
                a.e("s_barrier")
            if "mst" in EXP and _ == 0:
                stamp(6)

        def period2(k, pos):
            if pos == 1:
                a.e(f"s_sub_u32 s{sCnt}, s{sCnt}, 1")
                a.e(f"s_cmp_eq_u32 s{sCnt}, 0")
                a.e(f"s_cbranch_scc1 L_{name}_mlast{role}")
                state[0] = (list(a.vm), k)
            period(k, pos)

        state = [None]
        body = steady(period2, 2, "nob" not in EXP)
        if "nob" in EXP:
            a.e("s_waitcnt vmcnt(0)")
        a.label(f"L_{name}_mloop{role}")
        a.L.extend(body)
        a.e(f"s_branch L_{name}_mloop{role}")
        a.label(f"L_{name}_mlast{role}")
        a.vm, a.lg = state[0][0], []
        vX0 = (vB, 126)
        a.e(f"v_and_b32 v{vX0[0]}, 15, v{vL}")
        a.e(f"v_and_b32 v{vX0[1]}, 7, v{vL}")
        a.e(f"v_lshlrev_b32 v{vX0[1]}, 4, v{vX0[1]}")
        a.e(f"v_lshl_add_u32 v{vX0[0]}, v{vX0[0]}, 7, v{vX0[1]}")
        a.e(f"v_lshrrev_b32 v{vX0[1]}, 4, v{vL}")
        a.e(f"v_lshl_add_u32 v{vX0[0]}, v{vX0[1]}, 11, v{vX0[0]}")
        if role == 1:
            a.e(f"s_lshl_b32 s36, s{sWv}, 14")
            a.e("s_add_u32 s37, s36, 8192")
        else:
            for sg, tab in ((36, [UNIT[4 + (h >> 1)][h & 1] for h in range(4)]),
                            (37, [UNIT[6 + (h >> 1)][h & 1] for h in range(4)])):
                a.e(f"s_mov_b32 s{sg}, {tab[0]}")
                for h in range(1, 4):
                    a.e(f"s_cmp_eq_u32 s{sH}, {h}")
                    a.e(f"s_cselect_b32 s{sg}, {tab[h]}, s{sg}")
        a.e(f"v_add_u32 v{vX0[1]}, s37, v{vX0[0]}")
        a.e(f"v_add_u32 v{vX0[0]}, s36, v{vX0[0]}")
        if os.environ.get(f"PL{role}"):
            a.e(f"s_setprio {os.environ.get(f'PL{role}')}")
        period(state[0][1], 1, True)
        stamp(8, False)
        rstamp(13)
        a.e("s_setprio 0")
        a.vm, a.lg = [], []

    a.e(f"s_cmp_ge_u32 s{sWv}, 4")
    a.e(f"s_cbranch_scc1 L_{name}_m2")
    vm0 = list(a.vm)
    mwave(1)
    a.e(f"s_branch L_{name}_epi")
    a.label(f"L_{name}_m2")
    a.vm, a.lg = list(vm0), []
    a.e(f"s_mul_i32 s37, s38, {2*FB6}")
    a.e(f"s_add_u32 s37, s37, {6*SEQB}")
    a.e(f"v_add_u32 v{vP[0]}, s37, v{vU}")
    a.e(f"v_add_u32 v{vP[2]}, s37, v{vS_}")
    a.e(f"v_add_u32 v{vP[1]}, {6*SEQB + 6*FB6}, v{vU}")
    a.e("s_cmp_eq_u32 s38, 0")
    a.e(f"s_cbranch_scc1 L_{name}_hh0")
    a.e(f"v_add_u32 v{vP[1]}, {6*SEQB}, v{vS_}")
    a.label(f"L_{name}_hh0")
    a.e("s_lshl_b32 s37, s38, 12")
    a.e("s_add_u32 s37, s37, s43")
    a.e(f"s_add_u32 s37, s37, {6*8192}")
    a.e(f"v_lshl_add_u32 v{vBZ}, v{vL}, 4, s37")
    mwave(2)
    a.e(f"s_branch L_{name}_epi")

    a.label(f"L_{name}_helper")
    a.vm, a.lg = [], []
    a.e("s_setprio 3")
    PB = (0, 32)
    XO = 64
    TMP = 76
    vX = 92
    vW = (96, 97, 98)

    def praw(b, half, p):
        return PB[b] + half * 16 + p * 4

    sXo2 = 27

    def xload(pair, p):
        if KSPLIT:
            half, q = p >> 1, p & 1
            for r in (q, q + 2):
                a.vmem(f"buffer_load_dwordx4 {vr(praw(pair & 1, half, r))}, v{vX+r}, {sr(sX)}, "
                       f"s{sXo2 if half else sXo} offen", ("X", pair))
            return
        for half in range(2):
            a.vmem(f"buffer_load_dwordx4 {vr(praw(pair & 1, half, p))}, v{vX+p}, {sr(sX)}, "
                   f"s{sXo} offen offset:{half*64}", ("X", pair))
        a.e(f"v_add_u32 v{vX+p}, 128, v{vX+p}")

    def uregs(chunk):
        return [praw((chunk >> 1) & 1, chunk & 1, p) for p in range(4)]

    def wr(chunk, i):
        if "nowr" in EXP:
            return
        u = uregs(chunk)
        reg, seq = [(XO, 3), (XO + 4, 4), (XO + 8, 5), (u[0], 0), (u[1], 1), (u[2], 2), (u[3], 6)][i]
        lds_throttle()
        if seq == 6:
            a.lds(f"ds_write_b128 v{vW[2]}, {vr(reg)} offset:{(chunk & 1)*BB6}", "W")
        else:
            a.lds(f"ds_write_b128 v{vW[seq >> 2]}, {vr(reg)} offset:{(seq & 3)*SEQB + (chunk & 1)*BB}", "W")

    def tr_ops(chunk):
        u = uregs(chunk)
        o = [u[1], u[2], XO, XO + 4, XO + 8]
        ops = []
        for d in range(4):
            lo = [TMP + p for p in range(4)]
            hi = [TMP + 8 + p for p in range(4)]
            for p in range(4):
                ops.append(f"v_lshlrev_b32 v{lo[p]}, 16, v{u[p]+d}")
                ops.append(f"v_and_b32 v{hi[p]}, s{sMask}, v{u[p]+d}")
            o1, r1 = eval_ops(lo, [TMP + 4 + i for i in range(4)])
            o2, r2 = eval_ops(hi, [TMP + 12 + i for i in range(4)])
            for x, y in zip(o1, o2):
                ops += [x, y]
            for i in range(5):
                ops.append(f"v_cvt_pk_bf16_f32 v{o[i]+d}, v{r1[i]}, v{r2[i]}")
        if "notr" in EXP:
            ops = ["s_nop 0"] * 8
        return ops

    if KSPLIT:
        a.e("v_lshlrev_b32 v8, 4, v6")
    for p in range(4):
        if KSPLIT:
            haddr(vX + p, 7, 8, p, 9)
        else:
            a.e(f"v_add_u32 v{vX+p}, {p*1024}, v7")
    a.e(f"v_and_b32 v{TMP}, 4, v5")
    a.e(f"v_lshrrev_b32 v{TMP}, 1, v{TMP}")
    a.e(f"v_xor_b32 v{TMP}, v6, v{TMP}")
    a.e(f"v_lshlrev_b32 v{TMP}, 4, v{TMP}")
    a.e(f"v_lshl_add_u32 v{TMP}, v5, 6, v{TMP}")
    a.e(f"s_mov_b32 s{sXo}, 0")
    a.e(f"s_mov_b32 s{sXo2}, {4*PLH}")
    kwait()
    stamp(2)
    P0 = os.environ.get("P0", "0")
    if P0 == "0" or KSPLIT:
        for p in range(4):
            xload(0, p)
            if p == 1 and P0 == "2":
                a.e("s_barrier")
    else:
        for half in range(2):
            for p in range(4):
                a.vmem(f"buffer_load_dwordx4 {vr(praw(0, half, p))}, v{vX+p}, {sr(sX)}, s{sXo} offen offset:{half*64}", ("X", 0))
            if half == 0 and P0 == "2":
                a.e("s_barrier")
        for p in range(4):
            a.e(f"v_add_u32 v{vX+p}, 128, v{vX+p}")
    if P0 != "2" and "b0" in EXP:
        a.e("s_barrier")
    a.e(f"s_mul_i32 s36, s42, {FB}")
    a.e(f"v_add_u32 v{vW[0]}, s36, v{TMP}")
    a.e(f"v_add_u32 v{vW[1]}, {4*SEQB}, v{vW[0]}")
    a.e(f"s_mul_i32 s36, s42, {FB6}")
    a.e(f"s_add_u32 s36, s36, {6*SEQB}")
    a.e(f"v_add_u32 v{vW[2]}, s36, v{TMP}")
    def warm_tail():
        if KSPLIT and "notail" not in EXP:
            add64(a, sW, 30, WS_WF)
            a.e(f"s_mov_b32 s{sW+2}, {262144 + 32768}")
            a.e(f"s_mov_b32 s{sW+3}, 0x00020000")
            a.e("s_lshr_b32 s36, s2, 3")
            a.e("s_lshl_b32 s36, s36, 2")
            a.e(f"s_add_u32 s36, s36, s{sH}")
            a.e("s_mul_i32 s36, s36, 2304")
            a.e(f"v_lshlrev_b32 v1, 4, v{vL}")
            for i in range(3):
                a.e(f"buffer_load_dwordx4 v[4:7], v1, {sr(sW)}, s36 offen offset:{i*1024}")
        if "notw" not in EXP:
            a.e(f"s_cmp_ge_u32 s2, {os.environ.get('TWN', '32')}")
            a.e(f"s_cbranch_scc1 L_{name}_ntw")
            a.e("s_getpc_b64 s[36:37]")
            a.label(f"L_{name}_pc")
            a.e(f"s_lshl_b32 s38, s{sH}, 13")
            a.e(f"s_add_u32 s38, s38, L_{name}_epi-L_{name}_pc")
            a.e(f"v_lshl_add_u32 v2, v{vL}, 7, s38")
            a.e(f"v_min_u32 v2, {0x7fc0de01 + KSPLIT:#x}, v2")
            a.e("v_mov_b32 v3, s37")
            a.e("v_add_co_u32 v2, vcc, s36, v2")
            a.e("s_nop 1")
            a.e("v_addc_co_u32 v3, vcc, 0, v3, vcc")
            a.e("global_load_dword v4, v[2:3], off")
            a.label(f"L_{name}_ntw")
        if os.environ.get("HB2", "1") == "1":
            a.e("s_barrier")

    UNI = KSPLIT and os.environ.get("UNI", "1") == "1"
    if UNI:
        sMA, sMB = 44, 45
        a.e(f"s_mov_b32 s{sK}, 0")
        a.e(f"s_mov_b32 s{sXo}, {8*PLH}")
        a.e(f"s_cmp_ge_u32 s{sWv}, 12")
        a.e(f"s_cselect_b32 s{sMA}, {(1 << N) - 4}, 0")
        a.e(f"s_cselect_b32 s{sMB}, {1 | 1 << (N - 1)}, -1")
        a.e("s_setprio 0")
        a.e(f"s_cbranch_scc1 L_{name}_hloop")
        a.e("s_setprio 1")

        def sync(mask, lbl):
            a.e(f"s_bitcmp1_b32 s{mask}, s{sK}")
            a.e(f"s_cbranch_scc0 {lbl}")
            a.e("s_waitcnt lgkmcnt(0)")
            a.e("s_barrier")
            a.label(lbl)
        a.label(f"L_{name}_hloop")
        for c in range(2):
            a.e("s_waitcnt vmcnt(4)")
            for op in tr_ops(c):
                a.e(op)
            sync(sMA, f"L_{name}_sa{c}")
            a.lg = []
            for i in range(7):
                wr(c, i)
            for r in (0, 2, 1, 3):
                a.e(f"buffer_load_dwordx4 {vr(praw(0, c, r))}, v{vX+r}, {sr(sX)}, s{sXo} offen")
            a.e(f"s_add_u32 s{sXo}, s{sXo}, {4*PLH}")
            sync(sMB, f"L_{name}_sb{c}")
            a.e(f"s_add_u32 s{sK}, s{sK}, 1")
        a.e(f"s_cmp_lt_u32 s{sK}, {N}")
        a.e(f"s_cbranch_scc1 L_{name}_hloop")
        a.e(f"s_cmp_ge_u32 s{sWv}, 12")
        a.e(f"s_cbranch_scc1 L_{name}_hend")
        warm_tail()
        a.label(f"L_{name}_hend")
        a.e(f"s_branch L_{name}_end")
    mark = len(a.L)
    stamp(3)
    a.e(f"s_waitcnt vmcnt({0 if P0 == '0' else 4})")
    stamp(4)
    a.e(f"s_mov_b32 s{sK}, 0")
    a.e(f"s_mov_b32 s{sCnt}, {N//4}")
    a.vm, a.lg = [], []
    if not KSPLIT and os.environ.get("W2", "1") == "3":
        a.e("s_load_dwordx2 s[48:49], s[0:1], 16")
    wr(0, 3)
    wr(0, 6)
    for op in tr_ops(0):
        a.e(op)
    for i in (0, 1, 2, 4, 5):
        wr(0, i)
    stamp(5)
    a.e(f"s_cmp_ge_u32 s{sWv}, 12")
    a.e(f"s_cbranch_scc1 L_{name}_h2")

    def hwave(role):
        SH = 33 * int(os.environ.get(f"SH{role}", "0" if role == 1 else "4"))
        ahead = 2 if SH else 1
        a.vm, a.lg = [], []
        W2E = role == 2 and not KSPLIT and os.environ.get("W2", "1") == "3"
        NF = int(os.environ.get("NF", "2"))
        if KSPLIT:
            a.e(f"s_mov_b32 s{sXo}, {8*PLH}")
            a.e(f"s_mov_b32 s{sXo2}, {12*PLH}")
        X1 = os.environ.get("X1", "1")
        if X1 == "0":
            for p in range(4 if SH else NF):
                xload(1, p)
        a.e("s_waitcnt lgkmcnt(0)")
        stamp(6)
        a.e("s_barrier")
        stamp(7)
        rstamp(12)
        if X1 == "1":
            for p in range(4 if SH else NF):
                xload(1, p)
        PA, PB_ = os.environ.get(f'PH{role}', '11' if role == 1 else '00')
        a.e(f"s_setprio {PA}")
        for op in tr_ops(1)[:SH]:
            a.e(op)
        if role == 1 and os.environ.get("MW", ""):
            a.e(f"s_cmp_lt_u32 s2, {os.environ.get('TWN', '32')}")
            a.e("s_cselect_b32 s55, 1, 99")
            a.e("s_getpc_b64 s[36:37]")
            a.label(f"L_{name}_pc3")
            a.e(f"s_sub_u32 s36, s36, L_{name}_pc3-{name}")
            a.e("s_subb_u32 s37, s37, 0")
            a.e(f"s_lshl_b32 s38, s{sH}, 13")
            a.e(f"v_lshl_add_u32 v102, v{vL}, 7, s38")
            a.e(f"v_min_u32 v102, L_{name}_done-{name}, v102")
            a.e("v_mov_b32 v103, s37")
            a.e("v_add_co_u32 v102, vcc, s36, v102")
            a.e("s_nop 1")
            a.e("v_addc_co_u32 v103, vcc, 0, v103, vcc")
        if W2E:
            a.e("s_lshr_b32 s52, s2, 6")
            a.e("s_lshl_b32 s52, s52, 3")
            a.e("s_bfe_u32 s36, s2, 0x10005")
            a.e("s_add_u32 s52, s52, s36")
            a.e("s_lshl_b32 s52, s52, 17")
            a.e("s_bfe_u32 s36, s2, 0x30002")
            a.e("s_lshl_b32 s36, s36, 1")
            a.e(f"s_and_b32 s37, s{sH}, 1")
            a.e("s_add_u32 s36, s36, s37")
            a.e("s_lshl_b32 s36, s36, 13")
            a.e("s_add_u32 s52, s52, s36")
            a.e("s_and_b32 s36, s2, 3")
            a.e("s_lshl_b32 s36, s36, 1")
            a.e(f"s_lshr_b32 s37, s{sH}, 1")
            a.e("s_add_u32 s36, s36, s37")
            a.e("s_lshl_b32 s36, s36, 6")
            a.e("s_add_u32 s52, s52, s36")
            a.e(f"s_mov_b32 s50, {31*131072}")
            a.e("s_mov_b32 s51, 0x00020000")
            a.e(f"v_lshrrev_b32 v99, 4, v{vL}")
            a.e("v_lshlrev_b32 v99, 11, v99")
            a.e(f"v_and_b32 v100, 15, v{vL}")
            a.e("v_lshl_add_u32 v99, v100, 2, v99")

        def w2load(pos):
            a.e(f"s_cmp_lg_u32 s{sCnt}, {os.environ.get('W2I', '3')}")
            a.e(f"s_cbranch_scc1 L_{name}_w2s{pos}")
            for e in range(4):
                a.e(f"buffer_load_dword v{100+pos*4+e}, v99, s[48:51], s52 offen offset:{e*512}")
            a.e(f"s_add_u32 s52, s52, {2*131072}")
            a.label(f"L_{name}_w2s{pos}")
        VPF = int(os.environ.get("VPF", "0")) if role == 1 and not KSPLIT and XL == 3 else 0
        if VPF:
            a.e(f"s_lshl_b32 s36, s{sCb}, 6")
            a.e(f"s_lshl_b32 s37, s{sH}, 3")
            a.e("s_add_u32 s36, s36, s37")
            a.e("s_lshl_b32 s36, s36, 10")
            a.e("s_add_u32 s36, s36, s41")
            a.e(f"s_add_u32 s36, s36, {VPF*128}")
            a.e(f"v_and_b32 v100, 7, v{vL}")
            a.e("v_lshl_add_u32 v100, v100, 10, s36")

        def vpf(k):
            a.e(f"s_cmp_lt_u32 s{sK}, {N - 2*VPF}")
            a.e(f"s_cselect_b32 s36, 0, {OOB}")
            a.vmem(f"buffer_load_dword v99, v100, {sr(sX)}, s36 offen", "PF")
            a.e(f"v_add_u32 v100, {(128 - 32768) & 0xffffffff if k & 1 else 32768}, v100")
        XD = {(0, 1): "0.2,0.4,0.2,0.4", (0, 2): "0.3,0.5,0.3,0.5", (1, 1): "1,1,1,1", (1, 2): "0,0,0,0"}
        XP = [float(x) for x in os.environ.get(f"XP{1 + int(KSPLIT)}{role}", XD[int(KSPLIT), role]).split(",")]

        def period(k, pos, last=False):
            pair = (k >> 1) + 2 if SH else (k + 3) >> 1
            first = not (k & 1) if SH else (k & 1)
            if pos == 4 - ahead and not last:
                a.e(f"s_cmp_eq_u32 s{sCnt}, 1")
                a.e(f"s_cbranch_scc1 L_{name}_hlast{role}")
            if "hst" in EXP and pos == 1:
                stamp(2)
            V1 = tr_ops(k + 1)[SH:]
            V2 = [] if last else tr_ops(k + 2)[:SH]
            V = V1 + V2
            n = len(V)
            ev = {}

            def at(i, f):
                ev.setdefault(max(0, min(int(i), n)), []).append(f)

            def stores():
                if "hst" in EXP and pos == 1:
                    stamp(3)
                for i in range(7):
                    wr(k + 1, i)
                if "hst" in EXP and pos == 1:
                    stamp(4)
                if PA != PB_:
                    a.e(f"s_setprio {PB_}")
            if PA != PB_:
                a.e(f"s_setprio {PA}")
            if VPF and not last:
                at(float(os.environ.get("VPP", "1.0")) * n, lambda: vpf(k))
            at(len(V1), stores)
            if W2E and not last:
                at(len(V1) + 1 + float(os.environ.get("W2X", "0")) * n, lambda: w2load(pos))
            if not last:
                if not KSPLIT:
                    a.e(f"s_cmp_lt_u32 s{sK}, {N - 2 - ahead}")
                    a.e(f"s_cselect_b32 s{sXo}, 0, {OOB}")
                elif first:
                    a.e(f"s_add_u32 s{sXo}, s{sXo}, {8*PLH}")
                    a.e(f"s_add_u32 s{sXo2}, s{sXo2}, {8*PLH}")
                at(len(V1) if SH else 0, lambda: a.wait(vm=(("X", (k + ahead) >> 1),)))
                if "nox" not in EXP:
                    for p in (range(NF) if first else range(NF, 4)):
                        w = len(V1) + XP[p] * SH if SH and first else XP[p] * n
                        at(w, lambda p=p: xload(pair, p))
            for i in range(n + 1):
                for f in ev.get(i, []):
                    f()
                if i < n:
                    a.e(V[i])
            MW = os.environ.get("MW", "")
            if role == 1 and MW and pos == int(MW) and not last:
                a.e(f"s_cmp_lg_u32 s{sCnt}, s55")
                a.e(f"s_cbranch_scc1 L_{name}_nmw")
                a.e("global_load_dword v101, v[102:103], off")
                a.label(f"L_{name}_nmw")
            if not last:
                a.e(f"s_add_u32 s{sK}, s{sK}, 1")
            if "hst" in EXP and pos == 1:
                stamp(5)
            a.e("s_waitcnt lgkmcnt(0)")
            a.lg = []
            a.e("s_barrier")
            if "hst" in EXP and pos == 1:
                stamp(6)

        body = steady(period, 4, "nox" not in EXP)
        a.label(f"L_{name}_hloop{role}")
        a.L.extend(body)
        a.e(f"s_sub_u32 s{sCnt}, s{sCnt}, 1")
        a.e(f"s_branch L_{name}_hloop{role}")
        a.label(f"L_{name}_hlast{role}")
        a.vm, a.lg = [], []

        def last_period():
            vm = a.vm
            a.vm, a.lg = [], []
            if SH:
                a.e(f"s_mov_b32 s{sMask}, 0xffff0000")
                period(2, 2, True)
            a.vm = vm
        if role == 1 or KSPLIT or W2P:
            last_period()
        else:
            assert SH
            W2L = os.environ.get("W2L", "0") == "1"
            if W2L:
                last_period()
            a.e("s_waitcnt vmcnt(0)")
            a.e(f"s_mov_b32 s58, s{sWv}")
            a.e(f"s_lshl_b32 s20, s2, 2")
            a.e(f"s_add_u32 s20, s20, s{sH}")
            a.e(f"v_mov_b32 v1, v{vL}")
            if W2E:
                W2R = int(os.environ.get("W2R", "0"))

                def only_stores():
                    a.lg = []
                    for i in range(7):
                        wr(3, i)
                wprep2(a, 16, WS_W2P, only_stores if W2R else last_period, pre=100, late=W2R)
            elif os.environ.get("W2", "1") == "2":
                wprep2(a, 16, WS_W2P, last_period, LB=False)
            else:
                wprep(a, 16, WS_W2P, True, barrier=None if W2L else last_period)
            a.e(f"s_mov_b32 s{sWv}, s58")
            for _ in range(int(os.environ.get("HB1", "1"))):
                a.e("s_barrier")
        if role == 1:
            warm_tail()
        stamp(8)
        rstamp(13)
        a.e(f"s_branch L_{name}_end")

    hwave(1)
    a.label(f"L_{name}_h2")
    hwave(2)
    if UNI:
        del a.L[mark:]

    a.label(f"L_{name}_epi")
    K = [sr(x, 2) for x in KS]
    a.e("s_waitcnt lgkmcnt(0)")
    a.e("s_barrier")
    if "est" in EXP:
        stamp(2)
    a.e(f"v_cndmask_b32 v{vO}, v{t3}, v{t2}, vcc")

    def P(c, s, r=0):
        return c * 32 + s * 4 + r
    Y = 64
    TB = 96
    ELS = (0, 1, 2)
    for c in range(2):
        for s_ in range(8):
            if c == 1 and s_ == 7:
                a.e("s_waitcnt lgkmcnt(7)")
            u = UNIT[s_][c]
            a.e(f"ds_read_b128 {vr(P(c, s_))}, v{R0[u >> 16]} offset:{u & 0xffff}")

    def p2(x):
        return vr(x, 2)

    def padd(d, x, y):
        return f"v_pk_add_f32 {p2(d)}, {p2(x)}, {p2(y)}"

    def psub(d, x, y):
        return f"v_pk_add_f32 {p2(d)}, {p2(x)}, {p2(y)} neg_lo:[0,1] neg_hi:[0,1]"

    def pfma(d, x, k, y, neg=False):
        return f"v_pk_fma_f32 {p2(d)}, {p2(x)}, {k}, {p2(y)}" + (" neg_lo:[0,0,1] neg_hi:[0,0,1]" if neg else "")

    def interp(c):
        seq = []
        for r in (0, 2):
            E0, A, B, C, D, Q, E6, E6b = (P(c, x, r) for x in range(8))
            y = [Y + ph * 8 + c * 4 + r for ph in range(4)]
            S1, G = E6, C
            seq.append([
                padd(y[3], E6, E6b),
                padd(S1, A, B),
                psub(A, A, B),
                padd(y[1], C, D),
                psub(G, C, D),
                pfma(y[1], S1, K[0], y[1]),
                pfma(Q, E0, K[3], Q),
                pfma(y[1], E0, K[1], y[1]),
                psub(S1, S1, E0),
                pfma(y[1], y[3], K[2], y[1]),
                psub(S1, S1, y[3]),
                pfma(Q, y[3], K[6], Q),
                psub(B, S1, y[1]),
                pfma(Q, y[1], K[5], Q),
                f"v_pk_mul_f32 {p2(y[2])}, {p2(G)}, {K[9]}",
                pfma(Q, B, K[4], Q),
                pfma(y[2], A, K[10], y[2]),
                pfma(y[0], A, K[7], Q, True),
                pfma(y[0], G, K[8], y[0]),
                pfma(y[2], y[0], K[11], y[2]),
                psub(A, A, y[0]),
                psub(A, A, y[2]),
            ])
        for ops in zip(*seq):
            for op in ops:
                a.e(op)

    a.e("s_waitcnt lgkmcnt(8)")
    interp(0)
    a.e("s_waitcnt lgkmcnt(0)")
    interp(1)
    if "est" in EXP:
        stamp(3)
    a.e("s_mov_b32 s36, 0x00010001")
    a.e("s_mov_b32 s37, 0x00010001")
    a.e("s_mov_b64 exec, s[36:37]")
    for k in range(3):
        for c in range(2):
            a.e(f"ds_write_b128 v{vBW}, {vr(P(c, ELS[k]))} offset:{(k*2+c)*16}")
    a.e("s_mov_b64 exec, -1")

    def finish(ph):
        ys = [Y + ph * 8 + i for i in range(8)]
        if not KSPLIT:
            ts = [16 + (ph & 1) * 8 + i for i in range(8)]
            ev = list(zip(ys[::2], ts[::2]))
            for y, t in ev:
                a.e(f"v_pk_mul_f32 {p2(t)}, {p2(y)}, {p2(y)}")
            for y, t in ev:
                a.e(pfma(t, t, K[12], 44))
            for y, t in ev:
                a.e(f"v_pk_mul_f32 {p2(t)}, {p2(t)}, {p2(y)}")
            for t in ts:
                a.e(f"v_exp_f32 v{t}, v{t}")
            for y, t in ev:
                a.e(f"v_pk_add_f32 {p2(t)}, {p2(t)}, {K[13]}")
            for t in ts:
                a.e(f"v_rcp_f32 v{t}, v{t}")
            for y, t in ev:
                a.e(f"v_pk_mul_f32 {p2(y)}, {p2(y)}, {p2(t)}")
        o = 48 + ph * 4
        for r in range(4):
            a.e(f"v_cvt_pk_bf16_f32 v{o+r}, v{ys[r]}, v{ys[4+r]}")
        so = ph * PLF if KSPLIT else ((ph + 3) & 3) * PLH + ((ph + 7) >> 2) * 64
        a.e(f"s_mov_b32 s44, {so}")
        a.e(f"buffer_store_dwordx4 {vr(o)}, v{vO}, {sr(sO)}, s44 offen{NTF if KSPLIT else NTH}")

    a.e(f"v_mov_b32 v44, {f32hex(k0)}")
    a.e("v_mov_b32 v45, v44")
    finish(0)
    a.e("s_waitcnt lgkmcnt(0)")
    a.e("s_barrier")
    if "est" in EXP:
        stamp(4)
    for i in range(6):
        a.e(f"ds_read_b128 {vr(TB+4*i)}, v{vBW} offset:{512 + i*16}")
    for ph in range(1, 4):
        a.e(f"s_waitcnt lgkmcnt({6 - 2*ph})")
        for c in range(2):
            for r in range(4):
                i = (ph - 1) * 8 + c * 4 + r
                a.e(f"v_mov_b32_dpp v{TB+i}, v{P(c, ELS[ph-1], r)} row_shl:1 row_mask:0xf bank_mask:0xf")
        for i in range(0, 8, 2):
            a.e(padd(Y + ph * 8 + i, Y + ph * 8 + i, TB + (ph - 1) * 8 + i))
        finish(ph)
    if "est" in EXP:
        stamp(5)
    RB = os.environ.get("RB", "00")[int(KSPLIT)]
    if RB != "0":
        if not KSPLIT:
            a.e(f"s_cmp_ge_u32 s{sCb}, {RB}")
            a.e(f"s_cbranch_scc1 L_{name}_end")
        a.e("s_waitcnt vmcnt(0)")
        for ph in range(4):
            so = ph * PLF if KSPLIT else ((ph + 3) & 3) * PLH + ((ph + 7) >> 2) * 64
            a.e(f"s_mov_b32 s44, {so}")
            a.e(f"buffer_load_dword v0, v{vO}, {sr(sO)}, s44 offen")
    a.label(f"L_{name}_end")
    if STAMP:
        a.e("s_waitcnt vmcnt(0)")
        stamp(9, False)
        a.e(f"s_memrealtime s[{sSt+22}:{sSt+23}]")
        a.e(f"s_cmp_lg_u32 s{sWv}, {os.environ.get('SW', '0')}")
        a.e(f"s_cbranch_scc1 L_{name}_done")
        a.e("s_lshl_b32 s36, s2, 7")
        a.e(f"s_add_u32 s36, s36, {WS_STAMP + cfg['stamp']*0x10000}")
        add64(a, 40, 30, "s36")
        a.e("s_mov_b32 s42, 128")
        a.e("s_mov_b32 s43, 0x00020000")
        a.e("s_waitcnt lgkmcnt(0)")
        a.e("v_mov_b32 v8, 0")
        for i in range(28):
            a.e(f"v_mov_b32 v0, s{sSt+i}")
            a.e(f"buffer_store_dword v0, v8, s[40:43], 0 offen offset:{4*i}")
    a.label(f"L_{name}_done")
    a.e("s_endpgm")
    if not STAMP:
        a.L = ["    s_endpgm" if l == f"    s_branch L_{name}_end" else l for l in a.L]
    if "nohf" not in EXP:
        L = a.L
        b = L.index(f"    s_cbranch_scc1 L_{name}_helper")
        h0, h1 = L.index(f"L_{name}_helper:"), L.index(f"L_{name}_epi:")
        a.L = L[:b] + [f"    s_cbranch_scc0 L_{name}_mw"] + L[h0:h1] + [f"L_{name}_mw:"] + L[b + 1:h0] + L[h1:]
    return a.L, TOPB + 40960, 128


CONV1 = dict(tin=16000, tout=8000, nchunk=16, ksplit=False, in_arg=0, in_off=0, w_off=WS_W1P, out_off=WS_H, stamp=0)
CONV2 = dict(tin=8000, tout=4000, nchunk=8, ksplit=True, in_arg=72, in_off=WS_H, w_off=WS_W2P, out_off=WS_FP, stamp=1)

HEADER = f"""; Kernarg layout for this problem (80 bytes, ptrs only, base s[0:1]):
"""


def main():
    ks = [("prep_kernel", 256, 640 if W2P else 384) + prep_kernel("prep_kernel"),
          ("conv1_kernel", 256, 1024) + conv_kernel("conv1_kernel", CONV1),
          ("conv2_kernel", 256, 1024) + conv_kernel("conv2_kernel", CONV2)]
    ks = joint_kernels(ks)
    out = HEADER
    for nm, grid, block, code, lds, vg in ks:
        out += f"; @launch kernel={nm} grid=({grid},1,1) block=({block},1,1) lds={lds}\n"
    out += '.amdgcn_target "amdgcn-amd-amdhsa--gfx950"\n.text\n'
    for nm, grid, block, code, lds, vg in ks:
        if "noalign" not in EXP:
            code = align8(code)
        out += f".globl {nm}\n.p2align 8\n.type {nm},@function\n" + "\n".join(code) + "\n"
    out += '.section .rodata,"a"\n'
    for nm, grid, block, code, lds, vg in ks:
        out += ".p2align 6\n" + kd(nm, vg)
    out = out.replace("0x7fc0de00", "L_joint_kernel_done-L_prep_kernel_pc")
    out = out.replace("0x7fc0de01", "L_conv2_kernel_done-L_conv1_kernel_pc")
    out = out.replace("0x7fc0de02", "L_joint_kernel_done-L_conv2_kernel_pc")
    path = sys.argv[1] if len(sys.argv) > 1 else "standalone__seq2seq_rnn_t_joint__speech.s"
    open(path, "w").write(out)


if __name__ == "__main__":
    main()
```

```python
import os
from asmlib import Asm, vr, sr, f32hex

EXP = os.environ.get("EXP", "").split(",")
WS_FP = 0x1A00000
WS_FPS = 0x800000
PLF = int(os.environ.get('PLF', 65536))
WS_WF = 0x2A00000
WS_WO = 0x2A20000
WS_GE = 0x2A40000
WS_STAMP = 0x3000000
C2 = 2.0 * 1.4426950408889634
RANGE = 120.0


def add64(a, d, lo, off):
    a.e(f"s_add_u32 s{d}, s{lo}, {off}")
    a.e(f"s_addc_u32 s{d+1}, s{lo+1}, 0")


def small_head(a, name):
    a.e("s_cmp_lt_u32 s2, 24")
    a.e(f"s_cbranch_scc1 L_{name}_sh")
    a.e("s_endpgm")
    a.label(f"L_{name}_sh")
    a.e("s_lshr_b32 s41, s2, 3")
    a.e("s_and_b32 s42, s2, 7")
    a.e("s_sub_u32 s43, s40, 4")
    a.e("s_lshl_b32 s26, s43, 16")
    a.e("s_lshl_b32 s5, s42, 6")
    a.e("s_add_u32 s26, s26, s5")
    a.e("s_mov_b32 s10, 131072")
    a.e("s_mov_b32 s11, 0x00020000")
    a.e("v_lshrrev_b32 v2, 4, v1")
    a.e("v_lshlrev_b32 v2, 12, v2")
    a.e("v_and_b32 v3, 15, v1")
    a.e("v_lshl_add_u32 v2, v3, 2, v2")
    a.e("v_mov_b32 v9, 0")
    a.e("ds_write_b32 v9, v9 offset:2048")
    a.e("s_waitcnt lgkmcnt(0)")
    a.e("s_cmp_eq_u32 s41, 1")
    a.e("s_cselect_b32 s8, s56, s52")
    a.e("s_cselect_b32 s9, s57, s53")
    a.e("s_cmp_eq_u32 s41, 2")
    a.e("s_cselect_b32 s8, s54, s8")
    a.e("s_cselect_b32 s9, s55, s9")
    a.e("s_barrier")
    small_g(a, name)
    for k in range(4):
        for e in range(8):
            a.e(f"buffer_load_dword v{16+k*8+e}, v2, s[8:11], s26 offen offset:{e*512}")
        if k < 3:
            a.e("s_add_u32 s26, s26, 16384")
    a.e(f"s_branch L_{name}_small")


def small_g(a, name):
    a.e("s_cmp_lg_u32 s41, 2")
    a.e(f"s_cbranch_scc1 L_{name}_nog")
    a.e("s_mov_b32 s16, s50")
    a.e("s_mov_b32 s17, s51")
    a.e("s_mov_b32 s18, 8192")
    a.e("s_mov_b32 s19, 0x00020000")
    a.e("v_and_b32 v6, 0x30, v1")
    a.e("v_lshl_add_u32 v6, v3, 9, v6")
    a.e("s_lshl_b32 s6, s43, 8")
    for k in range(4):
        a.e(f"buffer_load_dwordx4 {vr(80+4*k)}, v6, s[16:19], s6 offen offset:{k*64}")
    a.label(f"L_{name}_nog")


def small_tail(a, name):
    a.label(f"L_{name}_small")
    R, O = 16, 48
    a.e("v_lshrrev_b32 v2, 4, v1")
    a.e("s_lshl_b32 s24, s41, 17")
    a.e(f"s_add_u32 s24, s24, {WS_WF}")
    add64(a, 12, 30, "s24")
    a.e("s_mov_b32 s14, 131072")
    a.e("s_mov_b32 s15, 0x00020000")
    a.e("s_mov_b32 s32, 0x05040100")
    a.e("s_mov_b32 s33, 0x07060302")
    a.e("v_lshlrev_b32 v4, 4, v1")
    a.e("s_lshl_b32 s24, s42, 14")
    a.e("s_lshl_b32 s25, s43, 13")
    a.e("s_add_u32 s24, s24, s25")
    a.e("s_add_u32 s25, s24, 4096")
    a.e("s_waitcnt vmcnt(0)")
    for k in range(4):
        for jn in range(2):
            for e2 in range(4):
                a.e(f"v_perm_b32 v{O+(k*2+jn)*4+e2}, v{R+k*8+2*e2+1}, v{R+k*8+2*e2}, s{32+jn}")
    a.e("s_cmp_eq_u32 s41, 2")
    a.e(f"s_cbranch_scc1 L_{name}_ge")
    for i in range(8):
        a.e(f"buffer_store_dwordx4 {vr(O+4*i)}, v4, s[12:15], s{24+(i>>2)} offen offset:{(i&3)*1024} sc1")
    a.e("s_endpgm")
    a.label(f"L_{name}_ge")
    ACC = 96
    for k in range(4):
        for jn in range(2):
            c = "0" if k == 0 else vr(ACC + 4 * jn)
            a.e(f"v_mfma_f32_16x16x32_bf16 {vr(ACC+4*jn)}, {vr(O+(k*2+jn)*4)}, {vr(80+4*k)}, {c}")
    a.e("v_mov_b32 v7, v4")
    a.e("v_mov_b32 v10, 1")
    a.e("s_nop 0")
    a.e("s_mov_b32 s14, 16384")
    a.e("v_lshlrev_b32 v8, 10, v3")
    a.e("v_lshl_add_u32 v8, v2, 5, v8")
    a.e("s_lshl_b32 s24, s42, 7")
    a.e("s_mov_b32 s34, 0xffff0000")
    a.e(f"s_mov_b32 s35, {f32hex(C2)}")
    a.e("s_cmp_eq_u32 s43, 0")
    a.e(f"s_cbranch_scc1 L_{name}_ge0")
    a.e(f"ds_write_b128 v7, {vr(ACC)}")
    a.e(f"ds_write_b128 v7, {vr(ACC+4)} offset:1024")
    a.e("ds_write_b32 v9, v10 offset:2048")
    a.e("s_endpgm")
    a.label(f"L_{name}_ge0")
    a.e("ds_read_b32 v10, v9 offset:2048")
    a.e("s_waitcnt lgkmcnt(0)")
    a.e("v_readfirstlane_b32 s27, v10")
    a.e("s_cmp_eq_u32 s27, 0")
    a.e(f"s_cbranch_scc1 L_{name}_ge0")
    a.e(f"ds_read_b128 {vr(16)}, v7")
    a.e(f"ds_read_b128 {vr(20)}, v7 offset:1024")
    a.e("s_waitcnt lgkmcnt(0)")
    for r in range(8):
        a.e(f"v_add_f32 v{16+r}, v{16+r}, v{ACC+r}")
    for i in range(4):
        a.e(f"v_cvt_pk_bf16_f32 v{48+i}, v{16+i}, v{20+i}")
    for i in range(4):
        a.e(f"v_lshlrev_b32 v{56+2*i}, 16, v{48+i}")
        a.e(f"v_and_b32 v{57+2*i}, s34, v{48+i}")
    for r in range(8):
        a.e(f"v_mul_f32 v{56+r}, s35, v{56+r}")
    a.e(f"buffer_store_dwordx4 {vr(56)}, v8, s[12:15], s24 offen sc1")
    a.e(f"buffer_store_dwordx4 {vr(60)}, v8, s[12:15], s24 offen offset:16 sc1")
    for r in range(8):
        a.e(f"v_exp_f32 v{64+r}, v{56+r}")
    a.e("v_max3_f32 v72, |v56|, |v57|, |v58|")
    a.e("v_max3_f32 v72, |v59|, |v60|, v72")
    a.e("v_max3_f32 v72, |v61|, |v62|, v72")
    a.e("v_max_f32 v72, |v63|, v72")
    add64(a, 12, 12, 16384)
    a.e(f"v_cmp_lt_f32 vcc, {f32hex(RANGE)}, v72")
    a.e(f"buffer_store_dwordx4 {vr(64)}, v8, s[12:15], s24 offen sc1")
    a.e(f"buffer_store_dwordx4 {vr(68)}, v8, s[12:15], s24 offen offset:16 sc1")
    add64(a, 12, 12, 16384)
    a.e("s_or_b32 s26, vcc_lo, vcc_hi")
    a.e("s_lshl_b32 s24, s42, 2")
    a.e("v_mov_b32 v73, s26")
    a.e("v_mov_b32 v74, 0")
    a.e("buffer_store_dword v73, v74, s[12:15], s24 offen sc1")
    a.e("s_endpgm")


def joint_kernel(name):
    a = Asm()
    NWG = 250
    STAMP = "stamp" in EXP
    FP = 528
    EP = 144
    J_B, F_B = 0, 32768
    E_B = F_B + 32 * FP
    GE_B = E_B + 8 * 36 * EP
    C_B = GE_B + 8 * 1040
    LDS = C_B + 16
    SPIN = 'nospin' not in EXP
    sF, sW, sO, sG = 8, 12, 16, 40
    sWv, sV, sCnt = 20, 21, 22
    sSt = 64
    vL, vL16 = 127, 126
    NTO = os.environ.get("NTO", " nt")

    def stamp(i, fence=True):
        if STAMP:
            a.e(f"s_memtime s[{sSt+2*i}:{sSt+2*i+1}]")
            if fence:
                a.e("s_waitcnt lgkmcnt(0)")
                a.lg = []

    def rstamp(i):
        if STAMP:
            a.e(f"s_memrealtime s[{sSt+2*i}:{sSt+2*i+1}]")
            a.e("s_waitcnt lgkmcnt(0)")
            a.lg = []

    a.label(name)
    if "local" in EXP:
        a.e("s_cmp_ge_u32 s2, 256")
        a.e(f"s_cbranch_scc1 L_{name}_done")
        a.e("s_and_b32 s3, s2, 7")
        a.e("s_lshr_b32 s2, s2, 3")
        a.e("s_mul_i32 s4, s3, 125")
        a.e("s_add_u32 s5, s4, 128")
        a.e("s_add_u32 s4, s4, 3")
        a.e("s_lshr_b32 s4, s4, 2")
        a.e("s_lshr_b32 s5, s5, 2")
        a.e("s_add_u32 s2, s2, s4")
        a.e("s_cmp_ge_u32 s2, s5")
    else:
        a.e(f"s_cmp_ge_u32 s2, {NWG}")
    a.e(f"s_cbranch_scc1 L_{name}_done")
    if STAMP:
        for i in range(28):
            a.e(f"s_mov_b32 s{sSt+i}, 0")
        a.e(f"s_memrealtime s[{sSt+20}:{sSt+21}]")
    stamp(0, False)
    a.e("s_load_dwordx2 s[28:29], s[0:1], 56")
    a.e("s_load_dwordx2 s[30:31], s[0:1], 72")
    a.e(f"v_readfirstlane_b32 s{sWv}, v0")
    a.e(f"s_lshr_b32 s{sWv}, s{sWv}, 6")
    a.e(f"s_and_b32 s{sV}, s{sWv}, 7")
    a.e(f"v_and_b32 v{vL}, 63, v0")
    a.e(f"v_lshlrev_b32 v{vL16}, 4, v{vL}")
    a.e(f"s_cmp_ge_u32 s{sWv}, 8")
    a.e(f"s_mov_b32 s33, {WS_WO}")
    a.e(f"s_cselect_b32 s33, {WS_WF}, s33")
    a.e(f"s_lshl_b32 s36, s{sV}, 14")
    a.e("s_add_u32 s33, s33, s36")
    a.e(f"s_mov_b32 s{sW+2}, 16384")
    a.e(f"s_mov_b32 s{sW+3}, 0x00020000")
    a.e("s_lshl_b32 s35, s2, 9")
    a.e("s_cmp_ge_u32 s2, 125")
    a.e(f"s_cselect_b32 s36, {32*PLF - 125*512}, 0")
    a.e("s_cselect_b32 s34, 8192, 0")
    a.e("s_add_u32 s35, s35, s36")
    a.e(f"s_add_u32 s34, s34, {WS_GE}")
    a.e(f"s_mov_b32 s{sF+2}, {WS_FPS + 64*PLF}")
    a.e(f"s_mov_b32 s{sF+3}, 0x00020000")
    a.e(f"s_mov_b32 s{sG+2}, {16384 + 8192}")
    a.e(f"s_mov_b32 s{sG+3}, 0x00020000")
    W = 0

    def arrive_wait(mine, other, lbl, v):
        a.e(f"v_mov_b32 v{v}, {C_B}")
        a.e(f"v_mov_b32 v{v+1}, 1")
        a.e("s_mov_b64 exec, 1")
        a.e(f"ds_add_u32 v{v}, v{v+1} offset:{4*mine}")
        a.e("s_mov_b64 exec, -1")
        a.label(lbl)
        a.e(f"ds_read_b32 v{v+1}, v{v} offset:{4*other}")
        a.e("s_waitcnt lgkmcnt(0)")
        a.e(f"v_readfirstlane_b32 s37, v{v+1}")
        a.e("s_cmp_ge_u32 s37, 8")
        a.e(f"s_cbranch_scc1 {lbl}_d")
        a.e("s_sleep 1")
        a.e(f"s_branch {lbl}")
        a.label(f"{lbl}_d")

    def wload(ks):
        if ks % 2 == 0:
            a.e(f"s_mov_b32 s36, {ks*2048}")
        for jn in range(2):
            i = ks * 2 + jn
            a.vmem(f"buffer_load_dwordx4 {vr(W+4*i)}, v{vL16}, {sr(sW)}, s36 offen offset:{(i%4)*1024}", ("W", ks))

    a.e(f"s_cmp_ge_u32 s{sWv}, 8")
    a.e(f"s_cbranch_scc1 L_{name}_T")

    X = 64
    a.e(f"v_lshrrev_b32 v124, 5, v{vL}")
    a.e(f"v_and_b32 v123, 0x1ff, v{vL16}")
    a.e(f"v_mul_u32_u24 v125, {PLF}, v124")
    a.e("v_add_u32 v123, v125, v123")
    a.e(f"s_mul_i32 s36, s{sV}, {4*PLF}")
    a.e("s_add_u32 s36, s36, s35")
    a.e("s_waitcnt lgkmcnt(0)")
    add64(a, sF, 30, WS_FP)
    for r2 in range(2):
        a.e(f"s_add_u32 s37, s36, {WS_FPS}")
        a.vmem(f"buffer_load_dwordx4 {vr(X+4*r2)}, v123, {sr(sF)}, s36 offen", ("F", r2))
        a.vmem(f"buffer_load_dwordx4 {vr(X+8+4*r2)}, v123, {sr(sF)}, s37 offen", ("F", r2))
        if r2 == 0:
            a.e(f"s_add_u32 s36, s36, {2*PLF}")
    a.e(f"v_mov_b32 v0, {C_B}")
    a.e("v_mov_b32 v2, 0")
    a.e("v_mov_b32 v3, 0")
    a.e("ds_write_b64 v0, v[2:3]")
    add64(a, sW, 30, "s33")
    add64(a, sG, 30, "s34")
    a.e(f"s_lshl_b32 s38, s{sV}, 10")
    a.e("s_add_u32 s38, s38, 16384")
    a.vmem(f"buffer_load_dwordx4 {vr(X+16)}, v{vL16}, {sr(sG)}, s38 offen", "G")
    a.e("s_waitcnt lgkmcnt(0)")
    stamp(1)
    a.e("s_barrier")
    stamp(5)
    a.e("s_lshl_b32 s35, s2, 17")
    add64(a, sO, 28, "s35")
    a.e(f"s_mov_b32 s{sO+2}, 131072")
    a.e(f"s_mov_b32 s{sO+3}, 0x00020000")
    k0 = -2.0 * 1.4426950408889634 * 0.7978845608028654
    a.e(f"s_mov_b32 s46, {f32hex(k0 * 0.044715)}")
    a.e("s_mov_b32 s47, s46")
    a.e(f"v_mov_b32 v120, {f32hex(k0)}")
    a.e("v_mov_b32 v121, v120")
    a.e("s_mov_b32 s48, 1.0")
    a.e("s_mov_b32 s49, 1.0")
    a.e(f"v_bfe_u32 v123, v{vL}, 2, 3")
    a.e("v_lshl_add_u32 v124, v123, 2, v124")
    a.e(f"v_mul_u32_u24 v124, {FP}, v124")
    a.e(f"v_and_b32 v123, 0x30, v{vL16}")
    a.e(f"s_lshl_b32 s36, s{sV}, 6")
    a.e("v_add3_u32 v124, v124, v123, s36")
    a.e("s_mov_b32 s45, 0xffff0000")
    a.e(f"s_mul_i32 s36, s{sV}, 1040")
    a.e(f"s_add_u32 s36, s36, {GE_B}")
    a.e(f"v_add_u32 v123, s36, v{vL16}")
    a.e(f"s_mov_b32 s{sCnt}, 2")
    a.e("s_waitcnt vmcnt(3)")
    stamp(6)
    a.label(f"L_{name}_floop")

    def p2(x):
        return vr(x, 2)
    ys = [88 + i for i in range(8)]
    ts = [96 + i for i in range(8)]
    ev = list(zip(ys[::2], ts[::2]))
    for i in range(4):
        a.e(f"v_lshlrev_b32 v{ys[2*i]}, 16, v{X+i}")
        a.e(f"v_and_b32 v{ys[2*i+1]}, s45, v{X+i}")
        a.e(f"v_lshlrev_b32 v{ts[2*i]}, 16, v{X+8+i}")
        a.e(f"v_and_b32 v{ts[2*i+1]}, s45, v{X+8+i}")
    for y, t in ev:
        a.e(f"v_pk_add_f32 {p2(y)}, {p2(y)}, {p2(t)}")
    for y, t in ev:
        a.e(f"v_pk_mul_f32 {p2(t)}, {p2(y)}, {p2(y)}")
    for y, t in ev:
        a.e(f"v_pk_fma_f32 {p2(t)}, {p2(t)}, s[46:47], v[120:121]")
    for y, t in ev:
        a.e(f"v_pk_mul_f32 {p2(t)}, {p2(t)}, {p2(y)}")
    for t in ts:
        a.e(f"v_exp_f32 v{t}, v{t}")
    for y, t in ev:
        a.e(f"v_pk_add_f32 {p2(t)}, {p2(t)}, s[48:49]")
    for t in ts:
        a.e(f"v_rcp_f32 v{t}, v{t}")
    for y, t in ev:
        a.e(f"v_pk_mul_f32 {p2(y)}, {p2(y)}, {p2(t)}")
    for i in range(4):
        a.e(f"v_cvt_pk_bf16_f32 v{104+i}, v{ys[2*i]}, v{ys[2*i+1]}")
    a.e(f"ds_write_b128 v124, {vr(104)} offset:{F_B}")
    a.e("s_waitcnt vmcnt(0)")
    a.vm = []
    for i in range(0, 4, 2):
        for b in (X, X + 8):
            a.e(f"v_pk_mov_b32 {vr(b+i,2)}, {vr(b+4+i,2)}, {vr(b+4+i,2)} op_sel:[0,1]")
    a.e(f"v_add_u32 v124, {2*FP}, v124")
    a.e(f"s_sub_u32 s{sCnt}, s{sCnt}, 1")
    a.e(f"s_cmp_lg_u32 s{sCnt}, 0")
    a.e(f"s_cbranch_scc1 L_{name}_floop")
    a.e(f"ds_write_b128 v123, {vr(X+16)}")
    a.e("s_waitcnt lgkmcnt(0)")
    stamp(2)
    if SPIN:
        arrive_wait(0, 1, f"L_{name}_ow", 120)
    else:
        a.e("s_barrier")
    stamp(3)
    for ks in range(8):
        wload(ks)
    ACC = (64, 80)
    JR = 96
    PKR = 112
    vO = 125
    a.e(f"v_lshrrev_b32 v{vO}, 4, v{vL}")
    a.e(f"v_lshlrev_b32 v{vO}, 11, v{vO}")
    a.e(f"v_and_b32 v124, 15, v{vL}")
    a.e(f"v_lshl_add_u32 v{vO}, v124, 2, v{vO}")
    a.e(f"s_lshl_b32 s36, s{sV}, 6")
    a.e(f"v_add_u32 v{vO}, s36, v{vO}")
    SROT = os.environ.get("SROT", "")
    if SROT:
        a.e(f"s_bfe_u32 s23, s2, {0x30000 | int(SROT)}")
        a.e("s_lshl_b32 s23, s23, 14")
        a.e(f"v_add_u32 v{vO}, s23, v{vO}")
    a.e("s_mov_b32 s44, 8192")
    a.e(f"s_setprio {os.environ.get('PO', '1')}")

    def out_ops(par):
        ops = []
        ac = ACC[par]
        for rt in range(2):
            for r in range(4):
                ops.append(f"v_cvt_pk_bf16_f32 v{PKR+rt*4+r}, v{ac+rt*8+r}, v{ac+rt*8+4+r}")
                ops.append(f"buffer_store_dword v{PKR+rt*4+r}, v{vO}, {sr(sO)}, {'s44' if rt else '0'} offen offset:{r*512}{NTO}")
        ops.append(f"v_add_u32 v{vO}, 16384, v{vO}")
        if SROT:
            ops.append(f"v_and_b32 v{vO}, 0x1ffff, v{vO}")
        return ops

    PD = 4

    def jread(par, n):
        a.lds(f"ds_read_b128 {vr(JR+4*(n%4))}, v{vL16} offset:{J_B + par*16384 + n*1024}", ("J", par, n))

    def ustep(par, side):
        for n in range(16):
            ks, rt = n >> 1, n & 1
            a.wait(lg=(("J", par, n),), vm=(("W", ks),))
            for jn in range(2):
                ac = ACC[par] + rt * 8 + 4 * jn
                c = "0" if ks == 0 else vr(ac)
                a.e(f"v_mfma_f32_16x16x32_bf16 {vr(ac)}, {vr(JR+4*(n%4))}, {vr(W+(ks*2+jn)*4)}, {c}")
                if n >= 3 and side:
                    a.e(side.pop(0))
            if n + PD == 16:
                a.wait(lg_all=True)
                a.e("s_barrier")
            if n + PD < 16:
                jread(par, n + PD)
            else:
                jread(1 - par, n + PD - 16)
        assert not side

    OL = os.environ.get("OL", "0")
    if OL == "1":
        a.e(f"v_subrev_u32 v{vO}, 32768, v{vO}")
        a.e(f"s_mov_b32 s{sCnt}, 5")
        a.e(f"s_branch L_{name}_oend")
        a.label(f"L_{name}_ogo")
        stamp(4)
        a.e("s_barrier")
        for n in range(PD):
            jread(0, n)
        a.e("s_waitcnt vmcnt(0)")
        a.vm = []
        lg0 = list(a.lg)
        rstamp(12)
        stamp(7)
        a.lg = list(lg0)
        a.label(f"L_{name}_oloop")
        ustep(0, out_ops(1))
        ustep(1, out_ops(0))
        assert a.lg == lg0
        a.e("s_waitcnt vmcnt(32)")
        a.e(f"s_sub_u32 s{sCnt}, s{sCnt}, 1")
        a.e(f"s_cmp_lg_u32 s{sCnt}, 1")
        a.e(f"s_cbranch_scc1 L_{name}_oloop")
        stamp(8, False)
        rstamp(13)
        a.e("s_nop 3")
        a.label(f"L_{name}_oend")
        for op in out_ops(1):
            a.e(op)
        a.e(f"s_cmp_eq_u32 s{sCnt}, 5")
        a.e(f"s_cbranch_scc1 L_{name}_ogo")
        a.e(f"s_branch L_{name}_fin")
    else:
        stamp(4)
        a.e("s_barrier")
        for n in range(PD):
            jread(0, n)
        ustep(0, [])
        lg0 = list(a.lg)
        stamp(7)
        rstamp(12)
        a.lg = list(lg0)
        a.e(f"s_mov_b32 s{sCnt}, 4")
        a.label(f"L_{name}_oloop")
        ustep(1, out_ops(0))
        a.e(f"s_sub_u32 s{sCnt}, s{sCnt}, 1")
        a.e(f"s_cmp_eq_u32 s{sCnt}, 0")
        a.e(f"s_cbranch_scc1 L_{name}_oend")
        ustep(0, out_ops(1))
        assert a.lg == lg0
        a.e("s_waitcnt vmcnt(32)")
        a.e(f"s_branch L_{name}_oloop")
        a.label(f"L_{name}_oend")
        stamp(8, False)
        rstamp(13)
        a.e("s_nop 7")
        for op in out_ops(1):
            a.e(op)
        a.e(f"s_branch L_{name}_fin")

    a.label(f"L_{name}_T")
    a.vm, a.lg = [], []
    a.e("s_setprio 3")
    a.e("s_waitcnt lgkmcnt(0)")
    add64(a, sW, 30, "s33")
    add64(a, sG, 30, "s34")
    JB = int(os.environ.get("JB", "0"))
    JB2 = int(os.environ.get("JB2", JB))
    for ks in range(JB):
        wload(ks)
    if "wwarm" in EXP:
        add64(a, sF, 30, WS_WF)
        a.e(f"s_mov_b32 s{sF+2}, 262144")
        a.e("s_lshr_b32 s36, s2, 3")
        a.e("s_lshl_b32 s36, s36, 3")
        a.e(f"s_add_u32 s36, s36, s{sV}")
        a.e("s_lshl_b32 s36, s36, 10")
        a.vmem(f"buffer_load_dwordx4 {vr(80)}, v{vL16}, {sr(sF)}, s36 offen", "P")
    a.e(f"s_lshl_b32 s36, s{sV}, 2")
    a.e(f"s_add_u32 s36, s36, {WS_GE + 32768}")
    add64(a, 36, 30, "s36")
    a.e("s_load_dword s44, s[36:37], 0")
    FE = 64
    FR = 80
    GB = 112
    vF, vG, vJ, vEW, vER, vGL = 125, 124, 123, 122, 121, 120
    a.e(f"v_and_b32 v{vJ}, 15, v{vL}")
    a.e(f"v_lshrrev_b32 v{vER}, 4, v{vL}")
    a.e(f"v_mul_u32_u24 v{vF}, {FP}, v{vJ}")
    a.e(f"v_lshl_add_u32 v{vF}, v{vER}, 4, v{vF}")
    a.e(f"v_lshlrev_b32 v{vER}, 5, v{vER}")
    a.e(f"v_and_b32 v{vGL}, 7, v{vL}")
    a.e(f"v_lshl_add_u32 v{vG}, v{vGL}, 10, v{vER}")
    a.e(f"s_lshl_b32 s38, s{sV}, 7")
    a.e(f"v_mul_u32_u24 v{vGL}, 1040, v{vGL}")
    a.e(f"s_add_u32 s36, s38, {GE_B}")
    a.e(f"v_add3_u32 v{vGL}, v{vGL}, v{vER}, s36")
    a.e(f"s_mul_i32 s36, s{sV}, {36*EP}")
    a.e(f"s_add_u32 s36, s36, {E_B}")
    a.e(f"v_add_u32 v{vER}, s36, v{vER}")
    a.e(f"v_mul_u32_u24 v{vEW}, {EP}, v{vJ}")
    a.e(f"v_add_u32 v{vEW}, v{vEW}, v{vER}")
    a.e(f"v_lshrrev_b32 v{vJ}, 3, v{vJ}")
    a.e(f"v_mul_u32_u24 v{vJ}, {EP}, v{vJ}")
    a.e(f"v_add_u32 v{vER}, v{vJ}, v{vER}")
    a.e(f"s_lshl_b32 s36, s{sV}, 11")
    a.e(f"v_add_u32 v{vJ}, s36, v{vL16}")
    NPRE = int(os.environ.get("NPRE", "8"))
    for ks in range(JB, NPRE + 1):
        if ks == JB2:
            a.e("s_barrier")
        if ks < NPRE:
            wload(ks)
    stamp(2)
    if SPIN:
        arrive_wait(1, 0, f"L_{name}_tw", FE)
    else:
        a.e("s_waitcnt lgkmcnt(0)")
        a.e("s_barrier")
    stamp(3)

    def fread(n):
        tt, ks = n & 1, n >> 1
        a.lds(f"ds_read_b128 {vr(FR+4*(n%8))}, v{vF} offset:{F_B + tt*16*FP + ks*64}", ("A", n))

    for n in range(8):
        fread(n)
    for ks in range(NPRE, 8):
        wload(ks)
    if NPRE < 8:
        a.e("s_barrier")
    a.e(f"s_setprio {os.environ.get('PT', '0')}")
    for n in range(16):
        tt, ks = n & 1, n >> 1
        a.wait(lg=(("A", n),), vm=(("W", ks),))
        for jn in range(2):
            ac = FE + tt * 8 + jn * 4
            c = "0" if ks == 0 else vr(ac)
            a.e(f"v_mfma_f32_16x16x32_bf16 {vr(ac)}, {vr(W+(ks*2+jn)*4)}, {vr(FR+4*(n%8))}, {c}")
        if n + 8 < 16:
            fread(n + 8)
        elif n < 10:
            a.lds(f"ds_read_b128 {vr(GB+4*(n-8))}, v{vGL} offset:{(n-8)*16}", "GE")
    a.e("s_mov_b32 s46, 0xffff0000")
    a.e(f"s_mov_b32 s48, {f32hex(C2)}")
    a.e("s_mov_b32 s49, s48")
    a.e("s_nop 3")
    stamp(4)
    FS, EX, EA, XS, PK = 80, 96, 32, 48, 64
    a.e("v_mov_b32 v28, 0")
    a.wait(lg_all=True)
    for tt in range(2):
        for r in range(4):
            a.e(f"v_cvt_pk_bf16_f32 v{24+r}, v{FE+tt*8+r}, v{FE+tt*8+4+r}")
        for r in range(4):
            a.e(f"v_lshlrev_b32 v{FS+tt*8+2*r}, 16, v{24+r}")
            a.e(f"v_and_b32 v{FS+tt*8+2*r+1}, s46, v{24+r}")
        for r in range(8 * tt, 8 * tt + 8, 2):
            a.e(f"v_pk_mul_f32 {vr(FS+r,2)}, {vr(FS+r,2)}, s[48:49]")
        for h in range(2):
            for r in range(8 * tt + 4 * h, 8 * tt + 4 * h + 4):
                a.e(f"v_exp_f32 v{EX+r}, v{FS+r}")
            for r in range(4 * tt + 2 * h, 4 * tt + 2 * h + 2):
                a.e(f"v_max3_f32 v28, |v{FS+2*r}|, |v{FS+2*r+1}|, v28")
            a.e(f"ds_write_b128 v{vEW}, {vr(EX+8*tt+4*h)} offset:{tt*16*EP + h*16}")
    if SROT:
        a.e(f"v_mov_b32 v{vF}, v{vER}")
        a.e(f"s_bfe_u32 s23, s2, {0x30000 | int(SROT)}")
        a.e(f"s_mul_i32 s24, s23, {4*EP}")
        a.e(f"v_add_u32 v{vER}, s24, v{vF}")
    a.e(f"v_cmp_lt_f32 vcc, {f32hex(RANGE)}, v28")
    a.e(f"s_mov_b32 s{sCnt}, 4")
    a.e("s_or_b32 s44, s44, vcc_lo")
    a.e("s_or_b32 s44, s44, vcc_hi")
    a.e("s_cmp_lg_u32 s44, 0")
    if "slow" in EXP:
        a.e(f"s_branch L_{name}_tslow")
    a.e(f"s_cbranch_scc1 L_{name}_tslow")

    def earead():
        for rt in range(2):
            for h in range(2):
                a.lds(f"ds_read_b128 {vr(EA+8*rt+4*h)}, v{vER} offset:{rt*2*EP + h*16}", ("G", rt))
        if SROT:
            a.e("s_add_u32 s23, s23, 1")
            a.e("s_and_b32 s23, s23, 7")
            a.e(f"s_mul_i32 s24, s23, {4*EP}")
            a.e(f"v_add_u32 v{vER}, s24, v{vF}")
        else:
            a.e(f"v_add_u32 v{vER}, {4*EP}, v{vER}")

    def tcomp(fast, early=None):
        a.wait(lg=(("G", 1),))
        for i in range(16):
            if fast:
                a.e(f"v_fma_f32 v{XS+i}, v{GB+(i&7)}, v{EA+i}, 1.0")
            else:
                a.e(f"v_add_f32 v{XS+i}, v{GB+(i&7)}, v{EA+i}")
        earead()
        for rt in range(2):
            xs = [XS + 8 * rt + i for i in range(8)]
            if not fast:
                for x in xs:
                    a.e(f"v_exp_f32 v{x}, v{x}")
                for x in xs:
                    a.e(f"v_add_f32 v{x}, 1.0, v{x}")
            for x in xs:
                a.e(f"v_rcp_f32 v{x}, v{x}")
            for x in xs:
                a.e(f"v_fma_f32 v{x}, v{x}, -2.0, 1.0")
            for i in range(4):
                a.e(f"v_cvt_pk_bf16_f32 v{PK+4*rt+i}, v{xs[2*i]}, v{xs[2*i+1]}")
            if early is not None:
                twrite(early, rt)

    def twrite(par, rt):
        a.lds(f"ds_write_b128 v{vJ}, {vr(PK+4*rt)} offset:{J_B + par*16384 + rt*1024}", "W")

    def tsync():
        a.wait(lg_all=True)
        a.e("s_barrier")

    TSH = os.environ.get("TSH", "0") == "1"
    for fast in (1, 0):
        a.lg = []
        if not fast:
            a.label(f"L_{name}_tslow")
            for h in range(2):
                a.e(f"buffer_load_dwordx4 {vr(GB+4*h)}, v{vG}, {sr(sG)}, s38 offen offset:{h*16}")
            for i in range(4):
                a.e(f"ds_write_b128 v{vEW}, {vr(FS+4*i)} offset:{(i>>1)*16*EP + (i&1)*16}")
        earead()
        a.e("s_waitcnt vmcnt(0) lgkmcnt(0)")
        a.vm, a.lg = [], []
        stamp(5)
        if TSH and fast:
            tcomp(fast, 0)
            tsync()
            tcomp(fast)
            a.wait(lg_all=True)
            a.e(f"s_mov_b32 s{sCnt}, 3")
            a.label(f"L_{name}_tloop{fast}")
            for par in (1, 0):
                twrite(par, 0)
                twrite(par, 1)
                tcomp(fast)
                tsync()
            a.e(f"s_sub_u32 s{sCnt}, s{sCnt}, 1")
            a.e(f"s_cmp_lg_u32 s{sCnt}, 0")
            a.e(f"s_cbranch_scc1 L_{name}_tloop{fast}")
            twrite(1, 0)
            twrite(1, 1)
            tsync()
        else:
            a.label(f"L_{name}_tloop{fast}")
            for par in (0, 1):
                tcomp(fast, par)
                tsync()
            a.e(f"s_sub_u32 s{sCnt}, s{sCnt}, 1")
            a.e(f"s_cmp_lg_u32 s{sCnt}, 0")
            a.e(f"s_cbranch_scc1 L_{name}_tloop{fast}")
        stamp(8)
        if fast:
            a.e(f"s_branch L_{name}_fin")
    a.label(f"L_{name}_fin")
    if STAMP:
        a.e("s_waitcnt vmcnt(0)")
        stamp(9, False)
        a.e(f"s_memrealtime s[{sSt+22}:{sSt+23}]")
        a.e(f"s_cmp_lg_u32 s{sWv}, {os.environ.get('SWJ', '0')}")
        a.e(f"s_cbranch_scc1 L_{name}_done")
        a.e("s_lshl_b32 s36, s2, 7")
        a.e(f"s_add_u32 s36, s36, {WS_STAMP + 2*0x10000}")
        add64(a, 40, 30, "s36")
        a.e("s_mov_b32 s42, 128")
        a.e("s_mov_b32 s43, 0x00020000")
        a.e("s_waitcnt lgkmcnt(0)")
        a.e("v_mov_b32 v8, 0")
        for i in range(28):
            a.e(f"v_mov_b32 v0, s{sSt+i}")
            a.e(f"buffer_store_dword v0, v8, s[40:43], 0 offen offset:{4*i}")
    a.label(f"L_{name}_done")
    a.e("s_endpgm")
    if not STAMP:
        a.L = ["    s_endpgm" if l == f"    s_branch L_{name}_fin" else l for l in a.L]
    return a.L, LDS, 128


def joint_kernels(ks):
    return ks + [("joint_kernel", 256 if "local" in EXP else 250, 1024) + joint_kernel("joint_kernel")]
```

```python
import os
import sys

from asmlib import Asm, vr, sr, kd, f32hex, align8
from gen13_joint import small_head, small_tail, joint_kernels

EXP = os.environ.get("EXP", "").split(",")

WS_W1P = 0x0000000
WS_W2P = 0x0900000
WS_H = 0x1200000
WS_FP = 0x1A00000
WS_FPS = 0x800000
WS_WF = 0x2A00000
WS_STAMP = 0x3000000

CHUNKB = 7 * 8192
FB = 1024
BB = 8 * FB
SEQB = 2 * BB
FB6 = 1088
BB6 = 8 * FB6
SPB = 6 * SEQB + 2 * BB6
TOPB = SPB + 6144
OOB = 0x7f000000
W2P = os.environ.get('W2', '1') == '0'
LOCAL = 'local' in EXP
PLH, PLF = int(os.environ.get('PLH', 131072)), int(os.environ.get('PLF', 65536))
NTW, NTH, NTF = ({"0": "", "1": " nt", "2": " sc1", "3": " sc0 sc1"}[c] for c in os.environ.get("NT", "222"))


def add64(a, d, lo, off):
    a.e(f"s_add_u32 s{d}, s{lo}, {off}")
    a.e(f"s_addc_u32 s{d+1}, s{lo+1}, 0")


def eval_ops(c, t):
    e1, o1, e2, o2 = t
    ops = [f"v_add_f32 v{e1}, v{c[0]}, v{c[2]}",
           f"v_add_f32 v{o1}, v{c[1]}, v{c[3]}",
           f"v_fma_f32 v{e2}, v{c[2]}, 4.0, v{c[0]}",
           f"v_fma_f32 v{o2}, v{c[3]}, 4.0, v{c[1]}",
           f"v_add_f32 v{c[1]}, v{e1}, v{o1}",
           f"v_sub_f32 v{c[2]}, v{e1}, v{o1}",
           f"v_fma_f32 v{c[3]}, v{o2}, 2.0, v{e2}",
           f"v_fma_f32 v{e2}, v{o2}, -2.0, v{e2}",
           f"v_fmamk_f32 v{e1}, v{c[0]}, {f32hex(15.0)}, v{e2}",
           f"v_fmamk_f32 v{e1}, v{o1}, {f32hex(10.0)}, v{e1}"]
    return ops, [c[1], c[2], c[3], e2, e1]


def wprep(a, karg, wsoff, ws_loaded, barrier=False, extra=None, small=None, mid=None):
    a.vm, a.lg = [], []
    a.e(f"s_load_dwordx2 s[8:9], s[0:1], {karg}")
    if not ws_loaded:
        a.e("s_load_dwordx2 s[30:31], s[0:1], 72")
    a.e("s_lshr_b32 s22, s20, 8")
    a.e("s_bfe_u32 s23, s20, 0x40004")
    a.e("s_bfe_u32 s24, s20, 0x30001")
    a.e("s_and_b32 s21, s20, 1")
    a.e("v_lshrrev_b32 v2, 4, v1")
    a.e("v_lshlrev_b32 v2, 12, v2")
    a.e("v_and_b32 v3, 15, v1")
    a.e("v_lshl_add_u32 v2, v3, 2, v2")
    a.e("s_lshl_b32 s26, s22, 3")
    a.e("s_lshr_b32 s27, s23, 3")
    a.e("s_add_u32 s26, s26, s27")
    a.e("s_lshl_b32 s26, s26, 17")
    a.e("s_and_b32 s27, s23, 7")
    a.e("s_lshl_b32 s27, s27, 14")
    a.e("s_add_u32 s26, s26, s27")
    a.e("s_lshl_b32 s27, s24, 6")
    a.e("s_add_u32 s26, s26, s27")
    a.e(f"s_mov_b32 s10, {31*131072}")
    a.e("s_mov_b32 s11, 0x00020000")
    if small:
        small_select(a)
        a.e("s_add_u32 s37, s26, s5")
        a.e("s_add_u32 s38, s37, s5")
        a.e("s_add_u32 s39, s38, s5")
    else:
        for p in range(1, 4):
            a.e(f"s_add_u32 s{36+p}, s26, {2*131072*p}")
    a.e("s_waitcnt lgkmcnt(0)")
    if small:
        small_ptr(a)
        small_g(a, "prep_kernel")
    R = 16
    for e2 in range(4):
        for p in range(4):
            for e in (2 * e2, 2 * e2 + 1):
                a.vmem(f"buffer_load_dword v{R+p*8+e}, v2, s[8:11], s{36+p if p else 26} offen offset:{e*512}", ("L", e2))
    if small:
        a.e("s_cmp_lt_u32 s3, 12")
        a.e(f"s_cbranch_scc1 {small}")
    if mid:
        mid()
    add64(a, 12, 30, wsoff)
    a.e(f"s_mov_b32 s14, {8*16*CHUNKB}")
    a.e("s_mov_b32 s15, 0x00020000")
    a.e("v_lshlrev_b32 v4, 4, v1")
    a.e("s_lshl_b32 s27, s24, 4")
    a.e("s_add_u32 s27, s27, s23")
    a.e(f"s_mul_i32 s27, s27, {CHUNKB}")
    a.e("s_lshl_b32 s28, s22, 11")
    a.e("s_add_u32 s27, s27, s28")
    a.e("s_lshl_b32 s28, s21, 10")
    a.e("s_add_u32 s27, s27, s28")
    a.e("s_cmp_eq_u32 s21, 0")
    a.e("s_mov_b32 s32, 0x07060302")
    a.e("s_cselect_b32 s32, 0x05040100, s32")
    a.e("s_mov_b32 s33, 0x03020c0c")
    a.e("s_cselect_b32 s33, 0x01000c0c, s33")
    a.e(f"s_mov_b32 s35, {f32hex(1.0/24)}")
    a.e(f"s_mov_b32 s36, {f32hex(1.0/72)}")
    if barrier:
        barrier()
    OUT = 48
    T = 76
    scale = ("0.5", "0.5", "s35", "s35", "s36")
    for e2 in range(4):
        a.wait(vm=(("L", e2),))
        if extra and e2 == int(os.environ.get("XT", "3")):
            extra()
        for p, seq in ((0, 6), (3, 0)):
            a.e(f"v_perm_b32 v{OUT+seq*4+e2}, v{R+p*8+2*e2+1}, v{R+p*8+2*e2}, s32")
        res, lists = [], []
        for e in range(2):
            cf = [T + e * 8 + i for i in range(4)]
            ops = [f"v_perm_b32 v{cf[i]}, v{cf[i]}, v{R + (3 - i) * 8 + 2 * e2 + e}, s33" for i in range(4)]
            o, rr = eval_ops(cf, [T + e * 8 + 4 + i for i in range(4)])
            ops += o + [f"v_mul_f32 v{r}, {sc}, v{r}" for r, sc in zip(rr, scale)]
            res.append(rr)
            lists.append(ops)
        for x, y in zip(*lists):
            a.e(x)
            a.e(y)
        for i in range(5):
            a.e(f"v_cvt_pk_bf16_f32 v{OUT+(1+i)*4+e2}, v{res[0][i]}, v{res[1][i]}")
    for seq in (6, 0, 1, 2, 3, 4, 5):
        a.e(f"s_add_u32 s28, s27, {seq*8192}")
        a.e(f"buffer_store_dwordx4 {vr(OUT+seq*4)}, v4, s[12:15], s28 offen{NTW}")


def wprep2(a, karg, wsoff, barrier, LB=True, extra=None, pre=None, mid=None, late=None):
    a.vm, a.lg = [], []
    if not pre:
        a.e(f"s_load_dwordx2 s[8:9], s[0:1], {karg}")
    a.e("s_lshr_b32 s22, s20, 8")
    a.e("s_bfe_u32 s23, s20, 0x40004")
    a.e("s_bfe_u32 s24, s20, 0x30001")
    a.e("s_and_b32 s21, s20, 1")
    a.e("v_lshrrev_b32 v5, 4, v1")
    a.e("v_lshlrev_b32 v2, 11, v5")
    a.e("v_and_b32 v3, 15, v1")
    a.e("v_lshl_add_u32 v2, v3, 2, v2")
    a.e("s_lshl_b32 s26, s22, 3")
    a.e("s_lshr_b32 s27, s23, 3")
    a.e("s_add_u32 s26, s26, s27")
    a.e("s_lshl_b32 s26, s26, 17")
    a.e("s_and_b32 s27, s23, 7")
    a.e("s_lshl_b32 s27, s27, 1")
    a.e("s_add_u32 s27, s27, s21")
    a.e("s_lshl_b32 s27, s27, 13")
    a.e("s_add_u32 s26, s26, s27")
    a.e("s_lshl_b32 s27, s24, 6")
    a.e("s_add_u32 s26, s26, s27")
    a.e(f"s_mov_b32 s10, {31*131072}")
    a.e("s_mov_b32 s11, 0x00020000")
    for p in range(1, 4):
        a.e(f"s_add_u32 s{36+p}, s26, {2*131072*p}")
    a.e(f"s_mov_b32 s14, {8*16*CHUNKB}")
    a.e("s_mov_b32 s15, 0x00020000")
    a.e("v_lshrrev_b32 v4, 1, v5")
    a.e("v_lshlrev_b32 v4, 8, v4")
    a.e("v_lshl_add_u32 v4, v3, 4, v4")
    a.e("v_and_b32 v5, 1, v5")
    a.e("v_lshl_add_u32 v4, v5, 10, v4")
    a.e("s_lshl_b32 s27, s24, 4")
    a.e("s_add_u32 s27, s27, s23")
    a.e(f"s_mul_i32 s27, s27, {CHUNKB}")
    a.e("s_lshl_b32 s28, s22, 11")
    a.e("s_add_u32 s27, s27, s28")
    a.e("s_lshl_b32 s28, s21, 9")
    a.e("s_add_u32 s27, s27, s28")
    a.e("s_mov_b32 s32, 0x05040100")
    a.e("s_mov_b32 s33, 0x07060302")
    a.e("s_mov_b32 s34, 0xffff0000")
    a.e(f"s_mov_b32 s35, {f32hex(1.0/24)}")
    a.e(f"s_mov_b32 s40, {f32hex(1.0/72)}")
    a.e("s_waitcnt lgkmcnt(0)")
    if W2P and karg == 8:
        a.e("s_cmp_eq_u32 s29, 1")
        a.e("s_cselect_b32 s8, s48, s8")
        a.e("s_cselect_b32 s9, s49, s9")
        a.e(f"s_mul_i32 s29, s29, {WS_W2P - WS_W1P}")
        wsoff = "s29"
    if LB:
        barrier()
    R, OUT, T = (pre, 16, 76) if pre else (16, 76, 104)
    for e2 in range(0 if pre else 2):
        for p in range(4):
            for e in (2 * e2, 2 * e2 + 1):
                a.vmem(f"buffer_load_dword v{R+p*4+e}, v2, s[8:11], s{36+p if p else 26} offen offset:{e*512}", ("L", e2))
    if mid:
        mid()
    if not LB:
        barrier()
    add64(a, 12, 30, wsoff)
    scale = ("0.5", "0.5", "s35", "s35", "s40")

    def out(seq, c):
        return OUT + (seq * 2 + c) * 2
    for e2 in range(2):
        a.wait(vm=(("L", e2),))
        if extra and e2 == 1:
            extra()
        for c in range(2):
            for p, seq in ((0, 6), (3, 0)):
                a.e(f"v_perm_b32 v{out(seq, c)+e2}, v{R+p*4+2*e2+1}, v{R+p*4+2*e2}, s{32+c}")
            res, lists = [], []
            for e in range(2):
                cf = [T + e * 8 + i for i in range(4)]
                src = [R + (3 - i) * 4 + 2 * e2 + e for i in range(4)]
                ops = [f"v_and_b32 v{d}, s34, v{x}" if c else f"v_lshlrev_b32 v{d}, 16, v{x}" for d, x in zip(cf, src)]
                o, rr = eval_ops(cf, [T + e * 8 + 4 + i for i in range(4)])
                ops += o + [f"v_mul_f32 v{r}, {sc}, v{r}" for r, sc in zip(rr, scale)]
                res.append(rr)
                lists.append(ops)
            for x, y in zip(*lists):
                a.e(x)
                a.e(y)
            for i in range(5):
                a.e(f"v_cvt_pk_bf16_f32 v{out(1+i, c)+e2}, v{res[0][i]}, v{res[1][i]}")
            if late == e2 * 2 + c + 1:
                a.e("s_waitcnt lgkmcnt(0)")
                a.e("s_barrier")
    for seq in (6, 0, 1, 2, 3, 4, 5):
        for d in range(2):
            a.e(f"v_permlane16_swap_b32 v{out(seq, 0)+d}, v{out(seq, 1)+d}")
        a.e(f"s_add_u32 s28, s27, {seq*8192}")
        a.e(f"buffer_store_dwordx4 {vr(out(seq, 0))}, v4, s[12:15], s28 offen{NTW}")
    if late == 5:
        a.e("s_waitcnt lgkmcnt(0)")
        a.e("s_barrier")


def prep_kernel(name):
    a = Asm()
    NWG = 256
    a.label(name)
    a.e(f"s_cmp_ge_u32 s2, {NWG}")
    a.e(f"s_cbranch_scc1 L_{name}_done")
    CW = os.environ.get("CW", "late")
    CWN = int(os.environ.get("CWN", "32"))

    def code_warm():
        a.e(f"s_cmp_lt_u32 s3, {256 - CWN}")
        a.e(f"s_cbranch_scc1 L_{name}_ncw")
        a.e("s_getpc_b64 s[62:63]")
        a.label(f"L_{name}_pc")
        a.e("s_and_b32 s64, s3, 8")
        a.e("s_lshl_b32 s64, s64, 12")
        a.e("v_lshlrev_b32 v120, 7, v0")
        a.e("v_add_u32 v120, s64, v120")
        a.e(f"v_min_u32 v120, 0x7fc0de00, v120")
        a.e("v_mov_b32 v121, s63")
        a.e("v_add_co_u32 v120, vcc, s62, v120")
        a.e("s_nop 1")
        a.e("v_addc_co_u32 v121, vcc, 0, v121, vcc")
        a.e("global_load_dword v122, v[120:121], off")
        a.label(f"L_{name}_ncw")
        return 0

    def x_warm():
        XW = int(os.environ.get("XW", "0"))
        if XW:
            a.e("s_and_b32 s64, s3, 7")
            a.e("s_lshr_b32 s65, s2, 3")
            a.e("s_lshr_b32 s66, s65, 3")
            a.e("s_lshl_b32 s64, s64, 2")
            a.e("s_add_u32 s64, s64, s66")
            a.e("s_mul_i32 s64, s64, 512000")
            a.e("s_and_b32 s65, s65, 7")
            a.e("s_lshl_b32 s65, s65, 2")
            a.e("s_and_b32 s66, s20, 3")
            a.e("s_add_u32 s65, s65, s66")
            a.e("s_lshl_b32 s65, s65, 14")
            a.e("s_add_u32 s64, s64, s65")
            a.e("s_sub_u32 s64, s64, 7680")
            a.e("v_lshrrev_b32 v120, 2, v1")
            a.e("v_lshlrev_b32 v120, 10, v120")
            a.e(f"v_and_b32 v121, {XW - 1}, v1")
            a.e("v_lshl_add_u32 v120, v121, 7, v120")
            a.e("v_add_u32 v120, s64, v120")
            a.e("s_mov_b32 s68, s44")
            a.e("s_mov_b32 s69, s45")
            a.e(f"s_mov_b32 s70, {2*16000*512}")
            a.e("s_mov_b32 s71, 0x00020000")
            a.vmem("buffer_load_dword v123, v120, s[68:71], 0 offen", "XW")
    a.e("s_mov_b32 s3, s2")
    if CW == "early":
        code_warm()
    a.e("s_load_dwordx16 s[44:59], s[0:1], 0")
    a.e("s_load_dwordx2 s[30:31], s[0:1], 72")
    if "stamp" in EXP:
        a.e("s_memrealtime s[60:61]")
    a.e("v_readfirstlane_b32 s40, v0")
    a.e("s_lshr_b32 s40, s40, 6")
    a.e("v_and_b32 v1, 63, v0")
    if W2P:
        a.e("s_sub_u32 s40, s40, 2")
        a.e("s_lshr_b32 s29, s40, 2")
        a.e(f"s_cbranch_scc0 L_{name}_w")
        a.e("s_cmp_lt_u32 s40, 8")
        a.e(f"s_cbranch_scc1 L_{name}_w")
        a.e("s_add_u32 s40, s40, 6")
    else:
        a.e("s_cmp_lt_u32 s40, 4")
        a.e(f"s_cbranch_scc1 L_{name}_w")
    small_head(a, name)
    a.label(f"L_{name}_w")
    if W2P:
        a.e("s_and_b32 s40, s40, 3")
    a.e("s_lshl_b32 s21, s2, 2")
    a.e("s_add_u32 s20, s40, s21")

    def first_barrier():
        a.e("s_cmp_ge_u32 s2, 24")
        a.e(f"s_cbranch_scc1 L_{name}_nb")
        a.e("s_barrier")
        a.label(f"L_{name}_nb")
    wprep2(a, 8, WS_W1P, first_barrier, False, code_warm if CW == "late" else None, mid=x_warm)
    if "stamp" in EXP:
        a.e("s_waitcnt vmcnt(0)")
        a.e("s_memrealtime s[62:63]")
        a.e("s_lshl_b32 s36, s2, 7")
        a.e(f"s_add_u32 s36, s36, {WS_STAMP + 3*0x10000}")
        add64(a, 40, 30, "s36")
        a.e("s_mov_b32 s42, 128")
        a.e("s_mov_b32 s43, 0x00020000")
        a.e("s_waitcnt lgkmcnt(0)")
        a.e("v_mov_b32 v8, 0")
        a.e("v_mov_b32 v0, 1")
        a.e("buffer_store_dword v0, v8, s[40:43], 0 offen")
        for i in range(4):
            a.e(f"v_mov_b32 v0, s{60+i}")
            a.e(f"buffer_store_dword v0, v8, s[40:43], 0 offen offset:{80+4*i}")
    a.label(f"L_{name}_done")
    a.e("s_endpgm")
    small_tail(a, name)
    a.L.insert(len(a.L) - 1, f"L_{name}_last:")
    return a.L, 4096, 128


def conv_kernel(name, cfg):
    TIN, TOUT = cfg["tin"], cfg["tout"]
    N = cfg["nchunk"]
    KSPLIT = cfg["ksplit"]
    NWG = 256
    STAMP = "stamp" in EXP
    sX, sW, sO = 8, 12, 16
    sWv, sT0, sCnt, sBo, sXo, sMask = 20, 21, 22, 23, 24, 25
    sBo2 = 26
    sK, sCb, sH = 28, 29, 32
    sSt = 60
    vL = 127
    vU, vS_, vI, vKG = 8, 9, 10, 11

    a = Asm()
    a.label(name)
    a.e(f"s_cmp_ge_u32 s2, {NWG}")
    a.e(f"s_cbranch_scc1 L_{name}_done")

    def stamp(i, fence=True):
        if STAMP:
            a.e(f"s_memtime s[{sSt+2*i}:{sSt+2*i+1}]")
            if fence:
                a.e("s_waitcnt lgkmcnt(0)")
                a.lg = []

    def rstamp(i):
        if STAMP:
            a.e(f"s_memrealtime s[{sSt+2*i}:{sSt+2*i+1}]")
            a.e("s_waitcnt lgkmcnt(0)")
            a.lg = []
    if STAMP:
        for i in range(28):
            a.e(f"s_mov_b32 s{sSt+i}, 0")
        a.e(f"s_memrealtime s[{sSt+20}:{sSt+21}]")
    stamp(0, False)
    a.e(f"s_load_dwordx2 s[4:5], s[0:1], {cfg['in_arg']}")
    a.e("s_load_dwordx2 s[30:31], s[0:1], 72")
    a.e(f"v_readfirstlane_b32 s{sWv}, v0")
    a.e(f"s_lshr_b32 s{sWv}, s{sWv}, 6")
    if os.environ.get("WX", "8") != "0":
        a.e(f"s_xor_b32 s{sWv}, s{sWv}, {os.environ.get('WX', '8')}")
    XL = int((os.environ.get("XL", "33") * 2)[int(KSPLIT)])
    a.e(f"s_and_b32 s36, s2, {(8 >> XL) - 1}")
    a.e(f"s_lshl_b32 s36, s36, {XL}")
    a.e(f"s_bfe_u32 s37, s2, {(XL << 16) | 3}")
    a.e(f"s_or_b32 s{sCb}, s36, s37")
    a.e(f"s_bfe_u32 s36, s2, {(XL << 16) | (3 - XL)}")
    a.e(f"s_lshl_b32 s36, s36, {5 - XL}")
    a.e(f"s_lshr_b32 s37, s2, {3 + XL}")
    a.e("s_or_b32 s36, s36, s37")
    if KSPLIT:
        if LOCAL:
            a.e("s_and_b32 s33, s36, 1")
            a.e("s_bfe_u32 s34, s36, 0x30001")
            a.e("s_lshr_b32 s35, s36, 4")
        else:
            a.e("s_lshr_b32 s33, s36, 4")
            a.e("s_and_b32 s34, s36, 7")
            a.e("s_bfe_u32 s35, s36, 0x10003")
    else:
        a.e("s_mov_b32 s33, 0")
        a.e("s_and_b32 s34, s36, 15")
        a.e("s_lshr_b32 s35, s36, 4")
    a.e(f"s_mul_i32 s{sT0}, s34, 500")
    a.e(f"s_and_b32 s{sH}, s{sWv}, 3")
    a.e(f"v_and_b32 v{vL}, 63, v0")
    a.e(f"v_lshrrev_b32 v5, 2, v{vL}")
    a.e(f"v_and_b32 v6, 3, v{vL}")
    a.e(f"s_and_b32 s42, s{sWv}, 7")
    if not KSPLIT:
        a.e("v_lshlrev_b32 v7, 15, v5")
        a.e("v_lshl_add_u32 v7, v6, 4, v7")
        a.e(f"s_lshl_b32 s41, s{sT0}, 10")
        a.e("s_sub_u32 s41, s41, 7680")
        a.e("s_lshl_b32 s37, s42, 12")
        a.e("s_add_u32 s37, s37, s41")
        a.e("v_add_u32 v7, s37, v7")
        a.e(f"s_mul_i32 s36, s35, {TIN*512}")
        a.e(f"s_mov_b32 s{sX+2}, {TIN*512}")
    else:
        a.e(f"s_lshr_b32 s41, s{sT0}, 2")
        a.e("s_sub_u32 s41, s41, 1")
        a.e("s_add_u32 s37, s41, s42")
        a.e("v_lshl_add_u32 v7, v5, 3, s37")
        a.e(f"s_mul_i32 s36, s35, {32*PLH}")
        a.e(f"s_add_u32 s36, s36, {cfg['in_off']}")
        a.e(f"s_mov_b32 s{sX+2}, {32*PLH}")

    def haddr(dst, vG, vlane, p, t):
        a.e(f"s_add_u32 s37, s33, {2*p - 7 & 0xffffffff}")
        a.e(f"v_lshl_add_u32 v{t}, v{vG}, 3, s37")
        a.e(f"v_cmp_gt_u32 vcc, {TIN}, v{t}")
        a.e(f"s_mul_i32 s37, s33, {PLH}")
        a.e(f"s_add_u32 s37, s37, {(2*p & 3)*PLH + (p >> 1)*64}")
        a.e(f"v_lshl_add_u32 v{dst}, v{vG}, 7, s37")
        a.e(f"v_add_u32 v{dst}, v{dst}, v{vlane}")
        a.e(f"v_mov_b32 v{t}, {OOB}")
        a.e(f"v_cndmask_b32 v{dst}, v{t}, v{dst}, vcc")
    a.e(f"s_mov_b32 s{sX+3}, 0x00020000")
    a.e(f"s_mov_b32 s{sMask}, 0xffff0000")
    a.e("s_mov_b32 s47, s36")

    def kwait():
        a.e("s_waitcnt lgkmcnt(0)")
        stamp(1)
        add64(a, sX, 4, "s47")
    OB = 512

    def wsrd():
        a.e(f"s_lshl_b32 s36, s{sCb}, 4")
        a.e("s_lshl_b32 s37, s33, 3")
        a.e("s_add_u32 s36, s36, s37")
        a.e(f"s_mul_i32 s36, s36, {CHUNKB}")
        a.e(f"s_add_u32 s36, s36, {cfg['w_off']}")
        add64(a, sW, 30, "s36")
        a.e(f"s_mov_b32 s{sW+2}, {N*CHUNKB}")
        a.e(f"s_mov_b32 s{sW+3}, 0x00020000")

    def lds_throttle(need=1):
        if len(a.lg) + need > 15:
            a.e("s_waitcnt lgkmcnt(8)")
            a.lg = a.lg[-8:]

    def mf(acc, b, av):
        if "nomfma" not in EXP:
            a.e(f"v_mfma_f32_16x16x32_bf16 {vr(acc)}, {vr(b)}, {vr(av)}, {vr(acc)}")

    def steady(gen, per, strict=True):
        st = []
        for it in range(3):
            st.append(len(a.L))
            for pos in range(per):
                gen(per * it + pos, pos)
        st.append(len(a.L))
        bodies = [a.L[st[i]:st[i + 1]] for i in range(3)]
        if strict:
            assert bodies[1] == bodies[2], "loop not steady"
            assert bodies[0] == bodies[1], "loop entry not steady"
        del a.L[st[0]:]
        return bodies[1]

    a.e(f"s_cmp_ge_u32 s{sWv}, 8")
    a.e(f"s_cbranch_scc1 L_{name}_helper")

    ACC = 0
    vF, vA8, vD, vB = (120, 121), 122, (123, 124), 125
    vP = (116, 117, 118)
    vBZ = 119
    S, T, O = 96, 108, 64
    if not KSPLIT:
        a.e(f"s_add_u32 s37, s41, {128*4096}")
        a.e(f"v_lshl_add_u32 v{T}, v{vL}, 4, s37")
        for p in range(1, 3):
            a.e(f"v_add_u32 v{T+p}, {p*1024}, v{T}")
    else:
        a.e("s_add_u32 s37, s41, 128")
        a.e("v_mov_b32 v16, s37")
        a.e(f"v_mul_u32_u24 v17, {4*PLH}, v5")
        a.e("v_lshl_add_u32 v17, v6, 4, v17")
        for p in range(3):
            haddr(T + p, 16, 17, p, 18)
    kwait()
    ME = int(os.environ.get("ME", "0"))
    if ME:
        for p in range(3):
            a.vmem(f"buffer_load_dwordx4 {vr(S+4*p)}, v{T+p}, {sr(sX)}, 0 offen", "SP")
    wsrd()
    PLO = PLF if KSPLIT else PLH
    a.e(f"s_mul_i32 s36, s35, {32*PLO}")
    a.e(f"s_add_u32 s36, s36, {cfg['out_off']}")
    if KSPLIT:
        a.e(f"s_mul_i32 s37, s33, {WS_FPS}")
        a.e("s_add_u32 s36, s36, s37")
    add64(a, sO, 30, "s36")
    a.e(f"s_mov_b32 s{sO+2}, {32*PLO}")
    a.e(f"s_mov_b32 s{sO+3}, 0x00020000")
    a.e(f"v_and_b32 v{vI}, 15, v{vL}")
    a.e(f"v_lshrrev_b32 v{vKG}, 4, v{vL}")
    t = 16
    for d, sh in ((vU, 0), (vS_, 1)):
        a.e(f"v_add_u32 v{d}, {sh}, v{vI}")
        a.e(f"v_and_b32 v{t}, 4, v{d}")
        a.e(f"v_lshrrev_b32 v{t}, 1, v{t}")
        a.e(f"v_xor_b32 v{t}, v{vKG}, v{t}")
        a.e(f"v_lshlrev_b32 v{t}, 4, v{t}")
        a.e(f"v_lshl_add_u32 v{d}, v{d}, 6, v{t}")
    a.e(f"s_lshr_b32 s38, s{sH}, 1")
    a.e(f"s_and_b32 s39, s{sH}, 1")
    a.e("s_add_u32 s40, s38, 4")
    a.e("s_lshl_b32 s43, s39, 10")
    a.e(f"s_cmp_lt_u32 s{sWv}, 4")
    a.e(f"s_cselect_b32 s40, s{sWv}, s40")
    a.e("s_cselect_b32 s36, 0, s43")
    a.e("s_lshl_b32 s37, s40, 13")
    a.e("s_add_u32 s37, s37, s36")
    a.e(f"v_lshl_add_u32 v{vB}, v{vL}, 4, s37")
    a.e(f"s_mul_i32 s37, s40, {SEQB}")
    a.e(f"v_add_u32 v{vF[0]}, s37, v{vU}")
    a.e(f"v_add_u32 v{vF[1]}, s37, v{vS_}")
    a.e("s_lshl_b32 s37, s40, 10")
    a.e(f"s_add_u32 s37, s37, {SPB}")
    a.e(f"v_lshl_add_u32 v{t}, v{vKG}, 4, s37")
    a.e(f"v_cmp_eq_u32 vcc, 15, v{vI}")
    a.e(f"v_mov_b32 v{t+1}, {BB}")
    a.e(f"v_mov_b32 v{t+2}, {-BB & 0xffffffff}")
    a.e(f"v_mov_b32 v{t+3}, 64")
    a.e(f"v_cndmask_b32 v{vA8}, v{vF[1]}, v{t}, vcc")
    a.e(f"v_cndmask_b32 v{vD[0]}, v{t+1}, v{t+3}, vcc")
    a.e(f"v_cndmask_b32 v{vD[1]}, v{t+2}, v{t+3}, vcc")
    a.e(f"v_lshl_add_u32 v126, v{vL}, 4, s37")
    tabs = {44: (1.0, 1.0, 1.0, 1.0, 1.0, 16.0), 45: (0.0, 1.0, -1.0, 2.0, -2.0, 8.0),
            46: (0.0, 1.0, 1.0, 4.0, 4.0, 4.0)}
    for sg, tab in tabs.items():
        a.e(f"s_mov_b32 s{sg}, {f32hex(tab[0])}")
    for q in range(1, 6):
        a.e(f"s_cmp_eq_u32 s40, {q}")
        for sg, tab in tabs.items():
            if tab[q] != tab[0]:
                a.e(f"s_cselect_b32 s{sg}, {f32hex(tab[q])}, s{sg}")

    def special_rows():
        a.wait(vm=("SP",))
        for d in range(4):
            for p in range(3):
                a.e(f"v_lshlrev_b32 v{T+p}, 16, v{S+4*p+d}")
                a.e(f"v_and_b32 v{T+3+p}, s{sMask}, v{S+4*p+d}")
            for h in range(2):
                a.e(f"v_mul_f32 v{T+6+h}, s44, v{T+3*h}")
            for h in range(2):
                a.e(f"v_fmac_f32 v{T+6+h}, s45, v{T+3*h+1}")
            for h in range(2):
                a.e(f"v_fmac_f32 v{T+6+h}, s46, v{T+3*h+2}")
            a.e(f"v_cvt_pk_bf16_f32 v{S+d}, v{T+6}, v{T+7}")
        a.e(f"ds_write_b128 v126, {vr(S)}")

    def own_read(k, g, reg, tag, last=False):
        if g == 8:
            base, off = vA8, 0
        else:
            base, off = vF[g >> 3], (k & 1) * BB + (g & 7) * FB
        a.lds(f"ds_read_b128 {vr(reg)}, v{base} offset:{off}", tag)
        if g == 8 and not last:
            a.e(f"v_add_u32 v{vA8}, v{vD[k & 1]}, v{vA8}")

    UNIT = [(s * SEQB, s * SEQB + BB) for s in range(4)] + [(4 * SEQB, TOPB), (5 * SEQB, TOPB + 8192),
            (6 * SEQB, TOPB + 16384), (TOPB + 24576, TOPB + 32768)]
    EA = 96
    ES = []
    R0 = (120, 121, 64)
    vO, vBW = 122, 127
    BND = SPB
    t0, t1, t2, t3 = 108, 109, 110, 111
    ES.append(f"v_and_b32 v{t0}, 15, v{vL}")
    ES.append(f"v_lshrrev_b32 v{t1}, 4, v{vL}")
    ES.append(f"v_lshrrev_b32 v{t2}, 3, v{t0}")
    ES.append(f"s_lshl_b32 s36, s{sWv}, 1")
    ES.append(f"v_add_u32 v{t2}, s36, v{t2}")
    ES.append(f"v_xor_b32 v{t3}, v{t2}, v{t0}")
    ES.append(f"v_and_b32 v{t3}, 7, v{t3}")
    ES.append(f"v_lshlrev_b32 v{t3}, 4, v{t3}")
    ES.append(f"v_lshl_add_u32 v{t3}, v{t2}, 7, v{t3}")
    ES.append(f"v_lshl_add_u32 v{R0[0]}, v{t1}, 11, v{t3}")
    ES.append(f"v_add_u32 v{R0[1]}, 65536, v{R0[0]}")
    ES.append(f"v_add_u32 v{R0[2]}, 131072, v{R0[0]}")
    ES.append(f"s_lshl_b32 s36, s{sWv}, 9")
    ES.append(f"s_add_u32 s36, s36, {BND}")
    ES.append(f"v_lshl_add_u32 v{vBW}, v{t1}, 7, s36")
    ES.append(f"s_lshl_b32 s36, s{sWv}, 4")
    ES.append(f"v_add_u32 v{t0}, s36, v{t0}")
    ES.append(f"v_lshlrev_b32 v{t2}, 6, v{t0}")
    ES.append(f"v_lshl_add_u32 v{t2}, v{t1}, 4, v{t2}")
    ES.append(f"s_mul_i32 s36, s{sCb}, {4*PLO}")
    ES.append(f"s_lshl_b32 s37, s{sT0}, 4")
    ES.append("s_add_u32 s36, s36, s37")
    ES.append(f"v_add_u32 v{t2}, s36, v{t2}")
    ES.append(f"v_mov_b32 v{t3}, {OOB}")
    ES.append(f"v_cmp_gt_u32 vcc, 125, v{t0}")
    k0 = -2.0 * 1.4426950408889634 * 0.7978845608028654
    consts = [-1.0 / 3, 0.25, -5.0, -32.0 / 9, -8.0 / 9, -2.0 / 9, -1.0 / 18, 17.0 / 9, -2.0 / 3, 0.4, -1.0 / 15, -0.2,
              k0 * 0.044715, 1.0]
    KS = [4, 6, 8, 10, 12, 14, 22, 24, 26, 32, 34, 38, 40, 42]
    for sg, cv in zip(KS, consts):
        ES.append(f"s_mov_b32 s{sg}, {f32hex(cv)}")
        ES.append(f"s_mov_b32 s{sg+1}, s{sg}")

    def ex_addr(sbase):
        a.e(f"v_and_b32 v{EA}, 15, v{vL}")
        a.e(f"v_and_b32 v{EA+1}, 7, v{vL}")
        a.e(f"v_lshlrev_b32 v{EA+1}, 4, v{EA+1}")
        a.e(f"v_lshl_add_u32 v{EA}, v{EA}, 7, v{EA+1}")
        a.e(f"v_lshrrev_b32 v{EA+1}, 4, v{vL}")
        a.e(f"v_lshl_add_u32 v{EA}, v{EA+1}, 11, v{EA}")
        a.e(f"v_add_u32 v{EA}, s{sbase}, v{EA}")
        for f in range(1, 8):
            a.e(f"v_xor_b32 v{EA+f}, {f << 4}, v{EA}")

    def mwave(role):
        if role == 1:
            BR, AR, NR = 64, 96, 6
            steps = [("X", g) for g in range(11)]
        else:
            BR, AR, NR = 64, 88, 7
            steps = []
            for g in range(11):
                steps.append(("Y", g))
                if 1 <= g <= 9:
                    steps.append(("Z", g - 1))
        NS = len(steps)

        def bload(k, kind, q):
            if "nob" in EXP and k > 0:
                return
            so = sBo2 if q >> 1 else sBo
            if kind == "X":
                for c in range(2):
                    a.vmem(f"buffer_load_dwordx4 {vr(BR+(q*2+c)*4)}, v{vB}, {sr(sW)}, s{so} offen "
                           f"offset:{(q&1)*2048 + c*1024}", ("B", k, kind, q))
            elif kind == "Y":
                a.vmem(f"buffer_load_dwordx4 {vr(BR+q*4)}, v{vB}, {sr(sW)}, s{so} offen offset:{(q&1)*2048}",
                       ("B", k, kind, q))
            else:
                a.vmem(f"buffer_load_dwordx4 {vr(BR+16+q*4)}, v{vBZ}, {sr(sW)}, s{sBo} offen offset:{q*2048}",
                       ("B", k, kind, q))

        def rd(k, n, last=False):
            kind, g = steps[n]
            reg = AR + 4 * (n % NR)
            if kind == "Z":
                base, off = (vP[0], g * FB6) if g < 6 else (vP[1], (g - 6) * FB6) if g < 8 else (vP[2], 0)
                a.lds(f"ds_read_b128 {vr(reg)}, v{base} offset:{(k & 1)*BB6 + off}", ("A", k, n))
            else:
                own_read(k, g, reg, ("A", k, n), last)

        for i in range(64 if ME < 2 else 0):
            a.e(f"v_mov_b32 v{ACC+i}, 0")
        if "b0" in EXP:
            a.e("s_barrier")
        for p in range(0 if ME else 3):
            a.vmem(f"buffer_load_dwordx4 {vr(S+4*p)}, v{T+p}, {sr(sX)}, 0 offen", "SP")
        a.e(f"s_mov_b32 s{sBo}, 0")
        a.e(f"s_mov_b32 s{sBo2}, 4096")
        for st in steps:
            if st and st[1] >= 7:
                bload(0, st[0], st[1] - 7)
        a.e(f"s_mov_b32 s{sBo}, {CHUNKB}")
        a.e(f"s_mov_b32 s{sBo2}, {CHUNKB + 4096}")
        for i in range(64 if ME == 2 else 0):
            a.e(f"v_mov_b32 v{ACC+i}, 0")
        SPL = os.environ.get("SPL", "0") == "1"
        if not SPL:
            special_rows()
        if role == 2:
            a.e(f"v_and_b32 v{T+3}, 15, v{vL}")
            a.e(f"v_lshlrev_b32 v{T+3}, 2, v{T+3}")
            a.e(f"v_add_u32 v{T+3}, {6*SEQB + 1024}, v{T+3}")
            a.e(f"ds_write_b32 v{T+3}, v{ACC}")
            a.e(f"ds_write_b32 v{T+3}, v{ACC} offset:{BB6}")
        a.e("s_waitcnt lgkmcnt(0)")
        a.e("s_barrier")
        if SPL:
            a.e("s_setprio 3")
            special_rows()
            a.e("s_waitcnt lgkmcnt(0)")
        stamp(7)
        rstamp(12)
        a.e(f"s_mov_b32 s{sCnt}, {N//2}")
        a.e(f"s_setprio {os.environ.get(f'PM{role}', '2')}")

        CO = int(os.environ.get(f"CO{role}", "0" if role == 1 else "5"))
        assert CO < NR
        FM = int("fmaj" in EXP)
        vE = (vD[0], vD[1])

        def period(k, _, last=False):
            if "mst" in EXP and _ == 0:
                stamp(2)
            if "bst" in EXP and _ == 1 and not last:
                a.e("s_memtime s[90:91]")
                a.e("s_waitcnt vmcnt(0) lgkmcnt(0)")
                a.e("s_memtime s[92:93]")
                a.e("s_waitcnt lgkmcnt(0)")
                a.e("s_sub_u32 s92, s92, s90")
                a.e(f"s_add_u32 s{sSt+4}, s{sSt+4}, s92")
                a.e(f"s_max_u32 s{sSt+6}, s{sSt+6}, s92")
                a.vm = []
            for n in range(NR):
                rd(k, n, last)
            pend = []
            fill = []

            def flush(n, cnt):
                while pend and pend[0][0] <= n and cnt > 0:
                    _, h, f = pend.pop(0)
                    t = vE[(h + f) & 1]
                    a.e(f"v_xor_b32 v{t}, {f << 4}, v{vX0[h]}")
                    lds_throttle()
                    a.lds(f"ds_write_b128 v{t}, {vr(ACC + h*32 + f*4)}", "E")
                    cnt -= 1
                    for _i in range(min(12, len(fill))):
                        a.e(fill.pop(0))

            for n, st in enumerate(steps):
                if CO and n == NS - CO and not last:
                    a.wait(lg_all=True)
                    if "mst" in EXP and _ == 0:
                        stamp(3)
                    a.e("s_barrier")
                    if "mst" in EXP and _ == 0:
                        stamp(4)
                kind, g = st
                nt = 2 if kind == "Z" else 4
                qs = [q for q in range(nt) if 0 <= g - q <= 7]
                if FM and kind == "X":
                    if g >= 3:
                        f = g - 3
                        for c in range(2):
                            for q in range(4):
                                a.wait(lg=(("A", k, f + q),), vm=(("B", k, kind, q),))
                                mf(ACC + 32 * c + f * 4, BR + q * 8 + 4 * c, AR + 4 * ((f + q) % NR))
                        if f + NR < NS:
                            rd(k, f + NR, last)
                        if g == 10 and not last:
                            for q in range(4):
                                bload(k + 1, kind, q)
                    qs = []
                else:
                    a.wait(lg=(("A", k, n),), vm=tuple(("B", k, kind, q) for q in qs))
                reg = AR + 4 * (n % NR)
                for q in qs:
                    f = g - q
                    if kind == "X":
                        mf(ACC + f * 4, BR + q * 8, reg)
                        mf(ACC + 32 + f * 4, BR + q * 8 + 4, reg)
                    elif kind == "Y":
                        mf(ACC + f * 4, BR + q * 4, reg)
                    else:
                        mf(ACC + 32 + f * 4, BR + 16 + q * 4, reg)
                if g >= 7 and not last and not (FM and kind == "X"):
                    bload(k + 1, kind, g - 7)
                if n + NR < NS and not (FM and kind == "X"):
                    rd(k, n + NR, last)
                if last:
                    flush(n, int(os.environ.get('FL', '2')))
                    f = g - (nt - 1)
                    if f >= 0:
                        if kind == "X":
                            pend.append((n + 1, 0, f))
                            pend.append((max(n + 1, NS - NR + 1 + 3 * FM), 1, f))
                            pend.sort()
                        else:
                            pend.append((n + 3, 0 if kind == "Y" else 1, f))
                    if kind == "X" and n == NS - NR + 3 * FM:
                        a.wait(lg=(("A", k, NS - 1),))
            if last:
                fill += ES
                for _i in range(8):
                    a.e(fill.pop(0))
                flush(1000, 1000)
                for op in fill:
                    a.e(op)
                return
            a.e(f"s_add_u32 s{sBo}, s{sBo}, {CHUNKB}")
            a.e(f"s_add_u32 s{sBo2}, s{sBo2}, {CHUNKB}")
            assert not a.lg
            if "mst" in EXP and _ == 0:
                stamp(5)
            if not CO:
                a.e("s_barrier")
            if "mst" in EXP and _ == 0:
                stamp(6)

        def period2(k, pos):
            if pos == 1:
                a.e(f"s_sub_u32 s{sCnt}, s{sCnt}, 1")
                a.e(f"s_cmp_eq_u32 s{sCnt}, 0")
                a.e(f"s_cbranch_scc1 L_{name}_mlast{role}")
                state[0] = (list(a.vm), k)
            period(k, pos)

        state = [None]
        body = steady(period2, 2, "nob" not in EXP)
        if "nob" in EXP:
            a.e("s_waitcnt vmcnt(0)")
        a.label(f"L_{name}_mloop{role}")
        a.L.extend(body)
        a.e(f"s_branch L_{name}_mloop{role}")
        a.label(f"L_{name}_mlast{role}")
        a.vm, a.lg = state[0][0], []
        vX0 = (vB, 126)
        a.e(f"v_and_b32 v{vX0[0]}, 15, v{vL}")
        a.e(f"v_and_b32 v{vX0[1]}, 7, v{vL}")
        a.e(f"v_lshlrev_b32 v{vX0[1]}, 4, v{vX0[1]}")
        a.e(f"v_lshl_add_u32 v{vX0[0]}, v{vX0[0]}, 7, v{vX0[1]}")
        a.e(f"v_lshrrev_b32 v{vX0[1]}, 4, v{vL}")
        a.e(f"v_lshl_add_u32 v{vX0[0]}, v{vX0[1]}, 11, v{vX0[0]}")
        if role == 1:
            a.e(f"s_lshl_b32 s36, s{sWv}, 14")
            a.e("s_add_u32 s37, s36, 8192")
        else:
            for sg, tab in ((36, [UNIT[4 + (h >> 1)][h & 1] for h in range(4)]),
                            (37, [UNIT[6 + (h >> 1)][h & 1] for h in range(4)])):
                a.e(f"s_mov_b32 s{sg}, {tab[0]}")
                for h in range(1, 4):
                    a.e(f"s_cmp_eq_u32 s{sH}, {h}")
                    a.e(f"s_cselect_b32 s{sg}, {tab[h]}, s{sg}")
        a.e(f"v_add_u32 v{vX0[1]}, s37, v{vX0[0]}")
        a.e(f"v_add_u32 v{vX0[0]}, s36, v{vX0[0]}")
        if os.environ.get(f"PL{role}"):
            a.e(f"s_setprio {os.environ.get(f'PL{role}')}")
        period(state[0][1], 1, True)
        stamp(8, False)
        rstamp(13)
        a.e("s_setprio 0")
        a.vm, a.lg = [], []

    a.e(f"s_cmp_ge_u32 s{sWv}, 4")
    a.e(f"s_cbranch_scc1 L_{name}_m2")
    vm0 = list(a.vm)
    mwave(1)
    a.e(f"s_branch L_{name}_epi")
    a.label(f"L_{name}_m2")
    a.vm, a.lg = list(vm0), []
    a.e(f"s_mul_i32 s37, s38, {2*FB6}")
    a.e(f"s_add_u32 s37, s37, {6*SEQB}")
    a.e(f"v_add_u32 v{vP[0]}, s37, v{vU}")
    a.e(f"v_add_u32 v{vP[2]}, s37, v{vS_}")
    a.e(f"v_add_u32 v{vP[1]}, {6*SEQB + 6*FB6}, v{vU}")
    a.e("s_cmp_eq_u32 s38, 0")
    a.e(f"s_cbranch_scc1 L_{name}_hh0")
    a.e(f"v_add_u32 v{vP[1]}, {6*SEQB}, v{vS_}")
    a.label(f"L_{name}_hh0")
    a.e("s_lshl_b32 s37, s38, 12")
    a.e("s_add_u32 s37, s37, s43")
    a.e(f"s_add_u32 s37, s37, {6*8192}")
    a.e(f"v_lshl_add_u32 v{vBZ}, v{vL}, 4, s37")
    mwave(2)
    a.e(f"s_branch L_{name}_epi")

    a.label(f"L_{name}_helper")
    a.vm, a.lg = [], []
    a.e("s_setprio 3")
    PB = (0, 32)
    XO = 64
    TMP = 76
    vX = 92
    vW = (96, 97, 98)

    def praw(b, half, p):
        return PB[b] + half * 16 + p * 4

    sXo2 = 27

    def xload(pair, p):
        if KSPLIT:
            half, q = p >> 1, p & 1
            for r in (q, q + 2):
                a.vmem(f"buffer_load_dwordx4 {vr(praw(pair & 1, half, r))}, v{vX+r}, {sr(sX)}, "
                       f"s{sXo2 if half else sXo} offen", ("X", pair))
            return
        for half in range(2):
            a.vmem(f"buffer_load_dwordx4 {vr(praw(pair & 1, half, p))}, v{vX+p}, {sr(sX)}, "
                   f"s{sXo} offen offset:{half*64}", ("X", pair))
        a.e(f"v_add_u32 v{vX+p}, 128, v{vX+p}")

    def uregs(chunk):
        return [praw((chunk >> 1) & 1, chunk & 1, p) for p in range(4)]

    def wr(chunk, i):
        if "nowr" in EXP:
            return
        u = uregs(chunk)
        reg, seq = [(XO, 3), (XO + 4, 4), (XO + 8, 5), (u[0], 0), (u[1], 1), (u[2], 2), (u[3], 6)][i]
        lds_throttle()
        if seq == 6:
            a.lds(f"ds_write_b128 v{vW[2]}, {vr(reg)} offset:{(chunk & 1)*BB6}", "W")
        else:
            a.lds(f"ds_write_b128 v{vW[seq >> 2]}, {vr(reg)} offset:{(seq & 3)*SEQB + (chunk & 1)*BB}", "W")

    def tr_ops(chunk):
        u = uregs(chunk)
        o = [u[1], u[2], XO, XO + 4, XO + 8]
        ops = []
        for d in range(4):
            lo = [TMP + p for p in range(4)]
            hi = [TMP + 8 + p for p in range(4)]
            for p in range(4):
                ops.append(f"v_lshlrev_b32 v{lo[p]}, 16, v{u[p]+d}")
                ops.append(f"v_and_b32 v{hi[p]}, s{sMask}, v{u[p]+d}")
            o1, r1 = eval_ops(lo, [TMP + 4 + i for i in range(4)])
            o2, r2 = eval_ops(hi, [TMP + 12 + i for i in range(4)])
            for x, y in zip(o1, o2):
                ops += [x, y]
            for i in range(5):
                ops.append(f"v_cvt_pk_bf16_f32 v{o[i]+d}, v{r1[i]}, v{r2[i]}")
        if "notr" in EXP:
            ops = ["s_nop 0"] * 8
        return ops

    if KSPLIT:
        a.e("v_lshlrev_b32 v8, 4, v6")
    for p in range(4):
        if KSPLIT:
            haddr(vX + p, 7, 8, p, 9)
        else:
            a.e(f"v_add_u32 v{vX+p}, {p*1024}, v7")
    a.e(f"v_and_b32 v{TMP}, 4, v5")
    a.e(f"v_lshrrev_b32 v{TMP}, 1, v{TMP}")
    a.e(f"v_xor_b32 v{TMP}, v6, v{TMP}")
    a.e(f"v_lshlrev_b32 v{TMP}, 4, v{TMP}")
    a.e(f"v_lshl_add_u32 v{TMP}, v5, 6, v{TMP}")
    a.e(f"s_mov_b32 s{sXo}, 0")
    a.e(f"s_mov_b32 s{sXo2}, {4*PLH}")
    kwait()
    stamp(2)
    P0 = os.environ.get("P0", "0")
    if P0 == "0" or KSPLIT:
        for p in range(4):
            xload(0, p)
            if p == 1 and P0 == "2":
                a.e("s_barrier")
    else:
        for half in range(2):
            for p in range(4):
                a.vmem(f"buffer_load_dwordx4 {vr(praw(0, half, p))}, v{vX+p}, {sr(sX)}, s{sXo} offen offset:{half*64}", ("X", 0))
            if half == 0 and P0 == "2":
                a.e("s_barrier")
        for p in range(4):
            a.e(f"v_add_u32 v{vX+p}, 128, v{vX+p}")
    if P0 != "2" and "b0" in EXP:
        a.e("s_barrier")
    a.e(f"s_mul_i32 s36, s42, {FB}")
    a.e(f"v_add_u32 v{vW[0]}, s36, v{TMP}")
    a.e(f"v_add_u32 v{vW[1]}, {4*SEQB}, v{vW[0]}")
    a.e(f"s_mul_i32 s36, s42, {FB6}")
    a.e(f"s_add_u32 s36, s36, {6*SEQB}")
    a.e(f"v_add_u32 v{vW[2]}, s36, v{TMP}")
    def warm_tail():
        if KSPLIT and "notail" not in EXP:
            add64(a, sW, 30, WS_WF)
            a.e(f"s_mov_b32 s{sW+2}, {262144 + 32768}")
            a.e(f"s_mov_b32 s{sW+3}, 0x00020000")
            a.e("s_lshr_b32 s36, s2, 3")
            a.e("s_lshl_b32 s36, s36, 2")
            a.e(f"s_add_u32 s36, s36, s{sH}")
            a.e("s_mul_i32 s36, s36, 2304")
            a.e(f"v_lshlrev_b32 v1, 4, v{vL}")
            for i in range(3):
                a.e(f"buffer_load_dwordx4 v[4:7], v1, {sr(sW)}, s36 offen offset:{i*1024}")
        if "notw" not in EXP:
            a.e(f"s_cmp_ge_u32 s2, {os.environ.get('TWN', '32')}")
            a.e(f"s_cbranch_scc1 L_{name}_ntw")
            a.e("s_getpc_b64 s[36:37]")
            a.label(f"L_{name}_pc")
            a.e(f"s_lshl_b32 s38, s{sH}, 13")
            a.e(f"s_add_u32 s38, s38, L_{name}_epi-L_{name}_pc")
            a.e(f"v_lshl_add_u32 v2, v{vL}, 7, s38")
            a.e(f"v_min_u32 v2, {0x7fc0de01 + KSPLIT:#x}, v2")
            a.e("v_mov_b32 v3, s37")
            a.e("v_add_co_u32 v2, vcc, s36, v2")
            a.e("s_nop 1")
            a.e("v_addc_co_u32 v3, vcc, 0, v3, vcc")
            a.e("global_load_dword v4, v[2:3], off")
            a.label(f"L_{name}_ntw")
        if os.environ.get("HB2", "0") == "1":
            a.e("s_barrier")

    UNI = KSPLIT and os.environ.get("UNI", "1") == "1"
    if UNI:
        sMA, sMB = 44, 45
        a.e(f"s_mov_b32 s{sK}, 0")
        a.e(f"s_mov_b32 s{sXo}, {8*PLH}")
        a.e(f"s_cmp_ge_u32 s{sWv}, 12")
        a.e(f"s_cselect_b32 s{sMA}, {(1 << N) - 4}, 0")
        a.e(f"s_cselect_b32 s{sMB}, {1 | 1 << (N - 1)}, -1")
        a.e("s_setprio 0")
        a.e(f"s_cbranch_scc1 L_{name}_hloop")
        a.e("s_setprio 1")

        def sync(mask, lbl):
            a.e(f"s_bitcmp1_b32 s{mask}, s{sK}")
            a.e(f"s_cbranch_scc0 {lbl}")
            a.e("s_waitcnt lgkmcnt(0)")
            a.e("s_barrier")
            a.label(lbl)
        a.label(f"L_{name}_hloop")
        for c in range(2):
            a.e("s_waitcnt vmcnt(4)")
            for op in tr_ops(c):
                a.e(op)
            sync(sMA, f"L_{name}_sa{c}")
            a.lg = []
            for i in range(7):
                wr(c, i)
            for r in (0, 2, 1, 3):
                a.e(f"buffer_load_dwordx4 {vr(praw(0, c, r))}, v{vX+r}, {sr(sX)}, s{sXo} offen")
            a.e(f"s_add_u32 s{sXo}, s{sXo}, {4*PLH}")
            sync(sMB, f"L_{name}_sb{c}")
            a.e(f"s_add_u32 s{sK}, s{sK}, 1")
        a.e(f"s_cmp_lt_u32 s{sK}, {N}")
        a.e(f"s_cbranch_scc1 L_{name}_hloop")
        a.e(f"s_cmp_ge_u32 s{sWv}, 12")
        a.e(f"s_cbranch_scc1 L_{name}_hend")
        warm_tail()
        a.label(f"L_{name}_hend")
        a.e(f"s_branch L_{name}_end")
    mark = len(a.L)
    stamp(3)
    a.e(f"s_waitcnt vmcnt({0 if P0 == '0' else 4})")
    stamp(4)
    a.e(f"s_mov_b32 s{sK}, 0")
    a.e(f"s_mov_b32 s{sCnt}, {N//4}")
    a.vm, a.lg = [], []
    if not KSPLIT and os.environ.get("W2", "1") == "3":
        a.e("s_load_dwordx2 s[48:49], s[0:1], 16")
    wr(0, 3)
    wr(0, 6)
    for op in tr_ops(0):
        a.e(op)
    for i in (0, 1, 2, 4, 5):
        wr(0, i)
    stamp(5)
    a.e(f"s_cmp_ge_u32 s{sWv}, 12")
    a.e(f"s_cbranch_scc1 L_{name}_h2")

    def hwave(role):
        SH = 33 * int(os.environ.get(f"SH{role}", "0" if role == 1 else "4"))
        ahead = 2 if SH else 1
        a.vm, a.lg = [], []
        W2E = role == 2 and not KSPLIT and os.environ.get("W2", "1") == "3"
        NF = int(os.environ.get("NF", "2"))
        if KSPLIT:
            a.e(f"s_mov_b32 s{sXo}, {8*PLH}")
            a.e(f"s_mov_b32 s{sXo2}, {12*PLH}")
        X1 = os.environ.get("X1", "1")
        if X1 == "0":
            for p in range(4 if SH else NF):
                xload(1, p)
        a.e("s_waitcnt lgkmcnt(0)")
        stamp(6)
        a.e("s_barrier")
        stamp(7)
        rstamp(12)
        if X1 == "1":
            for p in range(4 if SH else NF):
                xload(1, p)
        PA, PB_ = os.environ.get(f'PH{role}', '11' if role == 1 else '00')
        a.e(f"s_setprio {PA}")
        for op in tr_ops(1)[:SH]:
            a.e(op)
        if role == 1 and os.environ.get("MW", ""):
            a.e(f"s_cmp_lt_u32 s2, {os.environ.get('TWN', '32')}")
            a.e("s_cselect_b32 s55, 1, 99")
            a.e("s_getpc_b64 s[36:37]")
            a.label(f"L_{name}_pc3")
            a.e(f"s_sub_u32 s36, s36, L_{name}_pc3-{name}")
            a.e("s_subb_u32 s37, s37, 0")
            a.e(f"s_lshl_b32 s38, s{sH}, 13")
            a.e(f"v_lshl_add_u32 v102, v{vL}, 7, s38")
            a.e(f"v_min_u32 v102, L_{name}_done-{name}, v102")
            a.e("v_mov_b32 v103, s37")
            a.e("v_add_co_u32 v102, vcc, s36, v102")
            a.e("s_nop 1")
            a.e("v_addc_co_u32 v103, vcc, 0, v103, vcc")
        if W2E:
            a.e("s_lshr_b32 s52, s2, 6")
            a.e("s_lshl_b32 s52, s52, 3")
            a.e("s_bfe_u32 s36, s2, 0x10005")
            a.e("s_add_u32 s52, s52, s36")
            a.e("s_lshl_b32 s52, s52, 17")
            a.e("s_bfe_u32 s36, s2, 0x30002")
            a.e("s_lshl_b32 s36, s36, 1")
            a.e(f"s_and_b32 s37, s{sH}, 1")
            a.e("s_add_u32 s36, s36, s37")
            a.e("s_lshl_b32 s36, s36, 13")
            a.e("s_add_u32 s52, s52, s36")
            a.e("s_and_b32 s36, s2, 3")
            a.e("s_lshl_b32 s36, s36, 1")
            a.e(f"s_lshr_b32 s37, s{sH}, 1")
            a.e("s_add_u32 s36, s36, s37")
            a.e("s_lshl_b32 s36, s36, 6")
            a.e("s_add_u32 s52, s52, s36")
            a.e(f"s_mov_b32 s50, {31*131072}")
            a.e("s_mov_b32 s51, 0x00020000")
            a.e(f"v_lshrrev_b32 v99, 4, v{vL}")
            a.e("v_lshlrev_b32 v99, 11, v99")
            a.e(f"v_and_b32 v100, 15, v{vL}")
            a.e("v_lshl_add_u32 v99, v100, 2, v99")

        def w2load(pos):
            a.e(f"s_cmp_lg_u32 s{sCnt}, {os.environ.get('W2I', '3')}")
            a.e(f"s_cbranch_scc1 L_{name}_w2s{pos}")
            for e in range(4):
                a.e(f"buffer_load_dword v{100+pos*4+e}, v99, s[48:51], s52 offen offset:{e*512}")
            a.e(f"s_add_u32 s52, s52, {2*131072}")
            a.label(f"L_{name}_w2s{pos}")
        VPF = int(os.environ.get("VPF", "0")) if role == 1 and not KSPLIT and XL == 3 else 0
        if VPF:
            a.e(f"s_lshl_b32 s36, s{sCb}, 6")
            a.e(f"s_lshl_b32 s37, s{sH}, 3")
            a.e("s_add_u32 s36, s36, s37")
            a.e("s_lshl_b32 s36, s36, 10")
            a.e("s_add_u32 s36, s36, s41")
            a.e(f"s_add_u32 s36, s36, {VPF*128}")
            a.e(f"v_and_b32 v100, 7, v{vL}")
            a.e("v_lshl_add_u32 v100, v100, 10, s36")

        def vpf(k):
            a.e(f"s_cmp_lt_u32 s{sK}, {N - 2*VPF}")
            a.e(f"s_cselect_b32 s36, 0, {OOB}")
            a.vmem(f"buffer_load_dword v99, v100, {sr(sX)}, s36 offen", "PF")
            a.e(f"v_add_u32 v100, {(128 - 32768) & 0xffffffff if k & 1 else 32768}, v100")
        XD = {(0, 1): "0.2,0.4,0.2,0.4", (0, 2): "0.3,0.5,0.3,0.5", (1, 1): "1,1,1,1", (1, 2): "0,0,0,0"}
        XP = [float(x) for x in os.environ.get(f"XP{1 + int(KSPLIT)}{role}", XD[int(KSPLIT), role]).split(",")]

        def period(k, pos, last=False):
            pair = (k >> 1) + 2 if SH else (k + 3) >> 1
            first = not (k & 1) if SH else (k & 1)
            if pos == 4 - ahead and not last:
                a.e(f"s_cmp_eq_u32 s{sCnt}, 1")
                a.e(f"s_cbranch_scc1 L_{name}_hlast{role}")
            if "hst" in EXP and pos == 1:
                stamp(2)
            V1 = tr_ops(k + 1)[SH:]
            V2 = [] if last else tr_ops(k + 2)[:SH]
            V = V1 + V2
            n = len(V)
            ev = {}

            def at(i, f):
                ev.setdefault(max(0, min(int(i), n)), []).append(f)

            def stores():
                if "hst" in EXP and pos == 1:
                    stamp(3)
                for i in range(7):
                    wr(k + 1, i)
                if "hst" in EXP and pos == 1:
                    stamp(4)
                if PA != PB_:
                    a.e(f"s_setprio {PB_}")
            if PA != PB_:
                a.e(f"s_setprio {PA}")
            if VPF and not last:
                at(float(os.environ.get("VPP", "1.0")) * n, lambda: vpf(k))
            at(len(V1), stores)
            if W2E and not last:
                at(len(V1) + 1 + float(os.environ.get("W2X", "0")) * n, lambda: w2load(pos))
            if not last:
                if not KSPLIT:
                    a.e(f"s_cmp_lt_u32 s{sK}, {N - 2 - ahead}")
                    a.e(f"s_cselect_b32 s{sXo}, 0, {OOB}")
                elif first:
                    a.e(f"s_add_u32 s{sXo}, s{sXo}, {8*PLH}")
                    a.e(f"s_add_u32 s{sXo2}, s{sXo2}, {8*PLH}")
                at(len(V1) if SH else 0, lambda: a.wait(vm=(("X", (k + ahead) >> 1),)))
                if "nox" not in EXP:
                    for p in (range(NF) if first else range(NF, 4)):
                        w = len(V1) + XP[p] * SH if SH and first else XP[p] * n
                        at(w, lambda p=p: xload(pair, p))
            for i in range(n + 1):
                for f in ev.get(i, []):
                    f()
                if i < n:
                    a.e(V[i])
            MW = os.environ.get("MW", "")
            if role == 1 and MW and pos == int(MW) and not last:
                a.e(f"s_cmp_lg_u32 s{sCnt}, s55")
                a.e(f"s_cbranch_scc1 L_{name}_nmw")
                a.e("global_load_dword v101, v[102:103], off")
                a.label(f"L_{name}_nmw")
            if not last:
                a.e(f"s_add_u32 s{sK}, s{sK}, 1")
            if "hst" in EXP and pos == 1:
                stamp(5)
            a.e("s_waitcnt lgkmcnt(0)")
            a.lg = []
            a.e("s_barrier")
            if "hst" in EXP and pos == 1:
                stamp(6)

        body = steady(period, 4, "nox" not in EXP)
        a.label(f"L_{name}_hloop{role}")
        a.L.extend(body)
        a.e(f"s_sub_u32 s{sCnt}, s{sCnt}, 1")
        a.e(f"s_branch L_{name}_hloop{role}")
        a.label(f"L_{name}_hlast{role}")
        a.vm, a.lg = [], []

        def last_period():
            vm = a.vm
            a.vm, a.lg = [], []
            if SH:
                a.e(f"s_mov_b32 s{sMask}, 0xffff0000")
                period(2, 2, True)
            a.vm = vm
        if role == 1 or KSPLIT or W2P:
            last_period()
        else:
            assert SH
            W2L = os.environ.get("W2L", "0") == "1"
            if W2L:
                last_period()
            a.e("s_waitcnt vmcnt(0)")
            a.e(f"s_mov_b32 s58, s{sWv}")
            a.e(f"s_lshl_b32 s20, s2, 2")
            a.e(f"s_add_u32 s20, s20, s{sH}")
            a.e(f"v_mov_b32 v1, v{vL}")
            if W2E:
                W2R = int(os.environ.get("W2R", "0"))

                def only_stores():
                    a.lg = []
                    for i in range(7):
                        wr(3, i)
                wprep2(a, 16, WS_W2P, only_stores if W2R else last_period, pre=100, late=W2R)
            elif os.environ.get("W2", "1") == "2":
                wprep2(a, 16, WS_W2P, last_period, LB=False)
            else:
                wprep(a, 16, WS_W2P, True, barrier=None if W2L else last_period)
            a.e(f"s_mov_b32 s{sWv}, s58")
            for _ in range(int(os.environ.get("HB1", "1"))):
                a.e("s_barrier")
        if role == 1:
            warm_tail()
        stamp(8)
        rstamp(13)
        a.e(f"s_branch L_{name}_end")

    hwave(1)
    a.label(f"L_{name}_h2")
    hwave(2)
    if UNI:
        del a.L[mark:]

    a.label(f"L_{name}_epi")
    K = [sr(x, 2) for x in KS]
    a.e("s_waitcnt lgkmcnt(0)")
    a.e("s_barrier")
    if "est" in EXP:
        stamp(2)
    a.e(f"v_cndmask_b32 v{vO}, v{t3}, v{t2}, vcc")

    def P(c, s, r=0):
        return c * 32 + s * 4 + r
    Y = 64
    TB = 96
    ELS = (0, 1, 2)
    for c in range(2):
        for s_ in range(8):
            if c == 1 and s_ == 7:
                a.e("s_waitcnt lgkmcnt(7)")
            u = UNIT[s_][c]
            a.e(f"ds_read_b128 {vr(P(c, s_))}, v{R0[u >> 16]} offset:{u & 0xffff}")

    def p2(x):
        return vr(x, 2)

    def padd(d, x, y):
        return f"v_pk_add_f32 {p2(d)}, {p2(x)}, {p2(y)}"

    def psub(d, x, y):
        return f"v_pk_add_f32 {p2(d)}, {p2(x)}, {p2(y)} neg_lo:[0,1] neg_hi:[0,1]"

    def pfma(d, x, k, y, neg=False):
        return f"v_pk_fma_f32 {p2(d)}, {p2(x)}, {k}, {p2(y)}" + (" neg_lo:[0,0,1] neg_hi:[0,0,1]" if neg else "")

    def interp(c):
        seq = []
        for r in (0, 2):
            E0, A, B, C, D, Q, E6, E6b = (P(c, x, r) for x in range(8))
            y = [Y + ph * 8 + c * 4 + r for ph in range(4)]
            S1, G = E6, C
            seq.append([
                padd(y[3], E6, E6b),
                padd(S1, A, B),
                psub(A, A, B),
                padd(y[1], C, D),
                psub(G, C, D),
                pfma(y[1], S1, K[0], y[1]),
                pfma(Q, E0, K[3], Q),
                pfma(y[1], E0, K[1], y[1]),
                psub(S1, S1, E0),
                pfma(y[1], y[3], K[2], y[1]),
                psub(S1, S1, y[3]),
                pfma(Q, y[3], K[6], Q),
                psub(B, S1, y[1]),
                pfma(Q, y[1], K[5], Q),
                f"v_pk_mul_f32 {p2(y[2])}, {p2(G)}, {K[9]}",
                pfma(Q, B, K[4], Q),
                pfma(y[2], A, K[10], y[2]),
                pfma(y[0], A, K[7], Q, True),
                pfma(y[0], G, K[8], y[0]),
                pfma(y[2], y[0], K[11], y[2]),
                psub(A, A, y[0]),
                psub(A, A, y[2]),
            ])
        for ops in zip(*seq):
            for op in ops:
                a.e(op)

    a.e("s_waitcnt lgkmcnt(8)")
    interp(0)
    a.e("s_waitcnt lgkmcnt(0)")
    interp(1)
    if "est" in EXP:
        stamp(3)
    a.e("s_mov_b32 s36, 0x00010001")
    a.e("s_mov_b32 s37, 0x00010001")
    a.e("s_mov_b64 exec, s[36:37]")
    for k in range(3):
        for c in range(2):
            a.e(f"ds_write_b128 v{vBW}, {vr(P(c, ELS[k]))} offset:{(k*2+c)*16}")
    a.e("s_mov_b64 exec, -1")

    def finish(ph):
        ys = [Y + ph * 8 + i for i in range(8)]
        if not KSPLIT:
            ts = [16 + (ph & 1) * 8 + i for i in range(8)]
            ev = list(zip(ys[::2], ts[::2]))
            for y, t in ev:
                a.e(f"v_pk_mul_f32 {p2(t)}, {p2(y)}, {p2(y)}")
            for y, t in ev:
                a.e(pfma(t, t, K[12], 44))
            for y, t in ev:
                a.e(f"v_pk_mul_f32 {p2(t)}, {p2(t)}, {p2(y)}")
            for t in ts:
                a.e(f"v_exp_f32 v{t}, v{t}")
            for y, t in ev:
                a.e(f"v_pk_add_f32 {p2(t)}, {p2(t)}, {K[13]}")
            for t in ts:
                a.e(f"v_rcp_f32 v{t}, v{t}")
            for y, t in ev:
                a.e(f"v_pk_mul_f32 {p2(y)}, {p2(y)}, {p2(t)}")
        o = 48 + ph * 4
        for r in range(4):
            a.e(f"v_cvt_pk_bf16_f32 v{o+r}, v{ys[r]}, v{ys[4+r]}")
        so = ph * PLF if KSPLIT else ((ph + 3) & 3) * PLH + ((ph + 7) >> 2) * 64
        a.e(f"s_mov_b32 s44, {so}")
        a.e(f"buffer_store_dwordx4 {vr(o)}, v{vO}, {sr(sO)}, s44 offen{NTF if KSPLIT else NTH}")

    a.e(f"v_mov_b32 v44, {f32hex(k0)}")
    a.e("v_mov_b32 v45, v44")
    finish(0)
    a.e("s_waitcnt lgkmcnt(0)")
    a.e("s_barrier")
    if "est" in EXP:
        stamp(4)
    for i in range(6):
        a.e(f"ds_read_b128 {vr(TB+4*i)}, v{vBW} offset:{512 + i*16}")
    for ph in range(1, 4):
        a.e(f"s_waitcnt lgkmcnt({6 - 2*ph})")
        for c in range(2):
            for r in range(4):
                i = (ph - 1) * 8 + c * 4 + r
                a.e(f"v_mov_b32_dpp v{TB+i}, v{P(c, ELS[ph-1], r)} row_shl:1 row_mask:0xf bank_mask:0xf")
        for i in range(0, 8, 2):
            a.e(padd(Y + ph * 8 + i, Y + ph * 8 + i, TB + (ph - 1) * 8 + i))
        finish(ph)
    if "est" in EXP:
        stamp(5)
    RB = os.environ.get("RB", "00")[int(KSPLIT)]
    if RB != "0":
        if not KSPLIT:
            a.e(f"s_cmp_ge_u32 s{sCb}, {RB}")
            a.e(f"s_cbranch_scc1 L_{name}_end")
        a.e("s_waitcnt vmcnt(0)")
        for ph in range(4):
            so = ph * PLF if KSPLIT else ((ph + 3) & 3) * PLH + ((ph + 7) >> 2) * 64
            a.e(f"s_mov_b32 s44, {so}")
            a.e(f"buffer_load_dword v0, v{vO}, {sr(sO)}, s44 offen")
    a.label(f"L_{name}_end")
    if STAMP:
        a.e("s_waitcnt vmcnt(0)")
        stamp(9, False)
        a.e(f"s_memrealtime s[{sSt+22}:{sSt+23}]")
        a.e(f"s_cmp_lg_u32 s{sWv}, {os.environ.get('SW', '0')}")
        a.e(f"s_cbranch_scc1 L_{name}_done")
        a.e("s_lshl_b32 s36, s2, 7")
        a.e(f"s_add_u32 s36, s36, {WS_STAMP + cfg['stamp']*0x10000}")
        add64(a, 40, 30, "s36")
        a.e("s_mov_b32 s42, 128")
        a.e("s_mov_b32 s43, 0x00020000")
        a.e("s_waitcnt lgkmcnt(0)")
        a.e("v_mov_b32 v8, 0")
        for i in range(28):
            a.e(f"v_mov_b32 v0, s{sSt+i}")
            a.e(f"buffer_store_dword v0, v8, s[40:43], 0 offen offset:{4*i}")
    a.label(f"L_{name}_done")
    a.e("s_endpgm")
    if not STAMP:
        a.L = ["    s_endpgm" if l == f"    s_branch L_{name}_end" else l for l in a.L]
    if "nohf" not in EXP:
        L = a.L
        b = L.index(f"    s_cbranch_scc1 L_{name}_helper")
        h0, h1 = L.index(f"L_{name}_helper:"), L.index(f"L_{name}_epi:")
        a.L = L[:b] + [f"    s_cbranch_scc0 L_{name}_mw"] + L[h0:h1] + [f"L_{name}_mw:"] + L[b + 1:h0] + L[h1:]
    return a.L, TOPB + 40960, 128


CONV1 = dict(tin=16000, tout=8000, nchunk=16, ksplit=False, in_arg=0, in_off=0, w_off=WS_W1P, out_off=WS_H, stamp=0)
CONV2 = dict(tin=8000, tout=4000, nchunk=8, ksplit=True, in_arg=72, in_off=WS_H, w_off=WS_W2P, out_off=WS_FP, stamp=1)

HEADER = f"""; Kernarg layout for this problem (80 bytes, ptrs only, base s[0:1]):
"""


def main():
    ks = [("prep_kernel", 256, 640 if W2P else 384) + prep_kernel("prep_kernel"),
          ("conv1_kernel", 256, 1024) + conv_kernel("conv1_kernel", CONV1),
          ("conv2_kernel", 256, 1024) + conv_kernel("conv2_kernel", CONV2)]
    ks = joint_kernels(ks)
    out = HEADER
    for nm, grid, block, code, lds, vg in ks:
        out += f"; @launch kernel={nm} grid=({grid},1,1) block=({block},1,1) lds={lds}\n"
    out += '.amdgcn_target "amdgcn-amd-amdhsa--gfx950"\n.text\n'
    for nm, grid, block, code, lds, vg in ks:
        if "noalign" not in EXP:
            code = align8(code)
        out += f".globl {nm}\n.p2align 8\n.type {nm},@function\n" + "\n".join(code) + "\n"
    out += '.section .rodata,"a"\n'
    for nm, grid, block, code, lds, vg in ks:
        out += ".p2align 6\n" + kd(nm, vg)
    out = out.replace("0x7fc0de00", "L_joint_kernel_done-L_prep_kernel_pc")
    out = out.replace("0x7fc0de01", "L_conv2_kernel_done-L_conv1_kernel_pc")
    out = out.replace("0x7fc0de02", "L_joint_kernel_done-L_conv2_kernel_pc")
    path = sys.argv[1] if len(sys.argv) > 1 else "standalone__seq2seq_rnn_t_joint__speech.s"
    open(path, "w").write(out)


if __name__ == "__main__":
    main()
```

```python
import os
import sys

from asmlib import Asm, vr, sr, kd, f32hex, align8
from gen13_joint import small_head, small_tail, joint_kernels

EXP = os.environ.get("EXP", "").split(",")

WS_W1P = 0x0000000
WS_W2P = 0x0900000
WS_H = 0x1200000
WS_FP = 0x1A00000
WS_FPS = 0x800000
WS_WF = 0x2A00000
WS_STAMP = 0x3000000

CHUNKB = 7 * 8192
FB = 1024
BB = 8 * FB
SEQB = 2 * BB
FB6 = 1088
BB6 = 8 * FB6
SPB = 6 * SEQB + 2 * BB6
TOPB = SPB + 6144
OOB = 0x7f000000
W2P = os.environ.get('W2', '1') == '0'
LOCAL = 'local' in EXP
PLH, PLF = int(os.environ.get('PLH', 131072)), int(os.environ.get('PLF', 65536))
NTW, NTH, NTF = ({"0": "", "1": " nt", "2": " sc1", "3": " sc0 sc1"}[c] for c in os.environ.get("NT", "222"))


def add64(a, d, lo, off):
    a.e(f"s_add_u32 s{d}, s{lo}, {off}")
    a.e(f"s_addc_u32 s{d+1}, s{lo+1}, 0")


def eval_ops(c, t):
    e1, o1, e2, o2 = t
    ops = [f"v_add_f32 v{e1}, v{c[0]}, v{c[2]}",
           f"v_add_f32 v{o1}, v{c[1]}, v{c[3]}",
           f"v_fma_f32 v{e2}, v{c[2]}, 4.0, v{c[0]}",
           f"v_fma_f32 v{o2}, v{c[3]}, 4.0, v{c[1]}",
           f"v_add_f32 v{c[1]}, v{e1}, v{o1}",
           f"v_sub_f32 v{c[2]}, v{e1}, v{o1}",
           f"v_fma_f32 v{c[3]}, v{o2}, 2.0, v{e2}",
           f"v_fma_f32 v{e2}, v{o2}, -2.0, v{e2}",
           f"v_fmamk_f32 v{e1}, v{c[0]}, {f32hex(15.0)}, v{e2}",
           f"v_fmamk_f32 v{e1}, v{o1}, {f32hex(10.0)}, v{e1}"]
    return ops, [c[1], c[2], c[3], e2, e1]


def wprep(a, karg, wsoff, ws_loaded, barrier=False, extra=None, small=None, mid=None):
    a.vm, a.lg = [], []
    a.e(f"s_load_dwordx2 s[8:9], s[0:1], {karg}")
    if not ws_loaded:
        a.e("s_load_dwordx2 s[30:31], s[0:1], 72")
    a.e("s_lshr_b32 s22, s20, 8")
    a.e("s_bfe_u32 s23, s20, 0x40004")
    a.e("s_bfe_u32 s24, s20, 0x30001")
    a.e("s_and_b32 s21, s20, 1")
    a.e("v_lshrrev_b32 v2, 4, v1")
    a.e("v_lshlrev_b32 v2, 12, v2")
    a.e("v_and_b32 v3, 15, v1")
    a.e("v_lshl_add_u32 v2, v3, 2, v2")
    a.e("s_lshl_b32 s26, s22, 3")
    a.e("s_lshr_b32 s27, s23, 3")
    a.e("s_add_u32 s26, s26, s27")
    a.e("s_lshl_b32 s26, s26, 17")
    a.e("s_and_b32 s27, s23, 7")
    a.e("s_lshl_b32 s27, s27, 14")
    a.e("s_add_u32 s26, s26, s27")
    a.e("s_lshl_b32 s27, s24, 6")
    a.e("s_add_u32 s26, s26, s27")
    a.e(f"s_mov_b32 s10, {31*131072}")
    a.e("s_mov_b32 s11, 0x00020000")
    if small:
        small_select(a)
        a.e("s_add_u32 s37, s26, s5")
        a.e("s_add_u32 s38, s37, s5")
        a.e("s_add_u32 s39, s38, s5")
    else:
        for p in range(1, 4):
            a.e(f"s_add_u32 s{36+p}, s26, {2*131072*p}")
    a.e("s_waitcnt lgkmcnt(0)")
    if small:
        small_ptr(a)
        small_g(a, "prep_kernel")
    R = 16
    for e2 in range(4):
        for p in range(4):
            for e in (2 * e2, 2 * e2 + 1):
                a.vmem(f"buffer_load_dword v{R+p*8+e}, v2, s[8:11], s{36+p if p else 26} offen offset:{e*512}", ("L", e2))
    if small:
        a.e("s_cmp_lt_u32 s3, 12")
        a.e(f"s_cbranch_scc1 {small}")
    if mid:
        mid()
    add64(a, 12, 30, wsoff)
    a.e(f"s_mov_b32 s14, {8*16*CHUNKB}")
    a.e("s_mov_b32 s15, 0x00020000")
    a.e("v_lshlrev_b32 v4, 4, v1")
    a.e("s_lshl_b32 s27, s24, 4")
    a.e("s_add_u32 s27, s27, s23")
    a.e(f"s_mul_i32 s27, s27, {CHUNKB}")
    a.e("s_lshl_b32 s28, s22, 11")
    a.e("s_add_u32 s27, s27, s28")
    a.e("s_lshl_b32 s28, s21, 10")
    a.e("s_add_u32 s27, s27, s28")
    a.e("s_cmp_eq_u32 s21, 0")
    a.e("s_mov_b32 s32, 0x07060302")
    a.e("s_cselect_b32 s32, 0x05040100, s32")
    a.e("s_mov_b32 s33, 0x03020c0c")
    a.e("s_cselect_b32 s33, 0x01000c0c, s33")
    a.e(f"s_mov_b32 s35, {f32hex(1.0/24)}")
    a.e(f"s_mov_b32 s36, {f32hex(1.0/72)}")
    if barrier:
        barrier()
    OUT = 48
    T = 76
    scale = ("0.5", "0.5", "s35", "s35", "s36")
    for e2 in range(4):
        a.wait(vm=(("L", e2),))
        if extra and e2 == int(os.environ.get("XT", "3")):
            extra()
        for p, seq in ((0, 6), (3, 0)):
            a.e(f"v_perm_b32 v{OUT+seq*4+e2}, v{R+p*8+2*e2+1}, v{R+p*8+2*e2}, s32")
        res, lists = [], []
        for e in range(2):
            cf = [T + e * 8 + i for i in range(4)]
            ops = [f"v_perm_b32 v{cf[i]}, v{cf[i]}, v{R + (3 - i) * 8 + 2 * e2 + e}, s33" for i in range(4)]
            o, rr = eval_ops(cf, [T + e * 8 + 4 + i for i in range(4)])
            ops += o + [f"v_mul_f32 v{r}, {sc}, v{r}" for r, sc in zip(rr, scale)]
            res.append(rr)
            lists.append(ops)
        for x, y in zip(*lists):
            a.e(x)
            a.e(y)
        for i in range(5):
            a.e(f"v_cvt_pk_bf16_f32 v{OUT+(1+i)*4+e2}, v{res[0][i]}, v{res[1][i]}")
    for seq in (6, 0, 1, 2, 3, 4, 5):
        a.e(f"s_add_u32 s28, s27, {seq*8192}")
        a.e(f"buffer_store_dwordx4 {vr(OUT+seq*4)}, v4, s[12:15], s28 offen{NTW}")


def wprep2(a, karg, wsoff, barrier, LB=True, extra=None, pre=None, mid=None, late=None):
    a.vm, a.lg = [], []
    if not pre:
        a.e(f"s_load_dwordx2 s[8:9], s[0:1], {karg}")
    a.e("s_lshr_b32 s22, s20, 8")
    a.e("s_bfe_u32 s23, s20, 0x40004")
    a.e("s_bfe_u32 s24, s20, 0x30001")
    a.e("s_and_b32 s21, s20, 1")
    a.e("v_lshrrev_b32 v5, 4, v1")
    a.e("v_lshlrev_b32 v2, 11, v5")
    a.e("v_and_b32 v3, 15, v1")
    a.e("v_lshl_add_u32 v2, v3, 2, v2")
    a.e("s_lshl_b32 s26, s22, 3")
    a.e("s_lshr_b32 s27, s23, 3")
    a.e("s_add_u32 s26, s26, s27")
    a.e("s_lshl_b32 s26, s26, 17")
    a.e("s_and_b32 s27, s23, 7")
    a.e("s_lshl_b32 s27, s27, 1")
    a.e("s_add_u32 s27, s27, s21")
    a.e("s_lshl_b32 s27, s27, 13")
    a.e("s_add_u32 s26, s26, s27")
    a.e("s_lshl_b32 s27, s24, 6")
    a.e("s_add_u32 s26, s26, s27")
    a.e(f"s_mov_b32 s10, {31*131072}")
    a.e("s_mov_b32 s11, 0x00020000")
    for p in range(1, 4):
        a.e(f"s_add_u32 s{36+p}, s26, {2*131072*p}")
    a.e(f"s_mov_b32 s14, {8*16*CHUNKB}")
    a.e("s_mov_b32 s15, 0x00020000")
    a.e("v_lshrrev_b32 v4, 1, v5")
    a.e("v_lshlrev_b32 v4, 8, v4")
    a.e("v_lshl_add_u32 v4, v3, 4, v4")
    a.e("v_and_b32 v5, 1, v5")
    a.e("v_lshl_add_u32 v4, v5, 10, v4")
    a.e("s_lshl_b32 s27, s24, 4")
    a.e("s_add_u32 s27, s27, s23")
    a.e(f"s_mul_i32 s27, s27, {CHUNKB}")
    a.e("s_lshl_b32 s28, s22, 11")
    a.e("s_add_u32 s27, s27, s28")
    a.e("s_lshl_b32 s28, s21, 9")
    a.e("s_add_u32 s27, s27, s28")
    a.e("s_mov_b32 s32, 0x05040100")
    a.e("s_mov_b32 s33, 0x07060302")
    a.e("s_mov_b32 s34, 0xffff0000")
    a.e(f"s_mov_b32 s35, {f32hex(1.0/24)}")
    a.e(f"s_mov_b32 s40, {f32hex(1.0/72)}")
    a.e("s_waitcnt lgkmcnt(0)")
    if W2P and karg == 8:
        a.e("s_cmp_eq_u32 s29, 1")
        a.e("s_cselect_b32 s8, s48, s8")
        a.e("s_cselect_b32 s9, s49, s9")
        a.e(f"s_mul_i32 s29, s29, {WS_W2P - WS_W1P}")
        wsoff = "s29"
    if LB:
        barrier()
    R, OUT, T = (pre, 16, 76) if pre else (16, 76, 104)
    for e2 in range(0 if pre else 2):
        for p in range(4):
            for e in (2 * e2, 2 * e2 + 1):
                a.vmem(f"buffer_load_dword v{R+p*4+e}, v2, s[8:11], s{36+p if p else 26} offen offset:{e*512}", ("L", e2))
    if mid:
        mid()
    if not LB:
        barrier()
    add64(a, 12, 30, wsoff)
    scale = ("0.5", "0.5", "s35", "s35", "s40")

    def out(seq, c):
        return OUT + (seq * 2 + c) * 2
    for e2 in range(2):
        a.wait(vm=(("L", e2),))
        if extra and e2 == 1:
            extra()
        for c in range(2):
            for p, seq in ((0, 6), (3, 0)):
                a.e(f"v_perm_b32 v{out(seq, c)+e2}, v{R+p*4+2*e2+1}, v{R+p*4+2*e2}, s{32+c}")
            res, lists = [], []
            for e in range(2):
                cf = [T + e * 8 + i for i in range(4)]
                src = [R + (3 - i) * 4 + 2 * e2 + e for i in range(4)]
                ops = [f"v_and_b32 v{d}, s34, v{x}" if c else f"v_lshlrev_b32 v{d}, 16, v{x}" for d, x in zip(cf, src)]
                o, rr = eval_ops(cf, [T + e * 8 + 4 + i for i in range(4)])
                ops += o + [f"v_mul_f32 v{r}, {sc}, v{r}" for r, sc in zip(rr, scale)]
                res.append(rr)
                lists.append(ops)
            for x, y in zip(*lists):
                a.e(x)
                a.e(y)
            for i in range(5):
                a.e(f"v_cvt_pk_bf16_f32 v{out(1+i, c)+e2}, v{res[0][i]}, v{res[1][i]}")
            if late == e2 * 2 + c + 1:
                a.e("s_waitcnt lgkmcnt(0)")
                a.e("s_barrier")
    for seq in (6, 0, 1, 2, 3, 4, 5):
        for d in range(2):
            a.e(f"v_permlane16_swap_b32 v{out(seq, 0)+d}, v{out(seq, 1)+d}")
        a.e(f"s_add_u32 s28, s27, {seq*8192}")
        a.e(f"buffer_store_dwordx4 {vr(out(seq, 0))}, v4, s[12:15], s28 offen{NTW}")
    if late == 5:
        a.e("s_waitcnt lgkmcnt(0)")
        a.e("s_barrier")


def prep_kernel(name):
    a = Asm()
    NWG = 256
    a.label(name)
    a.e(f"s_cmp_ge_u32 s2, {NWG}")
    a.e(f"s_cbranch_scc1 L_{name}_done")
    CW = os.environ.get("CW", "late")
    CWN = int(os.environ.get("CWN", "32"))

    def code_warm():
        a.e(f"s_cmp_lt_u32 s3, {256 - CWN}")
        a.e(f"s_cbranch_scc1 L_{name}_ncw")
        a.e("s_getpc_b64 s[62:63]")
        a.label(f"L_{name}_pc")
        a.e("s_and_b32 s64, s3, 8")
        a.e("s_lshl_b32 s64, s64, 12")
        a.e("v_lshlrev_b32 v120, 7, v0")
        a.e("v_add_u32 v120, s64, v120")
        a.e(f"v_min_u32 v120, 0x7fc0de00, v120")
        a.e("v_mov_b32 v121, s63")
        a.e("v_add_co_u32 v120, vcc, s62, v120")
        a.e("s_nop 1")
        a.e("v_addc_co_u32 v121, vcc, 0, v121, vcc")
        a.e("global_load_dword v122, v[120:121], off")
        a.label(f"L_{name}_ncw")
        return 0

    def x_warm():
        XW = int(os.environ.get("XW", "0"))
        if XW:
            a.e("s_and_b32 s64, s3, 7")
            a.e("s_lshr_b32 s65, s2, 3")
            a.e("s_lshr_b32 s66, s65, 3")
            a.e("s_lshl_b32 s64, s64, 2")
            a.e("s_add_u32 s64, s64, s66")
            a.e("s_mul_i32 s64, s64, 512000")
            a.e("s_and_b32 s65, s65, 7")
            a.e("s_lshl_b32 s65, s65, 2")
            a.e("s_and_b32 s66, s20, 3")
            a.e("s_add_u32 s65, s65, s66")
            a.e("s_lshl_b32 s65, s65, 14")
            a.e("s_add_u32 s64, s64, s65")
            a.e("s_sub_u32 s64, s64, 7680")
            a.e("v_lshrrev_b32 v120, 2, v1")
            a.e("v_lshlrev_b32 v120, 10, v120")
            a.e(f"v_and_b32 v121, {XW - 1}, v1")
            a.e("v_lshl_add_u32 v120, v121, 7, v120")
            a.e("v_add_u32 v120, s64, v120")
            a.e("s_mov_b32 s68, s44")
            a.e("s_mov_b32 s69, s45")
            a.e(f"s_mov_b32 s70, {2*16000*512}")
            a.e("s_mov_b32 s71, 0x00020000")
            a.vmem("buffer_load_dword v123, v120, s[68:71], 0 offen", "XW")
    a.e("s_mov_b32 s3, s2")
    if CW == "early":
        code_warm()
    a.e("s_load_dwordx16 s[44:59], s[0:1], 0")
    a.e("s_load_dwordx2 s[30:31], s[0:1], 72")
    if "stamp" in EXP:
        a.e("s_memrealtime s[60:61]")
    a.e("v_readfirstlane_b32 s40, v0")
    a.e("s_lshr_b32 s40, s40, 6")
    a.e("v_and_b32 v1, 63, v0")
    if W2P:
        a.e("s_sub_u32 s40, s40, 2")
        a.e("s_lshr_b32 s29, s40, 2")
        a.e(f"s_cbranch_scc0 L_{name}_w")
        a.e("s_cmp_lt_u32 s40, 8")
        a.e(f"s_cbranch_scc1 L_{name}_w")
        a.e("s_add_u32 s40, s40, 6")
    else:
        a.e("s_cmp_lt_u32 s40, 4")
        a.e(f"s_cbranch_scc1 L_{name}_w")
    small_head(a, name)
    a.label(f"L_{name}_w")
    if W2P:
        a.e("s_and_b32 s40, s40, 3")
    a.e("s_lshl_b32 s21, s2, 2")
    a.e("s_add_u32 s20, s40, s21")

    def first_barrier():
        a.e("s_cmp_ge_u32 s2, 24")
        a.e(f"s_cbranch_scc1 L_{name}_nb")
        a.e("s_barrier")
        a.label(f"L_{name}_nb")
    wprep2(a, 8, WS_W1P, first_barrier, False, code_warm if CW == "late" else None, mid=x_warm)
    if "stamp" in EXP:
        a.e("s_waitcnt vmcnt(0)")
        a.e("s_memrealtime s[62:63]")
        a.e("s_lshl_b32 s36, s2, 7")
        a.e(f"s_add_u32 s36, s36, {WS_STAMP + 3*0x10000}")
        add64(a, 40, 30, "s36")
        a.e("s_mov_b32 s42, 128")
        a.e("s_mov_b32 s43, 0x00020000")
        a.e("s_waitcnt lgkmcnt(0)")
        a.e("v_mov_b32 v8, 0")
        a.e("v_mov_b32 v0, 1")
        a.e("buffer_store_dword v0, v8, s[40:43], 0 offen")
        for i in range(4):
            a.e(f"v_mov_b32 v0, s{60+i}")
            a.e(f"buffer_store_dword v0, v8, s[40:43], 0 offen offset:{80+4*i}")
    a.label(f"L_{name}_done")
    a.e("s_endpgm")
    small_tail(a, name)
    a.L.insert(len(a.L) - 1, f"L_{name}_last:")
    return a.L, 4096, 128


def conv_kernel(name, cfg):
    TIN, TOUT = cfg["tin"], cfg["tout"]
    N = cfg["nchunk"]
    KSPLIT = cfg["ksplit"]
    NWG = 256
    STAMP = "stamp" in EXP
    sX, sW, sO = 8, 12, 16
    sWv, sT0, sCnt, sBo, sXo, sMask = 20, 21, 22, 23, 24, 25
    sBo2 = 26
    sK, sCb, sH = 28, 29, 32
    sSt = 60
    vL = 127
    vU, vS_, vI, vKG = 8, 9, 10, 11

    a = Asm()
    a.label(name)
    a.e(f"s_cmp_ge_u32 s2, {NWG}")
    a.e(f"s_cbranch_scc1 L_{name}_done")

    def stamp(i, fence=True):
        if STAMP:
            a.e(f"s_memtime s[{sSt+2*i}:{sSt+2*i+1}]")
            if fence:
                a.e("s_waitcnt lgkmcnt(0)")
                a.lg = []

    def rstamp(i):
        if STAMP:
            a.e(f"s_memrealtime s[{sSt+2*i}:{sSt+2*i+1}]")
            a.e("s_waitcnt lgkmcnt(0)")
            a.lg = []
    if STAMP:
        for i in range(28):
            a.e(f"s_mov_b32 s{sSt+i}, 0")
        a.e(f"s_memrealtime s[{sSt+20}:{sSt+21}]")
    stamp(0, False)
    a.e(f"s_load_dwordx2 s[4:5], s[0:1], {cfg['in_arg']}")
    a.e("s_load_dwordx2 s[30:31], s[0:1], 72")
    a.e(f"v_readfirstlane_b32 s{sWv}, v0")
    a.e(f"s_lshr_b32 s{sWv}, s{sWv}, 6")
    if os.environ.get("WX", "8") != "0":
        a.e(f"s_xor_b32 s{sWv}, s{sWv}, {os.environ.get('WX', '8')}")
    XL = int((os.environ.get("XL", "33") * 2)[int(KSPLIT)])
    a.e(f"s_and_b32 s36, s2, {(8 >> XL) - 1}")
    a.e(f"s_lshl_b32 s36, s36, {XL}")
    a.e(f"s_bfe_u32 s37, s2, {(XL << 16) | 3}")
    a.e(f"s_or_b32 s{sCb}, s36, s37")
    a.e(f"s_bfe_u32 s36, s2, {(XL << 16) | (3 - XL)}")
    a.e(f"s_lshl_b32 s36, s36, {5 - XL}")
    a.e(f"s_lshr_b32 s37, s2, {3 + XL}")
    a.e("s_or_b32 s36, s36, s37")
    if KSPLIT:
        if LOCAL:
            a.e("s_and_b32 s33, s36, 1")
            a.e("s_bfe_u32 s34, s36, 0x30001")
            a.e("s_lshr_b32 s35, s36, 4")
        else:
            a.e("s_lshr_b32 s33, s36, 4")
            a.e("s_and_b32 s34, s36, 7")
            a.e("s_bfe_u32 s35, s36, 0x10003")
    else:
        a.e("s_mov_b32 s33, 0")
        a.e("s_and_b32 s34, s36, 15")
        a.e("s_lshr_b32 s35, s36, 4")
    a.e(f"s_mul_i32 s{sT0}, s34, 500")
    a.e(f"s_and_b32 s{sH}, s{sWv}, 3")
    a.e(f"v_and_b32 v{vL}, 63, v0")
    a.e(f"v_lshrrev_b32 v5, 2, v{vL}")
    a.e(f"v_and_b32 v6, 3, v{vL}")
    a.e(f"s_and_b32 s42, s{sWv}, 7")
    if not KSPLIT:
        a.e("v_lshlrev_b32 v7, 15, v5")
        a.e("v_lshl_add_u32 v7, v6, 4, v7")
        a.e(f"s_lshl_b32 s41, s{sT0}, 10")
        a.e("s_sub_u32 s41, s41, 7680")
        a.e("s_lshl_b32 s37, s42, 12")
        a.e("s_add_u32 s37, s37, s41")
        a.e("v_add_u32 v7, s37, v7")
        a.e(f"s_mul_i32 s36, s35, {TIN*512}")
        a.e(f"s_mov_b32 s{sX+2}, {TIN*512}")
    else:
        a.e(f"s_lshr_b32 s41, s{sT0}, 2")
        a.e("s_sub_u32 s41, s41, 1")
        a.e("s_add_u32 s37, s41, s42")
        a.e("v_lshl_add_u32 v7, v5, 3, s37")
        a.e(f"s_mul_i32 s36, s35, {32*PLH}")
        a.e(f"s_add_u32 s36, s36, {cfg['in_off']}")
        a.e(f"s_mov_b32 s{sX+2}, {32*PLH}")

    def haddr(dst, vG, vlane, p, t):
        a.e(f"s_add_u32 s37, s33, {2*p - 7 & 0xffffffff}")
        a.e(f"v_lshl_add_u32 v{t}, v{vG}, 3, s37")
        a.e(f"v_cmp_gt_u32 vcc, {TIN}, v{t}")
        a.e(f"s_mul_i32 s37, s33, {PLH}")
        a.e(f"s_add_u32 s37, s37, {(2*p & 3)*PLH + (p >> 1)*64}")
        a.e(f"v_lshl_add_u32 v{dst}, v{vG}, 7, s37")
        a.e(f"v_add_u32 v{dst}, v{dst}, v{vlane}")
        a.e(f"v_mov_b32 v{t}, {OOB}")
        a.e(f"v_cndmask_b32 v{dst}, v{t}, v{dst}, vcc")
    a.e(f"s_mov_b32 s{sX+3}, 0x00020000")
    a.e(f"s_mov_b32 s{sMask}, 0xffff0000")
    a.e("s_mov_b32 s47, s36")

    def kwait():
        a.e("s_waitcnt lgkmcnt(0)")
        stamp(1)
        add64(a, sX, 4, "s47")
    OB = 512

    def wsrd():
        a.e(f"s_lshl_b32 s36, s{sCb}, 4")
        a.e("s_lshl_b32 s37, s33, 3")
        a.e("s_add_u32 s36, s36, s37")
        a.e(f"s_mul_i32 s36, s36, {CHUNKB}")
        a.e(f"s_add_u32 s36, s36, {cfg['w_off']}")
        add64(a, sW, 30, "s36")
        a.e(f"s_mov_b32 s{sW+2}, {N*CHUNKB}")
        a.e(f"s_mov_b32 s{sW+3}, 0x00020000")

    def lds_throttle(need=1):
        if len(a.lg) + need > 15:
            a.e("s_waitcnt lgkmcnt(8)")
            a.lg = a.lg[-8:]

    def mf(acc, b, av):
        if "nomfma" not in EXP:
            a.e(f"v_mfma_f32_16x16x32_bf16 {vr(acc)}, {vr(b)}, {vr(av)}, {vr(acc)}")

    def steady(gen, per, strict=True):
        st = []
        for it in range(3):
            st.append(len(a.L))
            for pos in range(per):
                gen(per * it + pos, pos)
        st.append(len(a.L))
        bodies = [a.L[st[i]:st[i + 1]] for i in range(3)]
        if strict:
            assert bodies[1] == bodies[2], "loop not steady"
            assert bodies[0] == bodies[1], "loop entry not steady"
        del a.L[st[0]:]
        return bodies[1]

    a.e(f"s_cmp_ge_u32 s{sWv}, 8")
    a.e(f"s_cbranch_scc1 L_{name}_helper")

    ACC = 0
    vF, vA8, vD, vB = (120, 121), 122, (123, 124), 125
    vP = (116, 117, 118)
    vBZ = 119
    S, T, O = 96, 108, 64
    if not KSPLIT:
        a.e(f"s_add_u32 s37, s41, {128*4096}")
        a.e(f"v_lshl_add_u32 v{T}, v{vL}, 4, s37")
        for p in range(1, 3):
            a.e(f"v_add_u32 v{T+p}, {p*1024}, v{T}")
    else:
        a.e("s_add_u32 s37, s41, 128")
        a.e("v_mov_b32 v16, s37")
        a.e(f"v_mul_u32_u24 v17, {4*PLH}, v5")
        a.e("v_lshl_add_u32 v17, v6, 4, v17")
        for p in range(3):
            haddr(T + p, 16, 17, p, 18)
    kwait()
    ME = int(os.environ.get("ME", "0"))
    if ME:
        for p in range(3):
            a.vmem(f"buffer_load_dwordx4 {vr(S+4*p)}, v{T+p}, {sr(sX)}, 0 offen", "SP")
    wsrd()
    PLO = PLF if KSPLIT else PLH
    a.e(f"s_mul_i32 s36, s35, {32*PLO}")
    a.e(f"s_add_u32 s36, s36, {cfg['out_off']}")
    if KSPLIT:
        a.e(f"s_mul_i32 s37, s33, {WS_FPS}")
        a.e("s_add_u32 s36, s36, s37")
    add64(a, sO, 30, "s36")
    a.e(f"s_mov_b32 s{sO+2}, {32*PLO}")
    a.e(f"s_mov_b32 s{sO+3}, 0x00020000")
    a.e(f"v_and_b32 v{vI}, 15, v{vL}")
    a.e(f"v_lshrrev_b32 v{vKG}, 4, v{vL}")
    t = 16
    for d, sh in ((vU, 0), (vS_, 1)):
        a.e(f"v_add_u32 v{d}, {sh}, v{vI}")
        a.e(f"v_and_b32 v{t}, 4, v{d}")
        a.e(f"v_lshrrev_b32 v{t}, 1, v{t}")
        a.e(f"v_xor_b32 v{t}, v{vKG}, v{t}")
        a.e(f"v_lshlrev_b32 v{t}, 4, v{t}")
        a.e(f"v_lshl_add_u32 v{d}, v{d}, 6, v{t}")
    a.e(f"s_lshr_b32 s38, s{sH}, 1")
    a.e(f"s_and_b32 s39, s{sH}, 1")
    a.e("s_add_u32 s40, s38, 4")
    a.e("s_lshl_b32 s43, s39, 10")
    a.e(f"s_cmp_lt_u32 s{sWv}, 4")
    a.e(f"s_cselect_b32 s40, s{sWv}, s40")
    a.e("s_cselect_b32 s36, 0, s43")
    a.e("s_lshl_b32 s37, s40, 13")
    a.e("s_add_u32 s37, s37, s36")
    a.e(f"v_lshl_add_u32 v{vB}, v{vL}, 4, s37")
    a.e(f"s_mul_i32 s37, s40, {SEQB}")
    a.e(f"v_add_u32 v{vF[0]}, s37, v{vU}")
    a.e(f"v_add_u32 v{vF[1]}, s37, v{vS_}")
    a.e("s_lshl_b32 s37, s40, 10")
    a.e(f"s_add_u32 s37, s37, {SPB}")
    a.e(f"v_lshl_add_u32 v{t}, v{vKG}, 4, s37")
    a.e(f"v_cmp_eq_u32 vcc, 15, v{vI}")
    a.e(f"v_mov_b32 v{t+1}, {BB}")
    a.e(f"v_mov_b32 v{t+2}, {-BB & 0xffffffff}")
    a.e(f"v_mov_b32 v{t+3}, 64")
    a.e(f"v_cndmask_b32 v{vA8}, v{vF[1]}, v{t}, vcc")
    a.e(f"v_cndmask_b32 v{vD[0]}, v{t+1}, v{t+3}, vcc")
    a.e(f"v_cndmask_b32 v{vD[1]}, v{t+2}, v{t+3}, vcc")
    a.e(f"v_lshl_add_u32 v126, v{vL}, 4, s37")
    tabs = {44: (1.0, 1.0, 1.0, 1.0, 1.0, 16.0), 45: (0.0, 1.0, -1.0, 2.0, -2.0, 8.0),
            46: (0.0, 1.0, 1.0, 4.0, 4.0, 4.0)}
    for sg, tab in tabs.items():
        a.e(f"s_mov_b32 s{sg}, {f32hex(tab[0])}")
    for q in range(1, 6):
        a.e(f"s_cmp_eq_u32 s40, {q}")
        for sg, tab in tabs.items():
            if tab[q] != tab[0]:
                a.e(f"s_cselect_b32 s{sg}, {f32hex(tab[q])}, s{sg}")

    def special_rows():
        a.wait(vm=("SP",))
        for d in range(4):
            for p in range(3):
                a.e(f"v_lshlrev_b32 v{T+p}, 16, v{S+4*p+d}")
                a.e(f"v_and_b32 v{T+3+p}, s{sMask}, v{S+4*p+d}")
            for h in range(2):
                a.e(f"v_mul_f32 v{T+6+h}, s44, v{T+3*h}")
            for h in range(2):
                a.e(f"v_fmac_f32 v{T+6+h}, s45, v{T+3*h+1}")
            for h in range(2):
                a.e(f"v_fmac_f32 v{T+6+h}, s46, v{T+3*h+2}")
            a.e(f"v_cvt_pk_bf16_f32 v{S+d}, v{T+6}, v{T+7}")
        a.e(f"ds_write_b128 v126, {vr(S)}")

    def own_read(k, g, reg, tag, last=False):
        if g == 8:
            base, off = vA8, 0
        else:
            base, off = vF[g >> 3], (k & 1) * BB + (g & 7) * FB
        a.lds(f"ds_read_b128 {vr(reg)}, v{base} offset:{off}", tag)
        if g == 8 and not last:
            a.e(f"v_add_u32 v{vA8}, v{vD[k & 1]}, v{vA8}")

    UNIT = [(s * SEQB, s * SEQB + BB) for s in range(4)] + [(4 * SEQB, TOPB), (5 * SEQB, TOPB + 8192),
            (6 * SEQB, TOPB + 16384), (TOPB + 24576, TOPB + 32768)]
    EA = 96
    ES = []
    R0 = (120, 121, 64)
    vO, vBW = 122, 127
    BND = SPB
    t0, t1, t2, t3 = 108, 109, 110, 111
    ES.append(f"v_and_b32 v{t0}, 15, v{vL}")
    ES.append(f"v_lshrrev_b32 v{t1}, 4, v{vL}")
    ES.append(f"v_lshrrev_b32 v{t2}, 3, v{t0}")
    ES.append(f"s_lshl_b32 s36, s{sWv}, 1")
    ES.append(f"v_add_u32 v{t2}, s36, v{t2}")
    ES.append(f"v_xor_b32 v{t3}, v{t2}, v{t0}")
    ES.append(f"v_and_b32 v{t3}, 7, v{t3}")
    ES.append(f"v_lshlrev_b32 v{t3}, 4, v{t3}")
    ES.append(f"v_lshl_add_u32 v{t3}, v{t2}, 7, v{t3}")
    ES.append(f"v_lshl_add_u32 v{R0[0]}, v{t1}, 11, v{t3}")
    ES.append(f"v_add_u32 v{R0[1]}, 65536, v{R0[0]}")
    ES.append(f"v_add_u32 v{R0[2]}, 131072, v{R0[0]}")
    ES.append(f"s_lshl_b32 s36, s{sWv}, 9")
    ES.append(f"s_add_u32 s36, s36, {BND}")
    ES.append(f"v_lshl_add_u32 v{vBW}, v{t1}, 7, s36")
    ES.append(f"s_lshl_b32 s36, s{sWv}, 4")
    ES.append(f"v_add_u32 v{t0}, s36, v{t0}")
    ES.append(f"v_lshlrev_b32 v{t2}, 6, v{t0}")
    ES.append(f"v_lshl_add_u32 v{t2}, v{t1}, 4, v{t2}")
    ES.append(f"s_mul_i32 s36, s{sCb}, {4*PLO}")
    ES.append(f"s_lshl_b32 s37, s{sT0}, 4")
    ES.append("s_add_u32 s36, s36, s37")
    ES.append(f"v_add_u32 v{t2}, s36, v{t2}")
    ES.append(f"v_mov_b32 v{t3}, {OOB}")
    ES.append(f"v_cmp_gt_u32 vcc, 125, v{t0}")
    k0 = -2.0 * 1.4426950408889634 * 0.7978845608028654
    consts = [-1.0 / 3, 0.25, -5.0, -32.0 / 9, -8.0 / 9, -2.0 / 9, -1.0 / 18, 17.0 / 9, -2.0 / 3, 0.4, -1.0 / 15, -0.2,
              k0 * 0.044715, 1.0]
    KS = [4, 6, 8, 10, 12, 14, 22, 24, 26, 32, 34, 38, 40, 42]
    for sg, cv in zip(KS, consts):
        ES.append(f"s_mov_b32 s{sg}, {f32hex(cv)}")
        ES.append(f"s_mov_b32 s{sg+1}, s{sg}")

    def ex_addr(sbase):
        a.e(f"v_and_b32 v{EA}, 15, v{vL}")
        a.e(f"v_and_b32 v{EA+1}, 7, v{vL}")
        a.e(f"v_lshlrev_b32 v{EA+1}, 4, v{EA+1}")
        a.e(f"v_lshl_add_u32 v{EA}, v{EA}, 7, v{EA+1}")
        a.e(f"v_lshrrev_b32 v{EA+1}, 4, v{vL}")
        a.e(f"v_lshl_add_u32 v{EA}, v{EA+1}, 11, v{EA}")
        a.e(f"v_add_u32 v{EA}, s{sbase}, v{EA}")
        for f in range(1, 8):
            a.e(f"v_xor_b32 v{EA+f}, {f << 4}, v{EA}")

    def mwave(role):
        if role == 1:
            BR, AR, NR = 64, 96, 6
            steps = [("X", g) for g in range(11)]
        else:
            BR, AR, NR = 64, 88, 7
            steps = []
            for g in range(11):
                steps.append(("Y", g))
                if 1 <= g <= 9:
                    steps.append(("Z", g - 1))
        NS = len(steps)

        def bload(k, kind, q):
            if "nob" in EXP and k > 0:
                return
            so = sBo2 if q >> 1 else sBo
            if kind == "X":
                for c in range(2):
                    a.vmem(f"buffer_load_dwordx4 {vr(BR+(q*2+c)*4)}, v{vB}, {sr(sW)}, s{so} offen "
                           f"offset:{(q&1)*2048 + c*1024}", ("B", k, kind, q))
            elif kind == "Y":
                a.vmem(f"buffer_load_dwordx4 {vr(BR+q*4)}, v{vB}, {sr(sW)}, s{so} offen offset:{(q&1)*2048}",
                       ("B", k, kind, q))
            else:
                a.vmem(f"buffer_load_dwordx4 {vr(BR+16+q*4)}, v{vBZ}, {sr(sW)}, s{sBo} offen offset:{q*2048}",
                       ("B", k, kind, q))

        def rd(k, n, last=False):
            kind, g = steps[n]
            reg = AR + 4 * (n % NR)
            if kind == "Z":
                base, off = (vP[0], g * FB6) if g < 6 else (vP[1], (g - 6) * FB6) if g < 8 else (vP[2], 0)
                a.lds(f"ds_read_b128 {vr(reg)}, v{base} offset:{(k & 1)*BB6 + off}", ("A", k, n))
            else:
                own_read(k, g, reg, ("A", k, n), last)

        for i in range(64 if ME < 2 else 0):
            a.e(f"v_mov_b32 v{ACC+i}, 0")
        if "b0" in EXP:
            a.e("s_barrier")
        for p in range(0 if ME else 3):
            a.vmem(f"buffer_load_dwordx4 {vr(S+4*p)}, v{T+p}, {sr(sX)}, 0 offen", "SP")
        a.e(f"s_mov_b32 s{sBo}, 0")
        a.e(f"s_mov_b32 s{sBo2}, 4096")
        for st in steps:
            if st and st[1] >= 7:
                bload(0, st[0], st[1] - 7)
        a.e(f"s_mov_b32 s{sBo}, {CHUNKB}")
        a.e(f"s_mov_b32 s{sBo2}, {CHUNKB + 4096}")
        for i in range(64 if ME == 2 else 0):
            a.e(f"v_mov_b32 v{ACC+i}, 0")
        SPL = os.environ.get("SPL", "0") == "1"
        if not SPL:
            special_rows()
        if role == 2:
            a.e(f"v_and_b32 v{T+3}, 15, v{vL}")
            a.e(f"v_lshlrev_b32 v{T+3}, 2, v{T+3}")
            a.e(f"v_add_u32 v{T+3}, {6*SEQB + 1024}, v{T+3}")
            a.e(f"ds_write_b32 v{T+3}, v{ACC}")
            a.e(f"ds_write_b32 v{T+3}, v{ACC} offset:{BB6}")
        a.e("s_waitcnt lgkmcnt(0)")
        a.e("s_barrier")
        if SPL:
            a.e("s_setprio 3")
            special_rows()
            a.e("s_waitcnt lgkmcnt(0)")
        stamp(7)
        rstamp(12)
        a.e(f"s_mov_b32 s{sCnt}, {N//2}")
        a.e(f"s_setprio {os.environ.get(f'PM{role}', '2')}")

        CO = int(os.environ.get(f"CO{role}", "0" if role == 1 else "5"))
        assert CO < NR
        FM = int("fmaj" in EXP)
        vE = (vD[0], vD[1])

        def period(k, _, last=False):
            if "mst" in EXP and _ == 0:
                stamp(2)
            if "bst" in EXP and _ == 1 and not last:
                a.e("s_memtime s[90:91]")
                a.e("s_waitcnt vmcnt(0) lgkmcnt(0)")
                a.e("s_memtime s[92:93]")
                a.e("s_waitcnt lgkmcnt(0)")
                a.e("s_sub_u32 s92, s92, s90")
                a.e(f"s_add_u32 s{sSt+4}, s{sSt+4}, s92")
                a.e(f"s_max_u32 s{sSt+6}, s{sSt+6}, s92")
                a.vm = []
            for n in range(NR):
                rd(k, n, last)
            pend = []
            fill = []

            def flush(n, cnt):
                while pend and pend[0][0] <= n and cnt > 0:
                    _, h, f = pend.pop(0)
                    t = vE[(h + f) & 1]
                    a.e(f"v_xor_b32 v{t}, {f << 4}, v{vX0[h]}")
                    lds_throttle()
                    a.lds(f"ds_write_b128 v{t}, {vr(ACC + h*32 + f*4)}", "E")
                    cnt -= 1
                    for _i in range(min(12, len(fill))):
                        a.e(fill.pop(0))

            for n, st in enumerate(steps):
                if CO and n == NS - CO and not last:
                    a.wait(lg_all=True)
                    if "mst" in EXP and _ == 0:
                        stamp(3)
                    a.e("s_barrier")
                    if "mst" in EXP and _ == 0:
                        stamp(4)
                kind, g = st
                nt = 2 if kind == "Z" else 4
                qs = [q for q in range(nt) if 0 <= g - q <= 7]
                if FM and kind == "X":
                    if g >= 3:
                        f = g - 3
                        for c in range(2):
                            for q in range(4):
                                a.wait(lg=(("A", k, f + q),), vm=(("B", k, kind, q),))
                                mf(ACC + 32 * c + f * 4, BR + q * 8 + 4 * c, AR + 4 * ((f + q) % NR))
                        if f + NR < NS:
                            rd(k, f + NR, last)
                        if g == 10 and not last:
                            for q in range(4):
                                bload(k + 1, kind, q)
                    qs = []
                else:
                    a.wait(lg=(("A", k, n),), vm=tuple(("B", k, kind, q) for q in qs))
                reg = AR + 4 * (n % NR)
                for q in qs:
                    f = g - q
                    if kind == "X":
                        mf(ACC + f * 4, BR + q * 8, reg)
                        mf(ACC + 32 + f * 4, BR + q * 8 + 4, reg)
                    elif kind == "Y":
                        mf(ACC + f * 4, BR + q * 4, reg)
                    else:
                        mf(ACC + 32 + f * 4, BR + 16 + q * 4, reg)
                if g >= 7 and not last and not (FM and kind == "X"):
                    bload(k + 1, kind, g - 7)
                if n + NR < NS and not (FM and kind == "X"):
                    rd(k, n + NR, last)
                if last:
                    flush(n, int(os.environ.get('FL', '2')))
                    f = g - (nt - 1)
                    if f >= 0:
                        if kind == "X":
                            pend.append((n + 1, 0, f))
                            pend.append((max(n + 1, NS - NR + 1 + 3 * FM), 1, f))
                            pend.sort()
                        else:
                            pend.append((n + 3, 0 if kind == "Y" else 1, f))
                    if kind == "X" and n == NS - NR + 3 * FM:
                        a.wait(lg=(("A", k, NS - 1),))
            if last:
                fill += ES
                for _i in range(8):
                    a.e(fill.pop(0))
                flush(1000, 1000)
                for op in fill:
                    a.e(op)
                return
            a.e(f"s_add_u32 s{sBo}, s{sBo}, {CHUNKB}")
            a.e(f"s_add_u32 s{sBo2}, s{sBo2}, {CHUNKB}")
            assert not a.lg
            if "mst" in EXP and _ == 0:
                stamp(5)
            if not CO:
                a.e("s_barrier")
            if "mst" in EXP and _ == 0:
                stamp(6)

        def period2(k, pos):
            if pos == 1:
                a.e(f"s_sub_u32 s{sCnt}, s{sCnt}, 1")
                a.e(f"s_cmp_eq_u32 s{sCnt}, 0")
                a.e(f"s_cbranch_scc1 L_{name}_mlast{role}")
                state[0] = (list(a.vm), k)
            period(k, pos)

        state = [None]
        body = steady(period2, 2, "nob" not in EXP)
        if "nob" in EXP:
            a.e("s_waitcnt vmcnt(0)")
        if f"malign{role}" in EXP:
            a.c("ALIGN ON")
        a.label(f"L_{name}_mloop{role}")
        a.L.extend(body)
        a.c("ALIGN OFF")
        a.e(f"s_branch L_{name}_mloop{role}")
        a.label(f"L_{name}_mlast{role}")
        a.vm, a.lg = state[0][0], []
        vX0 = (vB, 126)
        a.e(f"v_and_b32 v{vX0[0]}, 15, v{vL}")
        a.e(f"v_and_b32 v{vX0[1]}, 7, v{vL}")
        a.e(f"v_lshlrev_b32 v{vX0[1]}, 4, v{vX0[1]}")
        a.e(f"v_lshl_add_u32 v{vX0[0]}, v{vX0[0]}, 7, v{vX0[1]}")
        a.e(f"v_lshrrev_b32 v{vX0[1]}, 4, v{vL}")
        a.e(f"v_lshl_add_u32 v{vX0[0]}, v{vX0[1]}, 11, v{vX0[0]}")
        if role == 1:
            a.e(f"s_lshl_b32 s36, s{sWv}, 14")
            a.e("s_add_u32 s37, s36, 8192")
        else:
            for sg, tab in ((36, [UNIT[4 + (h >> 1)][h & 1] for h in range(4)]),
                            (37, [UNIT[6 + (h >> 1)][h & 1] for h in range(4)])):
                a.e(f"s_mov_b32 s{sg}, {tab[0]}")
                for h in range(1, 4):
                    a.e(f"s_cmp_eq_u32 s{sH}, {h}")
                    a.e(f"s_cselect_b32 s{sg}, {tab[h]}, s{sg}")
        a.e(f"v_add_u32 v{vX0[1]}, s37, v{vX0[0]}")
        a.e(f"v_add_u32 v{vX0[0]}, s36, v{vX0[0]}")
        if os.environ.get(f"PL{role}"):
            a.e(f"s_setprio {os.environ.get(f'PL{role}')}")
        period(state[0][1], 1, True)
        stamp(8, False)
        rstamp(13)
        a.e("s_setprio 0")
        a.vm, a.lg = [], []

    a.e(f"s_cmp_ge_u32 s{sWv}, 4")
    a.e(f"s_cbranch_scc1 L_{name}_m2")
    vm0 = list(a.vm)
    mwave(1)
    a.e(f"s_branch L_{name}_epi")
    a.label(f"L_{name}_m2")
    a.vm, a.lg = list(vm0), []
    a.e(f"s_mul_i32 s37, s38, {2*FB6}")
    a.e(f"s_add_u32 s37, s37, {6*SEQB}")
    a.e(f"v_add_u32 v{vP[0]}, s37, v{vU}")
    a.e(f"v_add_u32 v{vP[2]}, s37, v{vS_}")
    a.e(f"v_add_u32 v{vP[1]}, {6*SEQB + 6*FB6}, v{vU}")
    a.e("s_cmp_eq_u32 s38, 0")
    a.e(f"s_cbranch_scc1 L_{name}_hh0")
    a.e(f"v_add_u32 v{vP[1]}, {6*SEQB}, v{vS_}")
    a.label(f"L_{name}_hh0")
    a.e("s_lshl_b32 s37, s38, 12")
    a.e("s_add_u32 s37, s37, s43")
    a.e(f"s_add_u32 s37, s37, {6*8192}")
    a.e(f"v_lshl_add_u32 v{vBZ}, v{vL}, 4, s37")
    mwave(2)
    a.e(f"s_branch L_{name}_epi")

    a.label(f"L_{name}_helper")
    a.vm, a.lg = [], []
    a.e("s_setprio 3")
    PB = (0, 32)
    XO = 64
    TMP = 76
    vX = 92
    vW = (96, 97, 98)

    def praw(b, half, p):
        return PB[b] + half * 16 + p * 4

    sXo2 = 27

    def xload(pair, p):
        if KSPLIT:
            half, q = p >> 1, p & 1
            for r in (q, q + 2):
                a.vmem(f"buffer_load_dwordx4 {vr(praw(pair & 1, half, r))}, v{vX+r}, {sr(sX)}, "
                       f"s{sXo2 if half else sXo} offen", ("X", pair))
            return
        for half in range(2):
            a.vmem(f"buffer_load_dwordx4 {vr(praw(pair & 1, half, p))}, v{vX+p}, {sr(sX)}, "
                   f"s{sXo} offen offset:{half*64}", ("X", pair))
        a.e(f"v_add_u32 v{vX+p}, 128, v{vX+p}")

    def uregs(chunk):
        return [praw((chunk >> 1) & 1, chunk & 1, p) for p in range(4)]

    def wr(chunk, i):
        if "nowr" in EXP:
            return
        u = uregs(chunk)
        reg, seq = [(XO, 3), (XO + 4, 4), (XO + 8, 5), (u[0], 0), (u[1], 1), (u[2], 2), (u[3], 6)][i]
        lds_throttle()
        if seq == 6:
            a.lds(f"ds_write_b128 v{vW[2]}, {vr(reg)} offset:{(chunk & 1)*BB6}", "W")
        else:
            a.lds(f"ds_write_b128 v{vW[seq >> 2]}, {vr(reg)} offset:{(seq & 3)*SEQB + (chunk & 1)*BB}", "W")

    def tr_ops(chunk):
        u = uregs(chunk)
        o = [u[1], u[2], XO, XO + 4, XO + 8]
        ops = []
        for d in range(4):
            lo = [TMP + p for p in range(4)]
            hi = [TMP + 8 + p for p in range(4)]
            for p in range(4):
                ops.append(f"v_lshlrev_b32 v{lo[p]}, 16, v{u[p]+d}")
                ops.append(f"v_and_b32 v{hi[p]}, s{sMask}, v{u[p]+d}")
            o1, r1 = eval_ops(lo, [TMP + 4 + i for i in range(4)])
            o2, r2 = eval_ops(hi, [TMP + 12 + i for i in range(4)])
            for x, y in zip(o1, o2):
                ops += [x, y]
            for i in range(5):
                ops.append(f"v_cvt_pk_bf16_f32 v{o[i]+d}, v{r1[i]}, v{r2[i]}")
        if "notr" in EXP:
            ops = ["s_nop 0"] * 8
        return ops

    if KSPLIT:
        a.e("v_lshlrev_b32 v8, 4, v6")
    for p in range(4):
        if KSPLIT:
            haddr(vX + p, 7, 8, p, 9)
        else:
            a.e(f"v_add_u32 v{vX+p}, {p*1024}, v7")
    a.e(f"v_and_b32 v{TMP}, 4, v5")
    a.e(f"v_lshrrev_b32 v{TMP}, 1, v{TMP}")
    a.e(f"v_xor_b32 v{TMP}, v6, v{TMP}")
    a.e(f"v_lshlrev_b32 v{TMP}, 4, v{TMP}")
    a.e(f"v_lshl_add_u32 v{TMP}, v5, 6, v{TMP}")
    a.e(f"s_mov_b32 s{sXo}, 0")
    a.e(f"s_mov_b32 s{sXo2}, {4*PLH}")
    kwait()
    stamp(2)
    P0 = os.environ.get("P0", "0")
    if P0 == "0" or KSPLIT:
        for p in range(4):
            xload(0, p)
            if p == 1 and P0 == "2":
                a.e("s_barrier")
    else:
        for half in range(2):
            for p in range(4):
                a.vmem(f"buffer_load_dwordx4 {vr(praw(0, half, p))}, v{vX+p}, {sr(sX)}, s{sXo} offen offset:{half*64}", ("X", 0))
            if half == 0 and P0 == "2":
                a.e("s_barrier")
        for p in range(4):
            a.e(f"v_add_u32 v{vX+p}, 128, v{vX+p}")
    if P0 != "2" and "b0" in EXP:
        a.e("s_barrier")
    a.e(f"s_mul_i32 s36, s42, {FB}")
    a.e(f"v_add_u32 v{vW[0]}, s36, v{TMP}")
    a.e(f"v_add_u32 v{vW[1]}, {4*SEQB}, v{vW[0]}")
    a.e(f"s_mul_i32 s36, s42, {FB6}")
    a.e(f"s_add_u32 s36, s36, {6*SEQB}")
    a.e(f"v_add_u32 v{vW[2]}, s36, v{TMP}")
    def warm_tail():
        if KSPLIT and "notail" not in EXP:
            add64(a, sW, 30, WS_WF)
            a.e(f"s_mov_b32 s{sW+2}, {262144 + 32768}")
            a.e(f"s_mov_b32 s{sW+3}, 0x00020000")
            a.e("s_lshr_b32 s36, s2, 3")
            a.e("s_lshl_b32 s36, s36, 2")
            a.e(f"s_add_u32 s36, s36, s{sH}")
            a.e("s_mul_i32 s36, s36, 2304")
            a.e(f"v_lshlrev_b32 v1, 4, v{vL}")
            for i in range(3):
                a.e(f"buffer_load_dwordx4 v[4:7], v1, {sr(sW)}, s36 offen offset:{i*1024}")
        if "notw" not in EXP:
            a.e(f"s_cmp_ge_u32 s2, {os.environ.get('TWN', '32')}")
            a.e(f"s_cbranch_scc1 L_{name}_ntw")
            a.e("s_getpc_b64 s[36:37]")
            a.label(f"L_{name}_pc")
            a.e(f"s_lshl_b32 s38, s{sH}, 13")
            a.e(f"s_add_u32 s38, s38, L_{name}_epi-L_{name}_pc")
            a.e(f"v_lshl_add_u32 v2, v{vL}, 7, s38")
            a.e(f"v_min_u32 v2, {0x7fc0de01 + KSPLIT:#x}, v2")
            a.e("v_mov_b32 v3, s37")
            a.e("v_add_co_u32 v2, vcc, s36, v2")
            a.e("s_nop 1")
            a.e("v_addc_co_u32 v3, vcc, 0, v3, vcc")
            a.e("global_load_dword v4, v[2:3], off")
            a.label(f"L_{name}_ntw")
        if os.environ.get("HB2", "0") == "1":
            a.e("s_barrier")

    UNI = KSPLIT and os.environ.get("UNI", "1") == "1"
    if UNI:
        sMA, sMB = 44, 45
        a.e(f"s_mov_b32 s{sK}, 0")
        a.e(f"s_mov_b32 s{sXo}, {8*PLH}")
        a.e(f"s_cmp_ge_u32 s{sWv}, 12")
        a.e(f"s_cselect_b32 s{sMA}, {(1 << N) - 4}, 0")
        a.e(f"s_cselect_b32 s{sMB}, {1 | 1 << (N - 1)}, -1")
        a.e("s_setprio 0")
        a.e(f"s_cbranch_scc1 L_{name}_hloop")
        a.e("s_setprio 1")

        def sync(mask, lbl):
            a.e(f"s_bitcmp1_b32 s{mask}, s{sK}")
            a.e(f"s_cbranch_scc0 {lbl}")
            a.e("s_waitcnt lgkmcnt(0)")
            a.e("s_barrier")
            a.label(lbl)
        if "halign" in EXP:
            a.c("ALIGN ON")
        a.label(f"L_{name}_hloop")
        for c in range(2):
            a.e("s_waitcnt vmcnt(4)")
            for op in tr_ops(c):
                a.e(op)
            sync(sMA, f"L_{name}_sa{c}")
            a.lg = []
            for i in range(7):
                wr(c, i)
            for r in (0, 2, 1, 3):
                a.e(f"buffer_load_dwordx4 {vr(praw(0, c, r))}, v{vX+r}, {sr(sX)}, s{sXo} offen")
            a.e(f"s_add_u32 s{sXo}, s{sXo}, {4*PLH}")
            sync(sMB, f"L_{name}_sb{c}")
            a.e(f"s_add_u32 s{sK}, s{sK}, 1")
        a.c("ALIGN OFF")
        a.e(f"s_cmp_lt_u32 s{sK}, {N}")
        a.e(f"s_cbranch_scc1 L_{name}_hloop")
        a.e(f"s_cmp_ge_u32 s{sWv}, 12")
        a.e(f"s_cbranch_scc1 L_{name}_hend")
        warm_tail()
        a.label(f"L_{name}_hend")
        a.e(f"s_branch L_{name}_end")
    mark = len(a.L)
    stamp(3)
    a.e(f"s_waitcnt vmcnt({0 if P0 == '0' else 4})")
    stamp(4)
    a.e(f"s_mov_b32 s{sK}, 0")
    a.e(f"s_mov_b32 s{sCnt}, {N//4}")
    a.vm, a.lg = [], []
    if not KSPLIT and os.environ.get("W2", "1") == "3":
        a.e("s_load_dwordx2 s[48:49], s[0:1], 16")
    wr(0, 3)
    wr(0, 6)
    for op in tr_ops(0):
        a.e(op)
    for i in (0, 1, 2, 4, 5):
        wr(0, i)
    stamp(5)
    a.e(f"s_cmp_ge_u32 s{sWv}, 12")
    a.e(f"s_cbranch_scc1 L_{name}_h2")

    def hwave(role):
        SH = 33 * int(os.environ.get(f"SH{role}", "0" if role == 1 else "4"))
        ahead = 2 if SH else 1
        a.vm, a.lg = [], []
        W2E = role == 2 and not KSPLIT and os.environ.get("W2", "1") == "3"
        NF = int(os.environ.get("NF", "2"))
        if KSPLIT:
            a.e(f"s_mov_b32 s{sXo}, {8*PLH}")
            a.e(f"s_mov_b32 s{sXo2}, {12*PLH}")
        X1 = os.environ.get("X1", "1")
        if X1 == "0":
            for p in range(4 if SH else NF):
                xload(1, p)
        a.e("s_waitcnt lgkmcnt(0)")
        stamp(6)
        a.e("s_barrier")
        stamp(7)
        rstamp(12)
        if X1 == "1":
            for p in range(4 if SH else NF):
                xload(1, p)
        PA, PB_ = os.environ.get(f'PH{role}', '11' if role == 1 else '00')
        a.e(f"s_setprio {PA}")
        for op in tr_ops(1)[:SH]:
            a.e(op)
        if role == 1 and os.environ.get("MW", ""):
            a.e(f"s_cmp_lt_u32 s2, {os.environ.get('TWN', '32')}")
            a.e("s_cselect_b32 s55, 1, 99")
            a.e("s_getpc_b64 s[36:37]")
            a.label(f"L_{name}_pc3")
            a.e(f"s_sub_u32 s36, s36, L_{name}_pc3-{name}")
            a.e("s_subb_u32 s37, s37, 0")
            a.e(f"s_lshl_b32 s38, s{sH}, 13")
            a.e(f"v_lshl_add_u32 v102, v{vL}, 7, s38")
            a.e(f"v_min_u32 v102, L_{name}_done-{name}, v102")
            a.e("v_mov_b32 v103, s37")
            a.e("v_add_co_u32 v102, vcc, s36, v102")
            a.e("s_nop 1")
            a.e("v_addc_co_u32 v103, vcc, 0, v103, vcc")
        if W2E:
            a.e("s_lshr_b32 s52, s2, 6")
            a.e("s_lshl_b32 s52, s52, 3")
            a.e("s_bfe_u32 s36, s2, 0x10005")
            a.e("s_add_u32 s52, s52, s36")
            a.e("s_lshl_b32 s52, s52, 17")
            a.e("s_bfe_u32 s36, s2, 0x30002")
            a.e("s_lshl_b32 s36, s36, 1")
            a.e(f"s_and_b32 s37, s{sH}, 1")
            a.e("s_add_u32 s36, s36, s37")
            a.e("s_lshl_b32 s36, s36, 13")
            a.e("s_add_u32 s52, s52, s36")
            a.e("s_and_b32 s36, s2, 3")
            a.e("s_lshl_b32 s36, s36, 1")
            a.e(f"s_lshr_b32 s37, s{sH}, 1")
            a.e("s_add_u32 s36, s36, s37")
            a.e("s_lshl_b32 s36, s36, 6")
            a.e("s_add_u32 s52, s52, s36")
            a.e(f"s_mov_b32 s50, {31*131072}")
            a.e("s_mov_b32 s51, 0x00020000")
            a.e(f"v_lshrrev_b32 v99, 4, v{vL}")
            a.e("v_lshlrev_b32 v99, 11, v99")
            a.e(f"v_and_b32 v100, 15, v{vL}")
            a.e("v_lshl_add_u32 v99, v100, 2, v99")

        def w2load(pos):
            a.e(f"s_cmp_lg_u32 s{sCnt}, {os.environ.get('W2I', '3')}")
            a.e(f"s_cbranch_scc1 L_{name}_w2s{pos}")
            for e in range(4):
                a.e(f"buffer_load_dword v{100+pos*4+e}, v99, s[48:51], s52 offen offset:{e*512}")
            a.e(f"s_add_u32 s52, s52, {2*131072}")
            a.label(f"L_{name}_w2s{pos}")
        VPF = int(os.environ.get("VPF", "0")) if role == 1 and not KSPLIT and XL == 3 else 0
        if VPF:
            a.e(f"s_lshl_b32 s36, s{sCb}, 6")
            a.e(f"s_lshl_b32 s37, s{sH}, 3")
            a.e("s_add_u32 s36, s36, s37")
            a.e("s_lshl_b32 s36, s36, 10")
            a.e("s_add_u32 s36, s36, s41")
            a.e(f"s_add_u32 s36, s36, {VPF*128}")
            a.e(f"v_and_b32 v100, 7, v{vL}")
            a.e("v_lshl_add_u32 v100, v100, 10, s36")

        def vpf(k):
            a.e(f"s_cmp_lt_u32 s{sK}, {N - 2*VPF}")
            a.e(f"s_cselect_b32 s36, 0, {OOB}")
            a.vmem(f"buffer_load_dword v99, v100, {sr(sX)}, s36 offen", "PF")
            a.e(f"v_add_u32 v100, {(128 - 32768) & 0xffffffff if k & 1 else 32768}, v100")
        XD = {(0, 1): "0.2,0.4,0.2,0.4", (0, 2): "0.3,0.5,0.3,0.5", (1, 1): "1,1,1,1", (1, 2): "0,0,0,0"}
        XP = [float(x) for x in os.environ.get(f"XP{1 + int(KSPLIT)}{role}", XD[int(KSPLIT), role]).split(",")]

        def period(k, pos, last=False):
            pair = (k >> 1) + 2 if SH else (k + 3) >> 1
            first = not (k & 1) if SH else (k & 1)
            if pos == 4 - ahead and not last:
                a.e(f"s_cmp_eq_u32 s{sCnt}, 1")
                a.e(f"s_cbranch_scc1 L_{name}_hlast{role}")
            if "hst" in EXP and pos == 1:
                stamp(2)
            V1 = tr_ops(k + 1)[SH:]
            V2 = [] if last else tr_ops(k + 2)[:SH]
            V = V1 + V2
            n = len(V)
            ev = {}

            def at(i, f):
                ev.setdefault(max(0, min(int(i), n)), []).append(f)

            def stores():
                if "hst" in EXP and pos == 1:
                    stamp(3)
                for i in range(7):
                    wr(k + 1, i)
                if "hst" in EXP and pos == 1:
                    stamp(4)
                if PA != PB_:
                    a.e(f"s_setprio {PB_}")
            if PA != PB_:
                a.e(f"s_setprio {PA}")
            if VPF and not last:
                at(float(os.environ.get("VPP", "1.0")) * n, lambda: vpf(k))
            at(len(V1), stores)
            if W2E and not last:
                at(len(V1) + 1 + float(os.environ.get("W2X", "0")) * n, lambda: w2load(pos))
            if not last:
                if not KSPLIT:
                    a.e(f"s_cmp_lt_u32 s{sK}, {N - 2 - ahead}")
                    a.e(f"s_cselect_b32 s{sXo}, 0, {OOB}")
                elif first:
                    a.e(f"s_add_u32 s{sXo}, s{sXo}, {8*PLH}")
                    a.e(f"s_add_u32 s{sXo2}, s{sXo2}, {8*PLH}")
                at(len(V1) if SH else 0, lambda: a.wait(vm=(("X", (k + ahead) >> 1),)))
                if "nox" not in EXP:
                    for p in (range(NF) if first else range(NF, 4)):
                        w = len(V1) + XP[p] * SH if SH and first else XP[p] * n
                        at(w, lambda p=p: xload(pair, p))
            for i in range(n + 1):
                for f in ev.get(i, []):
                    f()
                if i < n:
                    a.e(V[i])
            MW = os.environ.get("MW", "")
            if role == 1 and MW and pos == int(MW) and not last:
                a.e(f"s_cmp_lg_u32 s{sCnt}, s55")
                a.e(f"s_cbranch_scc1 L_{name}_nmw")
                a.e("global_load_dword v101, v[102:103], off")
                a.label(f"L_{name}_nmw")
            if not last:
                a.e(f"s_add_u32 s{sK}, s{sK}, 1")
            if "hst" in EXP and pos == 1:
                stamp(5)
            a.e("s_waitcnt lgkmcnt(0)")
            a.lg = []
            a.e("s_barrier")
            if "hst" in EXP and pos == 1:
                stamp(6)

        body = steady(period, 4, "nox" not in EXP)
        if "halign" in EXP:
            a.c("ALIGN ON")
        a.label(f"L_{name}_hloop{role}")
        a.L.extend(body)
        a.c("ALIGN OFF")
        a.e(f"s_sub_u32 s{sCnt}, s{sCnt}, 1")
        a.e(f"s_branch L_{name}_hloop{role}")
        a.label(f"L_{name}_hlast{role}")
        a.vm, a.lg = [], []

        def last_period():
            vm = a.vm
            a.vm, a.lg = [], []
            if SH:
                a.e(f"s_mov_b32 s{sMask}, 0xffff0000")
                period(2, 2, True)
            a.vm = vm
        if role == 1 or KSPLIT or W2P:
            last_period()
        else:
            assert SH
            W2L = os.environ.get("W2L", "0") == "1"
            if W2L:
                last_period()
            a.e("s_waitcnt vmcnt(0)")
            a.e(f"s_mov_b32 s58, s{sWv}")
            a.e(f"s_lshl_b32 s20, s2, 2")
            a.e(f"s_add_u32 s20, s20, s{sH}")
            a.e(f"v_mov_b32 v1, v{vL}")
            if W2E:
                W2R = int(os.environ.get("W2R", "0"))

                def only_stores():
                    a.lg = []
                    for i in range(7):
                        wr(3, i)
                wprep2(a, 16, WS_W2P, only_stores if W2R else last_period, pre=100, late=W2R)
            elif os.environ.get("W2", "1") == "2":
                wprep2(a, 16, WS_W2P, last_period, LB=False)
            else:
                wprep(a, 16, WS_W2P, True, barrier=None if W2L else last_period)
            a.e(f"s_mov_b32 s{sWv}, s58")
            for _ in range(int(os.environ.get("HB1", "1"))):
                a.e("s_barrier")
        if role == 1:
            warm_tail()
        stamp(8)
        rstamp(13)
        a.e(f"s_branch L_{name}_end")

    hwave(1)
    a.label(f"L_{name}_h2")
    hwave(2)
    if UNI:
        del a.L[mark:]

    a.label(f"L_{name}_epi")
    K = [sr(x, 2) for x in KS]
    a.e("s_waitcnt lgkmcnt(0)")
    a.e("s_barrier")
    if "est" in EXP:
        stamp(2)
    a.e(f"v_cndmask_b32 v{vO}, v{t3}, v{t2}, vcc")

    def P(c, s, r=0):
        return c * 32 + s * 4 + r
    Y = 64
    TB = 96
    ELS = (0, 1, 2)
    for c in range(2):
        for s_ in range(8):
            if c == 1 and s_ == 7:
                a.e("s_waitcnt lgkmcnt(7)")
            u = UNIT[s_][c]
            a.e(f"ds_read_b128 {vr(P(c, s_))}, v{R0[u >> 16]} offset:{u & 0xffff}")

    def p2(x):
        return vr(x, 2)

    def padd(d, x, y):
        return f"v_pk_add_f32 {p2(d)}, {p2(x)}, {p2(y)}"

    def psub(d, x, y):
        return f"v_pk_add_f32 {p2(d)}, {p2(x)}, {p2(y)} neg_lo:[0,1] neg_hi:[0,1]"

    def pfma(d, x, k, y, neg=False):
        return f"v_pk_fma_f32 {p2(d)}, {p2(x)}, {k}, {p2(y)}" + (" neg_lo:[0,0,1] neg_hi:[0,0,1]" if neg else "")

    def interp(c):
        seq = []
        for r in (0, 2):
            E0, A, B, C, D, Q, E6, E6b = (P(c, x, r) for x in range(8))
            y = [Y + ph * 8 + c * 4 + r for ph in range(4)]
            S1, G = E6, C
            seq.append([
                padd(y[3], E6, E6b),
                padd(S1, A, B),
                psub(A, A, B),
                padd(y[1], C, D),
                psub(G, C, D),
                pfma(y[1], S1, K[0], y[1]),
                pfma(Q, E0, K[3], Q),
                pfma(y[1], E0, K[1], y[1]),
                psub(S1, S1, E0),
                pfma(y[1], y[3], K[2], y[1]),
                psub(S1, S1, y[3]),
                pfma(Q, y[3], K[6], Q),
                psub(B, S1, y[1]),
                pfma(Q, y[1], K[5], Q),
                f"v_pk_mul_f32 {p2(y[2])}, {p2(G)}, {K[9]}",
                pfma(Q, B, K[4], Q),
                pfma(y[2], A, K[10], y[2]),
                pfma(y[0], A, K[7], Q, True),
                pfma(y[0], G, K[8], y[0]),
                pfma(y[2], y[0], K[11], y[2]),
                psub(A, A, y[0]),
                psub(A, A, y[2]),
            ])
        for ops in zip(*seq):
            for op in ops:
                a.e(op)

    a.e("s_waitcnt lgkmcnt(8)")
    interp(0)
    a.e("s_waitcnt lgkmcnt(0)")
    interp(1)
    if "est" in EXP:
        stamp(3)
    a.e("s_mov_b32 s36, 0x00010001")
    a.e("s_mov_b32 s37, 0x00010001")
    a.e("s_mov_b64 exec, s[36:37]")
    for k in range(3):
        for c in range(2):
            a.e(f"ds_write_b128 v{vBW}, {vr(P(c, ELS[k]))} offset:{(k*2+c)*16}")
    a.e("s_mov_b64 exec, -1")

    def finish(ph):
        ys = [Y + ph * 8 + i for i in range(8)]
        if not KSPLIT:
            ts = [16 + (ph & 1) * 8 + i for i in range(8)]
            ev = list(zip(ys[::2], ts[::2]))
            for y, t in ev:
                a.e(f"v_pk_mul_f32 {p2(t)}, {p2(y)}, {p2(y)}")
            for y, t in ev:
                a.e(pfma(t, t, K[12], 44))
            for y, t in ev:
                a.e(f"v_pk_mul_f32 {p2(t)}, {p2(t)}, {p2(y)}")
            for t in ts:
                a.e(f"v_exp_f32 v{t}, v{t}")
            for y, t in ev:
                a.e(f"v_pk_add_f32 {p2(t)}, {p2(t)}, {K[13]}")
            for t in ts:
                a.e(f"v_rcp_f32 v{t}, v{t}")
            for y, t in ev:
                a.e(f"v_pk_mul_f32 {p2(y)}, {p2(y)}, {p2(t)}")
        o = 48 + ph * 4
        for r in range(4):
            a.e(f"v_cvt_pk_bf16_f32 v{o+r}, v{ys[r]}, v{ys[4+r]}")
        so = ph * PLF if KSPLIT else ((ph + 3) & 3) * PLH + ((ph + 7) >> 2) * 64
        a.e(f"s_mov_b32 s44, {so}")
        a.e(f"buffer_store_dwordx4 {vr(o)}, v{vO}, {sr(sO)}, s44 offen{NTF if KSPLIT else NTH}")

    a.e(f"v_mov_b32 v44, {f32hex(k0)}")
    a.e("v_mov_b32 v45, v44")
    finish(0)
    a.e("s_waitcnt lgkmcnt(0)")
    a.e("s_barrier")
    if "est" in EXP:
        stamp(4)
    for i in range(6):
        a.e(f"ds_read_b128 {vr(TB+4*i)}, v{vBW} offset:{512 + i*16}")
    for ph in range(1, 4):
        a.e(f"s_waitcnt lgkmcnt({6 - 2*ph})")
        for c in range(2):
            for r in range(4):
                i = (ph - 1) * 8 + c * 4 + r
                a.e(f"v_mov_b32_dpp v{TB+i}, v{P(c, ELS[ph-1], r)} row_shl:1 row_mask:0xf bank_mask:0xf")
        for i in range(0, 8, 2):
            a.e(padd(Y + ph * 8 + i, Y + ph * 8 + i, TB + (ph - 1) * 8 + i))
        finish(ph)
    if "est" in EXP:
        stamp(5)
    RB = os.environ.get("RB", "00")[int(KSPLIT)]
    if RB != "0":
        if not KSPLIT:
            a.e(f"s_cmp_ge_u32 s{sCb}, {RB}")
            a.e(f"s_cbranch_scc1 L_{name}_end")
        a.e("s_waitcnt vmcnt(0)")
        for ph in range(4):
            so = ph * PLF if KSPLIT else ((ph + 3) & 3) * PLH + ((ph + 7) >> 2) * 64
            a.e(f"s_mov_b32 s44, {so}")
            a.e(f"buffer_load_dword v0, v{vO}, {sr(sO)}, s44 offen")
    a.label(f"L_{name}_end")
    if STAMP:
        a.e("s_waitcnt vmcnt(0)")
        stamp(9, False)
        a.e(f"s_memrealtime s[{sSt+22}:{sSt+23}]")
        a.e(f"s_cmp_lg_u32 s{sWv}, {os.environ.get('SW', '0')}")
        a.e(f"s_cbranch_scc1 L_{name}_done")
        a.e("s_lshl_b32 s36, s2, 7")
        a.e(f"s_add_u32 s36, s36, {WS_STAMP + cfg['stamp']*0x10000}")
        add64(a, 40, 30, "s36")
        a.e("s_mov_b32 s42, 128")
        a.e("s_mov_b32 s43, 0x00020000")
        a.e("s_waitcnt lgkmcnt(0)")
        a.e("v_mov_b32 v8, 0")
        for i in range(28):
            a.e(f"v_mov_b32 v0, s{sSt+i}")
            a.e(f"buffer_store_dword v0, v8, s[40:43], 0 offen offset:{4*i}")
    a.label(f"L_{name}_done")
    a.e("s_endpgm")
    if not STAMP:
        a.L = ["    s_endpgm" if l == f"    s_branch L_{name}_end" else l for l in a.L]
    if "nohf" not in EXP:
        L = a.L
        b = L.index(f"    s_cbranch_scc1 L_{name}_helper")
        h0, h1 = L.index(f"L_{name}_helper:"), L.index(f"L_{name}_epi:")
        a.L = L[:b] + [f"    s_cbranch_scc0 L_{name}_mw"] + L[h0:h1] + [f"L_{name}_mw:"] + L[b + 1:h0] + L[h1:]
    return a.L, TOPB + 40960, 128


CONV1 = dict(tin=16000, tout=8000, nchunk=16, ksplit=False, in_arg=0, in_off=0, w_off=WS_W1P, out_off=WS_H, stamp=0)
CONV2 = dict(tin=8000, tout=4000, nchunk=8, ksplit=True, in_arg=72, in_off=WS_H, w_off=WS_W2P, out_off=WS_FP, stamp=1)

HEADER = f"""; Kernarg layout for this problem (80 bytes, ptrs only, base s[0:1]):
"""


def main():
    ks = [("prep_kernel", 256, 640 if W2P else 384) + prep_kernel("prep_kernel"),
          ("conv1_kernel", 256, 1024) + conv_kernel("conv1_kernel", CONV1),
          ("conv2_kernel", 256, 1024) + conv_kernel("conv2_kernel", CONV2)]
    ks = joint_kernels(ks)
    out = HEADER
    for nm, grid, block, code, lds, vg in ks:
        out += f"; @launch kernel={nm} grid=({grid},1,1) block=({block},1,1) lds={lds}\n"
    out += '.amdgcn_target "amdgcn-amd-amdhsa--gfx950"\n.text\n'
    for nm, grid, block, code, lds, vg in ks:
        if "allalign" in EXP or f"al_{nm}" in EXP:
            code = [code[0], "    ; ALIGN ON"] + [l for l in code[1:] if "ALIGN O" not in l]
        if "noalign" not in EXP:
            code = align8(code)
        out += f".globl {nm}\n.p2align 8\n.type {nm},@function\n" + "\n".join(code) + "\n"
    out += '.section .rodata,"a"\n'
    for nm, grid, block, code, lds, vg in ks:
        out += ".p2align 6\n" + kd(nm, vg)
    out = out.replace("0x7fc0de00", "L_joint_kernel_done-L_prep_kernel_pc")
    out = out.replace("0x7fc0de01", "L_conv2_kernel_done-L_conv1_kernel_pc")
    out = out.replace("0x7fc0de02", "L_joint_kernel_done-L_conv2_kernel_pc")
    path = sys.argv[1] if len(sys.argv) > 1 else "standalone__seq2seq_rnn_t_joint__speech.s"
    open(path, "w").write(out)


if __name__ == "__main__":
    main()
```

```python
import os
import sys

from asmlib import Asm, vr, sr, kd, f32hex, align8
from gen13_joint import small_head, small_tail, joint_kernels

EXP = os.environ.get("EXP", "").split(",")

WS_W1P = 0x0000000
WS_W2P = 0x0900000
WS_H = 0x1200000
WS_FP = 0x1A00000
WS_FPS = 0x800000
WS_WF = 0x2A00000
WS_STAMP = 0x3000000

CHUNKB = 7 * 8192
FB = 1024
BB = 8 * FB
SEQB = 2 * BB
FB6 = 1088
BB6 = 8 * FB6
SPB = 6 * SEQB + 2 * BB6
TOPB = SPB + 6144
OOB = 0x7f000000
W2P = os.environ.get('W2', '1') == '0'
LOCAL = 'local' in EXP
PLH, PLF = int(os.environ.get('PLH', 131072)), int(os.environ.get('PLF', 65536))
NTW, NTH, NTF = ({"0": "", "1": " nt", "2": " sc1", "3": " sc0 sc1"}[c] for c in os.environ.get("NT", "222"))


def add64(a, d, lo, off):
    a.e(f"s_add_u32 s{d}, s{lo}, {off}")
    a.e(f"s_addc_u32 s{d+1}, s{lo+1}, 0")


def eval_ops(c, t):
    e1, o1, e2, o2 = t
    ops = [f"v_add_f32 v{e1}, v{c[0]}, v{c[2]}",
           f"v_add_f32 v{o1}, v{c[1]}, v{c[3]}",
           f"v_fma_f32 v{e2}, v{c[2]}, 4.0, v{c[0]}",
           f"v_fma_f32 v{o2}, v{c[3]}, 4.0, v{c[1]}",
           f"v_add_f32 v{c[1]}, v{e1}, v{o1}",
           f"v_sub_f32 v{c[2]}, v{e1}, v{o1}",
           f"v_fma_f32 v{c[3]}, v{o2}, 2.0, v{e2}",
           f"v_fma_f32 v{e2}, v{o2}, -2.0, v{e2}",
           f"v_fmamk_f32 v{e1}, v{c[0]}, {f32hex(15.0)}, v{e2}",
           f"v_fmamk_f32 v{e1}, v{o1}, {f32hex(10.0)}, v{e1}"]
    return ops, [c[1], c[2], c[3], e2, e1]


def wprep(a, karg, wsoff, ws_loaded, barrier=False, extra=None, small=None, mid=None):
    a.vm, a.lg = [], []
    a.e(f"s_load_dwordx2 s[8:9], s[0:1], {karg}")
    if not ws_loaded:
        a.e("s_load_dwordx2 s[30:31], s[0:1], 72")
    a.e("s_lshr_b32 s22, s20, 8")
    a.e("s_bfe_u32 s23, s20, 0x40004")
    a.e("s_bfe_u32 s24, s20, 0x30001")
    a.e("s_and_b32 s21, s20, 1")
    a.e("v_lshrrev_b32 v2, 4, v1")
    a.e("v_lshlrev_b32 v2, 12, v2")
    a.e("v_and_b32 v3, 15, v1")
    a.e("v_lshl_add_u32 v2, v3, 2, v2")
    a.e("s_lshl_b32 s26, s22, 3")
    a.e("s_lshr_b32 s27, s23, 3")
    a.e("s_add_u32 s26, s26, s27")
    a.e("s_lshl_b32 s26, s26, 17")
    a.e("s_and_b32 s27, s23, 7")
    a.e("s_lshl_b32 s27, s27, 14")
    a.e("s_add_u32 s26, s26, s27")
    a.e("s_lshl_b32 s27, s24, 6")
    a.e("s_add_u32 s26, s26, s27")
    a.e(f"s_mov_b32 s10, {31*131072}")
    a.e("s_mov_b32 s11, 0x00020000")
    if small:
        small_select(a)
        a.e("s_add_u32 s37, s26, s5")
        a.e("s_add_u32 s38, s37, s5")
        a.e("s_add_u32 s39, s38, s5")
    else:
        for p in range(1, 4):
            a.e(f"s_add_u32 s{36+p}, s26, {2*131072*p}")
    a.e("s_waitcnt lgkmcnt(0)")
    if small:
        small_ptr(a)
        small_g(a, "prep_kernel")
    R = 16
    for e2 in range(4):
        for p in range(4):
            for e in (2 * e2, 2 * e2 + 1):
                a.vmem(f"buffer_load_dword v{R+p*8+e}, v2, s[8:11], s{36+p if p else 26} offen offset:{e*512}", ("L", e2))
    if small:
        a.e("s_cmp_lt_u32 s3, 12")
        a.e(f"s_cbranch_scc1 {small}")
    if mid:
        mid()
    add64(a, 12, 30, wsoff)
    a.e(f"s_mov_b32 s14, {8*16*CHUNKB}")
    a.e("s_mov_b32 s15, 0x00020000")
    a.e("v_lshlrev_b32 v4, 4, v1")
    a.e("s_lshl_b32 s27, s24, 4")
    a.e("s_add_u32 s27, s27, s23")
    a.e(f"s_mul_i32 s27, s27, {CHUNKB}")
    a.e("s_lshl_b32 s28, s22, 11")
    a.e("s_add_u32 s27, s27, s28")
    a.e("s_lshl_b32 s28, s21, 10")
    a.e("s_add_u32 s27, s27, s28")
    a.e("s_cmp_eq_u32 s21, 0")
    a.e("s_mov_b32 s32, 0x07060302")
    a.e("s_cselect_b32 s32, 0x05040100, s32")
    a.e("s_mov_b32 s33, 0x03020c0c")
    a.e("s_cselect_b32 s33, 0x01000c0c, s33")
    a.e(f"s_mov_b32 s35, {f32hex(1.0/24)}")
    a.e(f"s_mov_b32 s36, {f32hex(1.0/72)}")
    if barrier:
        barrier()
    OUT = 48
    T = 76
    scale = ("0.5", "0.5", "s35", "s35", "s36")
    for e2 in range(4):
        a.wait(vm=(("L", e2),))
        if extra and e2 == int(os.environ.get("XT", "3")):
            extra()
        for p, seq in ((0, 6), (3, 0)):
            a.e(f"v_perm_b32 v{OUT+seq*4+e2}, v{R+p*8+2*e2+1}, v{R+p*8+2*e2}, s32")
        res, lists = [], []
        for e in range(2):
            cf = [T + e * 8 + i for i in range(4)]
            ops = [f"v_perm_b32 v{cf[i]}, v{cf[i]}, v{R + (3 - i) * 8 + 2 * e2 + e}, s33" for i in range(4)]
            o, rr = eval_ops(cf, [T + e * 8 + 4 + i for i in range(4)])
            ops += o + [f"v_mul_f32 v{r}, {sc}, v{r}" for r, sc in zip(rr, scale)]
            res.append(rr)
            lists.append(ops)
        for x, y in zip(*lists):
            a.e(x)
            a.e(y)
        for i in range(5):
            a.e(f"v_cvt_pk_bf16_f32 v{OUT+(1+i)*4+e2}, v{res[0][i]}, v{res[1][i]}")
    for seq in (6, 0, 1, 2, 3, 4, 5):
        a.e(f"s_add_u32 s28, s27, {seq*8192}")
        a.e(f"buffer_store_dwordx4 {vr(OUT+seq*4)}, v4, s[12:15], s28 offen{NTW}")


def wprep2(a, karg, wsoff, barrier, LB=True, extra=None, pre=None, mid=None, late=None):
    a.vm, a.lg = [], []
    if not pre:
        a.e(f"s_load_dwordx2 s[8:9], s[0:1], {karg}")
    a.e("s_lshr_b32 s22, s20, 8")
    a.e("s_bfe_u32 s23, s20, 0x40004")
    a.e("s_bfe_u32 s24, s20, 0x30001")
    a.e("s_and_b32 s21, s20, 1")
    a.e("v_lshrrev_b32 v5, 4, v1")
    a.e("v_lshlrev_b32 v2, 11, v5")
    a.e("v_and_b32 v3, 15, v1")
    a.e("v_lshl_add_u32 v2, v3, 2, v2")
    a.e("s_lshl_b32 s26, s22, 3")
    a.e("s_lshr_b32 s27, s23, 3")
    a.e("s_add_u32 s26, s26, s27")
    a.e("s_lshl_b32 s26, s26, 17")
    a.e("s_and_b32 s27, s23, 7")
    a.e("s_lshl_b32 s27, s27, 1")
    a.e("s_add_u32 s27, s27, s21")
    a.e("s_lshl_b32 s27, s27, 13")
    a.e("s_add_u32 s26, s26, s27")
    a.e("s_lshl_b32 s27, s24, 6")
    a.e("s_add_u32 s26, s26, s27")
    a.e(f"s_mov_b32 s10, {31*131072}")
    a.e("s_mov_b32 s11, 0x00020000")
    for p in range(1, 4):
        a.e(f"s_add_u32 s{36+p}, s26, {2*131072*p}")
    a.e(f"s_mov_b32 s14, {8*16*CHUNKB}")
    a.e("s_mov_b32 s15, 0x00020000")
    a.e("v_lshrrev_b32 v4, 1, v5")
    a.e("v_lshlrev_b32 v4, 8, v4")
    a.e("v_lshl_add_u32 v4, v3, 4, v4")
    a.e("v_and_b32 v5, 1, v5")
    a.e("v_lshl_add_u32 v4, v5, 10, v4")
    a.e("s_lshl_b32 s27, s24, 4")
    a.e("s_add_u32 s27, s27, s23")
    a.e(f"s_mul_i32 s27, s27, {CHUNKB}")
    a.e("s_lshl_b32 s28, s22, 11")
    a.e("s_add_u32 s27, s27, s28")
    a.e("s_lshl_b32 s28, s21, 9")
    a.e("s_add_u32 s27, s27, s28")
    a.e("s_mov_b32 s32, 0x05040100")
    a.e("s_mov_b32 s33, 0x07060302")
    a.e("s_mov_b32 s34, 0xffff0000")
    a.e(f"s_mov_b32 s35, {f32hex(1.0/24)}")
    a.e(f"s_mov_b32 s40, {f32hex(1.0/72)}")
    a.e("s_waitcnt lgkmcnt(0)")
    if W2P and karg == 8:
        a.e("s_cmp_eq_u32 s29, 1")
        a.e("s_cselect_b32 s8, s48, s8")
        a.e("s_cselect_b32 s9, s49, s9")
        a.e(f"s_mul_i32 s29, s29, {WS_W2P - WS_W1P}")
        wsoff = "s29"
    if LB:
        barrier()
    R, OUT, T = (pre, 16, 76) if pre else (16, 76, 104)
    for e2 in range(0 if pre else 2):
        for p in range(4):
            for e in (2 * e2, 2 * e2 + 1):
                a.vmem(f"buffer_load_dword v{R+p*4+e}, v2, s[8:11], s{36+p if p else 26} offen offset:{e*512}", ("L", e2))
    if mid:
        mid()
    if not LB:
        barrier()
    add64(a, 12, 30, wsoff)
    scale = ("0.5", "0.5", "s35", "s35", "s40")

    def out(seq, c):
        return OUT + (seq * 2 + c) * 2
    for e2 in range(2):
        a.wait(vm=(("L", e2),))
        if extra and e2 == 1:
            extra()
        for c in range(2):
            for p, seq in ((0, 6), (3, 0)):
                a.e(f"v_perm_b32 v{out(seq, c)+e2}, v{R+p*4+2*e2+1}, v{R+p*4+2*e2}, s{32+c}")
            res, lists = [], []
            for e in range(2):
                cf = [T + e * 8 + i for i in range(4)]
                src = [R + (3 - i) * 4 + 2 * e2 + e for i in range(4)]
                ops = [f"v_and_b32 v{d}, s34, v{x}" if c else f"v_lshlrev_b32 v{d}, 16, v{x}" for d, x in zip(cf, src)]
                o, rr = eval_ops(cf, [T + e * 8 + 4 + i for i in range(4)])
                ops += o + [f"v_mul_f32 v{r}, {sc}, v{r}" for r, sc in zip(rr, scale)]
                res.append(rr)
                lists.append(ops)
            for x, y in zip(*lists):
                a.e(x)
                a.e(y)
            for i in range(5):
                a.e(f"v_cvt_pk_bf16_f32 v{out(1+i, c)+e2}, v{res[0][i]}, v{res[1][i]}")
            if late == e2 * 2 + c + 1:
                a.e("s_waitcnt lgkmcnt(0)")
                a.e("s_barrier")
    for seq in (6, 0, 1, 2, 3, 4, 5):
        for d in range(2):
            a.e(f"v_permlane16_swap_b32 v{out(seq, 0)+d}, v{out(seq, 1)+d}")
        a.e(f"s_add_u32 s28, s27, {seq*8192}")
        a.e(f"buffer_store_dwordx4 {vr(out(seq, 0))}, v4, s[12:15], s28 offen{NTW}")
    if late == 5:
        a.e("s_waitcnt lgkmcnt(0)")
        a.e("s_barrier")


def prep_kernel(name):
    a = Asm()
    NWG = 256
    a.label(name)
    a.e(f"s_cmp_ge_u32 s2, {NWG}")
    a.e(f"s_cbranch_scc1 L_{name}_done")
    CW = os.environ.get("CW", "late")
    CWN = int(os.environ.get("CWN", "32"))

    def code_warm():
        a.e(f"s_cmp_lt_u32 s3, {256 - CWN}")
        a.e(f"s_cbranch_scc1 L_{name}_ncw")
        a.e("s_getpc_b64 s[62:63]")
        a.label(f"L_{name}_pc")
        a.e("s_and_b32 s64, s3, 8")
        a.e("s_lshl_b32 s64, s64, 12")
        a.e("v_lshlrev_b32 v120, 7, v0")
        a.e("v_add_u32 v120, s64, v120")
        a.e(f"v_min_u32 v120, 0x7fc0de00, v120")
        a.e("v_mov_b32 v121, s63")
        a.e("v_add_co_u32 v120, vcc, s62, v120")
        a.e("s_nop 1")
        a.e("v_addc_co_u32 v121, vcc, 0, v121, vcc")
        a.e("global_load_dword v122, v[120:121], off")
        a.label(f"L_{name}_ncw")
        return 0

    def x_warm():
        XW = int(os.environ.get("XW", "0"))
        if XW:
            a.e("s_and_b32 s64, s3, 7")
            a.e("s_lshr_b32 s65, s2, 3")
            a.e("s_lshr_b32 s66, s65, 3")
            a.e("s_lshl_b32 s64, s64, 2")
            a.e("s_add_u32 s64, s64, s66")
            a.e("s_mul_i32 s64, s64, 512000")
            a.e("s_and_b32 s65, s65, 7")
            a.e("s_lshl_b32 s65, s65, 2")
            a.e("s_and_b32 s66, s20, 3")
            a.e("s_add_u32 s65, s65, s66")
            a.e("s_lshl_b32 s65, s65, 14")
            a.e("s_add_u32 s64, s64, s65")
            a.e("s_sub_u32 s64, s64, 7680")
            a.e("v_lshrrev_b32 v120, 2, v1")
            a.e("v_lshlrev_b32 v120, 10, v120")
            a.e(f"v_and_b32 v121, {XW - 1}, v1")
            a.e("v_lshl_add_u32 v120, v121, 7, v120")
            a.e("v_add_u32 v120, s64, v120")
            a.e("s_mov_b32 s68, s44")
            a.e("s_mov_b32 s69, s45")
            a.e(f"s_mov_b32 s70, {2*16000*512}")
            a.e("s_mov_b32 s71, 0x00020000")
            a.vmem("buffer_load_dword v123, v120, s[68:71], 0 offen", "XW")
    a.e("s_mov_b32 s3, s2")
    if CW == "early":
        code_warm()
    a.e("s_load_dwordx16 s[44:59], s[0:1], 0")
    a.e("s_load_dwordx2 s[30:31], s[0:1], 72")
    if "stamp" in EXP:
        a.e("s_memrealtime s[60:61]")
    a.e("v_readfirstlane_b32 s40, v0")
    a.e("s_lshr_b32 s40, s40, 6")
    a.e("v_and_b32 v1, 63, v0")
    if W2P:
        a.e("s_sub_u32 s40, s40, 2")
        a.e("s_lshr_b32 s29, s40, 2")
        a.e(f"s_cbranch_scc0 L_{name}_w")
        a.e("s_cmp_lt_u32 s40, 8")
        a.e(f"s_cbranch_scc1 L_{name}_w")
        a.e("s_add_u32 s40, s40, 6")
    else:
        a.e("s_cmp_lt_u32 s40, 4")
        a.e(f"s_cbranch_scc1 L_{name}_w")
    small_head(a, name)
    a.label(f"L_{name}_w")
    if W2P:
        a.e("s_and_b32 s40, s40, 3")
    a.e("s_lshl_b32 s21, s2, 2")
    a.e("s_add_u32 s20, s40, s21")

    def first_barrier():
        a.e("s_cmp_ge_u32 s2, 24")
        a.e(f"s_cbranch_scc1 L_{name}_nb")
        a.e("s_barrier")
        a.label(f"L_{name}_nb")
    wprep2(a, 8, WS_W1P, first_barrier, False, code_warm if CW == "late" else None, mid=x_warm)
    if "stamp" in EXP:
        a.e("s_waitcnt vmcnt(0)")
        a.e("s_memrealtime s[62:63]")
        a.e("s_lshl_b32 s36, s2, 7")
        a.e(f"s_add_u32 s36, s36, {WS_STAMP + 3*0x10000}")
        add64(a, 40, 30, "s36")
        a.e("s_mov_b32 s42, 128")
        a.e("s_mov_b32 s43, 0x00020000")
        a.e("s_waitcnt lgkmcnt(0)")
        a.e("v_mov_b32 v8, 0")
        a.e("v_mov_b32 v0, 1")
        a.e("buffer_store_dword v0, v8, s[40:43], 0 offen")
        for i in range(4):
            a.e(f"v_mov_b32 v0, s{60+i}")
            a.e(f"buffer_store_dword v0, v8, s[40:43], 0 offen offset:{80+4*i}")
    a.label(f"L_{name}_done")
    a.e("s_endpgm")
    small_tail(a, name)
    a.L.insert(len(a.L) - 1, f"L_{name}_last:")
    return a.L, 4096, 128


def conv_kernel(name, cfg):
    TIN, TOUT = cfg["tin"], cfg["tout"]
    N = cfg["nchunk"]
    KSPLIT = cfg["ksplit"]
    NWG = 256
    STAMP = "stamp" in EXP
    sX, sW, sO = 8, 12, 16
    sWv, sT0, sCnt, sBo, sXo, sMask = 20, 21, 22, 23, 24, 25
    sBo2 = 26
    sK, sCb, sH = 28, 29, 32
    sSt = 60
    vL = 127
    vU, vS_, vI, vKG = 8, 9, 10, 11

    a = Asm()
    a.label(name)
    a.e(f"s_cmp_ge_u32 s2, {NWG}")
    a.e(f"s_cbranch_scc1 L_{name}_done")

    def stamp(i, fence=True):
        if STAMP:
            a.e(f"s_memtime s[{sSt+2*i}:{sSt+2*i+1}]")
            if fence:
                a.e("s_waitcnt lgkmcnt(0)")
                a.lg = []

    def rstamp(i):
        if STAMP:
            a.e(f"s_memrealtime s[{sSt+2*i}:{sSt+2*i+1}]")
            a.e("s_waitcnt lgkmcnt(0)")
            a.lg = []
    if STAMP:
        for i in range(28):
            a.e(f"s_mov_b32 s{sSt+i}, 0")
        a.e(f"s_memrealtime s[{sSt+20}:{sSt+21}]")
    stamp(0, False)
    a.e(f"s_load_dwordx2 s[4:5], s[0:1], {cfg['in_arg']}")
    a.e("s_load_dwordx2 s[30:31], s[0:1], 72")
    a.e(f"v_readfirstlane_b32 s{sWv}, v0")
    a.e(f"s_lshr_b32 s{sWv}, s{sWv}, 6")
    if os.environ.get("WX", "8") != "0":
        a.e(f"s_xor_b32 s{sWv}, s{sWv}, {os.environ.get('WX', '8')}")
    XL = int((os.environ.get("XL", "33") * 2)[int(KSPLIT)])
    a.e(f"s_and_b32 s36, s2, {(8 >> XL) - 1}")
    a.e(f"s_lshl_b32 s36, s36, {XL}")
    a.e(f"s_bfe_u32 s37, s2, {(XL << 16) | 3}")
    a.e(f"s_or_b32 s{sCb}, s36, s37")
    a.e(f"s_bfe_u32 s36, s2, {(XL << 16) | (3 - XL)}")
    a.e(f"s_lshl_b32 s36, s36, {5 - XL}")
    a.e(f"s_lshr_b32 s37, s2, {3 + XL}")
    a.e("s_or_b32 s36, s36, s37")
    if KSPLIT:
        if LOCAL:
            a.e("s_and_b32 s33, s36, 1")
            a.e("s_bfe_u32 s34, s36, 0x30001")
            a.e("s_lshr_b32 s35, s36, 4")
        else:
            a.e("s_lshr_b32 s33, s36, 4")
            a.e("s_and_b32 s34, s36, 7")
            a.e("s_bfe_u32 s35, s36, 0x10003")
    else:
        a.e("s_mov_b32 s33, 0")
        a.e("s_and_b32 s34, s36, 15")
        a.e("s_lshr_b32 s35, s36, 4")
    a.e(f"s_mul_i32 s{sT0}, s34, 500")
    a.e(f"s_and_b32 s{sH}, s{sWv}, 3")
    a.e(f"v_and_b32 v{vL}, 63, v0")
    a.e(f"v_lshrrev_b32 v5, 2, v{vL}")
    a.e(f"v_and_b32 v6, 3, v{vL}")
    a.e(f"s_and_b32 s42, s{sWv}, 7")
    if not KSPLIT:
        a.e("v_lshlrev_b32 v7, 15, v5")
        a.e("v_lshl_add_u32 v7, v6, 4, v7")
        a.e(f"s_lshl_b32 s41, s{sT0}, 10")
        a.e("s_sub_u32 s41, s41, 7680")
        a.e("s_lshl_b32 s37, s42, 12")
        a.e("s_add_u32 s37, s37, s41")
        a.e("v_add_u32 v7, s37, v7")
        a.e(f"s_mul_i32 s36, s35, {TIN*512}")
        a.e(f"s_mov_b32 s{sX+2}, {TIN*512}")
    else:
        a.e(f"s_lshr_b32 s41, s{sT0}, 2")
        a.e("s_sub_u32 s41, s41, 1")
        a.e("s_add_u32 s37, s41, s42")
        a.e("v_lshl_add_u32 v7, v5, 3, s37")
        a.e(f"s_mul_i32 s36, s35, {32*PLH}")
        a.e(f"s_add_u32 s36, s36, {cfg['in_off']}")
        a.e(f"s_mov_b32 s{sX+2}, {32*PLH}")

    def haddr(dst, vG, vlane, p, t):
        a.e(f"s_add_u32 s37, s33, {2*p - 7 & 0xffffffff}")
        a.e(f"v_lshl_add_u32 v{t}, v{vG}, 3, s37")
        a.e(f"v_cmp_gt_u32 vcc, {TIN}, v{t}")
        a.e(f"s_mul_i32 s37, s33, {PLH}")
        a.e(f"s_add_u32 s37, s37, {(2*p & 3)*PLH + (p >> 1)*64}")
        a.e(f"v_lshl_add_u32 v{dst}, v{vG}, 7, s37")
        a.e(f"v_add_u32 v{dst}, v{dst}, v{vlane}")
        a.e(f"v_mov_b32 v{t}, {OOB}")
        a.e(f"v_cndmask_b32 v{dst}, v{t}, v{dst}, vcc")
    a.e(f"s_mov_b32 s{sX+3}, 0x00020000")
    a.e(f"s_mov_b32 s{sMask}, 0xffff0000")
    a.e("s_mov_b32 s47, s36")

    def kwait():
        a.e("s_waitcnt lgkmcnt(0)")
        stamp(1)
        add64(a, sX, 4, "s47")
    OB = 512

    def wsrd():
        a.e(f"s_lshl_b32 s36, s{sCb}, 4")
        a.e("s_lshl_b32 s37, s33, 3")
        a.e("s_add_u32 s36, s36, s37")
        a.e(f"s_mul_i32 s36, s36, {CHUNKB}")
        a.e(f"s_add_u32 s36, s36, {cfg['w_off']}")
        add64(a, sW, 30, "s36")
        a.e(f"s_mov_b32 s{sW+2}, {N*CHUNKB}")
        a.e(f"s_mov_b32 s{sW+3}, 0x00020000")

    def lds_throttle(need=1):
        if len(a.lg) + need > 15:
            a.e("s_waitcnt lgkmcnt(8)")
            a.lg = a.lg[-8:]

    def mf(acc, b, av):
        if "nomfma" not in EXP:
            a.e(f"v_mfma_f32_16x16x32_bf16 {vr(acc)}, {vr(b)}, {vr(av)}, {vr(acc)}")

    def steady(gen, per, strict=True):
        st = []
        for it in range(3):
            st.append(len(a.L))
            for pos in range(per):
                gen(per * it + pos, pos)
        st.append(len(a.L))
        bodies = [a.L[st[i]:st[i + 1]] for i in range(3)]
        if strict:
            assert bodies[1] == bodies[2], "loop not steady"
            assert bodies[0] == bodies[1], "loop entry not steady"
        del a.L[st[0]:]
        return bodies[1]

    a.e(f"s_cmp_ge_u32 s{sWv}, 8")
    a.e(f"s_cbranch_scc1 L_{name}_helper")

    ACC = 0
    vF, vA8, vD, vB = (120, 121), 122, (123, 124), 125
    vP = (116, 117, 118)
    vBZ = 119
    S, T, O = 96, 108, 64
    if not KSPLIT:
        a.e(f"s_add_u32 s37, s41, {128*4096}")
        a.e(f"v_lshl_add_u32 v{T}, v{vL}, 4, s37")
        for p in range(1, 3):
            a.e(f"v_add_u32 v{T+p}, {p*1024}, v{T}")
    else:
        a.e("s_add_u32 s37, s41, 128")
        a.e("v_mov_b32 v16, s37")
        a.e(f"v_mul_u32_u24 v17, {4*PLH}, v5")
        a.e("v_lshl_add_u32 v17, v6, 4, v17")
        for p in range(3):
            haddr(T + p, 16, 17, p, 18)
    kwait()
    ME = int(os.environ.get("ME", "0"))
    if ME:
        for p in range(3):
            a.vmem(f"buffer_load_dwordx4 {vr(S+4*p)}, v{T+p}, {sr(sX)}, 0 offen", "SP")
    wsrd()
    PLO = PLF if KSPLIT else PLH
    a.e(f"s_mul_i32 s36, s35, {32*PLO}")
    a.e(f"s_add_u32 s36, s36, {cfg['out_off']}")
    if KSPLIT:
        a.e(f"s_mul_i32 s37, s33, {WS_FPS}")
        a.e("s_add_u32 s36, s36, s37")
    add64(a, sO, 30, "s36")
    a.e(f"s_mov_b32 s{sO+2}, {32*PLO}")
    a.e(f"s_mov_b32 s{sO+3}, 0x00020000")
    a.e(f"v_and_b32 v{vI}, 15, v{vL}")
    a.e(f"v_lshrrev_b32 v{vKG}, 4, v{vL}")
    t = 16
    for d, sh in ((vU, 0), (vS_, 1)):
        a.e(f"v_add_u32 v{d}, {sh}, v{vI}")
        a.e(f"v_and_b32 v{t}, 4, v{d}")
        a.e(f"v_lshrrev_b32 v{t}, 1, v{t}")
        a.e(f"v_xor_b32 v{t}, v{vKG}, v{t}")
        a.e(f"v_lshlrev_b32 v{t}, 4, v{t}")
        a.e(f"v_lshl_add_u32 v{d}, v{d}, 6, v{t}")
    a.e(f"s_lshr_b32 s38, s{sH}, 1")
    a.e(f"s_and_b32 s39, s{sH}, 1")
    a.e("s_add_u32 s40, s38, 4")
    a.e("s_lshl_b32 s43, s39, 10")
    a.e(f"s_cmp_lt_u32 s{sWv}, 4")
    a.e(f"s_cselect_b32 s40, s{sWv}, s40")
    a.e("s_cselect_b32 s36, 0, s43")
    a.e("s_lshl_b32 s37, s40, 13")
    a.e("s_add_u32 s37, s37, s36")
    a.e(f"v_lshl_add_u32 v{vB}, v{vL}, 4, s37")
    a.e(f"s_mul_i32 s37, s40, {SEQB}")
    a.e(f"v_add_u32 v{vF[0]}, s37, v{vU}")
    a.e(f"v_add_u32 v{vF[1]}, s37, v{vS_}")
    a.e("s_lshl_b32 s37, s40, 10")
    a.e(f"s_add_u32 s37, s37, {SPB}")
    a.e(f"v_lshl_add_u32 v{t}, v{vKG}, 4, s37")
    a.e(f"v_cmp_eq_u32 vcc, 15, v{vI}")
    a.e(f"v_mov_b32 v{t+1}, {BB}")
    a.e(f"v_mov_b32 v{t+2}, {-BB & 0xffffffff}")
    a.e(f"v_mov_b32 v{t+3}, 64")
    a.e(f"v_cndmask_b32 v{vA8}, v{vF[1]}, v{t}, vcc")
    a.e(f"v_cndmask_b32 v{vD[0]}, v{t+1}, v{t+3}, vcc")
    a.e(f"v_cndmask_b32 v{vD[1]}, v{t+2}, v{t+3}, vcc")
    a.e(f"v_lshl_add_u32 v126, v{vL}, 4, s37")
    tabs = {44: (1.0, 1.0, 1.0, 1.0, 1.0, 16.0), 45: (0.0, 1.0, -1.0, 2.0, -2.0, 8.0),
            46: (0.0, 1.0, 1.0, 4.0, 4.0, 4.0)}
    for sg, tab in tabs.items():
        a.e(f"s_mov_b32 s{sg}, {f32hex(tab[0])}")
    for q in range(1, 6):
        a.e(f"s_cmp_eq_u32 s40, {q}")
        for sg, tab in tabs.items():
            if tab[q] != tab[0]:
                a.e(f"s_cselect_b32 s{sg}, {f32hex(tab[q])}, s{sg}")

    def special_rows():
        a.wait(vm=("SP",))
        for d in range(4):
            for p in range(3):
                a.e(f"v_lshlrev_b32 v{T+p}, 16, v{S+4*p+d}")
                a.e(f"v_and_b32 v{T+3+p}, s{sMask}, v{S+4*p+d}")
            for h in range(2):
                a.e(f"v_mul_f32 v{T+6+h}, s44, v{T+3*h}")
            for h in range(2):
                a.e(f"v_fmac_f32 v{T+6+h}, s45, v{T+3*h+1}")
            for h in range(2):
                a.e(f"v_fmac_f32 v{T+6+h}, s46, v{T+3*h+2}")
            a.e(f"v_cvt_pk_bf16_f32 v{S+d}, v{T+6}, v{T+7}")
        a.e(f"ds_write_b128 v126, {vr(S)}")

    def own_read(k, g, reg, tag, last=False):
        if g == 8:
            base, off = vA8, 0
        else:
            base, off = vF[g >> 3], (k & 1) * BB + (g & 7) * FB
        a.lds(f"ds_read_b128 {vr(reg)}, v{base} offset:{off}", tag)
        if g == 8 and not last:
            a.e(f"v_add_u32 v{vA8}, v{vD[k & 1]}, v{vA8}")

    UNIT = [(s * SEQB, s * SEQB + BB) for s in range(4)] + [(4 * SEQB, TOPB), (5 * SEQB, TOPB + 8192),
            (6 * SEQB, TOPB + 16384), (TOPB + 24576, TOPB + 32768)]
    EA = 96
    ES = []
    R0 = (120, 121, 64)
    vO, vBW = 122, 127
    BND = SPB
    t0, t1, t2, t3 = 108, 109, 110, 111
    ES.append(f"v_and_b32 v{t0}, 15, v{vL}")
    ES.append(f"v_lshrrev_b32 v{t1}, 4, v{vL}")
    ES.append(f"v_lshrrev_b32 v{t2}, 3, v{t0}")
    ES.append(f"s_lshl_b32 s36, s{sWv}, 1")
    ES.append(f"v_add_u32 v{t2}, s36, v{t2}")
    ES.append(f"v_xor_b32 v{t3}, v{t2}, v{t0}")
    ES.append(f"v_and_b32 v{t3}, 7, v{t3}")
    ES.append(f"v_lshlrev_b32 v{t3}, 4, v{t3}")
    ES.append(f"v_lshl_add_u32 v{t3}, v{t2}, 7, v{t3}")
    ES.append(f"v_lshl_add_u32 v{R0[0]}, v{t1}, 11, v{t3}")
    ES.append(f"v_add_u32 v{R0[1]}, 65536, v{R0[0]}")
    ES.append(f"v_add_u32 v{R0[2]}, 131072, v{R0[0]}")
    ES.append(f"s_lshl_b32 s36, s{sWv}, 9")
    ES.append(f"s_add_u32 s36, s36, {BND}")
    ES.append(f"v_lshl_add_u32 v{vBW}, v{t1}, 7, s36")
    ES.append(f"s_lshl_b32 s36, s{sWv}, 4")
    ES.append(f"v_add_u32 v{t0}, s36, v{t0}")
    ES.append(f"v_lshlrev_b32 v{t2}, 6, v{t0}")
    ES.append(f"v_lshl_add_u32 v{t2}, v{t1}, 4, v{t2}")
    ES.append(f"s_mul_i32 s36, s{sCb}, {4*PLO}")
    ES.append(f"s_lshl_b32 s37, s{sT0}, 4")
    ES.append("s_add_u32 s36, s36, s37")
    ES.append(f"v_add_u32 v{t2}, s36, v{t2}")
    ES.append(f"v_mov_b32 v{t3}, {OOB}")
    ES.append(f"v_cmp_gt_u32 vcc, 125, v{t0}")
    k0 = -2.0 * 1.4426950408889634 * 0.7978845608028654
    consts = [-1.0 / 3, 0.25, -5.0, -32.0 / 9, -8.0 / 9, -2.0 / 9, -1.0 / 18, 17.0 / 9, -2.0 / 3, 0.4, -1.0 / 15, -0.2,
              k0 * 0.044715, 1.0]
    KS = [4, 6, 8, 10, 12, 14, 22, 24, 26, 32, 34, 38, 40, 42]
    for sg, cv in zip(KS, consts):
        ES.append(f"s_mov_b32 s{sg}, {f32hex(cv)}")
        ES.append(f"s_mov_b32 s{sg+1}, s{sg}")

    def ex_addr(sbase):
        a.e(f"v_and_b32 v{EA}, 15, v{vL}")
        a.e(f"v_and_b32 v{EA+1}, 7, v{vL}")
        a.e(f"v_lshlrev_b32 v{EA+1}, 4, v{EA+1}")
        a.e(f"v_lshl_add_u32 v{EA}, v{EA}, 7, v{EA+1}")
        a.e(f"v_lshrrev_b32 v{EA+1}, 4, v{vL}")
        a.e(f"v_lshl_add_u32 v{EA}, v{EA+1}, 11, v{EA}")
        a.e(f"v_add_u32 v{EA}, s{sbase}, v{EA}")
        for f in range(1, 8):
            a.e(f"v_xor_b32 v{EA+f}, {f << 4}, v{EA}")

    def mwave(role):
        if role == 1:
            BR, AR, NR = 64, 96, 6
            steps = [("X", g) for g in range(11)]
        else:
            BR, AR, NR = 64, 88, 7
            steps = []
            for g in range(11):
                steps.append(("Y", g))
                if 1 <= g <= 9:
                    steps.append(("Z", g - 1))
        NS = len(steps)

        def bload(k, kind, q):
            if "nob" in EXP and k > 0:
                return
            so = sBo2 if q >> 1 else sBo
            if kind == "X":
                for c in range(2):
                    a.vmem(f"buffer_load_dwordx4 {vr(BR+(q*2+c)*4)}, v{vB}, {sr(sW)}, s{so} offen "
                           f"offset:{(q&1)*2048 + c*1024}", ("B", k, kind, q))
            elif kind == "Y":
                a.vmem(f"buffer_load_dwordx4 {vr(BR+q*4)}, v{vB}, {sr(sW)}, s{so} offen offset:{(q&1)*2048}",
                       ("B", k, kind, q))
            else:
                a.vmem(f"buffer_load_dwordx4 {vr(BR+16+q*4)}, v{vBZ}, {sr(sW)}, s{sBo} offen offset:{q*2048}",
                       ("B", k, kind, q))

        def rd(k, n, last=False):
            kind, g = steps[n]
            reg = AR + 4 * (n % NR)
            if kind == "Z":
                base, off = (vP[0], g * FB6) if g < 6 else (vP[1], (g - 6) * FB6) if g < 8 else (vP[2], 0)
                a.lds(f"ds_read_b128 {vr(reg)}, v{base} offset:{(k & 1)*BB6 + off}", ("A", k, n))
            else:
                own_read(k, g, reg, ("A", k, n), last)

        for i in range(64 if ME < 2 else 0):
            a.e(f"v_mov_b32 v{ACC+i}, 0")
        if "b0" in EXP:
            a.e("s_barrier")
        for p in range(0 if ME else 3):
            a.vmem(f"buffer_load_dwordx4 {vr(S+4*p)}, v{T+p}, {sr(sX)}, 0 offen", "SP")
        a.e(f"s_mov_b32 s{sBo}, 0")
        a.e(f"s_mov_b32 s{sBo2}, 4096")
        for st in steps:
            if st and st[1] >= 7:
                bload(0, st[0], st[1] - 7)
        a.e(f"s_mov_b32 s{sBo}, {CHUNKB}")
        a.e(f"s_mov_b32 s{sBo2}, {CHUNKB + 4096}")
        for i in range(64 if ME == 2 else 0):
            a.e(f"v_mov_b32 v{ACC+i}, 0")
        SPL = os.environ.get("SPL", "0") == "1"
        if not SPL:
            special_rows()
        if role == 2:
            a.e(f"v_and_b32 v{T+3}, 15, v{vL}")
            a.e(f"v_lshlrev_b32 v{T+3}, 2, v{T+3}")
            a.e(f"v_add_u32 v{T+3}, {6*SEQB + 1024}, v{T+3}")
            a.e(f"ds_write_b32 v{T+3}, v{ACC}")
            a.e(f"ds_write_b32 v{T+3}, v{ACC} offset:{BB6}")
        a.e("s_waitcnt lgkmcnt(0)")
        a.e("s_barrier")
        if SPL:
            a.e("s_setprio 3")
            special_rows()
            a.e("s_waitcnt lgkmcnt(0)")
        stamp(7)
        rstamp(12)
        a.e(f"s_mov_b32 s{sCnt}, {N//2}")
        a.e(f"s_setprio {os.environ.get(f'PM{role}', '2')}")

        CO = int(os.environ.get(f"CO{role}", "0" if role == 1 else "5"))
        assert CO < NR
        FM = int("fmaj" in EXP)
        vE = (vD[0], vD[1])

        def period(k, _, last=False):
            if "mst" in EXP and _ == 0:
                stamp(2)
            if "bst" in EXP and _ == 1 and not last:
                a.e("s_memtime s[90:91]")
                a.e("s_waitcnt vmcnt(0) lgkmcnt(0)")
                a.e("s_memtime s[92:93]")
                a.e("s_waitcnt lgkmcnt(0)")
                a.e("s_sub_u32 s92, s92, s90")
                a.e(f"s_add_u32 s{sSt+4}, s{sSt+4}, s92")
                a.e(f"s_max_u32 s{sSt+6}, s{sSt+6}, s92")
                a.vm = []
            for n in range(NR):
                rd(k, n, last)
            pend = []
            fill = []

            def flush(n, cnt):
                while pend and pend[0][0] <= n and cnt > 0:
                    _, h, f = pend.pop(0)
                    t = vE[(h + f) & 1]
                    a.e(f"v_xor_b32 v{t}, {f << 4}, v{vX0[h]}")
                    lds_throttle()
                    a.lds(f"ds_write_b128 v{t}, {vr(ACC + h*32 + f*4)}", "E")
                    cnt -= 1
                    for _i in range(min(12, len(fill))):
                        a.e(fill.pop(0))

            for n, st in enumerate(steps):
                if CO and n == NS - CO and not last:
                    a.wait(lg_all=True)
                    if "mst" in EXP and _ == 0:
                        stamp(3)
                    a.e("s_barrier")
                    if "mst" in EXP and _ == 0:
                        stamp(4)
                kind, g = st
                nt = 2 if kind == "Z" else 4
                qs = [q for q in range(nt) if 0 <= g - q <= 7]
                if FM and kind == "X":
                    if g >= 3:
                        f = g - 3
                        for c in range(2):
                            for q in range(4):
                                a.wait(lg=(("A", k, f + q),), vm=(("B", k, kind, q),))
                                mf(ACC + 32 * c + f * 4, BR + q * 8 + 4 * c, AR + 4 * ((f + q) % NR))
                        if f + NR < NS:
                            rd(k, f + NR, last)
                        if g == 10 and not last:
                            for q in range(4):
                                bload(k + 1, kind, q)
                    qs = []
                else:
                    WM = int(os.environ.get(f"WM{role}", "1"))
                    n2 = min(NS - 1, (n // WM) * WM + WM - 1) if n >= WM else n
                    need = set()
                    for kk, gg in steps[n:n2 + 1]:
                        need |= {("B", k, kk, q) for q in range(2 if kk == "Z" else 4) if 0 <= gg - q <= 7}
                    a.wait(lg=tuple(("A", k, x) for x in range(n, n2 + 1)), vm=tuple(need))
                reg = AR + 4 * (n % NR)
                for q in qs:
                    f = g - q
                    if kind == "X":
                        mf(ACC + f * 4, BR + q * 8, reg)
                        mf(ACC + 32 + f * 4, BR + q * 8 + 4, reg)
                    elif kind == "Y":
                        mf(ACC + f * 4, BR + q * 4, reg)
                    else:
                        mf(ACC + 32 + f * 4, BR + 16 + q * 4, reg)
                if g >= 7 and not last and not (FM and kind == "X"):
                    bload(k + 1, kind, g - 7)
                if n + NR < NS and not (FM and kind == "X"):
                    rd(k, n + NR, last)
                if last:
                    flush(n, int(os.environ.get('FL', '2')))
                    f = g - (nt - 1)
                    if f >= 0:
                        if kind == "X":
                            pend.append((n + 1, 0, f))
                            pend.append((max(n + 1, NS - NR + 1 + 3 * FM), 1, f))
                            pend.sort()
                        else:
                            pend.append((n + 3, 0 if kind == "Y" else 1, f))
                    if kind == "X" and n == NS - NR + 3 * FM:
                        a.wait(lg=(("A", k, NS - 1),))
            if last:
                fill += ES
                for _i in range(8):
                    a.e(fill.pop(0))
                flush(1000, 1000)
                for op in fill:
                    a.e(op)
                return
            a.e(f"s_add_u32 s{sBo}, s{sBo}, {CHUNKB}")
            a.e(f"s_add_u32 s{sBo2}, s{sBo2}, {CHUNKB}")
            assert not a.lg
            if "mst" in EXP and _ == 0:
                stamp(5)
            if not CO:
                a.e("s_barrier")
            if "mst" in EXP and _ == 0:
                stamp(6)

        def period2(k, pos):
            if pos == 1:
                a.e(f"s_sub_u32 s{sCnt}, s{sCnt}, 1")
                a.e(f"s_cmp_eq_u32 s{sCnt}, 0")
                a.e(f"s_cbranch_scc1 L_{name}_mlast{role}")
                state[0] = (list(a.vm), k)
            period(k, pos)

        state = [None]
        body = steady(period2, 2, "nob" not in EXP)
        if "nob" in EXP:
            a.e("s_waitcnt vmcnt(0)")
        if role == 1 or "malign2" in EXP:
            a.c("ALIGN ON")
        a.label(f"L_{name}_mloop{role}")
        a.L.extend(body)
        a.c("ALIGN OFF")
        a.e(f"s_branch L_{name}_mloop{role}")
        a.label(f"L_{name}_mlast{role}")
        a.vm, a.lg = state[0][0], []
        vX0 = (vB, 126)
        a.e(f"v_and_b32 v{vX0[0]}, 15, v{vL}")
        a.e(f"v_and_b32 v{vX0[1]}, 7, v{vL}")
        a.e(f"v_lshlrev_b32 v{vX0[1]}, 4, v{vX0[1]}")
        a.e(f"v_lshl_add_u32 v{vX0[0]}, v{vX0[0]}, 7, v{vX0[1]}")
        a.e(f"v_lshrrev_b32 v{vX0[1]}, 4, v{vL}")
        a.e(f"v_lshl_add_u32 v{vX0[0]}, v{vX0[1]}, 11, v{vX0[0]}")
        if role == 1:
            a.e(f"s_lshl_b32 s36, s{sWv}, 14")
            a.e("s_add_u32 s37, s36, 8192")
        else:
            for sg, tab in ((36, [UNIT[4 + (h >> 1)][h & 1] for h in range(4)]),
                            (37, [UNIT[6 + (h >> 1)][h & 1] for h in range(4)])):
                a.e(f"s_mov_b32 s{sg}, {tab[0]}")
                for h in range(1, 4):
                    a.e(f"s_cmp_eq_u32 s{sH}, {h}")
                    a.e(f"s_cselect_b32 s{sg}, {tab[h]}, s{sg}")
        a.e(f"v_add_u32 v{vX0[1]}, s37, v{vX0[0]}")
        a.e(f"v_add_u32 v{vX0[0]}, s36, v{vX0[0]}")
        if os.environ.get(f"PL{role}"):
            a.e(f"s_setprio {os.environ.get(f'PL{role}')}")
        period(state[0][1], 1, True)
        stamp(8, False)
        rstamp(13)
        a.e("s_setprio 0")
        a.vm, a.lg = [], []

    a.e(f"s_cmp_ge_u32 s{sWv}, 4")
    a.e(f"s_cbranch_scc1 L_{name}_m2")
    vm0 = list(a.vm)
    mwave(1)
    a.e(f"s_branch L_{name}_epi")
    a.label(f"L_{name}_m2")
    a.vm, a.lg = list(vm0), []
    a.e(f"s_mul_i32 s37, s38, {2*FB6}")
    a.e(f"s_add_u32 s37, s37, {6*SEQB}")
    a.e(f"v_add_u32 v{vP[0]}, s37, v{vU}")
    a.e(f"v_add_u32 v{vP[2]}, s37, v{vS_}")
    a.e(f"v_add_u32 v{vP[1]}, {6*SEQB + 6*FB6}, v{vU}")
    a.e("s_cmp_eq_u32 s38, 0")
    a.e(f"s_cbranch_scc1 L_{name}_hh0")
    a.e(f"v_add_u32 v{vP[1]}, {6*SEQB}, v{vS_}")
    a.label(f"L_{name}_hh0")
    a.e("s_lshl_b32 s37, s38, 12")
    a.e("s_add_u32 s37, s37, s43")
    a.e(f"s_add_u32 s37, s37, {6*8192}")
    a.e(f"v_lshl_add_u32 v{vBZ}, v{vL}, 4, s37")
    mwave(2)
    a.e(f"s_branch L_{name}_epi")

    a.label(f"L_{name}_helper")
    a.vm, a.lg = [], []
    a.e("s_setprio 3")
    PB = (0, 32)
    XO = 64
    TMP = 76
    vX = 92
    vW = (96, 97, 98)

    def praw(b, half, p):
        return PB[b] + half * 16 + p * 4

    sXo2 = 27

    def xload(pair, p):
        if KSPLIT:
            half, q = p >> 1, p & 1
            for r in (q, q + 2):
                a.vmem(f"buffer_load_dwordx4 {vr(praw(pair & 1, half, r))}, v{vX+r}, {sr(sX)}, "
                       f"s{sXo2 if half else sXo} offen", ("X", pair))
            return
        for half in range(2):
            a.vmem(f"buffer_load_dwordx4 {vr(praw(pair & 1, half, p))}, v{vX+p}, {sr(sX)}, "
                   f"s{sXo} offen offset:{half*64}", ("X", pair))
        a.e(f"v_add_u32 v{vX+p}, 128, v{vX+p}")

    def uregs(chunk):
        return [praw((chunk >> 1) & 1, chunk & 1, p) for p in range(4)]

    def wr(chunk, i):
        if "nowr" in EXP:
            return
        u = uregs(chunk)
        reg, seq = [(XO, 3), (XO + 4, 4), (XO + 8, 5), (u[0], 0), (u[1], 1), (u[2], 2), (u[3], 6)][i]
        lds_throttle()
        if seq == 6:
            a.lds(f"ds_write_b128 v{vW[2]}, {vr(reg)} offset:{(chunk & 1)*BB6}", "W")
        else:
            a.lds(f"ds_write_b128 v{vW[seq >> 2]}, {vr(reg)} offset:{(seq & 3)*SEQB + (chunk & 1)*BB}", "W")

    def tr_ops(chunk):
        u = uregs(chunk)
        o = [u[1], u[2], XO, XO + 4, XO + 8]
        ops = []
        for d in range(4):
            lo = [TMP + p for p in range(4)]
            hi = [TMP + 8 + p for p in range(4)]
            for p in range(4):
                ops.append(f"v_lshlrev_b32 v{lo[p]}, 16, v{u[p]+d}")
                ops.append(f"v_and_b32 v{hi[p]}, s{sMask}, v{u[p]+d}")
            o1, r1 = eval_ops(lo, [TMP + 4 + i for i in range(4)])
            o2, r2 = eval_ops(hi, [TMP + 12 + i for i in range(4)])
            for x, y in zip(o1, o2):
                ops += [x, y]
            for i in range(5):
                ops.append(f"v_cvt_pk_bf16_f32 v{o[i]+d}, v{r1[i]}, v{r2[i]}")
        if "notr" in EXP:
            ops = ["s_nop 0"] * 8
        return ops

    if KSPLIT:
        a.e("v_lshlrev_b32 v8, 4, v6")
    for p in range(4):
        if KSPLIT:
            haddr(vX + p, 7, 8, p, 9)
        else:
            a.e(f"v_add_u32 v{vX+p}, {p*1024}, v7")
    a.e(f"v_and_b32 v{TMP}, 4, v5")
    a.e(f"v_lshrrev_b32 v{TMP}, 1, v{TMP}")
    a.e(f"v_xor_b32 v{TMP}, v6, v{TMP}")
    a.e(f"v_lshlrev_b32 v{TMP}, 4, v{TMP}")
    a.e(f"v_lshl_add_u32 v{TMP}, v5, 6, v{TMP}")
    a.e(f"s_mov_b32 s{sXo}, 0")
    a.e(f"s_mov_b32 s{sXo2}, {4*PLH}")
    kwait()
    stamp(2)
    P0 = os.environ.get("P0", "0")
    if P0 == "0" or KSPLIT:
        for p in range(4):
            xload(0, p)
            if p == 1 and P0 == "2":
                a.e("s_barrier")
    else:
        for half in range(2):
            for p in range(4):
                a.vmem(f"buffer_load_dwordx4 {vr(praw(0, half, p))}, v{vX+p}, {sr(sX)}, s{sXo} offen offset:{half*64}", ("X", 0))
            if half == 0 and P0 == "2":
                a.e("s_barrier")
        for p in range(4):
            a.e(f"v_add_u32 v{vX+p}, 128, v{vX+p}")
    if P0 != "2" and "b0" in EXP:
        a.e("s_barrier")
    a.e(f"s_mul_i32 s36, s42, {FB}")
    a.e(f"v_add_u32 v{vW[0]}, s36, v{TMP}")
    a.e(f"v_add_u32 v{vW[1]}, {4*SEQB}, v{vW[0]}")
    a.e(f"s_mul_i32 s36, s42, {FB6}")
    a.e(f"s_add_u32 s36, s36, {6*SEQB}")
    a.e(f"v_add_u32 v{vW[2]}, s36, v{TMP}")
    def warm_tail():
        if KSPLIT and "notail" not in EXP:
            add64(a, sW, 30, WS_WF)
            a.e(f"s_mov_b32 s{sW+2}, {262144 + 32768}")
            a.e(f"s_mov_b32 s{sW+3}, 0x00020000")
            a.e("s_lshr_b32 s36, s2, 3")
            a.e("s_lshl_b32 s36, s36, 2")
            a.e(f"s_add_u32 s36, s36, s{sH}")
            a.e("s_mul_i32 s36, s36, 2304")
            a.e(f"v_lshlrev_b32 v1, 4, v{vL}")
            for i in range(3):
                a.e(f"buffer_load_dwordx4 v[4:7], v1, {sr(sW)}, s36 offen offset:{i*1024}")
        if "notw" not in EXP:
            a.e(f"s_cmp_ge_u32 s2, {os.environ.get('TWN', '32')}")
            a.e(f"s_cbranch_scc1 L_{name}_ntw")
            a.e("s_getpc_b64 s[36:37]")
            a.label(f"L_{name}_pc")
            a.e(f"s_lshl_b32 s38, s{sH}, 13")
            a.e(f"s_add_u32 s38, s38, L_{name}_epi-L_{name}_pc")
            a.e(f"v_lshl_add_u32 v2, v{vL}, 7, s38")
            a.e(f"v_min_u32 v2, {0x7fc0de01 + KSPLIT:#x}, v2")
            a.e("v_mov_b32 v3, s37")
            a.e("v_add_co_u32 v2, vcc, s36, v2")
            a.e("s_nop 1")
            a.e("v_addc_co_u32 v3, vcc, 0, v3, vcc")
            a.e("global_load_dword v4, v[2:3], off")
            a.label(f"L_{name}_ntw")
        if os.environ.get("HB2", "0") == "1":
            a.e("s_barrier")

    UNI = KSPLIT and os.environ.get("UNI", "1") == "1"
    if UNI:
        sMA, sMB = 44, 45
        a.e(f"s_mov_b32 s{sK}, 0")
        a.e(f"s_mov_b32 s{sXo}, {8*PLH}")
        a.e(f"s_cmp_ge_u32 s{sWv}, 12")
        a.e(f"s_cselect_b32 s{sMA}, {(1 << N) - 4}, 0")
        a.e(f"s_cselect_b32 s{sMB}, {1 | 1 << (N - 1)}, -1")
        a.e("s_setprio 0")
        a.e(f"s_cbranch_scc1 L_{name}_hloop")
        a.e("s_setprio 1")

        def sync(mask, lbl):
            a.e(f"s_bitcmp1_b32 s{mask}, s{sK}")
            a.e(f"s_cbranch_scc0 {lbl}")
            a.e("s_waitcnt lgkmcnt(0)")
            a.e("s_barrier")
            a.label(lbl)
        if "nohalign" not in EXP:
            a.c("ALIGN ON")
        a.label(f"L_{name}_hloop")
        for c in range(2):
            a.e("s_waitcnt vmcnt(4)")
            for op in tr_ops(c):
                a.e(op)
            sync(sMA, f"L_{name}_sa{c}")
            a.lg = []
            for i in range(7):
                wr(c, i)
            for r in (0, 2, 1, 3):
                a.e(f"buffer_load_dwordx4 {vr(praw(0, c, r))}, v{vX+r}, {sr(sX)}, s{sXo} offen")
            a.e(f"s_add_u32 s{sXo}, s{sXo}, {4*PLH}")
            sync(sMB, f"L_{name}_sb{c}")
            a.e(f"s_add_u32 s{sK}, s{sK}, 1")
        a.c("ALIGN OFF")
        a.e(f"s_cmp_lt_u32 s{sK}, {N}")
        a.e(f"s_cbranch_scc1 L_{name}_hloop")
        a.e(f"s_cmp_ge_u32 s{sWv}, 12")
        a.e(f"s_cbranch_scc1 L_{name}_hend")
        warm_tail()
        a.label(f"L_{name}_hend")
        a.e(f"s_branch L_{name}_end")
    mark = len(a.L)
    stamp(3)
    a.e(f"s_waitcnt vmcnt({0 if P0 == '0' else 4})")
    stamp(4)
    a.e(f"s_mov_b32 s{sK}, 0")
    a.e(f"s_mov_b32 s{sCnt}, {N//4}")
    a.vm, a.lg = [], []
    if not KSPLIT and os.environ.get("W2", "1") == "3":
        a.e("s_load_dwordx2 s[48:49], s[0:1], 16")
    wr(0, 3)
    wr(0, 6)
    for op in tr_ops(0):
        a.e(op)
    for i in (0, 1, 2, 4, 5):
        wr(0, i)
    stamp(5)
    a.e(f"s_cmp_ge_u32 s{sWv}, 12")
    a.e(f"s_cbranch_scc1 L_{name}_h2")

    def hwave(role):
        SH = 33 * int(os.environ.get(f"SH{role}", "0" if role == 1 else "4"))
        ahead = 2 if SH else 1
        a.vm, a.lg = [], []
        W2E = role == 2 and not KSPLIT and os.environ.get("W2", "1") == "3"
        NF = int(os.environ.get("NF", "2"))
        if KSPLIT:
            a.e(f"s_mov_b32 s{sXo}, {8*PLH}")
            a.e(f"s_mov_b32 s{sXo2}, {12*PLH}")
        X1 = os.environ.get("X1", "1")
        if X1 == "0":
            for p in range(4 if SH else NF):
                xload(1, p)
        a.e("s_waitcnt lgkmcnt(0)")
        stamp(6)
        a.e("s_barrier")
        stamp(7)
        rstamp(12)
        if X1 == "1":
            for p in range(4 if SH else NF):
                xload(1, p)
        PA, PB_ = os.environ.get(f'PH{role}', '11' if role == 1 else '00')
        a.e(f"s_setprio {PA}")
        for op in tr_ops(1)[:SH]:
            a.e(op)
        if role == 1 and os.environ.get("MW", ""):
            a.e(f"s_cmp_lt_u32 s2, {os.environ.get('TWN', '32')}")
            a.e("s_cselect_b32 s55, 1, 99")
            a.e("s_getpc_b64 s[36:37]")
            a.label(f"L_{name}_pc3")
            a.e(f"s_sub_u32 s36, s36, L_{name}_pc3-{name}")
            a.e("s_subb_u32 s37, s37, 0")
            a.e(f"s_lshl_b32 s38, s{sH}, 13")
            a.e(f"v_lshl_add_u32 v102, v{vL}, 7, s38")
            a.e(f"v_min_u32 v102, L_{name}_done-{name}, v102")
            a.e("v_mov_b32 v103, s37")
            a.e("v_add_co_u32 v102, vcc, s36, v102")
            a.e("s_nop 1")
            a.e("v_addc_co_u32 v103, vcc, 0, v103, vcc")
        if W2E:
            a.e("s_lshr_b32 s52, s2, 6")
            a.e("s_lshl_b32 s52, s52, 3")
            a.e("s_bfe_u32 s36, s2, 0x10005")
            a.e("s_add_u32 s52, s52, s36")
            a.e("s_lshl_b32 s52, s52, 17")
            a.e("s_bfe_u32 s36, s2, 0x30002")
            a.e("s_lshl_b32 s36, s36, 1")
            a.e(f"s_and_b32 s37, s{sH}, 1")
            a.e("s_add_u32 s36, s36, s37")
            a.e("s_lshl_b32 s36, s36, 13")
            a.e("s_add_u32 s52, s52, s36")
            a.e("s_and_b32 s36, s2, 3")
            a.e("s_lshl_b32 s36, s36, 1")
            a.e(f"s_lshr_b32 s37, s{sH}, 1")
            a.e("s_add_u32 s36, s36, s37")
            a.e("s_lshl_b32 s36, s36, 6")
            a.e("s_add_u32 s52, s52, s36")
            a.e(f"s_mov_b32 s50, {31*131072}")
            a.e("s_mov_b32 s51, 0x00020000")
            a.e(f"v_lshrrev_b32 v99, 4, v{vL}")
            a.e("v_lshlrev_b32 v99, 11, v99")
            a.e(f"v_and_b32 v100, 15, v{vL}")
            a.e("v_lshl_add_u32 v99, v100, 2, v99")

        def w2load(pos):
            a.e(f"s_cmp_lg_u32 s{sCnt}, {os.environ.get('W2I', '3')}")
            a.e(f"s_cbranch_scc1 L_{name}_w2s{pos}")
            for e in range(4):
                a.e(f"buffer_load_dword v{100+pos*4+e}, v99, s[48:51], s52 offen offset:{e*512}")
            a.e(f"s_add_u32 s52, s52, {2*131072}")
            a.label(f"L_{name}_w2s{pos}")
        VPF = int(os.environ.get("VPF", "0")) if role == 1 and not KSPLIT and XL == 3 else 0
        if VPF:
            a.e(f"s_lshl_b32 s36, s{sCb}, 6")
            a.e(f"s_lshl_b32 s37, s{sH}, 3")
            a.e("s_add_u32 s36, s36, s37")
            a.e("s_lshl_b32 s36, s36, 10")
            a.e("s_add_u32 s36, s36, s41")
            a.e(f"s_add_u32 s36, s36, {VPF*128}")
            a.e(f"v_and_b32 v100, 7, v{vL}")
            a.e("v_lshl_add_u32 v100, v100, 10, s36")

        def vpf(k):
            a.e(f"s_cmp_lt_u32 s{sK}, {N - 2*VPF}")
            a.e(f"s_cselect_b32 s36, 0, {OOB}")
            a.vmem(f"buffer_load_dword v99, v100, {sr(sX)}, s36 offen", "PF")
            a.e(f"v_add_u32 v100, {(128 - 32768) & 0xffffffff if k & 1 else 32768}, v100")
        XD = {(0, 1): "0.2,0.4,0.2,0.4", (0, 2): "0.3,0.5,0.3,0.5", (1, 1): "1,1,1,1", (1, 2): "0,0,0,0"}
        XP = [float(x) for x in os.environ.get(f"XP{1 + int(KSPLIT)}{role}", XD[int(KSPLIT), role]).split(",")]

        def period(k, pos, last=False):
            pair = (k >> 1) + 2 if SH else (k + 3) >> 1
            first = not (k & 1) if SH else (k & 1)
            if pos == 4 - ahead and not last:
                a.e(f"s_cmp_eq_u32 s{sCnt}, 1")
                a.e(f"s_cbranch_scc1 L_{name}_hlast{role}")
            if "hst" in EXP and pos == 1:
                stamp(2)
            V1 = tr_ops(k + 1)[SH:]
            V2 = [] if last else tr_ops(k + 2)[:SH]
            V = V1 + V2
            n = len(V)
            ev = {}

            def at(i, f):
                ev.setdefault(max(0, min(int(i), n)), []).append(f)

            def stores():
                if "hst" in EXP and pos == 1:
                    stamp(3)
                for i in range(7):
                    wr(k + 1, i)
                if "hst" in EXP and pos == 1:
                    stamp(4)
                if PA != PB_:
                    a.e(f"s_setprio {PB_}")
            if PA != PB_:
                a.e(f"s_setprio {PA}")
            if VPF and not last:
                at(float(os.environ.get("VPP", "1.0")) * n, lambda: vpf(k))
            at(len(V1), stores)
            if W2E and not last:
                at(len(V1) + 1 + float(os.environ.get("W2X", "0")) * n, lambda: w2load(pos))
            if not last:
                if not KSPLIT:
                    a.e(f"s_cmp_lt_u32 s{sK}, {N - 2 - ahead}")
                    a.e(f"s_cselect_b32 s{sXo}, 0, {OOB}")
                elif first:
                    a.e(f"s_add_u32 s{sXo}, s{sXo}, {8*PLH}")
                    a.e(f"s_add_u32 s{sXo2}, s{sXo2}, {8*PLH}")
                at(len(V1) if SH else 0, lambda: a.wait(vm=(("X", (k + ahead) >> 1),)))
                if "nox" not in EXP:
                    for p in (range(NF) if first else range(NF, 4)):
                        w = len(V1) + XP[p] * SH if SH and first else XP[p] * n
                        at(w, lambda p=p: xload(pair, p))
            for i in range(n + 1):
                for f in ev.get(i, []):
                    f()
                if i < n:
                    a.e(V[i])
            MW = os.environ.get("MW", "")
            if role == 1 and MW and pos == int(MW) and not last:
                a.e(f"s_cmp_lg_u32 s{sCnt}, s55")
                a.e(f"s_cbranch_scc1 L_{name}_nmw")
                a.e("global_load_dword v101, v[102:103], off")
                a.label(f"L_{name}_nmw")
            if not last:
                a.e(f"s_add_u32 s{sK}, s{sK}, 1")
            if "hst" in EXP and pos == 1:
                stamp(5)
            a.e("s_waitcnt lgkmcnt(0)")
            a.lg = []
            a.e("s_barrier")
            if "hst" in EXP and pos == 1:
                stamp(6)

        body = steady(period, 4, "nox" not in EXP)
        if "nohalign" not in EXP:
            a.c("ALIGN ON")
        a.label(f"L_{name}_hloop{role}")
        a.L.extend(body)
        a.c("ALIGN OFF")
        a.e(f"s_sub_u32 s{sCnt}, s{sCnt}, 1")
        a.e(f"s_branch L_{name}_hloop{role}")
        a.label(f"L_{name}_hlast{role}")
        a.vm, a.lg = [], []

        def last_period():
            vm = a.vm
            a.vm, a.lg = [], []
            if SH:
                a.e(f"s_mov_b32 s{sMask}, 0xffff0000")
                period(2, 2, True)
            a.vm = vm
        if role == 1 or KSPLIT or W2P:
            last_period()
        else:
            assert SH
            W2L = os.environ.get("W2L", "0") == "1"
            if W2L:
                last_period()
            a.e("s_waitcnt vmcnt(0)")
            a.e(f"s_mov_b32 s58, s{sWv}")
            a.e(f"s_lshl_b32 s20, s2, 2")
            a.e(f"s_add_u32 s20, s20, s{sH}")
            a.e(f"v_mov_b32 v1, v{vL}")
            if W2E:
                W2R = int(os.environ.get("W2R", "0"))

                def only_stores():
                    a.lg = []
                    for i in range(7):
                        wr(3, i)
                wprep2(a, 16, WS_W2P, only_stores if W2R else last_period, pre=100, late=W2R)
            elif os.environ.get("W2", "1") == "2":
                wprep2(a, 16, WS_W2P, last_period, LB=False)
            else:
                wprep(a, 16, WS_W2P, True, barrier=None if W2L else last_period)
            a.e(f"s_mov_b32 s{sWv}, s58")
            for _ in range(int(os.environ.get("HB1", "1"))):
                a.e("s_barrier")
        if role == 1:
            warm_tail()
        stamp(8)
        rstamp(13)
        a.e(f"s_branch L_{name}_end")

    hwave(1)
    a.label(f"L_{name}_h2")
    hwave(2)
    if UNI:
        del a.L[mark:]

    if "ealign" in EXP:
        a.c("ALIGN ON")
    a.label(f"L_{name}_epi")
    K = [sr(x, 2) for x in KS]
    a.e("s_waitcnt lgkmcnt(0)")
    a.e("s_barrier")
    if "est" in EXP:
        stamp(2)
    a.e(f"v_cndmask_b32 v{vO}, v{t3}, v{t2}, vcc")

    def P(c, s, r=0):
        return c * 32 + s * 4 + r
    Y = 64
    TB = 96
    ELS = (0, 1, 2)
    for c in range(2):
        for s_ in range(8):
            if c == 1 and s_ == 7:
                a.e("s_waitcnt lgkmcnt(7)")
            u = UNIT[s_][c]
            a.e(f"ds_read_b128 {vr(P(c, s_))}, v{R0[u >> 16]} offset:{u & 0xffff}")

    def p2(x):
        return vr(x, 2)

    def padd(d, x, y):
        return f"v_pk_add_f32 {p2(d)}, {p2(x)}, {p2(y)}"

    def psub(d, x, y):
        return f"v_pk_add_f32 {p2(d)}, {p2(x)}, {p2(y)} neg_lo:[0,1] neg_hi:[0,1]"

    def pfma(d, x, k, y, neg=False):
        return f"v_pk_fma_f32 {p2(d)}, {p2(x)}, {k}, {p2(y)}" + (" neg_lo:[0,0,1] neg_hi:[0,0,1]" if neg else "")

    def interp(c):
        seq = []
        for r in (0, 2):
            E0, A, B, C, D, Q, E6, E6b = (P(c, x, r) for x in range(8))
            y = [Y + ph * 8 + c * 4 + r for ph in range(4)]
            S1, G = E6, C
            seq.append([
                padd(y[3], E6, E6b),
                padd(S1, A, B),
                psub(A, A, B),
                padd(y[1], C, D),
                psub(G, C, D),
                pfma(y[1], S1, K[0], y[1]),
                pfma(Q, E0, K[3], Q),
                pfma(y[1], E0, K[1], y[1]),
                psub(S1, S1, E0),
                pfma(y[1], y[3], K[2], y[1]),
                psub(S1, S1, y[3]),
                pfma(Q, y[3], K[6], Q),
                psub(B, S1, y[1]),
                pfma(Q, y[1], K[5], Q),
                f"v_pk_mul_f32 {p2(y[2])}, {p2(G)}, {K[9]}",
                pfma(Q, B, K[4], Q),
                pfma(y[2], A, K[10], y[2]),
                pfma(y[0], A, K[7], Q, True),
                pfma(y[0], G, K[8], y[0]),
                pfma(y[2], y[0], K[11], y[2]),
                psub(A, A, y[0]),
                psub(A, A, y[2]),
            ])
        for ops in zip(*seq):
            for op in ops:
                a.e(op)

    a.e("s_waitcnt lgkmcnt(8)")
    interp(0)
    a.e("s_waitcnt lgkmcnt(0)")
    interp(1)
    if "est" in EXP:
        stamp(3)
    a.e("s_mov_b32 s36, 0x00010001")
    a.e("s_mov_b32 s37, 0x00010001")
    a.e("s_mov_b64 exec, s[36:37]")
    for k in range(3):
        for c in range(2):
            a.e(f"ds_write_b128 v{vBW}, {vr(P(c, ELS[k]))} offset:{(k*2+c)*16}")
    a.e("s_mov_b64 exec, -1")

    def finish(ph):
        ys = [Y + ph * 8 + i for i in range(8)]
        if not KSPLIT:
            ts = [16 + (ph & 1) * 8 + i for i in range(8)]
            ev = list(zip(ys[::2], ts[::2]))
            for y, t in ev:
                a.e(f"v_pk_mul_f32 {p2(t)}, {p2(y)}, {p2(y)}")
            for y, t in ev:
                a.e(pfma(t, t, K[12], 44))
            for y, t in ev:
                a.e(f"v_pk_mul_f32 {p2(t)}, {p2(t)}, {p2(y)}")
            for t in ts:
                a.e(f"v_exp_f32 v{t}, v{t}")
            for y, t in ev:
                a.e(f"v_pk_add_f32 {p2(t)}, {p2(t)}, {K[13]}")
            for t in ts:
                a.e(f"v_rcp_f32 v{t}, v{t}")
            for y, t in ev:
                a.e(f"v_pk_mul_f32 {p2(y)}, {p2(y)}, {p2(t)}")
        o = 48 + ph * 4
        for r in range(4):
            a.e(f"v_cvt_pk_bf16_f32 v{o+r}, v{ys[r]}, v{ys[4+r]}")
        so = ph * PLF if KSPLIT else ((ph + 3) & 3) * PLH + ((ph + 7) >> 2) * 64
        a.e(f"s_mov_b32 s44, {so}")
        a.e(f"buffer_store_dwordx4 {vr(o)}, v{vO}, {sr(sO)}, s44 offen{NTF if KSPLIT else NTH}")

    a.e(f"v_mov_b32 v44, {f32hex(k0)}")
    a.e("v_mov_b32 v45, v44")
    finish(0)
    a.e("s_waitcnt lgkmcnt(0)")
    a.e("s_barrier")
    if "est" in EXP:
        stamp(4)
    for i in range(6):
        a.e(f"ds_read_b128 {vr(TB+4*i)}, v{vBW} offset:{512 + i*16}")
    for ph in range(1, 4):
        a.e(f"s_waitcnt lgkmcnt({6 - 2*ph})")
        for c in range(2):
            for r in range(4):
                i = (ph - 1) * 8 + c * 4 + r
                a.e(f"v_mov_b32_dpp v{TB+i}, v{P(c, ELS[ph-1], r)} row_shl:1 row_mask:0xf bank_mask:0xf")
        for i in range(0, 8, 2):
            a.e(padd(Y + ph * 8 + i, Y + ph * 8 + i, TB + (ph - 1) * 8 + i))
        finish(ph)
    if "est" in EXP:
        stamp(5)
    RB = os.environ.get("RB", "00")[int(KSPLIT)]
    if RB != "0":
        if not KSPLIT:
            a.e(f"s_cmp_ge_u32 s{sCb}, {RB}")
            a.e(f"s_cbranch_scc1 L_{name}_end")
        a.e("s_waitcnt vmcnt(0)")
        for ph in range(4):
            so = ph * PLF if KSPLIT else ((ph + 3) & 3) * PLH + ((ph + 7) >> 2) * 64
            a.e(f"s_mov_b32 s44, {so}")
            a.e(f"buffer_load_dword v0, v{vO}, {sr(sO)}, s44 offen")
    a.label(f"L_{name}_end")
    if STAMP:
        a.e("s_waitcnt vmcnt(0)")
        stamp(9, False)
        a.e(f"s_memrealtime s[{sSt+22}:{sSt+23}]")
        a.e(f"s_cmp_lg_u32 s{sWv}, {os.environ.get('SW', '0')}")
        a.e(f"s_cbranch_scc1 L_{name}_done")
        a.e("s_lshl_b32 s36, s2, 7")
        a.e(f"s_add_u32 s36, s36, {WS_STAMP + cfg['stamp']*0x10000}")
        add64(a, 40, 30, "s36")
        a.e("s_mov_b32 s42, 128")
        a.e("s_mov_b32 s43, 0x00020000")
        a.e("s_waitcnt lgkmcnt(0)")
        a.e("v_mov_b32 v8, 0")
        for i in range(28):
            a.e(f"v_mov_b32 v0, s{sSt+i}")
            a.e(f"buffer_store_dword v0, v8, s[40:43], 0 offen offset:{4*i}")
    a.label(f"L_{name}_done")
    a.e("s_endpgm")
    if not STAMP:
        a.L = ["    s_endpgm" if l == f"    s_branch L_{name}_end" else l for l in a.L]
    if "nohf" not in EXP:
        L = a.L
        b = L.index(f"    s_cbranch_scc1 L_{name}_helper")
        h0, h1 = L.index(f"L_{name}_helper:"), L.index(f"L_{name}_epi:")
        a.L = L[:b] + [f"    s_cbranch_scc0 L_{name}_mw"] + L[h0:h1] + [f"L_{name}_mw:"] + L[b + 1:h0] + L[h1:]
    return a.L, TOPB + 40960, 128


CONV1 = dict(tin=16000, tout=8000, nchunk=16, ksplit=False, in_arg=0, in_off=0, w_off=WS_W1P, out_off=WS_H, stamp=0)
CONV2 = dict(tin=8000, tout=4000, nchunk=8, ksplit=True, in_arg=72, in_off=WS_H, w_off=WS_W2P, out_off=WS_FP, stamp=1)

HEADER = f"""; Kernarg layout for this problem (80 bytes, ptrs only, base s[0:1]):
"""


def main():
    ks = [("prep_kernel", 256, 640 if W2P else 384) + prep_kernel("prep_kernel"),
          ("conv1_kernel", 256, 1024) + conv_kernel("conv1_kernel", CONV1),
          ("conv2_kernel", 256, 1024) + conv_kernel("conv2_kernel", CONV2)]
    ks = joint_kernels(ks)
    out = HEADER
    for nm, grid, block, code, lds, vg in ks:
        out += f"; @launch kernel={nm} grid=({grid},1,1) block=({block},1,1) lds={lds}\n"
    out += '.amdgcn_target "amdgcn-amd-amdhsa--gfx950"\n.text\n'
    for nm, grid, block, code, lds, vg in ks:
        if "allalign" in EXP or f"al_{nm}" in EXP:
            code = [code[0], "    ; ALIGN ON"] + [l for l in code[1:] if "ALIGN O" not in l]
        if "noalign" not in EXP:
            code = align8(code)
        out += f".globl {nm}\n.p2align 8\n.type {nm},@function\n" + "\n".join(code) + "\n"
    out += '.section .rodata,"a"\n'
    for nm, grid, block, code, lds, vg in ks:
        out += ".p2align 6\n" + kd(nm, vg)
    out = out.replace("0x7fc0de00", "L_joint_kernel_done-L_prep_kernel_pc")
    out = out.replace("0x7fc0de01", "L_conv2_kernel_done-L_conv1_kernel_pc")
    out = out.replace("0x7fc0de02", "L_joint_kernel_done-L_conv2_kernel_pc")
    path = sys.argv[1] if len(sys.argv) > 1 else "standalone__seq2seq_rnn_t_joint__speech.s"
    open(path, "w").write(out)


if __name__ == "__main__":
    main()
```
